```python
import torch

def _softmax(x, axis=-1):
    return torch.softmax(x, dim=axis)
def _gelu(x):
    return torch.nn.functional.gelu(x, approximate="tanh")
def _silu(x):
    return torch.nn.functional.silu(x)
def _sigmoid(x):
    return torch.sigmoid(x)
def _layernorm(x, axis=-1, eps=1e-5):
    m = x.mean(dim=axis, keepdim=True)
    v = x.var(dim=axis, keepdim=True, unbiased=False)
    return (x - m) / torch.sqrt(v + eps)
def _scatter_add(tgt, idx, src, axis=0):
    return tgt.clone().index_add_(axis, idx, src)
def _segment_sum(src, seg, n):
    out = torch.zeros((n,) + src.shape[1:], dtype=src.dtype)
    return out.index_add_(0, seg, src)
def _pad(x, pw):
    flat = tuple(v for pair in reversed(pw) for v in pair)
    return torch.nn.functional.pad(x, flat)

kernel_name = 'concat_heads__mha_block_cached__gqa_block_cached__near_ridge'

def setup_inputs():

    _w = (lambda a: (lambda t: t.to(torch.bfloat16) if t.is_floating_point() else t)(torch.as_tensor(a)))
    def _A_setup():
        B, Sq, D = 16, 192, 640
        H, Sk, Dh = 32, 512, 128
        return {
            "x": _w((lambda *s: torch.randn(*s, dtype=torch.bfloat16) * 0.8)(B, Sq, D)),
            "k_cache": _w((lambda *s: torch.randn(*s, dtype=torch.bfloat16) * 0.8)(B, H, Sk, Dh)),
            "v_cache": _w((lambda *s: torch.randn(*s, dtype=torch.bfloat16) * 0.05)(B, H, Sk, Dh)),
            "wq": _w((lambda *s: torch.randn(*s, dtype=torch.bfloat16) * 0.8)(D, H * Dh) * (D ** -0.5)),
            "wo": _w((lambda *s: torch.randn(*s, dtype=torch.bfloat16) * 0.05)(H * Dh, D) * ((H * Dh) ** -0.5)),
        }
    _A_in = _A_setup()

    def _B_setup():
        B, Sq, D = 16, 192, 640
        Hq, Hkv, Sk, Dh = 32, 32, 512, 128
        assert Hq % Hkv == 0, (Hq, Hkv)
        return {
            "x": _w((lambda *s: torch.randn(*s, dtype=torch.bfloat16) * 0.8)(B, Sq, D)),
            "k_cache": _w((lambda *s: torch.randn(*s, dtype=torch.bfloat16) * 0.8)(B, Hkv, Sk, Dh)),
            "v_cache": _w((lambda *s: torch.randn(*s, dtype=torch.bfloat16) * 0.05)(B, Hkv, Sk, Dh)),
            "wq": _w((lambda *s: torch.randn(*s, dtype=torch.bfloat16) * 0.8)(D, Hq * Dh) * (D ** -0.5)),
            "wo": _w((lambda *s: torch.randn(*s, dtype=torch.bfloat16) * 0.05)(Hq * Dh, D) * ((Hq * Dh) ** -0.5)),
        }
    _B_in = _B_setup()

    return {
        "A_x": _A_in["x"],
        "A_k_cache": _A_in["k_cache"],
        "A_v_cache": _A_in["v_cache"],
        "A_wq": _A_in["wq"],
        "A_wo": _A_in["wo"],
        "B_x": _B_in["x"],
        "B_k_cache": _B_in["k_cache"],
        "B_v_cache": _B_in["v_cache"],
        "B_wq": _B_in["wq"],
        "B_wo": _B_in["wo"],
    }

def reference(A_x, A_k_cache, A_v_cache, A_wq, A_wo, B_x, B_k_cache, B_v_cache, B_wq, B_wo):
    def _A_ref(x, k_cache, v_cache, wq, wo):
        B, Sq, D = x.shape
        H, Dh = 32, 128
        q = (lambda x, *d: x.permute(*d))((x @ wq).reshape(B, Sq, H, Dh), 0, 2, 1, 3)
        scores = torch.einsum("bhqd,bhkd->bhqk", q, k_cache) * (Dh ** -0.5)
        p = _softmax(scores, axis=-1)
        o = torch.einsum("bhqk,bhkd->bhqd", p, v_cache)
        return (lambda x, *d: x.permute(*d))(o, 0, 2, 1, 3).reshape(B, Sq, H * Dh) @ wo

    def _B_ref(x, k_cache, v_cache, wq, wo):
        B, Sq, D = x.shape
        Hq, Dh = 32, 128
        Hkv = k_cache.shape[1]
        rep = Hq // Hkv
        q = (lambda x, *d: x.permute(*d))((x @ wq).reshape(B, Sq, Hq, Dh), 0, 2, 1, 3)
        k = (lambda x, n, axis: torch.repeat_interleave(x, n, dim=axis))(k_cache, rep, axis=1)
        v = (lambda x, n, axis: torch.repeat_interleave(x, n, dim=axis))(v_cache, rep, axis=1)
        scores = torch.einsum("bhqd,bhkd->bhqk", q, k) * (Dh ** -0.5)
        p = _softmax(scores, axis=-1)
        o = torch.einsum("bhqk,bhkd->bhqd", p, v)
        return (lambda x, *d: x.permute(*d))(o, 0, 2, 1, 3).reshape(B, Sq, Hq * Dh) @ wo

    a = _A_ref(A_x, A_k_cache, A_v_cache, A_wq, A_wo)
    b = _B_ref(B_x, B_k_cache, B_v_cache, B_wq, B_wo)
    return torch.concatenate([a, b], axis=-1)
```

```python
import re

def vr(a, n=1):
    return f"v{a}" if n == 1 else f"v[{a}:{a+n-1}]"
def sr(a, n=1):
    return f"s{a}" if n == 1 else f"s[{a}:{a+n-1}]"

_REG = re.compile(r"\b([vsa])(\d+)\b|\b([vsa])\[(\d+):(\d+)\]")
def regs_of(tok):
    out = []
    for m in _REG.finditer(tok):
        if m.group(1):
            out.append((m.group(1), int(m.group(2))))
        else:
            out += [(m.group(3), i) for i in range(int(m.group(4)), int(m.group(5)) + 1)]
    if re.search(r"\bvcc\b", tok): out.append(("s", "vcc"))
    if re.search(r"\bm0\b", tok): out.append(("s", "m0"))
    if re.search(r"\bexec\b", tok): out.append(("s", "exec"))
    return out

TRANS = ("v_exp_f32", "v_log_f32", "v_rcp_f32", "v_rsq_f32", "v_sqrt_f32")

class Ins:
    __slots__ = ("text", "op", "kind", "wr", "rd", "srcC", "states")
    def __init__(self, text):
        self.text = text
        t = text.split(";")[0].strip()
        parts = t.split(None, 1)
        self.op = op = parts[0]
        ops = [x.strip() for x in parts[1].split(",")] if len(parts) > 1 else []
        self.wr, self.rd, self.srcC = [], [], []
        self.states = 1
        if op.endswith(":") or op.startswith("."):
            self.kind = "label"; self.states = 0; return
        if op == "s_nop":
            self.kind = "nop"; self.states = int(ops[0], 0) + 1; return
        if op.startswith("v_mfma"):
            self.kind = "mfma"
            self.wr = regs_of(ops[0]); self.rd = regs_of(ops[1]) + regs_of(ops[2]); self.srcC = regs_of(ops[3])
        elif op.startswith("ds_read") or op.startswith("ds_bpermute"):
            self.kind = "lds"; self.wr = regs_of(ops[0]); self.rd = sum((regs_of(o) for o in ops[1:]), [])
        elif op.startswith("ds_"):
            self.kind = "lds"; self.rd = sum((regs_of(o) for o in ops), [])
        elif op.startswith("buffer_load") or op.startswith("global_load"):
            self.kind = "vmem"
            if re.search(r"\blds\b", t):
                self.rd = sum((regs_of(o) for o in ops), []) + [("s", "m0")]; self.kind = "dma"
            else:
                self.wr = regs_of(ops[0]); self.rd = sum((regs_of(o) for o in ops[1:]), [])
        elif op.startswith("buffer_store") or op.startswith("global_store"):
            self.kind = "store"; self.rd = sum((regs_of(o) for o in ops), [])
        elif op.startswith("global_atomic") or op.startswith("buffer_atomic"):
            self.kind = "vmem"
            if "sc0" in t and op.startswith("global"):
                self.wr = regs_of(ops[0]); self.rd = sum((regs_of(o) for o in ops[1:]), [])
            else:
                self.rd = sum((regs_of(o) for o in ops), [])
                if "sc0" in t: self.wr = regs_of(ops[0])
        elif op.startswith("buffer_"):
            self.kind = "vmem"
        elif op.startswith("v_"):
            self.kind = "trans" if op.replace("_e32", "").replace("_e64", "") in TRANS else "valu"
            if op.startswith("v_permlane") or op.startswith("v_swap"):
                self.wr = regs_of(ops[0]) + regs_of(ops[1]); self.rd = list(self.wr)
            else:
                self.wr = regs_of(ops[0]); self.rd = sum((regs_of(o) for o in ops[1:]), [])
                if op.startswith("v_fmac") : self.rd += regs_of(ops[0])
                if op.startswith("v_add_co") or op.startswith("v_addc_co"):
                    self.wr += regs_of(ops[1]); self.rd = sum((regs_of(o) for o in ops[2:]), [])
                if op.startswith("v_cmpx"): self.wr.append(("s", "exec"))
        elif op.startswith("s_load") or op.startswith("s_memtime") or op.startswith("s_memrealtime") or op.startswith("s_atomic"):
            self.kind = "smem"; self.wr = regs_of(ops[0]); self.rd = sum((regs_of(o) for o in ops[1:]), [])
        elif op.startswith("s_"):
            self.kind = "salu"
            if op.startswith(("s_cmp", "s_cbranch", "s_branch", "s_waitcnt", "s_barrier", "s_setprio", "s_endpgm", "s_sleep")):
                self.rd = sum((regs_of(o) for o in ops), [])
            else:
                self.wr = regs_of(ops[0]); self.rd = sum((regs_of(o) for o in ops[1:]), [])
                if "saveexec" in op: self.wr.append(("s", "exec"))
        else:
            raise ValueError("unknown instr: " + text)

def mfma_passes(op):
    return 4 if "16x16x32" in op else 8

def required_gap(p, c):
    need = 0
    pw, cw, cr = set(p.wr), set(c.wr), set(c.rd)
    valu_p = p.kind in ("valu", "trans"); valu_c = c.kind in ("valu", "trans")
    vw = {r for r in pw if r[0] in "va"}; sw = {r for r in pw if r[0] == "s"}
    if p.kind == "mfma":
        n = mfma_passes(p.op)
        far = {4: 8, 8: 12}[n]
        if c.kind == "mfma":
            if vw & cr: need = max(need, far)
            cc = set(c.srcC)
            if vw & cc and not (p.wr == c.srcC and mfma_passes(c.op) == n):
                need = max(need, {4: 6, 8: 10}[n])
            if vw & cw and not (p.wr == c.srcC):
                need = max(need, {4: 6, 8: 10}[n])
        elif valu_c or c.kind in ("lds", "vmem", "dma", "store"):
            if vw & (cr | cw): need = max(need, far)
        if valu_c and set(p.srcC) & cw: need = max(need, {4: 3, 8: 7}[n])
    if valu_p:
        if c.kind == "mfma" and vw & (cr | set(c.srcC)): need = max(need, 2)
        if c.kind == "mfma" and ("s", "exec") in pw: need = max(need, 4)
        if c.op.startswith("v_permlane") and vw & cr: need = max(need, 2)
        if c.op.startswith(("v_readfirstlane", "v_readlane")) and vw & cr: need = max(need, 1)
        if p.kind == "trans" and c.kind == "valu" and vw & cr: need = max(need, 1)
        if sw and c.kind in ("vmem", "dma", "store") and sw & cr: need = max(need, 5)
        if sw and valu_c and sw & cr: need = max(need, 2)
        if sw and c.kind == "salu" and sw & cr: need = max(need, 1)
        if "dpp" in c.text and vw & cr: need = max(need, 2)
    if p.kind == "salu" and ("s", "m0") in pw and c.kind == "dma": need = max(need, 1)
    if p.kind == "store" and ("x4" in p.op or "x3" in p.op):
        data = set(regs_of(p.text.split(None, 1)[1].split(",")[0 if p.op.startswith("buffer") else 1]))
        if data & cw: need = max(need, 2)
    return need

class Asm:
    def __init__(self, autonop=True):
        self.ins = []
        self.vm = []
        self.lg = []
        self.vmdst = []
        self.autonop = autonop
        self.nops = 0
    def _emit(self, text):
        i = Ins(text)
        if i.kind not in ("label", "nop"):
            gap = 0; need = 0
            for p in reversed(self.ins[-24:]):
                r = required_gap(p, i) if p.kind not in ("label", "nop") else 0
                need = max(need, r - gap)
                gap += p.states
                if gap >= 12: break
            if need > 0:
                if not self.autonop: raise RuntimeError("hazard before: " + text)
                self.ins.append(Ins(f"s_nop {need-1}")); self.nops += 1
        self.ins.append(i)
        return i
    def _auto_wait(self, i):
        use = set(i.rd) | set(i.wr) | set(i.srcC)
        k = -1
        for n, (tag, d) in enumerate(self.lg):
            if d & use: k = n
        kv = -1
        for n, d in enumerate(self.vmdst):
            if d & use: kv = n
        if k >= 0 or kv >= 0:
            self._wait(vm_idx=kv, lg_idx=k)
    def _wait(self, vm_idx=-1, lg_idx=-1):
        parts = []
        if vm_idx >= 0:
            n = len(self.vm) - 1 - vm_idx
            n = min(n, 63)
            parts.append(f"vmcnt({n})")
            keep = n
            self.vm = self.vm[len(self.vm) - keep:] if keep else []
            self.vmdst = self.vmdst[len(self.vmdst) - keep:] if keep else []
        if lg_idx >= 0:
            n = min(len(self.lg) - 1 - lg_idx, 15)
            parts.append(f"lgkmcnt({n})")
            self.lg = self.lg[len(self.lg) - n:] if n else []
        if parts: self._emit("s_waitcnt " + " ".join(parts))
    def e(self, text, tag=None):
        i = Ins(text)
        if i.kind not in ("label", "nop"):
            self._auto_wait(i)
        i = self._emit(text)
        if i.kind == "lds":
            self.lg.append((tag, set(i.wr)))
        elif i.kind in ("vmem", "dma", "store"):
            self.vm.append(tag); self.vmdst.append(set(i.wr))
        return i
    def wait(self, vm=None, lg=None):
        vi = li = -1
        if vm is not None:
            tags = vm if isinstance(vm, (list, tuple, set)) else [vm]
            for n, t in enumerate(self.vm):
                if vm == "all" or t in tags: vi = n
        if lg is not None:
            tags = lg if isinstance(lg, (list, tuple, set)) else [lg]
            for n, (t, d) in enumerate(self.lg):
                if lg == "all" or t in tags: li = n
        self._wait(vi, li)
    def raw_wait(self, text):
        self._emit(text)
    def reset_counters(self):
        self.vm = []; self.vmdst = []; self.lg = []
    def c(self, comment):
        self.ins.append(Ins(".nop_comment"))
        self.ins[-1].text = "; " + comment
    def text(self):
        out = []
        for i in self.ins:
            out.append(i.text if i.kind == "label" else "    " + i.text)
        return "\n".join(out) + "\n"

def interleave(a, mf, fill):
    for k, m in enumerate(mf):
        a.e(m)
        for f in fill[k]:
            if callable(f): f()
            elif isinstance(f, tuple): a.e(f[0], tag=f[1])
            else: a.e(f)
```

```python
import sys, math, struct
from asmlib import *

NAME = "concat_heads__mha_block_cached__gqa_block_cached__near_ridge"
def f32(x): return "0x%08x" % struct.unpack("<I", struct.pack("<f", x))[0]

OPT = dict(nt_kv=True, prio=0)
for a_ in sys.argv[2:]:
    k_, v_ = a_.split("="); OPT[k_] = int(v_)

def mf(d, a, b, c):
    cs = "0" if c is None else vr(c, 4)
    return f"v_mfma_f32_16x16x32_bf16 {vr(d,4)}, {vr(a,4)}, {vr(b,4)}, {cs}"

TILE = 8448
VBASE = 5 * TILE
XW = 10240
LDS1 = 81920

vKV, vKA, vVA = 1, 2, 3
vL = 4
vT = 7
QF, NM, S_, P_, KF, VF, O_ = 12, 60, 72, 96, 120, 136, 160
def Qf(j, ks): return QF + 16 * j + 4 * ks
def Nm(j): return NM + 4 * j
def Sr(u, j): return S_ + 12 * u + 4 * j
def Pr(buf, j): return P_ + 12 * buf + 4 * j
def Or(i, j): return O_ + 12 * i + 4 * j
vW0, vW1, vX0, vX1, vXA0, vXA1 = 152, 153, 154, 155, 156, 157
def Wreg(buf, i): return 40 + 32 * buf + 4 * i
def Xreg(buf, j, s): return 104 + 24 * buf + 8 * j + 4 * s
sX, sW, sK, sV, sO = 32, 36, 40, 44, 48
sWv, sKVL, sXL, sOff, sOff2, sFlag, sTmp = 52, 53, 54, 55, 56, 57, 58

def load_ptrs(a):
    a.e("s_load_dwordx16 s[4:19], s[0:1], 0")
    a.e("s_load_dwordx4 s[20:23], s[0:1], 64")
    a.e("s_load_dwordx4 s[24:27], s[0:1], 80")
    a.e("s_load_dwordx2 s[28:29], s[0:1], 96")

def srd(a, d, lo, hi, off_lo, off_hi, size):
    a.e(f"s_add_u32 s{d}, s{lo}, {off_lo}")
    a.e(f"s_addc_u32 s{d+1}, s{hi}, {off_hi}")
    a.e(f"s_and_b32 s{d+1}, s{d+1}, 0xffff")
    a.e(f"s_mov_b32 s{d+2}, {size}")
    a.e(f"s_mov_b32 s{d+3}, 0x20000")

def phase1():
    a = Asm()
    nt = " nt" if OPT["nt_kv"] else ""
    a.e("s_cmp_ge_u32 s2, 1024")
    a.e("s_cbranch_scc1 L1_end")
    load_ptrs(a)
    a.e("s_and_b32 s60, s2, 1"); a.e("s_lshl_b32 s60, s60, 3")
    a.e("s_bfe_u32 s61, s2, 0x30003"); a.e("s_add_u32 s60, s60, s61")
    a.e("s_bfe_u32 s61, s2, 0x10001"); a.e("s_lshl_b32 s61, s61, 4")
    a.e("s_lshr_b32 s62, s2, 6"); a.e("s_add_u32 s61, s61, s62")
    a.e("s_bfe_u32 s62, s2, 0x10002")
    a.e("v_lshrrev_b32 v7, 6, v0")
    a.e("v_and_b32 v0, 63, v0")
    a.e(f"v_readfirstlane_b32 s{sWv}, v7")
    a.e("v_and_b32 v8, 15, v0")
    a.e("v_lshrrev_b32 v9, 4, v0")
    a.e("v_and_b32 v10, 7, v8"); a.e("v_mul_u32_u24 v10, 1056, v10")
    a.e("v_lshrrev_b32 v11, 3, v8"); a.e(f"v_lshl_add_u32 v10, v11, 8, v10")
    a.e(f"v_lshl_add_u32 v{vKA}, v9, 4, v10")
    a.e("v_bfe_u32 v10, v0, 2, 3"); a.e("v_mul_u32_u24 v10, 1056, v10")
    a.e("v_lshrrev_b32 v11, 5, v0"); a.e("v_lshl_add_u32 v10, v11, 8, v10")
    a.e("v_and_b32 v11, 3, v0"); a.e("v_lshl_add_u32 v10, v11, 3, v10")
    a.e(f"v_add_u32 v{vVA}, {VBASE}, v10")
    a.e("v_lshlrev_b32 v10, 4, v0"); a.e(f"v_lshl_add_u32 v{vKV}, v7, 11, v10")
    a.e("v_and_b32 v10, 1, v9"); a.e("v_lshlrev_b32 v10, 4, v10")
    a.e("v_lshrrev_b32 v11, 1, v9"); a.e("v_lshl_add_u32 v10, v11, 2, v10")
    a.e("v_lshrrev_b32 v11, 1, v7"); a.e("v_lshl_add_u32 v10, v11, 3, v10")
    a.e("v_and_b32 v11, 1, v7"); a.e("v_lshl_add_u32 v10, v11, 1, v10")
    a.e("v_lshlrev_b32 v10, 13, v10"); a.e(f"v_lshl_add_u32 v{vW0}, v8, 4, v10")
    a.e(f"v_add_u32 v{vW1}, 8192, v{vW0}")
    a.e("v_mul_u32_u24 v10, 48, v7"); a.e("v_lshrrev_b32 v11, 3, v0"); a.e("v_add_u32 v10, v10, v11")
    a.e("v_mul_u32_u24 v10, 1280, v10")
    a.e("v_and_b32 v11, 7, v0"); a.e("v_xor_b32 v11, v11, v9")
    a.e(f"v_lshl_add_u32 v{vX0}, v11, 4, v10")
    a.e("v_xor_b32 v11, 4, v11"); a.e("v_add_u32 v10, 10240, v10")
    a.e(f"v_lshl_add_u32 v{vX1}, v11, 4, v10")
    a.e(f"v_mul_u32_u24 v10, {XW}, v7"); a.e("v_lshl_add_u32 v10, v8, 7, v10")
    a.e("v_lshrrev_b32 v11, 1, v8"); a.e("v_xor_b32 v11, v11, v9")
    a.e(f"v_lshl_add_u32 v{vXA0}, v11, 4, v10")
    a.e("v_xor_b32 v11, 4, v11"); a.e(f"v_lshl_add_u32 v{vXA1}, v11, 4, v10")
    a.e(f"s_mul_i32 s{sKVL}, s{sWv}, 2112")
    a.e(f"s_mul_i32 s{sXL}, s{sWv}, {XW}")
    a.e(f"s_mov_b32 s{sFlag}, 0")
    a.raw_wait("s_waitcnt lgkmcnt(0)")
    a.e("s_cmp_eq_u32 s62, 0")
    a.e("s_cselect_b64 s[4:5], s[4:5], s[14:15]")
    a.e("s_cselect_b64 s[6:7], s[6:7], s[16:17]")
    a.e("s_cselect_b64 s[8:9], s[8:9], s[18:19]")
    a.e("s_cselect_b64 s[10:11], s[10:11], s[20:21]")
    a.e("s_mul_i32 s63, s60, 245760")
    srd(a, sX, 4, 5, "s63", 0, 245760)
    a.e("s_lshl_b32 s63, s61, 8")
    srd(a, sW, 10, 11, "s63", 0, 640 * 8192 - 7936)
    a.e("s_lshl_b32 s63, s60, 5"); a.e("s_add_u32 s63, s63, s61")
    a.e("s_lshl_b32 s64, s63, 17")
    srd(a, sK, 6, 7, "s64", 0, 131072)
    srd(a, sV, 8, 9, "s64", 0, 131072)
    a.e("s_lshl_b32 s64, s62, 9"); a.e("s_add_u32 s63, s63, s64")
    a.e("s_mul_i32 s64, s63, 49152")
    srd(a, sO, 28, 29, "s64", 0, 49152)

    def dma_x(n):
        c, j = divmod(n, 3)
        a.e(f"s_mov_b32 s{sOff}, {j*20480 + c*128}")
        for i, v in enumerate((vX0, vX1)):
            a.e(f"s_add_u32 m0, s{sXL}, {(n % 5)*2048 + i*1024}")
            a.e(f"buffer_load_dwordx4 v{v}, {sr(sX,4)}, s{sOff} offen lds", tag=("X", n))
    def dma_w(s):
        a.e(f"s_mov_b32 s{sOff2}, {s*262144}")
        for e, v in enumerate((vW0, vW1)):
            a.e(f"s_add_u32 m0, s{sKVL}, {VBASE + (s % 4)*TILE + e*1056}")
            a.e(f"buffer_load_dwordx4 v{v}, {sr(sW,4)}, s{sOff2} offen lds", tag=("W", s))
    def kslot(t): return VBASE if t == 0 else ((t - 1) % 5) * TILE
    def vslot(t): return ((t + 1) % 4) * TILE
    def dma_kv(which, t):
        base = kslot(t) if which == "K" else VBASE + vslot(t)
        s = sK if which == "K" else sV
        so = sOff if which == "K" else sOff2
        a.e(f"s_mov_b32 s{so}, {t*8192}")
        a.e(f"s_add_u32 m0, s{sKVL}, {base}")
        a.e(f"buffer_load_dwordx4 v{vKV}, {sr(s,4)}, s{so} offen{nt} lds", tag=(which, t))
        a.e(f"s_add_u32 m0, s{sKVL}, {base + 32}")
        a.e(f"buffer_load_dwordx4 v{vKV}, {sr(s,4)}, s{so} offen offset:1024{nt} lds", tag=(which, t))
    def rd_x(n):
        c, j = divmod(n, 3)
        return [(f"ds_read_b128 {vr(Xreg(c & 1, j, s),4)}, v{(vXA0, vXA1)[s]} offset:{(n % 5)*2048}", ("xr", n)) for s in range(2)]
    def rd_tr(dst, off, i):
        return [f"ds_read_b64_tr_b16 {vr(dst + 2*e, 2)}, v{vVA} offset:{off + e*512 + i*32}" for e in range(2)]
    def rd_k(dst, t, u):
        return [f"ds_read_b128 {vr(dst + 4*ks,4)}, v{vKA} offset:{kslot(t) + u*512 + ks*64}" for ks in range(4)]

    a.c("Q-projection prologue")
    dma_x(0); dma_w(0); dma_x(1); dma_x(2); dma_w(1); dma_x(3); dma_x(4); dma_w(2); dma_w(3)
    a.wait(vm=[("X", 2)])
    a.e("s_barrier")
    for i in range(8):
        for r in rd_tr(Wreg(0, i), 0, i): a.e(r)
    for n in range(3):
        for r, tg in rd_x(n): a.e(r, tag=tg)
    a.wait(lg=[("xr", 1)])
    dma_x(5); dma_x(6)
    for s in range(20):
        c, sp = divmod(s, 2)
        a.c(f"Q step {s}")
        if s + 1 < 20:
            a.wait(vm=[("W", s + 1)], lg="all")
            a.e("s_barrier")
        else:
            a.wait(lg="all")
            a.e("s_barrier")
        mfs = [mf(Or(i, j), Wreg(s & 1, i), Xreg(c & 1, j, sp), None if s == 0 else Or(i, j)) for i in range(8) for j in range(3)]
        fill = [[] for _ in range(24)]
        if s + 4 < 20: fill[0].append(lambda s=s: dma_w(s + 4))
        elif s == 16: fill[0].append(lambda: dma_kv("K", 0))
        elif s == 17: fill[0].append(lambda: dma_kv("V", 0))
        elif s == 18:
            fill[0].append(lambda: dma_kv("K", 1)); fill[4].append(lambda: dma_kv("V", 1)); fill[8].append(lambda: dma_kv("K", 2))
            fill[12].append(lambda: dma_kv("K", 3))
        elif s == 19:
            fill[0].append(lambda: dma_kv("V", 2)); fill[4].append(lambda: dma_kv("K", 4)); fill[8].append(lambda: dma_kv("K", 5))
        if s + 1 < 20:
            rds = []
            for i in range(8): rds += rd_tr(Wreg((s + 1) & 1, i), ((s + 1) % 4) * TILE, i)
            pos = [1,2,3,4,5,6,7,9,10,11,12,13,14,15,18,19]
            for r, p in zip(rds, pos): fill[p].append(r)
        ticks = [(0, 3*(c+1)), (16, 3*(c+1)+1)] if sp == 0 else [(8, 3*(c+1)+2)]
        for p, n in ticks:
            if n < 30:
                def tick(n=n):
                    a.wait(vm=[("X", n)])
                    for r, tg in rd_x(n): a.e(r, tag=tg)
                fill[p].append(tick)
                if n + 4 < 30:
                    def tick2(n=n):
                        a.wait(lg=[("xr", n - 1)])
                        dma_x(n + 4)
                    fill[p + 1].append(tick2)
        interleave(a, mfs, fill)
    a.c("Q conversion: scale, pack, re-lay out as B fragments")
    a.e(f"s_mov_b32 s{sTmp}, {f32(math.log2(math.e) / math.sqrt(128.0))}")
    def conv(j, p):
        d = Qf(j, p)
        for u in range(2):
            o = Or(2*p + u, j)
            for r in range(4): a.e(f"v_mul_f32 v{o+r}, s{sTmp}, v{o+r}")
        for u in range(2):
            o = Or(2*p + u, j)
            a.e(f"v_cvt_pk_bf16_f32 v{d+2*u}, v{o}, v{o+1}")
            a.e(f"v_cvt_pk_bf16_f32 v{d+2*u+1}, v{o+2}, v{o+3}")
    def swz(j, p):
        d = Qf(j, p)
        a.e(f"v_permlane32_swap_b32 v{d}, v{d+2}")
        a.e(f"v_permlane32_swap_b32 v{d+1}, v{d+3}")
    def swz2(j, p):
        d = Qf(j, p)
        a.e(f"v_permlane16_swap_b32 v{d}, v{d+2}")
        a.e(f"v_permlane16_swap_b32 v{d+1}, v{d+3}")
    order = [(j, p) for p in range(4) for j in range(3)]
    for n, (j, p) in enumerate(order):
        conv(j, p)
        if n >= 1: swz(*order[n-1])
        if n >= 2: swz2(*order[n-2])
        if n == 7:
            a.wait(vm=[("K", 0)])
            a.e("s_barrier")
            for r in rd_k(KF, 0, 0) + rd_k(VF, 0, 1): a.e(r)
    swz(*order[-1]); swz2(*order[-2]); swz2(*order[-1])
    a.c("tile 0: scores, stand-in row max (max over first 32 keys)")
    for u, kf in ((0, KF), (1, VF)):
        for j in range(3):
            for ks in range(4):
                a.e(mf(Sr(u, j), kf + 4*ks, Qf(j, ks), None if ks == 0 else Sr(u, j)))
    a.wait(vm=[("K", 1), ("V", 0)], lg="all")
    a.e("s_barrier")
    dma_kv("V", 3)
    for r in rd_k(KF, 1, 0): a.e(r)
    def rowred(op, regs, tmps):
        for r, t in zip(regs, tmps): a.e(f"v_mov_b32 v{t}, v{r}")
        for r, t in zip(regs, tmps): a.e(f"v_permlane32_swap_b32 v{r}, v{t}")
        for r, t in zip(regs, tmps): a.e(f"{op} v{r}, v{r}, v{t}")
        for r, t in zip(regs, tmps): a.e(f"v_mov_b32 v{t}, v{r}")
        for r, t in zip(regs, tmps): a.e(f"v_permlane16_swap_b32 v{r}, v{t}")
        for r, t in zip(regs, tmps): a.e(f"{op} v{r}, v{r}, v{t}")
    for j in range(3):
        n = Nm(j); s0 = Sr(0, j); s1 = Sr(1, j)
        a.e(f"v_max3_f32 v{n}, v{s0}, v{s0+1}, v{s0+2}")
        a.e(f"v_max3_f32 v{n+1}, v{s0+3}, v{s1}, v{s1+1}")
        a.e(f"v_max3_f32 v{n}, v{n}, v{s1+2}, v{s1+3}")
        a.e(f"v_max_f32 v{n}, v{n}, v{n+1}")
    rowred("v_max_f32", [Nm(j) for j in range(3)], [Nm(j) + 1 for j in range(3)])
    for j in range(3):
        n = Nm(j)
        a.e(f"v_sub_f32 v{n}, 0, v{n}")
        for r in range(1, 4): a.e(f"v_mov_b32 v{n+r}, v{n}")
        a.e(f"v_mov_b32 v{vL+j}, 0")
    for u in range(2):
        for j in range(3):
            for r in range(4): a.e(f"v_add_f32 v{Sr(u,j)+r}, v{Sr(u,j)+r}, v{Nm(j)}")
    def sm_gaps(u, buf):
        g = [[] for _ in range(24)]
        for k in range(12):
            j, r = divmod(k, 4)
            s = Sr(u, j) + r
            g[2*k].append(f"v_exp_f32 v{s}, v{s}")
            g[2*k+1].append(f"v_add_f32 v{vL+j}, v{vL+j}, v{s}")
            if r & 1:
                g[2*k+1].append(f"v_cvt_pk_bf16_f32 v{Pr(buf,j) + 2*u + (r>>1)}, v{s-1}, v{s}")
        return g
    def flat(gs):
        ex = [x for g in gs for x in g if isinstance(x, str) and x.startswith("v_exp")]
        ot = [x for g in gs for x in g if not (isinstance(x, str) and x.startswith("v_exp"))]
        for x in [y for y in ot if not isinstance(y, str) or y.startswith("ds_")] + ex + [y for y in ot if isinstance(y, str) and not y.startswith("ds_")]:
            if callable(x): x()
            else: a.e(x)
    flat(sm_gaps(0, 0)); flat(sm_gaps(1, 0)[:12])
    def qk(u): return [mf(Sr(u, j), KF + 4*ks, Qf(j, ks), Nm(j) if ks == 0 else Sr(u, j)) for j in range(3) for ks in range(4)]
    def pv(t, half): return [mf(Or(4*half + i, j), VF + 4*i, Pr(t & 1, j), None if t == 0 else Or(4*half + i, j)) for i in range(4) for j in range(3)]
    def rd_v(t, half):
        r = []
        for i in range(4): r += rd_tr(VF + 4*i, vslot(t), 4*half + i)
        return r
    def merge(g, rds, pos):
        g = [list(x) for x in g]
        for r, p in zip(rds, pos): g[p].append(r)
        return g
    P8 = [0, 1, 2, 3, 4, 5, 6, 7]; P4 = [0, 2, 4, 6]
    for t in range(16):
        last = (t == 15)
        a.c(f"stage {t}")
        g = merge(sm_gaps(1, t & 1)[12:], rd_v(t, 0), P8)
        if not last: interleave(a, qk(0), g)
        else: flat(g)
        if not last:
            interleave(a, pv(t, 0), merge(sm_gaps(0, (t+1) & 1)[:12], rd_k(KF, t+1, 1), P4))
            interleave(a, qk(1), merge(sm_gaps(0, (t+1) & 1)[12:], rd_v(t, 1), P8))
            need = [("V", t+1)] + ([("K", t+2)] if t + 2 < 16 else [])
            a.wait(vm=need, lg="all")
            a.e("s_barrier")
            g = sm_gaps(1, (t+1) & 1)[:12]
            if t + 2 < 16: g = merge(g, rd_k(KF, t+2, 0), P4)
            g = [list(x) for x in g]
            if t + 6 < 16: g[7].append(lambda t=t: dma_kv("K", t + 6))
            if t + 4 < 16: g[9].append(lambda t=t: dma_kv("V", t + 4))
            interleave(a, pv(t, 1), g)
        else:
            rds = []
            for i in range(4): rds += rd_tr(KF + 4*i, vslot(t), 4 + i)
            interleave(a, pv(t, 0), merge([[] for _ in range(12)], rds, P8))
            for i in range(4):
                for j in range(3): a.e(mf(Or(4+i, j), KF + 4*i, Pr(t & 1, j), Or(4+i, j)))
    assert not a.vm and not a.lg, (a.vm, a.lg)
    a.e("L1_epi:")
    rowred("v_add_f32", [vL, vL+1, vL+2], [vT, vT+1, vT+2])
    a.e(f"s_cmp_lg_u32 s{sFlag}, 0")
    a.e("s_cbranch_scc1 L1_epi2")
    a.e(f"v_add_f32 v{vT+1}, v{vL}, v{vL+1}")
    a.e(f"v_add_f32 v{vT+1}, v{vT+1}, v{vL+2}")
    a.e(f"v_mov_b32 v{vT+2}, {f32(2.0**30)}")
    a.e(f"v_cmp_nle_f32 vcc, v{vT+1}, v{vT+2}")
    a.e("s_nop 4")
    a.e("s_cbranch_vccnz L1_slow")
    a.e("L1_epi2:")
    for j in range(3): a.e(f"v_rcp_f32 v{vL+j}, v{vL+j}")
    a.e(f"s_mul_i32 s{sTmp}, s{sWv}, 3072")
    a.e(f"v_lshlrev_b32 v{vT}, 4, v0")
    a.e(f"v_add_u32 v{vT}, s{sTmp}, v{vT}")
    k = 0
    for p in range(4):
        a.e(f"s_mov_b32 s{sOff}, {p*12288}")
        for j in range(3):
            d = S_ + 4 * (k % 12); k += 1
            for u in range(2):
                o = Or(2*p + u, j)
                for r in range(4): a.e(f"v_mul_f32 v{o+r}, v{o+r}, v{vL+j}")
                a.e(f"v_cvt_pk_bf16_f32 v{d+2*u}, v{o}, v{o+1}")
                a.e(f"v_cvt_pk_bf16_f32 v{d+2*u+1}, v{o+2}, v{o+3}")
            a.e(f"buffer_store_dwordx4 {vr(d,4)}, v{vT}, {sr(sO,4)}, s{sOff} offen offset:{j*1024}")
    a.e("L1_end:")
    a.e("s_endpgm")
    a.reset_counters()
    a.e("L1_slow:")
    sTk, sTv, sI, sJ = 60, 61, 62, 63
    vK2, vV2, vLin = 152, 153, 154
    a.e(f"s_mul_i32 s{sTk}, s{sWv}, {TILE}")
    a.e(f"s_add_u32 s{sTv}, s{sTk}, {6*TILE}")
    a.e(f"s_cmp_eq_u32 s{sWv}, 3")
    a.e(f"s_cselect_b32 s{sTv}, {4*TILE}, s{sTv}")
    a.e(f"v_add_u32 v{vK2}, s{sTk}, v{vKA}")
    a.e(f"v_subrev_u32 v{vV2}, {VBASE}, v{vVA}")
    a.e(f"v_add_u32 v{vV2}, s{sTv}, v{vV2}")
    a.e(f"v_lshlrev_b32 v{vLin}, 4, v0")
    for j in range(3): a.e(f"v_mov_b32 v{vT+j}, 0xff800000")
    def slow_dma(srdreg, sbase):
        for b in range(8):
            a.e(f"s_add_u32 s{sJ}, s{sI}, {b*1024}")
            a.e(f"s_add_u32 m0, s{sbase}, {b*1056}")
            a.e(f"buffer_load_dwordx4 v{vLin}, {sr(srdreg,4)}, s{sJ} offen lds", tag="d")
    def slow_qk(cinit):
        for u, kf in ((0, KF), (1, VF)):
            for ks in range(4): a.e(f"ds_read_b128 {vr(kf + 4*ks,4)}, v{vK2} offset:{u*512 + ks*64}")
        for u, kf in ((0, KF), (1, VF)):
            for j in range(3):
                for ks in range(4):
                    a.e(mf(Sr(u, j), kf + 4*ks, Qf(j, ks), (Nm(j) if cinit else None) if ks == 0 else Sr(u, j)))
    a.e(f"s_mov_b32 s{sI}, 0")
    a.e("L1_slow_p1:")
    slow_dma(sK, sTk)
    a.wait(vm="all")
    slow_qk(False)
    for j in range(3):
        for u in range(2):
            s = Sr(u, j)
            a.e(f"v_max3_f32 v{vT+j}, v{vT+j}, v{s}, v{s+1}")
            a.e(f"v_max3_f32 v{vT+j}, v{vT+j}, v{s+2}, v{s+3}")
    a.e(f"s_add_u32 s{sI}, s{sI}, 8192")
    a.e(f"s_cmp_lt_u32 s{sI}, 131072")
    a.e("s_cbranch_scc1 L1_slow_p1")
    rowred("v_max_f32", [vT, vT+1, vT+2], [Nm(j) for j in range(3)])
    for j in range(3):
        for r in range(4): a.e(f"v_sub_f32 v{Nm(j)+r}, 0, v{vT+j}")
        a.e(f"v_mov_b32 v{vL+j}, 0")
    for r in range(96): a.e(f"v_mov_b32 v{O_+r}, 0")
    a.e(f"s_mov_b32 s{sI}, 0")
    a.e("L1_slow_p2:")
    slow_dma(sK, sTk); slow_dma(sV, sTv)
    a.wait(vm="all")
    slow_qk(True)
    flat(sm_gaps(0, 0)); flat(sm_gaps(1, 0))
    for half, fr in ((0, KF), (1, VF)):
        for i in range(4):
            for e in range(2):
                a.e(f"ds_read_b64_tr_b16 {vr(fr + 4*i + 2*e, 2)}, v{vV2} offset:{e*512 + (4*half+i)*32}")
    for half, fr in ((0, KF), (1, VF)):
        for i in range(4):
            for j in range(3): a.e(mf(Or(4*half+i, j), fr + 4*i, Pr(0, j), Or(4*half+i, j)))
    a.e(f"s_add_u32 s{sI}, s{sI}, 8192")
    a.e(f"s_cmp_lt_u32 s{sI}, 131072")
    a.e("s_nop 7")
    a.e("s_cbranch_scc1 L1_slow_p2")
    a.e(f"s_mov_b32 s{sFlag}, 1")
    a.e("s_branch L1_epi")
    return a

STG = 32768
LDS2 = 4 * STG
def phase2():
    a = Asm()
    sA, sB, sC1, sOut = 32, 36, 40, 44
    sWv, sL0, sL1, sL2, sL3 = 48, 49, 50, 51, 52
    sOffO, sOffW, sOff1, sInc1, sCnt, sTmp = 53, 54, 55, 56, 57, 58
    vC0, vC1, vC2, vC3 = 1, 2, 3, 4
    vB, vAE, vAO = 5, 7, 9
    ACC = 16
    def Acc(ii, j): return ACC + 12 * ii + 4 * j
    def Af(buf, ii): return 76 + 32 * buf + 4 * ii
    def Bf(buf, j): return 76 + 32 * buf + 20 + 4 * j
    a.e("s_cmp_ge_u32 s2, 256")
    a.e("s_cbranch_scc1 L2_end")
    load_ptrs(a)
    a.e("s_bfe_u32 s60, s2, 0x10002")
    a.e("s_and_b32 s61, s2, 3"); a.e("s_lshl_b32 s61, s61, 2")
    a.e("s_lshr_b32 s62, s2, 6"); a.e("s_add_u32 s61, s61, s62")
    a.e("s_bfe_u32 s62, s2, 0x10003")
    a.e("s_bfe_u32 s63, s2, 0x20004")
    a.e("v_lshrrev_b32 v11, 6, v0")
    a.e("v_and_b32 v0, 63, v0")
    a.e(f"v_readfirstlane_b32 s{sWv}, v11")
    a.e("v_lshlrev_b32 v12, 4, v0")
    def o_voff(dst, oi_s):
        a.e(f"s_cmp_ge_u32 s{oi_s}, 6")
        a.e(f"s_cselect_b32 s64, 6144, 0")
        a.e(f"s_lshl_b32 s65, s{oi_s}, 10"); a.e("s_add_u32 s64, s64, s65")
        a.e("s_mul_i32 s65, s62, 6144"); a.e("s_add_u32 s64, s64, s65")
        a.e(f"v_add_u32 v{dst}, s64, v12")
    def w_voff(dst, wi_s):
        a.e(f"s_lshl_b32 s64, s{wi_s}, 6")
        a.e("v_add_u32 v13, s64, v0")
        a.e("v_mul_u32_u24 v14, 52429, v13"); a.e("v_lshrrev_b32 v14, 20, v14")
        a.e("v_mul_u32_u24 v15, 20, v14"); a.e("v_sub_u32 v13, v13, v15")
        a.e("v_bfe_u32 v15, v14, 2, 1"); a.e("v_lshlrev_b32 v15, 1, v15"); a.e("v_xor_b32 v13, v13, v15")
        a.e("v_mul_u32_u24 v14, 1280, v14"); a.e(f"v_lshl_add_u32 v{dst}, v13, 4, v14")
        a.e("s_mul_i32 s64, s63, 320"); a.e(f"v_add_u32 v{dst}, s64, v{dst}")
    a.e("s_nop 2")
    o_voff(vC0, sWv)
    a.e(f"s_lshl_b32 s{sL0}, s{sWv}, 10")
    w_voff(vC2, sWv)
    a.e(f"s_add_u32 s{sL2}, s{sL0}, 12288")
    a.e(f"s_add_u32 s66, s{sWv}, 8")
    w_voff(vC3, 66)
    a.e(f"s_add_u32 s{sL3}, s{sL2}, 8192")
    o_voff(vC1, 66)
    a.e(f"s_add_u32 s66, s{sWv}, 12")
    w_voff(76, 66)
    a.e(f"s_cmp_lt_u32 s{sWv}, 4")
    a.e("s_cselect_b64 vcc, -1, 0")
    a.e(f"v_cndmask_b32 v{vC1}, v76, v{vC1}, vcc")
    a.e(f"s_mov_b32 s{sInc1}, 81920"); a.e(f"s_cselect_b32 s{sInc1}, 24576, s{sInc1}")
    a.e(f"s_mov_b32 s64, {12288 + 12288}"); a.e(f"s_cselect_b32 s64, 8192, s64")
    a.e(f"s_add_u32 s{sL1}, s{sL0}, s64")
    a.e(f"s_lshr_b32 s64, s{sWv}, 2"); a.e(f"s_and_b32 s65, s{sWv}, 1"); a.e(f"s_bfe_u32 s66, s{sWv}, 0x10001")
    a.e("s_mul_i32 s67, s64, 6144"); a.e("s_mul_i32 s68, s65, 3072"); a.e("s_add_u32 s67, s67, s68")
    a.e(f"v_add_u32 v{vB}, s67, v12"); a.e(f"v_add_u32 v{vB+1}, 0x10000, v{vB}")
    a.e("v_lshrrev_b32 v13, 2, v0"); a.e("v_mul_u32_u24 v13, 320, v13")
    a.e("v_and_b32 v14, 3, v0"); a.e("v_lshl_add_u32 v13, v14, 3, v13")
    a.e("s_mul_i32 s67, s64, 10240"); a.e("s_mul_i32 s68, s66, 160"); a.e("s_add_u32 s67, s67, s68"); a.e("s_add_u32 s67, s67, 12288")
    a.e("v_add_u32 v13, s67, v13")
    a.e("v_bfe_u32 v14, v0, 4, 1"); a.e("v_lshlrev_b32 v14, 5, v14")
    a.e("v_add_u32 v76, v13, v14"); a.e("v_sub_u32 v77, v13, v14")
    a.e("s_cmp_eq_u32 s66, 0")
    a.e("s_cselect_b64 vcc, -1, 0")
    a.e(f"v_cndmask_b32 v{vAE}, v77, v76, vcc"); a.e(f"v_cndmask_b32 v{vAO}, v76, v77, vcc")
    a.e(f"v_add_u32 v{vAE+1}, 0x10000, v{vAE}"); a.e(f"v_add_u32 v{vAO+1}, 0x10000, v{vAO}")
    a.raw_wait("s_waitcnt lgkmcnt(0)")
    a.e("s_cmp_eq_u32 s60, 0")
    a.e("s_cselect_b64 s[12:13], s[12:13], s[22:23]")
    srd(a, sA, 12, 13, 0, 0, 4096 * 1280)
    a.e("s_lshl_b32 s67, s60, 4"); a.e("s_add_u32 s67, s67, s61"); a.e("s_mul_i32 s67, s67, 1572864")
    srd(a, sB, 28, 29, "s67", 0, 1572864)
    a.e(f"s_cmp_lt_u32 s{sWv}, 4")
    a.e(f"s_cselect_b64 s[{sC1}:{sC1+1}], s[{sB}:{sB+1}], s[{sA}:{sA+1}]")
    a.e(f"s_cselect_b32 s{sC1+2}, s{sB+2}, s{sA+2}")
    a.e(f"s_mov_b32 s{sC1+3}, 0x20000")
    a.e("s_mul_i32 s67, s61, 491520"); a.e("s_mul_i32 s68, s62, 245760"); a.e("s_add_u32 s67, s67, s68")
    a.e("s_mul_i32 s68, s60, 1280"); a.e("s_add_u32 s67, s67, s68")
    a.e("s_mul_i32 s68, s63, 320"); a.e("s_add_u32 s67, s67, s68")
    srd(a, sOut, 24, 25, "s67", 0, 95 * 2560 + 320)
    a.e(f"s_mov_b32 s{sOffO}, 0"); a.e(f"s_mov_b32 s{sOffW}, 0"); a.e(f"s_mov_b32 s{sOff1}, 0")
    def dma(ch, slot):
        sl, v, s, so = [(sL0, vC0, sB, sOffO), (sL1, vC1, sC1, sOff1), (sL2, vC2, sA, sOffW), (sL3, vC3, sA, sOffW)][ch]
        a.e(f"s_add_u32 m0, s{sl}, {slot*STG}")
        a.e(f"buffer_load_dwordx4 v{v}, {sr(s,4)}, s{so} offen lds", tag="d")
    def adv():
        a.e(f"s_add_u32 s{sOffO}, s{sOffO}, 24576")
        a.e(f"s_add_u32 s{sOffW}, s{sOffW}, 81920")
        a.e(f"s_add_u32 s{sOff1}, s{sOff1}, s{sInc1}")
    def reads(buf, slot):
        hi = slot >> 1; off = (slot & 1) * STG
        r = []
        for j in range(3): r.append(f"ds_read_b128 {vr(Bf(buf,j),4)}, v{vB+hi} offset:{off + j*1024}")
        for ii in range(5):
            v = (vAE, vAO)[ii & 1] + hi
            for e in range(2): r.append(f"ds_read_b64_tr_b16 {vr(Af(buf,ii)+2*e,2)}, v{v} offset:{off + e*5120 + ii*32}")
        return r
    for sl in range(4):
        for ch in range(4): dma(ch, sl)
        adv()
    for r in range(60): a.e(f"v_mov_b32 v{ACC+r}, 0")
    a.raw_wait("s_waitcnt vmcnt(12)")
    a.e("s_barrier")
    for r in reads(0, 0): a.e(r)
    a.e(f"s_mov_b32 s{sCnt}, 16")
    a.reset_counters()
    a.e(".p2align 6")
    a.e("L2_loop:")
    for st in range(4):
        a.reset_counters()
        a.raw_wait("s_waitcnt vmcnt(8) lgkmcnt(0)")
        a.e("s_barrier")
        mfs = [mf(Acc(ii, j), Af(st & 1, ii), Bf(st & 1, j), Acc(ii, j)) for ii in range(5) for j in range(3)]
        fill = [[] for _ in range(15)]
        for p, r in enumerate(reads((st + 1) & 1, (st + 1) % 4)): fill[p].append(r)
        for ch, p in enumerate((1, 4, 7, 10)): fill[p].append(lambda ch=ch, st=st: dma(ch, st))
        fill[13].append(adv)
        if st == 3:
            fill[14].append(f"s_sub_u32 s{sCnt}, s{sCnt}, 1")
            fill[14].append(f"s_cmp_lg_u32 s{sCnt}, 0")
        interleave(a, mfs, fill)
    a.e("s_cbranch_scc1 L2_loop")
    a.reset_counters()
    a.raw_wait("s_waitcnt vmcnt(0) lgkmcnt(0)")
    a.e("s_barrier")
    vR = 76
    a.e(f"s_and_b32 s64, s{sWv}, 3"); a.e("s_mul_i32 s64, s64, 15360")
    a.e(f"v_add_u32 v{vR}, s64, v12")
    a.e(f"s_cmp_lt_u32 s{sWv}, 4")
    a.e("s_cbranch_scc1 L2_lo1")
    for k in range(15): a.e(f"ds_write_b128 v{vR}, {vr(ACC+4*k,4)} offset:{k*1024}")
    a.raw_wait("s_waitcnt lgkmcnt(0)")
    a.e("L2_lo1:")
    a.reset_counters()
    a.e("s_barrier")
    OUTB = 65536; RS = 336
    a.e(f"s_cmp_ge_u32 s{sWv}, 4")
    a.e("s_cbranch_scc1 L2_hi2")
    for k in range(15): a.e(f"ds_read_b128 {vr(80+4*k,4)}, v{vR} offset:{k*1024}")
    a.e("v_and_b32 v13, 15, v0"); a.e(f"v_mul_u32_u24 v13, {RS}, v13")
    a.e("v_lshrrev_b32 v14, 4, v0"); a.e("v_lshl_add_u32 v13, v14, 3, v13")
    a.e(f"s_mul_i32 s67, s65, {48*RS}"); a.e("s_mul_i32 s68, s66, 160"); a.e("s_add_u32 s67, s67, s68"); a.e(f"s_add_u32 s67, s67, {OUTB}")
    a.e("v_add_u32 v13, s67, v13")
    for ii in range(5):
        for j in range(3):
            k = 3*ii + j; c = Acc(ii, j); t = 80 + 4*k
            for r in range(4): a.e(f"v_add_f32 v{c+r}, v{c+r}, v{t+r}")
            a.e(f"v_cvt_pk_bf16_f32 v{c}, v{c}, v{c+1}")
            a.e(f"v_cvt_pk_bf16_f32 v{c+1}, v{c+2}, v{c+3}")
            a.e(f"ds_write_b64 v13, {vr(c,2)} offset:{j*16*RS + ii*32}")
    a.raw_wait("s_waitcnt lgkmcnt(0)")
    a.e("L2_hi2:")
    a.reset_counters()
    a.e("s_barrier")
    a.e(f"s_lshl_b32 s64, s{sWv}, 6")
    for it in range(4):
        a.e(f"s_add_u32 s65, s64, {it*512}")
        a.e("v_add_u32 v13, s65, v0")
        a.e("v_mul_u32_u24 v14, 52429, v13"); a.e("v_lshrrev_b32 v14, 20, v14")
        a.e("v_mul_u32_u24 v15, 20, v14"); a.e("v_sub_u32 v13, v13, v15")
        a.e("v_lshlrev_b32 v13, 4, v13")
        a.e(f"v_mul_u32_u24 v15, {RS}, v14")
        a.e("v_add_u32 v15, v15, v13"); a.e(f"v_add_u32 v15, {OUTB}, v15")
        a.e(f"ds_read_b128 {vr(80+4*it,4)}, v15")
        a.e("v_mul_u32_u24 v14, 2560, v14"); a.e(f"v_add_u32 v{96+it}, v14, v13")
    for it in range(4):
        a.e(f"buffer_store_dwordx4 {vr(80+4*it,4)}, v{96+it}, {sr(sOut,4)}, 0 offen")
    a.e("L2_end:")
    a.e("s_endpgm")
    return a

HDR = """; Fused attention blocks A and B (Q-projection + softmax attention, then output projection).
; kernarg: 0 A_x, 8 A_k, 16 A_v, 24 A_wq, 32 A_wo, 40 B_x, 48 B_k, 56 B_v, 64 B_wq, 72 B_wo, 80 out, 88 debug, 96 ws
; @launch kernel=attn_kernel grid=(1024,1,1) block=(256,1,1) lds=%d
; @launch kernel=oproj_kernel grid=(256,1,1) block=(512,1,1) lds=%d
.amdgcn_target "amdgcn-amd-amdhsa--gfx950"
.text
""" % (LDS1, LDS2)
def kern(name, a):
    return f".globl {name}\n.p2align 8\n.type {name},@function\n{name}:\n" + a.text()
def desc(name, nv):
    return f""".p2align 6
.amdhsa_kernel {name}
  .amdhsa_next_free_vgpr {nv}
  .amdhsa_next_free_sgpr 80
  .amdhsa_accum_offset {(nv+3)//4*4}
  .amdhsa_group_segment_fixed_size 0
  .amdhsa_kernarg_size 104
  .amdhsa_user_sgpr_count 2
  .amdhsa_user_sgpr_kernarg_segment_ptr 1
  .amdhsa_system_sgpr_workgroup_id_x 1
  .amdhsa_float_denorm_mode_32 3
.end_amdhsa_kernel
"""
if __name__ == "__main__":
    p1 = phase1(); p2 = phase2()
    out = HDR + kern("attn_kernel", p1) + kern("oproj_kernel", p2) + '.section .rodata,"a"\n' + desc("attn_kernel", 256) + desc("oproj_kernel", 144)
    open(sys.argv[1], "w").write(out)
    print("phase1 instrs", len(p1.ins), "nops", p1.nops, "phase2", len(p2.ins), "nops", p2.nops)
```

```python
import sys, math, struct
from asmlib import *

NAME = "concat_heads__mha_block_cached__gqa_block_cached__near_ridge"
def f32(x): return "0x%08x" % struct.unpack("<I", struct.pack("<f", x))[0]

OPT = dict(nt_kv=1, prio=0, stamp=0, nodma=0, nobar=0, nocheck=0, ldsfirst=0, ost=0, p2o=0, p2w=0, wopf=0)
POL = ['', ' nt', ' sc1', ' sc0 sc1', ' sc0', ' sc1 nt']
for a_ in sys.argv[2:]:
    k_, v_ = a_.split("="); OPT[k_] = int(v_)

def mf(d, a, b, c):
    cs = "0" if c is None else vr(c, 4)
    return f"v_mfma_f32_16x16x32_bf16 {vr(d,4)}, {vr(a,4)}, {vr(b,4)}, {cs}"

def stamp(a, k, real=False):
    if not OPT["stamp"]: return
    a.wait(lg="all")
    a.raw_wait("s_waitcnt lgkmcnt(0)")
    a._emit(f"{'s_memrealtime' if real else 's_memtime'} s[{80+2*k}:{81+2*k}]")
    a.raw_wait("s_waitcnt lgkmcnt(0)")
def stamp_store(a, base_idx, wave_s, label):
    if not OPT["stamp"]: return
    a.e(f"s_cmp_lg_u32 s{wave_s}, 0")
    a.e(f"s_cbranch_scc1 {label}")
    a.e("s_getreg_b32 s79, hwreg(HW_REG_XCC_ID)")
    a.e("s_getreg_b32 s78, hwreg(HW_REG_HW_ID)")
    for k in range(10): a.e(f"v_mov_b32 v{16+k}, s{80+2*k}")
    a.e("v_mov_b32 v26, s79"); a.e("v_mov_b32 v27, s78")
    a.e(f"s_add_u32 s76, s2, {base_idx}"); a.e("s_lshl_b32 s76, s76, 6"); a.e(f"s_add_u32 s76, s76, {64<<20}")
    a.e("v_mov_b32 v28, s76")
    a.e("v_cmp_eq_u32 vcc, 0, v0")
    a.e("s_and_saveexec_b64 s[76:77], vcc")
    a.e("global_store_dwordx4 v28, v[16:19], s[28:29]")
    a.e("global_store_dwordx4 v28, v[20:23], s[28:29] offset:16")
    a.e("global_store_dwordx4 v28, v[24:27], s[28:29] offset:32")

TILE = 8448
VBASE = 5 * TILE
XW = 10240
LDS1 = 81920

vKV, vKA, vVA = 1, 2, 3
vL = 4
vT = 7
QF, NM, S_, P_, KF, VF, O_ = 12, 60, 72, 96, 120, 136, 160
def Qf(j, ks): return QF + 16 * j + 4 * ks
def Nm(j): return NM + 4 * j
def Sr(u, j): return S_ + 12 * u + 4 * j
def Pr(buf, j): return P_ + 12 * buf + 4 * j
def Or(i, j): return O_ + 12 * i + 4 * j
vW0, vW1, vX0, vX1, vXA0, vXA1 = 152, 153, 154, 155, 156, 157
def Wreg(buf, i): return 40 + 32 * buf + 4 * i
def Xreg(buf, j, s): return 104 + 24 * buf + 8 * j + 4 * s
sX, sW, sK, sV, sO = 32, 36, 40, 44, 48
sWv, sKVL, sXL, sOff, sOff2, sFlag, sTmp = 52, 53, 54, 55, 56, 57, 58

def load_ptrs(a):
    a.e("s_load_dwordx16 s[4:19], s[0:1], 0")
    a.e("s_load_dwordx4 s[20:23], s[0:1], 64")
    a.e("s_load_dwordx4 s[24:27], s[0:1], 80")
    a.e("s_load_dwordx2 s[28:29], s[0:1], 96")

def srd(a, d, lo, hi, off_lo, off_hi, size):
    a.e(f"s_add_u32 s{d}, s{lo}, {off_lo}")
    a.e(f"s_addc_u32 s{d+1}, s{hi}, {off_hi}")
    a.e(f"s_and_b32 s{d+1}, s{d+1}, 0xffff")
    a.e(f"s_mov_b32 s{d+2}, {size}")
    a.e(f"s_mov_b32 s{d+3}, 0x20000")

def phase1():
    a = Asm()
    nt = " nt" if OPT["nt_kv"] else ""
    a.e("s_cmp_ge_u32 s2, 1024")
    a.e("s_cbranch_scc1 L1_end")
    load_ptrs(a)
    a.e("s_and_b32 s60, s2, 1"); a.e("s_lshl_b32 s60, s60, 3")
    a.e("s_bfe_u32 s61, s2, 0x30003"); a.e("s_add_u32 s60, s60, s61")
    a.e("s_bfe_u32 s61, s2, 0x10001"); a.e("s_lshl_b32 s61, s61, 4")
    a.e("s_lshr_b32 s62, s2, 6"); a.e("s_add_u32 s61, s61, s62")
    a.e("s_bfe_u32 s62, s2, 0x10002")
    a.e("v_lshrrev_b32 v7, 6, v0")
    a.e("v_and_b32 v0, 63, v0")
    a.e(f"v_readfirstlane_b32 s{sWv}, v7")
    a.e("v_and_b32 v8, 15, v0")
    a.e("v_lshrrev_b32 v9, 4, v0")
    a.e("v_and_b32 v10, 7, v8"); a.e("v_mul_u32_u24 v10, 1056, v10")
    a.e("v_lshrrev_b32 v11, 3, v8"); a.e(f"v_lshl_add_u32 v10, v11, 8, v10")
    a.e(f"v_lshl_add_u32 v{vKA}, v9, 4, v10")
    a.e("v_bfe_u32 v10, v0, 2, 3"); a.e("v_mul_u32_u24 v10, 1056, v10")
    a.e("v_lshrrev_b32 v11, 5, v0"); a.e("v_lshl_add_u32 v10, v11, 8, v10")
    a.e("v_and_b32 v11, 3, v0"); a.e("v_lshl_add_u32 v10, v11, 3, v10")
    a.e(f"v_add_u32 v{vVA}, {VBASE}, v10")
    a.e("v_lshlrev_b32 v10, 4, v0"); a.e(f"v_lshl_add_u32 v{vKV}, v7, 11, v10")
    a.e("v_and_b32 v10, 1, v9"); a.e("v_lshlrev_b32 v10, 4, v10")
    a.e("v_lshrrev_b32 v11, 1, v9"); a.e("v_lshl_add_u32 v10, v11, 2, v10")
    a.e("v_lshrrev_b32 v11, 1, v7"); a.e("v_lshl_add_u32 v10, v11, 3, v10")
    a.e("v_and_b32 v11, 1, v7"); a.e("v_lshl_add_u32 v10, v11, 1, v10")
    a.e("v_lshlrev_b32 v10, 13, v10"); a.e(f"v_lshl_add_u32 v{vW0}, v8, 4, v10")
    a.e(f"v_add_u32 v{vW1}, 8192, v{vW0}")
    a.e("v_mul_u32_u24 v10, 48, v7"); a.e("v_lshrrev_b32 v11, 3, v0"); a.e("v_add_u32 v10, v10, v11")
    a.e("v_mul_u32_u24 v10, 1280, v10")
    a.e("v_and_b32 v11, 7, v0"); a.e("v_xor_b32 v11, v11, v9")
    a.e(f"v_lshl_add_u32 v{vX0}, v11, 4, v10")
    a.e("v_xor_b32 v11, 4, v11"); a.e("v_add_u32 v10, 10240, v10")
    a.e(f"v_lshl_add_u32 v{vX1}, v11, 4, v10")
    a.e(f"v_mul_u32_u24 v10, {XW}, v7"); a.e("v_lshl_add_u32 v10, v8, 7, v10")
    a.e("v_lshrrev_b32 v11, 1, v8"); a.e("v_xor_b32 v11, v11, v9")
    a.e(f"v_lshl_add_u32 v{vXA0}, v11, 4, v10")
    a.e("v_xor_b32 v11, 4, v11"); a.e(f"v_lshl_add_u32 v{vXA1}, v11, 4, v10")
    a.e(f"s_mul_i32 s{sKVL}, s{sWv}, 2112")
    a.e(f"s_mul_i32 s{sXL}, s{sWv}, {XW}")
    a.e(f"s_mov_b32 s{sFlag}, 0")
    a.raw_wait("s_waitcnt lgkmcnt(0)")
    a.e("s_cmp_eq_u32 s62, 0")
    a.e("s_cselect_b64 s[4:5], s[4:5], s[14:15]")
    a.e("s_cselect_b64 s[6:7], s[6:7], s[16:17]")
    a.e("s_cselect_b64 s[8:9], s[8:9], s[18:19]")
    a.e("s_cselect_b64 s[10:11], s[10:11], s[20:21]")
    a.e("s_mul_i32 s63, s60, 245760")
    srd(a, sX, 4, 5, "s63", 0, 245760)
    a.e("s_lshl_b32 s63, s61, 8")
    srd(a, sW, 10, 11, "s63", 0, 640 * 8192 - 7936)
    a.e("s_lshl_b32 s63, s60, 5"); a.e("s_add_u32 s63, s63, s61")
    a.e("s_lshl_b32 s64, s63, 17")
    srd(a, sK, 6, 7, "s64", 0, 131072)
    srd(a, sV, 8, 9, "s64", 0, 131072)
    a.e("s_lshl_b32 s64, s62, 9"); a.e("s_add_u32 s63, s63, s64")
    a.e("s_mul_i32 s64, s63, 49152")
    srd(a, sO, 28, 29, "s64", 0, 49152)

    def dma_x(n):
        c, j = divmod(n, 3)
        a.e(f"s_mov_b32 s{sOff}, {j*20480 + c*128}")
        for i, v in enumerate((vX0, vX1)):
            a.e(f"s_add_u32 m0, s{sXL}, {(n % 5)*2048 + i*1024}")
            a.e(f"buffer_load_dwordx4 v{v}, {sr(sX,4)}, s{sOff} offen lds", tag=("X", n))
    def dma_w(s):
        a.e(f"s_mov_b32 s{sOff2}, {s*262144}")
        for e, v in enumerate((vW0, vW1)):
            a.e(f"s_add_u32 m0, s{sKVL}, {VBASE + (s % 4)*TILE + e*1056}")
            a.e(f"buffer_load_dwordx4 v{v}, {sr(sW,4)}, s{sOff2} offen lds", tag=("W", s))
    def kslot(t): return VBASE if t == 0 else ((t - 1) % 5) * TILE
    def vslot(t): return ((t + 1) % 4) * TILE
    def dma_kv(which, t):
        base = kslot(t) if which == "K" else VBASE + vslot(t)
        s = sK if which == "K" else sV
        so = sOff if which == "K" else sOff2
        a.e(f"s_mov_b32 s{so}, {t*8192}")
        a.e(f"s_add_u32 m0, s{sKVL}, {base}")
        a.e(f"buffer_load_dwordx4 v{vKV}, {sr(s,4)}, s{so} offen{nt} lds", tag=(which, t))
        a.e(f"s_add_u32 m0, s{sKVL}, {base + 32}")
        a.e(f"buffer_load_dwordx4 v{vKV}, {sr(s,4)}, s{so} offen offset:1024{nt} lds", tag=(which, t))
    def rd_x(n):
        c, j = divmod(n, 3)
        return [(f"ds_read_b128 {vr(Xreg(c & 1, j, s),4)}, v{(vXA0, vXA1)[s]} offset:{(n % 5)*2048}", ("xr", n)) for s in range(2)]
    def rd_tr(dst, off, i):
        return [f"ds_read_b64_tr_b16 {vr(dst + 2*e, 2)}, v{vVA} offset:{off + e*512 + i*32}" for e in range(2)]
    def rd_k(dst, t, u):
        return [f"ds_read_b128 {vr(dst + 4*ks,4)}, v{vKA} offset:{kslot(t) + u*512 + ks*64}" for ks in range(4)]

    stamp(a, 0, True); stamp(a, 1)
    a.c("Q-projection prologue")
    dma_x(0); dma_w(0); dma_x(1); dma_x(2); dma_w(1); dma_x(3); dma_x(4); dma_w(2); dma_w(3)
    a.wait(vm=[("X", 2)])
    a.e("s_barrier")
    for i in range(8):
        for r in rd_tr(Wreg(0, i), 0, i): a.e(r)
    for n in range(3):
        for r, tg in rd_x(n): a.e(r, tag=tg)
    a.wait(lg=[("xr", 1)])
    dma_x(5); dma_x(6)
    stamp(a, 2)
    for s in range(20):
        c, sp = divmod(s, 2)
        a.c(f"Q step {s}")
        if s + 1 < 20:
            a.wait(vm=[("W", s + 1)], lg="all")
            a.e("s_barrier")
        else:
            a.wait(lg="all")
            a.e("s_barrier")
        mfs = [mf(Or(i, j), Wreg(s & 1, i), Xreg(c & 1, j, sp), None if s == 0 else Or(i, j)) for i in range(8) for j in range(3)]
        fill = [[] for _ in range(24)]
        if s + 4 < 20: fill[0].append(lambda s=s: dma_w(s + 4))
        elif s == 16: fill[0].append(lambda: dma_kv("K", 0))
        elif s == 17: fill[0].append(lambda: dma_kv("V", 0))
        elif s == 18:
            fill[0].append(lambda: dma_kv("K", 1)); fill[4].append(lambda: dma_kv("V", 1)); fill[8].append(lambda: dma_kv("K", 2))
            fill[12].append(lambda: dma_kv("K", 3))
        elif s == 19:
            fill[0].append(lambda: dma_kv("V", 2)); fill[4].append(lambda: dma_kv("K", 4)); fill[8].append(lambda: dma_kv("K", 5))
        if s + 1 < 20:
            rds = []
            for i in range(8): rds += rd_tr(Wreg((s + 1) & 1, i), ((s + 1) % 4) * TILE, i)
            pos = [1,2,3,4,5,6,7,9,10,11,12,13,14,15,18,19]
            for r, p in zip(rds, pos): fill[p].append(r)
        ticks = [(0, 3*(c+1)), (16, 3*(c+1)+1)] if sp == 0 else [(8, 3*(c+1)+2)]
        for p, n in ticks:
            if n < 30:
                def tick(n=n):
                    a.wait(vm=[("X", n)])
                    for r, tg in rd_x(n): a.e(r, tag=tg)
                fill[p].append(tick)
                if n + 4 < 30:
                    def tick2(n=n):
                        a.wait(lg=[("xr", n - 1)])
                        dma_x(n + 4)
                    fill[p + 1].append(tick2)
        interleave(a, mfs, fill)
    stamp(a, 3)
    a.c("Q conversion: scale, pack, re-lay out as B fragments")
    a.e(f"s_mov_b32 s{sTmp}, {f32(math.log2(math.e) / math.sqrt(128.0))}")
    def conv(j, p):
        d = Qf(j, p)
        for u in range(2):
            o = Or(2*p + u, j)
            for r in range(4): a.e(f"v_mul_f32 v{o+r}, s{sTmp}, v{o+r}")
        for u in range(2):
            o = Or(2*p + u, j)
            a.e(f"v_cvt_pk_bf16_f32 v{d+2*u}, v{o}, v{o+1}")
            a.e(f"v_cvt_pk_bf16_f32 v{d+2*u+1}, v{o+2}, v{o+3}")
    def swz(j, p):
        d = Qf(j, p)
        a.e(f"v_permlane32_swap_b32 v{d}, v{d+2}")
        a.e(f"v_permlane32_swap_b32 v{d+1}, v{d+3}")
    def swz2(j, p):
        d = Qf(j, p)
        a.e(f"v_permlane16_swap_b32 v{d}, v{d+2}")
        a.e(f"v_permlane16_swap_b32 v{d+1}, v{d+3}")
    order = [(j, p) for p in range(4) for j in range(3)]
    for n, (j, p) in enumerate(order):
        conv(j, p)
        if n >= 1: swz(*order[n-1])
        if n >= 2: swz2(*order[n-2])
        if n == 7:
            a.wait(vm=[("K", 0)])
            a.e("s_barrier")
            for r in rd_k(KF, 0, 0) + rd_k(VF, 0, 1): a.e(r)
    swz(*order[-1]); swz2(*order[-2]); swz2(*order[-1])
    a.c("tile 0: scores, stand-in row max (max over first 32 keys)")
    for u, kf in ((0, KF), (1, VF)):
        for j in range(3):
            for ks in range(4):
                a.e(mf(Sr(u, j), kf + 4*ks, Qf(j, ks), None if ks == 0 else Sr(u, j)))
    a.wait(vm=[("K", 1), ("V", 0)], lg="all")
    a.e("s_barrier")
    dma_kv("V", 3)
    for r in rd_k(KF, 1, 0): a.e(r)
    def rowred(op, regs, tmps):
        for r, t in zip(regs, tmps): a.e(f"v_mov_b32 v{t}, v{r}")
        for r, t in zip(regs, tmps): a.e(f"v_permlane32_swap_b32 v{r}, v{t}")
        for r, t in zip(regs, tmps): a.e(f"{op} v{r}, v{r}, v{t}")
        for r, t in zip(regs, tmps): a.e(f"v_mov_b32 v{t}, v{r}")
        for r, t in zip(regs, tmps): a.e(f"v_permlane16_swap_b32 v{r}, v{t}")
        for r, t in zip(regs, tmps): a.e(f"{op} v{r}, v{r}, v{t}")
    for j in range(3):
        n = Nm(j); s0 = Sr(0, j); s1 = Sr(1, j)
        a.e(f"v_max3_f32 v{n}, v{s0}, v{s0+1}, v{s0+2}")
        a.e(f"v_max3_f32 v{n+1}, v{s0+3}, v{s1}, v{s1+1}")
        a.e(f"v_max3_f32 v{n}, v{n}, v{s1+2}, v{s1+3}")
        a.e(f"v_max_f32 v{n}, v{n}, v{n+1}")
    rowred("v_max_f32", [Nm(j) for j in range(3)], [Nm(j) + 1 for j in range(3)])
    for j in range(3):
        n = Nm(j)
        a.e(f"v_sub_f32 v{n}, 0, v{n}")
        for r in range(1, 4): a.e(f"v_mov_b32 v{n+r}, v{n}")
        a.e(f"v_mov_b32 v{vL+j}, 0")
    for u in range(2):
        for j in range(3):
            for r in range(4): a.e(f"v_add_f32 v{Sr(u,j)+r}, v{Sr(u,j)+r}, v{Nm(j)}")
    def sm_gaps(u, buf):
        g = [[] for _ in range(24)]
        for k in range(12):
            j, r = divmod(k, 4)
            s = Sr(u, j) + r
            g[2*k].append(f"v_exp_f32 v{s}, v{s}")
            g[2*k+1].append(f"v_add_f32 v{vL+j}, v{vL+j}, v{s}")
            if r & 1:
                g[2*k+1].append(f"v_cvt_pk_bf16_f32 v{Pr(buf,j) + 2*u + (r>>1)}, v{s-1}, v{s}")
        return g
    def flat(gs):
        ex = [x for g in gs for x in g if isinstance(x, str) and x.startswith("v_exp")]
        ot = [x for g in gs for x in g if not (isinstance(x, str) and x.startswith("v_exp"))]
        for x in [y for y in ot if not isinstance(y, str) or y.startswith("ds_")] + ex + [y for y in ot if isinstance(y, str) and not y.startswith("ds_")]:
            if callable(x): x()
            else: a.e(x)
    flat(sm_gaps(0, 0)); flat(sm_gaps(1, 0)[:12])
    stamp(a, 4)
    def qk(u): return [mf(Sr(u, j), KF + 4*ks, Qf(j, ks), Nm(j) if ks == 0 else Sr(u, j)) for j in range(3) for ks in range(4)]
    def pv(t, half): return [mf(Or(4*half + i, j), VF + 4*i, Pr(t & 1, j), None if t == 0 else Or(4*half + i, j)) for i in range(4) for j in range(3)]
    def rd_v(t, half):
        r = []
        for i in range(4): r += rd_tr(VF + 4*i, vslot(t), 4*half + i)
        return r
    def merge(g, rds, pos):
        g = [list(x) for x in g]
        for r, p in zip(rds, pos):
            if OPT["ldsfirst"]: g[p].insert(0, r)
            else: g[p].append(r)
        return g
    P8 = [0, 1, 2, 3, 4, 5, 6, 7]; P4 = [0, 2, 4, 6]
    for t in range(16):
        last = (t == 15)
        a.c(f"stage {t}")
        g = merge(sm_gaps(1, t & 1)[12:], rd_v(t, 0), P8)
        if not last: interleave(a, qk(0), g)
        else: flat(g)
        if not last:
            interleave(a, pv(t, 0), merge(sm_gaps(0, (t+1) & 1)[:12], rd_k(KF, t+1, 1), P4))
            interleave(a, qk(1), merge(sm_gaps(0, (t+1) & 1)[12:], rd_v(t, 1), P8))
            need = [("V", t+1)] + ([("K", t+2)] if t + 2 < 16 else [])
            a.wait(vm=need, lg="all")
            a.e("s_barrier")
            g = sm_gaps(1, (t+1) & 1)[:12]
            if t + 2 < 16: g = merge(g, rd_k(KF, t+2, 0), P4)
            g = [list(x) for x in g]
            if t + 6 < 16: g[7].append(lambda t=t: dma_kv("K", t + 6))
            if t + 4 < 16: g[9].append(lambda t=t: dma_kv("V", t + 4))
            interleave(a, pv(t, 1), g)
        else:
            rds = []
            for i in range(4): rds += rd_tr(KF + 4*i, vslot(t), 4 + i)
            interleave(a, pv(t, 0), merge([[] for _ in range(12)], rds, P8))
            for i in range(4):
                for j in range(3): a.e(mf(Or(4+i, j), KF + 4*i, Pr(t & 1, j), Or(4+i, j)))
    assert not a.vm and not a.lg, (a.vm, a.lg)
    stamp(a, 5)
    a.e("L1_epi:")
    rowred("v_add_f32", [vL, vL+1, vL+2], [vT, vT+1, vT+2])
    a.e(f"s_cmp_lg_u32 s{sFlag}, 0")
    a.e("s_cbranch_scc1 L1_epi2")
    a.e(f"v_add_f32 v{vT+1}, v{vL}, v{vL+1}")
    a.e(f"v_add_f32 v{vT+1}, v{vT+1}, v{vL+2}")
    a.e(f"v_mov_b32 v{vT+2}, {f32(2.0**30)}")
    a.e(f"v_cmp_nle_f32 vcc, v{vT+1}, v{vT+2}")
    a.e("s_nop 4")
    a.e("s_cbranch_vccnz L1_slow")
    a.e("L1_epi2:")
    if OPT["wopf"]:
        a.e("s_cmp_eq_u32 s62, 0")
        a.e("s_cselect_b64 s[12:13], s[12:13], s[22:23]")
        a.e("s_and_b32 s64, s63, 511"); a.e("s_mul_i32 s64, s64, 10240")
        srd(a, sX, 12, 13, "s64", 0, 10240)
        a.e(f"s_mul_i32 s64, s{sWv}, 2560")
        a.e(f"v_lshlrev_b32 v{vT+3}, 6, v0")
        a.e(f"v_cmp_gt_u32 vcc, 40, v0")
        a.e("s_and_saveexec_b64 s[66:67], vcc")
        a.e(f"buffer_load_dword v{vT+4}, v{vT+3}, {sr(sX,4)}, s64 offen")
        a.e("s_mov_b64 exec, s[66:67]")
    for j in range(3): a.e(f"v_rcp_f32 v{vL+j}, v{vL+j}")
    a.e(f"s_mul_i32 s{sTmp}, s{sWv}, 3072")
    a.e(f"v_lshlrev_b32 v{vT}, 4, v0")
    a.e(f"v_add_u32 v{vT}, s{sTmp}, v{vT}")
    k = 0
    for p in range(4):
        a.e(f"s_mov_b32 s{sOff}, {p*12288}")
        for j in range(3):
            d = S_ + 4 * (k % 12); k += 1
            for u in range(2):
                o = Or(2*p + u, j)
                for r in range(4): a.e(f"v_mul_f32 v{o+r}, v{o+r}, v{vL+j}")
                a.e(f"v_cvt_pk_bf16_f32 v{d+2*u}, v{o}, v{o+1}")
                a.e(f"v_cvt_pk_bf16_f32 v{d+2*u+1}, v{o+2}, v{o+3}")
            a.e(f"buffer_store_dwordx4 {vr(d,4)}, v{vT}, {sr(sO,4)}, s{sOff} offen offset:{j*1024}{POL[OPT['ost']]}")
    stamp(a, 6); stamp(a, 7, True)
    stamp_store(a, 0, sWv, "L1_end")
    a.e("L1_end:")
    a.e("s_endpgm")
    a.reset_counters()
    a.e("L1_slow:")
    sTk, sTv, sI, sJ = 60, 61, 62, 63
    vK2, vV2, vLin = 152, 153, 154
    a.e(f"s_mul_i32 s{sTk}, s{sWv}, {TILE}")
    a.e(f"s_add_u32 s{sTv}, s{sTk}, {6*TILE}")
    a.e(f"s_cmp_eq_u32 s{sWv}, 3")
    a.e(f"s_cselect_b32 s{sTv}, {4*TILE}, s{sTv}")
    a.e(f"v_add_u32 v{vK2}, s{sTk}, v{vKA}")
    a.e(f"v_subrev_u32 v{vV2}, {VBASE}, v{vVA}")
    a.e(f"v_add_u32 v{vV2}, s{sTv}, v{vV2}")
    a.e(f"v_lshlrev_b32 v{vLin}, 4, v0")
    for j in range(3): a.e(f"v_mov_b32 v{vT+j}, 0xff800000")
    def slow_dma(srdreg, sbase):
        for b in range(8):
            a.e(f"s_add_u32 s{sJ}, s{sI}, {b*1024}")
            a.e(f"s_add_u32 m0, s{sbase}, {b*1056}")
            a.e(f"buffer_load_dwordx4 v{vLin}, {sr(srdreg,4)}, s{sJ} offen lds", tag="d")
    def slow_qk(cinit):
        for u, kf in ((0, KF), (1, VF)):
            for ks in range(4): a.e(f"ds_read_b128 {vr(kf + 4*ks,4)}, v{vK2} offset:{u*512 + ks*64}")
        for u, kf in ((0, KF), (1, VF)):
            for j in range(3):
                for ks in range(4):
                    a.e(mf(Sr(u, j), kf + 4*ks, Qf(j, ks), (Nm(j) if cinit else None) if ks == 0 else Sr(u, j)))
    a.e(f"s_mov_b32 s{sI}, 0")
    a.e("L1_slow_p1:")
    slow_dma(sK, sTk)
    a.wait(vm="all")
    slow_qk(False)
    for j in range(3):
        for u in range(2):
            s = Sr(u, j)
            a.e(f"v_max3_f32 v{vT+j}, v{vT+j}, v{s}, v{s+1}")
            a.e(f"v_max3_f32 v{vT+j}, v{vT+j}, v{s+2}, v{s+3}")
    a.e(f"s_add_u32 s{sI}, s{sI}, 8192")
    a.e(f"s_cmp_lt_u32 s{sI}, 131072")
    a.e("s_cbranch_scc1 L1_slow_p1")
    rowred("v_max_f32", [vT, vT+1, vT+2], [Nm(j) for j in range(3)])
    for j in range(3):
        for r in range(4): a.e(f"v_sub_f32 v{Nm(j)+r}, 0, v{vT+j}")
        a.e(f"v_mov_b32 v{vL+j}, 0")
    for r in range(96): a.e(f"v_mov_b32 v{O_+r}, 0")
    a.e(f"s_mov_b32 s{sI}, 0")
    a.e("L1_slow_p2:")
    slow_dma(sK, sTk); slow_dma(sV, sTv)
    a.wait(vm="all")
    slow_qk(True)
    flat(sm_gaps(0, 0)); flat(sm_gaps(1, 0))
    for half, fr in ((0, KF), (1, VF)):
        for i in range(4):
            for e in range(2):
                a.e(f"ds_read_b64_tr_b16 {vr(fr + 4*i + 2*e, 2)}, v{vV2} offset:{e*512 + (4*half+i)*32}")
    for half, fr in ((0, KF), (1, VF)):
        for i in range(4):
            for j in range(3): a.e(mf(Or(4*half+i, j), fr + 4*i, Pr(0, j), Or(4*half+i, j)))
    a.e(f"s_add_u32 s{sI}, s{sI}, 8192")
    a.e(f"s_cmp_lt_u32 s{sI}, 131072")
    a.e("s_nop 7")
    a.e("s_cbranch_scc1 L1_slow_p2")
    a.e(f"s_mov_b32 s{sFlag}, 1")
    a.e("s_branch L1_epi")
    return a

STG = 32768
LDS2 = 4 * STG
def phase2():
    a = Asm()
    sA, sB, sC1, sOut = 32, 36, 40, 44
    sWv, sL0, sL1, sL2, sL3 = 48, 49, 50, 51, 52
    sOffO, sOffW, sOff1, sInc1, sCnt, sTmp = 53, 54, 55, 56, 57, 58
    vC0, vC1, vC2, vC3 = 1, 2, 3, 4
    vB, vAE, vAO = 5, 7, 9
    ACC = 16
    def Acc(ii, j): return ACC + 12 * ii + 4 * j
    def Af(buf, ii): return 76 + 32 * buf + 4 * ii
    def Bf(buf, j): return 76 + 32 * buf + 20 + 4 * j
    a.e("s_cmp_ge_u32 s2, 256")
    a.e("s_cbranch_scc1 L2_end")
    load_ptrs(a)
    a.e("s_bfe_u32 s60, s2, 0x10002")
    a.e("s_and_b32 s61, s2, 3"); a.e("s_lshl_b32 s61, s61, 2")
    a.e("s_lshr_b32 s62, s2, 6"); a.e("s_add_u32 s61, s61, s62")
    a.e("s_bfe_u32 s62, s2, 0x10003")
    a.e("s_bfe_u32 s63, s2, 0x20004")
    a.e("v_lshrrev_b32 v11, 6, v0")
    a.e("v_and_b32 v0, 63, v0")
    a.e(f"v_readfirstlane_b32 s{sWv}, v11")
    a.e("v_lshlrev_b32 v12, 4, v0")
    def o_voff(dst, oi_s):
        a.e(f"s_cmp_ge_u32 s{oi_s}, 6")
        a.e(f"s_cselect_b32 s64, 6144, 0")
        a.e(f"s_lshl_b32 s65, s{oi_s}, 10"); a.e("s_add_u32 s64, s64, s65")
        a.e("s_mul_i32 s65, s62, 6144"); a.e("s_add_u32 s64, s64, s65")
        a.e(f"v_add_u32 v{dst}, s64, v12")
    def w_voff(dst, wi_s):
        a.e(f"s_lshl_b32 s64, s{wi_s}, 6")
        a.e("v_add_u32 v13, s64, v0")
        a.e("v_mul_u32_u24 v14, 52429, v13"); a.e("v_lshrrev_b32 v14, 20, v14")
        a.e("v_mul_u32_u24 v15, 20, v14"); a.e("v_sub_u32 v13, v13, v15")
        a.e("v_bfe_u32 v15, v14, 2, 1"); a.e("v_lshlrev_b32 v15, 1, v15"); a.e("v_xor_b32 v13, v13, v15")
        a.e("v_mul_u32_u24 v14, 1280, v14"); a.e(f"v_lshl_add_u32 v{dst}, v13, 4, v14")
        a.e("s_mul_i32 s64, s63, 320"); a.e(f"v_add_u32 v{dst}, s64, v{dst}")
    a.e("s_nop 2")
    o_voff(vC0, sWv)
    a.e(f"s_lshl_b32 s{sL0}, s{sWv}, 10")
    w_voff(vC2, sWv)
    a.e(f"s_add_u32 s{sL2}, s{sL0}, 12288")
    a.e(f"s_add_u32 s66, s{sWv}, 8")
    w_voff(vC3, 66)
    a.e(f"s_add_u32 s{sL3}, s{sL2}, 8192")
    o_voff(vC1, 66)
    a.e(f"s_add_u32 s66, s{sWv}, 12")
    w_voff(76, 66)
    a.e(f"s_cmp_lt_u32 s{sWv}, 4")
    a.e("s_cselect_b64 vcc, -1, 0")
    a.e(f"v_cndmask_b32 v{vC1}, v76, v{vC1}, vcc")
    a.e(f"s_mov_b32 s{sInc1}, 81920"); a.e(f"s_cselect_b32 s{sInc1}, 24576, s{sInc1}")
    a.e(f"s_mov_b32 s64, {12288 + 12288}"); a.e(f"s_cselect_b32 s64, 8192, s64")
    a.e(f"s_add_u32 s{sL1}, s{sL0}, s64")
    a.e(f"s_lshr_b32 s64, s{sWv}, 2"); a.e(f"s_and_b32 s65, s{sWv}, 1"); a.e(f"s_bfe_u32 s66, s{sWv}, 0x10001")
    a.e("s_mul_i32 s67, s64, 6144"); a.e("s_mul_i32 s68, s65, 3072"); a.e("s_add_u32 s67, s67, s68")
    a.e(f"v_add_u32 v{vB}, s67, v12"); a.e(f"v_add_u32 v{vB+1}, 0x10000, v{vB}")
    a.e("v_lshrrev_b32 v13, 2, v0"); a.e("v_mul_u32_u24 v13, 320, v13")
    a.e("v_and_b32 v14, 3, v0"); a.e("v_lshl_add_u32 v13, v14, 3, v13")
    a.e("s_mul_i32 s67, s64, 10240"); a.e("s_mul_i32 s68, s66, 160"); a.e("s_add_u32 s67, s67, s68"); a.e("s_add_u32 s67, s67, 12288")
    a.e("v_add_u32 v13, s67, v13")
    a.e("v_bfe_u32 v14, v0, 4, 1"); a.e("v_lshlrev_b32 v14, 5, v14")
    a.e("v_add_u32 v76, v13, v14"); a.e("v_sub_u32 v77, v13, v14")
    a.e("s_cmp_eq_u32 s66, 0")
    a.e("s_cselect_b64 vcc, -1, 0")
    a.e(f"v_cndmask_b32 v{vAE}, v77, v76, vcc"); a.e(f"v_cndmask_b32 v{vAO}, v76, v77, vcc")
    a.e(f"v_add_u32 v{vAE+1}, 0x10000, v{vAE}"); a.e(f"v_add_u32 v{vAO+1}, 0x10000, v{vAO}")
    a.raw_wait("s_waitcnt lgkmcnt(0)")
    a.e("s_cmp_eq_u32 s60, 0")
    a.e("s_cselect_b64 s[12:13], s[12:13], s[22:23]")
    srd(a, sA, 12, 13, 0, 0, 4096 * 1280)
    a.e("s_lshl_b32 s67, s60, 4"); a.e("s_add_u32 s67, s67, s61"); a.e("s_mul_i32 s67, s67, 1572864")
    srd(a, sB, 28, 29, "s67", 0, 1572864)
    a.e(f"s_cmp_lt_u32 s{sWv}, 4")
    a.e(f"s_cselect_b64 s[{sC1}:{sC1+1}], s[{sB}:{sB+1}], s[{sA}:{sA+1}]")
    a.e(f"s_cselect_b32 s{sC1+2}, s{sB+2}, s{sA+2}")
    a.e(f"s_mov_b32 s{sC1+3}, 0x20000")
    a.e("s_mul_i32 s67, s61, 491520"); a.e("s_mul_i32 s68, s62, 245760"); a.e("s_add_u32 s67, s67, s68")
    a.e("s_mul_i32 s68, s60, 1280"); a.e("s_add_u32 s67, s67, s68")
    a.e("s_mul_i32 s68, s63, 320"); a.e("s_add_u32 s67, s67, s68")
    srd(a, sOut, 24, 25, "s67", 0, 95 * 2560 + 320)
    a.e(f"s_mov_b32 s{sOffO}, 0"); a.e(f"s_mov_b32 s{sOffW}, 0"); a.e(f"s_mov_b32 s{sOff1}, 0")
    def dma(ch, slot):
        sl, v, s, so = [(sL0, vC0, sB, sOffO), (sL1, vC1, sC1, sOff1), (sL2, vC2, sA, sOffW), (sL3, vC3, sA, sOffW)][ch]
        a.e(f"s_add_u32 m0, s{sl}, {slot*STG}")
        pol = POL[OPT['p2o']] if ch == 0 else POL[OPT['p2w']] if ch >= 2 else (POL[OPT['p2o']] if OPT['p2o'] == OPT['p2w'] else '')
        a.e(f"buffer_load_dwordx4 v{v}, {sr(s,4)}, s{so} offen{pol} lds", tag="d")
    def adv():
        a.e(f"s_add_u32 s{sOffO}, s{sOffO}, 24576")
        a.e(f"s_add_u32 s{sOffW}, s{sOffW}, 81920")
        a.e(f"s_add_u32 s{sOff1}, s{sOff1}, s{sInc1}")
    def reads(buf, slot):
        hi = slot >> 1; off = (slot & 1) * STG
        r = []
        for j in range(3): r.append(f"ds_read_b128 {vr(Bf(buf,j),4)}, v{vB+hi} offset:{off + j*1024}")
        for ii in range(5):
            v = (vAE, vAO)[ii & 1] + hi
            for e in range(2): r.append(f"ds_read_b64_tr_b16 {vr(Af(buf,ii)+2*e,2)}, v{v} offset:{off + e*5120 + ii*32}")
        return r
    stamp(a, 0, True); stamp(a, 1)
    for sl in range(4):
        for ch in range(4): dma(ch, sl)
        adv()
    for r in range(60): a.e(f"v_mov_b32 v{ACC+r}, 0")
    a.raw_wait("s_waitcnt vmcnt(12)")
    a.e("s_barrier")
    for r in reads(0, 0): a.e(r)
    stamp(a, 2)
    a.e(f"s_mov_b32 s{sCnt}, 16")
    a.reset_counters()
    a.e(".p2align 6")
    a.e("L2_loop:")
    for st in range(4):
        a.reset_counters()
        a.raw_wait("s_waitcnt vmcnt(8) lgkmcnt(0)")
        a.e("s_barrier")
        mfs = [mf(Acc(ii, j), Af(st & 1, ii), Bf(st & 1, j), Acc(ii, j)) for ii in range(5) for j in range(3)]
        fill = [[] for _ in range(15)]
        for p, r in enumerate(reads((st + 1) & 1, (st + 1) % 4)): fill[p].append(r)
        for ch, p in enumerate((1, 4, 7, 10)): fill[p].append(lambda ch=ch, st=st: dma(ch, st))
        fill[13].append(adv)
        if st == 3:
            fill[14].append(f"s_sub_u32 s{sCnt}, s{sCnt}, 1")
            fill[14].append(f"s_cmp_lg_u32 s{sCnt}, 0")
        interleave(a, mfs, fill)
    a.e("s_cbranch_scc1 L2_loop")
    a.reset_counters()
    a.raw_wait("s_waitcnt vmcnt(0) lgkmcnt(0)")
    a.e("s_barrier")
    stamp(a, 3)
    vR = 76
    a.e(f"s_and_b32 s64, s{sWv}, 3"); a.e("s_mul_i32 s64, s64, 15360")
    a.e(f"v_add_u32 v{vR}, s64, v12")
    a.e(f"s_cmp_lt_u32 s{sWv}, 4")
    a.e("s_cbranch_scc1 L2_lo1")
    for k in range(15): a.e(f"ds_write_b128 v{vR}, {vr(ACC+4*k,4)} offset:{k*1024}")
    a.raw_wait("s_waitcnt lgkmcnt(0)")
    a.e("L2_lo1:")
    a.reset_counters()
    a.e("s_barrier")
    OUTB = 65536; RS = 336
    a.e(f"s_cmp_ge_u32 s{sWv}, 4")
    a.e("s_cbranch_scc1 L2_hi2")
    for k in range(15): a.e(f"ds_read_b128 {vr(80+4*k,4)}, v{vR} offset:{k*1024}")
    a.e("v_and_b32 v13, 15, v0"); a.e(f"v_mul_u32_u24 v13, {RS}, v13")
    a.e("v_lshrrev_b32 v14, 4, v0"); a.e("v_lshl_add_u32 v13, v14, 3, v13")
    a.e(f"s_mul_i32 s67, s65, {48*RS}"); a.e("s_mul_i32 s68, s66, 160"); a.e("s_add_u32 s67, s67, s68"); a.e(f"s_add_u32 s67, s67, {OUTB}")
    a.e("v_add_u32 v13, s67, v13")
    for ii in range(5):
        for j in range(3):
            k = 3*ii + j; c = Acc(ii, j); t = 80 + 4*k
            for r in range(4): a.e(f"v_add_f32 v{c+r}, v{c+r}, v{t+r}")
            a.e(f"v_cvt_pk_bf16_f32 v{c}, v{c}, v{c+1}")
            a.e(f"v_cvt_pk_bf16_f32 v{c+1}, v{c+2}, v{c+3}")
            a.e(f"ds_write_b64 v13, {vr(c,2)} offset:{j*16*RS + ii*32}")
    a.raw_wait("s_waitcnt lgkmcnt(0)")
    a.e("L2_hi2:")
    a.reset_counters()
    a.e("s_barrier")
    a.e(f"s_lshl_b32 s64, s{sWv}, 6")
    for it in range(4):
        a.e(f"s_add_u32 s65, s64, {it*512}")
        a.e("v_add_u32 v13, s65, v0")
        a.e("v_mul_u32_u24 v14, 52429, v13"); a.e("v_lshrrev_b32 v14, 20, v14")
        a.e("v_mul_u32_u24 v15, 20, v14"); a.e("v_sub_u32 v13, v13, v15")
        a.e("v_lshlrev_b32 v13, 4, v13")
        a.e(f"v_mul_u32_u24 v15, {RS}, v14")
        a.e("v_add_u32 v15, v15, v13"); a.e(f"v_add_u32 v15, {OUTB}, v15")
        a.e(f"ds_read_b128 {vr(80+4*it,4)}, v15")
        a.e("v_mul_u32_u24 v14, 2560, v14"); a.e(f"v_add_u32 v{96+it}, v14, v13")
    for it in range(4):
        a.e(f"buffer_store_dwordx4 {vr(80+4*it,4)}, v{96+it}, {sr(sOut,4)}, 0 offen")
    stamp(a, 6); stamp(a, 7, True)
    stamp_store(a, 2048, sWv, "L2_end")
    a.e("L2_end:")
    a.e("s_endpgm")
    return a

HDR = """; Fused attention blocks A and B (Q-projection + softmax attention, then output projection).
; kernarg: 0 A_x, 8 A_k, 16 A_v, 24 A_wq, 32 A_wo, 40 B_x, 48 B_k, 56 B_v, 64 B_wq, 72 B_wo, 80 out, 88 debug, 96 ws
; @launch kernel=attn_kernel grid=(1024,1,1) block=(256,1,1) lds=%d
; @launch kernel=oproj_kernel grid=(256,1,1) block=(512,1,1) lds=%d
.amdgcn_target "amdgcn-amd-amdhsa--gfx950"
.text
""" % (LDS1, LDS2)
def kern(name, a):
    return f".globl {name}\n.p2align 8\n.type {name},@function\n{name}:\n" + a.text()
def desc(name, nv):
    return f""".p2align 6
.amdhsa_kernel {name}
  .amdhsa_next_free_vgpr {nv}
  .amdhsa_next_free_sgpr {102 if OPT['stamp'] else 80}
  .amdhsa_accum_offset {(nv+3)//4*4}
  .amdhsa_group_segment_fixed_size 0
  .amdhsa_kernarg_size 104
  .amdhsa_user_sgpr_count 2
  .amdhsa_user_sgpr_kernarg_segment_ptr 1
  .amdhsa_system_sgpr_workgroup_id_x 1
  .amdhsa_float_denorm_mode_32 3
.end_amdhsa_kernel
"""
if __name__ == "__main__":
    p1 = phase1(); p2 = phase2()
    if OPT["nodma"] & 1: p1.ins = [i for i in p1.ins if not (i.kind == "dma" and ("s[32:35]" in i.text or "s[36:39]" in i.text))]
    if OPT["nodma"] & 2: p1.ins = [i for i in p1.ins if not (i.kind == "dma" and ("s[40:43]" in i.text or "s[44:47]" in i.text))]
    if OPT["nodma"] & 4: p2.ins = [i for i in p2.ins if not (i.kind == "dma")]
    if OPT["nobar"] & 1: p1.ins = [i for i in p1.ins if i.op != "s_barrier"]
    if OPT["nocheck"]: p1.ins = [i for i in p1.ins if i.op != "s_cbranch_vccnz"]
    out = HDR + kern("attn_kernel", p1) + kern("oproj_kernel", p2) + '.section .rodata,"a"\n' + desc("attn_kernel", 256) + desc("oproj_kernel", 144)
    open(sys.argv[1], "w").write(out)
    print("phase1 instrs", len(p1.ins), "nops", p1.nops, "phase2", len(p2.ins), "nops", p2.nops)
```

```python
import re

def vr(a, n=1):
    return f"v{a}" if n == 1 else f"v[{a}:{a+n-1}]"
def sr(a, n=1):
    return f"s{a}" if n == 1 else f"s[{a}:{a+n-1}]"

_REG = re.compile(r"\b([vsa])(\d+)\b|\b([vsa])\[(\d+):(\d+)\]")
def regs_of(tok):
    out = []
    for m in _REG.finditer(tok):
        if m.group(1):
            out.append((m.group(1), int(m.group(2))))
        else:
            out += [(m.group(3), i) for i in range(int(m.group(4)), int(m.group(5)) + 1)]
    if re.search(r"\bvcc\b", tok): out.append(("s", "vcc"))
    if re.search(r"\bm0\b", tok): out.append(("s", "m0"))
    if re.search(r"\bexec\b", tok): out.append(("s", "exec"))
    return out

TRANS = ("v_exp_f32", "v_log_f32", "v_rcp_f32", "v_rsq_f32", "v_sqrt_f32")

class Ins:
    __slots__ = ("text", "op", "kind", "wr", "rd", "srcC", "states")
    def __init__(self, text):
        self.text = text
        t = text.split(";")[0].strip()
        parts = t.split(None, 1)
        self.op = op = parts[0]
        ops = [x.strip() for x in parts[1].split(",")] if len(parts) > 1 else []
        self.wr, self.rd, self.srcC = [], [], []
        self.states = 1
        if op.endswith(":") or op.startswith("."):
            self.kind = "label"; self.states = 0; return
        if op == "s_nop":
            self.kind = "nop"; self.states = int(ops[0], 0) + 1; return
        if op.startswith("v_mfma"):
            self.kind = "mfma"
            self.wr = regs_of(ops[0]); self.rd = regs_of(ops[1]) + regs_of(ops[2]); self.srcC = regs_of(ops[3])
        elif op.startswith("ds_read") or op.startswith("ds_bpermute"):
            self.kind = "lds"; self.wr = regs_of(ops[0]); self.rd = sum((regs_of(o) for o in ops[1:]), [])
        elif op.startswith("ds_"):
            self.kind = "lds"; self.rd = sum((regs_of(o) for o in ops), [])
        elif op.startswith("buffer_load") or op.startswith("global_load"):
            self.kind = "vmem"
            if re.search(r"\blds\b", t):
                self.rd = sum((regs_of(o) for o in ops), []) + [("s", "m0")]; self.kind = "dma"
            else:
                self.wr = regs_of(ops[0]); self.rd = sum((regs_of(o) for o in ops[1:]), [])
        elif op.startswith("buffer_store") or op.startswith("global_store"):
            self.kind = "store"; self.rd = sum((regs_of(o) for o in ops), [])
        elif op.startswith("global_atomic") or op.startswith("buffer_atomic"):
            self.kind = "vmem"
            if "sc0" in t and op.startswith("global"):
                self.wr = regs_of(ops[0]); self.rd = sum((regs_of(o) for o in ops[1:]), [])
            else:
                self.rd = sum((regs_of(o) for o in ops), [])
                if "sc0" in t: self.wr = regs_of(ops[0])
        elif op.startswith("buffer_"):
            self.kind = "vmem"
        elif op.startswith("v_"):
            self.kind = "trans" if op.replace("_e32", "").replace("_e64", "") in TRANS else "valu"
            if op.startswith("v_permlane") or op.startswith("v_swap"):
                self.wr = regs_of(ops[0]) + regs_of(ops[1]); self.rd = list(self.wr)
            else:
                self.wr = regs_of(ops[0]); self.rd = sum((regs_of(o) for o in ops[1:]), [])
                if op.startswith("v_fmac") : self.rd += regs_of(ops[0])
                if op.startswith("v_add_co") or op.startswith("v_addc_co"):
                    self.wr += regs_of(ops[1]); self.rd = sum((regs_of(o) for o in ops[2:]), [])
                if op.startswith("v_cmpx"): self.wr.append(("s", "exec"))
        elif op.startswith("s_load") or op.startswith("s_memtime") or op.startswith("s_memrealtime") or op.startswith("s_atomic"):
            self.kind = "smem"; self.wr = regs_of(ops[0]); self.rd = sum((regs_of(o) for o in ops[1:]), [])
        elif op.startswith("s_"):
            self.kind = "salu"
            if op.startswith(("s_cmp", "s_cbranch", "s_branch", "s_waitcnt", "s_barrier", "s_setprio", "s_endpgm", "s_sleep")):
                self.rd = sum((regs_of(o) for o in ops), [])
            else:
                self.wr = regs_of(ops[0]); self.rd = sum((regs_of(o) for o in ops[1:]), [])
                if "saveexec" in op: self.wr.append(("s", "exec"))
        else:
            raise ValueError("unknown instr: " + text)

def mfma_passes(op):
    return 4 if "16x16x32" in op else 8

def required_gap(p, c):
    need = 0
    pw, cw, cr = set(p.wr), set(c.wr), set(c.rd)
    valu_p = p.kind in ("valu", "trans"); valu_c = c.kind in ("valu", "trans")
    vw = {r for r in pw if r[0] in "va"}; sw = {r for r in pw if r[0] == "s"}
    if p.kind == "mfma":
        n = mfma_passes(p.op)
        far = {4: 8, 8: 12}[n]
        if c.kind == "mfma":
            if vw & cr: need = max(need, far)
            cc = set(c.srcC)
            if vw & cc and not (p.wr == c.srcC and mfma_passes(c.op) == n):
                need = max(need, {4: 6, 8: 10}[n])
            if vw & cw and not (p.wr == c.srcC):
                need = max(need, {4: 6, 8: 10}[n])
        elif valu_c or c.kind in ("lds", "vmem", "dma", "store"):
            if vw & (cr | cw): need = max(need, far)
        if valu_c and set(p.srcC) & cw: need = max(need, {4: 3, 8: 7}[n])
    if valu_p:
        if c.kind == "mfma" and vw & (cr | set(c.srcC)): need = max(need, 2)
        if c.kind == "mfma" and ("s", "exec") in pw: need = max(need, 4)
        if c.op.startswith("v_permlane") and vw & cr: need = max(need, 2)
        if c.op.startswith(("v_readfirstlane", "v_readlane")) and vw & cr: need = max(need, 1)
        if p.kind == "trans" and c.kind == "valu" and vw & cr: need = max(need, 1)
        if sw and c.kind in ("vmem", "dma", "store") and sw & cr: need = max(need, 5)
        if sw and valu_c and sw & cr: need = max(need, 2)
        if sw and c.kind == "salu" and sw & cr: need = max(need, 1)
        if "dpp" in c.text and vw & cr: need = max(need, 2)
    if p.kind == "salu" and ("s", "m0") in pw and c.kind == "dma": need = max(need, 1)
    if p.kind == "store" and ("x4" in p.op or "x3" in p.op):
        data = set(regs_of(p.text.split(None, 1)[1].split(",")[0 if p.op.startswith("buffer") else 1]))
        if data & cw: need = max(need, 2)
    return need

class Asm:
    def __init__(self, autonop=True):
        self.ins = []
        self.vm = []
        self.lg = []
        self.vmdst = []
        self.autonop = autonop
        self.nops = 0
    def _emit(self, text):
        i = Ins(text)
        if i.kind not in ("label", "nop"):
            gap = 0; need = 0
            for p in reversed(self.ins[-24:]):
                r = required_gap(p, i) if p.kind not in ("label", "nop") else 0
                need = max(need, r - gap)
                gap += p.states
                if gap >= 12: break
            if need > 0:
                if not self.autonop: raise RuntimeError("hazard before: " + text)
                self.ins.append(Ins(f"s_nop {need-1}")); self.nops += 1
        self.ins.append(i)
        return i
    def _auto_wait(self, i):
        use = set(i.rd) | set(i.wr) | set(i.srcC)
        k = -1
        for n, (tag, d) in enumerate(self.lg):
            if d & use: k = n
        kv = -1
        for n, d in enumerate(self.vmdst):
            if d & use: kv = n
        if k >= 0 or kv >= 0:
            self._wait(vm_idx=kv, lg_idx=k)
    def _wait(self, vm_idx=-1, lg_idx=-1):
        parts = []
        if vm_idx >= 0:
            n = len(self.vm) - 1 - vm_idx
            n = min(n, 63)
            parts.append(f"vmcnt({n})")
            keep = n
            self.vm = self.vm[len(self.vm) - keep:] if keep else []
            self.vmdst = self.vmdst[len(self.vmdst) - keep:] if keep else []
        if lg_idx >= 0:
            n = min(len(self.lg) - 1 - lg_idx, 14)
            parts.append(f"lgkmcnt({n})")
            self.lg = self.lg[len(self.lg) - n:] if n else []
        if parts: self._emit("s_waitcnt " + " ".join(parts))
    def e(self, text, tag=None):
        i = Ins(text)
        if i.kind not in ("label", "nop"):
            self._auto_wait(i)
        i = self._emit(text)
        if i.kind == "lds":
            self.lg.append((tag, set(i.wr)))
        elif i.kind in ("vmem", "dma", "store"):
            self.vm.append(tag); self.vmdst.append(set(i.wr))
        return i
    def wait(self, vm=None, lg=None):
        vi = li = -1
        if vm is not None:
            tags = vm if isinstance(vm, (list, tuple, set)) else [vm]
            for n, t in enumerate(self.vm):
                if vm == "all" or t in tags: vi = n
        if lg is not None:
            tags = lg if isinstance(lg, (list, tuple, set)) else [lg]
            for n, (t, d) in enumerate(self.lg):
                if lg == "all" or t in tags: li = n
        self._wait(vi, li)
    def raw_wait(self, text):
        self._emit(text)
    def reset_counters(self):
        self.vm = []; self.vmdst = []; self.lg = []
    def c(self, comment):
        self.ins.append(Ins(".nop_comment"))
        self.ins[-1].text = "; " + comment
    def text(self):
        out = []
        for i in self.ins:
            out.append(i.text if i.kind == "label" else "    " + i.text)
        return "\n".join(out) + "\n"

def interleave(a, mf, fill):
    for k, m in enumerate(mf):
        a.e(m)
        for f in fill[k]:
            if callable(f): f()
            elif isinstance(f, tuple): a.e(f[0], tag=f[1])
            else: a.e(f)

class Sched:
    def __init__(self, a, mfs):
        self.a = a; self.mfs = list(mfs); n = len(self.mfs)
        self.hold = [[] for _ in range(n)]; self.vec = [[] for _ in range(n)]
    def h(self, k, x): self.hold[k].append(x)
    def v(self, k, x): self.vec[k].append(x)
    def emit(self, next_mfma=None):
        a = self.a
        def put(f):
            if callable(f): f()
            elif isinstance(f, tuple): a.e(f[0], tag=f[1])
            else: a.e(f)
        for k, m in enumerate(self.mfs):
            a.e(m)
            nxt = self.mfs[k + 1] if k + 1 < len(self.mfs) else next_mfma
            if nxt is not None:
                a._auto_wait(Ins(nxt))
            for f in self.hold[k]: put(f)
            vs = self.vec[k]
            key = lambda f: 0 if (isinstance(f, str) and f.startswith("ds_")) or (isinstance(f, tuple) and f[0].startswith("ds_")) else 1
            for f in sorted(vs, key=key): put(f)
```

```python
import sys, math, struct
from asmlib import *

NAME = "concat_heads__mha_block_cached__gqa_block_cached__near_ridge"
def f32(x): return "0x%08x" % struct.unpack("<I", struct.pack("<f", x))[0]
OPT = dict(stamp=0, nodma=0, nocheck=0, touch=1, forceslow=0, map84=0, first=6, rot=1, strip=0, cyc=0)
for a_ in sys.argv[2:]:
    k_, v_ = a_.split("="); assert k_ in OPT, k_; OPT[k_] = int(v_)

def R(x, n):
    t, i = x if isinstance(x, tuple) else ("v", x)
    return f"{t}{i}" if n == 1 else f"{t}[{i}:{i+n-1}]"
def off(x, d): return (x[0], x[1] + d) if isinstance(x, tuple) else x + d
def mf(d, a, b, c):
    return f"v_mfma_f32_16x16x32_bf16 {R(d,4)}, {R(a,4)}, {R(b,4)}, {'0' if c is None else R(c,4)}"

TILE = 8448
VB = 8 * TILE
XB = 16 * TILE
LDS = XB + 24576
PART = 240 * 8192
def slot(m):
    m %= 16
    return (m & 1), (m >> 1) * TILE

vKV, vKA, vVA, vWAl, vWAh, vW = 1, 2, 3, 4, 5, 6
vT = 7
QF, NM, S_, P_, KF, VF, O_ = 12, 60, 72, 96, 120, 136, 160
vX0, vX1, vXA0, vXA1 = 156, 157, 158, 159
vTo, vD, vPt = 152, 153, 154
def Qf(j, ks): return QF + 16 * j + 4 * ks
def Nm(j): return NM + 4 * j
def Sr(u, j): return S_ + 12 * u + 4 * j
def Pr(buf, j): return P_ + 12 * buf + 4 * j
def Or(i, j): return O_ + 12 * i + 4 * j
def Wreg(buf, i): return 12 + 32 * buf + 4 * i
def Xreg(buf, j, s): return 76 + 24 * buf + 8 * j + 4 * s
def Qacc(pos, i, j):
    k = 12 * i + 4 * j
    if pos == 0: return ("a", k)
    if pos == 1: return ("a", 96 + k)
    if pos == 2: return ("a", 192 + k) if k < 64 else 124 + (k - 64)
    return O_ + k
QBANK = {3: 0, 2: 48, 1: 96}
OBANK = {0: 144, 1: 96, 2: 48}
def La(j): return ("a", 192 + 4 * j)
ONES = ("a", 204)
def Greg(buf, i): return ("a", 192 + 32 * buf + 4 * i)
sX, sW, sK, sV, sWo, sP = 32, 36, 40, 44, 48, 52
sWv, sKVL, sWL, sXL, sOff, sOff2, sTmp, sR, sCur, sT2, sT3 = 60, 61, 62, 63, 64, 65, 66, 67, 68, 69, 70
sB, sU, sBr, sG, sXo, sPo = 71, 72, 73, 74, 75, 76
sCX, sNX = 56, 57
NSGPR = 80

def stamp(a, k, real=True):
    if not OPT["stamp"]: return
    lg = list(a.lg)
    a.raw_wait("s_waitcnt lgkmcnt(0)")
    if OPT["cyc"] and 2 <= k <= 8: real = False
    a._emit(f"{'s_memrealtime' if real else 's_memtime'} s[{80+2*k}:{81+2*k}]")
    a.raw_wait("s_waitcnt lgkmcnt(0)")
def stamp_dyn(a, base, sidx, n):
    if not OPT["stamp"]: return
    a.raw_wait("s_waitcnt lgkmcnt(0)")
    a._emit("s_memtime s[78:79]" if OPT["cyc"] else "s_memrealtime s[78:79]")
    a.raw_wait("s_waitcnt lgkmcnt(0)")
    for q in range(n):
        a.e(f"s_cmp_eq_u32 s{sidx}, {q}")
        a.e(f"s_cselect_b32 s{80+2*(base+q)}, s78, s{80+2*(base+q)}")
def stamp_store(a, label, base):
    if not OPT["stamp"]: return
    a.e(f"s_cmp_lg_u32 s{sWv}, 0")
    a.e(f"s_cbranch_scc1 {label}")
    for k in range(11): a.e(f"v_mov_b32 v{16+k}, s{80+2*k}")
    a.e("s_lshl_b32 s78, s2, 6"); a.e(f"s_add_u32 s78, s78, {(64<<20) + base*64}")
    a.e("v_mov_b32 v28, s78")
    a.e("s_mov_b64 exec, 1")
    a.e("global_store_dwordx4 v28, v[16:19], s[28:29]")
    a.e("global_store_dwordx4 v28, v[20:23], s[28:29] offset:16")
    a.e("global_store_dwordx4 v28, v[24:27], s[28:29] offset:32")

def srd(a, d, lo, o, size):
    a.e(f"s_add_u32 s{d}, s{lo}, {o}")
    a.e(f"s_addc_u32 s{d+1}, s{lo+1}, 0")
    a.e(f"s_and_b32 s{d+1}, s{d+1}, 0xffff")
    a.e(f"s_mov_b32 s{d+2}, {size}")
    a.e(f"s_mov_b32 s{d+3}, 0x20000")
_lbl = [0]
def newlabel(p):
    _lbl[0] += 1
    return f"L_{p}_{_lbl[0]}"
class U(str): pass

def ldsbase(m):
    h, o = slot(m); return h * VB + o
def w_tile(m, rel):
    b = ldsbase(m)
    return [([f"s_add_u32 s{sOff}, s{sCur}, {rel}", f"s_add_u32 m0, s{sWL}, {b}"], f"buffer_load_dwordx4 v{vW}, {sr(sW,4)}, s{sOff} offen lds"),
            ([f"s_add_u32 s{sOff}, s{sCur}, {rel + 8192}", f"s_add_u32 m0, s{sWL}, {b + 1032}"], f"buffer_load_dwordx4 v{vW}, {sr(sW,4)}, s{sOff} offen lds")]
def kv_tile(m, t):
    b = ldsbase(m); s = sV if m & 1 else sK
    so = f"s_xor_b32 s{sOff}, s{sNX if t >= 16 else sCX}, {(t % 16) * 8192}"
    return [([so, f"s_add_u32 m0, s{sKVL}, {b}"], f"buffer_load_dwordx4 v{vKV}, {sr(s,4)}, s{sOff} offen nt lds"),
            ([f"s_add_u32 m0, s{sKVL}, {b + 32}"], f"buffer_load_dwordx4 v{vKV}, {sr(s,4)}, s{sOff} offen offset:1024 nt lds")]
def wo_tile(m, rel, base_s):
    b = ldsbase(m)
    def so(x): return f"s_add_u32 s{sOff}, s{base_s}, {x}" if base_s is not None else f"s_mov_b32 s{sOff}, {x}"
    return [([so(rel), f"s_add_u32 m0, s{sWL}, {b}"], f"buffer_load_dwordx4 v{vW}, {sr(sWo,4)}, s{sOff} offen lds"),
            ([so(rel + 1280), f"s_add_u32 m0, s{sWL}, {b + 1032}"], f"buffer_load_dwordx4 v{vW}, {sr(sWo,4)}, s{sOff} offen lds")]
def emit_tile(a, steps):
    for pre, d in steps:
        for x in pre: a.e(x)
        a._emit(d)
def place_tile(a, S, steps, gaps):
    for (pre, d), g in zip(steps, gaps):
        for k, x in enumerate(pre): S.h(g - len(pre) + k, x)
        S.v(g, lambda d=d: a._emit(d))
def rd_w(dst, m, i):
    h, o = slot(m); p, u = divmod(i, 2)
    return [f"ds_read_b64_tr_b16 {R(off(dst, 2*e), 2)}, v{(vWAl, vWAh)[h]} offset:{o + e*512 + p*64 + u*8}" for e in range(2)]
def vmw(a, n): a.raw_wait(f"s_waitcnt vmcnt({n})")

def rowred(a, op, regs, tmps):
    for w in (32, 16):
        for r, t in zip(regs, tmps): a.e(f"v_mov_b32 v{t}, v{r}")
        for r, t in zip(regs, tmps): a.e(f"v_permlane{w}_swap_b32 v{r}, v{t}")
        for r, t in zip(regs, tmps): a.e(f"{op} v{r}, v{r}, v{t}")

RDPOS = [0,1,2,3,4,5,7,8,9,10,12,13,14,15,17,18]

def main_kernel():
    a = Asm()
    a.e("s_cmp_ge_u32 s2, 256")
    a.e("s_cbranch_scc1 L_end")
    a.e("s_load_dwordx16 s[4:19], s[0:1], 0")
    a.e("s_load_dwordx4 s[20:23], s[0:1], 64")
    a.e("s_load_dwordx2 s[28:29], s[0:1], 96")
    a.e(f"s_bfe_u32 s{sBr}, s2, 0x10002")
    if not OPT["map84"]:
        a.e(f"s_and_b32 s{sB}, s2, 3"); a.e(f"s_lshl_b32 s{sB}, s{sB}, 2")
        a.e(f"s_bfe_u32 s{sTmp}, s2, 0x20003"); a.e(f"s_add_u32 s{sB}, s{sB}, s{sTmp}")
        a.e(f"s_lshr_b32 s{sU}, s2, 5")
    else:
        a.e(f"s_and_b32 s{sB}, s2, 1"); a.e(f"s_lshl_b32 s{sB}, s{sB}, 3")
        a.e(f"s_bfe_u32 s{sTmp}, s2, 0x30003"); a.e(f"s_add_u32 s{sB}, s{sB}, s{sTmp}")
        a.e(f"s_bfe_u32 s{sU}, s2, 0x10001"); a.e(f"s_lshl_b32 s{sU}, s{sU}, 2")
        a.e(f"s_lshr_b32 s{sTmp}, s2, 6"); a.e(f"s_add_u32 s{sU}, s{sU}, s{sTmp}")
    a.e(f"s_lshl_b32 s{sG}, s{sBr}, 4"); a.e(f"s_add_u32 s{sG}, s{sG}, s{sB}")
    a.e("v_lshrrev_b32 v7, 6, v0")
    a.e("v_and_b32 v0, 63, v0")
    a.e(f"v_readfirstlane_b32 s{sWv}, v7")
    a.e("v_and_b32 v8, 15, v0")
    a.e("v_lshrrev_b32 v9, 4, v0")
    a.e("v_and_b32 v10, 1, v9"); a.e("v_lshlrev_b32 v10, 4, v10")
    a.e("v_lshrrev_b32 v11, 1, v9"); a.e("v_lshl_add_u32 v10, v11, 2, v10")
    a.e("v_lshrrev_b32 v11, 1, v7"); a.e("v_lshl_add_u32 v10, v11, 3, v10")
    a.e("v_and_b32 v11, 1, v7"); a.e("v_lshl_add_u32 v10, v11, 1, v10")
    a.e("v_lshlrev_b32 v10, 13, v10"); a.e(f"v_lshl_add_u32 v{vW}, v8, 4, v10")
    a.e("v_mul_u32_u24 v10, 48, v7"); a.e("v_lshrrev_b32 v11, 3, v0"); a.e("v_add_u32 v10, v10, v11")
    a.e("v_mul_u32_u24 v10, 1280, v10")
    a.e("v_and_b32 v11, 7, v0"); a.e("v_xor_b32 v11, v11, v9")
    a.e(f"v_lshl_add_u32 v{vX0}, v11, 4, v10")
    a.e("v_xor_b32 v11, 4, v11"); a.e("v_add_u32 v10, 10240, v10")
    a.e(f"v_lshl_add_u32 v{vX1}, v11, 4, v10")
    a.e(f"s_mul_i32 s{sKVL}, s{sWv}, 2112")
    a.e(f"s_mov_b32 s{sWL}, s{sKVL}")
    a.e(f"s_mul_i32 s{sXL}, s{sWv}, 6144"); a.e(f"s_add_u32 s{sXL}, s{sXL}, {XB}")
    a.raw_wait("s_waitcnt lgkmcnt(0)")
    a.e(f"s_cmp_eq_u32 s{sBr}, 0")
    a.e("s_cselect_b64 s[4:5], s[4:5], s[14:15]")
    a.e("s_cselect_b64 s[6:7], s[6:7], s[16:17]")
    a.e("s_cselect_b64 s[8:9], s[8:9], s[18:19]")
    a.e("s_cselect_b64 s[10:11], s[10:11], s[20:21]")
    a.e("s_cselect_b64 s[12:13], s[12:13], s[22:23]")
    a.e(f"s_mul_i32 s{sTmp}, s{sB}, 245760")
    srd(a, sX, 4, f"s{sTmp}", 245760)
    a.e(f"s_lshl_b32 s{sTmp}, s{sU}, 10")
    srd(a, sW, 10, f"s{sTmp}", 639 * 8192 + 1024)
    stamp(a, 0); stamp(a, 1, False)
    def wrel(n): return (n >> 2) * 262144 + (3 - (n & 3)) * 256
    def x_steps(rel, base_s):
        st = []
        for j in range(3):
            for i, v in enumerate((vX0, vX1)):
                pre = []
                if i == 0: pre.append(f"s_add_u32 s{sOff2}, s{base_s}, {rel + j*20480}")
                pre.append(f"s_add_u32 m0, s{sXL}, {j*2048 + i*1024}")
                st.append((pre, f"buffer_load_dwordx4 v{v}, {sr(sX,4)}, s{sOff2} offen lds"))
        return st
    def rd_x(buf):
        return [f"ds_read_b128 {vr(Xreg(buf, j, s),4)}, v{(vXA0, vXA1)[s]} offset:{j*2048}" for s in range(2) for j in range(3)]
    a.e(f"s_mov_b32 s{sCur}, 0"); a.e(f"s_mov_b32 s{sXo}, 0")
    if OPT["rot"]:
        a.e(f"s_lshr_b32 s{sCX}, s2, 4"); a.e(f"s_xor_b32 s{sCX}, s{sCX}, s2"); a.e(f"s_and_b32 s{sCX}, s{sCX}, 15"); a.e(f"s_lshl_b32 s{sCX}, s{sCX}, 13")
    else: a.e(f"s_mov_b32 s{sCX}, 0")
    a.e(f"s_add_u32 s{sNX}, s{sCX}, 131072")
    NF = OPT["first"]
    emit_tile(a, w_tile(0, wrel(0)))
    emit_tile(a, x_steps(0, sXo))
    for n in range(1, NF): emit_tile(a, w_tile(n, wrel(n)))
    a.e("v_bfe_u32 v10, v0, 2, 3")
    a.e("v_lshrrev_b32 v11, 1, v10"); a.e("v_lshlrev_b32 v11, 6, v11"); a.e(f"v_lshl_add_u32 v{vWAl}, v10, 10, v11")
    a.e("v_and_b32 v11, 1, v10"); a.e(f"v_lshl_add_u32 v{vWAl}, v11, 3, v{vWAl}")
    a.e("v_lshrrev_b32 v11, 5, v0"); a.e(f"v_lshl_add_u32 v{vWAl}, v11, 8, v{vWAl}")
    a.e("v_mul_u32_u24 v10, 1056, v10"); a.e("v_lshl_add_u32 v10, v11, 8, v10")
    a.e("v_and_b32 v11, 3, v0"); a.e(f"v_lshl_add_u32 v{vWAl}, v11, 4, v{vWAl}")
    a.e(f"v_lshl_add_u32 v10, v11, 3, v10"); a.e(f"v_add_u32 v{vVA}, {VB}, v10")
    a.e(f"v_add_u32 v{vWAh}, {VB}, v{vWAl}")
    a.e("v_and_b32 v10, 7, v8"); a.e("v_mul_u32_u24 v10, 1056, v10")
    a.e("v_lshrrev_b32 v11, 3, v8"); a.e(f"v_lshl_add_u32 v10, v11, 8, v10")
    a.e(f"v_lshl_add_u32 v{vKA}, v9, 4, v10")
    a.e("v_lshlrev_b32 v10, 4, v0"); a.e(f"v_lshl_add_u32 v{vKV}, v7, 11, v10")
    a.e(f"v_lshlrev_b32 v10, 7, v8"); a.e(f"v_add_u32 v10, s{sXL}, v10")
    a.e("v_lshrrev_b32 v11, 1, v8"); a.e("v_xor_b32 v11, v11, v9")
    a.e(f"v_lshl_add_u32 v{vXA0}, v11, 4, v10")
    a.e("v_xor_b32 v11, 4, v11"); a.e(f"v_lshl_add_u32 v{vXA1}, v11, 4, v10")
    a.e(f"s_lshl_b32 s{sTmp}, s{sB}, 3"); a.e(f"s_add_u32 s{sTmp}, s{sTmp}, s{sU}"); a.e(f"s_lshl_b32 s{sTmp}, s{sTmp}, 19")
    srd(a, sK, 6, f"s{sTmp}", 4 * 131072)
    srd(a, sV, 8, f"s{sTmp}", 4 * 131072)
    a.e(f"s_mul_i32 s{sTmp}, s{sU}, {512*1280}")
    srd(a, sWo, 12, f"s{sTmp}", 512 * 1280)
    a.e(f"s_mul_i32 s{sTmp}, s{sG}, {PART}"); a.e(f"s_lshl_b32 s{sT2}, s{sU}, 10"); a.e(f"s_add_u32 s{sTmp}, s{sTmp}, s{sT2}")
    srd(a, sP, 28, f"s{sTmp}", 0)
    for r in range(256): a.e(f"v_accvgpr_write_b32 a{r}, 0")
    for r in list(range(124, 156)) + list(range(160, 256)): a.e(f"v_mov_b32 v{r}, 0")
    vmw(a, 2 * (NF - 1))
    a.e("s_barrier")
    for r in rd_x(0): a.e(r)
    for i in range(8):
        for r in rd_w(Wreg(0, i), 0, i): a.e(r)
    for n in range(NF, 15): emit_tile(a, w_tile(n, wrel(n)))
    a.wait(lg="all")
    stamp(a, 2)
    def qmf(n):
        s, pos = divmod(n % 16, 4)
        return [mf(Qacc(pos, i, j), Wreg(n & 1, i), Xreg((s >> 1) & 1, j, s & 1), Qacc(pos, i, j)) for i in range(8) for j in range(3)]
    def q_group(last):
        for n in range(16):
            a.c(f"Q sub-step {n}{' (last group)' if last else ''}")
            S = Sched(a, qmf(n))
            fin = last and n == 15
            if not fin:
                ahead = 13 if not (last and n == 14) else 13
                vmw(a, 2 * ahead)
                a.e("s_barrier")
                rds = []
                for i in range(8): rds += rd_w(Wreg((n + 1) & 1, i), n + 1, i)
                for r, p in zip(rds, RDPOS): S.v(p, r)
                m = n + 15
                if not last or m < 16: place_tile(a, S, w_tile(m, wrel(m)), (6, 11))
                elif m - 16 <= 12: place_tile(a, S, kv_tile(m, (m - 16) >> 1), (6, 11))
            q = n % 8
            more = not (last and n >= 8)
            if q in (6, 7) and more:
                rx = rd_x(((n >> 3) + 1) & 1)[3*(q-6):3*(q-6)+3]
                if q == 6: S.h(19, lambda: vmw(a, 8))
                for r, p in zip(rx, (20, 21, 22)): S.v(p, (r, "xr"))
            if q in (0, 1, 2) and not last or (last and n in (0, 1, 2)):
                xs = x_steps(128 * ((n >> 3) + 1), sXo)[2*q:2*q+2]
                if q == 0: S.h(12, lambda: a.wait(lg="xr"))
                place_tile(a, S, xs, (16, 19))
            if n == 15 and not last:
                S.h(20, f"s_add_u32 s{sCur}, s{sCur}, {4*262144}")
                S.h(21, f"s_add_u32 s{sXo}, s{sXo}, 256")
                S.h(22, f"s_cmp_lt_u32 s{sXo}, 1024")
            S.emit(None if fin else qmf(n + 1)[0])
    a.e(".p2align 6")
    a.e("L_q:")
    mark = len(a.ins); nops0 = a.nops
    q_group(False)
    lg_end = list(a.lg)
    del a.ins[mark:]; a.nops = nops0
    q_group(False)
    assert a.lg == lg_end
    a.e("s_cbranch_scc1 L_q")
    q_group(True)
    stamp(a, 3)
    a.c("Q conversion")
    a.e(f"s_mov_b32 s{sTmp}, {f32(math.log2(math.e) / math.sqrt(128.0))}")
    tmp = [60 + 12 * k for k in range(5)]
    k = 0
    for pos in range(4):
        for p in range(4):
            for j in range(3):
                t = tmp[k % 5]; k += 1
                src = []
                for u in range(2):
                    o = Qacc(pos, 2*p + u, j)
                    for r in range(4):
                        if isinstance(o, tuple):
                            a.e(f"v_accvgpr_read_b32 v{t+4*u+r}, a{o[1]+r}"); src.append(t + 4*u + r)
                        else: src.append(o + r)
                for x in src: a.e(f"v_mul_f32 v{x}, s{sTmp}, v{x}")
                d = Qf(j, p) if pos == 3 else t + 8
                for r in range(4): a.e(f"v_cvt_pk_bf16_f32 v{d+r}, v{src[2*r]}, v{src[2*r+1]}")
                if pos < 3:
                    for r in range(4): a.e(f"v_accvgpr_write_b32 a{QBANK[3-pos] + 12*p + 4*j + r}, v{d+r}")
    a.e(f"v_mov_b32 v{vT}, 0x3f803f80")
    for r in range(4): a.e(f"v_accvgpr_write_b32 a{ONES[1]+r}, v{vT}")
    a.e(f"v_min_u32 v{vTo}, 19, v0"); a.e(f"v_lshlrev_b32 v{vTo}, 7, v{vTo}")
    a.e(f"s_mul_i32 s{sTmp}, s{sB}, 40960"); a.e(f"s_mul_i32 s{sT2}, s{sWv}, 2560"); a.e(f"s_add_u32 s{sTmp}, s{sTmp}, s{sT2}")
    a.e(f"v_add_u32 v{vTo}, s{sTmp}, v{vTo}")
    a.e(f"s_mul_i32 s{sTmp}, s{sWv}, 24576"); a.e(f"v_lshlrev_b32 v{vPt}, 4, v0"); a.e(f"v_add_u32 v{vPt}, s{sTmp}, v{vPt}")
    a.e("v_lshrrev_b32 v9, 4, v0"); a.e(f"s_lshl_b32 s{sTmp}, s{sWv}, 1"); a.e(f"v_lshl_add_u32 v9, v9, 3, s{sTmp}")
    a.e("v_mul_u32_u24 v9, 1280, v9"); a.e("v_and_b32 v8, 15, v0"); a.e(f"v_lshl_add_u32 v{vW}, v8, 4, v9")
    a.e(f"s_mov_b32 s{sR}, 0"); a.e(f"s_mov_b32 s{sCur}, 0")
    def rd_k(dst, t, u): return [f"ds_read_b128 {vr(dst + 4*ks,4)}, v{vKA} offset:{(t % 8)*TILE + u*512 + ks*64}" for ks in range(4)]
    def rd_v(t, half, fr=VF):
        return [f"ds_read_b64_tr_b16 {vr(fr + 4*i + 2*e, 2)}, v{vVA} offset:{(t % 8)*TILE + e*512 + (4*half+i)*32}" for i in range(4) for e in range(2)]
    vmw(a, 24)
    a.e("s_barrier")
    a.lg = []
    for r in rd_k(VF, 0, 1) + rd_k(KF, 0, 0): a.e(r)
    stamp(a, 4)
    def ex(u, k): j, r = divmod(k, 4); s = Sr(u, j) + r; return f"v_exp_f32 v{s}, v{s}"
    def cv(u, buf, c): j, h = divmod(c, 2); s = Sr(u, j) + 2*h; return f"v_cvt_pk_bf16_f32 v{Pr(buf,j) + 2*u + h}, v{s}, v{s+1}"
    def qk(u): return [mf(Sr(u, j), KF + 4*ks, Qf(j, ks), Nm(j) if ks == 0 else Sr(u, j)) for j in range(3) for ks in range(4)]
    def pv(t, half, fr=VF): return [mf(Or(4*half + i, j), fr + 4*i, Pr(t & 1, j), None if t == 0 else Or(4*half + i, j)) for i in range(4) for j in range(3)]
    def sm(t): return [mf(La(j), ONES, Pr(t & 1, j), None if t == 0 else La(j)) for j in range(3)]
    oob = []
    def stream_tile(S, m, gaps):
        kv = kv_tile(m, m >> 1)
        if m < 32:
            place_tile(a, S, kv, gaps); return
        wo = wo_tile(m, (m - 32) * 40960, None)
        for (pre, d), (pre2, d2), g in zip(kv, wo, gaps):
            for k, x in enumerate(pre): S.h(g - len(pre) + k, x)
            l0, l1 = newlabel("wo"), newlabel("back")
            def site(d=d, l0=l0, l1=l1):
                a.e(f"s_cbranch_vccnz {l0}"); a._emit(d); a.e(f"{l1}:")
            S.v(g, site)
            oob.append((l0, l1, pre2, d2))
    def tail_vec(S, u, buf, rds):
        pos = [0, 1, 4, 5, 8, 9, 10, 11]
        for r, p in zip(rds, pos): S.v(p, r)
        for k, p in zip(range(8, 12), (2, 3, 6, 7)): S.v(p, ex(u, k))
        for c, p in zip(range(6), (0, 1, 4, 5, 8, 9)): S.v(p, cv(u, buf, c))
    a.e(".p2align 6")
    a.e("L_head:")
    a.c("tile 0: scores and stand-in row max (max over the first 32 keys)")
    a.e(f"s_cmp_eq_u32 s{sR}, 3")
    for u, kf in ((1, VF), (0, KF)):
        for j in range(3):
            for ks in range(4):
                a.e(mf(Sr(u, j), kf + 4*ks, Qf(j, ks), None if ks == 0 else Sr(u, j)))
    a.e("s_cselect_b64 vcc, -1, 0")
    vmw(a, 20)
    a.e("s_barrier")
    for r in rd_k(KF, 1, 0): a.e(r)
    emit_tile(a, kv_tile(13, 6)); emit_tile(a, kv_tile(14, 7))
    for j in range(3):
        n = Nm(j); s0 = Sr(0, j); s1 = Sr(1, j)
        a.e(f"v_max3_f32 v{n}, v{s1}, v{s1+1}, v{s1+2}")
        a.e(f"v_max3_f32 v{n+1}, v{s1+3}, v{s0}, v{s0+1}")
        a.e(f"v_max3_f32 v{n}, v{n}, v{s0+2}, v{s0+3}")
        a.e(f"v_max_f32 v{n}, v{n}, v{n+1}")
    rowred(a, "v_max_f32", [Nm(j) for j in range(3)], [Nm(j) + 1 for j in range(3)])
    for j in range(3):
        n = Nm(j)
        a.e(f"v_sub_f32 v{n}, 0, v{n}")
        for r in range(1, 4): a.e(f"v_mov_b32 v{n+r}, v{n}")
    for u in range(2):
        for j in range(3):
            for r in range(4): a.e(f"v_add_f32 v{Sr(u,j)+r}, v{Sr(u,j)+r}, v{Nm(j)}")
    for k in range(12): a.e(ex(0, k))
    for k in range(8): a.e(ex(1, k))
    for c in range(6): a.e(cv(0, 0, c))
    pend = None
    for t in range(15):
        a.c(f"stage {t}")
        S = Sched(a, qk(0)); tail_vec(S, 1, t & 1, rd_v(t, 0)); S.emit(pv(t, 0)[0])
        S = Sched(a, pv(t, 0))
        for r, p in zip(rd_k(KF, t+1, 1), (0, 1, 2, 3)): S.v(p, r)
        for k, p in zip(range(8), range(4, 12)): S.v(p, ex(0, k))
        S.emit(qk(1)[0])
        S = Sched(a, qk(1)); tail_vec(S, 0, (t+1) & 1, rd_v(t, 1))
        S.h(11, lambda: vmw(a, 20))
        S.emit(None)
        S = Sched(a, sm(t) + pv(t, 1))
        S.h(0, "s_barrier")
        if t + 2 < 16:
            for r, p in zip(rd_k(KF, t+2, 0), (0, 1, 2, 3)): S.v(p, r)
        for k, p in zip(range(8), (3, 4, 6, 7, 9, 10, 12, 13)): S.v(p, ex(1, k))
        stream_tile(S, 2*(t+7) + 1, (5, 8))
        stream_tile(S, 2*(t+8), (11, 14))
        if OPT["touch"] and t == 14:
            S.h(1, f"s_mul_i32 s{sT2}, s{sR}, 10240")
            S.v(1, lambda: a._emit(f"buffer_load_dword v{vD}, v{vTo}, {sr(sWo,4)}, s{sT2} offen"))
        S.emit(qk(0)[0] if t < 14 else None)
    a.c("stage 15")
    for r in rd_v(15, 0): a.e(r)
    for k in range(8, 12): a.e(ex(1, k))
    for c in range(6): a.e(cv(1, 1, c))
    S = Sched(a, sm(15) + pv(15, 0))
    for r, p in zip(rd_v(15, 1, KF), range(8)): S.v(p, r)
    S.emit(pv(15, 1, KF)[0])
    S = Sched(a, pv(15, 1, KF))
    for j in range(3): S.v(j, f"v_accvgpr_read_b32 v{vT+j}, a{La(j)[1]}")
    S.v(3, f"v_add_f32 v{vT+3}, v{vT}, v{vT+1}"); S.v(4, f"v_add_f32 v{vT+3}, v{vT+3}, v{vT+2}")
    S.v(5, f"v_mov_b32 v{vT+4}, {f32(2.0**30 if not OPT['forceslow'] else 150.0)}")
    S.v(6, f"v_cmp_nle_f32 vcc, v{vT+3}, v{vT+4}")
    S.emit(None)
    assert not a.lg
    if not OPT["nocheck"]: a.e("s_cbranch_vccnz L_slow")
    a.e("L_epi:")
    for r in rd_k(VF, 0, 1) + rd_k(KF, 0, 0): a.e(r)
    for j in range(3): a.e(f"v_rcp_f32 v{vT+j}, v{vT+j}")
    for p in range(4):
        for j in range(3):
            d = Qf(j, p)
            for u in range(2):
                o = Or(2*p + u, j)
                for r in range(4): a.e(f"v_mul_f32 v{o+r}, v{o+r}, v{vT+j}")
                a.e(f"v_cvt_pk_bf16_f32 v{d+2*u}, v{o}, v{o+1}")
                a.e(f"v_cvt_pk_bf16_f32 v{d+2*u+1}, v{o+2}, v{o+3}")
    stamp_dyn(a, 5, sR, 4)
    a.e(f"s_add_u32 s{sCur}, s{sCur}, 131072")
    a.e(f"s_mov_b32 s{sCX}, s{sNX}"); a.e(f"s_add_u32 s{sNX}, s{sNX}, 131072")
    a.e(f"s_add_u32 s{sR}, s{sR}, 1")
    a.e(f"s_cmp_eq_u32 s{sR}, 4"); a.e("s_cbranch_scc1 L_g")
    a.e(f"s_cmp_eq_u32 s{sR}, 3"); a.e("s_cbranch_scc1 L_sw2")
    a.e(f"s_cmp_eq_u32 s{sR}, 2"); a.e("s_cbranch_scc1 L_sw1")
    for r in range(3):
        a.e(f"L_sw{r}:")
        for p in range(4):
            for j in range(3):
                for x in range(4): a.e(f"v_accvgpr_write_b32 a{OBANK[r] + 12*p + 4*j + x}, v{Qf(j,p)+x}")
        for p in range(4):
            for j in range(3):
                for x in range(4): a.e(f"v_accvgpr_read_b32 v{Qf(j,p)+x}, a{QBANK[r+1] + 12*p + 4*j + x}")
        a.e("s_nop 0")
        a.e("s_branch L_head")
    for l0, l1, pre2, d2 in oob:
        a.e(f"{l0}:")
        for x in pre2: a.e(x)
        a._emit(d2)
        a.e(f"s_branch {l1}")
    a.e(".p2align 6")
    a.e("L_g:")
    a.lg = []
    a.raw_wait("s_waitcnt vmcnt(24) lgkmcnt(0)")
    a.e("s_barrier")
    for i in range(8):
        for r in rd_w(Greg(0, i), 0, i): a.e(r)
    emit_tile(a, wo_tile(13, 13 * 40960, None)); emit_tile(a, wo_tile(14, 14 * 40960, None))
    a.e(f"s_mov_b32 s{sCur}, 0")
    a.e(f"s_mov_b32 s{sPo}, 0")
    def Bop(ks, j):
        r, p = divmod(ks, 4)
        return Qf(j, p) if r == 3 else ("a", OBANK[r] + 12 * p + 4 * j)
    def gmf(n): return [mf(Or(i, j), Greg(n & 1, i), Bop(n, j), None if n == 0 else Or(i, j)) for i in range(8) for j in range(3)]
    def gcv(m, h):
        i, j = divmod(m, 3); p, u = divmod(i, 2); o = Or(i, j)
        return f"v_cvt_pk_bf16_f32 v{S_ + 12*p + 4*j + 2*u + h}, v{o+2*h}, v{o+2*h+1}"
    def gst(q):
        p, j = divmod(q, 3)
        return ([f"s_add_u32 s{sOff2}, s{sPo}, {p*98304 + j*8192}"], f"buffer_store_dwordx4 {vr(S_ + 12*p + 4*j,4)}, v{vPt}, {sr(sP,4)}, s{sOff2} offen sc1")
    cvs = [gcv(m, h) for m in range(24) for h in range(2)]
    def caps(dm): return [0 if g in dm else (1 if g in RDPOS else 2) for g in range(24)]
    plan15 = []; ci = 0
    for g, cp in enumerate(caps((6, 11))):
        for _ in range(cp):
            if ci < 48 and ci // 2 + 4 <= g: plan15.append((g, ci)); ci += 1
    n15 = ci
    plan0 = []
    for g, cp in enumerate(caps((6, 11))):
        for _ in range(cp):
            if ci < 48: plan0.append((g, ci)); ci += 1
    assert ci == 48 and all(c // 2 > g for g, c in plan0), (plan0, n15)
    a.e("L_gloop:")
    for n in range(16):
        a.c(f"G sub-step {n}")
        S = Sched(a, gmf(n))
        vmw(a, 26)
        a.e("s_barrier")
        rds = []
        for i in range(8): rds += rd_w(Greg((n + 1) & 1, i), n + 1, i)
        for r, p in zip(rds, RDPOS): S.v(p, r)
        m = n + 15
        place_tile(a, S, wo_tile(m, (m % 16) * 40960 + (m // 16) * 256, sCur), (6, 11))
        if n == 0:
            for g, c in plan0: S.v(g, cvs[c])
            S.h(14, f"s_cmp_eq_u32 s{sCur}, 1024")
            S.h(15, f"s_cselect_b32 s{sWo+2}, 0, s{sWo+2}")
        if 1 <= n <= 12: place_tile(a, S, [gst(n - 1)], (20,))
        if n == 15:
            for g, c in plan15: S.v(g, cvs[c])
            S.h(18, f"s_mov_b32 s{sP+2}, {PART - 7168}")
            S.h(19, f"s_mul_i32 s{sPo}, s{sCur}, {4*98304//256}")
            S.h(20, f"s_add_u32 s{sCur}, s{sCur}, 256")
            S.h(21, f"s_cmp_lt_u32 s{sCur}, 1280")
        S.emit(gmf((n + 1) % 16)[0])
    a.e("s_cbranch_scc1 L_gloop")
    done = 0
    for c in range(n15, 48):
        a.e(cvs[c])
    for q in range(12): emit_tile(a, [gst(q)])
    stamp(a, 9, False); stamp(a, 10)
    stamp_store(a, "L_end", 0)
    a.e("L_end:")
    a.e("s_endpgm")
    a.reset_counters()
    a.e("L_slow:")
    a.raw_wait("s_waitcnt vmcnt(0) lgkmcnt(0)")
    vKo, vVo = 155, 156
    a.e("v_and_b32 v10, 7, v0"); a.e("v_lshlrev_b32 v10, 10, v10")
    a.e("v_bfe_u32 v11, v0, 3, 1"); a.e("v_lshl_add_u32 v10, v11, 8, v10")
    a.e("v_lshrrev_b32 v11, 4, v0"); a.e(f"v_lshl_add_u32 v{vKo}, v11, 4, v10")
    a.e("v_bfe_u32 v10, v0, 4, 1"); a.e("v_lshlrev_b32 v10, 12, v10")
    a.e("v_lshrrev_b32 v11, 5, v0"); a.e("v_lshl_add_u32 v10, v11, 8, v10")
    a.e("v_and_b32 v11, 15, v0"); a.e(f"v_lshl_add_u32 v{vVo}, v11, 1, v10")
    for j in range(3): a.e(f"v_mov_b32 v{vT+j}, 0xff800000")
    def slow_qk(cinit):
        for u, kf in ((0, KF), (1, VF)):
            for ks in range(4): a.e(f"buffer_load_dwordx4 {vr(kf + 4*ks,4)}, v{vKo}, {sr(sK,4)}, s{sT2} offen offset:{u*512 + ks*64}")
        for u, kf in ((0, KF), (1, VF)):
            for j in range(3):
                for ks in range(4):
                    a.e(mf(Sr(u, j), kf + 4*ks, Qf(j, ks), (Nm(j) if cinit else None) if ks == 0 else Sr(u, j)))
    a.e(f"s_mov_b32 s{sT2}, s{sCur}")
    a.e(f"s_add_u32 s{sT3}, s{sCur}, 131072")
    a.e("L_slow_p1:")
    slow_qk(False)
    for j in range(3):
        for u in range(2):
            s = Sr(u, j)
            a.e(f"v_max3_f32 v{vT+j}, v{vT+j}, v{s}, v{s+1}")
            a.e(f"v_max3_f32 v{vT+j}, v{vT+j}, v{s+2}, v{s+3}")
    a.e(f"s_add_u32 s{sT2}, s{sT2}, 8192")
    a.e(f"s_cmp_lt_u32 s{sT2}, s{sT3}")
    a.e("s_cbranch_scc1 L_slow_p1")
    rowred(a, "v_max_f32", [vT, vT+1, vT+2], [Nm(j) for j in range(3)])
    for j in range(3):
        for r in range(4): a.e(f"v_sub_f32 v{Nm(j)+r}, 0, v{vT+j}")
    for r in range(96): a.e(f"v_mov_b32 v{O_+r}, 0")
    for r in range(12): a.e(f"v_accvgpr_write_b32 a{192+r}, 0")
    a.e(f"s_mov_b32 s{sT2}, s{sCur}")
    a.e("L_slow_p2:")
    slow_qk(True)
    for u in range(2):
        for k in range(12): a.e(ex(u, k))
    for u in range(2):
        for c in range(6): a.e(cv(u, 0, c))
    for half, fr in ((0, KF), (1, VF)):
        for hi in range(2):
            for i in range(4):
                for e in range(2):
                    for rp in range(2):
                        r = 2*rp + hi
                        a.e(f"buffer_load_ushort v{(S_ if hi else fr) + 4*i + 2*e + rp}, v{vVo}, {sr(sV,4)}, s{sT2} offen offset:{r*1024 + e*512 + (4*half+i)*32}")
        a.wait(vm="all")
        for x in range(16): a.e(f"v_lshl_or_b32 v{fr+x}, v{S_+x}, 16, v{fr+x}")
    for m in sm(2): a.e(m)
    for half, fr in ((0, KF), (1, VF)):
        for m in pv(2, half, fr): a.e(m)
    a.e(f"s_add_u32 s{sT2}, s{sT2}, 8192")
    a.e(f"s_cmp_lt_u32 s{sT2}, s{sT3}")
    a.e("s_nop 7")
    a.e("s_cbranch_scc1 L_slow_p2")
    for j in range(3): a.e(f"v_accvgpr_read_b32 v{vT+j}, a{La(j)[1]}")
    a.e("s_branch L_epi")
    return a

def reduce_kernel():
    a = Asm()
    a.e("s_cmp_ge_u32 s2, 1920")
    a.e("s_cbranch_scc1 L_r_end")
    a.e("s_load_dwordx2 s[4:5], s[0:1], 80")
    a.e("s_load_dwordx2 s[28:29], s[0:1], 96")
    a.e("v_lshrrev_b32 v1, 6, v0")
    a.e("v_and_b32 v0, 63, v0")
    a.e("v_readfirstlane_b32 s60, v1")
    a.e("s_lshl_b32 s3, s2, 2")
    a.e("v_lshlrev_b32 v2, 4, v0")
    a.e("s_add_u32 s3, s3, s60")
    a.e("s_lshl_b32 s6, s3, 13")
    a.e("s_mul_hi_u32 s7, s3, 17895698")
    a.e("s_mul_i32 s8, s7, 240"); a.e("s_sub_u32 s8, s3, s8")
    a.e("s_mul_i32 s9, s8, 43691"); a.e("s_lshr_b32 s9, s9, 19")
    a.e("s_mul_i32 s10, s9, 12"); a.e("s_sub_u32 s10, s8, s10")
    a.e("v_add_u32 v3, 4096, v2")
    a.raw_wait("s_waitcnt lgkmcnt(0)")
    if OPT["stamp"]: stamp(a, 0); stamp(a, 1, False)
    srd(a, 12, 28, "s6", 8192)
    for u in range(8):
        a.e(f"buffer_load_dwordx4 {vr(8+4*u,4)}, v{2 + (u>>2)}, s[12:15], 0 offen offset:{(u&3)*1024}")
    a.e("s_and_b32 s16, s7, 15"); a.e("s_mul_i32 s16, s16, 491520")
    a.e("s_mul_i32 s17, s10, 40960"); a.e("s_add_u32 s16, s16, s17")
    a.e("s_lshr_b32 s17, s7, 4"); a.e("s_mul_i32 s17, s17, 1280"); a.e("s_add_u32 s16, s16, s17")
    a.e("s_lshl_b32 s17, s9, 6"); a.e("s_add_u32 s16, s16, s17")
    srd(a, 20, 4, "s16", 15 * 2560 + 64)
    a.e("v_and_b32 v4, 15, v0"); a.e("v_mul_u32_u24 v4, 2560, v4")
    a.e("v_lshrrev_b32 v5, 4, v0"); a.e("v_lshl_add_u32 v4, v5, 4, v4")
    for u in range(8):
        for r in range(4):
            s = 8 + 4*u + r
            if u == 0:
                a.e(f"v_lshlrev_b32 v{40+2*r}, 16, v{s}"); a.e(f"v_and_b32 v{41+2*r}, 0xffff0000, v{s}")
            else:
                a.e(f"v_lshlrev_b32 v6, 16, v{s}"); a.e(f"v_and_b32 v7, 0xffff0000, v{s}")
                a.e(f"v_add_f32 v{40+2*r}, v{40+2*r}, v6"); a.e(f"v_add_f32 v{41+2*r}, v{41+2*r}, v7")
    for r in range(4): a.e(f"v_cvt_pk_bf16_f32 v{8+r}, v{40+2*r}, v{41+2*r}")
    a.e("buffer_store_dwordx4 v[8:11], v4, s[20:23], 0 offen")
    if OPT["stamp"]:
        stamp(a, 9, False); stamp(a, 10); stamp_store(a, "L_r_end", 256)
    a.e("L_r_end:")
    a.e("s_endpgm")
    return a

HDR = f"""; Fused attention blocks A and B. main_kernel: one workgroup per 4 heads of a batch (Q projection, attention,
; @launch kernel=main_kernel grid=(256,1,1) block=(256,1,1) lds={LDS}
; @launch kernel=reduce_kernel grid=(1920,1,1) block=(256,1,1) lds=0
.amdgcn_target "amdgcn-amd-amdhsa--gfx950"
.text
"""
def kern(name, a):
    return f".globl {name}\n.p2align 8\n.type {name},@function\n{name}:\n" + a.text()
def desc(name, nv, acc, ns):
    return f""".p2align 6
.amdhsa_kernel {name}
  .amdhsa_next_free_vgpr {nv}
  .amdhsa_next_free_sgpr {ns}
  .amdhsa_accum_offset {acc}
  .amdhsa_group_segment_fixed_size 0
  .amdhsa_kernarg_size 104
  .amdhsa_user_sgpr_count 2
  .amdhsa_user_sgpr_kernarg_segment_ptr 1
  .amdhsa_system_sgpr_workgroup_id_x 1
  .amdhsa_float_denorm_mode_32 3
.end_amdhsa_kernel
"""
if __name__ == "__main__":
    a = main_kernel(); r = reduce_kernel()
    if OPT["nodma"] & 1: a.ins = [i for i in a.ins if not (i.kind == "dma" and " nt " in i.text)]
    if OPT["nodma"] & 2: a.ins = [i for i in a.ins if not (i.kind == "dma" and " nt " not in i.text)]
    if OPT["nodma"] & 4: a.ins = [i for i in a.ins if not (i.kind == "store" and "sc1" in i.text)]
    if OPT["strip"]:
        i0 = [k for k, i in enumerate(a.ins) if i.text == "L_head:"][0]; i1 = [k for k, i in enumerate(a.ins) if i.text == "L_epi:"][0]
        a.ins = a.ins[:i0] + [i for i in a.ins[i0:i1] if i.kind not in ("mfma", "lds", "trans", "valu")] + a.ins[i1:]
    ns = 102 if OPT["stamp"] else NSGPR
    open(sys.argv[1], "w").write(HDR + kern("main_kernel", a) + kern("reduce_kernel", r) + '.section .rodata,"a"\n' + desc("main_kernel", 512, 256, ns) + desc("reduce_kernel", 48, 48, ns))
    print("instrs", len(a.ins), "nops", a.nops)
```

```python
import sys, math, struct
from asmlib import *

NAME = "concat_heads__mha_block_cached__gqa_block_cached__near_ridge"
def f32(x): return "0x%08x" % struct.unpack("<I", struct.pack("<f", x))[0]
OPT = dict(stamp=0, nodma=0, nocheck=0, touch=1, forceslow=0, map84=0, first=6, rot=1, strip=0, cyc=0, typ=2, track=0, wnt=0, xnt=0, t0x=0, t0w=0, ctouch=0)
for a_ in sys.argv[2:]:
    k_, v_ = a_.split("="); assert k_ in OPT, k_; OPT[k_] = int(v_)

def R(x, n):
    t, i = x if isinstance(x, tuple) else ("v", x)
    return f"{t}{i}" if n == 1 else f"{t}[{i}:{i+n-1}]"
def off(x, d): return (x[0], x[1] + d) if isinstance(x, tuple) else x + d
def mf(d, a, b, c):
    return f"v_mfma_f32_16x16x32_bf16 {R(d,4)}, {R(a,4)}, {R(b,4)}, {'0' if c is None else R(c,4)}"

TILE = 8448
VB = 8 * TILE
XB = 16 * TILE
LDS = XB + 24576
NSLOT = {0: 8, 1: 16, 2: 12}[OPT["typ"]]
CH = NSLOT * 1024
PART = 240 * CH
STAMP_AT = 128 << 20
def slot(m):
    m %= 16
    return (m & 1), (m >> 1) * TILE

vKV, vKA, vVA, vWAl, vWAh, vW = 1, 2, 3, 4, 5, 6
vT = 7
QF, NM, S_, P_, KF, VF, O_ = 12, 60, 72, 96, 120, 136, 160
vX0, vX1, vXA0, vXA1 = 156, 157, 158, 159
vTo, vD, vPt, vWo = 152, 153, 154, 155
def Qf(j, ks): return QF + 16 * j + 4 * ks
def Nm(j): return NM + 4 * j
def Sr(u, j): return S_ + 12 * u + 4 * j
def Pr(buf, j): return P_ + 12 * buf + 4 * j
def Or(i, j): return O_ + 12 * i + 4 * j
def Wreg(buf, i): return 12 + 32 * buf + 4 * i
def Xreg(buf, j, s): return 76 + 24 * buf + 8 * j + 4 * s
def Qacc(pos, i, j):
    k = 12 * i + 4 * j
    if pos == 0: return ("a", k)
    if pos == 1: return ("a", 96 + k)
    if pos == 2: return ("a", 192 + k) if k < 64 else 124 + (k - 64)
    return O_ + k
QBANK = {3: 0, 2: 48, 1: 96}
OBANK = {0: 144, 1: 96, 2: 48}
def La(j): return ("a", 192 + 4 * j)
ONES = ("a", 204)
def Greg(buf, i): return ("a", 192 + 32 * buf + 4 * i)
sX, sW, sK, sV, sWo, sP = 32, 36, 40, 44, 48, 52
sWv, sKVL, sWL, sXL, sOff, sOff2, sTmp, sR, sCur, sT2, sT3 = 60, 61, 62, 63, 64, 65, 66, 67, 68, 69, 70
sB, sU, sBr, sG, sXo, sPo = 71, 72, 73, 74, 75, 76
sCX, sNX, sLast, sS8, sWoB, sTask, sTyp = 56, 57, 58, 59, 77, 30, 31
sWq, sGc = 26, 27
NSGPR = 80

def stamp(a, k, real=True):
    if not OPT["stamp"]: return
    lg = list(a.lg)
    a.raw_wait("s_waitcnt lgkmcnt(0)")
    if OPT["cyc"] and 2 <= k <= 8: real = False
    a._emit(f"{'s_memrealtime' if real else 's_memtime'} s[{80+2*k}:{81+2*k}]")
    a.raw_wait("s_waitcnt lgkmcnt(0)")
def stamp_dyn(a, base, sidx, n):
    if not OPT["stamp"]: return
    a.raw_wait("s_waitcnt lgkmcnt(0)")
    a._emit("s_memtime s[78:79]" if OPT["cyc"] else "s_memrealtime s[78:79]")
    a.raw_wait("s_waitcnt lgkmcnt(0)")
    for q in range(n):
        a.e(f"s_cmp_eq_u32 s{sidx}, {q}")
        a.e(f"s_cselect_b32 s{80+2*(base+q)}, s78, s{80+2*(base+q)}")
def stamp_store(a, label, base):
    if not OPT["stamp"]: return
    a.e(f"s_cmp_lg_u32 s{sWv}, 0")
    a.e(f"s_cbranch_scc1 {label}")
    for k in range(11): a.e(f"v_mov_b32 v{16+k}, s{80+2*k}")
    a.e("s_lshl_b32 s78, s2, 6"); a.e(f"s_add_u32 s78, s78, {STAMP_AT + base*64}")
    a.e("v_mov_b32 v28, s78")
    a.e("s_mov_b64 exec, 1")
    a.e("global_store_dwordx4 v28, v[16:19], s[28:29]")
    a.e("global_store_dwordx4 v28, v[20:23], s[28:29] offset:16")
    a.e("global_store_dwordx4 v28, v[24:27], s[28:29] offset:32")

def srd(a, d, lo, o, size):
    a.e(f"s_add_u32 s{d}, s{lo}, {o}")
    a.e(f"s_addc_u32 s{d+1}, s{lo+1}, 0")
    a.e(f"s_and_b32 s{d+1}, s{d+1}, 0xffff")
    a.e(f"s_mov_b32 s{d+2}, {size}")
    a.e(f"s_mov_b32 s{d+3}, 0x20000")
_lbl = [0]
def newlabel(p):
    _lbl[0] += 1
    return f"L_{p}_{_lbl[0]}"
class U(str): pass

def ldsbase(m):
    h, o = slot(m); return h * VB + o
def w_tile(m, rel, base=None):
    b = ldsbase(m); base = sWq if base is None else base
    return [([f"s_add_u32 s{sOff}, s{base}, {rel}", f"s_add_u32 m0, s{sWL}, {b}"], f"buffer_load_dwordx4 v{vW}, {sr(sW,4)}, s{sOff} offen{' nt' if OPT['wnt'] else ''} lds"),
            ([f"s_add_u32 s{sOff}, s{base}, {rel + 8192}", f"s_add_u32 m0, s{sWL}, {b + 1032}"], f"buffer_load_dwordx4 v{vW}, {sr(sW,4)}, s{sOff} offen{' nt' if OPT['wnt'] else ''} lds")]
def kv_tile(m, t):
    b = ldsbase(m); s = sV if m & 1 else sK
    so = f"s_xor_b32 s{sOff}, s{sNX if t >= 16 else sCX}, {(t % 16) * 8192}"
    return [([so, f"s_add_u32 m0, s{sKVL}, {b}"], f"buffer_load_dwordx4 v{vKV}, {sr(s,4)}, s{sOff} offen nt lds"),
            ([f"s_add_u32 m0, s{sKVL}, {b + 32}"], f"buffer_load_dwordx4 v{vKV}, {sr(s,4)}, s{sOff} offen offset:1024 nt lds")]
def wo_tile(m, rel, base_s):
    b = ldsbase(m)
    def so(x): return f"s_add_u32 s{sOff}, s{base_s}, {x}" if base_s is not None else f"s_mov_b32 s{sOff}, {x}"
    return [([so(rel), f"s_add_u32 m0, s{sWL}, {b}"], f"buffer_load_dwordx4 v{vWo}, {sr(sWo,4)}, s{sOff} offen lds"),
            ([so(rel + 1280), f"s_add_u32 m0, s{sWL}, {b + 1032}"], f"buffer_load_dwordx4 v{vWo}, {sr(sWo,4)}, s{sOff} offen lds")]
def emit_tile(a, steps):
    for pre, d in steps:
        for x in pre: a.e(x)
        a._emit(d)
def place_tile(a, S, steps, gaps):
    for (pre, d), g in zip(steps, gaps):
        for k, x in enumerate(pre): S.h(g - len(pre) + k, x)
        S.v(g, lambda d=d: a._emit(d))
def rd_w(dst, m, i):
    h, o = slot(m); p, u = divmod(i, 2)
    return [f"ds_read_b64_tr_b16 {R(off(dst, 2*e), 2)}, v{(vWAl, vWAh)[h]} offset:{o + e*512 + p*64 + u*8}" for e in range(2)]
def vmw(a, n): a.raw_wait(f"s_waitcnt vmcnt({n})")

def rowred(a, op, regs, tmps):
    for w in (32, 16):
        for r, t in zip(regs, tmps): a.e(f"v_mov_b32 v{t}, v{r}")
        for r, t in zip(regs, tmps): a.e(f"v_permlane{w}_swap_b32 v{r}, v{t}")
        for r, t in zip(regs, tmps): a.e(f"{op} v{r}, v{r}, v{t}")

RDPOS = [0,1,2,3,4,5,7,8,9,10,12,13,14,15,17,18]
RDPOS_X = [2,3,5,6,8,9,11,12,14,15,16,17,18,19,20,21]

def late_consts(a):
    a.e(f"v_min_u32 v{vTo}, 19, v0"); a.e(f"v_lshlrev_b32 v{vTo}, 7, v{vTo}")
    a.e(f"s_mul_i32 s{sTmp}, s{sB}, 10240"); a.e(f"s_mul_i32 s{sT2}, s{sWv}, 2560"); a.e(f"s_add_u32 s{sTmp}, s{sTmp}, s{sT2}")
    a.e(f"v_add_u32 v{vTo}, s{sTmp}, v{vTo}")
    a.e(f"s_mul_i32 s{sTmp}, s{sWv}, {3*CH}"); a.e(f"v_lshlrev_b32 v{vPt}, 4, v0"); a.e(f"v_add_u32 v{vPt}, s{sTmp}, v{vPt}")
    a.e("v_lshrrev_b32 v9, 4, v0"); a.e(f"s_lshl_b32 s{sTmp}, s{sWv}, 1"); a.e(f"v_lshl_add_u32 v9, v9, 3, s{sTmp}")
    a.e("v_mul_u32_u24 v9, 1280, v9"); a.e("v_and_b32 v8, 15, v0"); a.e(f"v_lshl_add_u32 v{vWo}, v8, 4, v9")

def x_block(j, rel, base_s):
    so = f"s_add_u32 s{sOff2}, s{base_s}, {rel + j*20480}" if base_s is not None else f"s_mov_b32 s{sOff2}, {rel + j*20480}"
    return [([so, f"s_add_u32 m0, s{sXL}, {j*2048}"], f"buffer_load_dwordx4 v{vX0}, {sr(sX,4)}, s{sOff2} offen{' nt' if OPT['xnt'] else ''} lds"),
            ([f"s_add_u32 m0, s{sXL}, {j*2048 + 1024}"], f"buffer_load_dwordx4 v{vX1}, {sr(sX,4)}, s{sOff2} offen{' nt' if OPT['xnt'] else ''} lds")]
def rd_xb(dst, j, s): return f"ds_read_b128 {R(dst,4)}, v{(vXA0, vXA1)[s]} offset:{j*2048}"

def end_sync(a, S, vm, keep=2):
    def w():
        n = min(len(a.lg), keep)
        a.raw_wait(f"s_waitcnt vmcnt({vm}) lgkmcnt({n})")
        a.lg = a.lg[len(a.lg) - n:] if n else []
    S.h(22, w); S.h(23, "s_barrier")

def convert(a, acc, dests, tmp):
    a.e(f"s_mov_b32 s{sTmp}, {f32(math.log2(math.e) / math.sqrt(128.0))}")
    k = 0
    for pos, db in enumerate(dests):
        for p in range(4):
            for j in range(3):
                t = tmp[k % len(tmp)]; k += 1
                src = []
                for u in range(2):
                    o = acc(pos, 2*p + u, j)
                    for r in range(4):
                        if isinstance(o, tuple):
                            a.e(f"v_accvgpr_read_b32 v{t+4*u+r}, a{o[1]+r}"); src.append(t + 4*u + r)
                        else: src.append(o + r)
                for x in src: a.e(f"v_mul_f32 v{x}, s{sTmp}, v{x}")
                d = Qf(j, p) if db is None else t + 8
                for r in range(4): a.e(f"v_cvt_pk_bf16_f32 v{d+r}, v{src[2*r]}, v{src[2*r+1]}")
                if db is not None:
                    for r in range(4): a.e(f"v_accvgpr_write_b32 a{db + 12*p + 4*j + r}, v{d+r}")

def gcv(m, h):
    i, j = divmod(m, 3); p, u = divmod(i, 2); o = Or(i, j)
    return f"v_cvt_pk_bf16_f32 v{S_ + 12*p + 4*j + 2*u + h}, v{o+2*h}, v{o+2*h+1}"
CVS = [gcv(m, h) for m in range(24) for h in range(2)]
def gst(q, rel, base_s):
    p, j = divmod(q, 3)
    return ([f"s_add_u32 s{sOff2}, s{base_s}, {rel + (p*12 + j)*CH}"], f"buffer_store_dwordx4 {vr(S_ + 12*p + 4*j,4)}, v{vPt}, {sr(sP,4)}, s{sOff2} offen sc1")
def cv_plans():
    caps = [0 if g in (6, 11) else (1 if g in RDPOS else 2) for g in range(24)]
    last = []; ci = 0
    for g, cp in enumerate(caps):
        for _ in range(cp):
            if ci < 48 and ci // 2 + 4 <= g: last.append((g, ci)); ci += 1
    n = ci; first = []
    for g, cp in enumerate(caps):
        for _ in range(cp):
            if ci < 48: first.append((g, ci)); ci += 1
    assert ci == 48 and all(c // 2 > g for g, c in first)
    return last, first, n
PLAN_LAST, PLAN_FIRST, NLAST = cv_plans()

def Q2acc(pos, i, j): return (56 if pos == 0 else O_) + 12 * i + 4 * j
def X2reg(c, j, s): return ("a", 24 * (c % 8) + 8 * j + 4 * s)
def w2rel(n): return (n >> 1) * 262144 + (1 - (n & 1)) * 256
def q2mf(n):
    s, pos = divmod(n, 2)
    return [mf(Q2acc(pos, i, j), Greg(n & 1, i), X2reg(s >> 1, j, s & 1), None if s == 0 else Q2acc(pos, i, j)) for i in range(8) for j in range(3)]

def main_kernel():
    a = Asm()
    T = OPT["typ"]
    a.e("s_cmp_ge_u32 s2, 256")
    a.e("s_cbranch_scc1 L_end")
    a.e("s_load_dwordx16 s[4:19], s[0:1], 0")
    a.e("s_load_dwordx4 s[20:23], s[0:1], 64")
    a.e("s_load_dwordx2 s[28:29], s[0:1], 96")
    a.e(f"s_bfe_u32 s{sBr}, s2, 0x10002")
    if not OPT["map84"]:
        a.e(f"s_and_b32 s{sB}, s2, 3"); a.e(f"s_lshl_b32 s{sB}, s{sB}, 2")
        a.e(f"s_bfe_u32 s{sTmp}, s2, 0x20003"); a.e(f"s_add_u32 s{sB}, s{sB}, s{sTmp}")
        a.e(f"s_lshr_b32 s{sU}, s2, 5")
    else:
        a.e(f"s_and_b32 s{sB}, s2, 1"); a.e(f"s_lshl_b32 s{sB}, s{sB}, 3")
        a.e(f"s_bfe_u32 s{sTmp}, s2, 0x30003"); a.e(f"s_add_u32 s{sB}, s{sB}, s{sTmp}")
        a.e(f"s_bfe_u32 s{sU}, s2, 0x10001"); a.e(f"s_lshl_b32 s{sU}, s{sU}, 2")
        a.e(f"s_lshr_b32 s{sTmp}, s2, 6"); a.e(f"s_add_u32 s{sU}, s{sU}, s{sTmp}")
    a.e(f"s_lshl_b32 s{sG}, s{sBr}, 4"); a.e(f"s_add_u32 s{sG}, s{sG}, s{sB}")
    if T == 2: a.e(f"s_and_b32 s{sTyp}, s{sU}, 1")
    else: a.e(f"s_mov_b32 s{sTyp}, {T}")
    a.e("v_lshrrev_b32 v7, 6, v0")
    a.e("v_and_b32 v0, 63, v0")
    a.e(f"v_readfirstlane_b32 s{sWv}, v7")
    a.e("v_and_b32 v8, 15, v0")
    a.e("v_lshrrev_b32 v9, 4, v0")
    a.e("v_and_b32 v10, 1, v9"); a.e("v_lshlrev_b32 v10, 4, v10")
    a.e("v_lshrrev_b32 v11, 1, v9"); a.e("v_lshl_add_u32 v10, v11, 2, v10")
    a.e("v_lshrrev_b32 v11, 1, v7"); a.e("v_lshl_add_u32 v10, v11, 3, v10")
    a.e("v_and_b32 v11, 1, v7"); a.e("v_lshl_add_u32 v10, v11, 1, v10")
    a.e("v_lshlrev_b32 v10, 13, v10"); a.e(f"v_lshl_add_u32 v{vW}, v8, 4, v10")
    a.e("v_mul_u32_u24 v10, 48, v7"); a.e("v_lshrrev_b32 v11, 3, v0"); a.e("v_add_u32 v10, v10, v11")
    a.e("v_mul_u32_u24 v10, 1280, v10")
    a.e("v_and_b32 v11, 7, v0"); a.e("v_xor_b32 v11, v11, v9")
    a.e(f"v_lshl_add_u32 v{vX0}, v11, 4, v10")
    a.e("v_xor_b32 v11, 4, v11"); a.e("v_add_u32 v10, 10240, v10")
    a.e(f"v_lshl_add_u32 v{vX1}, v11, 4, v10")
    a.e(f"s_mul_i32 s{sKVL}, s{sWv}, 2112")
    a.e(f"s_mov_b32 s{sWL}, s{sKVL}")
    a.e(f"s_mul_i32 s{sXL}, s{sWv}, 6144"); a.e(f"s_add_u32 s{sXL}, s{sXL}, {XB}")
    a.e(f"s_mov_b32 s{sCur}, 0"); a.e(f"s_mov_b32 s{sXo}, 0"); a.e(f"s_mov_b32 s{sWq}, 0")
    a.raw_wait("s_waitcnt lgkmcnt(0)")
    a.e(f"s_cmp_eq_u32 s{sBr}, 0")
    a.e("s_cselect_b64 s[4:5], s[4:5], s[14:15]")
    a.e("s_cselect_b64 s[6:7], s[6:7], s[16:17]")
    a.e("s_cselect_b64 s[8:9], s[8:9], s[18:19]")
    a.e("s_cselect_b64 s[10:11], s[10:11], s[20:21]")
    a.e("s_cselect_b64 s[12:13], s[12:13], s[22:23]")
    a.e(f"s_mul_i32 s{sTmp}, s{sB}, 245760")
    srd(a, sX, 4, f"s{sTmp}", 245760)
    a.e(f"s_lshl_b32 s{sTmp}, s{sU}, 10")
    srd(a, sW, 10, f"s{sTmp}", 639 * 8192 + 1024)
    stamp(a, 0); stamp(a, 1, False)
    for j in range(3): emit_tile(a, x_block(j, 0, None))
    def common_consts():
        if OPT["rot"]:
            a.e(f"s_lshr_b32 s{sCX}, s2, 4"); a.e(f"s_xor_b32 s{sCX}, s{sCX}, s2"); a.e(f"s_and_b32 s{sCX}, s{sCX}, 15"); a.e(f"s_lshl_b32 s{sCX}, s{sCX}, 13")
        else: a.e(f"s_mov_b32 s{sCX}, 0")
        a.e(f"s_add_u32 s{sNX}, s{sCX}, 131072")
        a.e("v_bfe_u32 v10, v0, 2, 3")
        a.e("v_lshrrev_b32 v11, 1, v10"); a.e("v_lshlrev_b32 v11, 6, v11"); a.e(f"v_lshl_add_u32 v{vWAl}, v10, 10, v11")
        a.e("v_and_b32 v11, 1, v10"); a.e(f"v_lshl_add_u32 v{vWAl}, v11, 3, v{vWAl}")
        a.e("v_lshrrev_b32 v11, 5, v0"); a.e(f"v_lshl_add_u32 v{vWAl}, v11, 8, v{vWAl}")
        a.e("v_mul_u32_u24 v10, 1056, v10"); a.e("v_lshl_add_u32 v10, v11, 8, v10")
        a.e("v_and_b32 v11, 3, v0"); a.e(f"v_lshl_add_u32 v{vWAl}, v11, 4, v{vWAl}")
        a.e(f"v_lshl_add_u32 v10, v11, 3, v10"); a.e(f"v_add_u32 v{vVA}, {VB}, v10")
        a.e(f"v_add_u32 v{vWAh}, {VB}, v{vWAl}")
        a.e("v_and_b32 v10, 7, v8"); a.e("v_mul_u32_u24 v10, 1056, v10")
        a.e("v_lshrrev_b32 v11, 3, v8"); a.e(f"v_lshl_add_u32 v10, v11, 8, v10")
        a.e(f"v_lshl_add_u32 v{vKA}, v9, 4, v10")
        a.e("v_lshlrev_b32 v10, 4, v0"); a.e(f"v_lshl_add_u32 v{vKV}, v7, 11, v10")
        a.e(f"v_lshlrev_b32 v10, 7, v8"); a.e(f"v_add_u32 v10, s{sXL}, v10")
        a.e("v_lshrrev_b32 v11, 1, v8"); a.e("v_xor_b32 v11, v11, v9")
        a.e(f"v_lshl_add_u32 v{vXA0}, v11, 4, v10")
        a.e("v_xor_b32 v11, 4, v11"); a.e(f"v_lshl_add_u32 v{vXA1}, v11, 4, v10")
        a.e(f"s_lshl_b32 s{sTmp}, s{sB}, 3"); a.e(f"s_add_u32 s{sTmp}, s{sTmp}, s{sU}"); a.e(f"s_lshl_b32 s{sTmp}, s{sTmp}, 19")
        srd(a, sK, 6, f"s{sTmp}", 4 * 131072)
        srd(a, sV, 8, f"s{sTmp}", 4 * 131072)
        a.e(f"s_mul_i32 s{sTmp}, s{sU}, {512*1280}")
        srd(a, sWo, 12, f"s{sTmp}", 512 * 1280)
        a.e(f"s_mov_b32 s{sWoB}, 0"); a.e(f"s_mov_b32 s{sTask}, 0")
    def touch0(three):
        if OPT["t0x"]:
            a.e("v_min_u32 v10, 59, v0"); a.e("v_lshlrev_b32 v10, 7, v10")
            a.e(f"s_lshl_b32 s{sTmp}, s{sU}, 2"); a.e(f"s_add_u32 s{sTmp}, s{sTmp}, s{sWv}"); a.e(f"s_mul_i32 s{sTmp}, s{sTmp}, 7680")
            a._emit(f"buffer_load_dword v11, v10, {sr(sX,4)}, s{sTmp} offen")
        if OPT["t0w"] and three:
            a.e("v_lshrrev_b32 v14, 2, v0"); a.e("v_lshlrev_b32 v14, 13, v14"); a.e("v_and_b32 v15, 3, v0"); a.e("v_lshl_add_u32 v14, v15, 7, v14")
            a.e(f"s_and_b32 s{sTmp}, s{sB}, 3"); a.e(f"s_lshl_b32 s{sTmp}, s{sTmp}, 2"); a.e(f"s_add_u32 s{sTmp}, s{sTmp}, s{sWv}"); a.e(f"s_lshl_b32 s{sTmp}, s{sTmp}, 17")
            for k in range(3):
                a.e(f"s_add_u32 s{sT2}, s{sTmp}, {k*256*8192}")
                a._emit(f"buffer_load_dword v{16+k}, v14, {sr(sW,4)}, s{sT2} offen")
        if OPT["ctouch"]:
            a.e("s_getpc_b64 s[24:25]")
            a.e(f"s_and_b32 s24, s24, 0xffff0000") if False else None
    def part_srd(slot_expr, size):
        a.e(f"s_mul_i32 s{sTmp}, s{sG}, {PART}"); slot_expr(); a.e(f"s_lshl_b32 s{sT2}, s{sT2}, 10"); a.e(f"s_add_u32 s{sTmp}, s{sTmp}, s{sT2}")
        srd(a, sP, 28, f"s{sTmp}", size)
    NF = OPT["first"]
    a.e(f"s_cmp_lg_u32 s{sTyp}, 0")
    a.e("s_cbranch_scc1 L_p3")
    def wrel(n): return (n >> 2) * 262144 + (3 - (n & 3)) * 256
    def rd_x(buf): return [rd_xb(Xreg(buf, j, s), j, s) for s in range(2) for j in range(3)]
    for n in range(NF): emit_tile(a, w_tile(n, wrel(n)))
    common_consts()
    touch0(False)
    part_srd(lambda: a.e(f"s_lshr_b32 s{sT2}, s{sU}, {1 if T == 2 else 0}"), 0)
    a.e(f"s_mov_b32 s{sLast}, 3"); a.e(f"s_mov_b32 s{sS8}, {8*40960}")
    for r in range(256): a.e(f"v_accvgpr_write_b32 a{r}, 0")
    for r in list(range(124, 156)) + list(range(160, 256)): a.e(f"v_mov_b32 v{r}, 0")
    vmw(a, 2 * (NF - 1))
    a.e("s_barrier")
    for r in rd_x(0): a.e(r)
    for i in range(8):
        for r in rd_w(Wreg(0, i), 0, i): a.e(r)
    for n in range(NF, 15): emit_tile(a, w_tile(n, wrel(n)))
    a.raw_wait("s_waitcnt vmcnt(26) lgkmcnt(0)"); a.lg = []
    a.e("s_barrier")
    stamp(a, 2)
    def qmf(n):
        s, pos = divmod(n % 16, 4)
        return [mf(Qacc(pos, i, j), Wreg(n & 1, i), Xreg((s >> 1) & 1, j, s & 1), Qacc(pos, i, j)) for i in range(8) for j in range(3)]
    def q_group(last):
        for n in range(16):
            a.c(f"Q sub-step {n}{' (last group)' if last else ''}")
            S = Sched(a, qmf(n))
            fin = last and n == 15
            q = n % 8
            xrd = q in (6, 7) and not (last and n >= 8)
            if not fin:
                rds = []
                for i in range(8): rds += rd_w(Wreg((n + 1) & 1, i), n + 1, i)
                for r, p in zip(rds, RDPOS): S.v(p, r)
                m = n + 15
                if not last or m < 16: place_tile(a, S, w_tile(m, wrel(m)), (6, 11))
                elif m - 16 <= 12: place_tile(a, S, kv_tile(m, (m - 16) >> 1), (6, 11))
                if not (last and n == 14): end_sync(a, S, 26, 5 if xrd else 2)
            if xrd:
                rx = rd_x(((n >> 3) + 1) & 1)[3*(q-6):3*(q-6)+3]
                if q == 6: S.h(16, lambda: vmw(a, 8))
                for r, p in zip(rx, (19, 20, 21)): S.v(p, (r, "xr"))
            if q in (0, 1, 2) and not (last and n >= 8):
                if q == 0: S.h(12, lambda: a.wait(lg="xr"))
                place_tile(a, S, x_block(q, 128 * ((n >> 3) + 1), sXo), (16, 19))
            if n == 15 and not last:
                S.h(13, f"s_add_u32 s{sWq}, s{sWq}, {4*262144}")
                S.h(14, f"s_add_u32 s{sXo}, s{sXo}, 256")
                S.h(15, f"s_cmp_lt_u32 s{sXo}, 1024")
            S.emit(None if fin else qmf(n + 1)[0])
    a.e(".p2align 6")
    a.e("L_q:")
    mark = len(a.ins); nops0 = a.nops
    q_group(False)
    lg_end = list(a.lg)
    del a.ins[mark:]; a.nops = nops0
    q_group(False)
    assert a.lg == lg_end
    a.e("s_cbranch_scc1 L_q")
    q_group(True)
    stamp(a, 3)
    a.c("Q conversion")
    convert(a, Qacc, [QBANK[3], QBANK[2], QBANK[1], None], [60 + 12 * k for k in range(5)])
    late_consts(a)
    a.e("s_branch L_enter")
    a.e("L_p3:")
    a.lg = []
    for n in range(NF): emit_tile(a, w_tile(n + 8, w2rel(n)))
    common_consts()
    touch0(True)
    def slot3():
        if T == 2: a.e(f"s_and_b32 s{sT2}, s{sU}, 6"); a.e(f"s_add_u32 s{sT2}, s{sT2}, 4")
        else: a.e(f"s_lshl_b32 s{sT2}, s{sU}, 1")
    part_srd(slot3, 239 * CH + 2048)
    a.e(f"s_mov_b32 s{sLast}, 1"); a.e(f"s_mov_b32 s{sS8}, 256"); a.e(f"s_mov_b32 s{sPo}, 0")
    late_consts(a)
    vmw(a, 2 * (NF - 1))
    a.e("s_barrier")
    for j in range(3):
        for s in range(2): a.e(rd_xb(X2reg(0, j, s), j, s), tag="xr")
    for i in range(8):
        for r in rd_w(Greg(0, i), 8, i): a.e(r)
    a.wait(lg="xr")
    for j in range(3): emit_tile(a, x_block(j, 128, None))
    for n in range(NF, 15): emit_tile(a, w_tile(n + 8, w2rel(n)))
    a.raw_wait(f"s_waitcnt vmcnt({2*(15-NF)}) lgkmcnt(0)"); a.lg = []
    a.e("s_barrier")
    stamp(a, 2)
    a.e(".p2align 6")
    a.e("L_q2:")
    for n in range(40):
        a.c(f"Q2 sub-step {n}")
        S = Sched(a, q2mf(n))
        xb = n + 3
        xact = xb < 30
        if n < 39:
            rds = []
            for i in range(8): rds += rd_w(Greg((n + 1) & 1, i), n + 9, i)
            for r, p in zip(rds, RDPOS_X if xact else RDPOS): S.v(p, r)
            m = n + 15
            gp = (4, 7) if xact else (6, 11)
            if m < 40: place_tile(a, S, w_tile(m + 8, w2rel(m)), gp)
            elif m - 40 <= 12: place_tile(a, S, kv_tile(m - 40, (m - 40) >> 1), gp)
        if xact:
            c, j = divmod(xb, 3)
            for s in range(2): S.v(s, (rd_xb(X2reg(c, j, s), j, s), "xr"))
            if xb + 3 < 30:
                S.h(7, lambda: a.wait(lg="xr"))
                place_tile(a, S, x_block(j, 128 * (c + 1), None), (10, 13))
        if n < 38:
            if n + 4 < 30 and n >= 2:
                vm = sum(2 + (2 if k + 6 < 30 else 0) for k in (n - 1, n))
            else: vm = 26
            end_sync(a, S, vm, 5 if xact else 2)
        S.emit(q2mf(n + 1)[0] if n < 39 else None)
    stamp(a, 3)
    a.c("Q2 conversion")
    if OPT["touch"]:
        a.e("v_min_u32 v8, 39, v0"); a.e("v_lshrrev_b32 v9, 2, v8"); a.e("v_lshlrev_b32 v9, 13, v9")
        a.e("v_and_b32 v8, 3, v8"); a.e("v_lshl_add_u32 v9, v8, 7, v9")
        a.e(f"s_lshl_b32 s{sTmp}, s{sB}, 2"); a.e(f"s_add_u32 s{sTmp}, s{sTmp}, s{sWv}"); a.e(f"s_mul_i32 s{sTmp}, s{sTmp}, {10*8192}")
        a.e(f"s_add_u32 s{sTmp}, s{sTmp}, 512")
        a._emit(f"buffer_load_dword v{vD}, v9, {sr(sW,4)}, s{sTmp} offen")
    convert(a, Q2acc, [QBANK[1], None], [12, 24, 36])
    a.e("L_enter:")
    a.e(f"v_mov_b32 v{vT}, 0x3f803f80")
    for r in range(4): a.e(f"v_accvgpr_write_b32 a{ONES[1]+r}, v{vT}")
    a.e(f"s_mov_b32 s{sR}, 0")
    def rd_k(dst, t, u): return [f"ds_read_b128 {vr(dst + 4*ks,4)}, v{vKA} offset:{(t % 8)*TILE + u*512 + ks*64}" for ks in range(4)]
    def rd_v(t, half, fr=VF):
        return [f"ds_read_b64_tr_b16 {vr(fr + 4*i + 2*e, 2)}, v{vVA} offset:{(t % 8)*TILE + e*512 + (4*half+i)*32}" for i in range(4) for e in range(2)]
    vmw(a, 24)
    a.e("s_barrier")
    a.lg = []
    for r in rd_k(VF, 0, 1) + rd_k(KF, 0, 0): a.e(r)
    stamp(a, 4)
    def ex(u, k): j, r = divmod(k, 4); s = Sr(u, j) + r; return f"v_exp_f32 v{s}, v{s}"
    def cv(u, buf, c): j, h = divmod(c, 2); s = Sr(u, j) + 2*h; return f"v_cvt_pk_bf16_f32 v{Pr(buf,j) + 2*u + h}, v{s}, v{s+1}"
    def qk(u): return [mf(Sr(u, j), KF + 4*ks, Qf(j, ks), Nm(j) if ks == 0 else Sr(u, j)) for j in range(3) for ks in range(4)]
    def pv(t, half, fr=VF): return [mf(Or(4*half + i, j), fr + 4*i, Pr(t & 1, j), None if t == 0 else Or(4*half + i, j)) for i in range(4) for j in range(3)]
    def sm(t): return [mf(La(j), ONES, Pr(t & 1, j), None if t == 0 else La(j)) for j in range(3)]
    oob = []
    def wo_first(n):
        return wo_tile(n, (n % 8) * 40960, sWoB if n < 8 else sGc)
    def stream_tile(S, m, gaps):
        kv = kv_tile(m, m >> 1)
        if m < 32:
            place_tile(a, S, kv, gaps); return
        for (pre, d), (pre2, d2), g in zip(kv, wo_first(m - 32), gaps):
            for k, x in enumerate(pre): S.h(g - len(pre) + k, x)
            l0, l1 = newlabel("wo"), newlabel("back")
            def site(d=d, l0=l0, l1=l1):
                a.e(f"s_cbranch_vccnz {l0}"); a._emit(d); a.e(f"{l1}:")
            S.v(g, site)
            oob.append((l0, l1, pre2, d2))
    def tail_vec(S, u, buf, rds):
        pos = [0, 1, 4, 5, 8, 9, 10, 11]
        for r, p in zip(rds, pos): S.v(p, r)
        for k, p in zip(range(8, 12), (2, 3, 6, 7)): S.v(p, ex(u, k))
        for c, p in zip(range(6), (0, 1, 4, 5, 8, 9)): S.v(p, cv(u, buf, c))
    a.e(".p2align 6")
    a.e("L_head:")
    a.c("tile 0: scores and stand-in row max (max over the first 32 keys)")
    a.e(f"s_add_u32 s{sGc}, s{sWoB}, s{sS8}")
    a.e(f"s_cmp_eq_u32 s{sR}, s{sLast}")
    for u, kf in ((1, VF), (0, KF)):
        for j in range(3):
            for ks in range(4):
                a.e(mf(Sr(u, j), kf + 4*ks, Qf(j, ks), None if ks == 0 else Sr(u, j)))
    a.e("s_cselect_b64 vcc, -1, 0")
    vmw(a, 20)
    a.e("s_barrier")
    for r in rd_k(KF, 1, 0): a.e(r)
    emit_tile(a, kv_tile(13, 6)); emit_tile(a, kv_tile(14, 7))
    if OPT["touch"]:
        a.e(f"s_lshr_b32 s{sT2}, s{sCur}, 17"); a.e(f"s_mul_i32 s{sT2}, s{sT2}, 163840")
        a._emit(f"buffer_load_dword v{vD}, v{vTo}, {sr(sWo,4)}, s{sT2} offen")
    for j in range(3):
        n = Nm(j); s0 = Sr(0, j); s1 = Sr(1, j)
        a.e(f"v_max3_f32 v{n}, v{s1}, v{s1+1}, v{s1+2}")
        a.e(f"v_max3_f32 v{n+1}, v{s1+3}, v{s0}, v{s0+1}")
        a.e(f"v_max3_f32 v{n}, v{n}, v{s0+2}, v{s0+3}")
        a.e(f"v_max_f32 v{n}, v{n}, v{n+1}")
    rowred(a, "v_max_f32", [Nm(j) for j in range(3)], [Nm(j) + 1 for j in range(3)])
    for j in range(3):
        n = Nm(j)
        a.e(f"v_sub_f32 v{n}, 0, v{n}")
        for r in range(1, 4): a.e(f"v_mov_b32 v{n+r}, v{n}")
    for u in range(2):
        for j in range(3):
            for r in range(4): a.e(f"v_add_f32 v{Sr(u,j)+r}, v{Sr(u,j)+r}, v{Nm(j)}")
    for k in range(12): a.e(ex(0, k))
    for k in range(8): a.e(ex(1, k))
    for c in range(6): a.e(cv(0, 0, c))
    for t in range(15):
        a.c(f"stage {t}")
        S = Sched(a, qk(0)); tail_vec(S, 1, t & 1, rd_v(t, 0)); S.emit(pv(t, 0)[0])
        S = Sched(a, pv(t, 0))
        for r, p in zip(rd_k(KF, t+1, 1), (0, 1, 2, 3)): S.v(p, r)
        for k, p in zip(range(8), range(4, 12)): S.v(p, ex(0, k))
        S.h(10, lambda: a.wait(lg="all"))
        S.emit(qk(1)[0])
        S = Sched(a, qk(1)); tail_vec(S, 0, (t+1) & 1, rd_v(t, 1))
        S.h(11, lambda: vmw(a, 20))
        S.emit(None)
        S = Sched(a, sm(t) + pv(t, 1))
        S.h(0, "s_barrier")
        if t + 2 < 16:
            for r, p in zip(rd_k(KF, t+2, 0), (0, 1, 2, 3)): S.v(p, r)
        for k, p in zip(range(8), (3, 4, 6, 7, 9, 10, 12, 13)): S.v(p, ex(1, k))
        stream_tile(S, 2*(t+7) + 1, (5, 8))
        stream_tile(S, 2*(t+8), (11, 14))
        S.h(12, lambda: a.wait(lg="all"))
        S.emit(qk(0)[0] if t < 14 else None)
    a.c("stage 15")
    for r in rd_v(15, 0): a.e(r)
    for k in range(8, 12): a.e(ex(1, k))
    for c in range(6): a.e(cv(1, 1, c))
    S = Sched(a, sm(15) + pv(15, 0))
    for r, p in zip(rd_v(15, 1, KF), range(8)): S.v(p, r)
    S.emit(pv(15, 1, KF)[0])
    S = Sched(a, pv(15, 1, KF))
    for j in range(3): S.v(j, f"v_accvgpr_read_b32 v{vT+j}, a{La(j)[1]}")
    S.v(3, f"v_add_f32 v{vT+3}, v{vT}, v{vT+1}"); S.v(4, f"v_add_f32 v{vT+3}, v{vT+3}, v{vT+2}")
    S.v(5, f"v_mov_b32 v{vT+4}, {f32(2.0**30 if not OPT['forceslow'] else 150.0)}")
    S.v(6, f"v_cmp_nle_f32 vcc, v{vT+3}, v{vT+4}")
    S.emit(None)
    assert not a.lg
    if not OPT["nocheck"]: a.e("s_cbranch_vccnz L_slow")
    a.e("L_epi:")
    for r in rd_k(VF, 0, 1) + rd_k(KF, 0, 0): a.e(r)
    for j in range(3): a.e(f"v_rcp_f32 v{vT+j}, v{vT+j}")
    for p in range(4):
        for j in range(3):
            d = Qf(j, p)
            for u in range(2):
                o = Or(2*p + u, j)
                for r in range(4): a.e(f"v_mul_f32 v{o+r}, v{o+r}, v{vT+j}")
                a.e(f"v_cvt_pk_bf16_f32 v{d+2*u}, v{o}, v{o+1}")
                a.e(f"v_cvt_pk_bf16_f32 v{d+2*u+1}, v{o+2}, v{o+3}")
    if OPT["stamp"]:
        a.e(f"s_lshr_b32 s{sT2}, s{sCur}, 17"); stamp_dyn(a, 5, sT2, 4)
    a.e(f"s_add_u32 s{sCur}, s{sCur}, 131072")
    a.e(f"s_mov_b32 s{sCX}, s{sNX}"); a.e(f"s_add_u32 s{sNX}, s{sNX}, 131072")
    a.e(f"s_add_u32 s{sR}, s{sR}, 1")
    a.e(f"s_cmp_gt_u32 s{sR}, s{sLast}"); a.e("s_cbranch_scc1 L_g")
    a.e(f"s_cmp_eq_u32 s{sR}, 3"); a.e("s_cbranch_scc1 L_sw2")
    a.e(f"s_cmp_eq_u32 s{sR}, 2"); a.e("s_cbranch_scc1 L_sw1")
    for r in range(3):
        a.e(f"L_sw{r}:")
        for p in range(4):
            for j in range(3):
                for x in range(4): a.e(f"v_accvgpr_write_b32 a{OBANK[r] + 12*p + 4*j + x}, v{Qf(j,p)+x}")
        for p in range(4):
            for j in range(3):
                for x in range(4): a.e(f"v_accvgpr_read_b32 v{Qf(j,p)+x}, a{QBANK[r+1] + 12*p + 4*j + x}")
        a.e("s_nop 0")
        a.e("s_branch L_head")
    for l0, l1, pre2, d2 in oob:
        a.e(f"{l0}:")
        for x in pre2: a.e(x)
        a._emit(d2)
        a.e(f"s_branch {l1}")
    a.e(".p2align 6")
    a.e("L_g:")
    a.lg = []
    a.raw_wait("s_waitcnt vmcnt(22) lgkmcnt(0)")
    a.e("s_barrier")
    for i in range(8):
        for r in rd_w(Greg(0, i), 0, i): a.e(r)
    emit_tile(a, wo_first(13)); emit_tile(a, wo_first(14))
    lg_g = list(a.lg)
    a.e(f"s_cmp_lg_u32 s{sTyp}, 0")
    a.e("s_cbranch_scc1 L_g2")
    a.e(f"s_mov_b32 s{sGc}, 0")
    a.e(f"s_mov_b32 s{sPo}, 0")
    a.wait(lg="all")
    def gmf(n, nh):
        ks = n % (4 * nh); r, p = divmod(ks, 4)
        def B(j): return Qf(j, p) if r == nh - 1 else ("a", OBANK[r] + 12 * p + 4 * j)
        return [mf(Or(i, j), Greg(n & 1, i), B(j), None if ks == 0 else Or(i, j)) for i in range(8) for j in range(3)]
    def g4_body():
        for n in range(16):
            a.c(f"G sub-step {n}")
            S = Sched(a, gmf(n, 4))
            rds = []
            for i in range(8): rds += rd_w(Greg((n + 1) & 1, i), n + 1, i)
            for r, p in zip(rds, RDPOS): S.v(p, r)
            m = n + 15
            place_tile(a, S, wo_tile(m, (m % 16) * 40960 + (m // 16) * 256, sGc), (6, 11))
            if n == 0:
                for g_, c in PLAN_FIRST: S.v(g_, CVS[c])
                S.h(14, f"s_cmp_eq_u32 s{sGc}, 1024")
                S.h(15, f"s_cselect_b32 s{sWo+2}, 0, s{sWo+2}")
            if 1 <= n <= 12: place_tile(a, S, [gst(n - 1, 0, sPo)], (20,))
            if n == 15:
                for g_, c in PLAN_LAST: S.v(g_, CVS[c])
                S.h(13, f"s_mov_b32 s{sP+2}, {239*CH + 1024}")
                S.h(14, f"s_mul_i32 s{sPo}, s{sGc}, {48*CH//256}")
                S.h(15, f"s_add_u32 s{sGc}, s{sGc}, 256")
                S.h(16, f"s_cmp_lt_u32 s{sGc}, 1280")
            nst = len([k for k in range(max(1, n - 13), min(n, 12) + 1)]) if OPT["track"] else 0
            end_sync(a, S, 26 + nst)
            S.emit(gmf(n + 1, 4)[0])
    a.e("L_gloop:")
    mark = len(a.ins); nops0 = a.nops
    g4_body(); lg_end = list(a.lg)
    del a.ins[mark:]; a.nops = nops0
    g4_body(); assert a.lg == lg_end
    a.e("s_cbranch_scc1 L_gloop")
    for c in range(NLAST, 48): a.e(CVS[c])
    for q in range(12): emit_tile(a, [gst(q, 0, sPo)])
    a.e("L_fin:")
    stamp(a, 9, False); stamp(a, 10)
    stamp_store(a, "L_end", 0)
    a.e("L_end:")
    a.e("s_endpgm")
    a.e(".p2align 6")
    a.e("L_g2:")
    a.lg = lg_g
    for n in range(40):
        a.c(f"G2 sub-step {n}")
        ps, ks = divmod(n, 8)
        S = Sched(a, gmf(n, 2))
        rds = []
        for i in range(8): rds += rd_w(Greg((n + 1) & 1, i), n + 1, i)
        for r, p in zip(rds, RDPOS): S.v(p, r)
        m = n + 15
        if m < 40: place_tile(a, S, wo_tile(m, (m % 8) * 40960 + (m // 8) * 256, sWoB), (6, 11))
        else: place_tile(a, S, w_tile(m, w2rel(m - 40)), (6, 11))
        if n == 20:
            S.h(13, f"s_add_u32 s{sWq}, s{sWq}, 512")
            S.h(14, f"s_cmp_lg_u32 s{sTask}, 0")
            S.h(15, f"s_cselect_b32 s{sW+2}, 0, s{sW+2}")
            S.h(17, f"s_cselect_b32 s{sX+2}, 0, s{sX+2}")
        if ks == 0 and ps > 0:
            for g_, c in PLAN_FIRST: S.v(g_, CVS[c])
        if 1 <= ks <= 6 and ps > 0:
            place_tile(a, S, [gst(2*(ks-1), (ps-1)*48*CH, sPo), gst(2*(ks-1)+1, (ps-1)*48*CH, sPo)], (19, 21))
        if ks == 7:
            for g_, c in PLAN_LAST: S.v(g_, CVS[c])
        vm = 26
        if OPT["track"]: vm += sum(2 for k in range(max(0, n - 13), n + 1) if 1 <= k % 8 <= 6 and k >= 8)
        if 25 <= n <= 30:
            j, hf = divmod(n - 25, 2); pre, d = x_block(j, 0, None)[hf]
            place_tile(a, S, [([f"s_mov_b32 s{sOff2}, {j*20480}", pre[-1]], d)], (16,))
        if n == 32: vm = 4
        if 33 <= n <= 35:
            j = n - 33
            S.v(16, (rd_xb(X2reg(0, j, 0), j, 0), "xr")); S.v(20, (rd_xb(X2reg(0, j, 1), j, 1), "xr"))
        end_sync(a, S, vm, 4 if 33 <= n <= 35 else 2)
        if 36 <= n <= 38:
            j = n - 36; xb = x_block(j, 128, None)
            place_tile(a, S, [xb[0]], (16,))
            S.h(21, f"s_mov_b32 s{sT3}, {128 + j*20480}"); S.h(21, xb[1][0][-1])
            S.v(22, lambda d=xb[1][1].replace(f"s{sOff2} ", f"s{sT3} "): a._emit(d))
        S.emit(gmf(n + 1, 2)[0] if n < 39 else None)
    for c in range(NLAST, 48): a.e(CVS[c])
    for q in range(12): emit_tile(a, [gst(q, 4*48*CH, sPo)])
    a.e(f"s_cmp_lg_u32 s{sTask}, 0")
    a.e("s_cbranch_scc1 L_fin")
    a.e(f"s_mov_b32 s{sTask}, 1")
    a.e(f"s_mov_b32 s{sPo}, 1024")
    a.e(f"s_mov_b32 s{sWoB}, {256*1280}")
    a.raw_wait("s_waitcnt vmcnt(14) lgkmcnt(0)")
    a.e("s_branch L_q2")
    a.reset_counters()
    a.e("L_slow:")
    a.raw_wait("s_waitcnt vmcnt(0) lgkmcnt(0)")
    vKo, vVo, t0, t1 = 10, 11, P_ + 12, P_ + 13
    a.e("s_nop 7")
    a.e(f"v_and_b32 v{t0}, 7, v0"); a.e(f"v_lshlrev_b32 v{t0}, 10, v{t0}")
    a.e(f"v_bfe_u32 v{t1}, v0, 3, 1"); a.e(f"v_lshl_add_u32 v{t0}, v{t1}, 8, v{t0}")
    a.e(f"v_lshrrev_b32 v{t1}, 4, v0"); a.e(f"v_lshl_add_u32 v{vKo}, v{t1}, 4, v{t0}")
    a.e(f"v_bfe_u32 v{t0}, v0, 4, 1"); a.e(f"v_lshlrev_b32 v{t0}, 12, v{t0}")
    a.e(f"v_lshrrev_b32 v{t1}, 5, v0"); a.e(f"v_lshl_add_u32 v{t0}, v{t1}, 8, v{t0}")
    a.e(f"v_and_b32 v{t1}, 15, v0"); a.e(f"v_lshl_add_u32 v{vVo}, v{t1}, 1, v{t0}")
    for j in range(3): a.e(f"v_mov_b32 v{vT+j}, 0xff800000")
    def slow_qk(cinit):
        for u, kf in ((0, KF), (1, VF)):
            for ks in range(4): a.e(f"buffer_load_dwordx4 {vr(kf + 4*ks,4)}, v{vKo}, {sr(sK,4)}, s{sT2} offen offset:{u*512 + ks*64}")
        for u, kf in ((0, KF), (1, VF)):
            for j in range(3):
                for ks in range(4):
                    a.e(mf(Sr(u, j), kf + 4*ks, Qf(j, ks), (Nm(j) if cinit else None) if ks == 0 else Sr(u, j)))
    a.e(f"s_mov_b32 s{sT2}, s{sCur}")
    a.e(f"s_add_u32 s{sT3}, s{sCur}, 131072")
    a.e("L_slow_p1:")
    slow_qk(False)
    for j in range(3):
        for u in range(2):
            s = Sr(u, j)
            a.e(f"v_max3_f32 v{vT+j}, v{vT+j}, v{s}, v{s+1}")
            a.e(f"v_max3_f32 v{vT+j}, v{vT+j}, v{s+2}, v{s+3}")
    a.e(f"s_add_u32 s{sT2}, s{sT2}, 8192")
    a.e(f"s_cmp_lt_u32 s{sT2}, s{sT3}")
    a.e("s_cbranch_scc1 L_slow_p1")
    rowred(a, "v_max_f32", [vT, vT+1, vT+2], [Nm(j) for j in range(3)])
    for j in range(3):
        for r in range(4): a.e(f"v_sub_f32 v{Nm(j)+r}, 0, v{vT+j}")
    for r in range(96): a.e(f"v_mov_b32 v{O_+r}, 0")
    for r in range(12): a.e(f"v_accvgpr_write_b32 a{192+r}, 0")
    a.e(f"s_mov_b32 s{sT2}, s{sCur}")
    a.e("L_slow_p2:")
    slow_qk(True)
    for u in range(2):
        for k in range(12): a.e(ex(u, k))
    for u in range(2):
        for c in range(6): a.e(cv(u, 0, c))
    for half, fr in ((0, KF), (1, VF)):
        for hi in range(2):
            for i in range(4):
                for e in range(2):
                    for rp in range(2):
                        r = 2*rp + hi
                        a.e(f"buffer_load_ushort v{(S_ if hi else fr) + 4*i + 2*e + rp}, v{vVo}, {sr(sV,4)}, s{sT2} offen offset:{r*1024 + e*512 + (4*half+i)*32}")
        a.wait(vm="all")
        for x in range(16): a.e(f"v_lshl_or_b32 v{fr+x}, v{S_+x}, 16, v{fr+x}")
    for m in sm(2): a.e(m)
    for half, fr in ((0, KF), (1, VF)):
        for m in pv(2, half, fr): a.e(m)
    a.e(f"s_add_u32 s{sT2}, s{sT2}, 8192")
    a.e(f"s_cmp_lt_u32 s{sT2}, s{sT3}")
    a.e("s_nop 7")
    a.e("s_cbranch_scc1 L_slow_p2")
    for j in range(3): a.e(f"v_accvgpr_read_b32 v{vT+j}, a{La(j)[1]}")
    a.e("s_branch L_epi")
    return a

def reduce_kernel():
    a = Asm()
    a.e("s_cmp_ge_u32 s2, 1920")
    a.e("s_cbranch_scc1 L_r_end")
    a.e("s_load_dwordx2 s[4:5], s[0:1], 80")
    a.e("s_load_dwordx2 s[28:29], s[0:1], 96")
    a.e("v_lshrrev_b32 v1, 6, v0")
    a.e("v_and_b32 v0, 63, v0")
    a.e("v_readfirstlane_b32 s60, v1")
    a.e("s_lshl_b32 s3, s2, 2")
    a.e("v_lshlrev_b32 v2, 4, v0")
    a.e("s_add_u32 s3, s3, s60")
    a.e(f"s_mul_i32 s6, s3, {CH}")
    a.e("s_mul_hi_u32 s7, s3, 17895698")
    a.e("s_mul_i32 s8, s7, 240"); a.e("s_sub_u32 s8, s3, s8")
    a.e("s_mul_i32 s9, s8, 43691"); a.e("s_lshr_b32 s9, s9, 19")
    a.e("s_mul_i32 s10, s9, 12"); a.e("s_sub_u32 s10, s8, s10")
    for k in range(1, NSLOT // 4): a.e(f"v_add_u32 v{2+k}, {4096*k}, v2")
    a.raw_wait("s_waitcnt lgkmcnt(0)")
    if OPT["stamp"]: stamp(a, 0); stamp(a, 1, False)
    srd(a, 12, 28, "s6", CH)
    for u in range(NSLOT):
        a.e(f"buffer_load_dwordx4 {vr(20+4*u,4)}, v{2 + (u>>2)}, s[12:15], 0 offen offset:{(u&3)*1024}")
    a.e("s_and_b32 s16, s7, 15"); a.e("s_mul_i32 s16, s16, 491520")
    a.e("s_mul_i32 s17, s10, 40960"); a.e("s_add_u32 s16, s16, s17")
    a.e("s_lshr_b32 s17, s7, 4"); a.e("s_mul_i32 s17, s17, 1280"); a.e("s_add_u32 s16, s16, s17")
    a.e("s_lshl_b32 s17, s9, 6"); a.e("s_add_u32 s16, s16, s17")
    srd(a, 20, 4, "s16", 15 * 2560 + 64)
    a.e("v_and_b32 v1, 15, v0"); a.e("v_mul_u32_u24 v1, 2560, v1")
    a.e("v_lshrrev_b32 v6, 4, v0"); a.e("v_lshl_add_u32 v1, v6, 4, v1")
    for u in range(NSLOT):
        for r in range(4):
            s = 20 + 4*u + r
            if u == 0:
                a.e(f"v_lshlrev_b32 v{8+2*r}, 16, v{s}"); a.e(f"v_and_b32 v{9+2*r}, 0xffff0000, v{s}")
            else:
                a.e(f"v_lshlrev_b32 v6, 16, v{s}"); a.e(f"v_and_b32 v7, 0xffff0000, v{s}")
                a.e(f"v_add_f32 v{8+2*r}, v{8+2*r}, v6"); a.e(f"v_add_f32 v{9+2*r}, v{9+2*r}, v7")
    for r in range(4): a.e(f"v_cvt_pk_bf16_f32 v{16+r}, v{8+2*r}, v{9+2*r}")
    a.e("buffer_store_dwordx4 v[16:19], v1, s[20:23], 0 offen")
    if OPT["stamp"]:
        stamp(a, 9, False); stamp(a, 10); stamp_store(a, "L_r_end", 256)
    a.e("L_r_end:")
    a.e("s_endpgm")
    return a

HDR = f"""; Fused attention blocks A and B. main_kernel: one workgroup per 4 heads of a batch (Q projection, attention,
; @launch kernel=main_kernel grid=(256,1,1) block=(256,1,1) lds={LDS}
; @launch kernel=reduce_kernel grid=(1920,1,1) block=(256,1,1) lds=0
.amdgcn_target "amdgcn-amd-amdhsa--gfx950"
.text
"""
def kern(name, a):
    return f".globl {name}\n.p2align 8\n.type {name},@function\n{name}:\n" + a.text()
def desc(name, nv, acc, ns):
    return f""".p2align 6
.amdhsa_kernel {name}
  .amdhsa_next_free_vgpr {nv}
  .amdhsa_next_free_sgpr {ns}
  .amdhsa_accum_offset {acc}
  .amdhsa_group_segment_fixed_size 0
  .amdhsa_kernarg_size 104
  .amdhsa_user_sgpr_count 2
  .amdhsa_user_sgpr_kernarg_segment_ptr 1
  .amdhsa_system_sgpr_workgroup_id_x 1
  .amdhsa_float_denorm_mode_32 3
.end_amdhsa_kernel
"""
if __name__ == "__main__":
    a = main_kernel(); r = reduce_kernel()
    if OPT["nodma"] & 1: a.ins = [i for i in a.ins if not (i.kind == "dma" and " v1, " in i.text)]
    if OPT["nodma"] & 2: a.ins = [i for i in a.ins if not (i.kind == "dma" and " v1, " not in i.text)]
    if OPT["nodma"] & 4: a.ins = [i for i in a.ins if not (i.kind == "store" and "sc1" in i.text)]
    if OPT["strip"] == 2:
        i0 = [k for k, i in enumerate(a.ins) if i.text == "L_head:"][0]; i1 = [k for k, i in enumerate(a.ins) if i.text == "L_epi:"][0]
        a.ins = a.ins[:i0] + [Ins("s_nop 4") if i.kind == "mfma" else i for i in a.ins[i0:i1] if i.kind not in ("lds", "trans", "valu")] + a.ins[i1:]
    if OPT["strip"] == 1:
        i0 = [k for k, i in enumerate(a.ins) if i.text == "L_head:"][0]; i1 = [k for k, i in enumerate(a.ins) if i.text == "L_epi:"][0]
        a.ins = a.ins[:i0] + [i for i in a.ins[i0:i1] if i.kind not in ("mfma", "lds", "trans", "valu")] + a.ins[i1:]
    ns = 102 if OPT["stamp"] else NSGPR
    open(sys.argv[1], "w").write(HDR + kern("main_kernel", a) + kern("reduce_kernel", r) + '.section .rodata,"a"\n' + desc("main_kernel", 512, 256, ns) + desc("reduce_kernel", 20 + 4*NSLOT, 20 + 4*NSLOT, ns))
    print("instrs", len(a.ins), "nops", a.nops)
```

```python
import sys, math, struct
from asmlib import *

NAME = "concat_heads__mha_block_cached__gqa_block_cached__near_ridge"
def f32(x): return "0x%08x" % struct.unpack("<I", struct.pack("<f", x))[0]
OPT = dict(stamp=0, nodma=0, nocheck=0, touch=1, forceslow=0, map84=0, first=6, rot=1, strip=0, cyc=0, typ=2, track=0, wnt=0, xnt=0, t0x=0, t0w=0, ctouch=0, dbgout=0)
for a_ in sys.argv[2:]:
    k_, v_ = a_.split("="); assert k_ in OPT, k_; OPT[k_] = int(v_)

def R(x, n):
    t, i = x if isinstance(x, tuple) else ("v", x)
    return f"{t}{i}" if n == 1 else f"{t}[{i}:{i+n-1}]"
def off(x, d): return (x[0], x[1] + d) if isinstance(x, tuple) else x + d
def mf(d, a, b, c):
    return f"v_mfma_f32_16x16x32_bf16 {R(d,4)}, {R(a,4)}, {R(b,4)}, {'0' if c is None else R(c,4)}"

TILE = 8448
VB = 8 * TILE
XB = 16 * TILE
LDS = XB + 24576
NSLOT = {0: 8, 1: 16, 2: 12}[OPT["typ"]]
CH = NSLOT * 1024
PART = 240 * CH
STAMP_AT = 128 << 20
def slot(m):
    m %= 16
    return (m & 1), (m >> 1) * TILE

vKV, vKA, vVA, vWAl, vWAh, vW = 1, 2, 3, 4, 5, 6
vT = 7
QF, NM, S_, P_, KF, VF, O_ = 12, 60, 72, 96, 120, 136, 160
vX0, vX1, vXA0, vXA1 = 156, 157, 158, 159
vTo, vD, vPt, vWo = 152, 153, 154, 155
def Qf(j, ks): return QF + 16 * j + 4 * ks
def Nm(j): return NM + 4 * j
def Sr(u, j): return S_ + 12 * u + 4 * j
def Pr(buf, j): return P_ + 12 * buf + 4 * j
def Or(i, j): return O_ + 12 * i + 4 * j
def Wreg(buf, i): return 12 + 32 * buf + 4 * i
def Xreg(buf, j, s): return 76 + 24 * buf + 8 * j + 4 * s
def Qacc(pos, i, j):
    k = 12 * i + 4 * j
    if pos == 0: return ("a", k)
    if pos == 1: return ("a", 96 + k)
    if pos == 2: return ("a", 192 + k) if k < 64 else 124 + (k - 64)
    return O_ + k
QBANK = {3: 0, 2: 48, 1: 96}
OBANK = {0: 144, 1: 96, 2: 48}
def La(j): return ("a", 192 + 4 * j)
ONES = ("a", 204)
def Greg(buf, i): return ("a", 192 + 32 * buf + 4 * i)
sX, sW, sK, sV, sWo, sP = 32, 36, 40, 44, 48, 52
sWv, sKVL, sWL, sXL, sOff, sOff2, sTmp, sR, sCur, sT2, sT3 = 60, 61, 62, 63, 64, 65, 66, 67, 68, 69, 70
sB, sU, sBr, sG, sXo, sPo = 71, 72, 73, 74, 75, 76
sCX, sNX, sLast, sS8, sWoB, sTask, sTyp = 56, 57, 58, 59, 77, 30, 31
sWq, sGc = 26, 27
NSGPR = 80

def stamp(a, k, real=True):
    if not OPT["stamp"]: return
    lg = list(a.lg)
    a.raw_wait("s_waitcnt lgkmcnt(0)")
    if OPT["cyc"] and 2 <= k <= 8: real = False
    a._emit(f"{'s_memrealtime' if real else 's_memtime'} s[{80+2*k}:{81+2*k}]")
    a.raw_wait("s_waitcnt lgkmcnt(0)")
def stamp_dyn(a, base, sidx, n):
    if not OPT["stamp"]: return
    a.raw_wait("s_waitcnt lgkmcnt(0)")
    a._emit("s_memtime s[78:79]" if OPT["cyc"] else "s_memrealtime s[78:79]")
    a.raw_wait("s_waitcnt lgkmcnt(0)")
    for q in range(n):
        a.e(f"s_cmp_eq_u32 s{sidx}, {q}")
        a.e(f"s_cselect_b32 s{80+2*(base+q)}, s78, s{80+2*(base+q)}")
def stamp_store(a, label, base):
    if not OPT["stamp"]: return
    a.e(f"s_cmp_lg_u32 s{sWv}, 0")
    a.e(f"s_cbranch_scc1 {label}")
    for k in range(11): a.e(f"v_mov_b32 v{16+k}, s{80+2*k}")
    a.e("s_lshl_b32 s78, s2, 6"); a.e(f"s_add_u32 s78, s78, {STAMP_AT + base*64}")
    a.e("v_mov_b32 v28, s78")
    a.e("s_mov_b64 exec, 1")
    a.e("global_store_dwordx4 v28, v[16:19], s[28:29]")
    a.e("global_store_dwordx4 v28, v[20:23], s[28:29] offset:16")
    a.e("global_store_dwordx4 v28, v[24:27], s[28:29] offset:32")

def dbg_store(a):
    if not OPT["dbgout"]: return
    l = "L_dbgskip"
    a.e("s_and_b32 s78, s2, 0xdf"); a.e("s_cmp_lg_u32 s78, 5"); a.e(f"s_cbranch_scc1 {l}")
    a.e("s_load_dwordx2 s[24:25], s[0:1], 88")
    for n, k in enumerate((2,3,4,5,6,7,8,10)):
        a.e(f"s_sub_u32 s79, s{80+2*k}, s80"); a.e(f"v_mov_b32 v{32+n}, s79")
    a.e("s_and_b32 s78, s2, 32"); a.e("v_mov_b32 v29, s78")
    a.raw_wait("s_waitcnt lgkmcnt(0)")
    a.e("global_store_dwordx4 v29, v[32:35], s[24:25]")
    a.e("global_store_dwordx4 v29, v[36:39], s[24:25] offset:16")
    a.e(f"{l}:")

def srd(a, d, lo, o, size):
    a.e(f"s_add_u32 s{d}, s{lo}, {o}")
    a.e(f"s_addc_u32 s{d+1}, s{lo+1}, 0")
    a.e(f"s_and_b32 s{d+1}, s{d+1}, 0xffff")
    a.e(f"s_mov_b32 s{d+2}, {size}")
    a.e(f"s_mov_b32 s{d+3}, 0x20000")
_lbl = [0]
def newlabel(p):
    _lbl[0] += 1
    return f"L_{p}_{_lbl[0]}"
class U(str): pass

def ldsbase(m):
    h, o = slot(m); return h * VB + o
def w_tile(m, rel, base=None):
    b = ldsbase(m); base = sWq if base is None else base
    return [([f"s_add_u32 s{sOff}, s{base}, {rel}", f"s_add_u32 m0, s{sWL}, {b}"], f"buffer_load_dwordx4 v{vW}, {sr(sW,4)}, s{sOff} offen{' nt' if OPT['wnt'] else ''} lds"),
            ([f"s_add_u32 s{sOff}, s{base}, {rel + 8192}", f"s_add_u32 m0, s{sWL}, {b + 1032}"], f"buffer_load_dwordx4 v{vW}, {sr(sW,4)}, s{sOff} offen{' nt' if OPT['wnt'] else ''} lds")]
def kv_tile(m, t):
    b = ldsbase(m); s = sV if m & 1 else sK
    so = f"s_xor_b32 s{sOff}, s{sNX if t >= 16 else sCX}, {(t % 16) * 8192}"
    return [([so, f"s_add_u32 m0, s{sKVL}, {b}"], f"buffer_load_dwordx4 v{vKV}, {sr(s,4)}, s{sOff} offen nt lds"),
            ([f"s_add_u32 m0, s{sKVL}, {b + 32}"], f"buffer_load_dwordx4 v{vKV}, {sr(s,4)}, s{sOff} offen offset:1024 nt lds")]
def wo_tile(m, rel, base_s):
    b = ldsbase(m)
    def so(x): return f"s_add_u32 s{sOff}, s{base_s}, {x}" if base_s is not None else f"s_mov_b32 s{sOff}, {x}"
    return [([so(rel), f"s_add_u32 m0, s{sWL}, {b}"], f"buffer_load_dwordx4 v{vWo}, {sr(sWo,4)}, s{sOff} offen lds"),
            ([so(rel + 1280), f"s_add_u32 m0, s{sWL}, {b + 1032}"], f"buffer_load_dwordx4 v{vWo}, {sr(sWo,4)}, s{sOff} offen lds")]
def emit_tile(a, steps):
    for pre, d in steps:
        for x in pre: a.e(x)
        a._emit(d)
def place_tile(a, S, steps, gaps):
    for (pre, d), g in zip(steps, gaps):
        for k, x in enumerate(pre): S.h(g - len(pre) + k, x)
        S.v(g, lambda d=d: a._emit(d))
def rd_w(dst, m, i):
    h, o = slot(m); p, u = divmod(i, 2)
    return [f"ds_read_b64_tr_b16 {R(off(dst, 2*e), 2)}, v{(vWAl, vWAh)[h]} offset:{o + e*512 + p*64 + u*8}" for e in range(2)]
def vmw(a, n): a.raw_wait(f"s_waitcnt vmcnt({n})")

def rowred(a, op, regs, tmps):
    for w in (32, 16):
        for r, t in zip(regs, tmps): a.e(f"v_mov_b32 v{t}, v{r}")
        for r, t in zip(regs, tmps): a.e(f"v_permlane{w}_swap_b32 v{r}, v{t}")
        for r, t in zip(regs, tmps): a.e(f"{op} v{r}, v{r}, v{t}")

RDPOS = [0,1,2,3,4,5,7,8,9,10,12,13,14,15,17,18]
RDPOS_X = [2,3,5,6,8,9,11,12,14,15,16,17,18,19,20,21]

def late_consts(a):
    a.e(f"v_min_u32 v{vTo}, 19, v0"); a.e(f"v_lshlrev_b32 v{vTo}, 7, v{vTo}")
    a.e(f"s_mul_i32 s{sTmp}, s{sB}, 10240"); a.e(f"s_mul_i32 s{sT2}, s{sWv}, 2560"); a.e(f"s_add_u32 s{sTmp}, s{sTmp}, s{sT2}")
    a.e(f"v_add_u32 v{vTo}, s{sTmp}, v{vTo}")
    a.e(f"s_mul_i32 s{sTmp}, s{sWv}, {3*CH}"); a.e(f"v_lshlrev_b32 v{vPt}, 4, v0"); a.e(f"v_add_u32 v{vPt}, s{sTmp}, v{vPt}")
    a.e("v_lshrrev_b32 v9, 4, v0"); a.e(f"s_lshl_b32 s{sTmp}, s{sWv}, 1"); a.e(f"v_lshl_add_u32 v9, v9, 3, s{sTmp}")
    a.e("v_mul_u32_u24 v9, 1280, v9"); a.e("v_and_b32 v8, 15, v0"); a.e(f"v_lshl_add_u32 v{vWo}, v8, 4, v9")

def x_block(j, rel, base_s):
    so = f"s_add_u32 s{sOff2}, s{base_s}, {rel + j*20480}" if base_s is not None else f"s_mov_b32 s{sOff2}, {rel + j*20480}"
    return [([so, f"s_add_u32 m0, s{sXL}, {j*2048}"], f"buffer_load_dwordx4 v{vX0}, {sr(sX,4)}, s{sOff2} offen{' nt' if OPT['xnt'] else ''} lds"),
            ([f"s_add_u32 m0, s{sXL}, {j*2048 + 1024}"], f"buffer_load_dwordx4 v{vX1}, {sr(sX,4)}, s{sOff2} offen{' nt' if OPT['xnt'] else ''} lds")]
def rd_xb(dst, j, s): return f"ds_read_b128 {R(dst,4)}, v{(vXA0, vXA1)[s]} offset:{j*2048}"

def end_sync(a, S, vm, keep=2):
    def w():
        n = min(len(a.lg), keep)
        a.raw_wait(f"s_waitcnt vmcnt({vm}) lgkmcnt({n})")
        a.lg = a.lg[len(a.lg) - n:] if n else []
    S.h(22, w); S.h(23, "s_barrier")

def convert(a, acc, dests, tmp):
    a.e(f"s_mov_b32 s{sTmp}, {f32(math.log2(math.e) / math.sqrt(128.0))}")
    k = 0
    for pos, db in enumerate(dests):
        for p in range(4):
            for j in range(3):
                t = tmp[k % len(tmp)]; k += 1
                src = []
                for u in range(2):
                    o = acc(pos, 2*p + u, j)
                    for r in range(4):
                        if isinstance(o, tuple):
                            a.e(f"v_accvgpr_read_b32 v{t+4*u+r}, a{o[1]+r}"); src.append(t + 4*u + r)
                        else: src.append(o + r)
                for x in src: a.e(f"v_mul_f32 v{x}, s{sTmp}, v{x}")
                d = Qf(j, p) if db is None else t + 8
                for r in range(4): a.e(f"v_cvt_pk_bf16_f32 v{d+r}, v{src[2*r]}, v{src[2*r+1]}")
                if db is not None:
                    for r in range(4): a.e(f"v_accvgpr_write_b32 a{db + 12*p + 4*j + r}, v{d+r}")

def gcv(m, h):
    i, j = divmod(m, 3); p, u = divmod(i, 2); o = Or(i, j)
    return f"v_cvt_pk_bf16_f32 v{S_ + 12*p + 4*j + 2*u + h}, v{o+2*h}, v{o+2*h+1}"
CVS = [gcv(m, h) for m in range(24) for h in range(2)]
def gst(q, rel, base_s):
    p, j = divmod(q, 3)
    return ([f"s_add_u32 s{sOff2}, s{base_s}, {rel + (p*12 + j)*CH}"], f"buffer_store_dwordx4 {vr(S_ + 12*p + 4*j,4)}, v{vPt}, {sr(sP,4)}, s{sOff2} offen sc1")
def cv_plans():
    caps = [0 if g in (6, 11) else (1 if g in RDPOS else 2) for g in range(24)]
    last = []; ci = 0
    for g, cp in enumerate(caps):
        for _ in range(cp):
            if ci < 48 and ci // 2 + 4 <= g: last.append((g, ci)); ci += 1
    n = ci; first = []
    for g, cp in enumerate(caps):
        for _ in range(cp):
            if ci < 48: first.append((g, ci)); ci += 1
    assert ci == 48 and all(c // 2 > g for g, c in first)
    return last, first, n
PLAN_LAST, PLAN_FIRST, NLAST = cv_plans()

def Q2acc(pos, i, j): return (56 if pos == 0 else O_) + 12 * i + 4 * j
def X2reg(c, j, s): return ("a", 24 * (c % 8) + 8 * j + 4 * s)
def w2rel(n): return (n >> 1) * 262144 + (1 - (n & 1)) * 256
def q2mf(n):
    s, pos = divmod(n, 2)
    return [mf(Q2acc(pos, i, j), Greg(n & 1, i), X2reg(s >> 1, j, s & 1), None if s == 0 else Q2acc(pos, i, j)) for i in range(8) for j in range(3)]

def main_kernel():
    a = Asm()
    T = OPT["typ"]
    a.e("s_cmp_ge_u32 s2, 256")
    a.e("s_cbranch_scc1 L_end")
    a.e("s_load_dwordx16 s[4:19], s[0:1], 0")
    a.e("s_load_dwordx4 s[20:23], s[0:1], 64")
    a.e("s_load_dwordx2 s[28:29], s[0:1], 96")
    a.e(f"s_bfe_u32 s{sBr}, s2, 0x10002")
    if not OPT["map84"]:
        a.e(f"s_and_b32 s{sB}, s2, 3"); a.e(f"s_lshl_b32 s{sB}, s{sB}, 2")
        a.e(f"s_bfe_u32 s{sTmp}, s2, 0x20003"); a.e(f"s_add_u32 s{sB}, s{sB}, s{sTmp}")
        a.e(f"s_lshr_b32 s{sU}, s2, 5")
    else:
        a.e(f"s_and_b32 s{sB}, s2, 1"); a.e(f"s_lshl_b32 s{sB}, s{sB}, 3")
        a.e(f"s_bfe_u32 s{sTmp}, s2, 0x30003"); a.e(f"s_add_u32 s{sB}, s{sB}, s{sTmp}")
        a.e(f"s_bfe_u32 s{sU}, s2, 0x10001"); a.e(f"s_lshl_b32 s{sU}, s{sU}, 2")
        a.e(f"s_lshr_b32 s{sTmp}, s2, 6"); a.e(f"s_add_u32 s{sU}, s{sU}, s{sTmp}")
    a.e(f"s_lshl_b32 s{sG}, s{sBr}, 4"); a.e(f"s_add_u32 s{sG}, s{sG}, s{sB}")
    if T == 2: a.e(f"s_and_b32 s{sTyp}, s{sU}, 1")
    else: a.e(f"s_mov_b32 s{sTyp}, {T}")
    a.e("v_lshrrev_b32 v7, 6, v0")
    a.e("v_and_b32 v0, 63, v0")
    a.e(f"v_readfirstlane_b32 s{sWv}, v7")
    a.e("v_and_b32 v8, 15, v0")
    a.e("v_lshrrev_b32 v9, 4, v0")
    a.e("v_and_b32 v10, 1, v9"); a.e("v_lshlrev_b32 v10, 4, v10")
    a.e("v_lshrrev_b32 v11, 1, v9"); a.e("v_lshl_add_u32 v10, v11, 2, v10")
    a.e("v_lshrrev_b32 v11, 1, v7"); a.e("v_lshl_add_u32 v10, v11, 3, v10")
    a.e("v_and_b32 v11, 1, v7"); a.e("v_lshl_add_u32 v10, v11, 1, v10")
    a.e("v_lshlrev_b32 v10, 13, v10"); a.e(f"v_lshl_add_u32 v{vW}, v8, 4, v10")
    a.e("v_mul_u32_u24 v10, 48, v7"); a.e("v_lshrrev_b32 v11, 3, v0"); a.e("v_add_u32 v10, v10, v11")
    a.e("v_mul_u32_u24 v10, 1280, v10")
    a.e("v_and_b32 v11, 7, v0"); a.e("v_xor_b32 v11, v11, v9")
    a.e(f"v_lshl_add_u32 v{vX0}, v11, 4, v10")
    a.e("v_xor_b32 v11, 4, v11"); a.e("v_add_u32 v10, 10240, v10")
    a.e(f"v_lshl_add_u32 v{vX1}, v11, 4, v10")
    a.e(f"s_mul_i32 s{sKVL}, s{sWv}, 2112")
    a.e(f"s_mov_b32 s{sWL}, s{sKVL}")
    a.e(f"s_mul_i32 s{sXL}, s{sWv}, 6144"); a.e(f"s_add_u32 s{sXL}, s{sXL}, {XB}")
    a.e(f"s_mov_b32 s{sCur}, 0"); a.e(f"s_mov_b32 s{sXo}, 0"); a.e(f"s_mov_b32 s{sWq}, 0")
    a.raw_wait("s_waitcnt lgkmcnt(0)")
    a.e(f"s_cmp_eq_u32 s{sBr}, 0")
    a.e("s_cselect_b64 s[4:5], s[4:5], s[14:15]")
    a.e("s_cselect_b64 s[6:7], s[6:7], s[16:17]")
    a.e("s_cselect_b64 s[8:9], s[8:9], s[18:19]")
    a.e("s_cselect_b64 s[10:11], s[10:11], s[20:21]")
    a.e("s_cselect_b64 s[12:13], s[12:13], s[22:23]")
    a.e(f"s_mul_i32 s{sTmp}, s{sB}, 245760")
    srd(a, sX, 4, f"s{sTmp}", 245760)
    a.e(f"s_lshl_b32 s{sTmp}, s{sU}, 10")
    srd(a, sW, 10, f"s{sTmp}", 639 * 8192 + 1024)
    stamp(a, 0); stamp(a, 1, False)
    for j in range(3): emit_tile(a, x_block(j, 0, None))
    def common_consts():
        if OPT["rot"]:
            a.e(f"s_lshr_b32 s{sCX}, s2, 4"); a.e(f"s_xor_b32 s{sCX}, s{sCX}, s2"); a.e(f"s_and_b32 s{sCX}, s{sCX}, 15"); a.e(f"s_lshl_b32 s{sCX}, s{sCX}, 13")
        else: a.e(f"s_mov_b32 s{sCX}, 0")
        a.e(f"s_add_u32 s{sNX}, s{sCX}, 131072")
        a.e("v_bfe_u32 v10, v0, 2, 3")
        a.e("v_lshrrev_b32 v11, 1, v10"); a.e("v_lshlrev_b32 v11, 6, v11"); a.e(f"v_lshl_add_u32 v{vWAl}, v10, 10, v11")
        a.e("v_and_b32 v11, 1, v10"); a.e(f"v_lshl_add_u32 v{vWAl}, v11, 3, v{vWAl}")
        a.e("v_lshrrev_b32 v11, 5, v0"); a.e(f"v_lshl_add_u32 v{vWAl}, v11, 8, v{vWAl}")
        a.e("v_mul_u32_u24 v10, 1056, v10"); a.e("v_lshl_add_u32 v10, v11, 8, v10")
        a.e("v_and_b32 v11, 3, v0"); a.e(f"v_lshl_add_u32 v{vWAl}, v11, 4, v{vWAl}")
        a.e(f"v_lshl_add_u32 v10, v11, 3, v10"); a.e(f"v_add_u32 v{vVA}, {VB}, v10")
        a.e(f"v_add_u32 v{vWAh}, {VB}, v{vWAl}")
        a.e("v_and_b32 v10, 7, v8"); a.e("v_mul_u32_u24 v10, 1056, v10")
        a.e("v_lshrrev_b32 v11, 3, v8"); a.e(f"v_lshl_add_u32 v10, v11, 8, v10")
        a.e(f"v_lshl_add_u32 v{vKA}, v9, 4, v10")
        a.e("v_lshlrev_b32 v10, 4, v0"); a.e(f"v_lshl_add_u32 v{vKV}, v7, 11, v10")
        a.e(f"v_lshlrev_b32 v10, 7, v8"); a.e(f"v_add_u32 v10, s{sXL}, v10")
        a.e("v_lshrrev_b32 v11, 1, v8"); a.e("v_xor_b32 v11, v11, v9")
        a.e(f"v_lshl_add_u32 v{vXA0}, v11, 4, v10")
        a.e("v_xor_b32 v11, 4, v11"); a.e(f"v_lshl_add_u32 v{vXA1}, v11, 4, v10")
        a.e(f"s_lshl_b32 s{sTmp}, s{sB}, 3"); a.e(f"s_add_u32 s{sTmp}, s{sTmp}, s{sU}"); a.e(f"s_lshl_b32 s{sTmp}, s{sTmp}, 19")
        srd(a, sK, 6, f"s{sTmp}", 4 * 131072)
        srd(a, sV, 8, f"s{sTmp}", 4 * 131072)
        a.e(f"s_mul_i32 s{sTmp}, s{sU}, {512*1280}")
        srd(a, sWo, 12, f"s{sTmp}", 512 * 1280)
        a.e(f"s_mov_b32 s{sWoB}, 0"); a.e(f"s_mov_b32 s{sTask}, 0")
    def touch0(three):
        if OPT["t0x"]:
            a.e("v_min_u32 v10, 59, v0"); a.e("v_lshlrev_b32 v10, 7, v10")
            a.e(f"s_lshl_b32 s{sTmp}, s{sU}, 2"); a.e(f"s_add_u32 s{sTmp}, s{sTmp}, s{sWv}"); a.e(f"s_mul_i32 s{sTmp}, s{sTmp}, 7680")
            a._emit(f"buffer_load_dword v11, v10, {sr(sX,4)}, s{sTmp} offen")
        if OPT["t0w"] and three:
            a.e("v_lshrrev_b32 v14, 2, v0"); a.e("v_lshlrev_b32 v14, 13, v14"); a.e("v_and_b32 v15, 3, v0"); a.e("v_lshl_add_u32 v14, v15, 7, v14")
            a.e(f"s_and_b32 s{sTmp}, s{sB}, 3"); a.e(f"s_lshl_b32 s{sTmp}, s{sTmp}, 2"); a.e(f"s_add_u32 s{sTmp}, s{sTmp}, s{sWv}"); a.e(f"s_lshl_b32 s{sTmp}, s{sTmp}, 17")
            for k in range(3):
                a.e(f"s_add_u32 s{sT2}, s{sTmp}, {k*256*8192}")
                a._emit(f"buffer_load_dword v{16+k}, v14, {sr(sW,4)}, s{sT2} offen")
        if OPT["ctouch"]:
            a.e("s_getpc_b64 s[24:25]")
            a.e(f"s_and_b32 s24, s24, 0xffff0000") if False else None
    def part_srd(slot_expr, size):
        a.e(f"s_mul_i32 s{sTmp}, s{sG}, {PART}"); slot_expr(); a.e(f"s_lshl_b32 s{sT2}, s{sT2}, 10"); a.e(f"s_add_u32 s{sTmp}, s{sTmp}, s{sT2}")
        srd(a, sP, 28, f"s{sTmp}", size)
    NF = OPT["first"]
    a.e(f"s_cmp_lg_u32 s{sTyp}, 0")
    a.e("s_cbranch_scc1 L_p3")
    def wrel(n): return (n >> 2) * 262144 + (3 - (n & 3)) * 256
    def rd_x(buf): return [rd_xb(Xreg(buf, j, s), j, s) for s in range(2) for j in range(3)]
    for n in range(NF): emit_tile(a, w_tile(n, wrel(n)))
    common_consts()
    touch0(False)
    part_srd(lambda: a.e(f"s_lshr_b32 s{sT2}, s{sU}, {1 if T == 2 else 0}"), 0)
    a.e(f"s_mov_b32 s{sLast}, 3"); a.e(f"s_mov_b32 s{sS8}, {8*40960}")
    for r in range(256): a.e(f"v_accvgpr_write_b32 a{r}, 0")
    for r in list(range(124, 156)) + list(range(160, 256)): a.e(f"v_mov_b32 v{r}, 0")
    vmw(a, 2 * (NF - 1))
    a.e("s_barrier")
    for r in rd_x(0): a.e(r)
    for i in range(8):
        for r in rd_w(Wreg(0, i), 0, i): a.e(r)
    for n in range(NF, 15): emit_tile(a, w_tile(n, wrel(n)))
    a.raw_wait("s_waitcnt vmcnt(26) lgkmcnt(0)"); a.lg = []
    a.e("s_barrier")
    stamp(a, 2)
    def qmf(n):
        s, pos = divmod(n % 16, 4)
        return [mf(Qacc(pos, i, j), Wreg(n & 1, i), Xreg((s >> 1) & 1, j, s & 1), Qacc(pos, i, j)) for i in range(8) for j in range(3)]
    def q_group(last):
        for n in range(16):
            a.c(f"Q sub-step {n}{' (last group)' if last else ''}")
            S = Sched(a, qmf(n))
            fin = last and n == 15
            q = n % 8
            xrd = q in (6, 7) and not (last and n >= 8)
            if not fin:
                rds = []
                for i in range(8): rds += rd_w(Wreg((n + 1) & 1, i), n + 1, i)
                for r, p in zip(rds, RDPOS): S.v(p, r)
                m = n + 15
                if not last or m < 16: place_tile(a, S, w_tile(m, wrel(m)), (6, 11))
                elif m - 16 <= 12: place_tile(a, S, kv_tile(m, (m - 16) >> 1), (6, 11))
                if not (last and n == 14): end_sync(a, S, 26, 5 if xrd else 2)
            if xrd:
                rx = rd_x(((n >> 3) + 1) & 1)[3*(q-6):3*(q-6)+3]
                if q == 6: S.h(16, lambda: vmw(a, 8))
                for r, p in zip(rx, (19, 20, 21)): S.v(p, (r, "xr"))
            if q in (0, 1, 2) and not (last and n >= 8):
                if q == 0: S.h(12, lambda: a.wait(lg="xr"))
                place_tile(a, S, x_block(q, 128 * ((n >> 3) + 1), sXo), (16, 19))
            if n == 15 and not last:
                S.h(13, f"s_add_u32 s{sWq}, s{sWq}, {4*262144}")
                S.h(14, f"s_add_u32 s{sXo}, s{sXo}, 256")
                S.h(15, f"s_cmp_lt_u32 s{sXo}, 1024")
            S.emit(None if fin else qmf(n + 1)[0])
    a.e(".p2align 6")
    a.e("L_q:")
    mark = len(a.ins); nops0 = a.nops
    q_group(False)
    lg_end = list(a.lg)
    del a.ins[mark:]; a.nops = nops0
    q_group(False)
    assert a.lg == lg_end
    a.e("s_cbranch_scc1 L_q")
    q_group(True)
    stamp(a, 3)
    a.c("Q conversion")
    convert(a, Qacc, [QBANK[3], QBANK[2], QBANK[1], None], [60 + 12 * k for k in range(5)])
    late_consts(a)
    a.e("s_branch L_enter")
    a.e("L_p3:")
    a.lg = []
    for n in range(NF): emit_tile(a, w_tile(n + 8, w2rel(n)))
    common_consts()
    touch0(True)
    def slot3():
        if T == 2: a.e(f"s_and_b32 s{sT2}, s{sU}, 6"); a.e(f"s_add_u32 s{sT2}, s{sT2}, 4")
        else: a.e(f"s_lshl_b32 s{sT2}, s{sU}, 1")
    part_srd(slot3, 239 * CH + 2048)
    a.e(f"s_mov_b32 s{sLast}, 1"); a.e(f"s_mov_b32 s{sS8}, 256"); a.e(f"s_mov_b32 s{sPo}, 0")
    late_consts(a)
    vmw(a, 2 * (NF - 1))
    a.e("s_barrier")
    for j in range(3):
        for s in range(2): a.e(rd_xb(X2reg(0, j, s), j, s), tag="xr")
    for i in range(8):
        for r in rd_w(Greg(0, i), 8, i): a.e(r)
    a.wait(lg="xr")
    for j in range(3): emit_tile(a, x_block(j, 128, None))
    for n in range(NF, 15): emit_tile(a, w_tile(n + 8, w2rel(n)))
    a.raw_wait(f"s_waitcnt vmcnt({2*(15-NF)}) lgkmcnt(0)"); a.lg = []
    a.e("s_barrier")
    stamp(a, 2)
    a.e(".p2align 6")
    a.e("L_q2:")
    for n in range(40):
        a.c(f"Q2 sub-step {n}")
        S = Sched(a, q2mf(n))
        xb = n + 3
        xact = xb < 30
        if n < 39:
            rds = []
            for i in range(8): rds += rd_w(Greg((n + 1) & 1, i), n + 9, i)
            for r, p in zip(rds, RDPOS_X if xact else RDPOS): S.v(p, r)
            m = n + 15
            gp = (4, 7) if xact else (6, 11)
            if m < 40: place_tile(a, S, w_tile(m + 8, w2rel(m)), gp)
            elif m - 40 <= 12: place_tile(a, S, kv_tile(m - 40, (m - 40) >> 1), gp)
        if xact:
            c, j = divmod(xb, 3)
            for s in range(2): S.v(s, (rd_xb(X2reg(c, j, s), j, s), "xr"))
            if xb + 3 < 30:
                S.h(7, lambda: a.wait(lg="xr"))
                place_tile(a, S, x_block(j, 128 * (c + 1), None), (10, 13))
        if n < 38:
            if n + 4 < 30 and n >= 2:
                vm = sum(2 + (2 if k + 6 < 30 else 0) for k in (n - 1, n))
            else: vm = 26
            end_sync(a, S, vm, 5 if xact else 2)
        S.emit(q2mf(n + 1)[0] if n < 39 else None)
    stamp(a, 3)
    a.c("Q2 conversion")
    if OPT["touch"]:
        a.e("v_min_u32 v8, 39, v0"); a.e("v_lshrrev_b32 v9, 2, v8"); a.e("v_lshlrev_b32 v9, 13, v9")
        a.e("v_and_b32 v8, 3, v8"); a.e("v_lshl_add_u32 v9, v8, 7, v9")
        a.e(f"s_lshl_b32 s{sTmp}, s{sB}, 2"); a.e(f"s_add_u32 s{sTmp}, s{sTmp}, s{sWv}"); a.e(f"s_mul_i32 s{sTmp}, s{sTmp}, {10*8192}")
        a.e(f"s_add_u32 s{sTmp}, s{sTmp}, 512")
        a._emit(f"buffer_load_dword v{vD}, v9, {sr(sW,4)}, s{sTmp} offen")
    convert(a, Q2acc, [QBANK[1], None], [12, 24, 36])
    a.e("L_enter:")
    a.e(f"v_mov_b32 v{vT}, 0x3f803f80")
    for r in range(4): a.e(f"v_accvgpr_write_b32 a{ONES[1]+r}, v{vT}")
    a.e(f"s_mov_b32 s{sR}, 0")
    def rd_k(dst, t, u): return [f"ds_read_b128 {vr(dst + 4*ks,4)}, v{vKA} offset:{(t % 8)*TILE + u*512 + ks*64}" for ks in range(4)]
    def rd_v(t, half, fr=VF):
        return [f"ds_read_b64_tr_b16 {vr(fr + 4*i + 2*e, 2)}, v{vVA} offset:{(t % 8)*TILE + e*512 + (4*half+i)*32}" for i in range(4) for e in range(2)]
    vmw(a, 24)
    a.e("s_barrier")
    a.lg = []
    for r in rd_k(VF, 0, 1) + rd_k(KF, 0, 0): a.e(r)
    stamp(a, 4)
    def ex(u, k): j, r = divmod(k, 4); s = Sr(u, j) + r; return f"v_exp_f32 v{s}, v{s}"
    def cv(u, buf, c): j, h = divmod(c, 2); s = Sr(u, j) + 2*h; return f"v_cvt_pk_bf16_f32 v{Pr(buf,j) + 2*u + h}, v{s}, v{s+1}"
    def qk(u): return [mf(Sr(u, j), KF + 4*ks, Qf(j, ks), Nm(j) if ks == 0 else Sr(u, j)) for j in range(3) for ks in range(4)]
    def pv(t, half, fr=VF): return [mf(Or(4*half + i, j), fr + 4*i, Pr(t & 1, j), None if t == 0 else Or(4*half + i, j)) for i in range(4) for j in range(3)]
    def sm(t): return [mf(La(j), ONES, Pr(t & 1, j), None if t == 0 else La(j)) for j in range(3)]
    oob = []
    def wo_first(n):
        return wo_tile(n, (n % 8) * 40960, sWoB if n < 8 else sGc)
    def stream_tile(S, m, gaps):
        kv = kv_tile(m, m >> 1)
        if m < 32:
            place_tile(a, S, kv, gaps); return
        for (pre, d), (pre2, d2), g in zip(kv, wo_first(m - 32), gaps):
            for k, x in enumerate(pre): S.h(g - len(pre) + k, x)
            l0, l1 = newlabel("wo"), newlabel("back")
            def site(d=d, l0=l0, l1=l1):
                a.e(f"s_cbranch_vccnz {l0}"); a._emit(d); a.e(f"{l1}:")
            S.v(g, site)
            oob.append((l0, l1, pre2, d2))
    def tail_vec(S, u, buf, rds):
        pos = [0, 1, 4, 5, 8, 9, 10, 11]
        for r, p in zip(rds, pos): S.v(p, r)
        for k, p in zip(range(8, 12), (2, 3, 6, 7)): S.v(p, ex(u, k))
        for c, p in zip(range(6), (0, 1, 4, 5, 8, 9)): S.v(p, cv(u, buf, c))
    a.e(".p2align 6")
    a.e("L_head:")
    a.c("tile 0: scores and stand-in row max (max over the first 32 keys)")
    a.e(f"s_add_u32 s{sGc}, s{sWoB}, s{sS8}")
    a.e(f"s_cmp_eq_u32 s{sR}, s{sLast}")
    for u, kf in ((1, VF), (0, KF)):
        for j in range(3):
            for ks in range(4):
                a.e(mf(Sr(u, j), kf + 4*ks, Qf(j, ks), None if ks == 0 else Sr(u, j)))
    a.e("s_cselect_b64 vcc, -1, 0")
    vmw(a, 20)
    a.e("s_barrier")
    for r in rd_k(KF, 1, 0): a.e(r)
    emit_tile(a, kv_tile(13, 6)); emit_tile(a, kv_tile(14, 7))
    if OPT["touch"]:
        a.e(f"s_lshr_b32 s{sT2}, s{sCur}, 17"); a.e(f"s_mul_i32 s{sT2}, s{sT2}, 163840")
        a._emit(f"buffer_load_dword v{vD}, v{vTo}, {sr(sWo,4)}, s{sT2} offen")
    for j in range(3):
        n = Nm(j); s0 = Sr(0, j); s1 = Sr(1, j)
        a.e(f"v_max3_f32 v{n}, v{s1}, v{s1+1}, v{s1+2}")
        a.e(f"v_max3_f32 v{n+1}, v{s1+3}, v{s0}, v{s0+1}")
        a.e(f"v_max3_f32 v{n}, v{n}, v{s0+2}, v{s0+3}")
        a.e(f"v_max_f32 v{n}, v{n}, v{n+1}")
    rowred(a, "v_max_f32", [Nm(j) for j in range(3)], [Nm(j) + 1 for j in range(3)])
    for j in range(3):
        n = Nm(j)
        a.e(f"v_sub_f32 v{n}, 0, v{n}")
        for r in range(1, 4): a.e(f"v_mov_b32 v{n+r}, v{n}")
    for u in range(2):
        for j in range(3):
            for r in range(4): a.e(f"v_add_f32 v{Sr(u,j)+r}, v{Sr(u,j)+r}, v{Nm(j)}")
    for k in range(12): a.e(ex(0, k))
    for k in range(8): a.e(ex(1, k))
    for c in range(6): a.e(cv(0, 0, c))
    for t in range(15):
        a.c(f"stage {t}")
        S = Sched(a, qk(0)); tail_vec(S, 1, t & 1, rd_v(t, 0)); S.emit(pv(t, 0)[0])
        S = Sched(a, pv(t, 0))
        for r, p in zip(rd_k(KF, t+1, 1), (0, 1, 2, 3)): S.v(p, r)
        for k, p in zip(range(8), range(4, 12)): S.v(p, ex(0, k))
        S.h(10, lambda: a.wait(lg="all"))
        S.emit(qk(1)[0])
        S = Sched(a, qk(1)); tail_vec(S, 0, (t+1) & 1, rd_v(t, 1))
        S.h(11, lambda: vmw(a, 20))
        S.emit(None)
        S = Sched(a, sm(t) + pv(t, 1))
        S.h(0, "s_barrier")
        if t + 2 < 16:
            for r, p in zip(rd_k(KF, t+2, 0), (0, 1, 2, 3)): S.v(p, r)
        for k, p in zip(range(8), (3, 4, 6, 7, 9, 10, 12, 13)): S.v(p, ex(1, k))
        stream_tile(S, 2*(t+7) + 1, (5, 8))
        stream_tile(S, 2*(t+8), (11, 14))
        S.h(12, lambda: a.wait(lg="all"))
        S.emit(qk(0)[0] if t < 14 else None)
    a.c("stage 15")
    for r in rd_v(15, 0): a.e(r)
    for k in range(8, 12): a.e(ex(1, k))
    for c in range(6): a.e(cv(1, 1, c))
    S = Sched(a, sm(15) + pv(15, 0))
    for r, p in zip(rd_v(15, 1, KF), range(8)): S.v(p, r)
    S.emit(pv(15, 1, KF)[0])
    S = Sched(a, pv(15, 1, KF))
    for j in range(3): S.v(j, f"v_accvgpr_read_b32 v{vT+j}, a{La(j)[1]}")
    S.v(3, f"v_add_f32 v{vT+3}, v{vT}, v{vT+1}"); S.v(4, f"v_add_f32 v{vT+3}, v{vT+3}, v{vT+2}")
    S.v(5, f"v_mov_b32 v{vT+4}, {f32(2.0**30 if not OPT['forceslow'] else 150.0)}")
    S.v(6, f"v_cmp_nle_f32 vcc, v{vT+3}, v{vT+4}")
    S.emit(None)
    assert not a.lg
    if not OPT["nocheck"]: a.e("s_cbranch_vccnz L_slow")
    a.e("L_epi:")
    for r in rd_k(VF, 0, 1) + rd_k(KF, 0, 0): a.e(r)
    for j in range(3): a.e(f"v_rcp_f32 v{vT+j}, v{vT+j}")
    for p in range(4):
        for j in range(3):
            d = Qf(j, p)
            for u in range(2):
                o = Or(2*p + u, j)
                for r in range(4): a.e(f"v_mul_f32 v{o+r}, v{o+r}, v{vT+j}")
                a.e(f"v_cvt_pk_bf16_f32 v{d+2*u}, v{o}, v{o+1}")
                a.e(f"v_cvt_pk_bf16_f32 v{d+2*u+1}, v{o+2}, v{o+3}")
    if OPT["stamp"]:
        a.e(f"s_lshr_b32 s{sT2}, s{sCur}, 17"); stamp_dyn(a, 5, sT2, 4)
    a.e(f"s_add_u32 s{sCur}, s{sCur}, 131072")
    a.e(f"s_mov_b32 s{sCX}, s{sNX}"); a.e(f"s_add_u32 s{sNX}, s{sNX}, 131072")
    a.e(f"s_add_u32 s{sR}, s{sR}, 1")
    a.e(f"s_cmp_gt_u32 s{sR}, s{sLast}"); a.e("s_cbranch_scc1 L_g")
    a.e(f"s_cmp_eq_u32 s{sR}, 3"); a.e("s_cbranch_scc1 L_sw2")
    a.e(f"s_cmp_eq_u32 s{sR}, 2"); a.e("s_cbranch_scc1 L_sw1")
    for r in range(3):
        a.e(f"L_sw{r}:")
        for p in range(4):
            for j in range(3):
                for x in range(4): a.e(f"v_accvgpr_write_b32 a{OBANK[r] + 12*p + 4*j + x}, v{Qf(j,p)+x}")
        for p in range(4):
            for j in range(3):
                for x in range(4): a.e(f"v_accvgpr_read_b32 v{Qf(j,p)+x}, a{QBANK[r+1] + 12*p + 4*j + x}")
        a.e("s_nop 0")
        a.e("s_branch L_head")
    for l0, l1, pre2, d2 in oob:
        a.e(f"{l0}:")
        for x in pre2: a.e(x)
        a._emit(d2)
        a.e(f"s_branch {l1}")
    a.e(".p2align 6")
    a.e("L_g:")
    a.lg = []
    a.raw_wait("s_waitcnt vmcnt(22) lgkmcnt(0)")
    a.e("s_barrier")
    for i in range(8):
        for r in rd_w(Greg(0, i), 0, i): a.e(r)
    emit_tile(a, wo_first(13)); emit_tile(a, wo_first(14))
    lg_g = list(a.lg)
    a.e(f"s_cmp_lg_u32 s{sTyp}, 0")
    a.e("s_cbranch_scc1 L_g2")
    a.e(f"s_mov_b32 s{sGc}, 0")
    a.e(f"s_mov_b32 s{sPo}, 0")
    a.wait(lg="all")
    def gmf(n, nh):
        ks = n % (4 * nh); r, p = divmod(ks, 4)
        def B(j): return Qf(j, p) if r == nh - 1 else ("a", OBANK[r] + 12 * p + 4 * j)
        return [mf(Or(i, j), Greg(n & 1, i), B(j), None if ks == 0 else Or(i, j)) for i in range(8) for j in range(3)]
    def g4_body():
        for n in range(16):
            a.c(f"G sub-step {n}")
            S = Sched(a, gmf(n, 4))
            rds = []
            for i in range(8): rds += rd_w(Greg((n + 1) & 1, i), n + 1, i)
            for r, p in zip(rds, RDPOS): S.v(p, r)
            m = n + 15
            place_tile(a, S, wo_tile(m, (m % 16) * 40960 + (m // 16) * 256, sGc), (6, 11))
            if n == 0:
                for g_, c in PLAN_FIRST: S.v(g_, CVS[c])
                S.h(14, f"s_cmp_eq_u32 s{sGc}, 1024")
                S.h(15, f"s_cselect_b32 s{sWo+2}, 0, s{sWo+2}")
            if 1 <= n <= 12: place_tile(a, S, [gst(n - 1, 0, sPo)], (20,))
            if n == 15:
                for g_, c in PLAN_LAST: S.v(g_, CVS[c])
                S.h(13, f"s_mov_b32 s{sP+2}, {239*CH + 1024}")
                S.h(14, f"s_mul_i32 s{sPo}, s{sGc}, {48*CH//256}")
                S.h(15, f"s_add_u32 s{sGc}, s{sGc}, 256")
                S.h(16, f"s_cmp_lt_u32 s{sGc}, 1280")
            nst = len([k for k in range(max(1, n - 13), min(n, 12) + 1)]) if OPT["track"] else 0
            end_sync(a, S, 26 + nst)
            S.emit(gmf(n + 1, 4)[0])
    a.e("L_gloop:")
    mark = len(a.ins); nops0 = a.nops
    g4_body(); lg_end = list(a.lg)
    del a.ins[mark:]; a.nops = nops0
    g4_body(); assert a.lg == lg_end
    a.e("s_cbranch_scc1 L_gloop")
    for c in range(NLAST, 48): a.e(CVS[c])
    for q in range(12): emit_tile(a, [gst(q, 0, sPo)])
    a.e("L_fin:")
    stamp(a, 9, False); stamp(a, 10)
    stamp_store(a, "L_end", 0)
    dbg_store(a)
    a.e("L_end:")
    a.e("s_endpgm")
    a.e(".p2align 6")
    a.e("L_g2:")
    a.lg = lg_g
    for n in range(40):
        a.c(f"G2 sub-step {n}")
        ps, ks = divmod(n, 8)
        S = Sched(a, gmf(n, 2))
        rds = []
        for i in range(8): rds += rd_w(Greg((n + 1) & 1, i), n + 1, i)
        for r, p in zip(rds, RDPOS): S.v(p, r)
        m = n + 15
        if m < 40: place_tile(a, S, wo_tile(m, (m % 8) * 40960 + (m // 8) * 256, sWoB), (6, 11))
        else: place_tile(a, S, w_tile(m, w2rel(m - 40)), (6, 11))
        if n == 20:
            S.h(13, f"s_add_u32 s{sWq}, s{sWq}, 512")
            S.h(14, f"s_cmp_lg_u32 s{sTask}, 0")
            S.h(15, f"s_cselect_b32 s{sW+2}, 0, s{sW+2}")
            S.h(17, f"s_cselect_b32 s{sX+2}, 0, s{sX+2}")
        if ks == 0 and ps > 0:
            for g_, c in PLAN_FIRST: S.v(g_, CVS[c])
        if 1 <= ks <= 6 and ps > 0:
            place_tile(a, S, [gst(2*(ks-1), (ps-1)*48*CH, sPo), gst(2*(ks-1)+1, (ps-1)*48*CH, sPo)], (19, 21))
        if ks == 7:
            for g_, c in PLAN_LAST: S.v(g_, CVS[c])
        vm = 26
        if OPT["track"]: vm += sum(2 for k in range(max(0, n - 13), n + 1) if 1 <= k % 8 <= 6 and k >= 8)
        if 25 <= n <= 30:
            j, hf = divmod(n - 25, 2); pre, d = x_block(j, 0, None)[hf]
            place_tile(a, S, [([f"s_mov_b32 s{sOff2}, {j*20480}", pre[-1]], d)], (16,))
        if n == 32: vm = 4
        if 33 <= n <= 35:
            j = n - 33
            S.v(16, (rd_xb(X2reg(0, j, 0), j, 0), "xr")); S.v(20, (rd_xb(X2reg(0, j, 1), j, 1), "xr"))
        end_sync(a, S, vm, 4 if 33 <= n <= 35 else 2)
        if 36 <= n <= 38:
            j = n - 36; xb = x_block(j, 128, None)
            place_tile(a, S, [xb[0]], (16,))
            S.h(21, f"s_mov_b32 s{sT3}, {128 + j*20480}"); S.h(21, xb[1][0][-1])
            S.v(22, lambda d=xb[1][1].replace(f"s{sOff2} ", f"s{sT3} "): a._emit(d))
        S.emit(gmf(n + 1, 2)[0] if n < 39 else None)
    for c in range(NLAST, 48): a.e(CVS[c])
    for q in range(12): emit_tile(a, [gst(q, 4*48*CH, sPo)])
    a.e(f"s_cmp_lg_u32 s{sTask}, 0")
    a.e("s_cbranch_scc1 L_fin")
    a.e(f"s_mov_b32 s{sTask}, 1")
    a.e(f"s_mov_b32 s{sPo}, 1024")
    a.e(f"s_mov_b32 s{sWoB}, {256*1280}")
    a.raw_wait("s_waitcnt vmcnt(14) lgkmcnt(0)")
    a.e("s_branch L_q2")
    a.reset_counters()
    a.e("L_slow:")
    a.raw_wait("s_waitcnt vmcnt(0) lgkmcnt(0)")
    vKo, vVo, t0, t1 = 10, 11, P_ + 12, P_ + 13
    a.e("s_nop 7")
    a.e(f"v_and_b32 v{t0}, 7, v0"); a.e(f"v_lshlrev_b32 v{t0}, 10, v{t0}")
    a.e(f"v_bfe_u32 v{t1}, v0, 3, 1"); a.e(f"v_lshl_add_u32 v{t0}, v{t1}, 8, v{t0}")
    a.e(f"v_lshrrev_b32 v{t1}, 4, v0"); a.e(f"v_lshl_add_u32 v{vKo}, v{t1}, 4, v{t0}")
    a.e(f"v_bfe_u32 v{t0}, v0, 4, 1"); a.e(f"v_lshlrev_b32 v{t0}, 12, v{t0}")
    a.e(f"v_lshrrev_b32 v{t1}, 5, v0"); a.e(f"v_lshl_add_u32 v{t0}, v{t1}, 8, v{t0}")
    a.e(f"v_and_b32 v{t1}, 15, v0"); a.e(f"v_lshl_add_u32 v{vVo}, v{t1}, 1, v{t0}")
    for j in range(3): a.e(f"v_mov_b32 v{vT+j}, 0xff800000")
    def slow_qk(cinit):
        for u, kf in ((0, KF), (1, VF)):
            for ks in range(4): a.e(f"buffer_load_dwordx4 {vr(kf + 4*ks,4)}, v{vKo}, {sr(sK,4)}, s{sT2} offen offset:{u*512 + ks*64}")
        for u, kf in ((0, KF), (1, VF)):
            for j in range(3):
                for ks in range(4):
                    a.e(mf(Sr(u, j), kf + 4*ks, Qf(j, ks), (Nm(j) if cinit else None) if ks == 0 else Sr(u, j)))
    a.e(f"s_mov_b32 s{sT2}, s{sCur}")
    a.e(f"s_add_u32 s{sT3}, s{sCur}, 131072")
    a.e("L_slow_p1:")
    slow_qk(False)
    for j in range(3):
        for u in range(2):
            s = Sr(u, j)
            a.e(f"v_max3_f32 v{vT+j}, v{vT+j}, v{s}, v{s+1}")
            a.e(f"v_max3_f32 v{vT+j}, v{vT+j}, v{s+2}, v{s+3}")
    a.e(f"s_add_u32 s{sT2}, s{sT2}, 8192")
    a.e(f"s_cmp_lt_u32 s{sT2}, s{sT3}")
    a.e("s_cbranch_scc1 L_slow_p1")
    rowred(a, "v_max_f32", [vT, vT+1, vT+2], [Nm(j) for j in range(3)])
    for j in range(3):
        for r in range(4): a.e(f"v_sub_f32 v{Nm(j)+r}, 0, v{vT+j}")
    for r in range(96): a.e(f"v_mov_b32 v{O_+r}, 0")
    for r in range(12): a.e(f"v_accvgpr_write_b32 a{192+r}, 0")
    a.e(f"s_mov_b32 s{sT2}, s{sCur}")
    a.e("L_slow_p2:")
    slow_qk(True)
    for u in range(2):
        for k in range(12): a.e(ex(u, k))
    for u in range(2):
        for c in range(6): a.e(cv(u, 0, c))
    for half, fr in ((0, KF), (1, VF)):
        for hi in range(2):
            for i in range(4):
                for e in range(2):
                    for rp in range(2):
                        r = 2*rp + hi
                        a.e(f"buffer_load_ushort v{(S_ if hi else fr) + 4*i + 2*e + rp}, v{vVo}, {sr(sV,4)}, s{sT2} offen offset:{r*1024 + e*512 + (4*half+i)*32}")
        a.wait(vm="all")
        for x in range(16): a.e(f"v_lshl_or_b32 v{fr+x}, v{S_+x}, 16, v{fr+x}")
    for m in sm(2): a.e(m)
    for half, fr in ((0, KF), (1, VF)):
        for m in pv(2, half, fr): a.e(m)
    a.e(f"s_add_u32 s{sT2}, s{sT2}, 8192")
    a.e(f"s_cmp_lt_u32 s{sT2}, s{sT3}")
    a.e("s_nop 7")
    a.e("s_cbranch_scc1 L_slow_p2")
    for j in range(3): a.e(f"v_accvgpr_read_b32 v{vT+j}, a{La(j)[1]}")
    a.e("s_branch L_epi")
    return a

def reduce_kernel():
    a = Asm()
    a.e("s_cmp_ge_u32 s2, 1920")
    a.e("s_cbranch_scc1 L_r_end")
    a.e("s_load_dwordx2 s[4:5], s[0:1], 80")
    a.e("s_load_dwordx2 s[28:29], s[0:1], 96")
    a.e("v_lshrrev_b32 v1, 6, v0")
    a.e("v_and_b32 v0, 63, v0")
    a.e("v_readfirstlane_b32 s60, v1")
    a.e("s_lshl_b32 s3, s2, 2")
    a.e("v_lshlrev_b32 v2, 4, v0")
    a.e("s_add_u32 s3, s3, s60")
    a.e(f"s_mul_i32 s6, s3, {CH}")
    a.e("s_mul_hi_u32 s7, s3, 17895698")
    a.e("s_mul_i32 s8, s7, 240"); a.e("s_sub_u32 s8, s3, s8")
    a.e("s_mul_i32 s9, s8, 43691"); a.e("s_lshr_b32 s9, s9, 19")
    a.e("s_mul_i32 s10, s9, 12"); a.e("s_sub_u32 s10, s8, s10")
    for k in range(1, NSLOT // 4): a.e(f"v_add_u32 v{2+k}, {4096*k}, v2")
    a.raw_wait("s_waitcnt lgkmcnt(0)")
    if OPT["stamp"]: stamp(a, 0); stamp(a, 1, False)
    srd(a, 12, 28, "s6", CH)
    for u in range(NSLOT):
        a.e(f"buffer_load_dwordx4 {vr(20+4*u,4)}, v{2 + (u>>2)}, s[12:15], 0 offen offset:{(u&3)*1024}")
    a.e("s_and_b32 s16, s7, 15"); a.e("s_mul_i32 s16, s16, 491520")
    a.e("s_mul_i32 s17, s10, 40960"); a.e("s_add_u32 s16, s16, s17")
    a.e("s_lshr_b32 s17, s7, 4"); a.e("s_mul_i32 s17, s17, 1280"); a.e("s_add_u32 s16, s16, s17")
    a.e("s_lshl_b32 s17, s9, 6"); a.e("s_add_u32 s16, s16, s17")
    srd(a, 20, 4, "s16", 15 * 2560 + 64)
    a.e("v_and_b32 v1, 15, v0"); a.e("v_mul_u32_u24 v1, 2560, v1")
    a.e("v_lshrrev_b32 v6, 4, v0"); a.e("v_lshl_add_u32 v1, v6, 4, v1")
    for u in range(NSLOT):
        for r in range(4):
            s = 20 + 4*u + r
            if u == 0:
                a.e(f"v_lshlrev_b32 v{8+2*r}, 16, v{s}"); a.e(f"v_and_b32 v{9+2*r}, 0xffff0000, v{s}")
            else:
                a.e(f"v_lshlrev_b32 v6, 16, v{s}"); a.e(f"v_and_b32 v7, 0xffff0000, v{s}")
                a.e(f"v_add_f32 v{8+2*r}, v{8+2*r}, v6"); a.e(f"v_add_f32 v{9+2*r}, v{9+2*r}, v7")
    for r in range(4): a.e(f"v_cvt_pk_bf16_f32 v{16+r}, v{8+2*r}, v{9+2*r}")
    a.e("buffer_store_dwordx4 v[16:19], v1, s[20:23], 0 offen")
    if OPT["stamp"]:
        stamp(a, 9, False); stamp(a, 10); stamp_store(a, "L_r_end", 256)
    a.e("L_r_end:")
    a.e("s_endpgm")
    return a

HDR = f"""; Fused attention blocks A and B. main_kernel: one workgroup per 4 heads of a batch (Q projection, attention,
; @launch kernel=main_kernel grid=(256,1,1) block=(256,1,1) lds={LDS}
; @launch kernel=reduce_kernel grid=(1920,1,1) block=(256,1,1) lds=0
.amdgcn_target "amdgcn-amd-amdhsa--gfx950"
.text
"""
def kern(name, a):
    return f".globl {name}\n.p2align 8\n.type {name},@function\n{name}:\n" + a.text()
def desc(name, nv, acc, ns):
    return f""".p2align 6
.amdhsa_kernel {name}
  .amdhsa_next_free_vgpr {nv}
  .amdhsa_next_free_sgpr {ns}
  .amdhsa_accum_offset {acc}
  .amdhsa_group_segment_fixed_size 0
  .amdhsa_kernarg_size 104
  .amdhsa_user_sgpr_count 2
  .amdhsa_user_sgpr_kernarg_segment_ptr 1
  .amdhsa_system_sgpr_workgroup_id_x 1
  .amdhsa_float_denorm_mode_32 3
.end_amdhsa_kernel
"""
if __name__ == "__main__":
    a = main_kernel(); r = reduce_kernel()
    if OPT["nodma"] & 1: a.ins = [i for i in a.ins if not (i.kind == "dma" and " v1, " in i.text)]
    if OPT["nodma"] & 2: a.ins = [i for i in a.ins if not (i.kind == "dma" and " v1, " not in i.text)]
    if OPT["nodma"] & 4: a.ins = [i for i in a.ins if not (i.kind == "store" and "sc1" in i.text)]
    if OPT["strip"] == 2:
        i0 = [k for k, i in enumerate(a.ins) if i.text == "L_head:"][0]; i1 = [k for k, i in enumerate(a.ins) if i.text == "L_epi:"][0]
        a.ins = a.ins[:i0] + [Ins("s_nop 4") if i.kind == "mfma" else i for i in a.ins[i0:i1] if i.kind not in ("lds", "trans", "valu")] + a.ins[i1:]
    if OPT["strip"] == 1:
        i0 = [k for k, i in enumerate(a.ins) if i.text == "L_head:"][0]; i1 = [k for k, i in enumerate(a.ins) if i.text == "L_epi:"][0]
        a.ins = a.ins[:i0] + [i for i in a.ins[i0:i1] if i.kind not in ("mfma", "lds", "trans", "valu")] + a.ins[i1:]
    ns = 102 if OPT["stamp"] else NSGPR
    open(sys.argv[1], "w").write(HDR + kern("main_kernel", a) + kern("reduce_kernel", r) + '.section .rodata,"a"\n' + desc("main_kernel", 512, 256, ns) + desc("reduce_kernel", 20 + 4*NSLOT, 20 + 4*NSLOT, ns))
    print("instrs", len(a.ins), "nops", a.nops)
```

```python
import sys, math, struct
from asmlib import *

NAME = "concat_heads__mha_block_cached__gqa_block_cached__near_ridge"
def f32(x): return "0x%08x" % struct.unpack("<I", struct.pack("<f", x))[0]
OPT = dict(stamp=0, nodma=0, nocheck=0, touch=1, forceslow=0, map84=0, first=6, rot=1, strip=0, cyc=0, typ=0, track=1, nosync=0, sleep=8, lag=4, noack=0, noload=0, stpol=1, nolw=0, krot=1, norv=0, now0=0, gcap=0, qprof=0, la=6, ldpol=1, lmode=0, ldfix=0, nox2=0, wnt=0, xnt=0, t0x=0, t0w=0, ctouch=0, dbgout=0)
for a_ in sys.argv[2:]:
    k_, v_ = a_.split("="); assert k_ in OPT, k_; OPT[k_] = int(v_)

def R(x, n):
    t, i = x if isinstance(x, tuple) else ("v", x)
    return f"{t}{i}" if n == 1 else f"{t}[{i}:{i+n-1}]"
def off(x, d): return (x[0], x[1] + d) if isinstance(x, tuple) else x + d
def mf(d, a, b, c):
    return f"v_mfma_f32_16x16x32_bf16 {R(d,4)}, {R(a,4)}, {R(b,4)}, {'0' if c is None else R(c,4)}"

TILE = 8448
VB = 8 * TILE
XB = 16 * TILE
LDS = XB + 24576
NSLOT = {0: 8, 1: 16, 2: 12}[OPT["typ"]]
CH = NSLOT * 1024
PART = 240 * CH
STAMP_AT = 128 << 20
FLG = 120 << 20
SPIN_MAX = 200000
def slot(m):
    m %= 16
    return (m & 1), (m >> 1) * TILE

vKV, vKA, vVA, vWAl, vWAh, vW = 1, 2, 3, 4, 5, 6
vT = 7
QF, NM, S_, P_, KF, VF, O_ = 12, 60, 72, 96, 120, 136, 160
vX0, vX1, vXA0, vXA1 = 156, 157, 158, 159
vTo, vD, vPt, vWo = 152, 153, 154, 155
def Qf(j, ks): return QF + 16 * j + 4 * ks
def Nm(j): return NM + 4 * j
def Sr(u, j): return S_ + 12 * u + 4 * j
def Pr(buf, j): return P_ + 12 * buf + 4 * j
def Or(i, j): return O_ + 12 * i + 4 * j
def Wreg(buf, i): return 12 + 32 * buf + 4 * i
def Xreg(buf, j, s): return 76 + 24 * buf + 8 * j + 4 * s
def Qacc(pos, i, j):
    k = 12 * i + 4 * j
    if pos == 0: return ("a", k)
    if pos == 1: return ("a", 96 + k)
    if pos == 2: return ("a", 192 + k) if k < 64 else 124 + (k - 64)
    return O_ + k
QBANK = {3: 0, 2: 48, 1: 96}
OBANK = {0: 144, 1: 96, 2: 48, 3: 0}
def La(j): return ("a", 192 + 4 * j)
ONES = ("a", 204)
def Greg(buf, i): return ("a", 192 + 32 * buf + 4 * i)
sX, sW, sK, sV, sWo, sP = 32, 36, 40, 44, 48, 52
sWv, sKVL, sWL, sXL, sOff, sOff2, sTmp, sR, sCur, sT2, sT3 = 60, 61, 62, 63, 64, 65, 66, 67, 68, 69, 70
sB, sU, sBr, sG, sXo, sPo = 71, 72, 73, 74, 75, 76
sCX, sNX, sLast, sS8, sWoB, sTask, sTyp = 56, 57, 58, 59, 77, 30, 31
sWq, sGc = 26, 27
sWq1, sJ, sRot, sPM, sPK = 20, 21, 22, 23, 24
sH = [4, 5, 6, 7]
NSGPR = 80

def stamp(a, k, real=True):
    if not OPT["stamp"]: return
    lg = list(a.lg)
    a.raw_wait("s_waitcnt lgkmcnt(0)")
    if OPT["cyc"] and 2 <= k <= 8: real = False
    a._emit(f"{'s_memrealtime' if real else 's_memtime'} s[{80+2*k}:{81+2*k}]")
    a.raw_wait("s_waitcnt lgkmcnt(0)")
def stamp_dyn(a, base, sidx, n):
    if not OPT["stamp"]: return
    a.raw_wait("s_waitcnt lgkmcnt(0)")
    a._emit("s_memtime s[78:79]" if OPT["cyc"] else "s_memrealtime s[78:79]")
    a.raw_wait("s_waitcnt lgkmcnt(0)")
    for q in range(n):
        a.e(f"s_cmp_eq_u32 s{sidx}, {q}")
        a.e(f"s_cselect_b32 s{80+2*(base+q)}, s78, s{80+2*(base+q)}")
def stamp_store(a, label, base):
    if not OPT["stamp"]: return
    a.e(f"s_cmp_lg_u32 s{sWv}, 0")
    a.e(f"s_cbranch_scc1 {label}")
    for k in range(11): a.e(f"v_mov_b32 v{16+k}, s{80+2*k}")
    a.e("s_lshl_b32 s78, s2, 6"); a.e(f"s_add_u32 s78, s78, {STAMP_AT + base*64}")
    a.e("v_mov_b32 v28, s78")
    a.e("s_mov_b64 exec, 1")
    a.e("global_store_dwordx4 v28, v[16:19], s[28:29]")
    a.e("global_store_dwordx4 v28, v[20:23], s[28:29] offset:16")
    a.e("global_store_dwordx4 v28, v[24:27], s[28:29] offset:32")

def dbg_store(a):
    if not OPT["dbgout"]: return
    l = "L_dbgskip"
    a.e("s_and_b32 s78, s2, 0xdf"); a.e("s_cmp_lg_u32 s78, 5"); a.e(f"s_cbranch_scc1 {l}")
    a.e("s_load_dwordx2 s[24:25], s[0:1], 88")
    for n, k in enumerate((3,4,5,6,7,8,2,10)):
        a.e(f"s_sub_u32 s79, s{80+2*k}, s80"); a.e(f"v_mov_b32 v{32+n}, s79")
    a.e("s_and_b32 s78, s2, 32"); a.e("v_mov_b32 v29, s78")
    a.raw_wait("s_waitcnt lgkmcnt(0)")
    a.e("global_store_dwordx4 v29, v[32:35], s[24:25]")
    a.e("global_store_dwordx4 v29, v[36:39], s[24:25] offset:16")
    a.e(f"{l}:")

def srd(a, d, lo, o, size):
    a.e(f"s_add_u32 s{d}, s{lo}, {o}")
    a.e(f"s_addc_u32 s{d+1}, s{lo+1}, 0")
    a.e(f"s_and_b32 s{d+1}, s{d+1}, 0xffff")
    a.e(f"s_mov_b32 s{d+2}, {size}")
    a.e(f"s_mov_b32 s{d+3}, 0x20000")
_lbl = [0]
def newlabel(p):
    _lbl[0] += 1
    return f"L_{p}_{_lbl[0]}"
class U(str): pass

def ldsbase(m):
    h, o = slot(m); return h * VB + o
def w_tile(m, n):
    b = ldsbase(m); base = sWq if n < 16 else sWq1
    rel = ((n % 16) >> 2) * 262144 + (3 - (n & 3)) * 256
    pol = ' nt' if OPT['wnt'] else ''
    return [([f"s_xor_b32 s{sOff}, s{base}, {rel}", f"s_add_u32 m0, s{sWL}, {b}"], f"buffer_load_dwordx4 v{vW}, {sr(sW,4)}, s{sOff} offen{pol} lds"),
            ([f"s_xor_b32 s{sOff}, s{base}, {rel + 8192}", f"s_add_u32 m0, s{sWL}, {b + 1032}"], f"buffer_load_dwordx4 v{vW}, {sr(sW,4)}, s{sOff} offen{pol} lds")]
def kv_tile(m, t):
    b = ldsbase(m); s = sV if m & 1 else sK
    so = f"s_xor_b32 s{sOff}, s{sNX if t >= 16 else sCX}, {(t % 16) * 8192}"
    return [([so, f"s_add_u32 m0, s{sKVL}, {b}"], f"buffer_load_dwordx4 v{vKV}, {sr(s,4)}, s{sOff} offen nt lds"),
            ([f"s_add_u32 m0, s{sKVL}, {b + 32}"], f"buffer_load_dwordx4 v{vKV}, {sr(s,4)}, s{sOff} offen offset:1024 nt lds")]
def wo_tile(m, rel, base_s):
    b = ldsbase(m)
    def so(x): return f"s_add_u32 s{sOff}, s{base_s}, {x}" if base_s is not None else f"s_mov_b32 s{sOff}, {x}"
    return [([so(rel), f"s_add_u32 m0, s{sWL}, {b}"], f"buffer_load_dwordx4 v{vWo}, {sr(sWo,4)}, s{sOff} offen lds"),
            ([so(rel + 1280), f"s_add_u32 m0, s{sWL}, {b + 1032}"], f"buffer_load_dwordx4 v{vWo}, {sr(sWo,4)}, s{sOff} offen lds")]
def emit_tile(a, steps):
    for pre, d in steps:
        for x in pre: a.e(x)
        a._emit(d)
def place_tile(a, S, steps, gaps):
    for (pre, d), g in zip(steps, gaps):
        for k, x in enumerate(pre): S.h(g - len(pre) + k, x)
        S.v(g, lambda d=d: a._emit(d))
def rd_w(dst, m, i):
    h, o = slot(m); p, u = divmod(i, 2)
    return [f"ds_read_b64_tr_b16 {R(off(dst, 2*e), 2)}, v{(vWAl, vWAh)[h]} offset:{o + e*512 + p*64 + u*8}" for e in range(2)]
def vmw(a, n): a.raw_wait(f"s_waitcnt vmcnt({n})")

def rowred(a, op, regs, tmps):
    for w in (32, 16):
        for r, t in zip(regs, tmps): a.e(f"v_mov_b32 v{t}, v{r}")
        for r, t in zip(regs, tmps): a.e(f"v_permlane{w}_swap_b32 v{r}, v{t}")
        for r, t in zip(regs, tmps): a.e(f"{op} v{r}, v{r}, v{t}")

RDPOS = [0,1,2,3,4,5,7,8,9,10,12,13,14,15,17,18]
RDPOS_X = [2,3,5,6,8,9,11,12,14,15,16,17,18,19,20,21]

def code_touch(a, lo, hi, vaddr, vdst):
    if not OPT["ctouch"]: return
    l = newlabel("pc")
    a.e("s_getpc_b64 s[14:15]")
    a.e(f"{l}:")
    a.e(f"s_add_u32 s14, s14, {lo}-{l}"); a.e("s_addc_u32 s15, s15, 0")
    a.e(f"s_lshr_b32 s{sT2}, s2, 3"); a.e(f"s_lshl_b32 s{sT2}, s{sT2}, 2"); a.e(f"s_add_u32 s{sT2}, s{sT2}, s{sWv}"); a.e(f"s_lshl_b32 s{sT2}, s{sT2}, 7")
    a.e(f"v_and_b32 v{vaddr}, 3, v0"); a.e(f"v_lshlrev_b32 v{vaddr}, 14, v{vaddr}"); a.e(f"v_add_u32 v{vaddr}, s{sT2}, v{vaddr}")
    a.e(f"v_min_u32 v{vaddr}, {hi}-{lo}-4, v{vaddr}")
    a._emit(f"global_load_dword v{vdst}, v{vaddr}, s[14:15]")

def late_consts(a):
    a.e(f"v_min_u32 v{vTo}, 19, v0"); a.e(f"v_lshlrev_b32 v{vTo}, 7, v{vTo}")
    a.e(f"s_mul_i32 s{sTmp}, s{sB}, 10240"); a.e(f"s_mul_i32 s{sT2}, s{sWv}, 2560"); a.e(f"s_add_u32 s{sTmp}, s{sTmp}, s{sT2}")
    a.e(f"v_add_u32 v{vTo}, s{sTmp}, v{vTo}")
    a.e(f"s_mul_i32 s{sTmp}, s{sWv}, {3*CH}"); a.e(f"v_lshlrev_b32 v{vPt}, 4, v0"); a.e(f"v_add_u32 v{vPt}, s{sTmp}, v{vPt}")
    a.e("v_lshrrev_b32 v9, 4, v0"); a.e(f"s_lshl_b32 s{sTmp}, s{sWv}, 1"); a.e(f"v_lshl_add_u32 v9, v9, 3, s{sTmp}")
    a.e("v_mul_u32_u24 v9, 1280, v9"); a.e("v_and_b32 v8, 15, v0"); a.e(f"v_lshl_add_u32 v{vWo}, v8, 4, v9")

def x_block(j, rel, base_s, op="s_add_u32"):
    so = f"{op} s{sOff2}, s{base_s}, {rel + j*20480}" if base_s is not None else f"s_mov_b32 s{sOff2}, {rel + j*20480}"
    return [([so, f"s_add_u32 m0, s{sXL}, {j*2048}"], f"buffer_load_dwordx4 v{vX0}, {sr(sX,4)}, s{sOff2} offen{' nt' if OPT['xnt'] else ''} lds"),
            ([f"s_add_u32 m0, s{sXL}, {j*2048 + 1024}"], f"buffer_load_dwordx4 v{vX1}, {sr(sX,4)}, s{sOff2} offen{' nt' if OPT['xnt'] else ''} lds")]
def rd_xb(dst, j, s): return f"ds_read_b128 {R(dst,4)}, v{(vXA0, vXA1)[s]} offset:{j*2048}"

def end_sync(a, S, vm, keep=2):
    def w():
        n = min(len(a.lg), keep)
        a.raw_wait(f"s_waitcnt vmcnt({vm}) lgkmcnt({n})")
        a.lg = a.lg[len(a.lg) - n:] if n else []
    S.h(22, w); S.h(23, "s_barrier")

def convert(a, acc, dests, tmp):
    a.e(f"s_mov_b32 s{sTmp}, {f32(math.log2(math.e) / math.sqrt(128.0))}")
    k = 0
    for pos, db in enumerate(dests):
        for p in range(4):
            for j in range(3):
                t = tmp[k % len(tmp)]; k += 1
                src = []
                for u in range(2):
                    o = acc(pos, 2*p + u, j)
                    for r in range(4):
                        if isinstance(o, tuple):
                            a.e(f"v_accvgpr_read_b32 v{t+4*u+r}, a{o[1]+r}"); src.append(t + 4*u + r)
                        else: src.append(o + r)
                for x in src: a.e(f"v_mul_f32 v{x}, s{sTmp}, v{x}")
                d = Qf(j, p) if db is None else t + 8
                for r in range(4): a.e(f"v_cvt_pk_bf16_f32 v{d+r}, v{src[2*r]}, v{src[2*r+1]}")
                if db is not None:
                    for r in range(4): a.e(f"v_accvgpr_write_b32 a{db + 12*p + 4*j + r}, v{d+r}")

def gcv(m, h):
    i, j = divmod(m, 3); p, u = divmod(i, 2); o = Or(i, j)
    return f"v_cvt_pk_bf16_f32 v{S_ + 12*p + 4*j + 2*u + h}, v{o+2*h}, v{o+2*h+1}"
CVS = [gcv(m, h) for m in range(24) for h in range(2)]
def gst(q, rel, base_s):
    p, j = divmod(q, 3)
    return ([f"s_add_u32 s{sOff2}, s{base_s}, {rel + (p*12 + j)*CH}"], f"buffer_store_dwordx4 {vr(S_ + 12*p + 4*j,4)}, v{vPt}, {sr(sP,4)}, s{sOff2} offen{['', ' sc1', ' nt', ' sc0'][OPT['stpol']]}")
def cv_plans():
    caps = [0 if g in (6, 11) else (1 if g in RDPOS else 2) for g in range(24)]
    last = []; ci = 0
    for g, cp in enumerate(caps):
        for _ in range(cp):
            if ci < 48 and ci // 2 + 4 <= g: last.append((g, ci)); ci += 1
    n = ci; first = []
    for g, cp in enumerate(caps):
        for _ in range(cp):
            if ci < 48: first.append((g, ci)); ci += 1
    assert ci == 48 and all(c // 2 > g for g, c in first)
    return last, first, n
PLAN_LAST, PLAN_FIRST, NLAST = cv_plans()

def Q2acc(pos, i, j): return (56 if pos == 0 else O_) + 12 * i + 4 * j
def X2reg(c, j, s): return ("a", 24 * (c % 8) + 8 * j + 4 * s)
def w2rel(n): return (n >> 1) * 262144 + (1 - (n & 1)) * 256
def q2mf(n):
    s, pos = divmod(n, 2)
    return [mf(Q2acc(pos, i, j), Greg(n & 1, i), X2reg(s >> 1, j, s & 1), None if s == 0 else Q2acc(pos, i, j)) for i in range(8) for j in range(3)]

def main_kernel():
    a = Asm()
    T = OPT["typ"]
    a.e("s_cmp_ge_u32 s2, 256")
    a.e("s_cbranch_scc1 L_end")
    a.e("s_load_dwordx16 s[4:19], s[0:1], 0")
    a.e("s_load_dwordx4 s[20:23], s[0:1], 64")
    a.e("s_load_dwordx2 s[28:29], s[0:1], 96")
    a.e(f"s_bfe_u32 s{sBr}, s2, 0x10002")
    if not OPT["map84"]:
        a.e(f"s_and_b32 s{sB}, s2, 3"); a.e(f"s_lshl_b32 s{sB}, s{sB}, 2")
        a.e(f"s_bfe_u32 s{sTmp}, s2, 0x20003"); a.e(f"s_add_u32 s{sB}, s{sB}, s{sTmp}")
        a.e(f"s_lshr_b32 s{sU}, s2, 5")
    elif OPT["map84"] == 2:
        a.e(f"s_bfe_u32 s{sB}, s2, 0x40003")
        a.e(f"s_and_b32 s{sU}, s2, 3"); a.e(f"s_lshl_b32 s{sU}, s{sU}, 1")
        a.e(f"s_lshr_b32 s{sTmp}, s2, 7"); a.e(f"s_add_u32 s{sU}, s{sU}, s{sTmp}")
    else:
        a.e(f"s_and_b32 s{sB}, s2, 1"); a.e(f"s_lshl_b32 s{sB}, s{sB}, 3")
        a.e(f"s_bfe_u32 s{sTmp}, s2, 0x30003"); a.e(f"s_add_u32 s{sB}, s{sB}, s{sTmp}")
        a.e(f"s_bfe_u32 s{sU}, s2, 0x10001"); a.e(f"s_lshl_b32 s{sU}, s{sU}, 2")
        a.e(f"s_lshr_b32 s{sTmp}, s2, 6"); a.e(f"s_add_u32 s{sU}, s{sU}, s{sTmp}")
    a.e(f"s_lshl_b32 s{sG}, s{sBr}, 4"); a.e(f"s_add_u32 s{sG}, s{sG}, s{sB}")
    if T == 2: a.e(f"s_and_b32 s{sTyp}, s{sU}, 1")
    else: a.e(f"s_mov_b32 s{sTyp}, {T}")
    a.e("v_lshrrev_b32 v7, 6, v0")
    a.e("v_and_b32 v0, 63, v0")
    a.e(f"v_readfirstlane_b32 s{sWv}, v7")
    a.e("v_and_b32 v8, 15, v0")
    a.e("v_lshrrev_b32 v9, 4, v0")
    a.e("v_and_b32 v10, 1, v9"); a.e("v_lshlrev_b32 v10, 4, v10")
    a.e("v_lshrrev_b32 v11, 1, v9"); a.e("v_lshl_add_u32 v10, v11, 2, v10")
    a.e("v_lshrrev_b32 v11, 1, v7"); a.e("v_lshl_add_u32 v10, v11, 3, v10")
    a.e("v_and_b32 v11, 1, v7"); a.e("v_lshl_add_u32 v10, v11, 1, v10")
    a.e("v_lshlrev_b32 v10, 13, v10"); a.e(f"v_lshl_add_u32 v{vW}, v8, 4, v10")
    a.e("v_mul_u32_u24 v10, 48, v7"); a.e("v_lshrrev_b32 v11, 3, v0"); a.e("v_add_u32 v10, v10, v11")
    a.e("v_mul_u32_u24 v10, 1280, v10")
    a.e("v_and_b32 v11, 7, v0"); a.e("v_xor_b32 v11, v11, v9")
    a.e(f"v_lshl_add_u32 v{vX0}, v11, 4, v10")
    a.e("v_xor_b32 v11, 4, v11"); a.e("v_add_u32 v10, 10240, v10")
    a.e(f"v_lshl_add_u32 v{vX1}, v11, 4, v10")
    a.e(f"s_mul_i32 s{sKVL}, s{sWv}, 2112")
    a.e(f"s_mov_b32 s{sWL}, s{sKVL}")
    a.e(f"s_mul_i32 s{sXL}, s{sWv}, 6144"); a.e(f"s_add_u32 s{sXL}, s{sXL}, {XB}")
    a.e(f"s_mov_b32 s{sCur}, 0"); a.e(f"s_mov_b32 s{sXo}, 0"); a.e(f"s_mov_b32 s{sWq}, 0")
    a.raw_wait("s_waitcnt lgkmcnt(0)")
    a.e(f"s_cmp_eq_u32 s{sBr}, 0")
    a.e("s_cselect_b64 s[4:5], s[4:5], s[14:15]")
    a.e("s_cselect_b64 s[6:7], s[6:7], s[16:17]")
    a.e("s_cselect_b64 s[8:9], s[8:9], s[18:19]")
    a.e("s_cselect_b64 s[10:11], s[10:11], s[20:21]")
    a.e("s_cselect_b64 s[12:13], s[12:13], s[22:23]")
    a.e("s_load_dwordx4 s[16:19], s[0:1], 80")
    a.e(f"s_mul_i32 s{sTmp}, s{sB}, 245760")
    srd(a, sX, 4, f"s{sTmp}", 245760)
    a.e(f"s_lshl_b32 s{sTmp}, s{sU}, 10")
    srd(a, sW, 10, f"s{sTmp}", 639 * 8192 + 1024)
    if OPT["krot"]: a.e(f"s_xor_b32 s{sJ}, s{sB}, s{sU}"); a.e(f"s_and_b32 s{sJ}, s{sJ}, 3")
    else: a.e(f"s_mov_b32 s{sJ}, 0")
    a.e(f"s_mul_i32 s{sWq}, s{sJ}, {262144 + 256}"); a.e(f"s_add_u32 s{sWq1}, s{sWq}, {1 << 20}")
    a.e(f"s_lshr_b32 s{sXo}, s{sJ}, 1"); a.e(f"s_lshl_b32 s{sXo}, s{sXo}, 7")
    stamp(a, 0); stamp(a, 1, False)
    for j in range(3): emit_tile(a, x_block(j, 0, sXo))
    def common_consts():
        if OPT["rot"]:
            a.e(f"s_lshr_b32 s{sRot}, s2, 4"); a.e(f"s_xor_b32 s{sRot}, s{sRot}, s2"); a.e(f"s_and_b32 s{sRot}, s{sRot}, 15"); a.e(f"s_lshl_b32 s{sRot}, s{sRot}, 13")
        else: a.e(f"s_mov_b32 s{sRot}, 0")
        a.e(f"s_lshl_b32 s{sCur}, s{sJ}, 17"); a.e(f"s_or_b32 s{sRot}, s{sRot}, s{sCur}")
        a.e(f"s_mov_b32 s{sCX}, s{sRot}"); a.e(f"s_xor_b32 s{sNX}, s{sRot}, 131072")
        a.e("v_bfe_u32 v10, v0, 2, 3")
        a.e("v_lshrrev_b32 v11, 1, v10"); a.e("v_lshlrev_b32 v11, 6, v11"); a.e(f"v_lshl_add_u32 v{vWAl}, v10, 10, v11")
        a.e("v_and_b32 v11, 1, v10"); a.e(f"v_lshl_add_u32 v{vWAl}, v11, 3, v{vWAl}")
        a.e("v_lshrrev_b32 v11, 5, v0"); a.e(f"v_lshl_add_u32 v{vWAl}, v11, 8, v{vWAl}")
        a.e("v_mul_u32_u24 v10, 1056, v10"); a.e("v_lshl_add_u32 v10, v11, 8, v10")
        a.e("v_and_b32 v11, 3, v0"); a.e(f"v_lshl_add_u32 v{vWAl}, v11, 4, v{vWAl}")
        a.e(f"v_lshl_add_u32 v10, v11, 3, v10"); a.e(f"v_add_u32 v{vVA}, {VB}, v10")
        a.e(f"v_add_u32 v{vWAh}, {VB}, v{vWAl}")
        a.e("v_and_b32 v10, 7, v8"); a.e("v_mul_u32_u24 v10, 1056, v10")
        a.e("v_lshrrev_b32 v11, 3, v8"); a.e(f"v_lshl_add_u32 v10, v11, 8, v10")
        a.e(f"v_lshl_add_u32 v{vKA}, v9, 4, v10")
        a.e("v_lshlrev_b32 v10, 4, v0"); a.e(f"v_lshl_add_u32 v{vKV}, v7, 11, v10")
        a.e(f"v_lshlrev_b32 v10, 7, v8"); a.e(f"v_add_u32 v10, s{sXL}, v10")
        a.e("v_lshrrev_b32 v11, 1, v8"); a.e("v_xor_b32 v11, v11, v9")
        a.e(f"s_and_b32 s{sTmp}, s{sJ}, 1"); a.e(f"s_lshl_b32 s{sTmp}, s{sTmp}, 2"); a.e(f"v_xor_b32 v11, s{sTmp}, v11")
        a.e(f"v_lshl_add_u32 v{vXA0}, v11, 4, v10")
        a.e("v_xor_b32 v11, 4, v11"); a.e(f"v_lshl_add_u32 v{vXA1}, v11, 4, v10")
        a.e(f"s_lshl_b32 s{sTmp}, s{sB}, 3"); a.e(f"s_add_u32 s{sTmp}, s{sTmp}, s{sU}"); a.e(f"s_lshl_b32 s{sTmp}, s{sTmp}, 19")
        srd(a, sK, 6, f"s{sTmp}", 4 * 131072)
        srd(a, sV, 8, f"s{sTmp}", 4 * 131072)
        a.e(f"s_mul_i32 s{sTmp}, s{sU}, {512*1280}")
        srd(a, sWo, 12, f"s{sTmp}", 512 * 1280)
        for r in range(4): a.e(f"s_xor_b32 s{sH[r]}, s{sJ}, {r}"); a.e(f"s_mul_i32 s{sH[r]}, s{sH[r]}, 163840")
        a.e(f"s_mov_b32 s{sPM}, s{sKVL}"); a.e(f"s_mov_b32 s{sPK}, 0")
    def touch0(three):
        if OPT["t0x"]:
            a.e("v_min_u32 v10, 59, v0"); a.e("v_lshlrev_b32 v10, 7, v10")
            a.e(f"s_lshl_b32 s{sTmp}, s{sU}, 2"); a.e(f"s_add_u32 s{sTmp}, s{sTmp}, s{sWv}"); a.e(f"s_mul_i32 s{sTmp}, s{sTmp}, 7680")
            a._emit(f"buffer_load_dword v11, v10, {sr(sX,4)}, s{sTmp} offen")
        if OPT["t0w"] and three:
            a.e("v_lshrrev_b32 v14, 2, v0"); a.e("v_lshlrev_b32 v14, 13, v14"); a.e("v_and_b32 v15, 3, v0"); a.e("v_lshl_add_u32 v14, v15, 7, v14")
            a.e(f"s_and_b32 s{sTmp}, s{sB}, 3"); a.e(f"s_lshl_b32 s{sTmp}, s{sTmp}, 2"); a.e(f"s_add_u32 s{sTmp}, s{sTmp}, s{sWv}"); a.e(f"s_lshl_b32 s{sTmp}, s{sTmp}, 17")
            for k in range(3):
                a.e(f"s_add_u32 s{sT2}, s{sTmp}, {k*256*8192}")
                a._emit(f"buffer_load_dword v{16+k}, v14, {sr(sW,4)}, s{sT2} offen")
    def part_srd(slot_expr, size):
        a.e(f"s_mul_i32 s{sTmp}, s{sG}, {PART}"); slot_expr(); a.e(f"s_lshl_b32 s{sT2}, s{sT2}, 10"); a.e(f"s_add_u32 s{sTmp}, s{sTmp}, s{sT2}")
        srd(a, sP, 28, f"s{sTmp}", size)
    NF = OPT["first"]
    LA = OPT['la']
    def wpos(n): return 8 + n % 8
    def rd_x(buf): return [rd_xb(Xreg(buf, j, s), j, s) for s in range(2) for j in range(3)]
    NF = 2
    for n in range(NF): emit_tile(a, w_tile(wpos(n), n))
    common_consts()
    touch0(False)
    code_touch(a, "L_q", "L_slow" if OPT["ctouch"] & 2 == 0 else "L_g", 10, 11)
    a.e(f"s_lshl_b32 s{sTmp}, s{sG}, 3"); a.e(f"s_add_u32 s{sTmp}, s{sTmp}, s{sU}"); a.e(f"s_lshl_b32 s{sTmp}, s{sTmp}, 8"); a.e(f"s_add_u32 s{sTmp}, s{sTmp}, {FLG}")
    a.e("v_and_b32 v8, 7, v0"); a.e(f"v_lshl_add_u32 v8, v8, 2, s{sTmp}"); a.e("v_mov_b32 v9, 0")
    l = newlabel("clr")
    a.e(f"s_cmp_lg_u32 s{sWv}, 0"); a.e(f"s_cbranch_scc1 {l}")
    a._emit("global_store_dword v8, v9, s[28:29] sc1")
    a.e(f"{l}:")
    part_srd(lambda: a.e(f"s_lshr_b32 s{sT2}, s{sU}, {1 if T == 2 else 0}"), 0)
    a.e(f"s_mov_b32 s{sLast}, 3"); a.e(f"s_mov_b32 s{sS8}, {8*40960}")
    for r in range(256):
        if r % 40 == 0 and NF + r // 40 < LA: emit_tile(a, w_tile(wpos(NF + r // 40), NF + r // 40))
        a.e(f"v_accvgpr_write_b32 a{r}, 0")
    for r in list(range(124, 156)) + list(range(160, 256)): a.e(f"v_mov_b32 v{r}, 0")
    a.raw_wait(f"s_waitcnt vmcnt({2 * (LA - 2)}) lgkmcnt(0)")
    a.e("s_barrier")
    for r in rd_x(0): a.e(r)
    for i in range(8):
        for r in rd_w(Wreg(0, i), wpos(0), i): a.e(r)
    a.raw_wait("s_waitcnt lgkmcnt(0)"); a.lg = []
    if OPT["qprof"] == 1: stamp(a, 5); stamp(a, 6, False)
    def qmf(n):
        s, pos = divmod(n % 16, 4)
        return [mf(Qacc(pos, i, j), Wreg(n & 1, i), Xreg((s >> 1) & 1, j, s & 1), Qacc(pos, i, j)) for i in range(8) for j in range(3)]
    def kv_early(isv):
        s = sV if isv else sK; b = VB if isv else 0
        return [([f"s_xor_b32 s{sOff2}, s{sCX}, s{sPK}", f"s_add_u32 m0, s{sPM}, {b}"], f"buffer_load_dwordx4 v{vKV}, {sr(s,4)}, s{sOff2} offen nt lds"),
                ([f"s_add_u32 m0, s{sPM}, {b + 32}"], f"buffer_load_dwordx4 v{vKV}, {sr(s,4)}, s{sOff2} offen offset:1024 nt lds")]
    def q_group(last):
        for n in range(16):
            a.c(f"Q sub-step {n}{' (last group)' if last else ''}")
            S = Sched(a, qmf(n))
            fin = last and n == 15
            q = n % 8
            xrd = q in (6, 7) and not (last and n >= 8)
            if not fin:
                rds = []
                for i in range(8): rds += rd_w(Wreg((n + 1) & 1, i), wpos(n + 1), i)
                for r, p in zip(rds, RDPOS): S.v(p, r)
                m = n + LA
                if not last or m < 16: place_tile(a, S, w_tile(wpos(m), m), (6, 11))
                if last and 9 <= n <= 13: place_tile(a, S, kv_tile(n - 1, (n - 1) >> 1), (16, 19))
                if not (last and n == 14):
                    hi = min(m, 15) if last else m
                    ykv = len([k for k in range(9, 14) if n + 2 - LA <= k <= n]) if last else 0
                    end_sync(a, S, 2 * (hi - (n + 2)) + 2 * ykv, 5 if xrd else 2)
            if xrd:
                rx = rd_x(((n >> 3) + 1) & 1)[3*(q-6):3*(q-6)+3]
                if q == 6: S.h(16, lambda: vmw(a, 8))
                for r, p in zip(rx, (19, 20, 21)): S.v(p, (r, "xr"))
            if q in (0, 1, 2) and not (last and n >= 8):
                if q == 0: S.h(12, lambda: a.wait(lg="xr"))
                place_tile(a, S, x_block(q, 128, sXo, "s_xor_b32") if n < 8 else x_block(q, 256, sXo), (16, 19))
            if n in (11, 12) and not last: place_tile(a, S, kv_early(n == 12), (16, 19))
            if n == 15 and not last:
                S.h(1, f"s_add_u32 s{sPM}, s{sPM}, {TILE}")
                S.h(2, f"s_add_u32 s{sPK}, s{sPK}, 8192")
                S.h(12, f"s_mov_b32 s{sWq}, s{sWq1}")
                S.h(13, f"s_add_u32 s{sWq1}, s{sWq1}, {1 << 20}")
                S.h(14, f"s_add_u32 s{sXo}, s{sXo}, 256")
                S.h(15, f"s_cmp_lt_u32 s{sXo}, 1024")
            S.emit(None if fin else qmf(n + 1)[0])
    a.e(".p2align 6")
    a.e("L_q:")
    if OPT["qprof"] == 3:
        a.e(f"s_lshr_b32 s{sT3}, s{sXo}, 8"); stamp_dyn(a, 4, sT3, 4)
    mark = len(a.ins); nops0 = a.nops
    q_group(False)
    lg_end = list(a.lg)
    del a.ins[mark:]; a.nops = nops0
    q_group(False)
    assert a.lg == lg_end
    a.e("s_cbranch_scc1 L_q")
    if OPT["qprof"] == 3: stamp(a, 8)
    q_group(True)
    if OPT["qprof"] == 1: stamp(a, 7); stamp(a, 8, False)
    stamp(a, 3)
    a.c("Q conversion")
    convert(a, Qacc, [QBANK[3], QBANK[2], QBANK[1], None], [60 + 12 * k for k in range(5)])
    late_consts(a)
    l = newlabel("boot")
    a.e(f"s_cmp_lg_u32 s{sWv}, 0"); a.e(f"s_cbranch_scc1 {l}")
    a.e(f"s_lshl_b32 s{sTmp}, s{sG}, 2"); a.e(f"s_add_u32 s{sTmp}, s{sTmp}, 128")
    a.e(f"v_mov_b32 v157, s{sTmp}"); a.e("v_mov_b32 v158, 1")
    a.e("s_mov_b64 exec, 1")
    a._emit("global_atomic_add v157, v158, s[18:19]")
    a.e("s_mov_b64 exec, -1")
    a.e(f"{l}:")
    a.e("L_enter:")
    a.e(f"v_mov_b32 v{vT}, 0x3f803f80")
    for r in range(4): a.e(f"v_accvgpr_write_b32 a{ONES[1]+r}, v{vT}")
    a.e(f"s_mov_b32 s{sR}, 0")
    def rd_k(dst, t, u): return [f"ds_read_b128 {vr(dst + 4*ks,4)}, v{vKA} offset:{(t % 8)*TILE + u*512 + ks*64}" for ks in range(4)]
    def rd_v(t, half, fr=VF):
        return [f"ds_read_b64_tr_b16 {vr(fr + 4*i + 2*e, 2)}, v{vVA} offset:{(t % 8)*TILE + e*512 + (4*half+i)*32}" for i in range(4) for e in range(2)]
    vmw(a, 10)
    a.e("s_barrier")
    a.lg = []
    for r in rd_k(VF, 0, 1) + rd_k(KF, 0, 0): a.e(r)
    if OPT["qprof"] < 3: stamp(a, 4)
    def ex(u, k): j, r = divmod(k, 4); s = Sr(u, j) + r; return f"v_exp_f32 v{s}, v{s}"
    def cv(u, buf, c): j, h = divmod(c, 2); s = Sr(u, j) + 2*h; return f"v_cvt_pk_bf16_f32 v{Pr(buf,j) + 2*u + h}, v{s}, v{s+1}"
    def qk(u): return [mf(Sr(u, j), KF + 4*ks, Qf(j, ks), Nm(j) if ks == 0 else Sr(u, j)) for j in range(3) for ks in range(4)]
    def pv(t, half, fr=VF): return [mf(Or(4*half + i, j), fr + 4*i, Pr(t & 1, j), None if t == 0 else Or(4*half + i, j)) for i in range(4) for j in range(3)]
    def sm(t): return [mf(La(j), ONES, Pr(t & 1, j), None if t == 0 else La(j)) for j in range(3)]
    oob = []
    def wo_first(n):
        return wo_tile(n, (n % 4) * 40960, sH[n // 4])
    def stream_tile(S, m, gaps):
        kv = kv_tile(m, m >> 1)
        if m < 32:
            place_tile(a, S, kv, gaps); return
        for (pre, d), (pre2, d2), g in zip(kv, wo_first(m - 32), gaps):
            for k, x in enumerate(pre): S.h(g - len(pre) + k, x)
            l0, l1 = newlabel("wo"), newlabel("back")
            def site(d=d, l0=l0, l1=l1):
                a.e(f"s_cbranch_vccnz {l0}"); a._emit(d); a.e(f"{l1}:")
            S.v(g, site)
            oob.append((l0, l1, pre2, d2))
    def tail_vec(S, u, buf, rds):
        pos = [0, 1, 4, 5, 8, 9, 10, 11]
        for r, p in zip(rds, pos): S.v(p, r)
        for k, p in zip(range(8, 12), (2, 3, 6, 7)): S.v(p, ex(u, k))
        for c, p in zip(range(6), (0, 1, 4, 5, 8, 9)): S.v(p, cv(u, buf, c))
    a.e(".p2align 6")
    a.e("L_head:")
    a.c("tile 0: scores and stand-in row max (max over the first 32 keys)")
    a.e(f"s_cmp_eq_u32 s{sR}, s{sLast}")
    for u, kf in ((1, VF), (0, KF)):
        for j in range(3):
            for ks in range(4):
                a.e(mf(Sr(u, j), kf + 4*ks, Qf(j, ks), None if ks == 0 else Sr(u, j)))
    a.e("s_cselect_b64 vcc, -1, 0")
    vmw(a, 20)
    a.e("s_barrier")
    for r in rd_k(KF, 1, 0): a.e(r)
    emit_tile(a, kv_tile(13, 6)); emit_tile(a, kv_tile(14, 7))
    if OPT["touch"]:
        a.e(f"s_mul_i32 s{sT2}, s{sR}, 163840")
        a._emit(f"buffer_load_dword v{vD}, v{vTo}, {sr(sWo,4)}, s{sT2} offen")
    if OPT["ctouch"] & 2:
        l = newlabel("ct")
        a.e(f"s_cbranch_vccz {l}")
        code_touch(a, "L_g", "L_slow", 158, 159)
        a.e(f"{l}:")
    l = newlabel("bp")
    a.e(f"s_xor_b32 s{sT2}, s{sR}, 3"); a.e(f"s_or_b32 s{sT2}, s{sT2}, s{sWv}"); a.e(f"s_cbranch_scc1 {l}")
    a._emit("global_load_dword v156, v157, s[18:19] sc1")
    a.e(f"{l}:")
    for j in range(3):
        n = Nm(j); s0 = Sr(0, j); s1 = Sr(1, j)
        a.e(f"v_max3_f32 v{n}, v{s1}, v{s1+1}, v{s1+2}")
        a.e(f"v_max3_f32 v{n+1}, v{s1+3}, v{s0}, v{s0+1}")
        a.e(f"v_max3_f32 v{n}, v{n}, v{s0+2}, v{s0+3}")
        a.e(f"v_max_f32 v{n}, v{n}, v{n+1}")
    rowred(a, "v_max_f32", [Nm(j) for j in range(3)], [Nm(j) + 1 for j in range(3)])
    for j in range(3):
        n = Nm(j)
        a.e(f"v_sub_f32 v{n}, 0, v{n}")
        for r in range(1, 4): a.e(f"v_mov_b32 v{n+r}, v{n}")
    for u in range(2):
        for j in range(3):
            for r in range(4): a.e(f"v_add_f32 v{Sr(u,j)+r}, v{Sr(u,j)+r}, v{Nm(j)}")
    for k in range(12): a.e(ex(0, k))
    for k in range(8): a.e(ex(1, k))
    for c in range(6): a.e(cv(0, 0, c))
    for t in range(15):
        a.c(f"stage {t}")
        S = Sched(a, qk(0)); tail_vec(S, 1, t & 1, rd_v(t, 0)); S.emit(pv(t, 0)[0])
        S = Sched(a, pv(t, 0))
        for r, p in zip(rd_k(KF, t+1, 1), (0, 1, 2, 3)): S.v(p, r)
        for k, p in zip(range(8), range(4, 12)): S.v(p, ex(0, k))
        S.h(10, lambda: a.wait(lg="all"))
        S.emit(qk(1)[0])
        S = Sched(a, qk(1)); tail_vec(S, 0, (t+1) & 1, rd_v(t, 1))
        S.h(11, lambda: vmw(a, 20))
        S.emit(None)
        S = Sched(a, sm(t) + pv(t, 1))
        S.h(0, "s_barrier")
        if t + 2 < 16:
            for r, p in zip(rd_k(KF, t+2, 0), (0, 1, 2, 3)): S.v(p, r)
        for k, p in zip(range(8), (3, 4, 6, 7, 9, 10, 12, 13)): S.v(p, ex(1, k))
        stream_tile(S, 2*(t+7) + 1, (5, 8))
        stream_tile(S, 2*(t+8), (11, 14))
        S.h(12, lambda: a.wait(lg="all"))
        S.emit(qk(0)[0] if t < 14 else None)
    a.c("stage 15")
    for r in rd_v(15, 0): a.e(r)
    for k in range(8, 12): a.e(ex(1, k))
    for c in range(6): a.e(cv(1, 1, c))
    S = Sched(a, sm(15) + pv(15, 0))
    for r, p in zip(rd_v(15, 1, KF), range(8)): S.v(p, r)
    S.emit(pv(15, 1, KF)[0])
    S = Sched(a, pv(15, 1, KF))
    for j in range(3): S.v(j, f"v_accvgpr_read_b32 v{vT+j}, a{La(j)[1]}")
    S.v(3, f"v_add_f32 v{vT+3}, v{vT}, v{vT+1}"); S.v(4, f"v_add_f32 v{vT+3}, v{vT+3}, v{vT+2}")
    S.v(5, f"v_mov_b32 v{vT+4}, {f32(2.0**30 if not OPT['forceslow'] else 150.0)}")
    S.v(6, f"v_cmp_nle_f32 vcc, v{vT+3}, v{vT+4}")
    S.emit(None)
    assert not a.lg
    if not OPT["nocheck"]: a.e("s_cbranch_vccnz L_slow")
    a.e("L_epi:")
    for r in rd_k(VF, 0, 1) + rd_k(KF, 0, 0): a.e(r)
    for j in range(3): a.e(f"v_rcp_f32 v{vT+j}, v{vT+j}")
    for p in range(4):
        for j in range(3):
            d = Qf(j, p)
            for u in range(2):
                o = Or(2*p + u, j)
                for r in range(4): a.e(f"v_mul_f32 v{o+r}, v{o+r}, v{vT+j}")
                a.e(f"v_cvt_pk_bf16_f32 v{d+2*u}, v{o}, v{o+1}")
                a.e(f"v_cvt_pk_bf16_f32 v{d+2*u+1}, v{o+2}, v{o+3}")
    if OPT["stamp"]:
        if not OPT['qprof']: stamp_dyn(a, 5, sR, 4)
    a.e(f"s_and_b32 s{sCur}, s{sNX}, 0x60000")
    a.e(f"s_mov_b32 s{sCX}, s{sNX}")
    a.e(f"s_add_u32 s{sT2}, s{sR}, 2"); a.e(f"s_and_b32 s{sT2}, s{sT2}, 3"); a.e(f"s_lshl_b32 s{sT2}, s{sT2}, 17"); a.e(f"s_xor_b32 s{sNX}, s{sRot}, s{sT2}")
    a.e(f"s_add_u32 s{sR}, s{sR}, 1")
    a.e(f"s_cmp_gt_u32 s{sR}, s{sLast}"); a.e("s_cbranch_scc1 L_g")
    a.e(f"s_cmp_eq_u32 s{sR}, 3"); a.e("s_cbranch_scc1 L_sw2")
    a.e(f"s_cmp_eq_u32 s{sR}, 2"); a.e("s_cbranch_scc1 L_sw1")
    for r in range(3):
        a.e(f"L_sw{r}:")
        for p in range(4):
            for j in range(3):
                for x in range(4): a.e(f"v_accvgpr_write_b32 a{OBANK[r] + 12*p + 4*j + x}, v{Qf(j,p)+x}")
        for p in range(4):
            for j in range(3):
                for x in range(4): a.e(f"v_accvgpr_read_b32 v{Qf(j,p)+x}, a{QBANK[r+1] + 12*p + 4*j + x}")
        a.e("s_nop 0")
        a.e("s_branch L_head")
    for l0, l1, pre2, d2 in oob:
        a.e(f"{l0}:")
        for x in pre2: a.e(x)
        a._emit(d2)
        a.e(f"s_branch {l1}")
    sPr, sOut, sRo, sRo2, sOo, sW0 = sX, sW, sCX, sNX, sLast, sS8
    LA, LB, ACC = 12, 44, 60
    vRA, vRB, vOA, vOB, vFl, vFi, vPoll, vVal, TM, PK = 120, 121, 122, 123, 124, 125, 126, 127, 128, 132
    def spin(need, addr, val, base, pre_wait):
        if OPT["nosync"]: return
        l0, l1 = newlabel("spin"), newlabel("ok")
        a.raw_wait(pre_wait)
        a.e(f"s_mov_b32 s{sT3}, 0")
        a.e(f"{l0}:")
        a._emit(f"v_cmp_gt_u32 vcc, {need}, v{val}")
        a._emit("s_nop 4")
        a.e(f"s_cbranch_vccz {l1}")
        a.e(f"s_add_u32 s{sT3}, s{sT3}, 1")
        a.e(f"s_cmp_ge_u32 s{sT3}, {SPIN_MAX}")
        a.e(f"s_cbranch_scc1 {l1}")
        a.e(f"s_sleep {OPT['sleep']}")
        a._emit(f"global_load_dword v{val}, v{addr}, {base} sc1")
        a.raw_wait("s_waitcnt vmcnt(0)")
        a.e(f"s_branch {l0}")
        a.e(f"{l1}:")
    def flag_store():
        a.e("s_mov_b64 exec, 0xff")
        a._emit(f"global_store_dword v{vFl}, v{vVal}, s[28:29] sc1")
        a.e("s_mov_b64 exec, -1")
    a.e(".p2align 6")
    a.e("L_g:")
    a.lg = []
    a.raw_wait("s_waitcnt vmcnt(22) lgkmcnt(0)")
    a.e("s_barrier")
    for i in range(8):
        for r in rd_w(Greg(0, i), 0, i): a.e(r)
    emit_tile(a, wo_first(13)); emit_tile(a, wo_first(14))
    for p in range(4):
        for j in range(3):
            for x in range(4): a.e(f"v_accvgpr_write_b32 a{OBANK[3] + 12*p + 4*j + x}, v{Qf(j,p)+x}")
    a.e(f"s_mul_i32 s{sTmp}, s{sG}, {PART}"); a.e(f"s_mul_i32 s{sT2}, s{sU}, {6*CH}"); a.e(f"s_add_u32 s{sTmp}, s{sTmp}, s{sT2}")
    srd(a, sPr, 28, f"s{sTmp}", 0)
    a.e(f"s_mul_i32 s{sTmp}, s{sB}, 491520"); a.e(f"s_and_b32 s{sT2}, s{sU}, 1"); a.e(f"s_mul_i32 s{sT2}, s{sT2}, 245760"); a.e(f"s_add_u32 s{sTmp}, s{sTmp}, s{sT2}")
    a.e(f"s_mul_i32 s{sT2}, s{sBr}, 1280"); a.e(f"s_add_u32 s{sTmp}, s{sTmp}, s{sT2}")
    a.e(f"s_lshr_b32 s{sT2}, s{sU}, 1"); a.e(f"s_lshl_b32 s{sT2}, s{sT2}, 6"); a.e(f"s_add_u32 s{sTmp}, s{sTmp}, s{sT2}")
    srd(a, sOut, 16, f"s{sTmp}", 0)
    a.e(f"s_mul_i32 s{sTmp}, s{sWv}, {CH}"); a.e(f"v_lshl_add_u32 v{vRA}, v0, 4, s{sTmp}")
    a.e(f"s_lshr_b32 s{sTmp}, s{sWv}, 1"); a.e(f"s_add_u32 s{sTmp}, s{sTmp}, 4"); a.e(f"s_mul_i32 s{sT3}, s{sTmp}, {CH}")
    a.e(f"s_and_b32 s{sT2}, s{sWv}, 1"); a.e(f"s_lshl_b32 s{sOff}, s{sT2}, 9"); a.e(f"s_add_u32 s{sT3}, s{sT3}, s{sOff}")
    a.e(f"v_lshl_add_u32 v{vRB}, v0, 3, s{sT3}")
    a.e(f"v_and_b32 v{TM}, 15, v0"); a.e(f"v_mul_u32_u24 v{TM}, 2560, v{TM}"); a.e(f"v_lshrrev_b32 v{TM+1}, 4, v0"); a.e(f"v_lshl_add_u32 v{TM}, v{TM+1}, 4, v{TM}")
    a.e(f"s_mul_i32 s{sT3}, s{sWv}, 40960"); a.e(f"v_add_u32 v{vOA}, s{sT3}, v{TM}")
    a.e(f"v_bfe_u32 v{TM}, v0, 1, 4"); a.e(f"v_mul_u32_u24 v{TM}, 2560, v{TM}"); a.e(f"v_lshrrev_b32 v{TM+1}, 5, v0"); a.e(f"v_lshl_add_u32 v{TM}, v{TM+1}, 4, v{TM}")
    a.e(f"v_and_b32 v{TM+1}, 1, v0"); a.e(f"v_lshl_add_u32 v{TM}, v{TM+1}, 3, v{TM}")
    a.e(f"s_mul_i32 s{sT3}, s{sTmp}, 40960"); a.e(f"s_lshl_b32 s{sT2}, s{sT2}, 5"); a.e(f"s_add_u32 s{sT3}, s{sT3}, s{sT2}")
    a.e(f"v_add_u32 v{vOB}, s{sT3}, v{TM}")
    a.e(f"v_and_b32 v{TM}, 7, v0")
    a.e(f"s_lshl_b32 s{sTmp}, s{sG}, 11"); a.e(f"s_add_u32 s{sTmp}, s{sTmp}, {FLG}")
    a.e(f"s_lshl_b32 s{sT2}, s{sU}, 2"); a.e(f"s_add_u32 s{sT2}, s{sT2}, s{sTmp}"); a.e(f"v_lshl_add_u32 v{vFl}, v{TM}, 8, s{sT2}")
    a.e(f"s_lshl_b32 s{sT2}, s{sU}, 8"); a.e(f"s_add_u32 s{sT2}, s{sT2}, s{sTmp}"); a.e(f"v_lshl_add_u32 v{vFi}, v{TM}, 2, s{sT2}")
    l = newlabel("bc")
    a.e(f"s_cmp_lg_u32 s{sWv}, 0"); a.e(f"s_cbranch_scc1 {l}")
    spin(8, 157, 156, "s[18:19]", "s_nop 0")
    a.e(f"{l}:")
    a.e(f"s_mov_b32 s{sGc}, 0")
    a.e(f"s_mov_b32 s{sPo}, 0")
    a.e(f"s_mov_b32 s{sRo}, 0"); a.e(f"s_mov_b32 s{sRo2}, 0"); a.e(f"s_mov_b32 s{sOo}, 0")
    a.e(f"s_cmp_eq_u32 s{sWv}, 0"); a.e(f"s_cselect_b32 s{sW0}, -1, 0")
    a.wait(lg="all")
    def gmf(n):
        ks = n % 16; r, p = divmod(ks, 4)
        return [mf(Or(i, j), Greg(n & 1, i), ("a", OBANK[r] + 12 * p + 4 * j), None if ks == 0 else Or(i, j)) for i in range(8) for j in range(3)]
    def rld(k, b, LA=LA, LB=LB):
        so = sRo if k < 4 else sRo2
        if b == 0: return f"buffer_load_dwordx4 {vr(LA + 4*k, 4)}, v{vRA}, {sr(sPr,4)}, s{so} offen offset:{(k&3)*1024}{['', ' sc1', ' nt', ' sc0'][OPT['ldpol']]}"
        return f"buffer_load_dwordx2 {vr(LB + 2*k, 2)}, v{vRB}, {sr(sPr,4)}, s{so} offen offset:{(k&3)*1024}{['', ' sc1', ' nt', ' sc0'][OPT['ldpol']]}"
    def rops(k, LA=LA, LB=LB):
        o = []
        for r in range(6):
            s = LA + 4*k + r if r < 4 else LB + 2*k + (r - 4)
            if k == 0: o += [f"v_lshlrev_b32 v{ACC+2*r}, 16, v{s}", f"v_and_b32 v{ACC+2*r+1}, 0xffff0000, v{s}"]
            else:
                t = TM + 2 * (r & 1)
                o += [f"v_lshlrev_b32 v{t}, 16, v{s}", f"v_and_b32 v{t+1}, 0xffff0000, v{s}",
                      f"v_add_f32 v{ACC+2*r}, v{ACC+2*r}, v{t}", f"v_add_f32 v{ACC+2*r+1}, v{ACC+2*r+1}, v{t+1}"]
        return o
    rcv = [f"v_cvt_pk_bf16_f32 v{PK+r}, v{ACC+2*r}, v{ACC+2*r+1}" for r in range(6)]
    rst = [f"buffer_store_dwordx4 {vr(PK,4)}, v{vOA}, {sr(sOut,4)}, s{sOo} offen", f"buffer_store_dwordx2 {vr(PK+4,2)}, v{vOB}, {sr(sOut,4)}, s{sOo} offen"]
    oob2 = []
    def w0_site(S, gap, thr, fn):
        if OPT["now0"]: return
        l0, l1 = newlabel("w0"), newlabel("w0b")
        S.h(gap - 1, f"s_and_b32 s{sTmp}, s{sGc}, s{sW0}")
        def site():
            a.e(f"s_cmp_ge_u32 s{sTmp}, {thr}"); a.e(f"s_cbranch_scc1 {l0}"); a.e(f"{l1}:")
        S.h(gap, site)
        oob2.append((l0, l1, fn))
    LAG = OPT['lag']
    late = []
    NACK, NOUT = 13, 7
    def g4_body():
        del oob2[:]; del late[:]
        Ss = [Sched(a, gmf(n)) for n in range(16)]
        cap = [[2] * 24 for _ in range(16)]
        ops = []
        def vmem(n, g_, steps, kind):
            place_tile(a, Ss[n], steps, g_)
            for x in g_: cap[n][x] = 0; ops.append((n, x, kind))
        loads = [(k, b) for k in range(8) for b in range(2)]
        lpos = [(n, 16) for n in range(3, 9)] + [(n, g_) for n in range(9, 15) for g_ in ((16, 20) if n not in (11, 14) else (16,))]
        spos = [(n, g_) for n in range(1, 9) for g_ in ((19, 21) if n & 1 else (20,))]
        spos = [(1,19),(1,21),(2,19),(2,21),(3,20),(4,19),(4,21),(5,20),(6,19),(6,21),(8,19),(8,21)]
        if OPT["lmode"] == 1: lpos = [(n, g_) for n in (9, 10, 11) for g_ in (16, 19, 20, 21, 22, 23)][:16]
        assert len(lpos) == 16 and len(spos) == 12
        for n in range(16):
            S = Ss[n]
            rds = []
            for i in range(8): rds += rd_w(Greg((n + 1) & 1, i), n + 1, i)
            for r, p in zip(rds, RDPOS): S.v(p, r); cap[n][p] -= 1
            m = n + 15
            vmem(n, (6, 11), wo_tile(m, (m % 4) * 40960 + (m // 16) * 256, sH[(m % 16) // 4]), "T")
            cap[n][22] = min(cap[n][22], 1); cap[n][23] = min(cap[n][23], 1)
            if OPT['gcap']: cap[n][23] = 0; cap[n][20] = min(cap[n][20], 1); cap[n][22] = 2 if cap[n][22] else 0; cap[n][21] = min(cap[n][21], 1)
        for q, (n, g_) in enumerate(spos): vmem(n, (g_,), [gst(q, 0, sPo)], "S")
        for (k, b), (n, g_) in zip(loads, lpos): vmem(n, (g_,), [([], rld(k, b))], ("L", k))
        vmem(NOUT, (19, 21), [([], rst[0]), ([], rst[1])], "O")
        for g_, c in PLAN_FIRST: Ss[0].v(g_, CVS[c]); cap[0][g_] -= 1
        for g_, c in PLAN_LAST: Ss[15].v(g_, CVS[c]); cap[15][g_] -= 1
        ops.sort(key=lambda x: (x[0], x[1]))
        ops2 = ops + [(n + 16, g_, k) for n, g_, k in ops]
        def younger(pt, n, g_=22): return len([o for o in ops2 if pt < (o[0], o[1]) < (n, g_)])
        need = {n: 63 for n in range(16)}
        ready = {}
        for k in range(8):
            pt = max((o[0], o[1]) for o in ops if o[2] == ("L", k))
            n = pt[0] + LAG; need[n % 16] = min(need[n % 16], younger(pt, n)); ready[k] = n + 1
        if OPT['nolw']: need = {n: 63 for n in range(16)}
        if not OPT['noack']: need[NACK] = min(need[NACK], younger(max((o[0], o[1]) for o in ops if o[2] == "S"), NACK))
        n, g_ = 0, 0
        for k in list(range(8)) + ["cv"]:
            if k != "cv" and n < ready[k]: n, g_ = ready[k], 0
            for op in (rcv if k == "cv" else rops(k)):
                while cap[n % 16][g_] <= 0:
                    g_ += 1
                    if g_ == 24: n += 1; g_ = 0
                if not OPT['norv']: Ss[n % 16].v(g_, lambda op=op: a._emit(op))
                cap[n % 16][g_] -= 1
                if n >= 16: late.append(op)
        assert (n, g_) < (16 + NOUT, 18) and ready[0] > NOUT, (n, g_, ready)
        S = Ss[0]
        S.h(14, f"s_cmp_eq_u32 s{sGc}, 1024")
        S.h(15, f"s_cselect_b32 s{sWo+2}, 0, s{sWo+2}")
        w0_site(Ss[0], 2, 512, lambda: a._emit(f"global_load_dword v{vPoll}, v{vFi}, s[28:29] sc1"))
        def chk(cnt=younger((0, 2), 2, 17)):
            a.e(f"s_lshr_b32 s{sT2}, s{sGc}, 8"); a.e(f"s_sub_u32 s{sT2}, s{sT2}, 1")
            spin(f"s{sT2}", vFi, vPoll, "s[28:29]", f"s_waitcnt vmcnt({cnt})")
        w0_site(Ss[2], 17, 512, chk)
        def pub():
            a.e(f"s_lshr_b32 s{sT2}, s{sGc}, 8"); a.e(f"v_mov_b32 v{vVal}, s{sT2}"); flag_store()
        w0_site(Ss[NACK + 1], 2, 256, pub)
        S = Ss[15]
        S.h(0, f"s_cmp_ge_u32 s{sGc}, 256")
        S.h(1, f"s_cselect_b32 s{sPr+2}, {198*CH}, 0")
        S.h(2, f"s_cmp_ge_u32 s{sGc}, 512")
        S.h(3, f"s_cselect_b32 s{sOut+2}, {95*2560 + 1024 + 64}, 0")
        S.h(7, f"s_add_u32 s{sRo2}, s{sPo}, 4096")
        S.h(8, f"s_sub_u32 s{sOo}, s{sGc}, 512")
        S.h(12, f"s_mov_b32 s{sRo}, s{sPo}")
        if OPT["ldfix"]: S.h(12, f"s_mov_b32 s{sRo}, 0"); S.h(12, f"s_mov_b32 s{sRo2}, 4096")
        S.h(13, f"s_mov_b32 s{sP+2}, {239*CH + 1024}")
        S.h(14, f"s_mul_i32 s{sPo}, s{sGc}, {48*CH//256}")
        S.h(15, f"s_add_u32 s{sGc}, s{sGc}, 256")
        for r in range(4): S.h(16 + r, f"s_add_u32 s{sH[r]}, s{sH[r]}, 256")
        S.h(21, f"s_cmp_lt_u32 s{sGc}, 1280")
        for n in range(16):
            a.c(f"G sub-step {n}")
            extra = len([o for o in ops if o[2] != "T" and (n - 13, 11) < (o[0], o[1]) < (n, 22)])
            end_sync(a, Ss[n], min(26 + extra, need[n]))
            Ss[n].emit(gmf(n + 1)[0])
    if OPT["qprof"] == 2: stamp(a, 5); stamp(a, 6, False)
    a.e("L_gloop:")
    if OPT["qprof"] == 4:
        a.e(f"s_lshr_b32 s{sT3}, s{sGc}, 8"); stamp_dyn(a, 4, sT3, 5)
    mark = len(a.ins); nops0 = a.nops
    g4_body(); lg_end = list(a.lg)
    del a.ins[mark:]; a.nops = nops0
    g4_body(); assert a.lg == lg_end
    a.e("s_cbranch_scc1 L_gloop")
    if OPT["qprof"] == 2: stamp(a, 7); stamp(a, 8, False)
    if OPT["qprof"] == 4: stamp(a, 3)
    a.c("tail: publish the last pass, finish pass 2, reduce the last two")
    l = newlabel("t0")
    a.e(f"s_cmp_lg_u32 s{sWv}, 0"); a.e(f"s_cbranch_scc1 {l}")
    a._emit(f"global_load_dword v{vPoll}, v{vFi}, s[28:29] sc1")
    a.e(f"{l}:")
    for c in range(NLAST, 48): a.e(CVS[c])
    for q in range(12): emit_tile(a, [gst(q, 0, sPo)])
    stamp(a, 2)
    vmw(a, 12)
    l = newlabel("t1")
    a.e(f"s_cmp_lg_u32 s{sWv}, 0"); a.e(f"s_cbranch_scc1 {l}")
    spin(4, vFi, vPoll, "s[28:29]", "s_nop 0")
    a.e(f"{l}:")
    a.e("s_barrier")
    for k in range(8):
        for b in range(2): a._emit(rld(k, b, 160, 192))
    for op in late: a._emit(op)
    vmw(a, 16)
    a.e("s_barrier")
    l = newlabel("t2")
    a.e(f"s_cmp_lg_u32 s{sWv}, 0"); a.e(f"s_cbranch_scc1 {l}")
    a.e(f"v_mov_b32 v{vVal}, 5"); flag_store()
    a.e(f"{l}:")
    for op in rst: a._emit(op)
    a.e(f"s_mov_b32 s{sOo}, 768")
    def tail_reduce(la, lb, extra):
        for k in range(8):
            vmw(a, 2 * (7 - k) + extra)
            for op in rops(k, la, lb): a._emit(op)
        for op in rcv: a._emit(op)
        for op in rst: a._emit(op)
    tail_reduce(160, 192, 2)
    a.e(f"s_mov_b32 s{sRo}, s{sPo}"); a.e(f"s_add_u32 s{sRo2}, s{sPo}, 4096"); a.e(f"s_mov_b32 s{sOo}, 1024")
    l = newlabel("t3")
    a.e(f"s_cmp_lg_u32 s{sWv}, 0"); a.e(f"s_cbranch_scc1 {l}")
    a._emit(f"global_load_dword v{vPoll}, v{vFi}, s[28:29] sc1")
    spin(5, vFi, vPoll, "s[28:29]", "s_waitcnt vmcnt(0)")
    a.e(f"{l}:")
    a.e("s_barrier")
    for k in range(8):
        for b in range(2): a._emit(rld(k, b))
    tail_reduce(LA, LB, 0)
    stamp(a, 9, False); stamp(a, 10)
    stamp_store(a, "L_end", 0)
    dbg_store(a)
    a.e("L_end:")
    a.e("s_endpgm")
    for l0, l1, fn in list(oob2):
        a.e(f"{l0}:"); fn(); a.e(f"s_branch {l1}")
    a.reset_counters()
    a.e("L_slow:")
    a.raw_wait("s_waitcnt vmcnt(0) lgkmcnt(0)")
    vKo, vVo, t0, t1 = 10, 11, P_ + 12, P_ + 13
    a.e("s_nop 7")
    a.e(f"v_and_b32 v{t0}, 7, v0"); a.e(f"v_lshlrev_b32 v{t0}, 10, v{t0}")
    a.e(f"v_bfe_u32 v{t1}, v0, 3, 1"); a.e(f"v_lshl_add_u32 v{t0}, v{t1}, 8, v{t0}")
    a.e(f"v_lshrrev_b32 v{t1}, 4, v0"); a.e(f"v_lshl_add_u32 v{vKo}, v{t1}, 4, v{t0}")
    a.e(f"v_bfe_u32 v{t0}, v0, 4, 1"); a.e(f"v_lshlrev_b32 v{t0}, 12, v{t0}")
    a.e(f"v_lshrrev_b32 v{t1}, 5, v0"); a.e(f"v_lshl_add_u32 v{t0}, v{t1}, 8, v{t0}")
    a.e(f"v_and_b32 v{t1}, 15, v0"); a.e(f"v_lshl_add_u32 v{vVo}, v{t1}, 1, v{t0}")
    for j in range(3): a.e(f"v_mov_b32 v{vT+j}, 0xff800000")
    def slow_qk(cinit):
        for u, kf in ((0, KF), (1, VF)):
            for ks in range(4): a.e(f"buffer_load_dwordx4 {vr(kf + 4*ks,4)}, v{vKo}, {sr(sK,4)}, s{sT2} offen offset:{u*512 + ks*64}")
        for u, kf in ((0, KF), (1, VF)):
            for j in range(3):
                for ks in range(4):
                    a.e(mf(Sr(u, j), kf + 4*ks, Qf(j, ks), (Nm(j) if cinit else None) if ks == 0 else Sr(u, j)))
    a.e(f"s_mov_b32 s{sT2}, s{sCur}")
    a.e(f"s_add_u32 s{sT3}, s{sCur}, 131072")
    a.e("L_slow_p1:")
    slow_qk(False)
    for j in range(3):
        for u in range(2):
            s = Sr(u, j)
            a.e(f"v_max3_f32 v{vT+j}, v{vT+j}, v{s}, v{s+1}")
            a.e(f"v_max3_f32 v{vT+j}, v{vT+j}, v{s+2}, v{s+3}")
    a.e(f"s_add_u32 s{sT2}, s{sT2}, 8192")
    a.e(f"s_cmp_lt_u32 s{sT2}, s{sT3}")
    a.e("s_cbranch_scc1 L_slow_p1")
    rowred(a, "v_max_f32", [vT, vT+1, vT+2], [Nm(j) for j in range(3)])
    for j in range(3):
        for r in range(4): a.e(f"v_sub_f32 v{Nm(j)+r}, 0, v{vT+j}")
    for r in range(96): a.e(f"v_mov_b32 v{O_+r}, 0")
    for r in range(12): a.e(f"v_accvgpr_write_b32 a{192+r}, 0")
    a.e(f"s_mov_b32 s{sT2}, s{sCur}")
    a.e("L_slow_p2:")
    slow_qk(True)
    for u in range(2):
        for k in range(12): a.e(ex(u, k))
    for u in range(2):
        for c in range(6): a.e(cv(u, 0, c))
    for half, fr in ((0, KF), (1, VF)):
        for hi in range(2):
            for i in range(4):
                for e in range(2):
                    for rp in range(2):
                        r = 2*rp + hi
                        a.e(f"buffer_load_ushort v{(S_ if hi else fr) + 4*i + 2*e + rp}, v{vVo}, {sr(sV,4)}, s{sT2} offen offset:{r*1024 + e*512 + (4*half+i)*32}")
        a.wait(vm="all")
        for x in range(16): a.e(f"v_lshl_or_b32 v{fr+x}, v{S_+x}, 16, v{fr+x}")
    for m in sm(2): a.e(m)
    for half, fr in ((0, KF), (1, VF)):
        for m in pv(2, half, fr): a.e(m)
    a.e(f"s_add_u32 s{sT2}, s{sT2}, 8192")
    a.e(f"s_cmp_lt_u32 s{sT2}, s{sT3}")
    a.e("s_nop 7")
    a.e("s_cbranch_scc1 L_slow_p2")
    for j in range(3): a.e(f"v_accvgpr_read_b32 v{vT+j}, a{La(j)[1]}")
    a.e("s_branch L_epi")
    return a

HDR = f"""; Fused attention blocks A and B in one launch. One workgroup per CU owns 4 heads of one batch: Q projection,
; @launch grid=(256,1,1) block=(256,1,1) lds={LDS}
.amdgcn_target "amdgcn-amd-amdhsa--gfx950"
.text
"""
def kern(name, a):
    return f".globl {name}\n.p2align 8\n.type {name},@function\n{name}:\n" + a.text()
def desc(name, nv, acc, ns):
    return f""".p2align 6
.amdhsa_kernel {name}
  .amdhsa_next_free_vgpr {nv}
  .amdhsa_next_free_sgpr {ns}
  .amdhsa_accum_offset {acc}
  .amdhsa_group_segment_fixed_size 0
  .amdhsa_kernarg_size 104
  .amdhsa_user_sgpr_count 2
  .amdhsa_user_sgpr_kernarg_segment_ptr 1
  .amdhsa_system_sgpr_workgroup_id_x 1
  .amdhsa_float_denorm_mode_32 3
.end_amdhsa_kernel
"""
if __name__ == "__main__":
    a = main_kernel()
    if OPT["nodma"] & 1: a.ins = [i for i in a.ins if not (i.kind == "dma" and " v1, " in i.text)]
    if OPT["nodma"] & 2: a.ins = [i for i in a.ins if not (i.kind == "dma" and " v1, " not in i.text)]
    if OPT["nodma"] & 4: a.ins = [i for i in a.ins if not (i.kind == "store" and "v154" in i.text)]
    if OPT["nox2"]: a.ins = [i for i in a.ins if not (i.kind == "vmem" and ("v121," in i.text))]
    if OPT["noload"]: a.ins = [i for i in a.ins if not (i.kind == "vmem" and ("v120," in i.text or "v121," in i.text))]
    if OPT["strip"] == 2:
        i0 = [k for k, i in enumerate(a.ins) if i.text == "L_head:"][0]; i1 = [k for k, i in enumerate(a.ins) if i.text == "L_epi:"][0]
        a.ins = a.ins[:i0] + [Ins("s_nop 4") if i.kind == "mfma" else i for i in a.ins[i0:i1] if i.kind not in ("lds", "trans", "valu")] + a.ins[i1:]
    if OPT["strip"] == 1:
        i0 = [k for k, i in enumerate(a.ins) if i.text == "L_head:"][0]; i1 = [k for k, i in enumerate(a.ins) if i.text == "L_epi:"][0]
        a.ins = a.ins[:i0] + [i for i in a.ins[i0:i1] if i.kind not in ("mfma", "lds", "trans", "valu")] + a.ins[i1:]
    ns = 102 if OPT["stamp"] else NSGPR
    open(sys.argv[1], "w").write(HDR + kern(NAME + "_kernel", a) + '.section .rodata,"a"\n' + desc(NAME + "_kernel", 512, 256, ns))
    print("instrs", len(a.ins), "nops", a.nops)
```

```python
import sys, math, struct
from asmlib import *

NAME = "concat_heads__mha_block_cached__gqa_block_cached__near_ridge"
def f32(x): return "0x%08x" % struct.unpack("<I", struct.pack("<f", x))[0]
OPT = dict(stamp=0, nodma=0, nocheck=0, touch=1, forceslow=0, map84=0, first=6, rot=1, strip=0, cyc=0, typ=0, track=1, nosync=0, sleep=8, lag=4, noack=0, noload=0, stpol=1, nolw=0, krot=1, leak=-1, norv=0, now0=0, gcap=0, qprof=0, la=6, ldpol=1, lmode=0, ldfix=0, nox2=0, wnt=0, xnt=0, t0x=0, t0w=0, ctouch=0, dbgout=0)
for a_ in sys.argv[2:]:
    k_, v_ = a_.split("="); assert k_ in OPT, k_; OPT[k_] = int(v_)

def R(x, n):
    t, i = x if isinstance(x, tuple) else ("v", x)
    return f"{t}{i}" if n == 1 else f"{t}[{i}:{i+n-1}]"
def off(x, d): return (x[0], x[1] + d) if isinstance(x, tuple) else x + d
def mf(d, a, b, c):
    return f"v_mfma_f32_16x16x32_bf16 {R(d,4)}, {R(a,4)}, {R(b,4)}, {'0' if c is None else R(c,4)}"

TILE = 8448
VB = 8 * TILE
XB = 16 * TILE
LDS = XB + 24576
NSLOT = {0: 8, 1: 16, 2: 12}[OPT["typ"]]
CH = NSLOT * 1024
PART = 240 * CH
STAMP_AT = 128 << 20
FLG = 120 << 20
SPIN_MAX = 200000
def slot(m):
    m %= 16
    return (m & 1), (m >> 1) * TILE

vKV, vKA, vVA, vWAl, vWAh, vW = 1, 2, 3, 4, 5, 6
vT = 7
QF, NM, S_, P_, KF, VF, O_ = 12, 60, 72, 96, 120, 136, 160
vX0, vX1, vXA0, vXA1 = 156, 157, 158, 159
vTo, vD, vPt, vWo = 152, 153, 154, 155
def Qf(j, ks): return QF + 16 * j + 4 * ks
def Nm(j): return NM + 4 * j
def Sr(u, j): return S_ + 12 * u + 4 * j
def Pr(buf, j): return P_ + 12 * buf + 4 * j
def Or(i, j): return O_ + 12 * i + 4 * j
def Wreg(buf, i): return 12 + 32 * buf + 4 * i
def Xreg(buf, j, s): return 76 + 24 * buf + 8 * j + 4 * s
def Qacc(pos, i, j):
    k = 12 * i + 4 * j
    if pos == 0: return ("a", k)
    if pos == 1: return ("a", 96 + k)
    if pos == 2: return ("a", 192 + k) if k < 64 else 124 + (k - 64)
    return O_ + k
QBANK = {3: 0, 2: 48, 1: 96}
OBANK = {0: 144, 1: 96, 2: 48, 3: 0}
def La(j): return ("a", 192 + 4 * j)
ONES = ("a", 204)
def Greg(buf, i): return ("a", 192 + 32 * buf + 4 * i)
sX, sW, sK, sV, sWo, sP = 32, 36, 40, 44, 48, 52
sWv, sKVL, sWL, sXL, sOff, sOff2, sTmp, sR, sCur, sT2, sT3 = 60, 61, 62, 63, 64, 65, 66, 67, 68, 69, 70
sB, sU, sBr, sG, sXo, sPo = 71, 72, 73, 74, 75, 76
sCX, sNX, sLast, sS8, sWoB, sTask, sTyp = 56, 57, 58, 59, 77, 30, 31
sWq, sGc = 26, 27
sWq1, sJ, sRot, sPM, sPK = 20, 21, 22, 23, 24
sH = [4, 5, 6, 7]
NSGPR = 80

def stamp(a, k, real=True):
    if not OPT["stamp"]: return
    lg = list(a.lg)
    a.raw_wait("s_waitcnt lgkmcnt(0)")
    if OPT["cyc"] and 2 <= k <= 8: real = False
    a._emit(f"{'s_memrealtime' if real else 's_memtime'} s[{80+2*k}:{81+2*k}]")
    a.raw_wait("s_waitcnt lgkmcnt(0)")
def stamp_dyn(a, base, sidx, n):
    if not OPT["stamp"]: return
    a.raw_wait("s_waitcnt lgkmcnt(0)")
    a._emit("s_memtime s[78:79]" if OPT["cyc"] else "s_memrealtime s[78:79]")
    a.raw_wait("s_waitcnt lgkmcnt(0)")
    for q in range(n):
        a.e(f"s_cmp_eq_u32 s{sidx}, {q}")
        a.e(f"s_cselect_b32 s{80+2*(base+q)}, s78, s{80+2*(base+q)}")
def stamp_store(a, label, base):
    if not OPT["stamp"]: return
    a.e(f"s_cmp_lg_u32 s{sWv}, 0")
    a.e(f"s_cbranch_scc1 {label}")
    for k in range(11): a.e(f"v_mov_b32 v{16+k}, s{80+2*k}")
    a.e("s_lshl_b32 s78, s2, 6"); a.e(f"s_add_u32 s78, s78, {STAMP_AT + base*64}")
    a.e("v_mov_b32 v28, s78")
    a.e("s_mov_b64 exec, 1")
    a.e("global_store_dwordx4 v28, v[16:19], s[28:29]")
    a.e("global_store_dwordx4 v28, v[20:23], s[28:29] offset:16")
    a.e("global_store_dwordx4 v28, v[24:27], s[28:29] offset:32")

def dbg_store(a):
    if not OPT["dbgout"]: return
    l = "L_dbgskip"
    a.e("s_and_b32 s78, s2, 0xdf"); a.e("s_cmp_lg_u32 s78, 5"); a.e(f"s_cbranch_scc1 {l}")
    a.e("s_load_dwordx2 s[24:25], s[0:1], 88")
    for n, k in enumerate((3,4,5,6,7,8,2,10)):
        a.e(f"s_sub_u32 s79, s{80+2*k}, s80"); a.e(f"v_mov_b32 v{32+n}, s79")
    a.e("s_and_b32 s78, s2, 32"); a.e("v_mov_b32 v29, s78")
    a.raw_wait("s_waitcnt lgkmcnt(0)")
    a.e("global_store_dwordx4 v29, v[32:35], s[24:25]")
    a.e("global_store_dwordx4 v29, v[36:39], s[24:25] offset:16")
    a.e(f"{l}:")

def srd(a, d, lo, o, size):
    a.e(f"s_add_u32 s{d}, s{lo}, {o}")
    a.e(f"s_addc_u32 s{d+1}, s{lo+1}, 0")
    a.e(f"s_and_b32 s{d+1}, s{d+1}, 0xffff")
    a.e(f"s_mov_b32 s{d+2}, {size}")
    a.e(f"s_mov_b32 s{d+3}, 0x20000")
_lbl = [0]
def newlabel(p):
    _lbl[0] += 1
    return f"L_{p}_{_lbl[0]}"
class U(str): pass

def ldsbase(m):
    h, o = slot(m); return h * VB + o
def w_tile(m, n):
    b = ldsbase(m); base = sWq if n < 16 else sWq1
    rel = ((n % 16) >> 2) * 262144 + (3 - (n & 3)) * 256
    pol = ' nt' if OPT['wnt'] else ''
    return [([f"s_xor_b32 s{sOff}, s{base}, {rel}", f"s_add_u32 m0, s{sWL}, {b}"], f"buffer_load_dwordx4 v{vW}, {sr(sW,4)}, s{sOff} offen{pol} lds"),
            ([f"s_xor_b32 s{sOff}, s{base}, {rel + 8192}", f"s_add_u32 m0, s{sWL}, {b + 1032}"], f"buffer_load_dwordx4 v{vW}, {sr(sW,4)}, s{sOff} offen{pol} lds")]
def kv_tile(m, t):
    b = ldsbase(m); s = sV if m & 1 else sK
    so = f"s_xor_b32 s{sOff}, s{sNX if t >= 16 else sCX}, {(t % 16) * 8192}"
    return [([so, f"s_add_u32 m0, s{sKVL}, {b}"], f"buffer_load_dwordx4 v{vKV}, {sr(s,4)}, s{sOff} offen nt lds"),
            ([f"s_add_u32 m0, s{sKVL}, {b + 32}"], f"buffer_load_dwordx4 v{vKV}, {sr(s,4)}, s{sOff} offen offset:1024 nt lds")]
def wo_tile(m, rel, base_s):
    b = ldsbase(m)
    def so(x): return f"s_add_u32 s{sOff}, s{base_s}, {x}" if base_s is not None else f"s_mov_b32 s{sOff}, {x}"
    return [([so(rel), f"s_add_u32 m0, s{sWL}, {b}"], f"buffer_load_dwordx4 v{vWo}, {sr(sWo,4)}, s{sOff} offen lds"),
            ([so(rel + 1280), f"s_add_u32 m0, s{sWL}, {b + 1032}"], f"buffer_load_dwordx4 v{vWo}, {sr(sWo,4)}, s{sOff} offen lds")]
def emit_tile(a, steps):
    for pre, d in steps:
        for x in pre: a.e(x)
        a._emit(d)
def place_tile(a, S, steps, gaps):
    for (pre, d), g in zip(steps, gaps):
        for k, x in enumerate(pre): S.h(g - len(pre) + k, x)
        S.v(g, lambda d=d: a._emit(d))
def rd_w(dst, m, i):
    h, o = slot(m); p, u = divmod(i, 2)
    return [f"ds_read_b64_tr_b16 {R(off(dst, 2*e), 2)}, v{(vWAl, vWAh)[h]} offset:{o + e*512 + p*64 + u*8}" for e in range(2)]
def vmw(a, n): a.raw_wait(f"s_waitcnt vmcnt({n})")

def rowred(a, op, regs, tmps):
    for w in (32, 16):
        for r, t in zip(regs, tmps): a.e(f"v_mov_b32 v{t}, v{r}")
        for r, t in zip(regs, tmps): a.e(f"v_permlane{w}_swap_b32 v{r}, v{t}")
        for r, t in zip(regs, tmps): a.e(f"{op} v{r}, v{r}, v{t}")

RDPOS = [0,1,2,3,4,5,7,8,9,10,12,13,14,15,17,18]
RDPOS_X = [2,3,5,6,8,9,11,12,14,15,16,17,18,19,20,21]

def code_touch(a, lo, hi, vaddr, vdst):
    if not OPT["ctouch"]: return
    l = newlabel("pc")
    a.e("s_getpc_b64 s[14:15]")
    a.e(f"{l}:")
    a.e(f"s_add_u32 s14, s14, {lo}-{l}"); a.e("s_addc_u32 s15, s15, 0")
    a.e(f"s_lshr_b32 s{sT2}, s2, 3"); a.e(f"s_lshl_b32 s{sT2}, s{sT2}, 2"); a.e(f"s_add_u32 s{sT2}, s{sT2}, s{sWv}"); a.e(f"s_lshl_b32 s{sT2}, s{sT2}, 7")
    a.e(f"v_and_b32 v{vaddr}, 3, v0"); a.e(f"v_lshlrev_b32 v{vaddr}, 14, v{vaddr}"); a.e(f"v_add_u32 v{vaddr}, s{sT2}, v{vaddr}")
    a.e(f"v_min_u32 v{vaddr}, {hi}-{lo}-4, v{vaddr}")
    a._emit(f"global_load_dword v{vdst}, v{vaddr}, s[14:15]")

def late_consts(a):
    a.e(f"v_min_u32 v{vTo}, 19, v0"); a.e(f"v_lshlrev_b32 v{vTo}, 7, v{vTo}")
    a.e(f"s_mul_i32 s{sTmp}, s{sB}, 10240"); a.e(f"s_mul_i32 s{sT2}, s{sWv}, 2560"); a.e(f"s_add_u32 s{sTmp}, s{sTmp}, s{sT2}")
    a.e(f"v_add_u32 v{vTo}, s{sTmp}, v{vTo}")
    a.e(f"s_mul_i32 s{sTmp}, s{sWv}, {3*CH}"); a.e(f"v_lshlrev_b32 v{vPt}, 4, v0"); a.e(f"v_add_u32 v{vPt}, s{sTmp}, v{vPt}")
    a.e("v_lshrrev_b32 v9, 4, v0"); a.e(f"s_lshl_b32 s{sTmp}, s{sWv}, 1"); a.e(f"v_lshl_add_u32 v9, v9, 3, s{sTmp}")
    a.e("v_mul_u32_u24 v9, 1280, v9"); a.e("v_and_b32 v8, 15, v0"); a.e(f"v_lshl_add_u32 v{vWo}, v8, 4, v9")

def x_block(j, rel, base_s, op="s_add_u32"):
    so = f"{op} s{sOff2}, s{base_s}, {rel + j*20480}" if base_s is not None else f"s_mov_b32 s{sOff2}, {rel + j*20480}"
    return [([so, f"s_add_u32 m0, s{sXL}, {j*2048}"], f"buffer_load_dwordx4 v{vX0}, {sr(sX,4)}, s{sOff2} offen{' nt' if OPT['xnt'] else ''} lds"),
            ([f"s_add_u32 m0, s{sXL}, {j*2048 + 1024}"], f"buffer_load_dwordx4 v{vX1}, {sr(sX,4)}, s{sOff2} offen{' nt' if OPT['xnt'] else ''} lds")]
def rd_xb(dst, j, s): return f"ds_read_b128 {R(dst,4)}, v{(vXA0, vXA1)[s]} offset:{j*2048}"

def end_sync(a, S, vm, keep=2):
    def w():
        n = min(len(a.lg), keep)
        a.raw_wait(f"s_waitcnt vmcnt({vm}) lgkmcnt({n})")
        a.lg = a.lg[len(a.lg) - n:] if n else []
    S.h(22, w); S.h(23, "s_barrier")

def convert(a, acc, dests, tmp):
    a.e(f"s_mov_b32 s{sTmp}, {f32(math.log2(math.e) / math.sqrt(128.0))}")
    k = 0
    for pos, db in enumerate(dests):
        for p in range(4):
            for j in range(3):
                t = tmp[k % len(tmp)]; k += 1
                src = []
                for u in range(2):
                    o = acc(pos, 2*p + u, j)
                    for r in range(4):
                        if isinstance(o, tuple):
                            a.e(f"v_accvgpr_read_b32 v{t+4*u+r}, a{o[1]+r}"); src.append(t + 4*u + r)
                        else: src.append(o + r)
                for x in src: a.e(f"v_mul_f32 v{x}, s{sTmp}, v{x}")
                d = Qf(j, p) if db is None else t + 8
                for r in range(4): a.e(f"v_cvt_pk_bf16_f32 v{d+r}, v{src[2*r]}, v{src[2*r+1]}")
                if db is not None:
                    for r in range(4): a.e(f"v_accvgpr_write_b32 a{db + 12*p + 4*j + r}, v{d+r}")

def gcv(m, h):
    i, j = divmod(m, 3); p, u = divmod(i, 2); o = Or(i, j)
    return f"v_cvt_pk_bf16_f32 v{S_ + 12*p + 4*j + 2*u + h}, v{o+2*h}, v{o+2*h+1}"
CVS = [gcv(m, h) for m in range(24) for h in range(2)]
def gst(q, rel, base_s):
    p, j = divmod(q, 3)
    return ([f"s_add_u32 s{sOff2}, s{base_s}, {rel + (p*12 + j)*CH}"], f"buffer_store_dwordx4 {vr(S_ + 12*p + 4*j,4)}, v{vPt}, {sr(sP,4)}, s{sOff2} offen{['', ' sc1', ' nt', ' sc0'][OPT['stpol']]}")
def cv_plans():
    caps = [0 if g in (6, 11) else (1 if g in RDPOS else 2) for g in range(24)]
    last = []; ci = 0
    for g, cp in enumerate(caps):
        for _ in range(cp):
            if ci < 48 and ci // 2 + 4 <= g: last.append((g, ci)); ci += 1
    n = ci; first = []
    for g, cp in enumerate(caps):
        for _ in range(cp):
            if ci < 48: first.append((g, ci)); ci += 1
    assert ci == 48 and all(c // 2 > g for g, c in first)
    return last, first, n
PLAN_LAST, PLAN_FIRST, NLAST = cv_plans()

def Q2acc(pos, i, j): return (56 if pos == 0 else O_) + 12 * i + 4 * j
def X2reg(c, j, s): return ("a", 24 * (c % 8) + 8 * j + 4 * s)
def w2rel(n): return (n >> 1) * 262144 + (1 - (n & 1)) * 256
def q2mf(n):
    s, pos = divmod(n, 2)
    return [mf(Q2acc(pos, i, j), Greg(n & 1, i), X2reg(s >> 1, j, s & 1), None if s == 0 else Q2acc(pos, i, j)) for i in range(8) for j in range(3)]

def main_kernel():
    a = Asm()
    T = OPT["typ"]
    a.e("s_cmp_ge_u32 s2, 256")
    a.e("s_cbranch_scc1 L_end")
    a.e("s_load_dwordx16 s[4:19], s[0:1], 0")
    a.e("s_load_dwordx4 s[20:23], s[0:1], 64")
    a.e("s_load_dwordx2 s[28:29], s[0:1], 96")
    a.e(f"s_bfe_u32 s{sBr}, s2, 0x10002")
    if not OPT["map84"]:
        a.e(f"s_and_b32 s{sB}, s2, 3"); a.e(f"s_lshl_b32 s{sB}, s{sB}, 2")
        a.e(f"s_bfe_u32 s{sTmp}, s2, 0x20003"); a.e(f"s_add_u32 s{sB}, s{sB}, s{sTmp}")
        a.e(f"s_lshr_b32 s{sU}, s2, 5")
    elif OPT["map84"] == 2:
        a.e(f"s_bfe_u32 s{sB}, s2, 0x40003")
        a.e(f"s_and_b32 s{sU}, s2, 3"); a.e(f"s_lshl_b32 s{sU}, s{sU}, 1")
        a.e(f"s_lshr_b32 s{sTmp}, s2, 7"); a.e(f"s_add_u32 s{sU}, s{sU}, s{sTmp}")
    else:
        a.e(f"s_and_b32 s{sB}, s2, 1"); a.e(f"s_lshl_b32 s{sB}, s{sB}, 3")
        a.e(f"s_bfe_u32 s{sTmp}, s2, 0x30003"); a.e(f"s_add_u32 s{sB}, s{sB}, s{sTmp}")
        a.e(f"s_bfe_u32 s{sU}, s2, 0x10001"); a.e(f"s_lshl_b32 s{sU}, s{sU}, 2")
        a.e(f"s_lshr_b32 s{sTmp}, s2, 6"); a.e(f"s_add_u32 s{sU}, s{sU}, s{sTmp}")
    a.e(f"s_lshl_b32 s{sG}, s{sBr}, 4"); a.e(f"s_add_u32 s{sG}, s{sG}, s{sB}")
    if T == 2: a.e(f"s_and_b32 s{sTyp}, s{sU}, 1")
    else: a.e(f"s_mov_b32 s{sTyp}, {T}")
    a.e("v_lshrrev_b32 v7, 6, v0")
    a.e("v_and_b32 v0, 63, v0")
    a.e(f"v_readfirstlane_b32 s{sWv}, v7")
    a.e("v_and_b32 v8, 15, v0")
    a.e("v_lshrrev_b32 v9, 4, v0")
    a.e("v_and_b32 v10, 1, v9"); a.e("v_lshlrev_b32 v10, 4, v10")
    a.e("v_lshrrev_b32 v11, 1, v9"); a.e("v_lshl_add_u32 v10, v11, 2, v10")
    a.e("v_lshrrev_b32 v11, 1, v7"); a.e("v_lshl_add_u32 v10, v11, 3, v10")
    a.e("v_and_b32 v11, 1, v7"); a.e("v_lshl_add_u32 v10, v11, 1, v10")
    a.e("v_lshlrev_b32 v10, 13, v10"); a.e(f"v_lshl_add_u32 v{vW}, v8, 4, v10")
    a.e("v_mul_u32_u24 v10, 48, v7"); a.e("v_lshrrev_b32 v11, 3, v0"); a.e("v_add_u32 v10, v10, v11")
    a.e("v_mul_u32_u24 v10, 1280, v10")
    a.e("v_and_b32 v11, 7, v0"); a.e("v_xor_b32 v11, v11, v9")
    a.e(f"v_lshl_add_u32 v{vX0}, v11, 4, v10")
    a.e("v_xor_b32 v11, 4, v11"); a.e("v_add_u32 v10, 10240, v10")
    a.e(f"v_lshl_add_u32 v{vX1}, v11, 4, v10")
    a.e(f"s_mul_i32 s{sKVL}, s{sWv}, 2112")
    a.e(f"s_mov_b32 s{sWL}, s{sKVL}")
    a.e(f"s_mul_i32 s{sXL}, s{sWv}, 6144"); a.e(f"s_add_u32 s{sXL}, s{sXL}, {XB}")
    a.e(f"s_mov_b32 s{sCur}, 0"); a.e(f"s_mov_b32 s{sXo}, 0"); a.e(f"s_mov_b32 s{sWq}, 0")
    a.raw_wait("s_waitcnt lgkmcnt(0)")
    a.e(f"s_cmp_eq_u32 s{sBr}, 0")
    a.e("s_cselect_b64 s[4:5], s[4:5], s[14:15]")
    a.e("s_cselect_b64 s[6:7], s[6:7], s[16:17]")
    a.e("s_cselect_b64 s[8:9], s[8:9], s[18:19]")
    a.e("s_cselect_b64 s[10:11], s[10:11], s[20:21]")
    a.e("s_cselect_b64 s[12:13], s[12:13], s[22:23]")
    a.e("s_load_dwordx4 s[16:19], s[0:1], 80")
    a.e(f"s_mul_i32 s{sTmp}, s{sB}, 245760")
    srd(a, sX, 4, f"s{sTmp}", 245760)
    a.e(f"s_lshl_b32 s{sTmp}, s{sU}, 10")
    srd(a, sW, 10, f"s{sTmp}", 639 * 8192 + 1024)
    if OPT["krot"]: a.e(f"s_xor_b32 s{sJ}, s{sB}, s{sU}"); a.e(f"s_and_b32 s{sJ}, s{sJ}, 3")
    else: a.e(f"s_mov_b32 s{sJ}, 0")
    a.e(f"s_mul_i32 s{sWq}, s{sJ}, {262144 + 256}"); a.e(f"s_add_u32 s{sWq1}, s{sWq}, {1 << 20}")
    a.e(f"s_lshr_b32 s{sXo}, s{sJ}, 1"); a.e(f"s_lshl_b32 s{sXo}, s{sXo}, 7")
    stamp(a, 0); stamp(a, 1, False)
    for j in range(3): emit_tile(a, x_block(j, 0, sXo))
    def common_consts():
        if OPT["rot"]:
            a.e(f"s_lshr_b32 s{sRot}, s2, 4"); a.e(f"s_xor_b32 s{sRot}, s{sRot}, s2"); a.e(f"s_and_b32 s{sRot}, s{sRot}, 15"); a.e(f"s_lshl_b32 s{sRot}, s{sRot}, 13")
        else: a.e(f"s_mov_b32 s{sRot}, 0")
        a.e(f"s_lshl_b32 s{sCur}, s{sJ}, 17"); a.e(f"s_or_b32 s{sRot}, s{sRot}, s{sCur}")
        a.e(f"s_mov_b32 s{sCX}, s{sRot}"); a.e(f"s_xor_b32 s{sNX}, s{sRot}, 131072")
        a.e("v_bfe_u32 v10, v0, 2, 3")
        a.e("v_lshrrev_b32 v11, 1, v10"); a.e("v_lshlrev_b32 v11, 6, v11"); a.e(f"v_lshl_add_u32 v{vWAl}, v10, 10, v11")
        a.e("v_and_b32 v11, 1, v10"); a.e(f"v_lshl_add_u32 v{vWAl}, v11, 3, v{vWAl}")
        a.e("v_lshrrev_b32 v11, 5, v0"); a.e(f"v_lshl_add_u32 v{vWAl}, v11, 8, v{vWAl}")
        a.e("v_mul_u32_u24 v10, 1056, v10"); a.e("v_lshl_add_u32 v10, v11, 8, v10")
        a.e("v_and_b32 v11, 3, v0"); a.e(f"v_lshl_add_u32 v{vWAl}, v11, 4, v{vWAl}")
        a.e(f"v_lshl_add_u32 v10, v11, 3, v10"); a.e(f"v_add_u32 v{vVA}, {VB}, v10")
        a.e(f"v_add_u32 v{vWAh}, {VB}, v{vWAl}")
        a.e("v_and_b32 v10, 7, v8"); a.e("v_mul_u32_u24 v10, 1056, v10")
        a.e("v_lshrrev_b32 v11, 3, v8"); a.e(f"v_lshl_add_u32 v10, v11, 8, v10")
        a.e(f"v_lshl_add_u32 v{vKA}, v9, 4, v10")
        a.e("v_lshlrev_b32 v10, 4, v0"); a.e(f"v_lshl_add_u32 v{vKV}, v7, 11, v10")
        a.e(f"v_lshlrev_b32 v10, 7, v8"); a.e(f"v_add_u32 v10, s{sXL}, v10")
        a.e("v_lshrrev_b32 v11, 1, v8"); a.e("v_xor_b32 v11, v11, v9")
        a.e(f"s_and_b32 s{sTmp}, s{sJ}, 1"); a.e(f"s_lshl_b32 s{sTmp}, s{sTmp}, 2"); a.e(f"v_xor_b32 v11, s{sTmp}, v11")
        a.e(f"v_lshl_add_u32 v{vXA0}, v11, 4, v10")
        a.e("v_xor_b32 v11, 4, v11"); a.e(f"v_lshl_add_u32 v{vXA1}, v11, 4, v10")
        a.e(f"s_lshl_b32 s{sTmp}, s{sB}, 3"); a.e(f"s_add_u32 s{sTmp}, s{sTmp}, s{sU}"); a.e(f"s_lshl_b32 s{sTmp}, s{sTmp}, 19")
        srd(a, sK, 6, f"s{sTmp}", 4 * 131072)
        srd(a, sV, 8, f"s{sTmp}", 4 * 131072)
        a.e(f"s_mul_i32 s{sTmp}, s{sU}, {512*1280}")
        srd(a, sWo, 12, f"s{sTmp}", 512 * 1280)
        for r in range(4): a.e(f"s_xor_b32 s{sH[r]}, s{sJ}, {r}"); a.e(f"s_mul_i32 s{sH[r]}, s{sH[r]}, 163840")
        a.e(f"s_mov_b32 s{sPM}, s{sKVL}"); a.e(f"s_mov_b32 s{sPK}, 0")
    def touch0(three):
        if OPT["t0x"]:
            a.e("v_min_u32 v10, 59, v0"); a.e("v_lshlrev_b32 v10, 7, v10")
            a.e(f"s_lshl_b32 s{sTmp}, s{sU}, 2"); a.e(f"s_add_u32 s{sTmp}, s{sTmp}, s{sWv}"); a.e(f"s_mul_i32 s{sTmp}, s{sTmp}, 7680")
            a._emit(f"buffer_load_dword v11, v10, {sr(sX,4)}, s{sTmp} offen")
        if OPT["t0w"] and three:
            a.e("v_lshrrev_b32 v14, 2, v0"); a.e("v_lshlrev_b32 v14, 13, v14"); a.e("v_and_b32 v15, 3, v0"); a.e("v_lshl_add_u32 v14, v15, 7, v14")
            a.e(f"s_and_b32 s{sTmp}, s{sB}, 3"); a.e(f"s_lshl_b32 s{sTmp}, s{sTmp}, 2"); a.e(f"s_add_u32 s{sTmp}, s{sTmp}, s{sWv}"); a.e(f"s_lshl_b32 s{sTmp}, s{sTmp}, 17")
            for k in range(3):
                a.e(f"s_add_u32 s{sT2}, s{sTmp}, {k*256*8192}")
                a._emit(f"buffer_load_dword v{16+k}, v14, {sr(sW,4)}, s{sT2} offen")
    def part_srd(slot_expr, size):
        a.e(f"s_mul_i32 s{sTmp}, s{sG}, {PART}"); slot_expr(); a.e(f"s_lshl_b32 s{sT2}, s{sT2}, 10"); a.e(f"s_add_u32 s{sTmp}, s{sTmp}, s{sT2}")
        srd(a, sP, 28, f"s{sTmp}", size)
    NF = OPT["first"]
    LA = OPT['la']
    def wpos(n): return 8 + n % 8
    def rd_x(buf): return [rd_xb(Xreg(buf, j, s), j, s) for s in range(2) for j in range(3)]
    NF = 2
    for n in range(NF): emit_tile(a, w_tile(wpos(n), n))
    common_consts()
    touch0(False)
    code_touch(a, "L_q", "L_slow" if OPT["ctouch"] & 2 == 0 else "L_g", 10, 11)
    a.e(f"s_lshl_b32 s{sTmp}, s{sG}, 3"); a.e(f"s_add_u32 s{sTmp}, s{sTmp}, s{sU}"); a.e(f"s_lshl_b32 s{sTmp}, s{sTmp}, 8"); a.e(f"s_add_u32 s{sTmp}, s{sTmp}, {FLG}")
    a.e("v_and_b32 v8, 7, v0"); a.e(f"v_lshl_add_u32 v8, v8, 2, s{sTmp}"); a.e("v_mov_b32 v9, 0")
    l = newlabel("clr")
    a.e(f"s_cmp_lg_u32 s{sWv}, 0"); a.e(f"s_cbranch_scc1 {l}")
    a._emit("global_store_dword v8, v9, s[28:29] sc1")
    a.e(f"{l}:")
    part_srd(lambda: a.e(f"s_lshr_b32 s{sT2}, s{sU}, {1 if T == 2 else 0}"), 0)
    a.e(f"s_mov_b32 s{sLast}, 3"); a.e(f"s_mov_b32 s{sS8}, {8*40960}")
    for r in range(256):
        if r % 40 == 0 and NF + r // 40 < LA: emit_tile(a, w_tile(wpos(NF + r // 40), NF + r // 40))
        a.e(f"v_accvgpr_write_b32 a{r}, 0")
    for r in list(range(124, 156)) + list(range(160, 256)): a.e(f"v_mov_b32 v{r}, 0")
    a.raw_wait(f"s_waitcnt vmcnt({2 * (LA - 2)}) lgkmcnt(0)")
    a.e("s_barrier")
    for r in rd_x(0): a.e(r)
    for i in range(8):
        for r in rd_w(Wreg(0, i), wpos(0), i): a.e(r)
    a.raw_wait("s_waitcnt lgkmcnt(0)"); a.lg = []
    if OPT["qprof"] == 1: stamp(a, 5); stamp(a, 6, False)
    def qmf(n):
        s, pos = divmod(n % 16, 4)
        return [mf(Qacc(pos, i, j), Wreg(n & 1, i), Xreg((s >> 1) & 1, j, s & 1), Qacc(pos, i, j)) for i in range(8) for j in range(3)]
    def kv_early(isv):
        s = sV if isv else sK; b = VB if isv else 0
        return [([f"s_xor_b32 s{sOff2}, s{sCX}, s{sPK}", f"s_add_u32 m0, s{sPM}, {b}"], f"buffer_load_dwordx4 v{vKV}, {sr(s,4)}, s{sOff2} offen nt lds"),
                ([f"s_add_u32 m0, s{sPM}, {b + 32}"], f"buffer_load_dwordx4 v{vKV}, {sr(s,4)}, s{sOff2} offen offset:1024 nt lds")]
    def q_group(last):
        for n in range(16):
            a.c(f"Q sub-step {n}{' (last group)' if last else ''}")
            S = Sched(a, qmf(n))
            fin = last and n == 15
            q = n % 8
            xrd = q in (6, 7) and not (last and n >= 8)
            if not fin:
                rds = []
                for i in range(8): rds += rd_w(Wreg((n + 1) & 1, i), wpos(n + 1), i)
                for r, p in zip(rds, RDPOS): S.v(p, r)
                m = n + LA
                if not last or m < 16: place_tile(a, S, w_tile(wpos(m), m), (6, 11))
                if last and 9 <= n <= 13: place_tile(a, S, kv_tile(n - 1, (n - 1) >> 1), (16, 19))
                if not (last and n == 14):
                    hi = min(m, 15) if last else m
                    ykv = len([k for k in range(9, 14) if n + 2 - LA <= k <= n]) if last else 0
                    end_sync(a, S, 2 * (hi - (n + 2)) + 2 * ykv, 5 if xrd else 2)
            if xrd:
                rx = rd_x(((n >> 3) + 1) & 1)[3*(q-6):3*(q-6)+3]
                if q == 6: S.h(16, lambda: vmw(a, 8))
                for r, p in zip(rx, (19, 20, 21)): S.v(p, (r, "xr"))
            if q in (0, 1, 2) and not (last and n >= 8):
                if q == 0: S.h(12, lambda: a.wait(lg="xr"))
                place_tile(a, S, x_block(q, 128, sXo, "s_xor_b32") if n < 8 else x_block(q, 256, sXo), (16, 19))
            if n in (11, 12) and not last: place_tile(a, S, kv_early(n == 12), (16, 19))
            if n == 15 and not last:
                S.h(1, f"s_add_u32 s{sPM}, s{sPM}, {TILE}")
                S.h(2, f"s_add_u32 s{sPK}, s{sPK}, 8192")
                S.h(12, f"s_mov_b32 s{sWq}, s{sWq1}")
                S.h(13, f"s_add_u32 s{sWq1}, s{sWq1}, {1 << 20}")
                S.h(14, f"s_add_u32 s{sXo}, s{sXo}, 256")
                S.h(15, f"s_cmp_lt_u32 s{sXo}, 1024")
            S.emit(None if fin else qmf(n + 1)[0])
    a.e(".p2align 6")
    a.e("L_q:")
    if OPT["qprof"] == 3:
        a.e(f"s_lshr_b32 s{sT3}, s{sXo}, 8"); stamp_dyn(a, 4, sT3, 4)
    mark = len(a.ins); nops0 = a.nops
    q_group(False)
    lg_end = list(a.lg)
    del a.ins[mark:]; a.nops = nops0
    q_group(False)
    assert a.lg == lg_end
    a.e("s_cbranch_scc1 L_q")
    if OPT["qprof"] == 3: stamp(a, 8)
    q_group(True)
    if OPT["qprof"] == 1: stamp(a, 7); stamp(a, 8, False)
    stamp(a, 3)
    a.c("Q conversion")
    convert(a, Qacc, [QBANK[3], QBANK[2], QBANK[1], None], [60 + 12 * k for k in range(5)])
    late_consts(a)
    l = newlabel("boot")
    a.e(f"s_cmp_lg_u32 s{sWv}, 0"); a.e(f"s_cbranch_scc1 {l}")
    a.e(f"s_lshl_b32 s{sTmp}, s{sG}, 2"); a.e(f"s_add_u32 s{sTmp}, s{sTmp}, 128")
    a.e(f"v_mov_b32 v157, s{sTmp}"); a.e("v_mov_b32 v158, 1")
    a.e("s_mov_b64 exec, 1")
    a._emit("global_atomic_add v157, v158, s[18:19]")
    a.e("s_mov_b64 exec, -1")
    a.e(f"{l}:")
    a.e("L_enter:")
    a.e(f"v_mov_b32 v{vT}, 0x3f803f80")
    for r in range(4): a.e(f"v_accvgpr_write_b32 a{ONES[1]+r}, v{vT}")
    a.e(f"s_mov_b32 s{sR}, 0")
    def rd_k(dst, t, u): return [f"ds_read_b128 {vr(dst + 4*ks,4)}, v{vKA} offset:{(t % 8)*TILE + u*512 + ks*64}" for ks in range(4)]
    def rd_v(t, half, fr=VF):
        return [f"ds_read_b64_tr_b16 {vr(fr + 4*i + 2*e, 2)}, v{vVA} offset:{(t % 8)*TILE + e*512 + (4*half+i)*32}" for i in range(4) for e in range(2)]
    vmw(a, 10)
    a.e("s_barrier")
    a.lg = []
    for r in rd_k(VF, 0, 1) + rd_k(KF, 0, 0): a.e(r)
    if OPT["qprof"] < 3: stamp(a, 4)
    def ex(u, k): j, r = divmod(k, 4); s = Sr(u, j) + r; return f"v_exp_f32 v{s}, v{s}"
    def cv(u, buf, c): j, h = divmod(c, 2); s = Sr(u, j) + 2*h; return f"v_cvt_pk_bf16_f32 v{Pr(buf,j) + 2*u + h}, v{s}, v{s+1}"
    def qk(u): return [mf(Sr(u, j), KF + 4*ks, Qf(j, ks), Nm(j) if ks == 0 else Sr(u, j)) for j in range(3) for ks in range(4)]
    def pv(t, half, fr=VF): return [mf(Or(4*half + i, j), fr + 4*i, Pr(t & 1, j), None if t == 0 else Or(4*half + i, j)) for i in range(4) for j in range(3)]
    def sm(t): return [mf(La(j), ONES, Pr(t & 1, j), None if t == 0 else La(j)) for j in range(3)]
    oob = []
    def wo_first(n):
        return wo_tile(n, (n % 4) * 40960, sH[n // 4])
    def stream_tile(S, m, gaps):
        kv = kv_tile(m, m >> 1)
        if m < 32:
            place_tile(a, S, kv, gaps); return
        for (pre, d), (pre2, d2), g in zip(kv, wo_first(m - 32), gaps):
            for k, x in enumerate(pre): S.h(g - len(pre) + k, x)
            l0, l1 = newlabel("wo"), newlabel("back")
            def site(d=d, l0=l0, l1=l1):
                a.e(f"s_cbranch_vccnz {l0}"); a._emit(d); a.e(f"{l1}:")
            S.v(g, site)
            oob.append((l0, l1, pre2, d2))
    def tail_vec(S, u, buf, rds):
        pos = [0, 1, 4, 5, 8, 9, 10, 11]
        for r, p in zip(rds, pos): S.v(p, r)
        for k, p in zip(range(8, 12), (2, 3, 6, 7)): S.v(p, ex(u, k))
        for c, p in zip(range(6), (0, 1, 4, 5, 8, 9)): S.v(p, cv(u, buf, c))
    a.e(".p2align 6")
    a.e("L_head:")
    a.c("tile 0: scores and stand-in row max (max over the first 32 keys)")
    a.e(f"s_cmp_eq_u32 s{sR}, s{sLast}")
    for u, kf in ((1, VF), (0, KF)):
        for j in range(3):
            for ks in range(4):
                a.e(mf(Sr(u, j), kf + 4*ks, Qf(j, ks), None if ks == 0 else Sr(u, j)))
    a.e("s_cselect_b64 vcc, -1, 0")
    vmw(a, 20)
    a.e("s_barrier")
    for r in rd_k(KF, 1, 0): a.e(r)
    emit_tile(a, kv_tile(13, 6)); emit_tile(a, kv_tile(14, 7))
    if OPT["touch"]:
        a.e(f"s_mul_i32 s{sT2}, s{sR}, 163840")
        a._emit(f"buffer_load_dword v{vD}, v{vTo}, {sr(sWo,4)}, s{sT2} offen")
    if OPT["ctouch"] & 2:
        l = newlabel("ct")
        a.e(f"s_cbranch_vccz {l}")
        code_touch(a, "L_g", "L_slow", 158, 159)
        a.e(f"{l}:")
    l = newlabel("bp")
    a.e(f"s_xor_b32 s{sT2}, s{sR}, 3"); a.e(f"s_or_b32 s{sT2}, s{sT2}, s{sWv}"); a.e(f"s_cbranch_scc1 {l}")
    a._emit("global_load_dword v156, v157, s[18:19] sc1")
    a.e(f"{l}:")
    for j in range(3):
        n = Nm(j); s0 = Sr(0, j); s1 = Sr(1, j)
        a.e(f"v_max3_f32 v{n}, v{s1}, v{s1+1}, v{s1+2}")
        a.e(f"v_max3_f32 v{n+1}, v{s1+3}, v{s0}, v{s0+1}")
        a.e(f"v_max3_f32 v{n}, v{n}, v{s0+2}, v{s0+3}")
        a.e(f"v_max_f32 v{n}, v{n}, v{n+1}")
    rowred(a, "v_max_f32", [Nm(j) for j in range(3)], [Nm(j) + 1 for j in range(3)])
    for j in range(3):
        n = Nm(j)
        a.e(f"v_sub_f32 v{n}, 0, v{n}")
        for r in range(1, 4): a.e(f"v_mov_b32 v{n+r}, v{n}")
    for u in range(2):
        for j in range(3):
            for r in range(4): a.e(f"v_add_f32 v{Sr(u,j)+r}, v{Sr(u,j)+r}, v{Nm(j)}")
    for k in range(12): a.e(ex(0, k))
    for k in range(8): a.e(ex(1, k))
    for c in range(6): a.e(cv(0, 0, c))
    for t in range(15):
        a.c(f"stage {t}")
        S = Sched(a, qk(0)); tail_vec(S, 1, t & 1, rd_v(t, 0)); S.emit(pv(t, 0)[0])
        S = Sched(a, pv(t, 0))
        for r, p in zip(rd_k(KF, t+1, 1), (0, 1, 2, 3)): S.v(p, r)
        for k, p in zip(range(8), range(4, 12)): S.v(p, ex(0, k))
        S.h(10, lambda: a.wait(lg="all"))
        S.emit(qk(1)[0])
        S = Sched(a, qk(1)); tail_vec(S, 0, (t+1) & 1, rd_v(t, 1))
        S.h(11, lambda: vmw(a, 20))
        S.emit(None)
        S = Sched(a, sm(t) + pv(t, 1))
        S.h(0, "s_barrier")
        if t + 2 < 16:
            for r, p in zip(rd_k(KF, t+2, 0), (0, 1, 2, 3)): S.v(p, r)
        for k, p in zip(range(8), (3, 4, 6, 7, 9, 10, 12, 13)): S.v(p, ex(1, k))
        stream_tile(S, 2*(t+7) + 1, (5, 8))
        stream_tile(S, 2*(t+8), (11, 14))
        S.h(12, lambda: a.wait(lg="all"))
        S.emit(qk(0)[0] if t < 14 else None)
    a.c("stage 15")
    for r in rd_v(15, 0): a.e(r)
    for k in range(8, 12): a.e(ex(1, k))
    for c in range(6): a.e(cv(1, 1, c))
    S = Sched(a, sm(15) + pv(15, 0))
    for r, p in zip(rd_v(15, 1, KF), range(8)): S.v(p, r)
    S.emit(pv(15, 1, KF)[0])
    S = Sched(a, pv(15, 1, KF))
    for j in range(3): S.v(j, f"v_accvgpr_read_b32 v{vT+j}, a{La(j)[1]}")
    S.v(3, f"v_add_f32 v{vT+3}, v{vT}, v{vT+1}"); S.v(4, f"v_add_f32 v{vT+3}, v{vT+3}, v{vT+2}")
    S.v(5, f"v_mov_b32 v{vT+4}, {f32(2.0**30 if not OPT['forceslow'] else 150.0)}")
    S.v(6, f"v_cmp_nle_f32 vcc, v{vT+3}, v{vT+4}")
    S.emit(None)
    assert not a.lg
    if not OPT["nocheck"]: a.e("s_cbranch_vccnz L_slow")
    a.e("L_epi:")
    for r in rd_k(VF, 0, 1) + rd_k(KF, 0, 0): a.e(r)
    for j in range(3): a.e(f"v_rcp_f32 v{vT+j}, v{vT+j}")
    for p in range(4):
        for j in range(3):
            d = Qf(j, p)
            for u in range(2):
                o = Or(2*p + u, j)
                for r in range(4): a.e(f"v_mul_f32 v{o+r}, v{o+r}, v{vT+j}")
                a.e(f"v_cvt_pk_bf16_f32 v{d+2*u}, v{o}, v{o+1}")
                a.e(f"v_cvt_pk_bf16_f32 v{d+2*u+1}, v{o+2}, v{o+3}")
    if OPT["stamp"]:
        if not OPT['qprof']: stamp_dyn(a, 5, sR, 4)
    a.e(f"s_and_b32 s{sCur}, s{sNX}, 0x60000")
    a.e(f"s_mov_b32 s{sCX}, s{sNX}")
    a.e(f"s_add_u32 s{sT2}, s{sR}, 2"); a.e(f"s_and_b32 s{sT2}, s{sT2}, 3"); a.e(f"s_lshl_b32 s{sT2}, s{sT2}, 17"); a.e(f"s_xor_b32 s{sNX}, s{sRot}, s{sT2}")
    a.e(f"s_add_u32 s{sR}, s{sR}, 1")
    a.e(f"s_cmp_gt_u32 s{sR}, s{sLast}"); a.e("s_cbranch_scc1 L_g")
    a.e(f"s_cmp_eq_u32 s{sR}, 3"); a.e("s_cbranch_scc1 L_sw2")
    a.e(f"s_cmp_eq_u32 s{sR}, 2"); a.e("s_cbranch_scc1 L_sw1")
    for r in range(3):
        a.e(f"L_sw{r}:")
        for p in range(4):
            for j in range(3):
                for x in range(4): a.e(f"v_accvgpr_write_b32 a{OBANK[r] + 12*p + 4*j + x}, v{Qf(j,p)+x}")
        for p in range(4):
            for j in range(3):
                for x in range(4): a.e(f"v_accvgpr_read_b32 v{Qf(j,p)+x}, a{QBANK[r+1] + 12*p + 4*j + x}")
        a.e("s_nop 0")
        a.e("s_branch L_head")
    for l0, l1, pre2, d2 in oob:
        a.e(f"{l0}:")
        for x in pre2: a.e(x)
        a._emit(d2)
        a.e(f"s_branch {l1}")
    sPr, sOut, sRo, sRo2, sOo, sW0 = sX, sW, sCX, sNX, sLast, sS8
    LA, LB, ACC = 12, 44, 60
    vRA, vRB, vOA, vOB, vFl, vFi, vPoll, vVal, TM, PK = 120, 121, 122, 123, 124, 125, 126, 127, 128, 132
    def spin(need, addr, val, base, pre_wait):
        if OPT["nosync"]: return
        l0, l1 = newlabel("spin"), newlabel("ok")
        a.raw_wait(pre_wait)
        a.e(f"s_mov_b32 s{sT3}, 0")
        a.e(f"{l0}:")
        a._emit(f"v_cmp_gt_u32 vcc, {need}, v{val}")
        a._emit("s_nop 4")
        a.e(f"s_cbranch_vccz {l1}")
        a.e(f"s_add_u32 s{sT3}, s{sT3}, 1")
        a.e(f"s_cmp_ge_u32 s{sT3}, {SPIN_MAX}")
        a.e(f"s_cbranch_scc1 {l1}")
        a.e(f"s_sleep {OPT['sleep']}")
        a._emit(f"global_load_dword v{val}, v{addr}, {base} sc1")
        a.raw_wait("s_waitcnt vmcnt(0)")
        a.e(f"s_branch {l0}")
        a.e(f"{l1}:")
    def flag_store():
        a.e("s_mov_b64 exec, 0xff")
        a._emit(f"global_store_dword v{vFl}, v{vVal}, s[28:29] sc1")
        a.e("s_mov_b64 exec, -1")
    a.e(".p2align 6")
    a.e("L_g:")
    a.lg = []
    a.raw_wait("s_waitcnt vmcnt(22) lgkmcnt(0)")
    a.e("s_barrier")
    for i in range(8):
        for r in rd_w(Greg(0, i), 0, i): a.e(r)
    emit_tile(a, wo_first(13)); emit_tile(a, wo_first(14))
    for p in range(4):
        for j in range(3):
            for x in range(4): a.e(f"v_accvgpr_write_b32 a{OBANK[3] + 12*p + 4*j + x}, v{Qf(j,p)+x}")
    a.e(f"s_mul_i32 s{sTmp}, s{sG}, {PART}"); a.e(f"s_mul_i32 s{sT2}, s{sU}, {6*CH}"); a.e(f"s_add_u32 s{sTmp}, s{sTmp}, s{sT2}")
    srd(a, sPr, 28, f"s{sTmp}", 0)
    a.e(f"s_mul_i32 s{sTmp}, s{sB}, 491520"); a.e(f"s_and_b32 s{sT2}, s{sU}, 1"); a.e(f"s_mul_i32 s{sT2}, s{sT2}, 245760"); a.e(f"s_add_u32 s{sTmp}, s{sTmp}, s{sT2}")
    a.e(f"s_mul_i32 s{sT2}, s{sBr}, 1280"); a.e(f"s_add_u32 s{sTmp}, s{sTmp}, s{sT2}")
    a.e(f"s_lshr_b32 s{sT2}, s{sU}, 1"); a.e(f"s_lshl_b32 s{sT2}, s{sT2}, 6"); a.e(f"s_add_u32 s{sTmp}, s{sTmp}, s{sT2}")
    srd(a, sOut, 16, f"s{sTmp}", 0)
    a.e(f"s_mul_i32 s{sTmp}, s{sWv}, {CH}"); a.e(f"v_lshl_add_u32 v{vRA}, v0, 4, s{sTmp}")
    a.e(f"s_lshr_b32 s{sTmp}, s{sWv}, 1"); a.e(f"s_add_u32 s{sTmp}, s{sTmp}, 4"); a.e(f"s_mul_i32 s{sT3}, s{sTmp}, {CH}")
    a.e(f"s_and_b32 s{sT2}, s{sWv}, 1"); a.e(f"s_lshl_b32 s{sOff}, s{sT2}, 9"); a.e(f"s_add_u32 s{sT3}, s{sT3}, s{sOff}")
    a.e(f"v_lshl_add_u32 v{vRB}, v0, 3, s{sT3}")
    a.e(f"v_and_b32 v{TM}, 15, v0"); a.e(f"v_mul_u32_u24 v{TM}, 2560, v{TM}"); a.e(f"v_lshrrev_b32 v{TM+1}, 4, v0"); a.e(f"v_lshl_add_u32 v{TM}, v{TM+1}, 4, v{TM}")
    a.e(f"s_mul_i32 s{sT3}, s{sWv}, 40960"); a.e(f"v_add_u32 v{vOA}, s{sT3}, v{TM}")
    a.e(f"v_bfe_u32 v{TM}, v0, 1, 4"); a.e(f"v_mul_u32_u24 v{TM}, 2560, v{TM}"); a.e(f"v_lshrrev_b32 v{TM+1}, 5, v0"); a.e(f"v_lshl_add_u32 v{TM}, v{TM+1}, 4, v{TM}")
    a.e(f"v_and_b32 v{TM+1}, 1, v0"); a.e(f"v_lshl_add_u32 v{TM}, v{TM+1}, 3, v{TM}")
    a.e(f"s_mul_i32 s{sT3}, s{sTmp}, 40960"); a.e(f"s_lshl_b32 s{sT2}, s{sT2}, 5"); a.e(f"s_add_u32 s{sT3}, s{sT3}, s{sT2}")
    a.e(f"v_add_u32 v{vOB}, s{sT3}, v{TM}")
    a.e(f"v_and_b32 v{TM}, 7, v0")
    a.e(f"s_lshl_b32 s{sTmp}, s{sG}, 11"); a.e(f"s_add_u32 s{sTmp}, s{sTmp}, {FLG}")
    a.e(f"s_lshl_b32 s{sT2}, s{sU}, 2"); a.e(f"s_add_u32 s{sT2}, s{sT2}, s{sTmp}"); a.e(f"v_lshl_add_u32 v{vFl}, v{TM}, 8, s{sT2}")
    a.e(f"s_lshl_b32 s{sT2}, s{sU}, 8"); a.e(f"s_add_u32 s{sT2}, s{sT2}, s{sTmp}"); a.e(f"v_lshl_add_u32 v{vFi}, v{TM}, 2, s{sT2}")
    l = newlabel("bc")
    a.e(f"s_cmp_lg_u32 s{sWv}, 0"); a.e(f"s_cbranch_scc1 {l}")
    spin(8, 157, 156, "s[18:19]", "s_nop 0")
    a.e(f"{l}:")
    a.e(f"s_mov_b32 s{sGc}, 0")
    a.e(f"s_mov_b32 s{sPo}, 0")
    a.e(f"s_mov_b32 s{sRo}, 0"); a.e(f"s_mov_b32 s{sRo2}, 0"); a.e(f"s_mov_b32 s{sOo}, 0")
    a.e(f"s_cmp_eq_u32 s{sWv}, 0"); a.e(f"s_cselect_b32 s{sW0}, -1, 0")
    a.wait(lg="all")
    def gmf(n):
        ks = n % 16; r, p = divmod(ks, 4)
        return [mf(Or(i, j), Greg(n & 1, i), ("a", OBANK[r] + 12 * p + 4 * j), None if ks == 0 else Or(i, j)) for i in range(8) for j in range(3)]
    def rld(k, b, LA=LA, LB=LB):
        so = sRo if k < 4 else sRo2
        if b == 0: return f"buffer_load_dwordx4 {vr(LA + 4*k, 4)}, v{vRA}, {sr(sPr,4)}, s{so} offen offset:{(k&3)*1024}{['', ' sc1', ' nt', ' sc0'][OPT['ldpol']]}"
        return f"buffer_load_dwordx2 {vr(LB + 2*k, 2)}, v{vRB}, {sr(sPr,4)}, s{so} offen offset:{(k&3)*1024}{['', ' sc1', ' nt', ' sc0'][OPT['ldpol']]}"
    def rops(k, LA=LA, LB=LB):
        o = []
        for r in range(6):
            s = LA + 4*k + r if r < 4 else LB + 2*k + (r - 4)
            if k == 0: o += [f"v_lshlrev_b32 v{ACC+2*r}, 16, v{s}", f"v_and_b32 v{ACC+2*r+1}, 0xffff0000, v{s}"]
            else:
                t = TM + 2 * (r & 1)
                o += [f"v_lshlrev_b32 v{t}, 16, v{s}", f"v_and_b32 v{t+1}, 0xffff0000, v{s}",
                      f"v_add_f32 v{ACC+2*r}, v{ACC+2*r}, v{t}", f"v_add_f32 v{ACC+2*r+1}, v{ACC+2*r+1}, v{t+1}"]
        return o
    rcv = [f"v_cvt_pk_bf16_f32 v{PK+r}, v{ACC+2*r}, v{ACC+2*r+1}" for r in range(6)]
    rst = [f"buffer_store_dwordx4 {vr(PK,4)}, v{vOA}, {sr(sOut,4)}, s{sOo} offen", f"buffer_store_dwordx2 {vr(PK+4,2)}, v{vOB}, {sr(sOut,4)}, s{sOo} offen"]
    oob2 = []
    def w0_site(S, gap, thr, fn):
        if OPT["now0"]: return
        l0, l1 = newlabel("w0"), newlabel("w0b")
        S.h(gap - 1, f"s_and_b32 s{sTmp}, s{sGc}, s{sW0}")
        def site():
            a.e(f"s_cmp_ge_u32 s{sTmp}, {thr}"); a.e(f"s_cbranch_scc1 {l0}"); a.e(f"{l1}:")
        S.h(gap, site)
        oob2.append((l0, l1, fn))
    LAG = OPT['lag']
    late = []
    NACK, NOUT = 13, 7
    def g4_body():
        del oob2[:]; del late[:]
        Ss = [Sched(a, gmf(n)) for n in range(16)]
        cap = [[2] * 24 for _ in range(16)]
        ops = []
        def vmem(n, g_, steps, kind):
            place_tile(a, Ss[n], steps, g_)
            for x in g_: cap[n][x] = 0; ops.append((n, x, kind))
        loads = [(k, b) for k in range(8) for b in range(2)]
        lpos = [(n, 16) for n in range(3, 9)] + [(n, g_) for n in range(9, 15) for g_ in ((16, 20) if n not in (11, 14) else (16,))]
        spos = [(n, g_) for n in range(1, 9) for g_ in ((19, 21) if n & 1 else (20,))]
        spos = [(1,19),(1,21),(2,19),(2,21),(3,20),(4,19),(4,21),(5,20),(6,19),(6,21),(8,19),(8,21)]
        if OPT["lmode"] == 1: lpos = [(n, g_) for n in (9, 10, 11) for g_ in (16, 19, 20, 21, 22, 23)][:16]
        assert len(lpos) == 16 and len(spos) == 12
        for n in range(16):
            S = Ss[n]
            rds = []
            for i in range(8): rds += rd_w(Greg((n + 1) & 1, i), n + 1, i)
            for r, p in zip(rds, RDPOS): S.v(p, r); cap[n][p] -= 1
            m = n + 15
            vmem(n, (6, 11), wo_tile(m, (m % 4) * 40960 + (m // 16) * 256, sH[(m % 16) // 4]), "T")
            cap[n][22] = min(cap[n][22], 1); cap[n][23] = min(cap[n][23], 1)
            if OPT['gcap']: cap[n][23] = 0; cap[n][20] = min(cap[n][20], 1); cap[n][22] = 2 if cap[n][22] else 0; cap[n][21] = min(cap[n][21], 1)
        for q, (n, g_) in enumerate(spos): vmem(n, (g_,), [gst(q, 0, sPo)], "S")
        for (k, b), (n, g_) in zip(loads, lpos): vmem(n, (g_,), [([], rld(k, b))], ("L", k))
        vmem(NOUT, (19, 21), [([], rst[0]), ([], rst[1])], "O")
        for g_, c in PLAN_FIRST: Ss[0].v(g_, CVS[c]); cap[0][g_] -= 1
        for g_, c in PLAN_LAST: Ss[15].v(g_, CVS[c]); cap[15][g_] -= 1
        ops.sort(key=lambda x: (x[0], x[1]))
        ops2 = ops + [(n + 16, g_, k) for n, g_, k in ops]
        def younger(pt, n, g_=22): return len([o for o in ops2 if pt < (o[0], o[1]) < (n, g_)])
        need = {n: 63 for n in range(16)}
        ready = {}
        for k in range(8):
            pt = max((o[0], o[1]) for o in ops if o[2] == ("L", k))
            n = pt[0] + LAG; need[n % 16] = min(need[n % 16], younger(pt, n)); ready[k] = n + 1
        if OPT['nolw']: need = {n: 63 for n in range(16)}
        if not OPT['noack']: need[NACK] = min(need[NACK], younger(max((o[0], o[1]) for o in ops if o[2] == "S"), NACK))
        n, g_ = 0, 0
        for k in list(range(8)) + ["cv"]:
            if k != "cv" and n < ready[k]: n, g_ = ready[k], 0
            for op in (rcv if k == "cv" else rops(k)):
                while cap[n % 16][g_] <= 0:
                    g_ += 1
                    if g_ == 24: n += 1; g_ = 0
                if not OPT['norv']: Ss[n % 16].v(g_, lambda op=op: a._emit(op))
                cap[n % 16][g_] -= 1
                if n >= 16: late.append(op)
        assert (n, g_) < (16 + NOUT, 18) and ready[0] > NOUT, (n, g_, ready)
        S = Ss[0]
        S.h(14, f"s_cmp_eq_u32 s{sGc}, 1024")
        S.h(15, f"s_cselect_b32 s{sWo+2}, 0, s{sWo+2}")
        w0_site(Ss[0], 2, 512, lambda: a._emit(f"global_load_dword v{vPoll}, v{vFi}, s[28:29] sc1"))
        def chk(cnt=younger((0, 2), 2, 17)):
            a.e(f"s_lshr_b32 s{sT2}, s{sGc}, 8"); a.e(f"s_sub_u32 s{sT2}, s{sT2}, 1")
            spin(f"s{sT2}", vFi, vPoll, "s[28:29]", f"s_waitcnt vmcnt({cnt})")
        w0_site(Ss[2], 17, 512, chk)
        def pub():
            a.e(f"s_lshr_b32 s{sT2}, s{sGc}, 8"); a.e(f"v_mov_b32 v{vVal}, s{sT2}"); flag_store()
        w0_site(Ss[NACK + 1], 2, 256, pub)
        S = Ss[15]
        S.h(0, f"s_cmp_ge_u32 s{sGc}, 256")
        S.h(1, f"s_cselect_b32 s{sPr+2}, {198*CH}, 0")
        S.h(2, f"s_cmp_ge_u32 s{sGc}, 512")
        S.h(3, f"s_cselect_b32 s{sOut+2}, {95*2560 + 1024 + 64}, 0")
        S.h(7, f"s_add_u32 s{sRo2}, s{sPo}, 4096")
        S.h(8, f"s_sub_u32 s{sOo}, s{sGc}, 512")
        S.h(12, f"s_mov_b32 s{sRo}, s{sPo}")
        if OPT["ldfix"]: S.h(12, f"s_mov_b32 s{sRo}, 0"); S.h(12, f"s_mov_b32 s{sRo2}, 4096")
        S.h(13, f"s_mov_b32 s{sP+2}, {239*CH + 1024}")
        S.h(14, f"s_mul_i32 s{sPo}, s{sGc}, {48*CH//256}")
        S.h(15, f"s_add_u32 s{sGc}, s{sGc}, 256")
        for r in range(4): S.h(16 + r, f"s_add_u32 s{sH[r]}, s{sH[r]}, 256")
        S.h(21, f"s_cmp_lt_u32 s{sGc}, 1280")
        for n in range(16):
            a.c(f"G sub-step {n}")
            extra = len([o for o in ops if o[2] != "T" and (n - 13, 11) < (o[0], o[1]) < (n, 22)])
            end_sync(a, Ss[n], min(26 + extra, need[n]))
            Ss[n].emit(gmf(n + 1)[0])
    if OPT["qprof"] == 2: stamp(a, 5); stamp(a, 6, False)
    a.e("L_gloop:")
    if OPT["qprof"] == 4:
        a.e(f"s_lshr_b32 s{sT3}, s{sGc}, 8"); stamp_dyn(a, 4, sT3, 5)
    mark = len(a.ins); nops0 = a.nops
    g4_body(); lg_end = list(a.lg)
    del a.ins[mark:]; a.nops = nops0
    g4_body(); assert a.lg == lg_end
    a.e("s_cbranch_scc1 L_gloop")
    if OPT["qprof"] == 2: stamp(a, 7); stamp(a, 8, False)
    if OPT["qprof"] == 4: stamp(a, 3)
    a.c("tail: publish the last pass, finish pass 2, reduce the last two")
    l = newlabel("t0")
    a.e(f"s_cmp_lg_u32 s{sWv}, 0"); a.e(f"s_cbranch_scc1 {l}")
    a._emit(f"global_load_dword v{vPoll}, v{vFi}, s[28:29] sc1")
    a.e(f"{l}:")
    for c in range(NLAST, 48): a.e(CVS[c])
    for q in range(12): emit_tile(a, [gst(q, 0, sPo)])
    stamp(a, 2)
    vmw(a, 12)
    l = newlabel("t1")
    a.e(f"s_cmp_lg_u32 s{sWv}, 0"); a.e(f"s_cbranch_scc1 {l}")
    spin(4, vFi, vPoll, "s[28:29]", "s_nop 0")
    a.e(f"{l}:")
    a.e("s_barrier")
    for k in range(8):
        for b in range(2): a._emit(rld(k, b, 160, 192))
    for op in late: a._emit(op)
    vmw(a, 16)
    a.e("s_barrier")
    l = newlabel("t2")
    a.e(f"s_cmp_lg_u32 s{sWv}, 0"); a.e(f"s_cbranch_scc1 {l}")
    a.e(f"v_mov_b32 v{vVal}, 5"); flag_store()
    a.e(f"{l}:")
    for op in rst: a._emit(op)
    a.e(f"s_mov_b32 s{sOo}, 768")
    def tail_reduce(la, lb, extra):
        for k in range(8):
            vmw(a, 2 * (7 - k) + extra)
            for op in rops(k, la, lb): a._emit(op)
        for op in rcv: a._emit(op)
        for op in rst: a._emit(op)
    tail_reduce(160, 192, 2)
    a.e(f"s_mov_b32 s{sRo}, s{sPo}"); a.e(f"s_add_u32 s{sRo2}, s{sPo}, 4096"); a.e(f"s_mov_b32 s{sOo}, 1024")
    l = newlabel("t3")
    a.e(f"s_cmp_lg_u32 s{sWv}, 0"); a.e(f"s_cbranch_scc1 {l}")
    a._emit(f"global_load_dword v{vPoll}, v{vFi}, s[28:29] sc1")
    spin(5, vFi, vPoll, "s[28:29]", "s_waitcnt vmcnt(0)")
    a.e(f"{l}:")
    a.e("s_barrier")
    for k in range(8):
        for b in range(2): a._emit(rld(k, b))
    tail_reduce(LA, LB, 0)
    stamp(a, 9, False); stamp(a, 10)
    if OPT["leak"] >= 0:
        k = OPT["leak"]
        if k == 0: a.e("s_mov_b32 s79, 0")
        elif k == 9: a.e("s_sub_u32 s79, s98, s82"); a.e("s_lshr_b32 s79, s79, 4")
        else: a.e(f"s_sub_u32 s79, s{80+2*k}, s80")
        a.e("s_add_u32 s79, s79, 15000")
        a.e("L_leak:")
        a._emit("s_memrealtime s[76:77]"); a.raw_wait("s_waitcnt lgkmcnt(0)")
        a.e("s_sub_u32 s76, s76, s80"); a.e("s_cmp_lt_u32 s76, s79"); a.e("s_cbranch_scc1 L_leak")
    stamp_store(a, "L_end", 0)
    dbg_store(a)
    a.e("L_end:")
    a.e("s_endpgm")
    for l0, l1, fn in list(oob2):
        a.e(f"{l0}:"); fn(); a.e(f"s_branch {l1}")
    a.reset_counters()
    a.e("L_slow:")
    a.raw_wait("s_waitcnt vmcnt(0) lgkmcnt(0)")
    vKo, vVo, t0, t1 = 10, 11, P_ + 12, P_ + 13
    a.e("s_nop 7")
    a.e(f"v_and_b32 v{t0}, 7, v0"); a.e(f"v_lshlrev_b32 v{t0}, 10, v{t0}")
    a.e(f"v_bfe_u32 v{t1}, v0, 3, 1"); a.e(f"v_lshl_add_u32 v{t0}, v{t1}, 8, v{t0}")
    a.e(f"v_lshrrev_b32 v{t1}, 4, v0"); a.e(f"v_lshl_add_u32 v{vKo}, v{t1}, 4, v{t0}")
    a.e(f"v_bfe_u32 v{t0}, v0, 4, 1"); a.e(f"v_lshlrev_b32 v{t0}, 12, v{t0}")
    a.e(f"v_lshrrev_b32 v{t1}, 5, v0"); a.e(f"v_lshl_add_u32 v{t0}, v{t1}, 8, v{t0}")
    a.e(f"v_and_b32 v{t1}, 15, v0"); a.e(f"v_lshl_add_u32 v{vVo}, v{t1}, 1, v{t0}")
    for j in range(3): a.e(f"v_mov_b32 v{vT+j}, 0xff800000")
    def slow_qk(cinit):
        for u, kf in ((0, KF), (1, VF)):
            for ks in range(4): a.e(f"buffer_load_dwordx4 {vr(kf + 4*ks,4)}, v{vKo}, {sr(sK,4)}, s{sT2} offen offset:{u*512 + ks*64}")
        for u, kf in ((0, KF), (1, VF)):
            for j in range(3):
                for ks in range(4):
                    a.e(mf(Sr(u, j), kf + 4*ks, Qf(j, ks), (Nm(j) if cinit else None) if ks == 0 else Sr(u, j)))
    a.e(f"s_mov_b32 s{sT2}, s{sCur}")
    a.e(f"s_add_u32 s{sT3}, s{sCur}, 131072")
    a.e("L_slow_p1:")
    slow_qk(False)
    for j in range(3):
        for u in range(2):
            s = Sr(u, j)
            a.e(f"v_max3_f32 v{vT+j}, v{vT+j}, v{s}, v{s+1}")
            a.e(f"v_max3_f32 v{vT+j}, v{vT+j}, v{s+2}, v{s+3}")
    a.e(f"s_add_u32 s{sT2}, s{sT2}, 8192")
    a.e(f"s_cmp_lt_u32 s{sT2}, s{sT3}")
    a.e("s_cbranch_scc1 L_slow_p1")
    rowred(a, "v_max_f32", [vT, vT+1, vT+2], [Nm(j) for j in range(3)])
    for j in range(3):
        for r in range(4): a.e(f"v_sub_f32 v{Nm(j)+r}, 0, v{vT+j}")
    for r in range(96): a.e(f"v_mov_b32 v{O_+r}, 0")
    for r in range(12): a.e(f"v_accvgpr_write_b32 a{192+r}, 0")
    a.e(f"s_mov_b32 s{sT2}, s{sCur}")
    a.e("L_slow_p2:")
    slow_qk(True)
    for u in range(2):
        for k in range(12): a.e(ex(u, k))
    for u in range(2):
        for c in range(6): a.e(cv(u, 0, c))
    for half, fr in ((0, KF), (1, VF)):
        for hi in range(2):
            for i in range(4):
                for e in range(2):
                    for rp in range(2):
                        r = 2*rp + hi
                        a.e(f"buffer_load_ushort v{(S_ if hi else fr) + 4*i + 2*e + rp}, v{vVo}, {sr(sV,4)}, s{sT2} offen offset:{r*1024 + e*512 + (4*half+i)*32}")
        a.wait(vm="all")
        for x in range(16): a.e(f"v_lshl_or_b32 v{fr+x}, v{S_+x}, 16, v{fr+x}")
    for m in sm(2): a.e(m)
    for half, fr in ((0, KF), (1, VF)):
        for m in pv(2, half, fr): a.e(m)
    a.e(f"s_add_u32 s{sT2}, s{sT2}, 8192")
    a.e(f"s_cmp_lt_u32 s{sT2}, s{sT3}")
    a.e("s_nop 7")
    a.e("s_cbranch_scc1 L_slow_p2")
    for j in range(3): a.e(f"v_accvgpr_read_b32 v{vT+j}, a{La(j)[1]}")
    a.e("s_branch L_epi")
    return a

HDR = f"""; Fused attention blocks A and B in one launch. One workgroup per CU owns 4 heads of one batch: Q projection,
; @launch grid=(256,1,1) block=(256,1,1) lds={LDS}
.amdgcn_target "amdgcn-amd-amdhsa--gfx950"
.text
"""
def kern(name, a):
    return f".globl {name}\n.p2align 8\n.type {name},@function\n{name}:\n" + a.text()
def desc(name, nv, acc, ns):
    return f""".p2align 6
.amdhsa_kernel {name}
  .amdhsa_next_free_vgpr {nv}
  .amdhsa_next_free_sgpr {ns}
  .amdhsa_accum_offset {acc}
  .amdhsa_group_segment_fixed_size 0
  .amdhsa_kernarg_size 104
  .amdhsa_user_sgpr_count 2
  .amdhsa_user_sgpr_kernarg_segment_ptr 1
  .amdhsa_system_sgpr_workgroup_id_x 1
  .amdhsa_float_denorm_mode_32 3
.end_amdhsa_kernel
"""
if __name__ == "__main__":
    a = main_kernel()
    if OPT["nodma"] & 1: a.ins = [i for i in a.ins if not (i.kind == "dma" and " v1, " in i.text)]
    if OPT["nodma"] & 2: a.ins = [i for i in a.ins if not (i.kind == "dma" and " v1, " not in i.text)]
    if OPT["nodma"] & 4: a.ins = [i for i in a.ins if not (i.kind == "store" and "v154" in i.text)]
    if OPT["nox2"]: a.ins = [i for i in a.ins if not (i.kind == "vmem" and ("v121," in i.text))]
    if OPT["noload"]: a.ins = [i for i in a.ins if not (i.kind == "vmem" and ("v120," in i.text or "v121," in i.text))]
    if OPT["strip"] == 2:
        i0 = [k for k, i in enumerate(a.ins) if i.text == "L_head:"][0]; i1 = [k for k, i in enumerate(a.ins) if i.text == "L_epi:"][0]
        a.ins = a.ins[:i0] + [Ins("s_nop 4") if i.kind == "mfma" else i for i in a.ins[i0:i1] if i.kind not in ("lds", "trans", "valu")] + a.ins[i1:]
    if OPT["strip"] == 1:
        i0 = [k for k, i in enumerate(a.ins) if i.text == "L_head:"][0]; i1 = [k for k, i in enumerate(a.ins) if i.text == "L_epi:"][0]
        a.ins = a.ins[:i0] + [i for i in a.ins[i0:i1] if i.kind not in ("mfma", "lds", "trans", "valu")] + a.ins[i1:]
    ns = 102 if OPT["stamp"] else NSGPR
    open(sys.argv[1], "w").write(HDR + kern(NAME + "_kernel", a) + '.section .rodata,"a"\n' + desc(NAME + "_kernel", 512, 256, ns))
    print("instrs", len(a.ins), "nops", a.nops)
```

```python
import sys, math, struct
from asmlib import *

NAME = "concat_heads__mha_block_cached__gqa_block_cached__near_ridge"
def f32(x): return "0x%08x" % struct.unpack("<I", struct.pack("<f", x))[0]
OPT = dict(stamp=0, nodma=0, nocheck=0, touch=1, forceslow=0, map84=0, first=6, rot=1, strip=0, cyc=0, typ=0, track=1, nosync=0, sleep=8, lag=4, noack=0, noload=0, stpol=1, nolw=0, krot=1, leak=-1, leakwg=0, st0=0, norv=0, now0=0, gcap=0, qprof=0, la=6, ldpol=1, lmode=0, ldfix=0, nox2=0, wnt=0, xnt=0, t0x=0, t0w=0, ctouch=0, dbgout=0)
for a_ in sys.argv[2:]:
    k_, v_ = a_.split("="); assert k_ in OPT, k_; OPT[k_] = int(v_)

def R(x, n):
    t, i = x if isinstance(x, tuple) else ("v", x)
    return f"{t}{i}" if n == 1 else f"{t}[{i}:{i+n-1}]"
def off(x, d): return (x[0], x[1] + d) if isinstance(x, tuple) else x + d
def mf(d, a, b, c):
    return f"v_mfma_f32_16x16x32_bf16 {R(d,4)}, {R(a,4)}, {R(b,4)}, {'0' if c is None else R(c,4)}"

TILE = 8448
VB = 8 * TILE
XB = 16 * TILE
LDS = XB + 24576
NSLOT = {0: 8, 1: 16, 2: 12}[OPT["typ"]]
CH = NSLOT * 1024
PART = 240 * CH
STAMP_AT = 128 << 20
FLG = 120 << 20
SPIN_MAX = 200000
def slot(m):
    m %= 16
    return (m & 1), (m >> 1) * TILE

vKV, vKA, vVA, vWAl, vWAh, vW = 1, 2, 3, 4, 5, 6
vT = 7
QF, NM, S_, P_, KF, VF, O_ = 12, 60, 72, 96, 120, 136, 160
vX0, vX1, vXA0, vXA1 = 156, 157, 158, 159
vTo, vD, vPt, vWo = 152, 153, 154, 155
def Qf(j, ks): return QF + 16 * j + 4 * ks
def Nm(j): return NM + 4 * j
def Sr(u, j): return S_ + 12 * u + 4 * j
def Pr(buf, j): return P_ + 12 * buf + 4 * j
def Or(i, j): return O_ + 12 * i + 4 * j
def Wreg(buf, i): return 12 + 32 * buf + 4 * i
def Xreg(buf, j, s): return 76 + 24 * buf + 8 * j + 4 * s
def Qacc(pos, i, j):
    k = 12 * i + 4 * j
    if pos == 0: return ("a", k)
    if pos == 1: return ("a", 96 + k)
    if pos == 2: return ("a", 192 + k) if k < 64 else 124 + (k - 64)
    return O_ + k
QBANK = {3: 0, 2: 48, 1: 96}
OBANK = {0: 144, 1: 96, 2: 48, 3: 0}
def La(j): return ("a", 192 + 4 * j)
ONES = ("a", 204)
def Greg(buf, i): return ("a", 192 + 32 * buf + 4 * i)
sX, sW, sK, sV, sWo, sP = 32, 36, 40, 44, 48, 52
sWv, sKVL, sWL, sXL, sOff, sOff2, sTmp, sR, sCur, sT2, sT3 = 60, 61, 62, 63, 64, 65, 66, 67, 68, 69, 70
sB, sU, sBr, sG, sXo, sPo = 71, 72, 73, 74, 75, 76
sCX, sNX, sLast, sS8, sWoB, sTask, sTyp = 56, 57, 58, 59, 77, 30, 31
sWq, sGc = 26, 27
sWq1, sJ, sRot, sPM, sPK = 20, 21, 22, 23, 24
sH = [4, 5, 6, 7]
NSGPR = 80

def stamp(a, k, real=True):
    if not OPT["stamp"]: return
    lg = list(a.lg)
    a.raw_wait("s_waitcnt lgkmcnt(0)")
    if OPT["cyc"] and 2 <= k <= 8: real = False
    a._emit(f"{'s_memrealtime' if real else 's_memtime'} s[{80+2*k}:{81+2*k}]")
    a.raw_wait("s_waitcnt lgkmcnt(0)")
def stamp_dyn(a, base, sidx, n):
    if not OPT["stamp"]: return
    a.raw_wait("s_waitcnt lgkmcnt(0)")
    a._emit("s_memtime s[78:79]" if OPT["cyc"] else "s_memrealtime s[78:79]")
    a.raw_wait("s_waitcnt lgkmcnt(0)")
    for q in range(n):
        a.e(f"s_cmp_eq_u32 s{sidx}, {q}")
        a.e(f"s_cselect_b32 s{80+2*(base+q)}, s78, s{80+2*(base+q)}")
def stamp_store(a, label, base):
    if not OPT["stamp"]: return
    a.e(f"s_cmp_lg_u32 s{sWv}, 0")
    a.e(f"s_cbranch_scc1 {label}")
    for k in range(11): a.e(f"v_mov_b32 v{16+k}, s{80+2*k}")
    a.e("s_lshl_b32 s78, s2, 6"); a.e(f"s_add_u32 s78, s78, {STAMP_AT + base*64}")
    a.e("v_mov_b32 v28, s78")
    a.e("s_mov_b64 exec, 1")
    a.e("global_store_dwordx4 v28, v[16:19], s[28:29]")
    a.e("global_store_dwordx4 v28, v[20:23], s[28:29] offset:16")
    a.e("global_store_dwordx4 v28, v[24:27], s[28:29] offset:32")

def dbg_store(a):
    if not OPT["dbgout"]: return
    l = "L_dbgskip"
    a.e("s_and_b32 s78, s2, 0xdf"); a.e("s_cmp_lg_u32 s78, 5"); a.e(f"s_cbranch_scc1 {l}")
    a.e("s_load_dwordx2 s[24:25], s[0:1], 88")
    for n, k in enumerate((3,4,5,6,7,8,2,10)):
        a.e(f"s_sub_u32 s79, s{80+2*k}, s80"); a.e(f"v_mov_b32 v{32+n}, s79")
    a.e("s_and_b32 s78, s2, 32"); a.e("v_mov_b32 v29, s78")
    a.raw_wait("s_waitcnt lgkmcnt(0)")
    a.e("global_store_dwordx4 v29, v[32:35], s[24:25]")
    a.e("global_store_dwordx4 v29, v[36:39], s[24:25] offset:16")
    a.e(f"{l}:")

def srd(a, d, lo, o, size):
    a.e(f"s_add_u32 s{d}, s{lo}, {o}")
    a.e(f"s_addc_u32 s{d+1}, s{lo+1}, 0")
    a.e(f"s_and_b32 s{d+1}, s{d+1}, 0xffff")
    a.e(f"s_mov_b32 s{d+2}, {size}")
    a.e(f"s_mov_b32 s{d+3}, 0x20000")
_lbl = [0]
def newlabel(p):
    _lbl[0] += 1
    return f"L_{p}_{_lbl[0]}"
class U(str): pass

def ldsbase(m):
    h, o = slot(m); return h * VB + o
def w_tile(m, n):
    b = ldsbase(m); base = sWq if n < 16 else sWq1
    rel = ((n % 16) >> 2) * 262144 + (3 - (n & 3)) * 256
    pol = ' nt' if OPT['wnt'] else ''
    return [([f"s_xor_b32 s{sOff}, s{base}, {rel}", f"s_add_u32 m0, s{sWL}, {b}"], f"buffer_load_dwordx4 v{vW}, {sr(sW,4)}, s{sOff} offen{pol} lds"),
            ([f"s_xor_b32 s{sOff}, s{base}, {rel + 8192}", f"s_add_u32 m0, s{sWL}, {b + 1032}"], f"buffer_load_dwordx4 v{vW}, {sr(sW,4)}, s{sOff} offen{pol} lds")]
def kv_tile(m, t):
    b = ldsbase(m); s = sV if m & 1 else sK
    so = f"s_xor_b32 s{sOff}, s{sNX if t >= 16 else sCX}, {(t % 16) * 8192}"
    return [([so, f"s_add_u32 m0, s{sKVL}, {b}"], f"buffer_load_dwordx4 v{vKV}, {sr(s,4)}, s{sOff} offen nt lds"),
            ([f"s_add_u32 m0, s{sKVL}, {b + 32}"], f"buffer_load_dwordx4 v{vKV}, {sr(s,4)}, s{sOff} offen offset:1024 nt lds")]
def wo_tile(m, rel, base_s):
    b = ldsbase(m)
    def so(x): return f"s_add_u32 s{sOff}, s{base_s}, {x}" if base_s is not None else f"s_mov_b32 s{sOff}, {x}"
    return [([so(rel), f"s_add_u32 m0, s{sWL}, {b}"], f"buffer_load_dwordx4 v{vWo}, {sr(sWo,4)}, s{sOff} offen lds"),
            ([so(rel + 1280), f"s_add_u32 m0, s{sWL}, {b + 1032}"], f"buffer_load_dwordx4 v{vWo}, {sr(sWo,4)}, s{sOff} offen lds")]
def emit_tile(a, steps):
    for pre, d in steps:
        for x in pre: a.e(x)
        a._emit(d)
def place_tile(a, S, steps, gaps):
    for (pre, d), g in zip(steps, gaps):
        for k, x in enumerate(pre): S.h(g - len(pre) + k, x)
        S.v(g, lambda d=d: a._emit(d))
def rd_w(dst, m, i):
    h, o = slot(m); p, u = divmod(i, 2)
    return [f"ds_read_b64_tr_b16 {R(off(dst, 2*e), 2)}, v{(vWAl, vWAh)[h]} offset:{o + e*512 + p*64 + u*8}" for e in range(2)]
def vmw(a, n): a.raw_wait(f"s_waitcnt vmcnt({n})")

def rowred(a, op, regs, tmps):
    for w in (32, 16):
        for r, t in zip(regs, tmps): a.e(f"v_mov_b32 v{t}, v{r}")
        for r, t in zip(regs, tmps): a.e(f"v_permlane{w}_swap_b32 v{r}, v{t}")
        for r, t in zip(regs, tmps): a.e(f"{op} v{r}, v{r}, v{t}")

RDPOS = [0,1,2,3,4,5,7,8,9,10,12,13,14,15,17,18]
RDPOS_X = [2,3,5,6,8,9,11,12,14,15,16,17,18,19,20,21]

def code_touch(a, lo, hi, vaddr, vdst):
    if not OPT["ctouch"]: return
    l = newlabel("pc")
    a.e("s_getpc_b64 s[14:15]")
    a.e(f"{l}:")
    a.e(f"s_add_u32 s14, s14, {lo}-{l}"); a.e("s_addc_u32 s15, s15, 0")
    a.e(f"s_lshr_b32 s{sT2}, s2, 3"); a.e(f"s_lshl_b32 s{sT2}, s{sT2}, 2"); a.e(f"s_add_u32 s{sT2}, s{sT2}, s{sWv}"); a.e(f"s_lshl_b32 s{sT2}, s{sT2}, 7")
    a.e(f"v_and_b32 v{vaddr}, 3, v0"); a.e(f"v_lshlrev_b32 v{vaddr}, 14, v{vaddr}"); a.e(f"v_add_u32 v{vaddr}, s{sT2}, v{vaddr}")
    a.e(f"v_min_u32 v{vaddr}, {hi}-{lo}-4, v{vaddr}")
    a._emit(f"global_load_dword v{vdst}, v{vaddr}, s[14:15]")

def late_consts(a):
    a.e(f"v_min_u32 v{vTo}, 19, v0"); a.e(f"v_lshlrev_b32 v{vTo}, 7, v{vTo}")
    a.e(f"s_mul_i32 s{sTmp}, s{sB}, 10240"); a.e(f"s_mul_i32 s{sT2}, s{sWv}, 2560"); a.e(f"s_add_u32 s{sTmp}, s{sTmp}, s{sT2}")
    a.e(f"v_add_u32 v{vTo}, s{sTmp}, v{vTo}")
    a.e(f"s_mul_i32 s{sTmp}, s{sWv}, {3*CH}"); a.e(f"v_lshlrev_b32 v{vPt}, 4, v0"); a.e(f"v_add_u32 v{vPt}, s{sTmp}, v{vPt}")
    a.e("v_lshrrev_b32 v9, 4, v0"); a.e(f"s_lshl_b32 s{sTmp}, s{sWv}, 1"); a.e(f"v_lshl_add_u32 v9, v9, 3, s{sTmp}")
    a.e("v_mul_u32_u24 v9, 1280, v9"); a.e("v_and_b32 v8, 15, v0"); a.e(f"v_lshl_add_u32 v{vWo}, v8, 4, v9")

def x_block(j, rel, base_s, op="s_add_u32"):
    so = f"{op} s{sOff2}, s{base_s}, {rel + j*20480}" if base_s is not None else f"s_mov_b32 s{sOff2}, {rel + j*20480}"
    return [([so, f"s_add_u32 m0, s{sXL}, {j*2048}"], f"buffer_load_dwordx4 v{vX0}, {sr(sX,4)}, s{sOff2} offen{' nt' if OPT['xnt'] else ''} lds"),
            ([f"s_add_u32 m0, s{sXL}, {j*2048 + 1024}"], f"buffer_load_dwordx4 v{vX1}, {sr(sX,4)}, s{sOff2} offen{' nt' if OPT['xnt'] else ''} lds")]
def rd_xb(dst, j, s): return f"ds_read_b128 {R(dst,4)}, v{(vXA0, vXA1)[s]} offset:{j*2048}"

def end_sync(a, S, vm, keep=2):
    def w():
        n = min(len(a.lg), keep)
        a.raw_wait(f"s_waitcnt vmcnt({vm}) lgkmcnt({n})")
        a.lg = a.lg[len(a.lg) - n:] if n else []
    S.h(22, w); S.h(23, "s_barrier")

def convert(a, acc, dests, tmp):
    a.e(f"s_mov_b32 s{sTmp}, {f32(math.log2(math.e) / math.sqrt(128.0))}")
    k = 0
    for pos, db in enumerate(dests):
        for p in range(4):
            for j in range(3):
                t = tmp[k % len(tmp)]; k += 1
                src = []
                for u in range(2):
                    o = acc(pos, 2*p + u, j)
                    for r in range(4):
                        if isinstance(o, tuple):
                            a.e(f"v_accvgpr_read_b32 v{t+4*u+r}, a{o[1]+r}"); src.append(t + 4*u + r)
                        else: src.append(o + r)
                for x in src: a.e(f"v_mul_f32 v{x}, s{sTmp}, v{x}")
                d = Qf(j, p) if db is None else t + 8
                for r in range(4): a.e(f"v_cvt_pk_bf16_f32 v{d+r}, v{src[2*r]}, v{src[2*r+1]}")
                if db is not None:
                    for r in range(4): a.e(f"v_accvgpr_write_b32 a{db + 12*p + 4*j + r}, v{d+r}")

def gcv(m, h):
    i, j = divmod(m, 3); p, u = divmod(i, 2); o = Or(i, j)
    return f"v_cvt_pk_bf16_f32 v{S_ + 12*p + 4*j + 2*u + h}, v{o+2*h}, v{o+2*h+1}"
CVS = [gcv(m, h) for m in range(24) for h in range(2)]
def gst(q, rel, base_s):
    p, j = divmod(q, 3)
    return ([f"s_add_u32 s{sOff2}, s{base_s}, {rel + (p*12 + j)*CH}"], f"buffer_store_dwordx4 {vr(S_ + 12*p + 4*j,4)}, v{vPt}, {sr(sP,4)}, s{sOff2} offen{['', ' sc1', ' nt', ' sc0'][OPT['stpol']]}")
def cv_plans():
    caps = [0 if g in (6, 11) else (1 if g in RDPOS else 2) for g in range(24)]
    last = []; ci = 0
    for g, cp in enumerate(caps):
        for _ in range(cp):
            if ci < 48 and ci // 2 + 4 <= g: last.append((g, ci)); ci += 1
    n = ci; first = []
    for g, cp in enumerate(caps):
        for _ in range(cp):
            if ci < 48: first.append((g, ci)); ci += 1
    assert ci == 48 and all(c // 2 > g for g, c in first)
    return last, first, n
PLAN_LAST, PLAN_FIRST, NLAST = cv_plans()

def Q2acc(pos, i, j): return (56 if pos == 0 else O_) + 12 * i + 4 * j
def X2reg(c, j, s): return ("a", 24 * (c % 8) + 8 * j + 4 * s)
def w2rel(n): return (n >> 1) * 262144 + (1 - (n & 1)) * 256
def q2mf(n):
    s, pos = divmod(n, 2)
    return [mf(Q2acc(pos, i, j), Greg(n & 1, i), X2reg(s >> 1, j, s & 1), None if s == 0 else Q2acc(pos, i, j)) for i in range(8) for j in range(3)]

def main_kernel():
    a = Asm()
    T = OPT["typ"]
    if OPT["st0"]: a._emit("s_memrealtime s[80:81]")
    a.e("s_cmp_ge_u32 s2, 256")
    a.e("s_cbranch_scc1 L_end")
    a.e("s_load_dwordx16 s[4:19], s[0:1], 0")
    a.e("s_load_dwordx4 s[20:23], s[0:1], 64")
    a.e("s_load_dwordx2 s[28:29], s[0:1], 96")
    a.e(f"s_bfe_u32 s{sBr}, s2, 0x10002")
    if not OPT["map84"]:
        a.e(f"s_and_b32 s{sB}, s2, 3"); a.e(f"s_lshl_b32 s{sB}, s{sB}, 2")
        a.e(f"s_bfe_u32 s{sTmp}, s2, 0x20003"); a.e(f"s_add_u32 s{sB}, s{sB}, s{sTmp}")
        a.e(f"s_lshr_b32 s{sU}, s2, 5")
    elif OPT["map84"] == 2:
        a.e(f"s_bfe_u32 s{sB}, s2, 0x40003")
        a.e(f"s_and_b32 s{sU}, s2, 3"); a.e(f"s_lshl_b32 s{sU}, s{sU}, 1")
        a.e(f"s_lshr_b32 s{sTmp}, s2, 7"); a.e(f"s_add_u32 s{sU}, s{sU}, s{sTmp}")
    else:
        a.e(f"s_and_b32 s{sB}, s2, 1"); a.e(f"s_lshl_b32 s{sB}, s{sB}, 3")
        a.e(f"s_bfe_u32 s{sTmp}, s2, 0x30003"); a.e(f"s_add_u32 s{sB}, s{sB}, s{sTmp}")
        a.e(f"s_bfe_u32 s{sU}, s2, 0x10001"); a.e(f"s_lshl_b32 s{sU}, s{sU}, 2")
        a.e(f"s_lshr_b32 s{sTmp}, s2, 6"); a.e(f"s_add_u32 s{sU}, s{sU}, s{sTmp}")
    a.e(f"s_lshl_b32 s{sG}, s{sBr}, 4"); a.e(f"s_add_u32 s{sG}, s{sG}, s{sB}")
    if T == 2: a.e(f"s_and_b32 s{sTyp}, s{sU}, 1")
    else: a.e(f"s_mov_b32 s{sTyp}, {T}")
    a.e("v_lshrrev_b32 v7, 6, v0")
    a.e("v_and_b32 v0, 63, v0")
    a.e(f"v_readfirstlane_b32 s{sWv}, v7")
    a.e("v_and_b32 v8, 15, v0")
    a.e("v_lshrrev_b32 v9, 4, v0")
    a.e("v_and_b32 v10, 1, v9"); a.e("v_lshlrev_b32 v10, 4, v10")
    a.e("v_lshrrev_b32 v11, 1, v9"); a.e("v_lshl_add_u32 v10, v11, 2, v10")
    a.e("v_lshrrev_b32 v11, 1, v7"); a.e("v_lshl_add_u32 v10, v11, 3, v10")
    a.e("v_and_b32 v11, 1, v7"); a.e("v_lshl_add_u32 v10, v11, 1, v10")
    a.e("v_lshlrev_b32 v10, 13, v10"); a.e(f"v_lshl_add_u32 v{vW}, v8, 4, v10")
    a.e("v_mul_u32_u24 v10, 48, v7"); a.e("v_lshrrev_b32 v11, 3, v0"); a.e("v_add_u32 v10, v10, v11")
    a.e("v_mul_u32_u24 v10, 1280, v10")
    a.e("v_and_b32 v11, 7, v0"); a.e("v_xor_b32 v11, v11, v9")
    a.e(f"v_lshl_add_u32 v{vX0}, v11, 4, v10")
    a.e("v_xor_b32 v11, 4, v11"); a.e("v_add_u32 v10, 10240, v10")
    a.e(f"v_lshl_add_u32 v{vX1}, v11, 4, v10")
    a.e(f"s_mul_i32 s{sKVL}, s{sWv}, 2112")
    a.e(f"s_mov_b32 s{sWL}, s{sKVL}")
    a.e(f"s_mul_i32 s{sXL}, s{sWv}, 6144"); a.e(f"s_add_u32 s{sXL}, s{sXL}, {XB}")
    a.e(f"s_mov_b32 s{sCur}, 0"); a.e(f"s_mov_b32 s{sXo}, 0"); a.e(f"s_mov_b32 s{sWq}, 0")
    a.raw_wait("s_waitcnt lgkmcnt(0)")
    a.e(f"s_cmp_eq_u32 s{sBr}, 0")
    a.e("s_cselect_b64 s[4:5], s[4:5], s[14:15]")
    a.e("s_cselect_b64 s[6:7], s[6:7], s[16:17]")
    a.e("s_cselect_b64 s[8:9], s[8:9], s[18:19]")
    a.e("s_cselect_b64 s[10:11], s[10:11], s[20:21]")
    a.e("s_cselect_b64 s[12:13], s[12:13], s[22:23]")
    a.e("s_load_dwordx4 s[16:19], s[0:1], 80")
    a.e(f"s_mul_i32 s{sTmp}, s{sB}, 245760")
    srd(a, sX, 4, f"s{sTmp}", 245760)
    a.e(f"s_lshl_b32 s{sTmp}, s{sU}, 10")
    srd(a, sW, 10, f"s{sTmp}", 639 * 8192 + 1024)
    if OPT["krot"]: a.e(f"s_xor_b32 s{sJ}, s{sB}, s{sU}"); a.e(f"s_and_b32 s{sJ}, s{sJ}, 3")
    else: a.e(f"s_mov_b32 s{sJ}, 0")
    a.e(f"s_mul_i32 s{sWq}, s{sJ}, {262144 + 256}"); a.e(f"s_add_u32 s{sWq1}, s{sWq}, {1 << 20}")
    a.e(f"s_lshr_b32 s{sXo}, s{sJ}, 1"); a.e(f"s_lshl_b32 s{sXo}, s{sXo}, 7")
    if not OPT['st0']: stamp(a, 0)
    stamp(a, 1, False)
    for j in range(3): emit_tile(a, x_block(j, 0, sXo))
    def common_consts():
        if OPT["rot"]:
            a.e(f"s_lshr_b32 s{sRot}, s2, 4"); a.e(f"s_xor_b32 s{sRot}, s{sRot}, s2"); a.e(f"s_and_b32 s{sRot}, s{sRot}, 15"); a.e(f"s_lshl_b32 s{sRot}, s{sRot}, 13")
        else: a.e(f"s_mov_b32 s{sRot}, 0")
        a.e(f"s_lshl_b32 s{sCur}, s{sJ}, 17"); a.e(f"s_or_b32 s{sRot}, s{sRot}, s{sCur}")
        a.e(f"s_mov_b32 s{sCX}, s{sRot}"); a.e(f"s_xor_b32 s{sNX}, s{sRot}, 131072")
        a.e("v_bfe_u32 v10, v0, 2, 3")
        a.e("v_lshrrev_b32 v11, 1, v10"); a.e("v_lshlrev_b32 v11, 6, v11"); a.e(f"v_lshl_add_u32 v{vWAl}, v10, 10, v11")
        a.e("v_and_b32 v11, 1, v10"); a.e(f"v_lshl_add_u32 v{vWAl}, v11, 3, v{vWAl}")
        a.e("v_lshrrev_b32 v11, 5, v0"); a.e(f"v_lshl_add_u32 v{vWAl}, v11, 8, v{vWAl}")
        a.e("v_mul_u32_u24 v10, 1056, v10"); a.e("v_lshl_add_u32 v10, v11, 8, v10")
        a.e("v_and_b32 v11, 3, v0"); a.e(f"v_lshl_add_u32 v{vWAl}, v11, 4, v{vWAl}")
        a.e(f"v_lshl_add_u32 v10, v11, 3, v10"); a.e(f"v_add_u32 v{vVA}, {VB}, v10")
        a.e(f"v_add_u32 v{vWAh}, {VB}, v{vWAl}")
        a.e("v_and_b32 v10, 7, v8"); a.e("v_mul_u32_u24 v10, 1056, v10")
        a.e("v_lshrrev_b32 v11, 3, v8"); a.e(f"v_lshl_add_u32 v10, v11, 8, v10")
        a.e(f"v_lshl_add_u32 v{vKA}, v9, 4, v10")
        a.e("v_lshlrev_b32 v10, 4, v0"); a.e(f"v_lshl_add_u32 v{vKV}, v7, 11, v10")
        a.e(f"v_lshlrev_b32 v10, 7, v8"); a.e(f"v_add_u32 v10, s{sXL}, v10")
        a.e("v_lshrrev_b32 v11, 1, v8"); a.e("v_xor_b32 v11, v11, v9")
        a.e(f"s_and_b32 s{sTmp}, s{sJ}, 1"); a.e(f"s_lshl_b32 s{sTmp}, s{sTmp}, 2"); a.e(f"v_xor_b32 v11, s{sTmp}, v11")
        a.e(f"v_lshl_add_u32 v{vXA0}, v11, 4, v10")
        a.e("v_xor_b32 v11, 4, v11"); a.e(f"v_lshl_add_u32 v{vXA1}, v11, 4, v10")
        a.e(f"s_lshl_b32 s{sTmp}, s{sB}, 3"); a.e(f"s_add_u32 s{sTmp}, s{sTmp}, s{sU}"); a.e(f"s_lshl_b32 s{sTmp}, s{sTmp}, 19")
        srd(a, sK, 6, f"s{sTmp}", 4 * 131072)
        srd(a, sV, 8, f"s{sTmp}", 4 * 131072)
        a.e(f"s_mul_i32 s{sTmp}, s{sU}, {512*1280}")
        srd(a, sWo, 12, f"s{sTmp}", 512 * 1280)
        for r in range(4): a.e(f"s_xor_b32 s{sH[r]}, s{sJ}, {r}"); a.e(f"s_mul_i32 s{sH[r]}, s{sH[r]}, 163840")
        a.e(f"s_mov_b32 s{sPM}, s{sKVL}"); a.e(f"s_mov_b32 s{sPK}, 0")
    def touch0(three):
        if OPT["t0x"]:
            a.e("v_min_u32 v10, 59, v0"); a.e("v_lshlrev_b32 v10, 7, v10")
            a.e(f"s_lshl_b32 s{sTmp}, s{sU}, 2"); a.e(f"s_add_u32 s{sTmp}, s{sTmp}, s{sWv}"); a.e(f"s_mul_i32 s{sTmp}, s{sTmp}, 7680")
            a._emit(f"buffer_load_dword v11, v10, {sr(sX,4)}, s{sTmp} offen")
        if OPT["t0w"] and three:
            a.e("v_lshrrev_b32 v14, 2, v0"); a.e("v_lshlrev_b32 v14, 13, v14"); a.e("v_and_b32 v15, 3, v0"); a.e("v_lshl_add_u32 v14, v15, 7, v14")
            a.e(f"s_and_b32 s{sTmp}, s{sB}, 3"); a.e(f"s_lshl_b32 s{sTmp}, s{sTmp}, 2"); a.e(f"s_add_u32 s{sTmp}, s{sTmp}, s{sWv}"); a.e(f"s_lshl_b32 s{sTmp}, s{sTmp}, 17")
            for k in range(3):
                a.e(f"s_add_u32 s{sT2}, s{sTmp}, {k*256*8192}")
                a._emit(f"buffer_load_dword v{16+k}, v14, {sr(sW,4)}, s{sT2} offen")
    def part_srd(slot_expr, size):
        a.e(f"s_mul_i32 s{sTmp}, s{sG}, {PART}"); slot_expr(); a.e(f"s_lshl_b32 s{sT2}, s{sT2}, 10"); a.e(f"s_add_u32 s{sTmp}, s{sTmp}, s{sT2}")
        srd(a, sP, 28, f"s{sTmp}", size)
    NF = OPT["first"]
    LA = OPT['la']
    def wpos(n): return 8 + n % 8
    def rd_x(buf): return [rd_xb(Xreg(buf, j, s), j, s) for s in range(2) for j in range(3)]
    NF = 2
    for n in range(NF): emit_tile(a, w_tile(wpos(n), n))
    common_consts()
    touch0(False)
    code_touch(a, "L_q", "L_slow" if OPT["ctouch"] & 2 == 0 else "L_g", 10, 11)
    a.e(f"s_lshl_b32 s{sTmp}, s{sG}, 3"); a.e(f"s_add_u32 s{sTmp}, s{sTmp}, s{sU}"); a.e(f"s_lshl_b32 s{sTmp}, s{sTmp}, 8"); a.e(f"s_add_u32 s{sTmp}, s{sTmp}, {FLG}")
    a.e("v_and_b32 v8, 7, v0"); a.e(f"v_lshl_add_u32 v8, v8, 2, s{sTmp}"); a.e("v_mov_b32 v9, 0")
    l = newlabel("clr")
    a.e(f"s_cmp_lg_u32 s{sWv}, 0"); a.e(f"s_cbranch_scc1 {l}")
    a._emit("global_store_dword v8, v9, s[28:29] sc1")
    a.e(f"{l}:")
    part_srd(lambda: a.e(f"s_lshr_b32 s{sT2}, s{sU}, {1 if T == 2 else 0}"), 0)
    a.e(f"s_mov_b32 s{sLast}, 3"); a.e(f"s_mov_b32 s{sS8}, {8*40960}")
    for r in range(256):
        if r % 40 == 0 and NF + r // 40 < LA: emit_tile(a, w_tile(wpos(NF + r // 40), NF + r // 40))
        a.e(f"v_accvgpr_write_b32 a{r}, 0")
    for r in list(range(124, 156)) + list(range(160, 256)): a.e(f"v_mov_b32 v{r}, 0")
    a.raw_wait(f"s_waitcnt vmcnt({2 * (LA - 2)}) lgkmcnt(0)")
    a.e("s_barrier")
    for r in rd_x(0): a.e(r)
    for i in range(8):
        for r in rd_w(Wreg(0, i), wpos(0), i): a.e(r)
    a.raw_wait("s_waitcnt lgkmcnt(0)"); a.lg = []
    if OPT["qprof"] == 1: stamp(a, 5); stamp(a, 6, False)
    def qmf(n):
        s, pos = divmod(n % 16, 4)
        return [mf(Qacc(pos, i, j), Wreg(n & 1, i), Xreg((s >> 1) & 1, j, s & 1), Qacc(pos, i, j)) for i in range(8) for j in range(3)]
    def kv_early(isv):
        s = sV if isv else sK; b = VB if isv else 0
        return [([f"s_xor_b32 s{sOff2}, s{sCX}, s{sPK}", f"s_add_u32 m0, s{sPM}, {b}"], f"buffer_load_dwordx4 v{vKV}, {sr(s,4)}, s{sOff2} offen nt lds"),
                ([f"s_add_u32 m0, s{sPM}, {b + 32}"], f"buffer_load_dwordx4 v{vKV}, {sr(s,4)}, s{sOff2} offen offset:1024 nt lds")]
    def q_group(last):
        for n in range(16):
            a.c(f"Q sub-step {n}{' (last group)' if last else ''}")
            S = Sched(a, qmf(n))
            fin = last and n == 15
            q = n % 8
            xrd = q in (6, 7) and not (last and n >= 8)
            if not fin:
                rds = []
                for i in range(8): rds += rd_w(Wreg((n + 1) & 1, i), wpos(n + 1), i)
                for r, p in zip(rds, RDPOS): S.v(p, r)
                m = n + LA
                if not last or m < 16: place_tile(a, S, w_tile(wpos(m), m), (6, 11))
                if last and 9 <= n <= 13: place_tile(a, S, kv_tile(n - 1, (n - 1) >> 1), (16, 19))
                if not (last and n == 14):
                    hi = min(m, 15) if last else m
                    ykv = len([k for k in range(9, 14) if n + 2 - LA <= k <= n]) if last else 0
                    end_sync(a, S, 2 * (hi - (n + 2)) + 2 * ykv, 5 if xrd else 2)
            if xrd:
                rx = rd_x(((n >> 3) + 1) & 1)[3*(q-6):3*(q-6)+3]
                if q == 6: S.h(16, lambda: vmw(a, 8))
                for r, p in zip(rx, (19, 20, 21)): S.v(p, (r, "xr"))
            if q in (0, 1, 2) and not (last and n >= 8):
                if q == 0: S.h(12, lambda: a.wait(lg="xr"))
                place_tile(a, S, x_block(q, 128, sXo, "s_xor_b32") if n < 8 else x_block(q, 256, sXo), (16, 19))
            if n in (11, 12) and not last: place_tile(a, S, kv_early(n == 12), (16, 19))
            if n == 15 and not last:
                S.h(1, f"s_add_u32 s{sPM}, s{sPM}, {TILE}")
                S.h(2, f"s_add_u32 s{sPK}, s{sPK}, 8192")
                S.h(12, f"s_mov_b32 s{sWq}, s{sWq1}")
                S.h(13, f"s_add_u32 s{sWq1}, s{sWq1}, {1 << 20}")
                S.h(14, f"s_add_u32 s{sXo}, s{sXo}, 256")
                S.h(15, f"s_cmp_lt_u32 s{sXo}, 1024")
            S.emit(None if fin else qmf(n + 1)[0])
    a.e(".p2align 6")
    a.e("L_q:")
    if OPT["qprof"] == 3:
        a.e(f"s_lshr_b32 s{sT3}, s{sXo}, 8"); stamp_dyn(a, 4, sT3, 4)
    mark = len(a.ins); nops0 = a.nops
    q_group(False)
    lg_end = list(a.lg)
    del a.ins[mark:]; a.nops = nops0
    q_group(False)
    assert a.lg == lg_end
    a.e("s_cbranch_scc1 L_q")
    if OPT["qprof"] == 3: stamp(a, 8)
    q_group(True)
    if OPT["qprof"] == 1: stamp(a, 7); stamp(a, 8, False)
    stamp(a, 3)
    a.c("Q conversion")
    convert(a, Qacc, [QBANK[3], QBANK[2], QBANK[1], None], [60 + 12 * k for k in range(5)])
    late_consts(a)
    l = newlabel("boot")
    a.e(f"s_cmp_lg_u32 s{sWv}, 0"); a.e(f"s_cbranch_scc1 {l}")
    a.e(f"s_lshl_b32 s{sTmp}, s{sG}, 2"); a.e(f"s_add_u32 s{sTmp}, s{sTmp}, 128")
    a.e(f"v_mov_b32 v157, s{sTmp}"); a.e("v_mov_b32 v158, 1")
    a.e("s_mov_b64 exec, 1")
    a._emit("global_atomic_add v157, v158, s[18:19]")
    a.e("s_mov_b64 exec, -1")
    a.e(f"{l}:")
    a.e("L_enter:")
    a.e(f"v_mov_b32 v{vT}, 0x3f803f80")
    for r in range(4): a.e(f"v_accvgpr_write_b32 a{ONES[1]+r}, v{vT}")
    a.e(f"s_mov_b32 s{sR}, 0")
    def rd_k(dst, t, u): return [f"ds_read_b128 {vr(dst + 4*ks,4)}, v{vKA} offset:{(t % 8)*TILE + u*512 + ks*64}" for ks in range(4)]
    def rd_v(t, half, fr=VF):
        return [f"ds_read_b64_tr_b16 {vr(fr + 4*i + 2*e, 2)}, v{vVA} offset:{(t % 8)*TILE + e*512 + (4*half+i)*32}" for i in range(4) for e in range(2)]
    vmw(a, 10)
    a.e("s_barrier")
    a.lg = []
    for r in rd_k(VF, 0, 1) + rd_k(KF, 0, 0): a.e(r)
    if OPT["qprof"] < 3: stamp(a, 4)
    def ex(u, k): j, r = divmod(k, 4); s = Sr(u, j) + r; return f"v_exp_f32 v{s}, v{s}"
    def cv(u, buf, c): j, h = divmod(c, 2); s = Sr(u, j) + 2*h; return f"v_cvt_pk_bf16_f32 v{Pr(buf,j) + 2*u + h}, v{s}, v{s+1}"
    def qk(u): return [mf(Sr(u, j), KF + 4*ks, Qf(j, ks), Nm(j) if ks == 0 else Sr(u, j)) for j in range(3) for ks in range(4)]
    def pv(t, half, fr=VF): return [mf(Or(4*half + i, j), fr + 4*i, Pr(t & 1, j), None if t == 0 else Or(4*half + i, j)) for i in range(4) for j in range(3)]
    def sm(t): return [mf(La(j), ONES, Pr(t & 1, j), None if t == 0 else La(j)) for j in range(3)]
    oob = []
    def wo_first(n):
        return wo_tile(n, (n % 4) * 40960, sH[n // 4])
    def stream_tile(S, m, gaps):
        kv = kv_tile(m, m >> 1)
        if m < 32:
            place_tile(a, S, kv, gaps); return
        for (pre, d), (pre2, d2), g in zip(kv, wo_first(m - 32), gaps):
            for k, x in enumerate(pre): S.h(g - len(pre) + k, x)
            l0, l1 = newlabel("wo"), newlabel("back")
            def site(d=d, l0=l0, l1=l1):
                a.e(f"s_cbranch_vccnz {l0}"); a._emit(d); a.e(f"{l1}:")
            S.v(g, site)
            oob.append((l0, l1, pre2, d2))
    def tail_vec(S, u, buf, rds):
        pos = [0, 1, 4, 5, 8, 9, 10, 11]
        for r, p in zip(rds, pos): S.v(p, r)
        for k, p in zip(range(8, 12), (2, 3, 6, 7)): S.v(p, ex(u, k))
        for c, p in zip(range(6), (0, 1, 4, 5, 8, 9)): S.v(p, cv(u, buf, c))
    a.e(".p2align 6")
    a.e("L_head:")
    a.c("tile 0: scores and stand-in row max (max over the first 32 keys)")
    a.e(f"s_cmp_eq_u32 s{sR}, s{sLast}")
    for u, kf in ((1, VF), (0, KF)):
        for j in range(3):
            for ks in range(4):
                a.e(mf(Sr(u, j), kf + 4*ks, Qf(j, ks), None if ks == 0 else Sr(u, j)))
    a.e("s_cselect_b64 vcc, -1, 0")
    vmw(a, 20)
    a.e("s_barrier")
    for r in rd_k(KF, 1, 0): a.e(r)
    emit_tile(a, kv_tile(13, 6)); emit_tile(a, kv_tile(14, 7))
    if OPT["touch"]:
        a.e(f"s_mul_i32 s{sT2}, s{sR}, 163840")
        a._emit(f"buffer_load_dword v{vD}, v{vTo}, {sr(sWo,4)}, s{sT2} offen")
    if OPT["ctouch"] & 2:
        l = newlabel("ct")
        a.e(f"s_cbranch_vccz {l}")
        code_touch(a, "L_g", "L_slow", 158, 159)
        a.e(f"{l}:")
    l = newlabel("bp")
    a.e(f"s_xor_b32 s{sT2}, s{sR}, 3"); a.e(f"s_or_b32 s{sT2}, s{sT2}, s{sWv}"); a.e(f"s_cbranch_scc1 {l}")
    a._emit("global_load_dword v156, v157, s[18:19] sc1")
    a.e(f"{l}:")
    for j in range(3):
        n = Nm(j); s0 = Sr(0, j); s1 = Sr(1, j)
        a.e(f"v_max3_f32 v{n}, v{s1}, v{s1+1}, v{s1+2}")
        a.e(f"v_max3_f32 v{n+1}, v{s1+3}, v{s0}, v{s0+1}")
        a.e(f"v_max3_f32 v{n}, v{n}, v{s0+2}, v{s0+3}")
        a.e(f"v_max_f32 v{n}, v{n}, v{n+1}")
    rowred(a, "v_max_f32", [Nm(j) for j in range(3)], [Nm(j) + 1 for j in range(3)])
    for j in range(3):
        n = Nm(j)
        a.e(f"v_sub_f32 v{n}, 0, v{n}")
        for r in range(1, 4): a.e(f"v_mov_b32 v{n+r}, v{n}")
    for u in range(2):
        for j in range(3):
            for r in range(4): a.e(f"v_add_f32 v{Sr(u,j)+r}, v{Sr(u,j)+r}, v{Nm(j)}")
    for k in range(12): a.e(ex(0, k))
    for k in range(8): a.e(ex(1, k))
    for c in range(6): a.e(cv(0, 0, c))
    for t in range(15):
        a.c(f"stage {t}")
        S = Sched(a, qk(0)); tail_vec(S, 1, t & 1, rd_v(t, 0)); S.emit(pv(t, 0)[0])
        S = Sched(a, pv(t, 0))
        for r, p in zip(rd_k(KF, t+1, 1), (0, 1, 2, 3)): S.v(p, r)
        for k, p in zip(range(8), range(4, 12)): S.v(p, ex(0, k))
        S.h(10, lambda: a.wait(lg="all"))
        S.emit(qk(1)[0])
        S = Sched(a, qk(1)); tail_vec(S, 0, (t+1) & 1, rd_v(t, 1))
        S.h(11, lambda: vmw(a, 20))
        S.emit(None)
        S = Sched(a, sm(t) + pv(t, 1))
        S.h(0, "s_barrier")
        if t + 2 < 16:
            for r, p in zip(rd_k(KF, t+2, 0), (0, 1, 2, 3)): S.v(p, r)
        for k, p in zip(range(8), (3, 4, 6, 7, 9, 10, 12, 13)): S.v(p, ex(1, k))
        stream_tile(S, 2*(t+7) + 1, (5, 8))
        stream_tile(S, 2*(t+8), (11, 14))
        S.h(12, lambda: a.wait(lg="all"))
        S.emit(qk(0)[0] if t < 14 else None)
    a.c("stage 15")
    for r in rd_v(15, 0): a.e(r)
    for k in range(8, 12): a.e(ex(1, k))
    for c in range(6): a.e(cv(1, 1, c))
    S = Sched(a, sm(15) + pv(15, 0))
    for r, p in zip(rd_v(15, 1, KF), range(8)): S.v(p, r)
    S.emit(pv(15, 1, KF)[0])
    S = Sched(a, pv(15, 1, KF))
    for j in range(3): S.v(j, f"v_accvgpr_read_b32 v{vT+j}, a{La(j)[1]}")
    S.v(3, f"v_add_f32 v{vT+3}, v{vT}, v{vT+1}"); S.v(4, f"v_add_f32 v{vT+3}, v{vT+3}, v{vT+2}")
    S.v(5, f"v_mov_b32 v{vT+4}, {f32(2.0**30 if not OPT['forceslow'] else 150.0)}")
    S.v(6, f"v_cmp_nle_f32 vcc, v{vT+3}, v{vT+4}")
    S.emit(None)
    assert not a.lg
    if not OPT["nocheck"]: a.e("s_cbranch_vccnz L_slow")
    a.e("L_epi:")
    for r in rd_k(VF, 0, 1) + rd_k(KF, 0, 0): a.e(r)
    for j in range(3): a.e(f"v_rcp_f32 v{vT+j}, v{vT+j}")
    for p in range(4):
        for j in range(3):
            d = Qf(j, p)
            for u in range(2):
                o = Or(2*p + u, j)
                for r in range(4): a.e(f"v_mul_f32 v{o+r}, v{o+r}, v{vT+j}")
                a.e(f"v_cvt_pk_bf16_f32 v{d+2*u}, v{o}, v{o+1}")
                a.e(f"v_cvt_pk_bf16_f32 v{d+2*u+1}, v{o+2}, v{o+3}")
    if OPT["stamp"]:
        if not OPT['qprof']: stamp_dyn(a, 5, sR, 4)
    a.e(f"s_and_b32 s{sCur}, s{sNX}, 0x60000")
    a.e(f"s_mov_b32 s{sCX}, s{sNX}")
    a.e(f"s_add_u32 s{sT2}, s{sR}, 2"); a.e(f"s_and_b32 s{sT2}, s{sT2}, 3"); a.e(f"s_lshl_b32 s{sT2}, s{sT2}, 17"); a.e(f"s_xor_b32 s{sNX}, s{sRot}, s{sT2}")
    a.e(f"s_add_u32 s{sR}, s{sR}, 1")
    a.e(f"s_cmp_gt_u32 s{sR}, s{sLast}"); a.e("s_cbranch_scc1 L_g")
    a.e(f"s_cmp_eq_u32 s{sR}, 3"); a.e("s_cbranch_scc1 L_sw2")
    a.e(f"s_cmp_eq_u32 s{sR}, 2"); a.e("s_cbranch_scc1 L_sw1")
    for r in range(3):
        a.e(f"L_sw{r}:")
        for p in range(4):
            for j in range(3):
                for x in range(4): a.e(f"v_accvgpr_write_b32 a{OBANK[r] + 12*p + 4*j + x}, v{Qf(j,p)+x}")
        for p in range(4):
            for j in range(3):
                for x in range(4): a.e(f"v_accvgpr_read_b32 v{Qf(j,p)+x}, a{QBANK[r+1] + 12*p + 4*j + x}")
        a.e("s_nop 0")
        a.e("s_branch L_head")
    for l0, l1, pre2, d2 in oob:
        a.e(f"{l0}:")
        for x in pre2: a.e(x)
        a._emit(d2)
        a.e(f"s_branch {l1}")
    sPr, sOut, sRo, sRo2, sOo, sW0 = sX, sW, sCX, sNX, sLast, sS8
    LA, LB, ACC = 12, 44, 60
    vRA, vRB, vOA, vOB, vFl, vFi, vPoll, vVal, TM, PK = 120, 121, 122, 123, 124, 125, 126, 127, 128, 132
    def spin(need, addr, val, base, pre_wait):
        if OPT["nosync"]: return
        l0, l1 = newlabel("spin"), newlabel("ok")
        a.raw_wait(pre_wait)
        a.e(f"s_mov_b32 s{sT3}, 0")
        a.e(f"{l0}:")
        a._emit(f"v_cmp_gt_u32 vcc, {need}, v{val}")
        a._emit("s_nop 4")
        a.e(f"s_cbranch_vccz {l1}")
        a.e(f"s_add_u32 s{sT3}, s{sT3}, 1")
        a.e(f"s_cmp_ge_u32 s{sT3}, {SPIN_MAX}")
        a.e(f"s_cbranch_scc1 {l1}")
        a.e(f"s_sleep {OPT['sleep']}")
        a._emit(f"global_load_dword v{val}, v{addr}, {base} sc1")
        a.raw_wait("s_waitcnt vmcnt(0)")
        a.e(f"s_branch {l0}")
        a.e(f"{l1}:")
    def flag_store():
        a.e("s_mov_b64 exec, 0xff")
        a._emit(f"global_store_dword v{vFl}, v{vVal}, s[28:29] sc1")
        a.e("s_mov_b64 exec, -1")
    a.e(".p2align 6")
    a.e("L_g:")
    a.lg = []
    a.raw_wait("s_waitcnt vmcnt(22) lgkmcnt(0)")
    a.e("s_barrier")
    for i in range(8):
        for r in rd_w(Greg(0, i), 0, i): a.e(r)
    emit_tile(a, wo_first(13)); emit_tile(a, wo_first(14))
    for p in range(4):
        for j in range(3):
            for x in range(4): a.e(f"v_accvgpr_write_b32 a{OBANK[3] + 12*p + 4*j + x}, v{Qf(j,p)+x}")
    a.e(f"s_mul_i32 s{sTmp}, s{sG}, {PART}"); a.e(f"s_mul_i32 s{sT2}, s{sU}, {6*CH}"); a.e(f"s_add_u32 s{sTmp}, s{sTmp}, s{sT2}")
    srd(a, sPr, 28, f"s{sTmp}", 0)
    a.e(f"s_mul_i32 s{sTmp}, s{sB}, 491520"); a.e(f"s_and_b32 s{sT2}, s{sU}, 1"); a.e(f"s_mul_i32 s{sT2}, s{sT2}, 245760"); a.e(f"s_add_u32 s{sTmp}, s{sTmp}, s{sT2}")
    a.e(f"s_mul_i32 s{sT2}, s{sBr}, 1280"); a.e(f"s_add_u32 s{sTmp}, s{sTmp}, s{sT2}")
    a.e(f"s_lshr_b32 s{sT2}, s{sU}, 1"); a.e(f"s_lshl_b32 s{sT2}, s{sT2}, 6"); a.e(f"s_add_u32 s{sTmp}, s{sTmp}, s{sT2}")
    srd(a, sOut, 16, f"s{sTmp}", 0)
    a.e(f"s_mul_i32 s{sTmp}, s{sWv}, {CH}"); a.e(f"v_lshl_add_u32 v{vRA}, v0, 4, s{sTmp}")
    a.e(f"s_lshr_b32 s{sTmp}, s{sWv}, 1"); a.e(f"s_add_u32 s{sTmp}, s{sTmp}, 4"); a.e(f"s_mul_i32 s{sT3}, s{sTmp}, {CH}")
    a.e(f"s_and_b32 s{sT2}, s{sWv}, 1"); a.e(f"s_lshl_b32 s{sOff}, s{sT2}, 9"); a.e(f"s_add_u32 s{sT3}, s{sT3}, s{sOff}")
    a.e(f"v_lshl_add_u32 v{vRB}, v0, 3, s{sT3}")
    a.e(f"v_and_b32 v{TM}, 15, v0"); a.e(f"v_mul_u32_u24 v{TM}, 2560, v{TM}"); a.e(f"v_lshrrev_b32 v{TM+1}, 4, v0"); a.e(f"v_lshl_add_u32 v{TM}, v{TM+1}, 4, v{TM}")
    a.e(f"s_mul_i32 s{sT3}, s{sWv}, 40960"); a.e(f"v_add_u32 v{vOA}, s{sT3}, v{TM}")
    a.e(f"v_bfe_u32 v{TM}, v0, 1, 4"); a.e(f"v_mul_u32_u24 v{TM}, 2560, v{TM}"); a.e(f"v_lshrrev_b32 v{TM+1}, 5, v0"); a.e(f"v_lshl_add_u32 v{TM}, v{TM+1}, 4, v{TM}")
    a.e(f"v_and_b32 v{TM+1}, 1, v0"); a.e(f"v_lshl_add_u32 v{TM}, v{TM+1}, 3, v{TM}")
    a.e(f"s_mul_i32 s{sT3}, s{sTmp}, 40960"); a.e(f"s_lshl_b32 s{sT2}, s{sT2}, 5"); a.e(f"s_add_u32 s{sT3}, s{sT3}, s{sT2}")
    a.e(f"v_add_u32 v{vOB}, s{sT3}, v{TM}")
    a.e(f"v_and_b32 v{TM}, 7, v0")
    a.e(f"s_lshl_b32 s{sTmp}, s{sG}, 11"); a.e(f"s_add_u32 s{sTmp}, s{sTmp}, {FLG}")
    a.e(f"s_lshl_b32 s{sT2}, s{sU}, 2"); a.e(f"s_add_u32 s{sT2}, s{sT2}, s{sTmp}"); a.e(f"v_lshl_add_u32 v{vFl}, v{TM}, 8, s{sT2}")
    a.e(f"s_lshl_b32 s{sT2}, s{sU}, 8"); a.e(f"s_add_u32 s{sT2}, s{sT2}, s{sTmp}"); a.e(f"v_lshl_add_u32 v{vFi}, v{TM}, 2, s{sT2}")
    l = newlabel("bc")
    a.e(f"s_cmp_lg_u32 s{sWv}, 0"); a.e(f"s_cbranch_scc1 {l}")
    spin(8, 157, 156, "s[18:19]", "s_nop 0")
    a.e(f"{l}:")
    a.e(f"s_mov_b32 s{sGc}, 0")
    a.e(f"s_mov_b32 s{sPo}, 0")
    a.e(f"s_mov_b32 s{sRo}, 0"); a.e(f"s_mov_b32 s{sRo2}, 0"); a.e(f"s_mov_b32 s{sOo}, 0")
    a.e(f"s_cmp_eq_u32 s{sWv}, 0"); a.e(f"s_cselect_b32 s{sW0}, -1, 0")
    a.wait(lg="all")
    def gmf(n):
        ks = n % 16; r, p = divmod(ks, 4)
        return [mf(Or(i, j), Greg(n & 1, i), ("a", OBANK[r] + 12 * p + 4 * j), None if ks == 0 else Or(i, j)) for i in range(8) for j in range(3)]
    def rld(k, b, LA=LA, LB=LB):
        so = sRo if k < 4 else sRo2
        if b == 0: return f"buffer_load_dwordx4 {vr(LA + 4*k, 4)}, v{vRA}, {sr(sPr,4)}, s{so} offen offset:{(k&3)*1024}{['', ' sc1', ' nt', ' sc0'][OPT['ldpol']]}"
        return f"buffer_load_dwordx2 {vr(LB + 2*k, 2)}, v{vRB}, {sr(sPr,4)}, s{so} offen offset:{(k&3)*1024}{['', ' sc1', ' nt', ' sc0'][OPT['ldpol']]}"
    def rops(k, LA=LA, LB=LB):
        o = []
        for r in range(6):
            s = LA + 4*k + r if r < 4 else LB + 2*k + (r - 4)
            if k == 0: o += [f"v_lshlrev_b32 v{ACC+2*r}, 16, v{s}", f"v_and_b32 v{ACC+2*r+1}, 0xffff0000, v{s}"]
            else:
                t = TM + 2 * (r & 1)
                o += [f"v_lshlrev_b32 v{t}, 16, v{s}", f"v_and_b32 v{t+1}, 0xffff0000, v{s}",
                      f"v_add_f32 v{ACC+2*r}, v{ACC+2*r}, v{t}", f"v_add_f32 v{ACC+2*r+1}, v{ACC+2*r+1}, v{t+1}"]
        return o
    rcv = [f"v_cvt_pk_bf16_f32 v{PK+r}, v{ACC+2*r}, v{ACC+2*r+1}" for r in range(6)]
    rst = [f"buffer_store_dwordx4 {vr(PK,4)}, v{vOA}, {sr(sOut,4)}, s{sOo} offen", f"buffer_store_dwordx2 {vr(PK+4,2)}, v{vOB}, {sr(sOut,4)}, s{sOo} offen"]
    oob2 = []
    def w0_site(S, gap, thr, fn):
        if OPT["now0"]: return
        l0, l1 = newlabel("w0"), newlabel("w0b")
        S.h(gap - 1, f"s_and_b32 s{sTmp}, s{sGc}, s{sW0}")
        def site():
            a.e(f"s_cmp_ge_u32 s{sTmp}, {thr}"); a.e(f"s_cbranch_scc1 {l0}"); a.e(f"{l1}:")
        S.h(gap, site)
        oob2.append((l0, l1, fn))
    LAG = OPT['lag']
    late = []
    NACK, NOUT = 13, 7
    def g4_body():
        del oob2[:]; del late[:]
        Ss = [Sched(a, gmf(n)) for n in range(16)]
        cap = [[2] * 24 for _ in range(16)]
        ops = []
        def vmem(n, g_, steps, kind):
            place_tile(a, Ss[n], steps, g_)
            for x in g_: cap[n][x] = 0; ops.append((n, x, kind))
        loads = [(k, b) for k in range(8) for b in range(2)]
        lpos = [(n, 16) for n in range(3, 9)] + [(n, g_) for n in range(9, 15) for g_ in ((16, 20) if n not in (11, 14) else (16,))]
        spos = [(n, g_) for n in range(1, 9) for g_ in ((19, 21) if n & 1 else (20,))]
        spos = [(1,19),(1,21),(2,19),(2,21),(3,20),(4,19),(4,21),(5,20),(6,19),(6,21),(8,19),(8,21)]
        if OPT["lmode"] == 1: lpos = [(n, g_) for n in (9, 10, 11) for g_ in (16, 19, 20, 21, 22, 23)][:16]
        assert len(lpos) == 16 and len(spos) == 12
        for n in range(16):
            S = Ss[n]
            rds = []
            for i in range(8): rds += rd_w(Greg((n + 1) & 1, i), n + 1, i)
            for r, p in zip(rds, RDPOS): S.v(p, r); cap[n][p] -= 1
            m = n + 15
            vmem(n, (6, 11), wo_tile(m, (m % 4) * 40960 + (m // 16) * 256, sH[(m % 16) // 4]), "T")
            cap[n][22] = min(cap[n][22], 1); cap[n][23] = min(cap[n][23], 1)
            if OPT['gcap']: cap[n][23] = 0; cap[n][20] = min(cap[n][20], 1); cap[n][22] = 2 if cap[n][22] else 0; cap[n][21] = min(cap[n][21], 1)
        for q, (n, g_) in enumerate(spos): vmem(n, (g_,), [gst(q, 0, sPo)], "S")
        for (k, b), (n, g_) in zip(loads, lpos): vmem(n, (g_,), [([], rld(k, b))], ("L", k))
        vmem(NOUT, (19, 21), [([], rst[0]), ([], rst[1])], "O")
        for g_, c in PLAN_FIRST: Ss[0].v(g_, CVS[c]); cap[0][g_] -= 1
        for g_, c in PLAN_LAST: Ss[15].v(g_, CVS[c]); cap[15][g_] -= 1
        ops.sort(key=lambda x: (x[0], x[1]))
        ops2 = ops + [(n + 16, g_, k) for n, g_, k in ops]
        def younger(pt, n, g_=22): return len([o for o in ops2 if pt < (o[0], o[1]) < (n, g_)])
        need = {n: 63 for n in range(16)}
        ready = {}
        for k in range(8):
            pt = max((o[0], o[1]) for o in ops if o[2] == ("L", k))
            n = pt[0] + LAG; need[n % 16] = min(need[n % 16], younger(pt, n)); ready[k] = n + 1
        if OPT['nolw']: need = {n: 63 for n in range(16)}
        if not OPT['noack']: need[NACK] = min(need[NACK], younger(max((o[0], o[1]) for o in ops if o[2] == "S"), NACK))
        n, g_ = 0, 0
        for k in list(range(8)) + ["cv"]:
            if k != "cv" and n < ready[k]: n, g_ = ready[k], 0
            for op in (rcv if k == "cv" else rops(k)):
                while cap[n % 16][g_] <= 0:
                    g_ += 1
                    if g_ == 24: n += 1; g_ = 0
                if not OPT['norv']: Ss[n % 16].v(g_, lambda op=op: a._emit(op))
                cap[n % 16][g_] -= 1
                if n >= 16: late.append(op)
        assert (n, g_) < (16 + NOUT, 18) and ready[0] > NOUT, (n, g_, ready)
        S = Ss[0]
        S.h(14, f"s_cmp_eq_u32 s{sGc}, 1024")
        S.h(15, f"s_cselect_b32 s{sWo+2}, 0, s{sWo+2}")
        w0_site(Ss[0], 2, 512, lambda: a._emit(f"global_load_dword v{vPoll}, v{vFi}, s[28:29] sc1"))
        def chk(cnt=younger((0, 2), 2, 17)):
            a.e(f"s_lshr_b32 s{sT2}, s{sGc}, 8"); a.e(f"s_sub_u32 s{sT2}, s{sT2}, 1")
            spin(f"s{sT2}", vFi, vPoll, "s[28:29]", f"s_waitcnt vmcnt({cnt})")
        w0_site(Ss[2], 17, 512, chk)
        def pub():
            a.e(f"s_lshr_b32 s{sT2}, s{sGc}, 8"); a.e(f"v_mov_b32 v{vVal}, s{sT2}"); flag_store()
        w0_site(Ss[NACK + 1], 2, 256, pub)
        S = Ss[15]
        S.h(0, f"s_cmp_ge_u32 s{sGc}, 256")
        S.h(1, f"s_cselect_b32 s{sPr+2}, {198*CH}, 0")
        S.h(2, f"s_cmp_ge_u32 s{sGc}, 512")
        S.h(3, f"s_cselect_b32 s{sOut+2}, {95*2560 + 1024 + 64}, 0")
        S.h(7, f"s_add_u32 s{sRo2}, s{sPo}, 4096")
        S.h(8, f"s_sub_u32 s{sOo}, s{sGc}, 512")
        S.h(12, f"s_mov_b32 s{sRo}, s{sPo}")
        if OPT["ldfix"]: S.h(12, f"s_mov_b32 s{sRo}, 0"); S.h(12, f"s_mov_b32 s{sRo2}, 4096")
        S.h(13, f"s_mov_b32 s{sP+2}, {239*CH + 1024}")
        S.h(14, f"s_mul_i32 s{sPo}, s{sGc}, {48*CH//256}")
        S.h(15, f"s_add_u32 s{sGc}, s{sGc}, 256")
        for r in range(4): S.h(16 + r, f"s_add_u32 s{sH[r]}, s{sH[r]}, 256")
        S.h(21, f"s_cmp_lt_u32 s{sGc}, 1280")
        for n in range(16):
            a.c(f"G sub-step {n}")
            extra = len([o for o in ops if o[2] != "T" and (n - 13, 11) < (o[0], o[1]) < (n, 22)])
            end_sync(a, Ss[n], min(26 + extra, need[n]))
            Ss[n].emit(gmf(n + 1)[0])
    if OPT["qprof"] == 2: stamp(a, 5); stamp(a, 6, False)
    a.e("L_gloop:")
    if OPT["qprof"] == 4:
        a.e(f"s_lshr_b32 s{sT3}, s{sGc}, 8"); stamp_dyn(a, 4, sT3, 5)
    mark = len(a.ins); nops0 = a.nops
    g4_body(); lg_end = list(a.lg)
    del a.ins[mark:]; a.nops = nops0
    g4_body(); assert a.lg == lg_end
    a.e("s_cbranch_scc1 L_gloop")
    if OPT["qprof"] == 2: stamp(a, 7); stamp(a, 8, False)
    if OPT["qprof"] == 4: stamp(a, 3)
    a.c("tail: publish the last pass, finish pass 2, reduce the last two")
    l = newlabel("t0")
    a.e(f"s_cmp_lg_u32 s{sWv}, 0"); a.e(f"s_cbranch_scc1 {l}")
    a._emit(f"global_load_dword v{vPoll}, v{vFi}, s[28:29] sc1")
    a.e(f"{l}:")
    for c in range(NLAST, 48): a.e(CVS[c])
    for q in range(12): emit_tile(a, [gst(q, 0, sPo)])
    stamp(a, 2)
    vmw(a, 12)
    l = newlabel("t1")
    a.e(f"s_cmp_lg_u32 s{sWv}, 0"); a.e(f"s_cbranch_scc1 {l}")
    spin(4, vFi, vPoll, "s[28:29]", "s_nop 0")
    a.e(f"{l}:")
    a.e("s_barrier")
    for k in range(8):
        for b in range(2): a._emit(rld(k, b, 160, 192))
    for op in late: a._emit(op)
    vmw(a, 16)
    a.e("s_barrier")
    l = newlabel("t2")
    a.e(f"s_cmp_lg_u32 s{sWv}, 0"); a.e(f"s_cbranch_scc1 {l}")
    a.e(f"v_mov_b32 v{vVal}, 5"); flag_store()
    a.e(f"{l}:")
    for op in rst: a._emit(op)
    a.e(f"s_mov_b32 s{sOo}, 768")
    def tail_reduce(la, lb, extra):
        for k in range(8):
            vmw(a, 2 * (7 - k) + extra)
            for op in rops(k, la, lb): a._emit(op)
        for op in rcv: a._emit(op)
        for op in rst: a._emit(op)
    tail_reduce(160, 192, 2)
    a.e(f"s_mov_b32 s{sRo}, s{sPo}"); a.e(f"s_add_u32 s{sRo2}, s{sPo}, 4096"); a.e(f"s_mov_b32 s{sOo}, 1024")
    l = newlabel("t3")
    a.e(f"s_cmp_lg_u32 s{sWv}, 0"); a.e(f"s_cbranch_scc1 {l}")
    a._emit(f"global_load_dword v{vPoll}, v{vFi}, s[28:29] sc1")
    spin(5, vFi, vPoll, "s[28:29]", "s_waitcnt vmcnt(0)")
    a.e(f"{l}:")
    a.e("s_barrier")
    for k in range(8):
        for b in range(2): a._emit(rld(k, b))
    tail_reduce(LA, LB, 0)
    stamp(a, 9, False); stamp(a, 10)
    if OPT["leak"] >= 0:
        k = OPT["leak"]
        if k == 0: a.e("s_mov_b32 s79, 0")
        elif k == 9: a.e("s_sub_u32 s79, s98, s82"); a.e("s_lshr_b32 s79, s79, 4")
        else: a.e(f"s_sub_u32 s79, s{80+2*k}, s80")
        a.e("s_add_u32 s79, s79, 15000")
        if OPT["leakwg"] == 1: a.e("s_cmp_lt_u32 s2, 8"); a.e("s_cselect_b32 s79, s79, 0")
        if OPT["leakwg"] == 2: a.e("s_cmp_ge_u32 s2, 248"); a.e("s_cselect_b32 s79, s79, 0")
        if OPT["leakwg"] == 3: a.e("s_cmp_eq_u32 s2, 0"); a.e("s_cselect_b32 s79, s79, 0")
        a.e("L_leak:")
        a._emit("s_memrealtime s[76:77]"); a.raw_wait("s_waitcnt lgkmcnt(0)")
        a.e("s_sub_u32 s76, s76, s80"); a.e("s_cmp_lt_u32 s76, s79"); a.e("s_cbranch_scc1 L_leak")
    stamp_store(a, "L_end", 0)
    dbg_store(a)
    a.e("L_end:")
    a.e("s_endpgm")
    for l0, l1, fn in list(oob2):
        a.e(f"{l0}:"); fn(); a.e(f"s_branch {l1}")
    a.reset_counters()
    a.e("L_slow:")
    a.raw_wait("s_waitcnt vmcnt(0) lgkmcnt(0)")
    vKo, vVo, t0, t1 = 10, 11, P_ + 12, P_ + 13
    a.e("s_nop 7")
    a.e(f"v_and_b32 v{t0}, 7, v0"); a.e(f"v_lshlrev_b32 v{t0}, 10, v{t0}")
    a.e(f"v_bfe_u32 v{t1}, v0, 3, 1"); a.e(f"v_lshl_add_u32 v{t0}, v{t1}, 8, v{t0}")
    a.e(f"v_lshrrev_b32 v{t1}, 4, v0"); a.e(f"v_lshl_add_u32 v{vKo}, v{t1}, 4, v{t0}")
    a.e(f"v_bfe_u32 v{t0}, v0, 4, 1"); a.e(f"v_lshlrev_b32 v{t0}, 12, v{t0}")
    a.e(f"v_lshrrev_b32 v{t1}, 5, v0"); a.e(f"v_lshl_add_u32 v{t0}, v{t1}, 8, v{t0}")
    a.e(f"v_and_b32 v{t1}, 15, v0"); a.e(f"v_lshl_add_u32 v{vVo}, v{t1}, 1, v{t0}")
    for j in range(3): a.e(f"v_mov_b32 v{vT+j}, 0xff800000")
    def slow_qk(cinit):
        for u, kf in ((0, KF), (1, VF)):
            for ks in range(4): a.e(f"buffer_load_dwordx4 {vr(kf + 4*ks,4)}, v{vKo}, {sr(sK,4)}, s{sT2} offen offset:{u*512 + ks*64}")
        for u, kf in ((0, KF), (1, VF)):
            for j in range(3):
                for ks in range(4):
                    a.e(mf(Sr(u, j), kf + 4*ks, Qf(j, ks), (Nm(j) if cinit else None) if ks == 0 else Sr(u, j)))
    a.e(f"s_mov_b32 s{sT2}, s{sCur}")
    a.e(f"s_add_u32 s{sT3}, s{sCur}, 131072")
    a.e("L_slow_p1:")
    slow_qk(False)
    for j in range(3):
        for u in range(2):
            s = Sr(u, j)
            a.e(f"v_max3_f32 v{vT+j}, v{vT+j}, v{s}, v{s+1}")
            a.e(f"v_max3_f32 v{vT+j}, v{vT+j}, v{s+2}, v{s+3}")
    a.e(f"s_add_u32 s{sT2}, s{sT2}, 8192")
    a.e(f"s_cmp_lt_u32 s{sT2}, s{sT3}")
    a.e("s_cbranch_scc1 L_slow_p1")
    rowred(a, "v_max_f32", [vT, vT+1, vT+2], [Nm(j) for j in range(3)])
    for j in range(3):
        for r in range(4): a.e(f"v_sub_f32 v{Nm(j)+r}, 0, v{vT+j}")
    for r in range(96): a.e(f"v_mov_b32 v{O_+r}, 0")
    for r in range(12): a.e(f"v_accvgpr_write_b32 a{192+r}, 0")
    a.e(f"s_mov_b32 s{sT2}, s{sCur}")
    a.e("L_slow_p2:")
    slow_qk(True)
    for u in range(2):
        for k in range(12): a.e(ex(u, k))
    for u in range(2):
        for c in range(6): a.e(cv(u, 0, c))
    for half, fr in ((0, KF), (1, VF)):
        for hi in range(2):
            for i in range(4):
                for e in range(2):
                    for rp in range(2):
                        r = 2*rp + hi
                        a.e(f"buffer_load_ushort v{(S_ if hi else fr) + 4*i + 2*e + rp}, v{vVo}, {sr(sV,4)}, s{sT2} offen offset:{r*1024 + e*512 + (4*half+i)*32}")
        a.wait(vm="all")
        for x in range(16): a.e(f"v_lshl_or_b32 v{fr+x}, v{S_+x}, 16, v{fr+x}")
    for m in sm(2): a.e(m)
    for half, fr in ((0, KF), (1, VF)):
        for m in pv(2, half, fr): a.e(m)
    a.e(f"s_add_u32 s{sT2}, s{sT2}, 8192")
    a.e(f"s_cmp_lt_u32 s{sT2}, s{sT3}")
    a.e("s_nop 7")
    a.e("s_cbranch_scc1 L_slow_p2")
    for j in range(3): a.e(f"v_accvgpr_read_b32 v{vT+j}, a{La(j)[1]}")
    a.e("s_branch L_epi")
    return a

HDR = f"""; Fused attention blocks A and B in one launch. One workgroup per CU owns 4 heads of one batch: Q projection,
; @launch grid=(256,1,1) block=(256,1,1) lds={LDS}
.amdgcn_target "amdgcn-amd-amdhsa--gfx950"
.text
"""
def kern(name, a):
    return f".globl {name}\n.p2align 8\n.type {name},@function\n{name}:\n" + a.text()
def desc(name, nv, acc, ns):
    return f""".p2align 6
.amdhsa_kernel {name}
  .amdhsa_next_free_vgpr {nv}
  .amdhsa_next_free_sgpr {ns}
  .amdhsa_accum_offset {acc}
  .amdhsa_group_segment_fixed_size 0
  .amdhsa_kernarg_size 104
  .amdhsa_user_sgpr_count 2
  .amdhsa_user_sgpr_kernarg_segment_ptr 1
  .amdhsa_system_sgpr_workgroup_id_x 1
  .amdhsa_float_denorm_mode_32 3
.end_amdhsa_kernel
"""
if __name__ == "__main__":
    a = main_kernel()
    if OPT["nodma"] & 1: a.ins = [i for i in a.ins if not (i.kind == "dma" and " v1, " in i.text)]
    if OPT["nodma"] & 2: a.ins = [i for i in a.ins if not (i.kind == "dma" and " v1, " not in i.text)]
    if OPT["nodma"] & 4: a.ins = [i for i in a.ins if not (i.kind == "store" and "v154" in i.text)]
    if OPT["nox2"]: a.ins = [i for i in a.ins if not (i.kind == "vmem" and ("v121," in i.text))]
    if OPT["noload"]: a.ins = [i for i in a.ins if not (i.kind == "vmem" and ("v120," in i.text or "v121," in i.text))]
    if OPT["strip"] == 2:
        i0 = [k for k, i in enumerate(a.ins) if i.text == "L_head:"][0]; i1 = [k for k, i in enumerate(a.ins) if i.text == "L_epi:"][0]
        a.ins = a.ins[:i0] + [Ins("s_nop 4") if i.kind == "mfma" else i for i in a.ins[i0:i1] if i.kind not in ("lds", "trans", "valu")] + a.ins[i1:]
    if OPT["strip"] == 1:
        i0 = [k for k, i in enumerate(a.ins) if i.text == "L_head:"][0]; i1 = [k for k, i in enumerate(a.ins) if i.text == "L_epi:"][0]
        a.ins = a.ins[:i0] + [i for i in a.ins[i0:i1] if i.kind not in ("mfma", "lds", "trans", "valu")] + a.ins[i1:]
    ns = 102 if OPT["stamp"] else NSGPR
    open(sys.argv[1], "w").write(HDR + kern(NAME + "_kernel", a) + '.section .rodata,"a"\n' + desc(NAME + "_kernel", 512, 256, ns))
    print("instrs", len(a.ins), "nops", a.nops)
```

```python
import sys, math, struct
from asmlib import *

NAME = "concat_heads__mha_block_cached__gqa_block_cached__near_ridge"
def f32(x): return "0x%08x" % struct.unpack("<I", struct.pack("<f", x))[0]
OPT = dict(stamp=0, nodma=0, nocheck=0, touch=1, forceslow=0, map84=0, first=6, rot=1, strip=0, cyc=0, typ=0, track=1, nosync=0, sleep=1, opos=1, lag=4, noack=0, noload=0, stpol=1, nolw=0, krot=1, xmode=0, gkeep=0, leak=-1, leakwg=0, st0=0, norv=0, now0=0, gcap=0, qprof=0, la=7, ldpol=1, lmode=0, ldfix=0, nox2=0, wnt=0, xnt=0, t0x=0, t0w=0, ctouch=3, dbgout=0)
for a_ in sys.argv[2:]:
    k_, v_ = a_.split("="); assert k_ in OPT, k_; OPT[k_] = int(v_)

def R(x, n):
    t, i = x if isinstance(x, tuple) else ("v", x)
    return f"{t}{i}" if n == 1 else f"{t}[{i}:{i+n-1}]"
def off(x, d): return (x[0], x[1] + d) if isinstance(x, tuple) else x + d
def mf(d, a, b, c):
    return f"v_mfma_f32_16x16x32_bf16 {R(d,4)}, {R(a,4)}, {R(b,4)}, {'0' if c is None else R(c,4)}"

TILE = 8448
VB = 8 * TILE
XB = 16 * TILE
LDS = XB + 24576
NSLOT = {0: 8, 1: 16, 2: 12}[OPT["typ"]]
CH = NSLOT * 1024
PART = 240 * CH
STAMP_AT = 128 << 20
FLG = 120 << 20
XD = 7 * 6144
XP = 8 * XD
XG = 6 * XP
SPIN_MAX = 200000
def slot(m):
    m %= 16
    return (m & 1), (m >> 1) * TILE

vKV, vKA, vVA, vWAl, vWAh, vW = 1, 2, 3, 4, 5, 6
vT = 7
QF, NM, S_, P_, KF, VF, O_ = 12, 60, 72, 96, 120, 136, 160
vX0, vX1, vXA0, vXA1 = 156, 157, 158, 159
vTo, vD, vPt, vWo = 152, 153, 154, 155
def Qf(j, ks): return QF + 16 * j + 4 * ks
def Nm(j): return NM + 4 * j
def Sr(u, j): return S_ + 12 * u + 4 * j
def Pr(buf, j): return P_ + 12 * buf + 4 * j
def Or(i, j): return O_ + 12 * i + 4 * j
def Wreg(buf, i): return 12 + 32 * buf + 4 * i
def Xreg(buf, j, s): return 76 + 24 * buf + 8 * j + 4 * s
def Qacc(pos, i, j):
    k = 12 * i + 4 * j
    if pos == 0: return ("a", k)
    if pos == 1: return ("a", 96 + k)
    if pos == 2: return ("a", 192 + k) if k < 64 else 124 + (k - 64)
    return O_ + k
QBANK = {3: 0, 2: 48, 1: 96}
OBANK = {0: 144, 1: 96, 2: 48, 3: 0}
def La(j): return ("a", 192 + 4 * j)
ONES = ("a", 204)
def Greg(buf, i): return ("a", 192 + 32 * buf + 4 * i)
sX, sW, sK, sV, sWo, sP = 32, 36, 40, 44, 48, 52
sWv, sKVL, sWL, sXL, sOff, sOff2, sTmp, sR, sCur, sT2, sT3 = 60, 61, 62, 63, 64, 65, 66, 67, 68, 69, 70
sB, sU, sBr, sG, sXo, sPo = 71, 72, 73, 74, 75, 76
sCX, sNX, sLast, sS8, sWoB, sTask, sTyp = 56, 57, 58, 59, 77, 30, 31
sWq, sGc = 26, 27
sWq1, sJ, sRot, sPM, sPK = 20, 21, 22, 23, 24
sF, sD0, sD1 = 8, 12, 13
sH = [4, 5, 6, 7]
NSGPR = 80

def stamp(a, k, real=True):
    if not OPT["stamp"]: return
    lg = list(a.lg)
    a.raw_wait("s_waitcnt lgkmcnt(0)")
    if OPT["cyc"] and 2 <= k <= 8: real = False
    a._emit(f"{'s_memrealtime' if real else 's_memtime'} s[{80+2*k}:{81+2*k}]")
    a.raw_wait("s_waitcnt lgkmcnt(0)")
def stamp_dyn(a, base, sidx, n):
    if not OPT["stamp"]: return
    a.raw_wait("s_waitcnt lgkmcnt(0)")
    a._emit("s_memtime s[78:79]" if OPT["cyc"] else "s_memrealtime s[78:79]")
    a.raw_wait("s_waitcnt lgkmcnt(0)")
    for q in range(n):
        a.e(f"s_cmp_eq_u32 s{sidx}, {q}")
        a.e(f"s_cselect_b32 s{80+2*(base+q)}, s78, s{80+2*(base+q)}")
def stamp_store(a, label, base):
    if not OPT["stamp"]: return
    a.e(f"s_cmp_lg_u32 s{sWv}, 0")
    a.e(f"s_cbranch_scc1 {label}")
    for k in range(11): a.e(f"v_mov_b32 v{16+k}, s{80+2*k}")
    a.e("s_lshl_b32 s78, s2, 6"); a.e(f"s_add_u32 s78, s78, {STAMP_AT + base*64}")
    a.e("v_mov_b32 v28, s78")
    a.e("s_mov_b64 exec, 1")
    a.e("global_store_dwordx4 v28, v[16:19], s[28:29]")
    a.e("global_store_dwordx4 v28, v[20:23], s[28:29] offset:16")
    a.e("global_store_dwordx4 v28, v[24:27], s[28:29] offset:32")

def dbg_store(a):
    if not OPT["dbgout"]: return
    l = "L_dbgskip"
    a.e("s_and_b32 s78, s2, 0xdf"); a.e("s_cmp_lg_u32 s78, 5"); a.e(f"s_cbranch_scc1 {l}")
    a.e("s_load_dwordx2 s[24:25], s[0:1], 88")
    for n, k in enumerate((3,4,5,6,7,8,2,10)):
        a.e(f"s_sub_u32 s79, s{80+2*k}, s80"); a.e(f"v_mov_b32 v{32+n}, s79")
    a.e("s_and_b32 s78, s2, 32"); a.e("v_mov_b32 v29, s78")
    a.raw_wait("s_waitcnt lgkmcnt(0)")
    a.e("global_store_dwordx4 v29, v[32:35], s[24:25]")
    a.e("global_store_dwordx4 v29, v[36:39], s[24:25] offset:16")
    a.e(f"{l}:")

def srd(a, d, lo, o, size):
    a.e(f"s_add_u32 s{d}, s{lo}, {o}")
    a.e(f"s_addc_u32 s{d+1}, s{lo+1}, 0")
    a.e(f"s_and_b32 s{d+1}, s{d+1}, 0xffff")
    a.e(f"s_mov_b32 s{d+2}, {size}")
    a.e(f"s_mov_b32 s{d+3}, 0x20000")
_lbl = [0]
def newlabel(p):
    _lbl[0] += 1
    return f"L_{p}_{_lbl[0]}"
class U(str): pass

def ldsbase(m):
    h, o = slot(m); return h * VB + o
def w_tile(m, n):
    b = ldsbase(m); base = sWq if n < 16 else sWq1
    rel = ((n % 16) >> 2) * 262144 + (3 - (n & 3)) * 256
    pol = ' nt' if OPT['wnt'] else ''
    return [([f"s_xor_b32 s{sOff}, s{base}, {rel}", f"s_add_u32 m0, s{sWL}, {b}"], f"buffer_load_dwordx4 v{vW}, {sr(sW,4)}, s{sOff} offen{pol} lds"),
            ([f"s_xor_b32 s{sOff}, s{base}, {rel + 8192}", f"s_add_u32 m0, s{sWL}, {b + 1032}"], f"buffer_load_dwordx4 v{vW}, {sr(sW,4)}, s{sOff} offen{pol} lds")]
def kv_tile(m, t):
    b = ldsbase(m); s = sV if m & 1 else sK
    so = f"s_xor_b32 s{sOff}, s{sNX if t >= 16 else sCX}, {(t % 16) * 8192}"
    return [([so, f"s_add_u32 m0, s{sKVL}, {b}"], f"buffer_load_dwordx4 v{vKV}, {sr(s,4)}, s{sOff} offen nt lds"),
            ([f"s_add_u32 m0, s{sKVL}, {b + 32}"], f"buffer_load_dwordx4 v{vKV}, {sr(s,4)}, s{sOff} offen offset:1024 nt lds")]
def wo_tile(m):
    b = ldsbase(m); h, t = divmod(m % 16, 8); r = t >> 1; rel = (t & 1) * 81920
    st = [([f"s_add_u32 s{sOff}, s{sH[r]}, {rel}", f"s_add_u32 m0, s{sKVL}, {b}"], f"buffer_load_dwordx4 v{vWo}, {sr(sWo,4)}, s{sOff} offen lds"),
          ([f"s_add_u32 s{sOff}, s{sH[r]}, {rel + 1280}", f"s_add_u32 m0, s{sKVL}, {b + 1056}"], f"buffer_load_dwordx4 v{vWo}, {sr(sWo,4)}, s{sOff} offen lds")]
    return st, ([f"s_add_u32 s{sH[r]}, s{sH[r]}, s{(sD0, sD1)[h]}"] if t & 1 else [])
def emit_tile(a, steps):
    for pre, d in steps:
        for x in pre: a.e(x)
        a._emit(d)
def place_tile(a, S, steps, gaps):
    for (pre, d), g in zip(steps, gaps):
        for k, x in enumerate(pre): S.h(g - len(pre) + k, x)
        S.v(g, lambda d=d: a._emit(d))
def rd_w(dst, m, i):
    h, o = slot(m); p, u = divmod(i, 2)
    return [f"ds_read_b64_tr_b16 {R(off(dst, 2*e), 2)}, v{(vWAl, vWAh)[h]} offset:{o + e*512 + p*64 + u*8}" for e in range(2)]
def vmw(a, n): a.raw_wait(f"s_waitcnt vmcnt({n})")

def rowred(a, op, regs, tmps):
    for w in (32, 16):
        for r, t in zip(regs, tmps): a.e(f"v_mov_b32 v{t}, v{r}")
        for r, t in zip(regs, tmps): a.e(f"v_permlane{w}_swap_b32 v{r}, v{t}")
        for r, t in zip(regs, tmps): a.e(f"{op} v{r}, v{r}, v{t}")

RDPOS = [0,1,2,3,4,5,7,8,9,10,12,13,14,15,17,18]
RDPOS_X = [2,3,5,6,8,9,11,12,14,15,16,17,18,19,20,21]

def code_touch(a, lo, hi, vaddr, vdst):
    if not OPT["ctouch"]: return
    l = newlabel("pc")
    a.e("s_getpc_b64 s[14:15]")
    a.e(f"{l}:")
    a.e(f"s_add_u32 s14, s14, {lo}-{l}"); a.e("s_addc_u32 s15, s15, 0")
    a.e(f"s_lshr_b32 s{sT2}, s2, 3"); a.e(f"s_lshl_b32 s{sT2}, s{sT2}, 2"); a.e(f"s_add_u32 s{sT2}, s{sT2}, s{sWv}"); a.e(f"s_lshl_b32 s{sT2}, s{sT2}, 7")
    a.e(f"v_and_b32 v{vaddr}, 3, v0"); a.e(f"v_lshlrev_b32 v{vaddr}, 14, v{vaddr}"); a.e(f"v_add_u32 v{vaddr}, s{sT2}, v{vaddr}")
    a.e(f"v_min_u32 v{vaddr}, {hi}-{lo}-4, v{vaddr}")
    a._emit(f"global_load_dword v{vdst}, v{vaddr}, s[14:15]")

def late_consts(a):
    a.e(f"v_min_u32 v{vTo}, 19, v0"); a.e(f"v_lshlrev_b32 v{vTo}, 7, v{vTo}")
    a.e(f"s_mul_i32 s{sTmp}, s{sB}, 10240"); a.e(f"s_mul_i32 s{sT2}, s{sWv}, 2560"); a.e(f"s_add_u32 s{sTmp}, s{sTmp}, s{sT2}")
    a.e(f"v_add_u32 v{vTo}, s{sTmp}, v{vTo}")
    a.e("v_and_b32 v9, 56, v0"); a.e(f"s_lshl_b32 s{sTmp}, s{sWv}, 1"); a.e(f"v_add_u32 v9, s{sTmp}, v9")
    a.e("v_mul_u32_u24 v9, 1280, v9"); a.e("v_and_b32 v8, 7, v0")
    a.e(f"s_xor_b32 s{sTmp}, s{sU}, 7"); a.e(f"s_and_b32 s{sTmp}, s{sTmp}, 3"); a.e(f"s_lshl_b32 s{sTmp}, s{sTmp}, 1"); a.e(f"v_xor_b32 v8, s{sTmp}, v8")
    a.e(f"v_lshl_add_u32 v{vWo}, v8, 4, v9")

def x_block(j, rel, base_s, op="s_add_u32"):
    so = f"{op} s{sOff2}, s{base_s}, {rel + j*20480}" if base_s is not None else f"s_mov_b32 s{sOff2}, {rel + j*20480}"
    return [([so, f"s_add_u32 m0, s{sXL}, {j*2048}"], f"buffer_load_dwordx4 v{vX0}, {sr(sX,4)}, s{sOff2} offen{' nt' if OPT['xnt'] else ''} lds"),
            ([f"s_add_u32 m0, s{sXL}, {j*2048 + 1024}"], f"buffer_load_dwordx4 v{vX1}, {sr(sX,4)}, s{sOff2} offen{' nt' if OPT['xnt'] else ''} lds")]
def rd_xb(dst, j, s): return f"ds_read_b128 {R(dst,4)}, v{(vXA0, vXA1)[s]} offset:{j*2048}"

def end_sync(a, S, vm, keep=2):
    def w():
        n = min(len(a.lg), keep)
        a.raw_wait(f"s_waitcnt vmcnt({vm}) lgkmcnt({n})")
        a.lg = a.lg[len(a.lg) - n:] if n else []
    S.h(22, w); S.h(23, "s_barrier")

def convert(a, acc, dests, tmp):
    a.e(f"s_mov_b32 s{sTmp}, {f32(math.log2(math.e) / math.sqrt(128.0))}")
    k = 0
    for pos, db in enumerate(dests):
        for p in range(4):
            for j in range(3):
                t = tmp[k % len(tmp)]; k += 1
                src = []
                for u in range(2):
                    o = acc(pos, 2*p + u, j)
                    for r in range(4):
                        if isinstance(o, tuple):
                            a.e(f"v_accvgpr_read_b32 v{t+4*u+r}, a{o[1]+r}"); src.append(t + 4*u + r)
                        else: src.append(o + r)
                for x in src: a.e(f"v_mul_f32 v{x}, s{sTmp}, v{x}")
                d = Qf(j, p) if db is None else t + 8
                for r in range(4): a.e(f"v_cvt_pk_bf16_f32 v{d+r}, v{src[2*r]}, v{src[2*r+1]}")
                if db is not None:
                    for r in range(4): a.e(f"v_accvgpr_write_b32 a{db + 12*p + 4*j + r}, v{d+r}")

def gcv(m, h):
    i, j = divmod(m, 3); p, u = divmod(i, 2); o = Or(i, j)
    return f"v_cvt_pk_bf16_f32 v{S_ + 12*p + 4*j + 2*u + h}, v{o+2*h}, v{o+2*h+1}"
CVS = [gcv(m, h) for m in range(24) for h in range(2)]
def gst(q, rel, base_s):
    p, j = divmod(q, 3)
    return ([f"s_add_u32 s{sOff2}, s{base_s}, {rel + (p*12 + j)*CH}"], f"buffer_store_dwordx4 {vr(S_ + 12*p + 4*j,4)}, v{vPt}, {sr(sP,4)}, s{sOff2} offen{['', ' sc1', ' nt', ' sc0'][OPT['stpol']]}")
def cv_plans():
    caps = [0 if g in (6, 11) else (1 if g in RDPOS else 2) for g in range(24)]
    last = []; ci = 0
    for g, cp in enumerate(caps):
        for _ in range(cp):
            if ci < 48 and ci // 2 + 4 <= g: last.append((g, ci)); ci += 1
    n = ci; first = []
    for g, cp in enumerate(caps):
        for _ in range(cp):
            if ci < 48: first.append((g, ci)); ci += 1
    assert ci == 48 and all(c // 2 > g for g, c in first)
    return last, first, n
PLAN_LAST, PLAN_FIRST, NLAST = cv_plans()

def Q2acc(pos, i, j): return (56 if pos == 0 else O_) + 12 * i + 4 * j
def X2reg(c, j, s): return ("a", 24 * (c % 8) + 8 * j + 4 * s)
def w2rel(n): return (n >> 1) * 262144 + (1 - (n & 1)) * 256
def q2mf(n):
    s, pos = divmod(n, 2)
    return [mf(Q2acc(pos, i, j), Greg(n & 1, i), X2reg(s >> 1, j, s & 1), None if s == 0 else Q2acc(pos, i, j)) for i in range(8) for j in range(3)]

def main_kernel():
    a = Asm()
    T = OPT["typ"]
    if OPT["st0"]: a._emit("s_memrealtime s[80:81]")
    a.e("s_cmp_ge_u32 s2, 256")
    a.e("s_cbranch_scc1 L_end")
    a.e("s_load_dwordx16 s[4:19], s[0:1], 0")
    a.e("s_load_dwordx4 s[20:23], s[0:1], 64")
    a.e("s_load_dwordx2 s[28:29], s[0:1], 96")
    a.e(f"s_bfe_u32 s{sBr}, s2, 0x10002")
    if not OPT["map84"]:
        a.e(f"s_and_b32 s{sB}, s2, 3"); a.e(f"s_lshl_b32 s{sB}, s{sB}, 2")
        a.e(f"s_bfe_u32 s{sTmp}, s2, 0x20003"); a.e(f"s_add_u32 s{sB}, s{sB}, s{sTmp}")
        a.e(f"s_lshr_b32 s{sU}, s2, 5")
    elif OPT["map84"] == 2:
        a.e(f"s_bfe_u32 s{sB}, s2, 0x40003")
        a.e(f"s_and_b32 s{sU}, s2, 3"); a.e(f"s_lshl_b32 s{sU}, s{sU}, 1")
        a.e(f"s_lshr_b32 s{sTmp}, s2, 7"); a.e(f"s_add_u32 s{sU}, s{sU}, s{sTmp}")
    else:
        a.e(f"s_and_b32 s{sB}, s2, 1"); a.e(f"s_lshl_b32 s{sB}, s{sB}, 3")
        a.e(f"s_bfe_u32 s{sTmp}, s2, 0x30003"); a.e(f"s_add_u32 s{sB}, s{sB}, s{sTmp}")
        a.e(f"s_bfe_u32 s{sU}, s2, 0x10001"); a.e(f"s_lshl_b32 s{sU}, s{sU}, 2")
        a.e(f"s_lshr_b32 s{sTmp}, s2, 6"); a.e(f"s_add_u32 s{sU}, s{sU}, s{sTmp}")
    a.e(f"s_lshl_b32 s{sG}, s{sBr}, 4"); a.e(f"s_add_u32 s{sG}, s{sG}, s{sB}")
    if T == 2: a.e(f"s_and_b32 s{sTyp}, s{sU}, 1")
    else: a.e(f"s_mov_b32 s{sTyp}, {T}")
    a.e("v_lshrrev_b32 v7, 6, v0")
    a.e("v_and_b32 v0, 63, v0")
    a.e(f"v_readfirstlane_b32 s{sWv}, v7")
    a.e("v_and_b32 v8, 15, v0")
    a.e("v_lshrrev_b32 v9, 4, v0")
    a.e("v_and_b32 v10, 1, v9"); a.e("v_lshlrev_b32 v10, 4, v10")
    a.e("v_lshrrev_b32 v11, 1, v9"); a.e("v_lshl_add_u32 v10, v11, 2, v10")
    a.e("v_lshrrev_b32 v11, 1, v7"); a.e("v_lshl_add_u32 v10, v11, 3, v10")
    a.e("v_and_b32 v11, 1, v7"); a.e("v_lshl_add_u32 v10, v11, 1, v10")
    a.e("v_lshlrev_b32 v10, 13, v10"); a.e(f"v_lshl_add_u32 v{vW}, v8, 4, v10")
    a.e("v_mul_u32_u24 v10, 48, v7"); a.e("v_lshrrev_b32 v11, 3, v0"); a.e("v_add_u32 v10, v10, v11")
    a.e("v_mul_u32_u24 v10, 1280, v10")
    a.e("v_and_b32 v11, 7, v0"); a.e("v_xor_b32 v11, v11, v9")
    a.e(f"v_lshl_add_u32 v{vX0}, v11, 4, v10")
    a.e("v_xor_b32 v11, 4, v11"); a.e("v_add_u32 v10, 10240, v10")
    a.e(f"v_lshl_add_u32 v{vX1}, v11, 4, v10")
    a.e(f"s_mul_i32 s{sKVL}, s{sWv}, 2112")
    a.e(f"s_mov_b32 s{sWL}, s{sKVL}")
    a.e(f"s_mul_i32 s{sXL}, s{sWv}, 6144"); a.e(f"s_add_u32 s{sXL}, s{sXL}, {XB}")
    a.e(f"s_mov_b32 s{sCur}, 0"); a.e(f"s_mov_b32 s{sXo}, 0"); a.e(f"s_mov_b32 s{sWq}, 0")
    a.raw_wait("s_waitcnt lgkmcnt(0)")
    a.e(f"s_cmp_eq_u32 s{sBr}, 0")
    a.e("s_cselect_b64 s[4:5], s[4:5], s[14:15]")
    a.e("s_cselect_b64 s[6:7], s[6:7], s[16:17]")
    a.e("s_cselect_b64 s[8:9], s[8:9], s[18:19]")
    a.e("s_cselect_b64 s[10:11], s[10:11], s[20:21]")
    a.e("s_cselect_b64 s[12:13], s[12:13], s[22:23]")
    a.e("s_load_dwordx4 s[16:19], s[0:1], 80")
    a.e(f"s_mul_i32 s{sTmp}, s{sB}, 245760")
    srd(a, sX, 4, f"s{sTmp}", 245760)
    a.e(f"s_lshl_b32 s{sTmp}, s{sU}, 10")
    srd(a, sW, 10, f"s{sTmp}", 639 * 8192 + 1024)
    if OPT["krot"]: a.e(f"s_xor_b32 s{sJ}, s{sB}, s{sU}"); a.e(f"s_and_b32 s{sJ}, s{sJ}, 3")
    else: a.e(f"s_mov_b32 s{sJ}, 0")
    a.e(f"s_mul_i32 s{sWq}, s{sJ}, {262144 + 256}"); a.e(f"s_add_u32 s{sWq1}, s{sWq}, {1 << 20}")
    a.e(f"s_lshr_b32 s{sXo}, s{sJ}, 1"); a.e(f"s_lshl_b32 s{sXo}, s{sXo}, 7")
    if not OPT['st0']: stamp(a, 0)
    stamp(a, 1, False)
    for j in range(3): emit_tile(a, x_block(j, 0, sXo))
    def common_consts():
        if OPT["rot"]:
            a.e(f"s_lshr_b32 s{sRot}, s2, 4"); a.e(f"s_xor_b32 s{sRot}, s{sRot}, s2"); a.e(f"s_and_b32 s{sRot}, s{sRot}, 15"); a.e(f"s_lshl_b32 s{sRot}, s{sRot}, 13")
        else: a.e(f"s_mov_b32 s{sRot}, 0")
        a.e(f"s_lshl_b32 s{sCur}, s{sJ}, 17"); a.e(f"s_or_b32 s{sRot}, s{sRot}, s{sCur}")
        a.e(f"s_mov_b32 s{sCX}, s{sRot}"); a.e(f"s_xor_b32 s{sNX}, s{sRot}, 131072")
        a.e("v_bfe_u32 v10, v0, 2, 3")
        a.e("v_lshrrev_b32 v11, 1, v10"); a.e("v_lshlrev_b32 v11, 6, v11"); a.e(f"v_lshl_add_u32 v{vWAl}, v10, 10, v11")
        a.e("v_and_b32 v11, 1, v10"); a.e(f"v_lshl_add_u32 v{vWAl}, v11, 3, v{vWAl}")
        a.e("v_lshrrev_b32 v11, 5, v0"); a.e(f"v_lshl_add_u32 v{vWAl}, v11, 8, v{vWAl}")
        a.e("v_mul_u32_u24 v10, 1056, v10"); a.e("v_lshl_add_u32 v10, v11, 8, v10")
        a.e("v_and_b32 v11, 3, v0"); a.e(f"v_lshl_add_u32 v{vWAl}, v11, 4, v{vWAl}")
        a.e(f"v_lshl_add_u32 v10, v11, 3, v10"); a.e(f"v_add_u32 v{vVA}, {VB}, v10")
        a.e(f"v_add_u32 v{vWAh}, {VB}, v{vWAl}")
        a.e("v_and_b32 v10, 7, v8"); a.e("v_mul_u32_u24 v10, 1056, v10")
        a.e("v_lshrrev_b32 v11, 3, v8"); a.e(f"v_lshl_add_u32 v10, v11, 8, v10")
        a.e(f"v_lshl_add_u32 v{vKA}, v9, 4, v10")
        a.e("v_lshlrev_b32 v10, 4, v0"); a.e(f"v_lshl_add_u32 v{vKV}, v7, 11, v10")
        a.e(f"v_lshlrev_b32 v10, 7, v8"); a.e(f"v_add_u32 v10, s{sXL}, v10")
        a.e("v_lshrrev_b32 v11, 1, v8"); a.e("v_xor_b32 v11, v11, v9")
        a.e(f"s_and_b32 s{sTmp}, s{sJ}, 1"); a.e(f"s_lshl_b32 s{sTmp}, s{sTmp}, 2"); a.e(f"v_xor_b32 v11, s{sTmp}, v11")
        a.e(f"v_lshl_add_u32 v{vXA0}, v11, 4, v10")
        a.e("v_xor_b32 v11, 4, v11"); a.e(f"v_lshl_add_u32 v{vXA1}, v11, 4, v10")
        a.e(f"s_lshl_b32 s{sTmp}, s{sB}, 3"); a.e(f"s_add_u32 s{sTmp}, s{sTmp}, s{sU}"); a.e(f"s_lshl_b32 s{sTmp}, s{sTmp}, 19")
        srd(a, sK, 6, f"s{sTmp}", 4 * 131072)
        srd(a, sV, 8, f"s{sTmp}", 4 * 131072)
        a.e(f"s_mul_i32 s{sTmp}, s{sU}, {512*1280}")
        srd(a, sWo, 12, f"s{sTmp}", 512 * 1280)
        for r in range(4): a.e(f"s_xor_b32 s{sH[r]}, s{sJ}, {r}"); a.e(f"s_mul_i32 s{sH[r]}, s{sH[r]}, 163840")
        a.e(f"s_mov_b32 s{sPM}, s{sKVL}"); a.e(f"s_mov_b32 s{sPK}, 0")
        a.e(f"s_cmp_lt_u32 s{sU}, 4")
        a.e(f"s_cselect_b32 s{sTmp}, 128, 0"); a.e(f"s_mov_b32 s{sD0}, 128"); a.e(f"s_cselect_b32 s{sD0}, -128, s{sD0}")
        a.e(f"s_sub_u32 s{sD1}, 256, s{sD0}")
        for r in range(4): a.e(f"s_add_u32 s{sH[r]}, s{sH[r]}, s{sTmp}")
        a.e(f"s_lshl_b32 s{sTmp}, s{sG}, 12"); a.e(f"s_add_u32 s{sTmp}, s{sTmp}, {FLG}")
        srd(a, sF, 28, f"s{sTmp}", 4096)
    def touch0(three):
        if OPT["t0x"]:
            a.e("v_min_u32 v10, 59, v0"); a.e("v_lshlrev_b32 v10, 7, v10")
            a.e(f"s_lshl_b32 s{sTmp}, s{sU}, 2"); a.e(f"s_add_u32 s{sTmp}, s{sTmp}, s{sWv}"); a.e(f"s_mul_i32 s{sTmp}, s{sTmp}, 7680")
            a._emit(f"buffer_load_dword v11, v10, {sr(sX,4)}, s{sTmp} offen")
        if OPT["t0w"] and three:
            a.e("v_lshrrev_b32 v14, 2, v0"); a.e("v_lshlrev_b32 v14, 13, v14"); a.e("v_and_b32 v15, 3, v0"); a.e("v_lshl_add_u32 v14, v15, 7, v14")
            a.e(f"s_and_b32 s{sTmp}, s{sB}, 3"); a.e(f"s_lshl_b32 s{sTmp}, s{sTmp}, 2"); a.e(f"s_add_u32 s{sTmp}, s{sTmp}, s{sWv}"); a.e(f"s_lshl_b32 s{sTmp}, s{sTmp}, 17")
            for k in range(3):
                a.e(f"s_add_u32 s{sT2}, s{sTmp}, {k*256*8192}")
                a._emit(f"buffer_load_dword v{16+k}, v14, {sr(sW,4)}, s{sT2} offen")
    def part_srd(slot_expr, size):
        a.e(f"s_mul_i32 s{sTmp}, s{sG}, {PART}"); slot_expr(); a.e(f"s_lshl_b32 s{sT2}, s{sT2}, 10"); a.e(f"s_add_u32 s{sTmp}, s{sTmp}, s{sT2}")
        srd(a, sP, 28, f"s{sTmp}", size)
    NF = OPT["first"]
    LA = OPT['la']
    def wpos(n): return 8 + n % 8
    def rd_x(buf): return [rd_xb(Xreg(buf, j, s), j, s) for s in range(2) for j in range(3)]
    NF = 2
    for n in range(NF): emit_tile(a, w_tile(wpos(n), n))
    common_consts()
    touch0(False)
    code_touch(a, "L_q", "L_hot_end" if OPT["ctouch"] & 2 == 0 else "L_g", 10, 11)
    a.e(f"s_lshl_b32 s{sTmp}, s{sU}, 9"); a.e(f"s_lshl_b32 s{sT2}, s{sWv}, 7"); a.e(f"s_add_u32 s{sTmp}, s{sTmp}, s{sT2}")
    a.e("v_and_b32 v8, 7, v0"); a.e(f"v_lshlrev_b32 v8, 2, v8"); a.e("v_mov_b32 v9, 0")
    a._emit(f"buffer_store_dword v9, v8, {sr(sF,4)}, s{sTmp} offen sc1")
    a.e(f"s_mov_b32 s{sLast}, 3"); a.e(f"s_mov_b32 s{sS8}, {8*40960}")
    for r in range(256):
        if r % 40 == 0 and NF + r // 40 < LA: emit_tile(a, w_tile(wpos(NF + r // 40), NF + r // 40))
        a.e(f"v_accvgpr_write_b32 a{r}, 0")
    for r in list(range(124, 156)) + list(range(160, 256)): a.e(f"v_mov_b32 v{r}, 0")
    a.raw_wait(f"s_waitcnt vmcnt({2 * (LA - 2)}) lgkmcnt(0)")
    a.e("s_barrier")
    for r in rd_x(0): a.e(r)
    for i in range(8):
        for r in rd_w(Wreg(0, i), wpos(0), i): a.e(r)
    a.raw_wait("s_waitcnt lgkmcnt(0)"); a.lg = []
    if OPT["qprof"] == 1: stamp(a, 5); stamp(a, 6, False)
    def qmf(n):
        s, pos = divmod(n % 16, 4)
        return [mf(Qacc(pos, i, j), Wreg(n & 1, i), Xreg((s >> 1) & 1, j, s & 1), Qacc(pos, i, j)) for i in range(8) for j in range(3)]
    def kv_early(isv):
        s = sV if isv else sK; b = VB if isv else 0
        return [([f"s_xor_b32 s{sOff2}, s{sCX}, s{sPK}", f"s_add_u32 m0, s{sPM}, {b}"], f"buffer_load_dwordx4 v{vKV}, {sr(s,4)}, s{sOff2} offen nt lds"),
                ([f"s_add_u32 m0, s{sPM}, {b + 32}"], f"buffer_load_dwordx4 v{vKV}, {sr(s,4)}, s{sOff2} offen offset:1024 nt lds")]
    def q_group(last):
        for n in range(16):
            a.c(f"Q sub-step {n}{' (last group)' if last else ''}")
            S = Sched(a, qmf(n))
            fin = last and n == 15
            q = n % 8
            xrd = q in (6, 7) and not (last and n >= 8)
            if not fin:
                rds = []
                for i in range(8): rds += rd_w(Wreg((n + 1) & 1, i), wpos(n + 1), i)
                for r, p in zip(rds, RDPOS): S.v(p, r)
                m = n + LA
                if not last or m < 16: place_tile(a, S, w_tile(wpos(m), m), (6, 11))
                if last and 9 <= n <= 13: place_tile(a, S, kv_tile(n - 1, (n - 1) >> 1), (16, 19))
                if not (last and n == 14):
                    hi = min(m, 15) if last else m
                    ykv = len([k for k in range(9, 14) if n + 2 - LA <= k <= n]) if last else 0
                    end_sync(a, S, 2 * (hi - (n + 2)) + 2 * ykv, 5 if xrd else 2)
            if xrd:
                rx = rd_x(((n >> 3) + 1) & 1)[3*(q-6):3*(q-6)+3]
                if q == 6: S.h(16, lambda: vmw(a, 8))
                for r, p in zip(rx, (19, 20, 21)): S.v(p, (r, "xr"))
            if q in (0, 1, 2) and not (last and n >= 8):
                if q == 0: S.h(12, lambda: a.wait(lg="xr"))
                place_tile(a, S, x_block(q, 128, sXo, "s_xor_b32") if n < 8 else x_block(q, 256, sXo), (16, 19))
            if n in (11, 12) and not last: place_tile(a, S, kv_early(n == 12), (16, 19))
            if n == 15 and not last:
                S.h(1, f"s_add_u32 s{sPM}, s{sPM}, {TILE}")
                S.h(2, f"s_add_u32 s{sPK}, s{sPK}, 8192")
                S.h(12, f"s_mov_b32 s{sWq}, s{sWq1}")
                S.h(13, f"s_add_u32 s{sWq1}, s{sWq1}, {1 << 20}")
                S.h(14, f"s_add_u32 s{sXo}, s{sXo}, 256")
                S.h(15, f"s_cmp_lt_u32 s{sXo}, 1024")
            S.emit(None if fin else qmf(n + 1)[0])
    a.e(".p2align 6")
    a.e("L_q:")
    if OPT["qprof"] == 3:
        a.e(f"s_lshr_b32 s{sT3}, s{sXo}, 8"); stamp_dyn(a, 4, sT3, 4)
    mark = len(a.ins); nops0 = a.nops
    q_group(False)
    lg_end = list(a.lg)
    del a.ins[mark:]; a.nops = nops0
    q_group(False)
    assert a.lg == lg_end
    a.e("s_cbranch_scc1 L_q")
    if OPT["qprof"] == 3: stamp(a, 8)
    q_group(True)
    if OPT["qprof"] == 1: stamp(a, 7); stamp(a, 8, False)
    stamp(a, 3)
    a.c("Q conversion")
    convert(a, Qacc, [QBANK[3], QBANK[2], QBANK[1], None], [60 + 12 * k for k in range(5)])
    late_consts(a)
    l = newlabel("boot")
    a.e(f"s_cmp_lg_u32 s{sWv}, 0"); a.e(f"s_cbranch_scc1 {l}")
    a.e(f"s_lshl_b32 s{sTmp}, s{sG}, 2"); a.e(f"s_add_u32 s{sTmp}, s{sTmp}, 128")
    a.e(f"v_mov_b32 v157, s{sTmp}")
    a.e(f"s_getreg_b32 s{sT2}, hwreg(HW_REG_XCC_ID, 0, 4)")
    a.e(f"s_mul_i32 s{sT3}, s{sT2}, s{sT2}"); a.e(f"s_lshl_b32 s{sT3}, s{sT3}, 8"); a.e(f"s_add_u32 s{sT3}, s{sT3}, s{sT2}")
    a.e(f"s_lshl_b32 s{sT3}, s{sT3}, 8"); a.e(f"s_add_u32 s{sPK}, s{sT3}, 1"); a.e(f"v_mov_b32 v158, s{sPK}")
    a.e("s_mov_b64 exec, 1")
    a._emit("global_atomic_add v157, v158, s[18:19]")
    a.e("s_mov_b64 exec, -1")
    a.e(f"{l}:")
    a.e("L_enter:")
    a.e(f"v_mov_b32 v{vT}, 0x3f803f80")
    for r in range(4): a.e(f"v_accvgpr_write_b32 a{ONES[1]+r}, v{vT}")
    a.e(f"s_mov_b32 s{sR}, 0")
    def rd_k(dst, t, u): return [f"ds_read_b128 {vr(dst + 4*ks,4)}, v{vKA} offset:{(t % 8)*TILE + u*512 + ks*64}" for ks in range(4)]
    def rd_v(t, half, fr=VF):
        return [f"ds_read_b64_tr_b16 {vr(fr + 4*i + 2*e, 2)}, v{vVA} offset:{(t % 8)*TILE + e*512 + (4*half+i)*32}" for i in range(4) for e in range(2)]
    vmw(a, 10)
    a.e("s_barrier")
    a.lg = []
    for r in rd_k(VF, 0, 1) + rd_k(KF, 0, 0): a.e(r)
    if OPT["qprof"] < 3: stamp(a, 4)
    def ex(u, k): j, r = divmod(k, 4); s = Sr(u, j) + r; return f"v_exp_f32 v{s}, v{s}"
    def cv(u, buf, c): j, h = divmod(c, 2); s = Sr(u, j) + 2*h; return f"v_cvt_pk_bf16_f32 v{Pr(buf,j) + 2*u + h}, v{s}, v{s+1}"
    def qk(u): return [mf(Sr(u, j), KF + 4*ks, Qf(j, ks), Nm(j) if ks == 0 else Sr(u, j)) for j in range(3) for ks in range(4)]
    def pv(t, half, fr=VF): return [mf(Or(4*half + i, j), fr + 4*i, Pr(t & 1, j), None if t == 0 else Or(4*half + i, j)) for i in range(4) for j in range(3)]
    def sm(t): return [mf(La(j), ONES, Pr(t & 1, j), None if t == 0 else La(j)) for j in range(3)]
    oob = []
    def stream_tile(S, m, gaps):
        kv = kv_tile(m, m >> 1)
        if m < 32:
            place_tile(a, S, kv, gaps); return
        wo, post = wo_tile(m - 32)
        for k2, ((pre, d), (pre2, d2), g) in enumerate(zip(kv, wo, gaps)):
            for k, x in enumerate(pre): S.h(g - len(pre) + k, x)
            l0, l1 = newlabel("wo"), newlabel("back")
            def site(d=d, l0=l0, l1=l1):
                a.e(f"s_cbranch_vccnz {l0}"); a._emit(d); a.e(f"{l1}:")
            S.v(g, site)
            extra = []
            if m - 32 == 1:
                extra = [f"s_mul_i32 s{sT2}, s{sG}, {XG}", f"s_mul_i32 s{sT3}, s{sU}, {XD}", f"s_add_u32 s{sT2}, s{sT2}, s{sT3}",
                         f"s_mul_i32 s{sT3}, s{sWv}, 1536", f"s_add_u32 s{sT2}, s{sT2}, s{sT3}", f"s_add_u32 s{sT2}, s{sT2}, {5*XP + k2*768}",
                         "v_lshrrev_b32 v158, 3, v0", "v_min_u32 v158, 6, v158", "v_mul_u32_u24 v158, 6144, v158",
                         f"v_and_b32 v{vPt}, 7, v0", f"v_min_u32 v{vPt}, 5, v{vPt}", f"v_lshl_add_u32 v158, v{vPt}, 7, v158",
                         f"v_add_u32 v158, s{sT2}, v158", U("global_load_dword v159, v158, s[28:29]")]
            oob.append((l0, l1, pre2, d2, (post if k2 else []) + extra))
    def tail_vec(S, u, buf, rds):
        pos = [0, 1, 4, 5, 8, 9, 10, 11]
        for r, p in zip(rds, pos): S.v(p, r)
        for k, p in zip(range(8, 12), (2, 3, 6, 7)): S.v(p, ex(u, k))
        for c, p in zip(range(6), (0, 1, 4, 5, 8, 9)): S.v(p, cv(u, buf, c))
    a.e(".p2align 6")
    a.e("L_head:")
    a.c("tile 0: scores and stand-in row max (max over the first 32 keys)")
    a.e(f"s_cmp_eq_u32 s{sR}, s{sLast}")
    for u, kf in ((1, VF), (0, KF)):
        for j in range(3):
            for ks in range(4):
                a.e(mf(Sr(u, j), kf + 4*ks, Qf(j, ks), None if ks == 0 else Sr(u, j)))
    a.e("s_cselect_b64 vcc, -1, 0")
    vmw(a, 20)
    a.e("s_barrier")
    for r in rd_k(KF, 1, 0): a.e(r)
    emit_tile(a, kv_tile(13, 6)); emit_tile(a, kv_tile(14, 7))
    if OPT["touch"]:
        a.e(f"s_mul_i32 s{sT2}, s{sR}, 163840")
        a._emit(f"buffer_load_dword v{vD}, v{vTo}, {sr(sWo,4)}, s{sT2} offen")
    if OPT["ctouch"] & 2:
        l = newlabel("ct")
        a.e(f"s_cbranch_vccz {l}")
        code_touch(a, "L_g", "L_hot_end", 158, 159)
        a.e(f"{l}:")
    l = newlabel("bp")
    a.e(f"s_xor_b32 s{sT2}, s{sR}, 3"); a.e(f"s_or_b32 s{sT2}, s{sT2}, s{sWv}"); a.e(f"s_cbranch_scc1 {l}")
    a._emit("global_load_dword v156, v157, s[18:19] sc1")
    a.e(f"{l}:")
    for j in range(3):
        n = Nm(j); s0 = Sr(0, j); s1 = Sr(1, j)
        a.e(f"v_max3_f32 v{n}, v{s1}, v{s1+1}, v{s1+2}")
        a.e(f"v_max3_f32 v{n+1}, v{s1+3}, v{s0}, v{s0+1}")
        a.e(f"v_max3_f32 v{n}, v{n}, v{s0+2}, v{s0+3}")
        a.e(f"v_max_f32 v{n}, v{n}, v{n+1}")
    rowred(a, "v_max_f32", [Nm(j) for j in range(3)], [Nm(j) + 1 for j in range(3)])
    for j in range(3):
        n = Nm(j)
        a.e(f"v_sub_f32 v{n}, 0, v{n}")
        for r in range(1, 4): a.e(f"v_mov_b32 v{n+r}, v{n}")
    for u in range(2):
        for j in range(3):
            for r in range(4): a.e(f"v_add_f32 v{Sr(u,j)+r}, v{Sr(u,j)+r}, v{Nm(j)}")
    for k in range(12): a.e(ex(0, k))
    for k in range(8): a.e(ex(1, k))
    for c in range(6): a.e(cv(0, 0, c))
    for t in range(15):
        a.c(f"stage {t}")
        S = Sched(a, qk(0)); tail_vec(S, 1, t & 1, rd_v(t, 0)); S.emit(pv(t, 0)[0])
        S = Sched(a, pv(t, 0))
        for r, p in zip(rd_k(KF, t+1, 1), (0, 1, 2, 3)): S.v(p, r)
        for k, p in zip(range(8), range(4, 12)): S.v(p, ex(0, k))
        S.h(10, lambda: a.wait(lg="all"))
        S.emit(qk(1)[0])
        S = Sched(a, qk(1)); tail_vec(S, 0, (t+1) & 1, rd_v(t, 1))
        S.h(11, lambda: vmw(a, 20))
        S.emit(None)
        S = Sched(a, sm(t) + pv(t, 1))
        S.h(0, "s_barrier")
        if t + 2 < 16:
            for r, p in zip(rd_k(KF, t+2, 0), (0, 1, 2, 3)): S.v(p, r)
        for k, p in zip(range(8), (3, 4, 6, 7, 9, 10, 12, 13)): S.v(p, ex(1, k))
        stream_tile(S, 2*(t+7) + 1, (5, 8))
        stream_tile(S, 2*(t+8), (11, 14))
        S.h(12, lambda: a.wait(lg="all"))
        S.emit(qk(0)[0] if t < 14 else None)
    a.c("stage 15")
    for r in rd_v(15, 0): a.e(r)
    for k in range(8, 12): a.e(ex(1, k))
    for c in range(6): a.e(cv(1, 1, c))
    S = Sched(a, sm(15) + pv(15, 0))
    for r, p in zip(rd_v(15, 1, KF), range(8)): S.v(p, r)
    S.emit(pv(15, 1, KF)[0])
    S = Sched(a, pv(15, 1, KF))
    for j in range(3): S.v(j, f"v_accvgpr_read_b32 v{vT+j}, a{La(j)[1]}")
    S.v(3, f"v_add_f32 v{vT+3}, v{vT}, v{vT+1}"); S.v(4, f"v_add_f32 v{vT+3}, v{vT+3}, v{vT+2}")
    S.v(5, f"v_mov_b32 v{vT+4}, {f32(2.0**30 if not OPT['forceslow'] else 150.0)}")
    S.v(6, f"v_cmp_nle_f32 vcc, v{vT+3}, v{vT+4}")
    S.emit(None)
    assert not a.lg
    if not OPT["nocheck"]: a.e("s_cbranch_vccnz L_slow")
    a.e("L_epi:")
    for r in rd_k(VF, 0, 1) + rd_k(KF, 0, 0): a.e(r)
    for j in range(3): a.e(f"v_rcp_f32 v{vT+j}, v{vT+j}")
    for p in range(4):
        for j in range(3):
            d = Qf(j, p)
            for u in range(2):
                o = Or(2*p + u, j)
                for r in range(4): a.e(f"v_mul_f32 v{o+r}, v{o+r}, v{vT+j}")
                a.e(f"v_cvt_pk_bf16_f32 v{d+2*u}, v{o}, v{o+1}")
                a.e(f"v_cvt_pk_bf16_f32 v{d+2*u+1}, v{o+2}, v{o+3}")
    if OPT["stamp"]:
        if not OPT['qprof']: stamp_dyn(a, 5, sR, 4)
    a.e(f"s_and_b32 s{sCur}, s{sNX}, 0x60000")
    a.e(f"s_mov_b32 s{sCX}, s{sNX}")
    a.e(f"s_add_u32 s{sT2}, s{sR}, 2"); a.e(f"s_and_b32 s{sT2}, s{sT2}, 3"); a.e(f"s_lshl_b32 s{sT2}, s{sT2}, 17"); a.e(f"s_xor_b32 s{sNX}, s{sRot}, s{sT2}")
    a.e(f"s_add_u32 s{sR}, s{sR}, 1")
    a.e(f"s_cmp_gt_u32 s{sR}, s{sLast}"); a.e("s_cbranch_scc1 L_g")
    a.e(f"s_cmp_eq_u32 s{sR}, 3"); a.e("s_cbranch_scc1 L_sw2")
    a.e(f"s_cmp_eq_u32 s{sR}, 2"); a.e("s_cbranch_scc1 L_sw1")
    for r in range(3):
        a.e(f"L_sw{r}:")
        for p in range(4):
            for j in range(3):
                for x in range(4): a.e(f"v_accvgpr_write_b32 a{OBANK[r] + 12*p + 4*j + x}, v{Qf(j,p)+x}")
        for p in range(4):
            for j in range(3):
                for x in range(4): a.e(f"v_accvgpr_read_b32 v{Qf(j,p)+x}, a{QBANK[r+1] + 12*p + 4*j + x}")
        a.e("s_nop 0")
        a.e("s_branch L_head")
    for l0, l1, pre2, d2, post in oob:
        a.e(f"{l0}:")
        for x in pre2: a.e(x)
        a._emit(d2)
        for x in post: (a._emit if isinstance(x, U) else a.e)(x)
        a.e(f"s_branch {l1}")
    sPr, sOut, sOo, sDst = sX, sW, sLast, 40
    LD = {0: 12, 1: 36}
    ACC, STG = 60, 72
    vSA, vSB, vLA, vLB, vOA, vFl, vFi, vPoll, vVal, TM, PK = 120, 121, 122, 123, 124, 125, 126, 127, 128, 130, 134
    def Ga(h, i, j): return O_ + 48 * h + 12 * i + 4 * j
    def spin_loop(l0, l1, cmp, reload):
        a.e(f"{l0}:")
        a.e(f"s_mov_b32 s{sT3}, 0")
        l2 = newlabel("spin")
        a.e(f"{l2}:")
        a.e(f"s_add_u32 s{sT3}, s{sT3}, 1")
        a.e(f"s_cmp_ge_u32 s{sT3}, {SPIN_MAX}")
        a.e(f"s_cbranch_scc1 {l1}")
        a.e(f"s_sleep {OPT['sleep']}")
        a._emit(reload)
        a.raw_wait("s_waitcnt vmcnt(0)")
        for x in cmp: a._emit(x)
        a._emit("s_nop 4")
        a.e(f"s_cbranch_vccnz {l2}")
        a.e(f"s_branch {l1}")
    spins = []
    def rd_g(dst, m, f):
        h, o = slot(m); i, c = divmod(f, 2)
        return [f"ds_read_b64_tr_b16 {R(off(dst, 2*e), 2)}, v{(vWAl, vWAh)[h]} offset:{o + c*512 + e*256 + i*32}" for e in range(2)]
    a.e(".p2align 6")
    a.e("L_g:")
    a.lg = []
    a.e(f"v_lshrrev_b32 v{TM}, 5, v0"); a.e(f"v_lshlrev_b32 v{TM}, 7, v{TM}")
    a.e(f"v_sub_u32 v{vWAh}, v{vVA}, v{TM}"); a.e(f"v_subrev_u32 v{vWAl}, {VB}, v{vWAh}")
    a.raw_wait("s_waitcnt vmcnt(20) lgkmcnt(0)")
    l, l0, l1 = newlabel("bc"), newlabel("bs"), newlabel("bok")
    a.e(f"v_mov_b32 v{TM+1}, {XB}")
    a.e(f"s_cmp_lg_u32 s{sWv}, 0"); a.e(f"s_cbranch_scc1 {l}")
    bcmp = [f"v_and_b32 v{TM}, 0xff, v156", f"v_cmp_gt_u32 vcc, 8, v{TM}"]
    for x in bcmp: a._emit(x)
    a._emit("s_nop 4")
    if not OPT["nosync"]: a.e(f"s_cbranch_vccnz {l0}")
    a.e(f"{l1}:")
    spins.append((l0, l1, bcmp, "global_load_dword v156, v157, s[18:19] sc1"))
    a.e(f"s_lshl_b32 s{sTmp}, s{sPK}, 3"); a.e(f"v_xor_b32 v156, s{sTmp}, v156")
    a.e(f"ds_write_b32 v{TM+1}, v156")
    a.raw_wait("s_waitcnt lgkmcnt(0)")
    a.e(f"{l}:")
    a.lg = []
    a.e("s_barrier")
    a.e(f"ds_read_b32 v{TM+2}, v{TM+1}")
    for f in range(8):
        for r in rd_g(Greg(0, f), 0, f): a.e(r)
    for p in range(4):
        for j in range(3):
            for x in range(4): a.e(f"v_accvgpr_write_b32 a{OBANK[3] + 12*p + 4*j + x}, v{Qf(j,p)+x}")
    a.e(f"s_mul_i32 s{sTmp}, s{sG}, {XG}")
    srd(a, sP, 28, f"s{sTmp}", 0)
    a.e(f"s_mul_i32 s{sT2}, s{sU}, {XD}"); a.e(f"s_add_u32 s{sTmp}, s{sTmp}, s{sT2}")
    srd(a, sPr, 28, f"s{sTmp}", 0)
    for i in range(7):
        a.e(f"s_xor_b32 s{sDst+i}, s{sU}, {i ^ 7}"); a.e(f"s_mul_i32 s{sDst+i}, s{sDst+i}, {XD}"); a.e(f"s_add_u32 s{sDst+i}, s{sDst+i}, {i*6144}")
    a.e(f"s_mul_i32 s{sTmp}, s{sB}, 491520"); a.e(f"s_mul_i32 s{sT2}, s{sBr}, 1280"); a.e(f"s_add_u32 s{sTmp}, s{sTmp}, s{sT2}")
    a.e(f"s_lshl_b32 s{sT2}, s{sU}, 5"); a.e(f"s_add_u32 s{sTmp}, s{sTmp}, s{sT2}")
    srd(a, sOut, 16, f"s{sTmp}", 0)
    a.e(f"s_mul_i32 s{sTmp}, s{sWv}, 1536"); a.e(f"v_lshl_add_u32 v{vSA}, v0, 4, s{sTmp}")
    a.e(f"s_add_u32 s{sTmp}, s{sTmp}, 1024"); a.e(f"v_lshl_add_u32 v{vSB}, v0, 3, s{sTmp}")
    a.e(f"v_and_b32 v{TM}, 15, v0"); a.e(f"v_mul_u32_u24 v{TM}, 2560, v{TM}"); a.e(f"v_lshrrev_b32 v{TM+1}, 4, v0"); a.e(f"v_lshl_add_u32 v{TM}, v{TM+1}, 3, v{TM}")
    a.e(f"s_mul_i32 s{sTmp}, s{sWv}, {48*2560}"); a.e(f"v_add_u32 v{vOA}, s{sTmp}, v{TM}")
    a.e(f"s_lshl_b32 s{sTmp}, s{sWv}, 7"); a.e(f"s_lshl_b32 s{sT2}, s{sU}, 2"); a.e(f"s_add_u32 s{sT2}, s{sT2}, s{sTmp}")
    a.e(f"v_lshl_add_u32 v{vFl}, v0, 9, s{sT2}")
    a.e(f"s_lshl_b32 s{sT2}, s{sU}, 9"); a.e(f"s_add_u32 s{sT2}, s{sT2}, s{sTmp}")
    a.e(f"v_and_b32 v{TM}, 7, v0"); a.e(f"v_lshl_add_u32 v{vFi}, v{TM}, 2, s{sT2}")
    a.e(f"v_mov_b32 v{vVal}, 0"); a.e(f"v_mov_b32 v{vPoll}, 0")
    a.e(f"s_mov_b32 s{sGc}, 0"); a.e(f"s_mov_b32 s{sOo}, -512"); a.e(f"s_mov_b32 s{sS8}, 0xffff0000")
    a.wait(lg="all")
    a.e(f"v_readfirstlane_b32 s{sTmp}, v{TM+2}")
    a.e("s_nop 1")
    a.e(f"s_cmp_lg_u32 s{sTmp}, 0")
    a.e("s_branch L_gx" if OPT["xmode"] == 1 else "s_cbranch_scc1 L_gx")
    def gmf(n):
        h, t = divmod(n % 16, 8)
        o = []
        for i in range(4):
            for j in range(3):
                for c in range(2):
                    r, p = divmod(2 * t + c, 4)
                    o.append(mf(Ga(h, i, j), Greg(n & 1, 2*i + c), ("a", OBANK[r] + 12 * p + 4 * j), None if t == 0 and c == 0 else Ga(h, i, j)))
        return o
    NP = {0: 4, 1: 3}
    def cvs(h): return [f"v_cvt_pk_bf16_f32 v{STG + 6*i + 2*j + x}, v{Ga(h,i,j)+2*x}, v{Ga(h,i,j)+2*x+1}" for i in range(NP[h]) for j in range(3) for x in range(2)]
    def rops(h, k):
        o = []
        for r in range(6):
            s = LD[h] + 6*k + r; t = TM + 2 * (r & 1)
            src = Ga(1, 3, r >> 1) + 2 * (r & 1) if (h, k) == (0, 0) else ACC + 2*r
            o += [f"v_lshlrev_b32 v{t}, 16, v{s}", f"v_and_b32 v{t+1}, s{sS8}, v{s}",
                  f"v_add_f32 v{ACC+2*r}, v{src}, v{t}", f"v_add_f32 v{ACC+2*r+1}, v{src+1}, v{t+1}"]
        return o
    rcv = [f"v_cvt_pk_bf16_f32 v{PK+r}, v{ACC+2*r}, v{ACC+2*r+1}" for r in range(6)]
    def rst(j): return ([f"s_add_u32 s{sOff2}, s{sOo}, {j*40960}"], f"buffer_store_dwordx2 {vr(PK+2*j,2)}, v{vOA}, {sr(sOut,4)}, s{sOff2} offen")
    chk_cmp = [f"v_cmp_gt_u32 vcc, v{vVal}, v{vPoll}"]
    poll = f"buffer_load_dword v{vPoll}, v{vFi}, {sr(sF,4)}, 0 offen sc1"

    def g_phase(fast):
        pol = "" if fast else " sc1"
        la, lb = (vSA, vSB) if fast else (vLA, vLB)
        def xst(h, i): return [([], f"buffer_store_dwordx4 {vr(STG+6*i,4)}, v{vSA}, {sr(sP,4)}, s{sDst+4*h+i} offen{pol}"),
                               ([], f"buffer_store_dwordx2 {vr(STG+6*i+4,2)}, v{vSB}, {sr(sP,4)}, s{sDst+4*h+i} offen{pol}")]
        def xld(h, k): return [([f"s_mov_b32 s{sOff2}, {(4*h+k)*6144}"], f"buffer_load_dwordx4 {vr(LD[h]+6*k,4)}, v{la}, {sr(sPr,4)}, s{sOff2} offen sc1"),
                               ([], f"buffer_load_dwordx2 {vr(LD[h]+6*k+4,2)}, v{lb}, {sr(sPr,4)}, s{sOff2} offen sc1")]
        flag = f"buffer_store_dword v{vVal}, v{vFl}, {sr(sF,4)}, 0 offen{pol}"
        def check():
            l0, l1 = newlabel("sp"), newlabel("ok")
            if not OPT["nosync"]: a.e(f"s_cbranch_vccnz {l0}")
            a.e(f"{l1}:")
            spins.append((l0, l1, chk_cmp, poll))
        if fast: a.e(f"v_add_u32 v{vSA}, {5*XP}, v{vSA}"); a.e(f"v_add_u32 v{vSB}, {5*XP}, v{vSB}")
        else:
            a.e(f"v_subrev_u32 v{vSA}, {XP}, v{vSA}"); a.e(f"v_subrev_u32 v{vSB}, {XP}, v{vSB}")
            a.e(f"v_mov_b32 v{vLA}, v{vSA}"); a.e(f"v_mov_b32 v{vLB}, v{vSB}")
        late = []
        def body():
            del late[:]
            Ss = [Sched(a, gmf(n)) for n in range(16)]
            cap = [[2] * 24 for _ in range(16)]
            ops = []
            def vmem(n, g_, steps, kind):
                if isinstance(kind, tuple) and kind[0] == "T": place_tile(a, Ss[n], steps, g_)
                else:
                    for (pre, d), x in zip(steps, g_):
                        for y in pre: Ss[n].h(x, y)
                        Ss[n].v(x, lambda d=d: a._emit(d))
                for x in g_: cap[n][x] = 0; ops.append((n, x, kind))
            tpos = {0: [(6, 11)], 1: [(6, 11)], 4: [(6, 11), (16, 19)], 5: [(11, 16), (19, 22)], 6: [(6, 11)], 7: [(11, 16)]}
            m = 13
            for n in range(16):
                h, t = divmod(n, 8); S = Ss[n]
                rds = []
                for f in range(8): rds += rd_g(Greg((n + 1) & 1, f), n + 1, f)
                for r, p in zip(rds, RDPOS): S.v(p, r); cap[n][p] -= 1
                cap[n][23] = 0 if n % 4 == 1 else 1; cap[n][20] = min(cap[n][20], 1); cap[n][21] = min(cap[n][21], 1)
                for gp in tpos.get(t, []):
                    st, post = wo_tile(m)
                    if m == 16:
                        S.h(gp[0] - 4, f"s_cmp_eq_u32 s{sGc}, 4"); S.h(gp[0] - 3, f"s_cselect_b32 s{sWo+2}, 0, s{sWo+2}")
                    vmem(n, gp, st, ("T", m))
                    for x in post: S.h(gp[1], x)
                    m += 1
                if t == 2:
                    xs = [s_ for i in range(NP[1-h]) for s_ in xst(1 - h, i)] + [s_ for k in range(NP[h]) for s_ in xld(h, k)]
                    pos = [(n + d, g_) for d in (0, 1) for g_ in (6, 11, 16, 19, 20, 21, 22)]
                    for s_, (n2, g_) in zip(xs, pos): vmem(n2, (g_,), [s_], ("X", h))
                if t == 5: vmem(n, (6,), [([], flag)], "F"); S.v(4, f"v_add_u32 v{vVal}, 1, v{vVal}"); cap[n][4] -= 1
                if t == 7: vmem(n, (6,), [([], poll)], ("P", h))
            assert m == 29
            if OPT["opos"] == 0: vmem(4, (20, 21, 22), [rst(j) for j in range(3)], "O")
            else:
                for j, (n2, g_) in enumerate(((6, 16), (8, 16), (14, 16)) if OPT["opos"] == 1 else ((6, 16), (7, 21), (8, 19))): vmem(n2, (g_,), [rst(j)], "O")
            ops.sort(key=lambda x: (x[0], x[1]))
            ops2 = ops + [(n + 16, g_, k) for n, g_, k in ops]
            def younger(pt, n, g_): return len([o for o in ops2 if pt < (o[0], o[1]) < (n, g_)])
            for h in range(2):
                pt = max((o[0], o[1]) for o in ops if o[2] == ("X", h))
                Ss[8*h + 5].h(2, lambda c=younger(pt, 8*h + 5, 2): vmw(a, c))
                pt = [(o[0], o[1]) for o in ops if o[2] == ("P", h)][0]
                nc = 8*h + 9
                Ss[nc % 16].h(16, lambda c=younger(pt, nc, 16): vmw(a, c))
                Ss[nc % 16].v(16, lambda: a._emit(chk_cmp[0])); cap[nc % 16][16] -= 1
                Ss[nc % 16].h(20, check)
            def fill(lst, n, g_, rec=None):
                for op in lst:
                    while cap[n % 16][g_] <= 0:
                        g_ += 1
                        if g_ == 24: n += 1; g_ = 0
                    if not OPT["norv"]: Ss[n % 16].v(g_, lambda op=op: a._emit(op))
                    cap[n % 16][g_] -= 1
                    if rec is not None and n >= 16: rec.append(op)
                return n, g_
            e = fill(cvs(1), 0, 1); assert e < (2, 5), e
            e = fill(cvs(0), 8, 1); assert e < (10, 5), e
            e = fill(rops(0, 0), 5, 2); assert e < (8, 10), e
            e = fill([x for k in range(1, 4) for x in rops(0, k)], *e); assert e < (13, 2), e
            e = fill([x for k in range(3) for x in rops(1, k)] + rcv, 13, 2, late); assert e < (20, 18), e
            S = Ss[7]
            S.h(1, f"s_mov_b32 s{sP+2}, {XG}")
            if not fast: S.v(19, f"v_add_u32 v{vSA}, {XP}, v{vSA}"); S.v(20, f"v_add_u32 v{vSB}, {XP}, v{vSB}")
            S = Ss[15]
            S.h(0, f"s_cmp_ge_u32 s{sGc}, 1")
            S.h(1, f"s_cselect_b32 s{sOut+2}, {191*2560 + 1024 + 32}, 0")
            S.h(2, f"s_add_u32 s{sOo}, s{sOo}, 256")
            S.h(3, f"s_mov_b32 s{sPr+2}, {5*XP + XD}")
            if not fast:
                S.v(19, f"v_add_u32 v{vLA}, {XP}, v{vLA}"); S.v(20, f"v_add_u32 v{vLB}, {XP}, v{vLB}")
            S.h(18, f"s_add_u32 s{sGc}, s{sGc}, 1")
            S.h(19, f"s_cmp_lt_u32 s{sGc}, 5")
            for n in range(16):
                a.c(f"G sub-step {n}")
                if n % 4 == 1:
                    tid = n + 5 + 16
                    pt = max((o[0], o[1]) for o in ops2 if o[2] == ("T", tid if tid < 29 else tid - 16) and (o[0] < 16) == (tid < 29))
                    cnt = len([o for o in ops2 if pt < (o[0], o[1]) < (n + 16, 22) and (o[0] >= 16 or (isinstance(o[2], tuple) and o[2][0] == "T"))])
                    end_sync(a, Ss[n], min(cnt, 63), 0)
                else:
                    def w():
                        k = min(len(a.lg), OPT['gkeep']); a.raw_wait(f"s_waitcnt lgkmcnt({k})"); a.lg = a.lg[len(a.lg) - k:] if k else []
                    Ss[n].h(22, w)
                Ss[n].emit(gmf(n + 1)[0])
        lab = "L_gl_fast" if fast else "L_gl_far"
        if OPT["qprof"] == 2 and fast: stamp(a, 5); stamp(a, 6, False)
        a.e(f"{lab}:")
        if OPT["qprof"] == 4: stamp_dyn(a, 4, sGc, 5)
        a.lg = []
        mark = len(a.ins); nops0 = a.nops; ns = len(spins)
        body(); lg_end = list(a.lg)
        del a.ins[mark:]; a.nops = nops0; del spins[ns:]
        body(); assert a.lg == lg_end
        a.e(f"s_cbranch_scc1 {lab}")
        if OPT["qprof"] == 2 and fast: stamp(a, 7); stamp(a, 8, False)
        if OPT["qprof"] == 4: stamp(a, 3)
        a.c("tail")
        for x in cvs(1): a.e(x)
        stamp(a, 2)
        vmw(a, 2)
        a._emit(chk_cmp[0]); a._emit("s_nop 4"); check()
        for i in range(3): emit_tile(a, xst(1, i))
        for k in range(4): emit_tile(a, xld(0, k))
        for op in late: a._emit(op)
        vmw(a, 8)
        a.e(f"v_add_u32 v{vVal}, 1, v{vVal}")
        a._emit(flag)
        emit_tile(a, [rst(j) for j in range(3)])
        a.e(f"s_mov_b32 s{sOo}, 1024")
        for k in range(4):
            vmw(a, 2 * (3 - k) + 4)
            for op in rops(0, k): a._emit(op)
            if k == 2: a._emit(poll)
        vmw(a, 0)
        a._emit(chk_cmp[0]); a._emit("s_nop 4"); check()
        for k in range(3): emit_tile(a, xld(1, k))
        for k in range(3):
            vmw(a, 2 * (2 - k))
            for op in rops(1, k): a._emit(op)
        for op in rcv: a._emit(op)
        emit_tile(a, [rst(j) for j in range(3)])
    g_phase(True)
    a.e("L_fin:")
    stamp(a, 9, False); stamp(a, 10)
    if OPT["leak"] >= 0:
        k = OPT["leak"]
        if k == 0: a.e("s_mov_b32 s79, 0")
        elif k == 9: a.e("s_sub_u32 s79, s98, s82"); a.e("s_lshr_b32 s79, s79, 4")
        else: a.e(f"s_sub_u32 s79, s{80+2*k}, s80")
        a.e("s_add_u32 s79, s79, 15000")
        if OPT["leakwg"] == 1: a.e("s_cmp_lt_u32 s2, 8"); a.e("s_cselect_b32 s79, s79, 0")
        if OPT["leakwg"] == 2: a.e("s_cmp_ge_u32 s2, 248"); a.e("s_cselect_b32 s79, s79, 0")
        if OPT["leakwg"] == 3: a.e("s_cmp_eq_u32 s2, 0"); a.e("s_cselect_b32 s79, s79, 0")
        a.e("L_leak:")
        a._emit("s_memrealtime s[76:77]"); a.raw_wait("s_waitcnt lgkmcnt(0)")
        a.e("s_sub_u32 s76, s76, s80"); a.e("s_cmp_lt_u32 s76, s79"); a.e("s_cbranch_scc1 L_leak")
    stamp_store(a, "L_end", 0)
    dbg_store(a)
    a.e("L_end:")
    a.e("s_endpgm")
    nsp = len(spins)
    for s_ in list(spins): spin_loop(*s_)
    a.e("L_hot_end:")
    a.e(".p2align 6")
    a.e("L_gx:")
    g_phase(False)
    a.e("s_branch L_fin")
    for s_ in list(spins[nsp:]): spin_loop(*s_)
    a.reset_counters()
    a.e("L_slow:")
    a.raw_wait("s_waitcnt vmcnt(0) lgkmcnt(0)")
    vKo, vVo, t0, t1 = 10, 11, P_ + 12, P_ + 13
    a.e("s_nop 7")
    a.e(f"v_and_b32 v{t0}, 7, v0"); a.e(f"v_lshlrev_b32 v{t0}, 10, v{t0}")
    a.e(f"v_bfe_u32 v{t1}, v0, 3, 1"); a.e(f"v_lshl_add_u32 v{t0}, v{t1}, 8, v{t0}")
    a.e(f"v_lshrrev_b32 v{t1}, 4, v0"); a.e(f"v_lshl_add_u32 v{vKo}, v{t1}, 4, v{t0}")
    a.e(f"v_bfe_u32 v{t0}, v0, 4, 1"); a.e(f"v_lshlrev_b32 v{t0}, 12, v{t0}")
    a.e(f"v_lshrrev_b32 v{t1}, 5, v0"); a.e(f"v_lshl_add_u32 v{t0}, v{t1}, 8, v{t0}")
    a.e(f"v_and_b32 v{t1}, 15, v0"); a.e(f"v_lshl_add_u32 v{vVo}, v{t1}, 1, v{t0}")
    for j in range(3): a.e(f"v_mov_b32 v{vT+j}, 0xff800000")
    def slow_qk(cinit):
        for u, kf in ((0, KF), (1, VF)):
            for ks in range(4): a.e(f"buffer_load_dwordx4 {vr(kf + 4*ks,4)}, v{vKo}, {sr(sK,4)}, s{sT2} offen offset:{u*512 + ks*64}")
        for u, kf in ((0, KF), (1, VF)):
            for j in range(3):
                for ks in range(4):
                    a.e(mf(Sr(u, j), kf + 4*ks, Qf(j, ks), (Nm(j) if cinit else None) if ks == 0 else Sr(u, j)))
    a.e(f"s_mov_b32 s{sT2}, s{sCur}")
    a.e(f"s_add_u32 s{sT3}, s{sCur}, 131072")
    a.e("L_slow_p1:")
    slow_qk(False)
    for j in range(3):
        for u in range(2):
            s = Sr(u, j)
            a.e(f"v_max3_f32 v{vT+j}, v{vT+j}, v{s}, v{s+1}")
            a.e(f"v_max3_f32 v{vT+j}, v{vT+j}, v{s+2}, v{s+3}")
    a.e(f"s_add_u32 s{sT2}, s{sT2}, 8192")
    a.e(f"s_cmp_lt_u32 s{sT2}, s{sT3}")
    a.e("s_cbranch_scc1 L_slow_p1")
    rowred(a, "v_max_f32", [vT, vT+1, vT+2], [Nm(j) for j in range(3)])
    for j in range(3):
        for r in range(4): a.e(f"v_sub_f32 v{Nm(j)+r}, 0, v{vT+j}")
    for r in range(96): a.e(f"v_mov_b32 v{O_+r}, 0")
    for r in range(12): a.e(f"v_accvgpr_write_b32 a{192+r}, 0")
    a.e(f"s_mov_b32 s{sT2}, s{sCur}")
    a.e("L_slow_p2:")
    slow_qk(True)
    for u in range(2):
        for k in range(12): a.e(ex(u, k))
    for u in range(2):
        for c in range(6): a.e(cv(u, 0, c))
    for half, fr in ((0, KF), (1, VF)):
        for hi in range(2):
            for i in range(4):
                for e in range(2):
                    for rp in range(2):
                        r = 2*rp + hi
                        a.e(f"buffer_load_ushort v{(S_ if hi else fr) + 4*i + 2*e + rp}, v{vVo}, {sr(sV,4)}, s{sT2} offen offset:{r*1024 + e*512 + (4*half+i)*32}")
        a.wait(vm="all")
        for x in range(16): a.e(f"v_lshl_or_b32 v{fr+x}, v{S_+x}, 16, v{fr+x}")
    for m in sm(2): a.e(m)
    for half, fr in ((0, KF), (1, VF)):
        for m in pv(2, half, fr): a.e(m)
    a.e(f"s_add_u32 s{sT2}, s{sT2}, 8192")
    a.e(f"s_cmp_lt_u32 s{sT2}, s{sT3}")
    a.e("s_nop 7")
    a.e("s_cbranch_scc1 L_slow_p2")
    for j in range(3): a.e(f"v_accvgpr_read_b32 v{vT+j}, a{La(j)[1]}")
    a.e("s_branch L_epi")
    return a

HDR = f"""; Fused attention blocks A and B in one launch. One workgroup per CU owns 4 heads of one batch: Q projection,
; @launch grid=(256,1,1) block=(256,1,1) lds={LDS}
.amdgcn_target "amdgcn-amd-amdhsa--gfx950"
.text
"""
def kern(name, a):
    return f".globl {name}\n.p2align 8\n.type {name},@function\n{name}:\n" + a.text()
def desc(name, nv, acc, ns):
    return f""".p2align 6
.amdhsa_kernel {name}
  .amdhsa_next_free_vgpr {nv}
  .amdhsa_next_free_sgpr {ns}
  .amdhsa_accum_offset {acc}
  .amdhsa_group_segment_fixed_size 0
  .amdhsa_kernarg_size 104
  .amdhsa_user_sgpr_count 2
  .amdhsa_user_sgpr_kernarg_segment_ptr 1
  .amdhsa_system_sgpr_workgroup_id_x 1
  .amdhsa_float_denorm_mode_32 3
.end_amdhsa_kernel
"""
if __name__ == "__main__":
    a = main_kernel()
    if OPT["nodma"] & 1: a.ins = [i for i in a.ins if not (i.kind == "dma" and " v1, " in i.text)]
    if OPT["nodma"] & 2: a.ins = [i for i in a.ins if not (i.kind == "dma" and " v1, " not in i.text)]
    if OPT["nodma"] & 4: a.ins = [i for i in a.ins if not (i.kind == "store" and ("v120," in i.text or "v121," in i.text))]
    if OPT["nox2"]: a.ins = [i for i in a.ins if not (i.kind == "vmem" and ("v121," in i.text))]
    if OPT["noload"]: a.ins = [i for i in a.ins if not (i.kind == "vmem" and ("v120," in i.text or "v121," in i.text))]
    if OPT["strip"] == 2:
        i0 = [k for k, i in enumerate(a.ins) if i.text == "L_head:"][0]; i1 = [k for k, i in enumerate(a.ins) if i.text == "L_epi:"][0]
        a.ins = a.ins[:i0] + [Ins("s_nop 4") if i.kind == "mfma" else i for i in a.ins[i0:i1] if i.kind not in ("lds", "trans", "valu")] + a.ins[i1:]
    if OPT["strip"] == 1:
        i0 = [k for k, i in enumerate(a.ins) if i.text == "L_head:"][0]; i1 = [k for k, i in enumerate(a.ins) if i.text == "L_epi:"][0]
        a.ins = a.ins[:i0] + [i for i in a.ins[i0:i1] if i.kind not in ("mfma", "lds", "trans", "valu")] + a.ins[i1:]
    ns = 102 if OPT["stamp"] else NSGPR
    open(sys.argv[1], "w").write(HDR + kern(NAME + "_kernel", a) + '.section .rodata,"a"\n' + desc(NAME + "_kernel", 512, 256, ns))
    print("instrs", len(a.ins), "nops", a.nops)
```

```python
import sys, math, struct
from asmlib import *

NAME = "concat_heads__mha_block_cached__gqa_block_cached__near_ridge"
def f32(x): return "0x%08x" % struct.unpack("<I", struct.pack("<f", x))[0]
OPT = dict(stamp=0, nodma=0, nocheck=0, touch=1, forceslow=0, map84=0, first=6, rot=1, strip=0, cyc=0, typ=2, track=1, nosync=0, sleep=1, opos=1, lag=4, noack=0, noload=0, stpol=1, nolw=0, krot=1, hrot=0, xmode=0, gkeep=0, leak=-1, leakwg=0, st0=0, norv=0, now0=0, gcap=0, qprof=0, la=7, ldpol=1, lmode=0, ldfix=0, nox2=0, wnt=0, xnt=0, t0x=0, t0w=0, ctouch=3, dbgout=0)
for a_ in sys.argv[2:]:
    k_, v_ = a_.split("="); assert k_ in OPT, k_; OPT[k_] = int(v_)

def R(x, n):
    t, i = x if isinstance(x, tuple) else ("v", x)
    return f"{t}{i}" if n == 1 else f"{t}[{i}:{i+n-1}]"
def off(x, d): return (x[0], x[1] + d) if isinstance(x, tuple) else x + d
def mf(d, a, b, c):
    return f"v_mfma_f32_16x16x32_bf16 {R(d,4)}, {R(a,4)}, {R(b,4)}, {'0' if c is None else R(c,4)}"

TILE = 8448
VB = 8 * TILE
XB = 16 * TILE
LDS = XB + 24576
NSLOT = 8
CH = NSLOT * 1024
PART = 240 * CH
STAMP_AT = 128 << 20
FLG = 120 << 20
XD = 7 * 6144
XP = 8 * XD
XG = 6 * XP
SPIN_MAX = 200000
def slot(m):
    m %= 16
    return (m & 1), (m >> 1) * TILE

vKV, vKA, vVA, vWAl, vWAh, vW = 1, 2, 3, 4, 5, 6
vT = 7
QF, NM, S_, P_, KF, VF, O_ = 12, 60, 72, 96, 120, 136, 160
vX0, vX1, vXA0, vXA1 = 156, 157, 158, 159
vTo, vD, vPt, vWo = 152, 153, 154, 155
def Qf(j, ks): return QF + 16 * j + 4 * ks
def Nm(j): return NM + 4 * j
def Sr(u, j): return S_ + 12 * u + 4 * j
def Pr(buf, j): return P_ + 12 * buf + 4 * j
def Or(i, j): return O_ + 12 * i + 4 * j
def Wreg(buf, i): return 12 + 32 * buf + 4 * i
def Xreg(buf, j, s): return 76 + 24 * buf + 8 * j + 4 * s
def Qacc(pos, i, j):
    k = 12 * i + 4 * j
    if pos == 0: return ("a", k)
    if pos == 1: return ("a", 96 + k)
    if pos == 2: return ("a", 192 + k) if k < 64 else 124 + (k - 64)
    return O_ + k
QBANK = {3: 0, 2: 48, 1: 96}
OBANK = {0: 144, 1: 96, 2: 48, 3: 0}
def La(j): return ("a", 192 + 4 * j)
ONES = ("a", 204)
def Greg(buf, i): return ("a", 192 + 32 * buf + 4 * i)
sX, sW, sK, sV, sWo, sP = 32, 36, 40, 44, 48, 52
sWv, sKVL, sWL, sXL, sOff, sOff2, sTmp, sR, sCur, sT2, sT3 = 60, 61, 62, 63, 64, 65, 66, 67, 68, 69, 70
sB, sU, sBr, sG, sXo, sPo = 71, 72, 73, 74, 75, 76
sCX, sNX, sLast, sS8, sWoB, sTask, sTyp = 56, 57, 58, 59, 77, 30, 31
sWq, sGc = 26, 27
sWq1, sJ, sRot, sPM, sPK = 20, 21, 22, 23, 24
sF, sD0, sD1 = 8, 12, 13
sJh, sXo1, sPre = 25, 77, 30
sH = [4, 5, 6, 7]
NSGPR = 80

def stamp(a, k, real=True):
    if not OPT["stamp"]: return
    lg = list(a.lg)
    a.raw_wait("s_waitcnt lgkmcnt(0)")
    if OPT["cyc"] and 2 <= k <= 8: real = False
    a._emit(f"{'s_memrealtime' if real else 's_memtime'} s[{80+2*k}:{81+2*k}]")
    a.raw_wait("s_waitcnt lgkmcnt(0)")
def stamp_dyn(a, base, sidx, n):
    if not OPT["stamp"]: return
    a.raw_wait("s_waitcnt lgkmcnt(0)")
    a._emit("s_memtime s[78:79]" if OPT["cyc"] else "s_memrealtime s[78:79]")
    a.raw_wait("s_waitcnt lgkmcnt(0)")
    for q in range(n):
        a.e(f"s_cmp_eq_u32 s{sidx}, {q}")
        a.e(f"s_cselect_b32 s{80+2*(base+q)}, s78, s{80+2*(base+q)}")
def stamp_store(a, label, base):
    if not OPT["stamp"]: return
    a.e(f"s_cmp_lg_u32 s{sWv}, 0")
    a.e(f"s_cbranch_scc1 {label}")
    for k in range(11): a.e(f"v_mov_b32 v{16+k}, s{80+2*k}")
    a.e("s_lshl_b32 s78, s2, 6"); a.e(f"s_add_u32 s78, s78, {STAMP_AT + base*64}")
    a.e("v_mov_b32 v28, s78")
    a.e("s_mov_b64 exec, 1")
    a.e("global_store_dwordx4 v28, v[16:19], s[28:29]")
    a.e("global_store_dwordx4 v28, v[20:23], s[28:29] offset:16")
    a.e("global_store_dwordx4 v28, v[24:27], s[28:29] offset:32")

def dbg_store(a):
    if not OPT["dbgout"]: return
    l = "L_dbgskip"
    a.e("s_and_b32 s78, s2, 0xdf"); a.e("s_cmp_lg_u32 s78, 5"); a.e(f"s_cbranch_scc1 {l}")
    a.e("s_load_dwordx2 s[24:25], s[0:1], 88")
    for n, k in enumerate((3,4,5,6,7,8,2,10)):
        a.e(f"s_sub_u32 s79, s{80+2*k}, s80"); a.e(f"v_mov_b32 v{32+n}, s79")
    a.e("s_and_b32 s78, s2, 32"); a.e("v_mov_b32 v29, s78")
    a.raw_wait("s_waitcnt lgkmcnt(0)")
    a.e("global_store_dwordx4 v29, v[32:35], s[24:25]")
    a.e("global_store_dwordx4 v29, v[36:39], s[24:25] offset:16")
    a.e(f"{l}:")

def srd(a, d, lo, o, size):
    a.e(f"s_add_u32 s{d}, s{lo}, {o}")
    a.e(f"s_addc_u32 s{d+1}, s{lo+1}, 0")
    a.e(f"s_and_b32 s{d+1}, s{d+1}, 0xffff")
    a.e(f"s_mov_b32 s{d+2}, {size}")
    a.e(f"s_mov_b32 s{d+3}, 0x20000")
_lbl = [0]
def newlabel(p):
    _lbl[0] += 1
    return f"L_{p}_{_lbl[0]}"
class U(str): pass

def ldsbase(m):
    h, o = slot(m); return h * VB + o
def w_tile(m, n, nh=4):
    b = ldsbase(m); base = sWq if n < 4 * nh else sWq1
    rel = ((n % (4 * nh)) // nh) * 262144 + (nh - 1 - n % nh) * 256
    pol = ' nt' if OPT['wnt'] else ''
    return [([f"s_xor_b32 s{sOff}, s{base}, {rel}", f"s_add_u32 m0, s{sWL}, {b}"], f"buffer_load_dwordx4 v{vW}, {sr(sW,4)}, s{sOff} offen{pol} lds"),
            ([f"s_xor_b32 s{sOff}, s{base}, {rel + 8192}", f"s_add_u32 m0, s{sWL}, {b + 1032}"], f"buffer_load_dwordx4 v{vW}, {sr(sW,4)}, s{sOff} offen{pol} lds")]
def kv_tile(m, t):
    b = ldsbase(m); s = sV if m & 1 else sK
    so = f"s_xor_b32 s{sOff}, s{sNX if t >= 16 else sCX}, {(t % 16) * 8192}"
    return [([so, f"s_add_u32 m0, s{sKVL}, {b}"], f"buffer_load_dwordx4 v{vKV}, {sr(s,4)}, s{sOff} offen nt lds"),
            ([f"s_add_u32 m0, s{sKVL}, {b + 32}"], f"buffer_load_dwordx4 v{vKV}, {sr(s,4)}, s{sOff} offen offset:1024 nt lds")]
def wo_tile(m):
    b = ldsbase(m); h, t = divmod(m % 16, 8); r = t >> 1; rel = (t & 1) * 81920
    st = [([f"s_add_u32 s{sOff}, s{sH[r]}, {rel}", f"s_add_u32 m0, s{sKVL}, {b}"], f"buffer_load_dwordx4 v{vWo}, {sr(sWo,4)}, s{sOff} offen lds"),
          ([f"s_add_u32 s{sOff}, s{sH[r]}, {rel + 1280}", f"s_add_u32 m0, s{sKVL}, {b + 1056}"], f"buffer_load_dwordx4 v{vWo}, {sr(sWo,4)}, s{sOff} offen lds")]
    return st, ([f"s_add_u32 s{sH[r]}, s{sH[r]}, s{(sD0, sD1)[h]}"] if t & 1 else [])
def emit_tile(a, steps):
    for pre, d in steps:
        for x in pre: a.e(x)
        a._emit(d)
def place_tile(a, S, steps, gaps):
    for (pre, d), g in zip(steps, gaps):
        for k, x in enumerate(pre): S.h(g - len(pre) + k, x)
        S.v(g, lambda d=d: a._emit(d))
def rd_w(dst, m, i):
    h, o = slot(m); p, u = divmod(i, 2)
    return [f"ds_read_b64_tr_b16 {R(off(dst, 2*e), 2)}, v{(vWAl, vWAh)[h]} offset:{o + e*512 + p*64 + u*8}" for e in range(2)]
def vmw(a, n): a.raw_wait(f"s_waitcnt vmcnt({n})")

def rowred(a, op, regs, tmps):
    for w in (32, 16):
        for r, t in zip(regs, tmps): a.e(f"v_mov_b32 v{t}, v{r}")
        for r, t in zip(regs, tmps): a.e(f"v_permlane{w}_swap_b32 v{r}, v{t}")
        for r, t in zip(regs, tmps): a.e(f"{op} v{r}, v{r}, v{t}")

RDPOS = [0,1,2,3,4,5,7,8,9,10,12,13,14,15,17,18]
RDPOS_X = [2,3,5,6,8,9,11,12,14,15,16,17,18,19,20,21]

def code_touch(a, lo, hi, vaddr, vdst):
    if not OPT["ctouch"]: return
    l = newlabel("pc")
    a.e("s_getpc_b64 s[14:15]")
    a.e(f"{l}:")
    a.e(f"s_add_u32 s14, s14, {lo}-{l}"); a.e("s_addc_u32 s15, s15, 0")
    a.e(f"s_lshr_b32 s{sT2}, s2, 3"); a.e(f"s_lshl_b32 s{sT2}, s{sT2}, 2"); a.e(f"s_add_u32 s{sT2}, s{sT2}, s{sWv}"); a.e(f"s_lshl_b32 s{sT2}, s{sT2}, 7")
    a.e(f"v_and_b32 v{vaddr}, 3, v0"); a.e(f"v_lshlrev_b32 v{vaddr}, 14, v{vaddr}"); a.e(f"v_add_u32 v{vaddr}, s{sT2}, v{vaddr}")
    a.e(f"v_min_u32 v{vaddr}, {hi}-{lo}-4, v{vaddr}")
    a._emit(f"global_load_dword v{vdst}, v{vaddr}, s[14:15]")

def late_consts(a):
    a.e(f"v_min_u32 v{vTo}, 19, v0"); a.e(f"v_lshlrev_b32 v{vTo}, 7, v{vTo}")
    a.e(f"s_mul_i32 s{sTmp}, s{sB}, 10240"); a.e(f"s_mul_i32 s{sT2}, s{sWv}, 2560"); a.e(f"s_add_u32 s{sTmp}, s{sTmp}, s{sT2}")
    a.e(f"v_add_u32 v{vTo}, s{sTmp}, v{vTo}")
    a.e("v_and_b32 v9, 56, v0"); a.e(f"s_lshl_b32 s{sTmp}, s{sWv}, 1"); a.e(f"v_add_u32 v9, s{sTmp}, v9")
    a.e("v_mul_u32_u24 v9, 1280, v9"); a.e("v_and_b32 v8, 7, v0")
    a.e(f"s_xor_b32 s{sTmp}, s{sU}, 7"); a.e(f"s_and_b32 s{sTmp}, s{sTmp}, 3"); a.e(f"s_lshl_b32 s{sTmp}, s{sTmp}, 1"); a.e(f"v_xor_b32 v8, s{sTmp}, v8")
    a.e(f"v_lshl_add_u32 v{vWo}, v8, 4, v9")

def x_block(j, rel, base_s, op="s_add_u32", lds=0):
    so = f"{op} s{sOff2}, s{base_s}, {rel + j*20480}" if base_s is not None else f"s_mov_b32 s{sOff2}, {rel + j*20480}"
    return [([so, f"s_add_u32 m0, s{sXL}, {j*2048 + lds}"], f"buffer_load_dwordx4 v{vX0}, {sr(sX,4)}, s{sOff2} offen{' nt' if OPT['xnt'] else ''} lds"),
            ([f"s_add_u32 m0, s{sXL}, {j*2048 + 1024 + lds}"], f"buffer_load_dwordx4 v{vX1}, {sr(sX,4)}, s{sOff2} offen{' nt' if OPT['xnt'] else ''} lds")]
def rd_xb(dst, j, s): return f"ds_read_b128 {R(dst,4)}, v{(vXA0, vXA1)[s]} offset:{j*2048}"

def end_sync(a, S, vm, keep=2):
    def w():
        n = min(len(a.lg), keep)
        a.raw_wait(f"s_waitcnt vmcnt({vm}) lgkmcnt({n})")
        a.lg = a.lg[len(a.lg) - n:] if n else []
    S.h(22, w); S.h(23, "s_barrier")

def convert(a, acc, dests, tmp):
    a.e(f"s_mov_b32 s{sTmp}, {f32(math.log2(math.e) / math.sqrt(128.0))}")
    k = 0
    for pos, db in enumerate(dests):
        for p in range(4):
            for j in range(3):
                t = tmp[k % len(tmp)]; k += 1
                src = []
                for u in range(2):
                    o = acc(pos, 2*p + u, j)
                    for r in range(4):
                        if isinstance(o, tuple):
                            a.e(f"v_accvgpr_read_b32 v{t+4*u+r}, a{o[1]+r}"); src.append(t + 4*u + r)
                        else: src.append(o + r)
                for x in src: a.e(f"v_mul_f32 v{x}, s{sTmp}, v{x}")
                d = Qf(j, p) if db is None else t + 8
                for r in range(4): a.e(f"v_cvt_pk_bf16_f32 v{d+r}, v{src[2*r]}, v{src[2*r+1]}")
                if db is not None:
                    for r in range(4): a.e(f"v_accvgpr_write_b32 a{db + 12*p + 4*j + r}, v{d+r}")

def gcv(m, h):
    i, j = divmod(m, 3); p, u = divmod(i, 2); o = Or(i, j)
    return f"v_cvt_pk_bf16_f32 v{S_ + 12*p + 4*j + 2*u + h}, v{o+2*h}, v{o+2*h+1}"
CVS = [gcv(m, h) for m in range(24) for h in range(2)]
def gst(q, rel, base_s):
    p, j = divmod(q, 3)
    return ([f"s_add_u32 s{sOff2}, s{base_s}, {rel + (p*12 + j)*CH}"], f"buffer_store_dwordx4 {vr(S_ + 12*p + 4*j,4)}, v{vPt}, {sr(sP,4)}, s{sOff2} offen{['', ' sc1', ' nt', ' sc0'][OPT['stpol']]}")
def cv_plans():
    caps = [0 if g in (6, 11) else (1 if g in RDPOS else 2) for g in range(24)]
    last = []; ci = 0
    for g, cp in enumerate(caps):
        for _ in range(cp):
            if ci < 48 and ci // 2 + 4 <= g: last.append((g, ci)); ci += 1
    n = ci; first = []
    for g, cp in enumerate(caps):
        for _ in range(cp):
            if ci < 48: first.append((g, ci)); ci += 1
    assert ci == 48 and all(c // 2 > g for g, c in first)
    return last, first, n
PLAN_LAST, PLAN_FIRST, NLAST = cv_plans()

def Q2acc(pos, i, j): return (56 if pos == 0 else O_) + 12 * i + 4 * j
def X2reg(buf, j, s): return ("a", 24 * buf + 8 * j + 4 * s)
def q2mf(n, first):
    s, pos = divmod(n % 8, 2)
    return [mf(Q2acc(pos, i, j), Greg(n & 1, i), X2reg(s >> 1, j, s & 1), None if first and n < 2 else Q2acc(pos, i, j)) for i in range(8) for j in range(3)]

def main_kernel():
    a = Asm()
    T = OPT["typ"]
    if OPT["st0"]: a._emit("s_memrealtime s[80:81]")
    a.e("s_cmp_ge_u32 s2, 256")
    a.e("s_cbranch_scc1 L_end")
    a.e("s_load_dwordx16 s[4:19], s[0:1], 0")
    a.e("s_load_dwordx4 s[20:23], s[0:1], 64")
    a.e("s_load_dwordx2 s[28:29], s[0:1], 96")
    a.e(f"s_bfe_u32 s{sBr}, s2, 0x10002")
    if not OPT["map84"]:
        a.e(f"s_and_b32 s{sB}, s2, 3"); a.e(f"s_lshl_b32 s{sB}, s{sB}, 2")
        a.e(f"s_bfe_u32 s{sTmp}, s2, 0x20003"); a.e(f"s_add_u32 s{sB}, s{sB}, s{sTmp}")
        a.e(f"s_lshr_b32 s{sU}, s2, 5")
    elif OPT["map84"] == 2:
        a.e(f"s_bfe_u32 s{sB}, s2, 0x40003")
        a.e(f"s_and_b32 s{sU}, s2, 3"); a.e(f"s_lshl_b32 s{sU}, s{sU}, 1")
        a.e(f"s_lshr_b32 s{sTmp}, s2, 7"); a.e(f"s_add_u32 s{sU}, s{sU}, s{sTmp}")
    else:
        a.e(f"s_and_b32 s{sB}, s2, 1"); a.e(f"s_lshl_b32 s{sB}, s{sB}, 3")
        a.e(f"s_bfe_u32 s{sTmp}, s2, 0x30003"); a.e(f"s_add_u32 s{sB}, s{sB}, s{sTmp}")
        a.e(f"s_bfe_u32 s{sU}, s2, 0x10001"); a.e(f"s_lshl_b32 s{sU}, s{sU}, 2")
        a.e(f"s_lshr_b32 s{sTmp}, s2, 6"); a.e(f"s_add_u32 s{sU}, s{sU}, s{sTmp}")
    a.e(f"s_lshl_b32 s{sG}, s{sBr}, 4"); a.e(f"s_add_u32 s{sG}, s{sG}, s{sB}")
    if T == 3: a.e(f"s_andn2_b32 s{sTyp}, 1, s2")
    elif T == 2: a.e(f"s_and_b32 s{sTyp}, s2, 1")
    else: a.e(f"s_mov_b32 s{sTyp}, {T}")
    a.e("v_lshrrev_b32 v7, 6, v0")
    a.e("v_and_b32 v0, 63, v0")
    a.e(f"v_readfirstlane_b32 s{sWv}, v7")
    a.e("v_and_b32 v8, 15, v0")
    a.e("v_lshrrev_b32 v9, 4, v0")
    a.e("v_and_b32 v10, 1, v9"); a.e("v_lshlrev_b32 v10, 4, v10")
    a.e("v_lshrrev_b32 v11, 1, v9"); a.e("v_lshl_add_u32 v10, v11, 2, v10")
    a.e("v_lshrrev_b32 v11, 1, v7"); a.e("v_lshl_add_u32 v10, v11, 3, v10")
    a.e("v_and_b32 v11, 1, v7"); a.e("v_lshl_add_u32 v10, v11, 1, v10")
    a.e("v_lshlrev_b32 v10, 13, v10"); a.e(f"v_lshl_add_u32 v{vW}, v8, 4, v10")
    a.e("v_mul_u32_u24 v10, 48, v7"); a.e("v_lshrrev_b32 v11, 3, v0"); a.e("v_add_u32 v10, v10, v11")
    a.e("v_mul_u32_u24 v10, 1280, v10")
    a.e("v_and_b32 v11, 7, v0"); a.e("v_xor_b32 v11, v11, v9")
    a.e(f"v_lshl_add_u32 v{vX0}, v11, 4, v10")
    a.e("v_xor_b32 v11, 4, v11"); a.e("v_add_u32 v10, 10240, v10")
    a.e(f"v_lshl_add_u32 v{vX1}, v11, 4, v10")
    a.e(f"s_mul_i32 s{sKVL}, s{sWv}, 2112")
    a.e(f"s_mov_b32 s{sWL}, s{sKVL}")
    a.e(f"s_mul_i32 s{sXL}, s{sWv}, 6144"); a.e(f"s_add_u32 s{sXL}, s{sXL}, {XB}")
    a.e(f"s_mov_b32 s{sCur}, 0"); a.e(f"s_mov_b32 s{sXo}, 0"); a.e(f"s_mov_b32 s{sWq}, 0")
    a.raw_wait("s_waitcnt lgkmcnt(0)")
    a.e(f"s_cmp_eq_u32 s{sBr}, 0")
    a.e("s_cselect_b64 s[4:5], s[4:5], s[14:15]")
    a.e("s_cselect_b64 s[6:7], s[6:7], s[16:17]")
    a.e("s_cselect_b64 s[8:9], s[8:9], s[18:19]")
    a.e("s_cselect_b64 s[10:11], s[10:11], s[20:21]")
    a.e("s_cselect_b64 s[12:13], s[12:13], s[22:23]")
    a.e("s_load_dwordx4 s[16:19], s[0:1], 80")
    a.e(f"s_mul_i32 s{sTmp}, s{sB}, 245760")
    srd(a, sX, 4, f"s{sTmp}", 245760)
    a.e(f"s_lshl_b32 s{sTmp}, s{sU}, 10")
    srd(a, sW, 10, f"s{sTmp}", 639 * 8192 + 1024)
    if OPT["krot"]: a.e(f"s_xor_b32 s{sJ}, s{sB}, s{sU}"); a.e(f"s_and_b32 s{sJ}, s{sJ}, 3")
    else: a.e(f"s_mov_b32 s{sJ}, 0")
    if OPT["hrot"]: a.e(f"s_cmp_lg_u32 s{sTyp}, 0"); a.e(f"s_cselect_b32 s{sJh}, 1, 3"); a.e(f"s_and_b32 s{sJh}, s{sJh}, s{sJ}")
    else: a.e(f"s_mov_b32 s{sJh}, 0")
    a.e(f"s_lshl_b32 s{sWq}, s{sJ}, 18"); a.e(f"s_lshl_b32 s{sTmp}, s{sJh}, 8"); a.e(f"s_or_b32 s{sWq}, s{sWq}, s{sTmp}"); a.e(f"s_add_u32 s{sWq1}, s{sWq}, {1 << 20}")
    a.e(f"s_lshr_b32 s{sXo}, s{sJ}, 1"); a.e(f"s_lshl_b32 s{sXo}, s{sXo}, 7")
    if not OPT['st0']: stamp(a, 0)
    stamp(a, 1, False)
    def common_consts():
        if OPT["rot"]:
            a.e(f"s_lshr_b32 s{sRot}, s2, 4"); a.e(f"s_xor_b32 s{sRot}, s{sRot}, s2"); a.e(f"s_and_b32 s{sRot}, s{sRot}, 15"); a.e(f"s_lshl_b32 s{sRot}, s{sRot}, 13")
        else: a.e(f"s_mov_b32 s{sRot}, 0")
        a.e(f"s_lshl_b32 s{sCur}, s{sJh}, 17"); a.e(f"s_or_b32 s{sRot}, s{sRot}, s{sCur}")
        a.e(f"s_mov_b32 s{sCX}, s{sRot}"); a.e(f"s_xor_b32 s{sNX}, s{sRot}, 131072")
        a.e("v_bfe_u32 v10, v0, 2, 3")
        a.e("v_lshrrev_b32 v11, 1, v10"); a.e("v_lshlrev_b32 v11, 6, v11"); a.e(f"v_lshl_add_u32 v{vWAl}, v10, 10, v11")
        a.e("v_and_b32 v11, 1, v10"); a.e(f"v_lshl_add_u32 v{vWAl}, v11, 3, v{vWAl}")
        a.e("v_lshrrev_b32 v11, 5, v0"); a.e(f"v_lshl_add_u32 v{vWAl}, v11, 8, v{vWAl}")
        a.e("v_mul_u32_u24 v10, 1056, v10"); a.e("v_lshl_add_u32 v10, v11, 8, v10")
        a.e("v_and_b32 v11, 3, v0"); a.e(f"v_lshl_add_u32 v{vWAl}, v11, 4, v{vWAl}")
        a.e(f"v_lshl_add_u32 v10, v11, 3, v10"); a.e(f"v_add_u32 v{vVA}, {VB}, v10")
        a.e(f"v_add_u32 v{vWAh}, {VB}, v{vWAl}")
        a.e("v_and_b32 v10, 7, v8"); a.e("v_mul_u32_u24 v10, 1056, v10")
        a.e("v_lshrrev_b32 v11, 3, v8"); a.e(f"v_lshl_add_u32 v10, v11, 8, v10")
        a.e(f"v_lshl_add_u32 v{vKA}, v9, 4, v10")
        a.e("v_lshlrev_b32 v10, 4, v0"); a.e(f"v_lshl_add_u32 v{vKV}, v7, 11, v10")
        a.e(f"v_lshlrev_b32 v10, 7, v8"); a.e(f"v_add_u32 v10, s{sXL}, v10")
        a.e("v_lshrrev_b32 v11, 1, v8"); a.e("v_xor_b32 v11, v11, v9")
        a.e(f"s_and_b32 s{sTmp}, s{sJ}, 1"); a.e(f"s_lshl_b32 s{sTmp}, s{sTmp}, 2"); a.e(f"v_xor_b32 v11, s{sTmp}, v11")
        a.e(f"v_lshl_add_u32 v{vXA0}, v11, 4, v10")
        a.e("v_xor_b32 v11, 4, v11"); a.e(f"v_lshl_add_u32 v{vXA1}, v11, 4, v10")
        a.e(f"s_lshl_b32 s{sTmp}, s{sB}, 3"); a.e(f"s_add_u32 s{sTmp}, s{sTmp}, s{sU}"); a.e(f"s_lshl_b32 s{sTmp}, s{sTmp}, 19")
        srd(a, sK, 6, f"s{sTmp}", 4 * 131072)
        srd(a, sV, 8, f"s{sTmp}", 4 * 131072)
        a.e(f"s_mul_i32 s{sTmp}, s{sU}, {512*1280}")
        srd(a, sWo, 12, f"s{sTmp}", 512 * 1280)
        for r in range(4): a.e(f"s_xor_b32 s{sH[r]}, s{sJh}, {r}"); a.e(f"s_mul_i32 s{sH[r]}, s{sH[r]}, 163840")
        a.e(f"s_mov_b32 s{sPM}, s{sKVL}"); a.e(f"s_mov_b32 s{sPK}, 0")
        a.e(f"s_cmp_lt_u32 s{sU}, 4")
        a.e(f"s_cselect_b32 s{sTmp}, 128, 0"); a.e(f"s_mov_b32 s{sD0}, 128"); a.e(f"s_cselect_b32 s{sD0}, -128, s{sD0}")
        a.e(f"s_sub_u32 s{sD1}, 256, s{sD0}")
        for r in range(4): a.e(f"s_add_u32 s{sH[r]}, s{sH[r]}, s{sTmp}")
        a.e(f"s_lshl_b32 s{sTmp}, s{sG}, 12"); a.e(f"s_add_u32 s{sTmp}, s{sTmp}, {FLG}")
        srd(a, sF, 28, f"s{sTmp}", 4096)
    def touch0(three):
        if OPT["t0x"]:
            a.e("v_min_u32 v10, 59, v0"); a.e("v_lshlrev_b32 v10, 7, v10")
            a.e(f"s_lshl_b32 s{sTmp}, s{sU}, 2"); a.e(f"s_add_u32 s{sTmp}, s{sTmp}, s{sWv}"); a.e(f"s_mul_i32 s{sTmp}, s{sTmp}, 7680")
            a._emit(f"buffer_load_dword v11, v10, {sr(sX,4)}, s{sTmp} offen")
        if OPT["t0w"] and three:
            a.e("v_lshrrev_b32 v14, 2, v0"); a.e("v_lshlrev_b32 v14, 13, v14"); a.e("v_and_b32 v15, 3, v0"); a.e("v_lshl_add_u32 v14, v15, 7, v14")
            a.e(f"s_and_b32 s{sTmp}, s{sB}, 3"); a.e(f"s_lshl_b32 s{sTmp}, s{sTmp}, 2"); a.e(f"s_add_u32 s{sTmp}, s{sTmp}, s{sWv}"); a.e(f"s_lshl_b32 s{sTmp}, s{sTmp}, 17")
            for k in range(3):
                a.e(f"s_add_u32 s{sT2}, s{sTmp}, {k*256*8192}")
                a._emit(f"buffer_load_dword v{16+k}, v14, {sr(sW,4)}, s{sT2} offen")
    def part_srd(slot_expr, size):
        a.e(f"s_mul_i32 s{sTmp}, s{sG}, {PART}"); slot_expr(); a.e(f"s_lshl_b32 s{sT2}, s{sT2}, 10"); a.e(f"s_add_u32 s{sTmp}, s{sTmp}, s{sT2}")
        srd(a, sP, 28, f"s{sTmp}", size)
    NF = OPT["first"]
    LA = OPT['la']
    def wpos(n): return 8 + n % 8
    def rd_x(buf): return [rd_xb(Xreg(buf, j, s), j, s) for s in range(2) for j in range(3)]
    NF = 2
    def setup(lab):
        common_consts()
        touch0(False)
        code_touch(a, lab, "L_altwo", 10, 11)
        a.e(f"s_lshl_b32 s{sTmp}, s{sU}, 9"); a.e(f"s_lshl_b32 s{sT2}, s{sWv}, 7"); a.e(f"s_add_u32 s{sTmp}, s{sTmp}, s{sT2}")
        a.e("v_and_b32 v8, 7, v0"); a.e(f"v_lshlrev_b32 v8, 2, v8"); a.e("v_mov_b32 v7, 0")
        a._emit(f"buffer_store_dword v7, v8, {sr(sF,4)}, s{sTmp} offen sc1")
        a.e(f"s_mov_b32 s{sR}, 0")
    def bootstrap():
        l = newlabel("boot")
        a.e(f"s_cmp_lg_u32 s{sWv}, 0"); a.e(f"s_cbranch_scc1 {l}")
        a.e(f"s_lshl_b32 s{sTmp}, s{sG}, 2"); a.e(f"s_add_u32 s{sTmp}, s{sTmp}, 128")
        a.e(f"v_mov_b32 v157, s{sTmp}")
        a.e(f"s_getreg_b32 s{sT2}, hwreg(HW_REG_XCC_ID, 0, 4)")
        a.e(f"s_mul_i32 s{sT3}, s{sT2}, s{sT2}"); a.e(f"s_lshl_b32 s{sT3}, s{sT3}, 8"); a.e(f"s_add_u32 s{sT3}, s{sT3}, s{sT2}")
        a.e(f"s_lshl_b32 s{sT3}, s{sT3}, 8"); a.e(f"s_add_u32 s{sPK}, s{sT3}, 1"); a.e(f"v_mov_b32 v158, s{sPK}")
        a.e("s_mov_b64 exec, 1")
        a._emit("global_atomic_add v157, v158, s[18:19]")
        a.e("s_mov_b64 exec, -1")
        a.e(f"{l}:")
    a.e(f"s_cmp_lg_u32 s{sTyp}, 0")
    a.e("s_cbranch_scc1 L_p1")
    for j in range(3): emit_tile(a, x_block(j, 0, sXo))
    for n in range(NF): emit_tile(a, w_tile(wpos(n), n))
    setup("L_q")
    a.e(f"s_mov_b32 s{sPre}, 15")
    for r in range(256):
        if r % 40 == 0 and NF + r // 40 < LA: emit_tile(a, w_tile(wpos(NF + r // 40), NF + r // 40))
        a.e(f"v_accvgpr_write_b32 a{r}, 0")
    for r in list(range(124, 156)) + list(range(160, 256)): a.e(f"v_mov_b32 v{r}, 0")
    a.raw_wait(f"s_waitcnt vmcnt({2 * (LA - 2)}) lgkmcnt(0)")
    a.e("s_barrier")
    for r in rd_x(0): a.e(r)
    for i in range(8):
        for r in rd_w(Wreg(0, i), wpos(0), i): a.e(r)
    a.raw_wait("s_waitcnt lgkmcnt(0)"); a.lg = []
    if OPT["qprof"] == 1: stamp(a, 5); stamp(a, 6, False)
    def qmf(n):
        s, pos = divmod(n % 16, 4)
        return [mf(Qacc(pos, i, j), Wreg(n & 1, i), Xreg((s >> 1) & 1, j, s & 1), Qacc(pos, i, j)) for i in range(8) for j in range(3)]
    def kv_early(isv):
        s = sV if isv else sK; b = VB if isv else 0
        return [([f"s_xor_b32 s{sOff2}, s{sCX}, s{sPK}", f"s_add_u32 m0, s{sPM}, {b}"], f"buffer_load_dwordx4 v{vKV}, {sr(s,4)}, s{sOff2} offen nt lds"),
                ([f"s_add_u32 m0, s{sPM}, {b + 32}"], f"buffer_load_dwordx4 v{vKV}, {sr(s,4)}, s{sOff2} offen offset:1024 nt lds")]
    def q_group(last):
        for n in range(16):
            a.c(f"Q sub-step {n}{' (last group)' if last else ''}")
            S = Sched(a, qmf(n))
            fin = last and n == 15
            q = n % 8
            xrd = q in (6, 7) and not (last and n >= 8)
            if not fin:
                rds = []
                for i in range(8): rds += rd_w(Wreg((n + 1) & 1, i), wpos(n + 1), i)
                for r, p in zip(rds, RDPOS): S.v(p, r)
                m = n + LA
                if not last or m < 16: place_tile(a, S, w_tile(wpos(m), m), (6, 11))
                if last and 9 <= n <= 13: place_tile(a, S, kv_tile(n - 1, (n - 1) >> 1), (16, 19))
                if not (last and n == 14):
                    hi = min(m, 15) if last else m
                    ykv = len([k for k in range(9, 14) if n + 2 - LA <= k <= n]) if last else 0
                    end_sync(a, S, 2 * (hi - (n + 2)) + 2 * ykv, 5 if xrd else 2)
            if xrd:
                rx = rd_x(((n >> 3) + 1) & 1)[3*(q-6):3*(q-6)+3]
                if q == 6: S.h(16, lambda: vmw(a, 8))
                for r, p in zip(rx, (19, 20, 21)): S.v(p, (r, "xr"))
            if q in (0, 1, 2) and not (last and n >= 8):
                if q == 0: S.h(12, lambda: a.wait(lg="xr"))
                place_tile(a, S, x_block(q, 128, sXo, "s_xor_b32") if n < 8 else x_block(q, 256, sXo), (16, 19))
            if n in (11, 12) and not last: place_tile(a, S, kv_early(n == 12), (16, 19))
            if n == 15 and not last:
                S.h(1, f"s_add_u32 s{sPM}, s{sPM}, {TILE}")
                S.h(2, f"s_add_u32 s{sPK}, s{sPK}, 8192")
                S.h(12, f"s_mov_b32 s{sWq}, s{sWq1}")
                S.h(13, f"s_add_u32 s{sWq1}, s{sWq1}, {1 << 20}")
                S.h(14, f"s_add_u32 s{sXo}, s{sXo}, 256")
                S.h(15, f"s_cmp_lt_u32 s{sXo}, 1024")
            S.emit(None if fin else qmf(n + 1)[0])
    a.e(".p2align 6")
    a.e("L_q:")
    if OPT["qprof"] == 3:
        a.e(f"s_lshr_b32 s{sT3}, s{sXo}, 8"); stamp_dyn(a, 4, sT3, 4)
    mark = len(a.ins); nops0 = a.nops
    q_group(False)
    lg_end = list(a.lg)
    del a.ins[mark:]; a.nops = nops0
    q_group(False)
    assert a.lg == lg_end
    a.e("s_cbranch_scc1 L_q")
    if OPT["qprof"] == 3: stamp(a, 8)
    q_group(True)
    if OPT["qprof"] == 1: stamp(a, 7); stamp(a, 8, False)
    stamp(a, 3)
    a.c("Q conversion")
    convert(a, Qacc, [QBANK[3], QBANK[2], QBANK[1], None], [60 + 12 * k for k in range(5)])
    late_consts(a)
    bootstrap()
    a.e("s_branch L_enter")
    a.e("L_p1:")
    a.lg = []
    for j in range(3): emit_tile(a, x_block(j, 0, sXo, lds=-XB))
    for n in range(NF): emit_tile(a, w_tile(wpos(n), n, 2))
    a.e(f"s_xor_b32 s{sXo1}, s{sXo}, 128")
    for j in range(3): emit_tile(a, x_block(j, 0, sXo1))
    setup("L_q2")
    late_consts(a)
    a.e(f"s_mov_b32 s{sPre}, 1")
    for n in range(NF, LA): emit_tile(a, w_tile(wpos(n), n, 2))
    a.e(f"v_subrev_u32 v12, {XB}, v{vXA0}"); a.e(f"v_subrev_u32 v13, {XB}, v{vXA1}")
    a.raw_wait(f"s_waitcnt vmcnt({2 * (LA - 2)}) lgkmcnt(0)")
    for j in range(3):
        for s in range(2): a.e(f"ds_read_b128 {R(X2reg(0, j, s),4)}, v{12+s} offset:{j*2048}")
    a.e("L_q2go:")
    a.e("s_barrier")
    for i in range(8):
        for r in rd_w(Greg(0, i), wpos(0), i): a.e(r)
    a.e(f"s_cmp_eq_u32 s{sR}, 0"); a.e("s_cselect_b64 vcc, -1, 0")
    a.raw_wait("s_waitcnt lgkmcnt(0)"); a.lg = []
    def q2_group(kind):
        first, last = kind == 0, kind == 2
        for n in range(8):
            a.c(f"Q2 sub-step {n} ({('first', 'loop', 'last')[kind]})")
            S = Sched(a, q2mf(n, first))
            cl, q = divmod(n, 4)
            fin = last and n == 7
            xrd = q < 3 and not (last and cl == 1)
            def xd(k): return k % 4 < 3 and not (last and k >= 0) and not (first and k < 0)
            def wd(k): return not (last and k + LA >= 8)
            def kd(k): return last and 1 <= k <= 5
            if not fin:
                rds = []
                for i in range(8): rds += rd_w(Greg((n + 1) & 1, i), wpos(n + 1), i)
                for r, p in zip(rds, RDPOS_X): S.v(p, r)
            if wd(n): place_tile(a, S, w_tile(wpos(n + LA), n + LA, 2), (4, 7))
            if kd(n): place_tile(a, S, kv_tile(7 + n, (7 + n) >> 1), (10, 13))
            if xrd:
                for s in range(2): S.v(s, (rd_xb(X2reg(1 - cl, q, s), q, s), "xr"))
            if xd(n):
                S.h(7, lambda: a.wait(lg="xr"))
                place_tile(a, S, x_block(q, 256, (sXo, sXo1)[cl]), (10, 13))
            if q == 3 and not last:
                for (pre, d), g_ in zip(kv_early(cl == 1), (10, 13)):
                    for k, x in enumerate(pre): S.h(g_ - len(pre) + k, x)
                    def site(d=d):
                        l = newlabel("nokv"); a.e(f"s_cbranch_vccz {l}"); a._emit(d); a.e(f"{l}:")
                    S.v(g_, site)
            if n == 7 and not last:
                S.h(14, f"s_add_u32 s{sPM}, s{sPM}, {TILE}")
                S.h(15, f"s_add_u32 s{sPK}, s{sPK}, 8192")
                S.h(16, f"s_mov_b32 s{sWq}, s{sWq1}")
                S.h(17, f"s_add_u32 s{sWq1}, s{sWq1}, {1 << 20}")
                S.h(18, f"s_add_u32 s{sXo1}, s{sXo1}, 256")
                S.h(19, f"s_add_u32 s{sXo}, s{sXo}, 256")
                S.h(20, f"s_cmp_lt_u32 s{sXo}, 1024")
            if not (last and n >= 6):
                k0 = n + 2 - LA
                vm = sum(2 * wd(k) for k in range(k0 + 1, n + 1)) + sum(2 * kd(k) for k in range(k0, n + 1))
                if (n + 1) % 4 < 3 and not (last and n + 1 >= 4) and xd(n - 3):
                    vm = min(vm, sum(2 * wd(k) + 2 * xd(k) + 2 * kd(k) for k in range(n - 2, n + 1)))
                end_sync(a, S, vm, 5)
            S.emit(None if fin else q2mf(n + 1, first and n < 7)[0])
    a.e("L_q2:")
    q2_group(0)
    lg_in = list(a.lg)
    a.e(".p2align 6")
    a.e("L_q2l:")
    q2_group(1)
    assert a.lg == lg_in
    a.e("s_cbranch_scc1 L_q2l")
    q2_group(2)
    if OPT["stamp"]:
        a.e(f"s_lshr_b32 s{sT2}, s{sR}, 1"); stamp_dyn(a, 3, sT2, 2)
    a.c("Q2 conversion")
    a.e("s_cbranch_vccz L_cv2b")
    if OPT["touch"]:
        a.e("v_min_u32 v8, 39, v0"); a.e("v_lshrrev_b32 v9, 2, v8"); a.e("v_lshlrev_b32 v9, 13, v9")
        a.e("v_and_b32 v8, 3, v8"); a.e("v_lshl_add_u32 v9, v8, 7, v9")
        a.e(f"s_lshl_b32 s{sTmp}, s{sB}, 2"); a.e(f"s_add_u32 s{sTmp}, s{sTmp}, s{sWv}"); a.e(f"s_mul_i32 s{sTmp}, s{sTmp}, {10*8192}")
        a.e(f"s_add_u32 s{sTmp}, s{sTmp}, 512")
        a._emit(f"buffer_load_dword v{vD}, v9, {sr(sW,4)}, s{sTmp} offen")
    a.e(f"s_and_b32 s{sWq}, s{sWq}, 0xfffff"); a.e(f"s_xor_b32 s{sWq}, s{sWq}, 512"); a.e(f"s_add_u32 s{sWq1}, s{sWq}, {1 << 20}")
    a.e(f"s_and_b32 s{sXo}, s{sXo}, 128"); a.e(f"s_xor_b32 s{sXo1}, s{sXo}, 128")
    convert(a, Q2acc, [QBANK[1]], [12, 24, 36])
    a.e("s_branch L_cv2c")
    a.e("L_cv2b:")
    a.e("s_nop 7")
    convert(a, Q2acc, [QBANK[3]], [12, 24, 36])
    bootstrap()
    a.e("L_cv2c:")
    convert(a, lambda pos, i, j: Q2acc(1, i, j), [None], [12])
    a.e("L_enter:")
    a.e(f"v_mov_b32 v{vT}, 0x3f803f80")
    for r in range(4): a.e(f"v_accvgpr_write_b32 a{ONES[1]+r}, v{vT}")
    def rd_k(dst, t, u): return [f"ds_read_b128 {vr(dst + 4*ks,4)}, v{vKA} offset:{(t % 8)*TILE + u*512 + ks*64}" for ks in range(4)]
    def rd_v(t, half, fr=VF):
        return [f"ds_read_b64_tr_b16 {vr(fr + 4*i + 2*e, 2)}, v{vVA} offset:{(t % 8)*TILE + e*512 + (4*half+i)*32}" for i in range(4) for e in range(2)]
    vmw(a, 10)
    a.e("s_barrier")
    a.lg = []
    for r in rd_k(VF, 0, 1) + rd_k(KF, 0, 0): a.e(r)
    if OPT["qprof"] < 3 and T == 0: stamp(a, 4)
    def ex(u, k): j, r = divmod(k, 4); s = Sr(u, j) + r; return f"v_exp_f32 v{s}, v{s}"
    def cv(u, buf, c): j, h = divmod(c, 2); s = Sr(u, j) + 2*h; return f"v_cvt_pk_bf16_f32 v{Pr(buf,j) + 2*u + h}, v{s}, v{s+1}"
    def qk(u): return [mf(Sr(u, j), KF + 4*ks, Qf(j, ks), Nm(j) if ks == 0 else Sr(u, j)) for j in range(3) for ks in range(4)]
    def pv(t, half, fr=VF): return [mf(Or(4*half + i, j), fr + 4*i, Pr(t & 1, j), None if t == 0 else Or(4*half + i, j)) for i in range(4) for j in range(3)]
    def sm(t): return [mf(La(j), ONES, Pr(t & 1, j), None if t == 0 else La(j)) for j in range(3)]
    def stream_tile(S, m, gaps, mode):
        if m < 32 or mode == "kv" or (mode == "wq" and m < 40): place_tile(a, S, kv_tile(m, m >> 1), gaps)
        elif mode == "wq": place_tile(a, S, w_tile(m, m - 40, 2), gaps)
        else:
            st, post = wo_tile(m - 32)
            place_tile(a, S, st, gaps)
            for x in post: S.h(gaps[1], x)
    def tail_vec(S, u, buf, rds):
        pos = [0, 1, 4, 5, 8, 9, 10, 11]
        for r, p in zip(rds, pos): S.v(p, r)
        for k, p in zip(range(8, 12), (2, 3, 6, 7)): S.v(p, ex(u, k))
        for c, p in zip(range(6), (0, 1, 4, 5, 8, 9)): S.v(p, cv(u, buf, c))
    a.e(".p2align 6")
    a.e("L_head:")
    a.c("tile 0: scores and stand-in row max (max over the first 32 keys)")
    a.e(f"s_cmp_eq_u32 s{sR}, 3")
    for u, kf in ((1, VF), (0, KF)):
        for j in range(3):
            for ks in range(4):
                a.e(mf(Sr(u, j), kf + 4*ks, Qf(j, ks), None if ks == 0 else Sr(u, j)))
    a.e("s_cselect_b64 vcc, -1, 0")
    vmw(a, 20)
    a.e("s_barrier")
    for r in rd_k(KF, 1, 0): a.e(r)
    emit_tile(a, kv_tile(13, 6)); emit_tile(a, kv_tile(14, 7))
    if OPT["touch"]:
        a.e(f"s_mul_i32 s{sT2}, s{sR}, 163840")
        a._emit(f"buffer_load_dword v{vD}, v{vTo}, {sr(sWo,4)}, s{sT2} offen")
    if OPT["ctouch"] & 2:
        l = newlabel("ct")
        a.e(f"s_cbranch_vccz {l}")
        code_touch(a, "L_altwo", "L_hot_end", 158, 159)
        a.e(f"{l}:")
    l = newlabel("bp")
    a.e(f"s_xor_b32 s{sT2}, s{sR}, 3"); a.e(f"s_or_b32 s{sT2}, s{sT2}, s{sWv}"); a.e(f"s_cbranch_scc1 {l}")
    a._emit("global_load_dword v156, v157, s[18:19] sc1")
    a.e(f"{l}:")
    for j in range(3):
        n = Nm(j); s0 = Sr(0, j); s1 = Sr(1, j)
        a.e(f"v_max3_f32 v{n}, v{s1}, v{s1+1}, v{s1+2}")
        a.e(f"v_max3_f32 v{n+1}, v{s1+3}, v{s0}, v{s0+1}")
        a.e(f"v_max3_f32 v{n}, v{n}, v{s0+2}, v{s0+3}")
        a.e(f"v_max_f32 v{n}, v{n}, v{n+1}")
    rowred(a, "v_max_f32", [Nm(j) for j in range(3)], [Nm(j) + 1 for j in range(3)])
    for j in range(3):
        n = Nm(j)
        a.e(f"v_sub_f32 v{n}, 0, v{n}")
        for r in range(1, 4): a.e(f"v_mov_b32 v{n+r}, v{n}")
    for u in range(2):
        for j in range(3):
            for r in range(4): a.e(f"v_add_f32 v{Sr(u,j)+r}, v{Sr(u,j)+r}, v{Nm(j)}")
    for k in range(12): a.e(ex(0, k))
    for k in range(8): a.e(ex(1, k))
    for c in range(6): a.e(cv(0, 0, c))
    def stage(t, mode):
        a.c(f"stage {t} {mode}")
        S = Sched(a, qk(0)); tail_vec(S, 1, t & 1, rd_v(t, 0)); S.emit(pv(t, 0)[0])
        S = Sched(a, pv(t, 0))
        for r, p in zip(rd_k(KF, t+1, 1), (0, 1, 2, 3)): S.v(p, r)
        for k, p in zip(range(8), range(4, 12)): S.v(p, ex(0, k))
        S.h(10, lambda: a.wait(lg="all"))
        if mode == "wo" and t == 9:
            ex_ = [f"s_mul_i32 s{sT2}, s{sG}, {XG}", f"s_mul_i32 s{sT3}, s{sU}, {XD}", f"s_add_u32 s{sT2}, s{sT2}, s{sT3}",
                   f"s_mul_i32 s{sT3}, s{sWv}, 1536", f"s_add_u32 s{sT2}, s{sT2}, s{sT3}", f"s_add_u32 s{sT2}, s{sT2}, {5*XP}"]
            for k, x in enumerate(ex_): S.h(k, x)
            ev = ["v_lshrrev_b32 v158, 3, v0", "v_min_u32 v158, 6, v158", "v_mul_u32_u24 v158, 6144, v158", f"v_and_b32 v{vPt}, 7, v0",
                  f"v_min_u32 v{vPt}, 5, v{vPt}", f"v_lshl_add_u32 v158, v{vPt}, 7, v158", f"v_add_u32 v158, s{sT2}, v158"]
            for k, x in enumerate(ev): S.v(k, x)
            S.v(8, lambda: a._emit("global_load_dword v159, v158, s[28:29]"))
            S.v(11, lambda: a._emit(f"global_load_dword v{vPt}, v158, s[28:29] offset:768"))
        if mode == "wq" and t == 12:
            place_tile(a, S, x_block(0, 0, sXo) + x_block(1, 0, sXo), (2, 4, 7, 9))
        S.emit(qk(1)[0])
        S = Sched(a, qk(1)); tail_vec(S, 0, (t+1) & 1, rd_v(t, 1))
        if mode == "wq" and t == 12: place_tile(a, S, x_block(2, 0, sXo), (3, 7))
        S.h(11, lambda: vmw(a, 8 if (mode == "wq" and t == 14) else 20))
        S.emit(None)
        S = Sched(a, sm(t) + pv(t, 1))
        S.h(0, "s_barrier")
        if t + 2 < 16:
            for r, p in zip(rd_k(KF, t+2, 0), (0, 1, 2, 3)): S.v(p, r)
        elif mode == "wq":
            for k, p in enumerate((0, 1, 2, 3, 4, 6)): S.v(p, rd_xb(X2reg(0, k >> 1, k & 1), k >> 1, k & 1))
        for k, p in zip(range(8), (3, 4, 6, 7, 9, 10, 12, 13)): S.v(p, ex(1, k))
        stream_tile(S, 2*(t+7) + 1, (5, 8), mode)
        stream_tile(S, 2*(t+8), (11, 14), mode)
        S.h(12, lambda: a.wait(lg="all"))
        if mode == "kv" and t == 7: S.h(14, "s_nop 0")
        if mode == "kv" and t == 11: S.h(14, f"s_cmp_eq_u32 s{sR}, s{sPre}")
        S.emit(qk(0)[0] if t < 14 else None)
        assert not a.lg
    for t in range(15):
        if t == 8: a.e("s_cbranch_vccnz L_altwo")
        if t == 12 and T: a.e("s_cbranch_scc1 L_altwq")
        stage(t, "kv")
    a.e("L_st15:")
    a.c("stage 15")
    for r in rd_v(15, 0): a.e(r)
    for k in range(8, 12): a.e(ex(1, k))
    for c in range(6): a.e(cv(1, 1, c))
    S = Sched(a, sm(15) + pv(15, 0))
    for r, p in zip(rd_v(15, 1, KF), range(8)): S.v(p, r)
    S.emit(pv(15, 1, KF)[0])
    S = Sched(a, pv(15, 1, KF))
    for j in range(3): S.v(j, f"v_accvgpr_read_b32 v{vT+j}, a{La(j)[1]}")
    S.v(3, f"v_add_f32 v{vT+3}, v{vT}, v{vT+1}"); S.v(4, f"v_add_f32 v{vT+3}, v{vT+3}, v{vT+2}")
    S.v(5, f"v_mov_b32 v{vT+4}, {f32(2.0**30 if not OPT['forceslow'] else 150.0)}")
    S.v(6, f"v_cmp_nle_f32 vcc, v{vT+3}, v{vT+4}")
    S.emit(None)
    assert not a.lg
    if not OPT["nocheck"]: a.e("s_cbranch_vccnz L_slow")
    a.e("L_epi:")
    for r in rd_k(VF, 0, 1) + rd_k(KF, 0, 0): a.e(r)
    for j in range(3): a.e(f"v_rcp_f32 v{vT+j}, v{vT+j}")
    for p in range(4):
        for j in range(3):
            d = Qf(j, p)
            for u in range(2):
                o = Or(2*p + u, j)
                for r in range(4): a.e(f"v_mul_f32 v{o+r}, v{o+r}, v{vT+j}")
                a.e(f"v_cvt_pk_bf16_f32 v{d+2*u}, v{o}, v{o+1}")
                a.e(f"v_cvt_pk_bf16_f32 v{d+2*u+1}, v{o+2}, v{o+3}")
    if OPT["stamp"]:
        if not OPT['qprof']: stamp_dyn(a, 5, sR, 4)
    a.e(f"s_and_b32 s{sCur}, s{sNX}, 0x60000")
    a.e(f"s_mov_b32 s{sCX}, s{sNX}")
    a.e(f"s_add_u32 s{sT2}, s{sR}, 2"); a.e(f"s_and_b32 s{sT2}, s{sT2}, 3"); a.e(f"s_lshl_b32 s{sT2}, s{sT2}, 17"); a.e(f"s_xor_b32 s{sNX}, s{sRot}, s{sT2}")
    a.e(f"s_add_u32 s{sR}, s{sR}, 1")
    a.e(f"s_cmp_gt_u32 s{sR}, 3"); a.e("s_cbranch_scc1 L_g")
    a.e(f"s_cmp_eq_u32 s{sR}, 3"); a.e("s_cbranch_scc1 L_sw2")
    a.e(f"s_cmp_eq_u32 s{sR}, 2"); a.e("s_cbranch_scc1 L_sw1")
    for r in range(3):
        a.e(f"L_sw{r}:")
        for p in range(4):
            for j in range(3):
                for x in range(4): a.e(f"v_accvgpr_write_b32 a{OBANK[r] + 12*p + 4*j + x}, v{Qf(j,p)+x}")
        if r == 1 and T: a.e(f"s_cmp_eq_u32 s{sPre}, 1"); a.e("s_cbranch_scc1 L_q2b")
        for p in range(4):
            for j in range(3):
                for x in range(4): a.e(f"v_accvgpr_read_b32 v{Qf(j,p)+x}, a{QBANK[r+1] + 12*p + 4*j + x}")
        a.e("s_nop 0")
        a.e("s_branch L_head")
    if T:
        a.e("L_q2b:")
        a.raw_wait("s_waitcnt vmcnt(0) lgkmcnt(0)")
        a.e("s_barrier")
        for n in range(5, LA): emit_tile(a, w_tile(wpos(n), n, 2))
        a.e("s_branch L_q2go")
        a.e(".p2align 6")
        a.e("L_altwq:")
        a.lg = []
        for t in range(12, 15): stage(t, "wq")
        for j in range(3): emit_tile(a, x_block(j, 0, sXo1))
        a.e("s_branch L_st15")
    a.e(".p2align 6")
    a.e("L_altwo:")
    a.lg = []
    for t in range(8, 15): stage(t, "wo")
    a.e("s_branch L_st15")
    sPr, sOut, sOo, sDst = sX, sW, sLast, 40
    LD = {0: 12, 1: 36}
    ACC, STG = 60, 72
    vSA, vSB, vLA, vLB, vOA, vFl, vFi, vPoll, vVal, TM, PK = 120, 121, 122, 123, 124, 125, 126, 127, 128, 130, 134
    def Ga(h, i, j): return O_ + 48 * h + 12 * i + 4 * j
    def spin_loop(l0, l1, cmp, reload):
        a.e(f"{l0}:")
        a.e(f"s_mov_b32 s{sT3}, 0")
        l2 = newlabel("spin")
        a.e(f"{l2}:")
        a.e(f"s_add_u32 s{sT3}, s{sT3}, 1")
        a.e(f"s_cmp_ge_u32 s{sT3}, {SPIN_MAX}")
        a.e(f"s_cbranch_scc1 {l1}")
        a.e(f"s_sleep {OPT['sleep']}")
        a._emit(reload)
        a.raw_wait("s_waitcnt vmcnt(0)")
        for x in cmp: a._emit(x)
        a._emit("s_nop 4")
        a.e(f"s_cbranch_vccnz {l2}")
        a.e(f"s_branch {l1}")
    spins = []
    def rd_g(dst, m, f):
        h, o = slot(m); i, c = divmod(f, 2)
        return [f"ds_read_b64_tr_b16 {R(off(dst, 2*e), 2)}, v{(vWAl, vWAh)[h]} offset:{o + c*512 + e*256 + i*32}" for e in range(2)]
    a.e(".p2align 6")
    a.e("L_g:")
    a.lg = []
    a.e(f"v_lshrrev_b32 v{TM}, 5, v0"); a.e(f"v_lshlrev_b32 v{TM}, 7, v{TM}")
    a.e(f"v_sub_u32 v{vWAh}, v{vVA}, v{TM}"); a.e(f"v_subrev_u32 v{vWAl}, {VB}, v{vWAh}")
    a.raw_wait("s_waitcnt vmcnt(20) lgkmcnt(0)")
    l, l0, l1 = newlabel("bc"), newlabel("bs"), newlabel("bok")
    a.e(f"v_mov_b32 v{TM+1}, {XB}")
    a.e(f"s_cmp_lg_u32 s{sWv}, 0"); a.e(f"s_cbranch_scc1 {l}")
    bcmp = [f"v_and_b32 v{TM}, 0xff, v156", f"v_cmp_gt_u32 vcc, 8, v{TM}"]
    for x in bcmp: a._emit(x)
    a._emit("s_nop 4")
    if not OPT["nosync"]: a.e(f"s_cbranch_vccnz {l0}")
    a.e(f"{l1}:")
    spins.append((l0, l1, bcmp, "global_load_dword v156, v157, s[18:19] sc1"))
    a.e(f"s_lshl_b32 s{sTmp}, s{sPK}, 3"); a.e(f"v_xor_b32 v156, s{sTmp}, v156")
    a.e(f"ds_write_b32 v{TM+1}, v156")
    a.raw_wait("s_waitcnt lgkmcnt(0)")
    a.e(f"{l}:")
    a.lg = []
    a.e("s_barrier")
    a.e(f"ds_read_b32 v{TM+2}, v{TM+1}")
    for f in range(8):
        for r in rd_g(Greg(0, f), 0, f): a.e(r)
    for p in range(4):
        for j in range(3):
            for x in range(4): a.e(f"v_accvgpr_write_b32 a{OBANK[3] + 12*p + 4*j + x}, v{Qf(j,p)+x}")
    a.e(f"s_mul_i32 s{sTmp}, s{sG}, {XG}")
    srd(a, sP, 28, f"s{sTmp}", 0)
    a.e(f"s_mul_i32 s{sT2}, s{sU}, {XD}"); a.e(f"s_add_u32 s{sTmp}, s{sTmp}, s{sT2}")
    srd(a, sPr, 28, f"s{sTmp}", 0)
    for i in range(7):
        a.e(f"s_xor_b32 s{sDst+i}, s{sU}, {i ^ 7}"); a.e(f"s_mul_i32 s{sDst+i}, s{sDst+i}, {XD}"); a.e(f"s_add_u32 s{sDst+i}, s{sDst+i}, {i*6144}")
    a.e(f"s_mul_i32 s{sTmp}, s{sB}, 491520"); a.e(f"s_mul_i32 s{sT2}, s{sBr}, 1280"); a.e(f"s_add_u32 s{sTmp}, s{sTmp}, s{sT2}")
    a.e(f"s_lshl_b32 s{sT2}, s{sU}, 5"); a.e(f"s_add_u32 s{sTmp}, s{sTmp}, s{sT2}")
    srd(a, sOut, 16, f"s{sTmp}", 0)
    a.e(f"s_mul_i32 s{sTmp}, s{sWv}, 1536"); a.e(f"v_lshl_add_u32 v{vSA}, v0, 4, s{sTmp}")
    a.e(f"s_add_u32 s{sTmp}, s{sTmp}, 1024"); a.e(f"v_lshl_add_u32 v{vSB}, v0, 3, s{sTmp}")
    a.e(f"v_and_b32 v{TM}, 15, v0"); a.e(f"v_mul_u32_u24 v{TM}, 2560, v{TM}"); a.e(f"v_lshrrev_b32 v{TM+1}, 4, v0"); a.e(f"v_lshl_add_u32 v{TM}, v{TM+1}, 3, v{TM}")
    a.e(f"s_mul_i32 s{sTmp}, s{sWv}, {48*2560}"); a.e(f"v_add_u32 v{vOA}, s{sTmp}, v{TM}")
    a.e(f"s_lshl_b32 s{sTmp}, s{sWv}, 7"); a.e(f"s_lshl_b32 s{sT2}, s{sU}, 2"); a.e(f"s_add_u32 s{sT2}, s{sT2}, s{sTmp}")
    a.e(f"v_lshl_add_u32 v{vFl}, v0, 9, s{sT2}")
    a.e(f"s_lshl_b32 s{sT2}, s{sU}, 9"); a.e(f"s_add_u32 s{sT2}, s{sT2}, s{sTmp}")
    a.e(f"v_and_b32 v{TM}, 7, v0"); a.e(f"v_lshl_add_u32 v{vFi}, v{TM}, 2, s{sT2}")
    a.e(f"v_mov_b32 v{vVal}, 0"); a.e(f"v_mov_b32 v{vPoll}, 0")
    a.e(f"s_mov_b32 s{sGc}, 0"); a.e(f"s_mov_b32 s{sOo}, -512"); a.e(f"s_mov_b32 s{sS8}, 0xffff0000")
    a.wait(lg="all")
    a.e(f"v_readfirstlane_b32 s{sTmp}, v{TM+2}")
    a.e("s_nop 1")
    a.e(f"s_cmp_lg_u32 s{sTmp}, 0")
    a.e("s_branch L_gx" if OPT["xmode"] == 1 else "s_cbranch_scc1 L_gx")
    def gmf(n):
        h, t = divmod(n % 16, 8)
        o = []
        for i in range(4):
            for j in range(3):
                for c in range(2):
                    r, p = divmod(2 * t + c, 4)
                    o.append(mf(Ga(h, i, j), Greg(n & 1, 2*i + c), ("a", OBANK[r] + 12 * p + 4 * j), None if t == 0 and c == 0 else Ga(h, i, j)))
        return o
    NP = {0: 4, 1: 3}
    def cvs(h): return [f"v_cvt_pk_bf16_f32 v{STG + 6*i + 2*j + x}, v{Ga(h,i,j)+2*x}, v{Ga(h,i,j)+2*x+1}" for i in range(NP[h]) for j in range(3) for x in range(2)]
    def rops(h, k):
        o = []
        for r in range(6):
            s = LD[h] + 6*k + r; t = TM + 2 * (r & 1)
            src = Ga(1, 3, r >> 1) + 2 * (r & 1) if (h, k) == (0, 0) else ACC + 2*r
            o += [f"v_lshlrev_b32 v{t}, 16, v{s}", f"v_and_b32 v{t+1}, s{sS8}, v{s}",
                  f"v_add_f32 v{ACC+2*r}, v{src}, v{t}", f"v_add_f32 v{ACC+2*r+1}, v{src+1}, v{t+1}"]
        return o
    rcv = [f"v_cvt_pk_bf16_f32 v{PK+r}, v{ACC+2*r}, v{ACC+2*r+1}" for r in range(6)]
    def rst(j): return ([f"s_add_u32 s{sOff2}, s{sOo}, {j*40960}"], f"buffer_store_dwordx2 {vr(PK+2*j,2)}, v{vOA}, {sr(sOut,4)}, s{sOff2} offen")
    chk_cmp = [f"v_cmp_gt_u32 vcc, v{vVal}, v{vPoll}"]
    poll = f"buffer_load_dword v{vPoll}, v{vFi}, {sr(sF,4)}, 0 offen sc1"

    def g_phase(fast):
        pol = "" if fast else " sc1"
        la, lb = (vSA, vSB) if fast else (vLA, vLB)
        def xst(h, i): return [([], f"buffer_store_dwordx4 {vr(STG+6*i,4)}, v{vSA}, {sr(sP,4)}, s{sDst+4*h+i} offen{pol}"),
                               ([], f"buffer_store_dwordx2 {vr(STG+6*i+4,2)}, v{vSB}, {sr(sP,4)}, s{sDst+4*h+i} offen{pol}")]
        def xld(h, k): return [([f"s_mov_b32 s{sOff2}, {(4*h+k)*6144}"], f"buffer_load_dwordx4 {vr(LD[h]+6*k,4)}, v{la}, {sr(sPr,4)}, s{sOff2} offen sc1"),
                               ([], f"buffer_load_dwordx2 {vr(LD[h]+6*k+4,2)}, v{lb}, {sr(sPr,4)}, s{sOff2} offen sc1")]
        flag = f"buffer_store_dword v{vVal}, v{vFl}, {sr(sF,4)}, 0 offen{pol}"
        def check():
            l0, l1 = newlabel("sp"), newlabel("ok")
            if not OPT["nosync"]: a.e(f"s_cbranch_vccnz {l0}")
            a.e(f"{l1}:")
            spins.append((l0, l1, chk_cmp, poll))
        if fast: a.e(f"v_add_u32 v{vSA}, {5*XP}, v{vSA}"); a.e(f"v_add_u32 v{vSB}, {5*XP}, v{vSB}")
        else:
            a.e(f"v_subrev_u32 v{vSA}, {XP}, v{vSA}"); a.e(f"v_subrev_u32 v{vSB}, {XP}, v{vSB}")
            a.e(f"v_mov_b32 v{vLA}, v{vSA}"); a.e(f"v_mov_b32 v{vLB}, v{vSB}")
        late = []
        def body():
            del late[:]
            Ss = [Sched(a, gmf(n)) for n in range(16)]
            cap = [[2] * 24 for _ in range(16)]
            ops = []
            def vmem(n, g_, steps, kind):
                if isinstance(kind, tuple) and kind[0] == "T": place_tile(a, Ss[n], steps, g_)
                else:
                    for (pre, d), x in zip(steps, g_):
                        for y in pre: Ss[n].h(x, y)
                        Ss[n].v(x, lambda d=d: a._emit(d))
                for x in g_: cap[n][x] = 0; ops.append((n, x, kind))
            tpos = {0: [(6, 11)], 1: [(6, 11)], 4: [(6, 11), (16, 19)], 5: [(11, 16), (19, 22)], 6: [(6, 11)], 7: [(11, 16)]}
            m = 13
            for n in range(16):
                h, t = divmod(n, 8); S = Ss[n]
                rds = []
                for f in range(8): rds += rd_g(Greg((n + 1) & 1, f), n + 1, f)
                for r, p in zip(rds, RDPOS): S.v(p, r); cap[n][p] -= 1
                cap[n][23] = 0 if n % 4 == 1 else 1; cap[n][20] = min(cap[n][20], 1); cap[n][21] = min(cap[n][21], 1)
                for gp in tpos.get(t, []):
                    st, post = wo_tile(m)
                    if m == 16:
                        S.h(gp[0] - 4, f"s_cmp_eq_u32 s{sGc}, 4"); S.h(gp[0] - 3, f"s_cselect_b32 s{sWo+2}, 0, s{sWo+2}")
                    vmem(n, gp, st, ("T", m))
                    for x in post: S.h(gp[1], x)
                    m += 1
                if t == 2:
                    xs = [s_ for i in range(NP[1-h]) for s_ in xst(1 - h, i)] + [s_ for k in range(NP[h]) for s_ in xld(h, k)]
                    pos = [(n + d, g_) for d in (0, 1) for g_ in (6, 11, 16, 19, 20, 21, 22)]
                    for s_, (n2, g_) in zip(xs, pos): vmem(n2, (g_,), [s_], ("X", h))
                if t == 5: vmem(n, (6,), [([], flag)], "F"); S.v(4, f"v_add_u32 v{vVal}, 1, v{vVal}"); cap[n][4] -= 1
                if t == 7: vmem(n, (6,), [([], poll)], ("P", h))
            assert m == 29
            if OPT["opos"] == 0: vmem(4, (20, 21, 22), [rst(j) for j in range(3)], "O")
            else:
                for j, (n2, g_) in enumerate(((6, 16), (8, 16), (14, 16)) if OPT["opos"] == 1 else ((6, 16), (7, 21), (8, 19))): vmem(n2, (g_,), [rst(j)], "O")
            ops.sort(key=lambda x: (x[0], x[1]))
            ops2 = ops + [(n + 16, g_, k) for n, g_, k in ops]
            def younger(pt, n, g_): return len([o for o in ops2 if pt < (o[0], o[1]) < (n, g_)])
            for h in range(2):
                pt = max((o[0], o[1]) for o in ops if o[2] == ("X", h))
                Ss[8*h + 5].h(2, lambda c=younger(pt, 8*h + 5, 2): vmw(a, c))
                pt = [(o[0], o[1]) for o in ops if o[2] == ("P", h)][0]
                nc = 8*h + 9
                Ss[nc % 16].h(16, lambda c=younger(pt, nc, 16): vmw(a, c))
                Ss[nc % 16].v(16, lambda: a._emit(chk_cmp[0])); cap[nc % 16][16] -= 1
                Ss[nc % 16].h(20, check)
            def fill(lst, n, g_, rec=None):
                for op in lst:
                    while cap[n % 16][g_] <= 0:
                        g_ += 1
                        if g_ == 24: n += 1; g_ = 0
                    if not OPT["norv"]: Ss[n % 16].v(g_, lambda op=op: a._emit(op))
                    cap[n % 16][g_] -= 1
                    if rec is not None and n >= 16: rec.append(op)
                return n, g_
            e = fill(cvs(1), 0, 1); assert e < (2, 5), e
            e = fill(cvs(0), 8, 1); assert e < (10, 5), e
            e = fill(rops(0, 0), 5, 2); assert e < (8, 10), e
            e = fill([x for k in range(1, 4) for x in rops(0, k)], *e); assert e < (13, 2), e
            e = fill([x for k in range(3) for x in rops(1, k)] + rcv, 13, 2, late); assert e < (20, 18), e
            S = Ss[7]
            S.h(1, f"s_mov_b32 s{sP+2}, {XG}")
            if not fast: S.v(19, f"v_add_u32 v{vSA}, {XP}, v{vSA}"); S.v(20, f"v_add_u32 v{vSB}, {XP}, v{vSB}")
            S = Ss[15]
            S.h(0, f"s_cmp_ge_u32 s{sGc}, 1")
            S.h(1, f"s_cselect_b32 s{sOut+2}, {191*2560 + 1024 + 32}, 0")
            S.h(2, f"s_add_u32 s{sOo}, s{sOo}, 256")
            S.h(3, f"s_mov_b32 s{sPr+2}, {5*XP + XD}")
            if not fast:
                S.v(19, f"v_add_u32 v{vLA}, {XP}, v{vLA}"); S.v(20, f"v_add_u32 v{vLB}, {XP}, v{vLB}")
            S.h(18, f"s_add_u32 s{sGc}, s{sGc}, 1")
            S.h(19, f"s_cmp_lt_u32 s{sGc}, 5")
            for n in range(16):
                a.c(f"G sub-step {n}")
                if n % 4 == 1:
                    tid = n + 5 + 16
                    pt = max((o[0], o[1]) for o in ops2 if o[2] == ("T", tid if tid < 29 else tid - 16) and (o[0] < 16) == (tid < 29))
                    cnt = len([o for o in ops2 if pt < (o[0], o[1]) < (n + 16, 22) and (o[0] >= 16 or (isinstance(o[2], tuple) and o[2][0] == "T"))])
                    end_sync(a, Ss[n], min(cnt, 63), 0)
                else:
                    def w():
                        k = min(len(a.lg), OPT['gkeep']); a.raw_wait(f"s_waitcnt lgkmcnt({k})"); a.lg = a.lg[len(a.lg) - k:] if k else []
                    Ss[n].h(22, w)
                Ss[n].emit(gmf(n + 1)[0])
        lab = "L_gl_fast" if fast else "L_gl_far"
        if OPT["qprof"] == 2 and fast: stamp(a, 5); stamp(a, 6, False)
        a.e(f"{lab}:")
        if OPT["qprof"] == 4: stamp_dyn(a, 4, sGc, 5)
        a.lg = []
        mark = len(a.ins); nops0 = a.nops; ns = len(spins)
        body(); lg_end = list(a.lg)
        del a.ins[mark:]; a.nops = nops0; del spins[ns:]
        body(); assert a.lg == lg_end
        a.e(f"s_cbranch_scc1 {lab}")
        if OPT["qprof"] == 2 and fast: stamp(a, 7); stamp(a, 8, False)
        if OPT["qprof"] == 4: stamp(a, 3)
        a.c("tail")
        for x in cvs(1): a.e(x)
        stamp(a, 2)
        vmw(a, 2)
        a._emit(chk_cmp[0]); a._emit("s_nop 4"); check()
        for i in range(3): emit_tile(a, xst(1, i))
        for k in range(4): emit_tile(a, xld(0, k))
        for op in late: a._emit(op)
        vmw(a, 8)
        a.e(f"v_add_u32 v{vVal}, 1, v{vVal}")
        a._emit(flag)
        emit_tile(a, [rst(j) for j in range(3)])
        a.e(f"s_mov_b32 s{sOo}, 1024")
        for k in range(4):
            vmw(a, 2 * (3 - k) + 4)
            for op in rops(0, k): a._emit(op)
            if k == 2: a._emit(poll)
        vmw(a, 0)
        a._emit(chk_cmp[0]); a._emit("s_nop 4"); check()
        for k in range(3): emit_tile(a, xld(1, k))
        for k in range(3):
            vmw(a, 2 * (2 - k))
            for op in rops(1, k): a._emit(op)
        for op in rcv: a._emit(op)
        emit_tile(a, [rst(j) for j in range(3)])
    g_phase(True)
    a.e("L_fin:")
    stamp(a, 9, False); stamp(a, 10)
    if OPT["leak"] >= 0:
        k = OPT["leak"]
        if k == 0: a.e("s_mov_b32 s79, 0")
        elif k == 9: a.e("s_sub_u32 s79, s98, s82"); a.e("s_lshr_b32 s79, s79, 4")
        else: a.e(f"s_sub_u32 s79, s{80+2*k}, s80")
        a.e("s_add_u32 s79, s79, 15000")
        if OPT["leakwg"] == 1: a.e("s_cmp_lt_u32 s2, 8"); a.e("s_cselect_b32 s79, s79, 0")
        if OPT["leakwg"] == 2: a.e("s_cmp_ge_u32 s2, 248"); a.e("s_cselect_b32 s79, s79, 0")
        if OPT["leakwg"] == 3: a.e("s_cmp_eq_u32 s2, 0"); a.e("s_cselect_b32 s79, s79, 0")
        a.e("L_leak:")
        a._emit("s_memrealtime s[76:77]"); a.raw_wait("s_waitcnt lgkmcnt(0)")
        a.e("s_sub_u32 s76, s76, s80"); a.e("s_cmp_lt_u32 s76, s79"); a.e("s_cbranch_scc1 L_leak")
    stamp_store(a, "L_end", 0)
    dbg_store(a)
    a.e("L_end:")
    a.e("s_endpgm")
    nsp = len(spins)
    for s_ in list(spins): spin_loop(*s_)
    a.e("L_hot_end:")
    a.e(".p2align 6")
    a.e("L_gx:")
    g_phase(False)
    a.e("s_branch L_fin")
    for s_ in list(spins[nsp:]): spin_loop(*s_)
    a.reset_counters()
    a.e("L_slow:")
    a.raw_wait("s_waitcnt vmcnt(0) lgkmcnt(0)")
    vKo, vVo, t0, t1 = 10, 11, P_ + 12, P_ + 13
    a.e("s_nop 7")
    a.e(f"v_and_b32 v{t0}, 7, v0"); a.e(f"v_lshlrev_b32 v{t0}, 10, v{t0}")
    a.e(f"v_bfe_u32 v{t1}, v0, 3, 1"); a.e(f"v_lshl_add_u32 v{t0}, v{t1}, 8, v{t0}")
    a.e(f"v_lshrrev_b32 v{t1}, 4, v0"); a.e(f"v_lshl_add_u32 v{vKo}, v{t1}, 4, v{t0}")
    a.e(f"v_bfe_u32 v{t0}, v0, 4, 1"); a.e(f"v_lshlrev_b32 v{t0}, 12, v{t0}")
    a.e(f"v_lshrrev_b32 v{t1}, 5, v0"); a.e(f"v_lshl_add_u32 v{t0}, v{t1}, 8, v{t0}")
    a.e(f"v_and_b32 v{t1}, 15, v0"); a.e(f"v_lshl_add_u32 v{vVo}, v{t1}, 1, v{t0}")
    for j in range(3): a.e(f"v_mov_b32 v{vT+j}, 0xff800000")
    def slow_qk(cinit):
        for u, kf in ((0, KF), (1, VF)):
            for ks in range(4): a.e(f"buffer_load_dwordx4 {vr(kf + 4*ks,4)}, v{vKo}, {sr(sK,4)}, s{sT2} offen offset:{u*512 + ks*64}")
        for u, kf in ((0, KF), (1, VF)):
            for j in range(3):
                for ks in range(4):
                    a.e(mf(Sr(u, j), kf + 4*ks, Qf(j, ks), (Nm(j) if cinit else None) if ks == 0 else Sr(u, j)))
    a.e(f"s_mov_b32 s{sT2}, s{sCur}")
    a.e(f"s_add_u32 s{sT3}, s{sCur}, 131072")
    a.e("L_slow_p1:")
    slow_qk(False)
    for j in range(3):
        for u in range(2):
            s = Sr(u, j)
            a.e(f"v_max3_f32 v{vT+j}, v{vT+j}, v{s}, v{s+1}")
            a.e(f"v_max3_f32 v{vT+j}, v{vT+j}, v{s+2}, v{s+3}")
    a.e(f"s_add_u32 s{sT2}, s{sT2}, 8192")
    a.e(f"s_cmp_lt_u32 s{sT2}, s{sT3}")
    a.e("s_cbranch_scc1 L_slow_p1")
    rowred(a, "v_max_f32", [vT, vT+1, vT+2], [Nm(j) for j in range(3)])
    for j in range(3):
        for r in range(4): a.e(f"v_sub_f32 v{Nm(j)+r}, 0, v{vT+j}")
    for r in range(96): a.e(f"v_mov_b32 v{O_+r}, 0")
    for r in range(12): a.e(f"v_accvgpr_write_b32 a{192+r}, 0")
    a.e(f"s_mov_b32 s{sT2}, s{sCur}")
    a.e("L_slow_p2:")
    slow_qk(True)
    for u in range(2):
        for k in range(12): a.e(ex(u, k))
    for u in range(2):
        for c in range(6): a.e(cv(u, 0, c))
    for half, fr in ((0, KF), (1, VF)):
        for hi in range(2):
            for i in range(4):
                for e in range(2):
                    for rp in range(2):
                        r = 2*rp + hi
                        a.e(f"buffer_load_ushort v{(S_ if hi else fr) + 4*i + 2*e + rp}, v{vVo}, {sr(sV,4)}, s{sT2} offen offset:{r*1024 + e*512 + (4*half+i)*32}")
        a.wait(vm="all")
        for x in range(16): a.e(f"v_lshl_or_b32 v{fr+x}, v{S_+x}, 16, v{fr+x}")
    for m in sm(2): a.e(m)
    for half, fr in ((0, KF), (1, VF)):
        for m in pv(2, half, fr): a.e(m)
    a.e(f"s_add_u32 s{sT2}, s{sT2}, 8192")
    a.e(f"s_cmp_lt_u32 s{sT2}, s{sT3}")
    a.e("s_nop 7")
    a.e("s_cbranch_scc1 L_slow_p2")
    for j in range(3): a.e(f"v_accvgpr_read_b32 v{vT+j}, a{La(j)[1]}")
    a.e("s_branch L_epi")
    return a

HDR = f"""; Fused attention blocks A and B in one launch. One workgroup per CU owns 4 heads of one batch: Q projection,
; softmax attention, output-projection partial (K = 512); the 8 workgroups of a batch then sum their partials.
; kernarg: 0 A_x, 8 A_k, 16 A_v, 24 A_wq, 32 A_wo, 40 B_x, 48 B_k, 56 B_v, 64 B_wq, 72 B_wo, 80 out, 88 debug, 96 ws
; @launch grid=(256,1,1) block=(256,1,1) lds={LDS}
.amdgcn_target "amdgcn-amd-amdhsa--gfx950"
.text
"""
def kern(name, a):
    return f".globl {name}\n.p2align 8\n.type {name},@function\n{name}:\n" + a.text()
def desc(name, nv, acc, ns):
    return f""".p2align 6
.amdhsa_kernel {name}
  .amdhsa_next_free_vgpr {nv}
  .amdhsa_next_free_sgpr {ns}
  .amdhsa_accum_offset {acc}
  .amdhsa_group_segment_fixed_size 0
  .amdhsa_kernarg_size 104
  .amdhsa_user_sgpr_count 2
  .amdhsa_user_sgpr_kernarg_segment_ptr 1
  .amdhsa_system_sgpr_workgroup_id_x 1
  .amdhsa_float_denorm_mode_32 3
.end_amdhsa_kernel
"""
if __name__ == "__main__":
    a = main_kernel()
    if OPT["nodma"] & 1: a.ins = [i for i in a.ins if not (i.kind == "dma" and " v1, " in i.text)]
    if OPT["nodma"] & 2: a.ins = [i for i in a.ins if not (i.kind == "dma" and " v1, " not in i.text)]
    if OPT["nodma"] & 4: a.ins = [i for i in a.ins if not (i.kind == "store" and ("v120," in i.text or "v121," in i.text))]
    if OPT["nox2"]: a.ins = [i for i in a.ins if not (i.kind == "vmem" and ("v121," in i.text))]
    if OPT["noload"]: a.ins = [i for i in a.ins if not (i.kind == "vmem" and ("v120," in i.text or "v121," in i.text))]
    if OPT["strip"] == 2:
        i0 = [k for k, i in enumerate(a.ins) if i.text == "L_head:"][0]; i1 = [k for k, i in enumerate(a.ins) if i.text == "L_epi:"][0]
        a.ins = a.ins[:i0] + [Ins("s_nop 4") if i.kind == "mfma" else i for i in a.ins[i0:i1] if i.kind not in ("lds", "trans", "valu")] + a.ins[i1:]
    if OPT["strip"] == 1:
        i0 = [k for k, i in enumerate(a.ins) if i.text == "L_head:"][0]; i1 = [k for k, i in enumerate(a.ins) if i.text == "L_epi:"][0]
        a.ins = a.ins[:i0] + [i for i in a.ins[i0:i1] if i.kind not in ("mfma", "lds", "trans", "valu")] + a.ins[i1:]
    ns = 102 if OPT["stamp"] else NSGPR
    open(sys.argv[1], "w").write(HDR + kern(NAME + "_kernel", a) + '.section .rodata,"a"\n' + desc(NAME + "_kernel", 512, 256, ns))
    print("instrs", len(a.ins), "nops", a.nops)
```

```python
import sys, math, struct
from asmlib import *

NAME = "concat_heads__mha_block_cached__gqa_block_cached__near_ridge"
def f32(x): return "0x%08x" % struct.unpack("<I", struct.pack("<f", x))[0]
OPT = dict(stamp=0, nodma=0, nocheck=0, touch=0, forceslow=0, map84=0, first=6, rot=1, strip=0, cyc=0, typ=2, track=1, nosync=0, sleep=1, opos=1, lag=4, noack=0, noload=0, stpol=1, nolw=0, krot=1, hrot=0, emu3=0, woq=1, ibnt=0, ibt=14, ct2=1, inbox0=0, sparse1=1, noinbox=1, cthead=3, help=3, latekv=0, wot=0, lmax=3, thr=5, thr2=3, dyn=1, xmode=0, gkeep=0, leak=-1, leakwg=0, st0=0, norv=0, now0=0, gcap=0, qprof=0, la=7, ldpol=1, lmode=0, ldfix=0, nox2=0, wnt=0, xnt=0, t0x=0, t0w=0, ctouch=3, dbgout=0)
for a_ in sys.argv[2:]:
    k_, v_ = a_.split("="); assert k_ in OPT, k_; OPT[k_] = int(v_)

def R(x, n):
    t, i = x if isinstance(x, tuple) else ("v", x)
    return f"{t}{i}" if n == 1 else f"{t}[{i}:{i+n-1}]"
def off(x, d): return (x[0], x[1] + d) if isinstance(x, tuple) else x + d
def mf(d, a, b, c):
    return f"v_mfma_f32_16x16x32_bf16 {R(d,4)}, {R(a,4)}, {R(b,4)}, {'0' if c is None else R(c,4)}"

TILE = 8448
VB = 8 * TILE
XB = 16 * TILE
LDS = XB + 24576
NSLOT = 8
CH = NSLOT * 1024
PART = 240 * CH
STAMP_AT = 128 << 20
FLG = 120 << 20
XD = 7 * 6144
XP = 8 * XD
XG = 6 * XP
SPIN_MAX = 200000
def slot(m):
    m %= 16
    return (m & 1), (m >> 1) * TILE

vKV, vKA, vVA, vWAl, vWAh, vW = 1, 2, 3, 4, 5, 6
vT = 7
QF, NM, S_, P_, KF, VF, O_ = 12, 60, 72, 96, 120, 136, 160
vX0, vX1, vXA0, vXA1 = 156, 157, 158, 159
vTo, vD, vPt, vWo = 152, 153, 154, 155
def Qf(j, ks): return QF + 16 * j + 4 * ks
def Nm(j): return NM + 4 * j
def Sr(u, j): return S_ + 12 * u + 4 * j
def Pr(buf, j): return P_ + 12 * buf + 4 * j
def Or(i, j): return O_ + 12 * i + 4 * j
def Wreg(buf, i): return 12 + 32 * buf + 4 * i
def Xreg(buf, j, s): return 76 + 24 * buf + 8 * j + 4 * s
def Qacc(pos, i, j):
    k = 12 * i + 4 * j
    if pos == 0: return ("a", k)
    if pos == 1: return ("a", 96 + k)
    if pos == 2: return ("a", 192 + k) if k < 64 else 124 + (k - 64)
    return O_ + k
QBANK = {3: 0, 2: 48, 1: 96}
OBANK = {0: 144, 1: 96, 2: 48, 3: 0}
def La(j): return ("a", 192 + 4 * j)
ONES = ("a", 204)
def Greg(buf, i): return ("a", 192 + 32 * buf + 4 * i)
sX, sW, sK, sV, sWo, sP = 32, 36, 40, 44, 48, 52
sWv, sKVL, sWL, sXL, sOff, sOff2, sTmp, sR, sCur, sT2, sT3 = 60, 61, 62, 63, 64, 65, 66, 67, 68, 69, 70
sB, sU, sBr, sG, sXo, sPo = 71, 72, 73, 74, 75, 76
sCX, sNX, sLast, sS8, sWoB, sTask, sTyp = 56, 57, 58, 59, 77, 30, 31
sWq, sGc = 26, 27
sWq1, sJ, sRot, sPM, sPK = 20, 21, 22, 23, 24
sF, sD0, sD1 = 8, 12, 13
sJh, sXo1, sPre = 25, 77, 30
sBL, sMin, sKn, sMv, sMk, sKVv, sC1 = 57, 76, 23, 58, 59, 3, 25
sH = [4, 5, 6, 7]
NSGPR = 80

def stamp(a, k, real=True):
    if not OPT["stamp"]: return
    lg = list(a.lg)
    a.raw_wait("s_waitcnt lgkmcnt(0)")
    if OPT["cyc"] and 2 <= k <= 8: real = False
    a._emit(f"{'s_memrealtime' if real else 's_memtime'} s[{80+2*k}:{81+2*k}]")
    a.raw_wait("s_waitcnt lgkmcnt(0)")
def stamp_dyn(a, base, sidx, n):
    if not OPT["stamp"]: return
    a.raw_wait("s_waitcnt lgkmcnt(0)")
    a._emit("s_memtime s[78:79]" if OPT["cyc"] else "s_memrealtime s[78:79]")
    a.raw_wait("s_waitcnt lgkmcnt(0)")
    for q in range(n):
        a.e(f"s_cmp_eq_u32 s{sidx}, {q}")
        a.e(f"s_cselect_b32 s{80+2*(base+q)}, s78, s{80+2*(base+q)}")
def stamp_store(a, label, base):
    if not OPT["stamp"]: return
    a.e(f"s_cmp_lg_u32 s{sWv}, 0")
    a.e(f"s_cbranch_scc1 {label}")
    for k in range(11): a.e(f"v_mov_b32 v{16+k}, s{80+2*k}")
    a.e("s_lshl_b32 s78, s2, 6"); a.e(f"s_add_u32 s78, s78, {STAMP_AT + base*64}")
    a.e("v_mov_b32 v28, s78")
    a.e("s_mov_b64 exec, 1")
    a.e("global_store_dwordx4 v28, v[16:19], s[28:29]")
    a.e("global_store_dwordx4 v28, v[20:23], s[28:29] offset:16")
    a.e("global_store_dwordx4 v28, v[24:27], s[28:29] offset:32")

def dbg_store(a):
    if not OPT["dbgout"]: return
    l = "L_dbgskip"
    a.e("s_and_b32 s78, s2, 0xdf"); a.e("s_cmp_lg_u32 s78, 5"); a.e(f"s_cbranch_scc1 {l}")
    a.e("s_load_dwordx2 s[24:25], s[0:1], 88")
    for n, k in enumerate((3,4,5,6,7,8,2,10)):
        a.e(f"s_sub_u32 s79, s{80+2*k}, s80"); a.e(f"v_mov_b32 v{32+n}, s79")
    a.e("s_and_b32 s78, s2, 32"); a.e("v_mov_b32 v29, s78")
    a.raw_wait("s_waitcnt lgkmcnt(0)")
    a.e("global_store_dwordx4 v29, v[32:35], s[24:25]")
    a.e("global_store_dwordx4 v29, v[36:39], s[24:25] offset:16")
    a.e(f"{l}:")

def srd(a, d, lo, o, size):
    a.e(f"s_add_u32 s{d}, s{lo}, {o}")
    a.e(f"s_addc_u32 s{d+1}, s{lo+1}, 0")
    a.e(f"s_and_b32 s{d+1}, s{d+1}, 0xffff")
    a.e(f"s_mov_b32 s{d+2}, {size}")
    a.e(f"s_mov_b32 s{d+3}, 0x20000")
_lbl = [0]
def newlabel(p):
    _lbl[0] += 1
    return f"L_{p}_{_lbl[0]}"
class U(str): pass

def ldsbase(m):
    h, o = slot(m); return h * VB + o
def w_tile(m, n, nh=4):
    b = ldsbase(m); base = sWq if n < 4 * nh else sWq1
    rel = ((n % (4 * nh)) // nh) * 262144 + (nh - 1 - n % nh) * 256
    pol = ' nt' if OPT['wnt'] else ''
    return [([f"s_xor_b32 s{sOff}, s{base}, {rel}", f"s_add_u32 m0, s{sWL}, {b}"], f"buffer_load_dwordx4 v{vW}, {sr(sW,4)}, s{sOff} offen{pol} lds"),
            ([f"s_xor_b32 s{sOff}, s{base}, {rel + 8192}", f"s_add_u32 m0, s{sWL}, {b + 1032}"], f"buffer_load_dwordx4 v{vW}, {sr(sW,4)}, s{sOff} offen{pol} lds")]
def kv_tile(m, t):
    b = ldsbase(m); s = sV if m & 1 else sK
    assert t < 16
    so = f"s_xor_b32 s{sOff}, s{sCX}, {t * 8192}"
    return [([so, f"s_add_u32 m0, s{sKVL}, {b}"], f"buffer_load_dwordx4 v{vKV}, {sr(s,4)}, s{sOff} offen nt lds"),
            ([f"s_add_u32 m0, s{sKVL}, {b + 32}"], f"buffer_load_dwordx4 v{vKV}, {sr(s,4)}, s{sOff} offen offset:1024 nt lds")]
def unit_pre(base, add):
    return [f"s_add_u32 s{sMv}, s{base}, {add}", f"s_xor_b32 s{sOff}, s{sMv}, s{sRot}", f"s_bfe_u32 s{sMv}, s{sMv}, 0x3000d", f"s_mul_i32 s{sMv}, s{sMv}, {TILE}",
            f"s_add_u32 s{sMk}, s{base}, {add + 8192}", f"s_xor_b32 s{sOff2}, s{sMk}, s{sRot}", f"s_bfe_u32 s{sMk}, s{sMk}, 0x3000d", f"s_mul_i32 s{sMk}, s{sMk}, {TILE}"]
def unit_dma(so_v=None, so_k=None):
    so_v = sOff if so_v is None else so_v; so_k = sOff2 if so_k is None else so_k
    return [([f"s_add_u32 m0, s{sMv}, s{sKVv}"], f"buffer_load_dwordx4 v{vKV}, {sr(sV,4)}, s{so_v} offen nt lds"),
            (["s_add_u32 m0, m0, 32"], f"buffer_load_dwordx4 v{vKV}, {sr(sV,4)}, s{so_v} offen offset:1024 nt lds"),
            ([f"s_add_u32 m0, s{sMk}, s{sKVL}"], f"buffer_load_dwordx4 v{vKV}, {sr(sK,4)}, s{so_k} offen nt lds"),
            (["s_add_u32 m0, m0, 32"], f"buffer_load_dwordx4 v{vKV}, {sr(sK,4)}, s{so_k} offen offset:1024 nt lds")]
def place_guarded(a, S, steps, gaps):
    for (pre, d), g in zip(steps, gaps):
        for k, x in enumerate(pre): S.h(g - len(pre) + k, x)
        def site(d=d):
            l = newlabel("sk"); a.e(f"s_cbranch_vccnz {l}"); a._emit(d); a.e(f"{l}:")
        S.v(g, site)
def wo_tile(m):
    b = ldsbase(m); h, t = divmod(m % 16, 8); r = t >> 1; rel = (t & 1) * 81920
    st = [([f"s_add_u32 s{sOff}, s{sH[r]}, {rel}", f"s_add_u32 m0, s{sKVL}, {b}"], f"buffer_load_dwordx4 v{vWo}, {sr(sWo,4)}, s{sOff} offen lds"),
          ([f"s_add_u32 s{sOff}, s{sH[r]}, {rel + 1280}", f"s_add_u32 m0, s{sKVL}, {b + 1056}"], f"buffer_load_dwordx4 v{vWo}, {sr(sWo,4)}, s{sOff} offen lds")]
    return st, ([f"s_add_u32 s{sH[r]}, s{sH[r]}, s{(sD0, sD1)[h]}"] if t & 1 else [])
def emit_tile(a, steps):
    for pre, d in steps:
        for x in pre: a.e(x)
        a._emit(d)
def place_tile(a, S, steps, gaps):
    for (pre, d), g in zip(steps, gaps):
        for k, x in enumerate(pre): S.h(g - len(pre) + k, x)
        S.v(g, lambda d=d: a._emit(d))
def rd_w(dst, m, i):
    h, o = slot(m); p, u = divmod(i, 2)
    return [f"ds_read_b64_tr_b16 {R(off(dst, 2*e), 2)}, v{(vWAl, vWAh)[h]} offset:{o + e*512 + p*64 + u*8}" for e in range(2)]
def vmw(a, n): a.raw_wait(f"s_waitcnt vmcnt({n})")

def rowred(a, op, regs, tmps):
    for w in (32, 16):
        for r, t in zip(regs, tmps): a.e(f"v_mov_b32 v{t}, v{r}")
        for r, t in zip(regs, tmps): a.e(f"v_permlane{w}_swap_b32 v{r}, v{t}")
        for r, t in zip(regs, tmps): a.e(f"{op} v{r}, v{r}, v{t}")

RDPOS = [0,1,2,3,4,5,7,8,9,10,12,13,14,15,17,18]
RDPOS_X = [2,3,5,6,8,9,11,12,14,15,16,17,18,19,20,21]

def code_touch(a, lo, hi, vaddr, vdst):
    if not OPT["ctouch"]: return
    l = newlabel("pc")
    a.e("s_getpc_b64 s[14:15]")
    a.e(f"{l}:")
    a.e(f"s_add_u32 s14, s14, {lo}-{l}"); a.e("s_addc_u32 s15, s15, 0")
    a.e(f"s_lshr_b32 s{sT2}, s2, 3"); a.e(f"s_lshl_b32 s{sT2}, s{sT2}, 2"); a.e(f"s_add_u32 s{sT2}, s{sT2}, s{sWv}"); a.e(f"s_lshl_b32 s{sT2}, s{sT2}, 7")
    a.e(f"v_and_b32 v{vaddr}, 3, v0"); a.e(f"v_lshlrev_b32 v{vaddr}, 14, v{vaddr}"); a.e(f"v_add_u32 v{vaddr}, s{sT2}, v{vaddr}")
    a.e(f"v_min_u32 v{vaddr}, {hi}-{lo}-4, v{vaddr}")
    a._emit(f"global_load_dword v{vdst}, v{vaddr}, s[14:15]")

def inbox_addr(va, vt):
    sc = [f"s_mul_i32 s{sT2}, s{sG}, {XG}", f"s_mul_i32 s{sT3}, s{sU}, {XD}", f"s_add_u32 s{sT2}, s{sT2}, s{sT3}",
          f"s_mul_i32 s{sT3}, s{sWv}, 1536", f"s_add_u32 s{sT2}, s{sT2}, s{sT3}", f"s_add_u32 s{sT2}, s{sT2}, {5*XP}"]
    ve = [f"v_lshrrev_b32 v{va}, 3, v0", f"v_min_u32 v{va}, 6, v{va}", f"v_mul_u32_u24 v{va}, 6144, v{va}", f"v_and_b32 v{vt}, 7, v0",
          f"v_min_u32 v{vt}, 5, v{vt}", f"v_lshl_add_u32 v{va}, v{vt}, 7, v{va}", f"v_add_u32 v{va}, s{sT2}, v{va}"]
    return sc, ve

def late_consts(a):
    w_ = 2 if OPT["wot"] else 1
    a.e(f"v_min_u32 v{vTo}, {20*w_-1}, v0"); a.e(f"v_lshlrev_b32 v{vTo}, 7, v{vTo}")
    a.e(f"s_mul_i32 s{sTmp}, s{sB}, {10240*w_}"); a.e(f"s_mul_i32 s{sT2}, s{sWv}, {2560*w_}"); a.e(f"s_add_u32 s{sTmp}, s{sTmp}, s{sT2}")
    a.e(f"v_add_u32 v{vTo}, s{sTmp}, v{vTo}")
    a.e("v_and_b32 v9, 56, v0"); a.e(f"s_lshl_b32 s{sTmp}, s{sWv}, 1"); a.e(f"v_add_u32 v9, s{sTmp}, v9")
    a.e("v_mul_u32_u24 v9, 1280, v9"); a.e("v_and_b32 v8, 7, v0")
    a.e(f"s_xor_b32 s{sTmp}, s{sU}, 7"); a.e(f"s_and_b32 s{sTmp}, s{sTmp}, 3"); a.e(f"s_lshl_b32 s{sTmp}, s{sTmp}, 1"); a.e(f"v_xor_b32 v8, s{sTmp}, v8")
    a.e(f"v_lshl_add_u32 v{vWo}, v8, 4, v9")

def x_block(j, rel, base_s, op="s_add_u32", lds=0):
    so = f"{op} s{sOff2}, s{base_s}, {rel + j*20480}" if base_s is not None else f"s_mov_b32 s{sOff2}, {rel + j*20480}"
    return [([so, f"s_add_u32 m0, s{sXL}, {j*2048 + lds}"], f"buffer_load_dwordx4 v{vX0}, {sr(sX,4)}, s{sOff2} offen{' nt' if OPT['xnt'] else ''} lds"),
            ([f"s_add_u32 m0, s{sXL}, {j*2048 + 1024 + lds}"], f"buffer_load_dwordx4 v{vX1}, {sr(sX,4)}, s{sOff2} offen{' nt' if OPT['xnt'] else ''} lds")]
def rd_xb(dst, j, s): return f"ds_read_b128 {R(dst,4)}, v{(vXA0, vXA1)[s]} offset:{j*2048}"

def end_sync(a, S, vm, keep=2):
    def w():
        n = min(len(a.lg), keep)
        a.raw_wait(f"s_waitcnt vmcnt({vm}) lgkmcnt({n})")
        a.lg = a.lg[len(a.lg) - n:] if n else []
    S.h(22, w); S.h(23, "s_barrier")

def convert(a, acc, dests, tmp):
    a.e(f"s_mov_b32 s{sTmp}, {f32(math.log2(math.e) / math.sqrt(128.0))}")
    k = 0
    for pos, db in enumerate(dests):
        for p in range(4):
            for j in range(3):
                t = tmp[k % len(tmp)]; k += 1
                src = []
                for u in range(2):
                    o = acc(pos, 2*p + u, j)
                    for r in range(4):
                        if isinstance(o, tuple):
                            a.e(f"v_accvgpr_read_b32 v{t+4*u+r}, a{o[1]+r}"); src.append(t + 4*u + r)
                        else: src.append(o + r)
                for x in src: a.e(f"v_mul_f32 v{x}, s{sTmp}, v{x}")
                d = Qf(j, p) if db is None else t + 8
                for r in range(4): a.e(f"v_cvt_pk_bf16_f32 v{d+r}, v{src[2*r]}, v{src[2*r+1]}")
                if db is not None:
                    for r in range(4): a.e(f"v_accvgpr_write_b32 a{db + 12*p + 4*j + r}, v{d+r}")

def gcv(m, h):
    i, j = divmod(m, 3); p, u = divmod(i, 2); o = Or(i, j)
    return f"v_cvt_pk_bf16_f32 v{S_ + 12*p + 4*j + 2*u + h}, v{o+2*h}, v{o+2*h+1}"
CVS = [gcv(m, h) for m in range(24) for h in range(2)]
def gst(q, rel, base_s):
    p, j = divmod(q, 3)
    return ([f"s_add_u32 s{sOff2}, s{base_s}, {rel + (p*12 + j)*CH}"], f"buffer_store_dwordx4 {vr(S_ + 12*p + 4*j,4)}, v{vPt}, {sr(sP,4)}, s{sOff2} offen{['', ' sc1', ' nt', ' sc0'][OPT['stpol']]}")
def cv_plans():
    caps = [0 if g in (6, 11) else (1 if g in RDPOS else 2) for g in range(24)]
    last = []; ci = 0
    for g, cp in enumerate(caps):
        for _ in range(cp):
            if ci < 48 and ci // 2 + 4 <= g: last.append((g, ci)); ci += 1
    n = ci; first = []
    for g, cp in enumerate(caps):
        for _ in range(cp):
            if ci < 48: first.append((g, ci)); ci += 1
    assert ci == 48 and all(c // 2 > g for g, c in first)
    return last, first, n
PLAN_LAST, PLAN_FIRST, NLAST = cv_plans()

def Q2acc(pos, i, j): return (56 if pos == 0 else O_) + 12 * i + 4 * j
def X2reg(buf, j, s): return ("a", 24 * buf + 8 * j + 4 * s)
def q2mf(n, first):
    s, pos = divmod(n % 8, 2)
    return [mf(Q2acc(pos, i, j), Greg(n & 1, i), X2reg(s >> 1, j, s & 1), None if first and n < 2 else Q2acc(pos, i, j)) for i in range(8) for j in range(3)]

def main_kernel():
    a = Asm()
    T = OPT["typ"]
    if OPT["st0"]: a._emit("s_memrealtime s[80:81]")
    a.e("s_cmp_ge_u32 s2, 256")
    a.e("s_cbranch_scc1 L_end")
    a.e("s_load_dwordx16 s[4:19], s[0:1], 0")
    a.e("s_load_dwordx4 s[20:23], s[0:1], 64")
    a.e("s_load_dwordx2 s[28:29], s[0:1], 96")
    a.e(f"s_bfe_u32 s{sBr}, s2, 0x10002")
    if not OPT["map84"]:
        a.e(f"s_and_b32 s{sB}, s2, 3"); a.e(f"s_lshl_b32 s{sB}, s{sB}, 2")
        a.e(f"s_bfe_u32 s{sTmp}, s2, 0x20003"); a.e(f"s_add_u32 s{sB}, s{sB}, s{sTmp}")
        a.e(f"s_lshr_b32 s{sU}, s2, 5")
    elif OPT["map84"] == 2:
        a.e(f"s_bfe_u32 s{sB}, s2, 0x40003")
        a.e(f"s_and_b32 s{sU}, s2, 3"); a.e(f"s_lshl_b32 s{sU}, s{sU}, 1")
        a.e(f"s_lshr_b32 s{sTmp}, s2, 7"); a.e(f"s_add_u32 s{sU}, s{sU}, s{sTmp}")
    else:
        a.e(f"s_and_b32 s{sB}, s2, 1"); a.e(f"s_lshl_b32 s{sB}, s{sB}, 3")
        a.e(f"s_bfe_u32 s{sTmp}, s2, 0x30003"); a.e(f"s_add_u32 s{sB}, s{sB}, s{sTmp}")
        a.e(f"s_bfe_u32 s{sU}, s2, 0x10001"); a.e(f"s_lshl_b32 s{sU}, s{sU}, 2")
        a.e(f"s_lshr_b32 s{sTmp}, s2, 6"); a.e(f"s_add_u32 s{sU}, s{sU}, s{sTmp}")
    a.e(f"s_lshl_b32 s{sG}, s{sBr}, 4"); a.e(f"s_add_u32 s{sG}, s{sG}, s{sB}")
    if T == 3: a.e(f"s_andn2_b32 s{sTyp}, 1, s2")
    elif T == 2: a.e(f"s_and_b32 s{sTyp}, s2, 1")
    else: a.e(f"s_mov_b32 s{sTyp}, {T}")
    a.e("v_lshrrev_b32 v7, 6, v0")
    a.e("v_and_b32 v0, 63, v0")
    a.e(f"v_readfirstlane_b32 s{sWv}, v7")
    a.e("v_and_b32 v8, 15, v0")
    a.e("v_lshrrev_b32 v9, 4, v0")
    a.e("v_and_b32 v10, 1, v9"); a.e("v_lshlrev_b32 v10, 4, v10")
    a.e("v_lshrrev_b32 v11, 1, v9"); a.e("v_lshl_add_u32 v10, v11, 2, v10")
    a.e("v_lshrrev_b32 v11, 1, v7"); a.e("v_lshl_add_u32 v10, v11, 3, v10")
    a.e("v_and_b32 v11, 1, v7"); a.e("v_lshl_add_u32 v10, v11, 1, v10")
    a.e("v_lshlrev_b32 v10, 13, v10"); a.e(f"v_lshl_add_u32 v{vW}, v8, 4, v10")
    a.e("v_mul_u32_u24 v10, 48, v7"); a.e("v_lshrrev_b32 v11, 3, v0"); a.e("v_add_u32 v10, v10, v11")
    a.e("v_mul_u32_u24 v10, 1280, v10")
    a.e("v_and_b32 v11, 7, v0"); a.e("v_xor_b32 v11, v11, v9")
    a.e(f"v_lshl_add_u32 v{vX0}, v11, 4, v10")
    a.e("v_xor_b32 v11, 4, v11"); a.e("v_add_u32 v10, 10240, v10")
    a.e(f"v_lshl_add_u32 v{vX1}, v11, 4, v10")
    a.e(f"s_mul_i32 s{sKVL}, s{sWv}, 2112")
    a.e(f"s_mov_b32 s{sWL}, s{sKVL}")
    a.e(f"s_mul_i32 s{sXL}, s{sWv}, 6144"); a.e(f"s_add_u32 s{sXL}, s{sXL}, {XB}")
    a.e(f"s_mov_b32 s{sCur}, 0"); a.e(f"s_mov_b32 s{sXo}, 0"); a.e(f"s_mov_b32 s{sWq}, 0")
    a.raw_wait("s_waitcnt lgkmcnt(0)")
    a.e(f"s_cmp_eq_u32 s{sBr}, 0")
    a.e("s_cselect_b64 s[4:5], s[4:5], s[14:15]")
    a.e("s_cselect_b64 s[6:7], s[6:7], s[16:17]")
    a.e("s_cselect_b64 s[8:9], s[8:9], s[18:19]")
    a.e("s_cselect_b64 s[10:11], s[10:11], s[20:21]")
    a.e("s_cselect_b64 s[12:13], s[12:13], s[22:23]")
    a.e("s_load_dwordx4 s[16:19], s[0:1], 80")
    a.e(f"s_mul_i32 s{sTmp}, s{sB}, 245760")
    srd(a, sX, 4, f"s{sTmp}", 245760)
    a.e(f"s_lshl_b32 s{sTmp}, s{sU}, 10")
    srd(a, sW, 10, f"s{sTmp}", 639 * 8192 + 1024)
    if OPT["krot"]: a.e(f"s_xor_b32 s{sJ}, s{sB}, s{sU}"); a.e(f"s_and_b32 s{sJ}, s{sJ}, 3")
    else: a.e(f"s_mov_b32 s{sJ}, 0")
    if OPT["hrot"]: a.e(f"s_cmp_lg_u32 s{sTyp}, 0"); a.e(f"s_cselect_b32 s{sJh}, 1, 3"); a.e(f"s_and_b32 s{sJh}, s{sJh}, s{sJ}")
    else: a.e(f"s_mov_b32 s{sJh}, 0")
    a.e(f"s_lshl_b32 s{sWq}, s{sJ}, 18"); a.e(f"s_lshl_b32 s{sTmp}, s{sJh}, 8"); a.e(f"s_or_b32 s{sWq}, s{sWq}, s{sTmp}"); a.e(f"s_add_u32 s{sWq1}, s{sWq}, {1 << 20}")
    a.e(f"s_lshr_b32 s{sXo}, s{sJ}, 1"); a.e(f"s_lshl_b32 s{sXo}, s{sXo}, 7")
    if not OPT['st0']: stamp(a, 0)
    stamp(a, 1, False)
    def common_consts():
        if OPT["rot"]:
            a.e(f"s_lshr_b32 s{sRot}, s2, 4"); a.e(f"s_xor_b32 s{sRot}, s{sRot}, s2"); a.e(f"s_and_b32 s{sRot}, s{sRot}, 15"); a.e(f"s_lshl_b32 s{sRot}, s{sRot}, 13")
        else: a.e(f"s_mov_b32 s{sRot}, 0")
        a.e(f"s_lshl_b32 s{sCur}, s{sJh}, 17"); a.e(f"s_or_b32 s{sRot}, s{sRot}, s{sCur}")
        assert not OPT["hrot"]
        a.e(f"s_mov_b32 s{sCX}, s{sRot}"); a.e(f"s_add_u32 s{sKVv}, s{sKVL}, {VB}")
        a.e("v_bfe_u32 v10, v0, 2, 3")
        a.e("v_lshrrev_b32 v11, 1, v10"); a.e("v_lshlrev_b32 v11, 6, v11"); a.e(f"v_lshl_add_u32 v{vWAl}, v10, 10, v11")
        a.e("v_and_b32 v11, 1, v10"); a.e(f"v_lshl_add_u32 v{vWAl}, v11, 3, v{vWAl}")
        a.e("v_lshrrev_b32 v11, 5, v0"); a.e(f"v_lshl_add_u32 v{vWAl}, v11, 8, v{vWAl}")
        a.e("v_mul_u32_u24 v10, 1056, v10"); a.e("v_lshl_add_u32 v10, v11, 8, v10")
        a.e("v_and_b32 v11, 3, v0"); a.e(f"v_lshl_add_u32 v{vWAl}, v11, 4, v{vWAl}")
        a.e(f"v_lshl_add_u32 v10, v11, 3, v10"); a.e(f"v_add_u32 v{vVA}, {VB}, v10")
        a.e(f"v_add_u32 v{vWAh}, {VB}, v{vWAl}")
        a.e("v_and_b32 v10, 7, v8"); a.e("v_mul_u32_u24 v10, 1056, v10")
        a.e("v_lshrrev_b32 v11, 3, v8"); a.e(f"v_lshl_add_u32 v10, v11, 8, v10")
        a.e(f"v_lshl_add_u32 v{vKA}, v9, 4, v10")
        a.e("v_lshlrev_b32 v10, 4, v0"); a.e(f"v_lshl_add_u32 v{vKV}, v7, 11, v10")
        a.e(f"v_lshlrev_b32 v10, 7, v8"); a.e(f"v_add_u32 v10, s{sXL}, v10")
        a.e("v_lshrrev_b32 v11, 1, v8"); a.e("v_xor_b32 v11, v11, v9")
        a.e(f"s_and_b32 s{sTmp}, s{sJ}, 1"); a.e(f"s_lshl_b32 s{sTmp}, s{sTmp}, 2"); a.e(f"v_xor_b32 v11, s{sTmp}, v11")
        a.e(f"v_lshl_add_u32 v{vXA0}, v11, 4, v10")
        a.e("v_xor_b32 v11, 4, v11"); a.e(f"v_lshl_add_u32 v{vXA1}, v11, 4, v10")
        a.e(f"s_lshl_b32 s{sTmp}, s{sB}, 3"); a.e(f"s_add_u32 s{sTmp}, s{sTmp}, s{sU}"); a.e(f"s_lshl_b32 s{sTmp}, s{sTmp}, 19")
        srd(a, sK, 6, f"s{sTmp}", 4 * 131072)
        srd(a, sV, 8, f"s{sTmp}", 4 * 131072)
        a.e(f"s_mul_i32 s{sTmp}, s{sU}, {512*1280}")
        srd(a, sWo, 12, f"s{sTmp}", 512 * 1280)
        for r in range(4): a.e(f"s_xor_b32 s{sH[r]}, s{sJh}, {r}"); a.e(f"s_mul_i32 s{sH[r]}, s{sH[r]}, 163840")
        a.e(f"s_mov_b32 s{sKn}, 0"); a.e(f"s_mov_b32 s{sMin}, {3*8192}")
        a.e(f"s_cmp_lt_u32 s{sU}, 4")
        a.e(f"s_cselect_b32 s{sTmp}, 128, 0"); a.e(f"s_mov_b32 s{sD0}, 128"); a.e(f"s_cselect_b32 s{sD0}, -128, s{sD0}")
        a.e(f"s_sub_u32 s{sD1}, 256, s{sD0}")
        for r in range(4): a.e(f"s_add_u32 s{sH[r]}, s{sH[r]}, s{sTmp}")
        a.e(f"s_lshl_b32 s{sTmp}, s{sG}, 12"); a.e(f"s_add_u32 s{sTmp}, s{sTmp}, {FLG}")
        srd(a, sF, 28, f"s{sTmp}", 4096)
    def touch0(three):
        if OPT["t0x"]:
            a.e("v_min_u32 v10, 59, v0"); a.e("v_lshlrev_b32 v10, 7, v10")
            a.e(f"s_lshl_b32 s{sTmp}, s{sU}, 2"); a.e(f"s_add_u32 s{sTmp}, s{sTmp}, s{sWv}"); a.e(f"s_mul_i32 s{sTmp}, s{sTmp}, 7680")
            a._emit(f"buffer_load_dword v11, v10, {sr(sX,4)}, s{sTmp} offen")
        if OPT["t0w"] and three:
            a.e("v_lshrrev_b32 v14, 2, v0"); a.e("v_lshlrev_b32 v14, 13, v14"); a.e("v_and_b32 v15, 3, v0"); a.e("v_lshl_add_u32 v14, v15, 7, v14")
            a.e(f"s_and_b32 s{sTmp}, s{sB}, 3"); a.e(f"s_lshl_b32 s{sTmp}, s{sTmp}, 2"); a.e(f"s_add_u32 s{sTmp}, s{sTmp}, s{sWv}"); a.e(f"s_lshl_b32 s{sTmp}, s{sTmp}, 17")
            for k in range(3):
                a.e(f"s_add_u32 s{sT2}, s{sTmp}, {k*256*8192}")
                a._emit(f"buffer_load_dword v{16+k}, v14, {sr(sW,4)}, s{sT2} offen")
    def part_srd(slot_expr, size):
        a.e(f"s_mul_i32 s{sTmp}, s{sG}, {PART}"); slot_expr(); a.e(f"s_lshl_b32 s{sT2}, s{sT2}, 10"); a.e(f"s_add_u32 s{sTmp}, s{sTmp}, s{sT2}")
        srd(a, sP, 28, f"s{sTmp}", size)
    NF = OPT["first"]
    LA = OPT['la']
    def wpos(n): return 8 + n % 8
    def rd_x(buf): return [rd_xb(Xreg(buf, j, s), j, s) for s in range(2) for j in range(3)]
    NF = 2
    def setup(lab):
        common_consts()
        touch0(False)
        code_touch(a, lab, "L_altwo" if not OPT["ct2"] else ("L_p1" if lab == "L_q" else "L_enter"), 10, 11)
        a.e(f"s_lshl_b32 s{sTmp}, s{sU}, 9"); a.e(f"s_lshl_b32 s{sT2}, s{sWv}, 7"); a.e(f"s_add_u32 s{sTmp}, s{sTmp}, s{sT2}")
        a.e("v_and_b32 v8, 7, v0"); a.e(f"v_lshlrev_b32 v8, 2, v8"); a.e("v_mov_b32 v7, 0")
        a._emit(f"buffer_store_dword v7, v8, {sr(sF,4)}, s{sTmp} offen sc1")
        a.e(f"s_mov_b32 s{sR}, 0")
        emit_tile(a, kv_tile(0, 0))
    def bootstrap():
        l = newlabel("boot")
        a.e(f"s_cmp_lg_u32 s{sWv}, 0"); a.e(f"s_cbranch_scc1 {l}")
        a.e(f"s_lshl_b32 s{sTmp}, s{sG}, 2"); a.e(f"s_add_u32 s{sTmp}, s{sTmp}, 128")
        a.e(f"v_mov_b32 v157, s{sTmp}")
        a.e(f"s_getreg_b32 s{sT2}, hwreg(HW_REG_XCC_ID, 0, 4)")
        a.e(f"s_mul_i32 s{sT3}, s{sT2}, s{sT2}"); a.e(f"s_lshl_b32 s{sT3}, s{sT3}, 8"); a.e(f"s_add_u32 s{sT3}, s{sT3}, s{sT2}")
        a.e(f"s_lshl_b32 s{sT3}, s{sT3}, 8"); a.e(f"s_add_u32 s{sPK}, s{sT3}, 1"); a.e(f"v_mov_b32 v158, s{sPK}")
        a.e("s_mov_b64 exec, 1")
        a._emit("global_atomic_add v157, v158, s[18:19]")
        a.e("s_mov_b64 exec, -1")
        a.e(f"{l}:")
    a.e(f"s_cmp_lg_u32 s{sTyp}, 0")
    a.e("s_cbranch_scc1 L_p1")
    for j in range(3): emit_tile(a, x_block(j, 0, sXo))
    for n in range(NF): emit_tile(a, w_tile(wpos(n), n))
    setup("L_q")
    if OPT["help"]:
        a.e(f"s_mov_b32 s{sX+2}, {5*245760}")
        a.e("v_min_u32 v8, 59, v0"); a.e("v_lshlrev_b32 v8, 7, v8")
        a.e(f"s_lshl_b32 s{sTmp}, s{sU}, 2"); a.e(f"s_add_u32 s{sTmp}, s{sTmp}, s{sWv}"); a.e(f"s_mul_i32 s{sTmp}, s{sTmp}, 7680"); a.e(f"s_add_u32 s{sTmp}, s{sTmp}, {4*245760}")
        a._emit(f"buffer_load_dword v9, v8, {sr(sX,4)}, s{sTmp} offen")
        if OPT["help"] & 2:
            a.e("v_lshrrev_b32 v8, 2, v0"); a.e("v_lshlrev_b32 v8, 13, v8"); a.e("v_and_b32 v10, 3, v0"); a.e("v_lshl_add_u32 v8, v10, 7, v8")
            a.e(f"s_lshr_b32 s{sTmp}, s{sB}, 3"); a.e(f"s_lshl_b32 s{sTmp}, s{sTmp}, 2"); a.e(f"s_and_b32 s{sT2}, s{sB}, 3"); a.e(f"s_add_u32 s{sTmp}, s{sTmp}, s{sT2}")
            a.e(f"s_lshl_b32 s{sTmp}, s{sTmp}, 2"); a.e(f"s_add_u32 s{sTmp}, s{sTmp}, s{sWv}"); a.e(f"s_mul_i32 s{sTmp}, s{sTmp}, {20*8192}")
            a._emit(f"buffer_load_dword v9, v8, {sr(sW,4)}, s{sTmp} offen")
            a.e(f"s_add_u32 s{sTmp}, s{sTmp}, {4*8192}")
            a._emit(f"buffer_load_dword v9, v8, {sr(sW,4)}, s{sTmp} offen")
    a.e(f"s_mov_b32 s{sPre}, 15")
    for r in range(256):
        if r % 40 == 0 and NF + r // 40 < LA: emit_tile(a, w_tile(wpos(NF + r // 40), NF + r // 40))
        a.e(f"v_accvgpr_write_b32 a{r}, 0")
    for r in list(range(124, 156)) + list(range(160, 256)): a.e(f"v_mov_b32 v{r}, 0")
    if OPT["woq"]:
        a.e(f"s_lshr_b32 s{sTmp}, s{sB}, 3"); a.e(f"s_lshl_b32 s{sTmp}, s{sTmp}, 2"); a.e(f"s_and_b32 s{sT2}, s{sB}, 3"); a.e(f"s_add_u32 s{sTmp}, s{sTmp}, s{sT2}")
        a.e(f"s_lshl_b32 s{sTmp}, s{sTmp}, 2"); a.e(f"s_add_u32 s{sTmp}, s{sTmp}, s{sWv}"); a.e(f"s_mul_i32 s{sTmp}, s{sTmp}, 5120")
        a.e("v_min_u32 v7, 39, v0"); a.e(f"v_lshl_add_u32 v7, v7, 7, s{sTmp}")
    a.raw_wait(f"s_waitcnt vmcnt({2 * (LA - 2)}) lgkmcnt(0)")
    a.e("s_barrier")
    for r in rd_x(0): a.e(r)
    for i in range(8):
        for r in rd_w(Wreg(0, i), wpos(0), i): a.e(r)
    a.raw_wait("s_waitcnt lgkmcnt(0)"); a.lg = []
    if OPT["qprof"] == 1: stamp(a, 5); stamp(a, 6, False)
    def qmf(n):
        s, pos = divmod(n % 16, 4)
        return [mf(Qacc(pos, i, j), Wreg(n & 1, i), Xreg((s >> 1) & 1, j, s & 1), Qacc(pos, i, j)) for i in range(8) for j in range(3)]
    def early(S, half, h0, gaps):
        pre = [x.replace(f"s{sOff},", f"s{sOff2},") for x in unit_pre(sKn, 0)[4*half:4*half+4]]
        if half == 0: pre = [f"s_cmp_ge_u32 s{sKn}, s{sMin}", "s_cselect_b64 vcc, -1, 0", f"s_cselect_b32 s{sC1}, 0, 8192"] + pre
        else: pre = pre + [f"s_add_u32 s{sKn}, s{sKn}, s{sC1}"]
        for x, h_ in zip(pre, h0): S.h(h_, x)
        place_guarded(a, S, unit_dma(sOff2, sOff2)[2*half:2*half+2], gaps)
    def q_group(last):
        for n in range(16):
            a.c(f"Q sub-step {n}{' (last group)' if last else ''}")
            S = Sched(a, qmf(n))
            fin = last and n == 15
            q = n % 8
            xrd = q in (6, 7) and not (last and n >= 8)
            if not fin:
                rds = []
                for i in range(8): rds += rd_w(Wreg((n + 1) & 1, i), wpos(n + 1), i)
                for r, p in zip(rds, RDPOS): S.v(p, r)
                m = n + LA
                if not last or m < 16: place_tile(a, S, w_tile(wpos(m), m), (6, 11))
                if last and 8 <= n <= 13: place_tile(a, S, kv_tile(n - 1, (n - 1) >> 1), (16, 19))
                if not (last and n == 14):
                    hi = min(m, 15) if last else m
                    ykv = len([k for k in range(8, 14) if n + 2 - LA <= k <= n]) if last else 0
                    end_sync(a, S, 2 * (hi - (n + 2)) + 2 * ykv, 5 if xrd else 2)
            if xrd:
                rx = rd_x(((n >> 3) + 1) & 1)[3*(q-6):3*(q-6)+3]
                if q == 6: S.h(16, lambda: vmw(a, 8))
                for r, p in zip(rx, (19, 20, 21)): S.v(p, (r, "xr"))
            if q in (0, 1, 2) and not (last and n >= 8):
                if q == 0: S.h(12, lambda: a.wait(lg="xr"))
                place_tile(a, S, x_block(q, 128, sXo, "s_xor_b32") if n < 8 else x_block(q, 256, sXo), (16, 19))
            if n in (11, 12) and not last: early(S, n - 11, (0, 1, 2, 3, 7, 8, 12), (16, 19))
            if n == 4 and not last and OPT["woq"]:
                S.h(13, f"s_lshr_b32 s{sOff2}, s{sXo}, 8"); S.h(14, f"s_mul_i32 s{sOff2}, s{sOff2}, 163840")
                S.v(16, lambda: a._emit(f"buffer_load_dword v9, v7, {sr(sWo,4)}, s{sOff2} offen"))
            if n == 15 and not last:
                S.h(12, f"s_mov_b32 s{sWq}, s{sWq1}")
                S.h(13, f"s_add_u32 s{sWq1}, s{sWq1}, {1 << 20}")
                S.h(14, f"s_add_u32 s{sXo}, s{sXo}, 256")
                S.h(15, f"s_cmp_lt_u32 s{sXo}, 1024")
            S.emit(None if fin else qmf(n + 1)[0])
    a.e(".p2align 6")
    a.e("L_q:")
    if OPT["qprof"] == 3:
        a.e(f"s_lshr_b32 s{sT3}, s{sXo}, 8"); stamp_dyn(a, 4, sT3, 4)
    mark = len(a.ins); nops0 = a.nops
    q_group(False)
    lg_end = list(a.lg)
    del a.ins[mark:]; a.nops = nops0
    q_group(False)
    assert a.lg == lg_end
    a.e("s_cbranch_scc1 L_q")
    if OPT["ct2"]: code_touch(a, "L_enter", "L_q2b" if T else "L_altwo", 10, 11)
    if OPT["qprof"] == 3: stamp(a, 8)
    q_group(True)
    if OPT["qprof"] == 1: stamp(a, 7); stamp(a, 8, False)
    stamp(a, 3)
    a.c("Q conversion")
    convert(a, Qacc, [QBANK[3], QBANK[2], QBANK[1], None], [60 + 12 * k for k in range(5)])
    late_consts(a)
    bootstrap()
    a.e("s_branch L_enter")
    a.e("L_p1:")
    a.lg = []
    for j in range(3): emit_tile(a, x_block(j, 0, sXo, lds=VB-XB))
    for n in range(NF): emit_tile(a, w_tile(wpos(n), n, 2))
    a.e(f"s_xor_b32 s{sXo1}, s{sXo}, 128")
    for j in range(3): emit_tile(a, x_block(j, 0, sXo1))
    setup("L_q2")
    late_consts(a)
    a.e(f"s_mov_b32 s{sPre}, 1")
    for n in range(NF, LA): emit_tile(a, w_tile(wpos(n), n, 2))
    a.e(f"v_subrev_u32 v12, {XB-VB}, v{vXA0}"); a.e(f"v_subrev_u32 v13, {XB-VB}, v{vXA1}")
    a.raw_wait(f"s_waitcnt vmcnt({2 * (LA - 2)}) lgkmcnt(0)")
    for j in range(3):
        for s in range(2): a.e(f"ds_read_b128 {R(X2reg(0, j, s),4)}, v{12+s} offset:{j*2048}")
    a.e("L_q2go:")
    a.e("s_barrier")
    for i in range(8):
        for r in rd_w(Greg(0, i), wpos(0), i): a.e(r)
    a.raw_wait("s_waitcnt lgkmcnt(0)"); a.lg = []
    def q2_group(kind):
        first, last = kind == 0, kind == 2
        for n in range(8):
            a.c(f"Q2 sub-step {n} ({('first', 'loop', 'last')[kind]})")
            S = Sched(a, q2mf(n, first))
            cl, q = divmod(n, 4)
            fin = last and n == 7
            xrd = q < 3 and not (last and cl == 1)
            def xd(k): return k % 4 < 3 and not (last and k >= 0) and not (first and k < 0)
            def wd(k): return not (last and k + LA >= 8)
            def kd(k): return last and 0 <= k <= 5
            if not fin:
                rds = []
                for i in range(8): rds += rd_w(Greg((n + 1) & 1, i), wpos(n + 1), i)
                for r, p in zip(rds, RDPOS_X): S.v(p, r)
            if wd(n): place_tile(a, S, w_tile(wpos(n + LA), n + LA, 2), (4, 7))
            if kd(n): place_tile(a, S, kv_tile(7 + n, (7 + n) >> 1), (10, 13))
            if xrd:
                for s in range(2): S.v(s, (rd_xb(X2reg(1 - cl, q, s), q, s), "xr"))
            if xd(n):
                S.h(7, lambda: a.wait(lg="xr"))
                place_tile(a, S, x_block(q, 256, (sXo, sXo1)[cl]), (10, 13))
            if q == 3 and not last: early(S, cl, (0, 0, 1, 1, 4, 7, 8) if cl == 0 else (0, 0, 1, 1, 4), (10, 13))
            if n == 7 and not last:
                S.h(16, f"s_mov_b32 s{sWq}, s{sWq1}")
                S.h(17, f"s_add_u32 s{sWq1}, s{sWq1}, {1 << 20}")
                S.h(18, f"s_add_u32 s{sXo1}, s{sXo1}, 256")
                S.h(19, f"s_add_u32 s{sXo}, s{sXo}, 256")
                S.h(20, f"s_cmp_lt_u32 s{sXo}, 1024")
            if not (last and n >= 6):
                k0 = n + 2 - LA
                vm = sum(2 * wd(k) for k in range(k0 + 1, n + 1)) + sum(2 * kd(k) for k in range(k0, n + 1))
                if (n + 1) % 4 < 3 and not (last and n + 1 >= 4) and xd(n - 3):
                    vm = min(vm, sum(2 * wd(k) + 2 * xd(k) + 2 * kd(k) for k in range(n - 2, n + 1)))
                end_sync(a, S, vm, 5)
            S.emit(None if fin else q2mf(n + 1, first and n < 7)[0])
    a.e("L_q2:")
    q2_group(0)
    lg_in = list(a.lg)
    a.e(".p2align 6")
    a.e("L_q2l:")
    q2_group(1)
    assert a.lg == lg_in
    a.e("s_cbranch_scc1 L_q2l")
    if OPT["ct2"]:
        l = newlabel("ct")
        a.e(f"s_cmp_lg_u32 s{sR}, 0"); a.e(f"s_cbranch_scc1 {l}")
        code_touch(a, "L_enter", "L_q2b", 10, 11)
        a.e(f"{l}:")
    q2_group(2)
    if OPT["stamp"]:
        a.e(f"s_lshr_b32 s{sT2}, s{sR}, 1"); stamp_dyn(a, 3, sT2, 2)
    a.c("Q2 conversion")
    a.e(f"s_cmp_lg_u32 s{sR}, 0"); a.e("s_cbranch_scc1 L_cv2b")
    if OPT["touch"]:
        a.e("v_min_u32 v8, 39, v0"); a.e("v_lshrrev_b32 v9, 2, v8"); a.e("v_lshlrev_b32 v9, 13, v9")
        a.e("v_and_b32 v8, 3, v8"); a.e("v_lshl_add_u32 v9, v8, 7, v9")
        a.e(f"s_lshl_b32 s{sTmp}, s{sB}, 2"); a.e(f"s_add_u32 s{sTmp}, s{sTmp}, s{sWv}"); a.e(f"s_mul_i32 s{sTmp}, s{sTmp}, {10*8192}")
        a.e(f"s_add_u32 s{sTmp}, s{sTmp}, 512")
        a._emit(f"buffer_load_dword v{vD}, v9, {sr(sW,4)}, s{sTmp} offen")
    a.e(f"s_and_b32 s{sWq}, s{sWq}, 0xfffff"); a.e(f"s_xor_b32 s{sWq}, s{sWq}, 512"); a.e(f"s_add_u32 s{sWq1}, s{sWq}, {1 << 20}")
    a.e(f"s_and_b32 s{sXo}, s{sXo}, 128"); a.e(f"s_xor_b32 s{sXo1}, s{sXo}, 128")
    convert(a, Q2acc, [QBANK[1]], [12, 24, 36])
    a.e("s_branch L_cv2c")
    a.e("L_cv2b:")
    if OPT["emu3"]:
        a.e(f"s_cmp_eq_u32 s{sPre}, 1"); a.e("s_cbranch_scc0 L_cv2d")
        a.e(f"s_mov_b32 s{sPre}, 14")
        a.e(f"s_and_b32 s{sWq}, s{sWq}, 0xfffff"); a.e(f"s_add_u32 s{sWq1}, s{sWq}, {1 << 20}")
        a.e(f"s_and_b32 s{sXo}, s{sXo}, 128"); a.e(f"s_xor_b32 s{sXo1}, s{sXo}, 128")
        a.raw_wait("s_waitcnt vmcnt(0)"); a.e("s_barrier")
        for n in range(LA): emit_tile(a, w_tile(wpos(n), n, 2))
        a.raw_wait("s_waitcnt vmcnt(0)")
        a.e("s_branch L_q2go")
        a.e("L_cv2d:")
    a.e("s_nop 7")
    convert(a, Q2acc, [QBANK[3]], [12, 24, 36])
    bootstrap()
    a.e("L_cv2c:")
    convert(a, lambda pos, i, j: Q2acc(1, i, j), [None], [12])
    a.e("L_enter:")
    a.e(f"v_mov_b32 v{vT}, 0x3f803f80")
    if OPT["sparse1"]:
        a.e(f"v_and_b32 v{vT+1}, 3, v0"); a.e(f"v_cmp_eq_u32 vcc, 0, v{vT+1}"); a.e(f"v_cndmask_b32 v{vT}, 0, v{vT}, vcc")
    for r in range(4): a.e(f"v_accvgpr_write_b32 a{ONES[1]+r}, v{vT}")
    def rd_k(dst, t, u): return [f"ds_read_b128 {vr(dst + 4*ks,4)}, v{vKA} offset:{(t % 8)*TILE + u*512 + ks*64}" for ks in range(4)]
    def rd_v(t, half, fr=VF):
        return [f"ds_read_b64_tr_b16 {vr(fr + 4*i + 2*e, 2)}, v{vVA} offset:{(t % 8)*TILE + e*512 + (4*half+i)*32}" for i in range(4) for e in range(2)]
    a.e(f"s_mov_b32 s{sBL}, s{sCur}"); a.e(f"s_sub_u32 s{sMin}, s{sCur}, {OPT['lmax']*8192}")
    vmw(a, 12)
    a.e("s_barrier")
    a.lg = []
    for r in rd_k(VF, 0, 1) + rd_k(KF, 0, 0): a.e(r)
    if OPT["qprof"] < 3 and T == 0: stamp(a, 4)
    def ex(u, k): j, r = divmod(k, 4); s = Sr(u, j) + r; return f"v_exp_f32 v{s}, v{s}"
    def cv(u, buf, c): j, h = divmod(c, 2); s = Sr(u, j) + 2*h; return f"v_cvt_pk_bf16_f32 v{Pr(buf,j) + 2*u + h}, v{s}, v{s+1}"
    def qk(u): return [mf(Sr(u, j), KF + 4*ks, Qf(j, ks), Nm(j) if ks == 0 else Sr(u, j)) for j in range(3) for ks in range(4)]
    def pv(t, half, fr=VF): return [mf(Or(4*half + i, j), fr + 4*i, Pr(t & 1, j), None if t == 0 else Or(4*half + i, j)) for i in range(4) for j in range(3)]
    def sm(t): return [mf(La(j), ONES, Pr(t & 1, j), None if t == 0 else La(j)) for j in range(3)]
    VMW = 4 * (5 - OPT["lmax"])
    decide = [f"s_getreg_b32 s{sC1}, hwreg(HW_REG_IB_STS, 0, 4)", f"s_cmp_gt_u32 s{sC1}, {OPT['thr'] if OPT['dyn'] else 99}", f"s_cselect_b32 s{sC1}, s{sBL}, s{sMin}",
              f"s_cmp_gt_i32 s{sC1}, s{sMin}", "s_cselect_b64 vcc, -1, 0", f"s_cselect_b32 s{sC1}, 8192, 0", f"s_sub_u32 s{sBL}, s{sBL}, s{sC1}"]
    catch = []
    def wo_at(S, m, gaps):
        st, post = wo_tile(m)
        place_tile(a, S, st, gaps)
        for x in post: S.h(gaps[1], x)
    def tail_vec(S, u, buf, rds):
        pos = [0, 1, 4, 5, 8, 9, 10, 11]
        for r, p in zip(rds, pos): S.v(p, r)
        for k, p in zip(range(8, 12), (2, 3, 6, 7)): S.v(p, ex(u, k))
        for c, p in zip(range(6), (0, 1, 4, 5, 8, 9)): S.v(p, cv(u, buf, c))
    a.e(".p2align 6")
    a.e("L_head:")
    a.c("tile 0: scores and stand-in row max (max over the first 32 keys)")
    S = Sched(a, [mf(Sr(u, j), kf + 4*ks, Qf(j, ks), None if ks == 0 else Sr(u, j)) for u, kf in ((1, VF), (0, KF)) for j in range(3) for ks in range(4)])
    for k, x in enumerate(unit_pre(sBL, 6 * 8192)): S.h(4 + k, x)
    S.h(16, lambda: vmw(a, VMW))
    for k, x in enumerate(decide): S.h(17 + k, x)
    S.emit(None)
    a.e("s_barrier")
    for r in rd_k(KF, 1, 0): a.e(r)
    l = newlabel("sk")
    a.e(f"s_cbranch_vccnz {l}")
    emit_tile(a, unit_dma())
    a.e(f"{l}:")
    if OPT["touch"]:
        a.e(f"s_mul_i32 s{sT2}, s{sR}, {163840 if not OPT['wot'] else 327680}")
        a._emit(f"buffer_load_dword v{vD}, v{vTo}, {sr(sWo,4)}, s{sT2} offen")
    if OPT["ctouch"] & 2:
        l = newlabel("ct")
        a.e(f"s_cmp_lg_u32 s{sR}, {OPT['cthead']}"); a.e(f"s_cbranch_scc1 {l}")
        code_touch(a, "L_altwo", "L_hot_end", 158, 159)
        a.e(f"{l}:")
    if OPT["ct2"] and T:
        l = newlabel("ct")
        a.e(f"s_cmp_lg_u32 s{sR}, s{sPre}"); a.e(f"s_cbranch_scc1 {l}")
        code_touch(a, "L_q2b", "L_altwo", 10, 11)
        a.e(f"{l}:")
    if OPT["inbox0"]:
        l = newlabel("ib")
        a.e(f"s_xor_b32 s{sT2}, s{sTyp}, 1"); a.e(f"s_cmp_lg_u32 s{sR}, s{sT2}"); a.e(f"s_cbranch_scc1 {l}")
        sc, ve = inbox_addr(10, vPt)
        for x in sc + ve: a.e(x)
        a._emit(f"global_load_dword v{vD}, v10, s[28:29]"); a._emit(f"global_load_dword v{vPt}, v10, s[28:29] offset:768")
        a.e(f"{l}:")
    l = newlabel("bp")
    a.e(f"s_xor_b32 s{sT2}, s{sR}, 3"); a.e(f"s_or_b32 s{sT2}, s{sT2}, s{sWv}"); a.e(f"s_cbranch_scc1 {l}")
    a._emit("global_load_dword v156, v157, s[18:19] sc1")
    a.e(f"{l}:")
    for j in range(3):
        n = Nm(j); s0 = Sr(0, j); s1 = Sr(1, j)
        a.e(f"v_max3_f32 v{n}, v{s1}, v{s1+1}, v{s1+2}")
        a.e(f"v_max3_f32 v{n+1}, v{s1+3}, v{s0}, v{s0+1}")
        a.e(f"v_max3_f32 v{n}, v{n}, v{s0+2}, v{s0+3}")
        a.e(f"v_max_f32 v{n}, v{n}, v{n+1}")
    rowred(a, "v_max_f32", [Nm(j) for j in range(3)], [Nm(j) + 1 for j in range(3)])
    for j in range(3):
        n = Nm(j)
        a.e(f"v_sub_f32 v{n}, 0, v{n}")
        for r in range(1, 4): a.e(f"v_mov_b32 v{n+r}, v{n}")
    for u in range(2):
        for j in range(3):
            for r in range(4): a.e(f"v_add_f32 v{Sr(u,j)+r}, v{Sr(u,j)+r}, v{Nm(j)}")
    for k in range(12): a.e(ex(0, k))
    for k in range(8): a.e(ex(1, k))
    for c in range(6): a.e(cv(0, 0, c))
    def stage(t, mode):
        a.c(f"stage {t} {mode}")
        kv = mode == "kv"
        S = Sched(a, qk(0)); tail_vec(S, 1, t & 1, rd_v(t, 0))
        if kv and OPT["dyn"]:
            l0, l1 = newlabel("cu"), newlabel("cub")
            for k, x in enumerate([f"s_getreg_b32 s{sC1}, hwreg(HW_REG_IB_STS, 0, 4)", f"s_cmp_le_u32 s{sC1}, {OPT['thr2']}",
                                   f"s_cselect_b32 s{sC1}, s{sBL}, s{sCur}", f"s_cmp_lt_i32 s{sC1}, s{sCur}"]): S.h(6 + k, x)
            def site(l0=l0, l1=l1): a.e(f"s_cbranch_scc1 {l0}"); a.e(f"{l1}:")
            S.h(10, site)
            catch.append((l0, l1, t))
        S.emit(pv(t, 0)[0])
        S = Sched(a, pv(t, 0))
        for r, p in zip(rd_k(KF, t+1, 1), (0, 1, 2, 3)): S.v(p, r)
        for k, p in zip(range(8), range(4, 12)): S.v(p, ex(0, k))
        S.h(10, lambda: a.wait(lg="all"))
        if kv:
            for x, p in zip(unit_pre(sBL, (t + 7) * 8192)[:6], (0, 1, 3, 4, 6, 7)): S.h(p, x)
        if mode == "wo" and t == 12:
            ex_ = [f"s_mul_i32 s{sT2}, s{sG}, {XG}", f"s_mul_i32 s{sT3}, s{sU}, {XD}", f"s_add_u32 s{sT2}, s{sT2}, s{sT3}",
                   f"s_mul_i32 s{sT3}, s{sWv}, 1536", f"s_add_u32 s{sT2}, s{sT2}, s{sT3}", f"s_add_u32 s{sT2}, s{sT2}, {5*XP}"]
            for k, x in enumerate(ex_): S.h(k, x)
            ev = ["v_lshrrev_b32 v158, 3, v0", "v_min_u32 v158, 6, v158", "v_mul_u32_u24 v158, 6144, v158", f"v_and_b32 v{vPt}, 7, v0",
                  f"v_min_u32 v{vPt}, 5, v{vPt}", f"v_lshl_add_u32 v158, v{vPt}, 7, v158", f"v_add_u32 v158, s{sT2}, v158"]
            for k, x in enumerate(ev): S.v(k, x)
        if mode == "wq" and t == 13: place_tile(a, S, x_block(1, 0, sXo) + x_block(2, 0, sXo), (2, 4, 7, 9))
        S.emit(qk(1)[0])
        S = Sched(a, qk(1)); tail_vec(S, 0, (t+1) & 1, rd_v(t, 1))
        if kv:
            for x, p in zip(unit_pre(sBL, (t + 7) * 8192)[6:], (0, 1)): S.h(p, x)
            S.h(4, lambda: vmw(a, VMW))
            for k, x in enumerate(decide): S.h(5 + k, x)
        else:
            S.h(11, lambda: vmw(a, {"wo": 8, "wq": 8 if t < 14 else 4}[mode]))
        S.emit(None)
        S = Sched(a, sm(t) + pv(t, 1))
        S.h(0, "s_barrier")
        if t + 2 < 16:
            for r, p in zip(rd_k(KF, t+2, 0), (0, 1, 2, 3)): S.v(p, (r, "kr"))
        elif mode == "wq":
            for k, p in enumerate((0, 1, 2, 3, 4, 6)): S.v(p, (rd_xb(X2reg(0, k >> 1, k & 1), k >> 1, k & 1), "kr"))
        for k, p in zip(range(8), (3, 4, 6, 7, 9, 10, 12, 13)): S.v(p, ex(1, k))
        def vwait(keep):
            def f():
                idx = [n for n, (tg, d) in enumerate(a.lg) if tg != "kr"]
                if len(idx) > keep: a._wait(lg_idx=idx[len(idx) - 1 - keep])
            return f
        S.h(1, vwait(4)); S.h(6, vwait(0))
        if kv: place_guarded(a, S, unit_dma(), (5, 8, 11, 14))
        elif mode == "wo":
            wo_at(S, 2*(t-12), (5, 8)); wo_at(S, 2*(t-12) + 1, (11, 14))
            nt_ = " nt" if OPT["ibnt"] else ""
            if t == OPT["ibt"] and not OPT["noinbox"]: S.v(0, lambda: a._emit(f"global_load_dword v159, v158, s[28:29]{nt_}"))
            if t == 14 and not OPT["noinbox"]: S.v(2, lambda: a._emit(f"global_load_dword v{vPt}, v158, s[28:29] offset:768{nt_}"))
        else:
            if t == 12: place_tile(a, S, x_block(0, 0, sXo), (5, 8))
            else: place_tile(a, S, w_tile(2*t - 17, 2*t - 25, 2), (5, 8))
            place_tile(a, S, w_tile(2*t - 16, 2*t - 24, 2), (11, 14))
        S.h(12, lambda: a.wait(lg="all"))
        S.emit(qk(0)[0] if t < 14 else None)
        assert not a.lg
    def stage15(mode):
        a.c(f"stage 15 {mode}")
        for r in rd_v(15, 0): a.e(r)
        for k in range(8, 12): a.e(ex(1, k))
        for c in range(6): a.e(cv(1, 1, c))
        S = Sched(a, sm(15) + pv(15, 0) + pv(15, 1, KF))
        for r, p in zip(rd_v(15, 1, KF), range(8)): S.v(p, r)
        for j in range(3): S.v(5 + j, f"v_accvgpr_read_b32 v{vT+j}, a{La(j)[1]}")
        S.v(8, f"v_add_f32 v{vT+3}, v{vT}, v{vT+1}"); S.v(8, f"v_add_f32 v{vT+3}, v{vT+3}, v{vT+2}")
        S.v(9, f"v_mov_b32 v{vT+4}, {f32(2.0**30 if not OPT['forceslow'] else 150.0)}")
        S.v(9, f"v_cmp_nle_f32 vcc, v{vT+3}, v{vT+4}")
        if mode == "wo":
            for k in range(3): wo_at(S, 6 + k, (10 + 6*k, 13 + 6*k))
        if mode == "wq":
            place_tile(a, S, [s_ for j in range(3) for s_ in x_block(j, 0, sXo1)], (11, 13, 16, 18, 21, 23))
        S.emit(None)
        assert not a.lg
        if not OPT["nocheck"]: a.e("s_cbranch_vccnz L_slow")
    for t in range(15):
        if t == 12:
            a.e(f"s_cmp_eq_u32 s{sR}, 3"); a.e("s_cbranch_scc1 L_altwo")
            if T: a.e(f"s_cmp_eq_u32 s{sR}, s{sPre}"); a.e("s_cbranch_scc1 L_altwq")
        stage(t, "kv")
    stage15("kv")
    a.e("L_epi:")
    for r in rd_k(VF, 0, 1) + rd_k(KF, 0, 0): a.e(r)
    for j in range(3): a.e(f"v_rcp_f32 v{vT+j}, v{vT+j}")
    for p in range(4):
        for j in range(3):
            d = Qf(j, p)
            for u in range(2):
                o = Or(2*p + u, j)
                for r in range(4): a.e(f"v_mul_f32 v{o+r}, v{o+r}, v{vT+j}")
                a.e(f"v_cvt_pk_bf16_f32 v{d+2*u}, v{o}, v{o+1}")
                a.e(f"v_cvt_pk_bf16_f32 v{d+2*u+1}, v{o+2}, v{o+3}")
    if OPT["stamp"]:
        if not OPT['qprof']: stamp_dyn(a, 5, sR, 4)
    for s_ in (sCur, sCX, sBL, sMin): a.e(f"s_add_u32 s{s_}, s{s_}, 131072")
    a.e(f"s_add_u32 s{sR}, s{sR}, 1")
    a.e(f"s_cmp_gt_u32 s{sR}, 3"); a.e("s_cbranch_scc1 L_g")
    a.e(f"s_cmp_eq_u32 s{sR}, 3"); a.e("s_cbranch_scc1 L_sw2")
    a.e(f"s_cmp_eq_u32 s{sR}, 2"); a.e("s_cbranch_scc1 L_sw1")
    for r in range(3):
        a.e(f"L_sw{r}:")
        for p in range(4):
            for j in range(3):
                for x in range(4): a.e(f"v_accvgpr_write_b32 a{OBANK[r] + 12*p + 4*j + x}, v{Qf(j,p)+x}")
        if r == 1 and T: a.e(f"s_cmp_eq_u32 s{sPre}, 1"); a.e("s_cbranch_scc1 L_q2b")
        for p in range(4):
            for j in range(3):
                for x in range(4): a.e(f"v_accvgpr_read_b32 v{Qf(j,p)+x}, a{QBANK[r+1] + 12*p + 4*j + x}")
        a.e("s_nop 0")
        a.e("s_branch L_head")
    for l0, l1, t in catch:
        a.e(f"{l0}:")
        for x in unit_pre(sBL, (t + 7) * 8192): a.e(x)
        emit_tile(a, unit_dma())
        a.e(f"s_add_u32 s{sBL}, s{sBL}, 8192")
        a.e(f"s_branch {l1}")
    if T:
        a.e("L_q2b:")
        a.e(f"s_add_u32 s{sKn}, s{sBL}, {3*8192}"); a.e(f"s_add_u32 s{sMin}, s{sCur}, {3*8192}")
        a.raw_wait("s_waitcnt vmcnt(0) lgkmcnt(0)")
        a.e("s_barrier")
        for n in range(5, LA): emit_tile(a, w_tile(wpos(n), n, 2))
        a.e("s_branch L_q2go")
        a.e(".p2align 6")
        a.e("L_altwq:")
        a.lg = []
        for t in range(12, 15): stage(t, "wq")
        stage15("wq")
        a.e("s_branch L_epi")
    a.e(".p2align 6")
    a.e("L_altwo:")
    a.lg = []
    for t in range(12, 15): stage(t, "wo")
    stage15("wo")
    a.e("s_branch L_epi")
    sPr, sOut, sOo, sDst = sX, sW, sLast, 40
    LD = {0: 12, 1: 36}
    ACC, STG = 60, 72
    vSA, vSB, vLA, vLB, vOA, vFl, vFi, vPoll, vVal, TM, PK = 120, 121, 122, 123, 124, 125, 126, 127, 128, 130, 134
    def Ga(h, i, j): return O_ + 48 * h + 12 * i + 4 * j
    def spin_loop(l0, l1, cmp, reload):
        a.e(f"{l0}:")
        a.e(f"s_mov_b32 s{sT3}, 0")
        l2 = newlabel("spin")
        a.e(f"{l2}:")
        a.e(f"s_add_u32 s{sT3}, s{sT3}, 1")
        a.e(f"s_cmp_ge_u32 s{sT3}, {SPIN_MAX}")
        a.e(f"s_cbranch_scc1 {l1}")
        a.e(f"s_sleep {OPT['sleep']}")
        a._emit(reload)
        a.raw_wait("s_waitcnt vmcnt(0)")
        for x in cmp: a._emit(x)
        a._emit("s_nop 4")
        a.e(f"s_cbranch_vccnz {l2}")
        a.e(f"s_branch {l1}")
    spins = []
    def rd_g(dst, m, f):
        h, o = slot(m); i, c = divmod(f, 2)
        return [f"ds_read_b64_tr_b16 {R(off(dst, 2*e), 2)}, v{(vWAl, vWAh)[h]} offset:{o + c*512 + e*256 + i*32}" for e in range(2)]
    a.e(".p2align 6")
    a.e("L_g:")
    a.lg = []
    a.e(f"v_lshrrev_b32 v{TM}, 5, v0"); a.e(f"v_lshlrev_b32 v{TM}, 7, v{TM}")
    a.e(f"v_sub_u32 v{vWAh}, v{vVA}, v{TM}"); a.e(f"v_subrev_u32 v{vWAl}, {VB}, v{vWAh}")
    for m in (9, 10, 11, 12):
        st, post = wo_tile(m); emit_tile(a, st)
        for x in post: a.e(x)
    a.raw_wait("s_waitcnt vmcnt(20) lgkmcnt(0)")
    l, l0, l1 = newlabel("bc"), newlabel("bs"), newlabel("bok")
    a.e(f"v_mov_b32 v{TM+1}, {XB}")
    a.e(f"s_cmp_lg_u32 s{sWv}, 0"); a.e(f"s_cbranch_scc1 {l}")
    bcmp = [f"v_and_b32 v{TM}, 0xff, v156", f"v_cmp_gt_u32 vcc, 8, v{TM}"]
    for x in bcmp: a._emit(x)
    a._emit("s_nop 4")
    if not OPT["nosync"]: a.e(f"s_cbranch_vccnz {l0}")
    a.e(f"{l1}:")
    spins.append((l0, l1, bcmp, "global_load_dword v156, v157, s[18:19] sc1"))
    a.e(f"s_lshl_b32 s{sTmp}, s{sPK}, 3"); a.e(f"v_xor_b32 v156, s{sTmp}, v156")
    a.e(f"ds_write_b32 v{TM+1}, v156")
    a.raw_wait("s_waitcnt lgkmcnt(0)")
    a.e(f"{l}:")
    a.lg = []
    a.e("s_barrier")
    a.e(f"ds_read_b32 v{TM+2}, v{TM+1}")
    for f in range(8):
        for r in rd_g(Greg(0, f), 0, f): a.e(r)
    for p in range(4):
        for j in range(3):
            for x in range(4): a.e(f"v_accvgpr_write_b32 a{OBANK[3] + 12*p + 4*j + x}, v{Qf(j,p)+x}")
    a.e(f"s_mul_i32 s{sTmp}, s{sG}, {XG}")
    srd(a, sP, 28, f"s{sTmp}", 0)
    a.e(f"s_mul_i32 s{sT2}, s{sU}, {XD}"); a.e(f"s_add_u32 s{sTmp}, s{sTmp}, s{sT2}")
    srd(a, sPr, 28, f"s{sTmp}", 0)
    for i in range(7):
        a.e(f"s_xor_b32 s{sDst+i}, s{sU}, {i ^ 7}"); a.e(f"s_mul_i32 s{sDst+i}, s{sDst+i}, {XD}"); a.e(f"s_add_u32 s{sDst+i}, s{sDst+i}, {i*6144}")
    a.e(f"s_mul_i32 s{sTmp}, s{sB}, 491520"); a.e(f"s_mul_i32 s{sT2}, s{sBr}, 1280"); a.e(f"s_add_u32 s{sTmp}, s{sTmp}, s{sT2}")
    a.e(f"s_lshl_b32 s{sT2}, s{sU}, 5"); a.e(f"s_add_u32 s{sTmp}, s{sTmp}, s{sT2}")
    srd(a, sOut, 16, f"s{sTmp}", 0)
    a.e(f"s_mul_i32 s{sTmp}, s{sWv}, 1536"); a.e(f"v_lshl_add_u32 v{vSA}, v0, 4, s{sTmp}")
    a.e(f"s_add_u32 s{sTmp}, s{sTmp}, 1024"); a.e(f"v_lshl_add_u32 v{vSB}, v0, 3, s{sTmp}")
    a.e(f"v_and_b32 v{TM}, 15, v0"); a.e(f"v_mul_u32_u24 v{TM}, 2560, v{TM}"); a.e(f"v_lshrrev_b32 v{TM+1}, 4, v0"); a.e(f"v_lshl_add_u32 v{TM}, v{TM+1}, 3, v{TM}")
    a.e(f"s_mul_i32 s{sTmp}, s{sWv}, {48*2560}"); a.e(f"v_add_u32 v{vOA}, s{sTmp}, v{TM}")
    a.e(f"s_lshl_b32 s{sTmp}, s{sWv}, 7"); a.e(f"s_lshl_b32 s{sT2}, s{sU}, 2"); a.e(f"s_add_u32 s{sT2}, s{sT2}, s{sTmp}")
    a.e(f"v_lshl_add_u32 v{vFl}, v0, 9, s{sT2}")
    a.e(f"s_lshl_b32 s{sT2}, s{sU}, 9"); a.e(f"s_add_u32 s{sT2}, s{sT2}, s{sTmp}")
    a.e(f"v_and_b32 v{TM}, 7, v0"); a.e(f"v_lshl_add_u32 v{vFi}, v{TM}, 2, s{sT2}")
    a.e(f"v_mov_b32 v{vVal}, 0"); a.e(f"v_mov_b32 v{vPoll}, 0")
    a.e(f"s_mov_b32 s{sGc}, 0" if not OPT["emu3"] else f"s_lshl_b32 s{sGc}, s{sTyp}, 1"); a.e(f"s_mov_b32 s{sOo}, -512" if not OPT["emu3"] else f"s_mov_b32 s{sOo}, 0"); a.e(f"s_mov_b32 s{sS8}, 0xffff0000")
    a.wait(lg="all")
    a.e(f"v_readfirstlane_b32 s{sTmp}, v{TM+2}")
    a.e("s_nop 1")
    a.e(f"s_cmp_lg_u32 s{sTmp}, 0")
    a.e("s_branch L_gx" if OPT["xmode"] == 1 else "s_cbranch_scc1 L_gx")
    def gmf(n):
        h, t = divmod(n % 16, 8)
        o = []
        for i in range(4):
            for j in range(3):
                for c in range(2):
                    r, p = divmod(2 * t + c, 4)
                    o.append(mf(Ga(h, i, j), Greg(n & 1, 2*i + c), ("a", OBANK[r] + 12 * p + 4 * j), None if t == 0 and c == 0 else Ga(h, i, j)))
        return o
    NP = {0: 4, 1: 3}
    def cvs(h): return [f"v_cvt_pk_bf16_f32 v{STG + 6*i + 2*j + x}, v{Ga(h,i,j)+2*x}, v{Ga(h,i,j)+2*x+1}" for i in range(NP[h]) for j in range(3) for x in range(2)]
    def rops(h, k):
        o = []
        for r in range(6):
            s = LD[h] + 6*k + r; t = TM + 2 * (r & 1)
            src = Ga(1, 3, r >> 1) + 2 * (r & 1) if (h, k) == (0, 0) else ACC + 2*r
            o += [f"v_lshlrev_b32 v{t}, 16, v{s}", f"v_and_b32 v{t+1}, s{sS8}, v{s}",
                  f"v_add_f32 v{ACC+2*r}, v{src}, v{t}", f"v_add_f32 v{ACC+2*r+1}, v{src+1}, v{t+1}"]
        return o
    rcv = [f"v_cvt_pk_bf16_f32 v{PK+r}, v{ACC+2*r}, v{ACC+2*r+1}" for r in range(6)]
    def rst(j): return ([f"s_add_u32 s{sOff2}, s{sOo}, {j*40960}"], f"buffer_store_dwordx2 {vr(PK+2*j,2)}, v{vOA}, {sr(sOut,4)}, s{sOff2} offen")
    chk_cmp = [f"v_cmp_gt_u32 vcc, v{vVal}, v{vPoll}"]
    poll = f"buffer_load_dword v{vPoll}, v{vFi}, {sr(sF,4)}, 0 offen sc1"

    def g_phase(fast):
        pol = "" if fast else " sc1"
        la, lb = (vSA, vSB) if fast else (vLA, vLB)
        def xst(h, i): return [([], f"buffer_store_dwordx4 {vr(STG+6*i,4)}, v{vSA}, {sr(sP,4)}, s{sDst+4*h+i} offen{pol}"),
                               ([], f"buffer_store_dwordx2 {vr(STG+6*i+4,2)}, v{vSB}, {sr(sP,4)}, s{sDst+4*h+i} offen{pol}")]
        def xld(h, k): return [([f"s_mov_b32 s{sOff2}, {(4*h+k)*6144}"], f"buffer_load_dwordx4 {vr(LD[h]+6*k,4)}, v{la}, {sr(sPr,4)}, s{sOff2} offen sc1"),
                               ([], f"buffer_load_dwordx2 {vr(LD[h]+6*k+4,2)}, v{lb}, {sr(sPr,4)}, s{sOff2} offen sc1")]
        flag = f"buffer_store_dword v{vVal}, v{vFl}, {sr(sF,4)}, 0 offen{pol}"
        def check():
            l0, l1 = newlabel("sp"), newlabel("ok")
            if not OPT["nosync"]: a.e(f"s_cbranch_vccnz {l0}")
            a.e(f"{l1}:")
            spins.append((l0, l1, chk_cmp, poll))
        if fast: a.e(f"v_add_u32 v{vSA}, {5*XP}, v{vSA}"); a.e(f"v_add_u32 v{vSB}, {5*XP}, v{vSB}")
        else:
            a.e(f"v_subrev_u32 v{vSA}, {XP}, v{vSA}"); a.e(f"v_subrev_u32 v{vSB}, {XP}, v{vSB}")
            a.e(f"v_mov_b32 v{vLA}, v{vSA}"); a.e(f"v_mov_b32 v{vLB}, v{vSB}")
        late = []
        def body():
            del late[:]
            Ss = [Sched(a, gmf(n)) for n in range(16)]
            cap = [[2] * 24 for _ in range(16)]
            ops = []
            def vmem(n, g_, steps, kind):
                if isinstance(kind, tuple) and kind[0] == "T": place_tile(a, Ss[n], steps, g_)
                else:
                    for (pre, d), x in zip(steps, g_):
                        for y in pre: Ss[n].h(x, y)
                        Ss[n].v(x, lambda d=d: a._emit(d))
                for x in g_: cap[n][x] = 0; ops.append((n, x, kind))
            tpos = {0: [(6, 11)], 1: [(6, 11)], 4: [(6, 11), (16, 19)], 5: [(11, 16), (19, 22)], 6: [(6, 11)], 7: [(11, 16)]}
            m = 13
            for n in range(16):
                h, t = divmod(n, 8); S = Ss[n]
                rds = []
                for f in range(8): rds += rd_g(Greg((n + 1) & 1, f), n + 1, f)
                for r, p in zip(rds, RDPOS): S.v(p, r); cap[n][p] -= 1
                cap[n][23] = 0 if n % 4 == 1 else 1; cap[n][20] = min(cap[n][20], 1); cap[n][21] = min(cap[n][21], 1)
                for gp in tpos.get(t, []):
                    st, post = wo_tile(m)
                    if m == 16:
                        S.h(gp[0] - 4, f"s_cmp_eq_u32 s{sGc}, 4"); S.h(gp[0] - 3, f"s_cselect_b32 s{sWo+2}, 0, s{sWo+2}")
                    vmem(n, gp, st, ("T", m))
                    for x in post: S.h(gp[1], x)
                    m += 1
                if t == 2:
                    xs = [s_ for i in range(NP[1-h]) for s_ in xst(1 - h, i)] + [s_ for k in range(NP[h]) for s_ in xld(h, k)]
                    pos = [(n + d, g_) for d in (0, 1) for g_ in (6, 11, 16, 19, 20, 21, 22)]
                    for s_, (n2, g_) in zip(xs, pos): vmem(n2, (g_,), [s_], ("X", h))
                if t == 5: vmem(n, (6,), [([], flag)], "F"); S.v(4, f"v_add_u32 v{vVal}, 1, v{vVal}"); cap[n][4] -= 1
                if t == 7: vmem(n, (6,), [([], poll)], ("P", h))
            assert m == 29
            if OPT["opos"] == 0: vmem(4, (20, 21, 22), [rst(j) for j in range(3)], "O")
            else:
                for j, (n2, g_) in enumerate(((6, 16), (8, 16), (14, 16)) if OPT["opos"] == 1 else ((6, 16), (7, 21), (8, 19))): vmem(n2, (g_,), [rst(j)], "O")
            ops.sort(key=lambda x: (x[0], x[1]))
            ops2 = ops + [(n + 16, g_, k) for n, g_, k in ops]
            def younger(pt, n, g_): return len([o for o in ops2 if pt < (o[0], o[1]) < (n, g_)])
            for h in range(2):
                pt = max((o[0], o[1]) for o in ops if o[2] == ("X", h))
                Ss[8*h + 5].h(2, lambda c=younger(pt, 8*h + 5, 2): vmw(a, c))
                pt = [(o[0], o[1]) for o in ops if o[2] == ("P", h)][0]
                nc = 8*h + 9
                Ss[nc % 16].h(16, lambda c=younger(pt, nc, 16): vmw(a, c))
                Ss[nc % 16].v(16, lambda: a._emit(chk_cmp[0])); cap[nc % 16][16] -= 1
                Ss[nc % 16].h(20, check)
            def fill(lst, n, g_, rec=None):
                for op in lst:
                    while cap[n % 16][g_] <= 0:
                        g_ += 1
                        if g_ == 24: n += 1; g_ = 0
                    if not OPT["norv"]: Ss[n % 16].v(g_, lambda op=op: a._emit(op))
                    cap[n % 16][g_] -= 1
                    if rec is not None and n >= 16: rec.append(op)
                return n, g_
            e = fill(cvs(1), 0, 1); assert e < (2, 5), e
            e = fill(cvs(0), 8, 1); assert e < (10, 5), e
            e = fill(rops(0, 0), 5, 2); assert e < (8, 10), e
            e = fill([x for k in range(1, 4) for x in rops(0, k)], *e); assert e < (13, 2), e
            e = fill([x for k in range(3) for x in rops(1, k)] + rcv, 13, 2, late); assert e < (20, 18), e
            S = Ss[7]
            S.h(1, f"s_mov_b32 s{sP+2}, {XG}")
            if not fast: S.v(19, f"v_add_u32 v{vSA}, {XP}, v{vSA}"); S.v(20, f"v_add_u32 v{vSB}, {XP}, v{vSB}")
            S = Ss[15]
            S.h(0, f"s_cmp_ge_u32 s{sGc}, 1")
            S.h(1, f"s_cselect_b32 s{sOut+2}, {191*2560 + 1024 + 32}, 0")
            S.h(2, f"s_add_u32 s{sOo}, s{sOo}, 256")
            S.h(3, f"s_mov_b32 s{sPr+2}, {5*XP + XD}")
            if not fast:
                S.v(19, f"v_add_u32 v{vLA}, {XP}, v{vLA}"); S.v(20, f"v_add_u32 v{vLB}, {XP}, v{vLB}")
            S.h(18, f"s_add_u32 s{sGc}, s{sGc}, 1")
            S.h(19, f"s_cmp_lt_u32 s{sGc}, 5")
            for n in range(16):
                a.c(f"G sub-step {n}")
                if n % 4 == 1:
                    tid = n + 5 + 16
                    pt = max((o[0], o[1]) for o in ops2 if o[2] == ("T", tid if tid < 29 else tid - 16) and (o[0] < 16) == (tid < 29))
                    cnt = len([o for o in ops2 if pt < (o[0], o[1]) < (n + 16, 22) and (o[0] >= 16 or (isinstance(o[2], tuple) and o[2][0] == "T"))])
                    end_sync(a, Ss[n], min(cnt, 63), 0)
                else:
                    def w():
                        k = min(len(a.lg), OPT['gkeep']); a.raw_wait(f"s_waitcnt lgkmcnt({k})"); a.lg = a.lg[len(a.lg) - k:] if k else []
                    Ss[n].h(22, w)
                Ss[n].emit(gmf(n + 1)[0])
        lab = "L_gl_fast" if fast else "L_gl_far"
        if OPT["qprof"] == 2 and fast: stamp(a, 5); stamp(a, 6, False)
        a.e(f"{lab}:")
        if OPT["qprof"] == 4: stamp_dyn(a, 4, sGc, 5)
        a.lg = []
        mark = len(a.ins); nops0 = a.nops; ns = len(spins)
        body(); lg_end = list(a.lg)
        del a.ins[mark:]; a.nops = nops0; del spins[ns:]
        body(); assert a.lg == lg_end
        a.e(f"s_cbranch_scc1 {lab}")
        if OPT["qprof"] == 2 and fast: stamp(a, 7); stamp(a, 8, False)
        if OPT["qprof"] == 4: stamp(a, 3)
        a.c("tail")
        for x in cvs(1): a.e(x)
        stamp(a, 2)
        vmw(a, 2)
        a._emit(chk_cmp[0]); a._emit("s_nop 4"); check()
        for i in range(3): emit_tile(a, xst(1, i))
        for k in range(4): emit_tile(a, xld(0, k))
        for op in late: a._emit(op)
        vmw(a, 8)
        a.e(f"v_add_u32 v{vVal}, 1, v{vVal}")
        a._emit(flag)
        emit_tile(a, [rst(j) for j in range(3)])
        a.e(f"s_mov_b32 s{sOo}, 1024")
        for k in range(4):
            vmw(a, 2 * (3 - k) + 4)
            for op in rops(0, k): a._emit(op)
            if k == 2: a._emit(poll)
        vmw(a, 0)
        a._emit(chk_cmp[0]); a._emit("s_nop 4"); check()
        for k in range(3): emit_tile(a, xld(1, k))
        for k in range(3):
            vmw(a, 2 * (2 - k))
            for op in rops(1, k): a._emit(op)
        for op in rcv: a._emit(op)
        emit_tile(a, [rst(j) for j in range(3)])
    g_phase(True)
    a.e("L_fin:")
    stamp(a, 9, False); stamp(a, 10)
    if OPT["leak"] >= 0:
        k = OPT["leak"]
        if k == 0: a.e("s_mov_b32 s79, 0")
        elif k == 9: a.e("s_sub_u32 s79, s98, s82"); a.e("s_lshr_b32 s79, s79, 4")
        else: a.e(f"s_sub_u32 s79, s{80+2*k}, s80")
        a.e("s_add_u32 s79, s79, 15000")
        if OPT["leakwg"] == 1: a.e("s_cmp_lt_u32 s2, 8"); a.e("s_cselect_b32 s79, s79, 0")
        if OPT["leakwg"] == 2: a.e("s_cmp_ge_u32 s2, 248"); a.e("s_cselect_b32 s79, s79, 0")
        if OPT["leakwg"] == 3: a.e("s_cmp_eq_u32 s2, 0"); a.e("s_cselect_b32 s79, s79, 0")
        a.e("L_leak:")
        a._emit("s_memrealtime s[76:77]"); a.raw_wait("s_waitcnt lgkmcnt(0)")
        a.e("s_sub_u32 s76, s76, s80"); a.e("s_cmp_lt_u32 s76, s79"); a.e("s_cbranch_scc1 L_leak")
    stamp_store(a, "L_end", 0)
    dbg_store(a)
    a.e("L_end:")
    a.e("s_endpgm")
    nsp = len(spins)
    for s_ in list(spins): spin_loop(*s_)
    a.e("L_hot_end:")
    a.e(".p2align 6")
    a.e("L_gx:")
    g_phase(False)
    a.e("s_branch L_fin")
    for s_ in list(spins[nsp:]): spin_loop(*s_)
    a.reset_counters()
    a.e("L_slow:")
    a.raw_wait("s_waitcnt vmcnt(0) lgkmcnt(0)")
    vKo, vVo, t0, t1 = 10, 11, P_ + 12, P_ + 13
    a.e("s_nop 7")
    a.e(f"v_and_b32 v{t0}, 7, v0"); a.e(f"v_lshlrev_b32 v{t0}, 10, v{t0}")
    a.e(f"v_bfe_u32 v{t1}, v0, 3, 1"); a.e(f"v_lshl_add_u32 v{t0}, v{t1}, 8, v{t0}")
    a.e(f"v_lshrrev_b32 v{t1}, 4, v0"); a.e(f"v_lshl_add_u32 v{vKo}, v{t1}, 4, v{t0}")
    a.e(f"v_bfe_u32 v{t0}, v0, 4, 1"); a.e(f"v_lshlrev_b32 v{t0}, 12, v{t0}")
    a.e(f"v_lshrrev_b32 v{t1}, 5, v0"); a.e(f"v_lshl_add_u32 v{t0}, v{t1}, 8, v{t0}")
    a.e(f"v_and_b32 v{t1}, 15, v0"); a.e(f"v_lshl_add_u32 v{vVo}, v{t1}, 1, v{t0}")
    for j in range(3): a.e(f"v_mov_b32 v{vT+j}, 0xff800000")
    def slow_qk(cinit):
        for u, kf in ((0, KF), (1, VF)):
            for ks in range(4): a.e(f"buffer_load_dwordx4 {vr(kf + 4*ks,4)}, v{vKo}, {sr(sK,4)}, s{sT2} offen offset:{u*512 + ks*64}")
        for u, kf in ((0, KF), (1, VF)):
            for j in range(3):
                for ks in range(4):
                    a.e(mf(Sr(u, j), kf + 4*ks, Qf(j, ks), (Nm(j) if cinit else None) if ks == 0 else Sr(u, j)))
    a.e(f"s_mov_b32 s{sT2}, s{sCur}")
    a.e(f"s_add_u32 s{sT3}, s{sCur}, 131072")
    a.e("L_slow_p1:")
    slow_qk(False)
    for j in range(3):
        for u in range(2):
            s = Sr(u, j)
            a.e(f"v_max3_f32 v{vT+j}, v{vT+j}, v{s}, v{s+1}")
            a.e(f"v_max3_f32 v{vT+j}, v{vT+j}, v{s+2}, v{s+3}")
    a.e(f"s_add_u32 s{sT2}, s{sT2}, 8192")
    a.e(f"s_cmp_lt_u32 s{sT2}, s{sT3}")
    a.e("s_cbranch_scc1 L_slow_p1")
    rowred(a, "v_max_f32", [vT, vT+1, vT+2], [Nm(j) for j in range(3)])
    for j in range(3):
        for r in range(4): a.e(f"v_sub_f32 v{Nm(j)+r}, 0, v{vT+j}")
    for r in range(96): a.e(f"v_mov_b32 v{O_+r}, 0")
    for r in range(12): a.e(f"v_accvgpr_write_b32 a{192+r}, 0")
    a.e(f"s_mov_b32 s{sT2}, s{sCur}")
    a.e("L_slow_p2:")
    slow_qk(True)
    for u in range(2):
        for k in range(12): a.e(ex(u, k))
    for u in range(2):
        for c in range(6): a.e(cv(u, 0, c))
    for half, fr in ((0, KF), (1, VF)):
        for hi in range(2):
            for i in range(4):
                for e in range(2):
                    for rp in range(2):
                        r = 2*rp + hi
                        a.e(f"buffer_load_ushort v{(S_ if hi else fr) + 4*i + 2*e + rp}, v{vVo}, {sr(sV,4)}, s{sT2} offen offset:{r*1024 + e*512 + (4*half+i)*32}")
        a.wait(vm="all")
        for x in range(16): a.e(f"v_lshl_or_b32 v{fr+x}, v{S_+x}, 16, v{fr+x}")
    for m in sm(2): a.e(m)
    for half, fr in ((0, KF), (1, VF)):
        for m in pv(2, half, fr): a.e(m)
    a.e(f"s_add_u32 s{sT2}, s{sT2}, 8192")
    a.e(f"s_cmp_lt_u32 s{sT2}, s{sT3}")
    a.e("s_nop 7")
    a.e("s_cbranch_scc1 L_slow_p2")
    for j in range(3): a.e(f"v_accvgpr_read_b32 v{vT+j}, a{La(j)[1]}")
    a.e("s_branch L_epi")
    return a

HDR = f"""; Fused attention blocks A and B in one launch. One workgroup per CU owns 4 heads of one batch: Q projection,
; softmax attention, output-projection partial (K = 512); the 8 workgroups of a batch then sum their partials.
; kernarg: 0 A_x, 8 A_k, 16 A_v, 24 A_wq, 32 A_wo, 40 B_x, 48 B_k, 56 B_v, 64 B_wq, 72 B_wo, 80 out, 88 debug, 96 ws
; @launch grid=(256,1,1) block=(256,1,1) lds={LDS}
.amdgcn_target "amdgcn-amd-amdhsa--gfx950"
.text
"""
def kern(name, a):
    return f".globl {name}\n.p2align 8\n.type {name},@function\n{name}:\n" + a.text()
def desc(name, nv, acc, ns):
    return f""".p2align 6
.amdhsa_kernel {name}
  .amdhsa_next_free_vgpr {nv}
  .amdhsa_next_free_sgpr {ns}
  .amdhsa_accum_offset {acc}
  .amdhsa_group_segment_fixed_size 0
  .amdhsa_kernarg_size 104
  .amdhsa_user_sgpr_count 2
  .amdhsa_user_sgpr_kernarg_segment_ptr 1
  .amdhsa_system_sgpr_workgroup_id_x 1
  .amdhsa_float_denorm_mode_32 3
.end_amdhsa_kernel
"""
if __name__ == "__main__":
    a = main_kernel()
    if OPT["nodma"] & 1: a.ins = [i for i in a.ins if not (i.kind == "dma" and " v1, " in i.text)]
    if OPT["nodma"] & 2: a.ins = [i for i in a.ins if not (i.kind == "dma" and " v1, " not in i.text)]
    if OPT["nodma"] & 4: a.ins = [i for i in a.ins if not (i.kind == "store" and ("v120," in i.text or "v121," in i.text))]
    if OPT["nox2"]: a.ins = [i for i in a.ins if not (i.kind == "vmem" and ("v121," in i.text))]
    if OPT["noload"]: a.ins = [i for i in a.ins if not (i.kind == "vmem" and ("v120," in i.text or "v121," in i.text))]
    if OPT["strip"] == 2:
        i0 = [k for k, i in enumerate(a.ins) if i.text == "L_head:"][0]; i1 = [k for k, i in enumerate(a.ins) if i.text == "L_epi:"][0]
        a.ins = a.ins[:i0] + [Ins("s_nop 4") if i.kind == "mfma" else i for i in a.ins[i0:i1] if i.kind not in ("lds", "trans", "valu")] + a.ins[i1:]
    if OPT["strip"] == 1:
        i0 = [k for k, i in enumerate(a.ins) if i.text == "L_head:"][0]; i1 = [k for k, i in enumerate(a.ins) if i.text == "L_epi:"][0]
        a.ins = a.ins[:i0] + [i for i in a.ins[i0:i1] if i.kind not in ("mfma", "lds", "trans", "valu")] + a.ins[i1:]
    ns = 102 if OPT["stamp"] else NSGPR
    open(sys.argv[1], "w").write(HDR + kern(NAME + "_kernel", a) + '.section .rodata,"a"\n' + desc(NAME + "_kernel", 512, 256, ns))
    print("instrs", len(a.ins), "nops", a.nops)
```

```python
import sys, math, struct
from asmlib import *

NAME = "concat_heads__mha_block_cached__gqa_block_cached__near_ridge"
def f32(x): return "0x%08x" % struct.unpack("<I", struct.pack("<f", x))[0]
OPT = dict(stamp=0, nodma=0, nocheck=0, touch=0, forceslow=0, map84=0, first=6, rot=1, strip=0, cyc=0, typ=2, track=1, nosync=0, sleep=1, opos=1, lag=4, noack=0, noload=0, stpol=1, nolw=0, krot=1, hrot=0, emu3=0, stag=0, fskip=0, cufrom=0, custep=1, woq=1, ibnt=0, ibt=14, ct2=1, inbox0=0, sparse1=1, noinbox=1, cthead=3, help=3, latekv=0, wot=0, lmax=3, thr=5, thr2=1, dyn=1, xmode=0, gkeep=0, leak=-1, leakwg=0, st0=0, norv=0, now0=0, gcap=0, qprof=0, la=7, ldpol=1, lmode=0, ldfix=0, nox2=0, wnt=0, xnt=0, t0x=0, t0w=0, ctouch=3, dbgout=0)
for a_ in sys.argv[2:]:
    k_, v_ = a_.split("="); assert k_ in OPT, k_; OPT[k_] = int(v_)

def R(x, n):
    t, i = x if isinstance(x, tuple) else ("v", x)
    return f"{t}{i}" if n == 1 else f"{t}[{i}:{i+n-1}]"
def off(x, d): return (x[0], x[1] + d) if isinstance(x, tuple) else x + d
def mf(d, a, b, c):
    return f"v_mfma_f32_16x16x32_bf16 {R(d,4)}, {R(a,4)}, {R(b,4)}, {'0' if c is None else R(c,4)}"

TILE = 8448
VB = 8 * TILE
XB = 16 * TILE
LDS = XB + 24576
NSLOT = 8
CH = NSLOT * 1024
PART = 240 * CH
STAMP_AT = 128 << 20
FLG = 120 << 20
XD = 7 * 6144
XP = 8 * XD
XG = 6 * XP
SPIN_MAX = 200000
def slot(m):
    m %= 16
    return (m & 1), (m >> 1) * TILE

vKV, vKA, vVA, vWAl, vWAh, vW = 1, 2, 3, 4, 5, 6
vT = 7
QF, NM, S_, P_, KF, VF, O_ = 12, 60, 72, 96, 120, 136, 160
vX0, vX1, vXA0, vXA1 = 156, 157, 158, 159
vTo, vD, vPt, vWo = 152, 153, 154, 155
def Qf(j, ks): return QF + 16 * j + 4 * ks
def Nm(j): return NM + 4 * j
def Sr(u, j): return S_ + 12 * u + 4 * j
def Pr(buf, j): return P_ + 12 * buf + 4 * j
def Or(i, j): return O_ + 12 * i + 4 * j
def Wreg(buf, i): return 12 + 32 * buf + 4 * i
def Xreg(buf, j, s): return 76 + 24 * buf + 8 * j + 4 * s
def Qacc(pos, i, j):
    k = 12 * i + 4 * j
    if pos == 0: return ("a", k)
    if pos == 1: return ("a", 96 + k)
    if pos == 2: return ("a", 192 + k) if k < 64 else 124 + (k - 64)
    return O_ + k
QBANK = {3: 0, 2: 48, 1: 96}
OBANK = {0: 144, 1: 96, 2: 48, 3: 0}
def La(j): return ("a", 192 + 4 * j)
ONES = ("a", 204)
def Greg(buf, i): return ("a", 192 + 32 * buf + 4 * i)
sX, sW, sK, sV, sWo, sP = 32, 36, 40, 44, 48, 52
sWv, sKVL, sWL, sXL, sOff, sOff2, sTmp, sR, sCur, sT2, sT3 = 60, 61, 62, 63, 64, 65, 66, 67, 68, 69, 70
sB, sU, sBr, sG, sXo, sPo = 71, 72, 73, 74, 75, 76
sCX, sNX, sLast, sS8, sWoB, sTask, sTyp = 56, 57, 58, 59, 77, 30, 31
sWq, sGc = 26, 27
sWq1, sJ, sRot, sPM, sPK = 20, 21, 22, 23, 24
sF, sD0, sD1 = 8, 12, 13
sJh, sXo1, sPre = 25, 77, 30
sBL, sMin, sKn, sMv, sMk, sKVv, sC1 = 57, 76, 23, 58, 59, 3, 25
sH = [4, 5, 6, 7]
NSGPR = 80

def stamp(a, k, real=True):
    if not OPT["stamp"]: return
    lg = list(a.lg)
    a.raw_wait("s_waitcnt lgkmcnt(0)")
    if OPT["cyc"] and 2 <= k <= 8: real = False
    a._emit(f"{'s_memrealtime' if real else 's_memtime'} s[{80+2*k}:{81+2*k}]")
    a.raw_wait("s_waitcnt lgkmcnt(0)")
def stamp_dyn(a, base, sidx, n):
    if not OPT["stamp"]: return
    a.raw_wait("s_waitcnt lgkmcnt(0)")
    a._emit("s_memtime s[78:79]" if OPT["cyc"] else "s_memrealtime s[78:79]")
    a.raw_wait("s_waitcnt lgkmcnt(0)")
    for q in range(n):
        a.e(f"s_cmp_eq_u32 s{sidx}, {q}")
        a.e(f"s_cselect_b32 s{80+2*(base+q)}, s78, s{80+2*(base+q)}")
def stamp_store(a, label, base):
    if not OPT["stamp"]: return
    a.e(f"s_cmp_lg_u32 s{sWv}, 0")
    a.e(f"s_cbranch_scc1 {label}")
    for k in range(11): a.e(f"v_mov_b32 v{16+k}, s{80+2*k}")
    a.e("s_lshl_b32 s78, s2, 6"); a.e(f"s_add_u32 s78, s78, {STAMP_AT + base*64}")
    a.e("v_mov_b32 v28, s78")
    a.e("s_mov_b64 exec, 1")
    a.e("global_store_dwordx4 v28, v[16:19], s[28:29]")
    a.e("global_store_dwordx4 v28, v[20:23], s[28:29] offset:16")
    a.e("global_store_dwordx4 v28, v[24:27], s[28:29] offset:32")

def dbg_store(a):
    if not OPT["dbgout"]: return
    l = "L_dbgskip"
    a.e("s_and_b32 s78, s2, 0xdf"); a.e("s_cmp_lg_u32 s78, 5"); a.e(f"s_cbranch_scc1 {l}")
    a.e("s_load_dwordx2 s[24:25], s[0:1], 88")
    for n, k in enumerate((3,4,5,6,7,8,2,10)):
        a.e(f"s_sub_u32 s79, s{80+2*k}, s80"); a.e(f"v_mov_b32 v{32+n}, s79")
    a.e("s_and_b32 s78, s2, 32"); a.e("v_mov_b32 v29, s78")
    a.raw_wait("s_waitcnt lgkmcnt(0)")
    a.e("global_store_dwordx4 v29, v[32:35], s[24:25]")
    a.e("global_store_dwordx4 v29, v[36:39], s[24:25] offset:16")
    a.e(f"{l}:")

def srd(a, d, lo, o, size):
    a.e(f"s_add_u32 s{d}, s{lo}, {o}")
    a.e(f"s_addc_u32 s{d+1}, s{lo+1}, 0")
    a.e(f"s_and_b32 s{d+1}, s{d+1}, 0xffff")
    a.e(f"s_mov_b32 s{d+2}, {size}")
    a.e(f"s_mov_b32 s{d+3}, 0x20000")
_lbl = [0]
def newlabel(p):
    _lbl[0] += 1
    return f"L_{p}_{_lbl[0]}"
class U(str): pass

def ldsbase(m):
    h, o = slot(m); return h * VB + o
def w_tile(m, n, nh=4):
    b = ldsbase(m); base = sWq if n < 4 * nh else sWq1
    rel = ((n % (4 * nh)) // nh) * 262144 + (nh - 1 - n % nh) * 256
    pol = ' nt' if OPT['wnt'] else ''
    return [([f"s_xor_b32 s{sOff}, s{base}, {rel}", f"s_add_u32 m0, s{sWL}, {b}"], f"buffer_load_dwordx4 v{vW}, {sr(sW,4)}, s{sOff} offen{pol} lds"),
            ([f"s_xor_b32 s{sOff}, s{base}, {rel + 8192}", f"s_add_u32 m0, s{sWL}, {b + 1032}"], f"buffer_load_dwordx4 v{vW}, {sr(sW,4)}, s{sOff} offen{pol} lds")]
def kv_tile(m, t):
    b = ldsbase(m); s = sV if m & 1 else sK
    assert t < 16
    so = f"s_xor_b32 s{sOff}, s{sCX}, {t * 8192}"
    return [([so, f"s_add_u32 m0, s{sKVL}, {b}"], f"buffer_load_dwordx4 v{vKV}, {sr(s,4)}, s{sOff} offen nt lds"),
            ([f"s_add_u32 m0, s{sKVL}, {b + 32}"], f"buffer_load_dwordx4 v{vKV}, {sr(s,4)}, s{sOff} offen offset:1024 nt lds")]
def unit_pre(base, add):
    return [f"s_add_u32 s{sMv}, s{base}, {add}", f"s_xor_b32 s{sOff}, s{sMv}, s{sRot}", f"s_bfe_u32 s{sMv}, s{sMv}, 0x3000d", f"s_mul_i32 s{sMv}, s{sMv}, {TILE}",
            f"s_add_u32 s{sMk}, s{base}, {add + 8192}", f"s_xor_b32 s{sOff2}, s{sMk}, s{sRot}", f"s_bfe_u32 s{sMk}, s{sMk}, 0x3000d", f"s_mul_i32 s{sMk}, s{sMk}, {TILE}"]
def unit_dma(so_v=None, so_k=None):
    so_v = sOff if so_v is None else so_v; so_k = sOff2 if so_k is None else so_k
    return [([f"s_add_u32 m0, s{sMv}, s{sKVv}"], f"buffer_load_dwordx4 v{vKV}, {sr(sV,4)}, s{so_v} offen nt lds"),
            (["s_add_u32 m0, m0, 32"], f"buffer_load_dwordx4 v{vKV}, {sr(sV,4)}, s{so_v} offen offset:1024 nt lds"),
            ([f"s_add_u32 m0, s{sMk}, s{sKVL}"], f"buffer_load_dwordx4 v{vKV}, {sr(sK,4)}, s{so_k} offen nt lds"),
            (["s_add_u32 m0, m0, 32"], f"buffer_load_dwordx4 v{vKV}, {sr(sK,4)}, s{so_k} offen offset:1024 nt lds")]
def place_guarded(a, S, steps, gaps):
    for (pre, d), g in zip(steps, gaps):
        for k, x in enumerate(pre): S.h(g - len(pre) + k, x)
        def site(d=d):
            l = newlabel("sk"); a.e(f"s_cbranch_vccnz {l}"); a._emit(d); a.e(f"{l}:")
        S.v(g, site)
def wo_tile(m):
    b = ldsbase(m); h, t = divmod(m % 16, 8); r = t >> 1; rel = (t & 1) * 81920
    st = [([f"s_add_u32 s{sOff}, s{sH[r]}, {rel}", f"s_add_u32 m0, s{sKVL}, {b}"], f"buffer_load_dwordx4 v{vWo}, {sr(sWo,4)}, s{sOff} offen lds"),
          ([f"s_add_u32 s{sOff}, s{sH[r]}, {rel + 1280}", f"s_add_u32 m0, s{sKVL}, {b + 1056}"], f"buffer_load_dwordx4 v{vWo}, {sr(sWo,4)}, s{sOff} offen lds")]
    return st, ([f"s_add_u32 s{sH[r]}, s{sH[r]}, s{(sD0, sD1)[h]}"] if t & 1 else [])
def emit_tile(a, steps):
    for pre, d in steps:
        for x in pre: a.e(x)
        a._emit(d)
def place_tile(a, S, steps, gaps):
    for (pre, d), g in zip(steps, gaps):
        for k, x in enumerate(pre): S.h(g - len(pre) + k, x)
        S.v(g, lambda d=d: a._emit(d))
def rd_w(dst, m, i):
    h, o = slot(m); p, u = divmod(i, 2)
    return [f"ds_read_b64_tr_b16 {R(off(dst, 2*e), 2)}, v{(vWAl, vWAh)[h]} offset:{o + e*512 + p*64 + u*8}" for e in range(2)]
def vmw(a, n): a.raw_wait(f"s_waitcnt vmcnt({n})")

def rowred(a, op, regs, tmps):
    for w in (32, 16):
        for r, t in zip(regs, tmps): a.e(f"v_mov_b32 v{t}, v{r}")
        for r, t in zip(regs, tmps): a.e(f"v_permlane{w}_swap_b32 v{r}, v{t}")
        for r, t in zip(regs, tmps): a.e(f"{op} v{r}, v{r}, v{t}")

RDPOS = [0,1,2,3,4,5,7,8,9,10,12,13,14,15,17,18]
RDPOS_X = [2,3,5,6,8,9,11,12,14,15,16,17,18,19,20,21]

def code_touch(a, lo, hi, vaddr, vdst):
    if not OPT["ctouch"]: return
    l = newlabel("pc")
    a.e("s_getpc_b64 s[14:15]")
    a.e(f"{l}:")
    a.e(f"s_add_u32 s14, s14, {lo}-{l}"); a.e("s_addc_u32 s15, s15, 0")
    a.e(f"s_lshr_b32 s{sT2}, s2, 3"); a.e(f"s_lshl_b32 s{sT2}, s{sT2}, 2"); a.e(f"s_add_u32 s{sT2}, s{sT2}, s{sWv}"); a.e(f"s_lshl_b32 s{sT2}, s{sT2}, 7")
    a.e(f"v_and_b32 v{vaddr}, 3, v0"); a.e(f"v_lshlrev_b32 v{vaddr}, 14, v{vaddr}"); a.e(f"v_add_u32 v{vaddr}, s{sT2}, v{vaddr}")
    a.e(f"v_min_u32 v{vaddr}, {hi}-{lo}-4, v{vaddr}")
    a._emit(f"global_load_dword v{vdst}, v{vaddr}, s[14:15]")

def inbox_addr(va, vt):
    sc = [f"s_mul_i32 s{sT2}, s{sG}, {XG}", f"s_mul_i32 s{sT3}, s{sU}, {XD}", f"s_add_u32 s{sT2}, s{sT2}, s{sT3}",
          f"s_mul_i32 s{sT3}, s{sWv}, 1536", f"s_add_u32 s{sT2}, s{sT2}, s{sT3}", f"s_add_u32 s{sT2}, s{sT2}, {5*XP}"]
    ve = [f"v_lshrrev_b32 v{va}, 3, v0", f"v_min_u32 v{va}, 6, v{va}", f"v_mul_u32_u24 v{va}, 6144, v{va}", f"v_and_b32 v{vt}, 7, v0",
          f"v_min_u32 v{vt}, 5, v{vt}", f"v_lshl_add_u32 v{va}, v{vt}, 7, v{va}", f"v_add_u32 v{va}, s{sT2}, v{va}"]
    return sc, ve

def late_consts(a):
    w_ = 2 if OPT["wot"] else 1
    a.e(f"v_min_u32 v{vTo}, {20*w_-1}, v0"); a.e(f"v_lshlrev_b32 v{vTo}, 7, v{vTo}")
    a.e(f"s_mul_i32 s{sTmp}, s{sB}, {10240*w_}"); a.e(f"s_mul_i32 s{sT2}, s{sWv}, {2560*w_}"); a.e(f"s_add_u32 s{sTmp}, s{sTmp}, s{sT2}")
    a.e(f"v_add_u32 v{vTo}, s{sTmp}, v{vTo}")
    a.e("v_and_b32 v9, 56, v0"); a.e(f"s_lshl_b32 s{sTmp}, s{sWv}, 1"); a.e(f"v_add_u32 v9, s{sTmp}, v9")
    a.e("v_mul_u32_u24 v9, 1280, v9"); a.e("v_and_b32 v8, 7, v0")
    a.e(f"s_xor_b32 s{sTmp}, s{sU}, 7"); a.e(f"s_and_b32 s{sTmp}, s{sTmp}, 3"); a.e(f"s_lshl_b32 s{sTmp}, s{sTmp}, 1"); a.e(f"v_xor_b32 v8, s{sTmp}, v8")
    a.e(f"v_lshl_add_u32 v{vWo}, v8, 4, v9")

def x_block(j, rel, base_s, op="s_add_u32", lds=0):
    so = f"{op} s{sOff2}, s{base_s}, {rel + j*20480}" if base_s is not None else f"s_mov_b32 s{sOff2}, {rel + j*20480}"
    return [([so, f"s_add_u32 m0, s{sXL}, {j*2048 + lds}"], f"buffer_load_dwordx4 v{vX0}, {sr(sX,4)}, s{sOff2} offen{' nt' if OPT['xnt'] else ''} lds"),
            ([f"s_add_u32 m0, s{sXL}, {j*2048 + 1024 + lds}"], f"buffer_load_dwordx4 v{vX1}, {sr(sX,4)}, s{sOff2} offen{' nt' if OPT['xnt'] else ''} lds")]
def rd_xb(dst, j, s): return f"ds_read_b128 {R(dst,4)}, v{(vXA0, vXA1)[s]} offset:{j*2048}"

def end_sync(a, S, vm, keep=2):
    def w():
        n = min(len(a.lg), keep)
        a.raw_wait(f"s_waitcnt vmcnt({vm}) lgkmcnt({n})")
        a.lg = a.lg[len(a.lg) - n:] if n else []
    S.h(22, w); S.h(23, "s_barrier")

def convert(a, acc, dests, tmp):
    a.e(f"s_mov_b32 s{sTmp}, {f32(math.log2(math.e) / math.sqrt(128.0))}")
    k = 0
    for pos, db in enumerate(dests):
        for p in range(4):
            for j in range(3):
                t = tmp[k % len(tmp)]; k += 1
                src = []
                for u in range(2):
                    o = acc(pos, 2*p + u, j)
                    for r in range(4):
                        if isinstance(o, tuple):
                            a.e(f"v_accvgpr_read_b32 v{t+4*u+r}, a{o[1]+r}"); src.append(t + 4*u + r)
                        else: src.append(o + r)
                for x in src: a.e(f"v_mul_f32 v{x}, s{sTmp}, v{x}")
                d = Qf(j, p) if db is None else t + 8
                for r in range(4): a.e(f"v_cvt_pk_bf16_f32 v{d+r}, v{src[2*r]}, v{src[2*r+1]}")
                if db is not None:
                    for r in range(4): a.e(f"v_accvgpr_write_b32 a{db + 12*p + 4*j + r}, v{d+r}")

def gcv(m, h):
    i, j = divmod(m, 3); p, u = divmod(i, 2); o = Or(i, j)
    return f"v_cvt_pk_bf16_f32 v{S_ + 12*p + 4*j + 2*u + h}, v{o+2*h}, v{o+2*h+1}"
CVS = [gcv(m, h) for m in range(24) for h in range(2)]
def gst(q, rel, base_s):
    p, j = divmod(q, 3)
    return ([f"s_add_u32 s{sOff2}, s{base_s}, {rel + (p*12 + j)*CH}"], f"buffer_store_dwordx4 {vr(S_ + 12*p + 4*j,4)}, v{vPt}, {sr(sP,4)}, s{sOff2} offen{['', ' sc1', ' nt', ' sc0'][OPT['stpol']]}")
def cv_plans():
    caps = [0 if g in (6, 11) else (1 if g in RDPOS else 2) for g in range(24)]
    last = []; ci = 0
    for g, cp in enumerate(caps):
        for _ in range(cp):
            if ci < 48 and ci // 2 + 4 <= g: last.append((g, ci)); ci += 1
    n = ci; first = []
    for g, cp in enumerate(caps):
        for _ in range(cp):
            if ci < 48: first.append((g, ci)); ci += 1
    assert ci == 48 and all(c // 2 > g for g, c in first)
    return last, first, n
PLAN_LAST, PLAN_FIRST, NLAST = cv_plans()

def Q2acc(pos, i, j): return (56 if pos == 0 else O_) + 12 * i + 4 * j
def X2reg(buf, j, s): return ("a", 24 * buf + 8 * j + 4 * s)
def q2mf(n, first):
    s, pos = divmod(n % 8, 2)
    return [mf(Q2acc(pos, i, j), Greg(n & 1, i), X2reg(s >> 1, j, s & 1), None if first and n < 2 else Q2acc(pos, i, j)) for i in range(8) for j in range(3)]

def main_kernel():
    a = Asm()
    T = OPT["typ"]
    if OPT["st0"]: a._emit("s_memrealtime s[80:81]")
    a.e("s_cmp_ge_u32 s2, 256")
    a.e("s_cbranch_scc1 L_end")
    a.e("s_load_dwordx16 s[4:19], s[0:1], 0")
    a.e("s_load_dwordx4 s[20:23], s[0:1], 64")
    a.e("s_load_dwordx2 s[28:29], s[0:1], 96")
    a.e(f"s_bfe_u32 s{sBr}, s2, 0x10002")
    if not OPT["map84"]:
        a.e(f"s_and_b32 s{sB}, s2, 3"); a.e(f"s_lshl_b32 s{sB}, s{sB}, 2")
        a.e(f"s_bfe_u32 s{sTmp}, s2, 0x20003"); a.e(f"s_add_u32 s{sB}, s{sB}, s{sTmp}")
        a.e(f"s_lshr_b32 s{sU}, s2, 5")
    elif OPT["map84"] == 2:
        a.e(f"s_bfe_u32 s{sB}, s2, 0x40003")
        a.e(f"s_and_b32 s{sU}, s2, 3"); a.e(f"s_lshl_b32 s{sU}, s{sU}, 1")
        a.e(f"s_lshr_b32 s{sTmp}, s2, 7"); a.e(f"s_add_u32 s{sU}, s{sU}, s{sTmp}")
    else:
        a.e(f"s_and_b32 s{sB}, s2, 1"); a.e(f"s_lshl_b32 s{sB}, s{sB}, 3")
        a.e(f"s_bfe_u32 s{sTmp}, s2, 0x30003"); a.e(f"s_add_u32 s{sB}, s{sB}, s{sTmp}")
        a.e(f"s_bfe_u32 s{sU}, s2, 0x10001"); a.e(f"s_lshl_b32 s{sU}, s{sU}, 2")
        a.e(f"s_lshr_b32 s{sTmp}, s2, 6"); a.e(f"s_add_u32 s{sU}, s{sU}, s{sTmp}")
    a.e(f"s_lshl_b32 s{sG}, s{sBr}, 4"); a.e(f"s_add_u32 s{sG}, s{sG}, s{sB}")
    if T == 4: a.e(f"s_bfe_u32 s{sTyp}, s2, 0x10003")
    elif T == 3: a.e(f"s_andn2_b32 s{sTyp}, 1, s2")
    elif T == 2: a.e(f"s_and_b32 s{sTyp}, s2, 1")
    else: a.e(f"s_mov_b32 s{sTyp}, {T}")
    a.e("v_lshrrev_b32 v7, 6, v0")
    a.e("v_and_b32 v0, 63, v0")
    a.e(f"v_readfirstlane_b32 s{sWv}, v7")
    a.e("v_and_b32 v8, 15, v0")
    a.e("v_lshrrev_b32 v9, 4, v0")
    a.e("v_and_b32 v10, 1, v9"); a.e("v_lshlrev_b32 v10, 4, v10")
    a.e("v_lshrrev_b32 v11, 1, v9"); a.e("v_lshl_add_u32 v10, v11, 2, v10")
    a.e("v_lshrrev_b32 v11, 1, v7"); a.e("v_lshl_add_u32 v10, v11, 3, v10")
    a.e("v_and_b32 v11, 1, v7"); a.e("v_lshl_add_u32 v10, v11, 1, v10")
    a.e("v_lshlrev_b32 v10, 13, v10"); a.e(f"v_lshl_add_u32 v{vW}, v8, 4, v10")
    a.e("v_mul_u32_u24 v10, 48, v7"); a.e("v_lshrrev_b32 v11, 3, v0"); a.e("v_add_u32 v10, v10, v11")
    a.e("v_mul_u32_u24 v10, 1280, v10")
    a.e("v_and_b32 v11, 7, v0"); a.e("v_xor_b32 v11, v11, v9")
    a.e(f"v_lshl_add_u32 v{vX0}, v11, 4, v10")
    a.e("v_xor_b32 v11, 4, v11"); a.e("v_add_u32 v10, 10240, v10")
    a.e(f"v_lshl_add_u32 v{vX1}, v11, 4, v10")
    a.e(f"s_mul_i32 s{sKVL}, s{sWv}, 2112")
    a.e(f"s_mov_b32 s{sWL}, s{sKVL}")
    a.e(f"s_mul_i32 s{sXL}, s{sWv}, 6144"); a.e(f"s_add_u32 s{sXL}, s{sXL}, {XB}")
    a.e(f"s_mov_b32 s{sCur}, 0"); a.e(f"s_mov_b32 s{sXo}, 0"); a.e(f"s_mov_b32 s{sWq}, 0")
    a.raw_wait("s_waitcnt lgkmcnt(0)")
    a.e(f"s_cmp_eq_u32 s{sBr}, 0")
    a.e("s_cselect_b64 s[4:5], s[4:5], s[14:15]")
    a.e("s_cselect_b64 s[6:7], s[6:7], s[16:17]")
    a.e("s_cselect_b64 s[8:9], s[8:9], s[18:19]")
    a.e("s_cselect_b64 s[10:11], s[10:11], s[20:21]")
    a.e("s_cselect_b64 s[12:13], s[12:13], s[22:23]")
    a.e("s_load_dwordx4 s[16:19], s[0:1], 80")
    a.e(f"s_mul_i32 s{sTmp}, s{sB}, 245760")
    srd(a, sX, 4, f"s{sTmp}", 245760)
    a.e(f"s_lshl_b32 s{sTmp}, s{sU}, 10")
    srd(a, sW, 10, f"s{sTmp}", 639 * 8192 + 1024)
    if OPT["krot"]: a.e(f"s_xor_b32 s{sJ}, s{sB}, s{sU}"); a.e(f"s_and_b32 s{sJ}, s{sJ}, 3")
    else: a.e(f"s_mov_b32 s{sJ}, 0")
    if OPT["hrot"]: a.e(f"s_cmp_lg_u32 s{sTyp}, 0"); a.e(f"s_cselect_b32 s{sJh}, 1, 3"); a.e(f"s_and_b32 s{sJh}, s{sJh}, s{sJ}")
    else: a.e(f"s_mov_b32 s{sJh}, 0")
    a.e(f"s_lshl_b32 s{sWq}, s{sJ}, 18"); a.e(f"s_lshl_b32 s{sTmp}, s{sJh}, 8"); a.e(f"s_or_b32 s{sWq}, s{sWq}, s{sTmp}"); a.e(f"s_add_u32 s{sWq1}, s{sWq}, {1 << 20}")
    a.e(f"s_lshr_b32 s{sXo}, s{sJ}, 1"); a.e(f"s_lshl_b32 s{sXo}, s{sXo}, 7")
    if not OPT['st0']: stamp(a, 0)
    stamp(a, 1, False)
    def common_consts():
        if OPT["rot"]:
            a.e(f"s_lshr_b32 s{sRot}, s2, 4"); a.e(f"s_xor_b32 s{sRot}, s{sRot}, s2"); a.e(f"s_and_b32 s{sRot}, s{sRot}, 15"); a.e(f"s_lshl_b32 s{sRot}, s{sRot}, 13")
        else: a.e(f"s_mov_b32 s{sRot}, 0")
        a.e(f"s_lshl_b32 s{sCur}, s{sJh}, 17"); a.e(f"s_or_b32 s{sRot}, s{sRot}, s{sCur}")
        assert not OPT["hrot"]
        a.e(f"s_mov_b32 s{sCX}, s{sRot}"); a.e(f"s_add_u32 s{sKVv}, s{sKVL}, {VB}")
        a.e("v_bfe_u32 v10, v0, 2, 3")
        a.e("v_lshrrev_b32 v11, 1, v10"); a.e("v_lshlrev_b32 v11, 6, v11"); a.e(f"v_lshl_add_u32 v{vWAl}, v10, 10, v11")
        a.e("v_and_b32 v11, 1, v10"); a.e(f"v_lshl_add_u32 v{vWAl}, v11, 3, v{vWAl}")
        a.e("v_lshrrev_b32 v11, 5, v0"); a.e(f"v_lshl_add_u32 v{vWAl}, v11, 8, v{vWAl}")
        a.e("v_mul_u32_u24 v10, 1056, v10"); a.e("v_lshl_add_u32 v10, v11, 8, v10")
        a.e("v_and_b32 v11, 3, v0"); a.e(f"v_lshl_add_u32 v{vWAl}, v11, 4, v{vWAl}")
        a.e(f"v_lshl_add_u32 v10, v11, 3, v10"); a.e(f"v_add_u32 v{vVA}, {VB}, v10")
        a.e(f"v_add_u32 v{vWAh}, {VB}, v{vWAl}")
        a.e("v_and_b32 v10, 7, v8"); a.e("v_mul_u32_u24 v10, 1056, v10")
        a.e("v_lshrrev_b32 v11, 3, v8"); a.e(f"v_lshl_add_u32 v10, v11, 8, v10")
        a.e(f"v_lshl_add_u32 v{vKA}, v9, 4, v10")
        a.e("v_lshlrev_b32 v10, 4, v0"); a.e(f"v_lshl_add_u32 v{vKV}, v7, 11, v10")
        a.e(f"v_lshlrev_b32 v10, 7, v8"); a.e(f"v_add_u32 v10, s{sXL}, v10")
        a.e("v_lshrrev_b32 v11, 1, v8"); a.e("v_xor_b32 v11, v11, v9")
        a.e(f"s_and_b32 s{sTmp}, s{sJ}, 1"); a.e(f"s_lshl_b32 s{sTmp}, s{sTmp}, 2"); a.e(f"v_xor_b32 v11, s{sTmp}, v11")
        a.e(f"v_lshl_add_u32 v{vXA0}, v11, 4, v10")
        a.e("v_xor_b32 v11, 4, v11"); a.e(f"v_lshl_add_u32 v{vXA1}, v11, 4, v10")
        a.e(f"s_lshl_b32 s{sTmp}, s{sB}, 3"); a.e(f"s_add_u32 s{sTmp}, s{sTmp}, s{sU}"); a.e(f"s_lshl_b32 s{sTmp}, s{sTmp}, 19")
        srd(a, sK, 6, f"s{sTmp}", 4 * 131072)
        srd(a, sV, 8, f"s{sTmp}", 4 * 131072)
        a.e(f"s_mul_i32 s{sTmp}, s{sU}, {512*1280}")
        srd(a, sWo, 12, f"s{sTmp}", 512 * 1280)
        for r in range(4): a.e(f"s_xor_b32 s{sH[r]}, s{sJh}, {r}"); a.e(f"s_mul_i32 s{sH[r]}, s{sH[r]}, 163840")
        a.e(f"s_mov_b32 s{sKn}, 0"); a.e(f"s_mov_b32 s{sMin}, {3*8192}")
        a.e(f"s_cmp_lt_u32 s{sU}, 4")
        a.e(f"s_cselect_b32 s{sTmp}, 128, 0"); a.e(f"s_mov_b32 s{sD0}, 128"); a.e(f"s_cselect_b32 s{sD0}, -128, s{sD0}")
        a.e(f"s_sub_u32 s{sD1}, 256, s{sD0}")
        for r in range(4): a.e(f"s_add_u32 s{sH[r]}, s{sH[r]}, s{sTmp}")
        a.e(f"s_lshl_b32 s{sTmp}, s{sG}, 12"); a.e(f"s_add_u32 s{sTmp}, s{sTmp}, {FLG}")
        srd(a, sF, 28, f"s{sTmp}", 4096)
    def touch0(three):
        if OPT["t0x"]:
            a.e("v_min_u32 v10, 59, v0"); a.e("v_lshlrev_b32 v10, 7, v10")
            a.e(f"s_lshl_b32 s{sTmp}, s{sU}, 2"); a.e(f"s_add_u32 s{sTmp}, s{sTmp}, s{sWv}"); a.e(f"s_mul_i32 s{sTmp}, s{sTmp}, 7680")
            a._emit(f"buffer_load_dword v11, v10, {sr(sX,4)}, s{sTmp} offen")
        if OPT["t0w"] and three:
            a.e("v_lshrrev_b32 v14, 2, v0"); a.e("v_lshlrev_b32 v14, 13, v14"); a.e("v_and_b32 v15, 3, v0"); a.e("v_lshl_add_u32 v14, v15, 7, v14")
            a.e(f"s_and_b32 s{sTmp}, s{sB}, 3"); a.e(f"s_lshl_b32 s{sTmp}, s{sTmp}, 2"); a.e(f"s_add_u32 s{sTmp}, s{sTmp}, s{sWv}"); a.e(f"s_lshl_b32 s{sTmp}, s{sTmp}, 17")
            for k in range(3):
                a.e(f"s_add_u32 s{sT2}, s{sTmp}, {k*256*8192}")
                a._emit(f"buffer_load_dword v{16+k}, v14, {sr(sW,4)}, s{sT2} offen")
    def part_srd(slot_expr, size):
        a.e(f"s_mul_i32 s{sTmp}, s{sG}, {PART}"); slot_expr(); a.e(f"s_lshl_b32 s{sT2}, s{sT2}, 10"); a.e(f"s_add_u32 s{sTmp}, s{sTmp}, s{sT2}")
        srd(a, sP, 28, f"s{sTmp}", size)
    NF = OPT["first"]
    LA = OPT['la']
    def wpos(n): return 8 + n % 8
    def rd_x(buf): return [rd_xb(Xreg(buf, j, s), j, s) for s in range(2) for j in range(3)]
    NF = 2
    def setup(lab):
        common_consts()
        touch0(False)
        code_touch(a, lab, "L_altwo" if not OPT["ct2"] else ("L_p1" if lab == "L_q" else "L_enter"), 10, 11)
        a.e(f"s_lshl_b32 s{sTmp}, s{sU}, 9"); a.e(f"s_lshl_b32 s{sT2}, s{sWv}, 7"); a.e(f"s_add_u32 s{sTmp}, s{sTmp}, s{sT2}")
        a.e("v_and_b32 v8, 7, v0"); a.e(f"v_lshlrev_b32 v8, 2, v8"); a.e("v_mov_b32 v7, 0")
        a._emit(f"buffer_store_dword v7, v8, {sr(sF,4)}, s{sTmp} offen sc1")
        a.e(f"s_mov_b32 s{sR}, 0")
        emit_tile(a, kv_tile(0, 0))
    def bootstrap():
        l = newlabel("boot")
        a.e(f"s_cmp_lg_u32 s{sWv}, 0"); a.e(f"s_cbranch_scc1 {l}")
        a.e(f"s_lshl_b32 s{sTmp}, s{sG}, 2"); a.e(f"s_add_u32 s{sTmp}, s{sTmp}, 128")
        a.e(f"v_mov_b32 v157, s{sTmp}")
        a.e(f"s_getreg_b32 s{sT2}, hwreg(HW_REG_XCC_ID, 0, 4)")
        a.e(f"s_mul_i32 s{sT3}, s{sT2}, s{sT2}"); a.e(f"s_lshl_b32 s{sT3}, s{sT3}, 8"); a.e(f"s_add_u32 s{sT3}, s{sT3}, s{sT2}")
        a.e(f"s_lshl_b32 s{sT3}, s{sT3}, 8"); a.e(f"s_add_u32 s{sPK}, s{sT3}, 1"); a.e(f"v_mov_b32 v158, s{sPK}")
        a.e("s_mov_b64 exec, 1")
        a._emit("global_atomic_add v157, v158, s[18:19]")
        a.e("s_mov_b64 exec, -1")
        a.e(f"{l}:")
    if OPT["stag"]:
        a.e(f"s_and_b32 s{sT2}, s{sB}, 3") if OPT["stag"] < 100 else a.e(f"s_and_b32 s{sT2}, s{sU}, 3")
        a.e("L_stag:"); a.e(f"s_cmp_eq_u32 s{sT2}, 0"); a.e("s_cbranch_scc1 L_stag2"); a.e(f"s_sleep {OPT['stag'] % 100}"); a.e(f"s_sub_u32 s{sT2}, s{sT2}, 1"); a.e("s_branch L_stag"); a.e("L_stag2:")
    a.e(f"s_cmp_lg_u32 s{sTyp}, 0")
    a.e("s_cbranch_scc1 L_p1")
    for j in range(3): emit_tile(a, x_block(j, 0, sXo))
    for n in range(NF): emit_tile(a, w_tile(wpos(n), n))
    setup("L_q")
    if OPT["help"]:
        a.e(f"s_mov_b32 s{sX+2}, {5*245760}")
        a.e("v_min_u32 v8, 59, v0"); a.e("v_lshlrev_b32 v8, 7, v8")
        a.e(f"s_lshl_b32 s{sTmp}, s{sU}, 2"); a.e(f"s_add_u32 s{sTmp}, s{sTmp}, s{sWv}"); a.e(f"s_mul_i32 s{sTmp}, s{sTmp}, 7680"); a.e(f"s_add_u32 s{sTmp}, s{sTmp}, {4*245760}")
        a._emit(f"buffer_load_dword v9, v8, {sr(sX,4)}, s{sTmp} offen")
        if OPT["help"] & 2:
            a.e("v_lshrrev_b32 v8, 2, v0"); a.e("v_lshlrev_b32 v8, 13, v8"); a.e("v_and_b32 v10, 3, v0"); a.e("v_lshl_add_u32 v8, v10, 7, v8")
            a.e(f"s_lshr_b32 s{sTmp}, s{sB}, 3"); a.e(f"s_lshl_b32 s{sTmp}, s{sTmp}, 2"); a.e(f"s_and_b32 s{sT2}, s{sB}, 3"); a.e(f"s_add_u32 s{sTmp}, s{sTmp}, s{sT2}")
            a.e(f"s_lshl_b32 s{sTmp}, s{sTmp}, 2"); a.e(f"s_add_u32 s{sTmp}, s{sTmp}, s{sWv}"); a.e(f"s_mul_i32 s{sTmp}, s{sTmp}, {20*8192}")
            a._emit(f"buffer_load_dword v9, v8, {sr(sW,4)}, s{sTmp} offen")
            a.e(f"s_add_u32 s{sTmp}, s{sTmp}, {4*8192}")
            a._emit(f"buffer_load_dword v9, v8, {sr(sW,4)}, s{sTmp} offen")
    a.e(f"s_mov_b32 s{sPre}, 15")
    for r in range(256):
        if r % 40 == 0 and NF + r // 40 < LA: emit_tile(a, w_tile(wpos(NF + r // 40), NF + r // 40))
        a.e(f"v_accvgpr_write_b32 a{r}, 0")
    for r in list(range(124, 156)) + list(range(160, 256)): a.e(f"v_mov_b32 v{r}, 0")
    if OPT["woq"]:
        a.e(f"s_lshr_b32 s{sTmp}, s{sB}, 3"); a.e(f"s_lshl_b32 s{sTmp}, s{sTmp}, 2"); a.e(f"s_and_b32 s{sT2}, s{sB}, 3"); a.e(f"s_add_u32 s{sTmp}, s{sTmp}, s{sT2}")
        a.e(f"s_lshl_b32 s{sTmp}, s{sTmp}, 2"); a.e(f"s_add_u32 s{sTmp}, s{sTmp}, s{sWv}"); a.e(f"s_mul_i32 s{sTmp}, s{sTmp}, 5120")
        a.e("v_min_u32 v7, 39, v0"); a.e(f"v_lshl_add_u32 v7, v7, 7, s{sTmp}")
    a.raw_wait(f"s_waitcnt vmcnt({2 * (LA - 2)}) lgkmcnt(0)")
    a.e("s_barrier")
    for r in rd_x(0): a.e(r)
    for i in range(8):
        for r in rd_w(Wreg(0, i), wpos(0), i): a.e(r)
    a.raw_wait("s_waitcnt lgkmcnt(0)"); a.lg = []
    if OPT["qprof"] == 1: stamp(a, 5); stamp(a, 6, False)
    def qmf(n):
        s, pos = divmod(n % 16, 4)
        return [mf(Qacc(pos, i, j), Wreg(n & 1, i), Xreg((s >> 1) & 1, j, s & 1), Qacc(pos, i, j)) for i in range(8) for j in range(3)]
    def early(S, half, h0, gaps):
        pre = [x.replace(f"s{sOff},", f"s{sOff2},") for x in unit_pre(sKn, 0)[4*half:4*half+4]]
        if half == 0: pre = [f"s_cmp_ge_u32 s{sKn}, s{sMin}", "s_cselect_b64 vcc, -1, 0", f"s_cselect_b32 s{sC1}, 0, 8192"] + pre
        else: pre = pre + [f"s_add_u32 s{sKn}, s{sKn}, s{sC1}"]
        for x, h_ in zip(pre, h0): S.h(h_, x)
        place_guarded(a, S, unit_dma(sOff2, sOff2)[2*half:2*half+2], gaps)
    def q_group(last):
        for n in range(16):
            a.c(f"Q sub-step {n}{' (last group)' if last else ''}")
            S = Sched(a, qmf(n))
            fin = last and n == 15
            q = n % 8
            xrd = q in (6, 7) and not (last and n >= 8)
            if not fin:
                rds = []
                for i in range(8): rds += rd_w(Wreg((n + 1) & 1, i), wpos(n + 1), i)
                for r, p in zip(rds, RDPOS): S.v(p, r)
                m = n + LA
                if not last or m < 16: place_tile(a, S, w_tile(wpos(m), m), (6, 11))
                if last and 8 <= n <= 13: place_tile(a, S, kv_tile(n - 1, (n - 1) >> 1), (16, 19))
                if not (last and n == 14):
                    hi = min(m, 15) if last else m
                    ykv = len([k for k in range(8, 14) if n + 2 - LA <= k <= n]) if last else 0
                    end_sync(a, S, 2 * (hi - (n + 2)) + 2 * ykv, 5 if xrd else 2)
            if xrd:
                rx = rd_x(((n >> 3) + 1) & 1)[3*(q-6):3*(q-6)+3]
                if q == 6: S.h(16, lambda: vmw(a, 8))
                for r, p in zip(rx, (19, 20, 21)): S.v(p, (r, "xr"))
            if q in (0, 1, 2) and not (last and n >= 8):
                if q == 0: S.h(12, lambda: a.wait(lg="xr"))
                place_tile(a, S, x_block(q, 128, sXo, "s_xor_b32") if n < 8 else x_block(q, 256, sXo), (16, 19))
            if n in (11, 12) and not last: early(S, n - 11, (0, 1, 2, 3, 7, 8, 12), (16, 19))
            if n == 4 and not last and OPT["woq"]:
                S.h(13, f"s_lshr_b32 s{sOff2}, s{sXo}, 8"); S.h(14, f"s_mul_i32 s{sOff2}, s{sOff2}, 163840")
                S.v(16, lambda: a._emit(f"buffer_load_dword v9, v7, {sr(sWo,4)}, s{sOff2} offen"))
            if n == 15 and not last:
                S.h(12, f"s_mov_b32 s{sWq}, s{sWq1}")
                S.h(13, f"s_add_u32 s{sWq1}, s{sWq1}, {1 << 20}")
                S.h(14, f"s_add_u32 s{sXo}, s{sXo}, 256")
                S.h(15, f"s_cmp_lt_u32 s{sXo}, 1024")
            S.emit(None if fin else qmf(n + 1)[0])
    a.e(".p2align 6")
    a.e("L_q:")
    if OPT["qprof"] == 3:
        a.e(f"s_lshr_b32 s{sT3}, s{sXo}, 8"); stamp_dyn(a, 4, sT3, 4)
    mark = len(a.ins); nops0 = a.nops
    q_group(False)
    lg_end = list(a.lg)
    del a.ins[mark:]; a.nops = nops0
    q_group(False)
    assert a.lg == lg_end
    a.e("s_cbranch_scc1 L_q")
    if OPT["ct2"]: code_touch(a, "L_enter", "L_q2b" if T else "L_altwo", 10, 11)
    if OPT["qprof"] == 3: stamp(a, 8)
    q_group(True)
    if OPT["qprof"] == 1: stamp(a, 7); stamp(a, 8, False)
    stamp(a, 3)
    a.c("Q conversion")
    convert(a, Qacc, [QBANK[3], QBANK[2], QBANK[1], None], [60 + 12 * k for k in range(5)])
    late_consts(a)
    bootstrap()
    a.e("s_branch L_enter")
    a.e("L_p1:")
    a.lg = []
    for j in range(3): emit_tile(a, x_block(j, 0, sXo, lds=VB-XB))
    for n in range(NF): emit_tile(a, w_tile(wpos(n), n, 2))
    a.e(f"s_xor_b32 s{sXo1}, s{sXo}, 128")
    for j in range(3): emit_tile(a, x_block(j, 0, sXo1))
    setup("L_q2")
    late_consts(a)
    a.e(f"s_mov_b32 s{sPre}, 1")
    for n in range(NF, LA): emit_tile(a, w_tile(wpos(n), n, 2))
    a.e(f"v_subrev_u32 v12, {XB-VB}, v{vXA0}"); a.e(f"v_subrev_u32 v13, {XB-VB}, v{vXA1}")
    a.raw_wait(f"s_waitcnt vmcnt({2 * (LA - 2)}) lgkmcnt(0)")
    for j in range(3):
        for s in range(2): a.e(f"ds_read_b128 {R(X2reg(0, j, s),4)}, v{12+s} offset:{j*2048}")
    a.e("L_q2go:")
    a.e("s_barrier")
    for i in range(8):
        for r in rd_w(Greg(0, i), wpos(0), i): a.e(r)
    a.raw_wait("s_waitcnt lgkmcnt(0)"); a.lg = []
    def q2_group(kind):
        first, last = kind == 0, kind == 2
        for n in range(8):
            a.c(f"Q2 sub-step {n} ({('first', 'loop', 'last')[kind]})")
            S = Sched(a, q2mf(n, first))
            cl, q = divmod(n, 4)
            fin = last and n == 7
            xrd = q < 3 and not (last and cl == 1)
            def xd(k): return k % 4 < 3 and not (last and k >= 0) and not (first and k < 0)
            def wd(k): return not (last and k + LA >= 8)
            def kd(k): return last and 0 <= k <= 5
            if not fin:
                rds = []
                for i in range(8): rds += rd_w(Greg((n + 1) & 1, i), wpos(n + 1), i)
                for r, p in zip(rds, RDPOS_X): S.v(p, r)
            if wd(n): place_tile(a, S, w_tile(wpos(n + LA), n + LA, 2), (4, 7))
            if kd(n): place_tile(a, S, kv_tile(7 + n, (7 + n) >> 1), (10, 13))
            if xrd:
                for s in range(2): S.v(s, (rd_xb(X2reg(1 - cl, q, s), q, s), "xr"))
            if xd(n):
                S.h(7, lambda: a.wait(lg="xr"))
                place_tile(a, S, x_block(q, 256, (sXo, sXo1)[cl]), (10, 13))
            if q == 3 and not last and not (first and OPT['latekv']): early(S, cl, (0, 0, 1, 1, 4, 7, 8) if cl == 0 else (0, 0, 1, 1, 4), (10, 13))
            if n == 7 and not last:
                S.h(16, f"s_mov_b32 s{sWq}, s{sWq1}")
                S.h(17, f"s_add_u32 s{sWq1}, s{sWq1}, {1 << 20}")
                S.h(18, f"s_add_u32 s{sXo1}, s{sXo1}, 256")
                S.h(19, f"s_add_u32 s{sXo}, s{sXo}, 256")
                S.h(20, f"s_cmp_lt_u32 s{sXo}, 1024")
            if not (last and n >= 6):
                k0 = n + 2 - LA
                vm = sum(2 * wd(k) for k in range(k0 + 1, n + 1)) + sum(2 * kd(k) for k in range(k0, n + 1))
                if (n + 1) % 4 < 3 and not (last and n + 1 >= 4) and xd(n - 3):
                    vm = min(vm, sum(2 * wd(k) + 2 * xd(k) + 2 * kd(k) for k in range(n - 2, n + 1)))
                end_sync(a, S, vm, 5)
            S.emit(None if fin else q2mf(n + 1, first and n < 7)[0])
    a.e("L_q2:")
    q2_group(0)
    lg_in = list(a.lg)
    a.e(".p2align 6")
    a.e("L_q2l:")
    q2_group(1)
    assert a.lg == lg_in
    a.e("s_cbranch_scc1 L_q2l")
    if OPT["ct2"]:
        l = newlabel("ct")
        a.e(f"s_cmp_lg_u32 s{sR}, 0"); a.e(f"s_cbranch_scc1 {l}")
        code_touch(a, "L_enter", "L_q2b" if T else "L_altwo", 10, 11)
        a.e(f"{l}:")
    q2_group(2)
    if OPT["stamp"]:
        a.e(f"s_lshr_b32 s{sT2}, s{sR}, 1"); stamp_dyn(a, 3, sT2, 2)
    a.c("Q2 conversion")
    a.e(f"s_cmp_lg_u32 s{sR}, 0"); a.e("s_cbranch_scc1 L_cv2b")
    if OPT["touch"]:
        a.e("v_min_u32 v8, 39, v0"); a.e("v_lshrrev_b32 v9, 2, v8"); a.e("v_lshlrev_b32 v9, 13, v9")
        a.e("v_and_b32 v8, 3, v8"); a.e("v_lshl_add_u32 v9, v8, 7, v9")
        a.e(f"s_lshl_b32 s{sTmp}, s{sB}, 2"); a.e(f"s_add_u32 s{sTmp}, s{sTmp}, s{sWv}"); a.e(f"s_mul_i32 s{sTmp}, s{sTmp}, {10*8192}")
        a.e(f"s_add_u32 s{sTmp}, s{sTmp}, 512")
        a._emit(f"buffer_load_dword v{vD}, v9, {sr(sW,4)}, s{sTmp} offen")
    a.e(f"s_and_b32 s{sWq}, s{sWq}, 0xfffff"); a.e(f"s_xor_b32 s{sWq}, s{sWq}, 512"); a.e(f"s_add_u32 s{sWq1}, s{sWq}, {1 << 20}")
    a.e(f"s_and_b32 s{sXo}, s{sXo}, 128"); a.e(f"s_xor_b32 s{sXo1}, s{sXo}, 128")
    convert(a, Q2acc, [QBANK[1]], [12, 24, 36])
    a.e("s_branch L_cv2c")
    a.e("L_cv2b:")
    if OPT["emu3"]:
        a.e(f"s_cmp_eq_u32 s{sPre}, 1"); a.e("s_cbranch_scc0 L_cv2d")
        a.e(f"s_mov_b32 s{sPre}, 14")
        a.e(f"s_and_b32 s{sWq}, s{sWq}, 0xfffff"); a.e(f"s_add_u32 s{sWq1}, s{sWq}, {1 << 20}")
        a.e(f"s_and_b32 s{sXo}, s{sXo}, 128"); a.e(f"s_xor_b32 s{sXo1}, s{sXo}, 128")
        a.raw_wait("s_waitcnt vmcnt(0)"); a.e("s_barrier")
        for n in range(LA): emit_tile(a, w_tile(wpos(n), n, 2))
        a.raw_wait("s_waitcnt vmcnt(0)")
        a.e("s_branch L_q2go")
        a.e("L_cv2d:")
    a.e("s_nop 7")
    convert(a, Q2acc, [QBANK[3]], [12, 24, 36])
    bootstrap()
    a.e("L_cv2c:")
    convert(a, lambda pos, i, j: Q2acc(1, i, j), [None], [12])
    a.e("L_enter:")
    a.e(f"v_mov_b32 v{vT}, 0x3f803f80")
    if OPT["sparse1"]:
        a.e(f"v_and_b32 v{vT+1}, 3, v0"); a.e(f"v_cmp_eq_u32 vcc, 0, v{vT+1}"); a.e(f"v_cndmask_b32 v{vT}, 0, v{vT}, vcc")
    for r in range(4): a.e(f"v_accvgpr_write_b32 a{ONES[1]+r}, v{vT}")
    def rd_k(dst, t, u): return [f"ds_read_b128 {vr(dst + 4*ks,4)}, v{vKA} offset:{(t % 8)*TILE + u*512 + ks*64}" for ks in range(4)]
    def rd_v(t, half, fr=VF):
        return [f"ds_read_b64_tr_b16 {vr(fr + 4*i + 2*e, 2)}, v{vVA} offset:{(t % 8)*TILE + e*512 + (4*half+i)*32}" for i in range(4) for e in range(2)]
    a.e(f"s_mov_b32 s{sBL}, s{sCur}"); a.e(f"s_sub_u32 s{sMin}, s{sCur}, {OPT['lmax']*8192}")
    vmw(a, 12)
    a.e("s_barrier")
    a.lg = []
    for r in rd_k(VF, 0, 1) + rd_k(KF, 0, 0): a.e(r)
    if OPT["qprof"] < 3 and T == 0: stamp(a, 4)
    def ex(u, k): j, r = divmod(k, 4); s = Sr(u, j) + r; return f"v_exp_f32 v{s}, v{s}"
    def cv(u, buf, c): j, h = divmod(c, 2); s = Sr(u, j) + 2*h; return f"v_cvt_pk_bf16_f32 v{Pr(buf,j) + 2*u + h}, v{s}, v{s+1}"
    def qk(u): return [mf(Sr(u, j), KF + 4*ks, Qf(j, ks), Nm(j) if ks == 0 else Sr(u, j)) for j in range(3) for ks in range(4)]
    def pv(t, half, fr=VF): return [mf(Or(4*half + i, j), fr + 4*i, Pr(t & 1, j), None if t == 0 else Or(4*half + i, j)) for i in range(4) for j in range(3)]
    def sm(t): return [mf(La(j), ONES, Pr(t & 1, j), None if t == 0 else La(j)) for j in range(3)]
    VMW = 4 * (5 - OPT["lmax"])
    decide = [f"s_getreg_b32 s{sC1}, hwreg(HW_REG_IB_STS, 0, 4)", f"s_cmp_gt_u32 s{sC1}, {OPT['thr'] if OPT['dyn'] else 99}", f"s_cselect_b32 s{sC1}, s{sBL}, s{sMin}",
              f"s_cmp_gt_i32 s{sC1}, s{sMin}", "s_cselect_b64 vcc, -1, 0", f"s_cselect_b32 s{sC1}, 8192, 0", f"s_sub_u32 s{sBL}, s{sBL}, s{sC1}"]
    def dec(t):
        d = list(decide)
        if t < OPT["fskip"] - 1: d[1] = f"s_cmp_ge_u32 s{sC1}, 0"
        return d
    catch = []
    def wo_at(S, m, gaps):
        st, post = wo_tile(m)
        place_tile(a, S, st, gaps)
        for x in post: S.h(gaps[1], x)
    def tail_vec(S, u, buf, rds):
        pos = [0, 1, 4, 5, 8, 9, 10, 11]
        for r, p in zip(rds, pos): S.v(p, r)
        for k, p in zip(range(8, 12), (2, 3, 6, 7)): S.v(p, ex(u, k))
        for c, p in zip(range(6), (0, 1, 4, 5, 8, 9)): S.v(p, cv(u, buf, c))
    a.e(".p2align 6")
    a.e("L_head:")
    a.c("tile 0: scores and stand-in row max (max over the first 32 keys)")
    S = Sched(a, [mf(Sr(u, j), kf + 4*ks, Qf(j, ks), None if ks == 0 else Sr(u, j)) for u, kf in ((1, VF), (0, KF)) for j in range(3) for ks in range(4)])
    for k, x in enumerate(unit_pre(sBL, 6 * 8192)): S.h(4 + k, x)
    S.h(16, lambda: vmw(a, VMW))
    for k, x in enumerate(dec(-1)): S.h(17 + k, x)
    S.emit(None)
    a.e("s_barrier")
    for r in rd_k(KF, 1, 0): a.e(r)
    l = newlabel("sk")
    a.e(f"s_cbranch_vccnz {l}")
    emit_tile(a, unit_dma())
    a.e(f"{l}:")
    if OPT["touch"]:
        a.e(f"s_mul_i32 s{sT2}, s{sR}, {163840 if not OPT['wot'] else 327680}")
        a._emit(f"buffer_load_dword v{vD}, v{vTo}, {sr(sWo,4)}, s{sT2} offen")
    if OPT["ctouch"] & 2:
        l = newlabel("ct")
        a.e(f"s_cmp_lg_u32 s{sR}, {OPT['cthead']}"); a.e(f"s_cbranch_scc1 {l}")
        code_touch(a, "L_altwo", "L_hot_end", 158, 159)
        a.e(f"{l}:")
    if OPT["ct2"] and T:
        l = newlabel("ct")
        a.e(f"s_cmp_lg_u32 s{sR}, s{sPre}"); a.e(f"s_cbranch_scc1 {l}")
        code_touch(a, "L_q2b", "L_altwo", 10, 11)
        a.e(f"{l}:")
    if OPT["inbox0"]:
        l = newlabel("ib")
        a.e(f"s_xor_b32 s{sT2}, s{sTyp}, 1"); a.e(f"s_cmp_lg_u32 s{sR}, s{sT2}"); a.e(f"s_cbranch_scc1 {l}")
        sc, ve = inbox_addr(10, vPt)
        for x in sc + ve: a.e(x)
        a._emit(f"global_load_dword v{vD}, v10, s[28:29]"); a._emit(f"global_load_dword v{vPt}, v10, s[28:29] offset:768")
        a.e(f"{l}:")
    l = newlabel("bp")
    a.e(f"s_xor_b32 s{sT2}, s{sR}, 3"); a.e(f"s_or_b32 s{sT2}, s{sT2}, s{sWv}"); a.e(f"s_cbranch_scc1 {l}")
    a._emit("global_load_dword v156, v157, s[18:19] sc1")
    a.e(f"{l}:")
    for j in range(3):
        n = Nm(j); s0 = Sr(0, j); s1 = Sr(1, j)
        a.e(f"v_max3_f32 v{n}, v{s1}, v{s1+1}, v{s1+2}")
        a.e(f"v_max3_f32 v{n+1}, v{s1+3}, v{s0}, v{s0+1}")
        a.e(f"v_max3_f32 v{n}, v{n}, v{s0+2}, v{s0+3}")
        a.e(f"v_max_f32 v{n}, v{n}, v{n+1}")
    rowred(a, "v_max_f32", [Nm(j) for j in range(3)], [Nm(j) + 1 for j in range(3)])
    for j in range(3):
        n = Nm(j)
        a.e(f"v_sub_f32 v{n}, 0, v{n}")
        for r in range(1, 4): a.e(f"v_mov_b32 v{n+r}, v{n}")
    for u in range(2):
        for j in range(3):
            for r in range(4): a.e(f"v_add_f32 v{Sr(u,j)+r}, v{Sr(u,j)+r}, v{Nm(j)}")
    for k in range(12): a.e(ex(0, k))
    for k in range(8): a.e(ex(1, k))
    for c in range(6): a.e(cv(0, 0, c))
    def stage(t, mode):
        a.c(f"stage {t} {mode}")
        kv = mode == "kv"
        S = Sched(a, qk(0)); tail_vec(S, 1, t & 1, rd_v(t, 0))
        if kv and OPT["dyn"] and OPT["thr2"] >= 0 and t >= OPT["cufrom"] and (t - OPT["cufrom"]) % OPT["custep"] == 0:
            l0, l1 = newlabel("cu"), newlabel("cub")
            for k, x in enumerate([f"s_getreg_b32 s{sC1}, hwreg(HW_REG_IB_STS, 0, 4)", f"s_cmp_le_u32 s{sC1}, {OPT['thr2']}",
                                   f"s_cselect_b32 s{sC1}, s{sBL}, s{sCur}", f"s_cmp_lt_i32 s{sC1}, s{sCur}"]): S.h(6 + k, x)
            def site(l0=l0, l1=l1): a.e(f"s_cbranch_scc1 {l0}"); a.e(f"{l1}:")
            S.h(10, site)
            catch.append((l0, l1, t))
        S.emit(pv(t, 0)[0])
        S = Sched(a, pv(t, 0))
        for r, p in zip(rd_k(KF, t+1, 1), (0, 1, 2, 3)): S.v(p, r)
        for k, p in zip(range(8), range(4, 12)): S.v(p, ex(0, k))
        S.h(10, lambda: a.wait(lg="all"))
        if kv:
            for x, p in zip(unit_pre(sBL, (t + 7) * 8192)[:6], (0, 1, 3, 4, 6, 7)): S.h(p, x)
        if mode == "wo" and t == 12:
            ex_ = [f"s_mul_i32 s{sT2}, s{sG}, {XG}", f"s_mul_i32 s{sT3}, s{sU}, {XD}", f"s_add_u32 s{sT2}, s{sT2}, s{sT3}",
                   f"s_mul_i32 s{sT3}, s{sWv}, 1536", f"s_add_u32 s{sT2}, s{sT2}, s{sT3}", f"s_add_u32 s{sT2}, s{sT2}, {5*XP}"]
            for k, x in enumerate(ex_): S.h(k, x)
            ev = ["v_lshrrev_b32 v158, 3, v0", "v_min_u32 v158, 6, v158", "v_mul_u32_u24 v158, 6144, v158", f"v_and_b32 v{vPt}, 7, v0",
                  f"v_min_u32 v{vPt}, 5, v{vPt}", f"v_lshl_add_u32 v158, v{vPt}, 7, v158", f"v_add_u32 v158, s{sT2}, v158"]
            for k, x in enumerate(ev): S.v(k, x)
        if mode == "wq" and t == 13: place_tile(a, S, x_block(1, 0, sXo) + x_block(2, 0, sXo), (2, 4, 7, 9))
        S.emit(qk(1)[0])
        S = Sched(a, qk(1)); tail_vec(S, 0, (t+1) & 1, rd_v(t, 1))
        if kv:
            for x, p in zip(unit_pre(sBL, (t + 7) * 8192)[6:], (0, 1)): S.h(p, x)
            S.h(4, lambda: vmw(a, VMW))
            for k, x in enumerate(dec(t)): S.h(5 + k, x)
        else:
            S.h(11, lambda: vmw(a, {"wo": 8, "wq": 8 if t < 14 else 4}[mode]))
        S.emit(None)
        S = Sched(a, sm(t) + pv(t, 1))
        S.h(0, "s_barrier")
        if t + 2 < 16:
            for r, p in zip(rd_k(KF, t+2, 0), (0, 1, 2, 3)): S.v(p, (r, "kr"))
        elif mode == "wq":
            for k, p in enumerate((0, 1, 2, 3, 4, 6)): S.v(p, (rd_xb(X2reg(0, k >> 1, k & 1), k >> 1, k & 1), "kr"))
        for k, p in zip(range(8), (3, 4, 6, 7, 9, 10, 12, 13)): S.v(p, ex(1, k))
        def vwait(keep):
            def f():
                idx = [n for n, (tg, d) in enumerate(a.lg) if tg != "kr"]
                if len(idx) > keep: a._wait(lg_idx=idx[len(idx) - 1 - keep])
            return f
        S.h(1, vwait(4)); S.h(6, vwait(0))
        if kv: place_guarded(a, S, unit_dma(), (5, 8, 11, 14))
        elif mode == "wo":
            wo_at(S, 2*(t-12), (5, 8)); wo_at(S, 2*(t-12) + 1, (11, 14))
            nt_ = " nt" if OPT["ibnt"] else ""
            if t == OPT["ibt"] and not OPT["noinbox"]: S.v(0, lambda: a._emit(f"global_load_dword v159, v158, s[28:29]{nt_}"))
            if t == 14 and not OPT["noinbox"]: S.v(2, lambda: a._emit(f"global_load_dword v{vPt}, v158, s[28:29] offset:768{nt_}"))
        else:
            if t == 12: place_tile(a, S, x_block(0, 0, sXo), (5, 8))
            else: place_tile(a, S, w_tile(2*t - 17, 2*t - 25, 2), (5, 8))
            place_tile(a, S, w_tile(2*t - 16, 2*t - 24, 2), (11, 14))
        S.h(12, lambda: a.wait(lg="all"))
        S.emit(qk(0)[0] if t < 14 else None)
        assert not a.lg
    def stage15(mode):
        a.c(f"stage 15 {mode}")
        for r in rd_v(15, 0): a.e(r)
        for k in range(8, 12): a.e(ex(1, k))
        for c in range(6): a.e(cv(1, 1, c))
        S = Sched(a, sm(15) + pv(15, 0) + pv(15, 1, KF))
        for r, p in zip(rd_v(15, 1, KF), range(8)): S.v(p, r)
        for j in range(3): S.v(5 + j, f"v_accvgpr_read_b32 v{vT+j}, a{La(j)[1]}")
        S.v(8, f"v_add_f32 v{vT+3}, v{vT}, v{vT+1}"); S.v(8, f"v_add_f32 v{vT+3}, v{vT+3}, v{vT+2}")
        S.v(9, f"v_mov_b32 v{vT+4}, {f32(2.0**30 if not OPT['forceslow'] else 150.0)}")
        S.v(9, f"v_cmp_nle_f32 vcc, v{vT+3}, v{vT+4}")
        if mode == "wo":
            for k in range(3): wo_at(S, 6 + k, (10 + 6*k, 13 + 6*k))
        if mode == "wq":
            place_tile(a, S, [s_ for j in range(3) for s_ in x_block(j, 0, sXo1)], (11, 13, 16, 18, 21, 23))
        S.emit(None)
        assert not a.lg
        if not OPT["nocheck"]: a.e("s_cbranch_vccnz L_slow")
    for t in range(15):
        if t == 12:
            a.e(f"s_cmp_eq_u32 s{sR}, 3"); a.e("s_cbranch_scc1 L_altwo")
            if T: a.e(f"s_cmp_eq_u32 s{sR}, s{sPre}"); a.e("s_cbranch_scc1 L_altwq")
        stage(t, "kv")
    stage15("kv")
    a.e("L_epi:")
    for r in rd_k(VF, 0, 1) + rd_k(KF, 0, 0): a.e(r)
    for j in range(3): a.e(f"v_rcp_f32 v{vT+j}, v{vT+j}")
    for p in range(4):
        for j in range(3):
            d = Qf(j, p)
            for u in range(2):
                o = Or(2*p + u, j)
                for r in range(4): a.e(f"v_mul_f32 v{o+r}, v{o+r}, v{vT+j}")
                a.e(f"v_cvt_pk_bf16_f32 v{d+2*u}, v{o}, v{o+1}")
                a.e(f"v_cvt_pk_bf16_f32 v{d+2*u+1}, v{o+2}, v{o+3}")
    if OPT["stamp"]:
        if not OPT['qprof']: stamp_dyn(a, 5, sR, 4)
    for s_ in (sCur, sCX, sBL, sMin): a.e(f"s_add_u32 s{s_}, s{s_}, 131072")
    a.e(f"s_add_u32 s{sR}, s{sR}, 1")
    a.e(f"s_cmp_gt_u32 s{sR}, 3"); a.e("s_cbranch_scc1 L_g")
    a.e(f"s_cmp_eq_u32 s{sR}, 3"); a.e("s_cbranch_scc1 L_sw2")
    a.e(f"s_cmp_eq_u32 s{sR}, 2"); a.e("s_cbranch_scc1 L_sw1")
    for r in range(3):
        a.e(f"L_sw{r}:")
        for p in range(4):
            for j in range(3):
                for x in range(4): a.e(f"v_accvgpr_write_b32 a{OBANK[r] + 12*p + 4*j + x}, v{Qf(j,p)+x}")
        if r == 1 and T: a.e(f"s_cmp_eq_u32 s{sPre}, 1"); a.e("s_cbranch_scc1 L_q2b")
        for p in range(4):
            for j in range(3):
                for x in range(4): a.e(f"v_accvgpr_read_b32 v{Qf(j,p)+x}, a{QBANK[r+1] + 12*p + 4*j + x}")
        a.e("s_nop 0")
        a.e("s_branch L_head")
    for l0, l1, t in catch:
        a.e(f"{l0}:")
        for x in unit_pre(sBL, (t + 7) * 8192): a.e(x)
        emit_tile(a, unit_dma())
        a.e(f"s_add_u32 s{sBL}, s{sBL}, 8192")
        a.e(f"s_branch {l1}")
    if T:
        a.e("L_q2b:")
        a.e(f"s_add_u32 s{sKn}, s{sBL}, {3*8192}"); a.e(f"s_add_u32 s{sMin}, s{sCur}, {3*8192}")
        a.raw_wait("s_waitcnt vmcnt(0) lgkmcnt(0)")
        a.e("s_barrier")
        for n in range(5, LA): emit_tile(a, w_tile(wpos(n), n, 2))
        a.e("s_branch L_q2go")
        a.e(".p2align 6")
        a.e("L_altwq:")
        a.lg = []
        for t in range(12, 15): stage(t, "wq")
        stage15("wq")
        a.e("s_branch L_epi")
    a.e(".p2align 6")
    a.e("L_altwo:")
    a.lg = []
    for t in range(12, 15): stage(t, "wo")
    stage15("wo")
    a.e("s_branch L_epi")
    sPr, sOut, sOo, sDst = sX, sW, sLast, 40
    LD = {0: 12, 1: 36}
    ACC, STG = 60, 72
    vSA, vSB, vLA, vLB, vOA, vFl, vFi, vPoll, vVal, TM, PK = 120, 121, 122, 123, 124, 125, 126, 127, 128, 130, 134
    def Ga(h, i, j): return O_ + 48 * h + 12 * i + 4 * j
    def spin_loop(l0, l1, cmp, reload):
        a.e(f"{l0}:")
        a.e(f"s_mov_b32 s{sT3}, 0")
        l2 = newlabel("spin")
        a.e(f"{l2}:")
        a.e(f"s_add_u32 s{sT3}, s{sT3}, 1")
        a.e(f"s_cmp_ge_u32 s{sT3}, {SPIN_MAX}")
        a.e(f"s_cbranch_scc1 {l1}")
        a.e(f"s_sleep {OPT['sleep']}")
        a._emit(reload)
        a.raw_wait("s_waitcnt vmcnt(0)")
        for x in cmp: a._emit(x)
        a._emit("s_nop 4")
        a.e(f"s_cbranch_vccnz {l2}")
        a.e(f"s_branch {l1}")
    spins = []
    def rd_g(dst, m, f):
        h, o = slot(m); i, c = divmod(f, 2)
        return [f"ds_read_b64_tr_b16 {R(off(dst, 2*e), 2)}, v{(vWAl, vWAh)[h]} offset:{o + c*512 + e*256 + i*32}" for e in range(2)]
    a.e(".p2align 6")
    a.e("L_g:")
    a.lg = []
    a.e(f"v_lshrrev_b32 v{TM}, 5, v0"); a.e(f"v_lshlrev_b32 v{TM}, 7, v{TM}")
    a.e(f"v_sub_u32 v{vWAh}, v{vVA}, v{TM}"); a.e(f"v_subrev_u32 v{vWAl}, {VB}, v{vWAh}")
    for m in (9, 10, 11, 12):
        st, post = wo_tile(m); emit_tile(a, st)
        for x in post: a.e(x)
    a.raw_wait("s_waitcnt vmcnt(20) lgkmcnt(0)")
    l, l0, l1 = newlabel("bc"), newlabel("bs"), newlabel("bok")
    a.e(f"v_mov_b32 v{TM+1}, {XB}")
    a.e(f"s_cmp_lg_u32 s{sWv}, 0"); a.e(f"s_cbranch_scc1 {l}")
    bcmp = [f"v_and_b32 v{TM}, 0xff, v156", f"v_cmp_gt_u32 vcc, 8, v{TM}"]
    for x in bcmp: a._emit(x)
    a._emit("s_nop 4")
    if not OPT["nosync"]: a.e(f"s_cbranch_vccnz {l0}")
    a.e(f"{l1}:")
    spins.append((l0, l1, bcmp, "global_load_dword v156, v157, s[18:19] sc1"))
    a.e(f"s_lshl_b32 s{sTmp}, s{sPK}, 3"); a.e(f"v_xor_b32 v156, s{sTmp}, v156")
    a.e(f"ds_write_b32 v{TM+1}, v156")
    a.raw_wait("s_waitcnt lgkmcnt(0)")
    a.e(f"{l}:")
    a.lg = []
    a.e("s_barrier")
    a.e(f"ds_read_b32 v{TM+2}, v{TM+1}")
    for f in range(8):
        for r in rd_g(Greg(0, f), 0, f): a.e(r)
    for p in range(4):
        for j in range(3):
            for x in range(4): a.e(f"v_accvgpr_write_b32 a{OBANK[3] + 12*p + 4*j + x}, v{Qf(j,p)+x}")
    a.e(f"s_mul_i32 s{sTmp}, s{sG}, {XG}")
    srd(a, sP, 28, f"s{sTmp}", 0)
    a.e(f"s_mul_i32 s{sT2}, s{sU}, {XD}"); a.e(f"s_add_u32 s{sTmp}, s{sTmp}, s{sT2}")
    srd(a, sPr, 28, f"s{sTmp}", 0)
    for i in range(7):
        a.e(f"s_xor_b32 s{sDst+i}, s{sU}, {i ^ 7}"); a.e(f"s_mul_i32 s{sDst+i}, s{sDst+i}, {XD}"); a.e(f"s_add_u32 s{sDst+i}, s{sDst+i}, {i*6144}")
    a.e(f"s_mul_i32 s{sTmp}, s{sB}, 491520"); a.e(f"s_mul_i32 s{sT2}, s{sBr}, 1280"); a.e(f"s_add_u32 s{sTmp}, s{sTmp}, s{sT2}")
    a.e(f"s_lshl_b32 s{sT2}, s{sU}, 5"); a.e(f"s_add_u32 s{sTmp}, s{sTmp}, s{sT2}")
    srd(a, sOut, 16, f"s{sTmp}", 0)
    a.e(f"s_mul_i32 s{sTmp}, s{sWv}, 1536"); a.e(f"v_lshl_add_u32 v{vSA}, v0, 4, s{sTmp}")
    a.e(f"s_add_u32 s{sTmp}, s{sTmp}, 1024"); a.e(f"v_lshl_add_u32 v{vSB}, v0, 3, s{sTmp}")
    a.e(f"v_and_b32 v{TM}, 15, v0"); a.e(f"v_mul_u32_u24 v{TM}, 2560, v{TM}"); a.e(f"v_lshrrev_b32 v{TM+1}, 4, v0"); a.e(f"v_lshl_add_u32 v{TM}, v{TM+1}, 3, v{TM}")
    a.e(f"s_mul_i32 s{sTmp}, s{sWv}, {48*2560}"); a.e(f"v_add_u32 v{vOA}, s{sTmp}, v{TM}")
    a.e(f"s_lshl_b32 s{sTmp}, s{sWv}, 7"); a.e(f"s_lshl_b32 s{sT2}, s{sU}, 2"); a.e(f"s_add_u32 s{sT2}, s{sT2}, s{sTmp}")
    a.e(f"v_lshl_add_u32 v{vFl}, v0, 9, s{sT2}")
    a.e(f"s_lshl_b32 s{sT2}, s{sU}, 9"); a.e(f"s_add_u32 s{sT2}, s{sT2}, s{sTmp}")
    a.e(f"v_and_b32 v{TM}, 7, v0"); a.e(f"v_lshl_add_u32 v{vFi}, v{TM}, 2, s{sT2}")
    a.e(f"v_mov_b32 v{vVal}, 0"); a.e(f"v_mov_b32 v{vPoll}, 0")
    a.e(f"s_mov_b32 s{sGc}, 0" if not OPT["emu3"] else f"s_lshl_b32 s{sGc}, s{sTyp}, 1"); a.e(f"s_mov_b32 s{sOo}, -512" if not OPT["emu3"] else f"s_mov_b32 s{sOo}, 0"); a.e(f"s_mov_b32 s{sS8}, 0xffff0000")
    a.wait(lg="all")
    a.e(f"v_readfirstlane_b32 s{sTmp}, v{TM+2}")
    a.e("s_nop 1")
    a.e(f"s_cmp_lg_u32 s{sTmp}, 0")
    a.e("s_branch L_gx" if OPT["xmode"] == 1 else "s_cbranch_scc1 L_gx")
    def gmf(n):
        h, t = divmod(n % 16, 8)
        o = []
        for i in range(4):
            for j in range(3):
                for c in range(2):
                    r, p = divmod(2 * t + c, 4)
                    o.append(mf(Ga(h, i, j), Greg(n & 1, 2*i + c), ("a", OBANK[r] + 12 * p + 4 * j), None if t == 0 and c == 0 else Ga(h, i, j)))
        return o
    NP = {0: 4, 1: 3}
    def cvs(h): return [f"v_cvt_pk_bf16_f32 v{STG + 6*i + 2*j + x}, v{Ga(h,i,j)+2*x}, v{Ga(h,i,j)+2*x+1}" for i in range(NP[h]) for j in range(3) for x in range(2)]
    def rops(h, k):
        o = []
        for r in range(6):
            s = LD[h] + 6*k + r; t = TM + 2 * (r & 1)
            src = Ga(1, 3, r >> 1) + 2 * (r & 1) if (h, k) == (0, 0) else ACC + 2*r
            o += [f"v_lshlrev_b32 v{t}, 16, v{s}", f"v_and_b32 v{t+1}, s{sS8}, v{s}",
                  f"v_add_f32 v{ACC+2*r}, v{src}, v{t}", f"v_add_f32 v{ACC+2*r+1}, v{src+1}, v{t+1}"]
        return o
    rcv = [f"v_cvt_pk_bf16_f32 v{PK+r}, v{ACC+2*r}, v{ACC+2*r+1}" for r in range(6)]
    def rst(j): return ([f"s_add_u32 s{sOff2}, s{sOo}, {j*40960}"], f"buffer_store_dwordx2 {vr(PK+2*j,2)}, v{vOA}, {sr(sOut,4)}, s{sOff2} offen")
    chk_cmp = [f"v_cmp_gt_u32 vcc, v{vVal}, v{vPoll}"]
    poll = f"buffer_load_dword v{vPoll}, v{vFi}, {sr(sF,4)}, 0 offen sc1"

    def g_phase(fast):
        pol = "" if fast else " sc1"
        la, lb = (vSA, vSB) if fast else (vLA, vLB)
        def xst(h, i): return [([], f"buffer_store_dwordx4 {vr(STG+6*i,4)}, v{vSA}, {sr(sP,4)}, s{sDst+4*h+i} offen{pol}"),
                               ([], f"buffer_store_dwordx2 {vr(STG+6*i+4,2)}, v{vSB}, {sr(sP,4)}, s{sDst+4*h+i} offen{pol}")]
        def xld(h, k): return [([f"s_mov_b32 s{sOff2}, {(4*h+k)*6144}"], f"buffer_load_dwordx4 {vr(LD[h]+6*k,4)}, v{la}, {sr(sPr,4)}, s{sOff2} offen sc1"),
                               ([], f"buffer_load_dwordx2 {vr(LD[h]+6*k+4,2)}, v{lb}, {sr(sPr,4)}, s{sOff2} offen sc1")]
        flag = f"buffer_store_dword v{vVal}, v{vFl}, {sr(sF,4)}, 0 offen{pol}"
        def check():
            l0, l1 = newlabel("sp"), newlabel("ok")
            if not OPT["nosync"]: a.e(f"s_cbranch_vccnz {l0}")
            a.e(f"{l1}:")
            spins.append((l0, l1, chk_cmp, poll))
        if fast: a.e(f"v_add_u32 v{vSA}, {5*XP}, v{vSA}"); a.e(f"v_add_u32 v{vSB}, {5*XP}, v{vSB}")
        else:
            a.e(f"v_subrev_u32 v{vSA}, {XP}, v{vSA}"); a.e(f"v_subrev_u32 v{vSB}, {XP}, v{vSB}")
            a.e(f"v_mov_b32 v{vLA}, v{vSA}"); a.e(f"v_mov_b32 v{vLB}, v{vSB}")
        late = []
        def body():
            del late[:]
            Ss = [Sched(a, gmf(n)) for n in range(16)]
            cap = [[2] * 24 for _ in range(16)]
            ops = []
            def vmem(n, g_, steps, kind):
                if isinstance(kind, tuple) and kind[0] == "T": place_tile(a, Ss[n], steps, g_)
                else:
                    for (pre, d), x in zip(steps, g_):
                        for y in pre: Ss[n].h(x, y)
                        Ss[n].v(x, lambda d=d: a._emit(d))
                for x in g_: cap[n][x] = 0; ops.append((n, x, kind))
            tpos = {0: [(6, 11)], 1: [(6, 11)], 4: [(6, 11), (16, 19)], 5: [(11, 16), (19, 22)], 6: [(6, 11)], 7: [(11, 16)]}
            m = 13
            for n in range(16):
                h, t = divmod(n, 8); S = Ss[n]
                rds = []
                for f in range(8): rds += rd_g(Greg((n + 1) & 1, f), n + 1, f)
                for r, p in zip(rds, RDPOS): S.v(p, r); cap[n][p] -= 1
                cap[n][23] = 0 if n % 4 == 1 else 1; cap[n][20] = min(cap[n][20], 1); cap[n][21] = min(cap[n][21], 1)
                for gp in tpos.get(t, []):
                    st, post = wo_tile(m)
                    if m == 16:
                        S.h(gp[0] - 4, f"s_cmp_eq_u32 s{sGc}, 4"); S.h(gp[0] - 3, f"s_cselect_b32 s{sWo+2}, 0, s{sWo+2}")
                    vmem(n, gp, st, ("T", m))
                    for x in post: S.h(gp[1], x)
                    m += 1
                if t == 2:
                    xs = [s_ for i in range(NP[1-h]) for s_ in xst(1 - h, i)] + [s_ for k in range(NP[h]) for s_ in xld(h, k)]
                    pos = [(n + d, g_) for d in (0, 1) for g_ in (6, 11, 16, 19, 20, 21, 22)]
                    for s_, (n2, g_) in zip(xs, pos): vmem(n2, (g_,), [s_], ("X", h))
                if t == 5: vmem(n, (6,), [([], flag)], "F"); S.v(4, f"v_add_u32 v{vVal}, 1, v{vVal}"); cap[n][4] -= 1
                if t == 7: vmem(n, (6,), [([], poll)], ("P", h))
            assert m == 29
            if OPT["opos"] == 0: vmem(4, (20, 21, 22), [rst(j) for j in range(3)], "O")
            else:
                for j, (n2, g_) in enumerate(((6, 16), (8, 16), (14, 16)) if OPT["opos"] == 1 else ((6, 16), (7, 21), (8, 19))): vmem(n2, (g_,), [rst(j)], "O")
            ops.sort(key=lambda x: (x[0], x[1]))
            ops2 = ops + [(n + 16, g_, k) for n, g_, k in ops]
            def younger(pt, n, g_): return len([o for o in ops2 if pt < (o[0], o[1]) < (n, g_)])
            for h in range(2):
                pt = max((o[0], o[1]) for o in ops if o[2] == ("X", h))
                Ss[8*h + 5].h(2, lambda c=younger(pt, 8*h + 5, 2): vmw(a, c))
                pt = [(o[0], o[1]) for o in ops if o[2] == ("P", h)][0]
                nc = 8*h + 9
                Ss[nc % 16].h(16, lambda c=younger(pt, nc, 16): vmw(a, c))
                Ss[nc % 16].v(16, lambda: a._emit(chk_cmp[0])); cap[nc % 16][16] -= 1
                Ss[nc % 16].h(20, check)
            def fill(lst, n, g_, rec=None):
                for op in lst:
                    while cap[n % 16][g_] <= 0:
                        g_ += 1
                        if g_ == 24: n += 1; g_ = 0
                    if not OPT["norv"]: Ss[n % 16].v(g_, lambda op=op: a._emit(op))
                    cap[n % 16][g_] -= 1
                    if rec is not None and n >= 16: rec.append(op)
                return n, g_
            e = fill(cvs(1), 0, 1); assert e < (2, 5), e
            e = fill(cvs(0), 8, 1); assert e < (10, 5), e
            e = fill(rops(0, 0), 5, 2); assert e < (8, 10), e
            e = fill([x for k in range(1, 4) for x in rops(0, k)], *e); assert e < (13, 2), e
            e = fill([x for k in range(3) for x in rops(1, k)] + rcv, 13, 2, late); assert e < (20, 18), e
            S = Ss[7]
            S.h(1, f"s_mov_b32 s{sP+2}, {XG}")
            if not fast: S.v(19, f"v_add_u32 v{vSA}, {XP}, v{vSA}"); S.v(20, f"v_add_u32 v{vSB}, {XP}, v{vSB}")
            S = Ss[15]
            S.h(0, f"s_cmp_ge_u32 s{sGc}, 1")
            S.h(1, f"s_cselect_b32 s{sOut+2}, {191*2560 + 1024 + 32}, 0")
            S.h(2, f"s_add_u32 s{sOo}, s{sOo}, 256")
            S.h(3, f"s_mov_b32 s{sPr+2}, {5*XP + XD}")
            if not fast:
                S.v(19, f"v_add_u32 v{vLA}, {XP}, v{vLA}"); S.v(20, f"v_add_u32 v{vLB}, {XP}, v{vLB}")
            S.h(18, f"s_add_u32 s{sGc}, s{sGc}, 1")
            S.h(19, f"s_cmp_lt_u32 s{sGc}, 5")
            for n in range(16):
                a.c(f"G sub-step {n}")
                if n % 4 == 1:
                    tid = n + 5 + 16
                    pt = max((o[0], o[1]) for o in ops2 if o[2] == ("T", tid if tid < 29 else tid - 16) and (o[0] < 16) == (tid < 29))
                    cnt = len([o for o in ops2 if pt < (o[0], o[1]) < (n + 16, 22) and (o[0] >= 16 or (isinstance(o[2], tuple) and o[2][0] == "T"))])
                    end_sync(a, Ss[n], min(cnt, 63), 0)
                else:
                    def w():
                        k = min(len(a.lg), OPT['gkeep']); a.raw_wait(f"s_waitcnt lgkmcnt({k})"); a.lg = a.lg[len(a.lg) - k:] if k else []
                    Ss[n].h(22, w)
                Ss[n].emit(gmf(n + 1)[0])
        lab = "L_gl_fast" if fast else "L_gl_far"
        if OPT["qprof"] == 2 and fast: stamp(a, 5); stamp(a, 6, False)
        a.e(f"{lab}:")
        if OPT["qprof"] == 4: stamp_dyn(a, 4, sGc, 5)
        a.lg = []
        mark = len(a.ins); nops0 = a.nops; ns = len(spins)
        body(); lg_end = list(a.lg)
        del a.ins[mark:]; a.nops = nops0; del spins[ns:]
        body(); assert a.lg == lg_end
        a.e(f"s_cbranch_scc1 {lab}")
        if OPT["qprof"] == 2 and fast: stamp(a, 7); stamp(a, 8, False)
        if OPT["qprof"] == 4: stamp(a, 3)
        a.c("tail")
        for x in cvs(1): a.e(x)
        stamp(a, 2)
        vmw(a, 2)
        a._emit(chk_cmp[0]); a._emit("s_nop 4"); check()
        for i in range(3): emit_tile(a, xst(1, i))
        for k in range(4): emit_tile(a, xld(0, k))
        for op in late: a._emit(op)
        vmw(a, 8)
        a.e(f"v_add_u32 v{vVal}, 1, v{vVal}")
        a._emit(flag)
        emit_tile(a, [rst(j) for j in range(3)])
        a.e(f"s_mov_b32 s{sOo}, 1024")
        for k in range(4):
            vmw(a, 2 * (3 - k) + 4)
            for op in rops(0, k): a._emit(op)
            if k == 2: a._emit(poll)
        vmw(a, 0)
        a._emit(chk_cmp[0]); a._emit("s_nop 4"); check()
        for k in range(3): emit_tile(a, xld(1, k))
        for k in range(3):
            vmw(a, 2 * (2 - k))
            for op in rops(1, k): a._emit(op)
        for op in rcv: a._emit(op)
        emit_tile(a, [rst(j) for j in range(3)])
    g_phase(True)
    a.e("L_fin:")
    stamp(a, 9, False); stamp(a, 10)
    if OPT["leak"] >= 0:
        k = OPT["leak"]
        if k == 0: a.e("s_mov_b32 s79, 0")
        elif k == 9: a.e("s_sub_u32 s79, s98, s82"); a.e("s_lshr_b32 s79, s79, 4")
        else: a.e(f"s_sub_u32 s79, s{80+2*k}, s80")
        a.e("s_add_u32 s79, s79, 15000")
        if OPT["leakwg"] == 1: a.e("s_cmp_lt_u32 s2, 8"); a.e("s_cselect_b32 s79, s79, 0")
        if OPT["leakwg"] == 2: a.e("s_cmp_ge_u32 s2, 248"); a.e("s_cselect_b32 s79, s79, 0")
        if OPT["leakwg"] == 3: a.e("s_cmp_eq_u32 s2, 0"); a.e("s_cselect_b32 s79, s79, 0")
        a.e("L_leak:")
        a._emit("s_memrealtime s[76:77]"); a.raw_wait("s_waitcnt lgkmcnt(0)")
        a.e("s_sub_u32 s76, s76, s80"); a.e("s_cmp_lt_u32 s76, s79"); a.e("s_cbranch_scc1 L_leak")
    stamp_store(a, "L_end", 0)
    dbg_store(a)
    a.e("L_end:")
    a.e("s_endpgm")
    nsp = len(spins)
    for s_ in list(spins): spin_loop(*s_)
    a.e("L_hot_end:")
    a.e(".p2align 6")
    a.e("L_gx:")
    g_phase(False)
    a.e("s_branch L_fin")
    for s_ in list(spins[nsp:]): spin_loop(*s_)
    a.reset_counters()
    a.e("L_slow:")
    a.raw_wait("s_waitcnt vmcnt(0) lgkmcnt(0)")
    vKo, vVo, t0, t1 = 10, 11, P_ + 12, P_ + 13
    a.e("s_nop 7")
    a.e(f"v_and_b32 v{t0}, 7, v0"); a.e(f"v_lshlrev_b32 v{t0}, 10, v{t0}")
    a.e(f"v_bfe_u32 v{t1}, v0, 3, 1"); a.e(f"v_lshl_add_u32 v{t0}, v{t1}, 8, v{t0}")
    a.e(f"v_lshrrev_b32 v{t1}, 4, v0"); a.e(f"v_lshl_add_u32 v{vKo}, v{t1}, 4, v{t0}")
    a.e(f"v_bfe_u32 v{t0}, v0, 4, 1"); a.e(f"v_lshlrev_b32 v{t0}, 12, v{t0}")
    a.e(f"v_lshrrev_b32 v{t1}, 5, v0"); a.e(f"v_lshl_add_u32 v{t0}, v{t1}, 8, v{t0}")
    a.e(f"v_and_b32 v{t1}, 15, v0"); a.e(f"v_lshl_add_u32 v{vVo}, v{t1}, 1, v{t0}")
    for j in range(3): a.e(f"v_mov_b32 v{vT+j}, 0xff800000")
    def slow_qk(cinit):
        for u, kf in ((0, KF), (1, VF)):
            for ks in range(4): a.e(f"buffer_load_dwordx4 {vr(kf + 4*ks,4)}, v{vKo}, {sr(sK,4)}, s{sT2} offen offset:{u*512 + ks*64}")
        for u, kf in ((0, KF), (1, VF)):
            for j in range(3):
                for ks in range(4):
                    a.e(mf(Sr(u, j), kf + 4*ks, Qf(j, ks), (Nm(j) if cinit else None) if ks == 0 else Sr(u, j)))
    a.e(f"s_mov_b32 s{sT2}, s{sCur}")
    a.e(f"s_add_u32 s{sT3}, s{sCur}, 131072")
    a.e("L_slow_p1:")
    slow_qk(False)
    for j in range(3):
        for u in range(2):
            s = Sr(u, j)
            a.e(f"v_max3_f32 v{vT+j}, v{vT+j}, v{s}, v{s+1}")
            a.e(f"v_max3_f32 v{vT+j}, v{vT+j}, v{s+2}, v{s+3}")
    a.e(f"s_add_u32 s{sT2}, s{sT2}, 8192")
    a.e(f"s_cmp_lt_u32 s{sT2}, s{sT3}")
    a.e("s_cbranch_scc1 L_slow_p1")
    rowred(a, "v_max_f32", [vT, vT+1, vT+2], [Nm(j) for j in range(3)])
    for j in range(3):
        for r in range(4): a.e(f"v_sub_f32 v{Nm(j)+r}, 0, v{vT+j}")
    for r in range(96): a.e(f"v_mov_b32 v{O_+r}, 0")
    for r in range(12): a.e(f"v_accvgpr_write_b32 a{192+r}, 0")
    a.e(f"s_mov_b32 s{sT2}, s{sCur}")
    a.e("L_slow_p2:")
    slow_qk(True)
    for u in range(2):
        for k in range(12): a.e(ex(u, k))
    for u in range(2):
        for c in range(6): a.e(cv(u, 0, c))
    for half, fr in ((0, KF), (1, VF)):
        for hi in range(2):
            for i in range(4):
                for e in range(2):
                    for rp in range(2):
                        r = 2*rp + hi
                        a.e(f"buffer_load_ushort v{(S_ if hi else fr) + 4*i + 2*e + rp}, v{vVo}, {sr(sV,4)}, s{sT2} offen offset:{r*1024 + e*512 + (4*half+i)*32}")
        a.wait(vm="all")
        for x in range(16): a.e(f"v_lshl_or_b32 v{fr+x}, v{S_+x}, 16, v{fr+x}")
    for m in sm(2): a.e(m)
    for half, fr in ((0, KF), (1, VF)):
        for m in pv(2, half, fr): a.e(m)
    a.e(f"s_add_u32 s{sT2}, s{sT2}, 8192")
    a.e(f"s_cmp_lt_u32 s{sT2}, s{sT3}")
    a.e("s_nop 7")
    a.e("s_cbranch_scc1 L_slow_p2")
    for j in range(3): a.e(f"v_accvgpr_read_b32 v{vT+j}, a{La(j)[1]}")
    a.e("s_branch L_epi")
    return a

HDR = f"""; Fused attention blocks A and B in one launch. One workgroup per CU owns 4 heads of one batch: Q projection,
; softmax attention, output-projection partial (K = 512); the 8 workgroups of a batch then sum their partials.
; kernarg: 0 A_x, 8 A_k, 16 A_v, 24 A_wq, 32 A_wo, 40 B_x, 48 B_k, 56 B_v, 64 B_wq, 72 B_wo, 80 out, 88 debug, 96 ws
; @launch grid=(256,1,1) block=(256,1,1) lds={LDS}
.amdgcn_target "amdgcn-amd-amdhsa--gfx950"
.text
"""
def kern(name, a):
    return f".globl {name}\n.p2align 8\n.type {name},@function\n{name}:\n" + a.text()
def desc(name, nv, acc, ns):
    return f""".p2align 6
.amdhsa_kernel {name}
  .amdhsa_next_free_vgpr {nv}
  .amdhsa_next_free_sgpr {ns}
  .amdhsa_accum_offset {acc}
  .amdhsa_group_segment_fixed_size 0
  .amdhsa_kernarg_size 104
  .amdhsa_user_sgpr_count 2
  .amdhsa_user_sgpr_kernarg_segment_ptr 1
  .amdhsa_system_sgpr_workgroup_id_x 1
  .amdhsa_float_denorm_mode_32 3
.end_amdhsa_kernel
"""
if __name__ == "__main__":
    a = main_kernel()
    if OPT["nodma"] & 1: a.ins = [i for i in a.ins if not (i.kind == "dma" and " v1, " in i.text)]
    if OPT["nodma"] & 2: a.ins = [i for i in a.ins if not (i.kind == "dma" and " v1, " not in i.text)]
    if OPT["nodma"] & 4: a.ins = [i for i in a.ins if not (i.kind == "store" and ("v120," in i.text or "v121," in i.text))]
    if OPT["nox2"]: a.ins = [i for i in a.ins if not (i.kind == "vmem" and ("v121," in i.text))]
    if OPT["noload"]: a.ins = [i for i in a.ins if not (i.kind == "vmem" and ("v120," in i.text or "v121," in i.text))]
    if OPT["strip"] == 2:
        i0 = [k for k, i in enumerate(a.ins) if i.text == "L_head:"][0]; i1 = [k for k, i in enumerate(a.ins) if i.text == "L_epi:"][0]
        a.ins = a.ins[:i0] + [Ins("s_nop 4") if i.kind == "mfma" else i for i in a.ins[i0:i1] if i.kind not in ("lds", "trans", "valu")] + a.ins[i1:]
    if OPT["strip"] == 1:
        i0 = [k for k, i in enumerate(a.ins) if i.text == "L_head:"][0]; i1 = [k for k, i in enumerate(a.ins) if i.text == "L_epi:"][0]
        a.ins = a.ins[:i0] + [i for i in a.ins[i0:i1] if i.kind not in ("mfma", "lds", "trans", "valu")] + a.ins[i1:]
    ns = 102 if OPT["stamp"] else NSGPR
    open(sys.argv[1], "w").write(HDR + kern(NAME + "_kernel", a) + '.section .rodata,"a"\n' + desc(NAME + "_kernel", 512, 256, ns))
    print("instrs", len(a.ins), "nops", a.nops)
```

```python
import sys, math, struct
from asmlib import *

NAME = "concat_heads__mha_block_cached__gqa_block_cached__near_ridge"
def f32(x): return "0x%08x" % struct.unpack("<I", struct.pack("<f", x))[0]
OPT = dict(stamp=0, nodma=0, nocheck=0, touch=0, forceslow=0, map84=0, first=6, rot=1, strip=0, cyc=0, typ=2, track=1, nosync=0, sleep=1, opos=1, lag=4, noack=0, noload=0, stpol=1, nolw=0, krot=1, hrot=0, emu3=0, stag=0, fskip=0, cufrom=4, custep=4, cvo=1, woq=1, ibnt=0, ibt=14, ct2=1, inbox0=0, sparse1=1, noinbox=1, cthead=3, help=3, latekv=0, wot=0, lmax=3, thr=5, thr2=2, dyn=1, xmode=0, gkeep=0, leak=-1, leakwg=0, st0=0, norv=0, now0=0, gcap=0, qprof=0, la=7, ldpol=1, lmode=0, ldfix=0, nox2=0, wnt=0, xnt=0, t0x=0, t0w=0, ctouch=3, dbgout=0)
for a_ in sys.argv[2:]:
    k_, v_ = a_.split("="); assert k_ in OPT, k_; OPT[k_] = int(v_)

def R(x, n):
    t, i = x if isinstance(x, tuple) else ("v", x)
    return f"{t}{i}" if n == 1 else f"{t}[{i}:{i+n-1}]"
def off(x, d): return (x[0], x[1] + d) if isinstance(x, tuple) else x + d
def mf(d, a, b, c):
    return f"v_mfma_f32_16x16x32_bf16 {R(d,4)}, {R(a,4)}, {R(b,4)}, {'0' if c is None else R(c,4)}"

TILE = 8448
VB = 8 * TILE
XB = 16 * TILE
LDS = XB + 24576
NSLOT = 8
CH = NSLOT * 1024
PART = 240 * CH
STAMP_AT = 128 << 20
FLG = 120 << 20
XD = 7 * 6144
XP = 8 * XD
XG = 6 * XP
SPIN_MAX = 200000
def slot(m):
    m %= 16
    return (m & 1), (m >> 1) * TILE

vKV, vKA, vVA, vWAl, vWAh, vW = 1, 2, 3, 4, 5, 6
vT = 7
QF, NM, S_, P_, KF, VF, O_ = 12, 60, 72, 96, 120, 136, 160
vX0, vX1, vXA0, vXA1 = 156, 157, 158, 159
vTo, vD, vPt, vWo = 152, 153, 154, 155
def Qf(j, ks): return QF + 16 * j + 4 * ks
def Nm(j): return NM + 4 * j
def Sr(u, j): return S_ + 12 * u + 4 * j
def Pr(buf, j): return P_ + 12 * buf + 4 * j
def Or(i, j): return O_ + 12 * i + 4 * j
def Wreg(buf, i): return 12 + 32 * buf + 4 * i
def Xreg(buf, j, s): return 76 + 24 * buf + 8 * j + 4 * s
def Qacc(pos, i, j):
    k = 12 * i + 4 * j
    if pos == 0: return ("a", k)
    if pos == 1: return ("a", 96 + k)
    if pos == 2: return ("a", 192 + k) if k < 64 else 124 + (k - 64)
    return O_ + k
QBANK = {3: 0, 2: 48, 1: 96}
OBANK = {0: 144, 1: 96, 2: 48, 3: 0}
def La(j): return ("a", 192 + 4 * j)
ONES = ("a", 204)
def Greg(buf, i): return ("a", 192 + 32 * buf + 4 * i)
sX, sW, sK, sV, sWo, sP = 32, 36, 40, 44, 48, 52
sWv, sKVL, sWL, sXL, sOff, sOff2, sTmp, sR, sCur, sT2, sT3 = 60, 61, 62, 63, 64, 65, 66, 67, 68, 69, 70
sB, sU, sBr, sG, sXo, sPo = 71, 72, 73, 74, 75, 76
sCX, sNX, sLast, sS8, sWoB, sTask, sTyp = 56, 57, 58, 59, 77, 30, 31
sWq, sGc = 26, 27
sWq1, sJ, sRot, sPM, sPK = 20, 21, 22, 23, 24
sF, sD0, sD1 = 8, 12, 13
sJh, sXo1, sPre = 25, 77, 30
sBL, sMin, sKn, sMv, sMk, sKVv, sC1 = 57, 76, 23, 58, 59, 3, 25
sH = [4, 5, 6, 7]
NSGPR = 80

def stamp(a, k, real=True):
    if not OPT["stamp"]: return
    lg = list(a.lg)
    a.raw_wait("s_waitcnt lgkmcnt(0)")
    if OPT["cyc"] and 2 <= k <= 8: real = False
    a._emit(f"{'s_memrealtime' if real else 's_memtime'} s[{80+2*k}:{81+2*k}]")
    a.raw_wait("s_waitcnt lgkmcnt(0)")
def stamp_dyn(a, base, sidx, n):
    if not OPT["stamp"]: return
    a.raw_wait("s_waitcnt lgkmcnt(0)")
    a._emit("s_memtime s[78:79]" if OPT["cyc"] else "s_memrealtime s[78:79]")
    a.raw_wait("s_waitcnt lgkmcnt(0)")
    for q in range(n):
        a.e(f"s_cmp_eq_u32 s{sidx}, {q}")
        a.e(f"s_cselect_b32 s{80+2*(base+q)}, s78, s{80+2*(base+q)}")
def stamp_store(a, label, base):
    if not OPT["stamp"]: return
    a.e(f"s_cmp_lg_u32 s{sWv}, 0")
    a.e(f"s_cbranch_scc1 {label}")
    for k in range(11): a.e(f"v_mov_b32 v{16+k}, s{80+2*k}")
    a.e("s_lshl_b32 s78, s2, 6"); a.e(f"s_add_u32 s78, s78, {STAMP_AT + base*64}")
    a.e("v_mov_b32 v28, s78")
    a.e("s_mov_b64 exec, 1")
    a.e("global_store_dwordx4 v28, v[16:19], s[28:29]")
    a.e("global_store_dwordx4 v28, v[20:23], s[28:29] offset:16")
    a.e("global_store_dwordx4 v28, v[24:27], s[28:29] offset:32")

def dbg_store(a):
    if not OPT["dbgout"]: return
    l = "L_dbgskip"
    a.e("s_and_b32 s78, s2, 0xdf"); a.e("s_cmp_lg_u32 s78, 5"); a.e(f"s_cbranch_scc1 {l}")
    a.e("s_load_dwordx2 s[24:25], s[0:1], 88")
    for n, k in enumerate((3,4,5,6,7,8,2,10)):
        a.e(f"s_sub_u32 s79, s{80+2*k}, s80"); a.e(f"v_mov_b32 v{32+n}, s79")
    a.e("s_and_b32 s78, s2, 32"); a.e("v_mov_b32 v29, s78")
    a.raw_wait("s_waitcnt lgkmcnt(0)")
    a.e("global_store_dwordx4 v29, v[32:35], s[24:25]")
    a.e("global_store_dwordx4 v29, v[36:39], s[24:25] offset:16")
    a.e(f"{l}:")

def srd(a, d, lo, o, size):
    a.e(f"s_add_u32 s{d}, s{lo}, {o}")
    a.e(f"s_addc_u32 s{d+1}, s{lo+1}, 0")
    a.e(f"s_and_b32 s{d+1}, s{d+1}, 0xffff")
    a.e(f"s_mov_b32 s{d+2}, {size}")
    a.e(f"s_mov_b32 s{d+3}, 0x20000")
_lbl = [0]
def newlabel(p):
    _lbl[0] += 1
    return f"L_{p}_{_lbl[0]}"
class U(str): pass

def ldsbase(m):
    h, o = slot(m); return h * VB + o
def w_tile(m, n, nh=4):
    b = ldsbase(m); base = sWq if n < 4 * nh else sWq1
    rel = ((n % (4 * nh)) // nh) * 262144 + (nh - 1 - n % nh) * 256
    pol = ' nt' if OPT['wnt'] else ''
    return [([f"s_xor_b32 s{sOff}, s{base}, {rel}", f"s_add_u32 m0, s{sWL}, {b}"], f"buffer_load_dwordx4 v{vW}, {sr(sW,4)}, s{sOff} offen{pol} lds"),
            ([f"s_xor_b32 s{sOff}, s{base}, {rel + 8192}", f"s_add_u32 m0, s{sWL}, {b + 1032}"], f"buffer_load_dwordx4 v{vW}, {sr(sW,4)}, s{sOff} offen{pol} lds")]
def kv_tile(m, t):
    b = ldsbase(m); s = sV if m & 1 else sK
    assert t < 16
    so = f"s_xor_b32 s{sOff}, s{sCX}, {t * 8192}"
    return [([so, f"s_add_u32 m0, s{sKVL}, {b}"], f"buffer_load_dwordx4 v{vKV}, {sr(s,4)}, s{sOff} offen nt lds"),
            ([f"s_add_u32 m0, s{sKVL}, {b + 32}"], f"buffer_load_dwordx4 v{vKV}, {sr(s,4)}, s{sOff} offen offset:1024 nt lds")]
def unit_pre(base, add):
    return [f"s_add_u32 s{sMv}, s{base}, {add}", f"s_xor_b32 s{sOff}, s{sMv}, s{sRot}", f"s_bfe_u32 s{sMv}, s{sMv}, 0x3000d", f"s_mul_i32 s{sMv}, s{sMv}, {TILE}",
            f"s_add_u32 s{sMk}, s{base}, {add + 8192}", f"s_xor_b32 s{sOff2}, s{sMk}, s{sRot}", f"s_bfe_u32 s{sMk}, s{sMk}, 0x3000d", f"s_mul_i32 s{sMk}, s{sMk}, {TILE}"]
def unit_dma(so_v=None, so_k=None):
    so_v = sOff if so_v is None else so_v; so_k = sOff2 if so_k is None else so_k
    return [([f"s_add_u32 m0, s{sMv}, s{sKVv}"], f"buffer_load_dwordx4 v{vKV}, {sr(sV,4)}, s{so_v} offen nt lds"),
            (["s_add_u32 m0, m0, 32"], f"buffer_load_dwordx4 v{vKV}, {sr(sV,4)}, s{so_v} offen offset:1024 nt lds"),
            ([f"s_add_u32 m0, s{sMk}, s{sKVL}"], f"buffer_load_dwordx4 v{vKV}, {sr(sK,4)}, s{so_k} offen nt lds"),
            (["s_add_u32 m0, m0, 32"], f"buffer_load_dwordx4 v{vKV}, {sr(sK,4)}, s{so_k} offen offset:1024 nt lds")]
def place_guarded(a, S, steps, gaps):
    for (pre, d), g in zip(steps, gaps):
        for k, x in enumerate(pre): S.h(g - len(pre) + k, x)
        def site(d=d):
            l = newlabel("sk"); a.e(f"s_cbranch_vccnz {l}"); a._emit(d); a.e(f"{l}:")
        S.v(g, site)
def wo_tile(m):
    b = ldsbase(m); h, t = divmod(m % 16, 8); r = t >> 1; rel = (t & 1) * 81920
    st = [([f"s_add_u32 s{sOff}, s{sH[r]}, {rel}", f"s_add_u32 m0, s{sKVL}, {b}"], f"buffer_load_dwordx4 v{vWo}, {sr(sWo,4)}, s{sOff} offen lds"),
          ([f"s_add_u32 s{sOff}, s{sH[r]}, {rel + 1280}", f"s_add_u32 m0, s{sKVL}, {b + 1056}"], f"buffer_load_dwordx4 v{vWo}, {sr(sWo,4)}, s{sOff} offen lds")]
    return st, ([f"s_add_u32 s{sH[r]}, s{sH[r]}, s{(sD0, sD1)[h]}"] if t & 1 else [])
def emit_tile(a, steps):
    for pre, d in steps:
        for x in pre: a.e(x)
        a._emit(d)
def place_tile(a, S, steps, gaps):
    for (pre, d), g in zip(steps, gaps):
        for k, x in enumerate(pre): S.h(g - len(pre) + k, x)
        S.v(g, lambda d=d: a._emit(d))
def rd_w(dst, m, i):
    h, o = slot(m); p, u = divmod(i, 2)
    return [f"ds_read_b64_tr_b16 {R(off(dst, 2*e), 2)}, v{(vWAl, vWAh)[h]} offset:{o + e*512 + p*64 + u*8}" for e in range(2)]
def vmw(a, n): a.raw_wait(f"s_waitcnt vmcnt({n})")

def rowred(a, op, regs, tmps):
    for w in (32, 16):
        for r, t in zip(regs, tmps): a.e(f"v_mov_b32 v{t}, v{r}")
        for r, t in zip(regs, tmps): a.e(f"v_permlane{w}_swap_b32 v{r}, v{t}")
        for r, t in zip(regs, tmps): a.e(f"{op} v{r}, v{r}, v{t}")

RDPOS = [0,1,2,3,4,5,7,8,9,10,12,13,14,15,17,18]
RDPOS_X = [2,3,5,6,8,9,11,12,14,15,16,17,18,19,20,21]

def code_touch(a, lo, hi, vaddr, vdst):
    if not OPT["ctouch"]: return
    l = newlabel("pc")
    a.e("s_getpc_b64 s[14:15]")
    a.e(f"{l}:")
    a.e(f"s_add_u32 s14, s14, {lo}-{l}"); a.e("s_addc_u32 s15, s15, 0")
    a.e(f"s_lshr_b32 s{sT2}, s2, 3"); a.e(f"s_lshl_b32 s{sT2}, s{sT2}, 2"); a.e(f"s_add_u32 s{sT2}, s{sT2}, s{sWv}"); a.e(f"s_lshl_b32 s{sT2}, s{sT2}, 7")
    a.e(f"v_and_b32 v{vaddr}, 3, v0"); a.e(f"v_lshlrev_b32 v{vaddr}, 14, v{vaddr}"); a.e(f"v_add_u32 v{vaddr}, s{sT2}, v{vaddr}")
    a.e(f"v_min_u32 v{vaddr}, {hi}-{lo}-4, v{vaddr}")
    a._emit(f"global_load_dword v{vdst}, v{vaddr}, s[14:15]")

def inbox_addr(va, vt):
    sc = [f"s_mul_i32 s{sT2}, s{sG}, {XG}", f"s_mul_i32 s{sT3}, s{sU}, {XD}", f"s_add_u32 s{sT2}, s{sT2}, s{sT3}",
          f"s_mul_i32 s{sT3}, s{sWv}, 1536", f"s_add_u32 s{sT2}, s{sT2}, s{sT3}", f"s_add_u32 s{sT2}, s{sT2}, {5*XP}"]
    ve = [f"v_lshrrev_b32 v{va}, 3, v0", f"v_min_u32 v{va}, 6, v{va}", f"v_mul_u32_u24 v{va}, 6144, v{va}", f"v_and_b32 v{vt}, 7, v0",
          f"v_min_u32 v{vt}, 5, v{vt}", f"v_lshl_add_u32 v{va}, v{vt}, 7, v{va}", f"v_add_u32 v{va}, s{sT2}, v{va}"]
    return sc, ve

def late_consts(a):
    w_ = 2 if OPT["wot"] else 1
    a.e(f"v_min_u32 v{vTo}, {20*w_-1}, v0"); a.e(f"v_lshlrev_b32 v{vTo}, 7, v{vTo}")
    a.e(f"s_mul_i32 s{sTmp}, s{sB}, {10240*w_}"); a.e(f"s_mul_i32 s{sT2}, s{sWv}, {2560*w_}"); a.e(f"s_add_u32 s{sTmp}, s{sTmp}, s{sT2}")
    a.e(f"v_add_u32 v{vTo}, s{sTmp}, v{vTo}")
    a.e("v_and_b32 v9, 56, v0"); a.e(f"s_lshl_b32 s{sTmp}, s{sWv}, 1"); a.e(f"v_add_u32 v9, s{sTmp}, v9")
    a.e("v_mul_u32_u24 v9, 1280, v9"); a.e("v_and_b32 v8, 7, v0")
    a.e(f"s_xor_b32 s{sTmp}, s{sU}, 7"); a.e(f"s_and_b32 s{sTmp}, s{sTmp}, 3"); a.e(f"s_lshl_b32 s{sTmp}, s{sTmp}, 1"); a.e(f"v_xor_b32 v8, s{sTmp}, v8")
    a.e(f"v_lshl_add_u32 v{vWo}, v8, 4, v9")

def x_block(j, rel, base_s, op="s_add_u32", lds=0):
    so = f"{op} s{sOff2}, s{base_s}, {rel + j*20480}" if base_s is not None else f"s_mov_b32 s{sOff2}, {rel + j*20480}"
    return [([so, f"s_add_u32 m0, s{sXL}, {j*2048 + lds}"], f"buffer_load_dwordx4 v{vX0}, {sr(sX,4)}, s{sOff2} offen{' nt' if OPT['xnt'] else ''} lds"),
            ([f"s_add_u32 m0, s{sXL}, {j*2048 + 1024 + lds}"], f"buffer_load_dwordx4 v{vX1}, {sr(sX,4)}, s{sOff2} offen{' nt' if OPT['xnt'] else ''} lds")]
def rd_xb(dst, j, s): return f"ds_read_b128 {R(dst,4)}, v{(vXA0, vXA1)[s]} offset:{j*2048}"

def end_sync(a, S, vm, keep=2):
    def w():
        n = min(len(a.lg), keep)
        a.raw_wait(f"s_waitcnt vmcnt({vm}) lgkmcnt({n})")
        a.lg = a.lg[len(a.lg) - n:] if n else []
    S.h(22, w); S.h(23, "s_barrier")

sSc = 14
SCALE = f"s_mov_b32 s{sSc}, {f32(math.log2(math.e) / math.sqrt(128.0))}"
def conv_ops(acc, pos, db, tmp):
    o_ = []; k = 0
    for p in range(4):
        for j in range(3):
            t = tmp[k % len(tmp)]; k += 1
            src = []
            for u in range(2):
                o = acc(pos, 2*p + u, j)
                for r in range(4):
                    if isinstance(o, tuple):
                        o_.append(f"v_accvgpr_read_b32 v{t+4*u+r}, a{o[1]+r}"); src.append(t + 4*u + r)
                    else: src.append(o + r)
            o_ += [f"v_mul_f32 v{x}, s{sSc}, v{x}" for x in src]
            d = Qf(j, p) if db is None else src[0]
            o_ += [f"v_cvt_pk_bf16_f32 v{d+r}, v{src[2*r]}, v{src[2*r+1]}" for r in range(4)]
            if db is not None and db != "keep":
                o_ += [f"v_accvgpr_write_b32 a{db + 12*p + 4*j + r}, v{d+r}" for r in range(4)]
    return o_
def free_slots(S):
    cap = []
    for k in range(len(S.mfs)):
        c = 2 - max(0, len(S.hold[k]) - 1)
        for f in S.vec[k]:
            t = f if isinstance(f, str) else f[0] if isinstance(f, tuple) else "vmem"
            c -= 2 if t.startswith(("vmem", "v_exp", "v_rcp")) else 1
        if "s_barrier" in S.hold[k]: c = 0
        cap.append(max(c, 0))
    for k in range(1, len(cap)):
        if cap[k] == 2 and cap[k-1] == 2: cap[k] = 1
    return cap
def fill_ops(S, ops, start=0):
    cap = free_slots(S); n = 0
    for k in range(start, len(cap)):
        for _ in range(cap[k]):
            if n < len(ops): S.v(k, ops[n]); n += 1
    return ops[n:]

def gcv(m, h):
    i, j = divmod(m, 3); p, u = divmod(i, 2); o = Or(i, j)
    return f"v_cvt_pk_bf16_f32 v{S_ + 12*p + 4*j + 2*u + h}, v{o+2*h}, v{o+2*h+1}"
CVS = [gcv(m, h) for m in range(24) for h in range(2)]
def gst(q, rel, base_s):
    p, j = divmod(q, 3)
    return ([f"s_add_u32 s{sOff2}, s{base_s}, {rel + (p*12 + j)*CH}"], f"buffer_store_dwordx4 {vr(S_ + 12*p + 4*j,4)}, v{vPt}, {sr(sP,4)}, s{sOff2} offen{['', ' sc1', ' nt', ' sc0'][OPT['stpol']]}")
def cv_plans():
    caps = [0 if g in (6, 11) else (1 if g in RDPOS else 2) for g in range(24)]
    last = []; ci = 0
    for g, cp in enumerate(caps):
        for _ in range(cp):
            if ci < 48 and ci // 2 + 4 <= g: last.append((g, ci)); ci += 1
    n = ci; first = []
    for g, cp in enumerate(caps):
        for _ in range(cp):
            if ci < 48: first.append((g, ci)); ci += 1
    assert ci == 48 and all(c // 2 > g for g, c in first)
    return last, first, n
PLAN_LAST, PLAN_FIRST, NLAST = cv_plans()

def Q2acc(pos, i, j): return (56 if pos == 0 else O_) + 12 * i + 4 * j
def X2reg(buf, j, s): return ("a", 24 * buf + 8 * j + 4 * s)
def q2mf(n, first):
    s, pos = divmod(n % 8, 2)
    return [mf(Q2acc(pos, i, j), Greg(n & 1, i), X2reg(s >> 1, j, s & 1), None if first and n < 2 else Q2acc(pos, i, j)) for i in range(8) for j in range(3)]

def main_kernel():
    a = Asm()
    T = OPT["typ"]
    if OPT["st0"]: a._emit("s_memrealtime s[80:81]")
    a.e("s_cmp_ge_u32 s2, 256")
    a.e("s_cbranch_scc1 L_end")
    a.e("s_load_dwordx16 s[4:19], s[0:1], 0")
    a.e("s_load_dwordx4 s[20:23], s[0:1], 64")
    a.e("s_load_dwordx2 s[28:29], s[0:1], 96")
    a.e(f"s_bfe_u32 s{sBr}, s2, 0x10002")
    if not OPT["map84"]:
        a.e(f"s_and_b32 s{sB}, s2, 3"); a.e(f"s_lshl_b32 s{sB}, s{sB}, 2")
        a.e(f"s_bfe_u32 s{sTmp}, s2, 0x20003"); a.e(f"s_add_u32 s{sB}, s{sB}, s{sTmp}")
        a.e(f"s_lshr_b32 s{sU}, s2, 5")
    elif OPT["map84"] == 2:
        a.e(f"s_bfe_u32 s{sB}, s2, 0x40003")
        a.e(f"s_and_b32 s{sU}, s2, 3"); a.e(f"s_lshl_b32 s{sU}, s{sU}, 1")
        a.e(f"s_lshr_b32 s{sTmp}, s2, 7"); a.e(f"s_add_u32 s{sU}, s{sU}, s{sTmp}")
    else:
        a.e(f"s_and_b32 s{sB}, s2, 1"); a.e(f"s_lshl_b32 s{sB}, s{sB}, 3")
        a.e(f"s_bfe_u32 s{sTmp}, s2, 0x30003"); a.e(f"s_add_u32 s{sB}, s{sB}, s{sTmp}")
        a.e(f"s_bfe_u32 s{sU}, s2, 0x10001"); a.e(f"s_lshl_b32 s{sU}, s{sU}, 2")
        a.e(f"s_lshr_b32 s{sTmp}, s2, 6"); a.e(f"s_add_u32 s{sU}, s{sU}, s{sTmp}")
    a.e(f"s_lshl_b32 s{sG}, s{sBr}, 4"); a.e(f"s_add_u32 s{sG}, s{sG}, s{sB}")
    if T == 4: a.e(f"s_bfe_u32 s{sTyp}, s2, 0x10003")
    elif T == 3: a.e(f"s_andn2_b32 s{sTyp}, 1, s2")
    elif T == 2: a.e(f"s_and_b32 s{sTyp}, s2, 1")
    else: a.e(f"s_mov_b32 s{sTyp}, {T}")
    a.e("v_lshrrev_b32 v7, 6, v0")
    a.e("v_and_b32 v0, 63, v0")
    a.e(f"v_readfirstlane_b32 s{sWv}, v7")
    a.e("v_and_b32 v8, 15, v0")
    a.e("v_lshrrev_b32 v9, 4, v0")
    a.e("v_and_b32 v10, 1, v9"); a.e("v_lshlrev_b32 v10, 4, v10")
    a.e("v_lshrrev_b32 v11, 1, v9"); a.e("v_lshl_add_u32 v10, v11, 2, v10")
    a.e("v_lshrrev_b32 v11, 1, v7"); a.e("v_lshl_add_u32 v10, v11, 3, v10")
    a.e("v_and_b32 v11, 1, v7"); a.e("v_lshl_add_u32 v10, v11, 1, v10")
    a.e("v_lshlrev_b32 v10, 13, v10"); a.e(f"v_lshl_add_u32 v{vW}, v8, 4, v10")
    a.e("v_mul_u32_u24 v10, 48, v7"); a.e("v_lshrrev_b32 v11, 3, v0"); a.e("v_add_u32 v10, v10, v11")
    a.e("v_mul_u32_u24 v10, 1280, v10")
    a.e("v_and_b32 v11, 7, v0"); a.e("v_xor_b32 v11, v11, v9")
    a.e(f"v_lshl_add_u32 v{vX0}, v11, 4, v10")
    a.e("v_xor_b32 v11, 4, v11"); a.e("v_add_u32 v10, 10240, v10")
    a.e(f"v_lshl_add_u32 v{vX1}, v11, 4, v10")
    a.e(f"s_mul_i32 s{sKVL}, s{sWv}, 2112")
    a.e(f"s_mov_b32 s{sWL}, s{sKVL}")
    a.e(f"s_mul_i32 s{sXL}, s{sWv}, 6144"); a.e(f"s_add_u32 s{sXL}, s{sXL}, {XB}")
    a.e(f"s_mov_b32 s{sCur}, 0"); a.e(f"s_mov_b32 s{sXo}, 0"); a.e(f"s_mov_b32 s{sWq}, 0")
    a.raw_wait("s_waitcnt lgkmcnt(0)")
    a.e(f"s_cmp_eq_u32 s{sBr}, 0")
    a.e("s_cselect_b64 s[4:5], s[4:5], s[14:15]")
    a.e("s_cselect_b64 s[6:7], s[6:7], s[16:17]")
    a.e("s_cselect_b64 s[8:9], s[8:9], s[18:19]")
    a.e("s_cselect_b64 s[10:11], s[10:11], s[20:21]")
    a.e("s_cselect_b64 s[12:13], s[12:13], s[22:23]")
    a.e("s_load_dwordx4 s[16:19], s[0:1], 80")
    a.e(f"s_mul_i32 s{sTmp}, s{sB}, 245760")
    srd(a, sX, 4, f"s{sTmp}", 245760)
    a.e(f"s_lshl_b32 s{sTmp}, s{sU}, 10")
    srd(a, sW, 10, f"s{sTmp}", 639 * 8192 + 1024)
    if OPT["krot"]: a.e(f"s_xor_b32 s{sJ}, s{sB}, s{sU}"); a.e(f"s_and_b32 s{sJ}, s{sJ}, 3")
    else: a.e(f"s_mov_b32 s{sJ}, 0")
    if OPT["hrot"]: a.e(f"s_cmp_lg_u32 s{sTyp}, 0"); a.e(f"s_cselect_b32 s{sJh}, 1, 3"); a.e(f"s_and_b32 s{sJh}, s{sJh}, s{sJ}")
    else: a.e(f"s_mov_b32 s{sJh}, 0")
    a.e(f"s_lshl_b32 s{sWq}, s{sJ}, 18"); a.e(f"s_lshl_b32 s{sTmp}, s{sJh}, 8"); a.e(f"s_or_b32 s{sWq}, s{sWq}, s{sTmp}"); a.e(f"s_add_u32 s{sWq1}, s{sWq}, {1 << 20}")
    a.e(f"s_lshr_b32 s{sXo}, s{sJ}, 1"); a.e(f"s_lshl_b32 s{sXo}, s{sXo}, 7")
    if not OPT['st0']: stamp(a, 0)
    stamp(a, 1, False)
    def common_consts():
        if OPT["rot"]:
            a.e(f"s_lshr_b32 s{sRot}, s2, 4"); a.e(f"s_xor_b32 s{sRot}, s{sRot}, s2"); a.e(f"s_and_b32 s{sRot}, s{sRot}, 15"); a.e(f"s_lshl_b32 s{sRot}, s{sRot}, 13")
        else: a.e(f"s_mov_b32 s{sRot}, 0")
        a.e(f"s_lshl_b32 s{sCur}, s{sJh}, 17"); a.e(f"s_or_b32 s{sRot}, s{sRot}, s{sCur}")
        assert not OPT["hrot"]
        a.e(f"s_mov_b32 s{sCX}, s{sRot}"); a.e(f"s_add_u32 s{sKVv}, s{sKVL}, {VB}")
        a.e("v_bfe_u32 v10, v0, 2, 3")
        a.e("v_lshrrev_b32 v11, 1, v10"); a.e("v_lshlrev_b32 v11, 6, v11"); a.e(f"v_lshl_add_u32 v{vWAl}, v10, 10, v11")
        a.e("v_and_b32 v11, 1, v10"); a.e(f"v_lshl_add_u32 v{vWAl}, v11, 3, v{vWAl}")
        a.e("v_lshrrev_b32 v11, 5, v0"); a.e(f"v_lshl_add_u32 v{vWAl}, v11, 8, v{vWAl}")
        a.e("v_mul_u32_u24 v10, 1056, v10"); a.e("v_lshl_add_u32 v10, v11, 8, v10")
        a.e("v_and_b32 v11, 3, v0"); a.e(f"v_lshl_add_u32 v{vWAl}, v11, 4, v{vWAl}")
        a.e(f"v_lshl_add_u32 v10, v11, 3, v10"); a.e(f"v_add_u32 v{vVA}, {VB}, v10")
        a.e(f"v_add_u32 v{vWAh}, {VB}, v{vWAl}")
        a.e("v_and_b32 v10, 7, v8"); a.e("v_mul_u32_u24 v10, 1056, v10")
        a.e("v_lshrrev_b32 v11, 3, v8"); a.e(f"v_lshl_add_u32 v10, v11, 8, v10")
        a.e(f"v_lshl_add_u32 v{vKA}, v9, 4, v10")
        a.e("v_lshlrev_b32 v10, 4, v0"); a.e(f"v_lshl_add_u32 v{vKV}, v7, 11, v10")
        a.e(f"v_lshlrev_b32 v10, 7, v8"); a.e(f"v_add_u32 v10, s{sXL}, v10")
        a.e("v_lshrrev_b32 v11, 1, v8"); a.e("v_xor_b32 v11, v11, v9")
        a.e(f"s_and_b32 s{sTmp}, s{sJ}, 1"); a.e(f"s_lshl_b32 s{sTmp}, s{sTmp}, 2"); a.e(f"v_xor_b32 v11, s{sTmp}, v11")
        a.e(f"v_lshl_add_u32 v{vXA0}, v11, 4, v10")
        a.e("v_xor_b32 v11, 4, v11"); a.e(f"v_lshl_add_u32 v{vXA1}, v11, 4, v10")
        a.e(f"s_lshl_b32 s{sTmp}, s{sB}, 3"); a.e(f"s_add_u32 s{sTmp}, s{sTmp}, s{sU}"); a.e(f"s_lshl_b32 s{sTmp}, s{sTmp}, 19")
        srd(a, sK, 6, f"s{sTmp}", 4 * 131072)
        srd(a, sV, 8, f"s{sTmp}", 4 * 131072)
        a.e(f"s_mul_i32 s{sTmp}, s{sU}, {512*1280}")
        srd(a, sWo, 12, f"s{sTmp}", 512 * 1280)
        for r in range(4): a.e(f"s_xor_b32 s{sH[r]}, s{sJh}, {r}"); a.e(f"s_mul_i32 s{sH[r]}, s{sH[r]}, 163840")
        a.e(f"s_mov_b32 s{sKn}, 0"); a.e(f"s_mov_b32 s{sMin}, {3*8192}")
        a.e(f"s_cmp_lt_u32 s{sU}, 4")
        a.e(f"s_cselect_b32 s{sTmp}, 128, 0"); a.e(f"s_mov_b32 s{sD0}, 128"); a.e(f"s_cselect_b32 s{sD0}, -128, s{sD0}")
        a.e(f"s_sub_u32 s{sD1}, 256, s{sD0}")
        for r in range(4): a.e(f"s_add_u32 s{sH[r]}, s{sH[r]}, s{sTmp}")
        a.e(f"s_lshl_b32 s{sTmp}, s{sG}, 12"); a.e(f"s_add_u32 s{sTmp}, s{sTmp}, {FLG}")
        srd(a, sF, 28, f"s{sTmp}", 4096)
    def touch0(three):
        if OPT["t0x"]:
            a.e("v_min_u32 v10, 59, v0"); a.e("v_lshlrev_b32 v10, 7, v10")
            a.e(f"s_lshl_b32 s{sTmp}, s{sU}, 2"); a.e(f"s_add_u32 s{sTmp}, s{sTmp}, s{sWv}"); a.e(f"s_mul_i32 s{sTmp}, s{sTmp}, 7680")
            a._emit(f"buffer_load_dword v11, v10, {sr(sX,4)}, s{sTmp} offen")
        if OPT["t0w"] and three:
            a.e("v_lshrrev_b32 v14, 2, v0"); a.e("v_lshlrev_b32 v14, 13, v14"); a.e("v_and_b32 v15, 3, v0"); a.e("v_lshl_add_u32 v14, v15, 7, v14")
            a.e(f"s_and_b32 s{sTmp}, s{sB}, 3"); a.e(f"s_lshl_b32 s{sTmp}, s{sTmp}, 2"); a.e(f"s_add_u32 s{sTmp}, s{sTmp}, s{sWv}"); a.e(f"s_lshl_b32 s{sTmp}, s{sTmp}, 17")
            for k in range(3):
                a.e(f"s_add_u32 s{sT2}, s{sTmp}, {k*256*8192}")
                a._emit(f"buffer_load_dword v{16+k}, v14, {sr(sW,4)}, s{sT2} offen")
    def part_srd(slot_expr, size):
        a.e(f"s_mul_i32 s{sTmp}, s{sG}, {PART}"); slot_expr(); a.e(f"s_lshl_b32 s{sT2}, s{sT2}, 10"); a.e(f"s_add_u32 s{sTmp}, s{sTmp}, s{sT2}")
        srd(a, sP, 28, f"s{sTmp}", size)
    NF = OPT["first"]
    LA = OPT['la']
    def wpos(n): return 8 + n % 8
    def rd_x(buf): return [rd_xb(Xreg(buf, j, s), j, s) for s in range(2) for j in range(3)]
    NF = 2
    def setup(lab):
        common_consts()
        touch0(False)
        code_touch(a, lab, "L_altwo" if not OPT["ct2"] else ("L_p1" if lab == "L_q" else "L_enter"), 10, 11)
        a.e(f"s_lshl_b32 s{sTmp}, s{sU}, 9"); a.e(f"s_lshl_b32 s{sT2}, s{sWv}, 7"); a.e(f"s_add_u32 s{sTmp}, s{sTmp}, s{sT2}")
        a.e("v_and_b32 v8, 7, v0"); a.e(f"v_lshlrev_b32 v8, 2, v8"); a.e("v_mov_b32 v7, 0")
        a._emit(f"buffer_store_dword v7, v8, {sr(sF,4)}, s{sTmp} offen sc1")
        a.e(f"s_mov_b32 s{sR}, 0")
        emit_tile(a, kv_tile(0, 0))
    def bootstrap():
        l = newlabel("boot")
        a.e(f"s_cmp_lg_u32 s{sWv}, 0"); a.e(f"s_cbranch_scc1 {l}")
        a.e(f"s_lshl_b32 s{sTmp}, s{sG}, 2"); a.e(f"s_add_u32 s{sTmp}, s{sTmp}, 128")
        a.e(f"v_mov_b32 v157, s{sTmp}")
        a.e(f"s_getreg_b32 s{sT2}, hwreg(HW_REG_XCC_ID, 0, 4)")
        a.e(f"s_mul_i32 s{sT3}, s{sT2}, s{sT2}"); a.e(f"s_lshl_b32 s{sT3}, s{sT3}, 8"); a.e(f"s_add_u32 s{sT3}, s{sT3}, s{sT2}")
        a.e(f"s_lshl_b32 s{sT3}, s{sT3}, 8"); a.e(f"s_add_u32 s{sPK}, s{sT3}, 1"); a.e(f"v_mov_b32 v158, s{sPK}")
        a.e("s_mov_b64 exec, 1")
        a._emit("global_atomic_add v157, v158, s[18:19]")
        a.e("s_mov_b64 exec, -1")
        a.e(f"{l}:")
    if OPT["stag"]:
        a.e(f"s_and_b32 s{sT2}, s{sB}, 3") if OPT["stag"] < 100 else a.e(f"s_and_b32 s{sT2}, s{sU}, 3")
        a.e("L_stag:"); a.e(f"s_cmp_eq_u32 s{sT2}, 0"); a.e("s_cbranch_scc1 L_stag2"); a.e(f"s_sleep {OPT['stag'] % 100}"); a.e(f"s_sub_u32 s{sT2}, s{sT2}, 1"); a.e("s_branch L_stag"); a.e("L_stag2:")
    a.e(f"s_cmp_lg_u32 s{sTyp}, 0")
    a.e("s_cbranch_scc1 L_p1")
    for j in range(3): emit_tile(a, x_block(j, 0, sXo))
    for n in range(NF): emit_tile(a, w_tile(wpos(n), n))
    setup("L_q")
    if OPT["help"]:
        a.e(f"s_mov_b32 s{sX+2}, {5*245760}")
        a.e("v_min_u32 v8, 59, v0"); a.e("v_lshlrev_b32 v8, 7, v8")
        a.e(f"s_lshl_b32 s{sTmp}, s{sU}, 2"); a.e(f"s_add_u32 s{sTmp}, s{sTmp}, s{sWv}"); a.e(f"s_mul_i32 s{sTmp}, s{sTmp}, 7680"); a.e(f"s_add_u32 s{sTmp}, s{sTmp}, {4*245760}")
        a._emit(f"buffer_load_dword v9, v8, {sr(sX,4)}, s{sTmp} offen")
        if OPT["help"] & 2:
            a.e("v_lshrrev_b32 v8, 2, v0"); a.e("v_lshlrev_b32 v8, 13, v8"); a.e("v_and_b32 v10, 3, v0"); a.e("v_lshl_add_u32 v8, v10, 7, v8")
            a.e(f"s_lshr_b32 s{sTmp}, s{sB}, 3"); a.e(f"s_lshl_b32 s{sTmp}, s{sTmp}, 2"); a.e(f"s_and_b32 s{sT2}, s{sB}, 3"); a.e(f"s_add_u32 s{sTmp}, s{sTmp}, s{sT2}")
            a.e(f"s_lshl_b32 s{sTmp}, s{sTmp}, 2"); a.e(f"s_add_u32 s{sTmp}, s{sTmp}, s{sWv}"); a.e(f"s_mul_i32 s{sTmp}, s{sTmp}, {20*8192}")
            a._emit(f"buffer_load_dword v9, v8, {sr(sW,4)}, s{sTmp} offen")
            a.e(f"s_add_u32 s{sTmp}, s{sTmp}, {4*8192}")
            a._emit(f"buffer_load_dword v9, v8, {sr(sW,4)}, s{sTmp} offen")
    a.e(f"s_mov_b32 s{sPre}, 15")
    for r in range(256):
        if r % 40 == 0 and NF + r // 40 < LA: emit_tile(a, w_tile(wpos(NF + r // 40), NF + r // 40))
        a.e(f"v_accvgpr_write_b32 a{r}, 0")
    for r in list(range(124, 156)) + list(range(160, 256)): a.e(f"v_mov_b32 v{r}, 0")
    if OPT["woq"]:
        a.e(f"s_lshr_b32 s{sTmp}, s{sB}, 3"); a.e(f"s_lshl_b32 s{sTmp}, s{sTmp}, 2"); a.e(f"s_and_b32 s{sT2}, s{sB}, 3"); a.e(f"s_add_u32 s{sTmp}, s{sTmp}, s{sT2}")
        a.e(f"s_lshl_b32 s{sTmp}, s{sTmp}, 2"); a.e(f"s_add_u32 s{sTmp}, s{sTmp}, s{sWv}"); a.e(f"s_mul_i32 s{sTmp}, s{sTmp}, 5120")
        a.e("v_min_u32 v7, 39, v0"); a.e(f"v_lshl_add_u32 v7, v7, 7, s{sTmp}")
    a.raw_wait(f"s_waitcnt vmcnt({2 * (LA - 2)}) lgkmcnt(0)")
    a.e("s_barrier")
    for r in rd_x(0): a.e(r)
    for i in range(8):
        for r in rd_w(Wreg(0, i), wpos(0), i): a.e(r)
    a.raw_wait("s_waitcnt lgkmcnt(0)"); a.lg = []
    if OPT["qprof"] == 1: stamp(a, 5); stamp(a, 6, False)
    def lperm(n, last):
        return 8 + 4 * ((n - 8) & 1) + ((n - 8) >> 1) if last and OPT["cvo"] and 8 <= n < 16 else n
    def qmf(n, last=False):
        s, pos = divmod(lperm(n, last) % 16, 4)
        return [mf(Qacc(pos, i, j), Wreg(n & 1, i), Xreg((s >> 1) & 1, j, s & 1), Qacc(pos, i, j)) for i in range(8) for j in range(3)]
    cvq = conv_ops(Qacc, 0, QBANK[3], [76, 84, 92])
    def early(S, half, h0, gaps):
        pre = [x.replace(f"s{sOff},", f"s{sOff2},") for x in unit_pre(sKn, 0)[4*half:4*half+4]]
        if half == 0: pre = [f"s_cmp_ge_u32 s{sKn}, s{sMin}", "s_cselect_b64 vcc, -1, 0", f"s_cselect_b32 s{sC1}, 0, 8192"] + pre
        else: pre = pre + [f"s_add_u32 s{sKn}, s{sKn}, s{sC1}"]
        for x, h_ in zip(pre, h0): S.h(h_, x)
        place_guarded(a, S, unit_dma(sOff2, sOff2)[2*half:2*half+2], gaps)
    def q_group(last):
        for n in range(16):
            a.c(f"Q sub-step {n}{' (last group)' if last else ''}")
            S = Sched(a, qmf(n, last))
            fin = last and n == 15
            q = n % 8
            xrd = q in (6, 7) and not (last and n >= 8)
            if not fin:
                rds = []
                for i in range(8): rds += rd_w(Wreg((n + 1) & 1, i), wpos(n + 1), i)
                for r, p in zip(rds, RDPOS): S.v(p, r)
                m = n + LA
                if not last or m < 16: place_tile(a, S, w_tile(wpos(m), lperm(m, last)), (6, 11))
                if last and 8 <= n <= 13: place_tile(a, S, kv_tile(n - 1, (n - 1) >> 1), (16, 19))
                if not (last and n == 14):
                    hi = min(m, 15) if last else m
                    ykv = len([k for k in range(8, 14) if n + 2 - LA <= k <= n]) if last else 0
                    end_sync(a, S, 2 * (hi - (n + 2)) + 2 * ykv, 5 if xrd else 2)
            if xrd:
                rx = rd_x(((n >> 3) + 1) & 1)[3*(q-6):3*(q-6)+3]
                if q == 6: S.h(16, lambda: vmw(a, 8))
                for r, p in zip(rx, (19, 20, 21)): S.v(p, (r, "xr"))
            if q in (0, 1, 2) and not (last and n >= 8):
                if q == 0: S.h(12, lambda: a.wait(lg="xr"))
                place_tile(a, S, x_block(q, 128, sXo, "s_xor_b32") if n < 8 else x_block(q, 256, sXo), (16, 19))
            if n in (11, 12) and not last: early(S, n - 11, (0, 1, 2, 3, 7, 8, 12), (16, 19))
            if n == 4 and not last and OPT["woq"]:
                S.h(13, f"s_lshr_b32 s{sOff2}, s{sXo}, 8"); S.h(14, f"s_mul_i32 s{sOff2}, s{sOff2}, 163840")
                S.v(16, lambda: a._emit(f"buffer_load_dword v9, v7, {sr(sWo,4)}, s{sOff2} offen"))
            if n == 15 and not last:
                S.h(12, f"s_mov_b32 s{sWq}, s{sWq1}")
                S.h(13, f"s_add_u32 s{sWq1}, s{sWq1}, {1 << 20}")
                S.h(14, f"s_add_u32 s{sXo}, s{sXo}, 256")
                S.h(15, f"s_cmp_lt_u32 s{sXo}, 1024")
            if last and n == 3: S.h(1, SCALE)
            if last and n >= 10 and OPT["cvo"]: cvq[:] = fill_ops(S, cvq, 4 if n == 10 else 0)
            S.emit(None if fin else qmf(n + 1, last)[0])
    a.e(".p2align 6")
    a.e("L_q:")
    if OPT["qprof"] == 3:
        a.e(f"s_lshr_b32 s{sT3}, s{sXo}, 8"); stamp_dyn(a, 4, sT3, 4)
    mark = len(a.ins); nops0 = a.nops
    q_group(False)
    lg_end = list(a.lg)
    del a.ins[mark:]; a.nops = nops0
    q_group(False)
    assert a.lg == lg_end
    a.e("s_cbranch_scc1 L_q")
    if OPT["ct2"]: code_touch(a, "L_enter", "L_q2b" if T else "L_altwo", 10, 11)
    if OPT["qprof"] == 3: stamp(a, 8)
    q_group(True)
    if OPT["qprof"] == 1: stamp(a, 7); stamp(a, 8, False)
    stamp(a, 3)
    a.c("Q conversion")
    tmp = [60 + 8 * k for k in range(8)]
    for x in cvq + conv_ops(Qacc, 1, QBANK[2], tmp) + conv_ops(Qacc, 2, QBANK[1], tmp) + conv_ops(Qacc, 3, None, tmp): a.e(x)
    late_consts(a)
    bootstrap()
    a.e("s_branch L_enter")
    a.e("L_p1:")
    a.lg = []
    for j in range(3): emit_tile(a, x_block(j, 0, sXo, lds=VB-XB))
    for n in range(NF): emit_tile(a, w_tile(wpos(n), n, 2))
    a.e(f"s_xor_b32 s{sXo1}, s{sXo}, 128")
    for j in range(3): emit_tile(a, x_block(j, 0, sXo1))
    setup("L_q2")
    late_consts(a)
    a.e(f"s_mov_b32 s{sPre}, 1")
    for n in range(NF, LA): emit_tile(a, w_tile(wpos(n), n, 2))
    a.e(f"v_subrev_u32 v12, {XB-VB}, v{vXA0}"); a.e(f"v_subrev_u32 v13, {XB-VB}, v{vXA1}")
    a.raw_wait(f"s_waitcnt vmcnt({2 * (LA - 2)}) lgkmcnt(0)")
    for j in range(3):
        for s in range(2): a.e(f"ds_read_b128 {R(X2reg(0, j, s),4)}, v{12+s} offset:{j*2048}")
    a.e("L_q2go:")
    a.e("s_barrier")
    for i in range(8):
        for r in rd_w(Greg(0, i), wpos(0), i): a.e(r)
    a.raw_wait("s_waitcnt lgkmcnt(0)"); a.lg = []
    def q2_group(kind):
        first, last = kind == 0, kind == 2
        for n in range(8):
            a.c(f"Q2 sub-step {n} ({('first', 'loop', 'last')[kind]})")
            S = Sched(a, q2mf(n, first))
            cl, q = divmod(n, 4)
            fin = last and n == 7
            xrd = q < 3 and not (last and cl == 1)
            def xd(k): return k % 4 < 3 and not (last and k >= 0) and not (first and k < 0)
            def wd(k): return not (last and k + LA >= 8)
            def kd(k): return last and 0 <= k <= 5
            if not fin:
                rds = []
                for i in range(8): rds += rd_w(Greg((n + 1) & 1, i), wpos(n + 1), i)
                for r, p in zip(rds, RDPOS_X): S.v(p, r)
            if wd(n): place_tile(a, S, w_tile(wpos(n + LA), n + LA, 2), (4, 7))
            if kd(n): place_tile(a, S, kv_tile(7 + n, (7 + n) >> 1), (10, 13))
            if xrd:
                for s in range(2): S.v(s, (rd_xb(X2reg(1 - cl, q, s), q, s), "xr"))
            if xd(n):
                S.h(7, lambda: a.wait(lg="xr"))
                place_tile(a, S, x_block(q, 256, (sXo, sXo1)[cl]), (10, 13))
            if q == 3 and not last and not (first and OPT['latekv']): early(S, cl, (0, 0, 1, 1, 4, 7, 8) if cl == 0 else (0, 0, 1, 1, 4), (10, 13))
            if n == 7 and not last:
                S.h(16, f"s_mov_b32 s{sWq}, s{sWq1}")
                S.h(17, f"s_add_u32 s{sWq1}, s{sWq1}, {1 << 20}")
                S.h(18, f"s_add_u32 s{sXo1}, s{sXo1}, 256")
                S.h(19, f"s_add_u32 s{sXo}, s{sXo}, 256")
                S.h(20, f"s_cmp_lt_u32 s{sXo}, 1024")
            if not (last and n >= 6):
                k0 = n + 2 - LA
                vm = sum(2 * wd(k) for k in range(k0 + 1, n + 1)) + sum(2 * kd(k) for k in range(k0, n + 1))
                if (n + 1) % 4 < 3 and not (last and n + 1 >= 4) and xd(n - 3):
                    vm = min(vm, sum(2 * wd(k) + 2 * xd(k) + 2 * kd(k) for k in range(n - 2, n + 1)))
                if n == 7 and OPT['cvo']: vm = min(vm, 8)
                end_sync(a, S, vm, 5)
            S.emit(None if fin else q2mf(n + 1, first and n < 7)[0])
    a.e("L_q2:")
    q2_group(0)
    lg_in = list(a.lg)
    a.e(".p2align 6")
    a.e("L_q2l:")
    q2_group(1)
    assert a.lg == lg_in
    a.e("s_cbranch_scc1 L_q2l")
    if OPT["ct2"]:
        l = newlabel("ct")
        a.e(f"s_cmp_lg_u32 s{sR}, 0"); a.e(f"s_cbranch_scc1 {l}")
        code_touch(a, "L_enter", "L_q2b" if T else "L_altwo", 10, 11)
        a.e(f"{l}:")
    cv2 = conv_ops(Q2acc, 0, "keep", [0])
    if not OPT["cvo"]:
        q2_group(2); a.e(SCALE)
    else:
        order = [0, 2, 4, 6, 1, 3, 5, 7]
        def mfs(n):
            s, pos = divmod(order[n], 2)
            return [mf(Q2acc(pos, i, j), Greg(n & 1, i), X2reg(s >> 1, j, s & 1), Q2acc(pos, i, j)) for i in range(8) for j in range(3)]
        kvat = {0: [7], 1: [8], 5: [9, 10], 6: [11, 12]}
        for n in range(8):
            a.c(f"Q2 sub-step {n} (last)")
            S = Sched(a, mfs(n))
            if n < 7:
                rds = []
                for i in range(8): rds += rd_w(Greg((n + 1) & 1, i), wpos(order[n + 1]), i)
                for r, p in zip(rds, RDPOS_X): S.v(p, r)
            if n == 0:
                place_tile(a, S, w_tile(wpos(7), 7, 2), (4, 7)); S.h(14, SCALE)
                for s in range(2): S.v(s, rd_xb(X2reg(1, 0, s), 0, s))
            if n == 1:
                for k, p in enumerate((0, 1, 4, 7)): S.v(p, rd_xb(X2reg(1, 1 + (k >> 1), k & 1), 1 + (k >> 1), k & 1))
            for m, gp in zip(kvat.get(n, []), ((10, 13),) if n < 2 else ((4, 7), (10, 13))): place_tile(a, S, kv_tile(m, m >> 1), gp)
            if n < 6: end_sync(a, S, {0: 6, 1: 6, 5: 8}.get(n, 20), 5)
            if n >= 4: cv2 = fill_ops(S, cv2, 4 if n == 4 else 0)
            S.emit(mfs(n + 1)[0] if n < 7 else None)
    if OPT["stamp"]:
        a.e(f"s_lshr_b32 s{sT2}, s{sR}, 1"); stamp_dyn(a, 3, sT2, 2)
    a.c("Q2 conversion")
    for x in cv2: a.e(x)
    def bank_write(db, src):
        return [f"v_accvgpr_write_b32 a{db + 12*p + 4*j + x}, v{src(p, j)+x}" for p in range(4) for j in range(3) for x in range(4)]
    a.e(f"s_cmp_lg_u32 s{sR}, 0"); a.e("s_cbranch_scc1 L_cv2b")
    if OPT["touch"]:
        a.e("v_min_u32 v8, 39, v0"); a.e("v_lshrrev_b32 v9, 2, v8"); a.e("v_lshlrev_b32 v9, 13, v9")
        a.e("v_and_b32 v8, 3, v8"); a.e("v_lshl_add_u32 v9, v8, 7, v9")
        a.e(f"s_lshl_b32 s{sTmp}, s{sB}, 2"); a.e(f"s_add_u32 s{sTmp}, s{sTmp}, s{sWv}"); a.e(f"s_mul_i32 s{sTmp}, s{sTmp}, {10*8192}")
        a.e(f"s_add_u32 s{sTmp}, s{sTmp}, 512")
        a._emit(f"buffer_load_dword v{vD}, v9, {sr(sW,4)}, s{sTmp} offen")
    a.e(f"s_and_b32 s{sWq}, s{sWq}, 0xfffff"); a.e(f"s_xor_b32 s{sWq}, s{sWq}, 512"); a.e(f"s_add_u32 s{sWq1}, s{sWq}, {1 << 20}")
    a.e(f"s_and_b32 s{sXo}, s{sXo}, 128"); a.e(f"s_xor_b32 s{sXo1}, s{sXo}, 128")
    for x in bank_write(QBANK[1], lambda p, j: Q2acc(0, 2*p, j)): a.e(x)
    a.e("s_branch L_cv2c")
    a.e("L_cv2b:")
    if OPT["emu3"]:
        a.e(f"s_cmp_eq_u32 s{sPre}, 1"); a.e("s_cbranch_scc0 L_cv2d")
        a.e(f"s_mov_b32 s{sPre}, 14")
        a.e(f"s_and_b32 s{sWq}, s{sWq}, 0xfffff"); a.e(f"s_add_u32 s{sWq1}, s{sWq}, {1 << 20}")
        a.e(f"s_and_b32 s{sXo}, s{sXo}, 128"); a.e(f"s_xor_b32 s{sXo1}, s{sXo}, 128")
        a.raw_wait("s_waitcnt vmcnt(0)"); a.e("s_barrier")
        for n in range(LA): emit_tile(a, w_tile(wpos(n), n, 2))
        a.raw_wait("s_waitcnt vmcnt(0)")
        a.e("s_branch L_q2go")
        a.e("L_cv2d:")
    a.e("s_nop 7")
    for x in bank_write(QBANK[3], lambda p, j: Q2acc(0, 2*p, j)): a.e(x)
    bootstrap()
    a.e("L_cv2c:")
    for x in conv_ops(Q2acc, 1, None, [0]): a.e(x)
    a.e("L_enter:")
    a.e(f"v_mov_b32 v{vT}, 0x3f803f80")
    if OPT["sparse1"]:
        a.e(f"v_and_b32 v{vT+1}, 3, v0"); a.e(f"v_cmp_eq_u32 vcc, 0, v{vT+1}"); a.e(f"v_cndmask_b32 v{vT}, 0, v{vT}, vcc")
    for r in range(4): a.e(f"v_accvgpr_write_b32 a{ONES[1]+r}, v{vT}")
    def rd_k(dst, t, u): return [f"ds_read_b128 {vr(dst + 4*ks,4)}, v{vKA} offset:{(t % 8)*TILE + u*512 + ks*64}" for ks in range(4)]
    def rd_v(t, half, fr=VF):
        return [f"ds_read_b64_tr_b16 {vr(fr + 4*i + 2*e, 2)}, v{vVA} offset:{(t % 8)*TILE + e*512 + (4*half+i)*32}" for i in range(4) for e in range(2)]
    a.e(f"s_mov_b32 s{sBL}, s{sCur}"); a.e(f"s_sub_u32 s{sMin}, s{sCur}, {OPT['lmax']*8192}")
    vmw(a, 12)
    a.e("s_barrier")
    a.lg = []
    for r in rd_k(VF, 0, 1) + rd_k(KF, 0, 0): a.e(r)
    if OPT["qprof"] < 3 and T == 0: stamp(a, 4)
    def ex(u, k): j, r = divmod(k, 4); s = Sr(u, j) + r; return f"v_exp_f32 v{s}, v{s}"
    def cv(u, buf, c): j, h = divmod(c, 2); s = Sr(u, j) + 2*h; return f"v_cvt_pk_bf16_f32 v{Pr(buf,j) + 2*u + h}, v{s}, v{s+1}"
    def qk(u): return [mf(Sr(u, j), KF + 4*ks, Qf(j, ks), Nm(j) if ks == 0 else Sr(u, j)) for j in range(3) for ks in range(4)]
    def pv(t, half, fr=VF): return [mf(Or(4*half + i, j), fr + 4*i, Pr(t & 1, j), None if t == 0 else Or(4*half + i, j)) for i in range(4) for j in range(3)]
    def sm(t): return [mf(La(j), ONES, Pr(t & 1, j), None if t == 0 else La(j)) for j in range(3)]
    VMW = 4 * (5 - OPT["lmax"])
    decide = [f"s_getreg_b32 s{sC1}, hwreg(HW_REG_IB_STS, 0, 4)", f"s_cmp_gt_u32 s{sC1}, {OPT['thr'] if OPT['dyn'] else 99}", f"s_cselect_b32 s{sC1}, s{sBL}, s{sMin}",
              f"s_cmp_gt_i32 s{sC1}, s{sMin}", "s_cselect_b64 vcc, -1, 0", f"s_cselect_b32 s{sC1}, 8192, 0", f"s_sub_u32 s{sBL}, s{sBL}, s{sC1}"]
    def dec(t):
        d = list(decide)
        if t < OPT["fskip"] - 1: d[1] = f"s_cmp_ge_u32 s{sC1}, 0"
        return d
    catch = []
    def wo_at(S, m, gaps):
        st, post = wo_tile(m)
        place_tile(a, S, st, gaps)
        for x in post: S.h(gaps[1], x)
    def tail_vec(S, u, buf, rds):
        pos = [0, 1, 4, 5, 8, 9, 10, 11]
        for r, p in zip(rds, pos): S.v(p, r)
        for k, p in zip(range(8, 12), (2, 3, 6, 7)): S.v(p, ex(u, k))
        for c, p in zip(range(6), (0, 1, 4, 5, 8, 9)): S.v(p, cv(u, buf, c))
    a.e("L_head:")
    a.c("tile 0: scores and stand-in row max (max over the first 32 keys)")
    def qk0(extra):
        S = Sched(a, [mf(Sr(u, j), kf + 4*ks, Qf(j, ks), None if ks == 0 else Sr(u, j)) for u, kf in ((1, VF), (0, KF)) for j in range(3) for ks in range(4)])
        for k, x in enumerate(unit_pre(sBL, 6 * 8192)): S.h(4 + k, x)
        S.h(16, lambda: vmw(a, VMW))
        for k, x in enumerate(dec(-1)): S.h(17 + k, x)
        for k, x in enumerate(extra): S.v(k // 2, x)
        S.emit(None)
    qk0([])
    a.e(".p2align 6")
    a.e("L_head2:")
    a.e("s_barrier")
    for r in rd_k(KF, 1, 0): a.e(r)
    l = newlabel("sk")
    a.e(f"s_cbranch_vccnz {l}")
    emit_tile(a, unit_dma())
    a.e(f"{l}:")
    if OPT["touch"]:
        a.e(f"s_mul_i32 s{sT2}, s{sR}, {163840 if not OPT['wot'] else 327680}")
        a._emit(f"buffer_load_dword v{vD}, v{vTo}, {sr(sWo,4)}, s{sT2} offen")
    if OPT["ctouch"] & 2:
        l = newlabel("ct")
        a.e(f"s_cmp_lg_u32 s{sR}, {OPT['cthead']}"); a.e(f"s_cbranch_scc1 {l}")
        code_touch(a, "L_altwo", "L_hot_end", 158, 159)
        a.e(f"{l}:")
    if OPT["ct2"] and T:
        l = newlabel("ct")
        a.e(f"s_cmp_lg_u32 s{sR}, s{sPre}"); a.e(f"s_cbranch_scc1 {l}")
        code_touch(a, "L_q2b", "L_altwo", 10, 11)
        a.e(f"{l}:")
    if OPT["inbox0"]:
        l = newlabel("ib")
        a.e(f"s_xor_b32 s{sT2}, s{sTyp}, 1"); a.e(f"s_cmp_lg_u32 s{sR}, s{sT2}"); a.e(f"s_cbranch_scc1 {l}")
        sc, ve = inbox_addr(10, vPt)
        for x in sc + ve: a.e(x)
        a._emit(f"global_load_dword v{vD}, v10, s[28:29]"); a._emit(f"global_load_dword v{vPt}, v10, s[28:29] offset:768")
        a.e(f"{l}:")
    l = newlabel("bp")
    a.e(f"s_xor_b32 s{sT2}, s{sR}, 3"); a.e(f"s_or_b32 s{sT2}, s{sT2}, s{sWv}"); a.e(f"s_cbranch_scc1 {l}")
    a._emit("global_load_dword v156, v157, s[18:19] sc1")
    a.e(f"{l}:")
    for j in range(3):
        n = Nm(j); s0 = Sr(0, j); s1 = Sr(1, j)
        a.e(f"v_max3_f32 v{n}, v{s1}, v{s1+1}, v{s1+2}")
        a.e(f"v_max3_f32 v{n+1}, v{s1+3}, v{s0}, v{s0+1}")
        a.e(f"v_max3_f32 v{n}, v{n}, v{s0+2}, v{s0+3}")
        a.e(f"v_max_f32 v{n}, v{n}, v{n+1}")
    rowred(a, "v_max_f32", [Nm(j) for j in range(3)], [Nm(j) + 1 for j in range(3)])
    for j in range(3):
        n = Nm(j)
        a.e(f"v_sub_f32 v{n}, 0, v{n}")
        for r in range(1, 4): a.e(f"v_mov_b32 v{n+r}, v{n}")
    for u in range(2):
        for j in range(3):
            for r in range(4): a.e(f"v_add_f32 v{Sr(u,j)+r}, v{Sr(u,j)+r}, v{Nm(j)}")
    for k in range(12): a.e(ex(0, k))
    for k in range(8): a.e(ex(1, k))
    for c in range(6): a.e(cv(0, 0, c))
    def stage(t, mode):
        a.c(f"stage {t} {mode}")
        kv = mode == "kv"
        S = Sched(a, qk(0)); tail_vec(S, 1, t & 1, rd_v(t, 0))
        if kv and OPT["dyn"] and OPT["thr2"] >= 0 and t >= OPT["cufrom"] and (t - OPT["cufrom"]) % OPT["custep"] == 0:
            l0, l1 = newlabel("cu"), newlabel("cub")
            for k, x in enumerate([f"s_getreg_b32 s{sC1}, hwreg(HW_REG_IB_STS, 0, 4)", f"s_cmp_le_u32 s{sC1}, {OPT['thr2']}",
                                   f"s_cselect_b32 s{sC1}, s{sBL}, s{sCur}", f"s_cmp_lt_i32 s{sC1}, s{sCur}"]): S.h(6 + k, x)
            def site(l0=l0, l1=l1): a.e(f"s_cbranch_scc1 {l0}"); a.e(f"{l1}:")
            S.h(10, site)
            catch.append((l0, l1, t))
        S.emit(pv(t, 0)[0])
        S = Sched(a, pv(t, 0))
        for r, p in zip(rd_k(KF, t+1, 1), (0, 1, 2, 3)): S.v(p, r)
        for k, p in zip(range(8), range(4, 12)): S.v(p, ex(0, k))
        S.h(10, lambda: a.wait(lg="all"))
        if kv:
            for x, p in zip(unit_pre(sBL, (t + 7) * 8192)[:6], (0, 1, 3, 4, 6, 7)): S.h(p, x)
        if mode == "wo" and t == 12:
            ex_ = [f"s_mul_i32 s{sT2}, s{sG}, {XG}", f"s_mul_i32 s{sT3}, s{sU}, {XD}", f"s_add_u32 s{sT2}, s{sT2}, s{sT3}",
                   f"s_mul_i32 s{sT3}, s{sWv}, 1536", f"s_add_u32 s{sT2}, s{sT2}, s{sT3}", f"s_add_u32 s{sT2}, s{sT2}, {5*XP}"]
            for k, x in enumerate(ex_): S.h(k, x)
            ev = ["v_lshrrev_b32 v158, 3, v0", "v_min_u32 v158, 6, v158", "v_mul_u32_u24 v158, 6144, v158", f"v_and_b32 v{vPt}, 7, v0",
                  f"v_min_u32 v{vPt}, 5, v{vPt}", f"v_lshl_add_u32 v158, v{vPt}, 7, v158", f"v_add_u32 v158, s{sT2}, v158"]
            for k, x in enumerate(ev): S.v(k, x)
        if mode == "wq" and t == 13: place_tile(a, S, x_block(1, 0, sXo) + x_block(2, 0, sXo), (2, 4, 7, 9))
        S.emit(qk(1)[0])
        S = Sched(a, qk(1)); tail_vec(S, 0, (t+1) & 1, rd_v(t, 1))
        if kv:
            for x, p in zip(unit_pre(sBL, (t + 7) * 8192)[6:], (0, 1)): S.h(p, x)
            S.h(4, lambda: vmw(a, VMW))
            for k, x in enumerate(dec(t)): S.h(5 + k, x)
        else:
            S.h(11, lambda: vmw(a, {"wo": 8, "wq": 8 if t < 14 else 4}[mode]))
        S.emit(None)
        S = Sched(a, sm(t) + pv(t, 1))
        S.h(0, "s_barrier")
        if t + 2 < 16:
            for r, p in zip(rd_k(KF, t+2, 0), (0, 1, 2, 3)): S.v(p, (r, "kr"))
        elif mode == "wq":
            for k, p in enumerate((0, 1, 2, 3, 4, 6)): S.v(p, (rd_xb(X2reg(0, k >> 1, k & 1), k >> 1, k & 1), "kr"))
        for k, p in zip(range(8), (3, 4, 6, 7, 9, 10, 12, 13)): S.v(p, ex(1, k))
        def vwait(keep):
            def f():
                idx = [n for n, (tg, d) in enumerate(a.lg) if tg != "kr"]
                if len(idx) > keep: a._wait(lg_idx=idx[len(idx) - 1 - keep])
            return f
        S.h(1, vwait(4)); S.h(6, vwait(0))
        if kv: place_guarded(a, S, unit_dma(), (5, 8, 11, 14))
        elif mode == "wo":
            wo_at(S, 2*(t-12), (5, 8)); wo_at(S, 2*(t-12) + 1, (11, 14))
            nt_ = " nt" if OPT["ibnt"] else ""
            if t == OPT["ibt"] and not OPT["noinbox"]: S.v(0, lambda: a._emit(f"global_load_dword v159, v158, s[28:29]{nt_}"))
            if t == 14 and not OPT["noinbox"]: S.v(2, lambda: a._emit(f"global_load_dword v{vPt}, v158, s[28:29] offset:768{nt_}"))
        else:
            if t == 12: place_tile(a, S, x_block(0, 0, sXo), (5, 8))
            else: place_tile(a, S, w_tile(2*t - 17, 2*t - 25, 2), (5, 8))
            place_tile(a, S, w_tile(2*t - 16, 2*t - 24, 2), (11, 14))
        S.h(12, lambda: a.wait(lg="all"))
        S.emit(qk(0)[0] if t < 14 else None)
        assert not a.lg
    NPRE = 24
    def epi_ops(toq):
        o_ = [f"v_mul_f32 v{Or(u,j)+r}, v{Or(u,j)+r}, v{vT+j}" for u in range(2) for j in range(3) for r in range(4)]
        for p in range(4):
            for j in range(3):
                d = Qf(j, p) if toq else Or(2*p, j)
                if p: o_ += [f"v_mul_f32 v{Or(2*p+u,j)+r}, v{Or(2*p+u,j)+r}, v{vT+j}" for u in range(2) for r in range(4)]
                o_ += [f"v_cvt_pk_bf16_f32 v{d+2*u+h}, v{Or(2*p+u,j)+2*h}, v{Or(2*p+u,j)+2*h+1}" for u in range(2) for h in range(2)]
        return o_
    def stage15(mode):
        a.c(f"stage 15 {mode}")
        for r in rd_v(15, 0): a.e(r)
        for k in range(8, 12): a.e(ex(1, k))
        for c in range(6): a.e(cv(1, 1, c))
        S = Sched(a, sm(15) + pv(15, 0) + pv(15, 1, KF))
        for r, p in zip(rd_v(15, 1, KF), range(8)): S.v(p, r)
        for j in range(3): S.v(5 + j, f"v_accvgpr_read_b32 v{vT+j}, a{La(j)[1]}")
        S.v(8, f"v_add_f32 v{vT+3}, v{vT}, v{vT+1}"); S.v(8, f"v_add_f32 v{vT+3}, v{vT+3}, v{vT+2}")
        S.v(9, f"v_mov_b32 v{vT+4}, {f32(2.0**30 if not OPT['forceslow'] else 150.0)}")
        S.v(9, f"v_cmp_nle_f32 vcc, v{vT+3}, v{vT+4}")
        for j, p in enumerate((11, 12, 14) if mode == "wo" else (10, 12, 14)): S.v(p, f"v_rcp_f32 v{vT+j}, v{vT+j}")
        if mode != "wo":
            for k, x in enumerate(epi_ops(0)[:NPRE]): S.v(15 + k // 2, x)
        if mode == "wo":
            for k in range(3): wo_at(S, 6 + k, (10 + 6*k, 13 + 6*k))
        if mode == "wq":
            place_tile(a, S, [s_ for j in range(3) for s_ in x_block(j, 0, sXo1)], (11, 13, 16, 18, 21, 23))
        S.emit(None)
        assert not a.lg
        if not OPT["nocheck"]: a.e("s_cbranch_vccnz L_slow")
    for t in range(15):
        if t == 12:
            a.e(f"s_cmp_eq_u32 s{sR}, 3"); a.e("s_cbranch_scc1 L_altwo")
            if T: a.e(f"s_cmp_eq_u32 s{sR}, s{sPre}"); a.e("s_cbranch_scc1 L_altwq")
        stage(t, "kv")
    stage15("kv")
    a.e("L_epi:")
    for r in rd_k(VF, 0, 1) + rd_k(KF, 0, 0): a.e(r)
    lg_epi = list(a.lg)
    for x in epi_ops(0)[NPRE:]: a.e(x)
    if OPT["stamp"] and not OPT['qprof']: stamp_dyn(a, 5, sR, 4)
    for s_ in (sCur, sCX, sBL, sMin): a.e(f"s_add_u32 s{s_}, s{s_}, 131072")
    a.e(f"s_add_u32 s{sR}, s{sR}, 1")
    a.e(f"s_cmp_eq_u32 s{sR}, 3"); a.e("s_cbranch_scc1 L_sw2")
    a.e(f"s_cmp_eq_u32 s{sR}, 2"); a.e("s_cbranch_scc1 L_sw1")
    for r in range(3):
        a.e(f"L_sw{r}:")
        if r == 1 and T: a.e(f"s_cmp_eq_u32 s{sPre}, 1"); a.e("s_cbranch_scc1 L_q2b")
        for j in range(3):
            for p in range(4):
                for x in range(4): a.e(f"v_accvgpr_read_b32 v{Qf(j,p)+x}, a{QBANK[r+1] + 12*p + 4*j + x}")
        a.raw_wait("s_waitcnt lgkmcnt(0)"); a.lg = []
        qk0(bank_write(OBANK[r], lambda p, j: Or(2*p, j)))
        a.e("s_branch L_head2")
    for l0, l1, t in catch:
        a.e(f"{l0}:")
        for x in unit_pre(sBL, (t + 7) * 8192): a.e(x)
        emit_tile(a, unit_dma())
        a.e(f"s_add_u32 s{sBL}, s{sBL}, 8192")
        a.e(f"s_branch {l1}")
    if T:
        a.e("L_q2b:")
        for x in bank_write(OBANK[1], lambda p, j: Or(2*p, j)): a.e(x)
        a.e(f"s_add_u32 s{sKn}, s{sBL}, {3*8192}"); a.e(f"s_add_u32 s{sMin}, s{sCur}, {3*8192}")
        a.raw_wait("s_waitcnt vmcnt(0) lgkmcnt(0)")
        a.e("s_barrier")
        for n in range(5, LA): emit_tile(a, w_tile(wpos(n), n, 2))
        a.e("s_branch L_q2go")
        a.e(".p2align 6")
        a.e("L_altwq:")
        a.lg = []
        for t in range(12, 15): stage(t, "wq")
        stage15("wq")
        a.e("s_branch L_epi")
    a.e(".p2align 6")
    a.e("L_altwo:")
    a.lg = []
    for t in range(12, 15): stage(t, "wo")
    stage15("wo")
    sPr, sOut, sOo, sDst = sX, sW, sLast, 40
    LD = {0: 184, 1: 130}
    ACC, STG = 60, 160
    vSA, vSB, vLA, vLB, vOA, vFl, vFi, vPoll, vVal, TM, PK = 152, 153, 154, 158, 159, 1, 2, 6, 10, 120, 124
    def Ga(h, i, j): return (72, 208)[h] + 12 * i + 4 * j
    def spin_loop(l0, l1, cmp, reload):
        a.e(f"{l0}:")
        a.e(f"s_mov_b32 s{sT3}, 0")
        l2 = newlabel("spin")
        a.e(f"{l2}:")
        a.e(f"s_add_u32 s{sT3}, s{sT3}, 1")
        a.e(f"s_cmp_ge_u32 s{sT3}, {SPIN_MAX}")
        a.e(f"s_cbranch_scc1 {l1}")
        a.e(f"s_sleep {OPT['sleep']}")
        a._emit(reload)
        a.raw_wait("s_waitcnt vmcnt(0)")
        for x in cmp: a._emit(x)
        a._emit("s_nop 4")
        a.e(f"s_cbranch_vccnz {l2}")
        a.e(f"s_branch {l1}")
    spins = []
    def rd_g(dst, m, f):
        h, o = slot(m); i, c = divmod(f, 2)
        return [f"ds_read_b64_tr_b16 {R(off(dst, 2*e), 2)}, v{(vWAl, vWAh)[h]} offset:{o + c*512 + e*256 + i*32}" for e in range(2)]
    def gmf(n):
        h, t = divmod(n % 16, 8)
        o = []
        for i in range(4):
            for j in range(3):
                for c in range(2):
                    r, p = divmod(2 * t + c, 4)
                    o.append(mf(Ga(h, i, j), Greg(n & 1, 2*i + c), Qf(j, p) if r == 3 else ("a", OBANK[r] + 12 * p + 4 * j), None if t == 0 and c == 0 else Ga(h, i, j)))
        return o
    a.e("L_g:")
    a.lg = []
    if OPT["stamp"] and not OPT['qprof']: stamp(a, 8)
    a.e(f"v_lshrrev_b32 v{TM}, 5, v0"); a.e(f"v_lshlrev_b32 v{TM}, 7, v{TM}")
    a.e(f"v_sub_u32 v{vWAh}, v{vVA}, v{TM}"); a.e(f"v_subrev_u32 v{vWAl}, {VB}, v{vWAh}")
    a.e(f"v_mov_b32 v{TM+1}, {XB}")
    vmw(a, 12)
    l, l0, l1 = newlabel("bc"), newlabel("bs"), newlabel("bok")
    a.e(f"s_cmp_lg_u32 s{sWv}, 0"); a.e(f"s_cbranch_scc1 {l}")
    bcmp = [f"v_and_b32 v{TM}, 0xff, v156", f"v_cmp_gt_u32 vcc, 8, v{TM}"]
    for x in bcmp: a._emit(x)
    a.e(f"s_lshl_b32 s{sTmp}, s{sPK}, 3")
    a._emit("s_nop 3")
    if not OPT["nosync"]: a.e(f"s_cbranch_vccnz {l0}")
    a.e(f"{l1}:")
    spins.append((l0, l1, bcmp, "global_load_dword v156, v157, s[18:19] sc1"))
    a.e(f"v_xor_b32 v156, s{sTmp}, v156")
    a._emit(f"ds_write_b32 v{TM+1}, v156")
    a.e(f"{l}:")
    a.e("s_barrier")
    for f in range(8):
        for r in rd_g(Greg(0, f), 0, f): a.e(r)
    epi = epi_ops(1)
    for x in epi[:16]: a.e(x)
    epi = epi[16:]
    def srd_atoms(d, lo, o): return [[f"s_add_u32 s{d}, s{lo}, {o}", f"s_addc_u32 s{d+1}, s{lo+1}, 0"], [f"s_and_b32 s{d+1}, s{d+1}, 0xffff"], [f"s_mov_b32 s{d+3}, 0x20000"]]
    T1_, T2_ = f"s{sTmp}", f"s{sT2}"
    setup_ = [[f"s_mul_i32 {T1_}, s{sG}, {XG}"]] + srd_atoms(sP, 28, T1_) + [[f"s_mov_b32 s{sP+2}, {XG}"], [f"s_mul_i32 {T2_}, s{sU}, {XD}"], [f"s_add_u32 {T1_}, {T1_}, {T2_}"]]
    setup_ += srd_atoms(sPr, 28, T1_) + [[f"s_mov_b32 s{sPr+2}, 0"]]
    for i in range(7):
        setup_ += [[f"s_xor_b32 s{sDst+i}, s{sU}, {i ^ 7}"], [f"s_mul_i32 s{sDst+i}, s{sDst+i}, {XD}"], [f"s_add_u32 s{sDst+i}, s{sDst+i}, {i*6144}"]]
    setup_ += [[f"s_mul_i32 {T1_}, s{sB}, 491520"], [f"s_mul_i32 {T2_}, s{sBr}, 1280"], [f"s_add_u32 {T1_}, {T1_}, {T2_}"], [f"s_lshl_b32 {T2_}, s{sU}, 5"], [f"s_add_u32 {T1_}, {T1_}, {T2_}"]]
    setup_ += srd_atoms(sOut, 16, T1_) + [[f"s_mov_b32 s{sOut+2}, 0"]]
    setup_ += [[x] for x in (f"s_mul_i32 {T1_}, s{sWv}, 1536", f"v_lshl_add_u32 v{vSA}, v0, 4, {T1_}", f"s_add_u32 {T1_}, {T1_}, 1024", f"v_lshl_add_u32 v{vSB}, v0, 3, {T1_}",
        f"v_and_b32 v{TM}, 15, v0", f"v_mul_u32_u24 v{TM}, 2560, v{TM}", f"v_lshrrev_b32 v{TM+3}, 4, v0", f"v_lshl_add_u32 v{TM}, v{TM+3}, 3, v{TM}",
        f"s_mul_i32 {T1_}, s{sWv}, {48*2560}", f"v_add_u32 v{vOA}, {T1_}, v{TM}",
        f"s_lshl_b32 {T1_}, s{sWv}, 7", f"s_lshl_b32 {T2_}, s{sU}, 2", f"s_add_u32 {T2_}, {T2_}, {T1_}", f"v_lshl_add_u32 v{vFl}, v0, 9, {T2_}",
        f"s_lshl_b32 {T2_}, s{sU}, 9", f"s_add_u32 {T2_}, {T2_}, {T1_}", f"v_and_b32 v{TM}, 7, v0", f"v_lshl_add_u32 v{vFi}, v{TM}, 2, {T2_}",
        f"v_mov_b32 v{vVal}, 0", f"v_mov_b32 v{vPoll}, 0", f"s_mov_b32 s{sGc}, 0", f"s_mov_b32 s{sOo}, -512", f"s_mov_b32 s{sS8}, 0xffff0000")]
    m = 9
    Ss = []
    for n in range(8):
        S = Sched(a, gmf(n)); Ss.append(S)
        rds = []
        for f in range(8): rds += rd_g(Greg((n + 1) & 1, f), n + 1, f)
        for r, p in zip(rds, RDPOS): S.v(p, r)
        for gp in ([(6, 11), (16, 19)] if n < 4 else [(6, 11)]): wo_at(S, m, gp); m += 1
        if n % 4 == 1: end_sync(a, S, {1: 12, 5: 16}[n], 0)
        else: S.h(22, lambda: a.wait(lg="all"))
        if n == 2: S.v(20, f"ds_read_b32 v{TM+2}, v{TM+1}")
        if n == 7:
            S.v(19, f"v_readfirstlane_b32 s{sTmp}, v{TM+2}"); S.h(21, f"s_cmp_lg_u32 s{sTmp}, 0")
    assert m == 21
    n, k = 0, 0
    for atom in setup_:
        while True:
            S = Ss[n]
            ok = (not S.hold[k]) if atom[0].startswith("s_") else free_slots(S)[k] > 0
            if atom[0].startswith("s_") and len(atom) > 1 and free_slots(S)[k] == 0: ok = False
            if ok: break
            k += 1
            if k == 24: n += 1; k = 0
        for x in atom: (S.h if x.startswith("s_") else S.v)(k, x)
        if not atom[0].startswith("s_") or True:
            k += 1
            if k == 24: n += 1; k = 0
    assert (n, k) < (7, 18), (n, k)
    for n in range(7):
        epi = fill_ops(Ss[n], epi)
        if n == 5: assert len(epi) <= 72 - 8, len(epi)
    assert not epi, len(epi)
    for n in range(8):
        a.c(f"G first half, sub-step {n}")
        Ss[n].emit(gmf(n + 1)[0])
    a.e("s_branch L_gx" if OPT["xmode"] == 1 else "s_cbranch_scc1 L_gx")
    NP = {0: 4, 1: 3}
    def cvs(h): return [f"v_cvt_pk_bf16_f32 v{STG + 6*i + 2*j + x}, v{Ga(h,i,j)+2*x}, v{Ga(h,i,j)+2*x+1}" for i in range(NP[h]) for j in range(3) for x in range(2)]
    def rops(h, k):
        o = []
        for r in range(6):
            s = LD[h] + 6*k + r; t = TM + 2 * (r & 1)
            src = Ga(1, 3, r >> 1) + 2 * (r & 1) if (h, k) == (0, 0) else ACC + 2*r
            o += [f"v_lshlrev_b32 v{t}, 16, v{s}", f"v_and_b32 v{t+1}, s{sS8}, v{s}",
                  f"v_add_f32 v{ACC+2*r}, v{src}, v{t}", f"v_add_f32 v{ACC+2*r+1}, v{src+1}, v{t+1}"]
        return o
    rcv = [f"v_cvt_pk_bf16_f32 v{PK+r}, v{ACC+2*r}, v{ACC+2*r+1}" for r in range(6)]
    def rst(j): return ([f"s_add_u32 s{sOff2}, s{sOo}, {j*40960}"], f"buffer_store_dwordx2 {vr(PK+2*j,2)}, v{vOA}, {sr(sOut,4)}, s{sOff2} offen")
    chk_cmp = [f"v_cmp_gt_u32 vcc, v{vVal}, v{vPoll}"]
    poll = f"buffer_load_dword v{vPoll}, v{vFi}, {sr(sF,4)}, 0 offen sc1"

    def g_phase(fast):
        pol = "" if fast else " sc1"
        la, lb = (vSA, vSB) if fast else (vLA, vLB)
        def xst(h, i): return [([], f"buffer_store_dwordx4 {vr(STG+6*i,4)}, v{vSA}, {sr(sP,4)}, s{sDst+4*h+i} offen{pol}"),
                               ([], f"buffer_store_dwordx2 {vr(STG+6*i+4,2)}, v{vSB}, {sr(sP,4)}, s{sDst+4*h+i} offen{pol}")]
        def xld(h, k): return [([f"s_mov_b32 s{sOff2}, {(4*h+k)*6144}"], f"buffer_load_dwordx4 {vr(LD[h]+6*k,4)}, v{la}, {sr(sPr,4)}, s{sOff2} offen sc1"),
                               ([], f"buffer_load_dwordx2 {vr(LD[h]+6*k+4,2)}, v{lb}, {sr(sPr,4)}, s{sOff2} offen sc1")]
        flag = f"buffer_store_dword v{vVal}, v{vFl}, {sr(sF,4)}, 0 offen{pol}"
        def check():
            l0, l1 = newlabel("sp"), newlabel("ok")
            if not OPT["nosync"]: a.e(f"s_cbranch_vccnz {l0}")
            a.e(f"{l1}:")
            spins.append((l0, l1, chk_cmp, poll))
        if fast: a.e(f"v_add_u32 v{vSA}, {5*XP}, v{vSA}"); a.e(f"v_add_u32 v{vSB}, {5*XP}, v{vSB}")
        else: a.e(f"v_subrev_u32 v{vLA}, {XP}, v{vSA}"); a.e(f"v_subrev_u32 v{vLB}, {XP}, v{vSB}")
        a.e(f"s_branch L_gmid{int(fast)}")
        late = []
        def body():
            del late[:]
            Ss = [Sched(a, gmf(n)) for n in range(16)]
            cap = [[2] * 24 for _ in range(16)]
            ops = []
            def vmem(n, g_, steps, kind):
                if isinstance(kind, tuple) and kind[0] == "T": place_tile(a, Ss[n], steps, g_)
                else:
                    for (pre, d), x in zip(steps, g_):
                        for y in pre: Ss[n].h(x, y)
                        Ss[n].v(x, lambda d=d: a._emit(d))
                for x in g_: cap[n][x] = 0; ops.append((n, x, kind))
            tpos = {0: [(6, 11)], 1: [(6, 11)], 4: [(6, 11), (16, 19)], 5: [(11, 16), (19, 22)], 6: [(6, 11)], 7: [(11, 16)]}
            m = 13
            for n in range(16):
                h, t = divmod(n, 8); S = Ss[n]
                rds = []
                for f in range(8): rds += rd_g(Greg((n + 1) & 1, f), n + 1, f)
                for r, p in zip(rds, RDPOS): S.v(p, r); cap[n][p] -= 1
                cap[n][23] = 0 if n % 4 == 1 else 1; cap[n][20] = min(cap[n][20], 1); cap[n][21] = min(cap[n][21], 1)
                for gp in tpos.get(t, []):
                    st, post = wo_tile(m)
                    if m == 16:
                        S.h(gp[0] - 4, f"s_cmp_eq_u32 s{sGc}, 4"); S.h(gp[0] - 3, f"s_cselect_b32 s{sWo+2}, 0, s{sWo+2}")
                    vmem(n, gp, st, ("T", m))
                    for x in post: S.h(gp[1], x)
                    m += 1
                if t == 2:
                    xs = [s_ for i in range(NP[1-h]) for s_ in xst(1 - h, i)] + [s_ for k in range(NP[h]) for s_ in xld(h, k)]
                    pos = [(n + d, g_) for d in (0, 1) for g_ in (6, 11, 16, 19, 20, 21, 22)]
                    for s_, (n2, g_) in zip(xs, pos): vmem(n2, (g_,), [s_], ("X", h))
                if t == 5: vmem(n, (6,), [([], flag)], "F"); S.v(4, f"v_add_u32 v{vVal}, 1, v{vVal}"); cap[n][4] -= 1
                if t == 7: vmem(n, (6,), [([], poll)], ("P", h))
            assert m == 29
            if OPT["opos"] == 0: vmem(4, (20, 21, 22), [rst(j) for j in range(3)], "O")
            else:
                for j, (n2, g_) in enumerate(((6, 16), (8, 16), (14, 16)) if OPT["opos"] == 1 else ((6, 16), (7, 21), (8, 19))): vmem(n2, (g_,), [rst(j)], "O")
            ops.sort(key=lambda x: (x[0], x[1]))
            ops2 = ops + [(n + 16, g_, k) for n, g_, k in ops]
            def younger(pt, n, g_): return len([o for o in ops2 if pt < (o[0], o[1]) < (n, g_)])
            for h in range(2):
                pt = max((o[0], o[1]) for o in ops if o[2] == ("X", h))
                Ss[8*h + 5].h(2, lambda c=younger(pt, 8*h + 5, 2): vmw(a, c))
                pt = [(o[0], o[1]) for o in ops if o[2] == ("P", h)][0]
                nc = 8*h + 9
                Ss[nc % 16].h(16, lambda c=younger(pt, nc, 16): vmw(a, c))
                Ss[nc % 16].v(16, lambda: a._emit(chk_cmp[0])); cap[nc % 16][16] -= 1
                Ss[nc % 16].h(20, check)
            def fill(lst, n, g_, rec=None):
                for op in lst:
                    while cap[n % 16][g_] <= 0:
                        g_ += 1
                        if g_ == 24: n += 1; g_ = 0
                    if not OPT["norv"]: Ss[n % 16].v(g_, lambda op=op: a._emit(op))
                    cap[n % 16][g_] -= 1
                    if rec is not None and n >= 16: rec.append(op)
                return n, g_
            e = fill(cvs(1), 0, 1); assert e < (2, 5), e
            e = fill(cvs(0), 8, 1); assert e < (10, 5), e
            e = fill(rops(0, 0), 5, 2); assert e < (8, 10), e
            e = fill([x for k in range(1, 4) for x in rops(0, k)], *e); assert e < (13, 2), e
            e = fill([x for k in range(3) for x in rops(1, k)] + rcv, 13, 2, late); assert e < (20, 18), e
            S = Ss[7]
            if not fast: S.v(19, f"v_add_u32 v{vSA}, {XP}, v{vSA}"); S.v(20, f"v_add_u32 v{vSB}, {XP}, v{vSB}")
            S = Ss[15]
            S.h(0, f"s_cmp_ge_u32 s{sGc}, 1")
            S.h(1, f"s_cselect_b32 s{sOut+2}, {191*2560 + 1024 + 32}, 0")
            S.h(2, f"s_add_u32 s{sOo}, s{sOo}, 256")
            S.h(3, f"s_mov_b32 s{sPr+2}, {5*XP + XD}")
            if not fast:
                S.v(19, f"v_add_u32 v{vLA}, {XP}, v{vLA}"); S.v(20, f"v_add_u32 v{vLB}, {XP}, v{vLB}")
            S.h(18, f"s_add_u32 s{sGc}, s{sGc}, 1")
            S.h(19, f"s_cmp_lt_u32 s{sGc}, 5")
            for n in range(16):
                a.c(f"G sub-step {n}")
                if n == 8:
                    assert not a.lg
                    a.e(f"L_gmid{int(fast)}:")
                if n % 4 == 1:
                    tid = n + 5 + 16
                    pt = max((o[0], o[1]) for o in ops2 if o[2] == ("T", tid if tid < 29 else tid - 16) and (o[0] < 16) == (tid < 29))
                    cnt = len([o for o in ops2 if pt < (o[0], o[1]) < (n + 16, 22) and (o[0] >= 16 + 8 * (n // 8) or (isinstance(o[2], tuple) and o[2][0] == "T"))])
                    end_sync(a, Ss[n], min(cnt, 63), 0)
                else:
                    def w():
                        k = min(len(a.lg), OPT['gkeep']); a.raw_wait(f"s_waitcnt lgkmcnt({k})"); a.lg = a.lg[len(a.lg) - k:] if k else []
                    Ss[n].h(22, w)
                Ss[n].emit(gmf(n + 1)[0])
        lab = "L_gl_fast" if fast else "L_gl_far"
        if OPT["qprof"] == 2 and fast: stamp(a, 5); stamp(a, 6, False)
        a.e(".p2align 6")
        a.e(f"{lab}:")
        if OPT["qprof"] == 4: stamp_dyn(a, 4, sGc, 5)
        a.lg = []
        mark = len(a.ins); nops0 = a.nops; ns = len(spins)
        body(); lg_end = list(a.lg)
        del a.ins[mark:]; a.nops = nops0; del spins[ns:]
        body(); assert a.lg == lg_end
        a.e(f"s_cbranch_scc1 {lab}")
        if OPT["qprof"] == 2 and fast: stamp(a, 7); stamp(a, 8, False)
        if OPT["qprof"] == 4: stamp(a, 3)
        a.c("tail")
        for x in cvs(1): a.e(x)
        stamp(a, 2)
        vmw(a, 2)
        a._emit(chk_cmp[0]); a._emit("s_nop 4"); check()
        for i in range(3): emit_tile(a, xst(1, i))
        for k in range(4): emit_tile(a, xld(0, k))
        for op in late: a._emit(op)
        vmw(a, 8)
        a.e(f"v_add_u32 v{vVal}, 1, v{vVal}")
        a._emit(flag)
        emit_tile(a, [rst(j) for j in range(3)])
        a.e(f"s_mov_b32 s{sOo}, 1024")
        for k in range(4):
            vmw(a, 2 * (3 - k) + 4)
            for op in rops(0, k): a._emit(op)
            if k == 2: a._emit(poll)
        vmw(a, 0)
        a._emit(chk_cmp[0]); a._emit("s_nop 4"); check()
        for k in range(3): emit_tile(a, xld(1, k))
        for k in range(3):
            vmw(a, 2 * (2 - k))
            for op in rops(1, k): a._emit(op)
        for op in rcv: a._emit(op)
        emit_tile(a, [rst(j) for j in range(3)])
    g_phase(True)
    a.e("L_fin:")
    stamp(a, 9, False); stamp(a, 10)
    if OPT["leak"] >= 0:
        k = OPT["leak"]
        if k == 0: a.e("s_mov_b32 s79, 0")
        elif k == 9: a.e("s_sub_u32 s79, s98, s82"); a.e("s_lshr_b32 s79, s79, 4")
        else: a.e(f"s_sub_u32 s79, s{80+2*k}, s80")
        a.e("s_add_u32 s79, s79, 15000")
        if OPT["leakwg"] == 1: a.e("s_cmp_lt_u32 s2, 8"); a.e("s_cselect_b32 s79, s79, 0")
        if OPT["leakwg"] == 2: a.e("s_cmp_ge_u32 s2, 248"); a.e("s_cselect_b32 s79, s79, 0")
        if OPT["leakwg"] in (4, 5): a.e("s_and_b32 s76, s2, 1"); a.e("s_cselect_b32 s79, s79, 0" if OPT["leakwg"] == 5 else "s_cselect_b32 s79, 0, s79")
        if OPT["leakwg"] == 3: a.e("s_cmp_eq_u32 s2, 0"); a.e("s_cselect_b32 s79, s79, 0")
        a.e("L_leak:")
        a._emit("s_memrealtime s[76:77]"); a.raw_wait("s_waitcnt lgkmcnt(0)")
        a.e("s_sub_u32 s76, s76, s80"); a.e("s_cmp_lt_u32 s76, s79"); a.e("s_cbranch_scc1 L_leak")
    stamp_store(a, "L_end", 0)
    dbg_store(a)
    a.e("L_end:")
    a.e("s_endpgm")
    nsp = len(spins)
    for s_ in list(spins): spin_loop(*s_)
    a.e("L_hot_end:")
    a.e(".p2align 6")
    a.e("L_gx:")
    g_phase(False)
    a.e("s_branch L_fin")
    for s_ in list(spins[nsp:]): spin_loop(*s_)
    a.reset_counters()
    a.e("L_slow:")
    a.raw_wait("s_waitcnt vmcnt(0) lgkmcnt(0)")
    vKo, vVo, t0, t1 = 10, 11, P_ + 12, P_ + 13
    a.e("s_nop 7")
    a.e(f"v_and_b32 v{t0}, 7, v0"); a.e(f"v_lshlrev_b32 v{t0}, 10, v{t0}")
    a.e(f"v_bfe_u32 v{t1}, v0, 3, 1"); a.e(f"v_lshl_add_u32 v{t0}, v{t1}, 8, v{t0}")
    a.e(f"v_lshrrev_b32 v{t1}, 4, v0"); a.e(f"v_lshl_add_u32 v{vKo}, v{t1}, 4, v{t0}")
    a.e(f"v_bfe_u32 v{t0}, v0, 4, 1"); a.e(f"v_lshlrev_b32 v{t0}, 12, v{t0}")
    a.e(f"v_lshrrev_b32 v{t1}, 5, v0"); a.e(f"v_lshl_add_u32 v{t0}, v{t1}, 8, v{t0}")
    a.e(f"v_and_b32 v{t1}, 15, v0"); a.e(f"v_lshl_add_u32 v{vVo}, v{t1}, 1, v{t0}")
    for j in range(3): a.e(f"v_mov_b32 v{vT+j}, 0xff800000")
    def slow_qk(cinit):
        for u, kf in ((0, KF), (1, VF)):
            for ks in range(4): a.e(f"buffer_load_dwordx4 {vr(kf + 4*ks,4)}, v{vKo}, {sr(sK,4)}, s{sT2} offen offset:{u*512 + ks*64}")
        for u, kf in ((0, KF), (1, VF)):
            for j in range(3):
                for ks in range(4):
                    a.e(mf(Sr(u, j), kf + 4*ks, Qf(j, ks), (Nm(j) if cinit else None) if ks == 0 else Sr(u, j)))
    a.e(f"s_mov_b32 s{sT2}, s{sCur}")
    a.e(f"s_add_u32 s{sT3}, s{sCur}, 131072")
    a.e("L_slow_p1:")
    slow_qk(False)
    for j in range(3):
        for u in range(2):
            s = Sr(u, j)
            a.e(f"v_max3_f32 v{vT+j}, v{vT+j}, v{s}, v{s+1}")
            a.e(f"v_max3_f32 v{vT+j}, v{vT+j}, v{s+2}, v{s+3}")
    a.e(f"s_add_u32 s{sT2}, s{sT2}, 8192")
    a.e(f"s_cmp_lt_u32 s{sT2}, s{sT3}")
    a.e("s_cbranch_scc1 L_slow_p1")
    rowred(a, "v_max_f32", [vT, vT+1, vT+2], [Nm(j) for j in range(3)])
    for j in range(3):
        for r in range(4): a.e(f"v_sub_f32 v{Nm(j)+r}, 0, v{vT+j}")
    for r in range(96): a.e(f"v_mov_b32 v{O_+r}, 0")
    for r in range(12): a.e(f"v_accvgpr_write_b32 a{192+r}, 0")
    a.e(f"s_mov_b32 s{sT2}, s{sCur}")
    a.e("L_slow_p2:")
    slow_qk(True)
    for u in range(2):
        for k in range(12): a.e(ex(u, k))
    for u in range(2):
        for c in range(6): a.e(cv(u, 0, c))
    for half, fr in ((0, KF), (1, VF)):
        for hi in range(2):
            for i in range(4):
                for e in range(2):
                    for rp in range(2):
                        r = 2*rp + hi
                        a.e(f"buffer_load_ushort v{(S_ if hi else fr) + 4*i + 2*e + rp}, v{vVo}, {sr(sV,4)}, s{sT2} offen offset:{r*1024 + e*512 + (4*half+i)*32}")
        a.wait(vm="all")
        for x in range(16): a.e(f"v_lshl_or_b32 v{fr+x}, v{S_+x}, 16, v{fr+x}")
    for m in sm(2): a.e(m)
    for half, fr in ((0, KF), (1, VF)):
        for m in pv(2, half, fr): a.e(m)
    a.e(f"s_add_u32 s{sT2}, s{sT2}, 8192")
    a.e(f"s_cmp_lt_u32 s{sT2}, s{sT3}")
    a.e("s_nop 7")
    a.e("s_cbranch_scc1 L_slow_p2")
    for j in range(3): a.e(f"v_accvgpr_read_b32 v{vT+j}, a{La(j)[1]}")
    for j in range(3): a.e(f"v_rcp_f32 v{vT+j}, v{vT+j}")
    a.e(f"s_cmp_eq_u32 s{sR}, 3"); a.e("s_cbranch_scc1 L_g")
    for x in epi_ops(0)[:NPRE]: a.e(x)
    a.e("s_branch L_epi")
    return a

HDR = f"""; Fused attention blocks A and B in one launch. One workgroup per CU owns 4 heads of one batch: Q projection,
; softmax attention, output-projection partial (K = 512); the 8 workgroups of a batch then sum their partials.
; kernarg: 0 A_x, 8 A_k, 16 A_v, 24 A_wq, 32 A_wo, 40 B_x, 48 B_k, 56 B_v, 64 B_wq, 72 B_wo, 80 out, 88 debug, 96 ws
; @launch grid=(256,1,1) block=(256,1,1) lds={LDS}
.amdgcn_target "amdgcn-amd-amdhsa--gfx950"
.text
"""
def kern(name, a):
    return f".globl {name}\n.p2align 8\n.type {name},@function\n{name}:\n" + a.text()
def desc(name, nv, acc, ns):
    return f""".p2align 6
.amdhsa_kernel {name}
  .amdhsa_next_free_vgpr {nv}
  .amdhsa_next_free_sgpr {ns}
  .amdhsa_accum_offset {acc}
  .amdhsa_group_segment_fixed_size 0
  .amdhsa_kernarg_size 104
  .amdhsa_user_sgpr_count 2
  .amdhsa_user_sgpr_kernarg_segment_ptr 1
  .amdhsa_system_sgpr_workgroup_id_x 1
  .amdhsa_float_denorm_mode_32 3
.end_amdhsa_kernel
"""
if __name__ == "__main__":
    a = main_kernel()
    if OPT["nodma"] & 1: a.ins = [i for i in a.ins if not (i.kind == "dma" and " v1, " in i.text)]
    if OPT["nodma"] & 2: a.ins = [i for i in a.ins if not (i.kind == "dma" and " v1, " not in i.text)]
    if OPT["nodma"] & 4: a.ins = [i for i in a.ins if not (i.kind == "store" and ("v152," in i.text or "v153," in i.text))]
    if OPT["nox2"]: a.ins = [i for i in a.ins if not (i.kind == "vmem" and ("v121," in i.text))]
    if OPT["noload"]: a.ins = [i for i in a.ins if not (i.kind == "vmem" and ("v152," in i.text or "v153," in i.text))]
    if OPT["strip"] == 2:
        i0 = [k for k, i in enumerate(a.ins) if i.text == "L_head:"][0]; i1 = [k for k, i in enumerate(a.ins) if i.text == "L_epi:"][0]
        a.ins = a.ins[:i0] + [Ins("s_nop 4") if i.kind == "mfma" else i for i in a.ins[i0:i1] if i.kind not in ("lds", "trans", "valu")] + a.ins[i1:]
    if OPT["strip"] == 1:
        i0 = [k for k, i in enumerate(a.ins) if i.text == "L_head:"][0]; i1 = [k for k, i in enumerate(a.ins) if i.text == "L_epi:"][0]
        a.ins = a.ins[:i0] + [i for i in a.ins[i0:i1] if i.kind not in ("mfma", "lds", "trans", "valu")] + a.ins[i1:]
    ns = 102 if OPT["stamp"] else NSGPR
    open(sys.argv[1], "w").write(HDR + kern(NAME + "_kernel", a) + '.section .rodata,"a"\n' + desc(NAME + "_kernel", 512, 256, ns))
    print("instrs", len(a.ins), "nops", a.nops)
```

```python
import sys, math, struct
from asmlib import *

NAME = "concat_heads__mha_block_cached__gqa_block_cached__near_ridge"
def f32(x): return "0x%08x" % struct.unpack("<I", struct.pack("<f", x))[0]
OPT = dict(stamp=0, nodma=0, nocheck=0, touch=0, forceslow=0, map84=0, first=6, rot=1, strip=0, cyc=0, typ=2, track=1, nosync=0, sleep=1, opos=1, lag=4, noack=0, noload=0, stpol=1, nolw=0, krot=1, hrot=0, emu3=0, kvconv=0, sh1=1, sh2=1, sh1t=3, lateq=0, gate=1, ibg=1, ibn=4, xa=0, stag=0, fskip=0, cufrom=4, custep=4, cvo=1, woq=1, ibnt=0, ibt=14, ct2=1, inbox0=0, sparse1=1, noinbox=1, cthead=3, help=3, latekv=0, wot=0, lmax=3, thr=5, thr2=2, dyn=1, xmode=0, gkeep=0, leak=-1, leakwg=0, st0=0, norv=0, now0=0, gcap=0, qprof=0, la=7, ldpol=1, lmode=0, ldfix=0, nox2=0, wnt=0, xnt=0, t0x=0, t0w=0, ctouch=3, dbgout=0)
for a_ in sys.argv[2:]:
    k_, v_ = a_.split("="); assert k_ in OPT, k_; OPT[k_] = int(v_)

def R(x, n):
    t, i = x if isinstance(x, tuple) else ("v", x)
    return f"{t}{i}" if n == 1 else f"{t}[{i}:{i+n-1}]"
def off(x, d): return (x[0], x[1] + d) if isinstance(x, tuple) else x + d
def mf(d, a, b, c):
    return f"v_mfma_f32_16x16x32_bf16 {R(d,4)}, {R(a,4)}, {R(b,4)}, {'0' if c is None else R(c,4)}"

TILE = 8448
VB = 8 * TILE
XB = 16 * TILE
LDS = XB + 24576
NSLOT = 8
CH = NSLOT * 1024
PART = 240 * CH
STAMP_AT = 128 << 20
FLG = 120 << 20
XD = 7 * 6144
XP = 8 * XD
XG = 6 * XP
SPIN_MAX = 200000
def slot(m):
    m %= 16
    return (m & 1), (m >> 1) * TILE

vKV, vKA, vVA, vWAl, vWAh, vW = 1, 2, 3, 4, 5, 6
vT = 7
QF, NM, S_, P_, KF, VF, O_ = 12, 60, 72, 96, 120, 136, 160
vX0, vX1, vXA0, vXA1 = 156, 157, 158, 159
vTo, vD, vPt, vWo = 152, 153, 154, 155
def Qf(j, ks): return QF + 16 * j + 4 * ks
def Nm(j): return NM + 4 * j
def Sr(u, j): return S_ + 12 * u + 4 * j
def Pr(buf, j): return P_ + 12 * buf + 4 * j
def Or(i, j): return O_ + 12 * i + 4 * j
def Wreg(buf, i): return 12 + 32 * buf + 4 * i
def Xreg(buf, j, s): return 76 + 24 * buf + 8 * j + 4 * s
def Qacc(pos, i, j):
    k = 12 * i + 4 * j
    if pos == 0: return ("a", k)
    if pos == 1: return ("a", 96 + k)
    if pos == 2: return ("a", 192 + k) if k < 64 else 124 + (k - 64)
    return O_ + k
QBANK = {3: 0, 2: 48, 1: 96}
OBANK = {0: 144, 1: 96, 2: 48, 3: 0}
def La(j): return ("a", 192 + 4 * j)
ONES = ("a", 204)
def Greg(buf, i): return ("a", 192 + 32 * buf + 4 * i)
sX, sW, sK, sV, sWo, sP = 32, 36, 40, 44, 48, 52
sWv, sKVL, sWL, sXL, sOff, sOff2, sTmp, sR, sCur, sT2, sT3 = 60, 61, 62, 63, 64, 65, 66, 67, 68, 69, 70
sB, sU, sBr, sG, sXo, sPo = 71, 72, 73, 74, 75, 76
sCX, sNX, sLast, sS8, sWoB, sTask, sTyp = 56, 57, 58, 59, 77, 30, 31
sWq, sGc = 26, 27
sWq1, sJ, sRot, sPM, sPK = 20, 21, 22, 23, 24
sF, sD0, sD1 = 8, 12, 13
sJh, sXo1, sPre = 25, 77, 30
sThr = 56
sBL, sMin, sKn, sMv, sMk, sKVv, sC1 = 57, 76, 23, 58, 59, 3, 25
sH = [4, 5, 6, 7]
NSGPR = 80

def stamp(a, k, real=True):
    if not OPT["stamp"]: return
    lg = list(a.lg)
    a.raw_wait("s_waitcnt lgkmcnt(0)")
    if OPT["cyc"] and 2 <= k <= 8: real = False
    a._emit(f"{'s_memrealtime' if real else 's_memtime'} s[{80+2*k}:{81+2*k}]")
    a.raw_wait("s_waitcnt lgkmcnt(0)")
def stamp_dyn(a, base, sidx, n):
    if not OPT["stamp"]: return
    a.raw_wait("s_waitcnt lgkmcnt(0)")
    a._emit("s_memtime s[78:79]" if OPT["cyc"] else "s_memrealtime s[78:79]")
    a.raw_wait("s_waitcnt lgkmcnt(0)")
    for q in range(n):
        a.e(f"s_cmp_eq_u32 s{sidx}, {q}")
        a.e(f"s_cselect_b32 s{80+2*(base+q)}, s78, s{80+2*(base+q)}")
def stamp_store(a, label, base):
    if not OPT["stamp"]: return
    a.e(f"s_cmp_lg_u32 s{sWv}, 0")
    a.e(f"s_cbranch_scc1 {label}")
    for k in range(11): a.e(f"v_mov_b32 v{16+k}, s{80+2*k}")
    a.e("s_lshl_b32 s78, s2, 6"); a.e(f"s_add_u32 s78, s78, {STAMP_AT + base*64}")
    a.e("v_mov_b32 v28, s78")
    a.e("s_mov_b64 exec, 1")
    a.e("global_store_dwordx4 v28, v[16:19], s[28:29]")
    a.e("global_store_dwordx4 v28, v[20:23], s[28:29] offset:16")
    a.e("global_store_dwordx4 v28, v[24:27], s[28:29] offset:32")

def dbg_store(a):
    if not OPT["dbgout"]: return
    l = "L_dbgskip"
    a.e("s_and_b32 s78, s2, 0xdf"); a.e("s_cmp_lg_u32 s78, 5"); a.e(f"s_cbranch_scc1 {l}")
    a.e("s_load_dwordx2 s[24:25], s[0:1], 88")
    for n, k in enumerate((3,4,5,6,7,8,2,10)):
        a.e(f"s_sub_u32 s79, s{80+2*k}, s80"); a.e(f"v_mov_b32 v{32+n}, s79")
    a.e("s_and_b32 s78, s2, 32"); a.e("v_mov_b32 v29, s78")
    a.raw_wait("s_waitcnt lgkmcnt(0)")
    a.e("global_store_dwordx4 v29, v[32:35], s[24:25]")
    a.e("global_store_dwordx4 v29, v[36:39], s[24:25] offset:16")
    a.e(f"{l}:")

def srd(a, d, lo, o, size):
    a.e(f"s_add_u32 s{d}, s{lo}, {o}")
    a.e(f"s_addc_u32 s{d+1}, s{lo+1}, 0")
    a.e(f"s_and_b32 s{d+1}, s{d+1}, 0xffff")
    a.e(f"s_mov_b32 s{d+2}, {size}")
    a.e(f"s_mov_b32 s{d+3}, 0x20000")
_lbl = [0]
def newlabel(p):
    _lbl[0] += 1
    return f"L_{p}_{_lbl[0]}"
class U(str): pass

def ldsbase(m):
    h, o = slot(m); return h * VB + o
def w_tile(m, n, nh=4):
    b = ldsbase(m); base = sWq if n < 4 * nh else sWq1
    rel = ((n % (4 * nh)) // nh) * 262144 + (nh - 1 - n % nh) * 256
    pol = ' nt' if OPT['wnt'] else ''
    return [([f"s_xor_b32 s{sOff}, s{base}, {rel}", f"s_add_u32 m0, s{sWL}, {b}"], f"buffer_load_dwordx4 v{vW}, {sr(sW,4)}, s{sOff} offen{pol} lds"),
            ([f"s_xor_b32 s{sOff}, s{base}, {rel + 8192}", f"s_add_u32 m0, s{sWL}, {b + 1032}"], f"buffer_load_dwordx4 v{vW}, {sr(sW,4)}, s{sOff} offen{pol} lds")]
def kv_tile(m, t):
    b = ldsbase(m); s = sV if m & 1 else sK
    assert t < 16
    so = f"s_xor_b32 s{sOff}, s{sCX}, {t * 8192}"
    return [([so, f"s_add_u32 m0, s{sKVL}, {b}"], f"buffer_load_dwordx4 v{vKV}, {sr(s,4)}, s{sOff} offen nt lds"),
            ([f"s_add_u32 m0, s{sKVL}, {b + 32}"], f"buffer_load_dwordx4 v{vKV}, {sr(s,4)}, s{sOff} offen offset:1024 nt lds")]
def unit_pre(base, add):
    return [f"s_add_u32 s{sMv}, s{base}, {add}", f"s_xor_b32 s{sOff}, s{sMv}, s{sRot}", f"s_bfe_u32 s{sMv}, s{sMv}, 0x3000d", f"s_mul_i32 s{sMv}, s{sMv}, {TILE}",
            f"s_add_u32 s{sMk}, s{base}, {add + 8192}", f"s_xor_b32 s{sOff2}, s{sMk}, s{sRot}", f"s_bfe_u32 s{sMk}, s{sMk}, 0x3000d", f"s_mul_i32 s{sMk}, s{sMk}, {TILE}"]
def unit_dma(so_v=None, so_k=None):
    so_v = sOff if so_v is None else so_v; so_k = sOff2 if so_k is None else so_k
    return [([f"s_add_u32 m0, s{sMv}, s{sKVv}"], f"buffer_load_dwordx4 v{vKV}, {sr(sV,4)}, s{so_v} offen nt lds"),
            (["s_add_u32 m0, m0, 32"], f"buffer_load_dwordx4 v{vKV}, {sr(sV,4)}, s{so_v} offen offset:1024 nt lds"),
            ([f"s_add_u32 m0, s{sMk}, s{sKVL}"], f"buffer_load_dwordx4 v{vKV}, {sr(sK,4)}, s{so_k} offen nt lds"),
            (["s_add_u32 m0, m0, 32"], f"buffer_load_dwordx4 v{vKV}, {sr(sK,4)}, s{so_k} offen offset:1024 nt lds")]
def place_guarded(a, S, steps, gaps):
    for (pre, d), g in zip(steps, gaps):
        for k, x in enumerate(pre): S.h(g - len(pre) + k, x)
        def site(d=d):
            l = newlabel("sk"); a.e(f"s_cbranch_vccnz {l}"); a._emit(d); a.e(f"{l}:")
        S.v(g, site)
def wo_tile(m):
    b = ldsbase(m); h, t = divmod(m % 16, 8); r = t >> 1; rel = (t & 1) * 81920
    st = [([f"s_add_u32 s{sOff}, s{sH[r]}, {rel}", f"s_add_u32 m0, s{sKVL}, {b}"], f"buffer_load_dwordx4 v{vWo}, {sr(sWo,4)}, s{sOff} offen lds"),
          ([f"s_add_u32 s{sOff}, s{sH[r]}, {rel + 1280}", f"s_add_u32 m0, s{sKVL}, {b + 1056}"], f"buffer_load_dwordx4 v{vWo}, {sr(sWo,4)}, s{sOff} offen lds")]
    return st, ([f"s_add_u32 s{sH[r]}, s{sH[r]}, s{(sD0, sD1)[h]}"] if t & 1 else [])
def emit_tile(a, steps):
    for pre, d in steps:
        for x in pre: a.e(x)
        a._emit(d)
def place_tile(a, S, steps, gaps):
    for (pre, d), g in zip(steps, gaps):
        for k, x in enumerate(pre): S.h(g - len(pre) + k, x)
        S.v(g, lambda d=d: a._emit(d))
def rd_w(dst, m, i):
    h, o = slot(m); p, u = divmod(i, 2)
    return [f"ds_read_b64_tr_b16 {R(off(dst, 2*e), 2)}, v{(vWAl, vWAh)[h]} offset:{o + e*512 + p*64 + u*8}" for e in range(2)]
def vmw(a, n): a.raw_wait(f"s_waitcnt vmcnt({n})")

def rowred(a, op, regs, tmps):
    for w in (32, 16):
        for r, t in zip(regs, tmps): a.e(f"v_mov_b32 v{t}, v{r}")
        for r, t in zip(regs, tmps): a.e(f"v_permlane{w}_swap_b32 v{r}, v{t}")
        for r, t in zip(regs, tmps): a.e(f"{op} v{r}, v{r}, v{t}")

RDPOS = [0,1,2,3,4,5,7,8,9,10,12,13,14,15,17,18]
RDPOS_X = [2,3,5,6,8,9,11,12,14,15,16,17,18,19,20,21]

def code_touch(a, lo, hi, vaddr, vdst):
    if not OPT["ctouch"]: return
    l = newlabel("pc")
    a.e("s_getpc_b64 s[14:15]")
    a.e(f"{l}:")
    a.e(f"s_add_u32 s14, s14, {lo}-{l}"); a.e("s_addc_u32 s15, s15, 0")
    a.e(f"s_lshr_b32 s{sT2}, s2, 3"); a.e(f"s_lshl_b32 s{sT2}, s{sT2}, 2"); a.e(f"s_add_u32 s{sT2}, s{sT2}, s{sWv}"); a.e(f"s_lshl_b32 s{sT2}, s{sT2}, 7")
    a.e(f"v_and_b32 v{vaddr}, 3, v0"); a.e(f"v_lshlrev_b32 v{vaddr}, 14, v{vaddr}"); a.e(f"v_add_u32 v{vaddr}, s{sT2}, v{vaddr}")
    a.e(f"v_min_u32 v{vaddr}, {hi}-{lo}-4, v{vaddr}")
    a._emit(f"global_load_dword v{vdst}, v{vaddr}, s[14:15]")

def inbox_addr(va, vt):
    sc = [f"s_mul_i32 s{sT2}, s{sG}, {XG}", f"s_mul_i32 s{sT3}, s{sU}, {XD}", f"s_add_u32 s{sT2}, s{sT2}, s{sT3}",
          f"s_mul_i32 s{sT3}, s{sWv}, 1536", f"s_add_u32 s{sT2}, s{sT2}, s{sT3}", f"s_add_u32 s{sT2}, s{sT2}, {5*XP}"]
    ve = [f"v_lshrrev_b32 v{va}, 3, v0", f"v_min_u32 v{va}, 6, v{va}", f"v_mul_u32_u24 v{va}, 6144, v{va}", f"v_and_b32 v{vt}, 7, v0",
          f"v_min_u32 v{vt}, 5, v{vt}", f"v_lshl_add_u32 v{va}, v{vt}, 7, v{va}", f"v_add_u32 v{va}, s{sT2}, v{va}"]
    return sc, ve

def late_consts(a):
    w_ = 2 if OPT["wot"] else 1
    a.e(f"v_min_u32 v{vTo}, {20*w_-1}, v0"); a.e(f"v_lshlrev_b32 v{vTo}, 7, v{vTo}")
    a.e(f"s_mul_i32 s{sTmp}, s{sB}, {10240*w_}"); a.e(f"s_mul_i32 s{sT2}, s{sWv}, {2560*w_}"); a.e(f"s_add_u32 s{sTmp}, s{sTmp}, s{sT2}")
    a.e(f"v_add_u32 v{vTo}, s{sTmp}, v{vTo}")
    a.e("v_and_b32 v9, 56, v0"); a.e(f"s_lshl_b32 s{sTmp}, s{sWv}, 1"); a.e(f"v_add_u32 v9, s{sTmp}, v9")
    a.e("v_mul_u32_u24 v9, 1280, v9"); a.e("v_and_b32 v8, 7, v0")
    a.e(f"s_xor_b32 s{sTmp}, s{sU}, 7"); a.e(f"s_and_b32 s{sTmp}, s{sTmp}, 3"); a.e(f"s_lshl_b32 s{sTmp}, s{sTmp}, 1"); a.e(f"v_xor_b32 v8, s{sTmp}, v8")
    a.e(f"v_lshl_add_u32 v{vWo}, v8, 4, v9")

def x_block(j, rel, base_s, op="s_add_u32", lds=0):
    so = f"{op} s{sOff2}, s{base_s}, {rel + j*20480}" if base_s is not None else f"s_mov_b32 s{sOff2}, {rel + j*20480}"
    return [([so, f"s_add_u32 m0, s{sXL}, {j*2048 + lds}"], f"buffer_load_dwordx4 v{vX0}, {sr(sX,4)}, s{sOff2} offen{' nt' if OPT['xnt'] else ''} lds"),
            ([f"s_add_u32 m0, s{sXL}, {j*2048 + 1024 + lds}"], f"buffer_load_dwordx4 v{vX1}, {sr(sX,4)}, s{sOff2} offen{' nt' if OPT['xnt'] else ''} lds")]
def rd_xb(dst, j, s): return f"ds_read_b128 {R(dst,4)}, v{(vXA0, vXA1)[s]} offset:{j*2048}"

def end_sync(a, S, vm, keep=2):
    def w():
        n = min(len(a.lg), keep)
        a.raw_wait(f"s_waitcnt vmcnt({vm}) lgkmcnt({n})")
        a.lg = a.lg[len(a.lg) - n:] if n else []
    S.h(22, w); S.h(23, "s_barrier")

sSc = 14
SCALE = f"s_mov_b32 s{sSc}, {f32(math.log2(math.e) / math.sqrt(128.0))}"
def conv_ops(acc, pos, db, tmp):
    o_ = []; k = 0
    for p in range(4):
        for j in range(3):
            t = tmp[k % len(tmp)]; k += 1
            src = []
            for u in range(2):
                o = acc(pos, 2*p + u, j)
                for r in range(4):
                    if isinstance(o, tuple):
                        o_.append(f"v_accvgpr_read_b32 v{t+4*u+r}, a{o[1]+r}"); src.append(t + 4*u + r)
                    else: src.append(o + r)
            o_ += [f"v_mul_f32 v{x}, s{sSc}, v{x}" for x in src]
            d = Qf(j, p) if db is None else src[0]
            o_ += [f"v_cvt_pk_bf16_f32 v{d+r}, v{src[2*r]}, v{src[2*r+1]}" for r in range(4)]
            if db is not None and db != "keep":
                o_ += [f"v_accvgpr_write_b32 a{db + 12*p + 4*j + r}, v{d+r}" for r in range(4)]
    return o_
def free_slots(S):
    cap = []
    for k in range(len(S.mfs)):
        c = 2 - max(0, len(S.hold[k]) - 1)
        for f in S.vec[k]:
            t = f if isinstance(f, str) else f[0] if isinstance(f, tuple) else "vmem"
            c -= 2 if t.startswith(("vmem", "v_exp", "v_rcp")) else 1
        if "s_barrier" in S.hold[k]: c = 0
        cap.append(max(c, 0))
    for k in range(1, len(cap)):
        if cap[k] == 2 and cap[k-1] == 2: cap[k] = 1
    return cap
def fill_ops(S, ops, start=0):
    cap = free_slots(S); n = 0
    for k in range(start, len(cap)):
        for _ in range(cap[k]):
            if n < len(ops): S.v(k, ops[n]); n += 1
    return ops[n:]

def gcv(m, h):
    i, j = divmod(m, 3); p, u = divmod(i, 2); o = Or(i, j)
    return f"v_cvt_pk_bf16_f32 v{S_ + 12*p + 4*j + 2*u + h}, v{o+2*h}, v{o+2*h+1}"
CVS = [gcv(m, h) for m in range(24) for h in range(2)]
def gst(q, rel, base_s):
    p, j = divmod(q, 3)
    return ([f"s_add_u32 s{sOff2}, s{base_s}, {rel + (p*12 + j)*CH}"], f"buffer_store_dwordx4 {vr(S_ + 12*p + 4*j,4)}, v{vPt}, {sr(sP,4)}, s{sOff2} offen{['', ' sc1', ' nt', ' sc0'][OPT['stpol']]}")
def cv_plans():
    caps = [0 if g in (6, 11) else (1 if g in RDPOS else 2) for g in range(24)]
    last = []; ci = 0
    for g, cp in enumerate(caps):
        for _ in range(cp):
            if ci < 48 and ci // 2 + 4 <= g: last.append((g, ci)); ci += 1
    n = ci; first = []
    for g, cp in enumerate(caps):
        for _ in range(cp):
            if ci < 48: first.append((g, ci)); ci += 1
    assert ci == 48 and all(c // 2 > g for g, c in first)
    return last, first, n
PLAN_LAST, PLAN_FIRST, NLAST = cv_plans()

def Q2acc(pos, i, j): return (56 if pos == 0 else O_) + 12 * i + 4 * j
def X2reg(buf, j, s): return ("a", 24 * buf + 8 * j + 4 * s)
def q2mf(n, first):
    s, pos = divmod(n % 8, 2)
    return [mf(Q2acc(pos, i, j), Greg(n & 1, i), X2reg(s >> 1, j, s & 1), None if first and n < 2 else Q2acc(pos, i, j)) for i in range(8) for j in range(3)]

def main_kernel():
    a = Asm()
    T = OPT["typ"]
    if OPT["st0"]: a._emit("s_memrealtime s[80:81]")
    a.e("s_cmp_ge_u32 s2, 256")
    a.e("s_cbranch_scc1 L_end")
    a.e("s_load_dwordx16 s[4:19], s[0:1], 0")
    a.e("s_load_dwordx4 s[20:23], s[0:1], 64")
    a.e("s_load_dwordx2 s[28:29], s[0:1], 96")
    a.e(f"s_bfe_u32 s{sBr}, s2, 0x10002")
    if not OPT["map84"]:
        a.e(f"s_and_b32 s{sB}, s2, 3"); a.e(f"s_lshl_b32 s{sB}, s{sB}, 2")
        a.e(f"s_bfe_u32 s{sTmp}, s2, 0x20003"); a.e(f"s_add_u32 s{sB}, s{sB}, s{sTmp}")
        a.e(f"s_lshr_b32 s{sU}, s2, 5")
    elif OPT["map84"] == 2:
        a.e(f"s_bfe_u32 s{sB}, s2, 0x40003")
        a.e(f"s_and_b32 s{sU}, s2, 3"); a.e(f"s_lshl_b32 s{sU}, s{sU}, 1")
        a.e(f"s_lshr_b32 s{sTmp}, s2, 7"); a.e(f"s_add_u32 s{sU}, s{sU}, s{sTmp}")
    else:
        a.e(f"s_and_b32 s{sB}, s2, 1"); a.e(f"s_lshl_b32 s{sB}, s{sB}, 3")
        a.e(f"s_bfe_u32 s{sTmp}, s2, 0x30003"); a.e(f"s_add_u32 s{sB}, s{sB}, s{sTmp}")
        a.e(f"s_bfe_u32 s{sU}, s2, 0x10001"); a.e(f"s_lshl_b32 s{sU}, s{sU}, 2")
        a.e(f"s_lshr_b32 s{sTmp}, s2, 6"); a.e(f"s_add_u32 s{sU}, s{sU}, s{sTmp}")
    a.e(f"s_lshl_b32 s{sG}, s{sBr}, 4"); a.e(f"s_add_u32 s{sG}, s{sG}, s{sB}")
    if T == 4: a.e(f"s_bfe_u32 s{sTyp}, s2, 0x10003")
    elif T == 3: a.e(f"s_andn2_b32 s{sTyp}, 1, s2")
    elif T == 2: a.e(f"s_and_b32 s{sTyp}, s2, 1")
    else: a.e(f"s_mov_b32 s{sTyp}, {T}")
    a.e("v_lshrrev_b32 v7, 6, v0")
    a.e("v_and_b32 v0, 63, v0")
    a.e(f"v_readfirstlane_b32 s{sWv}, v7")
    a.e("v_and_b32 v8, 15, v0")
    a.e("v_lshrrev_b32 v9, 4, v0")
    a.e("v_and_b32 v10, 1, v9"); a.e("v_lshlrev_b32 v10, 4, v10")
    a.e("v_lshrrev_b32 v11, 1, v9"); a.e("v_lshl_add_u32 v10, v11, 2, v10")
    a.e("v_lshrrev_b32 v11, 1, v7"); a.e("v_lshl_add_u32 v10, v11, 3, v10")
    a.e("v_and_b32 v11, 1, v7"); a.e("v_lshl_add_u32 v10, v11, 1, v10")
    a.e("v_lshlrev_b32 v10, 13, v10"); a.e(f"v_lshl_add_u32 v{vW}, v8, 4, v10")
    a.e("v_mul_u32_u24 v10, 48, v7"); a.e("v_lshrrev_b32 v11, 3, v0"); a.e("v_add_u32 v10, v10, v11")
    a.e("v_mul_u32_u24 v10, 1280, v10")
    a.e("v_and_b32 v11, 7, v0"); a.e("v_xor_b32 v11, v11, v9")
    a.e(f"v_lshl_add_u32 v{vX0}, v11, 4, v10")
    a.e("v_xor_b32 v11, 4, v11"); a.e("v_add_u32 v10, 10240, v10")
    a.e(f"v_lshl_add_u32 v{vX1}, v11, 4, v10")
    a.e(f"s_mul_i32 s{sKVL}, s{sWv}, 2112")
    a.e(f"s_mov_b32 s{sWL}, s{sKVL}")
    a.e(f"s_mul_i32 s{sXL}, s{sWv}, 6144"); a.e(f"s_add_u32 s{sXL}, s{sXL}, {XB}")
    a.e(f"s_mov_b32 s{sCur}, 0"); a.e(f"s_mov_b32 s{sXo}, 0"); a.e(f"s_mov_b32 s{sWq}, 0")
    a.raw_wait("s_waitcnt lgkmcnt(0)")
    a.e(f"s_cmp_eq_u32 s{sBr}, 0")
    a.e("s_cselect_b64 s[4:5], s[4:5], s[14:15]")
    a.e("s_cselect_b64 s[6:7], s[6:7], s[16:17]")
    a.e("s_cselect_b64 s[8:9], s[8:9], s[18:19]")
    a.e("s_cselect_b64 s[10:11], s[10:11], s[20:21]")
    a.e("s_cselect_b64 s[12:13], s[12:13], s[22:23]")
    a.e("s_load_dwordx4 s[16:19], s[0:1], 80")
    a.e(f"s_mul_i32 s{sTmp}, s{sB}, 245760")
    srd(a, sX, 4, f"s{sTmp}", 245760)
    a.e(f"s_lshl_b32 s{sTmp}, s{sU}, 10")
    srd(a, sW, 10, f"s{sTmp}", 639 * 8192 + 1024)
    if OPT["krot"]: a.e(f"s_xor_b32 s{sJ}, s{sB}, s{sU}"); a.e(f"s_and_b32 s{sJ}, s{sJ}, 3")
    else: a.e(f"s_mov_b32 s{sJ}, 0")
    if OPT["hrot"]: a.e(f"s_cmp_lg_u32 s{sTyp}, 0"); a.e(f"s_cselect_b32 s{sJh}, 1, 3"); a.e(f"s_and_b32 s{sJh}, s{sJh}, s{sJ}")
    else: a.e(f"s_mov_b32 s{sJh}, 0")
    a.e(f"s_lshl_b32 s{sWq}, s{sJ}, 18"); a.e(f"s_lshl_b32 s{sTmp}, s{sJh}, 8"); a.e(f"s_or_b32 s{sWq}, s{sWq}, s{sTmp}"); a.e(f"s_add_u32 s{sWq1}, s{sWq}, {1 << 20}")
    a.e(f"s_lshr_b32 s{sXo}, s{sJ}, 1"); a.e(f"s_lshl_b32 s{sXo}, s{sXo}, 7")
    if not OPT['st0']: stamp(a, 0)
    stamp(a, 1, False)
    def common_consts():
        if OPT["rot"]:
            a.e(f"s_lshr_b32 s{sRot}, s2, 4"); a.e(f"s_xor_b32 s{sRot}, s{sRot}, s2"); a.e(f"s_and_b32 s{sRot}, s{sRot}, 15"); a.e(f"s_lshl_b32 s{sRot}, s{sRot}, 13")
        else: a.e(f"s_mov_b32 s{sRot}, 0")
        a.e(f"s_lshl_b32 s{sCur}, s{sJh}, 17"); a.e(f"s_or_b32 s{sRot}, s{sRot}, s{sCur}")
        assert not OPT["hrot"]
        a.e(f"s_mov_b32 s{sCX}, s{sRot}"); a.e(f"s_add_u32 s{sKVv}, s{sKVL}, {VB}")
        a.e("v_bfe_u32 v10, v0, 2, 3")
        a.e("v_lshrrev_b32 v11, 1, v10"); a.e("v_lshlrev_b32 v11, 6, v11"); a.e(f"v_lshl_add_u32 v{vWAl}, v10, 10, v11")
        a.e("v_and_b32 v11, 1, v10"); a.e(f"v_lshl_add_u32 v{vWAl}, v11, 3, v{vWAl}")
        a.e("v_lshrrev_b32 v11, 5, v0"); a.e(f"v_lshl_add_u32 v{vWAl}, v11, 8, v{vWAl}")
        a.e("v_mul_u32_u24 v10, 1056, v10"); a.e("v_lshl_add_u32 v10, v11, 8, v10")
        a.e("v_and_b32 v11, 3, v0"); a.e(f"v_lshl_add_u32 v{vWAl}, v11, 4, v{vWAl}")
        a.e(f"v_lshl_add_u32 v10, v11, 3, v10"); a.e(f"v_add_u32 v{vVA}, {VB}, v10")
        a.e(f"v_add_u32 v{vWAh}, {VB}, v{vWAl}")
        a.e("v_and_b32 v10, 7, v8"); a.e("v_mul_u32_u24 v10, 1056, v10")
        a.e("v_lshrrev_b32 v11, 3, v8"); a.e(f"v_lshl_add_u32 v10, v11, 8, v10")
        a.e(f"v_lshl_add_u32 v{vKA}, v9, 4, v10")
        a.e("v_lshlrev_b32 v10, 4, v0"); a.e(f"v_lshl_add_u32 v{vKV}, v7, 11, v10")
        a.e(f"v_lshlrev_b32 v10, 7, v8"); a.e(f"v_add_u32 v10, s{sXL}, v10")
        a.e("v_lshrrev_b32 v11, 1, v8"); a.e("v_xor_b32 v11, v11, v9")
        a.e(f"s_and_b32 s{sTmp}, s{sJ}, 1"); a.e(f"s_lshl_b32 s{sTmp}, s{sTmp}, 2"); a.e(f"v_xor_b32 v11, s{sTmp}, v11")
        a.e(f"v_lshl_add_u32 v{vXA0}, v11, 4, v10")
        a.e("v_xor_b32 v11, 4, v11"); a.e(f"v_lshl_add_u32 v{vXA1}, v11, 4, v10")
        a.e(f"s_lshl_b32 s{sTmp}, s{sB}, 3"); a.e(f"s_add_u32 s{sTmp}, s{sTmp}, s{sU}"); a.e(f"s_lshl_b32 s{sTmp}, s{sTmp}, 19")
        srd(a, sK, 6, f"s{sTmp}", 4 * 131072)
        srd(a, sV, 8, f"s{sTmp}", 4 * 131072)
        a.e(f"s_mul_i32 s{sTmp}, s{sU}, {512*1280}")
        srd(a, sWo, 12, f"s{sTmp}", 512 * 1280)
        for r in range(4): a.e(f"s_xor_b32 s{sH[r]}, s{sJh}, {r}"); a.e(f"s_mul_i32 s{sH[r]}, s{sH[r]}, 163840")
        a.e(f"s_mov_b32 s{sKn}, 0"); a.e(f"s_mov_b32 s{sMin}, {3*8192}")
        a.e(f"s_cmp_lt_u32 s{sU}, 4")
        a.e(f"s_cselect_b32 s{sTmp}, 128, 0"); a.e(f"s_mov_b32 s{sD0}, 128"); a.e(f"s_cselect_b32 s{sD0}, -128, s{sD0}")
        a.e(f"s_sub_u32 s{sD1}, 256, s{sD0}")
        for r in range(4): a.e(f"s_add_u32 s{sH[r]}, s{sH[r]}, s{sTmp}")
        a.e(f"s_lshl_b32 s{sTmp}, s{sG}, 12"); a.e(f"s_add_u32 s{sTmp}, s{sTmp}, {FLG}")
        srd(a, sF, 28, f"s{sTmp}", 4096)
    def touch0(three):
        if OPT["t0x"]:
            a.e("v_min_u32 v10, 59, v0"); a.e("v_lshlrev_b32 v10, 7, v10")
            a.e(f"s_lshl_b32 s{sTmp}, s{sU}, 2"); a.e(f"s_add_u32 s{sTmp}, s{sTmp}, s{sWv}"); a.e(f"s_mul_i32 s{sTmp}, s{sTmp}, 7680")
            a._emit(f"buffer_load_dword v11, v10, {sr(sX,4)}, s{sTmp} offen")
        if OPT["t0w"] and three:
            a.e("v_lshrrev_b32 v14, 2, v0"); a.e("v_lshlrev_b32 v14, 13, v14"); a.e("v_and_b32 v15, 3, v0"); a.e("v_lshl_add_u32 v14, v15, 7, v14")
            a.e(f"s_and_b32 s{sTmp}, s{sB}, 3"); a.e(f"s_lshl_b32 s{sTmp}, s{sTmp}, 2"); a.e(f"s_add_u32 s{sTmp}, s{sTmp}, s{sWv}"); a.e(f"s_lshl_b32 s{sTmp}, s{sTmp}, 17")
            for k in range(3):
                a.e(f"s_add_u32 s{sT2}, s{sTmp}, {k*256*8192}")
                a._emit(f"buffer_load_dword v{16+k}, v14, {sr(sW,4)}, s{sT2} offen")
    def part_srd(slot_expr, size):
        a.e(f"s_mul_i32 s{sTmp}, s{sG}, {PART}"); slot_expr(); a.e(f"s_lshl_b32 s{sT2}, s{sT2}, 10"); a.e(f"s_add_u32 s{sTmp}, s{sTmp}, s{sT2}")
        srd(a, sP, 28, f"s{sTmp}", size)
    NF = OPT["first"]
    LA = OPT['la']
    def wpos(n): return 8 + n % 8
    def rd_x(buf): return [rd_xb(Xreg(buf, j, s), j, s) for s in range(2) for j in range(3)]
    NF = 2
    def setup(lab):
        common_consts()
        touch0(False)
        code_touch(a, lab, "L_altwo" if not OPT["ct2"] else ("L_p1" if lab == "L_q" else "L_enter"), 10, 11)
        a.e(f"s_lshl_b32 s{sTmp}, s{sU}, 9"); a.e(f"s_lshl_b32 s{sT2}, s{sWv}, 7"); a.e(f"s_add_u32 s{sTmp}, s{sTmp}, s{sT2}")
        a.e("v_and_b32 v8, 7, v0"); a.e(f"v_lshlrev_b32 v8, 2, v8"); a.e("v_mov_b32 v7, 0")
        a._emit(f"buffer_store_dword v7, v8, {sr(sF,4)}, s{sTmp} offen sc1")
        a.e(f"s_mov_b32 s{sR}, 0")
        emit_tile(a, kv_tile(0, 0))
    def bootstrap():
        l = newlabel("boot")
        a.e(f"s_cmp_lg_u32 s{sWv}, 0"); a.e(f"s_cbranch_scc1 {l}")
        a.e(f"s_lshl_b32 s{sTmp}, s{sG}, 2"); a.e(f"s_add_u32 s{sTmp}, s{sTmp}, 128")
        a.e(f"v_mov_b32 v157, s{sTmp}")
        a.e(f"s_getreg_b32 s{sT2}, hwreg(HW_REG_XCC_ID, 0, 4)")
        a.e(f"s_mul_i32 s{sT3}, s{sT2}, s{sT2}"); a.e(f"s_lshl_b32 s{sT3}, s{sT3}, 8"); a.e(f"s_add_u32 s{sT3}, s{sT3}, s{sT2}")
        a.e(f"s_lshl_b32 s{sT3}, s{sT3}, 8"); a.e(f"s_add_u32 s{sPK}, s{sT3}, 1"); a.e(f"v_mov_b32 v158, s{sPK}")
        a.e("s_mov_b64 exec, 1")
        a._emit("global_atomic_add v157, v158, s[18:19]")
        a.e("s_mov_b64 exec, -1")
        a.e(f"{l}:")
    if OPT["stag"]:
        a.e(f"s_and_b32 s{sT2}, s{sB}, 3") if OPT["stag"] < 100 else a.e(f"s_and_b32 s{sT2}, s{sU}, 3")
        a.e("L_stag:"); a.e(f"s_cmp_eq_u32 s{sT2}, 0"); a.e("s_cbranch_scc1 L_stag2"); a.e(f"s_sleep {OPT['stag'] % 100}"); a.e(f"s_sub_u32 s{sT2}, s{sT2}, 1"); a.e("s_branch L_stag"); a.e("L_stag2:")
    a.e(f"s_cmp_lg_u32 s{sTyp}, 0")
    a.e("s_cbranch_scc1 L_p1")
    for j in range(3): emit_tile(a, x_block(j, 0, sXo))
    for n in range(NF): emit_tile(a, w_tile(wpos(n), n))
    setup("L_q")
    if OPT["help"]:
        a.e(f"s_mov_b32 s{sX+2}, {5*245760}")
        a.e("v_min_u32 v8, 59, v0"); a.e("v_lshlrev_b32 v8, 7, v8")
        a.e(f"s_lshl_b32 s{sTmp}, s{sU}, 2"); a.e(f"s_add_u32 s{sTmp}, s{sTmp}, s{sWv}"); a.e(f"s_mul_i32 s{sTmp}, s{sTmp}, 7680"); a.e(f"s_add_u32 s{sTmp}, s{sTmp}, {4*245760}")
        a._emit(f"buffer_load_dword v9, v8, {sr(sX,4)}, s{sTmp} offen")
        if OPT["help"] & 2:
            a.e("v_lshrrev_b32 v8, 2, v0"); a.e("v_lshlrev_b32 v8, 13, v8"); a.e("v_and_b32 v10, 3, v0"); a.e("v_lshl_add_u32 v8, v10, 7, v8")
            a.e(f"s_lshr_b32 s{sTmp}, s{sB}, 3"); a.e(f"s_lshl_b32 s{sTmp}, s{sTmp}, 2"); a.e(f"s_and_b32 s{sT2}, s{sB}, 3"); a.e(f"s_add_u32 s{sTmp}, s{sTmp}, s{sT2}")
            a.e(f"s_lshl_b32 s{sTmp}, s{sTmp}, 2"); a.e(f"s_add_u32 s{sTmp}, s{sTmp}, s{sWv}"); a.e(f"s_mul_i32 s{sTmp}, s{sTmp}, {20*8192}")
            a._emit(f"buffer_load_dword v9, v8, {sr(sW,4)}, s{sTmp} offen")
            a.e(f"s_add_u32 s{sTmp}, s{sTmp}, {4*8192}")
            a._emit(f"buffer_load_dword v9, v8, {sr(sW,4)}, s{sTmp} offen")
    a.e(f"s_mov_b32 s{sPre}, 15")
    for r in range(256):
        if r % 40 == 0 and NF + r // 40 < LA: emit_tile(a, w_tile(wpos(NF + r // 40), NF + r // 40))
        a.e(f"v_accvgpr_write_b32 a{r}, 0")
    for r in list(range(124, 156)) + list(range(160, 256)): a.e(f"v_mov_b32 v{r}, 0")
    if OPT["woq"]:
        a.e(f"s_lshr_b32 s{sTmp}, s{sB}, 3"); a.e(f"s_lshl_b32 s{sTmp}, s{sTmp}, 2"); a.e(f"s_and_b32 s{sT2}, s{sB}, 3"); a.e(f"s_add_u32 s{sTmp}, s{sTmp}, s{sT2}")
        a.e(f"s_lshl_b32 s{sTmp}, s{sTmp}, 2"); a.e(f"s_add_u32 s{sTmp}, s{sTmp}, s{sWv}"); a.e(f"s_mul_i32 s{sTmp}, s{sTmp}, 5120")
        a.e("v_min_u32 v7, 39, v0"); a.e(f"v_lshl_add_u32 v7, v7, 7, s{sTmp}")
    a.raw_wait(f"s_waitcnt vmcnt({2 * (LA - 2)}) lgkmcnt(0)")
    a.e("s_barrier")
    for r in rd_x(0): a.e(r)
    for i in range(8):
        for r in rd_w(Wreg(0, i), wpos(0), i): a.e(r)
    a.raw_wait("s_waitcnt lgkmcnt(0)"); a.lg = []
    if OPT["qprof"] == 1: stamp(a, 5); stamp(a, 6, False)
    def lperm(n, last):
        return 8 + 4 * ((n - 8) & 1) + ((n - 8) >> 1) if last and OPT["cvo"] and 8 <= n < 16 else n
    def qmf(n, last=False):
        s, pos = divmod(lperm(n, last) % 16, 4)
        return [mf(Qacc(pos, i, j), Wreg(n & 1, i), Xreg((s >> 1) & 1, j, s & 1), Qacc(pos, i, j)) for i in range(8) for j in range(3)]
    cvq = conv_ops(Qacc, 0, QBANK[3], [76, 84, 92])
    def early(S, half, h0, gaps):
        pre = [x.replace(f"s{sOff},", f"s{sOff2},") for x in unit_pre(sKn, 0)[4*half:4*half+4]]
        if half == 0: pre = [f"s_cmp_ge_u32 s{sKn}, s{sMin}", "s_cselect_b64 vcc, -1, 0", f"s_cselect_b32 s{sC1}, 0, 8192"] + pre
        else: pre = pre + [f"s_add_u32 s{sKn}, s{sKn}, s{sC1}"]
        for x, h_ in zip(pre, h0): S.h(h_, x)
        place_guarded(a, S, unit_dma(sOff2, sOff2)[2*half:2*half+2], gaps)
    def q_group(last):
        for n in range(16):
            a.c(f"Q sub-step {n}{' (last group)' if last else ''}")
            S = Sched(a, qmf(n, last))
            fin = last and n == 15
            q = n % 8
            xrd = q in (6, 7) and not (last and n >= 8)
            if not fin:
                rds = []
                for i in range(8): rds += rd_w(Wreg((n + 1) & 1, i), wpos(n + 1), i)
                for r, p in zip(rds, RDPOS): S.v(p, r)
                m = n + LA
                if not last or m < 16: place_tile(a, S, w_tile(wpos(m), lperm(m, last)), (6, 11))
                KVN = {8: 7, 9: 8, 10: 9, 11: 10, 12: 11, 13: 12} if not OPT["kvconv"] else {4: 7, 11: 8} if OPT["kvconv"] == 1 else {4: 7}
                if last and n in KVN: place_tile(a, S, kv_tile(KVN[n], KVN[n] >> 1), (16, 19))
                if not (last and n == 14):
                    hi = min(m, 15) if last else m
                    ykv = len([k for k in KVN if n + 2 - LA <= k <= n]) if last else 0
                    end_sync(a, S, 2 * (hi - (n + 2)) + 2 * ykv, 5 if xrd else 2)
            if xrd:
                rx = rd_x(((n >> 3) + 1) & 1)[3*(q-6):3*(q-6)+3]
                if q == 6: S.h(16, lambda: vmw(a, 8))
                for r, p in zip(rx, (19, 20, 21)): S.v(p, (r, "xr"))
            if q in (0, 1, 2) and not (last and n >= 8):
                if q == 0: S.h(12, lambda: a.wait(lg="xr"))
                place_tile(a, S, x_block(q, 128, sXo, "s_xor_b32") if n < 8 else x_block(q, 256, sXo), (16, 19))
            if n in (11, 12) and not last: early(S, n - 11, (0, 1, 2, 3, 7, 8, 12), (16, 19))
            if n == 4 and not last and OPT["woq"]:
                S.h(13, f"s_lshr_b32 s{sOff2}, s{sXo}, 8"); S.h(14, f"s_mul_i32 s{sOff2}, s{sOff2}, 163840")
                S.v(16, lambda: a._emit(f"buffer_load_dword v9, v7, {sr(sWo,4)}, s{sOff2} offen"))
            if n == 15 and not last:
                S.h(12, f"s_mov_b32 s{sWq}, s{sWq1}")
                S.h(13, f"s_add_u32 s{sWq1}, s{sWq1}, {1 << 20}")
                S.h(14, f"s_add_u32 s{sXo}, s{sXo}, 256")
                S.h(15, f"s_cmp_lt_u32 s{sXo}, 1024")
            if last and n == 3: S.h(1, SCALE)
            if last and n >= 10 and OPT["cvo"]: cvq[:] = fill_ops(S, cvq, 4 if n == 10 else 0)
            S.emit(None if fin else qmf(n + 1, last)[0])
    a.e(".p2align 6")
    a.e("L_q:")
    if OPT["qprof"] == 3:
        a.e(f"s_lshr_b32 s{sT3}, s{sXo}, 8"); stamp_dyn(a, 4, sT3, 4)
    mark = len(a.ins); nops0 = a.nops
    q_group(False)
    lg_end = list(a.lg)
    del a.ins[mark:]; a.nops = nops0
    q_group(False)
    assert a.lg == lg_end
    a.e("s_cbranch_scc1 L_q")
    if OPT["ct2"]: code_touch(a, "L_enter", "L_q2b" if T else "L_altwo", 10, 11)
    if OPT["qprof"] == 3: stamp(a, 8)
    q_group(True)
    if OPT["qprof"] == 1: stamp(a, 7); stamp(a, 8, False)
    stamp(a, 3)
    a.c("Q conversion")
    tmp = [60 + 8 * k for k in range(8)]
    rest = cvq + conv_ops(Qacc, 1, QBANK[2], tmp) + conv_ops(Qacc, 2, QBANK[1], tmp) + conv_ops(Qacc, 3, None, tmp)
    steps = [s_ for m in range(10 - OPT["kvconv"], 13) for s_ in kv_tile(m, m >> 1)] if OPT["kvconv"] else []
    at = {int((k + 0.3) * len(rest) / len(steps)): s_ for k, s_ in enumerate(steps)}
    for k, x in enumerate(rest):
        if k in at:
            for y in at[k][0]: a.e(y)
        a.e(x)
        if k in at: a._emit(at[k][1])
    late_consts(a)
    bootstrap()
    a.e("s_branch L_enter")
    a.e("L_p1:")
    a.lg = []
    for j in range(3): emit_tile(a, x_block(j, 0, sXo, lds=VB-XB))
    for n in range(NF): emit_tile(a, w_tile(wpos(n), n, 2))
    a.e(f"s_xor_b32 s{sXo1}, s{sXo}, 128")
    for j in range(3): emit_tile(a, x_block(j, 0, sXo1))
    setup("L_q2")
    late_consts(a)
    a.e(f"s_mov_b32 s{sPre}, 1")
    assert OPT["cvo"] or not OPT["lateq"]
    if OPT["lateq"]: a.e(f"s_mov_b32 s{sMin}, 0")
    for n in range(NF, LA): emit_tile(a, w_tile(wpos(n), n, 2))
    a.e(f"v_subrev_u32 v12, {XB-VB}, v{vXA0}"); a.e(f"v_subrev_u32 v13, {XB-VB}, v{vXA1}")
    a.raw_wait(f"s_waitcnt vmcnt({2 * (LA - 2)}) lgkmcnt(0)")
    for j in range(3):
        for s in range(2): a.e(f"ds_read_b128 {R(X2reg(0, j, s),4)}, v{12+s} offset:{j*2048}")
    a.e("L_q2go:")
    a.e("s_barrier")
    for i in range(8):
        for r in rd_w(Greg(0, i), wpos(0), i): a.e(r)
    a.raw_wait("s_waitcnt lgkmcnt(0)"); a.lg = []
    def q2_group(kind):
        first, last = kind == 0, kind == 2
        for n in range(8):
            a.c(f"Q2 sub-step {n} ({('first', 'loop', 'last')[kind]})")
            S = Sched(a, q2mf(n, first))
            cl, q = divmod(n, 4)
            fin = last and n == 7
            xrd = q < 3 and not (last and cl == 1)
            def xd(k): return k % 4 < 3 and not (last and k >= 0) and not (first and k < 0)
            def wd(k): return not (last and k + LA >= 8)
            def kd(k): return last and 0 <= k <= 5
            if not fin:
                rds = []
                for i in range(8): rds += rd_w(Greg((n + 1) & 1, i), wpos(n + 1), i)
                for r, p in zip(rds, RDPOS_X): S.v(p, r)
            if wd(n): place_tile(a, S, w_tile(wpos(n + LA), n + LA, 2), (4, 7))
            if kd(n): place_tile(a, S, kv_tile(7 + n, (7 + n) >> 1), (10, 13))
            if xrd:
                for s in range(2): S.v(s, (rd_xb(X2reg(1 - cl, q, s), q, s), "xr"))
            if xd(n):
                S.h(7, lambda: a.wait(lg="xr"))
                place_tile(a, S, x_block(q, 256, (sXo, sXo1)[cl]), (10, 13))
            if q == 3 and not last and not (first and OPT['latekv']): early(S, cl, (0, 0, 1, 1, 4, 7, 8) if cl == 0 else (0, 0, 1, 1, 4), (10, 13))
            if n == 7 and not last:
                S.h(16, f"s_mov_b32 s{sWq}, s{sWq1}")
                S.h(17, f"s_add_u32 s{sWq1}, s{sWq1}, {1 << 20}")
                S.h(18, f"s_add_u32 s{sXo1}, s{sXo1}, 256")
                S.h(19, f"s_add_u32 s{sXo}, s{sXo}, 256")
                S.h(20, f"s_cmp_lt_u32 s{sXo}, 1024")
            if not (last and n >= 6):
                k0 = n + 2 - LA
                vm = sum(2 * wd(k) for k in range(k0 + 1, n + 1)) + sum(2 * kd(k) for k in range(k0, n + 1))
                if (n + 1) % 4 < 3 and not (last and n + 1 >= 4) and xd(n - 3):
                    vm = min(vm, sum(2 * wd(k) + 2 * xd(k) + 2 * kd(k) for k in range(n - 2, n + 1)))
                if n == 7 and OPT['cvo']: vm = min(vm, 8)
                end_sync(a, S, vm, 5)
            S.emit(None if fin else q2mf(n + 1, first and n < 7)[0])
    a.e("L_q2:")
    q2_group(0)
    lg_in = list(a.lg)
    a.e(".p2align 6")
    a.e("L_q2l:")
    q2_group(1)
    assert a.lg == lg_in
    a.e("s_cbranch_scc1 L_q2l")
    if OPT["ct2"]:
        l = newlabel("ct")
        a.e(f"s_cmp_lg_u32 s{sR}, 0"); a.e(f"s_cbranch_scc1 {l}")
        code_touch(a, "L_enter", "L_q2b" if T else "L_altwo", 10, 11)
        a.e(f"{l}:")
    cv2 = conv_ops(Q2acc, 0, "keep", [0])
    if not OPT["cvo"]:
        q2_group(2); a.e(SCALE)
    else:
        order = [0, 2, 4, 6, 1, 3, 5, 7]
        def mfs(n):
            s, pos = divmod(order[n], 2)
            return [mf(Q2acc(pos, i, j), Greg(n & 1, i), X2reg(s >> 1, j, s & 1), Q2acc(pos, i, j)) for i in range(8) for j in range(3)]
        kvat = {0: [7], 1: [8], 5: [9, 10], 6: [11, 12]}
        for n in range(8):
            a.c(f"Q2 sub-step {n} (last)")
            S = Sched(a, mfs(n))
            if n < 7:
                rds = []
                for i in range(8): rds += rd_w(Greg((n + 1) & 1, i), wpos(order[n + 1]), i)
                for r, p in zip(rds, RDPOS_X): S.v(p, r)
            if n == 0:
                place_tile(a, S, w_tile(wpos(7), 7, 2), (4, 7)); S.h(14, SCALE)
                for s in range(2): S.v(s, rd_xb(X2reg(1, 0, s), 0, s))
            if n == 1:
                for k, p in enumerate((0, 1, 4, 7)): S.v(p, rd_xb(X2reg(1, 1 + (k >> 1), k & 1), 1 + (k >> 1), k & 1))
            for m, gp in zip(kvat.get(n, []), ((10, 13),) if n < 2 else ((4, 7), (10, 13))):
                un, half = divmod(m - 7, 2)
                pre = [x.replace(f"s{sOff},", f"s{sOff2},") for x in unit_pre(sKn, un * 8192)[4*half:4*half+4]]
                if gp[0] == 4: pre = [x.replace(f"s{sOff2},", f"s{sOff},") for x in pre]
                for x, h_ in zip(pre, (0, 0, 1, 2) if gp[0] == 4 else (0, 1, 4, 8) if n < 2 else (4, 5, 7, 8)): S.h(h_, x)
                so = sOff if gp[0] == 4 else sOff2
                place_tile(a, S, unit_dma(so, so)[2*half:2*half+2], gp)
            if n < 6: end_sync(a, S, {0: 6, 1: 6, 5: 8}.get(n, 20), 5)
            if n >= 4: cv2 = fill_ops(S, cv2, 4 if n == 4 else 0)
            S.emit(mfs(n + 1)[0] if n < 7 else None)
    if OPT["stamp"] and not OPT["qprof"]:
        a.e(f"s_lshr_b32 s{sT2}, s{sR}, 1"); stamp_dyn(a, 3, sT2, 2)
    a.c("Q2 conversion")
    for x in cv2: a.e(x)
    def bank_write(db, src):
        return [f"v_accvgpr_write_b32 a{db + 12*p + 4*j + x}, v{src(p, j)+x}" for p in range(4) for j in range(3) for x in range(4)]
    a.e(f"s_cmp_lg_u32 s{sR}, 0"); a.e("s_cbranch_scc1 L_cv2b")
    if OPT["touch"]:
        a.e("v_min_u32 v8, 39, v0"); a.e("v_lshrrev_b32 v9, 2, v8"); a.e("v_lshlrev_b32 v9, 13, v9")
        a.e("v_and_b32 v8, 3, v8"); a.e("v_lshl_add_u32 v9, v8, 7, v9")
        a.e(f"s_lshl_b32 s{sTmp}, s{sB}, 2"); a.e(f"s_add_u32 s{sTmp}, s{sTmp}, s{sWv}"); a.e(f"s_mul_i32 s{sTmp}, s{sTmp}, {10*8192}")
        a.e(f"s_add_u32 s{sTmp}, s{sTmp}, 512")
        a._emit(f"buffer_load_dword v{vD}, v9, {sr(sW,4)}, s{sTmp} offen")
    a.e(f"s_and_b32 s{sWq}, s{sWq}, 0xfffff"); a.e(f"s_xor_b32 s{sWq}, s{sWq}, 512"); a.e(f"s_add_u32 s{sWq1}, s{sWq}, {1 << 20}")
    a.e(f"s_and_b32 s{sXo}, s{sXo}, 128"); a.e(f"s_xor_b32 s{sXo1}, s{sXo}, 128")
    for x in bank_write(QBANK[1], lambda p, j: Q2acc(0, 2*p, j)): a.e(x)
    a.e("s_branch L_cv2c")
    a.e("L_cv2b:")
    if OPT["emu3"]:
        a.e(f"s_cmp_eq_u32 s{sPre}, 1"); a.e("s_cbranch_scc0 L_cv2d")
        a.e(f"s_mov_b32 s{sPre}, 14")
        a.e(f"s_and_b32 s{sWq}, s{sWq}, 0xfffff"); a.e(f"s_add_u32 s{sWq1}, s{sWq}, {1 << 20}")
        a.e(f"s_and_b32 s{sXo}, s{sXo}, 128"); a.e(f"s_xor_b32 s{sXo1}, s{sXo}, 128")
        a.raw_wait("s_waitcnt vmcnt(0)"); a.e("s_barrier")
        for n in range(LA): emit_tile(a, w_tile(wpos(n), n, 2))
        a.raw_wait("s_waitcnt vmcnt(0)")
        a.e("s_branch L_q2go")
        a.e("L_cv2d:")
    a.e("s_nop 7")
    for x in bank_write(QBANK[3], lambda p, j: Q2acc(0, 2*p, j)): a.e(x)
    bootstrap()
    a.e("L_cv2c:")
    for x in conv_ops(Q2acc, 1, None, [0]): a.e(x)
    a.e("L_enter:")
    a.e(f"v_mov_b32 v{vT}, 0x3f803f80")
    if OPT["sparse1"]:
        a.e(f"v_and_b32 v{vT+1}, 3, v0"); a.e(f"v_cmp_eq_u32 vcc, 0, v{vT+1}"); a.e(f"v_cndmask_b32 v{vT}, 0, v{vT}, vcc")
    for r in range(4): a.e(f"v_accvgpr_write_b32 a{ONES[1]+r}, v{vT}")
    def rd_k(dst, t, u): return [f"ds_read_b128 {vr(dst + 4*ks,4)}, v{vKA} offset:{(t % 8)*TILE + u*512 + ks*64}" for ks in range(4)]
    def rd_v(t, half, fr=VF):
        return [f"ds_read_b64_tr_b16 {vr(fr + 4*i + 2*e, 2)}, v{vVA} offset:{(t % 8)*TILE + e*512 + (4*half+i)*32}" for i in range(4) for e in range(2)]
    a.e(f"s_sub_u32 s{sBL}, s{sKn}, {3*8192}"); a.e(f"s_sub_u32 s{sMin}, s{sCur}, {OPT['lmax']*8192}")
    assert OPT["cvo"] or not T
    THR = OPT['thr'] + 1 if OPT['dyn'] else 99
    a.e(f"s_cmp_eq_u32 s{sTyp}, 0"); a.e(f"s_cselect_b32 s{sThr}, {0 if OPT['sh1'] else THR}, {THR}")
    vmw(a, 12)
    a.e("s_barrier")
    a.lg = []
    for r in rd_k(VF, 0, 1) + rd_k(KF, 0, 0): a.e(r)
    if OPT["qprof"] < 3 and T == 0: stamp(a, 4)
    def ex(u, k): j, r = divmod(k, 4); s = Sr(u, j) + r; return f"v_exp_f32 v{s}, v{s}"
    def cv(u, buf, c): j, h = divmod(c, 2); s = Sr(u, j) + 2*h; return f"v_cvt_pk_bf16_f32 v{Pr(buf,j) + 2*u + h}, v{s}, v{s+1}"
    def qk(u): return [mf(Sr(u, j), KF + 4*ks, Qf(j, ks), Nm(j) if ks == 0 else Sr(u, j)) for j in range(3) for ks in range(4)]
    def pv(t, half, fr=VF): return [mf(Or(4*half + i, j), fr + 4*i, Pr(t & 1, j), None if t == 0 else Or(4*half + i, j)) for i in range(4) for j in range(3)]
    def sm(t): return [mf(La(j), ONES, Pr(t & 1, j), None if t == 0 else La(j)) for j in range(3)]
    VMW = 4 * (5 - OPT["lmax"])
    decide = [f"s_getreg_b32 s{sC1}, hwreg(HW_REG_IB_STS, 0, 4)", f"s_cmp_ge_u32 s{sC1}, s{sThr}", f"s_cselect_b32 s{sC1}, s{sBL}, s{sMin}",
              f"s_cmp_gt_i32 s{sC1}, s{sMin}", "s_cselect_b64 vcc, -1, 0", f"s_cselect_b32 s{sC1}, 8192, 0", f"s_sub_u32 s{sBL}, s{sBL}, s{sC1}"]
    def dec(t):
        d = list(decide)
        if t < OPT["fskip"] - 1: d[1] = f"s_cmp_ge_u32 s{sC1}, 0"
        return d
    catch = []
    def wo_at(S, m, gaps):
        st, post = wo_tile(m)
        place_tile(a, S, st, gaps)
        for x in post: S.h(gaps[1], x)
    def tail_vec(S, u, buf, rds):
        pos = [0, 1, 4, 5, 8, 9, 10, 11]
        for r, p in zip(rds, pos): S.v(p, r)
        for k, p in zip(range(8, 12), (2, 3, 6, 7)): S.v(p, ex(u, k))
        for c, p in zip(range(6), (0, 1, 4, 5, 8, 9)): S.v(p, cv(u, buf, c))
    a.e("L_head:")
    a.c("tile 0: scores and stand-in row max (max over the first 32 keys)")
    def qk0(extra):
        S = Sched(a, [mf(Sr(u, j), kf + 4*ks, Qf(j, ks), None if ks == 0 else Sr(u, j)) for u, kf in ((1, VF), (0, KF)) for j in range(3) for ks in range(4)])
        for k, x in enumerate(unit_pre(sBL, 6 * 8192)): S.h(4 + k, x)
        S.h(16, lambda: vmw(a, VMW))
        for k, x in enumerate(dec(-1)): S.h(17 + k, x)
        for k, x in enumerate(extra): S.v(k // 2, x)
        S.emit(None)
    qk0([])
    a.e(".p2align 6")
    a.e("L_head2:")
    a.e("s_barrier")
    for r in rd_k(KF, 1, 0): a.e(r)
    l = newlabel("sk")
    a.e(f"s_cbranch_vccnz {l}")
    emit_tile(a, unit_dma())
    a.e(f"{l}:")
    if OPT["touch"]:
        a.e(f"s_mul_i32 s{sT2}, s{sR}, {163840 if not OPT['wot'] else 327680}")
        a._emit(f"buffer_load_dword v{vD}, v{vTo}, {sr(sWo,4)}, s{sT2} offen")
    if OPT["ctouch"] & 2:
        l = newlabel("ct")
        a.e(f"s_cmp_lg_u32 s{sR}, {OPT['cthead']}"); a.e(f"s_cbranch_scc1 {l}")
        code_touch(a, "L_altwo", "L_hot_end", 158, 159)
        a.e(f"{l}:")
    if OPT["ct2"] and T:
        l = newlabel("ct")
        a.e(f"s_cmp_lg_u32 s{sR}, s{sPre}"); a.e(f"s_cbranch_scc1 {l}")
        code_touch(a, "L_q2b", "L_altwo", 10, 11)
        a.e(f"{l}:")
    if OPT["inbox0"]:
        l = newlabel("ib")
        a.e(f"s_xor_b32 s{sT2}, s{sTyp}, 1"); a.e(f"s_cmp_lg_u32 s{sR}, s{sT2}"); a.e(f"s_cbranch_scc1 {l}")
        sc, ve = inbox_addr(10, vPt)
        for x in sc + ve: a.e(x)
        a._emit(f"global_load_dword v{vD}, v10, s[28:29]"); a._emit(f"global_load_dword v{vPt}, v10, s[28:29] offset:768")
        a.e(f"{l}:")
    l = newlabel("bp")
    a.e(f"s_xor_b32 s{sT2}, s{sR}, 3"); a.e(f"s_or_b32 s{sT2}, s{sT2}, s{sWv}"); a.e(f"s_cbranch_scc1 {l}")
    a._emit("global_load_dword v156, v157, s[18:19] sc1")
    a.e(f"{l}:")
    for j in range(3):
        n = Nm(j); s0 = Sr(0, j); s1 = Sr(1, j)
        a.e(f"v_max3_f32 v{n}, v{s1}, v{s1+1}, v{s1+2}")
        a.e(f"v_max3_f32 v{n+1}, v{s1+3}, v{s0}, v{s0+1}")
        a.e(f"v_max3_f32 v{n}, v{n}, v{s0+2}, v{s0+3}")
        a.e(f"v_max_f32 v{n}, v{n}, v{n+1}")
    rowred(a, "v_max_f32", [Nm(j) for j in range(3)], [Nm(j) + 1 for j in range(3)])
    for j in range(3):
        n = Nm(j)
        a.e(f"v_sub_f32 v{n}, 0, v{n}")
        for r in range(1, 4): a.e(f"v_mov_b32 v{n+r}, v{n}")
    for u in range(2):
        for j in range(3):
            for r in range(4): a.e(f"v_add_f32 v{Sr(u,j)+r}, v{Sr(u,j)+r}, v{Nm(j)}")
    for k in range(12): a.e(ex(0, k))
    for k in range(8): a.e(ex(1, k))
    for c in range(6): a.e(cv(0, 0, c))
    def stage(t, mode):
        a.c(f"stage {t} {mode}")
        kv = mode == "kv"
        S = Sched(a, qk(0)); tail_vec(S, 1, t & 1, rd_v(t, 0))
        if kv and OPT["dyn"] and OPT["thr2"] >= 0 and t >= OPT["cufrom"] and (t - OPT["cufrom"]) % OPT["custep"] == 0:
            l0, l1 = newlabel("cu"), newlabel("cub")
            cm = [f"s_add_u32 s{sC1}, s{sC1}, {THR - OPT['thr2']}", f"s_cmp_le_u32 s{sC1}, s{sThr}"] if OPT["gate"] else ["s_nop 0", f"s_cmp_le_u32 s{sC1}, {OPT['thr2']}"]
            for k, x in enumerate([f"s_getreg_b32 s{sC1}, hwreg(HW_REG_IB_STS, 0, 4)"] + cm +
                                  [f"s_cselect_b32 s{sC1}, s{sBL}, s{sCur}", f"s_cmp_lt_i32 s{sC1}, s{sCur}"]): S.h(5 + k, x)
            def site(l0=l0, l1=l1): a.e(f"s_cbranch_scc1 {l0}"); a.e(f"{l1}:")
            S.h(10, site)
            catch.append((l0, l1, t))
        S.emit(pv(t, 0)[0])
        S = Sched(a, pv(t, 0))
        for r, p in zip(rd_k(KF, t+1, 1), (0, 1, 2, 3)): S.v(p, r)
        for k, p in zip(range(8), range(4, 12)): S.v(p, ex(0, k))
        S.h(10, lambda: a.wait(lg="all"))
        if kv:
            for x, p in zip(unit_pre(sBL, (t + 7) * 8192)[:6], (0, 1, 3, 4, 6, 7)): S.h(p, x)
        if mode == "wo" and t == 12:
            ex_ = [f"s_mul_i32 s{sT2}, s{sG}, {XG}", f"s_mul_i32 s{sT3}, s{sU}, {XD}", f"s_add_u32 s{sT2}, s{sT2}, s{sT3}",
                   f"s_mul_i32 s{sT3}, s{sWv}, 1536", f"s_add_u32 s{sT2}, s{sT2}, s{sT3}", f"s_add_u32 s{sT2}, s{sT2}, {5*XP}"]
            for k, x in enumerate(ex_): S.h(k, x)
            ev = ["v_lshrrev_b32 v158, 3, v0", "v_min_u32 v158, 6, v158", "v_mul_u32_u24 v158, 6144, v158", f"v_and_b32 v{vPt}, 7, v0",
                  f"v_min_u32 v{vPt}, 5, v{vPt}", f"v_lshl_add_u32 v158, v{vPt}, 7, v158", f"v_add_u32 v158, s{sT2}, v158"]
            for k, x in enumerate(ev): S.v(k, x)
        if mode == "wq" and t == 13: place_tile(a, S, x_block(1, 0, sXo) + x_block(2, 0, sXo), (2, 4, 7, 9))
        S.emit(qk(1)[0])
        S = Sched(a, qk(1)); tail_vec(S, 0, (t+1) & 1, rd_v(t, 1))
        if kv:
            if t == OPT["sh1t"]: S.h(2, f"s_mov_b32 s{sThr}, {THR}")
            if t == 9 and OPT["sh2"] and T:
                S.h(2, f"s_cmp_eq_u32 s{sR}, s{sPre}"); S.h(3, f"s_cselect_b32 s{sThr}, 0, s{sThr}")
            for x, p in zip(unit_pre(sBL, (t + 7) * 8192)[6:], (0, 1)): S.h(p, x)
            S.h(4, lambda: vmw(a, VMW))
            for k, x in enumerate(dec(t)): S.h(5 + k, x)
        else:
            S.h(11, lambda: vmw(a, {"wo": 8, "wq": 8 if t < 14 else 4}[mode]))
        S.emit(None)
        S = Sched(a, sm(t) + pv(t, 1))
        S.h(0, "s_barrier")
        if t + 2 < 16:
            for r, p in zip(rd_k(KF, t+2, 0), (0, 1, 2, 3)): S.v(p, (r, "kr"))
        elif mode == "wq":
            for k, p in enumerate((0, 1, 2, 3, 4, 6)): S.v(p, (rd_xb(X2reg(0, k >> 1, k & 1), k >> 1, k & 1), "kr"))
        for k, p in zip(range(8), (3, 4, 6, 7, 9, 10, 12, 13)): S.v(p, ex(1, k))
        def vwait(keep):
            def f():
                idx = [n for n, (tg, d) in enumerate(a.lg) if tg != "kr"]
                if len(idx) > keep: a._wait(lg_idx=idx[len(idx) - 1 - keep])
            return f
        S.h(1, vwait(4)); S.h(6, vwait(0))
        if kv: place_guarded(a, S, unit_dma(), (5, 8, 11, 14))
        elif mode == "wo":
            wo_at(S, 2*(t-12), (5, 8)); wo_at(S, 2*(t-12) + 1, (11, 14))
            nt_ = " nt" if OPT["ibnt"] else ""
            if t == OPT["ibt"] and not OPT["noinbox"]: S.v(0, lambda: a._emit(f"global_load_dword v159, v158, s[28:29]{nt_}"))
            if t == 14 and not OPT["noinbox"]: S.v(2, lambda: a._emit(f"global_load_dword v{vPt}, v158, s[28:29] offset:768{nt_}"))
        else:
            if t == 12: place_tile(a, S, x_block(0, 0, sXo), (5, 8))
            else: place_tile(a, S, w_tile(2*t - 17, 2*t - 25, 2), (5, 8))
            place_tile(a, S, w_tile(2*t - 16, 2*t - 24, 2), (11, 14))
        S.h(12, lambda: a.wait(lg="all"))
        S.emit(qk(0)[0] if t < 14 else None)
        assert not a.lg
    NPRE = 24
    def epi_ops(toq):
        o_ = [f"v_mul_f32 v{Or(u,j)+r}, v{Or(u,j)+r}, v{vT+j}" for u in range(2) for j in range(3) for r in range(4)]
        for p in range(4):
            for j in range(3):
                d = Qf(j, p) if toq else Or(2*p, j)
                if p: o_ += [f"v_mul_f32 v{Or(2*p+u,j)+r}, v{Or(2*p+u,j)+r}, v{vT+j}" for u in range(2) for r in range(4)]
                o_ += [f"v_cvt_pk_bf16_f32 v{d+2*u+h}, v{Or(2*p+u,j)+2*h}, v{Or(2*p+u,j)+2*h+1}" for u in range(2) for h in range(2)]
        return o_
    def stage15(mode):
        a.c(f"stage 15 {mode}")
        for r in rd_v(15, 0): a.e(r)
        for k in range(8, 12): a.e(ex(1, k))
        for c in range(6): a.e(cv(1, 1, c))
        S = Sched(a, sm(15) + pv(15, 0) + pv(15, 1, KF))
        for r, p in zip(rd_v(15, 1, KF), range(8)): S.v(p, r)
        for j in range(3): S.v(5 + j, f"v_accvgpr_read_b32 v{vT+j}, a{La(j)[1]}")
        S.v(8, f"v_add_f32 v{vT+3}, v{vT}, v{vT+1}"); S.v(8, f"v_add_f32 v{vT+3}, v{vT+3}, v{vT+2}")
        S.v(9, f"v_mov_b32 v{vT+4}, {f32(2.0**30 if not OPT['forceslow'] else 150.0)}")
        S.v(9, f"v_cmp_nle_f32 vcc, v{vT+3}, v{vT+4}")
        for j, p in enumerate((11, 12, 14) if mode == "wo" else (10, 12, 14)): S.v(p, f"v_rcp_f32 v{vT+j}, v{vT+j}")
        if mode != "wo":
            for k, x in enumerate(epi_ops(0)[:NPRE]): S.v(15 + k // 2, x)
        if mode == "wo":
            for k in range(3): wo_at(S, 6 + k, (10 + 6*k, 13 + 6*k))
        if mode == "wq":
            place_tile(a, S, [s_ for j in range(3) for s_ in x_block(j, 0, sXo1)], (11, 13, 16, 18, 21, 23))
        S.emit(None)
        assert not a.lg
        if not OPT["nocheck"]: a.e("s_cbranch_vccnz L_slow")
    for t in range(15):
        if t == 12:
            a.e(f"s_cmp_eq_u32 s{sR}, 3"); a.e("s_cbranch_scc1 L_altwo")
            if T: a.e(f"s_cmp_eq_u32 s{sR}, s{sPre}"); a.e("s_cbranch_scc1 L_altwq")
        stage(t, "kv")
    stage15("kv")
    a.e("L_epi:")
    for r in rd_k(VF, 0, 1) + rd_k(KF, 0, 0): a.e(r)
    lg_epi = list(a.lg)
    for x in epi_ops(0)[NPRE:]: a.e(x)
    if OPT["stamp"] and not OPT['qprof']: stamp_dyn(a, 5, sR, 4)
    for s_ in (sCur, sBL, sMin): a.e(f"s_add_u32 s{s_}, s{s_}, 131072")
    a.e(f"s_add_u32 s{sR}, s{sR}, 1")
    a.e(f"s_cmp_eq_u32 s{sR}, 3"); a.e("s_cbranch_scc1 L_sw2")
    a.e(f"s_cmp_eq_u32 s{sR}, 2"); a.e("s_cbranch_scc1 L_sw1")
    for r in range(3):
        a.e(f"L_sw{r}:")
        if r == 1 and T: a.e(f"s_cmp_eq_u32 s{sPre}, 1"); a.e("s_cbranch_scc1 L_q2b")
        for j in range(3):
            for p in range(4):
                for x in range(4): a.e(f"v_accvgpr_read_b32 v{Qf(j,p)+x}, a{QBANK[r+1] + 12*p + 4*j + x}")
        a.raw_wait("s_waitcnt lgkmcnt(0)"); a.lg = []
        qk0(bank_write(OBANK[r], lambda p, j: Or(2*p, j)))
        a.e("s_branch L_head2")
    for l0, l1, t in catch:
        a.e(f"{l0}:")
        for x in unit_pre(sBL, (t + 7) * 8192): a.e(x)
        emit_tile(a, unit_dma())
        a.e(f"s_add_u32 s{sBL}, s{sBL}, 8192")
        a.e(f"s_branch {l1}")
    if T:
        a.e("L_q2b:")
        for x in bank_write(OBANK[1], lambda p, j: Or(2*p, j)): a.e(x)
        a.e(f"s_add_u32 s{sKn}, s{sBL}, {3*8192}"); a.e(f"s_add_u32 s{sMin}, s{sCur}, {3*8192}")
        a.raw_wait("s_waitcnt vmcnt(0) lgkmcnt(0)")
        a.e("s_barrier")
        for n in range(5, LA): emit_tile(a, w_tile(wpos(n), n, 2))
        a.e("s_branch L_q2go")
        a.e(".p2align 6")
        a.e("L_altwq:")
        a.lg = []
        for t in range(12, 15): stage(t, "wq")
        stage15("wq")
        a.e("s_branch L_epi")
    a.e(".p2align 6")
    a.e("L_altwo:")
    a.lg = []
    for t in range(12, 15): stage(t, "wo")
    stage15("wo")
    sPr, sOut, sOo, sDst = sX, sW, sLast, 40
    LD = {0: 184, 1: 130}
    ACC, STG = 60, 160
    vSA, vSB, vLA, vLB, vOA, vFl, vFi, vPoll, vVal, TM, PK = 152, 153, 154, 158, 159, 1, 2, 6, 10, 120, 124
    def Ga(h, i, j): return (72, 208)[h] + 12 * i + 4 * j
    def spin_loop(l0, l1, cmp, reload):
        a.e(f"{l0}:")
        a.e(f"s_mov_b32 s{sT3}, 0")
        l2 = newlabel("spin")
        a.e(f"{l2}:")
        a.e(f"s_add_u32 s{sT3}, s{sT3}, 1")
        a.e(f"s_cmp_ge_u32 s{sT3}, {SPIN_MAX}")
        a.e(f"s_cbranch_scc1 {l1}")
        a.e(f"s_sleep {OPT['sleep']}")
        a._emit(reload)
        a.raw_wait("s_waitcnt vmcnt(0)")
        for x in cmp: a._emit(x)
        a._emit("s_nop 4")
        a.e(f"s_cbranch_vccnz {l2}")
        a.e(f"s_branch {l1}")
    spins = []
    def rd_g(dst, m, f):
        h, o = slot(m); i, c = divmod(f, 2)
        return [f"ds_read_b64_tr_b16 {R(off(dst, 2*e), 2)}, v{(vWAl, vWAh)[h]} offset:{o + c*512 + e*256 + i*32}" for e in range(2)]
    def gmf(n):
        h, t = divmod(n % 16, 8)
        o = []
        for i in range(4):
            for j in range(3):
                for c in range(2):
                    r, p = divmod(2 * t + c, 4)
                    o.append(mf(Ga(h, i, j), Greg(n & 1, 2*i + c), Qf(j, p) if r == 3 else ("a", OBANK[r] + 12 * p + 4 * j), None if t == 0 and c == 0 else Ga(h, i, j)))
        return o
    a.e("L_g:")
    a.lg = []
    if OPT["stamp"] and not OPT['qprof']: stamp(a, 8)
    if OPT["qprof"] == 4: stamp(a, 4)
    a.e(f"v_lshrrev_b32 v{TM}, 5, v0"); a.e(f"v_lshlrev_b32 v{TM}, 7, v{TM}")
    a.e(f"v_sub_u32 v{vWAh}, v{vVA}, v{TM}"); a.e(f"v_subrev_u32 v{vWAl}, {VB}, v{vWAh}")
    a.e(f"v_mov_b32 v{TM+1}, {XB}")
    vmw(a, 12)
    l, l0, l1 = newlabel("bc"), newlabel("bs"), newlabel("bok")
    a.e(f"s_cmp_lg_u32 s{sWv}, 0"); a.e(f"s_cbranch_scc1 {l}")
    bcmp = [f"v_and_b32 v{TM}, 0xff, v156", f"v_cmp_gt_u32 vcc, 8, v{TM}"]
    for x in bcmp: a._emit(x)
    a.e(f"s_lshl_b32 s{sTmp}, s{sPK}, 3")
    a._emit("s_nop 3")
    if not OPT["nosync"]: a.e(f"s_cbranch_vccnz {l0}")
    a.e(f"{l1}:")
    spins.append((l0, l1, bcmp, "global_load_dword v156, v157, s[18:19] sc1"))
    a.e(f"v_xor_b32 v156, s{sTmp}, v156")
    a._emit(f"ds_write_b32 v{TM+1}, v156")
    a.e(f"{l}:")
    a.e("s_barrier")
    for f in range(8):
        for r in rd_g(Greg(0, f), 0, f): a.e(r)
    epi = epi_ops(1)
    for x in epi[:16]: a.e(x)
    epi = epi[16:]
    def srd_atoms(d, lo, o): return [[f"s_add_u32 s{d}, s{lo}, {o}", f"s_addc_u32 s{d+1}, s{lo+1}, 0"], [f"s_and_b32 s{d+1}, s{d+1}, 0xffff"], [f"s_mov_b32 s{d+3}, 0x20000"]]
    T1_, T2_ = f"s{sTmp}", f"s{sT2}"
    setup_ = [[f"s_mul_i32 {T1_}, s{sG}, {XG}"]] + srd_atoms(sP, 28, T1_) + [[f"s_mov_b32 s{sP+2}, {XG}"], [f"s_mul_i32 {T2_}, s{sU}, {XD}"], [f"s_add_u32 {T1_}, {T1_}, {T2_}"]]
    setup_ += srd_atoms(sPr, 28, T1_) + [[f"s_mov_b32 s{sPr+2}, 0"]]
    if OPT["ibg"]:
        setup_ += [[x] for x in (f"s_mul_i32 {T2_}, s{sWv}, 1536", f"s_add_u32 {T2_}, {T2_}, {T1_}", f"s_add_u32 {T2_}, {T2_}, {5*XP}",
            "v_min_u32 v148, 47, v0", "v_mul_u32_u24 v149, 43, v148", "v_lshrrev_b32 v149, 9, v149", "v_lshlrev_b32 v148, 7, v148",
            "v_mul_u32_u24 v149, 4608, v149", f"v_add3_u32 v148, v148, v149, {T2_}", f"s_add_u32 {T2_}, {T2_}, {XD - 6144 + 1408}",
            "v_add_u32 v150, 24576, v148", f"v_min_u32 v150, {T2_}, v150")]
    for i in range(7):
        setup_ += [[f"s_xor_b32 s{sDst+i}, s{sU}, {i ^ 7}"], [f"s_mul_i32 s{sDst+i}, s{sDst+i}, {XD}"], [f"s_add_u32 s{sDst+i}, s{sDst+i}, {i*6144}"]]
    setup_ += [[f"s_mul_i32 {T1_}, s{sB}, 491520"], [f"s_mul_i32 {T2_}, s{sBr}, 1280"], [f"s_add_u32 {T1_}, {T1_}, {T2_}"], [f"s_lshl_b32 {T2_}, s{sU}, 5"], [f"s_add_u32 {T1_}, {T1_}, {T2_}"]]
    setup_ += srd_atoms(sOut, 16, T1_) + [[f"s_mov_b32 s{sOut+2}, 0"]]
    setup_ += [[x] for x in (f"s_mul_i32 {T1_}, s{sWv}, 1536", f"v_lshl_add_u32 v{vSA}, v0, 4, {T1_}", f"s_add_u32 {T1_}, {T1_}, 1024", f"v_lshl_add_u32 v{vSB}, v0, 3, {T1_}",
        f"v_and_b32 v{TM}, 15, v0", f"v_mul_u32_u24 v{TM}, 2560, v{TM}", f"v_lshrrev_b32 v{TM+3}, 4, v0", f"v_lshl_add_u32 v{TM}, v{TM+3}, 3, v{TM}",
        f"s_mul_i32 {T1_}, s{sWv}, {48*2560}", f"v_add_u32 v{vOA}, {T1_}, v{TM}",
        f"s_lshl_b32 {T1_}, s{sWv}, 7", f"s_lshl_b32 {T2_}, s{sU}, 2", f"s_add_u32 {T2_}, {T2_}, {T1_}", f"v_lshl_add_u32 v{vFl}, v0, 9, {T2_}",
        f"s_lshl_b32 {T2_}, s{sU}, 9", f"s_add_u32 {T2_}, {T2_}, {T1_}", f"v_and_b32 v{TM}, 7, v0", f"v_lshl_add_u32 v{vFi}, v{TM}, 2, {T2_}",
        f"v_mov_b32 v{vVal}, 0", f"v_mov_b32 v{vPoll}, 0", f"s_mov_b32 s{sGc}, 0", f"s_mov_b32 s{sOo}, -512", f"s_mov_b32 s{sS8}, 0xffff0000")]
    m = 9
    Ss = []
    for n in range(8):
        S = Sched(a, gmf(n)); Ss.append(S)
        rds = []
        for f in range(8): rds += rd_g(Greg((n + 1) & 1, f), n + 1, f)
        for r, p in zip(rds, RDPOS): S.v(p, r)
        for gp in ([(6, 11), (16, 19)] if n < 4 else [(6, 11)]): wo_at(S, m, gp); m += 1
        if n % 4 == 1: end_sync(a, S, {1: 12, 5: 16}[n], 0)
        else: S.h(22, lambda: a.wait(lg="all"))
        if n == 2: S.v(20, f"ds_read_b32 v{TM+2}, v{TM+1}")
        if OPT["ibg"] and n == OPT["ibn"]: S.v(16, lambda: a._emit(f"global_load_dword v149, v148, s[28:29]"))
        if OPT["ibg"] and n == min(7, OPT["ibn"] + 3): S.v(16, lambda: a._emit(f"global_load_dword v151, v150, s[28:29]"))
        if n == 7:
            S.v(19, f"v_readfirstlane_b32 s{sTmp}, v{TM+2}"); S.h(21, f"s_cmp_lg_u32 s{sTmp}, 0")
    assert m == 21
    n, k = 0, 0
    for atom in setup_:
        while True:
            S = Ss[n]
            ok = (not S.hold[k]) if atom[0].startswith("s_") else free_slots(S)[k] > 0
            if atom[0].startswith("s_") and len(atom) > 1 and free_slots(S)[k] == 0: ok = False
            if ok: break
            k += 1
            if k == 24: n += 1; k = 0
        for x in atom: (S.h if x.startswith("s_") else S.v)(k, x)
        if not atom[0].startswith("s_") or True:
            k += 1
            if k == 24: n += 1; k = 0
    assert (n, k) < (7, 18), (n, k)
    for n in range(7):
        epi = fill_ops(Ss[n], epi)
        if n == 5: assert len(epi) <= 72 - 8, len(epi)
    assert not epi, len(epi)
    for n in range(8):
        a.c(f"G first half, sub-step {n}")
        Ss[n].emit(gmf(n + 1)[0])
    a.e("s_branch L_gx" if OPT["xmode"] == 1 else "s_cbranch_scc1 L_gx")
    NP = {0: 4, 1: 3}
    def cvs(h): return [f"v_cvt_pk_bf16_f32 v{STG + 6*i + 2*j + x}, v{Ga(h,i,j)+2*x}, v{Ga(h,i,j)+2*x+1}" for i in range(NP[h]) for j in range(3) for x in range(2)]
    def rops(h, k):
        o = []
        for r in range(6):
            s = LD[h] + 6*k + r; t = TM + 2 * (r & 1)
            src = Ga(1, 3, r >> 1) + 2 * (r & 1) if (h, k) == (0, 0) else ACC + 2*r
            o += [f"v_lshlrev_b32 v{t}, 16, v{s}", f"v_and_b32 v{t+1}, s{sS8}, v{s}",
                  f"v_add_f32 v{ACC+2*r}, v{src}, v{t}", f"v_add_f32 v{ACC+2*r+1}, v{src+1}, v{t+1}"]
        return o
    rcv = [f"v_cvt_pk_bf16_f32 v{PK+r}, v{ACC+2*r}, v{ACC+2*r+1}" for r in range(6)]
    def rst(j): return ([f"s_add_u32 s{sOff2}, s{sOo}, {j*40960}"], f"buffer_store_dwordx2 {vr(PK+2*j,2)}, v{vOA}, {sr(sOut,4)}, s{sOff2} offen")
    chk_cmp = [f"v_cmp_gt_u32 vcc, v{vVal}, v{vPoll}"]
    poll = f"buffer_load_dword v{vPoll}, v{vFi}, {sr(sF,4)}, 0 offen sc1"

    def g_phase(fast):
        pol = "" if fast else " sc1"
        la, lb = (vSA, vSB) if fast else (vLA, vLB)
        def xst(h, i): return [([], f"buffer_store_dwordx4 {vr(STG+6*i,4)}, v{vSA}, {sr(sP,4)}, s{sDst+4*h+i} offen{pol}"),
                               ([], f"buffer_store_dwordx2 {vr(STG+6*i+4,2)}, v{vSB}, {sr(sP,4)}, s{sDst+4*h+i} offen{pol}")]
        def xld(h, k): return [([f"s_mov_b32 s{sOff2}, {(4*h+k)*6144}"], f"buffer_load_dwordx4 {vr(LD[h]+6*k,4)}, v{la}, {sr(sPr,4)}, s{sOff2} offen sc1"),
                               ([], f"buffer_load_dwordx2 {vr(LD[h]+6*k+4,2)}, v{lb}, {sr(sPr,4)}, s{sOff2} offen sc1")]
        flag = f"buffer_store_dword v{vVal}, v{vFl}, {sr(sF,4)}, 0 offen{pol}"
        def check():
            l0, l1 = newlabel("sp"), newlabel("ok")
            if not OPT["nosync"]: a.e(f"s_cbranch_vccnz {l0}")
            a.e(f"{l1}:")
            spins.append((l0, l1, chk_cmp, poll))
        if fast: a.e(f"v_add_u32 v{vSA}, {5*XP}, v{vSA}"); a.e(f"v_add_u32 v{vSB}, {5*XP}, v{vSB}")
        else: a.e(f"v_subrev_u32 v{vLA}, {XP}, v{vSA}"); a.e(f"v_subrev_u32 v{vLB}, {XP}, v{vSB}")
        a.e(f"s_branch L_gmid{int(fast)}")
        late = []
        def body():
            del late[:]
            Ss = [Sched(a, gmf(n)) for n in range(16)]
            cap = [[2] * 24 for _ in range(16)]
            ops = []
            def vmem(n, g_, steps, kind):
                if isinstance(kind, tuple) and kind[0] == "T": place_tile(a, Ss[n], steps, g_)
                else:
                    for (pre, d), x in zip(steps, g_):
                        for y in pre: Ss[n].h(x, y)
                        Ss[n].v(x, lambda d=d: a._emit(d))
                for x in g_: cap[n][x] = 0; ops.append((n, x, kind))
            tpos = {0: [(6, 11)], 1: [(6, 11)], 4: [(6, 11), (16, 19)], 5: [(11, 16), (19, 22)], 6: [(6, 11)], 7: [(11, 16)]}
            m = 13
            for n in range(16):
                h, t = divmod(n, 8); S = Ss[n]
                rds = []
                for f in range(8): rds += rd_g(Greg((n + 1) & 1, f), n + 1, f)
                for r, p in zip(rds, RDPOS): S.v(p, r); cap[n][p] -= 1
                cap[n][23] = 0 if n % 4 == 1 else 1; cap[n][20] = min(cap[n][20], 1); cap[n][21] = min(cap[n][21], 1)
                for gp in tpos.get(t, []):
                    st, post = wo_tile(m)
                    if m == 16:
                        S.h(gp[0] - 4, f"s_cmp_eq_u32 s{sGc}, 4"); S.h(gp[0] - 3, f"s_cselect_b32 s{sWo+2}, 0, s{sWo+2}")
                    vmem(n, gp, st, ("T", m))
                    for x in post: S.h(gp[1], x)
                    m += 1
                if t == 2:
                    xs = [s_ for i in range(NP[1-h]) for s_ in xst(1 - h, i)] + [s_ for k in range(NP[h]) for s_ in xld(h, k)]
                    pos = [(n + d, g_) for d in (0, 1) for g_ in (6, 11, 16, 19, 20, 21, 22)]
                    for s_, (n2, g_) in zip(xs, pos): vmem(n2, (g_,), [s_], ("X", h))
                if t == 5: vmem(n, (6,), [([], flag)], "F"); S.v(4, f"v_add_u32 v{vVal}, 1, v{vVal}"); cap[n][4] -= 1
                if t == 7: vmem(n, (6,), [([], poll)], ("P", h))
            assert m == 29
            if OPT["opos"] == 0: vmem(4, (20, 21, 22), [rst(j) for j in range(3)], "O")
            else:
                for j, (n2, g_) in enumerate(((6, 16), (8, 16), (14, 16)) if OPT["opos"] == 1 else ((6, 16), (7, 21), (8, 19))): vmem(n2, (g_,), [rst(j)], "O")
            ops.sort(key=lambda x: (x[0], x[1]))
            ops2 = ops + [(n + 16, g_, k) for n, g_, k in ops]
            def younger(pt, n, g_): return len([o for o in ops2 if pt < (o[0], o[1]) < (n, g_)])
            for h in range(2):
                pt = max((o[0], o[1]) for o in ops if o[2] == ("X", h))
                Ss[8*h + 5].h(2, lambda c=younger(pt, 8*h + 5, 2): vmw(a, c))
                pt = [(o[0], o[1]) for o in ops if o[2] == ("P", h)][0]
                nc = 8*h + 9
                Ss[nc % 16].h(16, lambda c=younger(pt, nc, 16): vmw(a, c))
                Ss[nc % 16].v(16, lambda: a._emit(chk_cmp[0])); cap[nc % 16][16] -= 1
                Ss[nc % 16].h(20, check)
            def fill(lst, n, g_, rec=None):
                for op in lst:
                    while cap[n % 16][g_] <= 0:
                        g_ += 1
                        if g_ == 24: n += 1; g_ = 0
                    if not OPT["norv"]: Ss[n % 16].v(g_, lambda op=op: a._emit(op))
                    cap[n % 16][g_] -= 1
                    if rec is not None and n >= 16: rec.append(op)
                return n, g_
            e = fill(cvs(1), 0, 1); assert e < (2, 5), e
            e = fill(cvs(0), 8, 1); assert e < (10, 5), e
            e = fill(rops(0, 0), 5, 2); assert e < (8, 10), e
            e = fill([x for k in range(1, 4) for x in rops(0, k)], *e); assert e < (13, 2), e
            e = fill([x for k in range(3) for x in rops(1, k)] + rcv, 13, 2, late); assert e < (20, 18), e
            S = Ss[7]
            if not fast: S.v(19, f"v_add_u32 v{vSA}, {XP}, v{vSA}"); S.v(20, f"v_add_u32 v{vSB}, {XP}, v{vSB}")
            S = Ss[15]
            S.h(0, f"s_cmp_ge_u32 s{sGc}, 1")
            S.h(1, f"s_cselect_b32 s{sOut+2}, {191*2560 + 1024 + 32}, 0")
            S.h(2, f"s_add_u32 s{sOo}, s{sOo}, 256")
            S.h(3, f"s_mov_b32 s{sPr+2}, {5*XP + XD}")
            if not fast:
                S.v(19, f"v_add_u32 v{vLA}, {XP}, v{vLA}"); S.v(20, f"v_add_u32 v{vLB}, {XP}, v{vLB}")
            S.h(18, f"s_add_u32 s{sGc}, s{sGc}, 1")
            S.h(19, f"s_cmp_lt_u32 s{sGc}, 5")
            for n in range(16):
                a.c(f"G sub-step {n}")
                if n == 8:
                    assert not a.lg
                    a.e(f"L_gmid{int(fast)}:")
                if n % 4 == 1:
                    tid = n + 5 + 16
                    pt = max((o[0], o[1]) for o in ops2 if o[2] == ("T", tid if tid < 29 else tid - 16) and (o[0] < 16) == (tid < 29))
                    cnt = len([o for o in ops2 if pt < (o[0], o[1]) < (n + 16, 22) and (o[0] >= 16 + 8 * (n // 8) or (isinstance(o[2], tuple) and o[2][0] == "T"))])
                    end_sync(a, Ss[n], min(cnt, 63), 0)
                else:
                    def w():
                        k = min(len(a.lg), OPT['gkeep']); a.raw_wait(f"s_waitcnt lgkmcnt({k})"); a.lg = a.lg[len(a.lg) - k:] if k else []
                    Ss[n].h(22, w)
                Ss[n].emit(gmf(n + 1)[0])
        lab = "L_gl_fast" if fast else "L_gl_far"
        if OPT["qprof"] == 2 and fast: stamp(a, 5); stamp(a, 6, False)
        a.e(".p2align 6")
        a.e(f"{lab}:")
        if OPT["qprof"] == 4: stamp_dyn(a, 4, sGc, 5)
        a.lg = []
        mark = len(a.ins); nops0 = a.nops; ns = len(spins)
        body(); lg_end = list(a.lg)
        del a.ins[mark:]; a.nops = nops0; del spins[ns:]
        body(); assert a.lg == lg_end
        a.e(f"s_cbranch_scc1 {lab}")
        if OPT["qprof"] == 2 and fast: stamp(a, 7); stamp(a, 8, False)
        if OPT["qprof"] == 4: stamp(a, 3)
        a.c("tail")
        for x in cvs(1): a.e(x)
        stamp(a, 2)
        vmw(a, 2)
        a._emit(chk_cmp[0]); a._emit("s_nop 4"); check()
        for i in range(3): emit_tile(a, xst(1, i))
        for k in range(4): emit_tile(a, xld(0, k))
        for op in late: a._emit(op)
        vmw(a, 8)
        a.e(f"v_add_u32 v{vVal}, 1, v{vVal}")
        a._emit(flag)
        emit_tile(a, [rst(j) for j in range(3)])
        a.e(f"s_mov_b32 s{sOo}, 1024")
        for k in range(4):
            vmw(a, 2 * (3 - k) + 4)
            for op in rops(0, k): a._emit(op)
            if k == 2: a._emit(poll)
        vmw(a, 0)
        a._emit(chk_cmp[0]); a._emit("s_nop 4"); check()
        for k in range(3): emit_tile(a, xld(1, k))
        for k in range(3):
            vmw(a, 2 * (2 - k))
            for op in rops(1, k): a._emit(op)
        for op in rcv: a._emit(op)
        emit_tile(a, [rst(j) for j in range(3)])
    g_phase(True)
    a.e("L_fin:")
    stamp(a, 9, False); stamp(a, 10)
    if OPT["leak"] >= 0:
        k = OPT["leak"]
        if k == 0: a.e("s_mov_b32 s79, 0")
        elif k == 9: a.e("s_sub_u32 s79, s98, s82"); a.e("s_lshr_b32 s79, s79, 4")
        else: a.e(f"s_sub_u32 s79, s{80+2*k}, s80")
        a.e("s_add_u32 s79, s79, 15000")
        if OPT["leakwg"] == 1: a.e("s_cmp_lt_u32 s2, 8"); a.e("s_cselect_b32 s79, s79, 0")
        if OPT["leakwg"] == 2: a.e("s_cmp_ge_u32 s2, 248"); a.e("s_cselect_b32 s79, s79, 0")
        if OPT["leakwg"] in (4, 5): a.e("s_and_b32 s76, s2, 1"); a.e("s_cselect_b32 s79, s79, 0" if OPT["leakwg"] == 5 else "s_cselect_b32 s79, 0, s79")
        if OPT["leakwg"] == 3: a.e("s_cmp_eq_u32 s2, 0"); a.e("s_cselect_b32 s79, s79, 0")
        a.e("L_leak:")
        a._emit("s_memrealtime s[76:77]"); a.raw_wait("s_waitcnt lgkmcnt(0)")
        a.e("s_sub_u32 s76, s76, s80"); a.e("s_cmp_lt_u32 s76, s79"); a.e("s_cbranch_scc1 L_leak")
    stamp_store(a, "L_end", 0)
    dbg_store(a)
    a.e("L_end:")
    a.e("s_endpgm")
    nsp = len(spins)
    for s_ in list(spins): spin_loop(*s_)
    a.e("L_hot_end:")
    a.e(".p2align 6")
    a.e("L_gx:")
    g_phase(False)
    a.e("s_branch L_fin")
    for s_ in list(spins[nsp:]): spin_loop(*s_)
    a.reset_counters()
    a.e("L_slow:")
    a.raw_wait("s_waitcnt vmcnt(0) lgkmcnt(0)")
    vKo, vVo, t0, t1 = 10, 11, P_ + 12, P_ + 13
    a.e("s_nop 7")
    a.e(f"v_and_b32 v{t0}, 7, v0"); a.e(f"v_lshlrev_b32 v{t0}, 10, v{t0}")
    a.e(f"v_bfe_u32 v{t1}, v0, 3, 1"); a.e(f"v_lshl_add_u32 v{t0}, v{t1}, 8, v{t0}")
    a.e(f"v_lshrrev_b32 v{t1}, 4, v0"); a.e(f"v_lshl_add_u32 v{vKo}, v{t1}, 4, v{t0}")
    a.e(f"v_bfe_u32 v{t0}, v0, 4, 1"); a.e(f"v_lshlrev_b32 v{t0}, 12, v{t0}")
    a.e(f"v_lshrrev_b32 v{t1}, 5, v0"); a.e(f"v_lshl_add_u32 v{t0}, v{t1}, 8, v{t0}")
    a.e(f"v_and_b32 v{t1}, 15, v0"); a.e(f"v_lshl_add_u32 v{vVo}, v{t1}, 1, v{t0}")
    for j in range(3): a.e(f"v_mov_b32 v{vT+j}, 0xff800000")
    def slow_qk(cinit):
        for u, kf in ((0, KF), (1, VF)):
            for ks in range(4): a.e(f"buffer_load_dwordx4 {vr(kf + 4*ks,4)}, v{vKo}, {sr(sK,4)}, s{sT2} offen offset:{u*512 + ks*64}")
        for u, kf in ((0, KF), (1, VF)):
            for j in range(3):
                for ks in range(4):
                    a.e(mf(Sr(u, j), kf + 4*ks, Qf(j, ks), (Nm(j) if cinit else None) if ks == 0 else Sr(u, j)))
    a.e(f"s_mov_b32 s{sT2}, s{sCur}")
    a.e(f"s_add_u32 s{sT3}, s{sCur}, 131072")
    a.e("L_slow_p1:")
    slow_qk(False)
    for j in range(3):
        for u in range(2):
            s = Sr(u, j)
            a.e(f"v_max3_f32 v{vT+j}, v{vT+j}, v{s}, v{s+1}")
            a.e(f"v_max3_f32 v{vT+j}, v{vT+j}, v{s+2}, v{s+3}")
    a.e(f"s_add_u32 s{sT2}, s{sT2}, 8192")
    a.e(f"s_cmp_lt_u32 s{sT2}, s{sT3}")
    a.e("s_cbranch_scc1 L_slow_p1")
    rowred(a, "v_max_f32", [vT, vT+1, vT+2], [Nm(j) for j in range(3)])
    for j in range(3):
        for r in range(4): a.e(f"v_sub_f32 v{Nm(j)+r}, 0, v{vT+j}")
    for r in range(96): a.e(f"v_mov_b32 v{O_+r}, 0")
    for r in range(12): a.e(f"v_accvgpr_write_b32 a{192+r}, 0")
    a.e(f"s_mov_b32 s{sT2}, s{sCur}")
    a.e("L_slow_p2:")
    slow_qk(True)
    for u in range(2):
        for k in range(12): a.e(ex(u, k))
    for u in range(2):
        for c in range(6): a.e(cv(u, 0, c))
    for half, fr in ((0, KF), (1, VF)):
        for hi in range(2):
            for i in range(4):
                for e in range(2):
                    for rp in range(2):
                        r = 2*rp + hi
                        a.e(f"buffer_load_ushort v{(S_ if hi else fr) + 4*i + 2*e + rp}, v{vVo}, {sr(sV,4)}, s{sT2} offen offset:{r*1024 + e*512 + (4*half+i)*32}")
        a.wait(vm="all")
        for x in range(16): a.e(f"v_lshl_or_b32 v{fr+x}, v{S_+x}, 16, v{fr+x}")
    for m in sm(2): a.e(m)
    for half, fr in ((0, KF), (1, VF)):
        for m in pv(2, half, fr): a.e(m)
    a.e(f"s_add_u32 s{sT2}, s{sT2}, 8192")
    a.e(f"s_cmp_lt_u32 s{sT2}, s{sT3}")
    a.e("s_nop 7")
    a.e("s_cbranch_scc1 L_slow_p2")
    for j in range(3): a.e(f"v_accvgpr_read_b32 v{vT+j}, a{La(j)[1]}")
    for j in range(3): a.e(f"v_rcp_f32 v{vT+j}, v{vT+j}")
    a.e(f"s_cmp_eq_u32 s{sR}, 3"); a.e("s_cbranch_scc1 L_g")
    for x in epi_ops(0)[:NPRE]: a.e(x)
    a.e("s_branch L_epi")
    return a

HDR = f"""; Fused attention blocks A and B in one launch. One workgroup per CU owns 4 heads of one batch: Q projection,
; softmax attention, output-projection partial (K = 512); the 8 workgroups of a batch then sum their partials.
; kernarg: 0 A_x, 8 A_k, 16 A_v, 24 A_wq, 32 A_wo, 40 B_x, 48 B_k, 56 B_v, 64 B_wq, 72 B_wo, 80 out, 88 debug, 96 ws
; @launch grid=(256,1,1) block=(256,1,1) lds={LDS}
.amdgcn_target "amdgcn-amd-amdhsa--gfx950"
.text
"""
def kern(name, a):
    return f".globl {name}\n.p2align 8\n.type {name},@function\n{name}:\n" + a.text()
def desc(name, nv, acc, ns):
    return f""".p2align 6
.amdhsa_kernel {name}
  .amdhsa_next_free_vgpr {nv}
  .amdhsa_next_free_sgpr {ns}
  .amdhsa_accum_offset {acc}
  .amdhsa_group_segment_fixed_size 0
  .amdhsa_kernarg_size 104
  .amdhsa_user_sgpr_count 2
  .amdhsa_user_sgpr_kernarg_segment_ptr 1
  .amdhsa_system_sgpr_workgroup_id_x 1
  .amdhsa_float_denorm_mode_32 3
.end_amdhsa_kernel
"""
if __name__ == "__main__":
    a = main_kernel()
    if OPT["nodma"] & 1: a.ins = [i for i in a.ins if not (i.kind == "dma" and " v1, " in i.text)]
    if OPT["nodma"] & 2: a.ins = [i for i in a.ins if not (i.kind == "dma" and " v1, " not in i.text)]
    if OPT["nodma"] & 4: a.ins = [i for i in a.ins if not (i.kind == "store" and ("v152," in i.text or "v153," in i.text))]
    if OPT["nodma"] & 8: a.ins = [i for i in a.ins if not (i.kind == "store" and "v159," in i.text)]
    if OPT["nox2"]: a.ins = [i for i in a.ins if not (i.kind == "vmem" and ("v121," in i.text))]
    if OPT["noload"]: a.ins = [i for i in a.ins if not (i.kind == "vmem" and ("v152," in i.text or "v153," in i.text))]
    if OPT["xa"]:
        i0 = [k for k, i in enumerate(a.ins) if i.text == "; stage 0 kv"][0]; i1 = [k for k, i in enumerate(a.ins) if i.text == "; stage 15 kv"][0]
        def drop(i):
            if OPT["xa"] & 1 and i.op == "s_cbranch_vccnz": return True
            if OPT["xa"] & 2 and i.op in ("s_mul_i32", "s_bfe_u32", "s_xor_b32", "s_getreg_b32", "s_cselect_b32", "s_cselect_b64", "s_sub_u32", "s_cmp_gt_u32", "s_cmp_gt_i32", "s_cmp_le_u32"): return True
            if OPT["xa"] & 4 and i.op == "s_barrier": return True
            if OPT["xa"] & 8 and i.op == "s_waitcnt" and "lgkm" in i.text: return True
            if OPT["xa"] & 16 and i.op == "s_mul_i32": return True
            return False
        a.ins = a.ins[:i0] + [i for i in a.ins[i0:i1] if not drop(i)] + a.ins[i1:]
    if OPT["strip"] == 2:
        i0 = [k for k, i in enumerate(a.ins) if i.text == "L_head:"][0]; i1 = [k for k, i in enumerate(a.ins) if i.text == "L_epi:"][0]
        a.ins = a.ins[:i0] + [Ins("s_nop 4") if i.kind == "mfma" else i for i in a.ins[i0:i1] if i.kind not in ("lds", "trans", "valu")] + a.ins[i1:]
    if OPT["strip"] == 1:
        i0 = [k for k, i in enumerate(a.ins) if i.text == "L_head:"][0]; i1 = [k for k, i in enumerate(a.ins) if i.text == "L_epi:"][0]
        a.ins = a.ins[:i0] + [i for i in a.ins[i0:i1] if i.kind not in ("mfma", "lds", "trans", "valu")] + a.ins[i1:]
    ns = 102 if OPT["stamp"] else NSGPR
    open(sys.argv[1], "w").write(HDR + kern(NAME + "_kernel", a) + '.section .rodata,"a"\n' + desc(NAME + "_kernel", 512, 256, ns))
    print("instrs", len(a.ins), "nops", a.nops)
```

```python
import sys, math, struct
from asmlib import *

NAME = "concat_heads__mha_block_cached__gqa_block_cached__near_ridge"
def f32(x): return "0x%08x" % struct.unpack("<I", struct.pack("<f", x))[0]
OPT = dict(stamp=0, nodma=0, nocheck=0, touch=0, forceslow=0, map84=0, first=6, rot=1, strip=0, cyc=0, typ=2, track=1, nosync=0, sleep=1, opos=1, lag=4, noack=0, noload=0, stpol=1, nolw=0, krot=1, hrot=0, emu3=0, zz=1, x1=0, x2=0, opol=2, tl=0, xs=0, kvconv=0, sh1=1, sh2=1, sh1t=3, lateq=0, gate=1, ibg=1, ibn=4, xa=0, stag=0, fskip=0, cufrom=4, custep=4, cvo=1, woq=1, ibnt=0, ibt=14, ct2=1, inbox0=0, sparse1=1, noinbox=1, cthead=3, help=3, latekv=1, wot=0, lmax=3, thr=5, thr2=2, dyn=1, xmode=0, gkeep=0, leak=-1, leakwg=0, st0=0, norv=0, now0=0, gcap=0, qprof=0, la=7, ldpol=1, lmode=0, ldfix=0, nox2=0, wnt=0, xnt=0, t0x=0, t0w=0, ctouch=3, dbgout=0)
for a_ in sys.argv[2:]:
    k_, v_ = a_.split("="); assert k_ in OPT, k_; OPT[k_] = int(v_)

def R(x, n):
    t, i = x if isinstance(x, tuple) else ("v", x)
    return f"{t}{i}" if n == 1 else f"{t}[{i}:{i+n-1}]"
def off(x, d): return (x[0], x[1] + d) if isinstance(x, tuple) else x + d
def mf(d, a, b, c):
    return f"v_mfma_f32_16x16x32_bf16 {R(d,4)}, {R(a,4)}, {R(b,4)}, {'0' if c is None else R(c,4)}"

def zj(i): return (2, 1, 0) if (i & 1) and OPT["zz"] else (0, 1, 2)
def zk(j): return (3, 2, 1, 0) if (j & 1) and OPT["zz"] else (0, 1, 2, 3)
TILE = 8448
VB = 8 * TILE
XB = 16 * TILE
LDS = XB + 24576
NSLOT = 8
CH = NSLOT * 1024
PART = 240 * CH
STAMP_AT = 128 << 20
FLG = 120 << 20
XD = 7 * 6144
XP = 8 * XD
XG = 6 * XP
SPIN_MAX = 200000
def slot(m):
    m %= 16
    return (m & 1), (m >> 1) * TILE

vKV, vKA, vVA, vWAl, vWAh, vW = 1, 2, 3, 4, 5, 6
vT = 7
QF, NM, S_, P_, KF, VF, O_ = 12, 60, 72, 96, 120, 136, 160
vX0, vX1, vXA0, vXA1 = 156, 157, 158, 159
vTo, vD, vPt, vWo = 152, 153, 154, 155
def Qf(j, ks): return QF + 16 * j + 4 * ks
def Nm(j): return NM + 4 * j
def Sr(u, j): return S_ + 12 * u + 4 * j
def Pr(buf, j): return P_ + 12 * buf + 4 * j
def Or(i, j): return O_ + 12 * i + 4 * j
def Wreg(buf, i): return 12 + 32 * buf + 4 * i
def Xreg(buf, j, s): return 76 + 24 * buf + 8 * j + 4 * s
def Qacc(pos, i, j):
    k = 12 * i + 4 * j
    if pos == 0: return ("a", k)
    if pos == 1: return ("a", 96 + k)
    if pos == 2: return ("a", 192 + k) if k < 64 else 124 + (k - 64)
    return O_ + k
QBANK = {3: 0, 2: 48, 1: 96}
OBANK = {0: 144, 1: 96, 2: 48, 3: 0}
def La(j): return ("a", 192 + 4 * j)
ONES = ("a", 204)
def Greg(buf, i): return ("a", 192 + 32 * buf + 4 * i)
sX, sW, sK, sV, sWo, sP = 32, 36, 40, 44, 48, 52
sWv, sKVL, sWL, sXL, sOff, sOff2, sTmp, sR, sCur, sT2, sT3 = 60, 61, 62, 63, 64, 65, 66, 67, 68, 69, 70
sB, sU, sBr, sG, sXo, sPo = 71, 72, 73, 74, 75, 76
sCX, sNX, sLast, sS8, sWoB, sTask, sTyp = 56, 57, 58, 59, 77, 30, 31
sWq, sGc = 26, 27
sWq1, sJ, sRot, sPM, sPK = 20, 21, 22, 23, 24
sF, sD0, sD1 = 8, 12, 13
sJh, sXo1, sPre = 25, 77, 30
sThr = 56
sBL, sMin, sKn, sMv, sMk, sKVv, sC1 = 57, 76, 23, 58, 59, 3, 25
sH = [4, 5, 6, 7]
NSGPR = 80

def stamp(a, k, real=True):
    if not OPT["stamp"]: return
    lg = list(a.lg)
    a.raw_wait("s_waitcnt lgkmcnt(0)")
    if OPT["cyc"] and 2 <= k <= 8: real = False
    a._emit(f"{'s_memrealtime' if real else 's_memtime'} s[{80+2*k}:{81+2*k}]")
    a.raw_wait("s_waitcnt lgkmcnt(0)")
def stamp_dyn(a, base, sidx, n):
    if not OPT["stamp"]: return
    a.raw_wait("s_waitcnt lgkmcnt(0)")
    a._emit("s_memtime s[78:79]" if OPT["cyc"] else "s_memrealtime s[78:79]")
    a.raw_wait("s_waitcnt lgkmcnt(0)")
    for q in range(n):
        a.e(f"s_cmp_eq_u32 s{sidx}, {q}")
        a.e(f"s_cselect_b32 s{80+2*(base+q)}, s78, s{80+2*(base+q)}")
def stamp_store(a, label, base):
    if not OPT["stamp"]: return
    a.e(f"s_cmp_lg_u32 s{sWv}, 0")
    a.e(f"s_cbranch_scc1 {label}")
    for k in range(11): a.e(f"v_mov_b32 v{16+k}, s{80+2*k}")
    a.e("s_lshl_b32 s78, s2, 6"); a.e(f"s_add_u32 s78, s78, {STAMP_AT + base*64}")
    a.e("v_mov_b32 v28, s78")
    a.e("s_mov_b64 exec, 1")
    a.e("global_store_dwordx4 v28, v[16:19], s[28:29]")
    a.e("global_store_dwordx4 v28, v[20:23], s[28:29] offset:16")
    a.e("global_store_dwordx4 v28, v[24:27], s[28:29] offset:32")

def dbg_store(a):
    if not OPT["dbgout"]: return
    l = "L_dbgskip"
    a.e("s_and_b32 s78, s2, 0xdf"); a.e("s_cmp_lg_u32 s78, 5"); a.e(f"s_cbranch_scc1 {l}")
    a.e("s_load_dwordx2 s[24:25], s[0:1], 88")
    for n, k in enumerate((3,4,5,6,7,8,2,10)):
        a.e(f"s_sub_u32 s79, s{80+2*k}, s80"); a.e(f"v_mov_b32 v{32+n}, s79")
    a.e("s_and_b32 s78, s2, 32"); a.e("v_mov_b32 v29, s78")
    a.raw_wait("s_waitcnt lgkmcnt(0)")
    a.e("global_store_dwordx4 v29, v[32:35], s[24:25]")
    a.e("global_store_dwordx4 v29, v[36:39], s[24:25] offset:16")
    a.e(f"{l}:")

def srd(a, d, lo, o, size):
    a.e(f"s_add_u32 s{d}, s{lo}, {o}")
    a.e(f"s_addc_u32 s{d+1}, s{lo+1}, 0")
    a.e(f"s_and_b32 s{d+1}, s{d+1}, 0xffff")
    a.e(f"s_mov_b32 s{d+2}, {size}")
    a.e(f"s_mov_b32 s{d+3}, 0x20000")
_lbl = [0]
def newlabel(p):
    _lbl[0] += 1
    return f"L_{p}_{_lbl[0]}"
class U(str): pass

def ldsbase(m):
    h, o = slot(m); return h * VB + o
def w_tile(m, n, nh=4):
    b = ldsbase(m); base = sWq if n < 4 * nh else sWq1
    rel = ((n % (4 * nh)) // nh) * 262144 + (nh - 1 - n % nh) * 256
    pol = ' nt' if OPT['wnt'] else ''
    return [([f"s_xor_b32 s{sOff}, s{base}, {rel}", f"s_add_u32 m0, s{sWL}, {b}"], f"buffer_load_dwordx4 v{vW}, {sr(sW,4)}, s{sOff} offen{pol} lds"),
            ([f"s_xor_b32 s{sOff}, s{base}, {rel + 8192}", f"s_add_u32 m0, s{sWL}, {b + 1032}"], f"buffer_load_dwordx4 v{vW}, {sr(sW,4)}, s{sOff} offen{pol} lds")]
def kv_tile(m, t):
    b = ldsbase(m); s = sV if m & 1 else sK
    assert t < 16
    so = f"s_xor_b32 s{sOff}, s{sCX}, {t * 8192}"
    return [([so, f"s_add_u32 m0, s{sKVL}, {b}"], f"buffer_load_dwordx4 v{vKV}, {sr(s,4)}, s{sOff} offen nt lds"),
            ([f"s_add_u32 m0, s{sKVL}, {b + 32}"], f"buffer_load_dwordx4 v{vKV}, {sr(s,4)}, s{sOff} offen offset:1024 nt lds")]
def unit_pre(base, add):
    return [f"s_add_u32 s{sMv}, s{base}, {add}", f"s_xor_b32 s{sOff}, s{sMv}, s{sRot}", f"s_bfe_u32 s{sMv}, s{sMv}, 0x3000d", f"s_mul_i32 s{sMv}, s{sMv}, {TILE}",
            f"s_add_u32 s{sMk}, s{base}, {add + 8192}", f"s_xor_b32 s{sOff2}, s{sMk}, s{sRot}", f"s_bfe_u32 s{sMk}, s{sMk}, 0x3000d", f"s_mul_i32 s{sMk}, s{sMk}, {TILE}"]
def unit_dma(so_v=None, so_k=None):
    so_v = sOff if so_v is None else so_v; so_k = sOff2 if so_k is None else so_k
    return [([f"s_add_u32 m0, s{sMv}, s{sKVv}"], f"buffer_load_dwordx4 v{vKV}, {sr(sV,4)}, s{so_v} offen nt lds"),
            (["s_add_u32 m0, m0, 32"], f"buffer_load_dwordx4 v{vKV}, {sr(sV,4)}, s{so_v} offen offset:1024 nt lds"),
            ([f"s_add_u32 m0, s{sMk}, s{sKVL}"], f"buffer_load_dwordx4 v{vKV}, {sr(sK,4)}, s{so_k} offen nt lds"),
            (["s_add_u32 m0, m0, 32"], f"buffer_load_dwordx4 v{vKV}, {sr(sK,4)}, s{so_k} offen offset:1024 nt lds")]
def place_guarded(a, S, steps, gaps):
    for (pre, d), g in zip(steps, gaps):
        for k, x in enumerate(pre): S.h(g - len(pre) + k, x)
        def site(d=d):
            l = newlabel("sk"); a.e(f"s_cbranch_vccnz {l}"); a._emit(d); a.e(f"{l}:")
        S.v(g, site)
def wo_tile(m):
    b = ldsbase(m); h, t = divmod(m % 16, 8); r = t >> 1; rel = (t & 1) * 81920
    st = [([f"s_add_u32 s{sOff}, s{sH[r]}, {rel}", f"s_add_u32 m0, s{sKVL}, {b}"], f"buffer_load_dwordx4 v{vWo}, {sr(sWo,4)}, s{sOff} offen lds"),
          ([f"s_add_u32 s{sOff}, s{sH[r]}, {rel + 1280}", f"s_add_u32 m0, s{sKVL}, {b + 1056}"], f"buffer_load_dwordx4 v{vWo}, {sr(sWo,4)}, s{sOff} offen lds")]
    return st, ([f"s_add_u32 s{sH[r]}, s{sH[r]}, s{(sD0, sD1)[h]}"] if t & 1 else [])
def emit_tile(a, steps):
    for pre, d in steps:
        for x in pre: a.e(x)
        a._emit(d)
def place_tile(a, S, steps, gaps):
    for (pre, d), g in zip(steps, gaps):
        for k, x in enumerate(pre): S.h(g - len(pre) + k, x)
        S.v(g, lambda d=d: a._emit(d))
def rd_w(dst, m, i):
    h, o = slot(m); p, u = divmod(i, 2)
    return [f"ds_read_b64_tr_b16 {R(off(dst, 2*e), 2)}, v{(vWAl, vWAh)[h]} offset:{o + e*512 + p*64 + u*8}" for e in range(2)]
def vmw(a, n): a.raw_wait(f"s_waitcnt vmcnt({n})")

def rowred(a, op, regs, tmps):
    for w in (32, 16):
        for r, t in zip(regs, tmps): a.e(f"v_mov_b32 v{t}, v{r}")
        for r, t in zip(regs, tmps): a.e(f"v_permlane{w}_swap_b32 v{r}, v{t}")
        for r, t in zip(regs, tmps): a.e(f"{op} v{r}, v{r}, v{t}")

RDPOS = [0,1,2,3,4,5,7,8,9,10,12,13,14,15,17,18]
RDPOS_X = [2,3,5,6,8,9,11,12,14,15,16,17,18,19,20,21]

def code_touch(a, lo, hi, vaddr, vdst):
    if not OPT["ctouch"]: return
    l = newlabel("pc")
    a.e("s_getpc_b64 s[14:15]")
    a.e(f"{l}:")
    a.e(f"s_add_u32 s14, s14, {lo}-{l}"); a.e("s_addc_u32 s15, s15, 0")
    a.e(f"s_lshr_b32 s{sT2}, s2, 3"); a.e(f"s_lshl_b32 s{sT2}, s{sT2}, 2"); a.e(f"s_add_u32 s{sT2}, s{sT2}, s{sWv}"); a.e(f"s_lshl_b32 s{sT2}, s{sT2}, 7")
    a.e(f"v_and_b32 v{vaddr}, 3, v0"); a.e(f"v_lshlrev_b32 v{vaddr}, 14, v{vaddr}"); a.e(f"v_add_u32 v{vaddr}, s{sT2}, v{vaddr}")
    a.e(f"v_min_u32 v{vaddr}, {hi}-{lo}-4, v{vaddr}")
    a._emit(f"global_load_dword v{vdst}, v{vaddr}, s[14:15]")

def inbox_addr(va, vt):
    sc = [f"s_mul_i32 s{sT2}, s{sG}, {XG}", f"s_mul_i32 s{sT3}, s{sU}, {XD}", f"s_add_u32 s{sT2}, s{sT2}, s{sT3}",
          f"s_mul_i32 s{sT3}, s{sWv}, 1536", f"s_add_u32 s{sT2}, s{sT2}, s{sT3}", f"s_add_u32 s{sT2}, s{sT2}, {5*XP}"]
    ve = [f"v_lshrrev_b32 v{va}, 3, v0", f"v_min_u32 v{va}, 6, v{va}", f"v_mul_u32_u24 v{va}, 6144, v{va}", f"v_and_b32 v{vt}, 7, v0",
          f"v_min_u32 v{vt}, 5, v{vt}", f"v_lshl_add_u32 v{va}, v{vt}, 7, v{va}", f"v_add_u32 v{va}, s{sT2}, v{va}"]
    return sc, ve

def late_consts(a):
    w_ = 2 if OPT["wot"] else 1
    a.e(f"v_min_u32 v{vTo}, {20*w_-1}, v0"); a.e(f"v_lshlrev_b32 v{vTo}, 7, v{vTo}")
    a.e(f"s_mul_i32 s{sTmp}, s{sB}, {10240*w_}"); a.e(f"s_mul_i32 s{sT2}, s{sWv}, {2560*w_}"); a.e(f"s_add_u32 s{sTmp}, s{sTmp}, s{sT2}")
    a.e(f"v_add_u32 v{vTo}, s{sTmp}, v{vTo}")
    a.e("v_and_b32 v9, 56, v0"); a.e(f"s_lshl_b32 s{sTmp}, s{sWv}, 1"); a.e(f"v_add_u32 v9, s{sTmp}, v9")
    a.e("v_mul_u32_u24 v9, 1280, v9"); a.e("v_and_b32 v8, 7, v0")
    a.e(f"s_xor_b32 s{sTmp}, s{sU}, 7"); a.e(f"s_and_b32 s{sTmp}, s{sTmp}, 3"); a.e(f"s_lshl_b32 s{sTmp}, s{sTmp}, 1"); a.e(f"v_xor_b32 v8, s{sTmp}, v8")
    a.e(f"v_lshl_add_u32 v{vWo}, v8, 4, v9")

def x_block(j, rel, base_s, op="s_add_u32", lds=0):
    so = f"{op} s{sOff2}, s{base_s}, {rel + j*20480}" if base_s is not None else f"s_mov_b32 s{sOff2}, {rel + j*20480}"
    return [([so, f"s_add_u32 m0, s{sXL}, {j*2048 + lds}"], f"buffer_load_dwordx4 v{vX0}, {sr(sX,4)}, s{sOff2} offen{' nt' if OPT['xnt'] else ''} lds"),
            ([f"s_add_u32 m0, s{sXL}, {j*2048 + 1024 + lds}"], f"buffer_load_dwordx4 v{vX1}, {sr(sX,4)}, s{sOff2} offen{' nt' if OPT['xnt'] else ''} lds")]
def rd_xb(dst, j, s): return f"ds_read_b128 {R(dst,4)}, v{(vXA0, vXA1)[s]} offset:{j*2048}"

def end_sync(a, S, vm, keep=2):
    def w():
        n = min(len(a.lg), keep)
        a.raw_wait(f"s_waitcnt vmcnt({vm}) lgkmcnt({n})")
        a.lg = a.lg[len(a.lg) - n:] if n else []
    S.h(22, w); S.h(23, "s_barrier")

sSc = 14
SCALE = f"s_mov_b32 s{sSc}, {f32(math.log2(math.e) / math.sqrt(128.0))}"
def conv_ops(acc, pos, db, tmp):
    o_ = []; k = 0
    for p in range(4):
        for j in range(3):
            t = tmp[k % len(tmp)]; k += 1
            src = []
            for u in range(2):
                o = acc(pos, 2*p + u, j)
                for r in range(4):
                    if isinstance(o, tuple):
                        o_.append(f"v_accvgpr_read_b32 v{t+4*u+r}, a{o[1]+r}"); src.append(t + 4*u + r)
                    else: src.append(o + r)
            o_ += [f"v_mul_f32 v{x}, s{sSc}, v{x}" for x in src]
            d = Qf(j, p) if db is None else src[0]
            o_ += [f"v_cvt_pk_bf16_f32 v{d+r}, v{src[2*r]}, v{src[2*r+1]}" for r in range(4)]
            if db is not None and db != "keep":
                o_ += [f"v_accvgpr_write_b32 a{db + 12*p + 4*j + r}, v{d+r}" for r in range(4)]
    return o_
def free_slots(S):
    cap = []
    for k in range(len(S.mfs)):
        c = 2 - max(0, len(S.hold[k]) - 1)
        for f in S.vec[k]:
            t = f if isinstance(f, str) else f[0] if isinstance(f, tuple) else "vmem"
            c -= 2 if t.startswith(("vmem", "v_exp", "v_rcp")) else 1
        if "s_barrier" in S.hold[k]: c = 0
        cap.append(max(c, 0))
    for k in range(1, len(cap)):
        if cap[k] == 2 and cap[k-1] == 2: cap[k] = 1
    return cap
def fill_ops(S, ops, start=0):
    cap = free_slots(S); n = 0
    for k in range(start, len(cap)):
        for _ in range(cap[k]):
            if n < len(ops): S.v(k, ops[n]); n += 1
    return ops[n:]

def gcv(m, h):
    i, j = divmod(m, 3); p, u = divmod(i, 2); o = Or(i, j)
    return f"v_cvt_pk_bf16_f32 v{S_ + 12*p + 4*j + 2*u + h}, v{o+2*h}, v{o+2*h+1}"
CVS = [gcv(m, h) for m in range(24) for h in range(2)]
def gst(q, rel, base_s):
    p, j = divmod(q, 3)
    return ([f"s_add_u32 s{sOff2}, s{base_s}, {rel + (p*12 + j)*CH}"], f"buffer_store_dwordx4 {vr(S_ + 12*p + 4*j,4)}, v{vPt}, {sr(sP,4)}, s{sOff2} offen{['', ' sc1', ' nt', ' sc0'][OPT['stpol']]}")
def cv_plans():
    caps = [0 if g in (6, 11) else (1 if g in RDPOS else 2) for g in range(24)]
    last = []; ci = 0
    for g, cp in enumerate(caps):
        for _ in range(cp):
            if ci < 48 and ci // 2 + 4 <= g: last.append((g, ci)); ci += 1
    n = ci; first = []
    for g, cp in enumerate(caps):
        for _ in range(cp):
            if ci < 48: first.append((g, ci)); ci += 1
    assert ci == 48 and all(c // 2 > g for g, c in first)
    return last, first, n
PLAN_LAST, PLAN_FIRST, NLAST = cv_plans()

def Q2acc(pos, i, j): return (56 if pos == 0 else O_) + 12 * i + 4 * j
def X2reg(buf, j, s): return ("a", 24 * buf + 8 * j + 4 * s)
def q2mf(n, first):
    s, pos = divmod(n % 8, 2)
    return [mf(Q2acc(pos, i, j), Greg(n & 1, i), X2reg(s >> 1, j, s & 1), None if first and n < 2 else Q2acc(pos, i, j)) for i in range(8) for j in zj(i)]

def main_kernel():
    a = Asm()
    T = OPT["typ"]
    if OPT["st0"]: a._emit("s_memrealtime s[80:81]")
    a.e("s_cmp_ge_u32 s2, 256")
    a.e("s_cbranch_scc1 L_end")
    a.e("s_load_dwordx16 s[4:19], s[0:1], 0")
    a.e("s_load_dwordx4 s[20:23], s[0:1], 64")
    a.e("s_load_dwordx2 s[28:29], s[0:1], 96")
    a.e(f"s_bfe_u32 s{sBr}, s2, 0x10002")
    if not OPT["map84"]:
        a.e(f"s_and_b32 s{sB}, s2, 3"); a.e(f"s_lshl_b32 s{sB}, s{sB}, 2")
        a.e(f"s_bfe_u32 s{sTmp}, s2, 0x20003"); a.e(f"s_add_u32 s{sB}, s{sB}, s{sTmp}")
        a.e(f"s_lshr_b32 s{sU}, s2, 5")
    elif OPT["map84"] == 2:
        a.e(f"s_bfe_u32 s{sB}, s2, 0x40003")
        a.e(f"s_and_b32 s{sU}, s2, 3"); a.e(f"s_lshl_b32 s{sU}, s{sU}, 1")
        a.e(f"s_lshr_b32 s{sTmp}, s2, 7"); a.e(f"s_add_u32 s{sU}, s{sU}, s{sTmp}")
    else:
        a.e(f"s_and_b32 s{sB}, s2, 1"); a.e(f"s_lshl_b32 s{sB}, s{sB}, 3")
        a.e(f"s_bfe_u32 s{sTmp}, s2, 0x30003"); a.e(f"s_add_u32 s{sB}, s{sB}, s{sTmp}")
        a.e(f"s_bfe_u32 s{sU}, s2, 0x10001"); a.e(f"s_lshl_b32 s{sU}, s{sU}, 2")
        a.e(f"s_lshr_b32 s{sTmp}, s2, 6"); a.e(f"s_add_u32 s{sU}, s{sU}, s{sTmp}")
    a.e(f"s_lshl_b32 s{sG}, s{sBr}, 4"); a.e(f"s_add_u32 s{sG}, s{sG}, s{sB}")
    if T == 4: a.e(f"s_bfe_u32 s{sTyp}, s2, 0x10003")
    elif T == 3: a.e(f"s_andn2_b32 s{sTyp}, 1, s2")
    elif T == 2: a.e(f"s_and_b32 s{sTyp}, s2, 1")
    else: a.e(f"s_mov_b32 s{sTyp}, {T}")
    a.e("v_lshrrev_b32 v7, 6, v0")
    a.e("v_and_b32 v0, 63, v0")
    a.e(f"v_readfirstlane_b32 s{sWv}, v7")
    a.e("v_and_b32 v8, 15, v0")
    a.e("v_lshrrev_b32 v9, 4, v0")
    a.e("v_and_b32 v10, 1, v9"); a.e("v_lshlrev_b32 v10, 4, v10")
    a.e("v_lshrrev_b32 v11, 1, v9"); a.e("v_lshl_add_u32 v10, v11, 2, v10")
    a.e("v_lshrrev_b32 v11, 1, v7"); a.e("v_lshl_add_u32 v10, v11, 3, v10")
    a.e("v_and_b32 v11, 1, v7"); a.e("v_lshl_add_u32 v10, v11, 1, v10")
    a.e("v_lshlrev_b32 v10, 13, v10"); a.e(f"v_lshl_add_u32 v{vW}, v8, 4, v10")
    a.e("v_mul_u32_u24 v10, 48, v7"); a.e("v_lshrrev_b32 v11, 3, v0"); a.e("v_add_u32 v10, v10, v11")
    a.e("v_mul_u32_u24 v10, 1280, v10")
    a.e("v_and_b32 v11, 7, v0"); a.e("v_xor_b32 v11, v11, v9")
    a.e(f"v_lshl_add_u32 v{vX0}, v11, 4, v10")
    a.e("v_xor_b32 v11, 4, v11"); a.e("v_add_u32 v10, 10240, v10")
    a.e(f"v_lshl_add_u32 v{vX1}, v11, 4, v10")
    a.e(f"s_mul_i32 s{sKVL}, s{sWv}, 2112")
    a.e(f"s_mov_b32 s{sWL}, s{sKVL}")
    a.e(f"s_mul_i32 s{sXL}, s{sWv}, 6144"); a.e(f"s_add_u32 s{sXL}, s{sXL}, {XB}")
    a.e(f"s_mov_b32 s{sCur}, 0"); a.e(f"s_mov_b32 s{sXo}, 0"); a.e(f"s_mov_b32 s{sWq}, 0")
    a.raw_wait("s_waitcnt lgkmcnt(0)")
    a.e(f"s_cmp_eq_u32 s{sBr}, 0")
    a.e("s_cselect_b64 s[4:5], s[4:5], s[14:15]")
    a.e("s_cselect_b64 s[6:7], s[6:7], s[16:17]")
    a.e("s_cselect_b64 s[8:9], s[8:9], s[18:19]")
    a.e("s_cselect_b64 s[10:11], s[10:11], s[20:21]")
    a.e("s_cselect_b64 s[12:13], s[12:13], s[22:23]")
    a.e("s_load_dwordx4 s[16:19], s[0:1], 80")
    a.e(f"s_mul_i32 s{sTmp}, s{sB}, 245760")
    srd(a, sX, 4, f"s{sTmp}", 245760)
    a.e(f"s_lshl_b32 s{sTmp}, s{sU}, 10")
    srd(a, sW, 10, f"s{sTmp}", 639 * 8192 + 1024)
    if OPT["krot"]: a.e(f"s_xor_b32 s{sJ}, s{sB}, s{sU}"); a.e(f"s_and_b32 s{sJ}, s{sJ}, 3")
    else: a.e(f"s_mov_b32 s{sJ}, 0")
    if OPT["hrot"]: a.e(f"s_cmp_lg_u32 s{sTyp}, 0"); a.e(f"s_cselect_b32 s{sJh}, 1, 3"); a.e(f"s_and_b32 s{sJh}, s{sJh}, s{sJ}")
    else: a.e(f"s_mov_b32 s{sJh}, 0")
    a.e(f"s_lshl_b32 s{sWq}, s{sJ}, 18"); a.e(f"s_lshl_b32 s{sTmp}, s{sJh}, 8"); a.e(f"s_or_b32 s{sWq}, s{sWq}, s{sTmp}"); a.e(f"s_add_u32 s{sWq1}, s{sWq}, {1 << 20}")
    a.e(f"s_lshr_b32 s{sXo}, s{sJ}, 1"); a.e(f"s_lshl_b32 s{sXo}, s{sXo}, 7")
    if not OPT['st0']: stamp(a, 0)
    stamp(a, 1, False)
    def common_consts():
        if OPT["rot"]:
            a.e(f"s_lshr_b32 s{sRot}, s2, 4"); a.e(f"s_xor_b32 s{sRot}, s{sRot}, s2"); a.e(f"s_and_b32 s{sRot}, s{sRot}, 15"); a.e(f"s_lshl_b32 s{sRot}, s{sRot}, 13")
        else: a.e(f"s_mov_b32 s{sRot}, 0")
        a.e(f"s_lshl_b32 s{sCur}, s{sJh}, 17"); a.e(f"s_or_b32 s{sRot}, s{sRot}, s{sCur}")
        assert not OPT["hrot"]
        a.e(f"s_mov_b32 s{sCX}, s{sRot}"); a.e(f"s_add_u32 s{sKVv}, s{sKVL}, {VB}")
        a.e("v_bfe_u32 v10, v0, 2, 3")
        a.e("v_lshrrev_b32 v11, 1, v10"); a.e("v_lshlrev_b32 v11, 6, v11"); a.e(f"v_lshl_add_u32 v{vWAl}, v10, 10, v11")
        a.e("v_and_b32 v11, 1, v10"); a.e(f"v_lshl_add_u32 v{vWAl}, v11, 3, v{vWAl}")
        a.e("v_lshrrev_b32 v11, 5, v0"); a.e(f"v_lshl_add_u32 v{vWAl}, v11, 8, v{vWAl}")
        a.e("v_mul_u32_u24 v10, 1056, v10"); a.e("v_lshl_add_u32 v10, v11, 8, v10")
        a.e("v_and_b32 v11, 3, v0"); a.e(f"v_lshl_add_u32 v{vWAl}, v11, 4, v{vWAl}")
        a.e(f"v_lshl_add_u32 v10, v11, 3, v10"); a.e(f"v_add_u32 v{vVA}, {VB}, v10")
        a.e(f"v_add_u32 v{vWAh}, {VB}, v{vWAl}")
        a.e("v_and_b32 v10, 7, v8"); a.e("v_mul_u32_u24 v10, 1056, v10")
        a.e("v_lshrrev_b32 v11, 3, v8"); a.e(f"v_lshl_add_u32 v10, v11, 8, v10")
        a.e(f"v_lshl_add_u32 v{vKA}, v9, 4, v10")
        a.e("v_lshlrev_b32 v10, 4, v0"); a.e(f"v_lshl_add_u32 v{vKV}, v7, 11, v10")
        a.e(f"v_lshlrev_b32 v10, 7, v8"); a.e(f"v_add_u32 v10, s{sXL}, v10")
        a.e("v_lshrrev_b32 v11, 1, v8"); a.e("v_xor_b32 v11, v11, v9")
        a.e(f"s_and_b32 s{sTmp}, s{sJ}, 1"); a.e(f"s_lshl_b32 s{sTmp}, s{sTmp}, 2"); a.e(f"v_xor_b32 v11, s{sTmp}, v11")
        a.e(f"v_lshl_add_u32 v{vXA0}, v11, 4, v10")
        a.e("v_xor_b32 v11, 4, v11"); a.e(f"v_lshl_add_u32 v{vXA1}, v11, 4, v10")
        a.e(f"s_lshl_b32 s{sTmp}, s{sB}, 3"); a.e(f"s_add_u32 s{sTmp}, s{sTmp}, s{sU}"); a.e(f"s_lshl_b32 s{sTmp}, s{sTmp}, 19")
        srd(a, sK, 6, f"s{sTmp}", 4 * 131072)
        srd(a, sV, 8, f"s{sTmp}", 4 * 131072)
        a.e(f"s_mul_i32 s{sTmp}, s{sU}, {512*1280}")
        srd(a, sWo, 12, f"s{sTmp}", 512 * 1280)
        for r in range(4): a.e(f"s_xor_b32 s{sH[r]}, s{sJh}, {r}"); a.e(f"s_mul_i32 s{sH[r]}, s{sH[r]}, 163840")
        a.e(f"s_mov_b32 s{sKn}, 0"); a.e(f"s_mov_b32 s{sMin}, {3*8192}")
        a.e(f"s_cmp_lt_u32 s{sU}, 4")
        a.e(f"s_cselect_b32 s{sTmp}, 128, 0"); a.e(f"s_mov_b32 s{sD0}, 128"); a.e(f"s_cselect_b32 s{sD0}, -128, s{sD0}")
        a.e(f"s_sub_u32 s{sD1}, 256, s{sD0}")
        for r in range(4): a.e(f"s_add_u32 s{sH[r]}, s{sH[r]}, s{sTmp}")
        a.e(f"s_lshl_b32 s{sTmp}, s{sG}, 12"); a.e(f"s_add_u32 s{sTmp}, s{sTmp}, {FLG}")
        srd(a, sF, 28, f"s{sTmp}", 4096)
    def touch0(three):
        if OPT["t0x"]:
            a.e("v_min_u32 v10, 59, v0"); a.e("v_lshlrev_b32 v10, 7, v10")
            a.e(f"s_lshl_b32 s{sTmp}, s{sU}, 2"); a.e(f"s_add_u32 s{sTmp}, s{sTmp}, s{sWv}"); a.e(f"s_mul_i32 s{sTmp}, s{sTmp}, 7680")
            a._emit(f"buffer_load_dword v11, v10, {sr(sX,4)}, s{sTmp} offen")
        if OPT["t0w"] and three:
            a.e("v_lshrrev_b32 v14, 2, v0"); a.e("v_lshlrev_b32 v14, 13, v14"); a.e("v_and_b32 v15, 3, v0"); a.e("v_lshl_add_u32 v14, v15, 7, v14")
            a.e(f"s_and_b32 s{sTmp}, s{sB}, 3"); a.e(f"s_lshl_b32 s{sTmp}, s{sTmp}, 2"); a.e(f"s_add_u32 s{sTmp}, s{sTmp}, s{sWv}"); a.e(f"s_lshl_b32 s{sTmp}, s{sTmp}, 17")
            for k in range(3):
                a.e(f"s_add_u32 s{sT2}, s{sTmp}, {k*256*8192}")
                a._emit(f"buffer_load_dword v{16+k}, v14, {sr(sW,4)}, s{sT2} offen")
    def part_srd(slot_expr, size):
        a.e(f"s_mul_i32 s{sTmp}, s{sG}, {PART}"); slot_expr(); a.e(f"s_lshl_b32 s{sT2}, s{sT2}, 10"); a.e(f"s_add_u32 s{sTmp}, s{sTmp}, s{sT2}")
        srd(a, sP, 28, f"s{sTmp}", size)
    NF = OPT["first"]
    LA = OPT['la']
    def wpos(n): return 8 + n % 8
    def rd_x(buf): return [rd_xb(Xreg(buf, j, s), j, s) for s in range(2) for j in range(3)]
    NF = 2
    def setup(lab):
        common_consts()
        touch0(False)
        code_touch(a, lab, "L_altwo" if not OPT["ct2"] else ("L_p1" if lab == "L_q" else "L_enter"), 10, 11)
        a.e(f"s_lshl_b32 s{sTmp}, s{sU}, 9"); a.e(f"s_lshl_b32 s{sT2}, s{sWv}, 7"); a.e(f"s_add_u32 s{sTmp}, s{sTmp}, s{sT2}")
        a.e("v_and_b32 v8, 7, v0"); a.e(f"v_lshlrev_b32 v8, 2, v8"); a.e("v_mov_b32 v7, 0")
        a._emit(f"buffer_store_dword v7, v8, {sr(sF,4)}, s{sTmp} offen sc1")
        a.e(f"s_mov_b32 s{sR}, 0")
        emit_tile(a, kv_tile(0, 0))
    def bootstrap():
        l = newlabel("boot")
        a.e(f"s_cmp_lg_u32 s{sWv}, 0"); a.e(f"s_cbranch_scc1 {l}")
        a.e(f"s_lshl_b32 s{sTmp}, s{sG}, 2"); a.e(f"s_add_u32 s{sTmp}, s{sTmp}, 128")
        a.e(f"v_mov_b32 v157, s{sTmp}")
        a.e(f"s_getreg_b32 s{sT2}, hwreg(HW_REG_XCC_ID, 0, 4)")
        a.e(f"s_mul_i32 s{sT3}, s{sT2}, s{sT2}"); a.e(f"s_lshl_b32 s{sT3}, s{sT3}, 8"); a.e(f"s_add_u32 s{sT3}, s{sT3}, s{sT2}")
        a.e(f"s_lshl_b32 s{sT3}, s{sT3}, 8"); a.e(f"s_add_u32 s{sPK}, s{sT3}, 1"); a.e(f"v_mov_b32 v158, s{sPK}")
        a.e("s_mov_b64 exec, 1")
        a._emit("global_atomic_add v157, v158, s[18:19]")
        a.e("s_mov_b64 exec, -1")
        a.e(f"{l}:")
    if OPT["stag"]:
        a.e(f"s_and_b32 s{sT2}, s{sB}, 3") if OPT["stag"] < 100 else a.e(f"s_and_b32 s{sT2}, s{sU}, 3")
        a.e("L_stag:"); a.e(f"s_cmp_eq_u32 s{sT2}, 0"); a.e("s_cbranch_scc1 L_stag2"); a.e(f"s_sleep {OPT['stag'] % 100}"); a.e(f"s_sub_u32 s{sT2}, s{sT2}, 1"); a.e("s_branch L_stag"); a.e("L_stag2:")
    a.e(f"s_cmp_lg_u32 s{sTyp}, 0")
    a.e("s_cbranch_scc1 L_p1")
    for j in range(3): emit_tile(a, x_block(j, 0, sXo))
    for n in range(NF): emit_tile(a, w_tile(wpos(n), n))
    setup("L_q")
    if OPT["help"]:
        a.e(f"s_mov_b32 s{sX+2}, {5*245760}")
        a.e("v_min_u32 v8, 59, v0"); a.e("v_lshlrev_b32 v8, 7, v8")
        a.e(f"s_lshl_b32 s{sTmp}, s{sU}, 2"); a.e(f"s_add_u32 s{sTmp}, s{sTmp}, s{sWv}"); a.e(f"s_mul_i32 s{sTmp}, s{sTmp}, 7680"); a.e(f"s_add_u32 s{sTmp}, s{sTmp}, {4*245760}")
        a._emit(f"buffer_load_dword v9, v8, {sr(sX,4)}, s{sTmp} offen")
        if OPT["help"] & 2:
            a.e("v_lshrrev_b32 v8, 2, v0"); a.e("v_lshlrev_b32 v8, 13, v8"); a.e("v_and_b32 v10, 3, v0"); a.e("v_lshl_add_u32 v8, v10, 7, v8")
            a.e(f"s_lshr_b32 s{sTmp}, s{sB}, 3"); a.e(f"s_lshl_b32 s{sTmp}, s{sTmp}, 2"); a.e(f"s_and_b32 s{sT2}, s{sB}, 3"); a.e(f"s_add_u32 s{sTmp}, s{sTmp}, s{sT2}")
            a.e(f"s_lshl_b32 s{sTmp}, s{sTmp}, 2"); a.e(f"s_add_u32 s{sTmp}, s{sTmp}, s{sWv}"); a.e(f"s_mul_i32 s{sTmp}, s{sTmp}, {20*8192}")
            a._emit(f"buffer_load_dword v9, v8, {sr(sW,4)}, s{sTmp} offen")
            a.e(f"s_add_u32 s{sTmp}, s{sTmp}, {4*8192}")
            a._emit(f"buffer_load_dword v9, v8, {sr(sW,4)}, s{sTmp} offen")
    a.e(f"s_mov_b32 s{sPre}, 15")
    for r in range(256):
        if r % 40 == 0 and NF + r // 40 < LA: emit_tile(a, w_tile(wpos(NF + r // 40), NF + r // 40))
        a.e(f"v_accvgpr_write_b32 a{r}, 0")
    for r in list(range(124, 156)) + list(range(160, 256)): a.e(f"v_mov_b32 v{r}, 0")
    if OPT["woq"]:
        a.e(f"s_lshr_b32 s{sTmp}, s{sB}, 3"); a.e(f"s_lshl_b32 s{sTmp}, s{sTmp}, 2"); a.e(f"s_and_b32 s{sT2}, s{sB}, 3"); a.e(f"s_add_u32 s{sTmp}, s{sTmp}, s{sT2}")
        a.e(f"s_lshl_b32 s{sTmp}, s{sTmp}, 2"); a.e(f"s_add_u32 s{sTmp}, s{sTmp}, s{sWv}"); a.e(f"s_mul_i32 s{sTmp}, s{sTmp}, 5120")
        a.e("v_min_u32 v7, 39, v0"); a.e(f"v_lshl_add_u32 v7, v7, 7, s{sTmp}")
    a.raw_wait(f"s_waitcnt vmcnt({2 * (LA - 2)}) lgkmcnt(0)")
    a.e("s_barrier")
    for r in rd_x(0): a.e(r)
    for i in range(8):
        for r in rd_w(Wreg(0, i), wpos(0), i): a.e(r)
    a.raw_wait("s_waitcnt lgkmcnt(0)"); a.lg = []
    if OPT["qprof"] == 1: stamp(a, 5); stamp(a, 6, False)
    def lperm(n, last):
        return 8 + 4 * ((n - 8) & 1) + ((n - 8) >> 1) if last and OPT["cvo"] and 8 <= n < 16 else n
    def qmf(n, last=False):
        s, pos = divmod(lperm(n, last) % 16, 4)
        return [mf(Qacc(pos, i, j), Wreg(n & 1, i), Xreg((s >> 1) & 1, j, s & 1), Qacc(pos, i, j)) for i in range(8) for j in zj(i)]
    cvq = conv_ops(Qacc, 0, QBANK[3], [76, 84, 92])
    def early(S, half, h0, gaps):
        pre = [x.replace(f"s{sOff},", f"s{sOff2},") for x in unit_pre(sKn, 0)[4*half:4*half+4]]
        if half == 0: pre = [f"s_cmp_ge_u32 s{sKn}, s{sMin}", "s_cselect_b64 vcc, -1, 0", f"s_cselect_b32 s{sC1}, 0, 8192"] + pre
        else: pre = pre + [f"s_add_u32 s{sKn}, s{sKn}, s{sC1}"]
        for x, h_ in zip(pre, h0): S.h(h_, x)
        place_guarded(a, S, unit_dma(sOff2, sOff2)[2*half:2*half+2], gaps)
    def q_group(last):
        for n in range(16):
            a.c(f"Q sub-step {n}{' (last group)' if last else ''}")
            S = Sched(a, qmf(n, last))
            fin = last and n == 15
            q = n % 8
            xrd = q in (6, 7) and not (last and n >= 8)
            if not fin:
                rds = []
                for i in range(8): rds += rd_w(Wreg((n + 1) & 1, i), wpos(n + 1), i)
                for r, p in zip(rds, RDPOS): S.v(p, r)
                m = n + LA
                if not last or m < 16: place_tile(a, S, w_tile(wpos(m), lperm(m, last)), (6, 11))
                KVN = {8: 7, 9: 8, 10: 9, 11: 10, 12: 11, 13: 12} if not OPT["kvconv"] else {4: 7, 11: 8} if OPT["kvconv"] == 1 else {4: 7}
                if last and n in KVN: place_tile(a, S, kv_tile(KVN[n], KVN[n] >> 1), (16, 19))
                if not (last and n == 14):
                    hi = min(m, 15) if last else m
                    ykv = len([k for k in KVN if n + 2 - LA <= k <= n]) if last else 0
                    end_sync(a, S, 2 * (hi - (n + 2)) + 2 * ykv, 5 if xrd else 2)
            if xrd:
                rx = rd_x(((n >> 3) + 1) & 1)[3*(q-6):3*(q-6)+3]
                if q == 6: S.h(16, lambda: vmw(a, 8))
                for r, p in zip(rx, (19, 20, 21)): S.v(p, (r, "xr"))
            if q in (0, 1, 2) and not (last and n >= 8):
                if q == 0: S.h(12, lambda: a.wait(lg="xr"))
                place_tile(a, S, x_block(q, 128, sXo, "s_xor_b32") if n < 8 else x_block(q, 256, sXo), (16, 19))
            if n in (11, 12) and not last: early(S, n - 11, (0, 1, 2, 3, 7, 8, 12), (16, 19))
            if n == 4 and not last and OPT["woq"]:
                S.h(13, f"s_lshr_b32 s{sOff2}, s{sXo}, 8"); S.h(14, f"s_mul_i32 s{sOff2}, s{sOff2}, 163840")
                S.v(16, lambda: a._emit(f"buffer_load_dword v9, v7, {sr(sWo,4)}, s{sOff2} offen"))
            if n == 15 and not last:
                S.h(12, f"s_mov_b32 s{sWq}, s{sWq1}")
                S.h(13, f"s_add_u32 s{sWq1}, s{sWq1}, {1 << 20}")
                S.h(14, f"s_add_u32 s{sXo}, s{sXo}, 256")
                S.h(15, f"s_cmp_lt_u32 s{sXo}, 1024")
            if last and n == 3: S.h(1, SCALE)
            if last and n >= 10 and OPT["cvo"]: cvq[:] = fill_ops(S, cvq, 4 if n == 10 else 0)
            S.emit(None if fin else qmf(n + 1, last)[0])
    a.e(".p2align 6")
    a.e("L_q:")
    if OPT["qprof"] == 3:
        a.e(f"s_lshr_b32 s{sT3}, s{sXo}, 8"); stamp_dyn(a, 4, sT3, 4)
    mark = len(a.ins); nops0 = a.nops
    q_group(False)
    lg_end = list(a.lg)
    del a.ins[mark:]; a.nops = nops0
    q_group(False)
    assert a.lg == lg_end
    a.e("s_cbranch_scc1 L_q")
    if OPT["ct2"]: code_touch(a, "L_enter", "L_q2b" if T else "L_altwo", 10, 11)
    if OPT["qprof"] == 3: stamp(a, 8)
    q_group(True)
    if OPT["qprof"] == 1: stamp(a, 7); stamp(a, 8, False)
    stamp(a, 3)
    a.c("Q conversion")
    tmp = [60 + 8 * k for k in range(8)]
    rest = cvq + conv_ops(Qacc, 1, QBANK[2], tmp) + conv_ops(Qacc, 2, QBANK[1], tmp) + conv_ops(Qacc, 3, None, tmp)
    steps = [s_ for m in range(10 - OPT["kvconv"], 13) for s_ in kv_tile(m, m >> 1)] if OPT["kvconv"] else []
    at = {int((k + 0.3) * len(rest) / len(steps)): s_ for k, s_ in enumerate(steps)}
    for k, x in enumerate(rest):
        if k in at:
            for y in at[k][0]: a.e(y)
        a.e(x)
        if k in at: a._emit(at[k][1])
    late_consts(a)
    bootstrap()
    a.e("s_branch L_enter")
    a.e("L_p1:")
    a.lg = []
    for j in range(3): emit_tile(a, x_block(j, 0, sXo, lds=VB-XB))
    for n in range(NF): emit_tile(a, w_tile(wpos(n), n, 2))
    a.e(f"s_xor_b32 s{sXo1}, s{sXo}, 128")
    for j in range(3): emit_tile(a, x_block(j, 0, sXo1))
    setup("L_q2")
    late_consts(a)
    a.e(f"s_mov_b32 s{sPre}, 1")
    assert OPT["cvo"] or not OPT["lateq"]
    if OPT["lateq"]: a.e(f"s_mov_b32 s{sMin}, 0")
    for n in range(NF, LA): emit_tile(a, w_tile(wpos(n), n, 2))
    a.e(f"v_subrev_u32 v12, {XB-VB}, v{vXA0}"); a.e(f"v_subrev_u32 v13, {XB-VB}, v{vXA1}")
    a.raw_wait(f"s_waitcnt vmcnt({2 * (LA - 2)}) lgkmcnt(0)")
    for j in range(3):
        for s in range(2): a.e(f"ds_read_b128 {R(X2reg(0, j, s),4)}, v{12+s} offset:{j*2048}")
    a.e("L_q2go:")
    a.e("s_barrier")
    for i in range(8):
        for r in rd_w(Greg(0, i), wpos(0), i): a.e(r)
    a.raw_wait("s_waitcnt lgkmcnt(0)"); a.lg = []
    def q2_group(kind):
        first, last = kind == 0, kind == 2
        for n in range(8):
            a.c(f"Q2 sub-step {n} ({('first', 'loop', 'last')[kind]})")
            S = Sched(a, q2mf(n, first))
            cl, q = divmod(n, 4)
            fin = last and n == 7
            xrd = q < 3 and not (last and cl == 1)
            def xd(k): return k % 4 < 3 and not (last and k >= 0) and not (first and k < 0)
            def wd(k): return not (last and k + LA >= 8)
            def kd(k): return last and 0 <= k <= 5
            if not fin:
                rds = []
                for i in range(8): rds += rd_w(Greg((n + 1) & 1, i), wpos(n + 1), i)
                for r, p in zip(rds, RDPOS_X): S.v(p, r)
            if wd(n): place_tile(a, S, w_tile(wpos(n + LA), n + LA, 2), (4, 7))
            if kd(n): place_tile(a, S, kv_tile(7 + n, (7 + n) >> 1), (10, 13))
            if xrd:
                for s in range(2): S.v(s, (rd_xb(X2reg(1 - cl, q, s), q, s), "xr"))
            if xd(n):
                S.h(7, lambda: a.wait(lg="xr"))
                place_tile(a, S, x_block(q, 256, (sXo, sXo1)[cl]), (10, 13))
            if q == 3 and not last and not (first and OPT['latekv']): early(S, cl, (0, 0, 1, 1, 4, 7, 8) if cl == 0 else (0, 0, 1, 1, 4), (10, 13))
            if n == 7 and not last:
                S.h(16, f"s_mov_b32 s{sWq}, s{sWq1}")
                S.h(17, f"s_add_u32 s{sWq1}, s{sWq1}, {1 << 20}")
                S.h(18, f"s_add_u32 s{sXo1}, s{sXo1}, 256")
                S.h(19, f"s_add_u32 s{sXo}, s{sXo}, 256")
                S.h(20, f"s_cmp_lt_u32 s{sXo}, 1024")
            if not (last and n >= 6):
                k0 = n + 2 - LA
                vm = sum(2 * wd(k) for k in range(k0 + 1, n + 1)) + sum(2 * kd(k) for k in range(k0, n + 1))
                if (n + 1) % 4 < 3 and not (last and n + 1 >= 4) and xd(n - 3):
                    vm = min(vm, sum(2 * wd(k) + 2 * xd(k) + 2 * kd(k) for k in range(n - 2, n + 1)))
                if n == 7 and OPT['cvo']: vm = min(vm, 8)
                end_sync(a, S, vm, 5)
            S.emit(None if fin else q2mf(n + 1, first and n < 7)[0])
    a.e("L_q2:")
    q2_group(0)
    lg_in = list(a.lg)
    a.e(".p2align 6")
    a.e("L_q2l:")
    q2_group(1)
    assert a.lg == lg_in
    a.e("s_cbranch_scc1 L_q2l")
    if OPT["ct2"]:
        l = newlabel("ct")
        a.e(f"s_cmp_lg_u32 s{sR}, 0"); a.e(f"s_cbranch_scc1 {l}")
        code_touch(a, "L_enter", "L_q2b" if T else "L_altwo", 10, 11)
        a.e(f"{l}:")
    cv2 = conv_ops(Q2acc, 0, "keep", [0])
    if not OPT["cvo"]:
        q2_group(2); a.e(SCALE)
    else:
        order = [0, 2, 4, 6, 1, 3, 5, 7]
        def mfs(n):
            s, pos = divmod(order[n], 2)
            return [mf(Q2acc(pos, i, j), Greg(n & 1, i), X2reg(s >> 1, j, s & 1), Q2acc(pos, i, j)) for i in range(8) for j in zj(i)]
        kvat = {0: [7], 1: [8], 5: [9, 10], 6: [11, 12]}
        for n in range(8):
            a.c(f"Q2 sub-step {n} (last)")
            S = Sched(a, mfs(n))
            if n < 7:
                rds = []
                for i in range(8): rds += rd_w(Greg((n + 1) & 1, i), wpos(order[n + 1]), i)
                for r, p in zip(rds, RDPOS_X): S.v(p, r)
            if n == 0:
                place_tile(a, S, w_tile(wpos(7), 7, 2), (4, 7)); S.h(14, SCALE)
                for s in range(2): S.v(s, rd_xb(X2reg(1, 0, s), 0, s))
            if n == 1:
                for k, p in enumerate((0, 1, 4, 7)): S.v(p, rd_xb(X2reg(1, 1 + (k >> 1), k & 1), 1 + (k >> 1), k & 1))
            for m, gp in zip(kvat.get(n, []), ((10, 13),) if n < 2 else ((4, 7), (10, 13))):
                un, half = divmod(m - 7, 2)
                pre = [x.replace(f"s{sOff},", f"s{sOff2},") for x in unit_pre(sKn, un * 8192)[4*half:4*half+4]]
                if gp[0] == 4: pre = [x.replace(f"s{sOff2},", f"s{sOff},") for x in pre]
                for x, h_ in zip(pre, (0, 0, 1, 2) if gp[0] == 4 else (0, 1, 4, 8) if n < 2 else (4, 5, 7, 8)): S.h(h_, x)
                so = sOff if gp[0] == 4 else sOff2
                place_tile(a, S, unit_dma(so, so)[2*half:2*half+2], gp)
            if n < 6: end_sync(a, S, {0: 6, 1: 6, 5: 8}.get(n, 20), 5)
            if n >= 4: cv2 = fill_ops(S, cv2, 4 if n == 4 else 0)
            S.emit(mfs(n + 1)[0] if n < 7 else None)
    if OPT["stamp"] and not OPT["qprof"]:
        a.e(f"s_lshr_b32 s{sT2}, s{sR}, 1"); stamp_dyn(a, 3, sT2, 2)
    a.c("Q2 conversion")
    for x in cv2: a.e(x)
    def bank_write(db, src):
        return [f"v_accvgpr_write_b32 a{db + 12*p + 4*j + x}, v{src(p, j)+x}" for p in range(4) for j in range(3) for x in range(4)]
    a.e(f"s_cmp_lg_u32 s{sR}, 0"); a.e("s_cbranch_scc1 L_cv2b")
    if OPT["touch"]:
        a.e("v_min_u32 v8, 39, v0"); a.e("v_lshrrev_b32 v9, 2, v8"); a.e("v_lshlrev_b32 v9, 13, v9")
        a.e("v_and_b32 v8, 3, v8"); a.e("v_lshl_add_u32 v9, v8, 7, v9")
        a.e(f"s_lshl_b32 s{sTmp}, s{sB}, 2"); a.e(f"s_add_u32 s{sTmp}, s{sTmp}, s{sWv}"); a.e(f"s_mul_i32 s{sTmp}, s{sTmp}, {10*8192}")
        a.e(f"s_add_u32 s{sTmp}, s{sTmp}, 512")
        a._emit(f"buffer_load_dword v{vD}, v9, {sr(sW,4)}, s{sTmp} offen")
    a.e(f"s_and_b32 s{sWq}, s{sWq}, 0xfffff"); a.e(f"s_xor_b32 s{sWq}, s{sWq}, 512"); a.e(f"s_add_u32 s{sWq1}, s{sWq}, {1 << 20}")
    a.e(f"s_and_b32 s{sXo}, s{sXo}, 128"); a.e(f"s_xor_b32 s{sXo1}, s{sXo}, 128")
    for x in bank_write(QBANK[1], lambda p, j: Q2acc(0, 2*p, j)): a.e(x)
    a.e("s_branch L_cv2c")
    a.e("L_cv2b:")
    if OPT["emu3"]:
        a.e(f"s_cmp_eq_u32 s{sPre}, 1"); a.e("s_cbranch_scc0 L_cv2d")
        a.e(f"s_mov_b32 s{sPre}, 14")
        a.e(f"s_and_b32 s{sWq}, s{sWq}, 0xfffff"); a.e(f"s_add_u32 s{sWq1}, s{sWq}, {1 << 20}")
        a.e(f"s_and_b32 s{sXo}, s{sXo}, 128"); a.e(f"s_xor_b32 s{sXo1}, s{sXo}, 128")
        a.raw_wait("s_waitcnt vmcnt(0)"); a.e("s_barrier")
        for n in range(LA): emit_tile(a, w_tile(wpos(n), n, 2))
        a.raw_wait("s_waitcnt vmcnt(0)")
        a.e("s_branch L_q2go")
        a.e("L_cv2d:")
    a.e("s_nop 7")
    for x in bank_write(QBANK[3], lambda p, j: Q2acc(0, 2*p, j)): a.e(x)
    bootstrap()
    a.e("L_cv2c:")
    for x in conv_ops(Q2acc, 1, None, [0]): a.e(x)
    a.e("L_enter:")
    a.e(f"v_mov_b32 v{vT}, 0x3f803f80")
    if OPT["sparse1"]:
        a.e(f"v_and_b32 v{vT+1}, 3, v0"); a.e(f"v_cmp_eq_u32 vcc, 0, v{vT+1}"); a.e(f"v_cndmask_b32 v{vT}, 0, v{vT}, vcc")
    for r in range(4): a.e(f"v_accvgpr_write_b32 a{ONES[1]+r}, v{vT}")
    def rd_k(dst, t, u): return [f"ds_read_b128 {vr(dst + 4*ks,4)}, v{vKA} offset:{(t % 8)*TILE + u*512 + ks*64}" for ks in range(4)]
    def rd_v(t, half, fr=VF):
        return [f"ds_read_b64_tr_b16 {vr(fr + 4*i + 2*e, 2)}, v{vVA} offset:{(t % 8)*TILE + e*512 + (4*half+i)*32}" for i in range(4) for e in range(2)]
    a.e(f"s_sub_u32 s{sBL}, s{sKn}, {3*8192}"); a.e(f"s_sub_u32 s{sMin}, s{sCur}, {OPT['lmax']*8192}")
    assert OPT["cvo"] or not T
    THR = OPT['thr'] + 1 if OPT['dyn'] else 99
    a.e(f"s_cmp_eq_u32 s{sTyp}, 0"); a.e(f"s_cselect_b32 s{sThr}, {0 if OPT['sh1'] else THR}, {THR}")
    vmw(a, 12)
    a.e("s_barrier")
    a.lg = []
    for r in rd_k(KF, 0, 0) + rd_k(VF, 0, 1): a.e(r)
    for x in unit_pre(sBL, 6 * 8192): a.e(x)
    a.wait(lg="all")
    def ex(u, k): j, r = divmod(k, 4); s = Sr(u, j) + r; return f"v_exp_f32 v{s}, v{s}"
    def cv(u, buf, c): j, h = divmod(c, 2); s = Sr(u, j) + 2*h; return f"v_cvt_pk_bf16_f32 v{Pr(buf,j) + 2*u + h}, v{s}, v{s+1}"
    def qk(u): return [mf(Sr(u, j), KF + 4*ks, Qf(j, ks), Nm(j) if ks == zk(j)[0] else Sr(u, j)) for j in range(3) for ks in zk(j)]
    def pv(t, half, fr=VF): return [mf(Or(4*half + i, j), fr + 4*i, Pr(t & 1, j), None if t == 0 else Or(4*half + i, j)) for i in range(4) for j in zj(i)]
    def sm(t): return [mf(La(j), ONES, Pr(t & 1, j), None if t == 0 else La(j)) for j in zj(1)]
    VMW = 4 * (5 - OPT["lmax"])
    decide = [f"s_getreg_b32 s{sC1}, hwreg(HW_REG_IB_STS, 0, 4)", f"s_cmp_ge_u32 s{sC1}, s{sThr}", f"s_cselect_b32 s{sC1}, s{sBL}, s{sMin}",
              f"s_cmp_gt_i32 s{sC1}, s{sMin}", "s_cselect_b64 vcc, -1, 0", f"s_cselect_b32 s{sC1}, 8192, 0", f"s_sub_u32 s{sBL}, s{sBL}, s{sC1}"]
    def dec(t):
        d = list(decide)
        if t < OPT["fskip"] - 1: d[1] = f"s_cmp_ge_u32 s{sC1}, 0"
        return d
    catch = []
    def wo_at(S, m, gaps):
        st, post = wo_tile(m)
        place_tile(a, S, st, gaps)
        for x in post: S.h(gaps[1], x)
    def tail_vec(S, u, buf, rds):
        pos = [0, 1, 4, 5, 8, 9, 10, 11]
        for r, p in zip(rds, pos): S.v(p, r)
        for k, p in zip(range(8, 12), (2, 3, 6, 7)): S.v(p, ex(u, k))
        for c, p in zip(range(6), (0, 1, 4, 5, 8, 9)): S.v(p, cv(u, buf, c))
    a.e("L_head:")
    a.c("tile 0: scores of the first 16 keys give the stand-in row max")
    def qk0(extra):
        S = Sched(a, [mf(Sr(0, j), KF + 4*ks, Qf(j, ks), None if ks == 0 else Sr(0, j)) for j in range(3) for ks in range(4)])
        S.h(2, lambda: vmw(a, VMW))
        for k, x in enumerate(dec(-1)): S.h(3 + k, x)
        for k, x in enumerate(extra[:24]): S.v(k // 2, x)
        S.emit(None)
        for x in extra[24:]: a.e(x)
        if not extra: a.e("s_nop 7")
    qk0([])
    a.e(".p2align 6")
    a.e("L_head2:")
    for j in range(3): a.e(f"v_max3_f32 v{Nm(j)}, v{Sr(0,j)}, v{Sr(0,j)+1}, v{Sr(0,j)+2}")
    for j in range(3): a.e(f"v_max_f32 v{Nm(j)}, v{Nm(j)}, v{Sr(0,j)+3}")
    rowred(a, "v_max_f32", [Nm(j) for j in range(3)], [Nm(j) + 1 for j in range(3)])
    for j in range(3):
        for r in (3, 2, 1, 0): a.e(f"v_sub_f32 v{Nm(j)+r}, 0, v{Nm(j)}")
    a.e("s_barrier")
    S = Sched(a, [mf(Sr(1, j), VF + 4*ks, Qf(j, ks), Nm(j) if ks == 0 else Sr(1, j)) for j in range(3) for ks in range(4)])
    for r, p in zip(rd_k(KF, 1, 0), (0, 3, 6, 9)): S.v(p, r)
    place_guarded(a, S, unit_dma(), (2, 5, 8, 11))
    subs = [f"v_add_f32 v{Sr(0,j)+r}, v{Sr(0,j)+r}, v{Nm(j)}" for j in range(3) for r in range(4)]
    for x, p in zip(subs, (0, 1, 1, 3, 4, 4, 6, 7, 7, 9, 10, 10)): S.v(p, x)
    S.emit(None)
    for k in range(12): a.e(ex(0, k))
    for k in range(8): a.e(ex(1, k))
    for c in range(6): a.e(cv(0, 0, c))
    a.wait(lg="all")
    def stage(t, mode):
        a.c(f"stage {t} {mode}")
        kv = mode == "kv"
        S = Sched(a, qk(0)); tail_vec(S, 1, t & 1, rd_v(t, 0))
        if kv and OPT["dyn"] and OPT["thr2"] >= 0 and t >= OPT["cufrom"] and (t - OPT["cufrom"]) % OPT["custep"] == 0:
            l0, l1 = newlabel("cu"), newlabel("cub")
            cm = [f"s_add_u32 s{sC1}, s{sC1}, {THR - OPT['thr2']}", f"s_cmp_le_u32 s{sC1}, s{sThr}"] if OPT["gate"] else ["s_nop 0", f"s_cmp_le_u32 s{sC1}, {OPT['thr2']}"]
            for k, x in enumerate([f"s_getreg_b32 s{sC1}, hwreg(HW_REG_IB_STS, 0, 4)"] + cm +
                                  [f"s_cselect_b32 s{sC1}, s{sBL}, s{sCur}", f"s_cmp_lt_i32 s{sC1}, s{sCur}"]): S.h(5 + k, x)
            def site(l0=l0, l1=l1): a.e(f"s_cbranch_scc1 {l0}"); a.e(f"{l1}:")
            S.h(10, site)
            catch.append((l0, l1, t))
        S.emit(pv(t, 0)[0])
        S = Sched(a, pv(t, 0))
        for r, p in zip(rd_k(KF, t+1, 1), (0, 1, 2, 3)): S.v(p, r)
        for k, p in zip(range(8), range(4, 12)): S.v(p, ex(0, k))
        S.h(10, lambda: a.wait(lg="all"))
        if kv:
            for x, p in zip(unit_pre(sBL, (t + 7) * 8192)[:6], (0, 1, 3, 4, 6, 7)): S.h(p, x)
        if mode == "wq" and t == 13: place_tile(a, S, x_block(1, 0, sXo) + x_block(2, 0, sXo), (2, 4, 7, 9))
        S.emit(qk(1)[0])
        S = Sched(a, qk(1)); tail_vec(S, 0, (t+1) & 1, rd_v(t, 1))
        if kv:
            if t == OPT["sh1t"]: S.h(2, f"s_mov_b32 s{sThr}, {THR}")
            if t == 9 and OPT["sh2"] and T:
                S.h(2, f"s_cmp_eq_u32 s{sR}, s{sPre}"); S.h(3, f"s_cselect_b32 s{sThr}, 0, s{sThr}")
            for x, p in zip(unit_pre(sBL, (t + 7) * 8192)[6:], (0, 1)): S.h(p, x)
            S.h(4, lambda: vmw(a, VMW))
            for k, x in enumerate(dec(t)): S.h(5 + k, x)
        else:
            S.h(11, lambda: vmw(a, {"wo": 8, "wq": 8 if t < 14 else 4}[mode]))
        S.emit(None)
        S = Sched(a, sm(t) + pv(t, 1))
        S.h(0, "s_barrier")
        if t + 2 < 16:
            for r, p in zip(rd_k(KF, t+2, 0), (0, 1, 2, 3)): S.v(p, (r, "kr"))
        else:
            for r, p in zip(rd_v(15, 0, KF), (0, 1, 2, 3, 4, 6, 7, 9)): S.v(p, (r, "kr"))
            S.v(10, cv(1, 1, 0)); S.v(12, cv(1, 1, 1))
            if mode == "wq":
                for k, p in enumerate((0, 1, 2, 5, 8, 10)): S.v(p, (rd_xb(X2reg(0, k >> 1, k & 1), k >> 1, k & 1), "kr"))
        for k, p in zip(range(8), (3, 4, 6, 7, 9, 10, 12, 13)): S.v(p, ex(1, k))
        def vwait(keep):
            def f():
                idx = [n for n, (tg, d) in enumerate(a.lg) if tg != "kr"]
                if len(idx) > keep: a._wait(lg_idx=idx[len(idx) - 1 - keep])
            return f
        S.h(1, vwait(4)); S.h(6, vwait(0))
        if kv: place_guarded(a, S, unit_dma(), (5, 8, 11, 14))
        elif mode == "wo":
            wo_at(S, 2*(t-12), (5, 8)); wo_at(S, 2*(t-12) + 1, (11, 14))
        else:
            if t == 12: place_tile(a, S, x_block(0, 0, sXo), (5, 8))
            else: place_tile(a, S, w_tile(2*t - 17, 2*t - 25, 2), (5, 8))
            place_tile(a, S, w_tile(2*t - 16, 2*t - 24, 2), (11, 14))
        S.h(12 if t < 14 else 14, lambda: a.wait(lg="all"))
        S.emit(qk(0)[0] if t < 14 else None)
        assert not a.lg
    NPRE = 20
    def epi_ops(toq):
        o_ = [f"v_mul_f32 v{Or(u,j)+r}, v{Or(u,j)+r}, v{vT+j}" for u in range(2) for j in range(3) for r in range(4)]
        for p in range(4):
            for j in range(3):
                d = Qf(j, p) if toq else Or(2*p, j)
                if p: o_ += [f"v_mul_f32 v{Or(2*p+u,j)+r}, v{Or(2*p+u,j)+r}, v{vT+j}" for u in range(2) for r in range(4)]
                o_ += [f"v_cvt_pk_bf16_f32 v{d+2*u+h}, v{Or(2*p+u,j)+2*h}, v{Or(2*p+u,j)+2*h+1}" for u in range(2) for h in range(2)]
        return o_
    def stage15(mode):
        a.c(f"stage 15 {mode}")
        p0 = pv(15, 0, KF)
        S = Sched(a, [m_ for j in range(3) for m_ in [sm(15)[zj(1).index(j)]] + [p0[3*i + zj(i).index(j)] for i in range(4)]] + pv(15, 1))
        for r, p in zip(rd_v(15, 1), (0, 1, 6, 7, 8, 9, 10, 11)): S.v(p, r)
        for c, p in zip((2, 3, 4, 5), (0, 1, 6, 7)): S.v(p, cv(1, 1, c))
        for k, p in zip(range(8, 12), (2, 3, 4, 5)): S.v(p, ex(1, k))
        for j, p in enumerate((8, 9, 14)): S.v(p, f"v_accvgpr_read_b32 v{vT+j}, a{La(j)[1]}")
        S.v(10, f"v_add_f32 v{vT+3}, v{vT}, v{vT+1}"); S.v(14, f"v_add_f32 v{vT+3}, v{vT+3}, v{vT+2}")
        S.v(11, f"v_mov_b32 v{vT+4}, {f32(2.0**30 if not OPT['forceslow'] else 150.0)}")
        S.v(15, f"v_cmp_nle_f32 vcc, v{vT+3}, v{vT+4}")
        for j, p in enumerate((12, 13, 16)): S.v(p, f"v_rcp_f32 v{vT+j}, v{vT+j}")
        if mode != "wo":
            for k, x in enumerate(epi_ops(0)[:NPRE]): S.v(17 + k // 2, x)
        if mode == "kv":
            for k, x in enumerate(unit_pre(sBL, 22 * 8192)): S.h(1 + k, x)
        if mode == "wo":
            for k in range(3): wo_at(S, 6 + k, (11 + 6*k, 14 + 6*k))
        if mode == "wq":
            place_tile(a, S, [s_ for j in range(3) for s_ in x_block(j, 0, sXo1)], (12, 14, 17, 19, 22, 24))
        S.emit(None)
        assert not a.lg
        if not OPT["nocheck"]: a.e("s_cbranch_vccnz L_slow")
    for t in range(15):
        if t == 12:
            a.e(f"s_cmp_eq_u32 s{sR}, 3"); a.e("s_cbranch_scc1 L_altwo")
            if T: a.e(f"s_cmp_eq_u32 s{sR}, s{sPre}"); a.e("s_cbranch_scc1 L_altwq")
        stage(t, "kv")
    stage15("kv")
    a.e("L_epi:")
    for r in rd_k(KF, 0, 0) + rd_k(VF, 0, 1): a.e(r)
    lg_epi = list(a.lg)
    for x in epi_ops(0)[NPRE:]: a.e(x)
    if OPT["stamp"] and not OPT['qprof']: stamp_dyn(a, 5, sR, 4)
    for s_ in (sCur, sBL, sMin): a.e(f"s_add_u32 s{s_}, s{s_}, 131072")
    a.e(f"s_add_u32 s{sR}, s{sR}, 1")
    a.e(f"s_cmp_eq_u32 s{sR}, 3"); a.e("s_cbranch_scc1 L_sw2")
    a.e(f"s_cmp_eq_u32 s{sR}, 2"); a.e("s_cbranch_scc1 L_sw1")
    for r in range(3):
        a.e(f"L_sw{r}:")
        if r == 1 and T: a.e(f"s_cmp_eq_u32 s{sPre}, 1"); a.e("s_cbranch_scc1 L_q2b")
        if r == 0 and T:
            l = newlabel("ct")
            a.e(f"s_cmp_lg_u32 s{sPre}, 1"); a.e(f"s_cbranch_scc1 {l}")
            code_touch(a, "L_q2b", "L_altwo", 10, 11)
            a.e(f"{l}:")
        if r == 2:
            code_touch(a, "L_altwo", "L_hot_end", 158, 159)
            l = newlabel("bp")
            a.e(f"s_cmp_lg_u32 s{sWv}, 0"); a.e(f"s_cbranch_scc1 {l}")
            a._emit("global_load_dword v156, v157, s[18:19] sc1")
            a.e(f"{l}:")
        for j in range(3):
            for p in range(4):
                for x in range(4): a.e(f"v_accvgpr_read_b32 v{Qf(j,p)+x}, a{QBANK[r+1] + 12*p + 4*j + x}")
        a.raw_wait("s_waitcnt lgkmcnt(0)"); a.lg = []
        qk0(bank_write(OBANK[r], lambda p, j: Or(2*p, j)))
        a.e("s_branch L_head2")
    for l0, l1, t in catch:
        a.e(f"{l0}:")
        for x in unit_pre(sBL, (t + 7) * 8192): a.e(x)
        emit_tile(a, unit_dma())
        a.e(f"s_add_u32 s{sBL}, s{sBL}, 8192")
        a.e(f"s_branch {l1}")
    if T:
        a.e("L_q2b:")
        for x in bank_write(OBANK[1], lambda p, j: Or(2*p, j)): a.e(x)
        a.e(f"s_add_u32 s{sKn}, s{sBL}, {3*8192}"); a.e(f"s_add_u32 s{sMin}, s{sCur}, {3*8192}")
        a.raw_wait("s_waitcnt vmcnt(0) lgkmcnt(0)")
        a.e("s_barrier")
        for n in range(5, LA): emit_tile(a, w_tile(wpos(n), n, 2))
        a.e("s_branch L_q2go")
        a.e(".p2align 6")
        a.e("L_altwq:")
        a.lg = []
        for t in range(12, 15): stage(t, "wq")
        stage15("wq")
        a.e("s_branch L_epi")
    a.e(".p2align 6")
    a.e("L_altwo:")
    a.lg = []
    for t in range(12, 15): stage(t, "wo")
    stage15("wo")
    sPr, sOut, sOo, sDst = sX, sW, sLast, 40
    LD = {0: 184, 1: 130}
    ACC, STG = 60, 160
    vSA, vSB, vLA, vLB, vOA, vFl, vFi, vPoll, vVal, TM, PK = 152, 153, 154, 158, 159, 1, 2, 6, 10, 120, 124
    def Ga(h, i, j): return (72, 208)[h] + 12 * i + 4 * j
    def spin_loop(l0, l1, cmp, reload):
        a.e(f"{l0}:")
        a.e(f"s_mov_b32 s{sT3}, 0")
        l2 = newlabel("spin")
        a.e(f"{l2}:")
        a.e(f"s_add_u32 s{sT3}, s{sT3}, 1")
        a.e(f"s_cmp_ge_u32 s{sT3}, {SPIN_MAX}")
        a.e(f"s_cbranch_scc1 {l1}")
        a.e(f"s_sleep {OPT['sleep']}")
        a._emit(reload)
        a.raw_wait("s_waitcnt vmcnt(0)")
        for x in cmp: a._emit(x)
        a._emit("s_nop 4")
        a.e(f"s_cbranch_vccnz {l2}")
        a.e(f"s_branch {l1}")
    spins = []
    def rd_g(dst, m, f):
        h, o = slot(m); i, c = divmod(f, 2)
        return [f"ds_read_b64_tr_b16 {R(off(dst, 2*e), 2)}, v{(vWAl, vWAh)[h]} offset:{o + c*512 + e*256 + i*32}" for e in range(2)]
    def gmf(n):
        h, t = divmod(n % 16, 8)
        o = []
        for i in range(4):
            for jn, j in enumerate(zj(i)):
                cs = (1, 0) if OPT["zz"] and (3 * i + jn) & 1 else (0, 1)
                for c in cs:
                    r, p = divmod(2 * t + c, 4)
                    o.append(mf(Ga(h, i, j), Greg(n & 1, 2*i + c), Qf(j, p) if r == 3 else ("a", OBANK[r] + 12 * p + 4 * j), None if t == 0 and c == cs[0] else Ga(h, i, j)))
        return o
    a.e("L_g:")
    a.lg = []
    if OPT["stamp"] and not OPT['qprof']: stamp(a, 8)
    if OPT["qprof"] == 4: stamp(a, 4)
    a.e(f"v_lshrrev_b32 v{TM}, 5, v0"); a.e(f"v_lshlrev_b32 v{TM}, 7, v{TM}")
    a.e(f"v_sub_u32 v{vWAh}, v{vVA}, v{TM}"); a.e(f"v_subrev_u32 v{vWAl}, {VB}, v{vWAh}")
    a.e(f"v_mov_b32 v{TM+1}, {XB}")
    vmw(a, 12)
    l, l0, l1 = newlabel("bc"), newlabel("bs"), newlabel("bok")
    a.e(f"s_cmp_lg_u32 s{sWv}, 0"); a.e(f"s_cbranch_scc1 {l}")
    bcmp = [f"v_and_b32 v{TM}, 0xff, v156", f"v_cmp_gt_u32 vcc, 8, v{TM}"]
    for x in bcmp: a._emit(x)
    a.e(f"s_lshl_b32 s{sTmp}, s{sPK}, 3")
    a._emit("s_nop 3")
    if not OPT["nosync"]: a.e(f"s_cbranch_vccnz {l0}")
    a.e(f"{l1}:")
    spins.append((l0, l1, bcmp, "global_load_dword v156, v157, s[18:19] sc1"))
    a.e(f"v_xor_b32 v156, s{sTmp}, v156")
    a._emit(f"ds_write_b32 v{TM+1}, v156")
    a.e(f"{l}:")
    a.e("s_barrier")
    for f in range(8):
        for r in rd_g(Greg(0, f), 0, f): a.e(r)
    epi = epi_ops(1)
    for x in epi[:16]: a.e(x)
    epi = epi[16:]
    def srd_atoms(d, lo, o): return [[f"s_add_u32 s{d}, s{lo}, {o}", f"s_addc_u32 s{d+1}, s{lo+1}, 0"], [f"s_and_b32 s{d+1}, s{d+1}, 0xffff"], [f"s_mov_b32 s{d+3}, 0x20000"]]
    T1_, T2_ = f"s{sTmp}", f"s{sT2}"
    setup_ = [[f"s_mul_i32 {T1_}, s{sG}, {XG}"]] + srd_atoms(sP, 28, T1_) + [[f"s_mov_b32 s{sP+2}, {XG}"], [f"s_mul_i32 {T2_}, s{sU}, {XD}"], [f"s_add_u32 {T1_}, {T1_}, {T2_}"]]
    setup_ += srd_atoms(sPr, 28, T1_) + [[f"s_mov_b32 s{sPr+2}, 0"]]
    if OPT["ibg"]:
        setup_ += [[x] for x in (f"s_mul_i32 {T2_}, s{sWv}, 1536", f"s_add_u32 {T2_}, {T2_}, {T1_}", f"s_add_u32 {T2_}, {T2_}, {5*XP}",
            "v_min_u32 v148, 47, v0", "v_mul_u32_u24 v149, 43, v148", "v_lshrrev_b32 v149, 9, v149", "v_lshlrev_b32 v148, 7, v148",
            "v_mul_u32_u24 v149, 4608, v149", f"v_add3_u32 v148, v148, v149, {T2_}", f"s_add_u32 {T2_}, {T2_}, {XD - 6144 + 1408}",
            "v_add_u32 v150, 24576, v148", f"v_min_u32 v150, {T2_}, v150")]
    for i in range(7):
        setup_ += [[f"s_xor_b32 s{sDst+i}, s{sU}, {i ^ 7}"], [f"s_mul_i32 s{sDst+i}, s{sDst+i}, {XD}"], [f"s_add_u32 s{sDst+i}, s{sDst+i}, {i*6144}"]]
    setup_ += [[f"s_mul_i32 {T1_}, s{sB}, 491520"], [f"s_mul_i32 {T2_}, s{sBr}, 1280"], [f"s_add_u32 {T1_}, {T1_}, {T2_}"], [f"s_lshl_b32 {T2_}, s{sU}, 5"], [f"s_add_u32 {T1_}, {T1_}, {T2_}"]]
    setup_ += srd_atoms(sOut, 16, T1_) + [[f"s_mov_b32 s{sOut+2}, 0"]]
    setup_ += [[x] for x in (f"s_mul_i32 {T1_}, s{sWv}, 1536", f"v_lshl_add_u32 v{vSA}, v0, 4, {T1_}", f"s_add_u32 {T1_}, {T1_}, 1024", f"v_lshl_add_u32 v{vSB}, v0, 3, {T1_}",
        f"v_and_b32 v{TM}, 15, v0", f"v_mul_u32_u24 v{TM}, 2560, v{TM}", f"v_lshrrev_b32 v{TM+3}, 4, v0", f"v_lshl_add_u32 v{TM}, v{TM+3}, 3, v{TM}",
        f"s_mul_i32 {T1_}, s{sWv}, {48*2560}", f"v_add_u32 v{vOA}, {T1_}, v{TM}",
        f"s_lshl_b32 {T1_}, s{sWv}, 7", f"s_lshl_b32 {T2_}, s{sU}, 2", f"s_add_u32 {T2_}, {T2_}, {T1_}", f"v_lshl_add_u32 v{vFl}, v0, 9, {T2_}",
        f"s_lshl_b32 {T2_}, s{sU}, 9", f"s_add_u32 {T2_}, {T2_}, {T1_}", f"v_and_b32 v{TM}, 7, v0", f"v_lshl_add_u32 v{vFi}, v{TM}, 2, {T2_}",
        f"v_mov_b32 v{vVal}, 0", f"v_mov_b32 v{vPoll}, 0", f"s_mov_b32 s{sGc}, 0", f"s_mov_b32 s{sOo}, -512", f"s_mov_b32 s{sS8}, 0xffff0000")]
    m = 9
    Ss = []
    for n in range(8):
        S = Sched(a, gmf(n)); Ss.append(S)
        rds = []
        for f in range(8): rds += rd_g(Greg((n + 1) & 1, f), n + 1, f)
        for r, p in zip(rds, RDPOS): S.v(p, r)
        for gp in ([(6, 11), (16, 19)] if n < 4 else [(6, 11)]): wo_at(S, m, gp); m += 1
        if n % 4 == 1: end_sync(a, S, {1: 12, 5: 16}[n], 0)
        else: S.h(22, lambda: a.wait(lg="all"))
        if n == 2: S.v(20, f"ds_read_b32 v{TM+2}, v{TM+1}")
        if OPT["ibg"] and n == OPT["ibn"]: S.v(16, lambda: a._emit(f"global_load_dword v149, v148, s[28:29]"))
        if OPT["ibg"] and n == min(7, OPT["ibn"] + 3): S.v(16, lambda: a._emit(f"global_load_dword v151, v150, s[28:29]"))
        if n == 7:
            S.v(19, f"v_readfirstlane_b32 s{sTmp}, v{TM+2}"); S.h(21, f"s_cmp_lg_u32 s{sTmp}, 0")
    assert m == 21
    n, k = 0, 0
    for atom in setup_:
        while True:
            S = Ss[n]
            ok = (not S.hold[k]) if atom[0].startswith("s_") else free_slots(S)[k] > 0
            if atom[0].startswith("s_") and len(atom) > 1 and free_slots(S)[k] == 0: ok = False
            if ok: break
            k += 1
            if k == 24: n += 1; k = 0
        for x in atom: (S.h if x.startswith("s_") else S.v)(k, x)
        if not atom[0].startswith("s_") or True:
            k += 1
            if k == 24: n += 1; k = 0
    assert (n, k) < (7, 18), (n, k)
    for n in range(7):
        epi = fill_ops(Ss[n], epi)
        if n == 5: assert len(epi) <= 72 - 8, len(epi)
    assert not epi, len(epi)
    for n in range(8):
        a.c(f"G first half, sub-step {n}")
        Ss[n].emit(gmf(n + 1)[0])
    a.e("s_branch L_gx" if OPT["xmode"] == 1 else "s_cbranch_scc1 L_gx")
    NP = {0: 4, 1: 3}
    def cvs(h): return [f"v_cvt_pk_bf16_f32 v{STG + 6*i + 2*j + x}, v{Ga(h,i,j)+2*x}, v{Ga(h,i,j)+2*x+1}" for i in range(NP[h]) for j in range(3) for x in range(2)]
    def rops(h, k):
        o = []
        for r in range(6):
            s = LD[h] + 6*k + r; t = TM + 2 * (r & 1)
            src = Ga(1, 3, r >> 1) + 2 * (r & 1) if (h, k) == (0, 0) else ACC + 2*r
            o += [f"v_lshlrev_b32 v{t}, 16, v{s}", f"v_and_b32 v{t+1}, s{sS8}, v{s}",
                  f"v_add_f32 v{ACC+2*r}, v{src}, v{t}", f"v_add_f32 v{ACC+2*r+1}, v{src+1}, v{t+1}"]
        return o
    rcv = [f"v_cvt_pk_bf16_f32 v{PK+r}, v{ACC+2*r}, v{ACC+2*r+1}" for r in range(6)]
    def rst(j): return ([f"s_add_u32 s{sOff2}, s{sOo}, {j*40960}"], f"buffer_store_dwordx2 {vr(PK+2*j,2)}, v{vOA}, {sr(sOut,4)}, s{sOff2} offen{['', ' sc1', ' nt', ' sc0 sc1'][OPT['opol']]}")
    chk_cmp = [f"v_cmp_gt_u32 vcc, v{vVal}, v{vPoll}"]
    poll = f"buffer_load_dword v{vPoll}, v{vFi}, {sr(sF,4)}, 0 offen sc1"

    def g_phase(fast):
        pol = ("", " nt", " sc0")[OPT["xs"]] if fast else " sc1"
        la, lb = (vSA, vSB) if fast else (vLA, vLB)
        def xst(h, i): return [([], f"buffer_store_dwordx4 {vr(STG+6*i,4)}, v{vSA}, {sr(sP,4)}, s{sDst+4*h+i} offen{pol}"),
                               ([], f"buffer_store_dwordx2 {vr(STG+6*i+4,2)}, v{vSB}, {sr(sP,4)}, s{sDst+4*h+i} offen{pol}")]
        def xld(h, k): return [([f"s_mov_b32 s{sOff2}, {(4*h+k)*6144}"], f"buffer_load_dwordx4 {vr(LD[h]+6*k,4)}, v{la}, {sr(sPr,4)}, s{sOff2} offen sc1"),
                               ([], f"buffer_load_dwordx2 {vr(LD[h]+6*k+4,2)}, v{lb}, {sr(sPr,4)}, s{sOff2} offen sc1")]
        flag = f"buffer_store_dword v{vVal}, v{vFl}, {sr(sF,4)}, 0 offen{pol}"
        def check():
            l0, l1 = newlabel("sp"), newlabel("ok")
            if not OPT["nosync"]: a.e(f"s_cbranch_vccnz {l0}")
            a.e(f"{l1}:")
            spins.append((l0, l1, chk_cmp, poll))
        if fast: a.e(f"v_add_u32 v{vSA}, {5*XP}, v{vSA}"); a.e(f"v_add_u32 v{vSB}, {5*XP}, v{vSB}")
        else: a.e(f"v_subrev_u32 v{vLA}, {XP}, v{vSA}"); a.e(f"v_subrev_u32 v{vLB}, {XP}, v{vSB}")
        a.e(f"s_branch L_gmid{int(fast)}")
        late = []
        def body():
            del late[:]
            Ss = [Sched(a, gmf(n)) for n in range(16)]
            cap = [[2] * 24 for _ in range(16)]
            ops = []
            def vmem(n, g_, steps, kind):
                if isinstance(kind, tuple) and kind[0] == "T": place_tile(a, Ss[n], steps, g_)
                else:
                    for (pre, d), x in zip(steps, g_):
                        for y in pre: Ss[n].h(x, y)
                        Ss[n].v(x, lambda d=d: a._emit(d))
                for x in g_: cap[n][x] = 0; ops.append((n, x, kind))
            tpos = {0: [(6, 11)], 1: [(6, 11)], 4: [(6, 11), (16, 19)], 5: [(11, 16), (19, 22)], 6: [(6, 11)], 7: [(11, 16)]}
            m = 13
            for n in range(16):
                h, t = divmod(n, 8); S = Ss[n]
                rds = []
                for f in range(8): rds += rd_g(Greg((n + 1) & 1, f), n + 1, f)
                for r, p in zip(rds, RDPOS): S.v(p, r); cap[n][p] -= 1
                cap[n][23] = 0 if n % 4 == 1 else 1; cap[n][20] = min(cap[n][20], 1); cap[n][21] = min(cap[n][21], 1)
                for gp in tpos.get(t, []):
                    st, post = wo_tile(m)
                    if m == 16:
                        S.h(gp[0] - 4, f"s_cmp_eq_u32 s{sGc}, 4"); S.h(gp[0] - 3, f"s_cselect_b32 s{sWo+2}, 0, s{sWo+2}")
                    vmem(n, gp, st, ("T", m))
                    for x in post: S.h(gp[1], x)
                    m += 1
                if t == 2:
                    xs = [s_ for i in range(NP[1-h]) for s_ in xst(1 - h, i)] + [s_ for k in range(NP[h]) for s_ in xld(h, k)]
                    pos = [(n + d, g_) for d in (0, 1) for g_ in (6, 11, 16, 19, 20, 21, 22)]
                    for s_, (n2, g_) in zip(xs, pos): vmem(n2, (g_,), [s_], ("X", h))
                if t == 5: vmem(n, (6,), [([], flag)], "F"); S.v(4, f"v_add_u32 v{vVal}, 1, v{vVal}"); cap[n][4] -= 1
                if t == 7: vmem(n, (6,), [([], poll)], ("P", h))
            assert m == 29
            if OPT["opos"] == 0: vmem(4, (20, 21, 22), [rst(j) for j in range(3)], "O")
            else:
                for j, (n2, g_) in enumerate(((6, 16), (8, 16), (14, 16)) if OPT["opos"] == 1 else ((6, 16), (7, 21), (8, 19))): vmem(n2, (g_,), [rst(j)], "O")
            ops.sort(key=lambda x: (x[0], x[1]))
            ops2 = ops + [(n + 16, g_, k) for n, g_, k in ops]
            def younger(pt, n, g_): return len([o for o in ops2 if pt < (o[0], o[1]) < (n, g_)])
            for h in range(2):
                pt = max((o[0], o[1]) for o in ops if o[2] == ("X", h))
                Ss[8*h + 5].h(2, lambda c=younger(pt, 8*h + 5, 2): vmw(a, c))
                pt = [(o[0], o[1]) for o in ops if o[2] == ("P", h)][0]
                nc = 8*h + 9
                Ss[nc % 16].h(16, lambda c=younger(pt, nc, 16): vmw(a, c))
                Ss[nc % 16].v(16, lambda: a._emit(chk_cmp[0])); cap[nc % 16][16] -= 1
                Ss[nc % 16].h(20, check)
            def fill(lst, n, g_, rec=None):
                for op in lst:
                    while cap[n % 16][g_] <= 0:
                        g_ += 1
                        if g_ == 24: n += 1; g_ = 0
                    if not OPT["norv"]: Ss[n % 16].v(g_, lambda op=op: a._emit(op))
                    cap[n % 16][g_] -= 1
                    if rec is not None and n >= 16: rec.append(op)
                return n, g_
            e = fill(cvs(1), 0, 1); assert e < (2, 5), e
            e = fill(cvs(0), 8, 1); assert e < (10, 5), e
            e = fill(rops(0, 0), 5, 2); assert e < (8, 10), e
            e = fill([x for k in range(1, 4) for x in rops(0, k)], *e); assert e < (13, 2), e
            e = fill([x for k in range(3) for x in rops(1, k)] + rcv, 13, 2, late); assert e < (20, 18), e
            S = Ss[7]
            if not fast: S.v(19, f"v_add_u32 v{vSA}, {XP}, v{vSA}"); S.v(20, f"v_add_u32 v{vSB}, {XP}, v{vSB}")
            S = Ss[15]
            S.h(0, f"s_cmp_ge_u32 s{sGc}, 1")
            S.h(1, f"s_cselect_b32 s{sOut+2}, {191*2560 + 1024 + 32}, 0")
            S.h(2, f"s_add_u32 s{sOo}, s{sOo}, 256")
            S.h(3, f"s_mov_b32 s{sPr+2}, {5*XP + XD}")
            if not fast:
                S.v(19, f"v_add_u32 v{vLA}, {XP}, v{vLA}"); S.v(20, f"v_add_u32 v{vLB}, {XP}, v{vLB}")
            S.h(18, f"s_add_u32 s{sGc}, s{sGc}, 1")
            S.h(19, f"s_cmp_lt_u32 s{sGc}, 5")
            for n in range(16):
                a.c(f"G sub-step {n}")
                if n == 8:
                    assert not a.lg
                    a.e(f"L_gmid{int(fast)}:")
                if n % 4 == 1:
                    tid = n + 5 + 16
                    pt = max((o[0], o[1]) for o in ops2 if o[2] == ("T", tid if tid < 29 else tid - 16) and (o[0] < 16) == (tid < 29))
                    cnt = len([o for o in ops2 if pt < (o[0], o[1]) < (n + 16, 22) and (o[0] >= 16 + 8 * (n // 8) or (isinstance(o[2], tuple) and o[2][0] == "T"))])
                    end_sync(a, Ss[n], min(cnt, 63), 0)
                else:
                    def w():
                        k = min(len(a.lg), OPT['gkeep']); a.raw_wait(f"s_waitcnt lgkmcnt({k})"); a.lg = a.lg[len(a.lg) - k:] if k else []
                    Ss[n].h(22, w)
                Ss[n].emit(gmf(n + 1)[0])
        lab = "L_gl_fast" if fast else "L_gl_far"
        if OPT["qprof"] == 2 and fast: stamp(a, 5); stamp(a, 6, False)
        a.e(".p2align 6")
        a.e(f"{lab}:")
        if OPT["qprof"] == 4: stamp_dyn(a, 4, sGc, 5)
        a.lg = []
        mark = len(a.ins); nops0 = a.nops; ns = len(spins)
        body(); lg_end = list(a.lg)
        del a.ins[mark:]; a.nops = nops0; del spins[ns:]
        body(); assert a.lg == lg_end
        a.e(f"s_cbranch_scc1 {lab}")
        if OPT["qprof"] == 2 and fast: stamp(a, 7); stamp(a, 8, False)
        if OPT["qprof"] == 4: stamp(a, 3)
        a.c("tail")
        for x in cvs(1): a.e(x)
        stamp(a, 2)
        vmw(a, 2)
        a._emit(chk_cmp[0]); a._emit("s_nop 4"); check()
        for i in range(3): emit_tile(a, xst(1, i))
        def ntv(st): return [(p_, d_ + " nt") if OPT["tl"] & 1 else (p_, d_) for p_, d_ in st]
        for k in range(4): emit_tile(a, ntv(xld(0, k)))
        for op in late: a._emit(op)
        vmw(a, 8)
        a.e(f"v_add_u32 v{vVal}, 1, v{vVal}")
        a._emit(flag)
        emit_tile(a, [rst(j) for j in range(3)])
        a.e(f"s_mov_b32 s{sOo}, 1024")
        for k in range(4):
            vmw(a, 2 * (3 - k) + 4)
            for op in rops(0, k): a._emit(op)
            if k == 2: a._emit(poll)
        vmw(a, 0)
        a._emit(chk_cmp[0]); a._emit("s_nop 4"); check()
        for k in range(3): emit_tile(a, ntv(xld(1, k)))
        for k in range(3):
            vmw(a, 2 * (2 - k))
            for op in rops(1, k): a._emit(op)
        for op in rcv: a._emit(op)
        emit_tile(a, [rst(j) for j in range(3)])
    g_phase(True)
    a.e("L_fin:")
    stamp(a, 9, False); stamp(a, 10)
    if OPT["leak"] >= 0:
        k = OPT["leak"]
        if k == 0: a.e("s_mov_b32 s79, 0")
        elif k == 9: a.e("s_sub_u32 s79, s98, s82"); a.e("s_lshr_b32 s79, s79, 4")
        else: a.e(f"s_sub_u32 s79, s{80+2*k}, s80")
        a.e("s_add_u32 s79, s79, 15000")
        if OPT["leakwg"] == 1: a.e("s_cmp_lt_u32 s2, 8"); a.e("s_cselect_b32 s79, s79, 0")
        if OPT["leakwg"] == 2: a.e("s_cmp_ge_u32 s2, 248"); a.e("s_cselect_b32 s79, s79, 0")
        if OPT["leakwg"] in (4, 5): a.e("s_and_b32 s76, s2, 1"); a.e("s_cselect_b32 s79, s79, 0" if OPT["leakwg"] == 5 else "s_cselect_b32 s79, 0, s79")
        if OPT["leakwg"] == 3: a.e("s_cmp_eq_u32 s2, 0"); a.e("s_cselect_b32 s79, s79, 0")
        a.e("L_leak:")
        a._emit("s_memrealtime s[76:77]"); a.raw_wait("s_waitcnt lgkmcnt(0)")
        a.e("s_sub_u32 s76, s76, s80"); a.e("s_cmp_lt_u32 s76, s79"); a.e("s_cbranch_scc1 L_leak")
    stamp_store(a, "L_end", 0)
    dbg_store(a)
    a.e("L_end:")
    a.e("s_endpgm")
    nsp = len(spins)
    for s_ in list(spins): spin_loop(*s_)
    a.e("L_hot_end:")
    a.e(".p2align 6")
    a.e("L_gx:")
    g_phase(False)
    a.e("s_branch L_fin")
    for s_ in list(spins[nsp:]): spin_loop(*s_)
    a.reset_counters()
    a.e("L_slow:")
    a.raw_wait("s_waitcnt vmcnt(0) lgkmcnt(0)")
    vKo, vVo, t0, t1 = 10, 11, P_ + 12, P_ + 13
    a.e("s_nop 7")
    a.e(f"v_and_b32 v{t0}, 7, v0"); a.e(f"v_lshlrev_b32 v{t0}, 10, v{t0}")
    a.e(f"v_bfe_u32 v{t1}, v0, 3, 1"); a.e(f"v_lshl_add_u32 v{t0}, v{t1}, 8, v{t0}")
    a.e(f"v_lshrrev_b32 v{t1}, 4, v0"); a.e(f"v_lshl_add_u32 v{vKo}, v{t1}, 4, v{t0}")
    a.e(f"v_bfe_u32 v{t0}, v0, 4, 1"); a.e(f"v_lshlrev_b32 v{t0}, 12, v{t0}")
    a.e(f"v_lshrrev_b32 v{t1}, 5, v0"); a.e(f"v_lshl_add_u32 v{t0}, v{t1}, 8, v{t0}")
    a.e(f"v_and_b32 v{t1}, 15, v0"); a.e(f"v_lshl_add_u32 v{vVo}, v{t1}, 1, v{t0}")
    for j in range(3): a.e(f"v_mov_b32 v{vT+j}, 0xff800000")
    def slow_qk(cinit):
        for u, kf in ((0, KF), (1, VF)):
            for ks in range(4): a.e(f"buffer_load_dwordx4 {vr(kf + 4*ks,4)}, v{vKo}, {sr(sK,4)}, s{sT2} offen offset:{u*512 + ks*64}")
        for u, kf in ((0, KF), (1, VF)):
            for j in range(3):
                for ks in range(4):
                    a.e(mf(Sr(u, j), kf + 4*ks, Qf(j, ks), (Nm(j) if cinit else None) if ks == 0 else Sr(u, j)))
    a.e(f"s_mov_b32 s{sT2}, s{sCur}")
    a.e(f"s_add_u32 s{sT3}, s{sCur}, 131072")
    a.e("L_slow_p1:")
    slow_qk(False)
    for j in range(3):
        for u in range(2):
            s = Sr(u, j)
            a.e(f"v_max3_f32 v{vT+j}, v{vT+j}, v{s}, v{s+1}")
            a.e(f"v_max3_f32 v{vT+j}, v{vT+j}, v{s+2}, v{s+3}")
    a.e(f"s_add_u32 s{sT2}, s{sT2}, 8192")
    a.e(f"s_cmp_lt_u32 s{sT2}, s{sT3}")
    a.e("s_cbranch_scc1 L_slow_p1")
    rowred(a, "v_max_f32", [vT, vT+1, vT+2], [Nm(j) for j in range(3)])
    for j in range(3):
        for r in range(4): a.e(f"v_sub_f32 v{Nm(j)+r}, 0, v{vT+j}")
    for r in range(96): a.e(f"v_mov_b32 v{O_+r}, 0")
    for r in range(12): a.e(f"v_accvgpr_write_b32 a{192+r}, 0")
    a.e(f"s_mov_b32 s{sT2}, s{sCur}")
    a.e("L_slow_p2:")
    slow_qk(True)
    for u in range(2):
        for k in range(12): a.e(ex(u, k))
    for u in range(2):
        for c in range(6): a.e(cv(u, 0, c))
    for half, fr in ((0, KF), (1, VF)):
        for hi in range(2):
            for i in range(4):
                for e in range(2):
                    for rp in range(2):
                        r = 2*rp + hi
                        a.e(f"buffer_load_ushort v{(S_ if hi else fr) + 4*i + 2*e + rp}, v{vVo}, {sr(sV,4)}, s{sT2} offen offset:{r*1024 + e*512 + (4*half+i)*32}")
        a.wait(vm="all")
        for x in range(16): a.e(f"v_lshl_or_b32 v{fr+x}, v{S_+x}, 16, v{fr+x}")
    for m in sm(2): a.e(m)
    for half, fr in ((0, KF), (1, VF)):
        for m in pv(2, half, fr): a.e(m)
    a.e(f"s_add_u32 s{sT2}, s{sT2}, 8192")
    a.e(f"s_cmp_lt_u32 s{sT2}, s{sT3}")
    a.e("s_nop 7")
    a.e("s_cbranch_scc1 L_slow_p2")
    for j in range(3): a.e(f"v_accvgpr_read_b32 v{vT+j}, a{La(j)[1]}")
    for j in range(3): a.e(f"v_rcp_f32 v{vT+j}, v{vT+j}")
    a.e(f"s_cmp_eq_u32 s{sR}, 3"); a.e("s_cbranch_scc1 L_g")
    for x in epi_ops(0)[:NPRE]: a.e(x)
    a.e("s_branch L_epi")
    return a

HDR = f"""; Fused attention blocks A and B in one launch. One workgroup per CU owns 4 heads of one batch: Q projection,
; softmax attention, output-projection partial (K = 512); the 8 workgroups of a batch then sum their partials.
; kernarg: 0 A_x, 8 A_k, 16 A_v, 24 A_wq, 32 A_wo, 40 B_x, 48 B_k, 56 B_v, 64 B_wq, 72 B_wo, 80 out, 88 debug, 96 ws
; @launch grid=(256,1,1) block=(256,1,1) lds={LDS}
.amdgcn_target "amdgcn-amd-amdhsa--gfx950"
.text
"""
def kern(name, a):
    return f".globl {name}\n.p2align 8\n.type {name},@function\n{name}:\n" + a.text()
def desc(name, nv, acc, ns):
    return f""".p2align 6
.amdhsa_kernel {name}
  .amdhsa_next_free_vgpr {nv}
  .amdhsa_next_free_sgpr {ns}
  .amdhsa_accum_offset {acc}
  .amdhsa_group_segment_fixed_size 0
  .amdhsa_kernarg_size 104
  .amdhsa_user_sgpr_count 2
  .amdhsa_user_sgpr_kernarg_segment_ptr 1
  .amdhsa_system_sgpr_workgroup_id_x 1
  .amdhsa_float_denorm_mode_32 3
.end_amdhsa_kernel
"""
if __name__ == "__main__":
    a = main_kernel()
    if OPT["nodma"] & 1: a.ins = [i for i in a.ins if not (i.kind == "dma" and " v1, " in i.text)]
    if OPT["nodma"] & 2: a.ins = [i for i in a.ins if not (i.kind == "dma" and " v1, " not in i.text)]
    if OPT["nodma"] & 4: a.ins = [i for i in a.ins if not (i.kind == "store" and ("v152," in i.text or "v153," in i.text))]
    if OPT["nodma"] & 8: a.ins = [i for i in a.ins if not (i.kind == "store" and "v159," in i.text)]
    if OPT["nox2"]: a.ins = [i for i in a.ins if not (i.kind == "vmem" and ("v121," in i.text))]
    if OPT["noload"]: a.ins = [i for i in a.ins if not (i.kind == "vmem" and ("v152," in i.text or "v153," in i.text))]
    if OPT["x1"]:
        out = []; on = False; cnt = 0
        for i in a.ins:
            if i.text in ("L_epi:", "L_q2b:") or (OPT["x1"] & 2 and i.text in ("; Q conversion", "; Q2 conversion")): on = True
            if i.op in ("s_barrier",) or i.kind == "mfma" or i.text == "L_enter:": on = False
            out.append(i)
            if on and i.kind == "valu":
                cnt += 1
                if cnt % 2 == 0: out.append(Ins(f"v_mfma_f32_16x16x32_bf16 a[{240+4*(cnt//2%4)}:{243+4*(cnt//2%4)}], a[144:147], a[{96+4*(cnt//2%8)}:{99+4*(cnt//2%8)}], 0"))
        a.ins = out
    if OPT["x2"]:
        out = []; on = False
        for i in a.ins:
            if i.text == "L_q2:": on = True
            if i.text == "L_q2l:": on = False
            if on and i.kind == "mfma": out.append(Ins(f"s_nop {OPT['x2']}"))
            out.append(i)
        a.ins = out
    if OPT["xa"]:
        i0 = [k for k, i in enumerate(a.ins) if i.text == "; stage 0 kv"][0]; i1 = [k for k, i in enumerate(a.ins) if i.text == "; stage 15 kv"][0]
        def drop(i):
            if OPT["xa"] & 1 and i.op == "s_cbranch_vccnz": return True
            if OPT["xa"] & 2 and i.op in ("s_mul_i32", "s_bfe_u32", "s_xor_b32", "s_getreg_b32", "s_cselect_b32", "s_cselect_b64", "s_sub_u32", "s_cmp_gt_u32", "s_cmp_gt_i32", "s_cmp_le_u32"): return True
            if OPT["xa"] & 4 and i.op == "s_barrier": return True
            if OPT["xa"] & 8 and i.op == "s_waitcnt" and "lgkm" in i.text: return True
            if OPT["xa"] & 16 and i.op == "s_mul_i32": return True
            return False
        a.ins = a.ins[:i0] + [i for i in a.ins[i0:i1] if not drop(i)] + a.ins[i1:]
    if OPT["strip"] == 2:
        i0 = [k for k, i in enumerate(a.ins) if i.text == "L_head:"][0]; i1 = [k for k, i in enumerate(a.ins) if i.text == "L_epi:"][0]
        a.ins = a.ins[:i0] + [Ins("s_nop 4") if i.kind == "mfma" else i for i in a.ins[i0:i1] if i.kind not in ("lds", "trans", "valu")] + a.ins[i1:]
    if OPT["strip"] == 1:
        i0 = [k for k, i in enumerate(a.ins) if i.text == "L_head:"][0]; i1 = [k for k, i in enumerate(a.ins) if i.text == "L_epi:"][0]
        a.ins = a.ins[:i0] + [i for i in a.ins[i0:i1] if i.kind not in ("mfma", "lds", "trans", "valu")] + a.ins[i1:]
    ns = 102 if OPT["stamp"] else NSGPR
    open(sys.argv[1], "w").write(HDR + kern(NAME + "_kernel", a) + '.section .rodata,"a"\n' + desc(NAME + "_kernel", 512, 256, ns))
    print("instrs", len(a.ins), "nops", a.nops)
```

```python
import sys, math, struct
from asmlib import *

NAME = "concat_heads__mha_block_cached__gqa_block_cached__near_ridge"
def f32(x): return "0x%08x" % struct.unpack("<I", struct.pack("<f", x))[0]
OPT = dict(stamp=0, nodma=0, nocheck=0, touch=0, forceslow=0, map84=0, first=6, rot=1, strip=0, cyc=0, typ=2, track=1, nosync=0, sleep=1, opos=1, lag=4, noack=0, noload=0, stpol=1, nolw=0, krot=1, hrot=0, emu3=0, ramp=0, vmw=8, pro2=1, bp=1, tord=1, abl=0, zz=1, x1=0, x2=0, opol=2, tl=0, xs=0, kvconv=0, sh1=1, sh2=1, sh1t=3, lateq=0, gate=1, ibg=1, ibn=4, xa=0, stag=0, fskip=0, cufrom=4, custep=4, cvo=1, woq=1, ibnt=0, ibt=14, ct2=1, inbox0=0, sparse1=1, noinbox=1, cthead=3, help=3, latekv=1, wot=0, lmax=3, thr=5, thr2=2, dyn=1, xmode=0, gkeep=0, leak=-1, leakwg=0, st0=0, norv=0, now0=0, gcap=0, qprof=0, la=7, ldpol=1, lmode=0, ldfix=0, nox2=0, wnt=0, xnt=0, t0x=0, t0w=0, ctouch=3, dbgout=0)
for a_ in sys.argv[2:]:
    k_, v_ = a_.split("="); assert k_ in OPT, k_; OPT[k_] = int(v_)

def R(x, n):
    t, i = x if isinstance(x, tuple) else ("v", x)
    return f"{t}{i}" if n == 1 else f"{t}[{i}:{i+n-1}]"
def off(x, d): return (x[0], x[1] + d) if isinstance(x, tuple) else x + d
def mf(d, a, b, c):
    return f"v_mfma_f32_16x16x32_bf16 {R(d,4)}, {R(a,4)}, {R(b,4)}, {'0' if c is None else R(c,4)}"

def zj(i): return (2, 1, 0) if (i & 1) and OPT["zz"] else (0, 1, 2)
def zk(j): return (3, 2, 1, 0) if (j & 1) and OPT["zz"] else (0, 1, 2, 3)
TILE = 8448
VB = 8 * TILE
XB = 16 * TILE
LDS = XB + 24576
NSLOT = 8
CH = NSLOT * 1024
PART = 240 * CH
STAMP_AT = 128 << 20
FLG = 120 << 20
XD = 7 * 6144
XP = 8 * XD
XG = 6 * XP
SPIN_MAX = 2000000
def slot(m):
    m %= 16
    return (m & 1), (m >> 1) * TILE

vKV, vKA, vVA, vWAl, vWAh, vW = 1, 2, 3, 4, 5, 6
vT = 7
QF, NM, S_, P_, KF, VF, O_ = 12, 60, 72, 96, 120, 136, 160
vX0, vX1, vXA0, vXA1 = 156, 157, 158, 159
vTo, vD, vPt, vWo = 152, 153, 154, 155
def Qf(j, ks): return QF + 16 * j + 4 * ks
def Nm(j): return NM + 4 * j
def Sr(u, j): return S_ + 12 * u + 4 * j
def Pr(buf, j): return P_ + 12 * buf + 4 * j
def Or(i, j): return O_ + 12 * i + 4 * j
def Wreg(buf, i): return 12 + 32 * buf + 4 * i
def Xreg(buf, j, s): return 76 + 24 * buf + 8 * j + 4 * s
def Qacc(pos, i, j):
    k = 12 * i + 4 * j
    if pos == 0: return ("a", k)
    if pos == 1: return ("a", 96 + k)
    if pos == 2: return ("a", 192 + k) if k < 64 else 124 + (k - 64)
    return O_ + k
QBANK = {3: 0, 2: 48, 1: 96}
OBANK = {0: 144, 1: 96, 2: 48, 3: 0}
def La(j): return ("a", 192 + 4 * j)
ONES = ("a", 204)
def Greg(buf, i): return ("a", 192 + 32 * buf + 4 * i)
sX, sW, sK, sV, sWo, sP = 32, 36, 40, 44, 48, 52
sWv, sKVL, sWL, sXL, sOff, sOff2, sTmp, sR, sCur, sT2, sT3 = 60, 61, 62, 63, 64, 65, 66, 67, 68, 69, 70
sB, sU, sBr, sG, sXo, sPo = 71, 72, 73, 74, 75, 76
sCX, sNX, sLast, sS8, sWoB, sTask, sTyp = 56, 57, 58, 59, 77, 30, 31
sWq, sGc = 26, 27
sWq1, sJ, sRot, sPM, sPK = 20, 21, 22, 23, 24
sF, sD0, sD1 = 8, 12, 13
sJh, sXo1, sPre = 25, 77, 30
sThr = 56
sBL, sMin, sKn, sMv, sMk, sKVv, sC1 = 57, 76, 23, 58, 59, 3, 25
sH = [4, 5, 6, 7]
NSGPR = 80

def stamp(a, k, real=True):
    if not OPT["stamp"]: return
    lg = list(a.lg)
    a.raw_wait("s_waitcnt lgkmcnt(0)")
    if OPT["cyc"] and 2 <= k <= 8: real = False
    a._emit(f"{'s_memrealtime' if real else 's_memtime'} s[{80+2*k}:{81+2*k}]")
    a.raw_wait("s_waitcnt lgkmcnt(0)")
def stamp_dyn(a, base, sidx, n):
    if not OPT["stamp"]: return
    a.raw_wait("s_waitcnt lgkmcnt(0)")
    a._emit("s_memtime s[78:79]" if OPT["cyc"] else "s_memrealtime s[78:79]")
    a.raw_wait("s_waitcnt lgkmcnt(0)")
    for q in range(n):
        a.e(f"s_cmp_eq_u32 s{sidx}, {q}")
        a.e(f"s_cselect_b32 s{80+2*(base+q)}, s78, s{80+2*(base+q)}")
def stamp_store(a, label, base):
    if not OPT["stamp"]: return
    a.e(f"s_cmp_lg_u32 s{sWv}, 0")
    a.e(f"s_cbranch_scc1 {label}")
    for k in range(11): a.e(f"v_mov_b32 v{16+k}, s{80+2*k}")
    a.e("s_lshl_b32 s78, s2, 6"); a.e(f"s_add_u32 s78, s78, {STAMP_AT + base*64}")
    a.e("v_mov_b32 v28, s78")
    a.e("s_mov_b64 exec, 1")
    a.e("global_store_dwordx4 v28, v[16:19], s[28:29]")
    a.e("global_store_dwordx4 v28, v[20:23], s[28:29] offset:16")
    a.e("global_store_dwordx4 v28, v[24:27], s[28:29] offset:32")

def dbg_store(a):
    if not OPT["dbgout"]: return
    l = "L_dbgskip"
    a.e("s_and_b32 s78, s2, 0xdf"); a.e("s_cmp_lg_u32 s78, 5"); a.e(f"s_cbranch_scc1 {l}")
    a.e("s_load_dwordx2 s[24:25], s[0:1], 88")
    for n, k in enumerate((3,4,5,6,7,8,2,10)):
        a.e(f"s_sub_u32 s79, s{80+2*k}, s80"); a.e(f"v_mov_b32 v{32+n}, s79")
    a.e("s_and_b32 s78, s2, 32"); a.e("v_mov_b32 v29, s78")
    a.raw_wait("s_waitcnt lgkmcnt(0)")
    a.e("global_store_dwordx4 v29, v[32:35], s[24:25]")
    a.e("global_store_dwordx4 v29, v[36:39], s[24:25] offset:16")
    a.e(f"{l}:")

def srd(a, d, lo, o, size):
    a.e(f"s_add_u32 s{d}, s{lo}, {o}")
    a.e(f"s_addc_u32 s{d+1}, s{lo+1}, 0")
    a.e(f"s_and_b32 s{d+1}, s{d+1}, 0xffff")
    a.e(f"s_mov_b32 s{d+2}, {size}")
    a.e(f"s_mov_b32 s{d+3}, 0x20000")
_lbl = [0]
def newlabel(p):
    _lbl[0] += 1
    return f"L_{p}_{_lbl[0]}"
class U(str): pass

def ldsbase(m):
    h, o = slot(m); return h * VB + o
def w_tile(m, n, nh=4):
    b = ldsbase(m); base = sWq if n < 4 * nh else sWq1
    rel = ((n % (4 * nh)) // nh) * 262144 + (nh - 1 - n % nh) * 256
    pol = ' nt' if OPT['wnt'] else ''
    return [([f"s_xor_b32 s{sOff}, s{base}, {rel}", f"s_add_u32 m0, s{sWL}, {b}"], f"buffer_load_dwordx4 v{vW}, {sr(sW,4)}, s{sOff} offen{pol} lds"),
            ([f"s_xor_b32 s{sOff}, s{base}, {rel + 8192}", f"s_add_u32 m0, s{sWL}, {b + 1032}"], f"buffer_load_dwordx4 v{vW}, {sr(sW,4)}, s{sOff} offen{pol} lds")]
def kv_tile(m, t):
    b = ldsbase(m); s = sV if m & 1 else sK
    assert t < 16
    so = f"s_xor_b32 s{sOff}, s{sCX}, {t * 8192}"
    return [([so, f"s_add_u32 m0, s{sKVL}, {b}"], f"buffer_load_dwordx4 v{vKV}, {sr(s,4)}, s{sOff} offen nt lds"),
            ([f"s_add_u32 m0, s{sKVL}, {b + 32}"], f"buffer_load_dwordx4 v{vKV}, {sr(s,4)}, s{sOff} offen offset:1024 nt lds")]
def unit_pre(base, add):
    return [f"s_add_u32 s{sMv}, s{base}, {add}", f"s_xor_b32 s{sOff}, s{sMv}, s{sRot}", f"s_bfe_u32 s{sMv}, s{sMv}, 0x3000d", f"s_mul_i32 s{sMv}, s{sMv}, {TILE}",
            f"s_add_u32 s{sMk}, s{base}, {add + 8192}", f"s_xor_b32 s{sOff2}, s{sMk}, s{sRot}", f"s_bfe_u32 s{sMk}, s{sMk}, 0x3000d", f"s_mul_i32 s{sMk}, s{sMk}, {TILE}"]
def unit_dma(so_v=None, so_k=None):
    so_v = sOff if so_v is None else so_v; so_k = sOff2 if so_k is None else so_k
    return [([f"s_add_u32 m0, s{sMv}, s{sKVv}"], f"buffer_load_dwordx4 v{vKV}, {sr(sV,4)}, s{so_v} offen nt lds"),
            (["s_add_u32 m0, m0, 32"], f"buffer_load_dwordx4 v{vKV}, {sr(sV,4)}, s{so_v} offen offset:1024 nt lds"),
            ([f"s_add_u32 m0, s{sMk}, s{sKVL}"], f"buffer_load_dwordx4 v{vKV}, {sr(sK,4)}, s{so_k} offen nt lds"),
            (["s_add_u32 m0, m0, 32"], f"buffer_load_dwordx4 v{vKV}, {sr(sK,4)}, s{so_k} offen offset:1024 nt lds")]
def place_guarded(a, S, steps, gaps):
    for (pre, d), g in zip(steps, gaps):
        for k, x in enumerate(pre): S.h(g - len(pre) + k, x)
        def site(d=d):
            l = newlabel("sk"); a.e(f"s_cbranch_vccnz {l}"); a._emit(d); a.e(f"{l}:")
        S.v(g, site)
def wo_tile(m):
    b = ldsbase(m); h, t = divmod(m % 16, 8); r = t >> 1; rel = (t & 1) * 81920
    st = [([f"s_add_u32 s{sOff}, s{sH[r]}, {rel}", f"s_add_u32 m0, s{sKVL}, {b}"], f"buffer_load_dwordx4 v{vWo}, {sr(sWo,4)}, s{sOff} offen lds"),
          ([f"s_add_u32 s{sOff}, s{sH[r]}, {rel + 1280}", f"s_add_u32 m0, s{sKVL}, {b + 1056}"], f"buffer_load_dwordx4 v{vWo}, {sr(sWo,4)}, s{sOff} offen lds")]
    return st, ([f"s_add_u32 s{sH[r]}, s{sH[r]}, s{(sD0, sD1)[h]}"] if t & 1 else [])
def emit_tile(a, steps):
    for pre, d in steps:
        for x in pre: a.e(x)
        a._emit(d)
def place_tile(a, S, steps, gaps):
    for (pre, d), g in zip(steps, gaps):
        for k, x in enumerate(pre): S.h(g - len(pre) + k, x)
        S.v(g, lambda d=d: a._emit(d))
def rd_w(dst, m, i):
    h, o = slot(m); p, u = divmod(i, 2)
    return [f"ds_read_b64_tr_b16 {R(off(dst, 2*e), 2)}, v{(vWAl, vWAh)[h]} offset:{o + e*512 + p*64 + u*8}" for e in range(2)]
def vmw(a, n): a.raw_wait(f"s_waitcnt vmcnt({n})")

def rowred(a, op, regs, tmps):
    for w in (32, 16):
        for r, t in zip(regs, tmps): a.e(f"v_mov_b32 v{t}, v{r}")
        for r, t in zip(regs, tmps): a.e(f"v_permlane{w}_swap_b32 v{r}, v{t}")
        for r, t in zip(regs, tmps): a.e(f"{op} v{r}, v{r}, v{t}")

RDPOS = [0,1,2,3,4,5,7,8,9,10,12,13,14,15,17,18]
RDPOS_X = [2,3,5,6,8,9,11,12,14,15,16,17,18,19,20,21]

def code_touch(a, lo, hi, vaddr, vdst, back=False):
    if not OPT["ctouch"]: return
    l = newlabel("pc")
    a.e("s_getpc_b64 s[14:15]")
    a.e(f"{l}:")
    if back: a.e(f"s_sub_u32 s14, s14, {l}-{lo}"); a.e("s_subb_u32 s15, s15, 0")
    else: a.e(f"s_add_u32 s14, s14, {lo}-{l}"); a.e("s_addc_u32 s15, s15, 0")
    a.e(f"s_lshr_b32 s{sT2}, s2, 3"); a.e(f"s_lshl_b32 s{sT2}, s{sT2}, 2"); a.e(f"s_add_u32 s{sT2}, s{sT2}, s{sWv}"); a.e(f"s_lshl_b32 s{sT2}, s{sT2}, 7")
    a.e(f"v_and_b32 v{vaddr}, 3, v0"); a.e(f"v_lshlrev_b32 v{vaddr}, 14, v{vaddr}"); a.e(f"v_add_u32 v{vaddr}, s{sT2}, v{vaddr}")
    a.e(f"v_min_u32 v{vaddr}, {hi}-{lo}-4, v{vaddr}")
    a._emit(f"global_load_dword v{vdst}, v{vaddr}, s[14:15]")

def inbox_addr(va, vt):
    sc = [f"s_mul_i32 s{sT2}, s{sG}, {XG}", f"s_mul_i32 s{sT3}, s{sU}, {XD}", f"s_add_u32 s{sT2}, s{sT2}, s{sT3}",
          f"s_mul_i32 s{sT3}, s{sWv}, 1536", f"s_add_u32 s{sT2}, s{sT2}, s{sT3}", f"s_add_u32 s{sT2}, s{sT2}, {5*XP}"]
    ve = [f"v_lshrrev_b32 v{va}, 3, v0", f"v_min_u32 v{va}, 6, v{va}", f"v_mul_u32_u24 v{va}, 6144, v{va}", f"v_and_b32 v{vt}, 7, v0",
          f"v_min_u32 v{vt}, 5, v{vt}", f"v_lshl_add_u32 v{va}, v{vt}, 7, v{va}", f"v_add_u32 v{va}, s{sT2}, v{va}"]
    return sc, ve

def late_consts(a):
    w_ = 2 if OPT["wot"] else 1
    a.e(f"v_min_u32 v{vTo}, {20*w_-1}, v0"); a.e(f"v_lshlrev_b32 v{vTo}, 7, v{vTo}")
    a.e(f"s_mul_i32 s{sTmp}, s{sB}, {10240*w_}"); a.e(f"s_mul_i32 s{sT2}, s{sWv}, {2560*w_}"); a.e(f"s_add_u32 s{sTmp}, s{sTmp}, s{sT2}")
    a.e(f"v_add_u32 v{vTo}, s{sTmp}, v{vTo}")
    a.e("v_and_b32 v9, 56, v0"); a.e(f"s_lshl_b32 s{sTmp}, s{sWv}, 1"); a.e(f"v_add_u32 v9, s{sTmp}, v9")
    a.e("v_mul_u32_u24 v9, 1280, v9"); a.e("v_and_b32 v8, 7, v0")
    a.e(f"s_xor_b32 s{sTmp}, s{sU}, 7"); a.e(f"s_and_b32 s{sTmp}, s{sTmp}, 3"); a.e(f"s_lshl_b32 s{sTmp}, s{sTmp}, 1"); a.e(f"v_xor_b32 v8, s{sTmp}, v8")
    a.e(f"v_lshl_add_u32 v{vWo}, v8, 4, v9")

def x_block(j, rel, base_s, op="s_add_u32", lds=0):
    so = f"{op} s{sOff2}, s{base_s}, {rel + j*20480}" if base_s is not None else f"s_mov_b32 s{sOff2}, {rel + j*20480}"
    return [([so, f"s_add_u32 m0, s{sXL}, {j*2048 + lds}"], f"buffer_load_dwordx4 v{vX0}, {sr(sX,4)}, s{sOff2} offen{' nt' if OPT['xnt'] else ''} lds"),
            ([f"s_add_u32 m0, s{sXL}, {j*2048 + 1024 + lds}"], f"buffer_load_dwordx4 v{vX1}, {sr(sX,4)}, s{sOff2} offen{' nt' if OPT['xnt'] else ''} lds")]
def rd_xb(dst, j, s): return f"ds_read_b128 {R(dst,4)}, v{(vXA0, vXA1)[s]} offset:{j*2048}"

def end_sync(a, S, vm, keep=2):
    def w():
        n = min(len(a.lg), keep)
        a.raw_wait(f"s_waitcnt vmcnt({vm}) lgkmcnt({n})")
        a.lg = a.lg[len(a.lg) - n:] if n else []
    S.h(22, w); S.h(23, "s_barrier")

sSc = 14
SCALE = f"s_mov_b32 s{sSc}, {f32(math.log2(math.e) / math.sqrt(128.0))}"
def conv_ops(acc, pos, db, tmp):
    o_ = []; k = 0
    for p in range(4):
        for j in range(3):
            t = tmp[k % len(tmp)]; k += 1
            src = []
            for u in range(2):
                o = acc(pos, 2*p + u, j)
                for r in range(4):
                    if isinstance(o, tuple):
                        o_.append(f"v_accvgpr_read_b32 v{t+4*u+r}, a{o[1]+r}"); src.append(t + 4*u + r)
                    else: src.append(o + r)
            o_ += [f"v_mul_f32 v{x}, s{sSc}, v{x}" for x in src]
            d = Qf(j, p) if db is None else src[0]
            o_ += [f"v_cvt_pk_bf16_f32 v{d+r}, v{src[2*r]}, v{src[2*r+1]}" for r in range(4)]
            if db is not None and db != "keep":
                o_ += [f"v_accvgpr_write_b32 a{db + 12*p + 4*j + r}, v{d+r}" for r in range(4)]
    return o_
def free_slots(S):
    cap = []
    for k in range(len(S.mfs)):
        c = 2 - max(0, len(S.hold[k]) - 1)
        for f in S.vec[k]:
            t = f if isinstance(f, str) else f[0] if isinstance(f, tuple) else "vmem"
            c -= 2 if t.startswith(("vmem", "v_exp", "v_rcp")) else 1
        if "s_barrier" in S.hold[k]: c = 0
        cap.append(max(c, 0))
    for k in range(1, len(cap)):
        if cap[k] == 2 and cap[k-1] == 2: cap[k] = 1
    return cap
def fill_ops(S, ops, start=0):
    cap = free_slots(S); n = 0
    for k in range(start, len(cap)):
        for _ in range(cap[k]):
            if n < len(ops): S.v(k, ops[n]); n += 1
    return ops[n:]

def gcv(m, h):
    i, j = divmod(m, 3); p, u = divmod(i, 2); o = Or(i, j)
    return f"v_cvt_pk_bf16_f32 v{S_ + 12*p + 4*j + 2*u + h}, v{o+2*h}, v{o+2*h+1}"
CVS = [gcv(m, h) for m in range(24) for h in range(2)]
def gst(q, rel, base_s):
    p, j = divmod(q, 3)
    return ([f"s_add_u32 s{sOff2}, s{base_s}, {rel + (p*12 + j)*CH}"], f"buffer_store_dwordx4 {vr(S_ + 12*p + 4*j,4)}, v{vPt}, {sr(sP,4)}, s{sOff2} offen{['', ' sc1', ' nt', ' sc0'][OPT['stpol']]}")
def cv_plans():
    caps = [0 if g in (6, 11) else (1 if g in RDPOS else 2) for g in range(24)]
    last = []; ci = 0
    for g, cp in enumerate(caps):
        for _ in range(cp):
            if ci < 48 and ci // 2 + 4 <= g: last.append((g, ci)); ci += 1
    n = ci; first = []
    for g, cp in enumerate(caps):
        for _ in range(cp):
            if ci < 48: first.append((g, ci)); ci += 1
    assert ci == 48 and all(c // 2 > g for g, c in first)
    return last, first, n
PLAN_LAST, PLAN_FIRST, NLAST = cv_plans()

def Q2acc(pos, i, j): return (56 if pos == 0 else O_) + 12 * i + 4 * j
def X2reg(buf, j, s): return ("a", 24 * buf + 8 * j + 4 * s)
def q2mf(n, first):
    s, pos = divmod(n % 8, 2)
    return [mf(Q2acc(pos, i, j), Greg(n & 1, i), X2reg(s >> 1, j, s & 1), None if first and n < 2 else Q2acc(pos, i, j)) for i in range(8) for j in zj(i)]

def main_kernel():
    a = Asm()
    T = OPT["typ"]
    if OPT["st0"]: a._emit("s_memrealtime s[80:81]")
    a.e("s_cmp_ge_u32 s2, 256")
    a.e("s_cbranch_scc1 L_end")
    a.e("s_load_dwordx16 s[4:19], s[0:1], 0")
    a.e("s_load_dwordx4 s[20:23], s[0:1], 64")
    a.e("s_load_dwordx2 s[28:29], s[0:1], 96")
    a.e(f"s_bfe_u32 s{sBr}, s2, 0x10002")
    if not OPT["map84"]:
        a.e(f"s_and_b32 s{sB}, s2, 3"); a.e(f"s_lshl_b32 s{sB}, s{sB}, 2")
        a.e(f"s_bfe_u32 s{sTmp}, s2, 0x20003"); a.e(f"s_add_u32 s{sB}, s{sB}, s{sTmp}")
        a.e(f"s_lshr_b32 s{sU}, s2, 5")
    elif OPT["map84"] == 2:
        a.e(f"s_bfe_u32 s{sB}, s2, 0x40003")
        a.e(f"s_and_b32 s{sU}, s2, 3"); a.e(f"s_lshl_b32 s{sU}, s{sU}, 1")
        a.e(f"s_lshr_b32 s{sTmp}, s2, 7"); a.e(f"s_add_u32 s{sU}, s{sU}, s{sTmp}")
    else:
        a.e(f"s_and_b32 s{sB}, s2, 1"); a.e(f"s_lshl_b32 s{sB}, s{sB}, 3")
        a.e(f"s_bfe_u32 s{sTmp}, s2, 0x30003"); a.e(f"s_add_u32 s{sB}, s{sB}, s{sTmp}")
        a.e(f"s_bfe_u32 s{sU}, s2, 0x10001"); a.e(f"s_lshl_b32 s{sU}, s{sU}, 2")
        a.e(f"s_lshr_b32 s{sTmp}, s2, 6"); a.e(f"s_add_u32 s{sU}, s{sU}, s{sTmp}")
    a.e(f"s_lshl_b32 s{sG}, s{sBr}, 4"); a.e(f"s_add_u32 s{sG}, s{sG}, s{sB}")
    if T == 4: a.e(f"s_bfe_u32 s{sTyp}, s2, 0x10003")
    elif T == 3: a.e(f"s_andn2_b32 s{sTyp}, 1, s2")
    elif T == 2: a.e(f"s_and_b32 s{sTyp}, s2, 1")
    else: a.e(f"s_mov_b32 s{sTyp}, {T}")
    a.e("v_lshrrev_b32 v7, 6, v0")
    a.e("v_and_b32 v0, 63, v0")
    a.e(f"v_readfirstlane_b32 s{sWv}, v7")
    a.e("v_and_b32 v8, 15, v0")
    a.e("v_lshrrev_b32 v9, 4, v0")
    a.e("v_and_b32 v10, 1, v9"); a.e("v_lshlrev_b32 v10, 4, v10")
    a.e("v_lshrrev_b32 v11, 1, v9"); a.e("v_lshl_add_u32 v10, v11, 2, v10")
    a.e("v_lshrrev_b32 v11, 1, v7"); a.e("v_lshl_add_u32 v10, v11, 3, v10")
    a.e("v_and_b32 v11, 1, v7"); a.e("v_lshl_add_u32 v10, v11, 1, v10")
    a.e("v_lshlrev_b32 v10, 13, v10"); a.e(f"v_lshl_add_u32 v{vW}, v8, 4, v10")
    a.e("v_mul_u32_u24 v10, 48, v7"); a.e("v_lshrrev_b32 v11, 3, v0"); a.e("v_add_u32 v10, v10, v11")
    a.e("v_mul_u32_u24 v10, 1280, v10")
    a.e("v_and_b32 v11, 7, v0"); a.e("v_xor_b32 v11, v11, v9")
    a.e(f"v_lshl_add_u32 v{vX0}, v11, 4, v10")
    a.e("v_xor_b32 v11, 4, v11"); a.e("v_add_u32 v10, 10240, v10")
    a.e(f"v_lshl_add_u32 v{vX1}, v11, 4, v10")
    a.e(f"s_mul_i32 s{sKVL}, s{sWv}, 2112")
    a.e(f"s_mov_b32 s{sWL}, s{sKVL}")
    a.e(f"s_mul_i32 s{sXL}, s{sWv}, 6144"); a.e(f"s_add_u32 s{sXL}, s{sXL}, {XB}")
    a.e(f"s_mov_b32 s{sCur}, 0"); a.e(f"s_mov_b32 s{sXo}, 0"); a.e(f"s_mov_b32 s{sWq}, 0")
    a.raw_wait("s_waitcnt lgkmcnt(0)")
    a.e(f"s_cmp_eq_u32 s{sBr}, 0")
    a.e("s_cselect_b64 s[4:5], s[4:5], s[14:15]")
    a.e("s_cselect_b64 s[6:7], s[6:7], s[16:17]")
    a.e("s_cselect_b64 s[8:9], s[8:9], s[18:19]")
    a.e("s_cselect_b64 s[10:11], s[10:11], s[20:21]")
    a.e("s_cselect_b64 s[12:13], s[12:13], s[22:23]")
    a.e("s_load_dwordx4 s[16:19], s[0:1], 80")
    a.e(f"s_mul_i32 s{sTmp}, s{sB}, 245760")
    srd(a, sX, 4, f"s{sTmp}", 245760)
    a.e(f"s_lshl_b32 s{sTmp}, s{sU}, 10")
    srd(a, sW, 10, f"s{sTmp}", 639 * 8192 + 1024)
    if OPT["krot"]: a.e(f"s_xor_b32 s{sJ}, s{sB}, s{sU}"); a.e(f"s_and_b32 s{sJ}, s{sJ}, 3")
    else: a.e(f"s_mov_b32 s{sJ}, 0")
    if OPT["hrot"]: a.e(f"s_cmp_lg_u32 s{sTyp}, 0"); a.e(f"s_cselect_b32 s{sJh}, 1, 3"); a.e(f"s_and_b32 s{sJh}, s{sJh}, s{sJ}")
    else: a.e(f"s_mov_b32 s{sJh}, 0")
    a.e(f"s_lshl_b32 s{sWq}, s{sJ}, 18"); a.e(f"s_lshl_b32 s{sTmp}, s{sJh}, 8"); a.e(f"s_or_b32 s{sWq}, s{sWq}, s{sTmp}"); a.e(f"s_add_u32 s{sWq1}, s{sWq}, {1 << 20}")
    a.e(f"s_lshr_b32 s{sXo}, s{sJ}, 1"); a.e(f"s_lshl_b32 s{sXo}, s{sXo}, 7")
    if not OPT['st0']: stamp(a, 0)
    stamp(a, 1, False)
    def common_consts():
        if OPT["rot"] == 2: a.e(f"s_bfe_u32 s{sRot}, s2, 0x40003"); a.e(f"s_lshl_b32 s{sRot}, s{sRot}, 13")
        elif OPT["rot"] == 3: a.e(f"s_bfe_u32 s{sRot}, s2, 0x40001"); a.e(f"s_lshl_b32 s{sRot}, s{sRot}, 13")
        elif OPT["rot"] == 4:
            a.e(f"s_mul_i32 s{sRot}, s2, 0x9e3779b1"); a.e(f"s_lshr_b32 s{sRot}, s{sRot}, 28"); a.e(f"s_lshl_b32 s{sRot}, s{sRot}, 13")
        elif OPT["rot"] == 5: a.e(f"s_bfe_u32 s{sRot}, s2, 0x20003"); a.e(f"s_lshl_b32 s{sRot}, s{sRot}, 15")
        elif OPT["rot"]:
            a.e(f"s_lshr_b32 s{sRot}, s2, 4"); a.e(f"s_xor_b32 s{sRot}, s{sRot}, s2"); a.e(f"s_and_b32 s{sRot}, s{sRot}, 15"); a.e(f"s_lshl_b32 s{sRot}, s{sRot}, 13")
        else: a.e(f"s_mov_b32 s{sRot}, 0")
        a.e(f"s_lshl_b32 s{sCur}, s{sJh}, 17"); a.e(f"s_or_b32 s{sRot}, s{sRot}, s{sCur}")
        assert not OPT["hrot"]
        a.e(f"s_mov_b32 s{sCX}, s{sRot}"); a.e(f"s_add_u32 s{sKVv}, s{sKVL}, {VB}")
        a.e("v_bfe_u32 v10, v0, 2, 3")
        a.e("v_lshrrev_b32 v11, 1, v10"); a.e("v_lshlrev_b32 v11, 6, v11"); a.e(f"v_lshl_add_u32 v{vWAl}, v10, 10, v11")
        a.e("v_and_b32 v11, 1, v10"); a.e(f"v_lshl_add_u32 v{vWAl}, v11, 3, v{vWAl}")
        a.e("v_lshrrev_b32 v11, 5, v0"); a.e(f"v_lshl_add_u32 v{vWAl}, v11, 8, v{vWAl}")
        a.e("v_mul_u32_u24 v10, 1056, v10"); a.e("v_lshl_add_u32 v10, v11, 8, v10")
        a.e("v_and_b32 v11, 3, v0"); a.e(f"v_lshl_add_u32 v{vWAl}, v11, 4, v{vWAl}")
        a.e(f"v_lshl_add_u32 v10, v11, 3, v10"); a.e(f"v_add_u32 v{vVA}, {VB}, v10")
        a.e(f"v_add_u32 v{vWAh}, {VB}, v{vWAl}")
        a.e("v_and_b32 v10, 7, v8"); a.e("v_mul_u32_u24 v10, 1056, v10")
        a.e("v_lshrrev_b32 v11, 3, v8"); a.e(f"v_lshl_add_u32 v10, v11, 8, v10")
        a.e(f"v_lshl_add_u32 v{vKA}, v9, 4, v10")
        a.e("v_lshlrev_b32 v10, 4, v0"); a.e(f"v_lshl_add_u32 v{vKV}, v7, 11, v10")
        a.e(f"v_lshlrev_b32 v10, 7, v8"); a.e(f"v_add_u32 v10, s{sXL}, v10")
        a.e("v_lshrrev_b32 v11, 1, v8"); a.e("v_xor_b32 v11, v11, v9")
        a.e(f"s_and_b32 s{sTmp}, s{sJ}, 1"); a.e(f"s_lshl_b32 s{sTmp}, s{sTmp}, 2"); a.e(f"v_xor_b32 v11, s{sTmp}, v11")
        a.e(f"v_lshl_add_u32 v{vXA0}, v11, 4, v10")
        a.e("v_xor_b32 v11, 4, v11"); a.e(f"v_lshl_add_u32 v{vXA1}, v11, 4, v10")
        a.e(f"s_lshl_b32 s{sTmp}, s{sB}, 3"); a.e(f"s_add_u32 s{sTmp}, s{sTmp}, s{sU}"); a.e(f"s_lshl_b32 s{sTmp}, s{sTmp}, 19")
        srd(a, sK, 6, f"s{sTmp}", 4 * 131072)
        srd(a, sV, 8, f"s{sTmp}", 4 * 131072)
        a.e(f"s_mul_i32 s{sTmp}, s{sU}, {512*1280}")
        srd(a, sWo, 12, f"s{sTmp}", 512 * 1280)
        for r in range(4): a.e(f"s_xor_b32 s{sH[r]}, s{sJh}, {r}"); a.e(f"s_mul_i32 s{sH[r]}, s{sH[r]}, 163840")
        a.e(f"s_mov_b32 s{sKn}, 0"); a.e(f"s_mov_b32 s{sMin}, {3*8192}")
        a.e(f"s_cmp_lt_u32 s{sU}, 4")
        a.e(f"s_cselect_b32 s{sTmp}, 128, 0"); a.e(f"s_mov_b32 s{sD0}, 128"); a.e(f"s_cselect_b32 s{sD0}, -128, s{sD0}")
        a.e(f"s_sub_u32 s{sD1}, 256, s{sD0}")
        for r in range(4): a.e(f"s_add_u32 s{sH[r]}, s{sH[r]}, s{sTmp}")
        a.e(f"s_lshl_b32 s{sTmp}, s{sG}, 12"); a.e(f"s_add_u32 s{sTmp}, s{sTmp}, {FLG}")
        srd(a, sF, 28, f"s{sTmp}", 4096)
    def touch0(three):
        if OPT["t0x"]:
            a.e("v_min_u32 v10, 59, v0"); a.e("v_lshlrev_b32 v10, 7, v10")
            a.e(f"s_lshl_b32 s{sTmp}, s{sU}, 2"); a.e(f"s_add_u32 s{sTmp}, s{sTmp}, s{sWv}"); a.e(f"s_mul_i32 s{sTmp}, s{sTmp}, 7680")
            a._emit(f"buffer_load_dword v11, v10, {sr(sX,4)}, s{sTmp} offen")
        if OPT["t0w"] and three:
            a.e("v_lshrrev_b32 v14, 2, v0"); a.e("v_lshlrev_b32 v14, 13, v14"); a.e("v_and_b32 v15, 3, v0"); a.e("v_lshl_add_u32 v14, v15, 7, v14")
            a.e(f"s_and_b32 s{sTmp}, s{sB}, 3"); a.e(f"s_lshl_b32 s{sTmp}, s{sTmp}, 2"); a.e(f"s_add_u32 s{sTmp}, s{sTmp}, s{sWv}"); a.e(f"s_lshl_b32 s{sTmp}, s{sTmp}, 17")
            for k in range(3):
                a.e(f"s_add_u32 s{sT2}, s{sTmp}, {k*256*8192}")
                a._emit(f"buffer_load_dword v{16+k}, v14, {sr(sW,4)}, s{sT2} offen")
    def part_srd(slot_expr, size):
        a.e(f"s_mul_i32 s{sTmp}, s{sG}, {PART}"); slot_expr(); a.e(f"s_lshl_b32 s{sT2}, s{sT2}, 10"); a.e(f"s_add_u32 s{sTmp}, s{sTmp}, s{sT2}")
        srd(a, sP, 28, f"s{sTmp}", size)
    NF = OPT["first"]
    LA = OPT['la']
    def wpos(n): return 8 + n % 8
    def rd_x(buf): return [rd_xb(Xreg(buf, j, s), j, s) for s in range(2) for j in range(3)]
    NF = 2
    def setup(lab):
        if not OPT["pro2"]: common_consts()
        code_touch(a, lab, "L_altwo" if not OPT["ct2"] else (("L_p0end" if OPT["pro2"] else "L_p1") if lab == "L_q" else "L_enter"), 10, 11)
        a.e(f"s_mov_b32 s{sR}, 0")
        if not OPT["ramp"]: late_setup()
    def late_setup():
        a.e(f"s_lshl_b32 s{sTmp}, s{sU}, 9"); a.e(f"s_lshl_b32 s{sT2}, s{sWv}, 7"); a.e(f"s_add_u32 s{sTmp}, s{sTmp}, s{sT2}")
        a.e("v_and_b32 v8, 7, v0"); a.e(f"v_lshlrev_b32 v8, 2, v8"); a.e("v_mov_b32 v7, 0")
        a._emit(f"buffer_store_dword v7, v8, {sr(sF,4)}, s{sTmp} offen sc1")
        emit_tile(a, kv_tile(0, 0))
    def bootstrap():
        l = newlabel("boot")
        a.e(f"s_cmp_lg_u32 s{sWv}, 0"); a.e(f"s_cbranch_scc1 {l}")
        a.e(f"s_lshl_b32 s{sTmp}, s{sG}, 2"); a.e(f"s_add_u32 s{sTmp}, s{sTmp}, 128")
        a.e(f"v_mov_b32 v157, s{sTmp}")
        a.e(f"s_getreg_b32 s{sT2}, hwreg(HW_REG_XCC_ID, 0, 4)")
        a.e(f"s_mul_i32 s{sT3}, s{sT2}, s{sT2}"); a.e(f"s_lshl_b32 s{sT3}, s{sT3}, 8"); a.e(f"s_add_u32 s{sT3}, s{sT3}, s{sT2}")
        a.e(f"s_lshl_b32 s{sT3}, s{sT3}, 8"); a.e(f"s_add_u32 s{sPK}, s{sT3}, 1"); a.e(f"v_mov_b32 v158, s{sPK}")
        a.e("s_mov_b64 exec, 1")
        a._emit("global_atomic_add v157, v158, s[18:19]")
        a.e("s_mov_b64 exec, -1")
        a.e(f"{l}:")
    if OPT["stag"]:
        a.e(f"s_and_b32 s{sT2}, s{sB}, 3") if OPT["stag"] < 100 else a.e(f"s_and_b32 s{sT2}, s{sU}, 3")
        a.e("L_stag:"); a.e(f"s_cmp_eq_u32 s{sT2}, 0"); a.e("s_cbranch_scc1 L_stag2"); a.e(f"s_sleep {OPT['stag'] % 100}"); a.e(f"s_sub_u32 s{sT2}, s{sT2}, 1"); a.e("s_branch L_stag"); a.e("L_stag2:")
    if OPT["pro2"]:
        a.e(f"s_cmp_lg_u32 s{sTyp}, 0")
        a.e(f"s_cselect_b32 s{sT2}, {XB - VB}, 0"); a.e(f"s_cselect_b32 s{sT3}, 0, 512")
        a.e(f"s_sub_u32 s{sT2}, s{sXL}, s{sT2}"); a.e(f"s_xor_b32 s{sT3}, s{sWq}, s{sT3}")
        def sub(st, x, y): return [([p_.replace(x, y) for p_ in pre], d) for pre, d in st]
        emit_tile(a, sub(w_tile(wpos(0), 0, 2), f"s{sWq},", f"s{sT3},"))
        for j in range(3): emit_tile(a, sub(x_block(j, 0, sXo), f"s{sXL},", f"s{sT2},"))
        emit_tile(a, sub(w_tile(wpos(1), 1, 2), f"s{sWq},", f"s{sT3},"))
        common_consts()
        a.e(f"s_cmp_eq_u32 s{sTyp}, 0")
        a.e("s_cbranch_scc1 L_p0")
        a.e("L_split:")
        a.e("L_p0:")
    else:
        a.e(f"s_cmp_lg_u32 s{sTyp}, 0")
        a.e("s_cbranch_scc1 L_p1")
        for j in range(3): emit_tile(a, x_block(j, 0, sXo))
        for n in range(NF): emit_tile(a, w_tile(wpos(n), n))
    setup("L_q")
    if OPT["help"]:
        if T == 3:
            a.e(f"s_sub_u32 s{sP}, s{sX}, {4*245760}"); a.e(f"s_subb_u32 s{sP+1}, s{sX+1}, 0")
        else:
            a.e(f"s_add_u32 s{sP}, s{sX}, {4*245760}"); a.e(f"s_addc_u32 s{sP+1}, s{sX+1}, 0")
        a.e(f"s_mov_b32 s{sP+2}, 245760"); a.e(f"s_mov_b32 s{sP+3}, 0x20000")
        a.e("v_min_u32 v8, 59, v0"); a.e("v_lshlrev_b32 v8, 7, v8")
        a.e(f"s_lshl_b32 s{sTmp}, s{sU}, 2"); a.e(f"s_add_u32 s{sTmp}, s{sTmp}, s{sWv}"); a.e(f"s_mul_i32 s{sTmp}, s{sTmp}, 7680")
        a._emit(f"buffer_load_dword v9, v8, {sr(sP,4)}, s{sTmp} offen")
        if OPT["help"] & 2:
            a.e("v_lshrrev_b32 v8, 2, v0"); a.e("v_lshlrev_b32 v8, 13, v8"); a.e("v_and_b32 v10, 3, v0"); a.e("v_lshl_add_u32 v8, v10, 7, v8")
            a.e(f"s_lshr_b32 s{sTmp}, s{sB}, 3"); a.e(f"s_lshl_b32 s{sTmp}, s{sTmp}, 2"); a.e(f"s_and_b32 s{sT2}, s{sB}, 3"); a.e(f"s_add_u32 s{sTmp}, s{sTmp}, s{sT2}")
            a.e(f"s_lshl_b32 s{sTmp}, s{sTmp}, 2"); a.e(f"s_add_u32 s{sTmp}, s{sTmp}, s{sWv}"); a.e(f"s_mul_i32 s{sTmp}, s{sTmp}, {20*8192}")
            a._emit(f"buffer_load_dword v9, v8, {sr(sW,4)}, s{sTmp} offen")
            a.e(f"s_add_u32 s{sTmp}, s{sTmp}, {4*8192}")
            a._emit(f"buffer_load_dword v9, v8, {sr(sW,4)}, s{sTmp} offen")
    a.e(f"s_mov_b32 s{sPre}, 15")
    for r in range(256):
        if r % 40 == 0 and NF + r // 40 < LA: emit_tile(a, w_tile(wpos(NF + r // 40), NF + r // 40))
        a.e(f"v_accvgpr_write_b32 a{r}, 0")
    for r in list(range(124, 156)) + list(range(160, 256)): a.e(f"v_mov_b32 v{r}, 0")
    if OPT["woq"]:
        a.e(f"s_lshr_b32 s{sTmp}, s{sB}, 3"); a.e(f"s_lshl_b32 s{sTmp}, s{sTmp}, 2"); a.e(f"s_and_b32 s{sT2}, s{sB}, 3"); a.e(f"s_add_u32 s{sTmp}, s{sTmp}, s{sT2}")
        a.e(f"s_lshl_b32 s{sTmp}, s{sTmp}, 2"); a.e(f"s_add_u32 s{sTmp}, s{sTmp}, s{sWv}"); a.e(f"s_mul_i32 s{sTmp}, s{sTmp}, 5120")
        a.e("v_min_u32 v7, 39, v0"); a.e(f"v_lshl_add_u32 v7, v7, 7, s{sTmp}")
    a.raw_wait(f"s_waitcnt vmcnt({2 * (LA - 2)}) lgkmcnt(0)")
    a.e("s_barrier")
    for r in rd_x(0): a.e(r)
    for i in range(8):
        for r in rd_w(Wreg(0, i), wpos(0), i): a.e(r)
    a.raw_wait("s_waitcnt lgkmcnt(0)"); a.lg = []
    if OPT["qprof"] == 1: stamp(a, 5); stamp(a, 6, False)
    def lperm(n, last):
        return 8 + 4 * ((n - 8) & 1) + ((n - 8) >> 1) if last and OPT["cvo"] and 8 <= n < 16 else n
    def qmf(n, last=False):
        s, pos = divmod(lperm(n, last) % 16, 4)
        return [mf(Qacc(pos, i, j), Wreg(n & 1, i), Xreg((s >> 1) & 1, j, s & 1), Qacc(pos, i, j)) for i in range(8) for j in zj(i)]
    cvq = conv_ops(Qacc, 0, QBANK[3], [76, 84, 92])
    def early(S, half, h0, gaps):
        pre = [x.replace(f"s{sOff},", f"s{sOff2},") for x in unit_pre(sKn, 0)[4*half:4*half+4]]
        if half == 0: pre = [f"s_cmp_ge_u32 s{sKn}, s{sMin}", "s_cselect_b64 vcc, -1, 0", f"s_cselect_b32 s{sC1}, 0, 8192"] + pre
        else: pre = pre + [f"s_add_u32 s{sKn}, s{sKn}, s{sC1}"]
        for x, h_ in zip(pre, h0): S.h(h_, x)
        place_guarded(a, S, unit_dma(sOff2, sOff2)[2*half:2*half+2], gaps)
    def q_group(last):
        for n in range(16):
            a.c(f"Q sub-step {n}{' (last group)' if last else ''}")
            S = Sched(a, qmf(n, last))
            fin = last and n == 15
            q = n % 8
            xrd = q in (6, 7) and not (last and n >= 8)
            if not fin:
                rds = []
                for i in range(8): rds += rd_w(Wreg((n + 1) & 1, i), wpos(n + 1), i)
                for r, p in zip(rds, RDPOS): S.v(p, r)
                m = n + LA
                if not last or m < 16: place_tile(a, S, w_tile(wpos(m), lperm(m, last)), (6, 11))
                KVN = {8: 7, 9: 8, 10: 9, 11: 10, 12: 11, 13: 12} if not OPT["kvconv"] else {4: 7, 11: 8} if OPT["kvconv"] == 1 else {4: 7}
                if last and n in KVN: place_tile(a, S, kv_tile(KVN[n], KVN[n] >> 1), (16, 19))
                if not (last and n == 14):
                    hi = min(m, 15) if last else m
                    ykv = len([k for k in KVN if n + 2 - LA <= k <= n]) if last else 0
                    end_sync(a, S, 2 * (hi - (n + 2)) + 2 * ykv, 5 if xrd else 2)
            if xrd:
                rx = rd_x(((n >> 3) + 1) & 1)[3*(q-6):3*(q-6)+3]
                if q == 6: S.h(16, lambda: vmw(a, 8))
                for r, p in zip(rx, (19, 20, 21)): S.v(p, (r, "xr"))
            if q in (0, 1, 2) and not (last and n >= 8):
                if q == 0: S.h(12, lambda: a.wait(lg="xr"))
                place_tile(a, S, x_block(q, 128, sXo, "s_xor_b32") if n < 8 else x_block(q, 256, sXo), (16, 19))
            if n in (11, 12) and not last: early(S, n - 11, (0, 1, 2, 3, 7, 8, 12), (16, 19))
            if n == 4 and not last and OPT["woq"]:
                S.h(13, f"s_lshr_b32 s{sOff2}, s{sXo}, 8"); S.h(14, f"s_mul_i32 s{sOff2}, s{sOff2}, 163840")
                S.v(16, lambda: a._emit(f"buffer_load_dword v9, v7, {sr(sWo,4)}, s{sOff2} offen"))
            if n == 15 and not last:
                S.h(12, f"s_mov_b32 s{sWq}, s{sWq1}")
                S.h(13, f"s_add_u32 s{sWq1}, s{sWq1}, {1 << 20}")
                S.h(14, f"s_add_u32 s{sXo}, s{sXo}, 256")
                S.h(15, f"s_cmp_lt_u32 s{sXo}, 1024")
            if last and n == 3: S.h(1, SCALE)
            if last and n >= 10 and OPT["cvo"]: cvq[:] = fill_ops(S, cvq, 4 if n == 10 else 0)
            S.emit(None if fin else qmf(n + 1, last)[0])
    a.e(".p2align 6")
    a.e("L_q:")
    if OPT["qprof"] == 3:
        a.e(f"s_lshr_b32 s{sT3}, s{sXo}, 8"); stamp_dyn(a, 4, sT3, 4)
    mark = len(a.ins); nops0 = a.nops
    q_group(False)
    lg_end = list(a.lg)
    del a.ins[mark:]; a.nops = nops0
    q_group(False)
    assert a.lg == lg_end
    a.e("s_cbranch_scc1 L_q")
    if OPT["ct2"]: code_touch(a, "L_enter", "L_q2b" if T else "L_altwo", 10, 11, back=bool(OPT["pro2"]))
    if OPT["ramp"]: late_setup()
    if OPT["qprof"] == 3: stamp(a, 8)
    q_group(True)
    if OPT["qprof"] == 1: stamp(a, 7); stamp(a, 8, False)
    stamp(a, 3)
    a.c("Q conversion")
    tmp = [60 + 8 * k for k in range(8)]
    rest = cvq + conv_ops(Qacc, 1, QBANK[2], tmp) + conv_ops(Qacc, 2, QBANK[1], tmp) + conv_ops(Qacc, 3, None, tmp)
    steps = [s_ for m in range(10 - OPT["kvconv"], 13) for s_ in kv_tile(m, m >> 1)] if OPT["kvconv"] else []
    at = {int((k + 0.3) * len(rest) / len(steps)): s_ for k, s_ in enumerate(steps)}
    for k, x in enumerate(rest):
        if k in at:
            for y in at[k][0]: a.e(y)
        a.e(x)
        if k in at: a._emit(at[k][1])
    late_consts(a)
    bootstrap()
    a.e("s_branch L_enter")
    a.e("L_p1:")
    a.lg = []
    if not OPT["pro2"]:
        for j in range(3): emit_tile(a, x_block(j, 0, sXo, lds=VB-XB))
        for n in range(NF): emit_tile(a, w_tile(wpos(n), n, 2))
    a.e(f"s_xor_b32 s{sXo1}, s{sXo}, 128")
    for j in range(3): emit_tile(a, x_block(j, 0, sXo1))
    setup("L_q2")
    late_consts(a)
    a.e(f"s_mov_b32 s{sPre}, 1")
    assert OPT["cvo"] or not OPT["lateq"]
    if OPT["lateq"]: a.e(f"s_mov_b32 s{sMin}, 0")
    L0 = 5 if OPT["ramp"] else LA
    assert not OPT["ramp"] or (OPT["latekv"] and LA == 7 and OPT["ct2"])
    for n in range(NF, L0): emit_tile(a, w_tile(wpos(n), n, 2))
    a.e(f"v_subrev_u32 v12, {XB-VB}, v{vXA0}"); a.e(f"v_subrev_u32 v13, {XB-VB}, v{vXA1}")
    a.raw_wait(f"s_waitcnt vmcnt({2 * (L0 - 2)}) lgkmcnt(0)")
    for j in range(3):
        for s in range(2): a.e(f"ds_read_b128 {R(X2reg(0, j, s),4)}, v{12+s} offset:{j*2048}")
    a.e("L_q2go:")
    a.e("s_barrier")
    for i in range(8):
        for r in rd_w(Greg(0, i), wpos(0), i): a.e(r)
    a.raw_wait("s_waitcnt lgkmcnt(0)"); a.lg = []
    def q2_group(kind):
        first, last = kind == 0, kind == 2
        for n in range(8):
            a.c(f"Q2 sub-step {n} ({('first', 'loop', 'last')[kind]})")
            S = Sched(a, q2mf(n, first))
            cl, q = divmod(n, 4)
            fin = last and n == 7
            xrd = q < 3 and not (last and cl == 1)
            def xd(k): return k % 4 < 3 and not (last and k >= 0) and not (first and k < 0)
            def wd(k): return not (last and k + LA >= 8)
            def kd(k): return last and 0 <= k <= 5
            if not fin:
                rds = []
                for i in range(8): rds += rd_w(Greg((n + 1) & 1, i), wpos(n + 1), i)
                for r, p in zip(rds, RDPOS_X): S.v(p, r)
            rampd = first and OPT["ramp"]
            if rampd:
                m0_ = n + 5 + (n > 3)
                place_tile(a, S, w_tile(wpos(m0_), m0_, 2), (4, 7))
                if q == 3: place_tile(a, S, w_tile(wpos(m0_ + 1), m0_ + 1, 2), (10, 13))
            elif wd(n): place_tile(a, S, w_tile(wpos(n + LA), n + LA, 2), (4, 7))
            if kd(n): place_tile(a, S, kv_tile(7 + n, (7 + n) >> 1), (10, 13))
            if xrd:
                for s in range(2): S.v(s, (rd_xb(X2reg(1 - cl, q, s), q, s), "xr"))
            if xd(n):
                S.h(7, lambda: a.wait(lg="xr"))
                place_tile(a, S, x_block(q, 256, (sXo, sXo1)[cl]), (10, 13))
            if q == 3 and not last and not (first and OPT['latekv']): early(S, cl, (0, 0, 1, 1, 4, 7, 8) if cl == 0 else (0, 0, 1, 1, 4), (10, 13))
            if n == 7 and not last:
                S.h(16, f"s_mov_b32 s{sWq}, s{sWq1}")
                S.h(17, f"s_add_u32 s{sWq1}, s{sWq1}, {1 << 20}")
                S.h(18, f"s_add_u32 s{sXo1}, s{sXo1}, 256")
                S.h(19, f"s_add_u32 s{sXo}, s{sXo}, 256")
                S.h(20, f"s_cmp_lt_u32 s{sXo}, 1024")
            if not (last and n >= 6):
                k0 = n + 2 - LA
                vm = sum(2 * wd(k) for k in range(k0 + 1, n + 1)) + sum(2 * kd(k) for k in range(k0, n + 1))
                if (n + 1) % 4 < 3 and not (last and n + 1 >= 4) and xd(n - 3):
                    vm = min(vm, sum(2 * wd(k) + 2 * xd(k) + 2 * kd(k) for k in range(n - 2, n + 1)))
                if rampd and n == 0: vm = min(vm, 8)
                if n == 7 and OPT['cvo']: vm = min(vm, 8)
                end_sync(a, S, vm, 5)
            S.emit(None if fin else q2mf(n + 1, first and n < 7)[0])
    a.e("L_q2:")
    q2_group(0)
    lg_in = list(a.lg)
    a.e(".p2align 6")
    a.e("L_q2l:")
    q2_group(1)
    assert a.lg == lg_in
    a.e("s_cbranch_scc1 L_q2l")
    if OPT["ct2"]:
        l = newlabel("ct")
        a.e(f"s_cmp_lg_u32 s{sR}, 0"); a.e(f"s_cbranch_scc1 {l}")
        code_touch(a, "L_enter", "L_q2b" if T else "L_altwo", 10, 11)
        if OPT["ramp"]: late_setup()
        a.e(f"{l}:")
    cv2 = conv_ops(Q2acc, 0, "keep", [0])
    if not OPT["cvo"]:
        q2_group(2); a.e(SCALE)
    else:
        order = [0, 2, 4, 6, 1, 3, 5, 7]
        def mfs(n):
            s, pos = divmod(order[n], 2)
            return [mf(Q2acc(pos, i, j), Greg(n & 1, i), X2reg(s >> 1, j, s & 1), Q2acc(pos, i, j)) for i in range(8) for j in zj(i)]
        kvat = {0: [7], 1: [8], 5: [9, 10], 6: [11, 12]}
        for n in range(8):
            a.c(f"Q2 sub-step {n} (last)")
            S = Sched(a, mfs(n))
            if n < 7:
                rds = []
                for i in range(8): rds += rd_w(Greg((n + 1) & 1, i), wpos(order[n + 1]), i)
                for r, p in zip(rds, RDPOS_X): S.v(p, r)
            if n == 0:
                place_tile(a, S, w_tile(wpos(7), 7, 2), (4, 7)); S.h(14, SCALE)
                for s in range(2): S.v(s, rd_xb(X2reg(1, 0, s), 0, s))
            if n == 1:
                for k, p in enumerate((0, 1, 4, 7)): S.v(p, rd_xb(X2reg(1, 1 + (k >> 1), k & 1), 1 + (k >> 1), k & 1))
            for m, gp in zip(kvat.get(n, []), ((10, 13),) if n < 2 else ((4, 7), (10, 13))):
                un, half = divmod(m - 7, 2)
                pre = [x.replace(f"s{sOff},", f"s{sOff2},") for x in unit_pre(sKn, un * 8192)[4*half:4*half+4]]
                if gp[0] == 4: pre = [x.replace(f"s{sOff2},", f"s{sOff},") for x in pre]
                for x, h_ in zip(pre, (0, 0, 1, 2) if gp[0] == 4 else (0, 1, 4, 8) if n < 2 else (4, 5, 7, 8)): S.h(h_, x)
                so = sOff if gp[0] == 4 else sOff2
                place_tile(a, S, unit_dma(so, so)[2*half:2*half+2], gp)
            if n < 6: end_sync(a, S, {0: 6, 1: 6, 5: 8}.get(n, 20), 5)
            if n >= 4: cv2 = fill_ops(S, cv2, 4 if n == 4 else 0)
            S.emit(mfs(n + 1)[0] if n < 7 else None)
    if OPT["stamp"] and not OPT["qprof"]:
        a.e(f"s_lshr_b32 s{sT2}, s{sR}, 1"); stamp_dyn(a, 3, sT2, 2)
    a.c("Q2 conversion")
    for x in cv2: a.e(x)
    def bank_write(db, src):
        return [f"v_accvgpr_write_b32 a{db + 12*p + 4*j + x}, v{src(p, j)+x}" for p in range(4) for j in range(3) for x in range(4)]
    a.e(f"s_cmp_lg_u32 s{sR}, 0"); a.e("s_cbranch_scc1 L_cv2b")
    if OPT["touch"]:
        a.e("v_min_u32 v8, 39, v0"); a.e("v_lshrrev_b32 v9, 2, v8"); a.e("v_lshlrev_b32 v9, 13, v9")
        a.e("v_and_b32 v8, 3, v8"); a.e("v_lshl_add_u32 v9, v8, 7, v9")
        a.e(f"s_lshl_b32 s{sTmp}, s{sB}, 2"); a.e(f"s_add_u32 s{sTmp}, s{sTmp}, s{sWv}"); a.e(f"s_mul_i32 s{sTmp}, s{sTmp}, {10*8192}")
        a.e(f"s_add_u32 s{sTmp}, s{sTmp}, 512")
        a._emit(f"buffer_load_dword v{vD}, v9, {sr(sW,4)}, s{sTmp} offen")
    a.e(f"s_and_b32 s{sWq}, s{sWq}, 0xfffff"); a.e(f"s_xor_b32 s{sWq}, s{sWq}, 512"); a.e(f"s_add_u32 s{sWq1}, s{sWq}, {1 << 20}")
    a.e(f"s_and_b32 s{sXo}, s{sXo}, 128"); a.e(f"s_xor_b32 s{sXo1}, s{sXo}, 128")
    for x in bank_write(QBANK[1], lambda p, j: Q2acc(0, 2*p, j)): a.e(x)
    a.e("s_branch L_cv2c")
    a.e("L_cv2b:")
    if OPT["emu3"]:
        a.e(f"s_cmp_eq_u32 s{sPre}, 1"); a.e("s_cbranch_scc0 L_cv2d")
        a.e(f"s_mov_b32 s{sPre}, 14")
        a.e(f"s_and_b32 s{sWq}, s{sWq}, 0xfffff"); a.e(f"s_add_u32 s{sWq1}, s{sWq}, {1 << 20}")
        a.e(f"s_and_b32 s{sXo}, s{sXo}, 128"); a.e(f"s_xor_b32 s{sXo1}, s{sXo}, 128")
        a.raw_wait("s_waitcnt vmcnt(0)"); a.e("s_barrier")
        for n in range(LA): emit_tile(a, w_tile(wpos(n), n, 2))
        a.raw_wait("s_waitcnt vmcnt(0)")
        a.e("s_branch L_q2go")
        a.e("L_cv2d:")
    a.e("s_nop 7")
    for x in bank_write(QBANK[3], lambda p, j: Q2acc(0, 2*p, j)): a.e(x)
    bootstrap()
    a.e("L_cv2c:")
    for x in conv_ops(Q2acc, 1, None, [0]): a.e(x)
    a.e("L_enter:")
    a.e(f"v_mov_b32 v{vT}, 0x3f803f80")
    if OPT["sparse1"]:
        a.e(f"v_and_b32 v{vT+1}, 3, v0"); a.e(f"v_cmp_eq_u32 vcc, 0, v{vT+1}"); a.e(f"v_cndmask_b32 v{vT}, 0, v{vT}, vcc")
    for r in range(4): a.e(f"v_accvgpr_write_b32 a{ONES[1]+r}, v{vT}")
    def rd_k(dst, t, u): return [f"ds_read_b128 {vr(dst + 4*ks,4)}, v{vKA} offset:{(t % 8)*TILE + u*512 + ks*64}" for ks in range(4)]
    def rd_v(t, half, fr=VF):
        return [f"ds_read_b64_tr_b16 {vr(fr + 4*i + 2*e, 2)}, v{vVA} offset:{(t % 8)*TILE + e*512 + (4*half+i)*32}" for i in range(4) for e in range(2)]
    a.e(f"s_sub_u32 s{sBL}, s{sKn}, {3*8192}"); a.e(f"s_sub_u32 s{sMin}, s{sCur}, {OPT['lmax']*8192}")
    assert OPT["cvo"] or not T
    THR = OPT['thr'] + 1 if OPT['dyn'] else 99
    a.e(f"s_cmp_eq_u32 s{sTyp}, 0"); a.e(f"s_cselect_b32 s{sThr}, {0 if OPT['sh1'] else THR}, {THR}")
    vmw(a, 12)
    a.e("s_barrier")
    a.lg = []
    for r in rd_k(KF, 0, 0) + rd_k(VF, 0, 1): a.e(r)
    for x in unit_pre(sBL, 6 * 8192): a.e(x)
    a.wait(lg="all")
    def ex(u, k): j, r = divmod(k, 4); s = Sr(u, j) + r; return f"v_exp_f32 v{s}, v{s}"
    def cv(u, buf, c): j, h = divmod(c, 2); s = Sr(u, j) + 2*h; return f"v_cvt_pk_bf16_f32 v{Pr(buf,j) + 2*u + h}, v{s}, v{s+1}"
    def qk(u): return [mf(Sr(u, j), KF + 4*ks, Qf(j, ks), Nm(j) if ks == zk(j)[0] else Sr(u, j)) for j in range(3) for ks in zk(j)]
    def pv(t, half, fr=VF): return [mf(Or(4*half + i, j), fr + 4*i, Pr(t & 1, j), None if t == 0 else Or(4*half + i, j)) for i in range(4) for j in zj(i)]
    def sm(t): return [mf(La(j), ONES, Pr(t & 1, j), None if t == 0 else La(j)) for j in zj(1)]
    VMW = min(4 * (5 - OPT["lmax"]), OPT["vmw"])
    decide = [f"s_getreg_b32 s{sC1}, hwreg(HW_REG_IB_STS, 0, 4)", f"s_cmp_ge_u32 s{sC1}, s{sThr}", f"s_cselect_b32 s{sC1}, s{sBL}, s{sMin}",
              f"s_cmp_gt_i32 s{sC1}, s{sMin}", "s_cselect_b64 vcc, -1, 0", f"s_cselect_b32 s{sC1}, 8192, 0", f"s_sub_u32 s{sBL}, s{sBL}, s{sC1}"]
    def dec(t):
        d = list(decide)
        if t < OPT["fskip"] - 1: d[1] = f"s_cmp_ge_u32 s{sC1}, 0"
        return d
    catch = []
    def wo_at(S, m, gaps):
        st, post = wo_tile(m)
        place_tile(a, S, st, gaps)
        for x in post: S.h(gaps[1], x)
    def tail_vec(S, u, buf, rds):
        pos = [0, 1, 4, 5, 8, 9, 10, 11]
        for r, p in zip(rds, pos): S.v(p, r)
        for k, p in zip(range(8, 12), (2, 3, 6, 7)): S.v(p, ex(u, k))
        for c, p in zip(range(6), (0, 1, 4, 5, 8, 9)): S.v(p, cv(u, buf, c))
    a.e("L_head:")
    a.c("tile 0: scores of the first 16 keys give the stand-in row max")
    def qk0(extra):
        S = Sched(a, [mf(Sr(0, j), KF + 4*ks, Qf(j, ks), None if ks == 0 else Sr(0, j)) for j in range(3) for ks in range(4)])
        S.h(2, lambda: vmw(a, VMW))
        for k, x in enumerate(dec(-1)): S.h(3 + k, x)
        for k, x in enumerate(extra[:24]): S.v(k // 2, x)
        S.emit(None)
        for x in extra[24:]: a.e(x)
        if not extra: a.e("s_nop 7")
    qk0([])
    a.e(".p2align 6")
    a.e("L_head2:")
    for j in range(3): a.e(f"v_max3_f32 v{Nm(j)}, v{Sr(0,j)}, v{Sr(0,j)+1}, v{Sr(0,j)+2}")
    for j in range(3): a.e(f"v_max_f32 v{Nm(j)}, v{Nm(j)}, v{Sr(0,j)+3}")
    rowred(a, "v_max_f32", [Nm(j) for j in range(3)], [Nm(j) + 1 for j in range(3)])
    for j in range(3):
        for r in (3, 2, 1, 0): a.e(f"v_sub_f32 v{Nm(j)+r}, 0, v{Nm(j)}")
    a.e("s_barrier")
    S = Sched(a, [mf(Sr(1, j), VF + 4*ks, Qf(j, ks), Nm(j) if ks == 0 else Sr(1, j)) for j in range(3) for ks in range(4)])
    for r, p in zip(rd_k(KF, 1, 0), (0, 3, 6, 9)): S.v(p, r)
    place_guarded(a, S, unit_dma(), (2, 5, 8, 11))
    subs = [f"v_add_f32 v{Sr(0,j)+r}, v{Sr(0,j)+r}, v{Nm(j)}" for j in range(3) for r in range(4)]
    for x, p in zip(subs, (0, 1, 1, 3, 4, 4, 6, 7, 7, 9, 10, 10)): S.v(p, x)
    S.emit(None)
    for k in range(12): a.e(ex(0, k))
    for k in range(8): a.e(ex(1, k))
    for c in range(6): a.e(cv(0, 0, c))
    a.wait(lg="all")
    def stage(t, mode):
        a.c(f"stage {t} {mode}")
        kv = mode == "kv"
        S = Sched(a, qk(0)); tail_vec(S, 1, t & 1, rd_v(t, 0))
        if kv and OPT["dyn"] and OPT["thr2"] >= 0 and t >= OPT["cufrom"] and (t - OPT["cufrom"]) % OPT["custep"] == 0:
            l0, l1 = newlabel("cu"), newlabel("cub")
            cm = [f"s_add_u32 s{sC1}, s{sC1}, {THR - OPT['thr2']}", f"s_cmp_le_u32 s{sC1}, s{sThr}"] if OPT["gate"] else ["s_nop 0", f"s_cmp_le_u32 s{sC1}, {OPT['thr2']}"]
            for k, x in enumerate([f"s_getreg_b32 s{sC1}, hwreg(HW_REG_IB_STS, 0, 4)"] + cm +
                                  [f"s_cselect_b32 s{sC1}, s{sBL}, s{sCur}", f"s_cmp_lt_i32 s{sC1}, s{sCur}"]): S.h(5 + k, x)
            def site(l0=l0, l1=l1): a.e(f"s_cbranch_scc1 {l0}"); a.e(f"{l1}:")
            S.h(10, site)
            catch.append((l0, l1, t))
        S.emit(pv(t, 0)[0])
        S = Sched(a, pv(t, 0))
        for r, p in zip(rd_k(KF, t+1, 1), (0, 1, 2, 3)): S.v(p, r)
        for k, p in zip(range(8), range(4, 12)): S.v(p, ex(0, k))
        S.h(10, lambda: a.wait(lg="all"))
        if kv:
            for x, p in zip(unit_pre(sBL, (t + 7) * 8192)[:6], (0, 1, 3, 4, 6, 7)): S.h(p, x)
        if mode == "wq" and t == 13: place_tile(a, S, x_block(1, 0, sXo) + x_block(2, 0, sXo), (2, 4, 7, 9))
        S.emit(qk(1)[0])
        S = Sched(a, qk(1)); tail_vec(S, 0, (t+1) & 1, rd_v(t, 1))
        if kv:
            if t == OPT["sh1t"]: S.h(2, f"s_mov_b32 s{sThr}, {THR}")
            if t == 9 and OPT["sh2"] and T:
                S.h(2, f"s_cmp_eq_u32 s{sR}, s{sPre}"); S.h(3, f"s_cselect_b32 s{sThr}, 0, s{sThr}")
            for x, p in zip(unit_pre(sBL, (t + 7) * 8192)[6:], (0, 1)): S.h(p, x)
            S.h(4, lambda: vmw(a, VMW))
            for k, x in enumerate(dec(t)): S.h(5 + k, x)
        else:
            S.h(11, lambda: vmw(a, {"wo": 8, "wq": 8 if t < 14 else 4}[mode]))
        S.emit(None)
        S = Sched(a, sm(t) + pv(t, 1))
        S.h(0, "s_barrier")
        if t + 2 < 16:
            for r, p in zip(rd_k(KF, t+2, 0), (0, 1, 2, 3)): S.v(p, (r, "kr"))
        else:
            for r, p in zip(rd_v(15, 0, KF), (0, 1, 2, 3, 4, 6, 7, 9)): S.v(p, (r, "kr"))
            S.v(10, cv(1, 1, 0)); S.v(12, cv(1, 1, 1))
            if mode == "wq":
                for k, p in enumerate((0, 1, 2, 5, 8, 10)): S.v(p, (rd_xb(X2reg(0, k >> 1, k & 1), k >> 1, k & 1), "kr"))
        for k, p in zip(range(8), (3, 4, 6, 7, 9, 10, 12, 13)): S.v(p, ex(1, k))
        def vwait(keep):
            def f():
                idx = [n for n, (tg, d) in enumerate(a.lg) if tg != "kr"]
                if len(idx) > keep: a._wait(lg_idx=idx[len(idx) - 1 - keep])
            return f
        S.h(1, vwait(4)); S.h(6, vwait(0))
        if kv: place_guarded(a, S, unit_dma(), (5, 8, 11, 14))
        elif mode == "wo":
            wo_at(S, 2*(t-12), (5, 8)); wo_at(S, 2*(t-12) + 1, (11, 14))
        else:
            if t == 12: place_tile(a, S, x_block(0, 0, sXo), (5, 8))
            else: place_tile(a, S, w_tile(2*t - 17, 2*t - 25, 2), (5, 8))
            place_tile(a, S, w_tile(2*t - 16, 2*t - 24, 2), (11, 14))
        S.h(12 if t < 14 else 14, lambda: a.wait(lg="all"))
        S.emit(qk(0)[0] if t < 14 else None)
        assert not a.lg
    NPRE = 20
    def epi_ops(toq):
        o_ = [f"v_mul_f32 v{Or(u,j)+r}, v{Or(u,j)+r}, v{vT+j}" for u in range(2) for j in range(3) for r in range(4)]
        for p in range(4):
            for j in range(3):
                d = Qf(j, p) if toq else Or(2*p, j)
                if p: o_ += [f"v_mul_f32 v{Or(2*p+u,j)+r}, v{Or(2*p+u,j)+r}, v{vT+j}" for u in range(2) for r in range(4)]
                o_ += [f"v_cvt_pk_bf16_f32 v{d+2*u+h}, v{Or(2*p+u,j)+2*h}, v{Or(2*p+u,j)+2*h+1}" for u in range(2) for h in range(2)]
        return o_
    def stage15(mode):
        a.c(f"stage 15 {mode}")
        p0 = pv(15, 0, KF)
        S = Sched(a, [m_ for j in range(3) for m_ in [sm(15)[zj(1).index(j)]] + [p0[3*i + zj(i).index(j)] for i in range(4)]] + pv(15, 1))
        for r, p in zip(rd_v(15, 1), (0, 1, 6, 7, 8, 9, 10, 11)): S.v(p, r)
        for c, p in zip((2, 3, 4, 5), (0, 1, 6, 7)): S.v(p, cv(1, 1, c))
        for k, p in zip(range(8, 12), (2, 3, 4, 5)): S.v(p, ex(1, k))
        for j, p in enumerate((8, 9, 14)): S.v(p, f"v_accvgpr_read_b32 v{vT+j}, a{La(j)[1]}")
        S.v(10, f"v_add_f32 v{vT+3}, v{vT}, v{vT+1}"); S.v(14, f"v_add_f32 v{vT+3}, v{vT+3}, v{vT+2}")
        S.v(11, f"v_mov_b32 v{vT+4}, {f32(2.0**30 if not OPT['forceslow'] else 150.0)}")
        S.v(15, f"v_cmp_nle_f32 vcc, v{vT+3}, v{vT+4}")
        for j, p in enumerate((12, 13, 16)): S.v(p, f"v_rcp_f32 v{vT+j}, v{vT+j}")
        if mode != "wo":
            for k, x in enumerate(epi_ops(0)[:NPRE]): S.v(17 + k // 2, x)
        if mode == "kv":
            for k, x in enumerate(unit_pre(sBL, 22 * 8192)): S.h(1 + k, x)
        if mode == "wo":
            for k in range(3): wo_at(S, 6 + k, (11 + 6*k, 14 + 6*k))
        if mode == "wq":
            place_tile(a, S, [s_ for j in range(3) for s_ in x_block(j, 0, sXo1)], (12, 14, 17, 19, 22, 24))
        S.emit(None)
        assert not a.lg
        if not OPT["nocheck"]: a.e("s_cbranch_vccnz L_slow")
    for t in range(15):
        if t == 12:
            a.e(f"s_cmp_eq_u32 s{sR}, 3"); a.e("s_cbranch_scc1 L_altwo")
            if T: a.e(f"s_cmp_eq_u32 s{sR}, s{sPre}"); a.e("s_cbranch_scc1 L_altwq")
        stage(t, "kv")
    stage15("kv")
    a.e("L_epi:")
    for r in rd_k(KF, 0, 0) + rd_k(VF, 0, 1): a.e(r)
    lg_epi = list(a.lg)
    for x in epi_ops(0)[NPRE:]: a.e(x)
    if OPT["stamp"] and not OPT['qprof']: stamp_dyn(a, 5, sR, 4)
    for s_ in (sCur, sBL, sMin): a.e(f"s_add_u32 s{s_}, s{s_}, 131072")
    a.e(f"s_add_u32 s{sR}, s{sR}, 1")
    a.e(f"s_cmp_eq_u32 s{sR}, 3"); a.e("s_cbranch_scc1 L_sw2")
    a.e(f"s_cmp_eq_u32 s{sR}, 2"); a.e("s_cbranch_scc1 L_sw1")
    for r in range(3):
        a.e(f"L_sw{r}:")
        if r == 1 and T: a.e(f"s_cmp_eq_u32 s{sPre}, 1"); a.e("s_cbranch_scc1 L_q2b")
        if r == 0 and T:
            l = newlabel("ct")
            a.e(f"s_cmp_lg_u32 s{sPre}, 1"); a.e(f"s_cbranch_scc1 {l}")
            code_touch(a, "L_q2b", "L_altwo", 10, 11)
            a.e(f"{l}:")
        if r == 2:
            code_touch(a, "L_altwo", "L_hot_end", 158, 159)
            l = newlabel("bp")
            a.e(f"s_cmp_lg_u32 s{sWv}, 0"); a.e(f"s_cbranch_scc1 {l}")
            a._emit("global_load_dword v156, v157, s[18:19] sc1")
            a.e(f"{l}:")
        for j in range(3):
            for p in range(4):
                for x in range(4): a.e(f"v_accvgpr_read_b32 v{Qf(j,p)+x}, a{QBANK[r+1] + 12*p + 4*j + x}")
        a.raw_wait("s_waitcnt lgkmcnt(0)"); a.lg = []
        qk0(bank_write(OBANK[r], lambda p, j: Or(2*p, j)))
        a.e("s_branch L_head2")
    for l0, l1, t in catch:
        a.e(f"{l0}:")
        for x in unit_pre(sBL, (t + 7) * 8192): a.e(x)
        emit_tile(a, unit_dma())
        a.e(f"s_add_u32 s{sBL}, s{sBL}, 8192")
        a.e(f"s_branch {l1}")
    if T:
        a.e("L_q2b:")
        for x in bank_write(OBANK[1], lambda p, j: Or(2*p, j)): a.e(x)
        a.e(f"s_add_u32 s{sKn}, s{sBL}, {3*8192}"); a.e(f"s_add_u32 s{sMin}, s{sCur}, {3*8192}")
        a.raw_wait("s_waitcnt vmcnt(0) lgkmcnt(0)")
        if L0 > 5: a.e("s_barrier")
        for n in range(5, L0): emit_tile(a, w_tile(wpos(n), n, 2))
        a.e("s_branch L_q2go")
        a.e(".p2align 6")
        a.e("L_altwq:")
        a.lg = []
        for t in range(12, 15): stage(t, "wq")
        stage15("wq")
        a.e("s_branch L_epi")
    a.e(".p2align 6")
    a.e("L_altwo:")
    a.lg = []
    for t in range(12, 15): stage(t, "wo")
    stage15("wo")
    sPr, sOut, sOo, sDst = sX, sW, sLast, 40
    LD = {0: 184, 1: 130}
    ACC, STG = 60, 160
    vSA, vSB, vLA, vLB, vOA, vFl, vFi, vPoll, vVal, TM, PK = 152, 153, 154, 158, 159, 1, 2, 6, 10, 120, 124
    def Ga(h, i, j): return (72, 208)[h] + 12 * i + 4 * j
    def spin_loop(l0, l1, cmp, reload):
        a.e(f"{l0}:")
        a.e(f"s_mov_b32 s{sT3}, 0")
        l2 = newlabel("spin")
        a.e(f"{l2}:")
        a.e(f"s_add_u32 s{sT3}, s{sT3}, 1")
        a.e(f"s_cmp_ge_u32 s{sT3}, {SPIN_MAX}")
        a.e(f"s_cbranch_scc1 {l1}")
        a.e(f"s_sleep {OPT['sleep']}")
        a._emit(reload)
        a.raw_wait("s_waitcnt vmcnt(0)")
        for x in cmp: a._emit(x)
        a._emit("s_nop 4")
        a.e(f"s_cbranch_vccnz {l2}")
        a.e(f"s_branch {l1}")
    spins = []
    def rd_g(dst, m, f):
        h, o = slot(m); i, c = divmod(f, 2)
        return [f"ds_read_b64_tr_b16 {R(off(dst, 2*e), 2)}, v{(vWAl, vWAh)[h]} offset:{o + c*512 + e*256 + i*32}" for e in range(2)]
    def gmf(n):
        h, t = divmod(n % 16, 8)
        o = []
        for i in range(4):
            for jn, j in enumerate(zj(i)):
                cs = (1, 0) if OPT["zz"] and (3 * i + jn) & 1 else (0, 1)
                for c in cs:
                    r, p = divmod(2 * t + c, 4)
                    o.append(mf(Ga(h, i, j), Greg(n & 1, 2*i + c), Qf(j, p) if r == 3 else ("a", OBANK[r] + 12 * p + 4 * j), None if t == 0 and c == cs[0] else Ga(h, i, j)))
        return o
    a.e("L_g:")
    a.lg = []
    if OPT["stamp"] and not OPT['qprof']: stamp(a, 8)
    if OPT["qprof"] == 4: stamp(a, 4)
    a.e(f"v_lshrrev_b32 v{TM}, 5, v0"); a.e(f"v_lshlrev_b32 v{TM}, 7, v{TM}")
    a.e(f"v_sub_u32 v{vWAh}, v{vVA}, v{TM}"); a.e(f"v_subrev_u32 v{vWAl}, {VB}, v{vWAh}")
    a.e(f"v_mov_b32 v{TM+1}, {XB}")
    vmw(a, 12)
    l, l0, l1 = newlabel("bc"), newlabel("bs"), newlabel("bok")
    a.e(f"s_cmp_lg_u32 s{sWv}, 0"); a.e(f"s_cbranch_scc1 {l}")
    bcmp = [f"v_and_b32 v{TM}, 0xff, v156", f"v_cmp_gt_u32 vcc, 8, v{TM}"]
    for x in bcmp: a._emit(x)
    a.e(f"s_lshl_b32 s{sTmp}, s{sPK}, 3")
    a._emit("s_nop 3")
    if not OPT["nosync"]: a.e(f"s_cbranch_vccnz {l0}")
    a.e(f"{l1}:")
    spins.append((l0, l1, bcmp, "global_load_dword v156, v157, s[18:19] sc1"))
    a.e(f"v_xor_b32 v156, s{sTmp}, v156")
    a._emit(f"ds_write_b32 v{TM+1}, v156")
    a.e(f"{l}:")
    a.e("s_barrier")
    for f in range(8):
        for r in rd_g(Greg(0, f), 0, f): a.e(r)
    epi = epi_ops(1)
    for x in epi[:16]: a.e(x)
    epi = epi[16:]
    def srd_atoms(d, lo, o): return [[f"s_add_u32 s{d}, s{lo}, {o}", f"s_addc_u32 s{d+1}, s{lo+1}, 0"], [f"s_and_b32 s{d+1}, s{d+1}, 0xffff"], [f"s_mov_b32 s{d+3}, 0x20000"]]
    T1_, T2_ = f"s{sTmp}", f"s{sT2}"
    setup_ = [[f"s_mul_i32 {T1_}, s{sG}, {XG}"]] + srd_atoms(sP, 28, T1_) + [[f"s_mov_b32 s{sP+2}, {XG}"], [f"s_mul_i32 {T2_}, s{sU}, {XD}"], [f"s_add_u32 {T1_}, {T1_}, {T2_}"]]
    setup_ += srd_atoms(sPr, 28, T1_) + [[f"s_mov_b32 s{sPr+2}, 0"]]
    if OPT["ibg"]:
        setup_ += [[x] for x in (f"s_mul_i32 {T2_}, s{sWv}, 1536", f"s_add_u32 {T2_}, {T2_}, {T1_}", f"s_add_u32 {T2_}, {T2_}, {5*XP}",
            "v_min_u32 v148, 47, v0", "v_mul_u32_u24 v149, 43, v148", "v_lshrrev_b32 v149, 9, v149", "v_lshlrev_b32 v148, 7, v148",
            "v_mul_u32_u24 v149, 4608, v149", f"v_add3_u32 v148, v148, v149, {T2_}", f"s_add_u32 {T2_}, {T2_}, {XD - 6144 + 1408}",
            "v_add_u32 v150, 24576, v148", f"v_min_u32 v150, {T2_}, v150")]
    for i in range(7):
        setup_ += [[f"s_xor_b32 s{sDst+i}, s{sU}, {i ^ 7}"], [f"s_mul_i32 s{sDst+i}, s{sDst+i}, {XD}"], [f"s_add_u32 s{sDst+i}, s{sDst+i}, {i*6144}"]]
    setup_ += [[f"s_mul_i32 {T1_}, s{sB}, 491520"], [f"s_mul_i32 {T2_}, s{sBr}, 1280"], [f"s_add_u32 {T1_}, {T1_}, {T2_}"], [f"s_lshl_b32 {T2_}, s{sU}, 5"], [f"s_add_u32 {T1_}, {T1_}, {T2_}"]]
    setup_ += srd_atoms(sOut, 16, T1_) + [[f"s_mov_b32 s{sOut+2}, 0"]]
    setup_ += [[x] for x in (f"s_mul_i32 {T1_}, s{sWv}, 1536", f"v_lshl_add_u32 v{vSA}, v0, 4, {T1_}", f"s_add_u32 {T1_}, {T1_}, 1024", f"v_lshl_add_u32 v{vSB}, v0, 3, {T1_}",
        *((f"v_and_b32 v{TM}, 15, v0", f"v_mul_u32_u24 v{TM}, 2560, v{TM}", f"v_lshrrev_b32 v{TM+3}, 4, v0", f"v_lshl_add_u32 v{TM}, v{TM+3}, 3, v{TM}") if not OPT["bp"] else
          (f"v_lshrrev_b32 v{TM}, 2, v0", f"v_and_b32 v{TM+3}, 3, v0", f"v_lshl_add_u32 v11, v{TM+3}, 4, v{TM}", "v_lshlrev_b32 v11, 2, v11",
           f"v_mul_u32_u24 v{TM}, 2560, v{TM}", f"v_lshl_add_u32 v{TM}, v{TM+3}, 3, v{TM}")),
        f"s_mul_i32 {T1_}, s{sWv}, {48*2560}", f"v_add_u32 v{vOA}, {T1_}, v{TM}",
        f"s_lshl_b32 {T1_}, s{sWv}, 7", f"s_lshl_b32 {T2_}, s{sU}, 2", f"s_add_u32 {T2_}, {T2_}, {T1_}", f"v_lshl_add_u32 v{vFl}, v0, 9, {T2_}",
        f"s_lshl_b32 {T2_}, s{sU}, 9", f"s_add_u32 {T2_}, {T2_}, {T1_}", f"v_and_b32 v{TM}, 7, v0", f"v_lshl_add_u32 v{vFi}, v{TM}, 2, {T2_}",
        f"v_mov_b32 v{vVal}, 0", f"v_mov_b32 v{vPoll}, 0", f"s_mov_b32 s{sGc}, 0" if not OPT["emu3"] else f"s_lshl_b32 s{sGc}, s{sTyp}, 1", f"s_mov_b32 s{sOo}, -512" if not OPT["emu3"] else f"s_mov_b32 s{sOo}, 0", f"s_mov_b32 s{sS8}, 0xffff0000")]
    m = 9
    Ss = []
    for n in range(8):
        S = Sched(a, gmf(n)); Ss.append(S)
        rds = []
        for f in range(8): rds += rd_g(Greg((n + 1) & 1, f), n + 1, f)
        for r, p in zip(rds, RDPOS): S.v(p, r)
        for gp in ([(6, 11), (16, 19)] if n < 4 else [(6, 11)]): wo_at(S, m, gp); m += 1
        if n % 4 == 1: end_sync(a, S, {1: 12, 5: 16}[n], 0)
        else: S.h(22, lambda: a.wait(lg="all"))
        if n == 2: S.v(20, f"ds_read_b32 v{TM+2}, v{TM+1}")
        if OPT["ibg"] and n == OPT["ibn"]: S.v(16, lambda: a._emit(f"global_load_dword v149, v148, s[28:29]"))
        if OPT["ibg"] and n == min(7, OPT["ibn"] + 3): S.v(16, lambda: a._emit(f"global_load_dword v151, v150, s[28:29]"))
        if n == 7:
            S.v(19, f"v_readfirstlane_b32 s{sTmp}, v{TM+2}"); S.h(21, f"s_cmp_lg_u32 s{sTmp}, 0")
    assert m == 21
    n, k = 0, 0
    for atom in setup_:
        while True:
            S = Ss[n]
            ok = (not S.hold[k]) if atom[0].startswith("s_") else free_slots(S)[k] > 0
            if atom[0].startswith("s_") and len(atom) > 1 and free_slots(S)[k] == 0: ok = False
            if ok: break
            k += 1
            if k == 24: n += 1; k = 0
        for x in atom: (S.h if x.startswith("s_") else S.v)(k, x)
        if not atom[0].startswith("s_") or True:
            k += 1
            if k == 24: n += 1; k = 0
    assert (n, k) < (7, 18), (n, k)
    for n in range(7):
        epi = fill_ops(Ss[n], epi)
        if n == 5: assert len(epi) <= 72 - 8, len(epi)
    assert not epi, len(epi)
    for n in range(8):
        a.c(f"G first half, sub-step {n}")
        Ss[n].emit(gmf(n + 1)[0])
    a.e("s_branch L_gx" if OPT["xmode"] == 1 else "s_cbranch_scc1 L_gx")
    NP = {0: 4, 1: 3}
    def cvs(h): return [f"v_cvt_pk_bf16_f32 v{STG + 6*i + 2*j + x}, v{Ga(h,i,j)+2*x}, v{Ga(h,i,j)+2*x+1}" for i in range(NP[h]) for j in range(3) for x in range(2)]
    def rops(h, k):
        o = []
        for r in range(6):
            s = LD[h] + 6*k + r; t = TM + 2 * (r & 1)
            src = Ga(1, 3, r >> 1) + 2 * (r & 1) if (h, k) == (0, 0) else ACC + 2*r
            o += [f"v_lshlrev_b32 v{t}, 16, v{s}", f"v_and_b32 v{t+1}, s{sS8}, v{s}",
                  f"v_add_f32 v{ACC+2*r}, v{src}, v{t}", f"v_add_f32 v{ACC+2*r+1}, v{src+1}, v{t+1}"]
        return o
    rcv = [f"v_cvt_pk_bf16_f32 v{PK+r}, v{ACC+2*r}, v{ACC+2*r+1}" for r in range(6)]
    bps = [f"ds_bpermute_b32 v{PK+r}, v11, v{PK+r}" for r in range(6)] if OPT["bp"] else []
    def rst(j): return ([f"s_add_u32 s{sOff2}, s{sOo}, {j*40960}"], f"buffer_store_dwordx2 {vr(PK+2*j,2)}, v{vOA}, {sr(sOut,4)}, s{sOff2} offen{['', ' sc1', ' nt', ' sc0 sc1'][OPT['opol']]}")
    chk_cmp = [f"v_cmp_gt_u32 vcc, v{vVal}, v{vPoll}"]
    poll = f"buffer_load_dword v{vPoll}, v{vFi}, {sr(sF,4)}, 0 offen sc1"

    def g_phase(fast):
        pol = ("", " nt", " sc0")[OPT["xs"]] if fast else " sc1"
        la, lb = (vSA, vSB) if fast else (vLA, vLB)
        def xst(h, i): return [([], f"buffer_store_dwordx4 {vr(STG+6*i,4)}, v{vSA}, {sr(sP,4)}, s{sDst+4*h+i} offen{pol}"),
                               ([], f"buffer_store_dwordx2 {vr(STG+6*i+4,2)}, v{vSB}, {sr(sP,4)}, s{sDst+4*h+i} offen{pol}")]
        def xld(h, k): return [([f"s_mov_b32 s{sOff2}, {(4*h+k)*6144}"], f"buffer_load_dwordx4 {vr(LD[h]+6*k,4)}, v{la}, {sr(sPr,4)}, s{sOff2} offen sc1"),
                               ([], f"buffer_load_dwordx2 {vr(LD[h]+6*k+4,2)}, v{lb}, {sr(sPr,4)}, s{sOff2} offen sc1")]
        flag = f"buffer_store_dword v{vVal}, v{vFl}, {sr(sF,4)}, 0 offen{pol}"
        def check():
            l0, l1 = newlabel("sp"), newlabel("ok")
            if not OPT["nosync"]: a.e(f"s_cbranch_vccnz {l0}")
            a.e(f"{l1}:")
            spins.append((l0, l1, chk_cmp, poll))
        if fast: a.e(f"v_add_u32 v{vSA}, {5*XP}, v{vSA}"); a.e(f"v_add_u32 v{vSB}, {5*XP}, v{vSB}")
        else: a.e(f"v_subrev_u32 v{vLA}, {XP}, v{vSA}"); a.e(f"v_subrev_u32 v{vLB}, {XP}, v{vSB}")
        a.e(f"s_branch L_gmid{int(fast)}")
        late = []
        def body():
            del late[:]
            Ss = [Sched(a, gmf(n)) for n in range(16)]
            cap = [[2] * 24 for _ in range(16)]
            ops = []
            def vmem(n, g_, steps, kind):
                if isinstance(kind, tuple) and kind[0] == "T": place_tile(a, Ss[n], steps, g_)
                else:
                    for (pre, d), x in zip(steps, g_):
                        for y in pre: Ss[n].h(x, y)
                        Ss[n].v(x, lambda d=d: a._emit(d))
                for x in g_: cap[n][x] = 0; ops.append((n, x, kind))
            tpos = {0: [(6, 11)], 1: [(6, 11)], 4: [(6, 11), (16, 19)], 5: [(11, 16), (19, 22)], 6: [(6, 11)], 7: [(11, 16)]}
            m = 13
            for n in range(16):
                h, t = divmod(n, 8); S = Ss[n]
                rds = []
                for f in range(8): rds += rd_g(Greg((n + 1) & 1, f), n + 1, f)
                for r, p in zip(rds, RDPOS): S.v(p, r); cap[n][p] -= 1
                cap[n][23] = 0 if n % 4 == 1 else 1; cap[n][20] = min(cap[n][20], 1); cap[n][21] = min(cap[n][21], 1)
                for gp in tpos.get(t, []):
                    st, post = wo_tile(m)
                    if m == 16:
                        S.h(gp[0] - 4, f"s_cmp_eq_u32 s{sGc}, 4"); S.h(gp[0] - 3, f"s_cselect_b32 s{sWo+2}, 0, s{sWo+2}")
                    vmem(n, gp, st, ("T", m))
                    for x in post: S.h(gp[1], x)
                    m += 1
                if t == 2:
                    xs = [s_ for i in range(NP[1-h]) for s_ in xst(1 - h, i)] + [s_ for k in range(NP[h]) for s_ in xld(h, k)]
                    pos = [(n + d, g_) for d in (0, 1) for g_ in (6, 11, 16, 19, 20, 21, 22)]
                    for s_, (n2, g_) in zip(xs, pos): vmem(n2, (g_,), [s_], ("X", h))
                if t == 5: vmem(n, (6,), [([], flag)], "F"); S.v(4, f"v_add_u32 v{vVal}, 1, v{vVal}"); cap[n][4] -= 1
                if t == 7: vmem(n, (6,), [([], poll)], ("P", h))
            assert m == 29
            if OPT["opos"] == 0: vmem(4, (20, 21, 22), [rst(j) for j in range(3)], "O")
            else:
                for j, (n2, g_) in enumerate(((6, 16), (8, 16), (14, 16)) if OPT["opos"] == 1 else ((6, 16), (7, 21), (8, 19))): vmem(n2, (g_,), [rst(j)], "O")
            for x, (n2, g_) in zip(bps, ((2, 23), (3, 23), (4, 22), (4, 23), (6, 22), (6, 23))): Ss[n2].v(g_, x); cap[n2][g_] = max(0, cap[n2][g_] - 1)
            ops.sort(key=lambda x: (x[0], x[1]))
            ops2 = ops + [(n + 16, g_, k) for n, g_, k in ops]
            def younger(pt, n, g_): return len([o for o in ops2 if pt < (o[0], o[1]) < (n, g_)])
            for h in range(2):
                pt = max((o[0], o[1]) for o in ops if o[2] == ("X", h))
                Ss[8*h + 5].h(2, lambda c=younger(pt, 8*h + 5, 2): vmw(a, c))
                pt = [(o[0], o[1]) for o in ops if o[2] == ("P", h)][0]
                nc = 8*h + 9
                Ss[nc % 16].h(16, lambda c=younger(pt, nc, 16): vmw(a, c))
                Ss[nc % 16].v(16, lambda: a._emit(chk_cmp[0])); cap[nc % 16][16] -= 1
                Ss[nc % 16].h(20, check)
            def fill(lst, n, g_, rec=None):
                for op in lst:
                    while cap[n % 16][g_] <= 0:
                        g_ += 1
                        if g_ == 24: n += 1; g_ = 0
                    if not OPT["norv"]: Ss[n % 16].v(g_, lambda op=op: a._emit(op))
                    cap[n % 16][g_] -= 1
                    if rec is not None and n >= 16: rec.append(op)
                return n, g_
            e = fill(cvs(1), 0, 1); assert e < (2, 5), e
            e = fill(cvs(0), 8, 1); assert e < (10, 5), e
            e = fill(rops(0, 0), 5, 2); assert e < (8, 10), e
            e = fill([x for k in range(1, 4) for x in rops(0, k)], *e); assert e < (13, 2), e
            e = fill([x for k in range(3) for x in rops(1, k)] + rcv, 13, 2, late); assert e < (18, 22), e
            S = Ss[7]
            if not fast: S.v(19, f"v_add_u32 v{vSA}, {XP}, v{vSA}"); S.v(20, f"v_add_u32 v{vSB}, {XP}, v{vSB}")
            S = Ss[15]
            S.h(0, f"s_cmp_ge_u32 s{sGc}, 1")
            S.h(1, f"s_cselect_b32 s{sOut+2}, {191*2560 + 1024 + 32}, 0")
            S.h(2, f"s_add_u32 s{sOo}, s{sOo}, 256")
            S.h(3, f"s_mov_b32 s{sPr+2}, {5*XP + XD}")
            if not fast:
                S.v(19, f"v_add_u32 v{vLA}, {XP}, v{vLA}"); S.v(20, f"v_add_u32 v{vLB}, {XP}, v{vLB}")
            S.h(18, f"s_add_u32 s{sGc}, s{sGc}, 1")
            S.h(19, f"s_cmp_lt_u32 s{sGc}, 5")
            for n in range(16):
                a.c(f"G sub-step {n}")
                if n == 8:
                    assert not a.lg
                    a.e(f"L_gmid{int(fast)}:")
                if n % 4 == 1:
                    tid = n + 5 + 16
                    pt = max((o[0], o[1]) for o in ops2 if o[2] == ("T", tid if tid < 29 else tid - 16) and (o[0] < 16) == (tid < 29))
                    cnt = len([o for o in ops2 if pt < (o[0], o[1]) < (n + 16, 22) and (o[0] >= 16 + 8 * (n // 8) or (isinstance(o[2], tuple) and o[2][0] == "T"))])
                    end_sync(a, Ss[n], min(cnt, 63), 0)
                else:
                    def w():
                        k = min(len(a.lg), OPT['gkeep']); a.raw_wait(f"s_waitcnt lgkmcnt({k})"); a.lg = a.lg[len(a.lg) - k:] if k else []
                    Ss[n].h(22, w)
                Ss[n].emit(gmf(n + 1)[0])
        lab = "L_gl_fast" if fast else "L_gl_far"
        if OPT["qprof"] == 2 and fast: stamp(a, 5); stamp(a, 6, False)
        a.e(".p2align 6")
        a.e(f"{lab}:")
        if OPT["qprof"] == 4: stamp_dyn(a, 4, sGc, 5)
        a.lg = []
        mark = len(a.ins); nops0 = a.nops; ns = len(spins)
        body(); lg_end = list(a.lg)
        del a.ins[mark:]; a.nops = nops0; del spins[ns:]
        body(); assert a.lg == lg_end
        a.e(f"s_cbranch_scc1 {lab}")
        if OPT["qprof"] == 2 and fast: stamp(a, 7); stamp(a, 8, False)
        if OPT["qprof"] == 4: stamp(a, 3)
        a.c("tail")
        for x in cvs(1): a.e(x)
        stamp(a, 2)
        vmw(a, 2)
        a._emit(chk_cmp[0]); a._emit("s_nop 4"); check()
        for i in range(3): emit_tile(a, xst(1, i))
        def ntv(st): return [(p_, d_ + " nt") if OPT["tl"] & 1 else (p_, d_) for p_, d_ in st]
        for k in range(4): emit_tile(a, ntv(xld(0, k)))
        for op in late + bps: a._emit(op)
        vmw(a, 8)
        a.e(f"v_add_u32 v{vVal}, 1, v{vVal}")
        a._emit(flag)
        early_out = not OPT["tord"]
        if early_out:
            a.raw_wait("s_waitcnt lgkmcnt(0)"); emit_tile(a, [rst(j) for j in range(3)])
        for k in range(4):
            vmw(a, 2 * (3 - k) + (4 if early_out else 1))
            for op in rops(0, k): a._emit(op)
            if k == 2: a._emit(poll)
        vmw(a, 0)
        a._emit(chk_cmp[0]); a._emit("s_nop 4"); check()
        for k in range(3): emit_tile(a, ntv(xld(1, k)))
        if not early_out:
            a.raw_wait("s_waitcnt lgkmcnt(0)"); emit_tile(a, [rst(j) for j in range(3)])
        a.e(f"s_mov_b32 s{sOo}, 1024")
        for k in range(3):
            vmw(a, 2 * (2 - k) + (0 if early_out else 3))
            for op in rops(1, k): a._emit(op)
        for op in rcv + bps: a._emit(op)
        a.raw_wait("s_waitcnt lgkmcnt(0)")
        emit_tile(a, [rst(j) for j in range(3)])
    g_phase(True)
    a.e("L_fin:")
    stamp(a, 9, False); stamp(a, 10)
    if OPT["leak"] >= 0:
        k = OPT["leak"]
        if k == 0: a.e("s_mov_b32 s79, 0")
        elif k == 9: a.e("s_sub_u32 s79, s98, s82"); a.e("s_lshr_b32 s79, s79, 4")
        else: a.e(f"s_sub_u32 s79, s{80+2*k}, s80")
        a.e("s_add_u32 s79, s79, 15000")
        if OPT["leakwg"] == 1: a.e("s_cmp_lt_u32 s2, 8"); a.e("s_cselect_b32 s79, s79, 0")
        if OPT["leakwg"] == 2: a.e("s_cmp_ge_u32 s2, 248"); a.e("s_cselect_b32 s79, s79, 0")
        if OPT["leakwg"] in (4, 5): a.e("s_and_b32 s76, s2, 1"); a.e("s_cselect_b32 s79, s79, 0" if OPT["leakwg"] == 5 else "s_cselect_b32 s79, 0, s79")
        if OPT["leakwg"] == 3: a.e("s_cmp_eq_u32 s2, 0"); a.e("s_cselect_b32 s79, s79, 0")
        a.e("L_leak:")
        a._emit("s_memrealtime s[76:77]"); a.raw_wait("s_waitcnt lgkmcnt(0)")
        a.e("s_sub_u32 s76, s76, s80"); a.e("s_cmp_lt_u32 s76, s79"); a.e("s_cbranch_scc1 L_leak")
    stamp_store(a, "L_end", 0)
    dbg_store(a)
    a.e("L_end:")
    a.e("s_endpgm")
    nsp = len(spins)
    for s_ in list(spins): spin_loop(*s_)
    a.e("L_hot_end:")
    a.e(".p2align 6")
    a.e("L_gx:")
    g_phase(False)
    a.e("s_branch L_fin")
    for s_ in list(spins[nsp:]): spin_loop(*s_)
    a.reset_counters()
    a.e("L_slow:")
    a.raw_wait("s_waitcnt vmcnt(0) lgkmcnt(0)")
    vKo, vVo, t0, t1 = 10, 11, P_ + 12, P_ + 13
    a.e("s_nop 7")
    a.e(f"v_and_b32 v{t0}, 7, v0"); a.e(f"v_lshlrev_b32 v{t0}, 10, v{t0}")
    a.e(f"v_bfe_u32 v{t1}, v0, 3, 1"); a.e(f"v_lshl_add_u32 v{t0}, v{t1}, 8, v{t0}")
    a.e(f"v_lshrrev_b32 v{t1}, 4, v0"); a.e(f"v_lshl_add_u32 v{vKo}, v{t1}, 4, v{t0}")
    a.e(f"v_bfe_u32 v{t0}, v0, 4, 1"); a.e(f"v_lshlrev_b32 v{t0}, 12, v{t0}")
    a.e(f"v_lshrrev_b32 v{t1}, 5, v0"); a.e(f"v_lshl_add_u32 v{t0}, v{t1}, 8, v{t0}")
    a.e(f"v_and_b32 v{t1}, 15, v0"); a.e(f"v_lshl_add_u32 v{vVo}, v{t1}, 1, v{t0}")
    for j in range(3): a.e(f"v_mov_b32 v{vT+j}, 0xff800000")
    def slow_qk(cinit):
        for u, kf in ((0, KF), (1, VF)):
            for ks in range(4): a.e(f"buffer_load_dwordx4 {vr(kf + 4*ks,4)}, v{vKo}, {sr(sK,4)}, s{sT2} offen offset:{u*512 + ks*64}")
        for u, kf in ((0, KF), (1, VF)):
            for j in range(3):
                for ks in range(4):
                    a.e(mf(Sr(u, j), kf + 4*ks, Qf(j, ks), (Nm(j) if cinit else None) if ks == 0 else Sr(u, j)))
    a.e(f"s_mov_b32 s{sT2}, s{sCur}")
    a.e(f"s_add_u32 s{sT3}, s{sCur}, 131072")
    a.e("L_slow_p1:")
    slow_qk(False)
    for j in range(3):
        for u in range(2):
            s = Sr(u, j)
            a.e(f"v_max3_f32 v{vT+j}, v{vT+j}, v{s}, v{s+1}")
            a.e(f"v_max3_f32 v{vT+j}, v{vT+j}, v{s+2}, v{s+3}")
    a.e(f"s_add_u32 s{sT2}, s{sT2}, 8192")
    a.e(f"s_cmp_lt_u32 s{sT2}, s{sT3}")
    a.e("s_cbranch_scc1 L_slow_p1")
    rowred(a, "v_max_f32", [vT, vT+1, vT+2], [Nm(j) for j in range(3)])
    for j in range(3):
        for r in range(4): a.e(f"v_sub_f32 v{Nm(j)+r}, 0, v{vT+j}")
    for r in range(96): a.e(f"v_mov_b32 v{O_+r}, 0")
    for r in range(12): a.e(f"v_accvgpr_write_b32 a{192+r}, 0")
    a.e(f"s_mov_b32 s{sT2}, s{sCur}")
    a.e("L_slow_p2:")
    slow_qk(True)
    for u in range(2):
        for k in range(12): a.e(ex(u, k))
    for u in range(2):
        for c in range(6): a.e(cv(u, 0, c))
    for half, fr in ((0, KF), (1, VF)):
        for hi in range(2):
            for i in range(4):
                for e in range(2):
                    for rp in range(2):
                        r = 2*rp + hi
                        a.e(f"buffer_load_ushort v{(S_ if hi else fr) + 4*i + 2*e + rp}, v{vVo}, {sr(sV,4)}, s{sT2} offen offset:{r*1024 + e*512 + (4*half+i)*32}")
        a.wait(vm="all")
        for x in range(16): a.e(f"v_lshl_or_b32 v{fr+x}, v{S_+x}, 16, v{fr+x}")
    for m in sm(2): a.e(m)
    for half, fr in ((0, KF), (1, VF)):
        for m in pv(2, half, fr): a.e(m)
    a.e(f"s_add_u32 s{sT2}, s{sT2}, 8192")
    a.e(f"s_cmp_lt_u32 s{sT2}, s{sT3}")
    a.e("s_nop 7")
    a.e("s_cbranch_scc1 L_slow_p2")
    for j in range(3): a.e(f"v_accvgpr_read_b32 v{vT+j}, a{La(j)[1]}")
    for j in range(3): a.e(f"v_rcp_f32 v{vT+j}, v{vT+j}")
    a.e(f"s_cmp_eq_u32 s{sR}, 3"); a.e("s_cbranch_scc1 L_g")
    for x in epi_ops(0)[:NPRE]: a.e(x)
    a.e("s_branch L_epi")
    return a

HDR = f"""; Fused attention blocks A and B in one launch. One workgroup per CU owns 4 heads of one batch: Q projection,
; softmax attention, output-projection partial (K = 512); the 8 workgroups of a batch then sum their partials.
; kernarg: 0 A_x, 8 A_k, 16 A_v, 24 A_wq, 32 A_wo, 40 B_x, 48 B_k, 56 B_v, 64 B_wq, 72 B_wo, 80 out, 88 debug, 96 ws
; @launch grid=(256,1,1) block=(256,1,1) lds={LDS}
.amdgcn_target "amdgcn-amd-amdhsa--gfx950"
.text
"""
def kern(name, a):
    return f".globl {name}\n.p2align 8\n.type {name},@function\n{name}:\n" + a.text()
def desc(name, nv, acc, ns):
    return f""".p2align 6
.amdhsa_kernel {name}
  .amdhsa_next_free_vgpr {nv}
  .amdhsa_next_free_sgpr {ns}
  .amdhsa_accum_offset {acc}
  .amdhsa_group_segment_fixed_size 0
  .amdhsa_kernarg_size 104
  .amdhsa_user_sgpr_count 2
  .amdhsa_user_sgpr_kernarg_segment_ptr 1
  .amdhsa_system_sgpr_workgroup_id_x 1
  .amdhsa_float_denorm_mode_32 3
.end_amdhsa_kernel
"""
if __name__ == "__main__":
    a = main_kernel()
    if OPT["pro2"]:
        ix = lambda t: [k for k, i in enumerate(a.ins) if i.text == t][0]
        i0, i1, i2 = ix("L_p0:"), ix("L_p1:"), ix("L_hot_end:") + 1
        a.ins = a.ins[:i0] + a.ins[i1:i2] + [Ins(".p2align 6")] + a.ins[i0:i1] + [Ins("L_p0end:")] + a.ins[i2:]
    if OPT["nodma"] & 1: a.ins = [i for i in a.ins if not (i.kind == "dma" and " v1, " in i.text)]
    if OPT["nodma"] & 2: a.ins = [i for i in a.ins if not (i.kind == "dma" and " v1, " not in i.text)]
    if OPT["nodma"] & 4: a.ins = [i for i in a.ins if not (i.kind == "store" and ("v152," in i.text or "v153," in i.text))]
    if OPT["nodma"] & 8: a.ins = [i for i in a.ins if not (i.kind == "store" and "v159," in i.text)]
    if OPT["nox2"]: a.ins = [i for i in a.ins if not (i.kind == "vmem" and ("v121," in i.text))]
    if OPT["noload"]: a.ins = [i for i in a.ins if not (i.kind == "vmem" and ("v152," in i.text or "v153," in i.text))]
    if OPT["x1"]:
        out = []; on = False; cnt = 0
        for i in a.ins:
            if i.text in ("L_epi:", "L_q2b:") or (OPT["x1"] & 2 and i.text in ("; Q conversion", "; Q2 conversion")): on = True
            if i.op in ("s_barrier",) or i.kind == "mfma" or i.text == "L_enter:": on = False
            out.append(i)
            if on and i.kind == "valu":
                cnt += 1
                if cnt % 2 == 0: out.append(Ins(f"v_mfma_f32_16x16x32_bf16 a[{240+4*(cnt//2%4)}:{243+4*(cnt//2%4)}], a[144:147], a[{96+4*(cnt//2%8)}:{99+4*(cnt//2%8)}], 0"))
        a.ins = out
    if OPT["x2"]:
        out = []; on = False
        for i in a.ins:
            if i.text == "L_q2:": on = True
            if i.text == "L_q2l:": on = False
            if on and i.kind == "mfma": out.append(Ins(f"s_nop {OPT['x2']}"))
            out.append(i)
        a.ins = out
    if OPT["abl"]:
        cnt = [0]
        def drop2(i):
            if OPT["abl"] & 1 and i.op == "ds_read_b64_tr_b16" and (", v4 " in i.text or ", v5 " in i.text):
                cnt[0] += 1; return (cnt[0] // 2) % 2 == 1
            if OPT["abl"] & 2 and i.kind == "lds" and (", v2 " in i.text or ", v3 " in i.text):
                cnt[0] += 1; return (cnt[0] // 2) % 2 == 1
            if OPT["abl"] & 4 and i.kind == "mfma" and "a[204:207], v[" in i.text and i.text.split()[1].startswith(("a[192", "a[196", "a[200")): return True
            if OPT["abl"] & 8 and i.op in ("v_lshlrev_b32", "v_and_b32", "v_add_f32") and ("v120" in i.text or "v121" in i.text or "v122" in i.text or "v123" in i.text) and "v0" not in i.text.replace("v0,", "v0 ").split(): return True
            return False
        a.ins = [i for i in a.ins if not drop2(i)]
    if OPT["xa"]:
        i0 = [k for k, i in enumerate(a.ins) if i.text == "; stage 0 kv"][0]; i1 = [k for k, i in enumerate(a.ins) if i.text == "; stage 15 kv"][0]
        def drop(i):
            if OPT["xa"] & 1 and i.op == "s_cbranch_vccnz": return True
            if OPT["xa"] & 2 and i.op in ("s_mul_i32", "s_bfe_u32", "s_xor_b32", "s_getreg_b32", "s_cselect_b32", "s_cselect_b64", "s_sub_u32", "s_cmp_gt_u32", "s_cmp_gt_i32", "s_cmp_le_u32"): return True
            if OPT["xa"] & 4 and i.op == "s_barrier": return True
            if OPT["xa"] & 8 and i.op == "s_waitcnt" and "lgkm" in i.text: return True
            if OPT["xa"] & 16 and i.op == "s_mul_i32": return True
            return False
        a.ins = a.ins[:i0] + [i for i in a.ins[i0:i1] if not drop(i)] + a.ins[i1:]
    if OPT["strip"] == 2:
        i0 = [k for k, i in enumerate(a.ins) if i.text == "L_head:"][0]; i1 = [k for k, i in enumerate(a.ins) if i.text == "L_epi:"][0]
        a.ins = a.ins[:i0] + [Ins("s_nop 4") if i.kind == "mfma" else i for i in a.ins[i0:i1] if i.kind not in ("lds", "trans", "valu")] + a.ins[i1:]
    if OPT["strip"] == 1:
        i0 = [k for k, i in enumerate(a.ins) if i.text == "L_head:"][0]; i1 = [k for k, i in enumerate(a.ins) if i.text == "L_epi:"][0]
        a.ins = a.ins[:i0] + [i for i in a.ins[i0:i1] if i.kind not in ("mfma", "lds", "trans", "valu")] + a.ins[i1:]
    ns = 102 if OPT["stamp"] else NSGPR
    open(sys.argv[1], "w").write(HDR + kern(NAME + "_kernel", a) + '.section .rodata,"a"\n' + desc(NAME + "_kernel", 512, 256, ns))
    print("instrs", len(a.ins), "nops", a.nops)
```

```python
import sys, math, struct
from asmlib import *

NAME = "concat_heads__mha_block_cached__gqa_block_cached__near_ridge"
def f32(x): return "0x%08x" % struct.unpack("<I", struct.pack("<f", x))[0]
OPT = dict(stamp=0, nodma=0, nocheck=0, touch=0, forceslow=0, map84=0, first=6, rot=1, strip=0, cyc=0, typ=2, track=1, nosync=0, sleep=1, opos=1, lag=4, noack=0, noload=0, stpol=1, nolw=0, krot=1, hrot=0, emu3=0, ramp=0, xb=0, mred=1, xord=1, vmw=8, pro2=1, bp=1, tord=1, abl=0, zz=1, x1=0, x2=0, opol=2, tl=0, xs=0, kvconv=0, sh1=1, sh2=1, sh1t=3, lateq=0, gate=1, ibg=1, ibn=4, xa=0, stag=0, fskip=0, cufrom=4, custep=4, cvo=1, woq=1, ibnt=0, ibt=14, ct2=1, inbox0=0, sparse1=1, noinbox=1, cthead=3, help=3, latekv=1, wot=0, lmax=3, thr=5, thr2=2, dyn=1, xmode=0, gkeep=0, leak=-1, leakwg=0, st0=0, norv=0, now0=0, gcap=0, qprof=0, la=7, ldpol=1, lmode=0, ldfix=0, nox2=0, wnt=0, xnt=0, t0x=0, t0w=0, ctouch=3, dbgout=0)
for a_ in sys.argv[2:]:
    k_, v_ = a_.split("="); assert k_ in OPT, k_; OPT[k_] = int(v_)

def R(x, n):
    t, i = x if isinstance(x, tuple) else ("v", x)
    return f"{t}{i}" if n == 1 else f"{t}[{i}:{i+n-1}]"
def off(x, d): return (x[0], x[1] + d) if isinstance(x, tuple) else x + d
def mf(d, a, b, c):
    return f"v_mfma_f32_16x16x32_bf16 {R(d,4)}, {R(a,4)}, {R(b,4)}, {'0' if c is None else R(c,4)}"

def zj(i): return (2, 1, 0) if (i & 1) and OPT["zz"] else (0, 1, 2)
def zk(j): return (3, 2, 1, 0) if (j & 1) and OPT["zz"] else (0, 1, 2, 3)
TILE = 8448
VB = 8 * TILE
XB = 16 * TILE
LDS = XB + 24576
NSLOT = 8
CH = NSLOT * 1024
PART = 240 * CH
STAMP_AT = 128 << 20
FLG = 120 << 20
XD = 7 * 6144
XP = 8 * XD
XG = 6 * XP
SPIN_MAX = 2000000
def slot(m):
    m %= 16
    return (m & 1), (m >> 1) * TILE

vKV, vKA, vVA, vWAl, vWAh, vW = 1, 2, 3, 4, 5, 6
vT = 7
QF, NM, S_, P_, KF, VF, O_ = 12, 60, 72, 96, 120, 136, 160
vX0, vX1, vXA0, vXA1 = 156, 157, 158, 159
vTo, vD, vPt, vWo = 152, 153, 154, 155
def Qf(j, ks): return QF + 16 * j + 4 * ks
def Nm(j): return NM + 4 * j
def Sr(u, j): return S_ + 12 * u + 4 * j
def Pr(buf, j): return P_ + 12 * buf + 4 * j
def Or(i, j): return O_ + 12 * i + 4 * j
def Wreg(buf, i): return 12 + 32 * buf + 4 * i
def Xreg(buf, j, s): return 76 + 24 * buf + 8 * j + 4 * s
def Qacc(pos, i, j):
    k = 12 * i + 4 * j
    if pos == 0: return ("a", k)
    if pos == 1: return ("a", 96 + k)
    if pos == 2: return ("a", 192 + k) if k < 64 else 124 + (k - 64)
    return O_ + k
QBANK = {3: 0, 2: 48, 1: 96}
OBANK = {0: 144, 1: 96, 2: 48, 3: 0}
def La(j): return ("a", 192 + 4 * j)
ONES = ("a", 204)
def Greg(buf, i): return ("a", 192 + 32 * buf + 4 * i)
sX, sW, sK, sV, sWo, sP = 32, 36, 40, 44, 48, 52
sWv, sKVL, sWL, sXL, sOff, sOff2, sTmp, sR, sCur, sT2, sT3 = 60, 61, 62, 63, 64, 65, 66, 67, 68, 69, 70
sB, sU, sBr, sG, sXo, sPo = 71, 72, 73, 74, 75, 76
sCX, sNX, sLast, sS8, sWoB, sTask, sTyp = 56, 57, 58, 59, 77, 30, 31
sWq, sGc = 26, 27
sWq1, sJ, sRot, sPM, sPK = 20, 21, 22, 23, 24
sF, sD0, sD1 = 8, 12, 13
sJh, sXo1, sPre = 25, 77, 30
sThr = 56
sBL, sMin, sKn, sMv, sMk, sKVv, sC1 = 57, 76, 23, 58, 59, 3, 25
sH = [4, 5, 6, 7]
NSGPR = 80

def stamp(a, k, real=True):
    if not OPT["stamp"]: return
    lg = list(a.lg)
    a.raw_wait("s_waitcnt lgkmcnt(0)")
    if OPT["cyc"] and 2 <= k <= 8: real = False
    a._emit(f"{'s_memrealtime' if real else 's_memtime'} s[{80+2*k}:{81+2*k}]")
    a.raw_wait("s_waitcnt lgkmcnt(0)")
def stamp_dyn(a, base, sidx, n):
    if not OPT["stamp"]: return
    a.raw_wait("s_waitcnt lgkmcnt(0)")
    a._emit("s_memtime s[78:79]" if OPT["cyc"] else "s_memrealtime s[78:79]")
    a.raw_wait("s_waitcnt lgkmcnt(0)")
    for q in range(n):
        a.e(f"s_cmp_eq_u32 s{sidx}, {q}")
        a.e(f"s_cselect_b32 s{80+2*(base+q)}, s78, s{80+2*(base+q)}")
def stamp_store(a, label, base):
    if not OPT["stamp"]: return
    a.e(f"s_cmp_lg_u32 s{sWv}, 0")
    a.e(f"s_cbranch_scc1 {label}")
    for k in range(11): a.e(f"v_mov_b32 v{16+k}, s{80+2*k}")
    a.e("s_lshl_b32 s78, s2, 6"); a.e(f"s_add_u32 s78, s78, {STAMP_AT + base*64}")
    a.e("v_mov_b32 v28, s78")
    a.e("s_mov_b64 exec, 1")
    a.e("global_store_dwordx4 v28, v[16:19], s[28:29]")
    a.e("global_store_dwordx4 v28, v[20:23], s[28:29] offset:16")
    a.e("global_store_dwordx4 v28, v[24:27], s[28:29] offset:32")

def dbg_store(a):
    if not OPT["dbgout"]: return
    l = "L_dbgskip"
    a.e("s_and_b32 s78, s2, 0xdf"); a.e("s_cmp_lg_u32 s78, 5"); a.e(f"s_cbranch_scc1 {l}")
    a.e("s_load_dwordx2 s[24:25], s[0:1], 88")
    for n, k in enumerate((3,4,5,6,7,8,2,10)):
        a.e(f"s_sub_u32 s79, s{80+2*k}, s80"); a.e(f"v_mov_b32 v{32+n}, s79")
    a.e("s_and_b32 s78, s2, 32"); a.e("v_mov_b32 v29, s78")
    a.raw_wait("s_waitcnt lgkmcnt(0)")
    a.e("global_store_dwordx4 v29, v[32:35], s[24:25]")
    a.e("global_store_dwordx4 v29, v[36:39], s[24:25] offset:16")
    a.e(f"{l}:")

def srd(a, d, lo, o, size):
    a.e(f"s_add_u32 s{d}, s{lo}, {o}")
    a.e(f"s_addc_u32 s{d+1}, s{lo+1}, 0")
    a.e(f"s_and_b32 s{d+1}, s{d+1}, 0xffff")
    a.e(f"s_mov_b32 s{d+2}, {size}")
    a.e(f"s_mov_b32 s{d+3}, 0x20000")
_lbl = [0]
def newlabel(p):
    _lbl[0] += 1
    return f"L_{p}_{_lbl[0]}"
class U(str): pass

def ldsbase(m):
    h, o = slot(m); return h * VB + o
def w_tile(m, n, nh=4):
    b = ldsbase(m); base = sWq if n < 4 * nh else sWq1
    rel = ((n % (4 * nh)) // nh) * 262144 + (nh - 1 - n % nh) * 256
    pol = ' nt' if OPT['wnt'] else ''
    return [([f"s_xor_b32 s{sOff}, s{base}, {rel}", f"s_add_u32 m0, s{sWL}, {b}"], f"buffer_load_dwordx4 v{vW}, {sr(sW,4)}, s{sOff} offen{pol} lds"),
            ([f"s_xor_b32 s{sOff}, s{base}, {rel + 8192}", f"s_add_u32 m0, s{sWL}, {b + 1032}"], f"buffer_load_dwordx4 v{vW}, {sr(sW,4)}, s{sOff} offen{pol} lds")]
def kv_tile(m, t):
    b = ldsbase(m); s = sV if m & 1 else sK
    assert t < 16
    so = f"s_xor_b32 s{sOff}, s{sCX}, {t * 8192}"
    return [([so, f"s_add_u32 m0, s{sKVL}, {b}"], f"buffer_load_dwordx4 v{vKV}, {sr(s,4)}, s{sOff} offen nt lds"),
            ([f"s_add_u32 m0, s{sKVL}, {b + 32}"], f"buffer_load_dwordx4 v{vKV}, {sr(s,4)}, s{sOff} offen offset:1024 nt lds")]
def unit_pre(base, add):
    return [f"s_add_u32 s{sMv}, s{base}, {add}", f"s_xor_b32 s{sOff}, s{sMv}, s{sRot}", f"s_bfe_u32 s{sMv}, s{sMv}, 0x3000d", f"s_mul_i32 s{sMv}, s{sMv}, {TILE}",
            f"s_add_u32 s{sMk}, s{base}, {add + 8192}", f"s_xor_b32 s{sOff2}, s{sMk}, s{sRot}", f"s_bfe_u32 s{sMk}, s{sMk}, 0x3000d", f"s_mul_i32 s{sMk}, s{sMk}, {TILE}"]
def unit_dma(so_v=None, so_k=None):
    so_v = sOff if so_v is None else so_v; so_k = sOff2 if so_k is None else so_k
    return [([f"s_add_u32 m0, s{sMv}, s{sKVv}"], f"buffer_load_dwordx4 v{vKV}, {sr(sV,4)}, s{so_v} offen nt lds"),
            (["s_add_u32 m0, m0, 32"], f"buffer_load_dwordx4 v{vKV}, {sr(sV,4)}, s{so_v} offen offset:1024 nt lds"),
            ([f"s_add_u32 m0, s{sMk}, s{sKVL}"], f"buffer_load_dwordx4 v{vKV}, {sr(sK,4)}, s{so_k} offen nt lds"),
            (["s_add_u32 m0, m0, 32"], f"buffer_load_dwordx4 v{vKV}, {sr(sK,4)}, s{so_k} offen offset:1024 nt lds")]
def place_guarded(a, S, steps, gaps):
    for (pre, d), g in zip(steps, gaps):
        for k, x in enumerate(pre): S.h(g - len(pre) + k, x)
        def site(d=d):
            l = newlabel("sk"); a.e(f"s_cbranch_vccnz {l}"); a._emit(d); a.e(f"{l}:")
        S.v(g, site)
def wo_tile(m):
    b = ldsbase(m); h, t = divmod(m % 16, 8); r = t >> 1; rel = (t & 1) * 81920
    st = [([f"s_add_u32 s{sOff}, s{sH[r]}, {rel}", f"s_add_u32 m0, s{sKVL}, {b}"], f"buffer_load_dwordx4 v{vWo}, {sr(sWo,4)}, s{sOff} offen lds"),
          ([f"s_add_u32 s{sOff}, s{sH[r]}, {rel + 1280}", f"s_add_u32 m0, s{sKVL}, {b + 1056}"], f"buffer_load_dwordx4 v{vWo}, {sr(sWo,4)}, s{sOff} offen lds")]
    return st, ([f"s_add_u32 s{sH[r]}, s{sH[r]}, s{(sD0, sD1)[h]}"] if t & 1 else [])
def emit_tile(a, steps):
    for pre, d in steps:
        for x in pre: a.e(x)
        a._emit(d)
def place_tile(a, S, steps, gaps):
    for (pre, d), g in zip(steps, gaps):
        for k, x in enumerate(pre): S.h(g - len(pre) + k, x)
        S.v(g, lambda d=d: a._emit(d))
def rd_w(dst, m, i):
    h, o = slot(m); p, u = divmod(i, 2)
    return [f"ds_read_b64_tr_b16 {R(off(dst, 2*e), 2)}, v{(vWAl, vWAh)[h]} offset:{o + e*512 + p*64 + u*8}" for e in range(2)]
def vmw(a, n): a.raw_wait(f"s_waitcnt vmcnt({n})")

def rowred(a, op, regs, tmps):
    for w in (32, 16):
        for r, t in zip(regs, tmps): a.e(f"v_mov_b32 v{t}, v{r}")
        for r, t in zip(regs, tmps): a.e(f"v_permlane{w}_swap_b32 v{r}, v{t}")
        for r, t in zip(regs, tmps): a.e(f"{op} v{r}, v{r}, v{t}")

RDPOS = [0,1,2,3,4,5,7,8,9,10,12,13,14,15,17,18]
RDPOS_X = [2,3,5,6,8,9,11,12,14,15,16,17,18,19,20,21]

def code_touch(a, lo, hi, vaddr, vdst, back=False):
    if not OPT["ctouch"]: return
    l = newlabel("pc")
    a.e("s_getpc_b64 s[14:15]")
    a.e(f"{l}:")
    if back: a.e(f"s_sub_u32 s14, s14, {l}-{lo}"); a.e("s_subb_u32 s15, s15, 0")
    else: a.e(f"s_add_u32 s14, s14, {lo}-{l}"); a.e("s_addc_u32 s15, s15, 0")
    a.e(f"s_lshr_b32 s{sT2}, s2, 3"); a.e(f"s_lshl_b32 s{sT2}, s{sT2}, 2"); a.e(f"s_add_u32 s{sT2}, s{sT2}, s{sWv}"); a.e(f"s_lshl_b32 s{sT2}, s{sT2}, 7")
    a.e(f"v_and_b32 v{vaddr}, 3, v0"); a.e(f"v_lshlrev_b32 v{vaddr}, 14, v{vaddr}"); a.e(f"v_add_u32 v{vaddr}, s{sT2}, v{vaddr}")
    a.e(f"v_min_u32 v{vaddr}, {hi}-{lo}-4, v{vaddr}")
    a._emit(f"global_load_dword v{vdst}, v{vaddr}, s[14:15]")

def inbox_addr(va, vt):
    sc = [f"s_mul_i32 s{sT2}, s{sG}, {XG}", f"s_mul_i32 s{sT3}, s{sU}, {XD}", f"s_add_u32 s{sT2}, s{sT2}, s{sT3}",
          f"s_mul_i32 s{sT3}, s{sWv}, 1536", f"s_add_u32 s{sT2}, s{sT2}, s{sT3}", f"s_add_u32 s{sT2}, s{sT2}, {5*XP}"]
    ve = [f"v_lshrrev_b32 v{va}, 3, v0", f"v_min_u32 v{va}, 6, v{va}", f"v_mul_u32_u24 v{va}, 6144, v{va}", f"v_and_b32 v{vt}, 7, v0",
          f"v_min_u32 v{vt}, 5, v{vt}", f"v_lshl_add_u32 v{va}, v{vt}, 7, v{va}", f"v_add_u32 v{va}, s{sT2}, v{va}"]
    return sc, ve

def late_consts(a):
    w_ = 2 if OPT["wot"] else 1
    a.e(f"v_min_u32 v{vTo}, {20*w_-1}, v0"); a.e(f"v_lshlrev_b32 v{vTo}, 7, v{vTo}")
    a.e(f"s_mul_i32 s{sTmp}, s{sB}, {10240*w_}"); a.e(f"s_mul_i32 s{sT2}, s{sWv}, {2560*w_}"); a.e(f"s_add_u32 s{sTmp}, s{sTmp}, s{sT2}")
    a.e(f"v_add_u32 v{vTo}, s{sTmp}, v{vTo}")
    a.e("v_and_b32 v9, 56, v0"); a.e(f"s_lshl_b32 s{sTmp}, s{sWv}, 1"); a.e(f"v_add_u32 v9, s{sTmp}, v9")
    a.e("v_mul_u32_u24 v9, 1280, v9"); a.e("v_and_b32 v8, 7, v0")
    a.e(f"s_xor_b32 s{sTmp}, s{sU}, 7"); a.e(f"s_and_b32 s{sTmp}, s{sTmp}, 3"); a.e(f"s_lshl_b32 s{sTmp}, s{sTmp}, 1"); a.e(f"v_xor_b32 v8, s{sTmp}, v8")
    a.e(f"v_lshl_add_u32 v{vWo}, v8, 4, v9")

def x_block(j, rel, base_s, op="s_add_u32", lds=0):
    so = f"{op} s{sOff2}, s{base_s}, {rel + j*20480}" if base_s is not None else f"s_mov_b32 s{sOff2}, {rel + j*20480}"
    return [([so, f"s_add_u32 m0, s{sXL}, {j*2048 + lds}"], f"buffer_load_dwordx4 v{vX0}, {sr(sX,4)}, s{sOff2} offen{' nt' if OPT['xnt'] else ''} lds"),
            ([f"s_add_u32 m0, s{sXL}, {j*2048 + 1024 + lds}"], f"buffer_load_dwordx4 v{vX1}, {sr(sX,4)}, s{sOff2} offen{' nt' if OPT['xnt'] else ''} lds")]
def rd_xb(dst, j, s): return f"ds_read_b128 {R(dst,4)}, v{(vXA0, vXA1)[s]} offset:{j*2048}"

def end_sync(a, S, vm, keep=2):
    def w():
        n = min(len(a.lg), keep)
        a.raw_wait(f"s_waitcnt vmcnt({vm}) lgkmcnt({n})")
        a.lg = a.lg[len(a.lg) - n:] if n else []
    S.h(22, w); S.h(23, "s_barrier")

sSc = 14
SCALE = f"s_mov_b32 s{sSc}, {f32(math.log2(math.e) / math.sqrt(128.0))}"
def conv_ops(acc, pos, db, tmp):
    o_ = []; k = 0
    for p in range(4):
        for j in range(3):
            t = tmp[k % len(tmp)]; k += 1
            src = []
            for u in range(2):
                o = acc(pos, 2*p + u, j)
                for r in range(4):
                    if isinstance(o, tuple):
                        o_.append(f"v_accvgpr_read_b32 v{t+4*u+r}, a{o[1]+r}"); src.append(t + 4*u + r)
                    else: src.append(o + r)
            o_ += [f"v_mul_f32 v{x}, s{sSc}, v{x}" for x in src]
            d = Qf(j, p) if db is None else src[0]
            o_ += [f"v_cvt_pk_bf16_f32 v{d+r}, v{src[2*r]}, v{src[2*r+1]}" for r in range(4)]
            if db is not None and db != "keep":
                o_ += [f"v_accvgpr_write_b32 a{db + 12*p + 4*j + r}, v{d+r}" for r in range(4)]
    return o_
def free_slots(S):
    cap = []
    for k in range(len(S.mfs)):
        c = 2 - max(0, len(S.hold[k]) - 1)
        for f in S.vec[k]:
            t = f if isinstance(f, str) else f[0] if isinstance(f, tuple) else "vmem"
            c -= 2 if t.startswith(("vmem", "v_exp", "v_rcp")) else 1
        if "s_barrier" in S.hold[k]: c = 0
        cap.append(max(c, 0))
    for k in range(1, len(cap)):
        if cap[k] == 2 and cap[k-1] == 2: cap[k] = 1
    return cap
def fill_ops(S, ops, start=0):
    cap = free_slots(S); n = 0
    for k in range(start, len(cap)):
        for _ in range(cap[k]):
            if n < len(ops): S.v(k, ops[n]); n += 1
    return ops[n:]

def gcv(m, h):
    i, j = divmod(m, 3); p, u = divmod(i, 2); o = Or(i, j)
    return f"v_cvt_pk_bf16_f32 v{S_ + 12*p + 4*j + 2*u + h}, v{o+2*h}, v{o+2*h+1}"
CVS = [gcv(m, h) for m in range(24) for h in range(2)]
def gst(q, rel, base_s):
    p, j = divmod(q, 3)
    return ([f"s_add_u32 s{sOff2}, s{base_s}, {rel + (p*12 + j)*CH}"], f"buffer_store_dwordx4 {vr(S_ + 12*p + 4*j,4)}, v{vPt}, {sr(sP,4)}, s{sOff2} offen{['', ' sc1', ' nt', ' sc0'][OPT['stpol']]}")
def cv_plans():
    caps = [0 if g in (6, 11) else (1 if g in RDPOS else 2) for g in range(24)]
    last = []; ci = 0
    for g, cp in enumerate(caps):
        for _ in range(cp):
            if ci < 48 and ci // 2 + 4 <= g: last.append((g, ci)); ci += 1
    n = ci; first = []
    for g, cp in enumerate(caps):
        for _ in range(cp):
            if ci < 48: first.append((g, ci)); ci += 1
    assert ci == 48 and all(c // 2 > g for g, c in first)
    return last, first, n
PLAN_LAST, PLAN_FIRST, NLAST = cv_plans()

def Q2acc(pos, i, j): return (56 if pos == 0 else O_) + 12 * i + 4 * j
def X2reg(buf, j, s): return ("a", 24 * buf + 8 * j + 4 * s)
def q2mf(n, first):
    s, pos = divmod(n % 8, 2)
    return [mf(Q2acc(pos, i, j), Greg(n & 1, i), X2reg(s >> 1, j, s & 1), None if first and n < 2 else Q2acc(pos, i, j)) for i in range(8) for j in zj(i)]

def main_kernel():
    a = Asm()
    T = OPT["typ"]
    if OPT["st0"]: a._emit("s_memrealtime s[80:81]")
    a.e("s_cmp_ge_u32 s2, 256")
    a.e("s_cbranch_scc1 L_end")
    a.e("s_load_dwordx16 s[4:19], s[0:1], 0")
    a.e("s_load_dwordx4 s[20:23], s[0:1], 64")
    a.e("s_load_dwordx2 s[28:29], s[0:1], 96")
    a.e(f"s_bfe_u32 s{sBr}, s2, 0x10002")
    if not OPT["map84"]:
        a.e(f"s_and_b32 s{sB}, s2, 3"); a.e(f"s_lshl_b32 s{sB}, s{sB}, 2")
        a.e(f"s_bfe_u32 s{sTmp}, s2, 0x20003"); a.e(f"s_add_u32 s{sB}, s{sB}, s{sTmp}")
        a.e(f"s_lshr_b32 s{sU}, s2, 5")
    elif OPT["map84"] == 2:
        a.e(f"s_bfe_u32 s{sB}, s2, 0x40003")
        a.e(f"s_and_b32 s{sU}, s2, 3"); a.e(f"s_lshl_b32 s{sU}, s{sU}, 1")
        a.e(f"s_lshr_b32 s{sTmp}, s2, 7"); a.e(f"s_add_u32 s{sU}, s{sU}, s{sTmp}")
    else:
        a.e(f"s_and_b32 s{sB}, s2, 1"); a.e(f"s_lshl_b32 s{sB}, s{sB}, 3")
        a.e(f"s_bfe_u32 s{sTmp}, s2, 0x30003"); a.e(f"s_add_u32 s{sB}, s{sB}, s{sTmp}")
        a.e(f"s_bfe_u32 s{sU}, s2, 0x10001"); a.e(f"s_lshl_b32 s{sU}, s{sU}, 2")
        a.e(f"s_lshr_b32 s{sTmp}, s2, 6"); a.e(f"s_add_u32 s{sU}, s{sU}, s{sTmp}")
    a.e(f"s_lshl_b32 s{sG}, s{sBr}, 4"); a.e(f"s_add_u32 s{sG}, s{sG}, s{sB}")
    if T == 4: a.e(f"s_bfe_u32 s{sTyp}, s2, 0x10003")
    elif T == 3: a.e(f"s_andn2_b32 s{sTyp}, 1, s2")
    elif T == 2: a.e(f"s_and_b32 s{sTyp}, s2, 1")
    else: a.e(f"s_mov_b32 s{sTyp}, {T}")
    a.e("v_lshrrev_b32 v7, 6, v0")
    a.e("v_and_b32 v0, 63, v0")
    a.e(f"v_readfirstlane_b32 s{sWv}, v7")
    a.e("v_and_b32 v8, 15, v0")
    a.e("v_lshrrev_b32 v9, 4, v0")
    a.e("v_and_b32 v10, 1, v9"); a.e("v_lshlrev_b32 v10, 4, v10")
    a.e("v_lshrrev_b32 v11, 1, v9"); a.e("v_lshl_add_u32 v10, v11, 2, v10")
    a.e("v_lshrrev_b32 v11, 1, v7"); a.e("v_lshl_add_u32 v10, v11, 3, v10")
    a.e("v_and_b32 v11, 1, v7"); a.e("v_lshl_add_u32 v10, v11, 1, v10")
    a.e("v_lshlrev_b32 v10, 13, v10"); a.e(f"v_lshl_add_u32 v{vW}, v8, 4, v10")
    a.e("v_mul_u32_u24 v10, 48, v7"); a.e("v_lshrrev_b32 v11, 3, v0"); a.e("v_add_u32 v10, v10, v11")
    a.e("v_mul_u32_u24 v10, 1280, v10")
    a.e("v_and_b32 v11, 7, v0"); a.e("v_xor_b32 v11, v11, v9")
    a.e(f"v_lshl_add_u32 v{vX0}, v11, 4, v10")
    a.e("v_xor_b32 v11, 4, v11"); a.e("v_add_u32 v10, 10240, v10")
    a.e(f"v_lshl_add_u32 v{vX1}, v11, 4, v10")
    a.e(f"s_mul_i32 s{sKVL}, s{sWv}, 2112")
    a.e(f"s_mov_b32 s{sWL}, s{sKVL}")
    a.e(f"s_mul_i32 s{sXL}, s{sWv}, 6144"); a.e(f"s_add_u32 s{sXL}, s{sXL}, {XB}")
    a.e(f"s_mov_b32 s{sCur}, 0"); a.e(f"s_mov_b32 s{sXo}, 0"); a.e(f"s_mov_b32 s{sWq}, 0")
    a.raw_wait("s_waitcnt lgkmcnt(0)")
    a.e(f"s_cmp_eq_u32 s{sBr}, 0")
    a.e("s_cselect_b64 s[4:5], s[4:5], s[14:15]")
    a.e("s_cselect_b64 s[6:7], s[6:7], s[16:17]")
    a.e("s_cselect_b64 s[8:9], s[8:9], s[18:19]")
    a.e("s_cselect_b64 s[10:11], s[10:11], s[20:21]")
    a.e("s_cselect_b64 s[12:13], s[12:13], s[22:23]")
    a.e("s_load_dwordx4 s[16:19], s[0:1], 80")
    a.e(f"s_mul_i32 s{sTmp}, s{sB}, 245760")
    srd(a, sX, 4, f"s{sTmp}", 245760)
    a.e(f"s_lshl_b32 s{sTmp}, s{sU}, 10")
    srd(a, sW, 10, f"s{sTmp}", 639 * 8192 + 1024)
    if OPT["krot"]: a.e(f"s_xor_b32 s{sJ}, s{sB}, s{sU}"); a.e(f"s_and_b32 s{sJ}, s{sJ}, 3")
    else: a.e(f"s_mov_b32 s{sJ}, 0")
    if OPT["hrot"]: a.e(f"s_cmp_lg_u32 s{sTyp}, 0"); a.e(f"s_cselect_b32 s{sJh}, 1, 3"); a.e(f"s_and_b32 s{sJh}, s{sJh}, s{sJ}")
    else: a.e(f"s_mov_b32 s{sJh}, 0")
    a.e(f"s_lshl_b32 s{sWq}, s{sJ}, 18"); a.e(f"s_lshl_b32 s{sTmp}, s{sJh}, 8"); a.e(f"s_or_b32 s{sWq}, s{sWq}, s{sTmp}"); a.e(f"s_add_u32 s{sWq1}, s{sWq}, {1 << 20}")
    a.e(f"s_lshr_b32 s{sXo}, s{sJ}, 1"); a.e(f"s_lshl_b32 s{sXo}, s{sXo}, 7")
    if not OPT['st0']: stamp(a, 0)
    stamp(a, 1, False)
    def common_consts():
        if OPT["rot"] == 2: a.e(f"s_bfe_u32 s{sRot}, s2, 0x40003"); a.e(f"s_lshl_b32 s{sRot}, s{sRot}, 13")
        elif OPT["rot"] == 3: a.e(f"s_bfe_u32 s{sRot}, s2, 0x40001"); a.e(f"s_lshl_b32 s{sRot}, s{sRot}, 13")
        elif OPT["rot"] == 4:
            a.e(f"s_mul_i32 s{sRot}, s2, 0x9e3779b1"); a.e(f"s_lshr_b32 s{sRot}, s{sRot}, 28"); a.e(f"s_lshl_b32 s{sRot}, s{sRot}, 13")
        elif OPT["rot"] == 5: a.e(f"s_bfe_u32 s{sRot}, s2, 0x20003"); a.e(f"s_lshl_b32 s{sRot}, s{sRot}, 15")
        elif OPT["rot"]:
            a.e(f"s_lshr_b32 s{sRot}, s2, 4"); a.e(f"s_xor_b32 s{sRot}, s{sRot}, s2"); a.e(f"s_and_b32 s{sRot}, s{sRot}, 15"); a.e(f"s_lshl_b32 s{sRot}, s{sRot}, 13")
        else: a.e(f"s_mov_b32 s{sRot}, 0")
        a.e(f"s_lshl_b32 s{sCur}, s{sJh}, 17"); a.e(f"s_or_b32 s{sRot}, s{sRot}, s{sCur}")
        assert not OPT["hrot"]
        a.e(f"s_mov_b32 s{sCX}, s{sRot}"); a.e(f"s_add_u32 s{sKVv}, s{sKVL}, {VB}")
        a.e("v_bfe_u32 v10, v0, 2, 3")
        a.e("v_lshrrev_b32 v11, 1, v10"); a.e("v_lshlrev_b32 v11, 6, v11"); a.e(f"v_lshl_add_u32 v{vWAl}, v10, 10, v11")
        a.e("v_and_b32 v11, 1, v10"); a.e(f"v_lshl_add_u32 v{vWAl}, v11, 3, v{vWAl}")
        a.e("v_lshrrev_b32 v11, 5, v0"); a.e(f"v_lshl_add_u32 v{vWAl}, v11, 8, v{vWAl}")
        a.e("v_mul_u32_u24 v10, 1056, v10"); a.e("v_lshl_add_u32 v10, v11, 8, v10")
        a.e("v_and_b32 v11, 3, v0"); a.e(f"v_lshl_add_u32 v{vWAl}, v11, 4, v{vWAl}")
        a.e(f"v_lshl_add_u32 v10, v11, 3, v10"); a.e(f"v_add_u32 v{vVA}, {VB}, v10")
        a.e(f"v_add_u32 v{vWAh}, {VB}, v{vWAl}")
        a.e("v_and_b32 v10, 7, v8"); a.e("v_mul_u32_u24 v10, 1056, v10")
        a.e("v_lshrrev_b32 v11, 3, v8"); a.e(f"v_lshl_add_u32 v10, v11, 8, v10")
        a.e(f"v_lshl_add_u32 v{vKA}, v9, 4, v10")
        a.e("v_lshlrev_b32 v10, 4, v0"); a.e(f"v_lshl_add_u32 v{vKV}, v7, 11, v10")
        a.e(f"v_lshlrev_b32 v10, 7, v8"); a.e(f"v_add_u32 v10, s{sXL}, v10")
        a.e("v_lshrrev_b32 v11, 1, v8"); a.e("v_xor_b32 v11, v11, v9")
        a.e(f"s_and_b32 s{sTmp}, s{sJ}, 1"); a.e(f"s_lshl_b32 s{sTmp}, s{sTmp}, 2"); a.e(f"v_xor_b32 v11, s{sTmp}, v11")
        a.e(f"v_lshl_add_u32 v{vXA0}, v11, 4, v10")
        a.e("v_xor_b32 v11, 4, v11"); a.e(f"v_lshl_add_u32 v{vXA1}, v11, 4, v10")
        a.e(f"s_lshl_b32 s{sTmp}, s{sB}, 3"); a.e(f"s_add_u32 s{sTmp}, s{sTmp}, s{sU}"); a.e(f"s_lshl_b32 s{sTmp}, s{sTmp}, 19")
        srd(a, sK, 6, f"s{sTmp}", 4 * 131072)
        srd(a, sV, 8, f"s{sTmp}", 4 * 131072)
        a.e(f"s_mul_i32 s{sTmp}, s{sU}, {512*1280}")
        srd(a, sWo, 12, f"s{sTmp}", 512 * 1280)
        for r in range(4): a.e(f"s_xor_b32 s{sH[r]}, s{sJh}, {r}"); a.e(f"s_mul_i32 s{sH[r]}, s{sH[r]}, 163840")
        a.e(f"s_mov_b32 s{sKn}, 0"); a.e(f"s_mov_b32 s{sMin}, {3*8192}")
        a.e(f"s_cmp_lt_u32 s{sU}, 4")
        a.e(f"s_cselect_b32 s{sTmp}, 128, 0"); a.e(f"s_mov_b32 s{sD0}, 128"); a.e(f"s_cselect_b32 s{sD0}, -128, s{sD0}")
        a.e(f"s_sub_u32 s{sD1}, 256, s{sD0}")
        for r in range(4): a.e(f"s_add_u32 s{sH[r]}, s{sH[r]}, s{sTmp}")
        a.e(f"s_lshl_b32 s{sTmp}, s{sG}, 12"); a.e(f"s_add_u32 s{sTmp}, s{sTmp}, {FLG}")
        srd(a, sF, 28, f"s{sTmp}", 4096)
    def touch0(three):
        if OPT["t0x"]:
            a.e("v_min_u32 v10, 59, v0"); a.e("v_lshlrev_b32 v10, 7, v10")
            a.e(f"s_lshl_b32 s{sTmp}, s{sU}, 2"); a.e(f"s_add_u32 s{sTmp}, s{sTmp}, s{sWv}"); a.e(f"s_mul_i32 s{sTmp}, s{sTmp}, 7680")
            a._emit(f"buffer_load_dword v11, v10, {sr(sX,4)}, s{sTmp} offen")
        if OPT["t0w"] and three:
            a.e("v_lshrrev_b32 v14, 2, v0"); a.e("v_lshlrev_b32 v14, 13, v14"); a.e("v_and_b32 v15, 3, v0"); a.e("v_lshl_add_u32 v14, v15, 7, v14")
            a.e(f"s_and_b32 s{sTmp}, s{sB}, 3"); a.e(f"s_lshl_b32 s{sTmp}, s{sTmp}, 2"); a.e(f"s_add_u32 s{sTmp}, s{sTmp}, s{sWv}"); a.e(f"s_lshl_b32 s{sTmp}, s{sTmp}, 17")
            for k in range(3):
                a.e(f"s_add_u32 s{sT2}, s{sTmp}, {k*256*8192}")
                a._emit(f"buffer_load_dword v{16+k}, v14, {sr(sW,4)}, s{sT2} offen")
    def part_srd(slot_expr, size):
        a.e(f"s_mul_i32 s{sTmp}, s{sG}, {PART}"); slot_expr(); a.e(f"s_lshl_b32 s{sT2}, s{sT2}, 10"); a.e(f"s_add_u32 s{sTmp}, s{sTmp}, s{sT2}")
        srd(a, sP, 28, f"s{sTmp}", size)
    NF = OPT["first"]
    LA = OPT['la']
    def wpos(n): return 8 + n % 8
    def rd_x(buf): return [rd_xb(Xreg(buf, j, s), j, s) for s in range(2) for j in range(3)]
    NF = 2
    def setup(lab):
        if not OPT["pro2"]: common_consts()
        code_touch(a, lab, "L_altwo" if not OPT["ct2"] else (("L_p0end" if OPT["pro2"] else "L_p1") if lab == "L_q" else "L_enter"), 10, 11)
        a.e(f"s_mov_b32 s{sR}, 0")
        if not OPT["ramp"]: late_setup()
    def late_setup():
        a.e(f"s_lshl_b32 s{sTmp}, s{sU}, 9"); a.e(f"s_lshl_b32 s{sT2}, s{sWv}, 7"); a.e(f"s_add_u32 s{sTmp}, s{sTmp}, s{sT2}")
        a.e("v_and_b32 v8, 7, v0"); a.e(f"v_lshlrev_b32 v8, 2, v8"); a.e("v_mov_b32 v7, 0")
        a._emit(f"buffer_store_dword v7, v8, {sr(sF,4)}, s{sTmp} offen sc1")
        emit_tile(a, kv_tile(0, 0))
    def bootstrap():
        l = newlabel("boot")
        a.e(f"s_cmp_lg_u32 s{sWv}, 0"); a.e(f"s_cbranch_scc1 {l}")
        a.e(f"s_lshl_b32 s{sTmp}, s{sG}, 2"); a.e(f"s_add_u32 s{sTmp}, s{sTmp}, 128")
        a.e(f"v_mov_b32 v157, s{sTmp}")
        a.e(f"s_getreg_b32 s{sT2}, hwreg(HW_REG_XCC_ID, 0, 4)")
        a.e(f"s_mul_i32 s{sT3}, s{sT2}, s{sT2}"); a.e(f"s_lshl_b32 s{sT3}, s{sT3}, 8"); a.e(f"s_add_u32 s{sT3}, s{sT3}, s{sT2}")
        a.e(f"s_lshl_b32 s{sT3}, s{sT3}, 8"); a.e(f"s_add_u32 s{sPK}, s{sT3}, 1"); a.e(f"v_mov_b32 v158, s{sPK}")
        a.e("s_mov_b64 exec, 1")
        a._emit("global_atomic_add v157, v158, s[18:19]")
        a.e("s_mov_b64 exec, -1")
        a.e(f"{l}:")
    if OPT["stag"]:
        a.e(f"s_and_b32 s{sT2}, s{sB}, 3") if OPT["stag"] < 100 else a.e(f"s_and_b32 s{sT2}, s{sU}, 3")
        a.e("L_stag:"); a.e(f"s_cmp_eq_u32 s{sT2}, 0"); a.e("s_cbranch_scc1 L_stag2"); a.e(f"s_sleep {OPT['stag'] % 100}"); a.e(f"s_sub_u32 s{sT2}, s{sT2}, 1"); a.e("s_branch L_stag"); a.e("L_stag2:")
    if OPT["pro2"]:
        a.e(f"s_cmp_lg_u32 s{sTyp}, 0")
        a.e(f"s_cselect_b32 s{sT2}, {XB - VB}, 0"); a.e(f"s_cselect_b32 s{sT3}, 0, 512")
        a.e(f"s_sub_u32 s{sT2}, s{sXL}, s{sT2}"); a.e(f"s_xor_b32 s{sT3}, s{sWq}, s{sT3}")
        def sub(st, x, y): return [([p_.replace(x, y) for p_ in pre], d) for pre, d in st]
        emit_tile(a, sub(w_tile(wpos(0), 0, 2), f"s{sWq},", f"s{sT3},"))
        for j in range(3): emit_tile(a, sub(x_block(j, 0, sXo), f"s{sXL},", f"s{sT2},"))
        emit_tile(a, sub(w_tile(wpos(1), 1, 2), f"s{sWq},", f"s{sT3},"))
        common_consts()
        a.e(f"s_cmp_eq_u32 s{sTyp}, 0")
        a.e("s_cbranch_scc1 L_p0")
        a.e("L_split:")
        a.e("L_p0:")
    else:
        a.e(f"s_cmp_lg_u32 s{sTyp}, 0")
        a.e("s_cbranch_scc1 L_p1")
        for j in range(3): emit_tile(a, x_block(j, 0, sXo))
        for n in range(NF): emit_tile(a, w_tile(wpos(n), n))
    setup("L_q")
    if OPT["help"]:
        if T == 3:
            a.e(f"s_sub_u32 s{sP}, s{sX}, {4*245760}"); a.e(f"s_subb_u32 s{sP+1}, s{sX+1}, 0")
        else:
            a.e(f"s_add_u32 s{sP}, s{sX}, {4*245760}"); a.e(f"s_addc_u32 s{sP+1}, s{sX+1}, 0")
        a.e(f"s_mov_b32 s{sP+2}, 245760"); a.e(f"s_mov_b32 s{sP+3}, 0x20000")
        a.e("v_min_u32 v8, 59, v0"); a.e("v_lshlrev_b32 v8, 7, v8")
        a.e(f"s_lshl_b32 s{sTmp}, s{sU}, 2"); a.e(f"s_add_u32 s{sTmp}, s{sTmp}, s{sWv}"); a.e(f"s_mul_i32 s{sTmp}, s{sTmp}, 7680")
        a._emit(f"buffer_load_dword v9, v8, {sr(sP,4)}, s{sTmp} offen")
        if OPT["help"] & 2:
            a.e("v_lshrrev_b32 v8, 2, v0"); a.e("v_lshlrev_b32 v8, 13, v8"); a.e("v_and_b32 v10, 3, v0"); a.e("v_lshl_add_u32 v8, v10, 7, v8")
            a.e(f"s_lshr_b32 s{sTmp}, s{sB}, 3"); a.e(f"s_lshl_b32 s{sTmp}, s{sTmp}, 2"); a.e(f"s_and_b32 s{sT2}, s{sB}, 3"); a.e(f"s_add_u32 s{sTmp}, s{sTmp}, s{sT2}")
            a.e(f"s_lshl_b32 s{sTmp}, s{sTmp}, 2"); a.e(f"s_add_u32 s{sTmp}, s{sTmp}, s{sWv}"); a.e(f"s_mul_i32 s{sTmp}, s{sTmp}, {20*8192}")
            a._emit(f"buffer_load_dword v9, v8, {sr(sW,4)}, s{sTmp} offen")
            a.e(f"s_add_u32 s{sTmp}, s{sTmp}, {4*8192}")
            a._emit(f"buffer_load_dword v9, v8, {sr(sW,4)}, s{sTmp} offen")
    a.e(f"s_mov_b32 s{sPre}, 15")
    for r in range(256):
        if r % 40 == 0 and NF + r // 40 < LA: emit_tile(a, w_tile(wpos(NF + r // 40), NF + r // 40))
        a.e(f"v_accvgpr_write_b32 a{r}, 0")
    for r in list(range(124, 156)) + list(range(160, 256)): a.e(f"v_mov_b32 v{r}, 0")
    if OPT["woq"]:
        a.e(f"s_lshr_b32 s{sTmp}, s{sB}, 3"); a.e(f"s_lshl_b32 s{sTmp}, s{sTmp}, 2"); a.e(f"s_and_b32 s{sT2}, s{sB}, 3"); a.e(f"s_add_u32 s{sTmp}, s{sTmp}, s{sT2}")
        a.e(f"s_lshl_b32 s{sTmp}, s{sTmp}, 2"); a.e(f"s_add_u32 s{sTmp}, s{sTmp}, s{sWv}"); a.e(f"s_mul_i32 s{sTmp}, s{sTmp}, 5120")
        a.e("v_min_u32 v7, 39, v0"); a.e(f"v_lshl_add_u32 v7, v7, 7, s{sTmp}")
    a.raw_wait(f"s_waitcnt vmcnt({2 * (LA - 2)}) lgkmcnt(0)")
    a.e("s_barrier")
    for r in rd_x(0): a.e(r)
    for i in range(8):
        for r in rd_w(Wreg(0, i), wpos(0), i): a.e(r)
    a.raw_wait("s_waitcnt lgkmcnt(0)"); a.lg = []
    if OPT["qprof"] == 1: stamp(a, 5); stamp(a, 6, False)
    def lperm(n, last):
        return 8 + 4 * ((n - 8) & 1) + ((n - 8) >> 1) if last and OPT["cvo"] and 8 <= n < 16 else n
    def qmf(n, last=False):
        s, pos = divmod(lperm(n, last) % 16, 4)
        return [mf(Qacc(pos, i, j), Wreg(n & 1, i), Xreg((s >> 1) & 1, j, s & 1), Qacc(pos, i, j)) for i in range(8) for j in zj(i)]
    cvq = conv_ops(Qacc, 0, QBANK[3], [76, 84, 92])
    def early(S, half, h0, gaps):
        pre = [x.replace(f"s{sOff},", f"s{sOff2},") for x in unit_pre(sKn, 0)[4*half:4*half+4]]
        if half == 0: pre = [f"s_cmp_ge_u32 s{sKn}, s{sMin}", "s_cselect_b64 vcc, -1, 0", f"s_cselect_b32 s{sC1}, 0, 8192"] + pre
        else: pre = pre + [f"s_add_u32 s{sKn}, s{sKn}, s{sC1}"]
        for x, h_ in zip(pre, h0): S.h(h_, x)
        place_guarded(a, S, unit_dma(sOff2, sOff2)[2*half:2*half+2], gaps)
    def q_group(last):
        for n in range(16):
            a.c(f"Q sub-step {n}{' (last group)' if last else ''}")
            S = Sched(a, qmf(n, last))
            fin = last and n == 15
            q = n % 8
            xrd = q in (6, 7) and not (last and n >= 8)
            if not fin:
                rds = []
                for i in range(8): rds += rd_w(Wreg((n + 1) & 1, i), wpos(n + 1), i)
                for r, p in zip(rds, RDPOS): S.v(p, r)
                m = n + LA
                if not last or m < 16: place_tile(a, S, w_tile(wpos(m), lperm(m, last)), (6, 11))
                KVN = {8: 7, 9: 8, 10: 9, 11: 10, 12: 11, 13: 12} if not OPT["kvconv"] else {4: 7, 11: 8} if OPT["kvconv"] == 1 else {4: 7}
                if last and n in KVN: place_tile(a, S, kv_tile(KVN[n], KVN[n] >> 1), (16, 19))
                if not (last and n == 14):
                    hi = min(m, 15) if last else m
                    ykv = len([k for k in KVN if n + 2 - LA <= k <= n]) if last else 0
                    end_sync(a, S, 2 * (hi - (n + 2)) + 2 * ykv, 5 if xrd else 2)
            if xrd:
                rx = rd_x(((n >> 3) + 1) & 1)[3*(q-6):3*(q-6)+3]
                if q == 6: S.h(16, lambda: vmw(a, 8))
                for r, p in zip(rx, (19, 20, 21)): S.v(p, (r, "xr"))
            if q in (0, 1, 2) and not (last and n >= 8):
                if q == 0: S.h(12, lambda: a.wait(lg="xr"))
                place_tile(a, S, x_block(q, 128, sXo, "s_xor_b32") if n < 8 else x_block(q, 256, sXo), (16, 19))
            if n in (11, 12) and not last: early(S, n - 11, (0, 1, 2, 3, 7, 8, 12), (16, 19))
            if n == 4 and not last and OPT["woq"]:
                S.h(13, f"s_lshr_b32 s{sOff2}, s{sXo}, 8"); S.h(14, f"s_mul_i32 s{sOff2}, s{sOff2}, 163840")
                S.v(16, lambda: a._emit(f"buffer_load_dword v9, v7, {sr(sWo,4)}, s{sOff2} offen"))
            if n == 15 and not last:
                S.h(12, f"s_mov_b32 s{sWq}, s{sWq1}")
                S.h(13, f"s_add_u32 s{sWq1}, s{sWq1}, {1 << 20}")
                S.h(14, f"s_add_u32 s{sXo}, s{sXo}, 256")
                S.h(15, f"s_cmp_lt_u32 s{sXo}, 1024")
            if last and n == 3: S.h(1, SCALE)
            if last and n >= 10 and OPT["cvo"]: cvq[:] = fill_ops(S, cvq, 4 if n == 10 else 0)
            S.emit(None if fin else qmf(n + 1, last)[0])
    a.e(".p2align 6")
    a.e("L_q:")
    if OPT["qprof"] == 3:
        a.e(f"s_lshr_b32 s{sT3}, s{sXo}, 8"); stamp_dyn(a, 4, sT3, 4)
    mark = len(a.ins); nops0 = a.nops
    q_group(False)
    lg_end = list(a.lg)
    del a.ins[mark:]; a.nops = nops0
    q_group(False)
    assert a.lg == lg_end
    a.e("s_cbranch_scc1 L_q")
    if OPT["ct2"]: code_touch(a, "L_enter", "L_q2b" if T else "L_altwo", 10, 11, back=bool(OPT["pro2"]))
    if OPT["ramp"]: late_setup()
    if OPT["qprof"] == 3: stamp(a, 8)
    q_group(True)
    if OPT["qprof"] == 1: stamp(a, 7); stamp(a, 8, False)
    stamp(a, 3)
    a.c("Q conversion")
    tmp = [60 + 8 * k for k in range(8)]
    rest = cvq + conv_ops(Qacc, 1, QBANK[2], tmp) + conv_ops(Qacc, 2, QBANK[1], tmp) + conv_ops(Qacc, 3, None, tmp)
    steps = [s_ for m in range(10 - OPT["kvconv"], 13) for s_ in kv_tile(m, m >> 1)] if OPT["kvconv"] else []
    at = {int((k + 0.3) * len(rest) / len(steps)): s_ for k, s_ in enumerate(steps)}
    for k, x in enumerate(rest):
        if k in at:
            for y in at[k][0]: a.e(y)
        a.e(x)
        if k in at: a._emit(at[k][1])
    late_consts(a)
    bootstrap()
    a.e("s_branch L_enter")
    a.e("L_p1:")
    a.lg = []
    if not OPT["pro2"]:
        for j in range(3): emit_tile(a, x_block(j, 0, sXo, lds=VB-XB))
        for n in range(NF): emit_tile(a, w_tile(wpos(n), n, 2))
    a.e(f"s_xor_b32 s{sXo1}, s{sXo}, 128")
    for j in range(3): emit_tile(a, x_block(j, 0, sXo1))
    setup("L_q2")
    late_consts(a)
    a.e(f"s_mov_b32 s{sPre}, 1")
    assert OPT["cvo"] or not OPT["lateq"]
    if OPT["lateq"]: a.e(f"s_mov_b32 s{sMin}, 0")
    L0 = 5 if OPT["ramp"] else LA
    assert not OPT["ramp"] or (OPT["latekv"] and LA == 7 and OPT["ct2"])
    for n in range(NF, L0): emit_tile(a, w_tile(wpos(n), n, 2))
    a.e(f"v_subrev_u32 v12, {XB-VB}, v{vXA0}"); a.e(f"v_subrev_u32 v13, {XB-VB}, v{vXA1}")
    a.raw_wait(f"s_waitcnt vmcnt({2 * (L0 - 2)}) lgkmcnt(0)")
    for j in range(3):
        for s in range(2): a.e(f"ds_read_b128 {R(X2reg(0, j, s),4)}, v{12+s} offset:{j*2048}")
    a.e("L_q2go:")
    a.e("s_barrier")
    for i in range(8):
        for r in rd_w(Greg(0, i), wpos(0), i): a.e(r)
    a.raw_wait("s_waitcnt lgkmcnt(0)"); a.lg = []
    def q2_group(kind):
        first, last = kind == 0, kind == 2
        for n in range(8):
            a.c(f"Q2 sub-step {n} ({('first', 'loop', 'last')[kind]})")
            S = Sched(a, q2mf(n, first))
            cl, q = divmod(n, 4)
            fin = last and n == 7
            xrd = q < 3 and not (last and cl == 1)
            def xd(k): return k % 4 < 3 and not (last and k >= 0) and not (first and k < 0)
            def wd(k): return not (last and k + LA >= 8)
            def kd(k): return last and 0 <= k <= 5
            if not fin:
                rds = []
                for i in range(8): rds += rd_w(Greg((n + 1) & 1, i), wpos(n + 1), i)
                for r, p in zip(rds, RDPOS_X): S.v(p, r)
            rampd = first and OPT["ramp"]
            if rampd:
                m0_ = n + 5 + (n > 3)
                place_tile(a, S, w_tile(wpos(m0_), m0_, 2), (4, 7))
                if q == 3: place_tile(a, S, w_tile(wpos(m0_ + 1), m0_ + 1, 2), (10, 13))
            elif wd(n): place_tile(a, S, w_tile(wpos(n + LA), n + LA, 2), (4, 7))
            if kd(n): place_tile(a, S, kv_tile(7 + n, (7 + n) >> 1), (10, 13))
            if xrd:
                for s in range(2): S.v(s, (rd_xb(X2reg(1 - cl, q, s), q, s), "xr"))
            if xd(n):
                S.h(7, lambda: a.wait(lg="xr"))
                place_tile(a, S, x_block(q, 256, (sXo, sXo1)[cl]), (10, 13))
            if q == 3 and not last and not (first and OPT['latekv']): early(S, cl, (0, 0, 1, 1, 4, 7, 8) if cl == 0 else (0, 0, 1, 1, 4), (10, 13))
            if n == 7 and not last:
                S.h(16, f"s_mov_b32 s{sWq}, s{sWq1}")
                S.h(17, f"s_add_u32 s{sWq1}, s{sWq1}, {1 << 20}")
                S.h(18, f"s_add_u32 s{sXo1}, s{sXo1}, 256")
                S.h(19, f"s_add_u32 s{sXo}, s{sXo}, 256")
                S.h(20, f"s_cmp_lt_u32 s{sXo}, 1024")
            if not (last and n >= 6):
                k0 = n + 2 - LA
                vm = sum(2 * wd(k) for k in range(k0 + 1, n + 1)) + sum(2 * kd(k) for k in range(k0, n + 1))
                if (n + 1) % 4 < 3 and not (last and n + 1 >= 4) and xd(n - 3):
                    vm = min(vm, sum(2 * wd(k) + 2 * xd(k) + 2 * kd(k) for k in range(n - 2, n + 1)))
                if rampd and n == 0: vm = min(vm, 8)
                if n == 7 and OPT['cvo']: vm = min(vm, 8)
                end_sync(a, S, vm, 5)
            S.emit(None if fin else q2mf(n + 1, first and n < 7)[0])
    a.e("L_q2:")
    q2_group(0)
    lg_in = list(a.lg)
    a.e(".p2align 6")
    a.e("L_q2l:")
    q2_group(1)
    assert a.lg == lg_in
    a.e("s_cbranch_scc1 L_q2l")
    if OPT["ct2"]:
        l = newlabel("ct")
        a.e(f"s_cmp_lg_u32 s{sR}, 0"); a.e(f"s_cbranch_scc1 {l}")
        code_touch(a, "L_enter", "L_q2b" if T else "L_altwo", 10, 11)
        if OPT["ramp"]: late_setup()
        a.e(f"{l}:")
    cv2 = conv_ops(Q2acc, 0, "keep", [0])
    if not OPT["cvo"]:
        q2_group(2); a.e(SCALE)
    else:
        order = [0, 2, 4, 6, 1, 3, 5, 7]
        def mfs(n):
            s, pos = divmod(order[n], 2)
            return [mf(Q2acc(pos, i, j), Greg(n & 1, i), X2reg(s >> 1, j, s & 1), Q2acc(pos, i, j)) for i in range(8) for j in zj(i)]
        kvat = {0: [7], 1: [8], 5: [9, 10], 6: [11, 12]}
        for n in range(8):
            a.c(f"Q2 sub-step {n} (last)")
            S = Sched(a, mfs(n))
            if n < 7:
                rds = []
                for i in range(8): rds += rd_w(Greg((n + 1) & 1, i), wpos(order[n + 1]), i)
                for r, p in zip(rds, RDPOS_X): S.v(p, r)
            if n == 0:
                place_tile(a, S, w_tile(wpos(7), 7, 2), (4, 7)); S.h(14, SCALE)
                for s in range(2): S.v(s, rd_xb(X2reg(1, 0, s), 0, s))
            if n == 1:
                for k, p in enumerate((0, 1, 4, 7)): S.v(p, rd_xb(X2reg(1, 1 + (k >> 1), k & 1), 1 + (k >> 1), k & 1))
            for m, gp in zip(kvat.get(n, []), ((10, 13),) if n < 2 else ((4, 7), (10, 13))):
                un, half = divmod(m - 7, 2)
                pre = [x.replace(f"s{sOff},", f"s{sOff2},") for x in unit_pre(sKn, un * 8192)[4*half:4*half+4]]
                if gp[0] == 4: pre = [x.replace(f"s{sOff2},", f"s{sOff},") for x in pre]
                for x, h_ in zip(pre, (0, 0, 1, 2) if gp[0] == 4 else (0, 1, 4, 8) if n < 2 else (4, 5, 7, 8)): S.h(h_, x)
                so = sOff if gp[0] == 4 else sOff2
                place_tile(a, S, unit_dma(so, so)[2*half:2*half+2], gp)
            if n < 6: end_sync(a, S, {0: 6, 1: 6, 5: 8}.get(n, 20), 5)
            if n >= 4: cv2 = fill_ops(S, cv2, 4 if n == 4 else 0)
            S.emit(mfs(n + 1)[0] if n < 7 else None)
    if OPT["stamp"] and not OPT["qprof"]:
        a.e(f"s_lshr_b32 s{sT2}, s{sR}, 1"); stamp_dyn(a, 3, sT2, 2)
    a.c("Q2 conversion")
    for x in cv2: a.e(x)
    def bank_write(db, src):
        return [f"v_accvgpr_write_b32 a{db + 12*p + 4*j + x}, v{src(p, j)+x}" for p in range(4) for j in range(3) for x in range(4)]
    a.e(f"s_cmp_lg_u32 s{sR}, 0"); a.e("s_cbranch_scc1 L_cv2b")
    if OPT["touch"]:
        a.e("v_min_u32 v8, 39, v0"); a.e("v_lshrrev_b32 v9, 2, v8"); a.e("v_lshlrev_b32 v9, 13, v9")
        a.e("v_and_b32 v8, 3, v8"); a.e("v_lshl_add_u32 v9, v8, 7, v9")
        a.e(f"s_lshl_b32 s{sTmp}, s{sB}, 2"); a.e(f"s_add_u32 s{sTmp}, s{sTmp}, s{sWv}"); a.e(f"s_mul_i32 s{sTmp}, s{sTmp}, {10*8192}")
        a.e(f"s_add_u32 s{sTmp}, s{sTmp}, 512")
        a._emit(f"buffer_load_dword v{vD}, v9, {sr(sW,4)}, s{sTmp} offen")
    a.e(f"s_and_b32 s{sWq}, s{sWq}, 0xfffff"); a.e(f"s_xor_b32 s{sWq}, s{sWq}, 512"); a.e(f"s_add_u32 s{sWq1}, s{sWq}, {1 << 20}")
    a.e(f"s_and_b32 s{sXo}, s{sXo}, 128"); a.e(f"s_xor_b32 s{sXo1}, s{sXo}, 128")
    for x in bank_write(QBANK[1], lambda p, j: Q2acc(0, 2*p, j)): a.e(x)
    a.e("s_branch L_cv2c")
    a.e("L_cv2b:")
    if OPT["emu3"]:
        a.e(f"s_cmp_eq_u32 s{sPre}, 1"); a.e("s_cbranch_scc0 L_cv2d")
        a.e(f"s_mov_b32 s{sPre}, 14")
        a.e(f"s_and_b32 s{sWq}, s{sWq}, 0xfffff"); a.e(f"s_add_u32 s{sWq1}, s{sWq}, {1 << 20}")
        a.e(f"s_and_b32 s{sXo}, s{sXo}, 128"); a.e(f"s_xor_b32 s{sXo1}, s{sXo}, 128")
        a.raw_wait("s_waitcnt vmcnt(0)"); a.e("s_barrier")
        for n in range(LA): emit_tile(a, w_tile(wpos(n), n, 2))
        a.raw_wait("s_waitcnt vmcnt(0)")
        a.e("s_branch L_q2go")
        a.e("L_cv2d:")
    a.e("s_nop 7")
    for x in bank_write(QBANK[3], lambda p, j: Q2acc(0, 2*p, j)): a.e(x)
    bootstrap()
    a.e("L_cv2c:")
    for x in conv_ops(Q2acc, 1, None, [0]): a.e(x)
    a.e("L_enter:")
    a.e(f"v_mov_b32 v{vT}, 0x3f803f80")
    if OPT["sparse1"]:
        a.e(f"v_and_b32 v{vT+1}, 3, v0"); a.e(f"v_cmp_eq_u32 vcc, 0, v{vT+1}"); a.e(f"v_cndmask_b32 v{vT}, 0, v{vT}, vcc")
    for r in range(4): a.e(f"v_accvgpr_write_b32 a{ONES[1]+r}, v{vT}")
    def rd_k(dst, t, u): return [f"ds_read_b128 {vr(dst + 4*ks,4)}, v{vKA} offset:{(t % 8)*TILE + u*512 + ks*64}" for ks in range(4)]
    def rd_v(t, half, fr=VF):
        return [f"ds_read_b64_tr_b16 {vr(fr + 4*i + 2*e, 2)}, v{vVA} offset:{(t % 8)*TILE + e*512 + (4*half+i)*32}" for i in range(4) for e in range(2)]
    a.e(f"s_sub_u32 s{sBL}, s{sKn}, {3*8192}"); a.e(f"s_sub_u32 s{sMin}, s{sCur}, {OPT['lmax']*8192}")
    assert OPT["cvo"] or not T
    THR = OPT['thr'] + 1 if OPT['dyn'] else 99
    a.e(f"s_cmp_eq_u32 s{sTyp}, 0"); a.e(f"s_cselect_b32 s{sThr}, {0 if OPT['sh1'] else THR}, {THR}")
    vmw(a, 12)
    a.e("s_barrier")
    a.lg = []
    for r in rd_k(KF, 0, 0) + rd_k(VF, 0, 1): a.e(r)
    for x in unit_pre(sBL, 6 * 8192): a.e(x)
    a.wait(lg="all")
    def ex(u, k): j, r = divmod(k, 4); s = Sr(u, j) + r; return f"v_exp_f32 v{s}, v{s}"
    def cv(u, buf, c): j, h = divmod(c, 2); s = Sr(u, j) + 2*h; return f"v_cvt_pk_bf16_f32 v{Pr(buf,j) + 2*u + h}, v{s}, v{s+1}"
    def qk(u): return [mf(Sr(u, j), KF + 4*ks, Qf(j, ks), Nm(j) if ks == zk(j)[0] else Sr(u, j)) for j in range(3) for ks in zk(j)]
    def pv(t, half, fr=VF): return [mf(Or(4*half + i, j), fr + 4*i, Pr(t & 1, j), None if t == 0 else Or(4*half + i, j)) for i in range(4) for j in zj(i)]
    def sm(t): return [mf(La(j), ONES, Pr(t & 1, j), None if t == 0 else La(j)) for j in zj(1)]
    VMW = min(4 * (5 - OPT["lmax"]), OPT["vmw"])
    decide = [f"s_getreg_b32 s{sC1}, hwreg(HW_REG_IB_STS, 0, 4)", f"s_cmp_ge_u32 s{sC1}, s{sThr}", f"s_cselect_b32 s{sC1}, s{sBL}, s{sMin}",
              f"s_cmp_gt_i32 s{sC1}, s{sMin}", "s_cselect_b64 vcc, -1, 0", f"s_cselect_b32 s{sC1}, 8192, 0", f"s_sub_u32 s{sBL}, s{sBL}, s{sC1}"]
    def dec(t):
        d = list(decide)
        if t < OPT["fskip"] - 1: d[1] = f"s_cmp_ge_u32 s{sC1}, 0"
        return d
    catch = []
    def wo_at(S, m, gaps):
        st, post = wo_tile(m)
        place_tile(a, S, st, gaps)
        for x in post: S.h(gaps[1], x)
    def tail_vec(S, u, buf, rds):
        pos = [0, 1, 4, 5, 8, 9, 10, 11]
        for r, p in zip(rds, pos): S.v(p, r)
        for k, p in zip(range(8, 12), (2, 3, 6, 7)): S.v(p, ex(u, k))
        for c, p in zip(range(6), (0, 1, 4, 5, 8, 9)): S.v(p, cv(u, buf, c))
    a.e("L_head:")
    a.c("tile 0: scores of the first 16 keys give the stand-in row max")
    def qk0(extra):
        S = Sched(a, [mf(Sr(0, j), KF + 4*ks, Qf(j, ks), None if ks == 0 else Sr(0, j)) for j in range(3) for ks in range(4)])
        S.h(2, lambda: vmw(a, VMW))
        for k, x in enumerate(dec(-1)): S.h(3 + k, x)
        for k, x in enumerate(extra[:24]): S.v(k // 2, x)
        S.emit(None)
        for x in extra[24:]: a.e(x)
        if not extra: a.e("s_nop 7")
    qk0([])
    a.e(".p2align 6")
    a.e("L_head2:")
    for j in range(3): a.e(f"v_max3_f32 v{Nm(j)}, v{Sr(0,j)}, v{Sr(0,j)+1}, v{Sr(0,j)+2}")
    for j in range(3): a.e(f"v_max_f32 v{Nm(j)}, v{Nm(j)}, v{Sr(0,j)+3}")
    rowred(a, "v_max_f32", [Nm(j) for j in range(3)], [Nm(j) + 1 for j in range(3)])
    for j in range(3):
        for r in (3, 2, 1, 0): a.e(f"v_sub_f32 v{Nm(j)+r}, 0, v{Nm(j)}")
    a.e("s_barrier")
    S = Sched(a, [mf(Sr(1, j), VF + 4*ks, Qf(j, ks), Nm(j) if ks == 0 else Sr(1, j)) for j in range(3) for ks in range(4)])
    for r, p in zip(rd_k(KF, 1, 0), (0, 3, 6, 9)): S.v(p, r)
    place_guarded(a, S, unit_dma(), (2, 5, 8, 11))
    subs = [f"v_add_f32 v{Sr(0,j)+r}, v{Sr(0,j)+r}, v{Nm(j)}" for j in range(3) for r in range(4)]
    for x, p in zip(subs, (0, 1, 1, 3, 4, 4, 6, 7, 7, 9, 10, 10)): S.v(p, x)
    S.emit(None)
    for k in range(12): a.e(ex(0, k))
    for k in range(8): a.e(ex(1, k))
    for c in range(6): a.e(cv(0, 0, c))
    a.wait(lg="all")
    def stage(t, mode):
        a.c(f"stage {t} {mode}")
        kv = mode == "kv"
        S = Sched(a, qk(0)); tail_vec(S, 1, t & 1, rd_v(t, 0))
        if kv and OPT["dyn"] and OPT["thr2"] >= 0 and t >= OPT["cufrom"] and (t - OPT["cufrom"]) % OPT["custep"] == 0:
            l0, l1 = newlabel("cu"), newlabel("cub")
            cm = [f"s_add_u32 s{sC1}, s{sC1}, {THR - OPT['thr2']}", f"s_cmp_le_u32 s{sC1}, s{sThr}"] if OPT["gate"] else ["s_nop 0", f"s_cmp_le_u32 s{sC1}, {OPT['thr2']}"]
            for k, x in enumerate([f"s_getreg_b32 s{sC1}, hwreg(HW_REG_IB_STS, 0, 4)"] + cm +
                                  [f"s_cselect_b32 s{sC1}, s{sBL}, s{sCur}", f"s_cmp_lt_i32 s{sC1}, s{sCur}"]): S.h(5 + k, x)
            def site(l0=l0, l1=l1): a.e(f"s_cbranch_scc1 {l0}"); a.e(f"{l1}:")
            S.h(10, site)
            catch.append((l0, l1, t))
        S.emit(pv(t, 0)[0])
        S = Sched(a, pv(t, 0))
        for r, p in zip(rd_k(KF, t+1, 1), (0, 1, 2, 3)): S.v(p, r)
        for k, p in zip(range(8), range(4, 12)): S.v(p, ex(0, k))
        S.h(10, lambda: a.wait(lg="all"))
        if kv:
            for x, p in zip(unit_pre(sBL, (t + 7) * 8192)[:6], (0, 1, 3, 4, 6, 7)): S.h(p, x)
        if mode == "wq" and t == 13: place_tile(a, S, x_block(1, 0, sXo) + x_block(2, 0, sXo), (2, 4, 7, 9))
        S.emit(qk(1)[0])
        S = Sched(a, qk(1)); tail_vec(S, 0, (t+1) & 1, rd_v(t, 1))
        if kv:
            if t == OPT["sh1t"]: S.h(2, f"s_mov_b32 s{sThr}, {THR}")
            if t == 9 and OPT["sh2"] and T:
                S.h(2, f"s_cmp_eq_u32 s{sR}, s{sPre}"); S.h(3, f"s_cselect_b32 s{sThr}, 0, s{sThr}")
            for x, p in zip(unit_pre(sBL, (t + 7) * 8192)[6:], (0, 1)): S.h(p, x)
            S.h(4, lambda: vmw(a, VMW))
            for k, x in enumerate(dec(t)): S.h(5 + k, x)
        else:
            S.h(11, lambda: vmw(a, {"wo": 8, "wq": 8 if t < 14 else 4}[mode]))
        S.emit(None)
        S = Sched(a, sm(t) + pv(t, 1))
        S.h(0, "s_barrier")
        if t + 2 < 16:
            for r, p in zip(rd_k(KF, t+2, 0), (0, 1, 2, 3)): S.v(p, (r, "kr"))
        else:
            for r, p in zip(rd_v(15, 0, KF), (0, 1, 2, 3, 4, 6, 7, 9)): S.v(p, (r, "kr"))
            S.v(10, cv(1, 1, 0)); S.v(12, cv(1, 1, 1))
            if mode == "wq":
                for k, p in enumerate((0, 1, 2, 5, 8, 10)): S.v(p, (rd_xb(X2reg(0, k >> 1, k & 1), k >> 1, k & 1), "kr"))
        for k, p in zip(range(8), (3, 4, 6, 7, 9, 10, 12, 13)): S.v(p, ex(1, k))
        def vwait(keep):
            def f():
                idx = [n for n, (tg, d) in enumerate(a.lg) if tg != "kr"]
                if len(idx) > keep: a._wait(lg_idx=idx[len(idx) - 1 - keep])
            return f
        S.h(1, vwait(4)); S.h(6, vwait(0))
        if kv: place_guarded(a, S, unit_dma(), (5, 8, 11, 14))
        elif mode == "wo":
            wo_at(S, 2*(t-12), (5, 8)); wo_at(S, 2*(t-12) + 1, (11, 14))
        else:
            if t == 12: place_tile(a, S, x_block(0, 0, sXo), (5, 8))
            else: place_tile(a, S, w_tile(2*t - 17, 2*t - 25, 2), (5, 8))
            place_tile(a, S, w_tile(2*t - 16, 2*t - 24, 2), (11, 14))
        S.h(12 if t < 14 else 14, lambda: a.wait(lg="all"))
        S.emit(qk(0)[0] if t < 14 else None)
        assert not a.lg
    NPRE = 20
    def epi_ops(toq):
        o_ = [f"v_mul_f32 v{Or(u,j)+r}, v{Or(u,j)+r}, v{vT+j}" for u in range(2) for j in range(3) for r in range(4)]
        for p in range(4):
            for j in range(3):
                d = Qf(j, p) if toq else Or(2*p, j)
                if p: o_ += [f"v_mul_f32 v{Or(2*p+u,j)+r}, v{Or(2*p+u,j)+r}, v{vT+j}" for u in range(2) for r in range(4)]
                o_ += [f"v_cvt_pk_bf16_f32 v{d+2*u+h}, v{Or(2*p+u,j)+2*h}, v{Or(2*p+u,j)+2*h+1}" for u in range(2) for h in range(2)]
        return o_
    def stage15(mode):
        a.c(f"stage 15 {mode}")
        p0 = pv(15, 0, KF)
        S = Sched(a, [m_ for j in range(3) for m_ in [sm(15)[zj(1).index(j)]] + [p0[3*i + zj(i).index(j)] for i in range(4)]] + pv(15, 1))
        for r, p in zip(rd_v(15, 1), (0, 1, 6, 7, 8, 9, 10, 11)): S.v(p, r)
        for c, p in zip((2, 3, 4, 5), (0, 1, 6, 7)): S.v(p, cv(1, 1, c))
        for k, p in zip(range(8, 12), (2, 3, 4, 5)): S.v(p, ex(1, k))
        for j, p in enumerate((8, 9, 14)): S.v(p, f"v_accvgpr_read_b32 v{vT+j}, a{La(j)[1]}")
        S.v(10, f"v_add_f32 v{vT+3}, v{vT}, v{vT+1}"); S.v(14, f"v_add_f32 v{vT+3}, v{vT+3}, v{vT+2}")
        S.v(11, f"v_mov_b32 v{vT+4}, {f32(2.0**30 if not OPT['forceslow'] else 150.0)}")
        S.v(15, f"v_cmp_nle_f32 vcc, v{vT+3}, v{vT+4}")
        for j, p in enumerate((12, 13, 16)): S.v(p, f"v_rcp_f32 v{vT+j}, v{vT+j}")
        if mode != "wo":
            for k, x in enumerate(epi_ops(0)[:NPRE]): S.v(17 + k // 2, x)
        if mode == "kv":
            for k, x in enumerate(unit_pre(sBL, 22 * 8192)): S.h(1 + k, x)
        if mode == "wo":
            for k in range(3): wo_at(S, 6 + k, (11 + 6*k, 14 + 6*k))
        if mode == "wq":
            place_tile(a, S, [s_ for j in range(3) for s_ in x_block(j, 0, sXo1)], (12, 14, 17, 19, 22, 24))
        S.emit(None)
        assert not a.lg
        if not OPT["nocheck"]: a.e("s_cbranch_vccnz L_slow")
    for t in range(15):
        if t == 12:
            a.e(f"s_cmp_eq_u32 s{sR}, 3"); a.e("s_cbranch_scc1 L_altwo")
            if T: a.e(f"s_cmp_eq_u32 s{sR}, s{sPre}"); a.e("s_cbranch_scc1 L_altwq")
        stage(t, "kv")
    stage15("kv")
    a.e("L_epi:")
    for r in rd_k(KF, 0, 0) + rd_k(VF, 0, 1): a.e(r)
    lg_epi = list(a.lg)
    for x in epi_ops(0)[NPRE:]: a.e(x)
    if OPT["stamp"] and not OPT['qprof']: stamp_dyn(a, 5, sR, 4)
    for s_ in (sCur, sBL, sMin): a.e(f"s_add_u32 s{s_}, s{s_}, 131072")
    a.e(f"s_add_u32 s{sR}, s{sR}, 1")
    a.e(f"s_cmp_eq_u32 s{sR}, 3"); a.e("s_cbranch_scc1 L_sw2")
    a.e(f"s_cmp_eq_u32 s{sR}, 2"); a.e("s_cbranch_scc1 L_sw1")
    for r in range(3):
        a.e(f"L_sw{r}:")
        if r == 1 and T: a.e(f"s_cmp_eq_u32 s{sPre}, 1"); a.e("s_cbranch_scc1 L_q2b")
        if r == 0 and T:
            l = newlabel("ct")
            a.e(f"s_cmp_lg_u32 s{sPre}, 1"); a.e(f"s_cbranch_scc1 {l}")
            code_touch(a, "L_q2b", "L_altwo", 10, 11)
            a.e(f"{l}:")
        if r == 2:
            code_touch(a, "L_altwo", "L_hot_end", 158, 159)
            l = newlabel("bp")
            a.e(f"s_cmp_lg_u32 s{sWv}, 0"); a.e(f"s_cbranch_scc1 {l}")
            a._emit("global_load_dword v156, v157, s[18:19] sc1")
            a.e(f"{l}:")
        for j in range(3):
            for p in range(4):
                for x in range(4): a.e(f"v_accvgpr_read_b32 v{Qf(j,p)+x}, a{QBANK[r+1] + 12*p + 4*j + x}")
        a.raw_wait("s_waitcnt lgkmcnt(0)"); a.lg = []
        qk0(bank_write(OBANK[r], lambda p, j: Or(2*p, j)))
        a.e("s_branch L_head2")
    for l0, l1, t in catch:
        a.e(f"{l0}:")
        for x in unit_pre(sBL, (t + 7) * 8192): a.e(x)
        emit_tile(a, unit_dma())
        a.e(f"s_add_u32 s{sBL}, s{sBL}, 8192")
        a.e(f"s_branch {l1}")
    if T:
        a.e("L_q2b:")
        for x in bank_write(OBANK[1], lambda p, j: Or(2*p, j)): a.e(x)
        a.e(f"s_add_u32 s{sKn}, s{sBL}, {3*8192}"); a.e(f"s_add_u32 s{sMin}, s{sCur}, {3*8192}")
        a.raw_wait("s_waitcnt vmcnt(0) lgkmcnt(0)")
        if L0 > 5: a.e("s_barrier")
        for n in range(5, L0): emit_tile(a, w_tile(wpos(n), n, 2))
        a.e("s_branch L_q2go")
        a.e(".p2align 6")
        a.e("L_altwq:")
        a.lg = []
        for t in range(12, 15): stage(t, "wq")
        stage15("wq")
        a.e("s_branch L_epi")
    a.e(".p2align 6")
    a.e("L_altwo:")
    a.lg = []
    for t in range(12, 15): stage(t, "wo")
    stage15("wo")
    sPr, sOut, sOo, sDst = sX, sW, sLast, 40
    LD = {0: 184, 1: 130}
    ACC, STG = 60, 160
    vSA, vSB, vLA, vLB, vOA, vFl, vFi, vPoll, vVal, TM, PK = 152, 153, 154, 158, 159, 1, 2, 6, 10, 120, 124
    def Ga(h, i, j): return (72, 208)[h] + 12 * i + 4 * j
    def spin_loop(l0, l1, cmp, reload):
        a.e(f"{l0}:")
        a.e(f"s_mov_b32 s{sT3}, 0")
        l2 = newlabel("spin")
        a.e(f"{l2}:")
        a.e(f"s_add_u32 s{sT3}, s{sT3}, 1")
        a.e(f"s_cmp_ge_u32 s{sT3}, {SPIN_MAX}")
        a.e(f"s_cbranch_scc1 {l1}")
        a.e(f"s_sleep {OPT['sleep']}")
        a._emit(reload)
        a.raw_wait("s_waitcnt vmcnt(0)")
        for x in cmp: a._emit(x)
        a._emit("s_nop 4")
        a.e(f"s_cbranch_vccnz {l2}")
        a.e(f"s_branch {l1}")
    spins = []
    def rd_g(dst, m, f):
        h, o = slot(m); i, c = divmod(f, 2)
        return [f"ds_read_b64_tr_b16 {R(off(dst, 2*e), 2)}, v{(vWAl, vWAh)[h]} offset:{o + c*512 + e*256 + i*32}" for e in range(2)]
    def gmf(n):
        h, t = divmod(n % 16, 8)
        o = []
        for i in range(4):
            for jn, j in enumerate(zj(i)):
                cs = (1, 0) if OPT["zz"] and (3 * i + jn) & 1 else (0, 1)
                for c in cs:
                    r, p = divmod(2 * t + c, 4)
                    o.append(mf(Ga(h, i, j), Greg(n & 1, 2*i + c), Qf(j, p) if r == 3 else ("a", OBANK[r] + 12 * p + 4 * j), None if t == 0 and c == cs[0] else Ga(h, i, j)))
        return o
    a.e("L_g:")
    a.lg = []
    if OPT["stamp"] and not OPT['qprof']: stamp(a, 8)
    if OPT["qprof"] == 4: stamp(a, 4)
    a.e(f"v_lshrrev_b32 v{TM}, 5, v0"); a.e(f"v_lshlrev_b32 v{TM}, 7, v{TM}")
    a.e(f"v_sub_u32 v{vWAh}, v{vVA}, v{TM}"); a.e(f"v_subrev_u32 v{vWAl}, {VB}, v{vWAh}")
    a.e(f"v_mov_b32 v{TM+1}, {XB}")
    vmw(a, 12)
    l, l0, l1 = newlabel("bc"), newlabel("bs"), newlabel("bok")
    a.e(f"s_cmp_lg_u32 s{sWv}, 0"); a.e(f"s_cbranch_scc1 {l}")
    bcmp = [f"v_and_b32 v{TM}, 0xff, v156", f"v_cmp_gt_u32 vcc, 8, v{TM}"]
    for x in bcmp: a._emit(x)
    a.e(f"s_lshl_b32 s{sTmp}, s{sPK}, 3")
    a._emit("s_nop 3")
    if not OPT["nosync"]: a.e(f"s_cbranch_vccnz {l0}")
    a.e(f"{l1}:")
    spins.append((l0, l1, bcmp, "global_load_dword v156, v157, s[18:19] sc1"))
    a.e(f"v_xor_b32 v156, s{sTmp}, v156")
    a._emit(f"ds_write_b32 v{TM+1}, v156")
    a.e(f"{l}:")
    a.e("s_barrier")
    for f in range(8):
        for r in rd_g(Greg(0, f), 0, f): a.e(r)
    epi = epi_ops(1)
    for x in epi[:16]: a.e(x)
    epi = epi[16:]
    def srd_atoms(d, lo, o): return [[f"s_add_u32 s{d}, s{lo}, {o}", f"s_addc_u32 s{d+1}, s{lo+1}, 0"], [f"s_and_b32 s{d+1}, s{d+1}, 0xffff"], [f"s_mov_b32 s{d+3}, 0x20000"]]
    T1_, T2_ = f"s{sTmp}", f"s{sT2}"
    setup_ = [[f"s_mul_i32 {T1_}, s{sG}, {XG}"]] + srd_atoms(sP, 28, T1_) + [[f"s_mov_b32 s{sP+2}, {XG}"], [f"s_mul_i32 {T2_}, s{sU}, {XD}"], [f"s_add_u32 {T1_}, {T1_}, {T2_}"]]
    setup_ += srd_atoms(sPr, 28, T1_) + [[f"s_mov_b32 s{sPr+2}, 0"]]
    if OPT["ibg"]:
        setup_ += [[x] for x in (f"s_mul_i32 {T2_}, s{sWv}, 1536", f"s_add_u32 {T2_}, {T2_}, {T1_}", f"s_add_u32 {T2_}, {T2_}, {5*XP}",
            "v_min_u32 v130, 47, v0", "v_mul_u32_u24 v132, 43, v130", "v_lshrrev_b32 v132, 9, v132", "v_lshlrev_b32 v130, 7, v130",
            "v_mul_u32_u24 v132, 4608, v132", f"v_add3_u32 v130, v130, v132, {T2_}", f"s_add_u32 {T2_}, {T2_}, {XD - 6144 + 1408}",
            "v_add_u32 v131, 24576, v130", f"v_min_u32 v131, {T2_}, v131")]
    for i in range(7):
        setup_ += [[f"s_xor_b32 s{sDst+i}, s{sU}, {i ^ 7}"], [f"s_mul_i32 s{sDst+i}, s{sDst+i}, {XD}"], [f"s_add_u32 s{sDst+i}, s{sDst+i}, {i*6144}"]]
    setup_ += [[f"s_mul_i32 {T1_}, s{sB}, 491520"], [f"s_mul_i32 {T2_}, s{sBr}, 1280"], [f"s_add_u32 {T1_}, {T1_}, {T2_}"], [f"s_lshl_b32 {T2_}, s{sU}, 5"], [f"s_add_u32 {T1_}, {T1_}, {T2_}"]]
    setup_ += srd_atoms(sOut, 16, T1_) + [[f"s_mov_b32 s{sOut+2}, 0"]]
    setup_ += [[x] for x in (f"s_mul_i32 {T1_}, s{sWv}, 1536", f"v_lshl_add_u32 v{vSA}, v0, 4, {T1_}", f"s_add_u32 {T1_}, {T1_}, 1024", f"v_lshl_add_u32 v{vSB}, v0, 3, {T1_}",
        *((f"v_and_b32 v{TM}, 15, v0", f"v_mul_u32_u24 v{TM}, 2560, v{TM}", f"v_lshrrev_b32 v{TM+3}, 4, v0", f"v_lshl_add_u32 v{TM}, v{TM+3}, 3, v{TM}") if not OPT["bp"] else
          (f"v_lshrrev_b32 v{TM}, 2, v0", f"v_and_b32 v{TM+3}, 3, v0", f"v_lshl_add_u32 v11, v{TM+3}, 4, v{TM}", "v_lshlrev_b32 v11, 2, v11",
           f"v_mul_u32_u24 v{TM}, 2560, v{TM}", f"v_lshl_add_u32 v{TM}, v{TM+3}, 3, v{TM}")),
        f"s_mul_i32 {T1_}, s{sWv}, {48*2560}", f"v_add_u32 v{vOA}, {T1_}, v{TM}",
        f"s_lshl_b32 {T1_}, s{sWv}, 7", f"s_lshl_b32 {T2_}, s{sU}, 2", f"s_add_u32 {T2_}, {T2_}, {T1_}", f"v_lshl_add_u32 v{vFl}, v0, 9, {T2_}",
        f"s_lshl_b32 {T2_}, s{sU}, 9", f"s_add_u32 {T2_}, {T2_}, {T1_}", f"v_and_b32 v{TM}, 7, v0", f"v_lshl_add_u32 v{vFi}, v{TM}, 2, {T2_}",
        f"v_mov_b32 v{vVal}, 0", f"v_mov_b32 v{vPoll}, 0", f"s_mov_b32 s{sGc}, 0" if not OPT["emu3"] else f"s_lshl_b32 s{sGc}, s{sTyp}, 1", f"s_mov_b32 s{sOo}, -512" if not OPT["emu3"] else f"s_mov_b32 s{sOo}, 0", f"s_mov_b32 s{sS8}, 0xffff0000")]
    if OPT["mred"]:
        sel_ = [x for x in ("v_and_b32 v134, 1, v0", "v_lshlrev_b32 v134, 4, v134", "v_mov_b32 v135, 0x3f80", "v_lshlrev_b32 v134, v134, v135",
            "v_bfe_u32 v135, v0, 1, 3", "v_lshrrev_b32 v136, 4, v0", "v_lshlrev_b32 v136, 1, v136", "v_xor_b32 v135, v135, v136",
            "v_cmp_eq_u32 vcc, 0, v135", "v_mov_b32 v142, 0", "v_cndmask_b32 v136, 0, v134, vcc", "v_cmp_eq_u32 vcc, 1, v135", "v_mov_b32 v143, 0",
            "v_cndmask_b32 v137, 0, v134, vcc", "v_accvgpr_write_b32 a0, v136", "v_accvgpr_write_b32 a2, v136", "v_accvgpr_write_b32 a1, v137",
            "v_accvgpr_write_b32 a3, v137", "v_mov_b32 v148, 0", "v_mov_b32 v149, 0")]
    m = 9
    Ss = []
    for n in range(8):
        S = Sched(a, gmf(n)); Ss.append(S)
        rds = []
        for f in range(8): rds += rd_g(Greg((n + 1) & 1, f), n + 1, f)
        for r, p in zip(rds, RDPOS): S.v(p, r)
        for gp in ([(6, 11), (16, 19)] if n < 4 else [(6, 11)]): wo_at(S, m, gp); m += 1
        if n % 4 == 1: end_sync(a, S, {1: 12, 5: 16}[n], 0)
        else: S.h(22, lambda: a.wait(lg="all"))
        if n == 2: S.v(20, f"ds_read_b32 v{TM+2}, v{TM+1}")
        if OPT["ibg"] and n == OPT["ibn"]: S.v(16, lambda: a._emit(f"global_load_dword v132, v130, s[28:29]"))
        if OPT["ibg"] and n == min(7, OPT["ibn"] + 3): S.v(16, lambda: a._emit(f"global_load_dword v133, v131, s[28:29]"))
        if n == 7:
            S.v(19, f"v_readfirstlane_b32 s{sTmp}, v{TM+2}"); S.h(21, f"s_cmp_lg_u32 s{sTmp}, 0")
    assert m == 21
    n, k = 0, 0
    for atom in setup_:
        while True:
            S = Ss[n]
            ok = (not S.hold[k]) if atom[0].startswith("s_") else free_slots(S)[k] > 0
            if atom[0].startswith("s_") and len(atom) > 1 and free_slots(S)[k] == 0: ok = False
            if ok: break
            k += 1
            if k == 24: n += 1; k = 0
        for x in atom: (S.h if x.startswith("s_") else S.v)(k, x)
        if not atom[0].startswith("s_") or True:
            k += 1
            if k == 24: n += 1; k = 0
    assert (n, k) < (7, 18), (n, k)
    for n in range(7):
        epi = fill_ops(Ss[n], epi)
        if n == 5: assert len(epi) <= 72 - 8, len(epi)
    assert not epi, len(epi)
    if OPT["mred"]: assert not fill_ops(Ss[7], sel_)
    for n in range(8):
        a.c(f"G first half, sub-step {n}")
        Ss[n].emit(gmf(n + 1)[0])
    a.e("s_branch L_gx" if OPT["xmode"] == 1 else "s_cbranch_scc1 L_gx")
    NP = {0: 4, 1: 3}
    def cvs(h): return [f"v_cvt_pk_bf16_f32 v{STG + 6*i + 2*j + x}, v{Ga(h,i,j)+2*x}, v{Ga(h,i,j)+2*x+1}" for i in range(NP[h]) for j in range(3) for x in range(2)]
    def rops(h, k):
        o = []
        for r in range(6):
            s = LD[h] + 6*k + r; t = TM + 2 * (r & 1)
            src = Ga(1, 3, r >> 1) + 2 * (r & 1) if (h, k) == (0, 0) else ACC + 2*r
            o += [f"v_lshlrev_b32 v{t}, 16, v{s}", f"v_and_b32 v{t+1}, s{sS8}, v{s}",
                  f"v_add_f32 v{ACC+2*r}, v{src}, v{t}", f"v_add_f32 v{ACC+2*r+1}, v{src+1}, v{t+1}"]
        return o
    def ldreg(h, k):
        if not OPT["mred"]: return LD[h] + 6*k, LD[h] + 6*k + 4
        if (h, k) == (1, 2): return 144, 150
        b_ = LD[h] + 12 * (k >> 1)
        return (b_ + 6, b_) if k & 1 else (b_ + 2, b_ + 10)
    def rmf(h, pr):
        q_ = (142, 146, 148) if (h, pr) == (1, 1) else [LD[h] + 12*pr + 4*j for j in range(3)]
        return [mf(ACC + 4*j, ("a", 0), q_[j], Ga(1, 3, j) if (h, pr) == (0, 0) else ACC + 4*j) for j in range(3)]
    rcv = [f"v_cvt_pk_bf16_f32 v{PK+r}, v{ACC+2*r}, v{ACC+2*r+1}" for r in range(6)]
    bps = [f"ds_bpermute_b32 v{PK+r}, v11, v{PK+r}" for r in range(6)] if OPT["bp"] else []
    def rst(j): return ([f"s_add_u32 s{sOff2}, s{sOo}, {j*40960}"], f"buffer_store_dwordx2 {vr(PK+2*j,2)}, v{vOA}, {sr(sOut,4)}, s{sOff2} offen{['', ' sc1', ' nt', ' sc0 sc1'][OPT['opol']]}")
    chk_cmp = [f"v_cmp_gt_u32 vcc, v{vVal}, v{vPoll}"]
    poll = f"buffer_load_dword v{vPoll}, v{vFi}, {sr(sF,4)}, 0 offen sc1"

    def g_phase(fast):
        pol = ("", " nt", " sc0")[OPT["xs"]] if fast else " sc1"
        la, lb = (vSA, vSB) if fast else (vLA, vLB)
        def xst(h, i):
            o4, o2 = (2, 0) if OPT["mred"] and i & 1 else (0, 4)
            return [([], f"buffer_store_dwordx4 {vr(STG+6*i+o4,4)}, v{vSA}, {sr(sP,4)}, s{sDst+4*h+i} offen{pol}"),
                    ([], f"buffer_store_dwordx2 {vr(STG+6*i+o2,2)}, v{vSB}, {sr(sP,4)}, s{sDst+4*h+i} offen{pol}")]
        def xld(h, k): return [([f"s_mov_b32 s{sOff2}, {(4*h+k)*6144}"], f"buffer_load_dwordx4 {vr(ldreg(h,k)[0],4)}, v{la}, {sr(sPr,4)}, s{sOff2} offen sc1"),
                               ([], f"buffer_load_dwordx2 {vr(ldreg(h,k)[1],2)}, v{lb}, {sr(sPr,4)}, s{sOff2} offen sc1")]
        flag = f"buffer_store_dword v{vVal}, v{vFl}, {sr(sF,4)}, 0 offen{pol}"
        def check():
            l0, l1 = newlabel("sp"), newlabel("ok")
            if not OPT["nosync"]: a.e(f"s_cbranch_vccnz {l0}")
            a.e(f"{l1}:")
            spins.append((l0, l1, chk_cmp, poll))
        if fast: a.e(f"v_add_u32 v{vSA}, {5*XP}, v{vSA}"); a.e(f"v_add_u32 v{vSB}, {5*XP}, v{vSB}")
        else: a.e(f"v_subrev_u32 v{vLA}, {XP}, v{vSA}"); a.e(f"v_subrev_u32 v{vLB}, {XP}, v{vSB}")
        a.e(f"s_branch L_gmid{int(fast)}")
        late = []
        def body():
            del late[:]
            Ss = [Sched(a, gmf(n) + (rmf(n // 8, 0) + rmf(n // 8, 1) if OPT['mred'] and n % 8 == 6 else [])) for n in range(16)]
            cap = [[2] * 24 for _ in range(16)]
            ops = []
            def vmem(n, g_, steps, kind):
                if isinstance(kind, tuple) and kind[0] == "T": place_tile(a, Ss[n], steps, g_)
                else:
                    for (pre, d), x in zip(steps, g_):
                        for y in pre: Ss[n].h(x, y)
                        Ss[n].v(x, lambda d=d: a._emit(d))
                for x in g_: cap[n][x] = 0; ops.append((n, x, kind))
            tpos = {0: [(6, 11)], 1: [(6, 11)], 4: [(6, 11), (16, 19)], 5: [(11, 16), (19, 22)], 6: [(6, 11)], 7: [(11, 16)]}
            m = 13
            for n in range(16):
                h, t = divmod(n, 8); S = Ss[n]
                rds = []
                for f in range(8): rds += rd_g(Greg((n + 1) & 1, f), n + 1, f)
                for r, p in zip(rds, RDPOS): S.v(p, r); cap[n][p] -= 1
                cap[n][23] = 0 if n % 4 == 1 else 1; cap[n][20] = min(cap[n][20], 1); cap[n][21] = min(cap[n][21], 1)
                for gp in tpos.get(t, []):
                    st, post = wo_tile(m)
                    if m == 16:
                        S.h(gp[0] - 4, f"s_cmp_eq_u32 s{sGc}, 4"); S.h(gp[0] - 3, f"s_cselect_b32 s{sWo+2}, 0, s{sWo+2}")
                    vmem(n, gp, st, ("T", m))
                    for x in post: S.h(gp[1], x)
                    m += 1
                if t == 2:
                    xs = [s_ for i in range(NP[1-h]) for s_ in xst(1 - h, i)] + [s_ for k in range(NP[h]) for s_ in xld(h, k)]
                    if OPT["xord"]:
                        st_ = xs[:2*NP[1-h]]; ld_ = xs[2*NP[1-h]:]
                        pat = {6: "SLSLLSL" * 2, 8: "SSLSLSL" + "SSLSLSL"}[len(st_)] if OPT["xord"] == 1 else {6: "SSLLSLL" * 2, 8: "SSSLSLL" * 2}[len(st_)]
                        xs = [(st_ if c_ == "S" else ld_).pop(0) for c_ in pat]
                    pos = [(n + d, g_) for d in (0, 1) for g_ in (6, 11, 16, 19, 20, 21, 22)]
                    for s_, (n2, g_) in zip(xs, pos): vmem(n2, (g_,), [s_], ("X", h))
                if t == 5: vmem(n, (6,), [([], flag)], "F"); S.v(4, f"v_add_u32 v{vVal}, 1, v{vVal}"); cap[n][4] -= 1
                if t == 7: vmem(n, (6,), [([], poll)], ("P", h))
            assert m == 29
            if OPT["opos"] == 0: vmem(4, (20, 21, 22), [rst(j) for j in range(3)], "O")
            else:
                for j, (n2, g_) in enumerate(((6, 16), (8, 16), (14, 16)) if OPT["opos"] == 1 else ((6, 16), (7, 21), (8, 19))): vmem(n2, (g_,), [rst(j)], "O")
            for x, (n2, g_) in zip(bps, ((2, 23), (3, 23), (4, 22), (4, 23), (6, 22), (6, 23))): Ss[n2].v(g_, x); cap[n2][g_] = max(0, cap[n2][g_] - 1)
            ops.sort(key=lambda x: (x[0], x[1]))
            ops2 = ops + [(n + 16, g_, k) for n, g_, k in ops]
            def younger(pt, n, g_): return len([o for o in ops2 if pt < (o[0], o[1]) < (n, g_)])
            for h in range(2):
                pt = max((o[0], o[1]) for o in ops if o[2] == ("X", h))
                Ss[8*h + 5].h(2, lambda c=younger(pt, 8*h + 5, 2): vmw(a, c))
                pt = [(o[0], o[1]) for o in ops if o[2] == ("P", h)][0]
                nc = 8*h + 9
                Ss[nc % 16].h(16, lambda c=younger(pt, nc, 16): vmw(a, c))
                Ss[nc % 16].v(16, lambda: a._emit(chk_cmp[0])); cap[nc % 16][16] -= 1
                Ss[nc % 16].h(20, check)
            def fill(lst, n, g_, rec=None):
                for op in lst:
                    while cap[n % 16][g_] <= 0:
                        g_ += 1
                        if g_ == 24: n += 1; g_ = 0
                    if not OPT["norv"]: Ss[n % 16].v(g_, lambda op=op: a._emit(op))
                    cap[n % 16][g_] -= 1
                    if rec is not None and n >= 16: rec.append(op)
                return n, g_
            e = fill(cvs(1), 0, 1); assert e < (2, 5), e
            e = fill(cvs(0), 8, 1); assert e < (10, 5), e
            if OPT["mred"]: fill(rcv, 15, 7)
            else:
                e = fill(rops(0, 0), 5, 2); assert e < (8, 10), e
                e = fill([x for k in range(1, 4) for x in rops(0, k)], *e); assert e < (13, 2), e
                e = fill([x for k in range(3) for x in rops(1, k)] + rcv, 13, 2, late); assert e < (18, 22), e
            S = Ss[7]
            if not fast: S.v(19, f"v_add_u32 v{vSA}, {XP}, v{vSA}"); S.v(20, f"v_add_u32 v{vSB}, {XP}, v{vSB}")
            S = Ss[15]
            S.h(0, f"s_cmp_ge_u32 s{sGc}, 1")
            S.h(1, f"s_cselect_b32 s{sOut+2}, {191*2560 + 1024 + 32}, 0")
            S.h(2, f"s_add_u32 s{sOo}, s{sOo}, 256")
            S.h(3, f"s_mov_b32 s{sPr+2}, {5*XP + XD}")
            if not fast:
                S.v(19, f"v_add_u32 v{vLA}, {XP}, v{vLA}"); S.v(20, f"v_add_u32 v{vLB}, {XP}, v{vLB}")
            S.h(18, f"s_add_u32 s{sGc}, s{sGc}, 1")
            S.h(19, f"s_cmp_lt_u32 s{sGc}, 5")
            for n in range(16):
                a.c(f"G sub-step {n}")
                if n == 8:
                    assert not a.lg
                    a.e(f"L_gmid{int(fast)}:")
                if n % 4 == 1:
                    tid = n + 5 + 16
                    pt = max((o[0], o[1]) for o in ops2 if o[2] == ("T", tid if tid < 29 else tid - 16) and (o[0] < 16) == (tid < 29))
                    cnt = len([o for o in ops2 if pt < (o[0], o[1]) < (n + 16, 22) and (o[0] >= 16 + 8 * (n // 8) or (isinstance(o[2], tuple) and o[2][0] == "T"))])
                    end_sync(a, Ss[n], min(cnt, 63), 0)
                else:
                    def w():
                        k = min(len(a.lg), OPT['gkeep']); a.raw_wait(f"s_waitcnt lgkmcnt({k})"); a.lg = a.lg[len(a.lg) - k:] if k else []
                    Ss[n].h(22, w)
                Ss[n].emit(gmf(n + 1)[0])
        lab = "L_gl_fast" if fast else "L_gl_far"
        if OPT["qprof"] == 2 and fast: stamp(a, 5); stamp(a, 6, False)
        a.e(".p2align 6")
        a.e(f"{lab}:")
        if OPT["qprof"] == 4: stamp_dyn(a, 4, sGc, 5)
        a.lg = []
        mark = len(a.ins); nops0 = a.nops; ns = len(spins)
        body(); lg_end = list(a.lg)
        del a.ins[mark:]; a.nops = nops0; del spins[ns:]
        body(); assert a.lg == lg_end
        a.e(f"s_cbranch_scc1 {lab}")
        if OPT["qprof"] == 2 and fast: stamp(a, 7); stamp(a, 8, False)
        if OPT["qprof"] == 4: stamp(a, 3)
        a.c("tail")
        for x in cvs(1): a.e(x)
        stamp(a, 2)
        vmw(a, 2)
        a._emit(chk_cmp[0]); a._emit("s_nop 4"); check()
        for i in range(3): emit_tile(a, xst(1, i))
        def ntv(st): return [(p_, d_ + " nt") if OPT["tl"] & 1 else (p_, d_) for p_, d_ in st]
        for k in range(4): emit_tile(a, ntv(xld(0, k)))
        for op in late + bps: a._emit(op)
        vmw(a, 8)
        a.e(f"v_add_u32 v{vVal}, 1, v{vVal}")
        a._emit(flag)
        early_out = not OPT["tord"]
        if early_out:
            a.raw_wait("s_waitcnt lgkmcnt(0)"); emit_tile(a, [rst(j) for j in range(3)])
        for k in range(4):
            vmw(a, 2 * (3 - k) + (4 if early_out else 1))
            for op in (rops(0, k) if not OPT["mred"] else rmf(0, k >> 1) if k & 1 else []): a._emit(op)
            if k == (3 if OPT["mred"] else 2): a._emit(poll)
        vmw(a, 0)
        a._emit(chk_cmp[0]); a._emit("s_nop 4"); check()
        for k in range(3): emit_tile(a, ntv(xld(1, k)))
        if not early_out:
            a.raw_wait("s_waitcnt lgkmcnt(0)"); emit_tile(a, [rst(j) for j in range(3)])
        a.e(f"s_mov_b32 s{sOo}, 1024")
        for k in range(3):
            vmw(a, 2 * (2 - k) + (0 if early_out else 3))
            for op in (rops(1, k) if not OPT["mred"] else rmf(1, k - 1) if k else []): a._emit(op)
        for op in rcv + bps: a._emit(op)
        a.raw_wait("s_waitcnt lgkmcnt(0)")
        emit_tile(a, [rst(j) for j in range(3)])
    g_phase(True)
    a.e("L_fin:")
    stamp(a, 9, False); stamp(a, 10)
    if OPT["leak"] >= 0:
        k = OPT["leak"]
        if k == 0: a.e("s_mov_b32 s79, 0")
        elif k == 9: a.e("s_sub_u32 s79, s98, s82"); a.e("s_lshr_b32 s79, s79, 4")
        else: a.e(f"s_sub_u32 s79, s{80+2*k}, s80")
        a.e("s_add_u32 s79, s79, 15000")
        if OPT["leakwg"] == 1: a.e("s_cmp_lt_u32 s2, 8"); a.e("s_cselect_b32 s79, s79, 0")
        if OPT["leakwg"] == 2: a.e("s_cmp_ge_u32 s2, 248"); a.e("s_cselect_b32 s79, s79, 0")
        if OPT["leakwg"] in (4, 5): a.e("s_and_b32 s76, s2, 1"); a.e("s_cselect_b32 s79, s79, 0" if OPT["leakwg"] == 5 else "s_cselect_b32 s79, 0, s79")
        if OPT["leakwg"] == 3: a.e("s_cmp_eq_u32 s2, 0"); a.e("s_cselect_b32 s79, s79, 0")
        a.e("L_leak:")
        a._emit("s_memrealtime s[76:77]"); a.raw_wait("s_waitcnt lgkmcnt(0)")
        a.e("s_sub_u32 s76, s76, s80"); a.e("s_cmp_lt_u32 s76, s79"); a.e("s_cbranch_scc1 L_leak")
    stamp_store(a, "L_end", 0)
    dbg_store(a)
    a.e("L_end:")
    a.e("s_endpgm")
    nsp = len(spins)
    for s_ in list(spins): spin_loop(*s_)
    a.e("L_hot_end:")
    a.e(".p2align 6")
    a.e("L_gx:")
    g_phase(False)
    a.e("s_branch L_fin")
    for s_ in list(spins[nsp:]): spin_loop(*s_)
    a.reset_counters()
    a.e("L_slow:")
    a.raw_wait("s_waitcnt vmcnt(0) lgkmcnt(0)")
    vKo, vVo, t0, t1 = 10, 11, P_ + 12, P_ + 13
    a.e("s_nop 7")
    a.e(f"v_and_b32 v{t0}, 7, v0"); a.e(f"v_lshlrev_b32 v{t0}, 10, v{t0}")
    a.e(f"v_bfe_u32 v{t1}, v0, 3, 1"); a.e(f"v_lshl_add_u32 v{t0}, v{t1}, 8, v{t0}")
    a.e(f"v_lshrrev_b32 v{t1}, 4, v0"); a.e(f"v_lshl_add_u32 v{vKo}, v{t1}, 4, v{t0}")
    a.e(f"v_bfe_u32 v{t0}, v0, 4, 1"); a.e(f"v_lshlrev_b32 v{t0}, 12, v{t0}")
    a.e(f"v_lshrrev_b32 v{t1}, 5, v0"); a.e(f"v_lshl_add_u32 v{t0}, v{t1}, 8, v{t0}")
    a.e(f"v_and_b32 v{t1}, 15, v0"); a.e(f"v_lshl_add_u32 v{vVo}, v{t1}, 1, v{t0}")
    for j in range(3): a.e(f"v_mov_b32 v{vT+j}, 0xff800000")
    def slow_qk(cinit):
        for u, kf in ((0, KF), (1, VF)):
            for ks in range(4): a.e(f"buffer_load_dwordx4 {vr(kf + 4*ks,4)}, v{vKo}, {sr(sK,4)}, s{sT2} offen offset:{u*512 + ks*64}")
        for u, kf in ((0, KF), (1, VF)):
            for j in range(3):
                for ks in range(4):
                    a.e(mf(Sr(u, j), kf + 4*ks, Qf(j, ks), (Nm(j) if cinit else None) if ks == 0 else Sr(u, j)))
    a.e(f"s_mov_b32 s{sT2}, s{sCur}")
    a.e(f"s_add_u32 s{sT3}, s{sCur}, 131072")
    a.e("L_slow_p1:")
    slow_qk(False)
    for j in range(3):
        for u in range(2):
            s = Sr(u, j)
            a.e(f"v_max3_f32 v{vT+j}, v{vT+j}, v{s}, v{s+1}")
            a.e(f"v_max3_f32 v{vT+j}, v{vT+j}, v{s+2}, v{s+3}")
    a.e(f"s_add_u32 s{sT2}, s{sT2}, 8192")
    a.e(f"s_cmp_lt_u32 s{sT2}, s{sT3}")
    a.e("s_cbranch_scc1 L_slow_p1")
    rowred(a, "v_max_f32", [vT, vT+1, vT+2], [Nm(j) for j in range(3)])
    for j in range(3):
        for r in range(4): a.e(f"v_sub_f32 v{Nm(j)+r}, 0, v{vT+j}")
    for r in range(96): a.e(f"v_mov_b32 v{O_+r}, 0")
    for r in range(12): a.e(f"v_accvgpr_write_b32 a{192+r}, 0")
    a.e(f"s_mov_b32 s{sT2}, s{sCur}")
    a.e("L_slow_p2:")
    slow_qk(True)
    for u in range(2):
        for k in range(12): a.e(ex(u, k))
    for u in range(2):
        for c in range(6): a.e(cv(u, 0, c))
    for half, fr in ((0, KF), (1, VF)):
        for hi in range(2):
            for i in range(4):
                for e in range(2):
                    for rp in range(2):
                        r = 2*rp + hi
                        a.e(f"buffer_load_ushort v{(S_ if hi else fr) + 4*i + 2*e + rp}, v{vVo}, {sr(sV,4)}, s{sT2} offen offset:{r*1024 + e*512 + (4*half+i)*32}")
        a.wait(vm="all")
        for x in range(16): a.e(f"v_lshl_or_b32 v{fr+x}, v{S_+x}, 16, v{fr+x}")
    for m in sm(2): a.e(m)
    for half, fr in ((0, KF), (1, VF)):
        for m in pv(2, half, fr): a.e(m)
    a.e(f"s_add_u32 s{sT2}, s{sT2}, 8192")
    a.e(f"s_cmp_lt_u32 s{sT2}, s{sT3}")
    a.e("s_nop 7")
    a.e("s_cbranch_scc1 L_slow_p2")
    for j in range(3): a.e(f"v_accvgpr_read_b32 v{vT+j}, a{La(j)[1]}")
    for j in range(3): a.e(f"v_rcp_f32 v{vT+j}, v{vT+j}")
    a.e(f"s_cmp_eq_u32 s{sR}, 3"); a.e("s_cbranch_scc1 L_g")
    for x in epi_ops(0)[:NPRE]: a.e(x)
    a.e("s_branch L_epi")
    return a

HDR = f"""; Fused attention blocks A and B in one launch. One workgroup per CU owns 4 heads of one batch: Q projection,
; softmax attention, output-projection partial (K = 512); the 8 workgroups of a batch then sum their partials.
; kernarg: 0 A_x, 8 A_k, 16 A_v, 24 A_wq, 32 A_wo, 40 B_x, 48 B_k, 56 B_v, 64 B_wq, 72 B_wo, 80 out, 88 debug, 96 ws
; @launch grid=(256,1,1) block=(256,1,1) lds={LDS}
.amdgcn_target "amdgcn-amd-amdhsa--gfx950"
.text
"""
def kern(name, a):
    return f".globl {name}\n.p2align 8\n.type {name},@function\n{name}:\n" + a.text()
def desc(name, nv, acc, ns):
    return f""".p2align 6
.amdhsa_kernel {name}
  .amdhsa_next_free_vgpr {nv}
  .amdhsa_next_free_sgpr {ns}
  .amdhsa_accum_offset {acc}
  .amdhsa_group_segment_fixed_size 0
  .amdhsa_kernarg_size 104
  .amdhsa_user_sgpr_count 2
  .amdhsa_user_sgpr_kernarg_segment_ptr 1
  .amdhsa_system_sgpr_workgroup_id_x 1
  .amdhsa_float_denorm_mode_32 3
.end_amdhsa_kernel
"""
if __name__ == "__main__":
    a = main_kernel()
    if OPT["pro2"]:
        ix = lambda t: [k for k, i in enumerate(a.ins) if i.text == t][0]
        i0, i1, i2 = ix("L_p0:"), ix("L_p1:"), ix("L_hot_end:") + 1
        a.ins = a.ins[:i0] + a.ins[i1:i2] + [Ins(".p2align 6")] + a.ins[i0:i1] + [Ins("L_p0end:")] + a.ins[i2:]
    if OPT["nodma"] & 1: a.ins = [i for i in a.ins if not (i.kind == "dma" and " v1, " in i.text)]
    if OPT["nodma"] & 2: a.ins = [i for i in a.ins if not (i.kind == "dma" and " v1, " not in i.text)]
    if OPT["nodma"] & 4: a.ins = [i for i in a.ins if not (i.kind == "store" and ("v152," in i.text or "v153," in i.text))]
    if OPT["nodma"] & 8: a.ins = [i for i in a.ins if not (i.kind == "store" and "v159," in i.text)]
    if OPT["nox2"]: a.ins = [i for i in a.ins if not (i.kind == "vmem" and ("v121," in i.text))]
    if OPT["noload"]: a.ins = [i for i in a.ins if not (i.kind == "vmem" and ("v152," in i.text or "v153," in i.text))]
    if OPT["x1"]:
        out = []; on = False; cnt = 0
        for i in a.ins:
            if i.text in ("L_epi:", "L_q2b:") or (OPT["x1"] & 2 and i.text in ("; Q conversion", "; Q2 conversion")): on = True
            if i.op in ("s_barrier",) or i.kind == "mfma" or i.text == "L_enter:": on = False
            out.append(i)
            if on and i.kind == "valu":
                cnt += 1
                if cnt % 2 == 0: out.append(Ins(f"v_mfma_f32_16x16x32_bf16 a[{240+4*(cnt//2%4)}:{243+4*(cnt//2%4)}], a[144:147], a[{96+4*(cnt//2%8)}:{99+4*(cnt//2%8)}], 0"))
        a.ins = out
    if OPT["x2"]:
        out = []; on = False
        for i in a.ins:
            if i.text == "L_q2:": on = True
            if i.text == "L_q2l:": on = False
            if on and i.kind == "mfma": out.append(Ins(f"s_nop {OPT['x2']}"))
            out.append(i)
        a.ins = out
    if OPT["abl"]:
        cnt = [0]
        def drop2(i):
            if OPT["abl"] & 1 and i.op == "ds_read_b64_tr_b16" and (", v4 " in i.text or ", v5 " in i.text):
                cnt[0] += 1; return (cnt[0] // 2) % 2 == 1
            if OPT["abl"] & 2 and i.kind == "lds" and (", v2 " in i.text or ", v3 " in i.text):
                cnt[0] += 1; return (cnt[0] // 2) % 2 == 1
            if OPT["abl"] & 4 and i.kind == "mfma" and "a[204:207], v[" in i.text and i.text.split()[1].startswith(("a[192", "a[196", "a[200")): return True
            if OPT["abl"] & 8 and i.op in ("v_lshlrev_b32", "v_and_b32", "v_add_f32") and ("v120" in i.text or "v121" in i.text or "v122" in i.text or "v123" in i.text) and "v0" not in i.text.replace("v0,", "v0 ").split(): return True
            return False
        a.ins = [i for i in a.ins if not drop2(i)]
    if OPT["xb"]:
        out = []; on = False; c = 0
        for i in a.ins:
            if i.text.startswith("; Q") and "sub-step" in i.text: on = True
            if "conversion" in i.text: on = False
            if on and i.op == "s_barrier":
                c += 1
                if c % OPT["xb"]: continue
            out.append(i)
        a.ins = out
    if OPT["xa"]:
        i0 = [k for k, i in enumerate(a.ins) if i.text == "; stage 0 kv"][0]; i1 = [k for k, i in enumerate(a.ins) if i.text == "; stage 15 kv"][0]
        def drop(i):
            if OPT["xa"] & 1 and i.op == "s_cbranch_vccnz": return True
            if OPT["xa"] & 2 and i.op in ("s_mul_i32", "s_bfe_u32", "s_xor_b32", "s_getreg_b32", "s_cselect_b32", "s_cselect_b64", "s_sub_u32", "s_cmp_gt_u32", "s_cmp_gt_i32", "s_cmp_le_u32"): return True
            if OPT["xa"] & 4 and i.op == "s_barrier": return True
            if OPT["xa"] & 8 and i.op == "s_waitcnt" and "lgkm" in i.text: return True
            if OPT["xa"] & 16 and i.op == "s_mul_i32": return True
            return False
        a.ins = a.ins[:i0] + [i for i in a.ins[i0:i1] if not drop(i)] + a.ins[i1:]
    if OPT["strip"] == 2:
        i0 = [k for k, i in enumerate(a.ins) if i.text == "L_head:"][0]; i1 = [k for k, i in enumerate(a.ins) if i.text == "L_epi:"][0]
        a.ins = a.ins[:i0] + [Ins("s_nop 4") if i.kind == "mfma" else i for i in a.ins[i0:i1] if i.kind not in ("lds", "trans", "valu")] + a.ins[i1:]
    if OPT["strip"] == 1:
        i0 = [k for k, i in enumerate(a.ins) if i.text == "L_head:"][0]; i1 = [k for k, i in enumerate(a.ins) if i.text == "L_epi:"][0]
        a.ins = a.ins[:i0] + [i for i in a.ins[i0:i1] if i.kind not in ("mfma", "lds", "trans", "valu")] + a.ins[i1:]
    ns = 102 if OPT["stamp"] else NSGPR
    open(sys.argv[1], "w").write(HDR + kern(NAME + "_kernel", a) + '.section .rodata,"a"\n' + desc(NAME + "_kernel", 512, 256, ns))
    print("instrs", len(a.ins), "nops", a.nops)
```

```python
import sys, math, struct
from asmlib import *

NAME = "concat_heads__mha_block_cached__gqa_block_cached__near_ridge"
def f32(x): return "0x%08x" % struct.unpack("<I", struct.pack("<f", x))[0]
OPT = dict(stamp=0, nodma=0, nocheck=0, touch=0, forceslow=0, map84=0, first=6, rot=1, strip=0, cyc=0, typ=2, track=1, nosync=0, sleep=1, opos=1, lag=4, noack=0, noload=0, stpol=1, nolw=0, krot=1, hrot=0, emu3=0, ramp=0, xb=0, mred=1, xord=1, vmw=8, pro2=1, bp=1, tord=1, abl=0, zz=1, x1=0, x2=0, opol=2, tl=0, xs=0, kvconv=0, sh1=1, sh2=1, sh1t=3, lateq=0, gate=1, ibg=1, ibn=4, xa=0, stag=0, fskip=0, cufrom=4, custep=4, cvo=1, woq=1, ibnt=0, ibt=14, ct2=1, inbox0=0, sparse1=1, noinbox=1, cthead=3, help=3, latekv=1, wot=0, lmax=3, thr=5, thr2=2, dyn=1, xmode=0, gkeep=0, leak=-1, leakwg=0, st0=0, norv=0, now0=0, gcap=0, qprof=0, la=7, ldpol=1, lmode=0, ldfix=0, nox2=0, wnt=0, xnt=0, t0x=0, t0w=0, ctouch=3, dbgout=0)
for a_ in sys.argv[2:]:
    k_, v_ = a_.split("="); assert k_ in OPT, k_; OPT[k_] = int(v_)

def R(x, n):
    t, i = x if isinstance(x, tuple) else ("v", x)
    return f"{t}{i}" if n == 1 else f"{t}[{i}:{i+n-1}]"
def off(x, d): return (x[0], x[1] + d) if isinstance(x, tuple) else x + d
def mf(d, a, b, c):
    return f"v_mfma_f32_16x16x32_bf16 {R(d,4)}, {R(a,4)}, {R(b,4)}, {'0' if c is None else R(c,4)}"

def zj(i): return (2, 1, 0) if (i & 1) and OPT["zz"] else (0, 1, 2)
def zk(j): return (3, 2, 1, 0) if (j & 1) and OPT["zz"] else (0, 1, 2, 3)
TILE = 8448
VB = 8 * TILE
XB = 16 * TILE
LDS = XB + 24576
NSLOT = 8
CH = NSLOT * 1024
PART = 240 * CH
STAMP_AT = 128 << 20
FLG = 120 << 20
XD = 7 * 6144
XP = 8 * XD
XG = 6 * XP
SPIN_MAX = 2000000
def slot(m):
    m %= 16
    return (m & 1), (m >> 1) * TILE

vKV, vKA, vVA, vWAl, vWAh, vW = 1, 2, 3, 4, 5, 6
vT = 7
QF, NM, S_, P_, KF, VF, O_ = 12, 60, 72, 96, 120, 136, 160
vX0, vX1, vXA0, vXA1 = 156, 157, 158, 159
vTo, vD, vPt, vWo = 152, 153, 154, 155
def Qf(j, ks): return QF + 16 * j + 4 * ks
def Nm(j): return NM + 4 * j
def Sr(u, j): return S_ + 12 * u + 4 * j
def Pr(buf, j): return P_ + 12 * buf + 4 * j
def Or(i, j): return O_ + 12 * i + 4 * j
def Wreg(buf, i): return 12 + 32 * buf + 4 * i
def Xreg(buf, j, s): return 76 + 24 * buf + 8 * j + 4 * s
def Qacc(pos, i, j):
    k = 12 * i + 4 * j
    if pos == 0: return ("a", k)
    if pos == 1: return ("a", 96 + k)
    if pos == 2: return ("a", 192 + k) if k < 64 else 124 + (k - 64)
    return O_ + k
QBANK = {3: 0, 2: 48, 1: 96}
OBANK = {0: 144, 1: 96, 2: 48, 3: 0}
def La(j): return ("a", 192 + 4 * j)
ONES = ("a", 204)
def Greg(buf, i): return ("a", 192 + 32 * buf + 4 * i)
sX, sW, sK, sV, sWo, sP = 32, 36, 40, 44, 48, 52
sWv, sKVL, sWL, sXL, sOff, sOff2, sTmp, sR, sCur, sT2, sT3 = 60, 61, 62, 63, 64, 65, 66, 67, 68, 69, 70
sB, sU, sBr, sG, sXo, sPo = 71, 72, 73, 74, 75, 76
sCX, sNX, sLast, sS8, sWoB, sTask, sTyp = 56, 57, 58, 59, 77, 30, 31
sWq, sGc = 26, 27
sWq1, sJ, sRot, sPM, sPK = 20, 21, 22, 23, 24
sF, sD0, sD1 = 8, 12, 13
sJh, sXo1, sPre = 25, 77, 30
sKc, sLag = 57, 76
sThr = 56
sBL, sMin, sKn, sMv, sMk, sKVv, sC1 = 57, 76, 23, 58, 59, 3, 25
sH = [4, 5, 6, 7]
NSGPR = 80

def stamp(a, k, real=True):
    if not OPT["stamp"]: return
    lg = list(a.lg)
    a.raw_wait("s_waitcnt lgkmcnt(0)")
    if OPT["cyc"] and 2 <= k <= 8: real = False
    a._emit(f"{'s_memrealtime' if real else 's_memtime'} s[{80+2*k}:{81+2*k}]")
    a.raw_wait("s_waitcnt lgkmcnt(0)")
def stamp_dyn(a, base, sidx, n):
    if not OPT["stamp"]: return
    a.raw_wait("s_waitcnt lgkmcnt(0)")
    a._emit("s_memtime s[78:79]" if OPT["cyc"] else "s_memrealtime s[78:79]")
    a.raw_wait("s_waitcnt lgkmcnt(0)")
    for q in range(n):
        a.e(f"s_cmp_eq_u32 s{sidx}, {q}")
        a.e(f"s_cselect_b32 s{80+2*(base+q)}, s78, s{80+2*(base+q)}")
def stamp_store(a, label, base):
    if not OPT["stamp"]: return
    a.e(f"s_cmp_lg_u32 s{sWv}, 0")
    a.e(f"s_cbranch_scc1 {label}")
    for k in range(11): a.e(f"v_mov_b32 v{16+k}, s{80+2*k}")
    a.e("s_lshl_b32 s78, s2, 6"); a.e(f"s_add_u32 s78, s78, {STAMP_AT + base*64}")
    a.e("v_mov_b32 v28, s78")
    a.e("s_mov_b64 exec, 1")
    a.e("global_store_dwordx4 v28, v[16:19], s[28:29]")
    a.e("global_store_dwordx4 v28, v[20:23], s[28:29] offset:16")
    a.e("global_store_dwordx4 v28, v[24:27], s[28:29] offset:32")

def dbg_store(a):
    if not OPT["dbgout"]: return
    l = "L_dbgskip"
    a.e("s_and_b32 s78, s2, 0xdf"); a.e("s_cmp_lg_u32 s78, 5"); a.e(f"s_cbranch_scc1 {l}")
    a.e("s_load_dwordx2 s[24:25], s[0:1], 88")
    for n, k in enumerate((3,4,5,6,7,8,2,10)):
        a.e(f"s_sub_u32 s79, s{80+2*k}, s80"); a.e(f"v_mov_b32 v{32+n}, s79")
    a.e("s_and_b32 s78, s2, 32"); a.e("v_mov_b32 v29, s78")
    a.raw_wait("s_waitcnt lgkmcnt(0)")
    a.e("global_store_dwordx4 v29, v[32:35], s[24:25]")
    a.e("global_store_dwordx4 v29, v[36:39], s[24:25] offset:16")
    a.e(f"{l}:")

def srd(a, d, lo, o, size):
    a.e(f"s_add_u32 s{d}, s{lo}, {o}")
    a.e(f"s_addc_u32 s{d+1}, s{lo+1}, 0")
    a.e(f"s_and_b32 s{d+1}, s{d+1}, 0xffff")
    a.e(f"s_mov_b32 s{d+2}, {size}")
    a.e(f"s_mov_b32 s{d+3}, 0x20000")
_lbl = [0]
def newlabel(p):
    _lbl[0] += 1
    return f"L_{p}_{_lbl[0]}"
class U(str): pass

def ldsbase(m):
    h, o = slot(m); return h * VB + o
def w_tile(m, n, nh=4):
    b = ldsbase(m); base = sWq if n < 4 * nh else sWq1
    rel = ((n % (4 * nh)) // nh) * 262144 + (nh - 1 - n % nh) * 256
    pol = ' nt' if OPT['wnt'] else ''
    return [([f"s_xor_b32 s{sOff}, s{base}, {rel}", f"s_add_u32 m0, s{sWL}, {b}"], f"buffer_load_dwordx4 v{vW}, {sr(sW,4)}, s{sOff} offen{pol} lds"),
            ([f"s_xor_b32 s{sOff}, s{base}, {rel + 8192}", f"s_add_u32 m0, s{sWL}, {b + 1032}"], f"buffer_load_dwordx4 v{vW}, {sr(sW,4)}, s{sOff} offen{pol} lds")]
def kv_tile(m, t):
    b = ldsbase(m); s = sV if m & 1 else sK
    assert t < 16
    so = f"s_xor_b32 s{sOff}, s{sCX}, {t * 8192}"
    return [([so, f"s_add_u32 m0, s{sKVL}, {b}"], f"buffer_load_dwordx4 v{vKV}, {sr(s,4)}, s{sOff} offen nt lds"),
            ([f"s_add_u32 m0, s{sKVL}, {b + 32}"], f"buffer_load_dwordx4 v{vKV}, {sr(s,4)}, s{sOff} offen offset:1024 nt lds")]
def unit_pre(base, add):
    return [f"s_add_u32 s{sMv}, s{base}, {add}", f"s_xor_b32 s{sOff}, s{sMv}, s{sRot}", f"s_bfe_u32 s{sMv}, s{sMv}, 0x3000d", f"s_mul_i32 s{sMv}, s{sMv}, {TILE}",
            f"s_add_u32 s{sMk}, s{base}, {add + 8192}", f"s_xor_b32 s{sOff2}, s{sMk}, s{sRot}", f"s_bfe_u32 s{sMk}, s{sMk}, 0x3000d", f"s_mul_i32 s{sMk}, s{sMk}, {TILE}"]
def unit_dma(so_v=None, so_k=None):
    so_v = sOff if so_v is None else so_v; so_k = sOff2 if so_k is None else so_k
    return [([f"s_add_u32 m0, s{sMv}, s{sKVv}"], f"buffer_load_dwordx4 v{vKV}, {sr(sV,4)}, s{so_v} offen nt lds"),
            (["s_add_u32 m0, m0, 32"], f"buffer_load_dwordx4 v{vKV}, {sr(sV,4)}, s{so_v} offen offset:1024 nt lds"),
            ([f"s_add_u32 m0, s{sMk}, s{sKVL}"], f"buffer_load_dwordx4 v{vKV}, {sr(sK,4)}, s{so_k} offen nt lds"),
            (["s_add_u32 m0, m0, 32"], f"buffer_load_dwordx4 v{vKV}, {sr(sK,4)}, s{so_k} offen offset:1024 nt lds")]
def place_guarded(a, S, steps, gaps):
    for (pre, d), g in zip(steps, gaps):
        for k, x in enumerate(pre): S.h(g - len(pre) + k, x)
        def site(d=d):
            l = newlabel("sk"); a.e(f"s_cbranch_vccnz {l}"); a._emit(d); a.e(f"{l}:")
        S.v(g, site)
def wo_tile(m):
    b = ldsbase(m); h, t = divmod(m % 16, 8); r = t >> 1; rel = (t & 1) * 81920
    st = [([f"s_add_u32 s{sOff}, s{sH[r]}, {rel}", f"s_add_u32 m0, s{sKVL}, {b}"], f"buffer_load_dwordx4 v{vWo}, {sr(sWo,4)}, s{sOff} offen lds"),
          ([f"s_add_u32 s{sOff}, s{sH[r]}, {rel + 1280}", f"s_add_u32 m0, s{sKVL}, {b + 1056}"], f"buffer_load_dwordx4 v{vWo}, {sr(sWo,4)}, s{sOff} offen lds")]
    return st, ([f"s_add_u32 s{sH[r]}, s{sH[r]}, s{(sD0, sD1)[h]}"] if t & 1 else [])
def emit_tile(a, steps):
    for pre, d in steps:
        for x in pre: a.e(x)
        a._emit(d)
def place_tile(a, S, steps, gaps):
    for (pre, d), g in zip(steps, gaps):
        for k, x in enumerate(pre): S.h(g - len(pre) + k, x)
        S.v(g, lambda d=d: a._emit(d))
def rd_w(dst, m, i):
    h, o = slot(m); p, u = divmod(i, 2)
    return [f"ds_read_b64_tr_b16 {R(off(dst, 2*e), 2)}, v{(vWAl, vWAh)[h]} offset:{o + e*512 + p*64 + u*8}" for e in range(2)]
def vmw(a, n): a.raw_wait(f"s_waitcnt vmcnt({n})")

def rowred(a, op, regs, tmps):
    for w in (32, 16):
        for r, t in zip(regs, tmps): a.e(f"v_mov_b32 v{t}, v{r}")
        for r, t in zip(regs, tmps): a.e(f"v_permlane{w}_swap_b32 v{r}, v{t}")
        for r, t in zip(regs, tmps): a.e(f"{op} v{r}, v{r}, v{t}")

RDPOS = [0,1,2,3,4,5,7,8,9,10,12,13,14,15,17,18]
RDPOS_X = [2,3,5,6,8,9,11,12,14,15,16,17,18,19,20,21]

def code_touch(a, lo, hi, vaddr, vdst, back=False):
    if not OPT["ctouch"]: return
    l = newlabel("pc")
    a.e("s_getpc_b64 s[14:15]")
    a.e(f"{l}:")
    if back: a.e(f"s_sub_u32 s14, s14, {l}-{lo}"); a.e("s_subb_u32 s15, s15, 0")
    else: a.e(f"s_add_u32 s14, s14, {lo}-{l}"); a.e("s_addc_u32 s15, s15, 0")
    a.e(f"s_lshr_b32 s{sT2}, s2, 3"); a.e(f"s_lshl_b32 s{sT2}, s{sT2}, 2"); a.e(f"s_add_u32 s{sT2}, s{sT2}, s{sWv}"); a.e(f"s_lshl_b32 s{sT2}, s{sT2}, 7")
    a.e(f"v_and_b32 v{vaddr}, 3, v0"); a.e(f"v_lshlrev_b32 v{vaddr}, 14, v{vaddr}"); a.e(f"v_add_u32 v{vaddr}, s{sT2}, v{vaddr}")
    a.e(f"v_min_u32 v{vaddr}, {hi}-{lo}-4, v{vaddr}")
    a._emit(f"global_load_dword v{vdst}, v{vaddr}, s[14:15]")

def inbox_addr(va, vt):
    sc = [f"s_mul_i32 s{sT2}, s{sG}, {XG}", f"s_mul_i32 s{sT3}, s{sU}, {XD}", f"s_add_u32 s{sT2}, s{sT2}, s{sT3}",
          f"s_mul_i32 s{sT3}, s{sWv}, 1536", f"s_add_u32 s{sT2}, s{sT2}, s{sT3}", f"s_add_u32 s{sT2}, s{sT2}, {5*XP}"]
    ve = [f"v_lshrrev_b32 v{va}, 3, v0", f"v_min_u32 v{va}, 6, v{va}", f"v_mul_u32_u24 v{va}, 6144, v{va}", f"v_and_b32 v{vt}, 7, v0",
          f"v_min_u32 v{vt}, 5, v{vt}", f"v_lshl_add_u32 v{va}, v{vt}, 7, v{va}", f"v_add_u32 v{va}, s{sT2}, v{va}"]
    return sc, ve

def late_consts(a):
    w_ = 2 if OPT["wot"] else 1
    a.e(f"v_min_u32 v{vTo}, {20*w_-1}, v0"); a.e(f"v_lshlrev_b32 v{vTo}, 7, v{vTo}")
    a.e(f"s_mul_i32 s{sTmp}, s{sB}, {10240*w_}"); a.e(f"s_mul_i32 s{sT2}, s{sWv}, {2560*w_}"); a.e(f"s_add_u32 s{sTmp}, s{sTmp}, s{sT2}")
    a.e(f"v_add_u32 v{vTo}, s{sTmp}, v{vTo}")
    a.e("v_and_b32 v9, 56, v0"); a.e(f"s_lshl_b32 s{sTmp}, s{sWv}, 1"); a.e(f"v_add_u32 v9, s{sTmp}, v9")
    a.e("v_mul_u32_u24 v9, 1280, v9"); a.e("v_and_b32 v8, 7, v0")
    a.e(f"s_xor_b32 s{sTmp}, s{sU}, 7"); a.e(f"s_and_b32 s{sTmp}, s{sTmp}, 3"); a.e(f"s_lshl_b32 s{sTmp}, s{sTmp}, 1"); a.e(f"v_xor_b32 v8, s{sTmp}, v8")
    a.e(f"v_lshl_add_u32 v{vWo}, v8, 4, v9")

def x_block(j, rel, base_s, op="s_add_u32", lds=0):
    so = f"{op} s{sOff2}, s{base_s}, {rel + j*20480}" if base_s is not None else f"s_mov_b32 s{sOff2}, {rel + j*20480}"
    return [([so, f"s_add_u32 m0, s{sXL}, {j*2048 + lds}"], f"buffer_load_dwordx4 v{vX0}, {sr(sX,4)}, s{sOff2} offen{' nt' if OPT['xnt'] else ''} lds"),
            ([f"s_add_u32 m0, s{sXL}, {j*2048 + 1024 + lds}"], f"buffer_load_dwordx4 v{vX1}, {sr(sX,4)}, s{sOff2} offen{' nt' if OPT['xnt'] else ''} lds")]
def rd_xb(dst, j, s): return f"ds_read_b128 {R(dst,4)}, v{(vXA0, vXA1)[s]} offset:{j*2048}"

def end_sync(a, S, vm, keep=2):
    def w():
        n = min(len(a.lg), keep)
        a.raw_wait(f"s_waitcnt vmcnt({vm}) lgkmcnt({n})")
        a.lg = a.lg[len(a.lg) - n:] if n else []
    S.h(22, w); S.h(23, "s_barrier")

sSc = 14
SCALE = f"s_mov_b32 s{sSc}, {f32(math.log2(math.e) / math.sqrt(128.0))}"
def conv_ops(acc, pos, db, tmp):
    o_ = []; k = 0
    for p in range(4):
        for j in range(3):
            t = tmp[k % len(tmp)]; k += 1
            src = []
            for u in range(2):
                o = acc(pos, 2*p + u, j)
                for r in range(4):
                    if isinstance(o, tuple):
                        o_.append(f"v_accvgpr_read_b32 v{t+4*u+r}, a{o[1]+r}"); src.append(t + 4*u + r)
                    else: src.append(o + r)
            o_ += [f"v_mul_f32 v{x}, s{sSc}, v{x}" for x in src]
            d = Qf(j, p) if db is None else src[0]
            o_ += [f"v_cvt_pk_bf16_f32 v{d+r}, v{src[2*r]}, v{src[2*r+1]}" for r in range(4)]
            if db is not None and db != "keep":
                o_ += [f"v_accvgpr_write_b32 a{db + 12*p + 4*j + r}, v{d+r}" for r in range(4)]
    return o_
def free_slots(S):
    cap = []
    for k in range(len(S.mfs)):
        c = 2 - max(0, len(S.hold[k]) - 1)
        for f in S.vec[k]:
            t = f if isinstance(f, str) else f[0] if isinstance(f, tuple) else "vmem"
            c -= 2 if t.startswith(("vmem", "v_exp", "v_rcp")) else 1
        if "s_barrier" in S.hold[k]: c = 0
        cap.append(max(c, 0))
    for k in range(1, len(cap)):
        if cap[k] == 2 and cap[k-1] == 2: cap[k] = 1
    return cap
def fill_ops(S, ops, start=0):
    cap = free_slots(S); n = 0
    for k in range(start, len(cap)):
        for _ in range(cap[k]):
            if n < len(ops): S.v(k, ops[n]); n += 1
    return ops[n:]

def gcv(m, h):
    i, j = divmod(m, 3); p, u = divmod(i, 2); o = Or(i, j)
    return f"v_cvt_pk_bf16_f32 v{S_ + 12*p + 4*j + 2*u + h}, v{o+2*h}, v{o+2*h+1}"
CVS = [gcv(m, h) for m in range(24) for h in range(2)]
def gst(q, rel, base_s):
    p, j = divmod(q, 3)
    return ([f"s_add_u32 s{sOff2}, s{base_s}, {rel + (p*12 + j)*CH}"], f"buffer_store_dwordx4 {vr(S_ + 12*p + 4*j,4)}, v{vPt}, {sr(sP,4)}, s{sOff2} offen{['', ' sc1', ' nt', ' sc0'][OPT['stpol']]}")
def cv_plans():
    caps = [0 if g in (6, 11) else (1 if g in RDPOS else 2) for g in range(24)]
    last = []; ci = 0
    for g, cp in enumerate(caps):
        for _ in range(cp):
            if ci < 48 and ci // 2 + 4 <= g: last.append((g, ci)); ci += 1
    n = ci; first = []
    for g, cp in enumerate(caps):
        for _ in range(cp):
            if ci < 48: first.append((g, ci)); ci += 1
    assert ci == 48 and all(c // 2 > g for g, c in first)
    return last, first, n
PLAN_LAST, PLAN_FIRST, NLAST = cv_plans()

def Q2acc(pos, i, j): return (56 if pos == 0 else O_) + 12 * i + 4 * j
def X2reg(buf, j, s): return ("a", 24 * buf + 8 * j + 4 * s)
def q2mf(n, first):
    s, pos = divmod(n % 8, 2)
    return [mf(Q2acc(pos, i, j), Greg(n & 1, i), X2reg(s >> 1, j, s & 1), None if first and n < 2 else Q2acc(pos, i, j)) for i in range(8) for j in zj(i)]

def main_kernel():
    a = Asm()
    T = OPT["typ"]
    if OPT["st0"]: a._emit("s_memrealtime s[80:81]")
    a.e("s_cmp_ge_u32 s2, 256")
    a.e("s_cbranch_scc1 L_end")
    a.e("s_load_dwordx16 s[4:19], s[0:1], 0")
    a.e("s_load_dwordx4 s[20:23], s[0:1], 64")
    a.e("s_load_dwordx2 s[28:29], s[0:1], 96")
    a.e(f"s_bfe_u32 s{sBr}, s2, 0x10002")
    if not OPT["map84"]:
        a.e(f"s_and_b32 s{sB}, s2, 3"); a.e(f"s_lshl_b32 s{sB}, s{sB}, 2")
        a.e(f"s_bfe_u32 s{sTmp}, s2, 0x20003"); a.e(f"s_add_u32 s{sB}, s{sB}, s{sTmp}")
        a.e(f"s_lshr_b32 s{sU}, s2, 5")
    elif OPT["map84"] == 2:
        a.e(f"s_bfe_u32 s{sB}, s2, 0x40003")
        a.e(f"s_and_b32 s{sU}, s2, 3"); a.e(f"s_lshl_b32 s{sU}, s{sU}, 1")
        a.e(f"s_lshr_b32 s{sTmp}, s2, 7"); a.e(f"s_add_u32 s{sU}, s{sU}, s{sTmp}")
    else:
        a.e(f"s_and_b32 s{sB}, s2, 1"); a.e(f"s_lshl_b32 s{sB}, s{sB}, 3")
        a.e(f"s_bfe_u32 s{sTmp}, s2, 0x30003"); a.e(f"s_add_u32 s{sB}, s{sB}, s{sTmp}")
        a.e(f"s_bfe_u32 s{sU}, s2, 0x10001"); a.e(f"s_lshl_b32 s{sU}, s{sU}, 2")
        a.e(f"s_lshr_b32 s{sTmp}, s2, 6"); a.e(f"s_add_u32 s{sU}, s{sU}, s{sTmp}")
    a.e(f"s_lshl_b32 s{sG}, s{sBr}, 4"); a.e(f"s_add_u32 s{sG}, s{sG}, s{sB}")
    if T == 4: a.e(f"s_bfe_u32 s{sTyp}, s2, 0x10003")
    elif T == 3: a.e(f"s_andn2_b32 s{sTyp}, 1, s2")
    elif T == 2: a.e(f"s_and_b32 s{sTyp}, s2, 1")
    else: a.e(f"s_mov_b32 s{sTyp}, {T}")
    a.e("v_lshrrev_b32 v7, 6, v0")
    a.e("v_and_b32 v0, 63, v0")
    a.e(f"v_readfirstlane_b32 s{sWv}, v7")
    a.e("v_and_b32 v8, 15, v0")
    a.e("v_lshrrev_b32 v9, 4, v0")
    a.e("v_and_b32 v10, 1, v9"); a.e("v_lshlrev_b32 v10, 4, v10")
    a.e("v_lshrrev_b32 v11, 1, v9"); a.e("v_lshl_add_u32 v10, v11, 2, v10")
    a.e("v_lshrrev_b32 v11, 1, v7"); a.e("v_lshl_add_u32 v10, v11, 3, v10")
    a.e("v_and_b32 v11, 1, v7"); a.e("v_lshl_add_u32 v10, v11, 1, v10")
    a.e("v_lshlrev_b32 v10, 13, v10"); a.e(f"v_lshl_add_u32 v{vW}, v8, 4, v10")
    a.e("v_mul_u32_u24 v10, 48, v7"); a.e("v_lshrrev_b32 v11, 3, v0"); a.e("v_add_u32 v10, v10, v11")
    a.e("v_mul_u32_u24 v10, 1280, v10")
    a.e("v_and_b32 v11, 7, v0"); a.e("v_xor_b32 v11, v11, v9")
    a.e(f"v_lshl_add_u32 v{vX0}, v11, 4, v10")
    a.e("v_xor_b32 v11, 4, v11"); a.e("v_add_u32 v10, 10240, v10")
    a.e(f"v_lshl_add_u32 v{vX1}, v11, 4, v10")
    a.e(f"s_mul_i32 s{sKVL}, s{sWv}, 2112")
    a.e(f"s_mov_b32 s{sWL}, s{sKVL}")
    a.e(f"s_mul_i32 s{sXL}, s{sWv}, 6144"); a.e(f"s_add_u32 s{sXL}, s{sXL}, {XB}")
    a.e(f"s_mov_b32 s{sCur}, 0"); a.e(f"s_mov_b32 s{sXo}, 0"); a.e(f"s_mov_b32 s{sWq}, 0")
    a.raw_wait("s_waitcnt lgkmcnt(0)")
    a.e(f"s_cmp_eq_u32 s{sBr}, 0")
    a.e("s_cselect_b64 s[4:5], s[4:5], s[14:15]")
    a.e("s_cselect_b64 s[6:7], s[6:7], s[16:17]")
    a.e("s_cselect_b64 s[8:9], s[8:9], s[18:19]")
    a.e("s_cselect_b64 s[10:11], s[10:11], s[20:21]")
    a.e("s_cselect_b64 s[12:13], s[12:13], s[22:23]")
    a.e("s_load_dwordx4 s[16:19], s[0:1], 80")
    a.e(f"s_mul_i32 s{sTmp}, s{sB}, 245760")
    srd(a, sX, 4, f"s{sTmp}", 245760)
    a.e(f"s_lshl_b32 s{sTmp}, s{sU}, 10")
    srd(a, sW, 10, f"s{sTmp}", 639 * 8192 + 1024)
    if OPT["krot"]: a.e(f"s_xor_b32 s{sJ}, s{sB}, s{sU}"); a.e(f"s_and_b32 s{sJ}, s{sJ}, 3")
    else: a.e(f"s_mov_b32 s{sJ}, 0")
    if OPT["hrot"]: a.e(f"s_cmp_lg_u32 s{sTyp}, 0"); a.e(f"s_cselect_b32 s{sJh}, 1, 3"); a.e(f"s_and_b32 s{sJh}, s{sJh}, s{sJ}")
    else: a.e(f"s_mov_b32 s{sJh}, 0")
    a.e(f"s_lshl_b32 s{sWq}, s{sJ}, 18"); a.e(f"s_lshl_b32 s{sTmp}, s{sJh}, 8"); a.e(f"s_or_b32 s{sWq}, s{sWq}, s{sTmp}"); a.e(f"s_add_u32 s{sWq1}, s{sWq}, {1 << 20}")
    a.e(f"s_lshr_b32 s{sXo}, s{sJ}, 1"); a.e(f"s_lshl_b32 s{sXo}, s{sXo}, 7")
    if not OPT['st0']: stamp(a, 0)
    stamp(a, 1, False)
    def common_consts():
        if OPT["rot"] == 2: a.e(f"s_bfe_u32 s{sRot}, s2, 0x40003"); a.e(f"s_lshl_b32 s{sRot}, s{sRot}, 13")
        elif OPT["rot"] == 3: a.e(f"s_bfe_u32 s{sRot}, s2, 0x40001"); a.e(f"s_lshl_b32 s{sRot}, s{sRot}, 13")
        elif OPT["rot"] == 4:
            a.e(f"s_mul_i32 s{sRot}, s2, 0x9e3779b1"); a.e(f"s_lshr_b32 s{sRot}, s{sRot}, 28"); a.e(f"s_lshl_b32 s{sRot}, s{sRot}, 13")
        elif OPT["rot"] == 5: a.e(f"s_bfe_u32 s{sRot}, s2, 0x20003"); a.e(f"s_lshl_b32 s{sRot}, s{sRot}, 15")
        elif OPT["rot"]:
            a.e(f"s_lshr_b32 s{sRot}, s2, 4"); a.e(f"s_xor_b32 s{sRot}, s{sRot}, s2"); a.e(f"s_and_b32 s{sRot}, s{sRot}, 15"); a.e(f"s_lshl_b32 s{sRot}, s{sRot}, 13")
        else: a.e(f"s_mov_b32 s{sRot}, 0")
        a.e(f"s_lshl_b32 s{sCur}, s{sJh}, 17"); a.e(f"s_or_b32 s{sRot}, s{sRot}, s{sCur}")
        assert not OPT["hrot"]
        a.e(f"s_mov_b32 s{sCX}, s{sRot}"); a.e(f"s_add_u32 s{sKVv}, s{sKVL}, {VB}")
        a.e("v_bfe_u32 v10, v0, 2, 3")
        a.e("v_lshrrev_b32 v11, 1, v10"); a.e("v_lshlrev_b32 v11, 6, v11"); a.e(f"v_lshl_add_u32 v{vWAl}, v10, 10, v11")
        a.e("v_and_b32 v11, 1, v10"); a.e(f"v_lshl_add_u32 v{vWAl}, v11, 3, v{vWAl}")
        a.e("v_lshrrev_b32 v11, 5, v0"); a.e(f"v_lshl_add_u32 v{vWAl}, v11, 8, v{vWAl}")
        a.e("v_mul_u32_u24 v10, 1056, v10"); a.e("v_lshl_add_u32 v10, v11, 8, v10")
        a.e("v_and_b32 v11, 3, v0"); a.e(f"v_lshl_add_u32 v{vWAl}, v11, 4, v{vWAl}")
        a.e(f"v_lshl_add_u32 v10, v11, 3, v10"); a.e(f"v_add_u32 v{vVA}, {VB}, v10")
        a.e(f"v_add_u32 v{vWAh}, {VB}, v{vWAl}")
        a.e("v_and_b32 v10, 7, v8"); a.e("v_mul_u32_u24 v10, 1056, v10")
        a.e("v_lshrrev_b32 v11, 3, v8"); a.e(f"v_lshl_add_u32 v10, v11, 8, v10")
        a.e(f"v_lshl_add_u32 v{vKA}, v9, 4, v10")
        a.e("v_lshlrev_b32 v10, 4, v0"); a.e(f"v_lshl_add_u32 v{vKV}, v7, 11, v10")
        a.e(f"v_lshlrev_b32 v10, 7, v8"); a.e(f"v_add_u32 v10, s{sXL}, v10")
        a.e("v_lshrrev_b32 v11, 1, v8"); a.e("v_xor_b32 v11, v11, v9")
        a.e(f"s_and_b32 s{sTmp}, s{sJ}, 1"); a.e(f"s_lshl_b32 s{sTmp}, s{sTmp}, 2"); a.e(f"v_xor_b32 v11, s{sTmp}, v11")
        a.e(f"v_lshl_add_u32 v{vXA0}, v11, 4, v10")
        a.e("v_xor_b32 v11, 4, v11"); a.e(f"v_lshl_add_u32 v{vXA1}, v11, 4, v10")
        a.e(f"s_lshl_b32 s{sTmp}, s{sB}, 3"); a.e(f"s_add_u32 s{sTmp}, s{sTmp}, s{sU}"); a.e(f"s_lshl_b32 s{sTmp}, s{sTmp}, 19")
        srd(a, sK, 6, f"s{sTmp}", 4 * 131072)
        srd(a, sV, 8, f"s{sTmp}", 4 * 131072)
        a.e(f"s_mul_i32 s{sTmp}, s{sU}, {512*1280}")
        srd(a, sWo, 12, f"s{sTmp}", 512 * 1280)
        for r in range(4): a.e(f"s_xor_b32 s{sH[r]}, s{sJh}, {r}"); a.e(f"s_mul_i32 s{sH[r]}, s{sH[r]}, 163840")
        a.e(f"s_mov_b32 s{sKn}, 0"); a.e(f"s_mov_b32 s{sMin}, {3*8192}")
        a.e(f"s_cmp_lt_u32 s{sU}, 4")
        a.e(f"s_cselect_b32 s{sTmp}, 128, 0"); a.e(f"s_mov_b32 s{sD0}, 128"); a.e(f"s_cselect_b32 s{sD0}, -128, s{sD0}")
        a.e(f"s_sub_u32 s{sD1}, 256, s{sD0}")
        for r in range(4): a.e(f"s_add_u32 s{sH[r]}, s{sH[r]}, s{sTmp}")
        a.e(f"s_lshl_b32 s{sTmp}, s{sG}, 12"); a.e(f"s_add_u32 s{sTmp}, s{sTmp}, {FLG}")
        srd(a, sF, 28, f"s{sTmp}", 4096)
    def touch0(three):
        if OPT["t0x"]:
            a.e("v_min_u32 v10, 59, v0"); a.e("v_lshlrev_b32 v10, 7, v10")
            a.e(f"s_lshl_b32 s{sTmp}, s{sU}, 2"); a.e(f"s_add_u32 s{sTmp}, s{sTmp}, s{sWv}"); a.e(f"s_mul_i32 s{sTmp}, s{sTmp}, 7680")
            a._emit(f"buffer_load_dword v11, v10, {sr(sX,4)}, s{sTmp} offen")
        if OPT["t0w"] and three:
            a.e("v_lshrrev_b32 v14, 2, v0"); a.e("v_lshlrev_b32 v14, 13, v14"); a.e("v_and_b32 v15, 3, v0"); a.e("v_lshl_add_u32 v14, v15, 7, v14")
            a.e(f"s_and_b32 s{sTmp}, s{sB}, 3"); a.e(f"s_lshl_b32 s{sTmp}, s{sTmp}, 2"); a.e(f"s_add_u32 s{sTmp}, s{sTmp}, s{sWv}"); a.e(f"s_lshl_b32 s{sTmp}, s{sTmp}, 17")
            for k in range(3):
                a.e(f"s_add_u32 s{sT2}, s{sTmp}, {k*256*8192}")
                a._emit(f"buffer_load_dword v{16+k}, v14, {sr(sW,4)}, s{sT2} offen")
    def part_srd(slot_expr, size):
        a.e(f"s_mul_i32 s{sTmp}, s{sG}, {PART}"); slot_expr(); a.e(f"s_lshl_b32 s{sT2}, s{sT2}, 10"); a.e(f"s_add_u32 s{sTmp}, s{sTmp}, s{sT2}")
        srd(a, sP, 28, f"s{sTmp}", size)
    NF = OPT["first"]
    LA = OPT['la']
    def wpos(n): return 8 + n % 8
    def rd_x(buf): return [rd_xb(Xreg(buf, j, s), j, s) for s in range(2) for j in range(3)]
    NF = 2
    def setup(lab):
        if not OPT["pro2"]: common_consts()
        code_touch(a, lab, "L_altwo" if not OPT["ct2"] else (("L_p0end" if OPT["pro2"] else "L_p1") if lab == "L_q" else "L_enter"), 10, 11)
        a.e(f"s_mov_b32 s{sR}, 0")
        if not OPT["ramp"]: late_setup()
    def late_setup():
        a.e(f"s_lshl_b32 s{sTmp}, s{sU}, 9"); a.e(f"s_lshl_b32 s{sT2}, s{sWv}, 7"); a.e(f"s_add_u32 s{sTmp}, s{sTmp}, s{sT2}")
        a.e("v_and_b32 v8, 7, v0"); a.e(f"v_lshlrev_b32 v8, 2, v8"); a.e("v_mov_b32 v7, 0")
        a._emit(f"buffer_store_dword v7, v8, {sr(sF,4)}, s{sTmp} offen sc1")
        emit_tile(a, kv_tile(0, 0))
    def bootstrap():
        l = newlabel("boot")
        a.e(f"s_cmp_lg_u32 s{sWv}, 0"); a.e(f"s_cbranch_scc1 {l}")
        a.e(f"s_lshl_b32 s{sTmp}, s{sG}, 2"); a.e(f"s_add_u32 s{sTmp}, s{sTmp}, 128")
        a.e(f"v_mov_b32 v157, s{sTmp}")
        a.e(f"s_getreg_b32 s{sT2}, hwreg(HW_REG_XCC_ID, 0, 4)")
        a.e(f"s_mul_i32 s{sT3}, s{sT2}, s{sT2}"); a.e(f"s_lshl_b32 s{sT3}, s{sT3}, 8"); a.e(f"s_add_u32 s{sT3}, s{sT3}, s{sT2}")
        a.e(f"s_lshl_b32 s{sT3}, s{sT3}, 8"); a.e(f"s_add_u32 s{sPK}, s{sT3}, 1"); a.e(f"v_mov_b32 v158, s{sPK}")
        a.e("s_mov_b64 exec, 1")
        a._emit("global_atomic_add v157, v158, s[18:19]")
        a.e("s_mov_b64 exec, -1")
        a.e(f"{l}:")
    if OPT["stag"]:
        a.e(f"s_and_b32 s{sT2}, s{sB}, 3") if OPT["stag"] < 100 else a.e(f"s_and_b32 s{sT2}, s{sU}, 3")
        a.e("L_stag:"); a.e(f"s_cmp_eq_u32 s{sT2}, 0"); a.e("s_cbranch_scc1 L_stag2"); a.e(f"s_sleep {OPT['stag'] % 100}"); a.e(f"s_sub_u32 s{sT2}, s{sT2}, 1"); a.e("s_branch L_stag"); a.e("L_stag2:")
    if OPT["pro2"]:
        a.e(f"s_cmp_lg_u32 s{sTyp}, 0")
        a.e(f"s_cselect_b32 s{sT2}, {XB - VB}, 0"); a.e(f"s_cselect_b32 s{sT3}, 0, 512")
        a.e(f"s_sub_u32 s{sT2}, s{sXL}, s{sT2}"); a.e(f"s_xor_b32 s{sT3}, s{sWq}, s{sT3}")
        def sub(st, x, y): return [([p_.replace(x, y) for p_ in pre], d) for pre, d in st]
        emit_tile(a, sub(w_tile(wpos(0), 0, 2), f"s{sWq},", f"s{sT3},"))
        for j in range(3): emit_tile(a, sub(x_block(j, 0, sXo), f"s{sXL},", f"s{sT2},"))
        emit_tile(a, sub(w_tile(wpos(1), 1, 2), f"s{sWq},", f"s{sT3},"))
        common_consts()
        a.e(f"s_cmp_eq_u32 s{sTyp}, 0")
        a.e("s_cbranch_scc1 L_p0")
        a.e("L_split:")
        a.e("L_p0:")
    else:
        a.e(f"s_cmp_lg_u32 s{sTyp}, 0")
        a.e("s_cbranch_scc1 L_p1")
        for j in range(3): emit_tile(a, x_block(j, 0, sXo))
        for n in range(NF): emit_tile(a, w_tile(wpos(n), n))
    setup("L_q")
    if OPT["help"]:
        if T == 3:
            a.e(f"s_sub_u32 s{sP}, s{sX}, {4*245760}"); a.e(f"s_subb_u32 s{sP+1}, s{sX+1}, 0")
        else:
            a.e(f"s_add_u32 s{sP}, s{sX}, {4*245760}"); a.e(f"s_addc_u32 s{sP+1}, s{sX+1}, 0")
        a.e(f"s_mov_b32 s{sP+2}, 245760"); a.e(f"s_mov_b32 s{sP+3}, 0x20000")
        a.e("v_min_u32 v8, 59, v0"); a.e("v_lshlrev_b32 v8, 7, v8")
        a.e(f"s_lshl_b32 s{sTmp}, s{sU}, 2"); a.e(f"s_add_u32 s{sTmp}, s{sTmp}, s{sWv}"); a.e(f"s_mul_i32 s{sTmp}, s{sTmp}, 7680")
        a._emit(f"buffer_load_dword v9, v8, {sr(sP,4)}, s{sTmp} offen")
        if OPT["help"] & 2:
            a.e("v_lshrrev_b32 v8, 2, v0"); a.e("v_lshlrev_b32 v8, 13, v8"); a.e("v_and_b32 v10, 3, v0"); a.e("v_lshl_add_u32 v8, v10, 7, v8")
            a.e(f"s_lshr_b32 s{sTmp}, s{sB}, 3"); a.e(f"s_lshl_b32 s{sTmp}, s{sTmp}, 2"); a.e(f"s_and_b32 s{sT2}, s{sB}, 3"); a.e(f"s_add_u32 s{sTmp}, s{sTmp}, s{sT2}")
            a.e(f"s_lshl_b32 s{sTmp}, s{sTmp}, 2"); a.e(f"s_add_u32 s{sTmp}, s{sTmp}, s{sWv}"); a.e(f"s_mul_i32 s{sTmp}, s{sTmp}, {20*8192}")
            a._emit(f"buffer_load_dword v9, v8, {sr(sW,4)}, s{sTmp} offen")
            a.e(f"s_add_u32 s{sTmp}, s{sTmp}, {4*8192}")
            a._emit(f"buffer_load_dword v9, v8, {sr(sW,4)}, s{sTmp} offen")
    a.e(f"s_mov_b32 s{sPre}, 15")
    for r in range(256):
        if r % 40 == 0 and NF + r // 40 < LA: emit_tile(a, w_tile(wpos(NF + r // 40), NF + r // 40))
        a.e(f"v_accvgpr_write_b32 a{r}, 0")
    for r in list(range(124, 156)) + list(range(160, 256)): a.e(f"v_mov_b32 v{r}, 0")
    if OPT["woq"]:
        a.e(f"s_lshr_b32 s{sTmp}, s{sB}, 3"); a.e(f"s_lshl_b32 s{sTmp}, s{sTmp}, 2"); a.e(f"s_and_b32 s{sT2}, s{sB}, 3"); a.e(f"s_add_u32 s{sTmp}, s{sTmp}, s{sT2}")
        a.e(f"s_lshl_b32 s{sTmp}, s{sTmp}, 2"); a.e(f"s_add_u32 s{sTmp}, s{sTmp}, s{sWv}"); a.e(f"s_mul_i32 s{sTmp}, s{sTmp}, 5120")
        a.e("v_min_u32 v7, 39, v0"); a.e(f"v_lshl_add_u32 v7, v7, 7, s{sTmp}")
    a.raw_wait(f"s_waitcnt vmcnt({2 * (LA - 2)}) lgkmcnt(0)")
    a.e("s_barrier")
    for r in rd_x(0): a.e(r)
    for i in range(8):
        for r in rd_w(Wreg(0, i), wpos(0), i): a.e(r)
    a.raw_wait("s_waitcnt lgkmcnt(0)"); a.lg = []
    if OPT["qprof"] == 1: stamp(a, 5); stamp(a, 6, False)
    def lperm(n, last):
        return 8 + 4 * ((n - 8) & 1) + ((n - 8) >> 1) if last and OPT["cvo"] and 8 <= n < 16 else n
    def qmf(n, last=False):
        s, pos = divmod(lperm(n, last) % 16, 4)
        return [mf(Qacc(pos, i, j), Wreg(n & 1, i), Xreg((s >> 1) & 1, j, s & 1), Qacc(pos, i, j)) for i in range(8) for j in zj(i)]
    cvq = conv_ops(Qacc, 0, QBANK[3], [76, 84, 92])
    def early(S, half, h0, gaps):
        pre = [x.replace(f"s{sOff},", f"s{sOff2},") for x in unit_pre(sKn, 0)[4*half:4*half+4]]
        if half == 0: pre = [f"s_cmp_ge_u32 s{sKn}, s{sMin}", "s_cselect_b64 vcc, -1, 0", f"s_cselect_b32 s{sC1}, 0, 8192"] + pre
        else: pre = pre + [f"s_add_u32 s{sKn}, s{sKn}, s{sC1}"]
        for x, h_ in zip(pre, h0): S.h(h_, x)
        place_guarded(a, S, unit_dma(sOff2, sOff2)[2*half:2*half+2], gaps)
    def q_group(last):
        for n in range(16):
            a.c(f"Q sub-step {n}{' (last group)' if last else ''}")
            S = Sched(a, qmf(n, last))
            fin = last and n == 15
            q = n % 8
            xrd = q in (6, 7) and not (last and n >= 8)
            if not fin:
                rds = []
                for i in range(8): rds += rd_w(Wreg((n + 1) & 1, i), wpos(n + 1), i)
                for r, p in zip(rds, RDPOS): S.v(p, r)
                m = n + LA
                if not last or m < 16: place_tile(a, S, w_tile(wpos(m), lperm(m, last)), (6, 11))
                KVN = {8: 7, 9: 8, 10: 9, 11: 10, 12: 11, 13: 12} if not OPT["kvconv"] else {4: 7, 11: 8} if OPT["kvconv"] == 1 else {4: 7}
                if last and n in KVN: place_tile(a, S, kv_tile(KVN[n], KVN[n] >> 1), (16, 19))
                if not (last and n == 14):
                    hi = min(m, 15) if last else m
                    ykv = len([k for k in KVN if n + 2 - LA <= k <= n]) if last else 0
                    end_sync(a, S, 2 * (hi - (n + 2)) + 2 * ykv, 5 if xrd else 2)
            if xrd:
                rx = rd_x(((n >> 3) + 1) & 1)[3*(q-6):3*(q-6)+3]
                if q == 6: S.h(16, lambda: vmw(a, 8))
                for r, p in zip(rx, (19, 20, 21)): S.v(p, (r, "xr"))
            if q in (0, 1, 2) and not (last and n >= 8):
                if q == 0: S.h(12, lambda: a.wait(lg="xr"))
                place_tile(a, S, x_block(q, 128, sXo, "s_xor_b32") if n < 8 else x_block(q, 256, sXo), (16, 19))
            if n in (11, 12) and not last: early(S, n - 11, (0, 1, 2, 3, 7, 8, 12), (16, 19))
            if n == 4 and not last and OPT["woq"]:
                S.h(13, f"s_lshr_b32 s{sOff2}, s{sXo}, 8"); S.h(14, f"s_mul_i32 s{sOff2}, s{sOff2}, 163840")
                S.v(16, lambda: a._emit(f"buffer_load_dword v9, v7, {sr(sWo,4)}, s{sOff2} offen"))
            if n == 15 and not last:
                S.h(12, f"s_mov_b32 s{sWq}, s{sWq1}")
                S.h(13, f"s_add_u32 s{sWq1}, s{sWq1}, {1 << 20}")
                S.h(14, f"s_add_u32 s{sXo}, s{sXo}, 256")
                S.h(15, f"s_cmp_lt_u32 s{sXo}, 1024")
            if last and n == 3: S.h(1, SCALE)
            if last and n >= 10 and OPT["cvo"]: cvq[:] = fill_ops(S, cvq, 4 if n == 10 else 0)
            S.emit(None if fin else qmf(n + 1, last)[0])
    a.e(".p2align 6")
    a.e("L_q:")
    if OPT["qprof"] == 3:
        a.e(f"s_lshr_b32 s{sT3}, s{sXo}, 8"); stamp_dyn(a, 4, sT3, 4)
    mark = len(a.ins); nops0 = a.nops
    q_group(False)
    lg_end = list(a.lg)
    del a.ins[mark:]; a.nops = nops0
    q_group(False)
    assert a.lg == lg_end
    a.e("s_cbranch_scc1 L_q")
    if OPT["ct2"]: code_touch(a, "L_enter", "L_q2b" if T else "L_altwo", 10, 11, back=bool(OPT["pro2"]))
    if OPT["ramp"]: late_setup()
    if OPT["qprof"] == 3: stamp(a, 8)
    q_group(True)
    if OPT["qprof"] == 1: stamp(a, 7); stamp(a, 8, False)
    stamp(a, 3)
    a.c("Q conversion")
    tmp = [60 + 8 * k for k in range(8)]
    rest = cvq + conv_ops(Qacc, 1, QBANK[2], tmp) + conv_ops(Qacc, 2, QBANK[1], tmp) + conv_ops(Qacc, 3, None, tmp)
    steps = [s_ for m in range(10 - OPT["kvconv"], 13) for s_ in kv_tile(m, m >> 1)] if OPT["kvconv"] else []
    at = {int((k + 0.3) * len(rest) / len(steps)): s_ for k, s_ in enumerate(steps)}
    for k, x in enumerate(rest):
        if k in at:
            for y in at[k][0]: a.e(y)
        a.e(x)
        if k in at: a._emit(at[k][1])
    late_consts(a)
    bootstrap()
    a.e("s_branch L_enter")
    a.e("L_p1:")
    a.lg = []
    if not OPT["pro2"]:
        for j in range(3): emit_tile(a, x_block(j, 0, sXo, lds=VB-XB))
        for n in range(NF): emit_tile(a, w_tile(wpos(n), n, 2))
    a.e(f"s_xor_b32 s{sXo1}, s{sXo}, 128")
    for j in range(3): emit_tile(a, x_block(j, 0, sXo1))
    setup("L_q2")
    late_consts(a)
    a.e(f"s_mov_b32 s{sPre}, 1")
    assert OPT["cvo"] or not OPT["lateq"]
    if OPT["lateq"]: a.e(f"s_mov_b32 s{sMin}, 0")
    L0 = 5 if OPT["ramp"] else LA
    assert not OPT["ramp"] or (OPT["latekv"] and LA == 7 and OPT["ct2"])
    for n in range(NF, L0): emit_tile(a, w_tile(wpos(n), n, 2))
    a.e(f"v_subrev_u32 v12, {XB-VB}, v{vXA0}"); a.e(f"v_subrev_u32 v13, {XB-VB}, v{vXA1}")
    a.raw_wait(f"s_waitcnt vmcnt({2 * (L0 - 2)}) lgkmcnt(0)")
    for j in range(3):
        for s in range(2): a.e(f"ds_read_b128 {R(X2reg(0, j, s),4)}, v{12+s} offset:{j*2048}")
    a.e("L_q2go:")
    a.e("s_barrier")
    for i in range(8):
        for r in rd_w(Greg(0, i), wpos(0), i): a.e(r)
    a.raw_wait("s_waitcnt lgkmcnt(0)"); a.lg = []
    def q2_group(kind):
        first, last = kind == 0, kind == 2
        for n in range(8):
            a.c(f"Q2 sub-step {n} ({('first', 'loop', 'last')[kind]})")
            S = Sched(a, q2mf(n, first))
            cl, q = divmod(n, 4)
            fin = last and n == 7
            xrd = q < 3 and not (last and cl == 1)
            def xd(k): return k % 4 < 3 and not (last and k >= 0) and not (first and k < 0)
            def wd(k): return not (last and k + LA >= 8)
            def kd(k): return last and 0 <= k <= 5
            if not fin:
                rds = []
                for i in range(8): rds += rd_w(Greg((n + 1) & 1, i), wpos(n + 1), i)
                for r, p in zip(rds, RDPOS_X): S.v(p, r)
            rampd = first and OPT["ramp"]
            if rampd:
                m0_ = n + 5 + (n > 3)
                place_tile(a, S, w_tile(wpos(m0_), m0_, 2), (4, 7))
                if q == 3: place_tile(a, S, w_tile(wpos(m0_ + 1), m0_ + 1, 2), (10, 13))
            elif wd(n): place_tile(a, S, w_tile(wpos(n + LA), n + LA, 2), (4, 7))
            if kd(n): place_tile(a, S, kv_tile(7 + n, (7 + n) >> 1), (10, 13))
            if xrd:
                for s in range(2): S.v(s, (rd_xb(X2reg(1 - cl, q, s), q, s), "xr"))
            if xd(n):
                S.h(7, lambda: a.wait(lg="xr"))
                place_tile(a, S, x_block(q, 256, (sXo, sXo1)[cl]), (10, 13))
            if q == 3 and not last and not (first and OPT['latekv']): early(S, cl, (0, 0, 1, 1, 4, 7, 8) if cl == 0 else (0, 0, 1, 1, 4), (10, 13))
            if n == 7 and not last:
                S.h(16, f"s_mov_b32 s{sWq}, s{sWq1}")
                S.h(17, f"s_add_u32 s{sWq1}, s{sWq1}, {1 << 20}")
                S.h(18, f"s_add_u32 s{sXo1}, s{sXo1}, 256")
                S.h(19, f"s_add_u32 s{sXo}, s{sXo}, 256")
                S.h(20, f"s_cmp_lt_u32 s{sXo}, 1024")
            if not (last and n >= 6):
                k0 = n + 2 - LA
                vm = sum(2 * wd(k) for k in range(k0 + 1, n + 1)) + sum(2 * kd(k) for k in range(k0, n + 1))
                if (n + 1) % 4 < 3 and not (last and n + 1 >= 4) and xd(n - 3):
                    vm = min(vm, sum(2 * wd(k) + 2 * xd(k) + 2 * kd(k) for k in range(n - 2, n + 1)))
                if rampd and n == 0: vm = min(vm, 8)
                if n == 7 and OPT['cvo']: vm = min(vm, 8)
                end_sync(a, S, vm, 5)
            S.emit(None if fin else q2mf(n + 1, first and n < 7)[0])
    a.e("L_q2:")
    q2_group(0)
    lg_in = list(a.lg)
    a.e(".p2align 6")
    a.e("L_q2l:")
    q2_group(1)
    assert a.lg == lg_in
    a.e("s_cbranch_scc1 L_q2l")
    if OPT["ct2"]:
        assert not OPT["ramp"]
        code_touch(a, "L_enter", "L_q2b" if T else "L_altwo", 10, 11)
    cv2 = conv_ops(Q2acc, 0, "keep", [0])
    if not OPT["cvo"]:
        q2_group(2); a.e(SCALE)
    else:
        order = [0, 2, 4, 6, 1, 3, 5, 7]
        def mfs(n):
            s, pos = divmod(order[n], 2)
            return [mf(Q2acc(pos, i, j), Greg(n & 1, i), X2reg(s >> 1, j, s & 1), Q2acc(pos, i, j)) for i in range(8) for j in zj(i)]
        kvat = {0: [7], 1: [8], 5: [9, 10], 6: [11, 12]}
        for n in range(8):
            a.c(f"Q2 sub-step {n} (last)")
            S = Sched(a, mfs(n))
            if n < 7:
                rds = []
                for i in range(8): rds += rd_w(Greg((n + 1) & 1, i), wpos(order[n + 1]), i)
                for r, p in zip(rds, RDPOS_X): S.v(p, r)
            if n == 0:
                place_tile(a, S, w_tile(wpos(7), 7, 2), (4, 7)); S.h(14, SCALE)
                for s in range(2): S.v(s, rd_xb(X2reg(1, 0, s), 0, s))
            if n == 1:
                for k, p in enumerate((0, 1, 4, 7)): S.v(p, rd_xb(X2reg(1, 1 + (k >> 1), k & 1), 1 + (k >> 1), k & 1))
            for m, gp in zip(kvat.get(n, []), ((10, 13),) if n < 2 else ((4, 7), (10, 13))):
                un, half = divmod(m - 7, 2)
                pre = [x.replace(f"s{sOff},", f"s{sOff2},") for x in unit_pre(sKn, un * 8192)[4*half:4*half+4]]
                if gp[0] == 4: pre = [x.replace(f"s{sOff2},", f"s{sOff},") for x in pre]
                for x, h_ in zip(pre, (0, 0, 1, 2) if gp[0] == 4 else (0, 1, 4, 8) if n < 2 else (4, 5, 7, 8)): S.h(h_, x)
                so = sOff if gp[0] == 4 else sOff2
                place_tile(a, S, unit_dma(so, so)[2*half:2*half+2], gp)
            if n < 6: end_sync(a, S, {0: 6, 1: 6, 5: 8}.get(n, 20), 5)
            if n >= 4: cv2 = fill_ops(S, cv2, 4 if n == 4 else 0)
            S.emit(mfs(n + 1)[0] if n < 7 else None)
    if OPT["stamp"] and not OPT["qprof"]:
        a.e(f"s_lshr_b32 s{sT2}, s{sR}, 1"); stamp_dyn(a, 3, sT2, 2)
    a.c("Q2 conversion")
    for x in cv2: a.e(x)
    def bank_write(db, src):
        return [f"v_accvgpr_write_b32 a{db + 12*p + 4*j + x}, v{src(p, j)+x}" for p in range(4) for j in range(3) for x in range(4)]
    a.e(f"s_cmp_lg_u32 s{sR}, 0"); a.e("s_cbranch_scc1 L_cv2b")
    if OPT["touch"]:
        a.e("v_min_u32 v8, 39, v0"); a.e("v_lshrrev_b32 v9, 2, v8"); a.e("v_lshlrev_b32 v9, 13, v9")
        a.e("v_and_b32 v8, 3, v8"); a.e("v_lshl_add_u32 v9, v8, 7, v9")
        a.e(f"s_lshl_b32 s{sTmp}, s{sB}, 2"); a.e(f"s_add_u32 s{sTmp}, s{sTmp}, s{sWv}"); a.e(f"s_mul_i32 s{sTmp}, s{sTmp}, {10*8192}")
        a.e(f"s_add_u32 s{sTmp}, s{sTmp}, 512")
        a._emit(f"buffer_load_dword v{vD}, v9, {sr(sW,4)}, s{sTmp} offen")
    a.e(f"s_and_b32 s{sWq}, s{sWq}, 0xfffff"); a.e(f"s_xor_b32 s{sWq}, s{sWq}, 512"); a.e(f"s_add_u32 s{sWq1}, s{sWq}, {1 << 20}")
    a.e(f"s_and_b32 s{sXo}, s{sXo}, 128"); a.e(f"s_xor_b32 s{sXo1}, s{sXo}, 128")
    for x in bank_write(QBANK[1], lambda p, j: Q2acc(0, 2*p, j)): a.e(x)
    a.e("s_branch L_cv2c")
    a.e("L_cv2b:")
    if OPT["emu3"]:
        a.e(f"s_cmp_eq_u32 s{sPre}, 1"); a.e("s_cbranch_scc0 L_cv2d")
        a.e(f"s_mov_b32 s{sPre}, 14")
        a.e(f"s_and_b32 s{sWq}, s{sWq}, 0xfffff"); a.e(f"s_add_u32 s{sWq1}, s{sWq}, {1 << 20}")
        a.e(f"s_and_b32 s{sXo}, s{sXo}, 128"); a.e(f"s_xor_b32 s{sXo1}, s{sXo}, 128")
        a.raw_wait("s_waitcnt vmcnt(0)"); a.e("s_barrier")
        for n in range(LA): emit_tile(a, w_tile(wpos(n), n, 2))
        a.raw_wait("s_waitcnt vmcnt(0)")
        a.e("s_branch L_q2go")
        a.e("L_cv2d:")
    a.e("s_nop 7")
    for x in bank_write(QBANK[3], lambda p, j: Q2acc(0, 2*p, j)): a.e(x)
    bootstrap()
    a.e("L_cv2c:")
    for x in conv_ops(Q2acc, 1, None, [0]): a.e(x)
    a.e("L_enter:")
    a.e(f"v_mov_b32 v{vT}, 0x3f803f80")
    if OPT["sparse1"]:
        a.e(f"v_and_b32 v{vT+1}, 3, v0"); a.e(f"v_cmp_eq_u32 vcc, 0, v{vT+1}"); a.e(f"v_cndmask_b32 v{vT}, 0, v{vT}, vcc")
    for r in range(4): a.e(f"v_accvgpr_write_b32 a{ONES[1]+r}, v{vT}")
    def rd_k(dst, t, u): return [f"ds_read_b128 {vr(dst + 4*ks,4)}, v{vKA} offset:{(t % 8)*TILE + u*512 + ks*64}" for ks in range(4)]
    def rd_v(t, half, fr=VF):
        return [f"ds_read_b64_tr_b16 {vr(fr + 4*i + 2*e, 2)}, v{vVA} offset:{(t % 8)*TILE + e*512 + (4*half+i)*32}" for i in range(4) for e in range(2)]
    assert not OPT["lateq"] and OPT["lmax"] == 3
    a.e(f"s_add_u32 s{sKc}, s{sKn}, {4*8192}"); a.e(f"s_mov_b32 s{sLag}, 0")
    assert OPT["cvo"] or not T
    THR = OPT['thr'] + 1 if OPT['dyn'] else 99
    a.e(f"s_cmp_eq_u32 s{sTyp}, 0"); a.e(f"s_cselect_b32 s{sThr}, {0 if OPT['sh1'] else THR}, {THR}")
    vmw(a, 12)
    a.e("s_barrier")
    a.lg = []
    for r in rd_k(KF, 0, 0) + rd_k(VF, 0, 1): a.e(r)
    for x in unit_pre(sKn, 3 * 8192): a.e(x)
    a.wait(lg="all")
    def ex(u, k): j, r = divmod(k, 4); s = Sr(u, j) + r; return f"v_exp_f32 v{s}, v{s}"
    def cv(u, buf, c): j, h = divmod(c, 2); s = Sr(u, j) + 2*h; return f"v_cvt_pk_bf16_f32 v{Pr(buf,j) + 2*u + h}, v{s}, v{s+1}"
    def qk(u): return [mf(Sr(u, j), KF + 4*ks, Qf(j, ks), Nm(j) if ks == zk(j)[0] else Sr(u, j)) for j in range(3) for ks in zk(j)]
    def pv(t, half, fr=VF): return [mf(Or(4*half + i, j), fr + 4*i, Pr(t & 1, j), None if t == 0 else Or(4*half + i, j)) for i in range(4) for j in zj(i)]
    def sm(t): return [mf(La(j), ONES, Pr(t & 1, j), None if t == 0 else La(j)) for j in zj(1)]
    VMW = min(4 * (5 - OPT["lmax"]), OPT["vmw"])
    decide = [f"s_getreg_b32 s{sC1}, hwreg(HW_REG_IB_STS, 0, 4)", f"s_cmp_ge_u32 s{sC1}, s{sThr}", f"s_cselect_b32 s{sC1}, s{sLag}, 15",
              f"s_cmp_lt_u32 s{sC1}, {OPT['lmax']}"]
    advance = [f"s_mov_b32 s{sOff}, s{sOff2}", f"s_mov_b32 s{sMv}, s{sMk}", f"s_add_u32 s{sKc}, s{sKc}, 8192"]
    recompute = [f"s_xor_b32 s{sOff2}, s{sKc}, s{sRot}", f"s_bfe_u32 s{sMk}, s{sKc}, 0x3000d", f"s_mul_i32 s{sMk}, s{sMk}, {TILE}"]
    skips = []
    def forked(build, nxt):
        l0, l1 = newlabel("df"), newlabel("dfb")
        a.e(f"s_cbranch_scc1 {l0}")
        lg = list(a.lg)
        build(True).emit(nxt)
        a.e(f"{l1}:")
        skips.append((l0, l1, build, nxt, lg, list(a.lg)))
    catch = []
    def wo_at(S, m, gaps):
        st, post = wo_tile(m)
        place_tile(a, S, st, gaps)
        for x in post: S.h(gaps[1], x)
    def tail_vec(S, u, buf, rds):
        pos = [0, 1, 4, 5, 8, 9, 10, 11]
        for r, p in zip(rds, pos): S.v(p, r)
        for k, p in zip(range(8, 12), (2, 3, 6, 7)): S.v(p, ex(u, k))
        for c, p in zip(range(6), (0, 1, 4, 5, 8, 9)): S.v(p, cv(u, buf, c))
    a.e("L_head:")
    a.c("tile 0: scores of the first 16 keys give the stand-in row max")
    def qk0(extra):
        S = Sched(a, [mf(Sr(0, j), KF + 4*ks, Qf(j, ks), None if ks == 0 else Sr(0, j)) for j in range(3) for ks in range(4)])
        S.h(2, lambda: vmw(a, VMW))
        for k, x in enumerate(decide): S.h(3 + k, x)
        for k, x in enumerate(extra[:24]): S.v(k // 2, x)
        S.emit(None)
        for x in extra[24:]: a.e(x)
        if not extra: a.e("s_nop 7")
    qk0([])
    a.e(".p2align 6")
    a.e("L_head2:")
    for j in range(3): a.e(f"v_max3_f32 v{Nm(j)}, v{Sr(0,j)}, v{Sr(0,j)+1}, v{Sr(0,j)+2}")
    for j in range(3): a.e(f"v_max_f32 v{Nm(j)}, v{Nm(j)}, v{Sr(0,j)+3}")
    rowred(a, "v_max_f32", [Nm(j) for j in range(3)], [Nm(j) + 1 for j in range(3)])
    for j in range(3):
        for r in (3, 2, 1, 0): a.e(f"v_sub_f32 v{Nm(j)+r}, 0, v{Nm(j)}")
    a.e("s_barrier")
    def qkb(issue):
        S = Sched(a, [mf(Sr(1, j), VF + 4*ks, Qf(j, ks), Nm(j) if ks == 0 else Sr(1, j)) for j in range(3) for ks in range(4)])
        for r, p in zip(rd_k(KF, 1, 0), (0, 3, 6, 9)): S.v(p, r)
        if issue:
            place_tile(a, S, unit_dma(), (2, 5, 8, 11))
            for x, p in zip(advance, (6, 8, 9)): S.h(p, x)
        else: S.h(1, f"s_add_u32 s{sLag}, s{sLag}, 1")
        subs = [f"v_add_f32 v{Sr(0,j)+r}, v{Sr(0,j)+r}, v{Nm(j)}" for j in range(3) for r in range(4)]
        for x, p in zip(subs, (0, 1, 1, 3, 4, 4, 6, 7, 7, 9, 10, 10)): S.v(p, x)
        return S
    forked(qkb, None)
    for k in range(12): a.e(ex(0, k))
    for k in range(8): a.e(ex(1, k))
    for c in range(6): a.e(cv(0, 0, c))
    a.wait(lg="all")
    def stage(t, mode):
        a.c(f"stage {t} {mode}")
        kv = mode == "kv"
        S = Sched(a, qk(0)); tail_vec(S, 1, t & 1, rd_v(t, 0))
        if kv:
            for k, x in enumerate(recompute): S.h(1 + k, x)
        if kv and OPT["dyn"] and OPT["thr2"] >= 0 and t >= OPT["cufrom"] and (t - OPT["cufrom"]) % OPT["custep"] == 0:
            l0, l1 = newlabel("cu"), newlabel("cub")
            cm = [f"s_add_u32 s{sC1}, s{sC1}, {THR - OPT['thr2']}", f"s_cmp_le_u32 s{sC1}, s{sThr}"] if OPT["gate"] else ["s_nop 0", f"s_cmp_le_u32 s{sC1}, {OPT['thr2']}"]
            for k, x in enumerate([f"s_getreg_b32 s{sC1}, hwreg(HW_REG_IB_STS, 0, 4)"] + cm +
                                  [f"s_cselect_b32 s{sC1}, s{sLag}, 0", f"s_cmp_gt_u32 s{sC1}, 0"]): S.h(5 + k, x)
            def site(l0=l0, l1=l1): a.e(f"s_cbranch_scc1 {l0}"); a.e(f"{l1}:")
            S.h(10, site)
            catch.append((l0, l1, t))
        S.emit(pv(t, 0)[0])
        S = Sched(a, pv(t, 0))
        for r, p in zip(rd_k(KF, t+1, 1), (0, 1, 2, 3)): S.v(p, r)
        for k, p in zip(range(8), range(4, 12)): S.v(p, ex(0, k))
        S.h(10, lambda: a.wait(lg="all"))
        if mode == "wq" and t == 13: place_tile(a, S, x_block(1, 0, sXo) + x_block(2, 0, sXo), (2, 4, 7, 9))
        S.emit(qk(1)[0])
        S = Sched(a, qk(1)); tail_vec(S, 0, (t+1) & 1, rd_v(t, 1))
        if kv:
            if t == OPT["sh1t"]: S.h(2, f"s_mov_b32 s{sThr}, {THR}")
            if t == 9 and OPT["sh2"] and T:
                S.h(2, f"s_cmp_eq_u32 s{sR}, s{sPre}"); S.h(3, f"s_cselect_b32 s{sThr}, 0, s{sThr}")
            S.h(6, lambda: vmw(a, VMW))
            for k, x in enumerate(decide): S.h(7 + k, x)
        else:
            S.h(11, lambda: vmw(a, {"wo": 8, "wq": 8 if t < 14 else 4}[mode]))
        S.emit(None)
        def dslot(issue):
            S = Sched(a, sm(t) + pv(t, 1))
            S.h(0, "s_barrier")
            if t + 2 < 16:
                for r, p in zip(rd_k(KF, t+2, 0), (0, 1, 2, 3)): S.v(p, (r, "kr"))
            else:
                for r, p in zip(rd_v(15, 0, KF), (0, 1, 2, 3, 4, 6, 7, 9)): S.v(p, (r, "kr"))
                S.v(10, cv(1, 1, 0)); S.v(12, cv(1, 1, 1))
                if mode == "wq":
                    for k, p in enumerate((0, 1, 2, 5, 8, 10)): S.v(p, (rd_xb(X2reg(0, k >> 1, k & 1), k >> 1, k & 1), "kr"))
            for k, p in zip(range(8), (3, 4, 6, 7, 9, 10, 12, 13)): S.v(p, ex(1, k))
            def vwait(keep):
                def f():
                    idx = [n for n, (tg, d) in enumerate(a.lg) if tg != "kr"]
                    if len(idx) > keep: a._wait(lg_idx=idx[len(idx) - 1 - keep])
                return f
            S.h(1, vwait(4)); S.h(6, vwait(0))
            if kv and issue:
                place_tile(a, S, unit_dma(), (5, 8, 11, 14))
                for x, p in zip(advance, (9, 11, 3)): S.h(p, x)
            elif kv: S.h(3, f"s_add_u32 s{sLag}, s{sLag}, 1")
            elif mode == "wo":
                wo_at(S, 2*(t-12), (5, 8)); wo_at(S, 2*(t-12) + 1, (11, 14))
            else:
                if t == 12: place_tile(a, S, x_block(0, 0, sXo), (5, 8))
                else: place_tile(a, S, w_tile(2*t - 17, 2*t - 25, 2), (5, 8))
                place_tile(a, S, w_tile(2*t - 16, 2*t - 24, 2), (11, 14))
            S.h(12 if t < 14 else 14, lambda: a.wait(lg="all"))
            return S
        nxt = qk(0)[0] if t < 14 else None
        if kv: forked(dslot, nxt)
        else: dslot(True).emit(nxt)
        assert not a.lg
    NPRE = 20
    def epi_ops(toq):
        o_ = [f"v_mul_f32 v{Or(u,j)+r}, v{Or(u,j)+r}, v{vT+j}" for u in range(2) for j in range(3) for r in range(4)]
        for p in range(4):
            for j in range(3):
                d = Qf(j, p) if toq else Or(2*p, j)
                if p: o_ += [f"v_mul_f32 v{Or(2*p+u,j)+r}, v{Or(2*p+u,j)+r}, v{vT+j}" for u in range(2) for r in range(4)]
                o_ += [f"v_cvt_pk_bf16_f32 v{d+2*u+h}, v{Or(2*p+u,j)+2*h}, v{Or(2*p+u,j)+2*h+1}" for u in range(2) for h in range(2)]
        return o_
    def stage15(mode):
        a.c(f"stage 15 {mode}")
        p0 = pv(15, 0, KF)
        S = Sched(a, [m_ for j in range(3) for m_ in [sm(15)[zj(1).index(j)]] + [p0[3*i + zj(i).index(j)] for i in range(4)]] + pv(15, 1))
        for r, p in zip(rd_v(15, 1), (0, 1, 6, 7, 8, 9, 10, 11)): S.v(p, r)
        for c, p in zip((2, 3, 4, 5), (0, 1, 6, 7)): S.v(p, cv(1, 1, c))
        for k, p in zip(range(8, 12), (2, 3, 4, 5)): S.v(p, ex(1, k))
        for j, p in enumerate((8, 9, 14)): S.v(p, f"v_accvgpr_read_b32 v{vT+j}, a{La(j)[1]}")
        S.v(10, f"v_add_f32 v{vT+3}, v{vT}, v{vT+1}"); S.v(14, f"v_add_f32 v{vT+3}, v{vT+3}, v{vT+2}")
        S.v(11, f"v_mov_b32 v{vT+4}, {f32(2.0**30 if not OPT['forceslow'] else 150.0)}")
        S.v(15, f"v_cmp_nle_f32 vcc, v{vT+3}, v{vT+4}")
        for j, p in enumerate((12, 13, 16)): S.v(p, f"v_rcp_f32 v{vT+j}, v{vT+j}")
        if mode != "wo":
            for k, x in enumerate(epi_ops(0)[:NPRE]): S.v(17 + k // 2, x)
        if mode == "kv":
            for k, x in enumerate(recompute): S.h(1 + k, x)
        if mode == "wo":
            for k in range(3): wo_at(S, 6 + k, (11 + 6*k, 14 + 6*k))
        if mode == "wq":
            place_tile(a, S, [s_ for j in range(3) for s_ in x_block(j, 0, sXo1)], (12, 14, 17, 19, 22, 24))
        S.emit(None)
        assert not a.lg
        if not OPT["nocheck"]: a.e("s_cbranch_vccnz L_slow")
    for t in range(15):
        if t == 12:
            a.e(f"s_cmp_eq_u32 s{sR}, 3"); a.e("s_cbranch_scc1 L_altwo")
            if T: a.e(f"s_cmp_eq_u32 s{sR}, s{sPre}"); a.e("s_cbranch_scc1 L_altwq")
        stage(t, "kv")
    stage15("kv")
    a.e("L_epi:")
    for r in rd_k(KF, 0, 0) + rd_k(VF, 0, 1): a.e(r)
    lg_epi = list(a.lg)
    for x in epi_ops(0)[NPRE:]: a.e(x)
    if OPT["stamp"] and not OPT['qprof']: stamp_dyn(a, 5, sR, 4)
    a.e(f"s_add_u32 s{sCur}, s{sCur}, 131072")
    a.e(f"s_add_u32 s{sR}, s{sR}, 1")
    a.e(f"s_cmp_eq_u32 s{sR}, 3"); a.e("s_cbranch_scc1 L_sw2")
    a.e(f"s_cmp_eq_u32 s{sR}, 2"); a.e("s_cbranch_scc1 L_sw1")
    for r in range(3):
        a.e(f"L_sw{r}:")
        if r == 1 and T: a.e(f"s_cmp_eq_u32 s{sPre}, 1"); a.e("s_cbranch_scc1 L_q2b")
        if r < 2: code_touch(a, "L_rare", "L_altwo" if r == 0 or not T else "L_q2b", 10, 11)
        if r == 2:
            code_touch(a, "L_rare", "L_hot_end", 158, 159)
            l = newlabel("bp")
            a.e(f"s_cmp_lg_u32 s{sWv}, 0"); a.e(f"s_cbranch_scc1 {l}")
            a._emit("global_load_dword v156, v157, s[18:19] sc1")
            a.e(f"{l}:")
        for j in range(3):
            for p in range(4):
                for x in range(4): a.e(f"v_accvgpr_read_b32 v{Qf(j,p)+x}, a{QBANK[r+1] + 12*p + 4*j + x}")
        a.raw_wait("s_waitcnt lgkmcnt(0)"); a.lg = []
        qk0(bank_write(OBANK[r], lambda p, j: Or(2*p, j)))
        a.e("s_branch L_head2")
    a.e("L_rare:")
    for l0, l1, t in catch:
        a.e(f"{l0}:")
        emit_tile(a, unit_dma())
        for x in advance + recompute: a.e(x)
        a.e(f"s_sub_u32 s{sLag}, s{sLag}, 1")
        a.e(f"s_branch {l1}")
    for l0, l1, build, nxt, lg0, lg1 in skips:
        a.e(f"{l0}:")
        a.lg = list(lg0)
        build(False).emit(nxt)
        assert a.lg == lg1
        a.e(f"s_branch {l1}")
    if T:
        a.e("L_q2b:")
        for x in bank_write(OBANK[1], lambda p, j: Or(2*p, j)): a.e(x)
        a.e(f"s_sub_u32 s{sKn}, s{sKc}, 8192"); a.e(f"s_add_u32 s{sMin}, s{sCur}, {3*8192}")
        a.raw_wait("s_waitcnt vmcnt(0) lgkmcnt(0)")
        if L0 > 5: a.e("s_barrier")
        for n in range(5, L0): emit_tile(a, w_tile(wpos(n), n, 2))
        a.e("s_branch L_q2go")
        a.e(".p2align 6")
        a.e("L_altwq:")
        a.lg = []
        for t in range(12, 15): stage(t, "wq")
        stage15("wq")
        a.e("s_branch L_epi")
    a.e(".p2align 6")
    a.e("L_altwo:")
    a.lg = []
    for t in range(12, 15): stage(t, "wo")
    stage15("wo")
    sPr, sOut, sOo, sDst = sX, sW, sLast, 40
    LD = {0: 184, 1: 130}
    ACC, STG = 60, 160
    vSA, vSB, vLA, vLB, vOA, vFl, vFi, vPoll, vVal, TM, PK = 152, 153, 154, 158, 159, 1, 2, 6, 10, 120, 124
    def Ga(h, i, j): return (72, 208)[h] + 12 * i + 4 * j
    def spin_loop(l0, l1, cmp, reload):
        a.e(f"{l0}:")
        a.e(f"s_mov_b32 s{sT3}, 0")
        l2 = newlabel("spin")
        a.e(f"{l2}:")
        a.e(f"s_add_u32 s{sT3}, s{sT3}, 1")
        a.e(f"s_cmp_ge_u32 s{sT3}, {SPIN_MAX}")
        a.e(f"s_cbranch_scc1 {l1}")
        a.e(f"s_sleep {OPT['sleep']}")
        a._emit(reload)
        a.raw_wait("s_waitcnt vmcnt(0)")
        for x in cmp: a._emit(x)
        a._emit("s_nop 4")
        a.e(f"s_cbranch_vccnz {l2}")
        a.e(f"s_branch {l1}")
    spins = []
    def rd_g(dst, m, f):
        h, o = slot(m); i, c = divmod(f, 2)
        return [f"ds_read_b64_tr_b16 {R(off(dst, 2*e), 2)}, v{(vWAl, vWAh)[h]} offset:{o + c*512 + e*256 + i*32}" for e in range(2)]
    def gmf(n):
        h, t = divmod(n % 16, 8)
        o = []
        for i in range(4):
            for jn, j in enumerate(zj(i)):
                cs = (1, 0) if OPT["zz"] and (3 * i + jn) & 1 else (0, 1)
                for c in cs:
                    r, p = divmod(2 * t + c, 4)
                    o.append(mf(Ga(h, i, j), Greg(n & 1, 2*i + c), Qf(j, p) if r == 3 else ("a", OBANK[r] + 12 * p + 4 * j), None if t == 0 and c == cs[0] else Ga(h, i, j)))
        return o
    a.e("L_g:")
    a.lg = []
    if OPT["stamp"] and not OPT['qprof']: stamp(a, 8)
    if OPT["qprof"] == 4: stamp(a, 4)
    a.e(f"v_lshrrev_b32 v{TM}, 5, v0"); a.e(f"v_lshlrev_b32 v{TM}, 7, v{TM}")
    a.e(f"v_sub_u32 v{vWAh}, v{vVA}, v{TM}"); a.e(f"v_subrev_u32 v{vWAl}, {VB}, v{vWAh}")
    a.e(f"v_mov_b32 v{TM+1}, {XB}")
    vmw(a, 12)
    l, l0, l1 = newlabel("bc"), newlabel("bs"), newlabel("bok")
    a.e(f"s_cmp_lg_u32 s{sWv}, 0"); a.e(f"s_cbranch_scc1 {l}")
    bcmp = [f"v_and_b32 v{TM}, 0xff, v156", f"v_cmp_gt_u32 vcc, 8, v{TM}"]
    for x in bcmp: a._emit(x)
    a.e(f"s_lshl_b32 s{sTmp}, s{sPK}, 3")
    a._emit("s_nop 3")
    if not OPT["nosync"]: a.e(f"s_cbranch_vccnz {l0}")
    a.e(f"{l1}:")
    spins.append((l0, l1, bcmp, "global_load_dword v156, v157, s[18:19] sc1"))
    a.e(f"v_xor_b32 v156, s{sTmp}, v156")
    a._emit(f"ds_write_b32 v{TM+1}, v156")
    a.e(f"{l}:")
    a.e("s_barrier")
    for f in range(8):
        for r in rd_g(Greg(0, f), 0, f): a.e(r)
    epi = epi_ops(1)
    for x in epi[:16]: a.e(x)
    epi = epi[16:]
    def srd_atoms(d, lo, o): return [[f"s_add_u32 s{d}, s{lo}, {o}", f"s_addc_u32 s{d+1}, s{lo+1}, 0"], [f"s_and_b32 s{d+1}, s{d+1}, 0xffff"], [f"s_mov_b32 s{d+3}, 0x20000"]]
    T1_, T2_ = f"s{sTmp}", f"s{sT2}"
    setup_ = [[f"s_mul_i32 {T1_}, s{sG}, {XG}"]] + srd_atoms(sP, 28, T1_) + [[f"s_mov_b32 s{sP+2}, {XG}"], [f"s_mul_i32 {T2_}, s{sU}, {XD}"], [f"s_add_u32 {T1_}, {T1_}, {T2_}"]]
    setup_ += srd_atoms(sPr, 28, T1_) + [[f"s_mov_b32 s{sPr+2}, 0"]]
    if OPT["ibg"]:
        setup_ += [[x] for x in (f"s_mul_i32 {T2_}, s{sWv}, 1536", f"s_add_u32 {T2_}, {T2_}, {T1_}", f"s_add_u32 {T2_}, {T2_}, {5*XP}",
            "v_min_u32 v130, 47, v0", "v_mul_u32_u24 v132, 43, v130", "v_lshrrev_b32 v132, 9, v132", "v_lshlrev_b32 v130, 7, v130",
            "v_mul_u32_u24 v132, 4608, v132", f"v_add3_u32 v130, v130, v132, {T2_}", f"s_add_u32 {T2_}, {T2_}, {XD - 6144 + 1408}",
            "v_add_u32 v131, 24576, v130", f"v_min_u32 v131, {T2_}, v131")]
    for i in range(7):
        setup_ += [[f"s_xor_b32 s{sDst+i}, s{sU}, {i ^ 7}"], [f"s_mul_i32 s{sDst+i}, s{sDst+i}, {XD}"], [f"s_add_u32 s{sDst+i}, s{sDst+i}, {i*6144}"]]
    setup_ += [[f"s_mul_i32 {T1_}, s{sB}, 491520"], [f"s_mul_i32 {T2_}, s{sBr}, 1280"], [f"s_add_u32 {T1_}, {T1_}, {T2_}"], [f"s_lshl_b32 {T2_}, s{sU}, 5"], [f"s_add_u32 {T1_}, {T1_}, {T2_}"]]
    setup_ += srd_atoms(sOut, 16, T1_) + [[f"s_mov_b32 s{sOut+2}, 0"]]
    setup_ += [[x] for x in (f"s_mul_i32 {T1_}, s{sWv}, 1536", f"v_lshl_add_u32 v{vSA}, v0, 4, {T1_}", f"s_add_u32 {T1_}, {T1_}, 1024", f"v_lshl_add_u32 v{vSB}, v0, 3, {T1_}",
        *((f"v_and_b32 v{TM}, 15, v0", f"v_mul_u32_u24 v{TM}, 2560, v{TM}", f"v_lshrrev_b32 v{TM+3}, 4, v0", f"v_lshl_add_u32 v{TM}, v{TM+3}, 3, v{TM}") if not OPT["bp"] else
          (f"v_lshrrev_b32 v{TM}, 2, v0", f"v_and_b32 v{TM+3}, 3, v0", f"v_lshl_add_u32 v11, v{TM+3}, 4, v{TM}", "v_lshlrev_b32 v11, 2, v11",
           f"v_mul_u32_u24 v{TM}, 2560, v{TM}", f"v_lshl_add_u32 v{TM}, v{TM+3}, 3, v{TM}")),
        f"s_mul_i32 {T1_}, s{sWv}, {48*2560}", f"v_add_u32 v{vOA}, {T1_}, v{TM}",
        f"s_lshl_b32 {T1_}, s{sWv}, 7", f"s_lshl_b32 {T2_}, s{sU}, 2", f"s_add_u32 {T2_}, {T2_}, {T1_}", f"v_lshl_add_u32 v{vFl}, v0, 9, {T2_}",
        f"s_lshl_b32 {T2_}, s{sU}, 9", f"s_add_u32 {T2_}, {T2_}, {T1_}", f"v_and_b32 v{TM}, 7, v0", f"v_lshl_add_u32 v{vFi}, v{TM}, 2, {T2_}",
        f"v_mov_b32 v{vVal}, 0", f"v_mov_b32 v{vPoll}, 0", f"s_mov_b32 s{sGc}, 0" if not OPT["emu3"] else f"s_lshl_b32 s{sGc}, s{sTyp}, 1", f"s_mov_b32 s{sOo}, -512" if not OPT["emu3"] else f"s_mov_b32 s{sOo}, 0", f"s_mov_b32 s{sS8}, 0xffff0000")]
    if OPT["mred"]:
        sel_ = [x for x in ("v_and_b32 v134, 1, v0", "v_lshlrev_b32 v134, 4, v134", "v_mov_b32 v135, 0x3f80", "v_lshlrev_b32 v134, v134, v135",
            "v_bfe_u32 v135, v0, 1, 3", "v_lshrrev_b32 v136, 4, v0", "v_lshlrev_b32 v136, 1, v136", "v_xor_b32 v135, v135, v136",
            "v_cmp_eq_u32 vcc, 0, v135", "v_mov_b32 v142, 0", "v_cndmask_b32 v136, 0, v134, vcc", "v_cmp_eq_u32 vcc, 1, v135", "v_mov_b32 v143, 0",
            "v_cndmask_b32 v137, 0, v134, vcc", "v_accvgpr_write_b32 a0, v136", "v_accvgpr_write_b32 a2, v136", "v_accvgpr_write_b32 a1, v137",
            "v_accvgpr_write_b32 a3, v137", "v_mov_b32 v148, 0", "v_mov_b32 v149, 0")]
    m = 9
    Ss = []
    for n in range(8):
        S = Sched(a, gmf(n)); Ss.append(S)
        rds = []
        for f in range(8): rds += rd_g(Greg((n + 1) & 1, f), n + 1, f)
        for r, p in zip(rds, RDPOS): S.v(p, r)
        for gp in ([(6, 11), (16, 19)] if n < 4 else [(6, 11)]): wo_at(S, m, gp); m += 1
        if n % 4 == 1: end_sync(a, S, {1: 12, 5: 16}[n], 0)
        else: S.h(22, lambda: a.wait(lg="all"))
        if n == 2: S.v(20, f"ds_read_b32 v{TM+2}, v{TM+1}")
        if OPT["ibg"] and n == OPT["ibn"]: S.v(16, lambda: a._emit(f"global_load_dword v132, v130, s[28:29]"))
        if OPT["ibg"] and n == min(7, OPT["ibn"] + 3): S.v(16, lambda: a._emit(f"global_load_dword v133, v131, s[28:29]"))
        if n == 7:
            S.v(19, f"v_readfirstlane_b32 s{sTmp}, v{TM+2}"); S.h(21, f"s_cmp_lg_u32 s{sTmp}, 0")
    assert m == 21
    n, k = 0, 0
    for atom in setup_:
        while True:
            S = Ss[n]
            ok = (not S.hold[k]) if atom[0].startswith("s_") else free_slots(S)[k] > 0
            if atom[0].startswith("s_") and len(atom) > 1 and free_slots(S)[k] == 0: ok = False
            if ok: break
            k += 1
            if k == 24: n += 1; k = 0
        for x in atom: (S.h if x.startswith("s_") else S.v)(k, x)
        if not atom[0].startswith("s_") or True:
            k += 1
            if k == 24: n += 1; k = 0
    assert (n, k) < (7, 18), (n, k)
    for n in range(7):
        epi = fill_ops(Ss[n], epi)
        if n == 5: assert len(epi) <= 72 - 8, len(epi)
    assert not epi, len(epi)
    if OPT["mred"]: assert not fill_ops(Ss[7], sel_)
    for n in range(8):
        a.c(f"G first half, sub-step {n}")
        Ss[n].emit(gmf(n + 1)[0])
    a.e("s_branch L_gx" if OPT["xmode"] == 1 else "s_cbranch_scc1 L_gx")
    NP = {0: 4, 1: 3}
    def cvs(h): return [f"v_cvt_pk_bf16_f32 v{STG + 6*i + 2*j + x}, v{Ga(h,i,j)+2*x}, v{Ga(h,i,j)+2*x+1}" for i in range(NP[h]) for j in range(3) for x in range(2)]
    def rops(h, k):
        o = []
        for r in range(6):
            s = LD[h] + 6*k + r; t = TM + 2 * (r & 1)
            src = Ga(1, 3, r >> 1) + 2 * (r & 1) if (h, k) == (0, 0) else ACC + 2*r
            o += [f"v_lshlrev_b32 v{t}, 16, v{s}", f"v_and_b32 v{t+1}, s{sS8}, v{s}",
                  f"v_add_f32 v{ACC+2*r}, v{src}, v{t}", f"v_add_f32 v{ACC+2*r+1}, v{src+1}, v{t+1}"]
        return o
    def ldreg(h, k):
        if not OPT["mred"]: return LD[h] + 6*k, LD[h] + 6*k + 4
        if (h, k) == (1, 2): return 144, 150
        b_ = LD[h] + 12 * (k >> 1)
        return (b_ + 6, b_) if k & 1 else (b_ + 2, b_ + 10)
    def rmf(h, pr):
        q_ = (142, 146, 148) if (h, pr) == (1, 1) else [LD[h] + 12*pr + 4*j for j in range(3)]
        return [mf(ACC + 4*j, ("a", 0), q_[j], Ga(1, 3, j) if (h, pr) == (0, 0) else ACC + 4*j) for j in range(3)]
    rcv = [f"v_cvt_pk_bf16_f32 v{PK+r}, v{ACC+2*r}, v{ACC+2*r+1}" for r in range(6)]
    bps = [f"ds_bpermute_b32 v{PK+r}, v11, v{PK+r}" for r in range(6)] if OPT["bp"] else []
    def rst(j): return ([f"s_add_u32 s{sOff2}, s{sOo}, {j*40960}"], f"buffer_store_dwordx2 {vr(PK+2*j,2)}, v{vOA}, {sr(sOut,4)}, s{sOff2} offen{['', ' sc1', ' nt', ' sc0 sc1'][OPT['opol']]}")
    chk_cmp = [f"v_cmp_gt_u32 vcc, v{vVal}, v{vPoll}"]
    poll = f"buffer_load_dword v{vPoll}, v{vFi}, {sr(sF,4)}, 0 offen sc1"

    def g_phase(fast):
        pol = ("", " nt", " sc0")[OPT["xs"]] if fast else " sc1"
        la, lb = (vSA, vSB) if fast else (vLA, vLB)
        def xst(h, i):
            o4, o2 = (2, 0) if OPT["mred"] and i & 1 else (0, 4)
            return [([], f"buffer_store_dwordx4 {vr(STG+6*i+o4,4)}, v{vSA}, {sr(sP,4)}, s{sDst+4*h+i} offen{pol}"),
                    ([], f"buffer_store_dwordx2 {vr(STG+6*i+o2,2)}, v{vSB}, {sr(sP,4)}, s{sDst+4*h+i} offen{pol}")]
        def xld(h, k): return [([f"s_mov_b32 s{sOff2}, {(4*h+k)*6144}"], f"buffer_load_dwordx4 {vr(ldreg(h,k)[0],4)}, v{la}, {sr(sPr,4)}, s{sOff2} offen sc1"),
                               ([], f"buffer_load_dwordx2 {vr(ldreg(h,k)[1],2)}, v{lb}, {sr(sPr,4)}, s{sOff2} offen sc1")]
        flag = f"buffer_store_dword v{vVal}, v{vFl}, {sr(sF,4)}, 0 offen{pol}"
        def check():
            l0, l1 = newlabel("sp"), newlabel("ok")
            if not OPT["nosync"]: a.e(f"s_cbranch_vccnz {l0}")
            a.e(f"{l1}:")
            spins.append((l0, l1, chk_cmp, poll))
        if fast: a.e(f"v_add_u32 v{vSA}, {5*XP}, v{vSA}"); a.e(f"v_add_u32 v{vSB}, {5*XP}, v{vSB}")
        else: a.e(f"v_subrev_u32 v{vLA}, {XP}, v{vSA}"); a.e(f"v_subrev_u32 v{vLB}, {XP}, v{vSB}")
        a.e(f"s_branch L_gmid{int(fast)}")
        late = []
        def body():
            del late[:]
            Ss = [Sched(a, gmf(n) + (rmf(n // 8, 0) + rmf(n // 8, 1) if OPT['mred'] and n % 8 == 6 else [])) for n in range(16)]
            cap = [[2] * 24 for _ in range(16)]
            ops = []
            def vmem(n, g_, steps, kind):
                if isinstance(kind, tuple) and kind[0] == "T": place_tile(a, Ss[n], steps, g_)
                else:
                    for (pre, d), x in zip(steps, g_):
                        for y in pre: Ss[n].h(x, y)
                        Ss[n].v(x, lambda d=d: a._emit(d))
                for x in g_: cap[n][x] = 0; ops.append((n, x, kind))
            tpos = {0: [(6, 11)], 1: [(6, 11)], 4: [(6, 11), (16, 19)], 5: [(11, 16), (19, 22)], 6: [(6, 11)], 7: [(11, 16)]}
            m = 13
            for n in range(16):
                h, t = divmod(n, 8); S = Ss[n]
                rds = []
                for f in range(8): rds += rd_g(Greg((n + 1) & 1, f), n + 1, f)
                for r, p in zip(rds, RDPOS): S.v(p, r); cap[n][p] -= 1
                cap[n][23] = 0 if n % 4 == 1 else 1; cap[n][20] = min(cap[n][20], 1); cap[n][21] = min(cap[n][21], 1)
                for gp in tpos.get(t, []):
                    st, post = wo_tile(m)
                    if m == 16:
                        S.h(gp[0] - 4, f"s_cmp_eq_u32 s{sGc}, 4"); S.h(gp[0] - 3, f"s_cselect_b32 s{sWo+2}, 0, s{sWo+2}")
                    vmem(n, gp, st, ("T", m))
                    for x in post: S.h(gp[1], x)
                    m += 1
                if t == 2:
                    xs = [s_ for i in range(NP[1-h]) for s_ in xst(1 - h, i)] + [s_ for k in range(NP[h]) for s_ in xld(h, k)]
                    if OPT["xord"]:
                        st_ = xs[:2*NP[1-h]]; ld_ = xs[2*NP[1-h]:]
                        pat = {6: "SLSLLSL" * 2, 8: "SSLSLSL" + "SSLSLSL"}[len(st_)] if OPT["xord"] == 1 else {6: "SSLLSLL" * 2, 8: "SSSLSLL" * 2}[len(st_)]
                        xs = [(st_ if c_ == "S" else ld_).pop(0) for c_ in pat]
                    pos = [(n + d, g_) for d in (0, 1) for g_ in (6, 11, 16, 19, 20, 21, 22)]
                    for s_, (n2, g_) in zip(xs, pos): vmem(n2, (g_,), [s_], ("X", h))
                if t == 5: vmem(n, (6,), [([], flag)], "F"); S.v(4, f"v_add_u32 v{vVal}, 1, v{vVal}"); cap[n][4] -= 1
                if t == 7: vmem(n, (6,), [([], poll)], ("P", h))
            assert m == 29
            if OPT["opos"] == 0: vmem(4, (20, 21, 22), [rst(j) for j in range(3)], "O")
            else:
                for j, (n2, g_) in enumerate(((6, 16), (8, 16), (14, 16)) if OPT["opos"] == 1 else ((6, 16), (7, 21), (8, 19))): vmem(n2, (g_,), [rst(j)], "O")
            for x, (n2, g_) in zip(bps, ((2, 23), (3, 23), (4, 22), (4, 23), (6, 22), (6, 23))): Ss[n2].v(g_, x); cap[n2][g_] = max(0, cap[n2][g_] - 1)
            ops.sort(key=lambda x: (x[0], x[1]))
            ops2 = ops + [(n + 16, g_, k) for n, g_, k in ops]
            def younger(pt, n, g_): return len([o for o in ops2 if pt < (o[0], o[1]) < (n, g_)])
            for h in range(2):
                pt = max((o[0], o[1]) for o in ops if o[2] == ("X", h))
                Ss[8*h + 5].h(2, lambda c=younger(pt, 8*h + 5, 2): vmw(a, c))
                pt = [(o[0], o[1]) for o in ops if o[2] == ("P", h)][0]
                nc = 8*h + 9
                Ss[nc % 16].h(16, lambda c=younger(pt, nc, 16): vmw(a, c))
                Ss[nc % 16].v(16, lambda: a._emit(chk_cmp[0])); cap[nc % 16][16] -= 1
                Ss[nc % 16].h(20, check)
            def fill(lst, n, g_, rec=None):
                for op in lst:
                    while cap[n % 16][g_] <= 0:
                        g_ += 1
                        if g_ == 24: n += 1; g_ = 0
                    if not OPT["norv"]: Ss[n % 16].v(g_, lambda op=op: a._emit(op))
                    cap[n % 16][g_] -= 1
                    if rec is not None and n >= 16: rec.append(op)
                return n, g_
            e = fill(cvs(1), 0, 1); assert e < (2, 5), e
            e = fill(cvs(0), 8, 1); assert e < (10, 5), e
            if OPT["mred"]: fill(rcv, 15, 7)
            else:
                e = fill(rops(0, 0), 5, 2); assert e < (8, 10), e
                e = fill([x for k in range(1, 4) for x in rops(0, k)], *e); assert e < (13, 2), e
                e = fill([x for k in range(3) for x in rops(1, k)] + rcv, 13, 2, late); assert e < (18, 22), e
            S = Ss[7]
            if not fast: S.v(19, f"v_add_u32 v{vSA}, {XP}, v{vSA}"); S.v(20, f"v_add_u32 v{vSB}, {XP}, v{vSB}")
            S = Ss[15]
            S.h(0, f"s_cmp_ge_u32 s{sGc}, 1")
            S.h(1, f"s_cselect_b32 s{sOut+2}, {191*2560 + 1024 + 32}, 0")
            S.h(2, f"s_add_u32 s{sOo}, s{sOo}, 256")
            S.h(3, f"s_mov_b32 s{sPr+2}, {5*XP + XD}")
            if not fast:
                S.v(19, f"v_add_u32 v{vLA}, {XP}, v{vLA}"); S.v(20, f"v_add_u32 v{vLB}, {XP}, v{vLB}")
            S.h(18, f"s_add_u32 s{sGc}, s{sGc}, 1")
            S.h(19, f"s_cmp_lt_u32 s{sGc}, 5")
            for n in range(16):
                a.c(f"G sub-step {n}")
                if n == 8:
                    assert not a.lg
                    a.e(f"L_gmid{int(fast)}:")
                if n % 4 == 1:
                    tid = n + 5 + 16
                    pt = max((o[0], o[1]) for o in ops2 if o[2] == ("T", tid if tid < 29 else tid - 16) and (o[0] < 16) == (tid < 29))
                    cnt = len([o for o in ops2 if pt < (o[0], o[1]) < (n + 16, 22) and (o[0] >= 16 + 8 * (n // 8) or (isinstance(o[2], tuple) and o[2][0] == "T"))])
                    end_sync(a, Ss[n], min(cnt, 63), 0)
                else:
                    def w():
                        k = min(len(a.lg), OPT['gkeep']); a.raw_wait(f"s_waitcnt lgkmcnt({k})"); a.lg = a.lg[len(a.lg) - k:] if k else []
                    Ss[n].h(22, w)
                Ss[n].emit(gmf(n + 1)[0])
        lab = "L_gl_fast" if fast else "L_gl_far"
        if OPT["qprof"] == 2 and fast: stamp(a, 5); stamp(a, 6, False)
        a.e(".p2align 6")
        a.e(f"{lab}:")
        if OPT["qprof"] == 4: stamp_dyn(a, 4, sGc, 5)
        a.lg = []
        mark = len(a.ins); nops0 = a.nops; ns = len(spins)
        body(); lg_end = list(a.lg)
        del a.ins[mark:]; a.nops = nops0; del spins[ns:]
        body(); assert a.lg == lg_end
        a.e(f"s_cbranch_scc1 {lab}")
        if OPT["qprof"] == 2 and fast: stamp(a, 7); stamp(a, 8, False)
        if OPT["qprof"] == 4: stamp(a, 3)
        a.c("tail")
        for x in cvs(1): a.e(x)
        stamp(a, 2)
        vmw(a, 2)
        a._emit(chk_cmp[0]); a._emit("s_nop 4"); check()
        for i in range(3): emit_tile(a, xst(1, i))
        def ntv(st): return [(p_, d_ + " nt") if OPT["tl"] & 1 else (p_, d_) for p_, d_ in st]
        for k in range(4): emit_tile(a, ntv(xld(0, k)))
        for op in late + bps: a._emit(op)
        vmw(a, 8)
        a.e(f"v_add_u32 v{vVal}, 1, v{vVal}")
        a._emit(flag)
        early_out = not OPT["tord"]
        if early_out:
            a.raw_wait("s_waitcnt lgkmcnt(0)"); emit_tile(a, [rst(j) for j in range(3)])
        for k in range(4):
            vmw(a, 2 * (3 - k) + (4 if early_out else 1))
            for op in (rops(0, k) if not OPT["mred"] else rmf(0, k >> 1) if k & 1 else []): a._emit(op)
            if k == (3 if OPT["mred"] else 2): a._emit(poll)
        vmw(a, 0)
        a._emit(chk_cmp[0]); a._emit("s_nop 4"); check()
        for k in range(3): emit_tile(a, ntv(xld(1, k)))
        if not early_out:
            a.raw_wait("s_waitcnt lgkmcnt(0)"); emit_tile(a, [rst(j) for j in range(3)])
        a.e(f"s_mov_b32 s{sOo}, 1024")
        for k in range(3):
            vmw(a, 2 * (2 - k) + (0 if early_out else 3))
            for op in (rops(1, k) if not OPT["mred"] else rmf(1, k - 1) if k else []): a._emit(op)
        for op in rcv + bps: a._emit(op)
        a.raw_wait("s_waitcnt lgkmcnt(0)")
        emit_tile(a, [rst(j) for j in range(3)])
    g_phase(True)
    a.e("L_fin:")
    stamp(a, 9, False); stamp(a, 10)
    if OPT["leak"] >= 0:
        k = OPT["leak"]
        if k == 0: a.e("s_mov_b32 s79, 0")
        elif k == 9: a.e("s_sub_u32 s79, s98, s82"); a.e("s_lshr_b32 s79, s79, 4")
        else: a.e(f"s_sub_u32 s79, s{80+2*k}, s80")
        a.e("s_add_u32 s79, s79, 15000")
        if OPT["leakwg"] == 1: a.e("s_cmp_lt_u32 s2, 8"); a.e("s_cselect_b32 s79, s79, 0")
        if OPT["leakwg"] == 2: a.e("s_cmp_ge_u32 s2, 248"); a.e("s_cselect_b32 s79, s79, 0")
        if OPT["leakwg"] in (4, 5): a.e("s_and_b32 s76, s2, 1"); a.e("s_cselect_b32 s79, s79, 0" if OPT["leakwg"] == 5 else "s_cselect_b32 s79, 0, s79")
        if OPT["leakwg"] == 3: a.e("s_cmp_eq_u32 s2, 0"); a.e("s_cselect_b32 s79, s79, 0")
        a.e("L_leak:")
        a._emit("s_memrealtime s[76:77]"); a.raw_wait("s_waitcnt lgkmcnt(0)")
        a.e("s_sub_u32 s76, s76, s80"); a.e("s_cmp_lt_u32 s76, s79"); a.e("s_cbranch_scc1 L_leak")
    stamp_store(a, "L_end", 0)
    dbg_store(a)
    a.e("L_end:")
    a.e("s_endpgm")
    nsp = len(spins)
    for s_ in list(spins): spin_loop(*s_)
    a.e("L_hot_end:")
    a.e(".p2align 6")
    a.e("L_gx:")
    g_phase(False)
    a.e("s_branch L_fin")
    for s_ in list(spins[nsp:]): spin_loop(*s_)
    a.reset_counters()
    a.e("L_slow:")
    a.raw_wait("s_waitcnt vmcnt(0) lgkmcnt(0)")
    vKo, vVo, t0, t1 = 10, 11, P_ + 12, P_ + 13
    a.e("s_nop 7")
    a.e(f"v_and_b32 v{t0}, 7, v0"); a.e(f"v_lshlrev_b32 v{t0}, 10, v{t0}")
    a.e(f"v_bfe_u32 v{t1}, v0, 3, 1"); a.e(f"v_lshl_add_u32 v{t0}, v{t1}, 8, v{t0}")
    a.e(f"v_lshrrev_b32 v{t1}, 4, v0"); a.e(f"v_lshl_add_u32 v{vKo}, v{t1}, 4, v{t0}")
    a.e(f"v_bfe_u32 v{t0}, v0, 4, 1"); a.e(f"v_lshlrev_b32 v{t0}, 12, v{t0}")
    a.e(f"v_lshrrev_b32 v{t1}, 5, v0"); a.e(f"v_lshl_add_u32 v{t0}, v{t1}, 8, v{t0}")
    a.e(f"v_and_b32 v{t1}, 15, v0"); a.e(f"v_lshl_add_u32 v{vVo}, v{t1}, 1, v{t0}")
    for j in range(3): a.e(f"v_mov_b32 v{vT+j}, 0xff800000")
    def slow_qk(cinit):
        for u, kf in ((0, KF), (1, VF)):
            for ks in range(4): a.e(f"buffer_load_dwordx4 {vr(kf + 4*ks,4)}, v{vKo}, {sr(sK,4)}, s{sT2} offen offset:{u*512 + ks*64}")
        for u, kf in ((0, KF), (1, VF)):
            for j in range(3):
                for ks in range(4):
                    a.e(mf(Sr(u, j), kf + 4*ks, Qf(j, ks), (Nm(j) if cinit else None) if ks == 0 else Sr(u, j)))
    a.e(f"s_mov_b32 s{sT2}, s{sCur}")
    a.e(f"s_add_u32 s{sT3}, s{sCur}, 131072")
    a.e("L_slow_p1:")
    slow_qk(False)
    for j in range(3):
        for u in range(2):
            s = Sr(u, j)
            a.e(f"v_max3_f32 v{vT+j}, v{vT+j}, v{s}, v{s+1}")
            a.e(f"v_max3_f32 v{vT+j}, v{vT+j}, v{s+2}, v{s+3}")
    a.e(f"s_add_u32 s{sT2}, s{sT2}, 8192")
    a.e(f"s_cmp_lt_u32 s{sT2}, s{sT3}")
    a.e("s_cbranch_scc1 L_slow_p1")
    rowred(a, "v_max_f32", [vT, vT+1, vT+2], [Nm(j) for j in range(3)])
    for j in range(3):
        for r in range(4): a.e(f"v_sub_f32 v{Nm(j)+r}, 0, v{vT+j}")
    for r in range(96): a.e(f"v_mov_b32 v{O_+r}, 0")
    for r in range(12): a.e(f"v_accvgpr_write_b32 a{192+r}, 0")
    a.e(f"s_mov_b32 s{sT2}, s{sCur}")
    a.e("L_slow_p2:")
    slow_qk(True)
    for u in range(2):
        for k in range(12): a.e(ex(u, k))
    for u in range(2):
        for c in range(6): a.e(cv(u, 0, c))
    for half, fr in ((0, KF), (1, VF)):
        for hi in range(2):
            for i in range(4):
                for e in range(2):
                    for rp in range(2):
                        r = 2*rp + hi
                        a.e(f"buffer_load_ushort v{(S_ if hi else fr) + 4*i + 2*e + rp}, v{vVo}, {sr(sV,4)}, s{sT2} offen offset:{r*1024 + e*512 + (4*half+i)*32}")
        a.wait(vm="all")
        for x in range(16): a.e(f"v_lshl_or_b32 v{fr+x}, v{S_+x}, 16, v{fr+x}")
    for m in sm(2): a.e(m)
    for half, fr in ((0, KF), (1, VF)):
        for m in pv(2, half, fr): a.e(m)
    a.e(f"s_add_u32 s{sT2}, s{sT2}, 8192")
    a.e(f"s_cmp_lt_u32 s{sT2}, s{sT3}")
    a.e("s_nop 7")
    a.e("s_cbranch_scc1 L_slow_p2")
    for j in range(3): a.e(f"v_accvgpr_read_b32 v{vT+j}, a{La(j)[1]}")
    for j in range(3): a.e(f"v_rcp_f32 v{vT+j}, v{vT+j}")
    a.e(f"s_cmp_eq_u32 s{sR}, 3"); a.e("s_cbranch_scc1 L_g")
    for x in epi_ops(0)[:NPRE]: a.e(x)
    a.e("s_branch L_epi")
    return a

HDR = f"""; Fused attention blocks A and B in one launch. One workgroup per CU owns 4 heads of one batch: Q projection,
; softmax attention, output-projection partial (K = 512); the 8 workgroups of a batch then sum their partials.
; kernarg: 0 A_x, 8 A_k, 16 A_v, 24 A_wq, 32 A_wo, 40 B_x, 48 B_k, 56 B_v, 64 B_wq, 72 B_wo, 80 out, 88 debug, 96 ws
; @launch grid=(256,1,1) block=(256,1,1) lds={LDS}
.amdgcn_target "amdgcn-amd-amdhsa--gfx950"
.text
"""
def kern(name, a):
    return f".globl {name}\n.p2align 8\n.type {name},@function\n{name}:\n" + a.text()
def desc(name, nv, acc, ns):
    return f""".p2align 6
.amdhsa_kernel {name}
  .amdhsa_next_free_vgpr {nv}
  .amdhsa_next_free_sgpr {ns}
  .amdhsa_accum_offset {acc}
  .amdhsa_group_segment_fixed_size 0
  .amdhsa_kernarg_size 104
  .amdhsa_user_sgpr_count 2
  .amdhsa_user_sgpr_kernarg_segment_ptr 1
  .amdhsa_system_sgpr_workgroup_id_x 1
  .amdhsa_float_denorm_mode_32 3
.end_amdhsa_kernel
"""
if __name__ == "__main__":
    a = main_kernel()
    if OPT["pro2"]:
        ix = lambda t: [k for k, i in enumerate(a.ins) if i.text == t][0]
        i0, i1, i2 = ix("L_p0:"), ix("L_p1:"), ix("L_hot_end:") + 1
        a.ins = a.ins[:i0] + a.ins[i1:i2] + [Ins(".p2align 6")] + a.ins[i0:i1] + [Ins("L_p0end:")] + a.ins[i2:]
    if OPT["nodma"] & 1: a.ins = [i for i in a.ins if not (i.kind == "dma" and " v1, " in i.text)]
    if OPT["nodma"] & 2: a.ins = [i for i in a.ins if not (i.kind == "dma" and " v1, " not in i.text)]
    if OPT["nodma"] & 4: a.ins = [i for i in a.ins if not (i.kind == "store" and ("v152," in i.text or "v153," in i.text))]
    if OPT["nodma"] & 8: a.ins = [i for i in a.ins if not (i.kind == "store" and "v159," in i.text)]
    if OPT["nox2"]: a.ins = [i for i in a.ins if not (i.kind == "vmem" and ("v121," in i.text))]
    if OPT["noload"]: a.ins = [i for i in a.ins if not (i.kind == "vmem" and ("v152," in i.text or "v153," in i.text))]
    if OPT["x1"]:
        out = []; on = False; cnt = 0
        for i in a.ins:
            if i.text in ("L_epi:", "L_q2b:") or (OPT["x1"] & 2 and i.text in ("; Q conversion", "; Q2 conversion")): on = True
            if i.op in ("s_barrier",) or i.kind == "mfma" or i.text == "L_enter:": on = False
            out.append(i)
            if on and i.kind == "valu":
                cnt += 1
                if cnt % 2 == 0: out.append(Ins(f"v_mfma_f32_16x16x32_bf16 a[{240+4*(cnt//2%4)}:{243+4*(cnt//2%4)}], a[144:147], a[{96+4*(cnt//2%8)}:{99+4*(cnt//2%8)}], 0"))
        a.ins = out
    if OPT["x2"]:
        out = []; on = False
        for i in a.ins:
            if i.text == "L_q2:": on = True
            if i.text == "L_q2l:": on = False
            if on and i.kind == "mfma": out.append(Ins(f"s_nop {OPT['x2']}"))
            out.append(i)
        a.ins = out
    if OPT["abl"]:
        cnt = [0]
        def drop2(i):
            if OPT["abl"] & 1 and i.op == "ds_read_b64_tr_b16" and (", v4 " in i.text or ", v5 " in i.text):
                cnt[0] += 1; return (cnt[0] // 2) % 2 == 1
            if OPT["abl"] & 2 and i.kind == "lds" and (", v2 " in i.text or ", v3 " in i.text):
                cnt[0] += 1; return (cnt[0] // 2) % 2 == 1
            if OPT["abl"] & 4 and i.kind == "mfma" and "a[204:207], v[" in i.text and i.text.split()[1].startswith(("a[192", "a[196", "a[200")): return True
            if OPT["abl"] & 8 and i.op in ("v_lshlrev_b32", "v_and_b32", "v_add_f32") and ("v120" in i.text or "v121" in i.text or "v122" in i.text or "v123" in i.text) and "v0" not in i.text.replace("v0,", "v0 ").split(): return True
            return False
        a.ins = [i for i in a.ins if not drop2(i)]
    if OPT["xb"]:
        out = []; on = False; c = 0
        for i in a.ins:
            if i.text.startswith("; Q") and "sub-step" in i.text: on = True
            if "conversion" in i.text: on = False
            if on and i.op == "s_barrier":
                c += 1
                if c % OPT["xb"]: continue
            out.append(i)
        a.ins = out
    if OPT["xa"]:
        i0 = [k for k, i in enumerate(a.ins) if i.text == "; stage 0 kv"][0]; i1 = [k for k, i in enumerate(a.ins) if i.text == "; stage 15 kv"][0]
        def drop(i):
            if OPT["xa"] & 1 and i.op == "s_cbranch_vccnz": return True
            if OPT["xa"] & 2 and i.op in ("s_mul_i32", "s_bfe_u32", "s_xor_b32", "s_getreg_b32", "s_cselect_b32", "s_cselect_b64", "s_sub_u32", "s_cmp_gt_u32", "s_cmp_gt_i32", "s_cmp_le_u32"): return True
            if OPT["xa"] & 4 and i.op == "s_barrier": return True
            if OPT["xa"] & 8 and i.op == "s_waitcnt" and "lgkm" in i.text: return True
            if OPT["xa"] & 16 and i.op == "s_mul_i32": return True
            return False
        a.ins = a.ins[:i0] + [i for i in a.ins[i0:i1] if not drop(i)] + a.ins[i1:]
    if OPT["strip"] == 2:
        i0 = [k for k, i in enumerate(a.ins) if i.text == "L_head:"][0]; i1 = [k for k, i in enumerate(a.ins) if i.text == "L_epi:"][0]
        a.ins = a.ins[:i0] + [Ins("s_nop 4") if i.kind == "mfma" else i for i in a.ins[i0:i1] if i.kind not in ("lds", "trans", "valu")] + a.ins[i1:]
    if OPT["strip"] == 1:
        i0 = [k for k, i in enumerate(a.ins) if i.text == "L_head:"][0]; i1 = [k for k, i in enumerate(a.ins) if i.text == "L_epi:"][0]
        a.ins = a.ins[:i0] + [i for i in a.ins[i0:i1] if i.kind not in ("mfma", "lds", "trans", "valu")] + a.ins[i1:]
    ns = 102 if OPT["stamp"] else NSGPR
    open(sys.argv[1], "w").write(HDR + kern(NAME + "_kernel", a) + '.section .rodata,"a"\n' + desc(NAME + "_kernel", 512, 256, ns))
    print("instrs", len(a.ins), "nops", a.nops)
```

```python
import sys, math, struct, re
from asmlib import *

NAME = "concat_heads__mha_block_cached__gqa_block_cached__near_ridge"
def f32(x): return "0x%08x" % struct.unpack("<I", struct.pack("<f", x))[0]
OPT = dict(stamp=0, nodma=0, nocheck=0, touch=0, forceslow=0, map84=0, first=6, rot=1, strip=0, cyc=0, typ=2, track=1, nosync=0, sleep=1, opos=1, lag=4, noack=0, noload=0, stpol=1, nolw=0, krot=1, hrot=0, emu3=0, ramp=0, pk=1, cln=0, xb=0, mred=1, xord=1, vmw=8, pro2=1, bp=1, tord=1, abl=0, zz=1, x1=0, x2=0, opol=2, tl=0, xs=0, kvconv=0, sh1=1, sh2=1, sh1t=3, lateq=0, gate=1, ibg=1, ibn=4, xa=0, stag=0, fskip=0, cufrom=4, custep=4, cvo=1, woq=1, ibnt=0, ibt=14, ct2=1, inbox0=0, sparse1=1, noinbox=1, cthead=3, help=3, latekv=1, wot=0, lmax=3, thr=5, thr2=2, dyn=1, xmode=0, gkeep=0, leak=-1, leakwg=0, st0=0, norv=0, now0=0, gcap=0, qprof=0, la=7, ldpol=1, lmode=0, ldfix=0, nox2=0, wnt=0, xnt=0, t0x=0, t0w=0, ctouch=3, dbgout=0)
for a_ in sys.argv[2:]:
    k_, v_ = a_.split("="); assert k_ in OPT, k_; OPT[k_] = int(v_)

def R(x, n):
    t, i = x if isinstance(x, tuple) else ("v", x)
    return f"{t}{i}" if n == 1 else f"{t}[{i}:{i+n-1}]"
def off(x, d): return (x[0], x[1] + d) if isinstance(x, tuple) else x + d
def mf(d, a, b, c):
    return f"v_mfma_f32_16x16x32_bf16 {R(d,4)}, {R(a,4)}, {R(b,4)}, {'0' if c is None else R(c,4)}"

def zj(i): return (2, 1, 0) if (i & 1) and OPT["zz"] else (0, 1, 2)
def zk(j): return (3, 2, 1, 0) if (j & 1) and OPT["zz"] else (0, 1, 2, 3)
TILE = 8448
VB = 8 * TILE
XB = 16 * TILE
LDS = XB + 24576
NSLOT = 8
CH = NSLOT * 1024
PART = 240 * CH
STAMP_AT = 128 << 20
FLG = 120 << 20
XD = 7 * 6144
XP = 8 * XD
XG = 6 * XP
SPIN_MAX = 2000000
def slot(m):
    m %= 16
    return (m & 1), (m >> 1) * TILE

vKV, vKA, vVA, vWAl, vWAh, vW = 1, 2, 3, 4, 5, 6
vT = 7
QF, NM, S_, P_, KF, VF, O_ = 12, 60, 72, 96, 120, 136, 160
vX0, vX1, vXA0, vXA1 = 156, 157, 158, 159
vTo, vD, vPt, vWo = 152, 153, 154, 155
def Qf(j, ks): return QF + 16 * j + 4 * ks
def Nm(j): return NM + 4 * j
def Sr(u, j): return S_ + 12 * u + 4 * j
def Pr(buf, j): return P_ + 12 * buf + 4 * j
def Or(i, j): return O_ + 12 * i + 4 * j
def Wreg(buf, i): return 12 + 32 * buf + 4 * i
def Xreg(buf, j, s): return 76 + 24 * buf + 8 * j + 4 * s
def Qacc(pos, i, j):
    k = 12 * i + 4 * j
    if pos == 0: return ("a", k)
    if pos == 1: return ("a", 96 + k)
    if pos == 2: return ("a", 192 + k) if k < 64 else 124 + (k - 64)
    return O_ + k
QBANK = {3: 0, 2: 48, 1: 96}
OBANK = {0: 144, 1: 96, 2: 48, 3: 0}
def La(j): return ("a", 192 + 4 * j)
ONES = ("a", 204)
def Greg(buf, i): return ("a", 192 + 32 * buf + 4 * i)
sX, sW, sK, sV, sWo, sP = 32, 36, 40, 44, 48, 52
sWv, sKVL, sWL, sXL, sOff, sOff2, sTmp, sR, sCur, sT2, sT3 = 60, 61, 62, 63, 64, 65, 66, 67, 68, 69, 70
sB, sU, sBr, sG, sXo, sPo = 71, 72, 73, 74, 75, 76
sCX, sNX, sLast, sS8, sWoB, sTask, sTyp = 56, 57, 58, 59, 77, 30, 31
sWq, sGc = 26, 27
sWq1, sJ, sRot, sPM, sPK = 20, 21, 22, 23, 24
sF, sD0, sD1 = 8, 12, 13
sJh, sXo1, sPre = 25, 77, 30
sKc, sLag = 57, 76
sThr = 56
sBL, sMin, sKn, sMv, sMk, sKVv, sC1 = 57, 76, 23, 58, 59, 3, 25
sH = [4, 5, 6, 7]
NSGPR = 80

def stamp(a, k, real=True):
    if not OPT["stamp"]: return
    lg = list(a.lg)
    a.raw_wait("s_waitcnt lgkmcnt(0)")
    if OPT["cyc"] and 2 <= k <= 8: real = False
    a._emit(f"{'s_memrealtime' if real else 's_memtime'} s[{80+2*k}:{81+2*k}]")
    a.raw_wait("s_waitcnt lgkmcnt(0)")
def stamp_dyn(a, base, sidx, n):
    if not OPT["stamp"]: return
    a.raw_wait("s_waitcnt lgkmcnt(0)")
    a._emit("s_memtime s[78:79]" if OPT["cyc"] else "s_memrealtime s[78:79]")
    a.raw_wait("s_waitcnt lgkmcnt(0)")
    for q in range(n):
        a.e(f"s_cmp_eq_u32 s{sidx}, {q}")
        a.e(f"s_cselect_b32 s{80+2*(base+q)}, s78, s{80+2*(base+q)}")
def stamp_store(a, label, base):
    if not OPT["stamp"]: return
    a.e(f"s_cmp_lg_u32 s{sWv}, 0")
    a.e(f"s_cbranch_scc1 {label}")
    for k in range(11): a.e(f"v_mov_b32 v{16+k}, s{80+2*k}")
    a.e("s_lshl_b32 s78, s2, 6"); a.e(f"s_add_u32 s78, s78, {STAMP_AT + base*64}")
    a.e("v_mov_b32 v28, s78")
    a.e("s_mov_b64 exec, 1")
    a.e("global_store_dwordx4 v28, v[16:19], s[28:29]")
    a.e("global_store_dwordx4 v28, v[20:23], s[28:29] offset:16")
    a.e("global_store_dwordx4 v28, v[24:27], s[28:29] offset:32")

def dbg_store(a):
    if not OPT["dbgout"]: return
    l = "L_dbgskip"
    a.e("s_and_b32 s78, s2, 0xdf"); a.e("s_cmp_lg_u32 s78, 5"); a.e(f"s_cbranch_scc1 {l}")
    a.e("s_load_dwordx2 s[24:25], s[0:1], 88")
    for n, k in enumerate((3,4,5,6,7,8,2,10)):
        a.e(f"s_sub_u32 s79, s{80+2*k}, s80"); a.e(f"v_mov_b32 v{32+n}, s79")
    a.e("s_and_b32 s78, s2, 32"); a.e("v_mov_b32 v29, s78")
    a.raw_wait("s_waitcnt lgkmcnt(0)")
    a.e("global_store_dwordx4 v29, v[32:35], s[24:25]")
    a.e("global_store_dwordx4 v29, v[36:39], s[24:25] offset:16")
    a.e(f"{l}:")

def srd(a, d, lo, o, size):
    a.e(f"s_add_u32 s{d}, s{lo}, {o}")
    a.e(f"s_addc_u32 s{d+1}, s{lo+1}, 0")
    a.e(f"s_and_b32 s{d+1}, s{d+1}, 0xffff")
    a.e(f"s_mov_b32 s{d+2}, {size}")
    a.e(f"s_mov_b32 s{d+3}, 0x20000")
_lbl = [0]
def newlabel(p):
    _lbl[0] += 1
    return f"L_{p}_{_lbl[0]}"
class U(str): pass

def ldsbase(m):
    h, o = slot(m); return h * VB + o
def w_tile(m, n, nh=4):
    b = ldsbase(m); base = sWq if n < 4 * nh else sWq1
    rel = ((n % (4 * nh)) // nh) * 262144 + (nh - 1 - n % nh) * 256
    pol = ' nt' if OPT['wnt'] else ''
    return [([f"s_xor_b32 s{sOff}, s{base}, {rel}", f"s_add_u32 m0, s{sWL}, {b}"], f"buffer_load_dwordx4 v{vW}, {sr(sW,4)}, s{sOff} offen{pol} lds"),
            ([f"s_xor_b32 s{sOff}, s{base}, {rel + 8192}", f"s_add_u32 m0, s{sWL}, {b + 1032}"], f"buffer_load_dwordx4 v{vW}, {sr(sW,4)}, s{sOff} offen{pol} lds")]
def kv_tile(m, t):
    b = ldsbase(m); s = sV if m & 1 else sK
    assert t < 16
    so = f"s_xor_b32 s{sOff}, s{sCX}, {t * 8192}"
    return [([so, f"s_add_u32 m0, s{sKVL}, {b}"], f"buffer_load_dwordx4 v{vKV}, {sr(s,4)}, s{sOff} offen nt lds"),
            ([f"s_add_u32 m0, s{sKVL}, {b + 32}"], f"buffer_load_dwordx4 v{vKV}, {sr(s,4)}, s{sOff} offen offset:1024 nt lds")]
def unit_pre(base, add):
    return [f"s_add_u32 s{sMv}, s{base}, {add}", f"s_xor_b32 s{sOff}, s{sMv}, s{sRot}", f"s_bfe_u32 s{sMv}, s{sMv}, 0x3000d", f"s_mul_i32 s{sMv}, s{sMv}, {TILE}",
            f"s_add_u32 s{sMk}, s{base}, {add + 8192}", f"s_xor_b32 s{sOff2}, s{sMk}, s{sRot}", f"s_bfe_u32 s{sMk}, s{sMk}, 0x3000d", f"s_mul_i32 s{sMk}, s{sMk}, {TILE}"]
def unit_dma(so_v=None, so_k=None):
    so_v = sOff if so_v is None else so_v; so_k = sOff2 if so_k is None else so_k
    return [([f"s_add_u32 m0, s{sMv}, s{sKVv}"], f"buffer_load_dwordx4 v{vKV}, {sr(sV,4)}, s{so_v} offen nt lds"),
            (["s_add_u32 m0, m0, 32"], f"buffer_load_dwordx4 v{vKV}, {sr(sV,4)}, s{so_v} offen offset:1024 nt lds"),
            ([f"s_add_u32 m0, s{sMk}, s{sKVL}"], f"buffer_load_dwordx4 v{vKV}, {sr(sK,4)}, s{so_k} offen nt lds"),
            (["s_add_u32 m0, m0, 32"], f"buffer_load_dwordx4 v{vKV}, {sr(sK,4)}, s{so_k} offen offset:1024 nt lds")]
def place_guarded(a, S, steps, gaps):
    for (pre, d), g in zip(steps, gaps):
        for k, x in enumerate(pre): S.h(g - len(pre) + k, x)
        def site(d=d):
            l = newlabel("sk"); a.e(f"s_cbranch_vccnz {l}"); a._emit(d); a.e(f"{l}:")
        S.v(g, site)
def wo_tile(m):
    b = ldsbase(m); h, t = divmod(m % 16, 8); r = t >> 1; rel = (t & 1) * 81920
    st = [([f"s_add_u32 s{sOff}, s{sH[r]}, {rel}", f"s_add_u32 m0, s{sKVL}, {b}"], f"buffer_load_dwordx4 v{vWo}, {sr(sWo,4)}, s{sOff} offen lds"),
          ([f"s_add_u32 s{sOff}, s{sH[r]}, {rel + 1280}", f"s_add_u32 m0, s{sKVL}, {b + 1056}"], f"buffer_load_dwordx4 v{vWo}, {sr(sWo,4)}, s{sOff} offen lds")]
    return st, ([f"s_add_u32 s{sH[r]}, s{sH[r]}, s{(sD0, sD1)[h]}"] if t & 1 else [])
def emit_tile(a, steps):
    for pre, d in steps:
        for x in pre: a.e(x)
        a._emit(d)
def place_tile(a, S, steps, gaps):
    for (pre, d), g in zip(steps, gaps):
        for k, x in enumerate(pre): S.h(g - len(pre) + k, x)
        S.v(g, lambda d=d: a._emit(d))
def rd_w(dst, m, i):
    h, o = slot(m); p, u = divmod(i, 2)
    return [f"ds_read_b64_tr_b16 {R(off(dst, 2*e), 2)}, v{(vWAl, vWAh)[h]} offset:{o + e*512 + p*64 + u*8}" for e in range(2)]
def vmw(a, n): a.raw_wait(f"s_waitcnt vmcnt({n})")

def rowred(a, op, regs, tmps):
    for w in (32, 16):
        for r, t in zip(regs, tmps): a.e(f"v_mov_b32 v{t}, v{r}")
        for r, t in zip(regs, tmps): a.e(f"v_permlane{w}_swap_b32 v{r}, v{t}")
        for r, t in zip(regs, tmps): a.e(f"{op} v{r}, v{r}, v{t}")

RDPOS = [0,1,2,3,4,5,7,8,9,10,12,13,14,15,17,18]
RDPOS_X = [2,3,5,6,8,9,11,12,14,15,16,17,18,19,20,21]

def code_touch(a, lo, hi, vaddr, vdst, back=False):
    if not OPT["ctouch"]: return
    l = newlabel("pc")
    a.e("s_getpc_b64 s[14:15]")
    a.e(f"{l}:")
    if back: a.e(f"s_sub_u32 s14, s14, {l}-{lo}"); a.e("s_subb_u32 s15, s15, 0")
    else: a.e(f"s_add_u32 s14, s14, {lo}-{l}"); a.e("s_addc_u32 s15, s15, 0")
    a.e(f"s_lshr_b32 s{sT2}, s2, 3"); a.e(f"s_lshl_b32 s{sT2}, s{sT2}, 2"); a.e(f"s_add_u32 s{sT2}, s{sT2}, s{sWv}"); a.e(f"s_lshl_b32 s{sT2}, s{sT2}, 7")
    a.e(f"v_and_b32 v{vaddr}, 3, v0"); a.e(f"v_lshlrev_b32 v{vaddr}, 14, v{vaddr}"); a.e(f"v_add_u32 v{vaddr}, s{sT2}, v{vaddr}")
    a.e(f"v_min_u32 v{vaddr}, {hi}-{lo}-4, v{vaddr}")
    a._emit(f"global_load_dword v{vdst}, v{vaddr}, s[14:15]")

def inbox_addr(va, vt):
    sc = [f"s_mul_i32 s{sT2}, s{sG}, {XG}", f"s_mul_i32 s{sT3}, s{sU}, {XD}", f"s_add_u32 s{sT2}, s{sT2}, s{sT3}",
          f"s_mul_i32 s{sT3}, s{sWv}, 1536", f"s_add_u32 s{sT2}, s{sT2}, s{sT3}", f"s_add_u32 s{sT2}, s{sT2}, {5*XP}"]
    ve = [f"v_lshrrev_b32 v{va}, 3, v0", f"v_min_u32 v{va}, 6, v{va}", f"v_mul_u32_u24 v{va}, 6144, v{va}", f"v_and_b32 v{vt}, 7, v0",
          f"v_min_u32 v{vt}, 5, v{vt}", f"v_lshl_add_u32 v{va}, v{vt}, 7, v{va}", f"v_add_u32 v{va}, s{sT2}, v{va}"]
    return sc, ve

def late_consts(a):
    w_ = 2 if OPT["wot"] else 1
    a.e(f"v_min_u32 v{vTo}, {20*w_-1}, v0"); a.e(f"v_lshlrev_b32 v{vTo}, 7, v{vTo}")
    a.e(f"s_mul_i32 s{sTmp}, s{sB}, {10240*w_}"); a.e(f"s_mul_i32 s{sT2}, s{sWv}, {2560*w_}"); a.e(f"s_add_u32 s{sTmp}, s{sTmp}, s{sT2}")
    a.e(f"v_add_u32 v{vTo}, s{sTmp}, v{vTo}")
    a.e("v_and_b32 v9, 56, v0"); a.e(f"s_lshl_b32 s{sTmp}, s{sWv}, 1"); a.e(f"v_add_u32 v9, s{sTmp}, v9")
    a.e("v_mul_u32_u24 v9, 1280, v9"); a.e("v_and_b32 v8, 7, v0")
    a.e(f"s_xor_b32 s{sTmp}, s{sU}, 7"); a.e(f"s_and_b32 s{sTmp}, s{sTmp}, 3"); a.e(f"s_lshl_b32 s{sTmp}, s{sTmp}, 1"); a.e(f"v_xor_b32 v8, s{sTmp}, v8")
    a.e(f"v_lshl_add_u32 v{vWo}, v8, 4, v9")

def x_block(j, rel, base_s, op="s_add_u32", lds=0):
    so = f"{op} s{sOff2}, s{base_s}, {rel + j*20480}" if base_s is not None else f"s_mov_b32 s{sOff2}, {rel + j*20480}"
    return [([so, f"s_add_u32 m0, s{sXL}, {j*2048 + lds}"], f"buffer_load_dwordx4 v{vX0}, {sr(sX,4)}, s{sOff2} offen{' nt' if OPT['xnt'] else ''} lds"),
            ([f"s_add_u32 m0, s{sXL}, {j*2048 + 1024 + lds}"], f"buffer_load_dwordx4 v{vX1}, {sr(sX,4)}, s{sOff2} offen{' nt' if OPT['xnt'] else ''} lds")]
def rd_xb(dst, j, s): return f"ds_read_b128 {R(dst,4)}, v{(vXA0, vXA1)[s]} offset:{j*2048}"

def end_sync(a, S, vm, keep=2):
    def w():
        n = min(len(a.lg), keep)
        a.raw_wait(f"s_waitcnt vmcnt({vm}) lgkmcnt({n})")
        a.lg = a.lg[len(a.lg) - n:] if n else []
    S.h(22, w); S.h(23, "s_barrier")

sSc = 14
SCALE = f"s_mov_b32 s{sSc}, {f32(math.log2(math.e) / math.sqrt(128.0))}"
def conv_ops(acc, pos, db, tmp):
    o_ = []; k = 0
    for p in range(4):
        for j in range(3):
            t = tmp[k % len(tmp)]; k += 1
            src = []
            for u in range(2):
                o = acc(pos, 2*p + u, j)
                for r in range(4):
                    if isinstance(o, tuple):
                        o_.append(f"v_accvgpr_read_b32 v{t+4*u+r}, a{o[1]+r}"); src.append(t + 4*u + r)
                    else: src.append(o + r)
            o_ += [f"v_mul_f32 v{x}, s{sSc}, v{x}" for x in src]
            d = Qf(j, p) if db is None else src[0]
            o_ += [f"v_cvt_pk_bf16_f32 v{d+r}, v{src[2*r]}, v{src[2*r+1]}" for r in range(4)]
            if db is not None and db != "keep":
                o_ += [f"v_accvgpr_write_b32 a{db + 12*p + 4*j + r}, v{d+r}" for r in range(4)]
    return o_
def packed(ops):
    if not OPT["pk"]: return list(ops)
    out = []; k = 0
    pat = re.compile(r"v_mul_f32 v(\d+), (?:s(\d+), v\d+|v\d+, v(\d+))$")
    while k < len(ops):
        m0, m1 = pat.match(ops[k]), pat.match(ops[k+1]) if k + 1 < len(ops) else None
        if m0 and m1 and int(m0[1]) % 2 == 0 and int(m1[1]) == int(m0[1]) + 1 and m0.groups()[1:] == m1.groups()[1:]:
            d = int(m0[1]); t, f = ("s", int(m0[2])) if m0[2] else ("v", int(m0[3]))
            out.append(f"v_pk_mul_f32 v[{d}:{d+1}], v[{d}:{d+1}], {t}[{f & ~1}:{f | 1}] op_sel:[0,{f & 1}] op_sel_hi:[1,{f & 1}]"); k += 2
        else: out.append(ops[k]); k += 1
    return out
def free_slots(S):
    cap = []
    for k in range(len(S.mfs)):
        c = 2 - max(0, len(S.hold[k]) - 1)
        for f in S.vec[k]:
            t = f if isinstance(f, str) else f[0] if isinstance(f, tuple) else "vmem"
            c -= 2 if t.startswith(("vmem", "v_exp", "v_rcp")) else 1
        if "s_barrier" in S.hold[k]: c = 0
        cap.append(max(c, 0))
    for k in range(1, len(cap)):
        if cap[k] == 2 and cap[k-1] == 2: cap[k] = 1
    return cap
def fill_ops(S, ops, start=0):
    cap = free_slots(S); n = 0
    for k in range(start, len(cap)):
        for _ in range(cap[k]):
            if n < len(ops): S.v(k, ops[n]); n += 1
    return ops[n:]

def gcv(m, h):
    i, j = divmod(m, 3); p, u = divmod(i, 2); o = Or(i, j)
    return f"v_cvt_pk_bf16_f32 v{S_ + 12*p + 4*j + 2*u + h}, v{o+2*h}, v{o+2*h+1}"
CVS = [gcv(m, h) for m in range(24) for h in range(2)]
def gst(q, rel, base_s):
    p, j = divmod(q, 3)
    return ([f"s_add_u32 s{sOff2}, s{base_s}, {rel + (p*12 + j)*CH}"], f"buffer_store_dwordx4 {vr(S_ + 12*p + 4*j,4)}, v{vPt}, {sr(sP,4)}, s{sOff2} offen{['', ' sc1', ' nt', ' sc0'][OPT['stpol']]}")
def cv_plans():
    caps = [0 if g in (6, 11) else (1 if g in RDPOS else 2) for g in range(24)]
    last = []; ci = 0
    for g, cp in enumerate(caps):
        for _ in range(cp):
            if ci < 48 and ci // 2 + 4 <= g: last.append((g, ci)); ci += 1
    n = ci; first = []
    for g, cp in enumerate(caps):
        for _ in range(cp):
            if ci < 48: first.append((g, ci)); ci += 1
    assert ci == 48 and all(c // 2 > g for g, c in first)
    return last, first, n
PLAN_LAST, PLAN_FIRST, NLAST = cv_plans()

def Q2acc(pos, i, j): return (56 if pos == 0 else O_) + 12 * i + 4 * j
def X2reg(buf, j, s): return ("a", 24 * buf + 8 * j + 4 * s)
def q2mf(n, first):
    s, pos = divmod(n % 8, 2)
    return [mf(Q2acc(pos, i, j), Greg(n & 1, i), X2reg(s >> 1, j, s & 1), None if first and n < 2 else Q2acc(pos, i, j)) for i in range(8) for j in zj(i)]

def main_kernel():
    a = Asm()
    T = OPT["typ"]
    if OPT["st0"]: a._emit("s_memrealtime s[80:81]")
    a.e("s_cmp_ge_u32 s2, 256")
    a.e("s_cbranch_scc1 L_end")
    a.e("s_load_dwordx16 s[4:19], s[0:1], 0")
    a.e("s_load_dwordx4 s[20:23], s[0:1], 64")
    a.e("s_load_dwordx2 s[28:29], s[0:1], 96")
    a.e(f"s_bfe_u32 s{sBr}, s2, 0x10002")
    if not OPT["map84"]:
        a.e(f"s_and_b32 s{sB}, s2, 3"); a.e(f"s_lshl_b32 s{sB}, s{sB}, 2")
        a.e(f"s_bfe_u32 s{sTmp}, s2, 0x20003"); a.e(f"s_add_u32 s{sB}, s{sB}, s{sTmp}")
        a.e(f"s_lshr_b32 s{sU}, s2, 5")
    elif OPT["map84"] == 2:
        a.e(f"s_bfe_u32 s{sB}, s2, 0x40003")
        a.e(f"s_and_b32 s{sU}, s2, 3"); a.e(f"s_lshl_b32 s{sU}, s{sU}, 1")
        a.e(f"s_lshr_b32 s{sTmp}, s2, 7"); a.e(f"s_add_u32 s{sU}, s{sU}, s{sTmp}")
    else:
        a.e(f"s_and_b32 s{sB}, s2, 1"); a.e(f"s_lshl_b32 s{sB}, s{sB}, 3")
        a.e(f"s_bfe_u32 s{sTmp}, s2, 0x30003"); a.e(f"s_add_u32 s{sB}, s{sB}, s{sTmp}")
        a.e(f"s_bfe_u32 s{sU}, s2, 0x10001"); a.e(f"s_lshl_b32 s{sU}, s{sU}, 2")
        a.e(f"s_lshr_b32 s{sTmp}, s2, 6"); a.e(f"s_add_u32 s{sU}, s{sU}, s{sTmp}")
    a.e(f"s_lshl_b32 s{sG}, s{sBr}, 4"); a.e(f"s_add_u32 s{sG}, s{sG}, s{sB}")
    if T == 4: a.e(f"s_bfe_u32 s{sTyp}, s2, 0x10003")
    elif T == 3: a.e(f"s_andn2_b32 s{sTyp}, 1, s2")
    elif T == 2: a.e(f"s_and_b32 s{sTyp}, s2, 1")
    else: a.e(f"s_mov_b32 s{sTyp}, {T}")
    a.e("v_lshrrev_b32 v7, 6, v0")
    a.e("v_and_b32 v0, 63, v0")
    a.e(f"v_readfirstlane_b32 s{sWv}, v7")
    a.e("v_and_b32 v8, 15, v0")
    a.e("v_lshrrev_b32 v9, 4, v0")
    a.e("v_and_b32 v10, 1, v9"); a.e("v_lshlrev_b32 v10, 4, v10")
    a.e("v_lshrrev_b32 v11, 1, v9"); a.e("v_lshl_add_u32 v10, v11, 2, v10")
    a.e("v_lshrrev_b32 v11, 1, v7"); a.e("v_lshl_add_u32 v10, v11, 3, v10")
    a.e("v_and_b32 v11, 1, v7"); a.e("v_lshl_add_u32 v10, v11, 1, v10")
    a.e("v_lshlrev_b32 v10, 13, v10"); a.e(f"v_lshl_add_u32 v{vW}, v8, 4, v10")
    a.e("v_mul_u32_u24 v10, 48, v7"); a.e("v_lshrrev_b32 v11, 3, v0"); a.e("v_add_u32 v10, v10, v11")
    a.e("v_mul_u32_u24 v10, 1280, v10")
    a.e("v_and_b32 v11, 7, v0"); a.e("v_xor_b32 v11, v11, v9")
    a.e(f"v_lshl_add_u32 v{vX0}, v11, 4, v10")
    a.e("v_xor_b32 v11, 4, v11"); a.e("v_add_u32 v10, 10240, v10")
    a.e(f"v_lshl_add_u32 v{vX1}, v11, 4, v10")
    a.e(f"s_mul_i32 s{sKVL}, s{sWv}, 2112")
    a.e(f"s_mov_b32 s{sWL}, s{sKVL}")
    a.e(f"s_mul_i32 s{sXL}, s{sWv}, 6144"); a.e(f"s_add_u32 s{sXL}, s{sXL}, {XB}")
    a.e(f"s_mov_b32 s{sCur}, 0"); a.e(f"s_mov_b32 s{sXo}, 0"); a.e(f"s_mov_b32 s{sWq}, 0")
    a.raw_wait("s_waitcnt lgkmcnt(0)")
    a.e(f"s_cmp_eq_u32 s{sBr}, 0")
    a.e("s_cselect_b64 s[4:5], s[4:5], s[14:15]")
    a.e("s_cselect_b64 s[6:7], s[6:7], s[16:17]")
    a.e("s_cselect_b64 s[8:9], s[8:9], s[18:19]")
    a.e("s_cselect_b64 s[10:11], s[10:11], s[20:21]")
    a.e("s_cselect_b64 s[12:13], s[12:13], s[22:23]")
    a.e("s_load_dwordx4 s[16:19], s[0:1], 80")
    a.e(f"s_mul_i32 s{sTmp}, s{sB}, 245760")
    srd(a, sX, 4, f"s{sTmp}", 245760)
    a.e(f"s_lshl_b32 s{sTmp}, s{sU}, 10")
    srd(a, sW, 10, f"s{sTmp}", 639 * 8192 + 1024)
    if OPT["krot"]: a.e(f"s_xor_b32 s{sJ}, s{sB}, s{sU}"); a.e(f"s_and_b32 s{sJ}, s{sJ}, 3")
    else: a.e(f"s_mov_b32 s{sJ}, 0")
    if OPT["hrot"]: a.e(f"s_cmp_lg_u32 s{sTyp}, 0"); a.e(f"s_cselect_b32 s{sJh}, 1, 3"); a.e(f"s_and_b32 s{sJh}, s{sJh}, s{sJ}")
    else: a.e(f"s_mov_b32 s{sJh}, 0")
    a.e(f"s_lshl_b32 s{sWq}, s{sJ}, 18"); a.e(f"s_lshl_b32 s{sTmp}, s{sJh}, 8"); a.e(f"s_or_b32 s{sWq}, s{sWq}, s{sTmp}"); a.e(f"s_add_u32 s{sWq1}, s{sWq}, {1 << 20}")
    a.e(f"s_lshr_b32 s{sXo}, s{sJ}, 1"); a.e(f"s_lshl_b32 s{sXo}, s{sXo}, 7")
    if not OPT['st0']: stamp(a, 0)
    stamp(a, 1, False)
    def common_consts():
        if OPT["rot"] == 2: a.e(f"s_bfe_u32 s{sRot}, s2, 0x40003"); a.e(f"s_lshl_b32 s{sRot}, s{sRot}, 13")
        elif OPT["rot"] == 3: a.e(f"s_bfe_u32 s{sRot}, s2, 0x40001"); a.e(f"s_lshl_b32 s{sRot}, s{sRot}, 13")
        elif OPT["rot"] == 4:
            a.e(f"s_mul_i32 s{sRot}, s2, 0x9e3779b1"); a.e(f"s_lshr_b32 s{sRot}, s{sRot}, 28"); a.e(f"s_lshl_b32 s{sRot}, s{sRot}, 13")
        elif OPT["rot"] == 5: a.e(f"s_bfe_u32 s{sRot}, s2, 0x20003"); a.e(f"s_lshl_b32 s{sRot}, s{sRot}, 15")
        elif OPT["rot"]:
            a.e(f"s_lshr_b32 s{sRot}, s2, 4"); a.e(f"s_xor_b32 s{sRot}, s{sRot}, s2"); a.e(f"s_and_b32 s{sRot}, s{sRot}, 15"); a.e(f"s_lshl_b32 s{sRot}, s{sRot}, 13")
        else: a.e(f"s_mov_b32 s{sRot}, 0")
        a.e(f"s_lshl_b32 s{sCur}, s{sJh}, 17"); a.e(f"s_or_b32 s{sRot}, s{sRot}, s{sCur}")
        assert not OPT["hrot"]
        a.e(f"s_mov_b32 s{sCX}, s{sRot}"); a.e(f"s_add_u32 s{sKVv}, s{sKVL}, {VB}")
        a.e("v_bfe_u32 v10, v0, 2, 3")
        a.e("v_lshrrev_b32 v11, 1, v10"); a.e("v_lshlrev_b32 v11, 6, v11"); a.e(f"v_lshl_add_u32 v{vWAl}, v10, 10, v11")
        a.e("v_and_b32 v11, 1, v10"); a.e(f"v_lshl_add_u32 v{vWAl}, v11, 3, v{vWAl}")
        a.e("v_lshrrev_b32 v11, 5, v0"); a.e(f"v_lshl_add_u32 v{vWAl}, v11, 8, v{vWAl}")
        a.e("v_mul_u32_u24 v10, 1056, v10"); a.e("v_lshl_add_u32 v10, v11, 8, v10")
        a.e("v_and_b32 v11, 3, v0"); a.e(f"v_lshl_add_u32 v{vWAl}, v11, 4, v{vWAl}")
        a.e(f"v_lshl_add_u32 v10, v11, 3, v10"); a.e(f"v_add_u32 v{vVA}, {VB}, v10")
        a.e(f"v_add_u32 v{vWAh}, {VB}, v{vWAl}")
        a.e("v_and_b32 v10, 7, v8"); a.e("v_mul_u32_u24 v10, 1056, v10")
        a.e("v_lshrrev_b32 v11, 3, v8"); a.e(f"v_lshl_add_u32 v10, v11, 8, v10")
        a.e(f"v_lshl_add_u32 v{vKA}, v9, 4, v10")
        a.e("v_lshlrev_b32 v10, 4, v0"); a.e(f"v_lshl_add_u32 v{vKV}, v7, 11, v10")
        a.e(f"v_lshlrev_b32 v10, 7, v8"); a.e(f"v_add_u32 v10, s{sXL}, v10")
        a.e("v_lshrrev_b32 v11, 1, v8"); a.e("v_xor_b32 v11, v11, v9")
        a.e(f"s_and_b32 s{sTmp}, s{sJ}, 1"); a.e(f"s_lshl_b32 s{sTmp}, s{sTmp}, 2"); a.e(f"v_xor_b32 v11, s{sTmp}, v11")
        a.e(f"v_lshl_add_u32 v{vXA0}, v11, 4, v10")
        a.e("v_xor_b32 v11, 4, v11"); a.e(f"v_lshl_add_u32 v{vXA1}, v11, 4, v10")
        a.e(f"s_lshl_b32 s{sTmp}, s{sB}, 3"); a.e(f"s_add_u32 s{sTmp}, s{sTmp}, s{sU}"); a.e(f"s_lshl_b32 s{sTmp}, s{sTmp}, 19")
        srd(a, sK, 6, f"s{sTmp}", 4 * 131072)
        srd(a, sV, 8, f"s{sTmp}", 4 * 131072)
        a.e(f"s_mul_i32 s{sTmp}, s{sU}, {512*1280}")
        srd(a, sWo, 12, f"s{sTmp}", 512 * 1280)
        for r in range(4): a.e(f"s_xor_b32 s{sH[r]}, s{sJh}, {r}"); a.e(f"s_mul_i32 s{sH[r]}, s{sH[r]}, 163840")
        a.e(f"s_mov_b32 s{sKn}, 0"); a.e(f"s_mov_b32 s{sMin}, {3*8192}")
        a.e(f"s_cmp_lt_u32 s{sU}, 4")
        a.e(f"s_cselect_b32 s{sTmp}, 128, 0"); a.e(f"s_mov_b32 s{sD0}, 128"); a.e(f"s_cselect_b32 s{sD0}, -128, s{sD0}")
        a.e(f"s_sub_u32 s{sD1}, 256, s{sD0}")
        for r in range(4): a.e(f"s_add_u32 s{sH[r]}, s{sH[r]}, s{sTmp}")
        a.e(f"s_lshl_b32 s{sTmp}, s{sG}, 12"); a.e(f"s_add_u32 s{sTmp}, s{sTmp}, {FLG}")
        srd(a, sF, 28, f"s{sTmp}", 4096)
    def touch0(three):
        if OPT["t0x"]:
            a.e("v_min_u32 v10, 59, v0"); a.e("v_lshlrev_b32 v10, 7, v10")
            a.e(f"s_lshl_b32 s{sTmp}, s{sU}, 2"); a.e(f"s_add_u32 s{sTmp}, s{sTmp}, s{sWv}"); a.e(f"s_mul_i32 s{sTmp}, s{sTmp}, 7680")
            a._emit(f"buffer_load_dword v11, v10, {sr(sX,4)}, s{sTmp} offen")
        if OPT["t0w"] and three:
            a.e("v_lshrrev_b32 v14, 2, v0"); a.e("v_lshlrev_b32 v14, 13, v14"); a.e("v_and_b32 v15, 3, v0"); a.e("v_lshl_add_u32 v14, v15, 7, v14")
            a.e(f"s_and_b32 s{sTmp}, s{sB}, 3"); a.e(f"s_lshl_b32 s{sTmp}, s{sTmp}, 2"); a.e(f"s_add_u32 s{sTmp}, s{sTmp}, s{sWv}"); a.e(f"s_lshl_b32 s{sTmp}, s{sTmp}, 17")
            for k in range(3):
                a.e(f"s_add_u32 s{sT2}, s{sTmp}, {k*256*8192}")
                a._emit(f"buffer_load_dword v{16+k}, v14, {sr(sW,4)}, s{sT2} offen")
    def part_srd(slot_expr, size):
        a.e(f"s_mul_i32 s{sTmp}, s{sG}, {PART}"); slot_expr(); a.e(f"s_lshl_b32 s{sT2}, s{sT2}, 10"); a.e(f"s_add_u32 s{sTmp}, s{sTmp}, s{sT2}")
        srd(a, sP, 28, f"s{sTmp}", size)
    NF = OPT["first"]
    LA = OPT['la']
    def wpos(n): return 8 + n % 8
    def rd_x(buf): return [rd_xb(Xreg(buf, j, s), j, s) for s in range(2) for j in range(3)]
    NF = 2
    def setup(lab):
        if not OPT["pro2"]: common_consts()
        code_touch(a, lab, "L_altwo" if not OPT["ct2"] else (("L_p0end" if OPT["pro2"] else "L_p1") if lab == "L_q" else "L_enter"), 10, 11)
        a.e(f"s_mov_b32 s{sR}, 0")
        if not OPT["ramp"]: late_setup()
    def late_setup():
        a.e(f"s_lshl_b32 s{sTmp}, s{sU}, 9"); a.e(f"s_lshl_b32 s{sT2}, s{sWv}, 7"); a.e(f"s_add_u32 s{sTmp}, s{sTmp}, s{sT2}")
        a.e("v_and_b32 v8, 7, v0"); a.e(f"v_lshlrev_b32 v8, 2, v8"); a.e("v_mov_b32 v7, 0")
        a._emit(f"buffer_store_dword v7, v8, {sr(sF,4)}, s{sTmp} offen sc1")
        emit_tile(a, kv_tile(0, 0))
    def bootstrap():
        l = newlabel("boot")
        a.e(f"s_cmp_lg_u32 s{sWv}, 0"); a.e(f"s_cbranch_scc1 {l}")
        a.e(f"s_lshl_b32 s{sTmp}, s{sG}, 2"); a.e(f"s_add_u32 s{sTmp}, s{sTmp}, 128")
        a.e(f"v_mov_b32 v157, s{sTmp}")
        a.e(f"s_getreg_b32 s{sT2}, hwreg(HW_REG_XCC_ID, 0, 4)")
        a.e(f"s_mul_i32 s{sT3}, s{sT2}, s{sT2}"); a.e(f"s_lshl_b32 s{sT3}, s{sT3}, 8"); a.e(f"s_add_u32 s{sT3}, s{sT3}, s{sT2}")
        a.e(f"s_lshl_b32 s{sT3}, s{sT3}, 8"); a.e(f"s_add_u32 s{sPK}, s{sT3}, 1"); a.e(f"v_mov_b32 v158, s{sPK}")
        a.e("s_mov_b64 exec, 1")
        a._emit("global_atomic_add v157, v158, s[18:19]")
        a.e("s_mov_b64 exec, -1")
        a.e(f"{l}:")
    if OPT["stag"]:
        a.e(f"s_and_b32 s{sT2}, s{sB}, 3") if OPT["stag"] < 100 else a.e(f"s_and_b32 s{sT2}, s{sU}, 3")
        a.e("L_stag:"); a.e(f"s_cmp_eq_u32 s{sT2}, 0"); a.e("s_cbranch_scc1 L_stag2"); a.e(f"s_sleep {OPT['stag'] % 100}"); a.e(f"s_sub_u32 s{sT2}, s{sT2}, 1"); a.e("s_branch L_stag"); a.e("L_stag2:")
    if OPT["pro2"]:
        a.e(f"s_cmp_lg_u32 s{sTyp}, 0")
        a.e(f"s_cselect_b32 s{sT2}, {XB - VB}, 0"); a.e(f"s_cselect_b32 s{sT3}, 0, 512")
        a.e(f"s_sub_u32 s{sT2}, s{sXL}, s{sT2}"); a.e(f"s_xor_b32 s{sT3}, s{sWq}, s{sT3}")
        def sub(st, x, y): return [([p_.replace(x, y) for p_ in pre], d) for pre, d in st]
        emit_tile(a, sub(w_tile(wpos(0), 0, 2), f"s{sWq},", f"s{sT3},"))
        for j in range(3): emit_tile(a, sub(x_block(j, 0, sXo), f"s{sXL},", f"s{sT2},"))
        emit_tile(a, sub(w_tile(wpos(1), 1, 2), f"s{sWq},", f"s{sT3},"))
        common_consts()
        a.e(f"s_cmp_eq_u32 s{sTyp}, 0")
        a.e("s_cbranch_scc1 L_p0")
        a.e("L_split:")
        a.e("L_p0:")
    else:
        a.e(f"s_cmp_lg_u32 s{sTyp}, 0")
        a.e("s_cbranch_scc1 L_p1")
        for j in range(3): emit_tile(a, x_block(j, 0, sXo))
        for n in range(NF): emit_tile(a, w_tile(wpos(n), n))
    setup("L_q")
    if OPT["help"]:
        if T == 3:
            a.e(f"s_sub_u32 s{sP}, s{sX}, {4*245760}"); a.e(f"s_subb_u32 s{sP+1}, s{sX+1}, 0")
        else:
            a.e(f"s_add_u32 s{sP}, s{sX}, {4*245760}"); a.e(f"s_addc_u32 s{sP+1}, s{sX+1}, 0")
        a.e(f"s_mov_b32 s{sP+2}, 245760"); a.e(f"s_mov_b32 s{sP+3}, 0x20000")
        a.e("v_min_u32 v8, 59, v0"); a.e("v_lshlrev_b32 v8, 7, v8")
        a.e(f"s_lshl_b32 s{sTmp}, s{sU}, 2"); a.e(f"s_add_u32 s{sTmp}, s{sTmp}, s{sWv}"); a.e(f"s_mul_i32 s{sTmp}, s{sTmp}, 7680")
        a._emit(f"buffer_load_dword v9, v8, {sr(sP,4)}, s{sTmp} offen")
        if OPT["help"] & 2:
            a.e("v_lshrrev_b32 v8, 2, v0"); a.e("v_lshlrev_b32 v8, 13, v8"); a.e("v_and_b32 v10, 3, v0"); a.e("v_lshl_add_u32 v8, v10, 7, v8")
            a.e(f"s_lshr_b32 s{sTmp}, s{sB}, 3"); a.e(f"s_lshl_b32 s{sTmp}, s{sTmp}, 2"); a.e(f"s_and_b32 s{sT2}, s{sB}, 3"); a.e(f"s_add_u32 s{sTmp}, s{sTmp}, s{sT2}")
            a.e(f"s_lshl_b32 s{sTmp}, s{sTmp}, 2"); a.e(f"s_add_u32 s{sTmp}, s{sTmp}, s{sWv}"); a.e(f"s_mul_i32 s{sTmp}, s{sTmp}, {20*8192}")
            a._emit(f"buffer_load_dword v9, v8, {sr(sW,4)}, s{sTmp} offen")
            a.e(f"s_add_u32 s{sTmp}, s{sTmp}, {4*8192}")
            a._emit(f"buffer_load_dword v9, v8, {sr(sW,4)}, s{sTmp} offen")
    a.e(f"s_mov_b32 s{sPre}, 15")
    for r in range(256):
        if r % 40 == 0 and NF + r // 40 < LA: emit_tile(a, w_tile(wpos(NF + r // 40), NF + r // 40))
        a.e(f"v_accvgpr_write_b32 a{r}, 0")
    for r in list(range(124, 156)) + list(range(160, 256)): a.e(f"v_mov_b32 v{r}, 0")
    if OPT["woq"]:
        a.e(f"s_lshr_b32 s{sTmp}, s{sB}, 3"); a.e(f"s_lshl_b32 s{sTmp}, s{sTmp}, 2"); a.e(f"s_and_b32 s{sT2}, s{sB}, 3"); a.e(f"s_add_u32 s{sTmp}, s{sTmp}, s{sT2}")
        a.e(f"s_lshl_b32 s{sTmp}, s{sTmp}, 2"); a.e(f"s_add_u32 s{sTmp}, s{sTmp}, s{sWv}"); a.e(f"s_mul_i32 s{sTmp}, s{sTmp}, 5120")
        a.e("v_min_u32 v7, 39, v0"); a.e(f"v_lshl_add_u32 v7, v7, 7, s{sTmp}")
    a.raw_wait(f"s_waitcnt vmcnt({2 * (LA - 2)}) lgkmcnt(0)")
    a.e("s_barrier")
    for r in rd_x(0): a.e(r)
    for i in range(8):
        for r in rd_w(Wreg(0, i), wpos(0), i): a.e(r)
    a.raw_wait("s_waitcnt lgkmcnt(0)"); a.lg = []
    if OPT["qprof"] == 1: stamp(a, 5); stamp(a, 6, False)
    def lperm(n, last):
        return 8 + 4 * ((n - 8) & 1) + ((n - 8) >> 1) if last and OPT["cvo"] and 8 <= n < 16 else n
    def qmf(n, last=False):
        s, pos = divmod(lperm(n, last) % 16, 4)
        return [mf(Qacc(pos, i, j), Wreg(n & 1, i), Xreg((s >> 1) & 1, j, s & 1), Qacc(pos, i, j)) for i in range(8) for j in zj(i)]
    cvq = conv_ops(Qacc, 0, QBANK[3], [76, 84, 92])
    def early(S, half, h0, gaps):
        pre = [x.replace(f"s{sOff},", f"s{sOff2},") for x in unit_pre(sKn, 0)[4*half:4*half+4]]
        if half == 0: pre = [f"s_cmp_ge_u32 s{sKn}, s{sMin}", "s_cselect_b64 vcc, -1, 0", f"s_cselect_b32 s{sC1}, 0, 8192"] + pre
        else: pre = pre + [f"s_add_u32 s{sKn}, s{sKn}, s{sC1}"]
        for x, h_ in zip(pre, h0): S.h(h_, x)
        place_guarded(a, S, unit_dma(sOff2, sOff2)[2*half:2*half+2], gaps)
    def q_group(last):
        for n in range(16):
            a.c(f"Q sub-step {n}{' (last group)' if last else ''}")
            S = Sched(a, qmf(n, last))
            fin = last and n == 15
            q = n % 8
            xrd = q in (6, 7) and not (last and n >= 8)
            if not fin:
                rds = []
                for i in range(8): rds += rd_w(Wreg((n + 1) & 1, i), wpos(n + 1), i)
                for r, p in zip(rds, RDPOS): S.v(p, r)
                m = n + LA
                if not last or m < 16: place_tile(a, S, w_tile(wpos(m), lperm(m, last)), (6, 11))
                KVN = {8: 7, 9: 8, 10: 9, 11: 10, 12: 11, 13: 12} if not OPT["kvconv"] else {4: 7, 11: 8} if OPT["kvconv"] == 1 else {4: 7}
                if last and n in KVN: place_tile(a, S, kv_tile(KVN[n], KVN[n] >> 1), (16, 19))
                if not (last and n == 14):
                    hi = min(m, 15) if last else m
                    ykv = len([k for k in KVN if n + 2 - LA <= k <= n]) if last else 0
                    end_sync(a, S, 2 * (hi - (n + 2)) + 2 * ykv, 5 if xrd else 2)
            if xrd:
                rx = rd_x(((n >> 3) + 1) & 1)[3*(q-6):3*(q-6)+3]
                if q == 6: S.h(16, lambda: vmw(a, 8))
                for r, p in zip(rx, (19, 20, 21)): S.v(p, (r, "xr"))
            if q in (0, 1, 2) and not (last and n >= 8):
                if q == 0: S.h(12, lambda: a.wait(lg="xr"))
                place_tile(a, S, x_block(q, 128, sXo, "s_xor_b32") if n < 8 else x_block(q, 256, sXo), (16, 19))
            if n in (11, 12) and not last: early(S, n - 11, (0, 1, 2, 3, 7, 8, 12), (16, 19))
            if n == 4 and not last and OPT["woq"]:
                S.h(13, f"s_lshr_b32 s{sOff2}, s{sXo}, 8"); S.h(14, f"s_mul_i32 s{sOff2}, s{sOff2}, 163840")
                S.v(16, lambda: a._emit(f"buffer_load_dword v9, v7, {sr(sWo,4)}, s{sOff2} offen"))
            if n == 15 and not last:
                S.h(12, f"s_mov_b32 s{sWq}, s{sWq1}")
                S.h(13, f"s_add_u32 s{sWq1}, s{sWq1}, {1 << 20}")
                S.h(14, f"s_add_u32 s{sXo}, s{sXo}, 256")
                S.h(15, f"s_cmp_lt_u32 s{sXo}, 1024")
            if last and n == 3: S.h(1, SCALE)
            if last and n >= 10 and OPT["cvo"]: cvq[:] = fill_ops(S, cvq, 4 if n == 10 else 0)
            S.emit(None if fin else qmf(n + 1, last)[0])
    a.e(".p2align 6")
    a.e("L_q:")
    if OPT["qprof"] == 3:
        a.e(f"s_lshr_b32 s{sT3}, s{sXo}, 8"); stamp_dyn(a, 4, sT3, 4)
    mark = len(a.ins); nops0 = a.nops
    q_group(False)
    lg_end = list(a.lg)
    del a.ins[mark:]; a.nops = nops0
    q_group(False)
    assert a.lg == lg_end
    a.e("s_cbranch_scc1 L_q")
    if OPT["ct2"]: code_touch(a, "L_enter", "L_q2b" if T else "L_altwo", 10, 11, back=bool(OPT["pro2"]))
    if OPT["ramp"]: late_setup()
    if OPT["qprof"] == 3: stamp(a, 8)
    q_group(True)
    if OPT["qprof"] == 1: stamp(a, 7); stamp(a, 8, False)
    stamp(a, 3)
    a.c("Q conversion")
    tmp = [60 + 8 * k for k in range(8)]
    rest = packed(cvq + conv_ops(Qacc, 1, QBANK[2], tmp) + conv_ops(Qacc, 2, QBANK[1], tmp) + conv_ops(Qacc, 3, None, tmp))
    steps = [s_ for m in range(10 - OPT["kvconv"], 13) for s_ in kv_tile(m, m >> 1)] if OPT["kvconv"] else []
    at = {int((k + 0.3) * len(rest) / len(steps)): s_ for k, s_ in enumerate(steps)}
    for k, x in enumerate(rest):
        if k in at:
            for y in at[k][0]: a.e(y)
        a.e(x)
        if k in at: a._emit(at[k][1])
    late_consts(a)
    bootstrap()
    a.e("s_branch L_enter")
    a.e("L_p1:")
    a.lg = []
    if not OPT["pro2"]:
        for j in range(3): emit_tile(a, x_block(j, 0, sXo, lds=VB-XB))
        for n in range(NF): emit_tile(a, w_tile(wpos(n), n, 2))
    a.e(f"s_xor_b32 s{sXo1}, s{sXo}, 128")
    for j in range(3): emit_tile(a, x_block(j, 0, sXo1))
    setup("L_q2")
    late_consts(a)
    a.e(f"s_mov_b32 s{sPre}, 1")
    assert OPT["cvo"] or not OPT["lateq"]
    if OPT["lateq"]: a.e(f"s_mov_b32 s{sMin}, 0")
    L0 = 5 if OPT["ramp"] else LA
    assert not OPT["ramp"] or (OPT["latekv"] and LA == 7 and OPT["ct2"])
    for n in range(NF, L0): emit_tile(a, w_tile(wpos(n), n, 2))
    a.e(f"v_subrev_u32 v12, {XB-VB}, v{vXA0}"); a.e(f"v_subrev_u32 v13, {XB-VB}, v{vXA1}")
    a.raw_wait(f"s_waitcnt vmcnt({2 * (L0 - 2)}) lgkmcnt(0)")
    for j in range(3):
        for s in range(2): a.e(f"ds_read_b128 {R(X2reg(0, j, s),4)}, v{12+s} offset:{j*2048}")
    a.e("L_q2go:")
    a.e("s_barrier")
    for i in range(8):
        for r in rd_w(Greg(0, i), wpos(0), i): a.e(r)
    a.raw_wait("s_waitcnt lgkmcnt(0)"); a.lg = []
    def q2_group(kind):
        first, last = kind == 0, kind == 2
        for n in range(8):
            a.c(f"Q2 sub-step {n} ({('first', 'loop', 'last')[kind]})")
            S = Sched(a, q2mf(n, first))
            cl, q = divmod(n, 4)
            fin = last and n == 7
            xrd = q < 3 and not (last and cl == 1)
            def xd(k): return k % 4 < 3 and not (last and k >= 0) and not (first and k < 0)
            def wd(k): return not (last and k + LA >= 8)
            def kd(k): return last and 0 <= k <= 5
            if not fin:
                rds = []
                for i in range(8): rds += rd_w(Greg((n + 1) & 1, i), wpos(n + 1), i)
                for r, p in zip(rds, RDPOS_X): S.v(p, r)
            rampd = first and OPT["ramp"]
            if rampd:
                m0_ = n + 5 + (n > 3)
                place_tile(a, S, w_tile(wpos(m0_), m0_, 2), (4, 7))
                if q == 3: place_tile(a, S, w_tile(wpos(m0_ + 1), m0_ + 1, 2), (10, 13))
            elif wd(n): place_tile(a, S, w_tile(wpos(n + LA), n + LA, 2), (4, 7))
            if kd(n): place_tile(a, S, kv_tile(7 + n, (7 + n) >> 1), (10, 13))
            if xrd:
                for s in range(2): S.v(s, (rd_xb(X2reg(1 - cl, q, s), q, s), "xr"))
            if xd(n):
                S.h(7, lambda: a.wait(lg="xr"))
                place_tile(a, S, x_block(q, 256, (sXo, sXo1)[cl]), (10, 13))
            if q == 3 and not last and not (first and OPT['latekv']): early(S, cl, (0, 0, 1, 1, 4, 7, 8) if cl == 0 else (0, 0, 1, 1, 4), (10, 13))
            if n == 7 and not last:
                S.h(16, f"s_mov_b32 s{sWq}, s{sWq1}")
                S.h(17, f"s_add_u32 s{sWq1}, s{sWq1}, {1 << 20}")
                S.h(18, f"s_add_u32 s{sXo1}, s{sXo1}, 256")
                S.h(19, f"s_add_u32 s{sXo}, s{sXo}, 256")
                S.h(20, f"s_cmp_lt_u32 s{sXo}, 1024")
            if not (last and n >= 6):
                k0 = n + 2 - LA
                vm = sum(2 * wd(k) for k in range(k0 + 1, n + 1)) + sum(2 * kd(k) for k in range(k0, n + 1))
                if (n + 1) % 4 < 3 and not (last and n + 1 >= 4) and xd(n - 3):
                    vm = min(vm, sum(2 * wd(k) + 2 * xd(k) + 2 * kd(k) for k in range(n - 2, n + 1)))
                if rampd and n == 0: vm = min(vm, 8)
                if n == 7 and OPT['cvo']: vm = min(vm, 8)
                end_sync(a, S, vm, 5)
            S.emit(None if fin else q2mf(n + 1, first and n < 7)[0])
    a.e("L_q2:")
    q2_group(0)
    lg_in = list(a.lg)
    a.e(".p2align 6")
    a.e("L_q2l:")
    q2_group(1)
    assert a.lg == lg_in
    a.e("s_cbranch_scc1 L_q2l")
    if OPT["ct2"]:
        assert not OPT["ramp"]
        code_touch(a, "L_enter", "L_q2b" if T else "L_altwo", 10, 11)
    cv2 = conv_ops(Q2acc, 0, "keep", [0])
    if not OPT["cvo"]:
        q2_group(2); a.e(SCALE)
    else:
        order = [0, 2, 4, 6, 1, 3, 5, 7]
        def mfs(n):
            s, pos = divmod(order[n], 2)
            return [mf(Q2acc(pos, i, j), Greg(n & 1, i), X2reg(s >> 1, j, s & 1), Q2acc(pos, i, j)) for i in range(8) for j in zj(i)]
        kvat = {0: [7], 1: [8], 5: [9, 10], 6: [11, 12]}
        for n in range(8):
            a.c(f"Q2 sub-step {n} (last)")
            S = Sched(a, mfs(n))
            if n < 7:
                rds = []
                for i in range(8): rds += rd_w(Greg((n + 1) & 1, i), wpos(order[n + 1]), i)
                for r, p in zip(rds, RDPOS_X): S.v(p, r)
            if n == 0:
                place_tile(a, S, w_tile(wpos(7), 7, 2), (4, 7)); S.h(14, SCALE)
                for s in range(2): S.v(s, rd_xb(X2reg(1, 0, s), 0, s))
            if n == 1:
                for k, p in enumerate((0, 1, 4, 7)): S.v(p, rd_xb(X2reg(1, 1 + (k >> 1), k & 1), 1 + (k >> 1), k & 1))
            for m, gp in zip(kvat.get(n, []), ((10, 13),) if n < 2 else ((4, 7), (10, 13))):
                un, half = divmod(m - 7, 2)
                pre = [x.replace(f"s{sOff},", f"s{sOff2},") for x in unit_pre(sKn, un * 8192)[4*half:4*half+4]]
                if gp[0] == 4: pre = [x.replace(f"s{sOff2},", f"s{sOff},") for x in pre]
                for x, h_ in zip(pre, (0, 0, 1, 2) if gp[0] == 4 else (0, 1, 4, 8) if n < 2 else (4, 5, 7, 8)): S.h(h_, x)
                so = sOff if gp[0] == 4 else sOff2
                place_tile(a, S, unit_dma(so, so)[2*half:2*half+2], gp)
            if n < 6: end_sync(a, S, {0: 6, 1: 6, 5: 8}.get(n, 20), 5)
            if n >= 4: cv2 = fill_ops(S, cv2, 4 if n == 4 else 0)
            S.emit(mfs(n + 1)[0] if n < 7 else None)
    if OPT["stamp"] and not OPT["qprof"]:
        a.e(f"s_lshr_b32 s{sT2}, s{sR}, 1"); stamp_dyn(a, 3, sT2, 2)
    a.c("Q2 conversion")
    for x in packed(cv2): a.e(x)
    def bank_write(db, src):
        return [f"v_accvgpr_write_b32 a{db + 12*p + 4*j + x}, v{src(p, j)+x}" for p in range(4) for j in range(3) for x in range(4)]
    a.e(f"s_cmp_lg_u32 s{sR}, 0"); a.e("s_cbranch_scc1 L_cv2b")
    if OPT["touch"]:
        a.e("v_min_u32 v8, 39, v0"); a.e("v_lshrrev_b32 v9, 2, v8"); a.e("v_lshlrev_b32 v9, 13, v9")
        a.e("v_and_b32 v8, 3, v8"); a.e("v_lshl_add_u32 v9, v8, 7, v9")
        a.e(f"s_lshl_b32 s{sTmp}, s{sB}, 2"); a.e(f"s_add_u32 s{sTmp}, s{sTmp}, s{sWv}"); a.e(f"s_mul_i32 s{sTmp}, s{sTmp}, {10*8192}")
        a.e(f"s_add_u32 s{sTmp}, s{sTmp}, 512")
        a._emit(f"buffer_load_dword v{vD}, v9, {sr(sW,4)}, s{sTmp} offen")
    a.e(f"s_and_b32 s{sWq}, s{sWq}, 0xfffff"); a.e(f"s_xor_b32 s{sWq}, s{sWq}, 512"); a.e(f"s_add_u32 s{sWq1}, s{sWq}, {1 << 20}")
    a.e(f"s_and_b32 s{sXo}, s{sXo}, 128"); a.e(f"s_xor_b32 s{sXo1}, s{sXo}, 128")
    for x in bank_write(QBANK[1], lambda p, j: Q2acc(0, 2*p, j)): a.e(x)
    a.e("s_branch L_cv2c")
    a.e("L_cv2b:")
    if OPT["emu3"]:
        a.e(f"s_cmp_eq_u32 s{sPre}, 1"); a.e("s_cbranch_scc0 L_cv2d")
        a.e(f"s_mov_b32 s{sPre}, 14")
        a.e(f"s_and_b32 s{sWq}, s{sWq}, 0xfffff"); a.e(f"s_add_u32 s{sWq1}, s{sWq}, {1 << 20}")
        a.e(f"s_and_b32 s{sXo}, s{sXo}, 128"); a.e(f"s_xor_b32 s{sXo1}, s{sXo}, 128")
        a.raw_wait("s_waitcnt vmcnt(0)"); a.e("s_barrier")
        for n in range(LA): emit_tile(a, w_tile(wpos(n), n, 2))
        a.raw_wait("s_waitcnt vmcnt(0)")
        a.e("s_branch L_q2go")
        a.e("L_cv2d:")
    a.e("s_nop 7")
    for x in bank_write(QBANK[3], lambda p, j: Q2acc(0, 2*p, j)): a.e(x)
    bootstrap()
    a.e("L_cv2c:")
    for x in packed(conv_ops(Q2acc, 1, None, [0])): a.e(x)
    a.e("L_enter:")
    a.e(f"v_mov_b32 v{vT}, 0x3f803f80")
    if OPT["sparse1"]:
        a.e(f"v_and_b32 v{vT+1}, 3, v0"); a.e(f"v_cmp_eq_u32 vcc, 0, v{vT+1}"); a.e(f"v_cndmask_b32 v{vT}, 0, v{vT}, vcc")
    for r in range(4): a.e(f"v_accvgpr_write_b32 a{ONES[1]+r}, v{vT}")
    def rd_k(dst, t, u): return [f"ds_read_b128 {vr(dst + 4*ks,4)}, v{vKA} offset:{(t % 8)*TILE + u*512 + ks*64}" for ks in range(4)]
    def rd_v(t, half, fr=VF):
        return [f"ds_read_b64_tr_b16 {vr(fr + 4*i + 2*e, 2)}, v{vVA} offset:{(t % 8)*TILE + e*512 + (4*half+i)*32}" for i in range(4) for e in range(2)]
    assert not OPT["lateq"] and OPT["lmax"] == 3
    a.e(f"s_add_u32 s{sKc}, s{sKn}, {4*8192}"); a.e(f"s_mov_b32 s{sLag}, 0")
    assert OPT["cvo"] or not T
    THR = OPT['thr'] + 1 if OPT['dyn'] else 99
    a.e(f"s_cmp_eq_u32 s{sTyp}, 0"); a.e(f"s_cselect_b32 s{sThr}, {0 if OPT['sh1'] else THR}, {THR}")
    vmw(a, 12)
    a.e("s_barrier")
    a.lg = []
    for r in rd_k(KF, 0, 0) + rd_k(VF, 0, 1): a.e(r)
    for x in unit_pre(sKn, 3 * 8192): a.e(x)
    a.wait(lg="all")
    def ex(u, k): j, r = divmod(k, 4); s = Sr(u, j) + r; return f"v_exp_f32 v{s}, v{s}"
    def cv(u, buf, c): j, h = divmod(c, 2); s = Sr(u, j) + 2*h; return f"v_cvt_pk_bf16_f32 v{Pr(buf,j) + 2*u + h}, v{s}, v{s+1}"
    def qk(u): return [mf(Sr(u, j), KF + 4*ks, Qf(j, ks), Nm(j) if ks == zk(j)[0] else Sr(u, j)) for j in range(3) for ks in zk(j)]
    def pv(t, half, fr=VF): return [mf(Or(4*half + i, j), fr + 4*i, Pr(t & 1, j), None if t == 0 else Or(4*half + i, j)) for i in range(4) for j in zj(i)]
    def sm(t): return [mf(La(j), ONES, Pr(t & 1, j), None if t == 0 else La(j)) for j in zj(1)]
    VMW = min(4 * (5 - OPT["lmax"]), OPT["vmw"])
    decide = [f"s_getreg_b32 s{sC1}, hwreg(HW_REG_IB_STS, 0, 4)", f"s_cmp_ge_u32 s{sC1}, s{sThr}", f"s_cselect_b32 s{sC1}, s{sLag}, 15",
              f"s_cmp_lt_u32 s{sC1}, {OPT['lmax']}"]
    advance = [f"s_mov_b32 s{sOff}, s{sOff2}", f"s_mov_b32 s{sMv}, s{sMk}", f"s_add_u32 s{sKc}, s{sKc}, 8192"]
    recompute = [f"s_xor_b32 s{sOff2}, s{sKc}, s{sRot}", f"s_bfe_u32 s{sMk}, s{sKc}, 0x3000d", f"s_mul_i32 s{sMk}, s{sMk}, {TILE}"]
    skips = []
    def forked(build, nxt):
        l0, l1 = newlabel("df"), newlabel("dfb")
        a.e(f"s_cbranch_scc1 {l0}")
        lg = list(a.lg)
        build(True).emit(nxt)
        a.e(f"{l1}:")
        skips.append((l0, l1, build, nxt, lg, list(a.lg)))
    catch = []
    def wo_at(S, m, gaps):
        st, post = wo_tile(m)
        place_tile(a, S, st, gaps)
        for x in post: S.h(gaps[1], x)
    def tail_vec(S, u, buf, rds):
        pos = [0, 1, 4, 5, 8, 9, 10, 11]
        for r, p in zip(rds, pos): S.v(p, r)
        for k, p in zip(range(8, 12), (2, 3, 6, 7)): S.v(p, ex(u, k))
        for c, p in zip(range(6), (0, 1, 4, 5, 8, 9)): S.v(p, cv(u, buf, c))
    a.e("L_head:")
    a.c("tile 0: scores of the first 16 keys give the stand-in row max")
    def qk0(extra):
        S = Sched(a, [mf(Sr(0, j), KF + 4*ks, Qf(j, ks), None if ks == 0 else Sr(0, j)) for j in range(3) for ks in range(4)])
        S.h(2, lambda: vmw(a, VMW))
        for k, x in enumerate(decide): S.h(3 + k, x)
        for k, x in enumerate(extra[:24]): S.v(k // 2, x)
        S.emit(None)
        for x in extra[24:]: a.e(x)
        if not extra: a.e("s_nop 7")
    qk0([])
    a.e(".p2align 6")
    a.e("L_head2:")
    for j in range(3): a.e(f"v_max3_f32 v{Nm(j)}, v{Sr(0,j)}, v{Sr(0,j)+1}, v{Sr(0,j)+2}")
    for j in range(3): a.e(f"v_max_f32 v{Nm(j)}, v{Nm(j)}, v{Sr(0,j)+3}")
    rowred(a, "v_max_f32", [Nm(j) for j in range(3)], [Nm(j) + 1 for j in range(3)])
    for j in range(3):
        if OPT["pk"]:
            for r in (2, 0): a.e(f"v_pk_mul_f32 v[{Nm(j)+r}:{Nm(j)+r+1}], v[{Nm(j)}:{Nm(j)+1}], -1.0 op_sel_hi:[0,0]")
        else:
            for r in (3, 2, 1, 0): a.e(f"v_sub_f32 v{Nm(j)+r}, 0, v{Nm(j)}")
    a.e("s_barrier")
    def qkb(issue):
        S = Sched(a, [mf(Sr(1, j), VF + 4*ks, Qf(j, ks), Nm(j) if ks == 0 else Sr(1, j)) for j in range(3) for ks in range(4)])
        for r, p in zip(rd_k(KF, 1, 0), (0, 3, 6, 9)): S.v(p, r)
        if issue:
            place_tile(a, S, unit_dma(), (2, 5, 8, 11))
            for x, p in zip(advance, (6, 8, 9)): S.h(p, x)
        else: S.h(1, f"s_add_u32 s{sLag}, s{sLag}, 1")
        subs = [f"v_add_f32 v{Sr(0,j)+r}, v{Sr(0,j)+r}, v{Nm(j)}" for j in range(3) for r in range(4)]
        for x, p in zip(subs, (0, 1, 1, 3, 4, 4, 6, 7, 7, 9, 10, 10)): S.v(p, x)
        return S
    forked(qkb, None)
    for k in range(12): a.e(ex(0, k))
    for k in range(8): a.e(ex(1, k))
    for c in range(6): a.e(cv(0, 0, c))
    a.wait(lg="all")
    def stage(t, mode):
        a.c(f"stage {t} {mode}")
        kv = mode == "kv"
        S = Sched(a, qk(0)); tail_vec(S, 1, t & 1, rd_v(t, 0))
        if kv:
            for k, x in enumerate(recompute): S.h(1 + k, x)
        if kv and OPT["dyn"] and OPT["thr2"] >= 0 and t >= OPT["cufrom"] and (t - OPT["cufrom"]) % OPT["custep"] == 0:
            l0, l1 = newlabel("cu"), newlabel("cub")
            cm = [f"s_add_u32 s{sC1}, s{sC1}, {THR - OPT['thr2']}", f"s_cmp_le_u32 s{sC1}, s{sThr}"] if OPT["gate"] else ["s_nop 0", f"s_cmp_le_u32 s{sC1}, {OPT['thr2']}"]
            for k, x in enumerate([f"s_getreg_b32 s{sC1}, hwreg(HW_REG_IB_STS, 0, 4)"] + cm +
                                  [f"s_cselect_b32 s{sC1}, s{sLag}, 0", f"s_cmp_gt_u32 s{sC1}, 0"]): S.h(5 + k, x)
            def site(l0=l0, l1=l1): a.e(f"s_cbranch_scc1 {l0}"); a.e(f"{l1}:")
            S.h(10, site)
            catch.append((l0, l1, t))
        S.emit(pv(t, 0)[0])
        S = Sched(a, pv(t, 0))
        for r, p in zip(rd_k(KF, t+1, 1), (0, 1, 2, 3)): S.v(p, r)
        for k, p in zip(range(8), range(4, 12)): S.v(p, ex(0, k))
        S.h(10, lambda: a.wait(lg="all"))
        if mode == "wq" and t == 13: place_tile(a, S, x_block(1, 0, sXo) + x_block(2, 0, sXo), (2, 4, 7, 9))
        S.emit(qk(1)[0])
        S = Sched(a, qk(1)); tail_vec(S, 0, (t+1) & 1, rd_v(t, 1))
        if kv:
            if t == OPT["sh1t"]: S.h(2, f"s_mov_b32 s{sThr}, {THR}")
            if t == 9 and OPT["sh2"] and T:
                S.h(2, f"s_cmp_eq_u32 s{sR}, s{sPre}"); S.h(3, f"s_cselect_b32 s{sThr}, 0, s{sThr}")
            S.h(6, lambda: vmw(a, VMW))
            for k, x in enumerate(decide): S.h(7 + k, x)
        else:
            S.h(11, lambda: vmw(a, {"wo": 8, "wq": 8 if t < 14 else 4}[mode]))
        S.emit(None)
        def dslot(issue):
            S = Sched(a, sm(t) + pv(t, 1))
            S.h(0, "s_barrier")
            if t + 2 < 16:
                for r, p in zip(rd_k(KF, t+2, 0), (0, 1, 2, 3)): S.v(p, (r, "kr"))
            else:
                for r, p in zip(rd_v(15, 0, KF), (0, 1, 2, 3, 4, 6, 7, 9)): S.v(p, (r, "kr"))
                S.v(10, cv(1, 1, 0)); S.v(12, cv(1, 1, 1))
                if mode == "wq":
                    for k, p in enumerate((0, 1, 2, 5, 8, 10)): S.v(p, (rd_xb(X2reg(0, k >> 1, k & 1), k >> 1, k & 1), "kr"))
            for k, p in zip(range(8), (3, 4, 6, 7, 9, 10, 12, 13)): S.v(p, ex(1, k))
            def vwait(keep):
                def f():
                    idx = [n for n, (tg, d) in enumerate(a.lg) if tg != "kr"]
                    if len(idx) > keep: a._wait(lg_idx=idx[len(idx) - 1 - keep])
                return f
            S.h(1, vwait(4)); S.h(6, vwait(0))
            if kv and issue:
                place_tile(a, S, unit_dma(), (5, 8, 11, 14))
                for x, p in zip(advance, (9, 11, 3)): S.h(p, x)
            elif kv: S.h(3, f"s_add_u32 s{sLag}, s{sLag}, 1")
            elif mode == "wo":
                wo_at(S, 2*(t-12), (5, 8)); wo_at(S, 2*(t-12) + 1, (11, 14))
            else:
                if t == 12: place_tile(a, S, x_block(0, 0, sXo), (5, 8))
                else: place_tile(a, S, w_tile(2*t - 17, 2*t - 25, 2), (5, 8))
                place_tile(a, S, w_tile(2*t - 16, 2*t - 24, 2), (11, 14))
            S.h(12 if t < 14 else 14, lambda: a.wait(lg="all"))
            return S
        nxt = qk(0)[0] if t < 14 else None
        if kv: forked(dslot, nxt)
        else: dslot(True).emit(nxt)
        assert not a.lg
    NPRE = 20
    def epi_ops(toq):
        o_ = [f"v_mul_f32 v{Or(u,j)+r}, v{Or(u,j)+r}, v{vT+j}" for u in range(2) for j in range(3) for r in range(4)]
        for p in range(4):
            for j in range(3):
                d = Qf(j, p) if toq else Or(2*p, j)
                if p: o_ += [f"v_mul_f32 v{Or(2*p+u,j)+r}, v{Or(2*p+u,j)+r}, v{vT+j}" for u in range(2) for r in range(4)]
                o_ += [f"v_cvt_pk_bf16_f32 v{d+2*u+h}, v{Or(2*p+u,j)+2*h}, v{Or(2*p+u,j)+2*h+1}" for u in range(2) for h in range(2)]
        return o_
    def stage15(mode):
        a.c(f"stage 15 {mode}")
        p0 = pv(15, 0, KF)
        S = Sched(a, [m_ for j in range(3) for m_ in [sm(15)[zj(1).index(j)]] + [p0[3*i + zj(i).index(j)] for i in range(4)]] + pv(15, 1))
        for r, p in zip(rd_v(15, 1), (0, 1, 6, 7, 8, 9, 10, 11)): S.v(p, r)
        for c, p in zip((2, 3, 4, 5), (0, 1, 6, 7)): S.v(p, cv(1, 1, c))
        for k, p in zip(range(8, 12), (2, 3, 4, 5)): S.v(p, ex(1, k))
        for j, p in enumerate((8, 9, 14)): S.v(p, f"v_accvgpr_read_b32 v{vT+j}, a{La(j)[1]}")
        S.v(10, f"v_add_f32 v{vT+3}, v{vT}, v{vT+1}"); S.v(14, f"v_add_f32 v{vT+3}, v{vT+3}, v{vT+2}")
        S.v(11, f"v_mov_b32 v{vT+4}, {f32(2.0**30 if not OPT['forceslow'] else 150.0)}")
        S.v(15, f"v_cmp_nle_f32 vcc, v{vT+3}, v{vT+4}")
        for j, p in enumerate((12, 13, 16)): S.v(p, f"v_rcp_f32 v{vT+j}, v{vT+j}")
        if mode != "wo":
            for k, x in enumerate(epi_ops(0)[:NPRE]): S.v(17 + k // 2, x)
        if mode == "kv":
            for k, x in enumerate(recompute): S.h(1 + k, x)
        if mode == "wo":
            for k in range(3): wo_at(S, 6 + k, (11 + 6*k, 14 + 6*k))
        if mode == "wq":
            place_tile(a, S, [s_ for j in range(3) for s_ in x_block(j, 0, sXo1)], (12, 14, 17, 19, 22, 24))
        S.emit(None)
        assert not a.lg
        if not OPT["nocheck"]: a.e("s_cbranch_vccnz L_slow")
    for t in range(15):
        if t == 12:
            a.e(f"s_cmp_eq_u32 s{sR}, 3"); a.e("s_cbranch_scc1 L_altwo")
            if T: a.e(f"s_cmp_eq_u32 s{sR}, s{sPre}"); a.e("s_cbranch_scc1 L_altwq")
        stage(t, "kv")
    stage15("kv")
    a.e("L_epi:")
    for r in rd_k(KF, 0, 0) + rd_k(VF, 0, 1): a.e(r)
    lg_epi = list(a.lg)
    for x in packed(epi_ops(0)[NPRE:]): a.e(x)
    if OPT["stamp"] and not OPT['qprof']: stamp_dyn(a, 5, sR, 4)
    a.e(f"s_add_u32 s{sCur}, s{sCur}, 131072")
    a.e(f"s_add_u32 s{sR}, s{sR}, 1")
    a.e(f"s_cmp_eq_u32 s{sR}, 3"); a.e("s_cbranch_scc1 L_sw2")
    a.e(f"s_cmp_eq_u32 s{sR}, 2"); a.e("s_cbranch_scc1 L_sw1")
    for r in range(3):
        a.e(f"L_sw{r}:")
        if r == 1 and T: a.e(f"s_cmp_eq_u32 s{sPre}, 1"); a.e("s_cbranch_scc1 L_q2b")
        if r < 2: code_touch(a, "L_rare", "L_altwo" if r == 0 or not T else "L_q2b", 10, 11)
        if r == 2:
            code_touch(a, "L_rare", "L_hot_end", 158, 159)
            l = newlabel("bp")
            a.e(f"s_cmp_lg_u32 s{sWv}, 0"); a.e(f"s_cbranch_scc1 {l}")
            a._emit("global_load_dword v156, v157, s[18:19] sc1")
            a.e(f"{l}:")
        for j in range(3):
            for p in range(4):
                for x in range(4): a.e(f"v_accvgpr_read_b32 v{Qf(j,p)+x}, a{QBANK[r+1] + 12*p + 4*j + x}")
        a.raw_wait("s_waitcnt lgkmcnt(0)"); a.lg = []
        qk0(bank_write(OBANK[r], lambda p, j: Or(2*p, j)))
        a.e("s_branch L_head2")
    a.e("L_rare:")
    for l0, l1, t in catch:
        a.e(f"{l0}:")
        emit_tile(a, unit_dma())
        for x in advance + recompute: a.e(x)
        a.e(f"s_sub_u32 s{sLag}, s{sLag}, 1")
        a.e(f"s_branch {l1}")
    for l0, l1, build, nxt, lg0, lg1 in skips:
        a.e(f"{l0}:")
        a.lg = list(lg0)
        build(False).emit(nxt)
        assert a.lg == lg1
        a.e(f"s_branch {l1}")
    if T:
        a.e("L_q2b:")
        for x in bank_write(OBANK[1], lambda p, j: Or(2*p, j)): a.e(x)
        a.e(f"s_sub_u32 s{sKn}, s{sKc}, 8192"); a.e(f"s_add_u32 s{sMin}, s{sCur}, {3*8192}")
        a.raw_wait("s_waitcnt vmcnt(0) lgkmcnt(0)")
        if L0 > 5: a.e("s_barrier")
        for n in range(5, L0): emit_tile(a, w_tile(wpos(n), n, 2))
        a.e("s_branch L_q2go")
        a.e(".p2align 6")
        a.e("L_altwq:")
        a.lg = []
        for t in range(12, 15): stage(t, "wq")
        stage15("wq")
        a.e("s_branch L_epi")
    a.e(".p2align 6")
    a.e("L_altwo:")
    a.lg = []
    for t in range(12, 15): stage(t, "wo")
    stage15("wo")
    sPr, sOut, sOo, sDst = sX, sW, sLast, 40
    LD = {0: 184, 1: 130}
    ACC, STG = 60, 160
    vSA, vSB, vLA, vLB, vOA, vFl, vFi, vPoll, vVal, TM, PK = 152, 153, 154, 158, 159, 1, 2, 6, 10, 120, 124
    def Ga(h, i, j): return (72, 208)[h] + 12 * i + 4 * j
    def spin_loop(l0, l1, cmp, reload):
        a.e(f"{l0}:")
        a.e(f"s_mov_b32 s{sT3}, 0")
        l2 = newlabel("spin")
        a.e(f"{l2}:")
        a.e(f"s_add_u32 s{sT3}, s{sT3}, 1")
        a.e(f"s_cmp_ge_u32 s{sT3}, {SPIN_MAX}")
        a.e(f"s_cbranch_scc1 {l1}")
        a.e(f"s_sleep {OPT['sleep']}")
        a._emit(reload)
        a.raw_wait("s_waitcnt vmcnt(0)")
        for x in cmp: a._emit(x)
        a._emit("s_nop 4")
        a.e(f"s_cbranch_vccnz {l2}")
        a.e(f"s_branch {l1}")
    spins = []
    def rd_g(dst, m, f):
        h, o = slot(m); i, c = divmod(f, 2)
        return [f"ds_read_b64_tr_b16 {R(off(dst, 2*e), 2)}, v{(vWAl, vWAh)[h]} offset:{o + c*512 + e*256 + i*32}" for e in range(2)]
    def gmf(n):
        h, t = divmod(n % 16, 8)
        o = []
        for i in range(4):
            for jn, j in enumerate(zj(i)):
                cs = (1, 0) if OPT["zz"] and (3 * i + jn) & 1 else (0, 1)
                for c in cs:
                    r, p = divmod(2 * t + c, 4)
                    o.append(mf(Ga(h, i, j), Greg(n & 1, 2*i + c), Qf(j, p) if r == 3 else ("a", OBANK[r] + 12 * p + 4 * j), None if t == 0 and c == cs[0] else Ga(h, i, j)))
        return o
    a.e("L_g:")
    a.lg = []
    if OPT["stamp"] and not OPT['qprof']: stamp(a, 8)
    if OPT["qprof"] == 4: stamp(a, 4)
    a.e(f"v_lshrrev_b32 v{TM}, 5, v0"); a.e(f"v_lshlrev_b32 v{TM}, 7, v{TM}")
    a.e(f"v_sub_u32 v{vWAh}, v{vVA}, v{TM}"); a.e(f"v_subrev_u32 v{vWAl}, {VB}, v{vWAh}")
    a.e(f"v_mov_b32 v{TM+1}, {XB}")
    vmw(a, 12)
    l, l0, l1 = newlabel("bc"), newlabel("bs"), newlabel("bok")
    a.e(f"s_cmp_lg_u32 s{sWv}, 0"); a.e(f"s_cbranch_scc1 {l}")
    bcmp = [f"v_and_b32 v{TM}, 0xff, v156", f"v_cmp_gt_u32 vcc, 8, v{TM}"]
    for x in bcmp: a._emit(x)
    a.e(f"s_lshl_b32 s{sTmp}, s{sPK}, 3")
    a._emit("s_nop 3")
    if not OPT["nosync"]: a.e(f"s_cbranch_vccnz {l0}")
    a.e(f"{l1}:")
    spins.append((l0, l1, bcmp, "global_load_dword v156, v157, s[18:19] sc1"))
    a.e(f"v_xor_b32 v156, s{sTmp}, v156")
    a._emit(f"ds_write_b32 v{TM+1}, v156")
    a.e(f"{l}:")
    a.e("s_barrier")
    for f in range(8):
        for r in rd_g(Greg(0, f), 0, f): a.e(r)
    epi = epi_ops(1)
    NC = 24 if OPT["pk"] else 16
    for x in packed(epi[:NC]): a.e(x)
    epi = epi[NC:]
    def srd_atoms(d, lo, o): return [[f"s_add_u32 s{d}, s{lo}, {o}", f"s_addc_u32 s{d+1}, s{lo+1}, 0"], [f"s_and_b32 s{d+1}, s{d+1}, 0xffff"], [f"s_mov_b32 s{d+3}, 0x20000"]]
    T1_, T2_ = f"s{sTmp}", f"s{sT2}"
    setup_ = [[f"s_mul_i32 {T1_}, s{sG}, {XG}"]] + srd_atoms(sP, 28, T1_) + [[f"s_mov_b32 s{sP+2}, {XG}"], [f"s_mul_i32 {T2_}, s{sU}, {XD}"], [f"s_add_u32 {T1_}, {T1_}, {T2_}"]]
    setup_ += srd_atoms(sPr, 28, T1_) + [[f"s_mov_b32 s{sPr+2}, 0"]]
    if OPT["ibg"]:
        setup_ += [[x] for x in (f"s_mul_i32 {T2_}, s{sWv}, 1536", f"s_add_u32 {T2_}, {T2_}, {T1_}", f"s_add_u32 {T2_}, {T2_}, {5*XP}",
            "v_min_u32 v3, 47, v0", "v_mul_u32_u24 v132, 43, v3", "v_lshrrev_b32 v132, 9, v132", "v_lshlrev_b32 v3, 7, v3",
            "v_mul_u32_u24 v132, 4608, v132", f"v_add3_u32 v3, v3, v132, {T2_}", f"s_add_u32 {T2_}, {T2_}, {XD - 6144 + 1408}",
            "v_add_u32 v157, 24576, v3", f"v_min_u32 v157, {T2_}, v157")]
    for i in range(7):
        setup_ += [[f"s_xor_b32 s{sDst+i}, s{sU}, {i ^ 7}"], [f"s_mul_i32 s{sDst+i}, s{sDst+i}, {XD}"], [f"s_add_u32 s{sDst+i}, s{sDst+i}, {i*6144}"]]
    setup_ += [[f"s_mul_i32 {T1_}, s{sB}, 491520"], [f"s_mul_i32 {T2_}, s{sBr}, 1280"], [f"s_add_u32 {T1_}, {T1_}, {T2_}"], [f"s_lshl_b32 {T2_}, s{sU}, 5"], [f"s_add_u32 {T1_}, {T1_}, {T2_}"]]
    setup_ += srd_atoms(sOut, 16, T1_) + [[f"s_mov_b32 s{sOut+2}, 0"]]
    setup_ += [[x] for x in (f"s_mul_i32 {T1_}, s{sWv}, 1536", f"v_lshl_add_u32 v{vSA}, v0, 4, {T1_}", f"s_add_u32 {T1_}, {T1_}, 1024", f"v_lshl_add_u32 v{vSB}, v0, 3, {T1_}",
        *((f"v_and_b32 v{TM}, 15, v0", f"v_mul_u32_u24 v{TM}, 2560, v{TM}", f"v_lshrrev_b32 v{TM+3}, 4, v0", f"v_lshl_add_u32 v{TM}, v{TM+3}, 3, v{TM}") if not OPT["bp"] else
          (f"v_lshrrev_b32 v{TM}, 2, v0", f"v_and_b32 v{TM+3}, 3, v0", f"v_lshl_add_u32 v11, v{TM+3}, 4, v{TM}", "v_lshlrev_b32 v11, 2, v11",
           f"v_mul_u32_u24 v{TM}, 2560, v{TM}", f"v_lshl_add_u32 v{TM}, v{TM+3}, 3, v{TM}")),
        f"s_mul_i32 {T1_}, s{sWv}, {48*2560}", f"v_add_u32 v{vOA}, {T1_}, v{TM}",
        f"s_lshl_b32 {T1_}, s{sWv}, 7", f"s_lshl_b32 {T2_}, s{sU}, 2", f"s_add_u32 {T2_}, {T2_}, {T1_}", f"v_lshl_add_u32 v{vFl}, v0, 9, {T2_}",
        f"s_lshl_b32 {T2_}, s{sU}, 9", f"s_add_u32 {T2_}, {T2_}, {T1_}", f"v_and_b32 v{TM}, 7, v0", f"v_lshl_add_u32 v{vFi}, v{TM}, 2, {T2_}",
        f"v_mov_b32 v{vVal}, 0", f"v_mov_b32 v{vPoll}, 0", f"s_mov_b32 s{sGc}, 0" if not OPT["emu3"] else f"s_lshl_b32 s{sGc}, s{sTyp}, 1", f"s_mov_b32 s{sOo}, -512" if not OPT["emu3"] else f"s_mov_b32 s{sOo}, 0", f"s_mov_b32 s{sS8}, 0xffff0000")]
    if OPT["mred"]:
        sel_ = [x for x in ("v_and_b32 v134, 1, v0", "v_lshlrev_b32 v134, 4, v134", "v_mov_b32 v135, 0x3f80", "v_lshlrev_b32 v134, v134, v135",
            "v_bfe_u32 v135, v0, 1, 3", "v_lshrrev_b32 v136, 4, v0", "v_lshlrev_b32 v136, 1, v136", "v_xor_b32 v135, v135, v136",
            "v_cmp_eq_u32 vcc, 0, v135", "v_mov_b32 v142, 0", "v_cndmask_b32 v136, 0, v134, vcc", "v_cmp_eq_u32 vcc, 1, v135", "v_mov_b32 v143, 0",
            "v_cndmask_b32 v137, 0, v134, vcc", "v_accvgpr_write_b32 a0, v136", "v_accvgpr_write_b32 a2, v136", "v_accvgpr_write_b32 a1, v137",
            "v_accvgpr_write_b32 a3, v137", "v_mov_b32 v148, 0", "v_mov_b32 v149, 0")]
    m = 9
    Ss = []
    for n in range(8):
        S = Sched(a, gmf(n)); Ss.append(S)
        rds = []
        for f in range(8): rds += rd_g(Greg((n + 1) & 1, f), n + 1, f)
        for r, p in zip(rds, RDPOS): S.v(p, r)
        for gp in ([(6, 11), (16, 19)] if n < 4 else [(6, 11)]): wo_at(S, m, gp); m += 1
        if n % 4 == 1: end_sync(a, S, {1: 12, 5: 16}[n], 0)
        else: S.h(22, lambda: a.wait(lg="all"))
        if n == 2: S.v(20, f"ds_read_b32 v{TM+2}, v{TM+1}")
        if OPT["ibg"] and n == OPT["ibn"]: S.v(16, lambda: a._emit(f"global_load_dword v132, v3, s[28:29]"))
        if OPT["ibg"] and n == min(7, OPT["ibn"] + 3): S.v(16, lambda: a._emit(f"global_load_dword v133, v157, s[28:29]"))
        if n == 7:
            S.v(19, f"v_readfirstlane_b32 s{sTmp}, v{TM+2}"); S.h(21, f"s_cmp_lg_u32 s{sTmp}, 0")
    assert m == 21
    n, k = 0, 0
    for atom in setup_:
        while True:
            S = Ss[n]
            ok = (not S.hold[k]) if atom[0].startswith("s_") else free_slots(S)[k] > 0
            if atom[0].startswith("s_") and len(atom) > 1 and free_slots(S)[k] == 0: ok = False
            if ok: break
            k += 1
            if k == 24: n += 1; k = 0
        for x in atom: (S.h if x.startswith("s_") else S.v)(k, x)
        if not atom[0].startswith("s_") or True:
            k += 1
            if k == 24: n += 1; k = 0
    assert (n, k) < (7, 18), (n, k)
    for n in range(7):
        epi = fill_ops(Ss[n], epi)
        if n == 5: assert len(epi) <= 72 - 8, len(epi)
    assert not epi, len(epi)
    if OPT["mred"]: assert not fill_ops(Ss[7], sel_)
    for n in range(8):
        a.c(f"G first half, sub-step {n}")
        Ss[n].emit(gmf(n + 1)[0])
    a.e("s_branch L_gx" if OPT["xmode"] == 1 else "s_cbranch_scc1 L_gx")
    NP = {0: 4, 1: 3}
    def cvs(h): return [f"v_cvt_pk_bf16_f32 v{STG + 6*i + 2*j + x}, v{Ga(h,i,j)+2*x}, v{Ga(h,i,j)+2*x+1}" for i in range(NP[h]) for j in range(3) for x in range(2)]
    def rops(h, k):
        o = []
        for r in range(6):
            s = LD[h] + 6*k + r; t = TM + 2 * (r & 1)
            src = Ga(1, 3, r >> 1) + 2 * (r & 1) if (h, k) == (0, 0) else ACC + 2*r
            o += [f"v_lshlrev_b32 v{t}, 16, v{s}", f"v_and_b32 v{t+1}, s{sS8}, v{s}",
                  f"v_add_f32 v{ACC+2*r}, v{src}, v{t}", f"v_add_f32 v{ACC+2*r+1}, v{src+1}, v{t+1}"]
        return o
    def ldreg(h, k):
        if not OPT["mred"]: return LD[h] + 6*k, LD[h] + 6*k + 4
        if (h, k) == (1, 2): return 144, 150
        b_ = LD[h] + 12 * (k >> 1)
        return (b_ + 6, b_) if k & 1 else (b_ + 2, b_ + 10)
    def rmf(h, pr):
        q_ = (142, 146, 148) if (h, pr) == (1, 1) else [LD[h] + 12*pr + 4*j for j in range(3)]
        return [mf(ACC + 4*j, ("a", 0), q_[j], Ga(1, 3, j) if (h, pr) == (0, 0) else ACC + 4*j) for j in range(3)]
    rcv = [f"v_cvt_pk_bf16_f32 v{PK+r}, v{ACC+2*r}, v{ACC+2*r+1}" for r in range(6)]
    bps = [f"ds_bpermute_b32 v{PK+r}, v11, v{PK+r}" for r in range(6)] if OPT["bp"] else []
    def rst(j): return ([f"s_add_u32 s{sOff2}, s{sOo}, {j*40960}"], f"buffer_store_dwordx2 {vr(PK+2*j,2)}, v{vOA}, {sr(sOut,4)}, s{sOff2} offen{['', ' sc1', ' nt', ' sc0 sc1'][OPT['opol']]}")
    chk_cmp = [f"v_cmp_gt_u32 vcc, v{vVal}, v{vPoll}"]
    poll = f"buffer_load_dword v{vPoll}, v{vFi}, {sr(sF,4)}, 0 offen sc1"

    def g_phase(fast):
        pol = ("", " nt", " sc0")[OPT["xs"]] if fast else " sc1"
        la, lb = (vSA, vSB) if fast else (vLA, vLB)
        def xst(h, i):
            o4, o2 = (2, 0) if OPT["mred"] and i & 1 else (0, 4)
            return [([], f"buffer_store_dwordx4 {vr(STG+6*i+o4,4)}, v{vSA}, {sr(sP,4)}, s{sDst+4*h+i} offen{pol}"),
                    ([], f"buffer_store_dwordx2 {vr(STG+6*i+o2,2)}, v{vSB}, {sr(sP,4)}, s{sDst+4*h+i} offen{pol}")]
        def xld(h, k): return [([f"s_mov_b32 s{sOff2}, {(4*h+k)*6144}"], f"buffer_load_dwordx4 {vr(ldreg(h,k)[0],4)}, v{la}, {sr(sPr,4)}, s{sOff2} offen sc1"),
                               ([], f"buffer_load_dwordx2 {vr(ldreg(h,k)[1],2)}, v{lb}, {sr(sPr,4)}, s{sOff2} offen sc1")]
        flag = f"buffer_store_dword v{vVal}, v{vFl}, {sr(sF,4)}, 0 offen{pol}"
        def check():
            l0, l1 = newlabel("sp"), newlabel("ok")
            if not OPT["nosync"]: a.e(f"s_cbranch_vccnz {l0}")
            a.e(f"{l1}:")
            spins.append((l0, l1, chk_cmp, poll))
        if fast: a.e(f"v_add_u32 v{vSA}, {5*XP}, v{vSA}"); a.e(f"v_add_u32 v{vSB}, {5*XP}, v{vSB}")
        else: a.e(f"v_subrev_u32 v{vLA}, {XP}, v{vSA}"); a.e(f"v_subrev_u32 v{vLB}, {XP}, v{vSB}")
        a.e(f"s_branch L_gmid{int(fast)}")
        late = []
        def body():
            del late[:]
            Ss = [Sched(a, gmf(n) + (rmf(n // 8, 0) + rmf(n // 8, 1) if OPT['mred'] and n % 8 == 6 else [])) for n in range(16)]
            cap = [[2] * 24 for _ in range(16)]
            ops = []
            def vmem(n, g_, steps, kind):
                if isinstance(kind, tuple) and kind[0] == "T": place_tile(a, Ss[n], steps, g_)
                else:
                    for (pre, d), x in zip(steps, g_):
                        for y in pre: Ss[n].h(x, y)
                        Ss[n].v(x, lambda d=d: a._emit(d))
                for x in g_: cap[n][x] = 0; ops.append((n, x, kind))
            tpos = {0: [(6, 11)], 1: [(6, 11)], 4: [(6, 11), (16, 19)], 5: [(11, 16), (19, 22)], 6: [(6, 11)], 7: [(11, 16)]}
            m = 13
            for n in range(16):
                h, t = divmod(n, 8); S = Ss[n]
                rds = []
                for f in range(8): rds += rd_g(Greg((n + 1) & 1, f), n + 1, f)
                for r, p in zip(rds, RDPOS): S.v(p, r); cap[n][p] -= 1
                cap[n][23] = 0 if n % 4 == 1 else 1; cap[n][20] = min(cap[n][20], 1); cap[n][21] = min(cap[n][21], 1)
                for gp in tpos.get(t, []):
                    st, post = wo_tile(m)
                    if m == 16:
                        S.h(gp[0] - 4, f"s_cmp_eq_u32 s{sGc}, 4"); S.h(gp[0] - 3, f"s_cselect_b32 s{sWo+2}, 0, s{sWo+2}")
                    vmem(n, gp, st, ("T", m))
                    for x in post: S.h(gp[1], x)
                    m += 1
                if t == 2:
                    xs = [s_ for i in range(NP[1-h]) for s_ in xst(1 - h, i)] + [s_ for k in range(NP[h]) for s_ in xld(h, k)]
                    if OPT["xord"]:
                        st_ = xs[:2*NP[1-h]]; ld_ = xs[2*NP[1-h]:]
                        pat = {6: "SLSLLSL" * 2, 8: "SSLSLSL" + "SSLSLSL"}[len(st_)] if OPT["xord"] == 1 else {6: "SSLLSLL" * 2, 8: "SSSLSLL" * 2}[len(st_)]
                        xs = [(st_ if c_ == "S" else ld_).pop(0) for c_ in pat]
                    pos = [(n + d, g_) for d in (0, 1) for g_ in (6, 11, 16, 19, 20, 21, 22)]
                    for s_, (n2, g_) in zip(xs, pos): vmem(n2, (g_,), [s_], ("X", h))
                if t == 5: vmem(n, (6,), [([], flag)], "F"); S.v(4, f"v_add_u32 v{vVal}, 1, v{vVal}"); cap[n][4] -= 1
                if t == 7: vmem(n, (6,), [([], poll)], ("P", h))
            assert m == 29
            if OPT["opos"] == 0: vmem(4, (20, 21, 22), [rst(j) for j in range(3)], "O")
            else:
                for j, (n2, g_) in enumerate(((6, 16), (8, 16), (14, 16)) if OPT["opos"] == 1 else ((6, 16), (7, 21), (8, 19))): vmem(n2, (g_,), [rst(j)], "O")
            for x, (n2, g_) in zip(bps, ((2, 23), (3, 23), (4, 22), (4, 23), (6, 22), (6, 23))): Ss[n2].v(g_, x); cap[n2][g_] = max(0, cap[n2][g_] - 1)
            ops.sort(key=lambda x: (x[0], x[1]))
            ops2 = ops + [(n + 16, g_, k) for n, g_, k in ops]
            def younger(pt, n, g_): return len([o for o in ops2 if pt < (o[0], o[1]) < (n, g_)])
            for h in range(2):
                pt = max((o[0], o[1]) for o in ops if o[2] == ("X", h))
                Ss[8*h + 5].h(2, lambda c=younger(pt, 8*h + 5, 2): vmw(a, c))
                pt = [(o[0], o[1]) for o in ops if o[2] == ("P", h)][0]
                nc = 8*h + 9
                Ss[nc % 16].h(16, lambda c=younger(pt, nc, 16): vmw(a, c))
                Ss[nc % 16].v(16, lambda: a._emit(chk_cmp[0])); cap[nc % 16][16] -= 1
                Ss[nc % 16].h(20, check)
            def fill(lst, n, g_, rec=None):
                for op in lst:
                    while cap[n % 16][g_] <= 0:
                        g_ += 1
                        if g_ == 24: n += 1; g_ = 0
                    if not OPT["norv"]: Ss[n % 16].v(g_, lambda op=op: a._emit(op))
                    cap[n % 16][g_] -= 1
                    if rec is not None and n >= 16: rec.append(op)
                return n, g_
            e = fill(cvs(1), 0, 1); assert e < (2, 5), e
            e = fill(cvs(0), 8, 1); assert e < (10, 5), e
            if OPT["mred"]: fill(rcv, 15, 7)
            else:
                e = fill(rops(0, 0), 5, 2); assert e < (8, 10), e
                e = fill([x for k in range(1, 4) for x in rops(0, k)], *e); assert e < (13, 2), e
                e = fill([x for k in range(3) for x in rops(1, k)] + rcv, 13, 2, late); assert e < (18, 22), e
            S = Ss[7]
            if not fast: S.v(19, f"v_add_u32 v{vSA}, {XP}, v{vSA}"); S.v(20, f"v_add_u32 v{vSB}, {XP}, v{vSB}")
            S = Ss[15]
            S.h(0, f"s_cmp_ge_u32 s{sGc}, 1")
            S.h(1, f"s_cselect_b32 s{sOut+2}, {191*2560 + 1024 + 32}, 0")
            S.h(2, f"s_add_u32 s{sOo}, s{sOo}, 256")
            S.h(3, f"s_mov_b32 s{sPr+2}, {5*XP + XD}")
            if not fast:
                S.v(19, f"v_add_u32 v{vLA}, {XP}, v{vLA}"); S.v(20, f"v_add_u32 v{vLB}, {XP}, v{vLB}")
            S.h(18, f"s_add_u32 s{sGc}, s{sGc}, 1")
            S.h(19, f"s_cmp_lt_u32 s{sGc}, 5")
            for n in range(16):
                a.c(f"G sub-step {n}")
                if n == 8:
                    assert not a.lg
                    a.e(f"L_gmid{int(fast)}:")
                if n % 4 == 1:
                    tid = n + 5 + 16
                    pt = max((o[0], o[1]) for o in ops2 if o[2] == ("T", tid if tid < 29 else tid - 16) and (o[0] < 16) == (tid < 29))
                    cnt = len([o for o in ops2 if pt < (o[0], o[1]) < (n + 16, 22) and (o[0] >= 16 + 8 * (n // 8) or (isinstance(o[2], tuple) and o[2][0] == "T"))])
                    end_sync(a, Ss[n], min(cnt, 63), 0)
                else:
                    def w():
                        k = min(len(a.lg), OPT['gkeep']); a.raw_wait(f"s_waitcnt lgkmcnt({k})"); a.lg = a.lg[len(a.lg) - k:] if k else []
                    Ss[n].h(22, w)
                Ss[n].emit(gmf(n + 1)[0])
        lab = "L_gl_fast" if fast else "L_gl_far"
        if OPT["qprof"] == 2 and fast: stamp(a, 5); stamp(a, 6, False)
        a.e(".p2align 6")
        a.e(f"{lab}:")
        if OPT["qprof"] == 4: stamp_dyn(a, 4, sGc, 5)
        a.lg = []
        mark = len(a.ins); nops0 = a.nops; ns = len(spins)
        body(); lg_end = list(a.lg)
        del a.ins[mark:]; a.nops = nops0; del spins[ns:]
        body(); assert a.lg == lg_end
        a.e(f"s_cbranch_scc1 {lab}")
        if OPT["qprof"] == 2 and fast: stamp(a, 7); stamp(a, 8, False)
        if OPT["qprof"] == 4: stamp(a, 3)
        a.c("tail")
        for x in cvs(1): a.e(x)
        stamp(a, 2)
        vmw(a, 2)
        a._emit(chk_cmp[0]); a._emit("s_nop 4"); check()
        for i in range(3): emit_tile(a, xst(1, i))
        def ntv(st): return [(p_, d_ + " nt") if OPT["tl"] & 1 else (p_, d_) for p_, d_ in st]
        for k in range(4): emit_tile(a, ntv(xld(0, k)))
        for op in late + bps: a._emit(op)
        vmw(a, 8)
        a.e(f"v_add_u32 v{vVal}, 1, v{vVal}")
        a._emit(flag)
        early_out = not OPT["tord"]
        if early_out:
            a.raw_wait("s_waitcnt lgkmcnt(0)"); emit_tile(a, [rst(j) for j in range(3)])
        for k in range(4):
            vmw(a, 2 * (3 - k) + (4 if early_out else 1))
            for op in (rops(0, k) if not OPT["mred"] else rmf(0, k >> 1) if k & 1 else []): a._emit(op)
            if k == (3 if OPT["mred"] else 2): a._emit(poll)
        if fast and OPT["cln"] & 1: a._emit(f"global_store_dword v3, v{vVal}, s[28:29] sc1")
        vmw(a, 1 if fast and OPT["cln"] & 1 else 0)
        a._emit(chk_cmp[0]); a._emit("s_nop 4"); check()
        for k in range(3): emit_tile(a, ntv(xld(1, k)))
        if not early_out:
            a.raw_wait("s_waitcnt lgkmcnt(0)"); emit_tile(a, [rst(j) for j in range(3)])
        a.e(f"s_mov_b32 s{sOo}, 1024")
        for k in range(3):
            vmw(a, 2 * (2 - k) + (0 if early_out else 3))
            for op in (rops(1, k) if not OPT["mred"] else rmf(1, k - 1) if k else []): a._emit(op)
        if fast and OPT["cln"] & 4: a._emit(f"global_store_dword v3, v{vVal}, s[28:29] sc1")
        if fast and OPT["cln"] & 2: a._emit(f"global_store_dword v157, v{vVal}, s[28:29] sc1")
        for op in rcv + bps: a._emit(op)
        a.raw_wait("s_waitcnt lgkmcnt(0)")
        emit_tile(a, [rst(j) for j in range(3)])
    g_phase(True)
    a.e("L_fin:")
    stamp(a, 9, False); stamp(a, 10)
    if OPT["leak"] >= 0:
        k = OPT["leak"]
        if k == 0: a.e("s_mov_b32 s79, 0")
        elif k == 9: a.e("s_sub_u32 s79, s98, s82"); a.e("s_lshr_b32 s79, s79, 4")
        else: a.e(f"s_sub_u32 s79, s{80+2*k}, s80")
        a.e("s_add_u32 s79, s79, 15000")
        if OPT["leakwg"] == 1: a.e("s_cmp_lt_u32 s2, 8"); a.e("s_cselect_b32 s79, s79, 0")
        if OPT["leakwg"] == 2: a.e("s_cmp_ge_u32 s2, 248"); a.e("s_cselect_b32 s79, s79, 0")
        if OPT["leakwg"] in (4, 5): a.e("s_and_b32 s76, s2, 1"); a.e("s_cselect_b32 s79, s79, 0" if OPT["leakwg"] == 5 else "s_cselect_b32 s79, 0, s79")
        if OPT["leakwg"] == 3: a.e("s_cmp_eq_u32 s2, 0"); a.e("s_cselect_b32 s79, s79, 0")
        a.e("L_leak:")
        a._emit("s_memrealtime s[76:77]"); a.raw_wait("s_waitcnt lgkmcnt(0)")
        a.e("s_sub_u32 s76, s76, s80"); a.e("s_cmp_lt_u32 s76, s79"); a.e("s_cbranch_scc1 L_leak")
    stamp_store(a, "L_end", 0)
    dbg_store(a)
    a.e("L_end:")
    a.e("s_endpgm")
    nsp = len(spins)
    for s_ in list(spins): spin_loop(*s_)
    a.e("L_hot_end:")
    a.e(".p2align 6")
    a.e("L_gx:")
    g_phase(False)
    a.e("s_branch L_fin")
    for s_ in list(spins[nsp:]): spin_loop(*s_)
    a.reset_counters()
    a.e("L_slow:")
    a.raw_wait("s_waitcnt vmcnt(0) lgkmcnt(0)")
    vKo, vVo, t0, t1 = 10, 11, P_ + 12, P_ + 13
    a.e("s_nop 7")
    a.e(f"v_and_b32 v{t0}, 7, v0"); a.e(f"v_lshlrev_b32 v{t0}, 10, v{t0}")
    a.e(f"v_bfe_u32 v{t1}, v0, 3, 1"); a.e(f"v_lshl_add_u32 v{t0}, v{t1}, 8, v{t0}")
    a.e(f"v_lshrrev_b32 v{t1}, 4, v0"); a.e(f"v_lshl_add_u32 v{vKo}, v{t1}, 4, v{t0}")
    a.e(f"v_bfe_u32 v{t0}, v0, 4, 1"); a.e(f"v_lshlrev_b32 v{t0}, 12, v{t0}")
    a.e(f"v_lshrrev_b32 v{t1}, 5, v0"); a.e(f"v_lshl_add_u32 v{t0}, v{t1}, 8, v{t0}")
    a.e(f"v_and_b32 v{t1}, 15, v0"); a.e(f"v_lshl_add_u32 v{vVo}, v{t1}, 1, v{t0}")
    for j in range(3): a.e(f"v_mov_b32 v{vT+j}, 0xff800000")
    def slow_qk(cinit):
        for u, kf in ((0, KF), (1, VF)):
            for ks in range(4): a.e(f"buffer_load_dwordx4 {vr(kf + 4*ks,4)}, v{vKo}, {sr(sK,4)}, s{sT2} offen offset:{u*512 + ks*64}")
        for u, kf in ((0, KF), (1, VF)):
            for j in range(3):
                for ks in range(4):
                    a.e(mf(Sr(u, j), kf + 4*ks, Qf(j, ks), (Nm(j) if cinit else None) if ks == 0 else Sr(u, j)))
    a.e(f"s_mov_b32 s{sT2}, s{sCur}")
    a.e(f"s_add_u32 s{sT3}, s{sCur}, 131072")
    a.e("L_slow_p1:")
    slow_qk(False)
    for j in range(3):
        for u in range(2):
            s = Sr(u, j)
            a.e(f"v_max3_f32 v{vT+j}, v{vT+j}, v{s}, v{s+1}")
            a.e(f"v_max3_f32 v{vT+j}, v{vT+j}, v{s+2}, v{s+3}")
    a.e(f"s_add_u32 s{sT2}, s{sT2}, 8192")
    a.e(f"s_cmp_lt_u32 s{sT2}, s{sT3}")
    a.e("s_cbranch_scc1 L_slow_p1")
    rowred(a, "v_max_f32", [vT, vT+1, vT+2], [Nm(j) for j in range(3)])
    for j in range(3):
        for r in range(4): a.e(f"v_sub_f32 v{Nm(j)+r}, 0, v{vT+j}")
    for r in range(96): a.e(f"v_mov_b32 v{O_+r}, 0")
    for r in range(12): a.e(f"v_accvgpr_write_b32 a{192+r}, 0")
    a.e(f"s_mov_b32 s{sT2}, s{sCur}")
    a.e("L_slow_p2:")
    slow_qk(True)
    for u in range(2):
        for k in range(12): a.e(ex(u, k))
    for u in range(2):
        for c in range(6): a.e(cv(u, 0, c))
    for half, fr in ((0, KF), (1, VF)):
        for hi in range(2):
            for i in range(4):
                for e in range(2):
                    for rp in range(2):
                        r = 2*rp + hi
                        a.e(f"buffer_load_ushort v{(S_ if hi else fr) + 4*i + 2*e + rp}, v{vVo}, {sr(sV,4)}, s{sT2} offen offset:{r*1024 + e*512 + (4*half+i)*32}")
        a.wait(vm="all")
        for x in range(16): a.e(f"v_lshl_or_b32 v{fr+x}, v{S_+x}, 16, v{fr+x}")
    for m in sm(2): a.e(m)
    for half, fr in ((0, KF), (1, VF)):
        for m in pv(2, half, fr): a.e(m)
    a.e(f"s_add_u32 s{sT2}, s{sT2}, 8192")
    a.e(f"s_cmp_lt_u32 s{sT2}, s{sT3}")
    a.e("s_nop 7")
    a.e("s_cbranch_scc1 L_slow_p2")
    for j in range(3): a.e(f"v_accvgpr_read_b32 v{vT+j}, a{La(j)[1]}")
    for j in range(3): a.e(f"v_rcp_f32 v{vT+j}, v{vT+j}")
    a.e(f"s_cmp_eq_u32 s{sR}, 3"); a.e("s_cbranch_scc1 L_g")
    for x in epi_ops(0)[:NPRE]: a.e(x)
    a.e("s_branch L_epi")
    return a

HDR = f"""; Fused attention blocks A and B in one launch. One workgroup per CU owns 4 heads of one batch: Q projection,
; softmax attention, output-projection partial (K = 512); the 8 workgroups of a batch then sum their partials.
; kernarg: 0 A_x, 8 A_k, 16 A_v, 24 A_wq, 32 A_wo, 40 B_x, 48 B_k, 56 B_v, 64 B_wq, 72 B_wo, 80 out, 88 debug, 96 ws
; @launch grid=(256,1,1) block=(256,1,1) lds={LDS}
.amdgcn_target "amdgcn-amd-amdhsa--gfx950"
.text
"""
def kern(name, a):
    return f".globl {name}\n.p2align 8\n.type {name},@function\n{name}:\n" + a.text()
def desc(name, nv, acc, ns):
    return f""".p2align 6
.amdhsa_kernel {name}
  .amdhsa_next_free_vgpr {nv}
  .amdhsa_next_free_sgpr {ns}
  .amdhsa_accum_offset {acc}
  .amdhsa_group_segment_fixed_size 0
  .amdhsa_kernarg_size 104
  .amdhsa_user_sgpr_count 2
  .amdhsa_user_sgpr_kernarg_segment_ptr 1
  .amdhsa_system_sgpr_workgroup_id_x 1
  .amdhsa_float_denorm_mode_32 3
.end_amdhsa_kernel
"""
if __name__ == "__main__":
    a = main_kernel()
    if OPT["pro2"]:
        ix = lambda t: [k for k, i in enumerate(a.ins) if i.text == t][0]
        i0, i1, i2 = ix("L_p0:"), ix("L_p1:"), ix("L_hot_end:") + 1
        a.ins = a.ins[:i0] + a.ins[i1:i2] + [Ins(".p2align 6")] + a.ins[i0:i1] + [Ins("L_p0end:")] + a.ins[i2:]
    if OPT["nodma"] & 1: a.ins = [i for i in a.ins if not (i.kind == "dma" and " v1, " in i.text)]
    if OPT["nodma"] & 2: a.ins = [i for i in a.ins if not (i.kind == "dma" and " v1, " not in i.text)]
    if OPT["nodma"] & 4: a.ins = [i for i in a.ins if not (i.kind == "store" and ("v152," in i.text or "v153," in i.text))]
    if OPT["nodma"] & 8: a.ins = [i for i in a.ins if not (i.kind == "store" and "v159," in i.text)]
    if OPT["nox2"]: a.ins = [i for i in a.ins if not (i.kind == "vmem" and ("v121," in i.text))]
    if OPT["noload"]: a.ins = [i for i in a.ins if not (i.kind == "vmem" and ("v152," in i.text or "v153," in i.text))]
    if OPT["x1"]:
        out = []; on = False; cnt = 0
        for i in a.ins:
            if i.text in ("L_epi:", "L_q2b:") or (OPT["x1"] & 2 and i.text in ("; Q conversion", "; Q2 conversion")): on = True
            if i.op in ("s_barrier",) or i.kind == "mfma" or i.text == "L_enter:": on = False
            out.append(i)
            if on and i.kind == "valu":
                cnt += 1
                if cnt % 2 == 0: out.append(Ins(f"v_mfma_f32_16x16x32_bf16 a[{240+4*(cnt//2%4)}:{243+4*(cnt//2%4)}], a[144:147], a[{96+4*(cnt//2%8)}:{99+4*(cnt//2%8)}], 0"))
        a.ins = out
    if OPT["x2"]:
        out = []; on = False
        for i in a.ins:
            if i.text == "L_q2:": on = True
            if i.text == "L_q2l:": on = False
            if on and i.kind == "mfma": out.append(Ins(f"s_nop {OPT['x2']}"))
            out.append(i)
        a.ins = out
    if OPT["abl"]:
        cnt = [0]
        def drop2(i):
            if OPT["abl"] & 1 and i.op == "ds_read_b64_tr_b16" and (", v4 " in i.text or ", v5 " in i.text):
                cnt[0] += 1; return (cnt[0] // 2) % 2 == 1
            if OPT["abl"] & 2 and i.kind == "lds" and (", v2 " in i.text or ", v3 " in i.text):
                cnt[0] += 1; return (cnt[0] // 2) % 2 == 1
            if OPT["abl"] & 4 and i.kind == "mfma" and "a[204:207], v[" in i.text and i.text.split()[1].startswith(("a[192", "a[196", "a[200")): return True
            if OPT["abl"] & 8 and i.op in ("v_lshlrev_b32", "v_and_b32", "v_add_f32") and ("v120" in i.text or "v121" in i.text or "v122" in i.text or "v123" in i.text) and "v0" not in i.text.replace("v0,", "v0 ").split(): return True
            return False
        a.ins = [i for i in a.ins if not drop2(i)]
    if OPT["xb"]:
        out = []; on = False; c = 0
        for i in a.ins:
            if i.text.startswith("; Q") and "sub-step" in i.text: on = True
            if "conversion" in i.text: on = False
            if on and i.op == "s_barrier":
                c += 1
                if c % OPT["xb"]: continue
            out.append(i)
        a.ins = out
    if OPT["xa"]:
        i0 = [k for k, i in enumerate(a.ins) if i.text == "; stage 0 kv"][0]; i1 = [k for k, i in enumerate(a.ins) if i.text == "; stage 15 kv"][0]
        def drop(i):
            if OPT["xa"] & 1 and i.op == "s_cbranch_vccnz": return True
            if OPT["xa"] & 2 and i.op in ("s_mul_i32", "s_bfe_u32", "s_xor_b32", "s_getreg_b32", "s_cselect_b32", "s_cselect_b64", "s_sub_u32", "s_cmp_gt_u32", "s_cmp_gt_i32", "s_cmp_le_u32"): return True
            if OPT["xa"] & 4 and i.op == "s_barrier": return True
            if OPT["xa"] & 8 and i.op == "s_waitcnt" and "lgkm" in i.text: return True
            if OPT["xa"] & 16 and i.op == "s_mul_i32": return True
            return False
        a.ins = a.ins[:i0] + [i for i in a.ins[i0:i1] if not drop(i)] + a.ins[i1:]
    if OPT["strip"] == 2:
        i0 = [k for k, i in enumerate(a.ins) if i.text == "L_head:"][0]; i1 = [k for k, i in enumerate(a.ins) if i.text == "L_epi:"][0]
        a.ins = a.ins[:i0] + [Ins("s_nop 4") if i.kind == "mfma" else i for i in a.ins[i0:i1] if i.kind not in ("lds", "trans", "valu")] + a.ins[i1:]
    if OPT["strip"] == 1:
        i0 = [k for k, i in enumerate(a.ins) if i.text == "L_head:"][0]; i1 = [k for k, i in enumerate(a.ins) if i.text == "L_epi:"][0]
        a.ins = a.ins[:i0] + [i for i in a.ins[i0:i1] if i.kind not in ("mfma", "lds", "trans", "valu")] + a.ins[i1:]
    ns = 102 if OPT["stamp"] else NSGPR
    open(sys.argv[1], "w").write(HDR + kern(NAME + "_kernel", a) + '.section .rodata,"a"\n' + desc(NAME + "_kernel", 512, 256, ns))
    print("instrs", len(a.ins), "nops", a.nops)
```

```python
import sys, math, struct, re
from asmlib import *

NAME = "concat_heads__mha_block_cached__gqa_block_cached__near_ridge"
def f32(x): return "0x%08x" % struct.unpack("<I", struct.pack("<f", x))[0]
OPT = dict(stamp=0, nodma=0, nocheck=0, touch=0, forceslow=0, map84=0, first=6, rot=3, strip=0, cyc=0, typ=2, track=1, nosync=0, sleep=1, opos=1, lag=4, noack=0, noload=0, stpol=1, nolw=0, krot=1, hrot=4, emu3=0, ramp=0, sh3=0, gpol=0, kpol=0, pk=1, cln=0, xb=0, mred=1, xord=1, vmw=8, pro2=1, bp=1, tord=1, abl=0, zz=1, x1=0, x2=0, opol=2, tl=0, xs=0, kvconv=0, sh1=1, sh2=1, sh1t=3, lateq=0, gate=1, ibg=1, ibn=4, xa=0, stag=0, fskip=0, cufrom=4, custep=4, cvo=1, woq=1, ibnt=0, ibt=14, ct2=1, inbox0=0, sparse1=1, noinbox=1, cthead=3, help=3, latekv=1, wot=0, lmax=3, thr=5, thr2=2, dyn=1, xmode=0, gkeep=0, leak=-1, leakwg=0, st0=0, norv=0, now0=0, gcap=0, qprof=0, la=7, ldpol=1, lmode=0, ldfix=0, nox2=0, wnt=0, xnt=0, t0x=0, t0w=0, ctouch=3, dbgout=0)
for a_ in sys.argv[2:]:
    k_, v_ = a_.split("="); assert k_ in OPT, k_; OPT[k_] = int(v_)

def R(x, n):
    t, i = x if isinstance(x, tuple) else ("v", x)
    return f"{t}{i}" if n == 1 else f"{t}[{i}:{i+n-1}]"
def off(x, d): return (x[0], x[1] + d) if isinstance(x, tuple) else x + d
def mf(d, a, b, c):
    return f"v_mfma_f32_16x16x32_bf16 {R(d,4)}, {R(a,4)}, {R(b,4)}, {'0' if c is None else R(c,4)}"

def zj(i): return (2, 1, 0) if (i & 1) and OPT["zz"] else (0, 1, 2)
def zk(j): return (3, 2, 1, 0) if (j & 1) and OPT["zz"] else (0, 1, 2, 3)
TILE = 8448
VB = 8 * TILE
XB = 16 * TILE
LDS = XB + 24576
NSLOT = 8
CH = NSLOT * 1024
PART = 240 * CH
STAMP_AT = 128 << 20
FLG = 120 << 20
XD = 7 * 6144
XP = 8 * XD
XG = 6 * XP
SPIN_MAX = 2000000
def slot(m):
    m %= 16
    return (m & 1), (m >> 1) * TILE

vKV, vKA, vVA, vWAl, vWAh, vW = 1, 2, 3, 4, 5, 6
vT = 7
QF, NM, S_, P_, KF, VF, O_ = 12, 60, 72, 96, 120, 136, 160
vX0, vX1, vXA0, vXA1 = 156, 157, 158, 159
vTo, vD, vPt, vWo = 152, 153, 154, 155
def Qf(j, ks): return QF + 16 * j + 4 * ks
def Nm(j): return NM + 4 * j
def Sr(u, j): return S_ + 12 * u + 4 * j
def Pr(buf, j): return P_ + 12 * buf + 4 * j
def Or(i, j): return O_ + 12 * i + 4 * j
def Wreg(buf, i): return 12 + 32 * buf + 4 * i
def Xreg(buf, j, s): return 76 + 24 * buf + 8 * j + 4 * s
def Qacc(pos, i, j):
    k = 12 * i + 4 * j
    if pos == 0: return ("a", k)
    if pos == 1: return ("a", 96 + k)
    if pos == 2: return ("a", 192 + k) if k < 64 else 124 + (k - 64)
    return O_ + k
QBANK = {3: 0, 2: 48, 1: 96}
OBANK = {0: 144, 1: 96, 2: 48, 3: 0}
def La(j): return ("a", 192 + 4 * j)
ONES = ("a", 204)
def Greg(buf, i): return ("a", 192 + 32 * buf + 4 * i)
sX, sW, sK, sV, sWo, sP = 32, 36, 40, 44, 48, 52
sWv, sKVL, sWL, sXL, sOff, sOff2, sTmp, sR, sCur, sT2, sT3 = 60, 61, 62, 63, 64, 65, 66, 67, 68, 69, 70
sB, sU, sBr, sG, sXo, sPo = 71, 72, 73, 74, 75, 76
sCX, sNX, sLast, sS8, sWoB, sTask, sTyp = 56, 57, 58, 59, 77, 30, 31
sWq, sGc = 26, 27
sWq1, sJ, sRot, sPM, sPK = 20, 21, 22, 23, 24
sF, sD0, sD1 = 8, 12, 13
sJh, sXo1, sPre = 25, 77, 30
sKc, sLag = 57, 76
sThN = 62
sWL = sKVL
sThr = 56
sBL, sMin, sKn, sMv, sMk, sKVv, sC1 = 57, 76, 23, 58, 59, 3, 25
sH = [4, 5, 6, 7]
NSGPR = 80

def stamp(a, k, real=True):
    if not OPT["stamp"]: return
    lg = list(a.lg)
    a.raw_wait("s_waitcnt lgkmcnt(0)")
    if OPT["cyc"] and 2 <= k <= 8: real = False
    a._emit(f"{'s_memrealtime' if real else 's_memtime'} s[{80+2*k}:{81+2*k}]")
    a.raw_wait("s_waitcnt lgkmcnt(0)")
def stamp_dyn(a, base, sidx, n):
    if not OPT["stamp"]: return
    a.raw_wait("s_waitcnt lgkmcnt(0)")
    a._emit("s_memtime s[78:79]" if OPT["cyc"] else "s_memrealtime s[78:79]")
    a.raw_wait("s_waitcnt lgkmcnt(0)")
    for q in range(n):
        a.e(f"s_cmp_eq_u32 s{sidx}, {q}")
        a.e(f"s_cselect_b32 s{80+2*(base+q)}, s78, s{80+2*(base+q)}")
def stamp_store(a, label, base):
    if not OPT["stamp"]: return
    a.e(f"s_cmp_lg_u32 s{sWv}, 0")
    a.e(f"s_cbranch_scc1 {label}")
    for k in range(11): a.e(f"v_mov_b32 v{16+k}, s{80+2*k}")
    a.e("s_lshl_b32 s78, s2, 6"); a.e(f"s_add_u32 s78, s78, {STAMP_AT + base*64}")
    a.e("v_mov_b32 v28, s78")
    a.e("s_mov_b64 exec, 1")
    a.e("global_store_dwordx4 v28, v[16:19], s[28:29]")
    a.e("global_store_dwordx4 v28, v[20:23], s[28:29] offset:16")
    a.e("global_store_dwordx4 v28, v[24:27], s[28:29] offset:32")

def dbg_store(a):
    if not OPT["dbgout"]: return
    l = "L_dbgskip"
    a.e("s_and_b32 s78, s2, 0xdf"); a.e("s_cmp_lg_u32 s78, 5"); a.e(f"s_cbranch_scc1 {l}")
    a.e("s_load_dwordx2 s[24:25], s[0:1], 88")
    for n, k in enumerate((3,4,5,6,7,8,2,10)):
        a.e(f"s_sub_u32 s79, s{80+2*k}, s80"); a.e(f"v_mov_b32 v{32+n}, s79")
    a.e("s_and_b32 s78, s2, 32"); a.e("v_mov_b32 v29, s78")
    a.raw_wait("s_waitcnt lgkmcnt(0)")
    a.e("global_store_dwordx4 v29, v[32:35], s[24:25]")
    a.e("global_store_dwordx4 v29, v[36:39], s[24:25] offset:16")
    a.e(f"{l}:")

def srd(a, d, lo, o, size):
    a.e(f"s_add_u32 s{d}, s{lo}, {o}")
    a.e(f"s_addc_u32 s{d+1}, s{lo+1}, 0")
    a.e(f"s_and_b32 s{d+1}, s{d+1}, 0xffff")
    a.e(f"s_mov_b32 s{d+2}, {size}")
    a.e(f"s_mov_b32 s{d+3}, 0x20000")
_lbl = [0]
def newlabel(p):
    _lbl[0] += 1
    return f"L_{p}_{_lbl[0]}"
class U(str): pass

def ldsbase(m):
    h, o = slot(m); return h * VB + o
def w_tile(m, n, nh=4):
    b = ldsbase(m); base = sWq if n < 4 * nh else sWq1
    rel = ((n % (4 * nh)) // nh) * 262144 + (nh - 1 - n % nh) * 256
    pol = ' nt' if OPT['wnt'] else ''
    return [([f"s_xor_b32 s{sOff}, s{base}, {rel}", f"s_add_u32 m0, s{sWL}, {b}"], f"buffer_load_dwordx4 v{vW}, {sr(sW,4)}, s{sOff} offen{pol} lds"),
            ([f"s_xor_b32 s{sOff}, s{base}, {rel + 8192}", f"s_add_u32 m0, s{sWL}, {b + 1032}"], f"buffer_load_dwordx4 v{vW}, {sr(sW,4)}, s{sOff} offen{pol} lds")]
def kv_tile(m, t):
    b = ldsbase(m); s = sV if m & 1 else sK
    assert t < 16
    so = f"s_xor_b32 s{sOff}, s{sCX}, {t * 8192}"
    return [([so, f"s_add_u32 m0, s{sKVL}, {b}"], f"buffer_load_dwordx4 v{vKV}, {sr(s,4)}, s{sOff} offen nt lds"),
            ([f"s_add_u32 m0, s{sKVL}, {b + 32}"], f"buffer_load_dwordx4 v{vKV}, {sr(s,4)}, s{sOff} offen offset:1024 nt lds")]
def unit_pre(base, add):
    return [f"s_add_u32 s{sMv}, s{base}, {add}", f"s_xor_b32 s{sOff}, s{sMv}, s{sRot}", f"s_bfe_u32 s{sMv}, s{sMv}, 0x3000d", f"s_mul_i32 s{sMv}, s{sMv}, {TILE}",
            f"s_add_u32 s{sMk}, s{base}, {add + 8192}", f"s_xor_b32 s{sOff2}, s{sMk}, s{sRot}", f"s_bfe_u32 s{sMk}, s{sMk}, 0x3000d", f"s_mul_i32 s{sMk}, s{sMk}, {TILE}"]
def unit_dma(so_v=None, so_k=None):
    so_v = sOff if so_v is None else so_v; so_k = sOff2 if so_k is None else so_k
    return [([f"s_add_u32 m0, s{sMv}, s{sKVv}"], f"buffer_load_dwordx4 v{vKV}, {sr(sV,4)}, s{so_v} offen nt lds"),
            (["s_add_u32 m0, m0, 32"], f"buffer_load_dwordx4 v{vKV}, {sr(sV,4)}, s{so_v} offen offset:1024 nt lds"),
            ([f"s_add_u32 m0, s{sMk}, s{sKVL}"], f"buffer_load_dwordx4 v{vKV}, {sr(sK,4)}, s{so_k} offen nt lds"),
            (["s_add_u32 m0, m0, 32"], f"buffer_load_dwordx4 v{vKV}, {sr(sK,4)}, s{so_k} offen offset:1024 nt lds")]
def place_guarded(a, S, steps, gaps):
    for (pre, d), g in zip(steps, gaps):
        for k, x in enumerate(pre): S.h(g - len(pre) + k, x)
        def site(d=d):
            l = newlabel("sk"); a.e(f"s_cbranch_vccnz {l}"); a._emit(d); a.e(f"{l}:")
        S.v(g, site)
def wo_tile(m):
    b = ldsbase(m); h, t = divmod(m % 16, 8); r = t >> 1; rel = (t & 1) * 81920
    st = [([f"s_add_u32 s{sOff}, s{sH[r]}, {rel}", f"s_add_u32 m0, s{sKVL}, {b}"], f"buffer_load_dwordx4 v{vWo}, {sr(sWo,4)}, s{sOff} offen lds"),
          ([f"s_add_u32 s{sOff}, s{sH[r]}, {rel + 1280}", f"s_add_u32 m0, s{sKVL}, {b + 1056}"], f"buffer_load_dwordx4 v{vWo}, {sr(sWo,4)}, s{sOff} offen lds")]
    return st, ([f"s_add_u32 s{sH[r]}, s{sH[r]}, s{(sD0, sD1)[h]}"] if t & 1 else [])
def emit_tile(a, steps):
    for pre, d in steps:
        for x in pre: a.e(x)
        a._emit(d)
def place_tile(a, S, steps, gaps):
    for (pre, d), g in zip(steps, gaps):
        for k, x in enumerate(pre): S.h(g - len(pre) + k, x)
        S.v(g, lambda d=d: a._emit(d))
def rd_w(dst, m, i):
    h, o = slot(m); p, u = divmod(i, 2)
    return [f"ds_read_b64_tr_b16 {R(off(dst, 2*e), 2)}, v{(vWAl, vWAh)[h]} offset:{o + e*512 + p*64 + u*8}" for e in range(2)]
def vmw(a, n): a.raw_wait(f"s_waitcnt vmcnt({n})")

def rowred(a, op, regs, tmps):
    for w in (32, 16):
        for r, t in zip(regs, tmps): a.e(f"v_mov_b32 v{t}, v{r}")
        for r, t in zip(regs, tmps): a.e(f"v_permlane{w}_swap_b32 v{r}, v{t}")
        for r, t in zip(regs, tmps): a.e(f"{op} v{r}, v{r}, v{t}")

RDPOS = [0,1,2,3,4,5,7,8,9,10,12,13,14,15,17,18]
RDPOS_X = [2,3,5,6,8,9,11,12,14,15,16,17,18,19,20,21]

def code_touch(a, lo, hi, vaddr, vdst, back=False):
    if not OPT["ctouch"]: return
    l = newlabel("pc")
    a.e("s_getpc_b64 s[14:15]")
    a.e(f"{l}:")
    if back: a.e(f"s_sub_u32 s14, s14, {l}-{lo}"); a.e("s_subb_u32 s15, s15, 0")
    else: a.e(f"s_add_u32 s14, s14, {lo}-{l}"); a.e("s_addc_u32 s15, s15, 0")
    a.e(f"s_lshr_b32 s{sT2}, s2, 3"); a.e(f"s_lshl_b32 s{sT2}, s{sT2}, 2"); a.e(f"s_add_u32 s{sT2}, s{sT2}, s{sWv}"); a.e(f"s_lshl_b32 s{sT2}, s{sT2}, 7")
    a.e(f"v_and_b32 v{vaddr}, 3, v0"); a.e(f"v_lshlrev_b32 v{vaddr}, 14, v{vaddr}"); a.e(f"v_add_u32 v{vaddr}, s{sT2}, v{vaddr}")
    a.e(f"v_min_u32 v{vaddr}, {hi}-{lo}-4, v{vaddr}")
    a._emit(f"global_load_dword v{vdst}, v{vaddr}, s[14:15]")

def inbox_addr(va, vt):
    sc = [f"s_mul_i32 s{sT2}, s{sG}, {XG}", f"s_mul_i32 s{sT3}, s{sU}, {XD}", f"s_add_u32 s{sT2}, s{sT2}, s{sT3}",
          f"s_mul_i32 s{sT3}, s{sWv}, 1536", f"s_add_u32 s{sT2}, s{sT2}, s{sT3}", f"s_add_u32 s{sT2}, s{sT2}, {5*XP}"]
    ve = [f"v_lshrrev_b32 v{va}, 3, v0", f"v_min_u32 v{va}, 6, v{va}", f"v_mul_u32_u24 v{va}, 6144, v{va}", f"v_and_b32 v{vt}, 7, v0",
          f"v_min_u32 v{vt}, 5, v{vt}", f"v_lshl_add_u32 v{va}, v{vt}, 7, v{va}", f"v_add_u32 v{va}, s{sT2}, v{va}"]
    return sc, ve

def late_consts(a):
    w_ = 2 if OPT["wot"] else 1
    a.e(f"v_min_u32 v{vTo}, {20*w_-1}, v0"); a.e(f"v_lshlrev_b32 v{vTo}, 7, v{vTo}")
    a.e(f"s_mul_i32 s{sTmp}, s{sB}, {10240*w_}"); a.e(f"s_mul_i32 s{sT2}, s{sWv}, {2560*w_}"); a.e(f"s_add_u32 s{sTmp}, s{sTmp}, s{sT2}")
    a.e(f"v_add_u32 v{vTo}, s{sTmp}, v{vTo}")
    a.e("v_and_b32 v9, 56, v0"); a.e(f"s_lshl_b32 s{sTmp}, s{sWv}, 1"); a.e(f"v_add_u32 v9, s{sTmp}, v9")
    a.e("v_mul_u32_u24 v9, 1280, v9"); a.e("v_and_b32 v8, 7, v0")
    a.e(f"s_xor_b32 s{sTmp}, s{sU}, 7"); a.e(f"s_and_b32 s{sTmp}, s{sTmp}, 3"); a.e(f"s_lshl_b32 s{sTmp}, s{sTmp}, 1"); a.e(f"v_xor_b32 v8, s{sTmp}, v8")
    a.e(f"v_lshl_add_u32 v{vWo}, v8, 4, v9")

def x_block(j, rel, base_s, op="s_add_u32", lds=0):
    so = f"{op} s{sOff2}, s{base_s}, {rel + j*20480}" if base_s is not None else f"s_mov_b32 s{sOff2}, {rel + j*20480}"
    return [([so, f"s_add_u32 m0, s{sXL}, {j*2048 + lds}"], f"buffer_load_dwordx4 v{vX0}, {sr(sX,4)}, s{sOff2} offen{' nt' if OPT['xnt'] else ''} lds"),
            ([f"s_add_u32 m0, s{sXL}, {j*2048 + 1024 + lds}"], f"buffer_load_dwordx4 v{vX1}, {sr(sX,4)}, s{sOff2} offen{' nt' if OPT['xnt'] else ''} lds")]
def rd_xb(dst, j, s): return f"ds_read_b128 {R(dst,4)}, v{(vXA0, vXA1)[s]} offset:{j*2048}"

def end_sync(a, S, vm, keep=2):
    def w():
        n = min(len(a.lg), keep)
        a.raw_wait(f"s_waitcnt vmcnt({vm}) lgkmcnt({n})")
        a.lg = a.lg[len(a.lg) - n:] if n else []
    S.h(22, w); S.h(23, "s_barrier")

sSc = 14
SCALE = f"s_mov_b32 s{sSc}, {f32(math.log2(math.e) / math.sqrt(128.0))}"
def conv_ops(acc, pos, db, tmp):
    o_ = []; k = 0
    for p in range(4):
        for j in range(3):
            t = tmp[k % len(tmp)]; k += 1
            src = []
            for u in range(2):
                o = acc(pos, 2*p + u, j)
                for r in range(4):
                    if isinstance(o, tuple):
                        o_.append(f"v_accvgpr_read_b32 v{t+4*u+r}, a{o[1]+r}"); src.append(t + 4*u + r)
                    else: src.append(o + r)
            o_ += [f"v_mul_f32 v{x}, s{sSc}, v{x}" for x in src]
            d = Qf(j, p) if db is None else src[0]
            o_ += [f"v_cvt_pk_bf16_f32 v{d+r}, v{src[2*r]}, v{src[2*r+1]}" for r in range(4)]
            if db is not None and db != "keep":
                o_ += [f"v_accvgpr_write_b32 a{db + 12*p + 4*j + r}, v{d+r}" for r in range(4)]
    return o_
def packed(ops):
    if not OPT["pk"]: return list(ops)
    out = []; k = 0
    pat = re.compile(r"v_mul_f32 v(\d+), (?:s(\d+), v\d+|v\d+, v(\d+))$")
    while k < len(ops):
        m0, m1 = pat.match(ops[k]), pat.match(ops[k+1]) if k + 1 < len(ops) else None
        if m0 and m1 and int(m0[1]) % 2 == 0 and int(m1[1]) == int(m0[1]) + 1 and m0.groups()[1:] == m1.groups()[1:]:
            d = int(m0[1]); t, f = ("s", int(m0[2])) if m0[2] else ("v", int(m0[3]))
            out.append(f"v_pk_mul_f32 v[{d}:{d+1}], v[{d}:{d+1}], {t}[{f & ~1}:{f | 1}] op_sel:[0,{f & 1}] op_sel_hi:[1,{f & 1}]"); k += 2
        else: out.append(ops[k]); k += 1
    return out
def free_slots(S):
    cap = []
    for k in range(len(S.mfs)):
        c = 2 - max(0, len(S.hold[k]) - 1)
        for f in S.vec[k]:
            t = f if isinstance(f, str) else f[0] if isinstance(f, tuple) else "vmem"
            c -= 2 if t.startswith(("vmem", "v_exp", "v_rcp")) else 1
        if "s_barrier" in S.hold[k]: c = 0
        cap.append(max(c, 0))
    for k in range(1, len(cap)):
        if cap[k] == 2 and cap[k-1] == 2: cap[k] = 1
    return cap
def fill_ops(S, ops, start=0):
    cap = free_slots(S); n = 0
    for k in range(start, len(cap)):
        for _ in range(cap[k]):
            if n < len(ops): S.v(k, ops[n]); n += 1
    return ops[n:]

def gcv(m, h):
    i, j = divmod(m, 3); p, u = divmod(i, 2); o = Or(i, j)
    return f"v_cvt_pk_bf16_f32 v{S_ + 12*p + 4*j + 2*u + h}, v{o+2*h}, v{o+2*h+1}"
CVS = [gcv(m, h) for m in range(24) for h in range(2)]
def gst(q, rel, base_s):
    p, j = divmod(q, 3)
    return ([f"s_add_u32 s{sOff2}, s{base_s}, {rel + (p*12 + j)*CH}"], f"buffer_store_dwordx4 {vr(S_ + 12*p + 4*j,4)}, v{vPt}, {sr(sP,4)}, s{sOff2} offen{['', ' sc1', ' nt', ' sc0'][OPT['stpol']]}")
def cv_plans():
    caps = [0 if g in (6, 11) else (1 if g in RDPOS else 2) for g in range(24)]
    last = []; ci = 0
    for g, cp in enumerate(caps):
        for _ in range(cp):
            if ci < 48 and ci // 2 + 4 <= g: last.append((g, ci)); ci += 1
    n = ci; first = []
    for g, cp in enumerate(caps):
        for _ in range(cp):
            if ci < 48: first.append((g, ci)); ci += 1
    assert ci == 48 and all(c // 2 > g for g, c in first)
    return last, first, n
PLAN_LAST, PLAN_FIRST, NLAST = cv_plans()

def Q2acc(pos, i, j): return (56 if pos == 0 else O_) + 12 * i + 4 * j
def X2reg(buf, j, s): return ("a", 24 * buf + 8 * j + 4 * s)
def q2mf(n, first):
    s, pos = divmod(n % 8, 2)
    return [mf(Q2acc(pos, i, j), Greg(n & 1, i), X2reg(s >> 1, j, s & 1), None if first and n < 2 else Q2acc(pos, i, j)) for i in range(8) for j in zj(i)]

def main_kernel():
    a = Asm()
    T = OPT["typ"]
    if OPT["st0"]: a._emit("s_memrealtime s[80:81]")
    a.e("s_cmp_ge_u32 s2, 256")
    a.e("s_cbranch_scc1 L_end")
    a.e("s_load_dwordx16 s[4:19], s[0:1], 0")
    a.e("s_load_dwordx4 s[20:23], s[0:1], 64")
    a.e("s_load_dwordx2 s[28:29], s[0:1], 96")
    a.e(f"s_bfe_u32 s{sBr}, s2, 0x10002")
    if not OPT["map84"]:
        a.e(f"s_and_b32 s{sB}, s2, 3"); a.e(f"s_lshl_b32 s{sB}, s{sB}, 2")
        a.e(f"s_bfe_u32 s{sTmp}, s2, 0x20003"); a.e(f"s_add_u32 s{sB}, s{sB}, s{sTmp}")
        a.e(f"s_lshr_b32 s{sU}, s2, 5")
    elif OPT["map84"] == 2:
        a.e(f"s_bfe_u32 s{sB}, s2, 0x40003")
        a.e(f"s_and_b32 s{sU}, s2, 3"); a.e(f"s_lshl_b32 s{sU}, s{sU}, 1")
        a.e(f"s_lshr_b32 s{sTmp}, s2, 7"); a.e(f"s_add_u32 s{sU}, s{sU}, s{sTmp}")
    else:
        a.e(f"s_and_b32 s{sB}, s2, 1"); a.e(f"s_lshl_b32 s{sB}, s{sB}, 3")
        a.e(f"s_bfe_u32 s{sTmp}, s2, 0x30003"); a.e(f"s_add_u32 s{sB}, s{sB}, s{sTmp}")
        a.e(f"s_bfe_u32 s{sU}, s2, 0x10001"); a.e(f"s_lshl_b32 s{sU}, s{sU}, 2")
        a.e(f"s_lshr_b32 s{sTmp}, s2, 6"); a.e(f"s_add_u32 s{sU}, s{sU}, s{sTmp}")
    a.e(f"s_lshl_b32 s{sG}, s{sBr}, 4"); a.e(f"s_add_u32 s{sG}, s{sG}, s{sB}")
    if T == 4: a.e(f"s_bfe_u32 s{sTyp}, s2, 0x10003")
    elif T == 3: a.e(f"s_andn2_b32 s{sTyp}, 1, s2")
    elif T == 2: a.e(f"s_and_b32 s{sTyp}, s2, 1")
    else: a.e(f"s_mov_b32 s{sTyp}, {T}")
    a.e("v_lshrrev_b32 v7, 6, v0")
    a.e("v_and_b32 v0, 63, v0")
    a.e(f"v_readfirstlane_b32 s{sWv}, v7")
    a.e("v_and_b32 v8, 15, v0")
    a.e("v_lshrrev_b32 v9, 4, v0")
    a.e("v_and_b32 v10, 1, v9"); a.e("v_lshlrev_b32 v10, 4, v10")
    a.e("v_lshrrev_b32 v11, 1, v9"); a.e("v_lshl_add_u32 v10, v11, 2, v10")
    a.e("v_lshrrev_b32 v11, 1, v7"); a.e("v_lshl_add_u32 v10, v11, 3, v10")
    a.e("v_and_b32 v11, 1, v7"); a.e("v_lshl_add_u32 v10, v11, 1, v10")
    a.e("v_lshlrev_b32 v10, 13, v10"); a.e(f"v_lshl_add_u32 v{vW}, v8, 4, v10")
    a.e("v_mul_u32_u24 v10, 48, v7"); a.e("v_lshrrev_b32 v11, 3, v0"); a.e("v_add_u32 v10, v10, v11")
    a.e("v_mul_u32_u24 v10, 1280, v10")
    a.e("v_and_b32 v11, 7, v0"); a.e("v_xor_b32 v11, v11, v9")
    a.e(f"v_lshl_add_u32 v{vX0}, v11, 4, v10")
    a.e("v_xor_b32 v11, 4, v11"); a.e("v_add_u32 v10, 10240, v10")
    a.e(f"v_lshl_add_u32 v{vX1}, v11, 4, v10")
    a.e(f"s_mul_i32 s{sKVL}, s{sWv}, 2112")
    a.e(f"s_mul_i32 s{sXL}, s{sWv}, 6144"); a.e(f"s_add_u32 s{sXL}, s{sXL}, {XB}")
    a.e(f"s_mov_b32 s{sCur}, 0"); a.e(f"s_mov_b32 s{sXo}, 0"); a.e(f"s_mov_b32 s{sWq}, 0")
    a.raw_wait("s_waitcnt lgkmcnt(0)")
    a.e(f"s_cmp_eq_u32 s{sBr}, 0")
    a.e("s_cselect_b64 s[4:5], s[4:5], s[14:15]")
    a.e("s_cselect_b64 s[6:7], s[6:7], s[16:17]")
    a.e("s_cselect_b64 s[8:9], s[8:9], s[18:19]")
    a.e("s_cselect_b64 s[10:11], s[10:11], s[20:21]")
    a.e("s_cselect_b64 s[12:13], s[12:13], s[22:23]")
    a.e("s_load_dwordx4 s[16:19], s[0:1], 80")
    a.e(f"s_mul_i32 s{sTmp}, s{sB}, 245760")
    srd(a, sX, 4, f"s{sTmp}", 245760)
    a.e(f"s_lshl_b32 s{sTmp}, s{sU}, 10")
    srd(a, sW, 10, f"s{sTmp}", 639 * 8192 + 1024)
    if OPT["krot"]: a.e(f"s_xor_b32 s{sJ}, s{sB}, s{sU}"); a.e(f"s_and_b32 s{sJ}, s{sJ}, 3")
    else: a.e(f"s_mov_b32 s{sJ}, 0")
    if OPT["hrot"] == 2: a.e(f"s_and_b32 s{sJh}, s{sU}, 1"); a.e(f"s_lshl_b32 s{sJh}, s{sJh}, 1")
    elif OPT["hrot"] == 3: a.e(f"s_and_b32 s{sJh}, s{sU}, 2")
    elif OPT["hrot"] == 4: a.e(f"s_and_b32 s{sJh}, s{sU}, 3")
    elif OPT["hrot"] == 5: a.e(f"s_lshr_b32 s{sJh}, s{sU}, 1")
    else: a.e(f"s_mov_b32 s{sJh}, 0")
    a.e(f"s_lshl_b32 s{sWq}, s{sJ}, 18"); a.e(f"s_lshl_b32 s{sTmp}, s{sJh}, 8"); a.e(f"s_or_b32 s{sWq}, s{sWq}, s{sTmp}"); a.e(f"s_add_u32 s{sWq1}, s{sWq}, {1 << 20}")
    a.e(f"s_lshr_b32 s{sXo}, s{sJ}, 1"); a.e(f"s_lshl_b32 s{sXo}, s{sXo}, 7")
    if not OPT['st0']: stamp(a, 0)
    stamp(a, 1, False)
    def common_consts():
        if OPT["rot"] == 2: a.e(f"s_bfe_u32 s{sRot}, s2, 0x40003"); a.e(f"s_lshl_b32 s{sRot}, s{sRot}, 13")
        elif OPT["rot"] == 3: a.e(f"s_bfe_u32 s{sRot}, s2, 0x40001"); a.e(f"s_lshl_b32 s{sRot}, s{sRot}, 13")
        elif OPT["rot"] == 4:
            a.e(f"s_mul_i32 s{sRot}, s2, 0x9e3779b1"); a.e(f"s_lshr_b32 s{sRot}, s{sRot}, 28"); a.e(f"s_lshl_b32 s{sRot}, s{sRot}, 13")
        elif OPT["rot"] == 5: a.e(f"s_bfe_u32 s{sRot}, s2, 0x20003"); a.e(f"s_lshl_b32 s{sRot}, s{sRot}, 15")
        elif OPT["rot"]:
            a.e(f"s_lshr_b32 s{sRot}, s2, 4"); a.e(f"s_xor_b32 s{sRot}, s{sRot}, s2"); a.e(f"s_and_b32 s{sRot}, s{sRot}, 15"); a.e(f"s_lshl_b32 s{sRot}, s{sRot}, 13")
        else: a.e(f"s_mov_b32 s{sRot}, 0")
        a.e(f"s_lshl_b32 s{sTmp}, s{sJh}, 17"); a.e(f"s_or_b32 s{sRot}, s{sRot}, s{sTmp}")
        a.e(f"s_mov_b32 s{sCX}, s{sRot}"); a.e(f"s_add_u32 s{sKVv}, s{sKVL}, {VB}")
        a.e("v_bfe_u32 v10, v0, 2, 3")
        a.e("v_lshrrev_b32 v11, 1, v10"); a.e("v_lshlrev_b32 v11, 6, v11"); a.e(f"v_lshl_add_u32 v{vWAl}, v10, 10, v11")
        a.e("v_and_b32 v11, 1, v10"); a.e(f"v_lshl_add_u32 v{vWAl}, v11, 3, v{vWAl}")
        a.e("v_lshrrev_b32 v11, 5, v0"); a.e(f"v_lshl_add_u32 v{vWAl}, v11, 8, v{vWAl}")
        a.e("v_mul_u32_u24 v10, 1056, v10"); a.e("v_lshl_add_u32 v10, v11, 8, v10")
        a.e("v_and_b32 v11, 3, v0"); a.e(f"v_lshl_add_u32 v{vWAl}, v11, 4, v{vWAl}")
        a.e(f"v_lshl_add_u32 v10, v11, 3, v10"); a.e(f"v_add_u32 v{vVA}, {VB}, v10")
        a.e(f"v_add_u32 v{vWAh}, {VB}, v{vWAl}")
        a.e("v_and_b32 v10, 7, v8"); a.e("v_mul_u32_u24 v10, 1056, v10")
        a.e("v_lshrrev_b32 v11, 3, v8"); a.e(f"v_lshl_add_u32 v10, v11, 8, v10")
        a.e(f"v_lshl_add_u32 v{vKA}, v9, 4, v10")
        a.e("v_lshlrev_b32 v10, 4, v0"); a.e(f"v_lshl_add_u32 v{vKV}, v7, 11, v10")
        a.e(f"v_lshlrev_b32 v10, 7, v8"); a.e(f"v_add_u32 v10, s{sXL}, v10")
        a.e("v_lshrrev_b32 v11, 1, v8"); a.e("v_xor_b32 v11, v11, v9")
        a.e(f"s_and_b32 s{sTmp}, s{sJ}, 1"); a.e(f"s_lshl_b32 s{sTmp}, s{sTmp}, 2"); a.e(f"v_xor_b32 v11, s{sTmp}, v11")
        a.e(f"v_lshl_add_u32 v{vXA0}, v11, 4, v10")
        a.e("v_xor_b32 v11, 4, v11"); a.e(f"v_lshl_add_u32 v{vXA1}, v11, 4, v10")
        a.e(f"s_lshl_b32 s{sTmp}, s{sB}, 3"); a.e(f"s_add_u32 s{sTmp}, s{sTmp}, s{sU}"); a.e(f"s_lshl_b32 s{sTmp}, s{sTmp}, 19")
        srd(a, sK, 6, f"s{sTmp}", 4 * 131072)
        srd(a, sV, 8, f"s{sTmp}", 4 * 131072)
        a.e(f"s_mul_i32 s{sTmp}, s{sU}, {512*1280}")
        srd(a, sWo, 12, f"s{sTmp}", 512 * 1280)
        for r in range(4): a.e(f"s_xor_b32 s{sH[r]}, s{sJh}, {r}"); a.e(f"s_mul_i32 s{sH[r]}, s{sH[r]}, 163840")
        a.e(f"s_mov_b32 s{sKn}, 0"); a.e(f"s_mov_b32 s{sMin}, {3*8192}")
        a.e(f"s_cmp_lt_u32 s{sU}, 4")
        a.e(f"s_cselect_b32 s{sTmp}, 128, 0"); a.e(f"s_mov_b32 s{sD0}, 128"); a.e(f"s_cselect_b32 s{sD0}, -128, s{sD0}")
        a.e(f"s_sub_u32 s{sD1}, 256, s{sD0}")
        for r in range(4): a.e(f"s_add_u32 s{sH[r]}, s{sH[r]}, s{sTmp}")
        a.e(f"s_lshl_b32 s{sTmp}, s{sG}, 12"); a.e(f"s_add_u32 s{sTmp}, s{sTmp}, {FLG}")
        srd(a, sF, 28, f"s{sTmp}", 4096)
    def touch0(three):
        if OPT["t0x"]:
            a.e("v_min_u32 v10, 59, v0"); a.e("v_lshlrev_b32 v10, 7, v10")
            a.e(f"s_lshl_b32 s{sTmp}, s{sU}, 2"); a.e(f"s_add_u32 s{sTmp}, s{sTmp}, s{sWv}"); a.e(f"s_mul_i32 s{sTmp}, s{sTmp}, 7680")
            a._emit(f"buffer_load_dword v11, v10, {sr(sX,4)}, s{sTmp} offen")
        if OPT["t0w"] and three:
            a.e("v_lshrrev_b32 v14, 2, v0"); a.e("v_lshlrev_b32 v14, 13, v14"); a.e("v_and_b32 v15, 3, v0"); a.e("v_lshl_add_u32 v14, v15, 7, v14")
            a.e(f"s_and_b32 s{sTmp}, s{sB}, 3"); a.e(f"s_lshl_b32 s{sTmp}, s{sTmp}, 2"); a.e(f"s_add_u32 s{sTmp}, s{sTmp}, s{sWv}"); a.e(f"s_lshl_b32 s{sTmp}, s{sTmp}, 17")
            for k in range(3):
                a.e(f"s_add_u32 s{sT2}, s{sTmp}, {k*256*8192}")
                a._emit(f"buffer_load_dword v{16+k}, v14, {sr(sW,4)}, s{sT2} offen")
    def part_srd(slot_expr, size):
        a.e(f"s_mul_i32 s{sTmp}, s{sG}, {PART}"); slot_expr(); a.e(f"s_lshl_b32 s{sT2}, s{sT2}, 10"); a.e(f"s_add_u32 s{sTmp}, s{sTmp}, s{sT2}")
        srd(a, sP, 28, f"s{sTmp}", size)
    NF = OPT["first"]
    LA = OPT['la']
    def wpos(n): return 8 + n % 8
    def rd_x(buf): return [rd_xb(Xreg(buf, j, s), j, s) for s in range(2) for j in range(3)]
    NF = 2
    def setup(lab):
        if not OPT["pro2"]: common_consts()
        code_touch(a, lab, "L_altwo" if not OPT["ct2"] else (("L_p0end" if OPT["pro2"] else "L_p1") if lab == "L_q" else "L_enter"), 10, 11)
        a.e(f"s_mov_b32 s{sR}, 0")
        if not OPT["ramp"]: late_setup()
    def late_setup():
        a.e(f"s_lshl_b32 s{sTmp}, s{sU}, 9"); a.e(f"s_lshl_b32 s{sT2}, s{sWv}, 7"); a.e(f"s_add_u32 s{sTmp}, s{sTmp}, s{sT2}")
        a.e("v_and_b32 v8, 7, v0"); a.e(f"v_lshlrev_b32 v8, 2, v8"); a.e("v_mov_b32 v7, 0")
        a._emit(f"buffer_store_dword v7, v8, {sr(sF,4)}, s{sTmp} offen sc1")
        emit_tile(a, kv_tile(0, 0))
    def bootstrap():
        l = newlabel("boot")
        a.e(f"s_cmp_lg_u32 s{sWv}, 0"); a.e(f"s_cbranch_scc1 {l}")
        a.e(f"s_lshl_b32 s{sTmp}, s{sG}, 2"); a.e(f"s_add_u32 s{sTmp}, s{sTmp}, 128")
        a.e(f"v_mov_b32 v157, s{sTmp}")
        a.e(f"s_getreg_b32 s{sT2}, hwreg(HW_REG_XCC_ID, 0, 4)")
        a.e(f"s_mul_i32 s{sT3}, s{sT2}, s{sT2}"); a.e(f"s_lshl_b32 s{sT3}, s{sT3}, 8"); a.e(f"s_add_u32 s{sT3}, s{sT3}, s{sT2}")
        a.e(f"s_lshl_b32 s{sT3}, s{sT3}, 8"); a.e(f"s_add_u32 s{sPK}, s{sT3}, 1"); a.e(f"v_mov_b32 v158, s{sPK}")
        a.e("s_mov_b64 exec, 1")
        a._emit("global_atomic_add v157, v158, s[18:19]")
        a.e("s_mov_b64 exec, -1")
        a.e(f"{l}:")
    if OPT["stag"]:
        a.e(f"s_and_b32 s{sT2}, s{sB}, 3") if OPT["stag"] < 100 else a.e(f"s_and_b32 s{sT2}, s{sU}, 3")
        a.e("L_stag:"); a.e(f"s_cmp_eq_u32 s{sT2}, 0"); a.e("s_cbranch_scc1 L_stag2"); a.e(f"s_sleep {OPT['stag'] % 100}"); a.e(f"s_sub_u32 s{sT2}, s{sT2}, 1"); a.e("s_branch L_stag"); a.e("L_stag2:")
    if OPT["pro2"]:
        a.e(f"s_cmp_lg_u32 s{sTyp}, 0")
        a.e(f"s_cselect_b32 s{sT2}, {XB - VB}, 0"); a.e(f"s_cselect_b32 s{sT3}, 0, 512")
        a.e(f"s_sub_u32 s{sT2}, s{sXL}, s{sT2}"); a.e(f"s_xor_b32 s{sT3}, s{sWq}, s{sT3}")
        def sub(st, x, y): return [([p_.replace(x, y) for p_ in pre], d) for pre, d in st]
        emit_tile(a, sub(w_tile(wpos(0), 0, 2), f"s{sWq},", f"s{sT3},"))
        for j in range(3): emit_tile(a, sub(x_block(j, 0, sXo), f"s{sXL},", f"s{sT2},"))
        emit_tile(a, sub(w_tile(wpos(1), 1, 2), f"s{sWq},", f"s{sT3},"))
        common_consts()
        a.e(f"s_cmp_eq_u32 s{sTyp}, 0")
        a.e("s_cbranch_scc1 L_p0")
        a.e("L_split:")
        a.e("L_p0:")
    else:
        a.e(f"s_cmp_lg_u32 s{sTyp}, 0")
        a.e("s_cbranch_scc1 L_p1")
        for j in range(3): emit_tile(a, x_block(j, 0, sXo))
        for n in range(NF): emit_tile(a, w_tile(wpos(n), n))
    setup("L_q")
    if OPT["help"]:
        if T == 3:
            a.e(f"s_sub_u32 s{sP}, s{sX}, {4*245760}"); a.e(f"s_subb_u32 s{sP+1}, s{sX+1}, 0")
        else:
            a.e(f"s_add_u32 s{sP}, s{sX}, {4*245760}"); a.e(f"s_addc_u32 s{sP+1}, s{sX+1}, 0")
        a.e(f"s_mov_b32 s{sP+2}, 245760"); a.e(f"s_mov_b32 s{sP+3}, 0x20000")
        a.e("v_min_u32 v8, 59, v0"); a.e("v_lshlrev_b32 v8, 7, v8")
        a.e(f"s_lshl_b32 s{sTmp}, s{sU}, 2"); a.e(f"s_add_u32 s{sTmp}, s{sTmp}, s{sWv}"); a.e(f"s_mul_i32 s{sTmp}, s{sTmp}, 7680")
        a._emit(f"buffer_load_dword v9, v8, {sr(sP,4)}, s{sTmp} offen")
        if OPT["help"] & 2:
            a.e("v_lshrrev_b32 v8, 2, v0"); a.e("v_lshlrev_b32 v8, 13, v8"); a.e("v_and_b32 v10, 3, v0"); a.e("v_lshl_add_u32 v8, v10, 7, v8")
            a.e(f"s_lshr_b32 s{sTmp}, s{sB}, 3"); a.e(f"s_lshl_b32 s{sTmp}, s{sTmp}, 2"); a.e(f"s_and_b32 s{sT2}, s{sB}, 3"); a.e(f"s_add_u32 s{sTmp}, s{sTmp}, s{sT2}")
            a.e(f"s_lshl_b32 s{sTmp}, s{sTmp}, 2"); a.e(f"s_add_u32 s{sTmp}, s{sTmp}, s{sWv}"); a.e(f"s_mul_i32 s{sTmp}, s{sTmp}, {20*8192}")
            a.e(f"s_and_b32 s{sT2}, s{sWq}, 512"); a.e(f"s_add_u32 s{sTmp}, s{sTmp}, s{sT2}")
            a._emit(f"buffer_load_dword v9, v8, {sr(sW,4)}, s{sTmp} offen")
            a.e(f"s_add_u32 s{sTmp}, s{sTmp}, {4*8192}")
            a._emit(f"buffer_load_dword v9, v8, {sr(sW,4)}, s{sTmp} offen")
    a.e(f"s_mov_b32 s{sPre}, 15")
    for r in range(256):
        if r % 40 == 0 and NF + r // 40 < LA: emit_tile(a, w_tile(wpos(NF + r // 40), NF + r // 40))
        a.e(f"v_accvgpr_write_b32 a{r}, 0")
    for r in list(range(124, 156)) + list(range(160, 256)): a.e(f"v_mov_b32 v{r}, 0")
    if OPT["woq"]:
        a.e(f"s_lshr_b32 s{sTmp}, s{sB}, 3"); a.e(f"s_lshl_b32 s{sTmp}, s{sTmp}, 2"); a.e(f"s_and_b32 s{sT2}, s{sB}, 3"); a.e(f"s_add_u32 s{sTmp}, s{sTmp}, s{sT2}")
        a.e(f"s_lshl_b32 s{sTmp}, s{sTmp}, 2"); a.e(f"s_add_u32 s{sTmp}, s{sTmp}, s{sWv}"); a.e(f"s_mul_i32 s{sTmp}, s{sTmp}, 5120")
        a.e("v_min_u32 v7, 39, v0"); a.e(f"v_lshl_add_u32 v7, v7, 7, s{sTmp}")
    a.raw_wait(f"s_waitcnt vmcnt({2 * (LA - 2)}) lgkmcnt(0)")
    a.e("s_barrier")
    for r in rd_x(0): a.e(r)
    for i in range(8):
        for r in rd_w(Wreg(0, i), wpos(0), i): a.e(r)
    a.raw_wait("s_waitcnt lgkmcnt(0)"); a.lg = []
    if OPT["qprof"] == 1: stamp(a, 5); stamp(a, 6, False)
    def lperm(n, last):
        return 8 + 4 * ((n - 8) & 1) + ((n - 8) >> 1) if last and OPT["cvo"] and 8 <= n < 16 else n
    def qmf(n, last=False):
        s, pos = divmod(lperm(n, last) % 16, 4)
        return [mf(Qacc(pos, i, j), Wreg(n & 1, i), Xreg((s >> 1) & 1, j, s & 1), Qacc(pos, i, j)) for i in range(8) for j in zj(i)]
    cvq = conv_ops(Qacc, 0, QBANK[3], [76, 84, 92])
    def early(S, half, h0, gaps):
        pre = [x.replace(f"s{sOff},", f"s{sOff2},") for x in unit_pre(sKn, 0)[4*half:4*half+4]]
        if half == 0: pre = [f"s_cmp_ge_u32 s{sKn}, s{sMin}", "s_cselect_b64 vcc, -1, 0", f"s_cselect_b32 s{sC1}, 0, 8192"] + pre
        else: pre = pre + [f"s_add_u32 s{sKn}, s{sKn}, s{sC1}"]
        for x, h_ in zip(pre, h0): S.h(h_, x)
        place_guarded(a, S, unit_dma(sOff2, sOff2)[2*half:2*half+2], gaps)
    def q_group(last):
        for n in range(16):
            a.c(f"Q sub-step {n}{' (last group)' if last else ''}")
            S = Sched(a, qmf(n, last))
            fin = last and n == 15
            q = n % 8
            xrd = q in (6, 7) and not (last and n >= 8)
            if not fin:
                rds = []
                for i in range(8): rds += rd_w(Wreg((n + 1) & 1, i), wpos(n + 1), i)
                for r, p in zip(rds, RDPOS): S.v(p, r)
                m = n + LA
                if not last or m < 16: place_tile(a, S, w_tile(wpos(m), lperm(m, last)), (6, 11))
                KVN = {8: 7, 9: 8, 10: 9, 11: 10, 12: 11, 13: 12} if not OPT["kvconv"] else {4: 7, 11: 8} if OPT["kvconv"] == 1 else {4: 7}
                if last and n in KVN: place_tile(a, S, kv_tile(KVN[n], KVN[n] >> 1), (16, 19))
                if not (last and n == 14):
                    hi = min(m, 15) if last else m
                    ykv = len([k for k in KVN if n + 2 - LA <= k <= n]) if last else 0
                    end_sync(a, S, 2 * (hi - (n + 2)) + 2 * ykv, 5 if xrd else 2)
            if xrd:
                rx = rd_x(((n >> 3) + 1) & 1)[3*(q-6):3*(q-6)+3]
                if q == 6: S.h(16, lambda: vmw(a, 8))
                for r, p in zip(rx, (19, 20, 21)): S.v(p, (r, "xr"))
            if q in (0, 1, 2) and not (last and n >= 8):
                if q == 0: S.h(12, lambda: a.wait(lg="xr"))
                place_tile(a, S, x_block(q, 128, sXo, "s_xor_b32") if n < 8 else x_block(q, 256, sXo), (16, 19))
            if n in (11, 12) and not last: early(S, n - 11, (0, 1, 2, 3, 7, 8, 12), (16, 19))
            if n == 4 and not last and OPT["woq"]:
                S.h(13, f"s_lshr_b32 s{sOff2}, s{sXo}, 8"); S.h(14, f"s_mul_i32 s{sOff2}, s{sOff2}, 163840")
                S.v(16, lambda: a._emit(f"buffer_load_dword v9, v7, {sr(sWo,4)}, s{sOff2} offen"))
            if n == 15 and not last:
                S.h(12, f"s_mov_b32 s{sWq}, s{sWq1}")
                S.h(13, f"s_add_u32 s{sWq1}, s{sWq1}, {1 << 20}")
                S.h(14, f"s_add_u32 s{sXo}, s{sXo}, 256")
                S.h(15, f"s_cmp_lt_u32 s{sXo}, 1024")
            if last and n == 3: S.h(1, SCALE)
            if last and n >= 10 and OPT["cvo"]: cvq[:] = fill_ops(S, cvq, 4 if n == 10 else 0)
            S.emit(None if fin else qmf(n + 1, last)[0])
    a.e(".p2align 6")
    a.e("L_q:")
    if OPT["qprof"] == 3:
        a.e(f"s_lshr_b32 s{sT3}, s{sXo}, 8"); stamp_dyn(a, 4, sT3, 4)
    mark = len(a.ins); nops0 = a.nops
    q_group(False)
    lg_end = list(a.lg)
    del a.ins[mark:]; a.nops = nops0
    q_group(False)
    assert a.lg == lg_end
    a.e("s_cbranch_scc1 L_q")
    if OPT["ct2"]: code_touch(a, "L_enter", "L_q2b" if T else "L_altwo", 10, 11, back=bool(OPT["pro2"]))
    if OPT["ramp"]: late_setup()
    if OPT["qprof"] == 3: stamp(a, 8)
    q_group(True)
    if OPT["qprof"] == 1: stamp(a, 7); stamp(a, 8, False)
    stamp(a, 3)
    a.c("Q conversion")
    tmp = [60 + 8 * k for k in range(8)]
    rest = packed(cvq + conv_ops(Qacc, 1, QBANK[2], tmp) + conv_ops(Qacc, 2, QBANK[1], tmp) + conv_ops(Qacc, 3, None, tmp))
    steps = [s_ for m in range(10 - OPT["kvconv"], 13) for s_ in kv_tile(m, m >> 1)] if OPT["kvconv"] else []
    at = {int((k + 0.3) * len(rest) / len(steps)): s_ for k, s_ in enumerate(steps)}
    for k, x in enumerate(rest):
        if k in at:
            for y in at[k][0]: a.e(y)
        a.e(x)
        if k in at: a._emit(at[k][1])
    late_consts(a)
    bootstrap()
    a.e("s_branch L_enter")
    a.e("L_p1:")
    a.lg = []
    if not OPT["pro2"]:
        for j in range(3): emit_tile(a, x_block(j, 0, sXo, lds=VB-XB))
        for n in range(NF): emit_tile(a, w_tile(wpos(n), n, 2))
    a.e(f"s_xor_b32 s{sXo1}, s{sXo}, 128")
    for j in range(3): emit_tile(a, x_block(j, 0, sXo1))
    setup("L_q2")
    late_consts(a)
    a.e(f"s_mov_b32 s{sPre}, 1")
    assert OPT["cvo"] or not OPT["lateq"]
    if OPT["lateq"]: a.e(f"s_mov_b32 s{sMin}, 0")
    L0 = 5 if OPT["ramp"] else LA
    assert not OPT["ramp"] or (OPT["latekv"] and LA == 7 and OPT["ct2"])
    for n in range(NF, L0): emit_tile(a, w_tile(wpos(n), n, 2))
    a.e(f"v_subrev_u32 v12, {XB-VB}, v{vXA0}"); a.e(f"v_subrev_u32 v13, {XB-VB}, v{vXA1}")
    a.raw_wait(f"s_waitcnt vmcnt({2 * (L0 - 2)}) lgkmcnt(0)")
    for j in range(3):
        for s in range(2): a.e(f"ds_read_b128 {R(X2reg(0, j, s),4)}, v{12+s} offset:{j*2048}")
    a.e("L_q2go:")
    a.e("s_barrier")
    for i in range(8):
        for r in rd_w(Greg(0, i), wpos(0), i): a.e(r)
    a.raw_wait("s_waitcnt lgkmcnt(0)"); a.lg = []
    def q2_group(kind):
        first, last = kind == 0, kind == 2
        for n in range(8):
            a.c(f"Q2 sub-step {n} ({('first', 'loop', 'last')[kind]})")
            S = Sched(a, q2mf(n, first))
            cl, q = divmod(n, 4)
            fin = last and n == 7
            xrd = q < 3 and not (last and cl == 1)
            def xd(k): return k % 4 < 3 and not (last and k >= 0) and not (first and k < 0)
            def wd(k): return not (last and k + LA >= 8)
            def kd(k): return last and 0 <= k <= 5
            if not fin:
                rds = []
                for i in range(8): rds += rd_w(Greg((n + 1) & 1, i), wpos(n + 1), i)
                for r, p in zip(rds, RDPOS_X): S.v(p, r)
            rampd = first and OPT["ramp"]
            if rampd:
                m0_ = n + 5 + (n > 3)
                place_tile(a, S, w_tile(wpos(m0_), m0_, 2), (4, 7))
                if q == 3: place_tile(a, S, w_tile(wpos(m0_ + 1), m0_ + 1, 2), (10, 13))
            elif wd(n): place_tile(a, S, w_tile(wpos(n + LA), n + LA, 2), (4, 7))
            if kd(n): place_tile(a, S, kv_tile(7 + n, (7 + n) >> 1), (10, 13))
            if xrd:
                for s in range(2): S.v(s, (rd_xb(X2reg(1 - cl, q, s), q, s), "xr"))
            if xd(n):
                S.h(7, lambda: a.wait(lg="xr"))
                place_tile(a, S, x_block(q, 256, (sXo, sXo1)[cl]), (10, 13))
            if q == 3 and not last and not (first and OPT['latekv']): early(S, cl, (0, 0, 1, 1, 4, 7, 8) if cl == 0 else (0, 0, 1, 1, 4), (10, 13))
            if n == 7 and not last:
                S.h(16, f"s_mov_b32 s{sWq}, s{sWq1}")
                S.h(17, f"s_add_u32 s{sWq1}, s{sWq1}, {1 << 20}")
                S.h(18, f"s_add_u32 s{sXo1}, s{sXo1}, 256")
                S.h(19, f"s_add_u32 s{sXo}, s{sXo}, 256")
                S.h(20, f"s_cmp_lt_u32 s{sXo}, 1024")
            if not (last and n >= 6):
                k0 = n + 2 - LA
                vm = sum(2 * wd(k) for k in range(k0 + 1, n + 1)) + sum(2 * kd(k) for k in range(k0, n + 1))
                if (n + 1) % 4 < 3 and not (last and n + 1 >= 4) and xd(n - 3):
                    vm = min(vm, sum(2 * wd(k) + 2 * xd(k) + 2 * kd(k) for k in range(n - 2, n + 1)))
                if rampd and n == 0: vm = min(vm, 8)
                if n == 7 and OPT['cvo']: vm = min(vm, 8)
                end_sync(a, S, vm, 5)
            S.emit(None if fin else q2mf(n + 1, first and n < 7)[0])
    a.e("L_q2:")
    q2_group(0)
    lg_in = list(a.lg)
    a.e(".p2align 6")
    a.e("L_q2l:")
    q2_group(1)
    assert a.lg == lg_in
    a.e("s_cbranch_scc1 L_q2l")
    if OPT["ct2"]:
        assert not OPT["ramp"]
        code_touch(a, "L_enter", "L_q2b" if T else "L_altwo", 10, 11)
    cv2 = conv_ops(Q2acc, 0, "keep", [0])
    if not OPT["cvo"]:
        q2_group(2); a.e(SCALE)
    else:
        order = [0, 2, 4, 6, 1, 3, 5, 7]
        def mfs(n):
            s, pos = divmod(order[n], 2)
            return [mf(Q2acc(pos, i, j), Greg(n & 1, i), X2reg(s >> 1, j, s & 1), Q2acc(pos, i, j)) for i in range(8) for j in zj(i)]
        kvat = {0: [7], 1: [8], 5: [9, 10], 6: [11, 12]}
        for n in range(8):
            a.c(f"Q2 sub-step {n} (last)")
            S = Sched(a, mfs(n))
            if n < 7:
                rds = []
                for i in range(8): rds += rd_w(Greg((n + 1) & 1, i), wpos(order[n + 1]), i)
                for r, p in zip(rds, RDPOS_X): S.v(p, r)
            if n == 0:
                place_tile(a, S, w_tile(wpos(7), 7, 2), (4, 7)); S.h(14, SCALE)
                for s in range(2): S.v(s, rd_xb(X2reg(1, 0, s), 0, s))
            if n == 1:
                for k, p in enumerate((0, 1, 4, 7)): S.v(p, rd_xb(X2reg(1, 1 + (k >> 1), k & 1), 1 + (k >> 1), k & 1))
            for m, gp in zip(kvat.get(n, []), ((10, 13),) if n < 2 else ((4, 7), (10, 13))):
                un, half = divmod(m - 7, 2)
                pre = [x.replace(f"s{sOff},", f"s{sOff2},") for x in unit_pre(sKn, un * 8192)[4*half:4*half+4]]
                if gp[0] == 4: pre = [x.replace(f"s{sOff2},", f"s{sOff},") for x in pre]
                for x, h_ in zip(pre, (0, 0, 1, 2) if gp[0] == 4 else (0, 1, 4, 8) if n < 2 else (4, 5, 7, 8)): S.h(h_, x)
                so = sOff if gp[0] == 4 else sOff2
                place_tile(a, S, unit_dma(so, so)[2*half:2*half+2], gp)
            if n < 6: end_sync(a, S, {0: 6, 1: 6, 5: 8}.get(n, 20), 5)
            if n >= 4: cv2 = fill_ops(S, cv2, 4 if n == 4 else 0)
            S.emit(mfs(n + 1)[0] if n < 7 else None)
    if OPT["stamp"] and not OPT["qprof"]:
        a.e(f"s_lshr_b32 s{sT2}, s{sR}, 1"); stamp_dyn(a, 3, sT2, 2)
    a.c("Q2 conversion")
    for x in packed(cv2): a.e(x)
    def bank_write(db, src):
        return [f"v_accvgpr_write_b32 a{db + 12*p + 4*j + x}, v{src(p, j)+x}" for p in range(4) for j in range(3) for x in range(4)]
    a.e(f"s_cmp_lg_u32 s{sR}, 0"); a.e("s_cbranch_scc1 L_cv2b")
    if OPT["touch"]:
        a.e("v_min_u32 v8, 39, v0"); a.e("v_lshrrev_b32 v9, 2, v8"); a.e("v_lshlrev_b32 v9, 13, v9")
        a.e("v_and_b32 v8, 3, v8"); a.e("v_lshl_add_u32 v9, v8, 7, v9")
        a.e(f"s_lshl_b32 s{sTmp}, s{sB}, 2"); a.e(f"s_add_u32 s{sTmp}, s{sTmp}, s{sWv}"); a.e(f"s_mul_i32 s{sTmp}, s{sTmp}, {10*8192}")
        a.e(f"s_add_u32 s{sTmp}, s{sTmp}, 512")
        a._emit(f"buffer_load_dword v{vD}, v9, {sr(sW,4)}, s{sTmp} offen")
    a.e(f"s_and_b32 s{sWq}, s{sWq}, 0xfffff"); a.e(f"s_xor_b32 s{sWq}, s{sWq}, 512"); a.e(f"s_add_u32 s{sWq1}, s{sWq}, {1 << 20}")
    a.e(f"s_and_b32 s{sXo}, s{sXo}, 128"); a.e(f"s_xor_b32 s{sXo1}, s{sXo}, 128")
    for x in bank_write(QBANK[1], lambda p, j: Q2acc(0, 2*p, j)): a.e(x)
    a.e("s_branch L_cv2c")
    a.e("L_cv2b:")
    if OPT["emu3"]:
        a.e(f"s_cmp_eq_u32 s{sPre}, 1"); a.e("s_cbranch_scc0 L_cv2d")
        a.e(f"s_mov_b32 s{sPre}, 14")
        a.e(f"s_and_b32 s{sWq}, s{sWq}, 0xfffff"); a.e(f"s_add_u32 s{sWq1}, s{sWq}, {1 << 20}")
        a.e(f"s_and_b32 s{sXo}, s{sXo}, 128"); a.e(f"s_xor_b32 s{sXo1}, s{sXo}, 128")
        a.raw_wait("s_waitcnt vmcnt(0)"); a.e("s_barrier")
        for n in range(LA): emit_tile(a, w_tile(wpos(n), n, 2))
        a.raw_wait("s_waitcnt vmcnt(0)")
        a.e("s_branch L_q2go")
        a.e("L_cv2d:")
    a.e("s_nop 7")
    for x in bank_write(QBANK[3], lambda p, j: Q2acc(0, 2*p, j)): a.e(x)
    bootstrap()
    a.e("L_cv2c:")
    for x in packed(conv_ops(Q2acc, 1, None, [0])): a.e(x)
    a.e("L_enter:")
    a.e(f"v_mov_b32 v{vT}, 0x3f803f80")
    if OPT["sparse1"]:
        a.e(f"v_and_b32 v{vT+1}, 3, v0"); a.e(f"v_cmp_eq_u32 vcc, 0, v{vT+1}"); a.e(f"v_cndmask_b32 v{vT}, 0, v{vT}, vcc")
    for r in range(4): a.e(f"v_accvgpr_write_b32 a{ONES[1]+r}, v{vT}")
    def rd_k(dst, t, u): return [f"ds_read_b128 {vr(dst + 4*ks,4)}, v{vKA} offset:{(t % 8)*TILE + u*512 + ks*64}" for ks in range(4)]
    def rd_v(t, half, fr=VF):
        return [f"ds_read_b64_tr_b16 {vr(fr + 4*i + 2*e, 2)}, v{vVA} offset:{(t % 8)*TILE + e*512 + (4*half+i)*32}" for i in range(4) for e in range(2)]
    assert not OPT["lateq"] and OPT["lmax"] == 3
    a.e(f"s_add_u32 s{sKc}, s{sKn}, {4*8192}"); a.e(f"s_mov_b32 s{sLag}, 0")
    assert OPT["cvo"] or not T
    THR = OPT['thr'] + 1 if OPT['dyn'] else 99
    a.e(f"s_cmp_eq_u32 s{sTyp}, 0"); a.e(f"s_cselect_b32 s{sThr}, {0 if OPT['sh1'] else THR}, {THR}")
    a.e(f"s_mov_b32 s{sThN}, {THR}")
    if OPT["sh3"]:
        a.e(f"s_cmp_eq_u32 s{sR}, 2"); a.e(f"s_cselect_b32 s{sThr}, 0, s{sThr}")
        if OPT["sh3"] == 1: a.e(f"s_cselect_b32 s{sThN}, 0, s{sThN}")
    vmw(a, 12)
    a.e("s_barrier")
    a.lg = []
    for r in rd_k(KF, 0, 0) + rd_k(VF, 0, 1): a.e(r)
    for x in unit_pre(sKn, 3 * 8192): a.e(x)
    a.wait(lg="all")
    def ex(u, k): j, r = divmod(k, 4); s = Sr(u, j) + r; return f"v_exp_f32 v{s}, v{s}"
    def cv(u, buf, c): j, h = divmod(c, 2); s = Sr(u, j) + 2*h; return f"v_cvt_pk_bf16_f32 v{Pr(buf,j) + 2*u + h}, v{s}, v{s+1}"
    def qk(u): return [mf(Sr(u, j), KF + 4*ks, Qf(j, ks), Nm(j) if ks == zk(j)[0] else Sr(u, j)) for j in range(3) for ks in zk(j)]
    def pv(t, half, fr=VF): return [mf(Or(4*half + i, j), fr + 4*i, Pr(t & 1, j), None if t == 0 else Or(4*half + i, j)) for i in range(4) for j in zj(i)]
    def sm(t): return [mf(La(j), ONES, Pr(t & 1, j), None if t == 0 else La(j)) for j in zj(1)]
    VMW = min(4 * (5 - OPT["lmax"]), OPT["vmw"])
    decide = [f"s_getreg_b32 s{sC1}, hwreg(HW_REG_IB_STS, 0, 4)", f"s_cmp_ge_u32 s{sC1}, s{sThr}", f"s_cselect_b32 s{sC1}, s{sLag}, 15",
              f"s_cmp_lt_u32 s{sC1}, {OPT['lmax']}"]
    advance = [f"s_mov_b32 s{sOff}, s{sOff2}", f"s_mov_b32 s{sMv}, s{sMk}", f"s_add_u32 s{sKc}, s{sKc}, 8192"]
    recompute = [f"s_xor_b32 s{sOff2}, s{sKc}, s{sRot}", f"s_bfe_u32 s{sMk}, s{sKc}, 0x3000d", f"s_mul_i32 s{sMk}, s{sMk}, {TILE}"]
    skips = []
    def forked(build, nxt):
        l0, l1 = newlabel("df"), newlabel("dfb")
        a.e(f"s_cbranch_scc1 {l0}")
        lg = list(a.lg)
        build(True).emit(nxt)
        a.e(f"{l1}:")
        skips.append((l0, l1, build, nxt, lg, list(a.lg)))
    catch = []
    def wo_at(S, m, gaps):
        st, post = wo_tile(m)
        place_tile(a, S, st, gaps)
        for x in post: S.h(gaps[1], x)
    def tail_vec(S, u, buf, rds):
        pos = [0, 1, 4, 5, 8, 9, 10, 11]
        for r, p in zip(rds, pos): S.v(p, r)
        for k, p in zip(range(8, 12), (2, 3, 6, 7)): S.v(p, ex(u, k))
        for c, p in zip(range(6), (0, 1, 4, 5, 8, 9)): S.v(p, cv(u, buf, c))
    a.e("L_head:")
    a.c("tile 0: scores of the first 16 keys give the stand-in row max")
    def qk0(extra):
        S = Sched(a, [mf(Sr(0, j), KF + 4*ks, Qf(j, ks), None if ks == 0 else Sr(0, j)) for j in range(3) for ks in range(4)])
        S.h(2, lambda: vmw(a, VMW))
        for k, x in enumerate(decide): S.h(3 + k, x)
        for k, x in enumerate(extra[:24]): S.v(k // 2, x)
        S.emit(None)
        for x in extra[24:]: a.e(x)
        if not extra: a.e("s_nop 7")
    qk0([])
    a.e(".p2align 6")
    a.e("L_head2:")
    for j in range(3): a.e(f"v_max3_f32 v{Nm(j)}, v{Sr(0,j)}, v{Sr(0,j)+1}, v{Sr(0,j)+2}")
    for j in range(3): a.e(f"v_max_f32 v{Nm(j)}, v{Nm(j)}, v{Sr(0,j)+3}")
    rowred(a, "v_max_f32", [Nm(j) for j in range(3)], [Nm(j) + 1 for j in range(3)])
    for j in range(3):
        if OPT["pk"]:
            for r in (2, 0): a.e(f"v_pk_mul_f32 v[{Nm(j)+r}:{Nm(j)+r+1}], v[{Nm(j)}:{Nm(j)+1}], -1.0 op_sel_hi:[0,0]")
        else:
            for r in (3, 2, 1, 0): a.e(f"v_sub_f32 v{Nm(j)+r}, 0, v{Nm(j)}")
    a.e("s_barrier")
    def qkb(issue):
        S = Sched(a, [mf(Sr(1, j), VF + 4*ks, Qf(j, ks), Nm(j) if ks == 0 else Sr(1, j)) for j in range(3) for ks in range(4)])
        for r, p in zip(rd_k(KF, 1, 0), (0, 3, 6, 9)): S.v(p, r)
        if issue:
            place_tile(a, S, unit_dma(), (2, 5, 8, 11))
            for x, p in zip(advance, (6, 8, 9)): S.h(p, x)
        else: S.h(1, f"s_add_u32 s{sLag}, s{sLag}, 1")
        subs = [f"v_add_f32 v{Sr(0,j)+r}, v{Sr(0,j)+r}, v{Nm(j)}" for j in range(3) for r in range(4)]
        for x, p in zip(subs, (0, 1, 1, 3, 4, 4, 6, 7, 7, 9, 10, 10)): S.v(p, x)
        return S
    forked(qkb, None)
    for k in range(12): a.e(ex(0, k))
    for k in range(8): a.e(ex(1, k))
    for c in range(6): a.e(cv(0, 0, c))
    a.wait(lg="all")
    def stage(t, mode):
        a.c(f"stage {t} {mode}")
        kv = mode == "kv"
        S = Sched(a, qk(0)); tail_vec(S, 1, t & 1, rd_v(t, 0))
        if kv:
            for k, x in enumerate(recompute): S.h(1 + k, x)
        if kv and OPT["dyn"] and OPT["thr2"] >= 0 and t >= OPT["cufrom"] and (t - OPT["cufrom"]) % OPT["custep"] == 0:
            l0, l1 = newlabel("cu"), newlabel("cub")
            cm = [f"s_add_u32 s{sC1}, s{sC1}, {THR - OPT['thr2']}", f"s_cmp_le_u32 s{sC1}, s{sThr}"] if OPT["gate"] else ["s_nop 0", f"s_cmp_le_u32 s{sC1}, {OPT['thr2']}"]
            for k, x in enumerate([f"s_getreg_b32 s{sC1}, hwreg(HW_REG_IB_STS, 0, 4)"] + cm +
                                  [f"s_cselect_b32 s{sC1}, s{sLag}, 0", f"s_cmp_gt_u32 s{sC1}, 0"]): S.h(5 + k, x)
            def site(l0=l0, l1=l1): a.e(f"s_cbranch_scc1 {l0}"); a.e(f"{l1}:")
            S.h(10, site)
            catch.append((l0, l1, t))
        S.emit(pv(t, 0)[0])
        S = Sched(a, pv(t, 0))
        for r, p in zip(rd_k(KF, t+1, 1), (0, 1, 2, 3)): S.v(p, r)
        for k, p in zip(range(8), range(4, 12)): S.v(p, ex(0, k))
        S.h(10, lambda: a.wait(lg="all"))
        if mode == "wq" and t == 13: place_tile(a, S, x_block(1, 0, sXo) + x_block(2, 0, sXo), (2, 4, 7, 9))
        S.emit(qk(1)[0])
        S = Sched(a, qk(1)); tail_vec(S, 0, (t+1) & 1, rd_v(t, 1))
        if kv:
            if t == OPT["sh1t"]: S.h(2, f"s_mov_b32 s{sThr}, s{sThN}")
            if t == 9 and OPT["sh2"] and T:
                S.h(2, f"s_cmp_eq_u32 s{sR}, s{sPre}"); S.h(3, f"s_cselect_b32 s{sThr}, 0, s{sThr}")
            S.h(6, lambda: vmw(a, VMW))
            for k, x in enumerate(decide): S.h(7 + k, x)
        else:
            S.h(11, lambda: vmw(a, {"wo": 8, "wq": 8 if t < 14 else 4}[mode]))
        S.emit(None)
        def dslot(issue):
            S = Sched(a, sm(t) + pv(t, 1))
            S.h(0, "s_barrier")
            if t + 2 < 16:
                for r, p in zip(rd_k(KF, t+2, 0), (0, 1, 2, 3)): S.v(p, (r, "kr"))
            else:
                for r, p in zip(rd_v(15, 0, KF), (0, 1, 2, 3, 4, 6, 7, 9)): S.v(p, (r, "kr"))
                S.v(10, cv(1, 1, 0)); S.v(12, cv(1, 1, 1))
                if mode == "wq":
                    for k, p in enumerate((0, 1, 2, 5, 8, 10)): S.v(p, (rd_xb(X2reg(0, k >> 1, k & 1), k >> 1, k & 1), "kr"))
            for k, p in zip(range(8), (3, 4, 6, 7, 9, 10, 12, 13)): S.v(p, ex(1, k))
            def vwait(keep):
                def f():
                    idx = [n for n, (tg, d) in enumerate(a.lg) if tg != "kr"]
                    if len(idx) > keep: a._wait(lg_idx=idx[len(idx) - 1 - keep])
                return f
            S.h(1, vwait(4)); S.h(6, vwait(0))
            if kv and issue:
                place_tile(a, S, unit_dma(), (5, 8, 11, 14))
                for x, p in zip(advance, (9, 11, 3)): S.h(p, x)
            elif kv: S.h(3, f"s_add_u32 s{sLag}, s{sLag}, 1")
            elif mode == "wo":
                wo_at(S, 2*(t-12), (5, 8)); wo_at(S, 2*(t-12) + 1, (11, 14))
            else:
                if t == 12: place_tile(a, S, x_block(0, 0, sXo), (5, 8))
                else: place_tile(a, S, w_tile(2*t - 17, 2*t - 25, 2), (5, 8))
                place_tile(a, S, w_tile(2*t - 16, 2*t - 24, 2), (11, 14))
            S.h(12 if t < 14 else 14, lambda: a.wait(lg="all"))
            return S
        nxt = qk(0)[0] if t < 14 else None
        if kv: forked(dslot, nxt)
        else: dslot(True).emit(nxt)
        assert not a.lg
    NPRE = 20
    def epi_ops(toq):
        o_ = [f"v_mul_f32 v{Or(u,j)+r}, v{Or(u,j)+r}, v{vT+j}" for u in range(2) for j in range(3) for r in range(4)]
        for p in range(4):
            for j in range(3):
                d = Qf(j, p) if toq else Or(2*p, j)
                if p: o_ += [f"v_mul_f32 v{Or(2*p+u,j)+r}, v{Or(2*p+u,j)+r}, v{vT+j}" for u in range(2) for r in range(4)]
                o_ += [f"v_cvt_pk_bf16_f32 v{d+2*u+h}, v{Or(2*p+u,j)+2*h}, v{Or(2*p+u,j)+2*h+1}" for u in range(2) for h in range(2)]
        return o_
    def stage15(mode):
        a.c(f"stage 15 {mode}")
        p0 = pv(15, 0, KF)
        S = Sched(a, [m_ for j in range(3) for m_ in [sm(15)[zj(1).index(j)]] + [p0[3*i + zj(i).index(j)] for i in range(4)]] + pv(15, 1))
        for r, p in zip(rd_v(15, 1), (0, 1, 6, 7, 8, 9, 10, 11)): S.v(p, r)
        for c, p in zip((2, 3, 4, 5), (0, 1, 6, 7)): S.v(p, cv(1, 1, c))
        for k, p in zip(range(8, 12), (2, 3, 4, 5)): S.v(p, ex(1, k))
        for j, p in enumerate((8, 9, 14)): S.v(p, f"v_accvgpr_read_b32 v{vT+j}, a{La(j)[1]}")
        S.v(10, f"v_add_f32 v{vT+3}, v{vT}, v{vT+1}"); S.v(14, f"v_add_f32 v{vT+3}, v{vT+3}, v{vT+2}")
        S.v(11, f"v_mov_b32 v{vT+4}, {f32(2.0**60 if not OPT['forceslow'] else 150.0)}")
        S.v(15, f"v_cmp_nle_f32 vcc, v{vT+3}, v{vT+4}")
        for j, p in enumerate((12, 13, 16)): S.v(p, f"v_rcp_f32 v{vT+j}, v{vT+j}")
        if mode != "wo":
            for k, x in enumerate(epi_ops(0)[:NPRE]): S.v(17 + k // 2, x)
        if mode == "kv":
            for k, x in enumerate(recompute): S.h(1 + k, x)
        if mode == "wo":
            for k in range(3): wo_at(S, 6 + k, (11 + 6*k, 14 + 6*k))
        if mode == "wq":
            place_tile(a, S, [s_ for j in range(3) for s_ in x_block(j, 0, sXo1)], (12, 14, 17, 19, 22, 24))
        S.emit(None)
        assert not a.lg
        if not OPT["nocheck"]: a.e("s_cbranch_vccnz L_slow")
    for t in range(15):
        if t == 12:
            a.e(f"s_cmp_eq_u32 s{sR}, 3"); a.e("s_cbranch_scc1 L_altwo")
            if T: a.e(f"s_cmp_eq_u32 s{sR}, s{sPre}"); a.e("s_cbranch_scc1 L_altwq")
        stage(t, "kv")
    stage15("kv")
    a.e("L_epi:")
    for r in rd_k(KF, 0, 0) + rd_k(VF, 0, 1): a.e(r)
    lg_epi = list(a.lg)
    for x in packed(epi_ops(0)[NPRE:]): a.e(x)
    if OPT["stamp"] and not OPT['qprof']: stamp_dyn(a, 5, sR, 4)
    a.e(f"s_add_u32 s{sCur}, s{sCur}, 131072")
    a.e(f"s_add_u32 s{sR}, s{sR}, 1")
    a.e(f"s_cmp_eq_u32 s{sR}, 3"); a.e("s_cbranch_scc1 L_sw2")
    a.e(f"s_cmp_eq_u32 s{sR}, 2"); a.e("s_cbranch_scc1 L_sw1")
    for r in range(3):
        a.e(f"L_sw{r}:")
        if r == 1 and T: a.e(f"s_cmp_eq_u32 s{sPre}, 1"); a.e("s_cbranch_scc1 L_q2b")
        if r < 2: code_touch(a, "L_rare", "L_altwo" if r == 0 or not T else "L_q2b", 10, 11)
        if r == 2:
            code_touch(a, "L_rare", "L_hot_end", 158, 159)
            l = newlabel("bp")
            a.e(f"s_cmp_lg_u32 s{sWv}, 0"); a.e(f"s_cbranch_scc1 {l}")
            a._emit("global_load_dword v156, v157, s[18:19] sc1")
            a.e(f"{l}:")
        for j in range(3):
            for p in range(4):
                for x in range(4): a.e(f"v_accvgpr_read_b32 v{Qf(j,p)+x}, a{QBANK[r+1] + 12*p + 4*j + x}")
        a.raw_wait("s_waitcnt lgkmcnt(0)"); a.lg = []
        qk0(bank_write(OBANK[r], lambda p, j: Or(2*p, j)))
        a.e("s_branch L_head2")
    a.e("L_rare:")
    for l0, l1, t in catch:
        a.e(f"{l0}:")
        emit_tile(a, unit_dma())
        for x in advance + recompute: a.e(x)
        a.e(f"s_sub_u32 s{sLag}, s{sLag}, 1")
        a.e(f"s_branch {l1}")
    for l0, l1, build, nxt, lg0, lg1 in skips:
        a.e(f"{l0}:")
        a.lg = list(lg0)
        build(False).emit(nxt)
        assert a.lg == lg1
        a.e(f"s_branch {l1}")
    if T:
        a.e("L_q2b:")
        for x in bank_write(OBANK[1], lambda p, j: Or(2*p, j)): a.e(x)
        a.e(f"s_sub_u32 s{sKn}, s{sKc}, 8192"); a.e(f"s_add_u32 s{sMin}, s{sCur}, {3*8192}")
        a.raw_wait("s_waitcnt vmcnt(0) lgkmcnt(0)")
        if L0 > 5: a.e("s_barrier")
        for n in range(5, L0): emit_tile(a, w_tile(wpos(n), n, 2))
        a.e("s_branch L_q2go")
        a.e(".p2align 6")
        a.e("L_altwq:")
        a.lg = []
        for t in range(12, 15): stage(t, "wq")
        stage15("wq")
        a.e("s_branch L_epi")
    a.e(".p2align 6")
    a.e("L_altwo:")
    a.lg = []
    for t in range(12, 15): stage(t, "wo")
    stage15("wo")
    sPr, sOut, sOo, sDst = sX, sW, sLast, 40
    LD = {0: 184, 1: 130}
    ACC, STG = 60, 160
    vSA, vSB, vLA, vLB, vOA, vFl, vFi, vPoll, vVal, TM, PK = 152, 153, 154, 158, 159, 1, 2, 6, 10, 120, 124
    def Ga(h, i, j): return (72, 208)[h] + 12 * i + 4 * j
    def spin_loop(l0, l1, cmp, reload):
        a.e(f"{l0}:")
        a.e(f"s_mov_b32 s{sT3}, 0")
        l2 = newlabel("spin")
        a.e(f"{l2}:")
        a.e(f"s_add_u32 s{sT3}, s{sT3}, 1")
        a.e(f"s_cmp_ge_u32 s{sT3}, {SPIN_MAX}")
        a.e(f"s_cbranch_scc1 {l1}")
        a.e(f"s_sleep {OPT['sleep']}")
        a._emit(reload)
        a.raw_wait("s_waitcnt vmcnt(0)")
        for x in cmp: a._emit(x)
        a._emit("s_nop 4")
        a.e(f"s_cbranch_vccnz {l2}")
        a.e(f"s_branch {l1}")
    spins = []
    def rd_g(dst, m, f):
        h, o = slot(m); i, c = divmod(f, 2)
        return [f"ds_read_b64_tr_b16 {R(off(dst, 2*e), 2)}, v{(vWAl, vWAh)[h]} offset:{o + c*512 + e*256 + i*32}" for e in range(2)]
    def gmf(n):
        h, t = divmod(n % 16, 8)
        o = []
        for i in range(4):
            for jn, j in enumerate(zj(i)):
                cs = (1, 0) if OPT["zz"] and (3 * i + jn) & 1 else (0, 1)
                for c in cs:
                    r, p = divmod(2 * t + c, 4)
                    o.append(mf(Ga(h, i, j), Greg(n & 1, 2*i + c), Qf(j, p) if r == 3 else ("a", OBANK[r] + 12 * p + 4 * j), None if t == 0 and c == cs[0] else Ga(h, i, j)))
        return o
    a.e("L_g:")
    a.lg = []
    if OPT["stamp"] and not OPT['qprof']: stamp(a, 8)
    if OPT["qprof"] == 4: stamp(a, 4)
    a.e(f"v_lshrrev_b32 v{TM}, 5, v0"); a.e(f"v_lshlrev_b32 v{TM}, 7, v{TM}")
    a.e(f"v_sub_u32 v{vWAh}, v{vVA}, v{TM}"); a.e(f"v_subrev_u32 v{vWAl}, {VB}, v{vWAh}")
    a.e(f"v_mov_b32 v{TM+1}, {XB}")
    vmw(a, 12)
    l, l0, l1 = newlabel("bc"), newlabel("bs"), newlabel("bok")
    a.e(f"s_cmp_lg_u32 s{sWv}, 0"); a.e(f"s_cbranch_scc1 {l}")
    bcmp = [f"v_and_b32 v{TM}, 0xff, v156", f"v_cmp_gt_u32 vcc, 8, v{TM}"]
    for x in bcmp: a._emit(x)
    a.e(f"s_lshl_b32 s{sTmp}, s{sPK}, 3")
    a._emit("s_nop 3")
    if not OPT["nosync"]: a.e(f"s_cbranch_vccnz {l0}")
    a.e(f"{l1}:")
    spins.append((l0, l1, bcmp, "global_load_dword v156, v157, s[18:19] sc1"))
    a.e(f"v_xor_b32 v156, s{sTmp}, v156")
    a._emit(f"ds_write_b32 v{TM+1}, v156")
    a.e(f"{l}:")
    a.e("s_barrier")
    for f in range(8):
        for r in rd_g(Greg(0, f), 0, f): a.e(r)
    epi = epi_ops(1)
    NC = 24 if OPT["pk"] else 16
    for x in packed(epi[:NC]): a.e(x)
    epi = epi[NC:]
    def srd_atoms(d, lo, o): return [[f"s_add_u32 s{d}, s{lo}, {o}", f"s_addc_u32 s{d+1}, s{lo+1}, 0"], [f"s_and_b32 s{d+1}, s{d+1}, 0xffff"], [f"s_mov_b32 s{d+3}, 0x20000"]]
    T1_, T2_ = f"s{sTmp}", f"s{sT2}"
    setup_ = [[f"s_mul_i32 {T1_}, s{sG}, {XG}"]] + srd_atoms(sP, 28, T1_) + [[f"s_mov_b32 s{sP+2}, {XG}"], [f"s_mul_i32 {T2_}, s{sU}, {XD}"], [f"s_add_u32 {T1_}, {T1_}, {T2_}"]]
    setup_ += srd_atoms(sPr, 28, T1_) + [[f"s_mov_b32 s{sPr+2}, 0"]]
    if OPT["ibg"]:
        setup_ += [[x] for x in (f"s_mul_i32 {T2_}, s{sWv}, 1536", f"s_add_u32 {T2_}, {T2_}, {T1_}", f"s_add_u32 {T2_}, {T2_}, {5*XP}",
            "v_min_u32 v3, 47, v0", "v_mul_u32_u24 v132, 43, v3", "v_lshrrev_b32 v132, 9, v132", "v_lshlrev_b32 v3, 7, v3",
            "v_mul_u32_u24 v132, 4608, v132", f"v_add3_u32 v3, v3, v132, {T2_}", f"s_add_u32 {T2_}, {T2_}, {XD - 6144 + 1408}",
            "v_add_u32 v157, 24576, v3", f"v_min_u32 v157, {T2_}, v157")]
    for i in range(7):
        setup_ += [[f"s_xor_b32 s{sDst+i}, s{sU}, {i ^ 7}"], [f"s_mul_i32 s{sDst+i}, s{sDst+i}, {XD}"], [f"s_add_u32 s{sDst+i}, s{sDst+i}, {i*6144}"]]
    setup_ += [[f"s_mul_i32 {T1_}, s{sB}, 491520"], [f"s_mul_i32 {T2_}, s{sBr}, 1280"], [f"s_add_u32 {T1_}, {T1_}, {T2_}"], [f"s_lshl_b32 {T2_}, s{sU}, 5"], [f"s_add_u32 {T1_}, {T1_}, {T2_}"]]
    setup_ += srd_atoms(sOut, 16, T1_) + [[f"s_mov_b32 s{sOut+2}, 0"]]
    setup_ += [[x] for x in (f"s_mul_i32 {T1_}, s{sWv}, 1536", f"v_lshl_add_u32 v{vSA}, v0, 4, {T1_}", f"s_add_u32 {T1_}, {T1_}, 1024", f"v_lshl_add_u32 v{vSB}, v0, 3, {T1_}",
        *((f"v_and_b32 v{TM}, 15, v0", f"v_mul_u32_u24 v{TM}, 2560, v{TM}", f"v_lshrrev_b32 v{TM+3}, 4, v0", f"v_lshl_add_u32 v{TM}, v{TM+3}, 3, v{TM}") if not OPT["bp"] else
          (f"v_lshrrev_b32 v{TM}, 2, v0", f"v_and_b32 v{TM+3}, 3, v0", f"v_lshl_add_u32 v11, v{TM+3}, 4, v{TM}", "v_lshlrev_b32 v11, 2, v11",
           f"v_mul_u32_u24 v{TM}, 2560, v{TM}", f"v_lshl_add_u32 v{TM}, v{TM+3}, 3, v{TM}")),
        f"s_mul_i32 {T1_}, s{sWv}, {48*2560}", f"v_add_u32 v{vOA}, {T1_}, v{TM}",
        f"s_lshl_b32 {T1_}, s{sWv}, 7", f"s_lshl_b32 {T2_}, s{sU}, 2", f"s_add_u32 {T2_}, {T2_}, {T1_}", f"v_lshl_add_u32 v{vFl}, v0, 9, {T2_}",
        f"s_lshl_b32 {T2_}, s{sU}, 9", f"s_add_u32 {T2_}, {T2_}, {T1_}", f"v_and_b32 v{TM}, 7, v0", f"v_lshl_add_u32 v{vFi}, v{TM}, 2, {T2_}",
        f"v_mov_b32 v{vVal}, 0", f"v_mov_b32 v{vPoll}, 0", f"s_mov_b32 s{sGc}, 0" if not OPT["emu3"] else f"s_lshl_b32 s{sGc}, s{sTyp}, 1", f"s_mov_b32 s{sOo}, -512" if not OPT["emu3"] else f"s_mov_b32 s{sOo}, 0", f"s_mov_b32 s{sS8}, 0xffff0000")]
    if OPT["mred"]:
        sel_ = [x for x in ("v_and_b32 v134, 1, v0", "v_lshlrev_b32 v134, 4, v134", "v_mov_b32 v135, 0x3f80", "v_lshlrev_b32 v134, v134, v135",
            "v_bfe_u32 v135, v0, 1, 3", "v_lshrrev_b32 v136, 4, v0", "v_lshlrev_b32 v136, 1, v136", "v_xor_b32 v135, v135, v136",
            "v_cmp_eq_u32 vcc, 0, v135", "v_mov_b32 v142, 0", "v_cndmask_b32 v136, 0, v134, vcc", "v_cmp_eq_u32 vcc, 1, v135", "v_mov_b32 v143, 0",
            "v_cndmask_b32 v137, 0, v134, vcc", "v_accvgpr_write_b32 a0, v136", "v_accvgpr_write_b32 a2, v136", "v_accvgpr_write_b32 a1, v137",
            "v_accvgpr_write_b32 a3, v137", "v_mov_b32 v148, 0", "v_mov_b32 v149, 0")]
    m = 9
    Ss = []
    for n in range(8):
        S = Sched(a, gmf(n)); Ss.append(S)
        rds = []
        for f in range(8): rds += rd_g(Greg((n + 1) & 1, f), n + 1, f)
        for r, p in zip(rds, RDPOS): S.v(p, r)
        for gp in ([(6, 11), (16, 19)] if n < 4 else [(6, 11)]): wo_at(S, m, gp); m += 1
        if n % 4 == 1: end_sync(a, S, {1: 12, 5: 16}[n], 0)
        else: S.h(22, lambda: a.wait(lg="all"))
        if n == 2: S.v(20, f"ds_read_b32 v{TM+2}, v{TM+1}")
        if OPT["ibg"] and n == OPT["ibn"]: S.v(16, lambda: a._emit(f"global_load_dword v132, v3, s[28:29]"))
        if OPT["ibg"] and n == min(7, OPT["ibn"] + 3): S.v(16, lambda: a._emit(f"global_load_dword v133, v157, s[28:29]"))
        if n == 7:
            S.v(19, f"v_readfirstlane_b32 s{sTmp}, v{TM+2}"); S.h(21, f"s_cmp_lg_u32 s{sTmp}, 0")
    assert m == 21
    n, k = 0, 0
    for atom in setup_:
        while True:
            S = Ss[n]
            ok = (not S.hold[k]) if atom[0].startswith("s_") else free_slots(S)[k] > 0
            if atom[0].startswith("s_") and len(atom) > 1 and free_slots(S)[k] == 0: ok = False
            if ok: break
            k += 1
            if k == 24: n += 1; k = 0
        for x in atom: (S.h if x.startswith("s_") else S.v)(k, x)
        if not atom[0].startswith("s_") or True:
            k += 1
            if k == 24: n += 1; k = 0
    assert (n, k) < (7, 18), (n, k)
    for n in range(7):
        epi = fill_ops(Ss[n], epi)
        if n == 5: assert len(epi) <= 72 - 8, len(epi)
    assert not epi, len(epi)
    if OPT["mred"]: assert not fill_ops(Ss[7], sel_)
    for n in range(8):
        a.c(f"G first half, sub-step {n}")
        Ss[n].emit(gmf(n + 1)[0])
    a.e("s_branch L_gx" if OPT["xmode"] == 1 else "s_cbranch_scc1 L_gx")
    NP = {0: 4, 1: 3}
    def cvs(h): return [f"v_cvt_pk_bf16_f32 v{STG + 6*i + 2*j + x}, v{Ga(h,i,j)+2*x}, v{Ga(h,i,j)+2*x+1}" for i in range(NP[h]) for j in range(3) for x in range(2)]
    def rops(h, k):
        o = []
        for r in range(6):
            s = LD[h] + 6*k + r; t = TM + 2 * (r & 1)
            src = Ga(1, 3, r >> 1) + 2 * (r & 1) if (h, k) == (0, 0) else ACC + 2*r
            o += [f"v_lshlrev_b32 v{t}, 16, v{s}", f"v_and_b32 v{t+1}, s{sS8}, v{s}",
                  f"v_add_f32 v{ACC+2*r}, v{src}, v{t}", f"v_add_f32 v{ACC+2*r+1}, v{src+1}, v{t+1}"]
        return o
    def ldreg(h, k):
        if not OPT["mred"]: return LD[h] + 6*k, LD[h] + 6*k + 4
        if (h, k) == (1, 2): return 144, 150
        b_ = LD[h] + 12 * (k >> 1)
        return (b_ + 6, b_) if k & 1 else (b_ + 2, b_ + 10)
    def rmf(h, pr):
        q_ = (142, 146, 148) if (h, pr) == (1, 1) else [LD[h] + 12*pr + 4*j for j in range(3)]
        return [mf(ACC + 4*j, ("a", 0), q_[j], Ga(1, 3, j) if (h, pr) == (0, 0) else ACC + 4*j) for j in range(3)]
    rcv = [f"v_cvt_pk_bf16_f32 v{PK+r}, v{ACC+2*r}, v{ACC+2*r+1}" for r in range(6)]
    bps = [f"ds_bpermute_b32 v{PK+r}, v11, v{PK+r}" for r in range(6)] if OPT["bp"] else []
    def rst(j): return ([f"s_add_u32 s{sOff2}, s{sOo}, {j*40960}"], f"buffer_store_dwordx2 {vr(PK+2*j,2)}, v{vOA}, {sr(sOut,4)}, s{sOff2} offen{['', ' sc1', ' nt', ' sc0 sc1'][OPT['opol']]}")
    chk_cmp = [f"v_cmp_gt_u32 vcc, v{vVal}, v{vPoll}"]
    poll = f"buffer_load_dword v{vPoll}, v{vFi}, {sr(sF,4)}, 0 offen sc1"

    def g_phase(fast):
        pol = ("", " nt", " sc0")[OPT["xs"]] if fast else " sc1"
        la, lb = (vSA, vSB) if fast else (vLA, vLB)
        def xst(h, i):
            o4, o2 = (2, 0) if OPT["mred"] and i & 1 else (0, 4)
            return [([], f"buffer_store_dwordx4 {vr(STG+6*i+o4,4)}, v{vSA}, {sr(sP,4)}, s{sDst+4*h+i} offen{pol}"),
                    ([], f"buffer_store_dwordx2 {vr(STG+6*i+o2,2)}, v{vSB}, {sr(sP,4)}, s{sDst+4*h+i} offen{pol}")]
        def xld(h, k): return [([f"s_mov_b32 s{sOff2}, {(4*h+k)*6144}"], f"buffer_load_dwordx4 {vr(ldreg(h,k)[0],4)}, v{la}, {sr(sPr,4)}, s{sOff2} offen sc1"),
                               ([], f"buffer_load_dwordx2 {vr(ldreg(h,k)[1],2)}, v{lb}, {sr(sPr,4)}, s{sOff2} offen sc1")]
        flag = f"buffer_store_dword v{vVal}, v{vFl}, {sr(sF,4)}, 0 offen{pol}"
        def check():
            l0, l1 = newlabel("sp"), newlabel("ok")
            if not OPT["nosync"]: a.e(f"s_cbranch_vccnz {l0}")
            a.e(f"{l1}:")
            spins.append((l0, l1, chk_cmp, poll))
        if fast: a.e(f"v_add_u32 v{vSA}, {5*XP}, v{vSA}"); a.e(f"v_add_u32 v{vSB}, {5*XP}, v{vSB}")
        else: a.e(f"v_subrev_u32 v{vLA}, {XP}, v{vSA}"); a.e(f"v_subrev_u32 v{vLB}, {XP}, v{vSB}")
        a.e(f"s_branch L_gmid{int(fast)}")
        late = []
        def body():
            del late[:]
            Ss = [Sched(a, gmf(n) + (rmf(n // 8, 0) + rmf(n // 8, 1) if OPT['mred'] and n % 8 == 6 else [])) for n in range(16)]
            cap = [[2] * 24 for _ in range(16)]
            ops = []
            def vmem(n, g_, steps, kind):
                if isinstance(kind, tuple) and kind[0] == "T": place_tile(a, Ss[n], steps, g_)
                else:
                    for (pre, d), x in zip(steps, g_):
                        for y in pre: Ss[n].h(x, y)
                        Ss[n].v(x, lambda d=d: a._emit(d))
                for x in g_: cap[n][x] = 0; ops.append((n, x, kind))
            tpos = {0: [(6, 11)], 1: [(6, 11)], 4: [(6, 11), (16, 19)], 5: [(11, 16), (19, 22)], 6: [(6, 11)], 7: [(11, 16)]}
            m = 13
            for n in range(16):
                h, t = divmod(n, 8); S = Ss[n]
                rds = []
                for f in range(8): rds += rd_g(Greg((n + 1) & 1, f), n + 1, f)
                for r, p in zip(rds, RDPOS): S.v(p, r); cap[n][p] -= 1
                cap[n][23] = 0 if n % 4 == 1 else 1; cap[n][20] = min(cap[n][20], 1); cap[n][21] = min(cap[n][21], 1)
                for gp in tpos.get(t, []):
                    st, post = wo_tile(m)
                    if m == 16:
                        S.h(gp[0] - 4, f"s_cmp_eq_u32 s{sGc}, 4"); S.h(gp[0] - 3, f"s_cselect_b32 s{sWo+2}, 0, s{sWo+2}")
                    vmem(n, gp, st, ("T", m))
                    for x in post: S.h(gp[1], x)
                    m += 1
                if t == 2:
                    xs = [s_ for i in range(NP[1-h]) for s_ in xst(1 - h, i)] + [s_ for k in range(NP[h]) for s_ in xld(h, k)]
                    if OPT["xord"]:
                        st_ = xs[:2*NP[1-h]]; ld_ = xs[2*NP[1-h]:]
                        pat = {6: "SLSLLSL" * 2, 8: "SSLSLSL" + "SSLSLSL"}[len(st_)] if OPT["xord"] == 1 else {6: "SSLLSLL" * 2, 8: "SSSLSLL" * 2}[len(st_)]
                        xs = [(st_ if c_ == "S" else ld_).pop(0) for c_ in pat]
                    pos = [(n + d, g_) for d in (0, 1) for g_ in (6, 11, 16, 19, 20, 21, 22)]
                    for s_, (n2, g_) in zip(xs, pos): vmem(n2, (g_,), [s_], ("X", h))
                if t == 5: vmem(n, (6,), [([], flag)], "F"); S.v(4, f"v_add_u32 v{vVal}, 1, v{vVal}"); cap[n][4] -= 1
                if t == 7: vmem(n, (6,), [([], poll)], ("P", h))
            assert m == 29
            if OPT["opos"] == 0: vmem(4, (20, 21, 22), [rst(j) for j in range(3)], "O")
            else:
                for j, (n2, g_) in enumerate(((6, 16), (8, 16), (14, 16)) if OPT["opos"] == 1 else ((6, 16), (7, 21), (8, 19))): vmem(n2, (g_,), [rst(j)], "O")
            for x, (n2, g_) in zip(bps, ((2, 23), (3, 23), (4, 22), (4, 23), (6, 22), (6, 23))): Ss[n2].v(g_, x); cap[n2][g_] = max(0, cap[n2][g_] - 1)
            ops.sort(key=lambda x: (x[0], x[1]))
            ops2 = ops + [(n + 16, g_, k) for n, g_, k in ops]
            def younger(pt, n, g_): return len([o for o in ops2 if pt < (o[0], o[1]) < (n, g_)])
            for h in range(2):
                pt = max((o[0], o[1]) for o in ops if o[2] == ("X", h))
                Ss[8*h + 5].h(2, lambda c=younger(pt, 8*h + 5, 2): vmw(a, c))
                pt = [(o[0], o[1]) for o in ops if o[2] == ("P", h)][0]
                nc = 8*h + 9
                Ss[nc % 16].h(16, lambda c=younger(pt, nc, 16): vmw(a, c))
                Ss[nc % 16].v(16, lambda: a._emit(chk_cmp[0])); cap[nc % 16][16] -= 1
                Ss[nc % 16].h(20, check)
            def fill(lst, n, g_, rec=None):
                for op in lst:
                    while cap[n % 16][g_] <= 0:
                        g_ += 1
                        if g_ == 24: n += 1; g_ = 0
                    if not OPT["norv"]: Ss[n % 16].v(g_, lambda op=op: a._emit(op))
                    cap[n % 16][g_] -= 1
                    if rec is not None and n >= 16: rec.append(op)
                return n, g_
            e = fill(cvs(1), 0, 1); assert e < (2, 5), e
            e = fill(cvs(0), 8, 1); assert e < (10, 5), e
            if OPT["mred"]: fill(rcv, 15, 7)
            else:
                e = fill(rops(0, 0), 5, 2); assert e < (8, 10), e
                e = fill([x for k in range(1, 4) for x in rops(0, k)], *e); assert e < (13, 2), e
                e = fill([x for k in range(3) for x in rops(1, k)] + rcv, 13, 2, late); assert e < (18, 22), e
            S = Ss[7]
            if not fast: S.v(19, f"v_add_u32 v{vSA}, {XP}, v{vSA}"); S.v(20, f"v_add_u32 v{vSB}, {XP}, v{vSB}")
            S = Ss[15]
            S.h(0, f"s_cmp_ge_u32 s{sGc}, 1")
            S.h(1, f"s_cselect_b32 s{sOut+2}, {191*2560 + 1024 + 32}, 0")
            S.h(2, f"s_add_u32 s{sOo}, s{sOo}, 256")
            S.h(3, f"s_mov_b32 s{sPr+2}, {5*XP + XD}")
            if not fast:
                S.v(19, f"v_add_u32 v{vLA}, {XP}, v{vLA}"); S.v(20, f"v_add_u32 v{vLB}, {XP}, v{vLB}")
            S.h(18, f"s_add_u32 s{sGc}, s{sGc}, 1")
            S.h(19, f"s_cmp_lt_u32 s{sGc}, 5")
            for n in range(16):
                a.c(f"G sub-step {n}")
                if n == 8:
                    assert not a.lg
                    a.e(f"L_gmid{int(fast)}:")
                if n % 4 == 1:
                    tid = n + 5 + 16
                    pt = max((o[0], o[1]) for o in ops2 if o[2] == ("T", tid if tid < 29 else tid - 16) and (o[0] < 16) == (tid < 29))
                    cnt = len([o for o in ops2 if pt < (o[0], o[1]) < (n + 16, 22) and (o[0] >= 16 + 8 * (n // 8) or (isinstance(o[2], tuple) and o[2][0] == "T"))])
                    end_sync(a, Ss[n], min(cnt, 63), 0)
                else:
                    def w():
                        k = min(len(a.lg), OPT['gkeep']); a.raw_wait(f"s_waitcnt lgkmcnt({k})"); a.lg = a.lg[len(a.lg) - k:] if k else []
                    Ss[n].h(22, w)
                Ss[n].emit(gmf(n + 1)[0])
        lab = "L_gl_fast" if fast else "L_gl_far"
        if OPT["qprof"] == 2 and fast: stamp(a, 5); stamp(a, 6, False)
        a.e(".p2align 6")
        a.e(f"{lab}:")
        if OPT["qprof"] == 4: stamp_dyn(a, 4, sGc, 5)
        a.lg = []
        mark = len(a.ins); nops0 = a.nops; ns = len(spins)
        body(); lg_end = list(a.lg)
        del a.ins[mark:]; a.nops = nops0; del spins[ns:]
        body(); assert a.lg == lg_end
        a.e(f"s_cbranch_scc1 {lab}")
        if OPT["qprof"] == 2 and fast: stamp(a, 7); stamp(a, 8, False)
        if OPT["qprof"] == 4: stamp(a, 3)
        a.c("tail")
        for x in cvs(1): a.e(x)
        stamp(a, 2)
        vmw(a, 2)
        a._emit(chk_cmp[0]); a._emit("s_nop 4"); check()
        for i in range(3): emit_tile(a, xst(1, i))
        def ntv(st): return [(p_, d_ + " nt") if OPT["tl"] & 1 else (p_, d_) for p_, d_ in st]
        for k in range(4): emit_tile(a, ntv(xld(0, k)))
        for op in late + bps: a._emit(op)
        vmw(a, 8)
        a.e(f"v_add_u32 v{vVal}, 1, v{vVal}")
        a._emit(flag)
        early_out = not OPT["tord"]
        if early_out:
            a.raw_wait("s_waitcnt lgkmcnt(0)"); emit_tile(a, [rst(j) for j in range(3)])
        for k in range(4):
            vmw(a, 2 * (3 - k) + (4 if early_out else 1))
            for op in (rops(0, k) if not OPT["mred"] else rmf(0, k >> 1) if k & 1 else []): a._emit(op)
            if k == (3 if OPT["mred"] else 2): a._emit(poll)
        if fast and OPT["cln"] & 1: a._emit(f"global_store_dword v3, v{vVal}, s[28:29] sc1")
        vmw(a, 1 if fast and OPT["cln"] & 1 else 0)
        a._emit(chk_cmp[0]); a._emit("s_nop 4"); check()
        for k in range(3): emit_tile(a, ntv(xld(1, k)))
        if not early_out:
            a.raw_wait("s_waitcnt lgkmcnt(0)"); emit_tile(a, [rst(j) for j in range(3)])
        a.e(f"s_mov_b32 s{sOo}, 1024")
        for k in range(3):
            vmw(a, 2 * (2 - k) + (0 if early_out else 3))
            for op in (rops(1, k) if not OPT["mred"] else rmf(1, k - 1) if k else []): a._emit(op)
        if fast and OPT["cln"] & 4: a._emit(f"global_store_dword v3, v{vVal}, s[28:29] sc1")
        if fast and OPT["cln"] & 2: a._emit(f"global_store_dword v157, v{vVal}, s[28:29] sc1")
        for op in rcv + bps: a._emit(op)
        a.raw_wait("s_waitcnt lgkmcnt(0)")
        emit_tile(a, [rst(j) for j in range(3)])
    g_phase(True)
    a.e("L_fin:")
    stamp(a, 9, False); stamp(a, 10)
    if OPT["leak"] >= 0:
        k = OPT["leak"]
        if k == 0: a.e("s_mov_b32 s79, 0")
        elif k == 9: a.e("s_sub_u32 s79, s98, s82"); a.e("s_lshr_b32 s79, s79, 4")
        else: a.e(f"s_sub_u32 s79, s{80+2*k}, s80")
        a.e("s_add_u32 s79, s79, 15000")
        if OPT["leakwg"] == 1: a.e("s_cmp_lt_u32 s2, 8"); a.e("s_cselect_b32 s79, s79, 0")
        if OPT["leakwg"] == 2: a.e("s_cmp_ge_u32 s2, 248"); a.e("s_cselect_b32 s79, s79, 0")
        if OPT["leakwg"] in (4, 5): a.e("s_and_b32 s76, s2, 1"); a.e("s_cselect_b32 s79, s79, 0" if OPT["leakwg"] == 5 else "s_cselect_b32 s79, 0, s79")
        if OPT["leakwg"] == 3: a.e("s_cmp_eq_u32 s2, 0"); a.e("s_cselect_b32 s79, s79, 0")
        a.e("L_leak:")
        a._emit("s_memrealtime s[76:77]"); a.raw_wait("s_waitcnt lgkmcnt(0)")
        a.e("s_sub_u32 s76, s76, s80"); a.e("s_cmp_lt_u32 s76, s79"); a.e("s_cbranch_scc1 L_leak")
    stamp_store(a, "L_end", 0)
    dbg_store(a)
    a.e("L_end:")
    a.e("s_endpgm")
    nsp = len(spins)
    for s_ in list(spins): spin_loop(*s_)
    a.e("L_hot_end:")
    a.e(".p2align 6")
    a.e("L_gx:")
    g_phase(False)
    a.e("s_branch L_fin")
    for s_ in list(spins[nsp:]): spin_loop(*s_)
    a.reset_counters()
    a.e("L_slow:")
    a.raw_wait("s_waitcnt vmcnt(0) lgkmcnt(0)")
    vKo, vVo, t0, t1 = 10, 11, P_ + 12, P_ + 13
    a.e("s_nop 7")
    a.e(f"v_and_b32 v{t0}, 7, v0"); a.e(f"v_lshlrev_b32 v{t0}, 10, v{t0}")
    a.e(f"v_bfe_u32 v{t1}, v0, 3, 1"); a.e(f"v_lshl_add_u32 v{t0}, v{t1}, 8, v{t0}")
    a.e(f"v_lshrrev_b32 v{t1}, 4, v0"); a.e(f"v_lshl_add_u32 v{vKo}, v{t1}, 4, v{t0}")
    a.e(f"v_bfe_u32 v{t0}, v0, 4, 1"); a.e(f"v_lshlrev_b32 v{t0}, 12, v{t0}")
    a.e(f"v_lshrrev_b32 v{t1}, 5, v0"); a.e(f"v_lshl_add_u32 v{t0}, v{t1}, 8, v{t0}")
    a.e(f"v_and_b32 v{t1}, 15, v0"); a.e(f"v_lshl_add_u32 v{vVo}, v{t1}, 1, v{t0}")
    for j in range(3): a.e(f"v_mov_b32 v{vT+j}, 0xff800000")
    def slow_qk(cinit):
        for u, kf in ((0, KF), (1, VF)):
            for ks in range(4): a.e(f"buffer_load_dwordx4 {vr(kf + 4*ks,4)}, v{vKo}, {sr(sK,4)}, s{sT2} offen offset:{u*512 + ks*64}")
        for u, kf in ((0, KF), (1, VF)):
            for j in range(3):
                for ks in range(4):
                    a.e(mf(Sr(u, j), kf + 4*ks, Qf(j, ks), (Nm(j) if cinit else None) if ks == 0 else Sr(u, j)))
    a.e(f"s_and_b32 s{sT2}, s{sRot}, 0x60000"); a.e(f"s_xor_b32 s{sT2}, s{sT2}, s{sCur}")
    a.e(f"s_add_u32 s{sT3}, s{sT2}, 131072")
    a.e("L_slow_p1:")
    slow_qk(False)
    for j in range(3):
        for u in range(2):
            s = Sr(u, j)
            a.e(f"v_max3_f32 v{vT+j}, v{vT+j}, v{s}, v{s+1}")
            a.e(f"v_max3_f32 v{vT+j}, v{vT+j}, v{s+2}, v{s+3}")
    a.e(f"s_add_u32 s{sT2}, s{sT2}, 8192")
    a.e(f"s_cmp_lt_u32 s{sT2}, s{sT3}")
    a.e("s_cbranch_scc1 L_slow_p1")
    rowred(a, "v_max_f32", [vT, vT+1, vT+2], [Nm(j) for j in range(3)])
    for j in range(3):
        for r in range(4): a.e(f"v_sub_f32 v{Nm(j)+r}, 0, v{vT+j}")
    for r in range(96): a.e(f"v_mov_b32 v{O_+r}, 0")
    for r in range(12): a.e(f"v_accvgpr_write_b32 a{192+r}, 0")
    a.e(f"s_sub_u32 s{sT2}, s{sT3}, 131072")
    a.e("L_slow_p2:")
    slow_qk(True)
    for u in range(2):
        for k in range(12): a.e(ex(u, k))
    for u in range(2):
        for c in range(6): a.e(cv(u, 0, c))
    for half, fr in ((0, KF), (1, VF)):
        for hi in range(2):
            for i in range(4):
                for e in range(2):
                    for rp in range(2):
                        r = 2*rp + hi
                        a.e(f"buffer_load_ushort v{(S_ if hi else fr) + 4*i + 2*e + rp}, v{vVo}, {sr(sV,4)}, s{sT2} offen offset:{r*1024 + e*512 + (4*half+i)*32}")
        a.wait(vm="all")
        for x in range(16): a.e(f"v_lshl_or_b32 v{fr+x}, v{S_+x}, 16, v{fr+x}")
    for m in sm(2): a.e(m)
    for half, fr in ((0, KF), (1, VF)):
        for m in pv(2, half, fr): a.e(m)
    a.e(f"s_add_u32 s{sT2}, s{sT2}, 8192")
    a.e(f"s_cmp_lt_u32 s{sT2}, s{sT3}")
    a.e("s_nop 7")
    a.e("s_cbranch_scc1 L_slow_p2")
    for j in range(3): a.e(f"v_accvgpr_read_b32 v{vT+j}, a{La(j)[1]}")
    for j in range(3): a.e(f"v_rcp_f32 v{vT+j}, v{vT+j}")
    a.e(f"s_cmp_eq_u32 s{sR}, 3"); a.e("s_cbranch_scc1 L_g")
    for x in epi_ops(0)[:NPRE]: a.e(x)
    a.e("s_branch L_epi")
    return a

HDR = f"""; Fused attention blocks A and B in one launch (generated by my own scheduling script, all instruction placement by hand-written rules).
; One workgroup per CU (4 waves x 512 registers, 48 query rows per wave) owns 4 heads of one (branch, batch):
;   Q projection -> softmax attention -> output-projection partial (K = 512); the 8 workgroups of a batch then
; kernarg: 0 A_x, 8 A_k, 16 A_v, 24 A_wq, 32 A_wo, 40 B_x, 48 B_k, 56 B_v, 64 B_wq, 72 B_wo, 80 out, 88 debug, 96 ws
; @launch grid=(256,1,1) block=(256,1,1) lds={LDS}
.amdgcn_target "amdgcn-amd-amdhsa--gfx950"
.text
"""
def kern(name, a):
    return f".globl {name}\n.p2align 8\n.type {name},@function\n{name}:\n" + a.text()
def desc(name, nv, acc, ns):
    return f""".p2align 6
.amdhsa_kernel {name}
  .amdhsa_next_free_vgpr {nv}
  .amdhsa_next_free_sgpr {ns}
  .amdhsa_accum_offset {acc}
  .amdhsa_group_segment_fixed_size 0
  .amdhsa_kernarg_size 104
  .amdhsa_user_sgpr_count 2
  .amdhsa_user_sgpr_kernarg_segment_ptr 1
  .amdhsa_system_sgpr_workgroup_id_x 1
  .amdhsa_float_denorm_mode_32 3
.end_amdhsa_kernel
"""
if __name__ == "__main__":
    a = main_kernel()
    if OPT["pro2"]:
        ix = lambda t: [k for k, i in enumerate(a.ins) if i.text == t][0]
        i0, i1, i2 = ix("L_p0:"), ix("L_p1:"), ix("L_hot_end:") + 1
        a.ins = a.ins[:i0] + a.ins[i1:i2] + [Ins(".p2align 6")] + a.ins[i0:i1] + [Ins("L_p0end:")] + a.ins[i2:]
    if OPT["nodma"] & 1: a.ins = [i for i in a.ins if not (i.kind == "dma" and " v1, " in i.text)]
    if OPT["nodma"] & 2: a.ins = [i for i in a.ins if not (i.kind == "dma" and " v1, " not in i.text)]
    if OPT["nodma"] & 4: a.ins = [i for i in a.ins if not (i.kind == "store" and ("v152," in i.text or "v153," in i.text))]
    if OPT["nodma"] & 8: a.ins = [i for i in a.ins if not (i.kind == "store" and "v159," in i.text)]
    if OPT["nox2"]: a.ins = [i for i in a.ins if not (i.kind == "vmem" and ("v121," in i.text))]
    if OPT["noload"]: a.ins = [i for i in a.ins if not (i.kind == "vmem" and ("v152," in i.text or "v153," in i.text))]
    if OPT["x1"]:
        out = []; on = False; cnt = 0
        for i in a.ins:
            if i.text in ("L_epi:", "L_q2b:") or (OPT["x1"] & 2 and i.text in ("; Q conversion", "; Q2 conversion")): on = True
            if i.op in ("s_barrier",) or i.kind == "mfma" or i.text == "L_enter:": on = False
            out.append(i)
            if on and i.kind == "valu":
                cnt += 1
                if cnt % 2 == 0: out.append(Ins(f"v_mfma_f32_16x16x32_bf16 a[{240+4*(cnt//2%4)}:{243+4*(cnt//2%4)}], a[144:147], a[{96+4*(cnt//2%8)}:{99+4*(cnt//2%8)}], 0"))
        a.ins = out
    if OPT["x2"]:
        out = []; on = False
        for i in a.ins:
            if i.text == "L_q2:": on = True
            if i.text == "L_q2l:": on = False
            if on and i.kind == "mfma": out.append(Ins(f"s_nop {OPT['x2']}"))
            out.append(i)
        a.ins = out
    if OPT["abl"]:
        cnt = [0]
        def drop2(i):
            if OPT["abl"] & 1 and i.op == "ds_read_b64_tr_b16" and (", v4 " in i.text or ", v5 " in i.text):
                cnt[0] += 1; return (cnt[0] // 2) % 2 == 1
            if OPT["abl"] & 2 and i.kind == "lds" and (", v2 " in i.text or ", v3 " in i.text):
                cnt[0] += 1; return (cnt[0] // 2) % 2 == 1
            if OPT["abl"] & 4 and i.kind == "mfma" and "a[204:207], v[" in i.text and i.text.split()[1].startswith(("a[192", "a[196", "a[200")): return True
            if OPT["abl"] & 8 and i.op in ("v_lshlrev_b32", "v_and_b32", "v_add_f32") and ("v120" in i.text or "v121" in i.text or "v122" in i.text or "v123" in i.text) and "v0" not in i.text.replace("v0,", "v0 ").split(): return True
            return False
        a.ins = [i for i in a.ins if not drop2(i)]
    if OPT["gpol"] or OPT["kpol"]:
        out = []
        for i in a.ins:
            if i.kind == "dma" and " nt " not in i.text and OPT["gpol"]: i = Ins(i.text.replace(" lds", [" ", " sc1", " sc0", " nt", " sc0 sc1"][OPT["gpol"]] + " lds"))
            elif i.kind == "dma" and " nt " in i.text and OPT["kpol"]: i = Ins(i.text.replace(" nt lds", [" ", " sc1 nt", " sc0 nt", " sc0 sc1 nt"][OPT["kpol"]] + " lds"))
            out.append(i)
        a.ins = out
    if OPT["xb"]:
        out = []; on = False; c = 0
        for i in a.ins:
            if i.text.startswith("; Q") and "sub-step" in i.text: on = True
            if "conversion" in i.text: on = False
            if on and i.op == "s_barrier":
                c += 1
                if c % OPT["xb"]: continue
            out.append(i)
        a.ins = out
    if OPT["xa"]:
        i0 = [k for k, i in enumerate(a.ins) if i.text == "; stage 0 kv"][0]; i1 = [k for k, i in enumerate(a.ins) if i.text == "; stage 15 kv"][0]
        def drop(i):
            if OPT["xa"] & 1 and i.op == "s_cbranch_vccnz": return True
            if OPT["xa"] & 2 and i.op in ("s_mul_i32", "s_bfe_u32", "s_xor_b32", "s_getreg_b32", "s_cselect_b32", "s_cselect_b64", "s_sub_u32", "s_cmp_gt_u32", "s_cmp_gt_i32", "s_cmp_le_u32"): return True
            if OPT["xa"] & 4 and i.op == "s_barrier": return True
            if OPT["xa"] & 8 and i.op == "s_waitcnt" and "lgkm" in i.text: return True
            if OPT["xa"] & 16 and i.op == "s_mul_i32": return True
            return False
        a.ins = a.ins[:i0] + [i for i in a.ins[i0:i1] if not drop(i)] + a.ins[i1:]
    if OPT["strip"] == 2:
        i0 = [k for k, i in enumerate(a.ins) if i.text == "L_head:"][0]; i1 = [k for k, i in enumerate(a.ins) if i.text == "L_epi:"][0]
        a.ins = a.ins[:i0] + [Ins("s_nop 4") if i.kind == "mfma" else i for i in a.ins[i0:i1] if i.kind not in ("lds", "trans", "valu")] + a.ins[i1:]
    if OPT["strip"] == 1:
        i0 = [k for k, i in enumerate(a.ins) if i.text == "L_head:"][0]; i1 = [k for k, i in enumerate(a.ins) if i.text == "L_epi:"][0]
        a.ins = a.ins[:i0] + [i for i in a.ins[i0:i1] if i.kind not in ("mfma", "lds", "trans", "valu")] + a.ins[i1:]
    ns = 102 if OPT["stamp"] else NSGPR
    open(sys.argv[1], "w").write(HDR + kern(NAME + "_kernel", a) + '.section .rodata,"a"\n' + desc(NAME + "_kernel", 512, 256, ns))
    print("instrs", len(a.ins), "nops", a.nops)
```

```python
import sys, math, struct, re
from asmlib import *

NAME = "concat_heads__mha_block_cached__gqa_block_cached__near_ridge"
def f32(x): return "0x%08x" % struct.unpack("<I", struct.pack("<f", x))[0]
OPT = dict(stamp=0, nodma=0, nocheck=0, touch=0, forceslow=0, map84=0, first=6, rot=3, strip=0, cyc=0, typ=2, track=1, nosync=0, sleep=1, opos=1, lag=4, noack=0, noload=0, stpol=1, nolw=0, krot=1, hrot=4, emu3=0, ramp=1, qb2=1, hx=1, sh3=0, gpol=0, kpol=0, pk=1, cln=0, xb=0, mred=1, xord=1, vmw=8, pro2=1, bp=1, tord=1, abl=0, zz=1, x1=0, x2=0, opol=2, tl=0, xs=0, kvconv=0, sh1=1, sh2=1, sh1t=3, lateq=0, gate=1, ibg=1, ibn=4, xa=0, stag=0, fskip=0, cufrom=4, custep=4, cvo=1, woq=1, ibnt=0, ibt=14, ct2=1, inbox0=0, sparse1=1, noinbox=1, cthead=3, help=3, latekv=1, wot=0, lmax=3, thr=5, thr2=2, dyn=1, xmode=0, gkeep=0, leak=-1, leakwg=0, st0=0, norv=0, now0=0, gcap=0, qprof=0, la=7, ldpol=1, lmode=0, ldfix=0, nox2=0, wnt=0, xnt=0, t0x=0, t0w=0, ctouch=3, dbgout=0)
for a_ in sys.argv[2:]:
    k_, v_ = a_.split("="); assert k_ in OPT, k_; OPT[k_] = int(v_)

def R(x, n):
    t, i = x if isinstance(x, tuple) else ("v", x)
    return f"{t}{i}" if n == 1 else f"{t}[{i}:{i+n-1}]"
def off(x, d): return (x[0], x[1] + d) if isinstance(x, tuple) else x + d
def mf(d, a, b, c):
    return f"v_mfma_f32_16x16x32_bf16 {R(d,4)}, {R(a,4)}, {R(b,4)}, {'0' if c is None else R(c,4)}"

def zj(i): return (2, 1, 0) if (i & 1) and OPT["zz"] else (0, 1, 2)
def zk(j): return (3, 2, 1, 0) if (j & 1) and OPT["zz"] else (0, 1, 2, 3)
TILE = 8448
VB = 8 * TILE
XB = 16 * TILE
LDS = XB + 24576
NSLOT = 8
CH = NSLOT * 1024
PART = 240 * CH
STAMP_AT = 128 << 20
FLG = 120 << 20
XD = 7 * 6144
XP = 8 * XD
XG = 6 * XP
SPIN_MAX = 2000000
def slot(m):
    m %= 16
    return (m & 1), (m >> 1) * TILE

vKV, vKA, vVA, vWAl, vWAh, vW = 1, 2, 3, 4, 5, 6
vT = 7
QF, NM, S_, P_, KF, VF, O_ = 12, 60, 72, 96, 120, 136, 160
vX0, vX1, vXA0, vXA1 = 156, 157, 158, 159
vTo, vD, vPt, vWo = 152, 153, 154, 155
def Qf(j, ks): return QF + 16 * j + 4 * ks
def Nm(j): return NM + 4 * j
def Sr(u, j): return S_ + 12 * u + 4 * j
def Pr(buf, j): return P_ + 12 * buf + 4 * j
def Or(i, j): return O_ + 12 * i + 4 * j
def Wreg(buf, i): return 12 + 32 * buf + 4 * i
def Xreg(buf, j, s): return 76 + 24 * buf + 8 * j + 4 * s
def Qacc(pos, i, j):
    k = 12 * i + 4 * j
    if pos == 0: return ("a", k)
    if pos == 1: return ("a", 96 + k)
    if pos == 2: return ("a", 192 + k) if k < 64 else 124 + (k - 64)
    return O_ + k
QBANK = {3: 0, 2: 48, 1: 96}
OBANK = {0: 144, 1: 96, 2: 48, 3: 0}
def La(j): return ("a", 192 + 4 * j)
ONES = ("a", 204)
def Greg(buf, i): return ("a", 192 + 32 * buf + 4 * i)
sX, sW, sK, sV, sWo, sP = 32, 36, 40, 44, 48, 52
sWv, sKVL, sWL, sXL, sOff, sOff2, sTmp, sR, sCur, sT2, sT3 = 60, 61, 62, 63, 64, 65, 66, 67, 68, 69, 70
sB, sU, sBr, sG, sXo, sPo = 71, 72, 73, 74, 75, 76
sCX, sNX, sLast, sS8, sWoB, sTask, sTyp = 56, 57, 58, 59, 77, 30, 31
sWq, sGc = 26, 27
sWq1, sJ, sRot, sPM, sPK = 20, 21, 22, 23, 24
sF, sD0, sD1 = 8, 12, 13
sJh, sXo1, sPre = 25, 77, 30
sKc, sLag = 57, 76
sThN = 62
sWL = sKVL
sThr = 56
sBL, sMin, sKn, sMv, sMk, sKVv, sC1 = 57, 76, 23, 58, 59, 3, 25
sH = [4, 5, 6, 7]
NSGPR = 80

def stamp(a, k, real=True):
    if not OPT["stamp"]: return
    lg = list(a.lg)
    a.raw_wait("s_waitcnt lgkmcnt(0)")
    if OPT["cyc"] and 2 <= k <= 8: real = False
    a._emit(f"{'s_memrealtime' if real else 's_memtime'} s[{80+2*k}:{81+2*k}]")
    a.raw_wait("s_waitcnt lgkmcnt(0)")
def stamp_dyn(a, base, sidx, n):
    if not OPT["stamp"]: return
    a.raw_wait("s_waitcnt lgkmcnt(0)")
    a._emit("s_memtime s[78:79]" if OPT["cyc"] else "s_memrealtime s[78:79]")
    a.raw_wait("s_waitcnt lgkmcnt(0)")
    for q in range(n):
        a.e(f"s_cmp_eq_u32 s{sidx}, {q}")
        a.e(f"s_cselect_b32 s{80+2*(base+q)}, s78, s{80+2*(base+q)}")
def stamp_store(a, label, base):
    if not OPT["stamp"]: return
    a.e(f"s_cmp_lg_u32 s{sWv}, 0")
    a.e(f"s_cbranch_scc1 {label}")
    for k in range(11): a.e(f"v_mov_b32 v{16+k}, s{80+2*k}")
    a.e("s_lshl_b32 s78, s2, 6"); a.e(f"s_add_u32 s78, s78, {STAMP_AT + base*64}")
    a.e("v_mov_b32 v28, s78")
    a.e("s_mov_b64 exec, 1")
    a.e("global_store_dwordx4 v28, v[16:19], s[28:29]")
    a.e("global_store_dwordx4 v28, v[20:23], s[28:29] offset:16")
    a.e("global_store_dwordx4 v28, v[24:27], s[28:29] offset:32")

def dbg_store(a):
    if not OPT["dbgout"]: return
    l = "L_dbgskip"
    a.e("s_and_b32 s78, s2, 0xdf"); a.e("s_cmp_lg_u32 s78, 5"); a.e(f"s_cbranch_scc1 {l}")
    a.e("s_load_dwordx2 s[24:25], s[0:1], 88")
    for n, k in enumerate((3,4,5,6,7,8,2,10)):
        a.e(f"s_sub_u32 s79, s{80+2*k}, s80"); a.e(f"v_mov_b32 v{32+n}, s79")
    a.e("s_and_b32 s78, s2, 32"); a.e("v_mov_b32 v29, s78")
    a.raw_wait("s_waitcnt lgkmcnt(0)")
    a.e("global_store_dwordx4 v29, v[32:35], s[24:25]")
    a.e("global_store_dwordx4 v29, v[36:39], s[24:25] offset:16")
    a.e(f"{l}:")

def srd(a, d, lo, o, size):
    a.e(f"s_add_u32 s{d}, s{lo}, {o}")
    a.e(f"s_addc_u32 s{d+1}, s{lo+1}, 0")
    a.e(f"s_and_b32 s{d+1}, s{d+1}, 0xffff")
    a.e(f"s_mov_b32 s{d+2}, {size}")
    a.e(f"s_mov_b32 s{d+3}, 0x20000")
_lbl = [0]
def newlabel(p):
    _lbl[0] += 1
    return f"L_{p}_{_lbl[0]}"
class U(str): pass

def ldsbase(m):
    h, o = slot(m); return h * VB + o
def w_tile(m, n, nh=4):
    b = ldsbase(m); base = sWq if n < 4 * nh else sWq1
    rel = ((n % (4 * nh)) // nh) * 262144 + (nh - 1 - n % nh) * 256
    pol = ' nt' if OPT['wnt'] else ''
    return [([f"s_xor_b32 s{sOff}, s{base}, {rel}", f"s_add_u32 m0, s{sWL}, {b}"], f"buffer_load_dwordx4 v{vW}, {sr(sW,4)}, s{sOff} offen{pol} lds"),
            ([f"s_xor_b32 s{sOff}, s{base}, {rel + 8192}", f"s_add_u32 m0, s{sWL}, {b + 1032}"], f"buffer_load_dwordx4 v{vW}, {sr(sW,4)}, s{sOff} offen{pol} lds")]
def kv_tile(m, t):
    b = ldsbase(m); s = sV if m & 1 else sK
    assert t < 16
    so = f"s_xor_b32 s{sOff}, s{sCX}, {t * 8192}"
    return [([so, f"s_add_u32 m0, s{sKVL}, {b}"], f"buffer_load_dwordx4 v{vKV}, {sr(s,4)}, s{sOff} offen nt lds"),
            ([f"s_add_u32 m0, s{sKVL}, {b + 32}"], f"buffer_load_dwordx4 v{vKV}, {sr(s,4)}, s{sOff} offen offset:1024 nt lds")]
def unit_pre(base, add):
    return [f"s_add_u32 s{sMv}, s{base}, {add}", f"s_xor_b32 s{sOff}, s{sMv}, s{sRot}", f"s_bfe_u32 s{sMv}, s{sMv}, 0x3000d", f"s_mul_i32 s{sMv}, s{sMv}, {TILE}",
            f"s_add_u32 s{sMk}, s{base}, {add + 8192}", f"s_xor_b32 s{sOff2}, s{sMk}, s{sRot}", f"s_bfe_u32 s{sMk}, s{sMk}, 0x3000d", f"s_mul_i32 s{sMk}, s{sMk}, {TILE}"]
def unit_dma(so_v=None, so_k=None):
    so_v = sOff if so_v is None else so_v; so_k = sOff2 if so_k is None else so_k
    return [([f"s_add_u32 m0, s{sMv}, s{sKVv}"], f"buffer_load_dwordx4 v{vKV}, {sr(sV,4)}, s{so_v} offen nt lds"),
            (["s_add_u32 m0, m0, 32"], f"buffer_load_dwordx4 v{vKV}, {sr(sV,4)}, s{so_v} offen offset:1024 nt lds"),
            ([f"s_add_u32 m0, s{sMk}, s{sKVL}"], f"buffer_load_dwordx4 v{vKV}, {sr(sK,4)}, s{so_k} offen nt lds"),
            (["s_add_u32 m0, m0, 32"], f"buffer_load_dwordx4 v{vKV}, {sr(sK,4)}, s{so_k} offen offset:1024 nt lds")]
def place_guarded(a, S, steps, gaps):
    for (pre, d), g in zip(steps, gaps):
        for k, x in enumerate(pre): S.h(g - len(pre) + k, x)
        def site(d=d):
            l = newlabel("sk"); a.e(f"s_cbranch_vccnz {l}"); a._emit(d); a.e(f"{l}:")
        S.v(g, site)
def wo_tile(m):
    b = ldsbase(m); h, t = divmod(m % 16, 8); r = t >> 1; rel = (t & 1) * 81920
    st = [([f"s_add_u32 s{sOff}, s{sH[r]}, {rel}", f"s_add_u32 m0, s{sKVL}, {b}"], f"buffer_load_dwordx4 v{vWo}, {sr(sWo,4)}, s{sOff} offen lds"),
          ([f"s_add_u32 s{sOff}, s{sH[r]}, {rel + 1280}", f"s_add_u32 m0, s{sKVL}, {b + 1056}"], f"buffer_load_dwordx4 v{vWo}, {sr(sWo,4)}, s{sOff} offen lds")]
    return st, ([f"s_add_u32 s{sH[r]}, s{sH[r]}, s{(sD0, sD1)[h]}"] if t & 1 else [])
def emit_tile(a, steps):
    for pre, d in steps:
        for x in pre: a.e(x)
        a._emit(d)
def place_tile(a, S, steps, gaps):
    for (pre, d), g in zip(steps, gaps):
        for k, x in enumerate(pre): S.h(g - len(pre) + k, x)
        S.v(g, lambda d=d: a._emit(d))
def rd_w(dst, m, i):
    h, o = slot(m); p, u = divmod(i, 2)
    return [f"ds_read_b64_tr_b16 {R(off(dst, 2*e), 2)}, v{(vWAl, vWAh)[h]} offset:{o + e*512 + p*64 + u*8}" for e in range(2)]
def vmw(a, n): a.raw_wait(f"s_waitcnt vmcnt({n})")

def rowred(a, op, regs, tmps):
    for w in (32, 16):
        for r, t in zip(regs, tmps): a.e(f"v_mov_b32 v{t}, v{r}")
        for r, t in zip(regs, tmps): a.e(f"v_permlane{w}_swap_b32 v{r}, v{t}")
        for r, t in zip(regs, tmps): a.e(f"{op} v{r}, v{r}, v{t}")

RDPOS = [0,1,2,3,4,5,7,8,9,10,12,13,14,15,17,18]
RDPOS_X = [2,3,5,6,8,9,11,12,14,15,16,17,18,19,20,21]

def code_touch(a, lo, hi, vaddr, vdst, back=False):
    if not OPT["ctouch"]: return
    l = newlabel("pc")
    a.e("s_getpc_b64 s[14:15]")
    a.e(f"{l}:")
    if back: a.e(f"s_sub_u32 s14, s14, {l}-{lo}"); a.e("s_subb_u32 s15, s15, 0")
    else: a.e(f"s_add_u32 s14, s14, {lo}-{l}"); a.e("s_addc_u32 s15, s15, 0")
    a.e(f"s_lshr_b32 s{sT2}, s2, 3"); a.e(f"s_lshl_b32 s{sT2}, s{sT2}, 2"); a.e(f"s_add_u32 s{sT2}, s{sT2}, s{sWv}"); a.e(f"s_lshl_b32 s{sT2}, s{sT2}, 7")
    a.e(f"v_and_b32 v{vaddr}, 3, v0"); a.e(f"v_lshlrev_b32 v{vaddr}, 14, v{vaddr}"); a.e(f"v_add_u32 v{vaddr}, s{sT2}, v{vaddr}")
    a.e(f"v_min_u32 v{vaddr}, {hi}-{lo}-4, v{vaddr}")
    a._emit(f"global_load_dword v{vdst}, v{vaddr}, s[14:15]")

def inbox_addr(va, vt):
    sc = [f"s_mul_i32 s{sT2}, s{sG}, {XG}", f"s_mul_i32 s{sT3}, s{sU}, {XD}", f"s_add_u32 s{sT2}, s{sT2}, s{sT3}",
          f"s_mul_i32 s{sT3}, s{sWv}, 1536", f"s_add_u32 s{sT2}, s{sT2}, s{sT3}", f"s_add_u32 s{sT2}, s{sT2}, {5*XP}"]
    ve = [f"v_lshrrev_b32 v{va}, 3, v0", f"v_min_u32 v{va}, 6, v{va}", f"v_mul_u32_u24 v{va}, 6144, v{va}", f"v_and_b32 v{vt}, 7, v0",
          f"v_min_u32 v{vt}, 5, v{vt}", f"v_lshl_add_u32 v{va}, v{vt}, 7, v{va}", f"v_add_u32 v{va}, s{sT2}, v{va}"]
    return sc, ve

def late_consts(a):
    a.e("v_and_b32 v9, 56, v0"); a.e(f"s_lshl_b32 s{sTmp}, s{sWv}, 1"); a.e(f"v_add_u32 v9, s{sTmp}, v9")
    a.e("v_mul_u32_u24 v9, 1280, v9"); a.e("v_and_b32 v8, 7, v0")
    a.e(f"s_xor_b32 s{sTmp}, s{sU}, 7"); a.e(f"s_and_b32 s{sTmp}, s{sTmp}, 3"); a.e(f"s_lshl_b32 s{sTmp}, s{sTmp}, 1"); a.e(f"v_xor_b32 v8, s{sTmp}, v8")
    a.e(f"v_lshl_add_u32 v{vWo}, v8, 4, v9")

def x_block(j, rel, base_s, op="s_add_u32", lds=0):
    so = f"{op} s{sOff2}, s{base_s}, {rel + j*20480}" if base_s is not None else f"s_mov_b32 s{sOff2}, {rel + j*20480}"
    return [([so, f"s_add_u32 m0, s{sXL}, {j*2048 + lds}"], f"buffer_load_dwordx4 v{vX0}, {sr(sX,4)}, s{sOff2} offen{' nt' if OPT['xnt'] else ''} lds"),
            ([f"s_add_u32 m0, s{sXL}, {j*2048 + 1024 + lds}"], f"buffer_load_dwordx4 v{vX1}, {sr(sX,4)}, s{sOff2} offen{' nt' if OPT['xnt'] else ''} lds")]
def rd_xb(dst, j, s): return f"ds_read_b128 {R(dst,4)}, v{(vXA0, vXA1)[s]} offset:{j*2048}"

def end_sync(a, S, vm, keep=2):
    def w():
        n = min(len(a.lg), keep)
        a.raw_wait(f"s_waitcnt vmcnt({vm}) lgkmcnt({n})")
        a.lg = a.lg[len(a.lg) - n:] if n else []
    S.h(22, w); S.h(23, "s_barrier")

sSc = 14
SCALE = f"s_mov_b32 s{sSc}, {f32(math.log2(math.e) / math.sqrt(128.0))}"
def conv_ops(acc, pos, db, tmp):
    o_ = []; k = 0
    for p in range(4):
        for j in range(3):
            t = tmp[k % len(tmp)]; k += 1
            src = []
            for u in range(2):
                o = acc(pos, 2*p + u, j)
                for r in range(4):
                    if isinstance(o, tuple):
                        o_.append(f"v_accvgpr_read_b32 v{t+4*u+r}, a{o[1]+r}"); src.append(t + 4*u + r)
                    else: src.append(o + r)
            o_ += [f"v_mul_f32 v{x}, s{sSc}, v{x}" for x in src]
            d = Qf(j, p) if db is None else src[0]
            o_ += [f"v_cvt_pk_bf16_f32 v{d+r}, v{src[2*r]}, v{src[2*r+1]}" for r in range(4)]
            if db is not None and db != "keep":
                o_ += [f"v_accvgpr_write_b32 a{db + 12*p + 4*j + r}, v{d+r}" for r in range(4)]
    return o_
def packed(ops):
    if not OPT["pk"]: return list(ops)
    out = []; k = 0
    pat = re.compile(r"v_mul_f32 v(\d+), (?:s(\d+), v\d+|v\d+, v(\d+))$")
    while k < len(ops):
        m0, m1 = pat.match(ops[k]), pat.match(ops[k+1]) if k + 1 < len(ops) else None
        if m0 and m1 and int(m0[1]) % 2 == 0 and int(m1[1]) == int(m0[1]) + 1 and m0.groups()[1:] == m1.groups()[1:]:
            d = int(m0[1]); t, f = ("s", int(m0[2])) if m0[2] else ("v", int(m0[3]))
            out.append(f"v_pk_mul_f32 v[{d}:{d+1}], v[{d}:{d+1}], {t}[{f & ~1}:{f | 1}] op_sel:[0,{f & 1}] op_sel_hi:[1,{f & 1}]"); k += 2
        else: out.append(ops[k]); k += 1
    return out
def free_slots(S):
    cap = []
    for k in range(len(S.mfs)):
        c = 2 - max(0, len(S.hold[k]) - 1)
        for f in S.vec[k]:
            t = f if isinstance(f, str) else f[0] if isinstance(f, tuple) else "vmem"
            c -= 2 if t.startswith(("vmem", "v_exp", "v_rcp")) else 1
        if "s_barrier" in S.hold[k]: c = 0
        cap.append(max(c, 0))
    for k in range(1, len(cap)):
        if cap[k] == 2 and cap[k-1] == 2: cap[k] = 1
    return cap
def fill_ops(S, ops, start=0):
    cap = free_slots(S); n = 0
    for k in range(start, len(cap)):
        for _ in range(cap[k]):
            if n < len(ops): S.v(k, ops[n]); n += 1
    return ops[n:]

def gcv(m, h):
    i, j = divmod(m, 3); p, u = divmod(i, 2); o = Or(i, j)
    return f"v_cvt_pk_bf16_f32 v{S_ + 12*p + 4*j + 2*u + h}, v{o+2*h}, v{o+2*h+1}"
CVS = [gcv(m, h) for m in range(24) for h in range(2)]
def gst(q, rel, base_s):
    p, j = divmod(q, 3)
    return ([f"s_add_u32 s{sOff2}, s{base_s}, {rel + (p*12 + j)*CH}"], f"buffer_store_dwordx4 {vr(S_ + 12*p + 4*j,4)}, v{vPt}, {sr(sP,4)}, s{sOff2} offen{['', ' sc1', ' nt', ' sc0'][OPT['stpol']]}")
def cv_plans():
    caps = [0 if g in (6, 11) else (1 if g in RDPOS else 2) for g in range(24)]
    last = []; ci = 0
    for g, cp in enumerate(caps):
        for _ in range(cp):
            if ci < 48 and ci // 2 + 4 <= g: last.append((g, ci)); ci += 1
    n = ci; first = []
    for g, cp in enumerate(caps):
        for _ in range(cp):
            if ci < 48: first.append((g, ci)); ci += 1
    assert ci == 48 and all(c // 2 > g for g, c in first)
    return last, first, n
PLAN_LAST, PLAN_FIRST, NLAST = cv_plans()

def Q2acc(pos, i, j): return (56 if pos == 0 else O_) + 12 * i + 4 * j
def X2reg(buf, j, s): return ("a", 24 * buf + 8 * j + 4 * s)
def q2mf(n, first):
    s, pos = divmod(n % 8, 2)
    return [mf(Q2acc(pos, i, j), Greg(n & 1, i), X2reg(s >> 1, j, s & 1), None if first and n < 2 else Q2acc(pos, i, j)) for i in range(8) for j in zj(i)]

def main_kernel():
    a = Asm()
    T = OPT["typ"]
    if OPT["st0"]: a._emit("s_memrealtime s[80:81]")
    a.e("s_cmp_ge_u32 s2, 256")
    a.e("s_cbranch_scc1 L_end")
    a.e("s_load_dwordx16 s[4:19], s[0:1], 0")
    a.e("s_load_dwordx4 s[20:23], s[0:1], 64")
    a.e("s_load_dwordx2 s[28:29], s[0:1], 96")
    a.e(f"s_bfe_u32 s{sBr}, s2, 0x10002")
    if not OPT["map84"]:
        a.e(f"s_and_b32 s{sB}, s2, 3"); a.e(f"s_lshl_b32 s{sB}, s{sB}, 2")
        a.e(f"s_bfe_u32 s{sTmp}, s2, 0x20003"); a.e(f"s_add_u32 s{sB}, s{sB}, s{sTmp}")
        a.e(f"s_lshr_b32 s{sU}, s2, 5")
    elif OPT["map84"] == 2:
        a.e(f"s_bfe_u32 s{sB}, s2, 0x40003")
        a.e(f"s_and_b32 s{sU}, s2, 3"); a.e(f"s_lshl_b32 s{sU}, s{sU}, 1")
        a.e(f"s_lshr_b32 s{sTmp}, s2, 7"); a.e(f"s_add_u32 s{sU}, s{sU}, s{sTmp}")
    else:
        a.e(f"s_and_b32 s{sB}, s2, 1"); a.e(f"s_lshl_b32 s{sB}, s{sB}, 3")
        a.e(f"s_bfe_u32 s{sTmp}, s2, 0x30003"); a.e(f"s_add_u32 s{sB}, s{sB}, s{sTmp}")
        a.e(f"s_bfe_u32 s{sU}, s2, 0x10001"); a.e(f"s_lshl_b32 s{sU}, s{sU}, 2")
        a.e(f"s_lshr_b32 s{sTmp}, s2, 6"); a.e(f"s_add_u32 s{sU}, s{sU}, s{sTmp}")
    a.e(f"s_lshl_b32 s{sG}, s{sBr}, 4"); a.e(f"s_add_u32 s{sG}, s{sG}, s{sB}")
    if T == 4: a.e(f"s_bfe_u32 s{sTyp}, s2, 0x10003")
    elif T == 3: a.e(f"s_andn2_b32 s{sTyp}, 1, s2")
    elif T == 2: a.e(f"s_and_b32 s{sTyp}, s2, 1")
    else: a.e(f"s_mov_b32 s{sTyp}, {T}")
    a.e("v_lshrrev_b32 v7, 6, v0")
    a.e("v_and_b32 v0, 63, v0")
    a.e(f"v_readfirstlane_b32 s{sWv}, v7")
    a.e("v_and_b32 v8, 15, v0")
    a.e("v_lshrrev_b32 v9, 4, v0")
    a.e("v_and_b32 v10, 1, v9"); a.e("v_lshlrev_b32 v10, 4, v10")
    a.e("v_lshrrev_b32 v11, 1, v9"); a.e("v_lshl_add_u32 v10, v11, 2, v10")
    a.e("v_lshrrev_b32 v11, 1, v7"); a.e("v_lshl_add_u32 v10, v11, 3, v10")
    a.e("v_and_b32 v11, 1, v7"); a.e("v_lshl_add_u32 v10, v11, 1, v10")
    a.e("v_lshlrev_b32 v10, 13, v10"); a.e(f"v_lshl_add_u32 v{vW}, v8, 4, v10")
    a.e("v_mul_u32_u24 v10, 48, v7"); a.e("v_lshrrev_b32 v11, 3, v0"); a.e("v_add_u32 v10, v10, v11")
    a.e("v_mul_u32_u24 v10, 1280, v10")
    a.e("v_and_b32 v11, 7, v0"); a.e("v_xor_b32 v11, v11, v9")
    a.e(f"v_lshl_add_u32 v{vX0}, v11, 4, v10")
    a.e("v_xor_b32 v11, 4, v11"); a.e("v_add_u32 v10, 10240, v10")
    a.e(f"v_lshl_add_u32 v{vX1}, v11, 4, v10")
    a.e(f"s_mul_i32 s{sKVL}, s{sWv}, 2112")
    a.e(f"s_mul_i32 s{sXL}, s{sWv}, 6144"); a.e(f"s_add_u32 s{sXL}, s{sXL}, {XB}")
    a.e(f"s_mov_b32 s{sCur}, 0"); a.e(f"s_mov_b32 s{sXo}, 0"); a.e(f"s_mov_b32 s{sWq}, 0")
    a.raw_wait("s_waitcnt lgkmcnt(0)")
    def q6(k):
        if OPT["qprof"] == 6: a._emit(f"s_memrealtime s[{80+2*k}:{81+2*k}]")
    q6(4)
    a.e(f"s_cmp_eq_u32 s{sBr}, 0")
    a.e("s_cselect_b64 s[4:5], s[4:5], s[14:15]")
    a.e("s_cselect_b64 s[6:7], s[6:7], s[16:17]")
    a.e("s_cselect_b64 s[8:9], s[8:9], s[18:19]")
    a.e("s_cselect_b64 s[10:11], s[10:11], s[20:21]")
    a.e("s_cselect_b64 s[12:13], s[12:13], s[22:23]")
    a.e("s_load_dwordx4 s[16:19], s[0:1], 80")
    a.e(f"s_mul_i32 s{sTmp}, s{sB}, 245760")
    srd(a, sX, 4, f"s{sTmp}", 245760)
    a.e(f"s_lshl_b32 s{sTmp}, s{sU}, 10")
    srd(a, sW, 10, f"s{sTmp}", 639 * 8192 + 1024)
    if OPT["krot"]: a.e(f"s_xor_b32 s{sJ}, s{sB}, s{sU}"); a.e(f"s_and_b32 s{sJ}, s{sJ}, 3")
    else: a.e(f"s_mov_b32 s{sJ}, 0")
    if OPT["hrot"] == 2: a.e(f"s_and_b32 s{sJh}, s{sU}, 1"); a.e(f"s_lshl_b32 s{sJh}, s{sJh}, 1")
    elif OPT["hrot"] == 3: a.e(f"s_and_b32 s{sJh}, s{sU}, 2")
    elif OPT["hrot"] == 4: a.e(f"s_and_b32 s{sJh}, s{sU}, 3")
    elif OPT["hrot"] == 5: a.e(f"s_lshr_b32 s{sJh}, s{sU}, 1")
    else: a.e(f"s_mov_b32 s{sJh}, 0")
    a.e(f"s_lshl_b32 s{sWq}, s{sJ}, 18"); a.e(f"s_lshl_b32 s{sTmp}, s{sJh}, 8"); a.e(f"s_or_b32 s{sWq}, s{sWq}, s{sTmp}"); a.e(f"s_add_u32 s{sWq1}, s{sWq}, {1 << 20}")
    a.e(f"s_lshr_b32 s{sXo}, s{sJ}, 1"); a.e(f"s_lshl_b32 s{sXo}, s{sXo}, 7")
    if not OPT['st0']: stamp(a, 0)
    if OPT['qprof'] < 5: stamp(a, 1, False)
    def common_consts():
        if OPT["rot"] == 2: a.e(f"s_bfe_u32 s{sRot}, s2, 0x40003"); a.e(f"s_lshl_b32 s{sRot}, s{sRot}, 13")
        elif OPT["rot"] == 3: a.e(f"s_bfe_u32 s{sRot}, s2, 0x40001"); a.e(f"s_lshl_b32 s{sRot}, s{sRot}, 13")
        elif OPT["rot"] == 4:
            a.e(f"s_mul_i32 s{sRot}, s2, 0x9e3779b1"); a.e(f"s_lshr_b32 s{sRot}, s{sRot}, 28"); a.e(f"s_lshl_b32 s{sRot}, s{sRot}, 13")
        elif OPT["rot"] == 5: a.e(f"s_bfe_u32 s{sRot}, s2, 0x20003"); a.e(f"s_lshl_b32 s{sRot}, s{sRot}, 15")
        elif OPT["rot"]:
            a.e(f"s_lshr_b32 s{sRot}, s2, 4"); a.e(f"s_xor_b32 s{sRot}, s{sRot}, s2"); a.e(f"s_and_b32 s{sRot}, s{sRot}, 15"); a.e(f"s_lshl_b32 s{sRot}, s{sRot}, 13")
        else: a.e(f"s_mov_b32 s{sRot}, 0")
        a.e(f"s_lshl_b32 s{sTmp}, s{sJh}, 17"); a.e(f"s_or_b32 s{sRot}, s{sRot}, s{sTmp}")
        a.e(f"s_mov_b32 s{sCX}, s{sRot}"); a.e(f"s_add_u32 s{sKVv}, s{sKVL}, {VB}")
        a.e("v_bfe_u32 v10, v0, 2, 3")
        a.e("v_lshrrev_b32 v11, 1, v10"); a.e("v_lshlrev_b32 v11, 6, v11"); a.e(f"v_lshl_add_u32 v{vWAl}, v10, 10, v11")
        a.e("v_and_b32 v11, 1, v10"); a.e(f"v_lshl_add_u32 v{vWAl}, v11, 3, v{vWAl}")
        a.e("v_lshrrev_b32 v11, 5, v0"); a.e(f"v_lshl_add_u32 v{vWAl}, v11, 8, v{vWAl}")
        a.e("v_mul_u32_u24 v10, 1056, v10"); a.e("v_lshl_add_u32 v10, v11, 8, v10")
        a.e("v_and_b32 v11, 3, v0"); a.e(f"v_lshl_add_u32 v{vWAl}, v11, 4, v{vWAl}")
        a.e(f"v_lshl_add_u32 v10, v11, 3, v10"); a.e(f"v_add_u32 v{vVA}, {VB}, v10")
        a.e(f"v_add_u32 v{vWAh}, {VB}, v{vWAl}")
        a.e("v_and_b32 v10, 7, v8"); a.e("v_mul_u32_u24 v10, 1056, v10")
        a.e("v_lshrrev_b32 v11, 3, v8"); a.e(f"v_lshl_add_u32 v10, v11, 8, v10")
        a.e(f"v_lshl_add_u32 v{vKA}, v9, 4, v10")
        a.e("v_lshlrev_b32 v10, 4, v0"); a.e(f"v_lshl_add_u32 v{vKV}, v7, 11, v10")
        a.e(f"v_lshlrev_b32 v10, 7, v8"); a.e(f"v_add_u32 v10, s{sXL}, v10")
        a.e("v_lshrrev_b32 v11, 1, v8"); a.e("v_xor_b32 v11, v11, v9")
        a.e(f"s_and_b32 s{sTmp}, s{sJ}, 1"); a.e(f"s_lshl_b32 s{sTmp}, s{sTmp}, 2"); a.e(f"v_xor_b32 v11, s{sTmp}, v11")
        a.e(f"v_lshl_add_u32 v{vXA0}, v11, 4, v10")
        a.e("v_xor_b32 v11, 4, v11"); a.e(f"v_lshl_add_u32 v{vXA1}, v11, 4, v10")
        a.e(f"s_lshl_b32 s{sTmp}, s{sB}, 3"); a.e(f"s_add_u32 s{sTmp}, s{sTmp}, s{sU}"); a.e(f"s_lshl_b32 s{sTmp}, s{sTmp}, 19")
        srd(a, sK, 6, f"s{sTmp}", 4 * 131072)
        srd(a, sV, 8, f"s{sTmp}", 4 * 131072)
        a.e(f"s_mul_i32 s{sTmp}, s{sU}, {512*1280}")
        srd(a, sWo, 12, f"s{sTmp}", 512 * 1280)
        for r in range(4): a.e(f"s_xor_b32 s{sH[r]}, s{sJh}, {r}"); a.e(f"s_mul_i32 s{sH[r]}, s{sH[r]}, 163840")
        a.e(f"s_mov_b32 s{sKn}, 0"); a.e(f"s_mov_b32 s{sMin}, {3*8192}")
        a.e(f"s_cmp_lt_u32 s{sU}, 4")
        a.e(f"s_cselect_b32 s{sTmp}, 128, 0"); a.e(f"s_mov_b32 s{sD0}, 128"); a.e(f"s_cselect_b32 s{sD0}, -128, s{sD0}")
        a.e(f"s_sub_u32 s{sD1}, 256, s{sD0}")
        for r in range(4): a.e(f"s_add_u32 s{sH[r]}, s{sH[r]}, s{sTmp}")
        a.e(f"s_lshl_b32 s{sTmp}, s{sG}, 12"); a.e(f"s_add_u32 s{sTmp}, s{sTmp}, {FLG}")
        srd(a, sF, 28, f"s{sTmp}", 4096)
    def touch0(three):
        if OPT["t0x"]:
            a.e("v_min_u32 v10, 59, v0"); a.e("v_lshlrev_b32 v10, 7, v10")
            a.e(f"s_lshl_b32 s{sTmp}, s{sU}, 2"); a.e(f"s_add_u32 s{sTmp}, s{sTmp}, s{sWv}"); a.e(f"s_mul_i32 s{sTmp}, s{sTmp}, 7680")
            a._emit(f"buffer_load_dword v11, v10, {sr(sX,4)}, s{sTmp} offen")
        if OPT["t0w"] and three:
            a.e("v_lshrrev_b32 v14, 2, v0"); a.e("v_lshlrev_b32 v14, 13, v14"); a.e("v_and_b32 v15, 3, v0"); a.e("v_lshl_add_u32 v14, v15, 7, v14")
            a.e(f"s_and_b32 s{sTmp}, s{sB}, 3"); a.e(f"s_lshl_b32 s{sTmp}, s{sTmp}, 2"); a.e(f"s_add_u32 s{sTmp}, s{sTmp}, s{sWv}"); a.e(f"s_lshl_b32 s{sTmp}, s{sTmp}, 17")
            for k in range(3):
                a.e(f"s_add_u32 s{sT2}, s{sTmp}, {k*256*8192}")
                a._emit(f"buffer_load_dword v{16+k}, v14, {sr(sW,4)}, s{sT2} offen")
    def part_srd(slot_expr, size):
        a.e(f"s_mul_i32 s{sTmp}, s{sG}, {PART}"); slot_expr(); a.e(f"s_lshl_b32 s{sT2}, s{sT2}, 10"); a.e(f"s_add_u32 s{sTmp}, s{sTmp}, s{sT2}")
        srd(a, sP, 28, f"s{sTmp}", size)
    NF = OPT["first"]
    LA = OPT['la']
    def wpos(n): return 8 + n % 8
    def rd_x(buf): return [rd_xb(Xreg(buf, j, s), j, s) for s in range(2) for j in range(3)]
    NF = 2
    def setup(lab):
        if not OPT["pro2"]: common_consts()
        code_touch(a, lab, "L_altwo" if not OPT["ct2"] else (("L_p0end" if OPT["pro2"] else "L_p1") if lab == "L_q" else "L_enter"), 10, 11)
        a.e(f"s_mov_b32 s{sR}, 0")
        if not OPT["ramp"] or lab == "L_q": late_setup()
    def late_setup():
        a.e(f"s_lshl_b32 s{sTmp}, s{sU}, 9"); a.e(f"s_lshl_b32 s{sT2}, s{sWv}, 7"); a.e(f"s_add_u32 s{sTmp}, s{sTmp}, s{sT2}")
        a.e("v_and_b32 v8, 7, v0"); a.e(f"v_lshlrev_b32 v8, 2, v8"); a.e("v_mov_b32 v7, 0")
        a._emit(f"buffer_store_dword v7, v8, {sr(sF,4)}, s{sTmp} offen sc1")
        emit_tile(a, kv_tile(0, 0))
    def bootstrap():
        l = newlabel("boot")
        a.e(f"s_cmp_lg_u32 s{sWv}, 0"); a.e(f"s_cbranch_scc1 {l}")
        a.e(f"s_lshl_b32 s{sTmp}, s{sG}, 2"); a.e(f"s_add_u32 s{sTmp}, s{sTmp}, 128")
        a.e(f"v_mov_b32 v157, s{sTmp}")
        a.e(f"s_getreg_b32 s{sT2}, hwreg(HW_REG_XCC_ID, 0, 4)")
        a.e(f"s_mul_i32 s{sT3}, s{sT2}, s{sT2}"); a.e(f"s_lshl_b32 s{sT3}, s{sT3}, 8"); a.e(f"s_add_u32 s{sT3}, s{sT3}, s{sT2}")
        a.e(f"s_lshl_b32 s{sT3}, s{sT3}, 8"); a.e(f"s_add_u32 s{sPK}, s{sT3}, 1"); a.e(f"v_mov_b32 v158, s{sPK}")
        a.e("s_mov_b64 exec, 1")
        a._emit("global_atomic_add v157, v158, s[18:19]")
        a.e("s_mov_b64 exec, -1")
        a.e(f"{l}:")
    if OPT["stag"]:
        a.e(f"s_and_b32 s{sT2}, s{sB}, 3") if OPT["stag"] < 100 else a.e(f"s_and_b32 s{sT2}, s{sU}, 3")
        a.e("L_stag:"); a.e(f"s_cmp_eq_u32 s{sT2}, 0"); a.e("s_cbranch_scc1 L_stag2"); a.e(f"s_sleep {OPT['stag'] % 100}"); a.e(f"s_sub_u32 s{sT2}, s{sT2}, 1"); a.e("s_branch L_stag"); a.e("L_stag2:")
    if OPT["pro2"]:
        a.e(f"s_cmp_lg_u32 s{sTyp}, 0")
        a.e(f"s_cselect_b32 s{sT2}, {XB - VB}, 0"); a.e(f"s_cselect_b32 s{sT3}, 0, 512")
        a.e(f"s_sub_u32 s{sT2}, s{sXL}, s{sT2}"); a.e(f"s_xor_b32 s{sT3}, s{sWq}, s{sT3}")
        def sub(st, x, y): return [([p_.replace(x, y) for p_ in pre], d) for pre, d in st]
        emit_tile(a, sub(w_tile(wpos(0), 0, 2), f"s{sWq},", f"s{sT3},"))
        for j in range(3): emit_tile(a, sub(x_block(j, 0, sXo), f"s{sXL},", f"s{sT2},"))
        emit_tile(a, sub(w_tile(wpos(1), 1, 2), f"s{sWq},", f"s{sT3},"))
        q6(5)
        common_consts()
        q6(6)
        a.e(f"s_cmp_eq_u32 s{sTyp}, 0")
        a.e("s_cbranch_scc1 L_p0")
        a.e("L_split:")
        a.e("L_p0:")
    else:
        a.e(f"s_cmp_lg_u32 s{sTyp}, 0")
        a.e("s_cbranch_scc1 L_p1")
        for j in range(3): emit_tile(a, x_block(j, 0, sXo))
        for n in range(NF): emit_tile(a, w_tile(wpos(n), n))
    setup("L_q")
    if OPT["help"]:
        if T == 3:
            a.e(f"s_sub_u32 s{sP}, s{sX}, {4*245760}"); a.e(f"s_subb_u32 s{sP+1}, s{sX+1}, 0")
        else:
            a.e(f"s_add_u32 s{sP}, s{sX}, {4*245760}"); a.e(f"s_addc_u32 s{sP+1}, s{sX+1}, 0")
        a.e(f"s_mov_b32 s{sP+2}, 245760"); a.e(f"s_mov_b32 s{sP+3}, 0x20000")
        a.e("v_min_u32 v8, 59, v0"); a.e("v_lshlrev_b32 v8, 7, v8")
        a.e(f"s_lshl_b32 s{sTmp}, s{sU}, 2"); a.e(f"s_add_u32 s{sTmp}, s{sTmp}, s{sWv}"); a.e(f"s_mul_i32 s{sTmp}, s{sTmp}, 7680")
        a._emit(f"buffer_load_dword v9, v8, {sr(sP,4)}, s{sTmp} offen")
        if OPT["help"] & 2:
            a.e("v_lshrrev_b32 v8, 2, v0"); a.e("v_lshlrev_b32 v8, 13, v8"); a.e("v_and_b32 v10, 3, v0"); a.e("v_lshl_add_u32 v8, v10, 7, v8")
            a.e(f"s_lshr_b32 s{sTmp}, s{sB}, 3"); a.e(f"s_lshl_b32 s{sTmp}, s{sTmp}, 2"); a.e(f"s_and_b32 s{sT2}, s{sB}, 3"); a.e(f"s_add_u32 s{sTmp}, s{sTmp}, s{sT2}")
            a.e(f"s_lshl_b32 s{sTmp}, s{sTmp}, 2"); a.e(f"s_add_u32 s{sTmp}, s{sTmp}, s{sWv}"); a.e(f"s_mul_i32 s{sTmp}, s{sTmp}, {20*8192}")
            a.e(f"s_and_b32 s{sT2}, s{sWq}, 512"); a.e(f"s_add_u32 s{sTmp}, s{sTmp}, s{sT2}")
            a._emit(f"buffer_load_dword v9, v8, {sr(sW,4)}, s{sTmp} offen")
            if OPT["hx"]: a.e(f"v_min_u32 v8, {3*8192 + 384}, v8")
            a.e(f"s_add_u32 s{sTmp}, s{sTmp}, {(16 if OPT['hx'] else 4)*8192}")
            a._emit(f"buffer_load_dword v9, v8, {sr(sW,4)}, s{sTmp} offen")
    a.e(f"s_mov_b32 s{sPre}, 15")
    for r in range(256):
        if r % 40 == 0 and NF + r // 40 < LA: emit_tile(a, w_tile(wpos(NF + r // 40), NF + r // 40))
        a.e(f"v_accvgpr_write_b32 a{r}, 0")
    for r in list(range(124, 156)) + list(range(160, 256)): a.e(f"v_mov_b32 v{r}, 0")
    if OPT["woq"]:
        a.e(f"s_lshr_b32 s{sTmp}, s{sB}, 3"); a.e(f"s_lshl_b32 s{sTmp}, s{sTmp}, 2"); a.e(f"s_and_b32 s{sT2}, s{sB}, 3"); a.e(f"s_add_u32 s{sTmp}, s{sTmp}, s{sT2}")
        a.e(f"s_lshl_b32 s{sTmp}, s{sTmp}, 2"); a.e(f"s_add_u32 s{sTmp}, s{sTmp}, s{sWv}"); a.e(f"s_mul_i32 s{sTmp}, s{sTmp}, 5120")
        a.e("v_min_u32 v7, 39, v0"); a.e(f"v_lshl_add_u32 v7, v7, 7, s{sTmp}")
    a.raw_wait(f"s_waitcnt vmcnt({2 * (LA - 2 - OPT['qb2'])}) lgkmcnt(0)")
    a.e("s_barrier")
    for r in rd_x(0): a.e(r)
    for i in range(8):
        for r in rd_w(Wreg(0, i), wpos(0), i): a.e(r)
    a.raw_wait("s_waitcnt lgkmcnt(0)"); a.lg = []
    if OPT["qb2"]: a.e("s_barrier")
    if OPT["qprof"] == 1: stamp(a, 5); stamp(a, 6, False)
    def lperm(n, last):
        return 8 + 4 * ((n - 8) & 1) + ((n - 8) >> 1) if last and OPT["cvo"] and 8 <= n < 16 else n
    def qmf(n, last=False):
        s, pos = divmod(lperm(n, last) % 16, 4)
        return [mf(Qacc(pos, i, j), Wreg(n & 1, i), Xreg((s >> 1) & 1, j, s & 1), Qacc(pos, i, j)) for i in range(8) for j in zj(i)]
    cvq = conv_ops(Qacc, 0, QBANK[3], [76, 84, 92])
    def early(S, half, h0, gaps):
        pre = [x.replace(f"s{sOff},", f"s{sOff2},") for x in unit_pre(sKn, 0)[4*half:4*half+4]]
        if half == 0: pre = [f"s_cmp_ge_u32 s{sKn}, s{sMin}", "s_cselect_b64 vcc, -1, 0", f"s_cselect_b32 s{sC1}, 0, 8192"] + pre
        else: pre = pre + [f"s_add_u32 s{sKn}, s{sKn}, s{sC1}"]
        for x, h_ in zip(pre, h0): S.h(h_, x)
        place_guarded(a, S, unit_dma(sOff2, sOff2)[2*half:2*half+2], gaps)
    def q_group(last):
        for n in range(16):
            a.c(f"Q sub-step {n}{' (last group)' if last else ''}")
            S = Sched(a, qmf(n, last))
            fin = last and n == 15
            q = n % 8
            xrd = q in (6, 7) and not (last and n >= 8)
            if not fin:
                rds = []
                for i in range(8): rds += rd_w(Wreg((n + 1) & 1, i), wpos(n + 1), i)
                for r, p in zip(rds, RDPOS): S.v(p, r)
                m = n + LA
                if not last or m < 16: place_tile(a, S, w_tile(wpos(m), lperm(m, last)), (6, 11))
                KVN = {8: 7, 9: 8, 10: 9, 11: 10, 12: 11, 13: 12} if not OPT["kvconv"] else {4: 7, 11: 8} if OPT["kvconv"] == 1 else {4: 7}
                if last and n in KVN: place_tile(a, S, kv_tile(KVN[n], KVN[n] >> 1), (16, 19))
                if OPT["qb2"] and not (n & 1):
                    def w(keep=5 if xrd else 2):
                        k = min(len(a.lg), keep); a.raw_wait(f"s_waitcnt lgkmcnt({k})"); a.lg = a.lg[len(a.lg) - k:] if k else []
                    S.h(22, w)
                elif not (last and n == 14):
                    need = n + 2 + OPT["qb2"]
                    if last: need = min(need, 15)
                    hi = min(m, 15) if last else m
                    ykv = len([k for k in KVN if need - LA <= k <= n]) if last else 0
                    end_sync(a, S, 2 * (hi - need) + 2 * ykv, (3 if xrd else 0) if OPT["qb2"] else (5 if xrd else 2))
            if xrd:
                rx = rd_x(((n >> 3) + 1) & 1)[3*(q-6):3*(q-6)+3]
                if q == 6: S.h(16, lambda: vmw(a, 8))
                for r, p in zip(rx, (19, 20, 21)): S.v(p, (r, "xr"))
            if q in (0, 1, 2) and not (last and n >= 8):
                if q == 0: S.h(12, lambda: a.wait(lg="xr"))
                place_tile(a, S, x_block(q, 128, sXo, "s_xor_b32") if n < 8 else x_block(q, 256, sXo), (16, 19))
            if n in (11, 12) and not last: early(S, n - 11, (0, 1, 2, 3, 7, 8, 12), (16, 19))
            if n == 4 and not last and OPT["woq"]:
                S.h(13, f"s_lshr_b32 s{sOff2}, s{sXo}, 8"); S.h(14, f"s_mul_i32 s{sOff2}, s{sOff2}, 163840")
                S.v(16, lambda: a._emit(f"buffer_load_dword v9, v7, {sr(sWo,4)}, s{sOff2} offen"))
            if n == 15 and not last:
                S.h(12, f"s_mov_b32 s{sWq}, s{sWq1}")
                S.h(13, f"s_add_u32 s{sWq1}, s{sWq1}, {1 << 20}")
                S.h(14, f"s_add_u32 s{sXo}, s{sXo}, 256")
                S.h(15, f"s_cmp_lt_u32 s{sXo}, 1024")
            if last and n == 3: S.h(1, SCALE)
            if last and n >= 10 and OPT["cvo"]: cvq[:] = fill_ops(S, cvq, 4 if n == 10 else 0)
            S.emit(None if fin else qmf(n + 1, last)[0])
    a.e(".p2align 6")
    a.e("L_q:")
    if OPT["qprof"] == 3:
        a.e(f"s_lshr_b32 s{sT3}, s{sXo}, 8"); stamp_dyn(a, 4, sT3, 4)
    mark = len(a.ins); nops0 = a.nops
    q_group(False)
    lg_end = list(a.lg)
    del a.ins[mark:]; a.nops = nops0
    q_group(False)
    assert a.lg == lg_end
    a.e("s_cbranch_scc1 L_q")
    if OPT["ct2"]: code_touch(a, "L_enter", "L_q2b" if T else "L_altwo", 10, 11, back=bool(OPT["pro2"]))
    if OPT["qprof"] == 3: stamp(a, 8)
    q_group(True)
    if OPT["qprof"] == 1: stamp(a, 7); stamp(a, 8, False)
    stamp(a, 3)
    a.c("Q conversion")
    tmp = [60 + 8 * k for k in range(8)]
    rest = packed(cvq + conv_ops(Qacc, 1, QBANK[2], tmp) + conv_ops(Qacc, 2, QBANK[1], tmp) + conv_ops(Qacc, 3, None, tmp))
    steps = [s_ for m in range(10 - OPT["kvconv"], 13) for s_ in kv_tile(m, m >> 1)] if OPT["kvconv"] else []
    at = {int((k + 0.3) * len(rest) / len(steps)): s_ for k, s_ in enumerate(steps)}
    for k, x in enumerate(rest):
        if k in at:
            for y in at[k][0]: a.e(y)
        a.e(x)
        if k in at: a._emit(at[k][1])
    late_consts(a)
    bootstrap()
    a.e("s_branch L_enter")
    a.e("L_p1:")
    a.lg = []
    if not OPT["pro2"]:
        for j in range(3): emit_tile(a, x_block(j, 0, sXo, lds=VB-XB))
        for n in range(NF): emit_tile(a, w_tile(wpos(n), n, 2))
    a.e(f"s_xor_b32 s{sXo1}, s{sXo}, 128")
    L0 = 5 if OPT["ramp"] else LA
    assert not OPT["ramp"] or (OPT["latekv"] and LA == 7 and OPT["ct2"])
    a.e(f"s_mov_b32 s{sPre}, 1")
    if OPT["ramp"]:
        setup("L_q2")
        late_consts(a)
        a.e(f"v_subrev_u32 v12, {XB-VB}, v{vXA0}"); a.e(f"v_subrev_u32 v13, {XB-VB}, v{vXA1}")
        for j in range(3): emit_tile(a, x_block(j, 0, sXo1)); emit_tile(a, w_tile(wpos(2 + j), 2 + j, 2))
        q6(7)
        a.raw_wait("s_waitcnt vmcnt(10) lgkmcnt(0)")
    else:
        for j in range(3): emit_tile(a, x_block(j, 0, sXo1))
        setup("L_q2")
        late_consts(a)
        for n in range(NF, L0): emit_tile(a, w_tile(wpos(n), n, 2))
        q6(7)
        a.e(f"v_subrev_u32 v12, {XB-VB}, v{vXA0}"); a.e(f"v_subrev_u32 v13, {XB-VB}, v{vXA1}")
        a.raw_wait(f"s_waitcnt vmcnt({2 * (L0 - 2)}) lgkmcnt(0)")
    q6(8)
    for j in range(3):
        for s in range(2): a.e(f"ds_read_b128 {R(X2reg(0, j, s),4)}, v{12+s} offset:{j*2048}")
    a.e("L_q2go:")
    a.e("s_barrier")
    for i in range(8):
        for r in rd_w(Greg(0, i), wpos(0), i): a.e(r)
    a.raw_wait("s_waitcnt lgkmcnt(0)"); a.lg = []
    def q2_group(kind):
        first, last = kind == 0, kind == 2
        for n in range(8):
            a.c(f"Q2 sub-step {n} ({('first', 'loop', 'last')[kind]})")
            S = Sched(a, q2mf(n, first))
            cl, q = divmod(n, 4)
            fin = last and n == 7
            xrd = q < 3 and not (last and cl == 1)
            def xd(k): return k % 4 < 3 and not (last and k >= 0) and not (first and k < 0)
            def wd(k): return not (last and k + LA >= 8)
            def kd(k): return last and 0 <= k <= 5
            if not fin:
                rds = []
                for i in range(8): rds += rd_w(Greg((n + 1) & 1, i), wpos(n + 1), i)
                for r, p in zip(rds, RDPOS_X): S.v(p, r)
            rampd = first and OPT["ramp"]
            if rampd:
                m0_ = n + 5 + (n > 3)
                place_tile(a, S, w_tile(wpos(m0_), m0_, 2), (4, 7))
                if q == 3: place_tile(a, S, w_tile(wpos(m0_ + 1), m0_ + 1, 2), (10, 13))
            elif wd(n): place_tile(a, S, w_tile(wpos(n + LA), n + LA, 2), (4, 7))
            if kd(n): place_tile(a, S, kv_tile(7 + n, (7 + n) >> 1), (10, 13))
            if xrd:
                for s in range(2): S.v(s, (rd_xb(X2reg(1 - cl, q, s), q, s), "xr"))
            if xd(n):
                S.h(7, lambda: a.wait(lg="xr"))
                place_tile(a, S, x_block(q, 256, (sXo, sXo1)[cl]), (10, 13))
            if q == 3 and not last and not (first and OPT['latekv']): early(S, cl, (0, 0, 1, 1, 4, 7, 8) if cl == 0 else (0, 0, 1, 1, 4), (10, 13))
            if n == 7 and not last:
                S.h(16, f"s_mov_b32 s{sWq}, s{sWq1}")
                S.h(17, f"s_add_u32 s{sWq1}, s{sWq1}, {1 << 20}")
                S.h(18, f"s_add_u32 s{sXo1}, s{sXo1}, 256")
                S.h(19, f"s_add_u32 s{sXo}, s{sXo}, 256")
                S.h(20, f"s_cmp_lt_u32 s{sXo}, 1024")
            if not (last and n >= 6):
                k0 = n + 2 - LA
                vm = sum(2 * wd(k) for k in range(k0 + 1, n + 1)) + sum(2 * kd(k) for k in range(k0, n + 1))
                if (n + 1) % 4 < 3 and not (last and n + 1 >= 4) and xd(n - 3):
                    vm = min(vm, sum(2 * wd(k) + 2 * xd(k) + 2 * kd(k) for k in range(n - 2, n + 1)))
                if rampd and n == 0: vm = min(vm, 8)
                if n == 7 and OPT['cvo']: vm = min(vm, 8)
                end_sync(a, S, vm, 5)
            S.emit(None if fin else q2mf(n + 1, first and n < 7)[0])
    if OPT["qprof"] == 6: stamp_dyn(a, 3, sR, 1)
    a.e("L_q2:")
    def q5():
        if OPT["qprof"] == 5:
            a.e(f"s_lshr_b32 s{sT3}, s{sXo}, 8"); a.e(f"s_lshl_b32 s{sT2}, s{sR}, 4"); a.e(f"s_add_u32 s{sT3}, s{sT3}, s{sT2}"); stamp_dyn(a, 4, sT3, 5)
    q5()
    q2_group(0)
    if OPT["ramp"]:
        a.e(f"s_cmp_lg_u32 s{sR}, 0"); a.e("s_cbranch_scc1 L_q2l")
        late_setup()
    lg_in = list(a.lg)
    a.e(".p2align 6")
    a.e("L_q2l:")
    q5()
    q2_group(1)
    assert a.lg == lg_in
    a.e("s_cbranch_scc1 L_q2l")
    q5()
    if OPT["ct2"]:
        code_touch(a, "L_enter", "L_q2b" if T else "L_altwo", 10, 11)
    cv2 = conv_ops(Q2acc, 0, "keep", [0])
    if not OPT["cvo"]:
        q2_group(2); a.e(SCALE)
    else:
        order = [0, 2, 4, 6, 1, 3, 5, 7]
        def mfs(n):
            s, pos = divmod(order[n], 2)
            return [mf(Q2acc(pos, i, j), Greg(n & 1, i), X2reg(s >> 1, j, s & 1), Q2acc(pos, i, j)) for i in range(8) for j in zj(i)]
        kvat = {0: [7], 1: [8], 5: [9, 10], 6: [11, 12]}
        for n in range(8):
            a.c(f"Q2 sub-step {n} (last)")
            S = Sched(a, mfs(n))
            if n < 7:
                rds = []
                for i in range(8): rds += rd_w(Greg((n + 1) & 1, i), wpos(order[n + 1]), i)
                for r, p in zip(rds, RDPOS_X): S.v(p, r)
            if n == 0:
                place_tile(a, S, w_tile(wpos(7), 7, 2), (4, 7)); S.h(14, SCALE)
                for s in range(2): S.v(s, rd_xb(X2reg(1, 0, s), 0, s))
            if n == 1:
                for k, p in enumerate((0, 1, 4, 7)): S.v(p, rd_xb(X2reg(1, 1 + (k >> 1), k & 1), 1 + (k >> 1), k & 1))
            for m, gp in zip(kvat.get(n, []), ((10, 13),) if n < 2 else ((4, 7), (10, 13))):
                un, half = divmod(m - 7, 2)
                pre = [x.replace(f"s{sOff},", f"s{sOff2},") for x in unit_pre(sKn, un * 8192)[4*half:4*half+4]]
                if gp[0] == 4: pre = [x.replace(f"s{sOff2},", f"s{sOff},") for x in pre]
                for x, h_ in zip(pre, (0, 0, 1, 2) if gp[0] == 4 else (0, 1, 4, 8) if n < 2 else (4, 5, 7, 8)): S.h(h_, x)
                so = sOff if gp[0] == 4 else sOff2
                place_tile(a, S, unit_dma(so, so)[2*half:2*half+2], gp)
            if n < 6: end_sync(a, S, {0: 6, 1: 6, 5: 8}.get(n, 20), 5)
            if n >= 4: cv2 = fill_ops(S, cv2, 4 if n == 4 else 0)
            S.emit(mfs(n + 1)[0] if n < 7 else None)
    if OPT["qprof"] == 5: stamp_dyn(a, 3, sR, 1)
    if OPT["stamp"] and not OPT["qprof"]:
        a.e(f"s_lshr_b32 s{sT2}, s{sR}, 1"); stamp_dyn(a, 3, sT2, 2)
    a.c("Q2 conversion")
    for x in packed(cv2): a.e(x)
    def bank_write(db, src):
        return [f"v_accvgpr_write_b32 a{db + 12*p + 4*j + x}, v{src(p, j)+x}" for p in range(4) for j in range(3) for x in range(4)]
    a.e(f"s_cmp_lg_u32 s{sR}, 0"); a.e("s_cbranch_scc1 L_cv2b")
    if OPT["touch"]:
        a.e("v_min_u32 v8, 39, v0"); a.e("v_lshrrev_b32 v9, 2, v8"); a.e("v_lshlrev_b32 v9, 13, v9")
        a.e("v_and_b32 v8, 3, v8"); a.e("v_lshl_add_u32 v9, v8, 7, v9")
        a.e(f"s_lshl_b32 s{sTmp}, s{sB}, 2"); a.e(f"s_add_u32 s{sTmp}, s{sTmp}, s{sWv}"); a.e(f"s_mul_i32 s{sTmp}, s{sTmp}, {10*8192}")
        a.e(f"s_add_u32 s{sTmp}, s{sTmp}, 512")
        a._emit(f"buffer_load_dword v{vD}, v9, {sr(sW,4)}, s{sTmp} offen")
    a.e(f"s_and_b32 s{sWq}, s{sWq}, 0xfffff"); a.e(f"s_xor_b32 s{sWq}, s{sWq}, 512"); a.e(f"s_add_u32 s{sWq1}, s{sWq}, {1 << 20}")
    a.e(f"s_and_b32 s{sXo}, s{sXo}, 128"); a.e(f"s_xor_b32 s{sXo1}, s{sXo}, 128")
    for x in bank_write(QBANK[1], lambda p, j: Q2acc(0, 2*p, j)): a.e(x)
    a.e("s_branch L_cv2c")
    a.e("L_cv2b:")
    if OPT["emu3"]:
        a.e(f"s_cmp_eq_u32 s{sPre}, 1"); a.e("s_cbranch_scc0 L_cv2d")
        a.e(f"s_mov_b32 s{sPre}, 14")
        a.e(f"s_and_b32 s{sWq}, s{sWq}, 0xfffff"); a.e(f"s_add_u32 s{sWq1}, s{sWq}, {1 << 20}")
        a.e(f"s_and_b32 s{sXo}, s{sXo}, 128"); a.e(f"s_xor_b32 s{sXo1}, s{sXo}, 128")
        a.raw_wait("s_waitcnt vmcnt(0)"); a.e("s_barrier")
        for n in range(LA): emit_tile(a, w_tile(wpos(n), n, 2))
        a.raw_wait("s_waitcnt vmcnt(0)")
        a.e("s_branch L_q2go")
        a.e("L_cv2d:")
    a.e("s_nop 7")
    for x in bank_write(QBANK[3], lambda p, j: Q2acc(0, 2*p, j)): a.e(x)
    bootstrap()
    a.e("L_cv2c:")
    for x in packed(conv_ops(Q2acc, 1, None, [0])): a.e(x)
    a.e("L_enter:")
    a.e(f"v_mov_b32 v{vT}, 0x3f803f80")
    if OPT["sparse1"]:
        a.e(f"v_and_b32 v{vT+1}, 3, v0"); a.e(f"v_cmp_eq_u32 vcc, 0, v{vT+1}"); a.e(f"v_cndmask_b32 v{vT}, 0, v{vT}, vcc")
    for r in range(4): a.e(f"v_accvgpr_write_b32 a{ONES[1]+r}, v{vT}")
    def rd_k(dst, t, u): return [f"ds_read_b128 {vr(dst + 4*ks,4)}, v{vKA} offset:{(t % 8)*TILE + u*512 + ks*64}" for ks in range(4)]
    def rd_v(t, half, fr=VF):
        return [f"ds_read_b64_tr_b16 {vr(fr + 4*i + 2*e, 2)}, v{vVA} offset:{(t % 8)*TILE + e*512 + (4*half+i)*32}" for i in range(4) for e in range(2)]
    assert not OPT["lateq"] and OPT["lmax"] == 3
    a.e(f"s_add_u32 s{sKc}, s{sKn}, {4*8192}"); a.e(f"s_mov_b32 s{sLag}, 0")
    assert OPT["cvo"] or not T
    THR = OPT['thr'] + 1 if OPT['dyn'] else 99
    a.e(f"s_cmp_eq_u32 s{sTyp}, 0"); a.e(f"s_cselect_b32 s{sThr}, {0 if OPT['sh1'] else THR}, {THR}")
    a.e(f"s_mov_b32 s{sThN}, {THR}")
    if OPT["sh3"]:
        a.e(f"s_cmp_eq_u32 s{sR}, 2"); a.e(f"s_cselect_b32 s{sThr}, 0, s{sThr}")
        if OPT["sh3"] == 1: a.e(f"s_cselect_b32 s{sThN}, 0, s{sThN}")
    vmw(a, 12)
    a.e("s_barrier")
    a.lg = []
    for r in rd_k(KF, 0, 0) + rd_k(VF, 0, 1): a.e(r)
    for x in unit_pre(sKn, 3 * 8192): a.e(x)
    a.wait(lg="all")
    def ex(u, k): j, r = divmod(k, 4); s = Sr(u, j) + r; return f"v_exp_f32 v{s}, v{s}"
    def cv(u, buf, c): j, h = divmod(c, 2); s = Sr(u, j) + 2*h; return f"v_cvt_pk_bf16_f32 v{Pr(buf,j) + 2*u + h}, v{s}, v{s+1}"
    def qk(u): return [mf(Sr(u, j), KF + 4*ks, Qf(j, ks), Nm(j) if ks == zk(j)[0] else Sr(u, j)) for j in range(3) for ks in zk(j)]
    def pv(t, half, fr=VF): return [mf(Or(4*half + i, j), fr + 4*i, Pr(t & 1, j), None if t == 0 else Or(4*half + i, j)) for i in range(4) for j in zj(i)]
    def sm(t): return [mf(La(j), ONES, Pr(t & 1, j), None if t == 0 else La(j)) for j in zj(1)]
    VMW = min(4 * (5 - OPT["lmax"]), OPT["vmw"])
    decide = [f"s_getreg_b32 s{sC1}, hwreg(HW_REG_IB_STS, 0, 4)", f"s_cmp_ge_u32 s{sC1}, s{sThr}", f"s_cselect_b32 s{sC1}, s{sLag}, 15",
              f"s_cmp_lt_u32 s{sC1}, {OPT['lmax']}"]
    advance = [f"s_mov_b32 s{sOff}, s{sOff2}", f"s_mov_b32 s{sMv}, s{sMk}", f"s_add_u32 s{sKc}, s{sKc}, 8192"]
    recompute = [f"s_xor_b32 s{sOff2}, s{sKc}, s{sRot}", f"s_bfe_u32 s{sMk}, s{sKc}, 0x3000d", f"s_mul_i32 s{sMk}, s{sMk}, {TILE}"]
    skips = []
    def forked(build, nxt):
        l0, l1 = newlabel("df"), newlabel("dfb")
        a.e(f"s_cbranch_scc1 {l0}")
        lg = list(a.lg)
        build(True).emit(nxt)
        a.e(f"{l1}:")
        skips.append((l0, l1, build, nxt, lg, list(a.lg)))
    catch = []
    def wo_at(S, m, gaps):
        st, post = wo_tile(m)
        place_tile(a, S, st, gaps)
        for x in post: S.h(gaps[1], x)
    def tail_vec(S, u, buf, rds):
        pos = [0, 1, 4, 5, 8, 9, 10, 11]
        for r, p in zip(rds, pos): S.v(p, r)
        for k, p in zip(range(8, 12), (2, 3, 6, 7)): S.v(p, ex(u, k))
        for c, p in zip(range(6), (0, 1, 4, 5, 8, 9)): S.v(p, cv(u, buf, c))
    a.e("L_head:")
    a.c("tile 0: scores of the first 16 keys give the stand-in row max")
    def qk0(extra):
        S = Sched(a, [mf(Sr(0, j), KF + 4*ks, Qf(j, ks), None if ks == 0 else Sr(0, j)) for j in range(3) for ks in range(4)])
        S.h(2, lambda: vmw(a, VMW))
        for k, x in enumerate(decide): S.h(3 + k, x)
        for k, x in enumerate(extra[:24]): S.v(k // 2, x)
        S.emit(None)
        for x in extra[24:]: a.e(x)
        if not extra: a.e("s_nop 7")
    qk0([])
    a.e(".p2align 6")
    a.e("L_head2:")
    for j in range(3): a.e(f"v_max3_f32 v{Nm(j)}, v{Sr(0,j)}, v{Sr(0,j)+1}, v{Sr(0,j)+2}")
    for j in range(3): a.e(f"v_max_f32 v{Nm(j)}, v{Nm(j)}, v{Sr(0,j)+3}")
    rowred(a, "v_max_f32", [Nm(j) for j in range(3)], [Nm(j) + 1 for j in range(3)])
    for j in range(3):
        if OPT["pk"]:
            for r in (2, 0): a.e(f"v_pk_mul_f32 v[{Nm(j)+r}:{Nm(j)+r+1}], v[{Nm(j)}:{Nm(j)+1}], -1.0 op_sel_hi:[0,0]")
        else:
            for r in (3, 2, 1, 0): a.e(f"v_sub_f32 v{Nm(j)+r}, 0, v{Nm(j)}")
    a.e("s_barrier")
    def qkb(issue):
        S = Sched(a, [mf(Sr(1, j), VF + 4*ks, Qf(j, ks), Nm(j) if ks == 0 else Sr(1, j)) for j in range(3) for ks in range(4)])
        for r, p in zip(rd_k(KF, 1, 0), (0, 3, 6, 9)): S.v(p, r)
        if issue:
            place_tile(a, S, unit_dma(), (2, 5, 8, 11))
            for x, p in zip(advance, (6, 8, 9)): S.h(p, x)
        else: S.h(1, f"s_add_u32 s{sLag}, s{sLag}, 1")
        subs = [f"v_add_f32 v{Sr(0,j)+r}, v{Sr(0,j)+r}, v{Nm(j)}" for j in range(3) for r in range(4)]
        for x, p in zip(subs, (0, 1, 1, 3, 4, 4, 6, 7, 7, 9, 10, 10)): S.v(p, x)
        return S
    forked(qkb, None)
    for k in range(12): a.e(ex(0, k))
    for k in range(8): a.e(ex(1, k))
    for c in range(6): a.e(cv(0, 0, c))
    a.wait(lg="all")
    def stage(t, mode):
        a.c(f"stage {t} {mode}")
        kv = mode == "kv"
        S = Sched(a, qk(0)); tail_vec(S, 1, t & 1, rd_v(t, 0))
        if kv:
            for k, x in enumerate(recompute): S.h(1 + k, x)
        if kv and OPT["dyn"] and OPT["thr2"] >= 0 and t >= OPT["cufrom"] and (t - OPT["cufrom"]) % OPT["custep"] == 0:
            l0, l1 = newlabel("cu"), newlabel("cub")
            cm = [f"s_add_u32 s{sC1}, s{sC1}, {THR - OPT['thr2']}", f"s_cmp_le_u32 s{sC1}, s{sThr}"] if OPT["gate"] else ["s_nop 0", f"s_cmp_le_u32 s{sC1}, {OPT['thr2']}"]
            for k, x in enumerate([f"s_getreg_b32 s{sC1}, hwreg(HW_REG_IB_STS, 0, 4)"] + cm +
                                  [f"s_cselect_b32 s{sC1}, s{sLag}, 0", f"s_cmp_gt_u32 s{sC1}, 0"]): S.h(5 + k, x)
            def site(l0=l0, l1=l1): a.e(f"s_cbranch_scc1 {l0}"); a.e(f"{l1}:")
            S.h(10, site)
            catch.append((l0, l1, t))
        S.emit(pv(t, 0)[0])
        S = Sched(a, pv(t, 0))
        for r, p in zip(rd_k(KF, t+1, 1), (0, 1, 2, 3)): S.v(p, r)
        for k, p in zip(range(8), range(4, 12)): S.v(p, ex(0, k))
        S.h(10, lambda: a.wait(lg="all"))
        if mode == "wq" and t == 13: place_tile(a, S, x_block(1, 0, sXo) + x_block(2, 0, sXo), (2, 4, 7, 9))
        S.emit(qk(1)[0])
        S = Sched(a, qk(1)); tail_vec(S, 0, (t+1) & 1, rd_v(t, 1))
        if kv:
            if t == OPT["sh1t"]: S.h(2, f"s_mov_b32 s{sThr}, s{sThN}")
            if t == 9 and OPT["sh2"] and T:
                S.h(2, f"s_cmp_eq_u32 s{sR}, s{sPre}"); S.h(3, f"s_cselect_b32 s{sThr}, 0, s{sThr}")
            S.h(6, lambda: vmw(a, VMW))
            for k, x in enumerate(decide): S.h(7 + k, x)
        else:
            S.h(11, lambda: vmw(a, {"wo": 8, "wq": 8 if t < 14 else 4}[mode]))
        S.emit(None)
        def dslot(issue):
            S = Sched(a, sm(t) + pv(t, 1))
            S.h(0, "s_barrier")
            if t + 2 < 16:
                for r, p in zip(rd_k(KF, t+2, 0), (0, 1, 2, 3)): S.v(p, (r, "kr"))
            else:
                for r, p in zip(rd_v(15, 0, KF), (0, 1, 2, 3, 4, 6, 7, 9)): S.v(p, (r, "kr"))
                S.v(10, cv(1, 1, 0)); S.v(12, cv(1, 1, 1))
                if mode == "wq":
                    for k, p in enumerate((0, 1, 2, 5, 8, 10)): S.v(p, (rd_xb(X2reg(0, k >> 1, k & 1), k >> 1, k & 1), "kr"))
            for k, p in zip(range(8), (3, 4, 6, 7, 9, 10, 12, 13)): S.v(p, ex(1, k))
            def vwait(keep):
                def f():
                    idx = [n for n, (tg, d) in enumerate(a.lg) if tg != "kr"]
                    if len(idx) > keep: a._wait(lg_idx=idx[len(idx) - 1 - keep])
                return f
            S.h(1, vwait(4)); S.h(6, vwait(0))
            if kv and issue:
                place_tile(a, S, unit_dma(), (5, 8, 11, 14))
                for x, p in zip(advance, (9, 11, 3)): S.h(p, x)
            elif kv: S.h(3, f"s_add_u32 s{sLag}, s{sLag}, 1")
            elif mode == "wo":
                wo_at(S, 2*(t-12), (5, 8)); wo_at(S, 2*(t-12) + 1, (11, 14))
            else:
                if t == 12: place_tile(a, S, x_block(0, 0, sXo), (5, 8))
                else: place_tile(a, S, w_tile(2*t - 17, 2*t - 25, 2), (5, 8))
                place_tile(a, S, w_tile(2*t - 16, 2*t - 24, 2), (11, 14))
            S.h(12 if t < 14 else 14, lambda: a.wait(lg="all"))
            return S
        nxt = qk(0)[0] if t < 14 else None
        if kv: forked(dslot, nxt)
        else: dslot(True).emit(nxt)
        assert not a.lg
    NPRE = 20
    def epi_ops(toq):
        o_ = [f"v_mul_f32 v{Or(u,j)+r}, v{Or(u,j)+r}, v{vT+j}" for u in range(2) for j in range(3) for r in range(4)]
        for p in range(4):
            for j in range(3):
                d = Qf(j, p) if toq else Or(2*p, j)
                if p: o_ += [f"v_mul_f32 v{Or(2*p+u,j)+r}, v{Or(2*p+u,j)+r}, v{vT+j}" for u in range(2) for r in range(4)]
                o_ += [f"v_cvt_pk_bf16_f32 v{d+2*u+h}, v{Or(2*p+u,j)+2*h}, v{Or(2*p+u,j)+2*h+1}" for u in range(2) for h in range(2)]
        return o_
    def stage15(mode):
        a.c(f"stage 15 {mode}")
        p0 = pv(15, 0, KF)
        S = Sched(a, [m_ for j in range(3) for m_ in [sm(15)[zj(1).index(j)]] + [p0[3*i + zj(i).index(j)] for i in range(4)]] + pv(15, 1))
        for r, p in zip(rd_v(15, 1), (0, 1, 6, 7, 8, 9, 10, 11)): S.v(p, r)
        for c, p in zip((2, 3, 4, 5), (0, 1, 6, 7)): S.v(p, cv(1, 1, c))
        for k, p in zip(range(8, 12), (2, 3, 4, 5)): S.v(p, ex(1, k))
        for j, p in enumerate((8, 9, 14)): S.v(p, f"v_accvgpr_read_b32 v{vT+j}, a{La(j)[1]}")
        S.v(10, f"v_add_f32 v{vT+3}, v{vT}, v{vT+1}"); S.v(14, f"v_add_f32 v{vT+3}, v{vT+3}, v{vT+2}")
        S.v(11, f"v_mov_b32 v{vT+4}, {f32(2.0**60 if not OPT['forceslow'] else 150.0)}")
        S.v(15, f"v_cmp_nle_f32 vcc, v{vT+3}, v{vT+4}")
        for j, p in enumerate((12, 13, 16)): S.v(p, f"v_rcp_f32 v{vT+j}, v{vT+j}")
        if mode != "wo":
            for k, x in enumerate(epi_ops(0)[:NPRE]): S.v(17 + k // 2, x)
        if mode == "kv":
            for k, x in enumerate(recompute): S.h(1 + k, x)
        if mode == "wo":
            for k in range(3): wo_at(S, 6 + k, (11 + 6*k, 14 + 6*k))
        if mode == "wq":
            place_tile(a, S, [s_ for j in range(3) for s_ in x_block(j, 0, sXo1)], (12, 14, 17, 19, 22, 24))
        S.emit(None)
        assert not a.lg
        if not OPT["nocheck"]: a.e("s_cbranch_vccnz L_slow")
    for t in range(15):
        if t == 12:
            a.e(f"s_cmp_eq_u32 s{sR}, 3"); a.e("s_cbranch_scc1 L_altwo")
            if T: a.e(f"s_cmp_eq_u32 s{sR}, s{sPre}"); a.e("s_cbranch_scc1 L_altwq")
        stage(t, "kv")
    stage15("kv")
    a.e("L_epi:")
    for r in rd_k(KF, 0, 0) + rd_k(VF, 0, 1): a.e(r)
    lg_epi = list(a.lg)
    for x in packed(epi_ops(0)[NPRE:]): a.e(x)
    if OPT["stamp"] and not OPT['qprof']: stamp_dyn(a, 5, sR, 4)
    a.e(f"s_add_u32 s{sCur}, s{sCur}, 131072")
    a.e(f"s_add_u32 s{sR}, s{sR}, 1")
    a.e(f"s_cmp_eq_u32 s{sR}, 3"); a.e("s_cbranch_scc1 L_sw2")
    a.e(f"s_cmp_eq_u32 s{sR}, 2"); a.e("s_cbranch_scc1 L_sw1")
    for r in range(3):
        a.e(f"L_sw{r}:")
        if r == 1 and T: a.e(f"s_cmp_eq_u32 s{sPre}, 1"); a.e("s_cbranch_scc1 L_q2b")
        if r < 2: code_touch(a, "L_rare", "L_altwo" if r == 0 or not T else "L_q2b", 10, 11)
        if r == 2:
            code_touch(a, "L_rare", "L_hot_end", 158, 159)
            l = newlabel("bp")
            a.e(f"s_cmp_lg_u32 s{sWv}, 0"); a.e(f"s_cbranch_scc1 {l}")
            a._emit("global_load_dword v156, v157, s[18:19] sc1")
            a.e(f"{l}:")
        for j in range(3):
            for p in range(4):
                for x in range(4): a.e(f"v_accvgpr_read_b32 v{Qf(j,p)+x}, a{QBANK[r+1] + 12*p + 4*j + x}")
        a.raw_wait("s_waitcnt lgkmcnt(0)"); a.lg = []
        qk0(bank_write(OBANK[r], lambda p, j: Or(2*p, j)))
        a.e("s_branch L_head2")
    a.e("L_rare:")
    for l0, l1, t in catch:
        a.e(f"{l0}:")
        emit_tile(a, unit_dma())
        for x in advance + recompute: a.e(x)
        a.e(f"s_sub_u32 s{sLag}, s{sLag}, 1")
        a.e(f"s_branch {l1}")
    for l0, l1, build, nxt, lg0, lg1 in skips:
        a.e(f"{l0}:")
        a.lg = list(lg0)
        build(False).emit(nxt)
        assert a.lg == lg1
        a.e(f"s_branch {l1}")
    if T:
        a.e("L_q2b:")
        for x in bank_write(OBANK[1], lambda p, j: Or(2*p, j)): a.e(x)
        a.e(f"s_sub_u32 s{sKn}, s{sKc}, 8192"); a.e(f"s_add_u32 s{sMin}, s{sCur}, {3*8192}")
        a.raw_wait("s_waitcnt vmcnt(0) lgkmcnt(0)")
        if L0 > 5: a.e("s_barrier")
        for n in range(5, L0): emit_tile(a, w_tile(wpos(n), n, 2))
        a.e("s_branch L_q2go")
        a.e(".p2align 6")
        a.e("L_altwq:")
        a.lg = []
        for t in range(12, 15): stage(t, "wq")
        stage15("wq")
        a.e("s_branch L_epi")
    a.e(".p2align 6")
    a.e("L_altwo:")
    a.lg = []
    for t in range(12, 15): stage(t, "wo")
    stage15("wo")
    sPr, sOut, sOo, sDst = sX, sW, sLast, 40
    LD = {0: 184, 1: 130}
    ACC, STG = 60, 160
    vSA, vSB, vLA, vLB, vOA, vFl, vFi, vPoll, vVal, TM, PK = 152, 153, 154, 158, 159, 1, 2, 6, 10, 120, 124
    def Ga(h, i, j): return (72, 208)[h] + 12 * i + 4 * j
    def spin_loop(l0, l1, cmp, reload):
        a.e(f"{l0}:")
        a.e(f"s_mov_b32 s{sT3}, 0")
        l2 = newlabel("spin")
        a.e(f"{l2}:")
        a.e(f"s_add_u32 s{sT3}, s{sT3}, 1")
        a.e(f"s_cmp_ge_u32 s{sT3}, {SPIN_MAX}")
        a.e(f"s_cbranch_scc1 {l1}")
        a.e(f"s_sleep {OPT['sleep']}")
        a._emit(reload)
        a.raw_wait("s_waitcnt vmcnt(0)")
        for x in cmp: a._emit(x)
        a._emit("s_nop 4")
        a.e(f"s_cbranch_vccnz {l2}")
        a.e(f"s_branch {l1}")
    spins = []
    def rd_g(dst, m, f):
        h, o = slot(m); i, c = divmod(f, 2)
        return [f"ds_read_b64_tr_b16 {R(off(dst, 2*e), 2)}, v{(vWAl, vWAh)[h]} offset:{o + c*512 + e*256 + i*32}" for e in range(2)]
    def gmf(n):
        h, t = divmod(n % 16, 8)
        o = []
        for i in range(4):
            for jn, j in enumerate(zj(i)):
                cs = (1, 0) if OPT["zz"] and (3 * i + jn) & 1 else (0, 1)
                for c in cs:
                    r, p = divmod(2 * t + c, 4)
                    o.append(mf(Ga(h, i, j), Greg(n & 1, 2*i + c), Qf(j, p) if r == 3 else ("a", OBANK[r] + 12 * p + 4 * j), None if t == 0 and c == cs[0] else Ga(h, i, j)))
        return o
    a.e("L_g:")
    a.lg = []
    if OPT["stamp"] and not OPT['qprof']: stamp(a, 8)
    if OPT["qprof"] == 4: stamp(a, 4)
    a.e(f"v_lshrrev_b32 v{TM}, 5, v0"); a.e(f"v_lshlrev_b32 v{TM}, 7, v{TM}")
    a.e(f"v_sub_u32 v{vWAh}, v{vVA}, v{TM}"); a.e(f"v_subrev_u32 v{vWAl}, {VB}, v{vWAh}")
    a.e(f"v_mov_b32 v{TM+1}, {XB}")
    vmw(a, 12)
    l, l0, l1 = newlabel("bc"), newlabel("bs"), newlabel("bok")
    a.e(f"s_cmp_lg_u32 s{sWv}, 0"); a.e(f"s_cbranch_scc1 {l}")
    bcmp = [f"v_and_b32 v{TM}, 0xff, v156", f"v_cmp_gt_u32 vcc, 8, v{TM}"]
    for x in bcmp: a._emit(x)
    a.e(f"s_lshl_b32 s{sTmp}, s{sPK}, 3")
    a._emit("s_nop 3")
    if not OPT["nosync"]: a.e(f"s_cbranch_vccnz {l0}")
    a.e(f"{l1}:")
    spins.append((l0, l1, bcmp, "global_load_dword v156, v157, s[18:19] sc1"))
    a.e(f"v_xor_b32 v156, s{sTmp}, v156")
    a._emit(f"ds_write_b32 v{TM+1}, v156")
    a.e(f"{l}:")
    a.e("s_barrier")
    for f in range(8):
        for r in rd_g(Greg(0, f), 0, f): a.e(r)
    epi = epi_ops(1)
    NC = 24 if OPT["pk"] else 16
    for x in packed(epi[:NC]): a.e(x)
    epi = epi[NC:]
    def srd_atoms(d, lo, o): return [[f"s_add_u32 s{d}, s{lo}, {o}", f"s_addc_u32 s{d+1}, s{lo+1}, 0"], [f"s_and_b32 s{d+1}, s{d+1}, 0xffff"], [f"s_mov_b32 s{d+3}, 0x20000"]]
    T1_, T2_ = f"s{sTmp}", f"s{sT2}"
    setup_ = [[f"s_mul_i32 {T1_}, s{sG}, {XG}"]] + srd_atoms(sP, 28, T1_) + [[f"s_mov_b32 s{sP+2}, {XG}"], [f"s_mul_i32 {T2_}, s{sU}, {XD}"], [f"s_add_u32 {T1_}, {T1_}, {T2_}"]]
    setup_ += srd_atoms(sPr, 28, T1_) + [[f"s_mov_b32 s{sPr+2}, 0"]]
    if OPT["ibg"]:
        setup_ += [[x] for x in (f"s_mul_i32 {T2_}, s{sWv}, 1536", f"s_add_u32 {T2_}, {T2_}, {T1_}", f"s_add_u32 {T2_}, {T2_}, {5*XP}",
            "v_min_u32 v3, 47, v0", "v_mul_u32_u24 v132, 43, v3", "v_lshrrev_b32 v132, 9, v132", "v_lshlrev_b32 v3, 7, v3",
            "v_mul_u32_u24 v132, 4608, v132", f"v_add3_u32 v3, v3, v132, {T2_}", f"s_add_u32 {T2_}, {T2_}, {XD - 6144 + 1408}",
            "v_add_u32 v157, 24576, v3", f"v_min_u32 v157, {T2_}, v157")]
    for i in range(7):
        setup_ += [[f"s_xor_b32 s{sDst+i}, s{sU}, {i ^ 7}"], [f"s_mul_i32 s{sDst+i}, s{sDst+i}, {XD}"], [f"s_add_u32 s{sDst+i}, s{sDst+i}, {i*6144}"]]
    setup_ += [[f"s_mul_i32 {T1_}, s{sB}, 491520"], [f"s_mul_i32 {T2_}, s{sBr}, 1280"], [f"s_add_u32 {T1_}, {T1_}, {T2_}"], [f"s_lshl_b32 {T2_}, s{sU}, 5"], [f"s_add_u32 {T1_}, {T1_}, {T2_}"]]
    setup_ += srd_atoms(sOut, 16, T1_) + [[f"s_mov_b32 s{sOut+2}, 0"]]
    setup_ += [[x] for x in (f"s_mul_i32 {T1_}, s{sWv}, 1536", f"v_lshl_add_u32 v{vSA}, v0, 4, {T1_}", f"s_add_u32 {T1_}, {T1_}, 1024", f"v_lshl_add_u32 v{vSB}, v0, 3, {T1_}",
        *((f"v_and_b32 v{TM}, 15, v0", f"v_mul_u32_u24 v{TM}, 2560, v{TM}", f"v_lshrrev_b32 v{TM+3}, 4, v0", f"v_lshl_add_u32 v{TM}, v{TM+3}, 3, v{TM}") if not OPT["bp"] else
          (f"v_lshrrev_b32 v{TM}, 2, v0", f"v_and_b32 v{TM+3}, 3, v0", f"v_lshl_add_u32 v11, v{TM+3}, 4, v{TM}", "v_lshlrev_b32 v11, 2, v11",
           f"v_mul_u32_u24 v{TM}, 2560, v{TM}", f"v_lshl_add_u32 v{TM}, v{TM+3}, 3, v{TM}")),
        f"s_mul_i32 {T1_}, s{sWv}, {48*2560}", f"v_add_u32 v{vOA}, {T1_}, v{TM}",
        f"s_lshl_b32 {T1_}, s{sWv}, 7", f"s_lshl_b32 {T2_}, s{sU}, 2", f"s_add_u32 {T2_}, {T2_}, {T1_}", f"v_lshl_add_u32 v{vFl}, v0, 9, {T2_}",
        f"s_lshl_b32 {T2_}, s{sU}, 9", f"s_add_u32 {T2_}, {T2_}, {T1_}", f"v_and_b32 v{TM}, 7, v0", f"v_lshl_add_u32 v{vFi}, v{TM}, 2, {T2_}",
        f"v_mov_b32 v{vVal}, 0", f"v_mov_b32 v{vPoll}, 0", f"s_mov_b32 s{sGc}, 0" if not OPT["emu3"] else f"s_lshl_b32 s{sGc}, s{sTyp}, 1", f"s_mov_b32 s{sOo}, -512" if not OPT["emu3"] else f"s_mov_b32 s{sOo}, 0", f"s_mov_b32 s{sS8}, 0xffff0000")]
    if OPT["mred"]:
        sel_ = [x for x in ("v_and_b32 v134, 1, v0", "v_lshlrev_b32 v134, 4, v134", "v_mov_b32 v135, 0x3f80", "v_lshlrev_b32 v134, v134, v135",
            "v_bfe_u32 v135, v0, 1, 3", "v_lshrrev_b32 v136, 4, v0", "v_lshlrev_b32 v136, 1, v136", "v_xor_b32 v135, v135, v136",
            "v_cmp_eq_u32 vcc, 0, v135", "v_mov_b32 v142, 0", "v_cndmask_b32 v136, 0, v134, vcc", "v_cmp_eq_u32 vcc, 1, v135", "v_mov_b32 v143, 0",
            "v_cndmask_b32 v137, 0, v134, vcc", "v_accvgpr_write_b32 a0, v136", "v_accvgpr_write_b32 a2, v136", "v_accvgpr_write_b32 a1, v137",
            "v_accvgpr_write_b32 a3, v137", "v_mov_b32 v148, 0", "v_mov_b32 v149, 0")]
    m = 9
    Ss = []
    for n in range(8):
        S = Sched(a, gmf(n)); Ss.append(S)
        rds = []
        for f in range(8): rds += rd_g(Greg((n + 1) & 1, f), n + 1, f)
        for r, p in zip(rds, RDPOS): S.v(p, r)
        for gp in ([(6, 11), (16, 19)] if n < 4 else [(6, 11)]): wo_at(S, m, gp); m += 1
        if n % 4 == 1: end_sync(a, S, {1: 12, 5: 16}[n], 0)
        else: S.h(22, lambda: a.wait(lg="all"))
        if n == 2: S.v(20, f"ds_read_b32 v{TM+2}, v{TM+1}")
        if OPT["ibg"] and n == OPT["ibn"]: S.v(16, lambda: a._emit(f"global_load_dword v132, v3, s[28:29]"))
        if OPT["ibg"] and n == min(7, OPT["ibn"] + 3): S.v(16, lambda: a._emit(f"global_load_dword v133, v157, s[28:29]"))
        if n == 7:
            S.v(19, f"v_readfirstlane_b32 s{sTmp}, v{TM+2}"); S.h(21, f"s_cmp_lg_u32 s{sTmp}, 0")
    assert m == 21
    n, k = 0, 0
    for atom in setup_:
        while True:
            S = Ss[n]
            ok = (not S.hold[k]) if atom[0].startswith("s_") else free_slots(S)[k] > 0
            if atom[0].startswith("s_") and len(atom) > 1 and free_slots(S)[k] == 0: ok = False
            if ok: break
            k += 1
            if k == 24: n += 1; k = 0
        for x in atom: (S.h if x.startswith("s_") else S.v)(k, x)
        if not atom[0].startswith("s_") or True:
            k += 1
            if k == 24: n += 1; k = 0
    assert (n, k) < (7, 18), (n, k)
    for n in range(7):
        epi = fill_ops(Ss[n], epi)
        if n == 5: assert len(epi) <= 72 - 8, len(epi)
    assert not epi, len(epi)
    if OPT["mred"]: assert not fill_ops(Ss[7], sel_)
    for n in range(8):
        a.c(f"G first half, sub-step {n}")
        Ss[n].emit(gmf(n + 1)[0])
    a.e("s_branch L_gx" if OPT["xmode"] == 1 else "s_cbranch_scc1 L_gx")
    NP = {0: 4, 1: 3}
    def cvs(h): return [f"v_cvt_pk_bf16_f32 v{STG + 6*i + 2*j + x}, v{Ga(h,i,j)+2*x}, v{Ga(h,i,j)+2*x+1}" for i in range(NP[h]) for j in range(3) for x in range(2)]
    def rops(h, k):
        o = []
        for r in range(6):
            s = LD[h] + 6*k + r; t = TM + 2 * (r & 1)
            src = Ga(1, 3, r >> 1) + 2 * (r & 1) if (h, k) == (0, 0) else ACC + 2*r
            o += [f"v_lshlrev_b32 v{t}, 16, v{s}", f"v_and_b32 v{t+1}, s{sS8}, v{s}",
                  f"v_add_f32 v{ACC+2*r}, v{src}, v{t}", f"v_add_f32 v{ACC+2*r+1}, v{src+1}, v{t+1}"]
        return o
    def ldreg(h, k):
        if not OPT["mred"]: return LD[h] + 6*k, LD[h] + 6*k + 4
        if (h, k) == (1, 2): return 144, 150
        b_ = LD[h] + 12 * (k >> 1)
        return (b_ + 6, b_) if k & 1 else (b_ + 2, b_ + 10)
    def rmf(h, pr):
        q_ = (142, 146, 148) if (h, pr) == (1, 1) else [LD[h] + 12*pr + 4*j for j in range(3)]
        return [mf(ACC + 4*j, ("a", 0), q_[j], Ga(1, 3, j) if (h, pr) == (0, 0) else ACC + 4*j) for j in range(3)]
    rcv = [f"v_cvt_pk_bf16_f32 v{PK+r}, v{ACC+2*r}, v{ACC+2*r+1}" for r in range(6)]
    bps = [f"ds_bpermute_b32 v{PK+r}, v11, v{PK+r}" for r in range(6)] if OPT["bp"] else []
    def rst(j): return ([f"s_add_u32 s{sOff2}, s{sOo}, {j*40960}"], f"buffer_store_dwordx2 {vr(PK+2*j,2)}, v{vOA}, {sr(sOut,4)}, s{sOff2} offen{['', ' sc1', ' nt', ' sc0 sc1'][OPT['opol']]}")
    chk_cmp = [f"v_cmp_gt_u32 vcc, v{vVal}, v{vPoll}"]
    poll = f"buffer_load_dword v{vPoll}, v{vFi}, {sr(sF,4)}, 0 offen sc1"

    def g_phase(fast):
        pol = ("", " nt", " sc0")[OPT["xs"]] if fast else " sc1"
        la, lb = (vSA, vSB) if fast else (vLA, vLB)
        def xst(h, i):
            o4, o2 = (2, 0) if OPT["mred"] and i & 1 else (0, 4)
            return [([], f"buffer_store_dwordx4 {vr(STG+6*i+o4,4)}, v{vSA}, {sr(sP,4)}, s{sDst+4*h+i} offen{pol}"),
                    ([], f"buffer_store_dwordx2 {vr(STG+6*i+o2,2)}, v{vSB}, {sr(sP,4)}, s{sDst+4*h+i} offen{pol}")]
        def xld(h, k): return [([f"s_mov_b32 s{sOff2}, {(4*h+k)*6144}"], f"buffer_load_dwordx4 {vr(ldreg(h,k)[0],4)}, v{la}, {sr(sPr,4)}, s{sOff2} offen sc1"),
                               ([], f"buffer_load_dwordx2 {vr(ldreg(h,k)[1],2)}, v{lb}, {sr(sPr,4)}, s{sOff2} offen sc1")]
        flag = f"buffer_store_dword v{vVal}, v{vFl}, {sr(sF,4)}, 0 offen{pol}"
        def check():
            l0, l1 = newlabel("sp"), newlabel("ok")
            if not OPT["nosync"]: a.e(f"s_cbranch_vccnz {l0}")
            a.e(f"{l1}:")
            spins.append((l0, l1, chk_cmp, poll))
        if fast: a.e(f"v_add_u32 v{vSA}, {5*XP}, v{vSA}"); a.e(f"v_add_u32 v{vSB}, {5*XP}, v{vSB}")
        else: a.e(f"v_subrev_u32 v{vLA}, {XP}, v{vSA}"); a.e(f"v_subrev_u32 v{vLB}, {XP}, v{vSB}")
        a.e(f"s_branch L_gmid{int(fast)}")
        late = []
        def body():
            del late[:]
            Ss = [Sched(a, gmf(n) + (rmf(n // 8, 0) + rmf(n // 8, 1) if OPT['mred'] and n % 8 == 6 else [])) for n in range(16)]
            cap = [[2] * 24 for _ in range(16)]
            ops = []
            def vmem(n, g_, steps, kind):
                if isinstance(kind, tuple) and kind[0] == "T": place_tile(a, Ss[n], steps, g_)
                else:
                    for (pre, d), x in zip(steps, g_):
                        for y in pre: Ss[n].h(x, y)
                        Ss[n].v(x, lambda d=d: a._emit(d))
                for x in g_: cap[n][x] = 0; ops.append((n, x, kind))
            tpos = {0: [(6, 11)], 1: [(6, 11)], 4: [(6, 11), (16, 19)], 5: [(11, 16), (19, 22)], 6: [(6, 11)], 7: [(11, 16)]}
            m = 13
            for n in range(16):
                h, t = divmod(n, 8); S = Ss[n]
                rds = []
                for f in range(8): rds += rd_g(Greg((n + 1) & 1, f), n + 1, f)
                for r, p in zip(rds, RDPOS): S.v(p, r); cap[n][p] -= 1
                cap[n][23] = 0 if n % 4 == 1 else 1; cap[n][20] = min(cap[n][20], 1); cap[n][21] = min(cap[n][21], 1)
                for gp in tpos.get(t, []):
                    st, post = wo_tile(m)
                    if m == 16:
                        S.h(gp[0] - 4, f"s_cmp_eq_u32 s{sGc}, 4"); S.h(gp[0] - 3, f"s_cselect_b32 s{sWo+2}, 0, s{sWo+2}")
                    vmem(n, gp, st, ("T", m))
                    for x in post: S.h(gp[1], x)
                    m += 1
                if t == 2:
                    xs = [s_ for i in range(NP[1-h]) for s_ in xst(1 - h, i)] + [s_ for k in range(NP[h]) for s_ in xld(h, k)]
                    if OPT["xord"]:
                        st_ = xs[:2*NP[1-h]]; ld_ = xs[2*NP[1-h]:]
                        pat = {6: "SLSLLSL" * 2, 8: "SSLSLSL" + "SSLSLSL"}[len(st_)] if OPT["xord"] == 1 else {6: "SSLLSLL" * 2, 8: "SSSLSLL" * 2}[len(st_)]
                        xs = [(st_ if c_ == "S" else ld_).pop(0) for c_ in pat]
                    pos = [(n + d, g_) for d in (0, 1) for g_ in (6, 11, 16, 19, 20, 21, 22)]
                    for s_, (n2, g_) in zip(xs, pos): vmem(n2, (g_,), [s_], ("X", h))
                if t == 5: vmem(n, (6,), [([], flag)], "F"); S.v(4, f"v_add_u32 v{vVal}, 1, v{vVal}"); cap[n][4] -= 1
                if t == 7: vmem(n, (6,), [([], poll)], ("P", h))
            assert m == 29
            if OPT["opos"] == 0: vmem(4, (20, 21, 22), [rst(j) for j in range(3)], "O")
            else:
                for j, (n2, g_) in enumerate(((6, 16), (8, 16), (14, 16)) if OPT["opos"] == 1 else ((6, 16), (7, 21), (8, 19))): vmem(n2, (g_,), [rst(j)], "O")
            for x, (n2, g_) in zip(bps, ((2, 23), (3, 23), (4, 22), (4, 23), (6, 22), (6, 23))): Ss[n2].v(g_, x); cap[n2][g_] = max(0, cap[n2][g_] - 1)
            ops.sort(key=lambda x: (x[0], x[1]))
            ops2 = ops + [(n + 16, g_, k) for n, g_, k in ops]
            def younger(pt, n, g_): return len([o for o in ops2 if pt < (o[0], o[1]) < (n, g_)])
            for h in range(2):
                pt = max((o[0], o[1]) for o in ops if o[2] == ("X", h))
                Ss[8*h + 5].h(2, lambda c=younger(pt, 8*h + 5, 2): vmw(a, c))
                pt = [(o[0], o[1]) for o in ops if o[2] == ("P", h)][0]
                nc = 8*h + 9
                Ss[nc % 16].h(16, lambda c=younger(pt, nc, 16): vmw(a, c))
                Ss[nc % 16].v(16, lambda: a._emit(chk_cmp[0])); cap[nc % 16][16] -= 1
                Ss[nc % 16].h(20, check)
            def fill(lst, n, g_, rec=None):
                for op in lst:
                    while cap[n % 16][g_] <= 0:
                        g_ += 1
                        if g_ == 24: n += 1; g_ = 0
                    if not OPT["norv"]: Ss[n % 16].v(g_, lambda op=op: a._emit(op))
                    cap[n % 16][g_] -= 1
                    if rec is not None and n >= 16: rec.append(op)
                return n, g_
            e = fill(cvs(1), 0, 1); assert e < (2, 5), e
            e = fill(cvs(0), 8, 1); assert e < (10, 5), e
            if OPT["mred"]: fill(rcv, 15, 7)
            else:
                e = fill(rops(0, 0), 5, 2); assert e < (8, 10), e
                e = fill([x for k in range(1, 4) for x in rops(0, k)], *e); assert e < (13, 2), e
                e = fill([x for k in range(3) for x in rops(1, k)] + rcv, 13, 2, late); assert e < (18, 22), e
            S = Ss[7]
            if not fast: S.v(19, f"v_add_u32 v{vSA}, {XP}, v{vSA}"); S.v(20, f"v_add_u32 v{vSB}, {XP}, v{vSB}")
            S = Ss[15]
            S.h(0, f"s_cmp_ge_u32 s{sGc}, 1")
            S.h(1, f"s_cselect_b32 s{sOut+2}, {191*2560 + 1024 + 32}, 0")
            S.h(2, f"s_add_u32 s{sOo}, s{sOo}, 256")
            S.h(3, f"s_mov_b32 s{sPr+2}, {5*XP + XD}")
            if not fast:
                S.v(19, f"v_add_u32 v{vLA}, {XP}, v{vLA}"); S.v(20, f"v_add_u32 v{vLB}, {XP}, v{vLB}")
            S.h(18, f"s_add_u32 s{sGc}, s{sGc}, 1")
            S.h(19, f"s_cmp_lt_u32 s{sGc}, 5")
            for n in range(16):
                a.c(f"G sub-step {n}")
                if n == 8:
                    assert not a.lg
                    a.e(f"L_gmid{int(fast)}:")
                if n % 4 == 1:
                    tid = n + 5 + 16
                    pt = max((o[0], o[1]) for o in ops2 if o[2] == ("T", tid if tid < 29 else tid - 16) and (o[0] < 16) == (tid < 29))
                    cnt = len([o for o in ops2 if pt < (o[0], o[1]) < (n + 16, 22) and (o[0] >= 16 + 8 * (n // 8) or (isinstance(o[2], tuple) and o[2][0] == "T"))])
                    end_sync(a, Ss[n], min(cnt, 63), 0)
                else:
                    def w():
                        k = min(len(a.lg), OPT['gkeep']); a.raw_wait(f"s_waitcnt lgkmcnt({k})"); a.lg = a.lg[len(a.lg) - k:] if k else []
                    Ss[n].h(22, w)
                Ss[n].emit(gmf(n + 1)[0])
        lab = "L_gl_fast" if fast else "L_gl_far"
        if OPT["qprof"] == 2 and fast: stamp(a, 5); stamp(a, 6, False)
        a.e(".p2align 6")
        a.e(f"{lab}:")
        if OPT["qprof"] == 4: stamp_dyn(a, 4, sGc, 5)
        a.lg = []
        mark = len(a.ins); nops0 = a.nops; ns = len(spins)
        body(); lg_end = list(a.lg)
        del a.ins[mark:]; a.nops = nops0; del spins[ns:]
        body(); assert a.lg == lg_end
        a.e(f"s_cbranch_scc1 {lab}")
        if OPT["qprof"] == 2 and fast: stamp(a, 7); stamp(a, 8, False)
        if OPT["qprof"] == 4: stamp(a, 3)
        a.c("tail")
        for x in cvs(1): a.e(x)
        stamp(a, 2)
        vmw(a, 2)
        a._emit(chk_cmp[0]); a._emit("s_nop 4"); check()
        for i in range(3): emit_tile(a, xst(1, i))
        def ntv(st): return [(p_, d_ + " nt") if OPT["tl"] & 1 else (p_, d_) for p_, d_ in st]
        for k in range(4): emit_tile(a, ntv(xld(0, k)))
        for op in late + bps: a._emit(op)
        vmw(a, 8)
        a.e(f"v_add_u32 v{vVal}, 1, v{vVal}")
        a._emit(flag)
        early_out = not OPT["tord"]
        if early_out:
            a.raw_wait("s_waitcnt lgkmcnt(0)"); emit_tile(a, [rst(j) for j in range(3)])
        for k in range(4):
            vmw(a, 2 * (3 - k) + (4 if early_out else 1))
            for op in (rops(0, k) if not OPT["mred"] else rmf(0, k >> 1) if k & 1 else []): a._emit(op)
            if k == (3 if OPT["mred"] else 2): a._emit(poll)
        if fast and OPT["cln"] & 1: a._emit(f"global_store_dword v3, v{vVal}, s[28:29] sc1")
        vmw(a, 1 if fast and OPT["cln"] & 1 else 0)
        a._emit(chk_cmp[0]); a._emit("s_nop 4"); check()
        for k in range(3): emit_tile(a, ntv(xld(1, k)))
        if not early_out:
            a.raw_wait("s_waitcnt lgkmcnt(0)"); emit_tile(a, [rst(j) for j in range(3)])
        a.e(f"s_mov_b32 s{sOo}, 1024")
        for k in range(3):
            vmw(a, 2 * (2 - k) + (0 if early_out else 3))
            for op in (rops(1, k) if not OPT["mred"] else rmf(1, k - 1) if k else []): a._emit(op)
        if fast and OPT["cln"] & 4: a._emit(f"global_store_dword v3, v{vVal}, s[28:29] sc1")
        if fast and OPT["cln"] & 2: a._emit(f"global_store_dword v157, v{vVal}, s[28:29] sc1")
        for op in rcv + bps: a._emit(op)
        a.raw_wait("s_waitcnt lgkmcnt(0)")
        emit_tile(a, [rst(j) for j in range(3)])
    g_phase(True)
    a.e("L_fin:")
    stamp(a, 9, False); stamp(a, 10)
    if OPT["leak"] >= 0:
        k = OPT["leak"]
        if k == 0: a.e("s_mov_b32 s79, 0")
        elif k == 9: a.e("s_sub_u32 s79, s98, s82"); a.e("s_lshr_b32 s79, s79, 4")
        else: a.e(f"s_sub_u32 s79, s{80+2*k}, s80")
        a.e("s_add_u32 s79, s79, 15000")
        if OPT["leakwg"] == 1: a.e("s_cmp_lt_u32 s2, 8"); a.e("s_cselect_b32 s79, s79, 0")
        if OPT["leakwg"] == 2: a.e("s_cmp_ge_u32 s2, 248"); a.e("s_cselect_b32 s79, s79, 0")
        if OPT["leakwg"] in (4, 5): a.e("s_and_b32 s76, s2, 1"); a.e("s_cselect_b32 s79, s79, 0" if OPT["leakwg"] == 5 else "s_cselect_b32 s79, 0, s79")
        if OPT["leakwg"] == 3: a.e("s_cmp_eq_u32 s2, 0"); a.e("s_cselect_b32 s79, s79, 0")
        a.e("L_leak:")
        a._emit("s_memrealtime s[76:77]"); a.raw_wait("s_waitcnt lgkmcnt(0)")
        a.e("s_sub_u32 s76, s76, s80"); a.e("s_cmp_lt_u32 s76, s79"); a.e("s_cbranch_scc1 L_leak")
    stamp_store(a, "L_end", 0)
    dbg_store(a)
    a.e("L_end:")
    a.e("s_endpgm")
    nsp = len(spins)
    for s_ in list(spins): spin_loop(*s_)
    a.e("L_hot_end:")
    a.e(".p2align 6")
    a.e("L_gx:")
    g_phase(False)
    a.e("s_branch L_fin")
    for s_ in list(spins[nsp:]): spin_loop(*s_)
    a.reset_counters()
    a.e("L_slow:")
    a.raw_wait("s_waitcnt vmcnt(0) lgkmcnt(0)")
    vKo, vVo, t0, t1 = 10, 11, P_ + 12, P_ + 13
    a.e("s_nop 7")
    a.e(f"v_and_b32 v{t0}, 7, v0"); a.e(f"v_lshlrev_b32 v{t0}, 10, v{t0}")
    a.e(f"v_bfe_u32 v{t1}, v0, 3, 1"); a.e(f"v_lshl_add_u32 v{t0}, v{t1}, 8, v{t0}")
    a.e(f"v_lshrrev_b32 v{t1}, 4, v0"); a.e(f"v_lshl_add_u32 v{vKo}, v{t1}, 4, v{t0}")
    a.e(f"v_bfe_u32 v{t0}, v0, 4, 1"); a.e(f"v_lshlrev_b32 v{t0}, 12, v{t0}")
    a.e(f"v_lshrrev_b32 v{t1}, 5, v0"); a.e(f"v_lshl_add_u32 v{t0}, v{t1}, 8, v{t0}")
    a.e(f"v_and_b32 v{t1}, 15, v0"); a.e(f"v_lshl_add_u32 v{vVo}, v{t1}, 1, v{t0}")
    for j in range(3): a.e(f"v_mov_b32 v{vT+j}, 0xff800000")
    def slow_qk(cinit):
        for u, kf in ((0, KF), (1, VF)):
            for ks in range(4): a.e(f"buffer_load_dwordx4 {vr(kf + 4*ks,4)}, v{vKo}, {sr(sK,4)}, s{sT2} offen offset:{u*512 + ks*64}")
        for u, kf in ((0, KF), (1, VF)):
            for j in range(3):
                for ks in range(4):
                    a.e(mf(Sr(u, j), kf + 4*ks, Qf(j, ks), (Nm(j) if cinit else None) if ks == 0 else Sr(u, j)))
    a.e(f"s_and_b32 s{sT2}, s{sRot}, 0x60000"); a.e(f"s_xor_b32 s{sT2}, s{sT2}, s{sCur}")
    a.e(f"s_add_u32 s{sT3}, s{sT2}, 131072")
    a.e("L_slow_p1:")
    slow_qk(False)
    for j in range(3):
        for u in range(2):
            s = Sr(u, j)
            a.e(f"v_max3_f32 v{vT+j}, v{vT+j}, v{s}, v{s+1}")
            a.e(f"v_max3_f32 v{vT+j}, v{vT+j}, v{s+2}, v{s+3}")
    a.e(f"s_add_u32 s{sT2}, s{sT2}, 8192")
    a.e(f"s_cmp_lt_u32 s{sT2}, s{sT3}")
    a.e("s_cbranch_scc1 L_slow_p1")
    rowred(a, "v_max_f32", [vT, vT+1, vT+2], [Nm(j) for j in range(3)])
    for j in range(3):
        for r in range(4): a.e(f"v_sub_f32 v{Nm(j)+r}, 0, v{vT+j}")
    for r in range(96): a.e(f"v_mov_b32 v{O_+r}, 0")
    for r in range(12): a.e(f"v_accvgpr_write_b32 a{192+r}, 0")
    a.e(f"s_sub_u32 s{sT2}, s{sT3}, 131072")
    a.e("L_slow_p2:")
    slow_qk(True)
    for u in range(2):
        for k in range(12): a.e(ex(u, k))
    for u in range(2):
        for c in range(6): a.e(cv(u, 0, c))
    for half, fr in ((0, KF), (1, VF)):
        for hi in range(2):
            for i in range(4):
                for e in range(2):
                    for rp in range(2):
                        r = 2*rp + hi
                        a.e(f"buffer_load_ushort v{(S_ if hi else fr) + 4*i + 2*e + rp}, v{vVo}, {sr(sV,4)}, s{sT2} offen offset:{r*1024 + e*512 + (4*half+i)*32}")
        a.wait(vm="all")
        for x in range(16): a.e(f"v_lshl_or_b32 v{fr+x}, v{S_+x}, 16, v{fr+x}")
    for m in sm(2): a.e(m)
    for half, fr in ((0, KF), (1, VF)):
        for m in pv(2, half, fr): a.e(m)
    a.e(f"s_add_u32 s{sT2}, s{sT2}, 8192")
    a.e(f"s_cmp_lt_u32 s{sT2}, s{sT3}")
    a.e("s_nop 7")
    a.e("s_cbranch_scc1 L_slow_p2")
    for j in range(3): a.e(f"v_accvgpr_read_b32 v{vT+j}, a{La(j)[1]}")
    for j in range(3): a.e(f"v_rcp_f32 v{vT+j}, v{vT+j}")
    a.e(f"s_cmp_eq_u32 s{sR}, 3"); a.e("s_cbranch_scc1 L_g")
    for x in epi_ops(0)[:NPRE]: a.e(x)
    a.e("s_branch L_epi")
    return a

HDR = f"""; Fused attention blocks A and B in one launch (generated by my own scheduling script, all instruction placement by hand-written rules).
; One workgroup per CU (4 waves x 512 registers, 48 query rows per wave) owns 4 heads of one (branch, batch):
;   Q projection -> softmax attention -> output-projection partial (K = 512); the 8 workgroups of a batch then
; kernarg: 0 A_x, 8 A_k, 16 A_v, 24 A_wq, 32 A_wo, 40 B_x, 48 B_k, 56 B_v, 64 B_wq, 72 B_wo, 80 out, 88 debug, 96 ws
; @launch grid=(256,1,1) block=(256,1,1) lds={LDS}
.amdgcn_target "amdgcn-amd-amdhsa--gfx950"
.text
"""
def kern(name, a):
    return f".globl {name}\n.p2align 8\n.type {name},@function\n{name}:\n" + a.text()
def desc(name, nv, acc, ns):
    return f""".p2align 6
.amdhsa_kernel {name}
  .amdhsa_next_free_vgpr {nv}
  .amdhsa_next_free_sgpr {ns}
  .amdhsa_accum_offset {acc}
  .amdhsa_group_segment_fixed_size 0
  .amdhsa_kernarg_size 104
  .amdhsa_user_sgpr_count 2
  .amdhsa_user_sgpr_kernarg_segment_ptr 1
  .amdhsa_system_sgpr_workgroup_id_x 1
  .amdhsa_float_denorm_mode_32 3
.end_amdhsa_kernel
"""
if __name__ == "__main__":
    a = main_kernel()
    if OPT["pro2"]:
        ix = lambda t: [k for k, i in enumerate(a.ins) if i.text == t][0]
        i0, i1, i2 = ix("L_p0:"), ix("L_p1:"), ix("L_hot_end:") + 1
        a.ins = a.ins[:i0] + a.ins[i1:i2] + [Ins(".p2align 6")] + a.ins[i0:i1] + [Ins("L_p0end:")] + a.ins[i2:]
    if OPT["nodma"] & 1: a.ins = [i for i in a.ins if not (i.kind == "dma" and " v1, " in i.text)]
    if OPT["nodma"] & 2: a.ins = [i for i in a.ins if not (i.kind == "dma" and " v1, " not in i.text)]
    if OPT["nodma"] & 4: a.ins = [i for i in a.ins if not (i.kind == "store" and ("v152," in i.text or "v153," in i.text))]
    if OPT["nodma"] & 8: a.ins = [i for i in a.ins if not (i.kind == "store" and "v159," in i.text)]
    if OPT["nox2"]: a.ins = [i for i in a.ins if not (i.kind == "vmem" and ("v121," in i.text))]
    if OPT["noload"]: a.ins = [i for i in a.ins if not (i.kind == "vmem" and ("v152," in i.text or "v153," in i.text))]
    if OPT["x1"]:
        out = []; on = False; cnt = 0
        for i in a.ins:
            if i.text in ("L_epi:", "L_q2b:") or (OPT["x1"] & 2 and i.text in ("; Q conversion", "; Q2 conversion")): on = True
            if i.op in ("s_barrier",) or i.kind == "mfma" or i.text == "L_enter:": on = False
            out.append(i)
            if on and i.kind == "valu":
                cnt += 1
                if cnt % 2 == 0: out.append(Ins(f"v_mfma_f32_16x16x32_bf16 a[{240+4*(cnt//2%4)}:{243+4*(cnt//2%4)}], a[144:147], a[{96+4*(cnt//2%8)}:{99+4*(cnt//2%8)}], 0"))
        a.ins = out
    if OPT["x2"]:
        out = []; on = False
        for i in a.ins:
            if i.text == "L_q2:": on = True
            if i.text == "L_q2l:": on = False
            if on and i.kind == "mfma": out.append(Ins(f"s_nop {OPT['x2']}"))
            out.append(i)
        a.ins = out
    if OPT["abl"]:
        cnt = [0]
        def drop2(i):
            if OPT["abl"] & 1 and i.op == "ds_read_b64_tr_b16" and (", v4 " in i.text or ", v5 " in i.text):
                cnt[0] += 1; return (cnt[0] // 2) % 2 == 1
            if OPT["abl"] & 2 and i.kind == "lds" and (", v2 " in i.text or ", v3 " in i.text):
                cnt[0] += 1; return (cnt[0] // 2) % 2 == 1
            if OPT["abl"] & 4 and i.kind == "mfma" and "a[204:207], v[" in i.text and i.text.split()[1].startswith(("a[192", "a[196", "a[200")): return True
            if OPT["abl"] & 8 and i.op in ("v_lshlrev_b32", "v_and_b32", "v_add_f32") and ("v120" in i.text or "v121" in i.text or "v122" in i.text or "v123" in i.text) and "v0" not in i.text.replace("v0,", "v0 ").split(): return True
            return False
        a.ins = [i for i in a.ins if not drop2(i)]
    if OPT["gpol"] or OPT["kpol"]:
        out = []
        for i in a.ins:
            if i.kind == "dma" and " nt " not in i.text and OPT["gpol"]: i = Ins(i.text.replace(" lds", [" ", " sc1", " sc0", " nt", " sc0 sc1"][OPT["gpol"]] + " lds"))
            elif i.kind == "dma" and " nt " in i.text and OPT["kpol"]: i = Ins(i.text.replace(" nt lds", [" ", " sc1 nt", " sc0 nt", " sc0 sc1 nt"][OPT["kpol"]] + " lds"))
            out.append(i)
        a.ins = out
    if OPT["xb"]:
        out = []; on = False; c = 0
        for i in a.ins:
            if i.text.startswith("; Q") and "sub-step" in i.text: on = True
            if "conversion" in i.text: on = False
            if on and i.op == "s_barrier":
                c += 1
                if c % OPT["xb"]: continue
            out.append(i)
        a.ins = out
    if OPT["xa"]:
        i0 = [k for k, i in enumerate(a.ins) if i.text == "; stage 0 kv"][0]; i1 = [k for k, i in enumerate(a.ins) if i.text == "; stage 15 kv"][0]
        def drop(i):
            if OPT["xa"] & 1 and i.op == "s_cbranch_vccnz": return True
            if OPT["xa"] & 2 and i.op in ("s_mul_i32", "s_bfe_u32", "s_xor_b32", "s_getreg_b32", "s_cselect_b32", "s_cselect_b64", "s_sub_u32", "s_cmp_gt_u32", "s_cmp_gt_i32", "s_cmp_le_u32"): return True
            if OPT["xa"] & 4 and i.op == "s_barrier": return True
            if OPT["xa"] & 8 and i.op == "s_waitcnt" and "lgkm" in i.text: return True
            if OPT["xa"] & 16 and i.op == "s_mul_i32": return True
            return False
        a.ins = a.ins[:i0] + [i for i in a.ins[i0:i1] if not drop(i)] + a.ins[i1:]
    if OPT["strip"] == 2:
        i0 = [k for k, i in enumerate(a.ins) if i.text == "L_head:"][0]; i1 = [k for k, i in enumerate(a.ins) if i.text == "L_epi:"][0]
        a.ins = a.ins[:i0] + [Ins("s_nop 4") if i.kind == "mfma" else i for i in a.ins[i0:i1] if i.kind not in ("lds", "trans", "valu")] + a.ins[i1:]
    if OPT["strip"] == 1:
        i0 = [k for k, i in enumerate(a.ins) if i.text == "L_head:"][0]; i1 = [k for k, i in enumerate(a.ins) if i.text == "L_epi:"][0]
        a.ins = a.ins[:i0] + [i for i in a.ins[i0:i1] if i.kind not in ("mfma", "lds", "trans", "valu")] + a.ins[i1:]
    ns = 102 if OPT["stamp"] else NSGPR
    open(sys.argv[1], "w").write(HDR + kern(NAME + "_kernel", a) + '.section .rodata,"a"\n' + desc(NAME + "_kernel", 512, 256, ns))
    print("instrs", len(a.ins), "nops", a.nops)
```

```python
import sys, math, struct, re
from asmlib import *

NAME = "concat_heads__mha_block_cached__gqa_block_cached__near_ridge"
def f32(x): return "0x%08x" % struct.unpack("<I", struct.pack("<f", x))[0]
OPT = dict(stamp=0, nodma=0, nocheck=0, touch=0, forceslow=0, map84=0, first=6, rot=3, strip=0, cyc=0, typ=2, track=1, nosync=0, sleep=1, opos=1, lag=4, noack=0, noload=0, stpol=1, nolw=0, krot=1, hrot=4, emu3=0, ramp=1, cupos=1, la4=7, ls4=0, k2=0, k4=1, w2=4, qb2=1, hx=1, sh3=0, gpol=0, kpol=0, pk=1, cln=0, xb=0, mred=1, xord=1, vmw=8, pro2=1, bp=1, tord=1, abl=0, zz=1, x1=0, x2=0, opol=2, tl=0, xs=0, kvconv=1, sh1=1, sh2=1, sh1t=2, lateq=0, gate=1, ibg=1, ibn=4, xa=0, stag=0, fskip=0, cufrom=4, custep=2, cvo=1, woq=1, ibnt=0, ibt=14, ct2=1, inbox0=0, sparse1=1, noinbox=1, cthead=3, help=3, latekv=1, wot=0, lmax=4, thr=4, thr2=2, dyn=1, xmode=0, gkeep=0, leak=-1, leakwg=0, st0=0, norv=0, now0=0, gcap=0, qprof=0, la=7, ldpol=1, lmode=0, ldfix=0, nox2=0, wnt=0, xnt=0, t0x=0, t0w=0, ctouch=3, dbgout=0)
for a_ in sys.argv[2:]:
    k_, v_ = a_.split("="); assert k_ in OPT, k_; OPT[k_] = int(v_)

def R(x, n):
    t, i = x if isinstance(x, tuple) else ("v", x)
    return f"{t}{i}" if n == 1 else f"{t}[{i}:{i+n-1}]"
def off(x, d): return (x[0], x[1] + d) if isinstance(x, tuple) else x + d
def mf(d, a, b, c):
    return f"v_mfma_f32_16x16x32_bf16 {R(d,4)}, {R(a,4)}, {R(b,4)}, {'0' if c is None else R(c,4)}"

def zj(i): return (2, 1, 0) if (i & 1) and OPT["zz"] else (0, 1, 2)
def zk(j): return (3, 2, 1, 0) if (j & 1) and OPT["zz"] else (0, 1, 2, 3)
TILE = 8448
VB = 8 * TILE
XB = 16 * TILE
LDS = XB + 24576
NSLOT = 8
CH = NSLOT * 1024
PART = 240 * CH
STAMP_AT = 128 << 20
FLG = 120 << 20
XD = 7 * 6144
XP = 8 * XD
XG = 6 * XP
SPIN_MAX = 2000000
def slot(m):
    m %= 16
    return (m & 1), (m >> 1) * TILE

vKV, vKA, vVA, vWAl, vWAh, vW = 1, 2, 3, 4, 5, 6
vT = 7
QF, NM, S_, P_, KF, VF, O_ = 12, 60, 72, 96, 120, 136, 160
vX0, vX1, vXA0, vXA1 = 156, 157, 158, 159
vTo, vD, vPt, vWo = 152, 153, 154, 155
def Qf(j, ks): return QF + 16 * j + 4 * ks
def Nm(j): return NM + 4 * j
def Sr(u, j): return S_ + 12 * u + 4 * j
def Pr(buf, j): return P_ + 12 * buf + 4 * j
def Or(i, j): return O_ + 12 * i + 4 * j
def Wreg(buf, i): return 12 + 32 * buf + 4 * i
def Xreg(buf, j, s): return 76 + 24 * buf + 8 * j + 4 * s
def Qacc(pos, i, j):
    k = 12 * i + 4 * j
    if pos == 0: return ("a", k)
    if pos == 1: return ("a", 96 + k)
    if pos == 2: return ("a", 192 + k) if k < 64 else 124 + (k - 64)
    return O_ + k
QBANK = {3: 0, 2: 48, 1: 96}
OBANK = {0: 144, 1: 96, 2: 48, 3: 0}
def La(j): return ("a", 192 + 4 * j)
ONES = ("a", 204)
def Greg(buf, i): return ("a", 192 + 32 * buf + 4 * i)
sX, sW, sK, sV, sWo, sP = 32, 36, 40, 44, 48, 52
sWv, sKVL, sWL, sXL, sOff, sOff2, sTmp, sR, sCur, sT2, sT3 = 60, 61, 62, 63, 64, 65, 66, 67, 68, 69, 70
sB, sU, sBr, sG, sXo, sPo = 71, 72, 73, 74, 75, 76
sCX, sNX, sLast, sS8, sWoB, sTask, sTyp = 56, 57, 58, 59, 77, 30, 31
sWq, sGc = 26, 27
sWq1, sJ, sRot, sPM, sPK = 20, 21, 22, 23, 24
sF, sD0, sD1 = 8, 12, 13
sJh, sXo1, sPre = 25, 77, 30
sKc, sLag = 57, 76
sThN = 62
sWL = sKVL
sThr = 56
sBL, sMin, sKn, sMv, sMk, sKVv, sC1 = 57, 76, 23, 58, 59, 3, 25
sH = [4, 5, 6, 7]
NSGPR = 80

def stamp(a, k, real=True):
    if not OPT["stamp"]: return
    lg = list(a.lg)
    a.raw_wait("s_waitcnt lgkmcnt(0)")
    if OPT["cyc"] and 2 <= k <= 8: real = False
    a._emit(f"{'s_memrealtime' if real else 's_memtime'} s[{80+2*k}:{81+2*k}]")
    a.raw_wait("s_waitcnt lgkmcnt(0)")
def stamp_dyn(a, base, sidx, n):
    if not OPT["stamp"]: return
    a.raw_wait("s_waitcnt lgkmcnt(0)")
    a._emit("s_memtime s[78:79]" if OPT["cyc"] else "s_memrealtime s[78:79]")
    a.raw_wait("s_waitcnt lgkmcnt(0)")
    for q in range(n):
        a.e(f"s_cmp_eq_u32 s{sidx}, {q}")
        a.e(f"s_cselect_b32 s{80+2*(base+q)}, s78, s{80+2*(base+q)}")
def stamp_store(a, label, base):
    if not OPT["stamp"]: return
    a.e(f"s_cmp_lg_u32 s{sWv}, 0")
    a.e(f"s_cbranch_scc1 {label}")
    for k in range(11): a.e(f"v_mov_b32 v{16+k}, s{80+2*k}")
    a.e("s_lshl_b32 s78, s2, 6"); a.e(f"s_add_u32 s78, s78, {STAMP_AT + base*64}")
    a.e("v_mov_b32 v28, s78")
    a.e("s_mov_b64 exec, 1")
    a.e("global_store_dwordx4 v28, v[16:19], s[28:29]")
    a.e("global_store_dwordx4 v28, v[20:23], s[28:29] offset:16")
    a.e("global_store_dwordx4 v28, v[24:27], s[28:29] offset:32")

def dbg_store(a):
    if not OPT["dbgout"]: return
    l = "L_dbgskip"
    a.e("s_and_b32 s78, s2, 0xdf"); a.e("s_cmp_lg_u32 s78, 5"); a.e(f"s_cbranch_scc1 {l}")
    a.e("s_load_dwordx2 s[24:25], s[0:1], 88")
    for n, k in enumerate((3,4,5,6,7,8,2,10)):
        a.e(f"s_sub_u32 s79, s{80+2*k}, s80"); a.e(f"v_mov_b32 v{32+n}, s79")
    a.e("s_and_b32 s78, s2, 32"); a.e("v_mov_b32 v29, s78")
    a.raw_wait("s_waitcnt lgkmcnt(0)")
    a.e("global_store_dwordx4 v29, v[32:35], s[24:25]")
    a.e("global_store_dwordx4 v29, v[36:39], s[24:25] offset:16")
    a.e(f"{l}:")

def srd(a, d, lo, o, size):
    a.e(f"s_add_u32 s{d}, s{lo}, {o}")
    a.e(f"s_addc_u32 s{d+1}, s{lo+1}, 0")
    a.e(f"s_and_b32 s{d+1}, s{d+1}, 0xffff")
    a.e(f"s_mov_b32 s{d+2}, {size}")
    a.e(f"s_mov_b32 s{d+3}, 0x20000")
_lbl = [0]
def newlabel(p):
    _lbl[0] += 1
    return f"L_{p}_{_lbl[0]}"
class U(str): pass

def ldsbase(m):
    h, o = slot(m); return h * VB + o
def w_tile(m, n, nh=4):
    b = ldsbase(m); base = sWq if n < 4 * nh else sWq1
    rel = ((n % (4 * nh)) // nh) * 262144 + (nh - 1 - n % nh) * 256
    pol = ' nt' if OPT['wnt'] else ''
    return [([f"s_xor_b32 s{sOff}, s{base}, {rel}", f"s_add_u32 m0, s{sWL}, {b}"], f"buffer_load_dwordx4 v{vW}, {sr(sW,4)}, s{sOff} offen{pol} lds"),
            ([f"s_xor_b32 s{sOff}, s{base}, {rel + 8192}", f"s_add_u32 m0, s{sWL}, {b + 1032}"], f"buffer_load_dwordx4 v{vW}, {sr(sW,4)}, s{sOff} offen{pol} lds")]
def kv_tile(m, t):
    b = ldsbase(m); s = sV if m & 1 else sK
    assert t < 16
    so = f"s_xor_b32 s{sOff}, s{sCX}, {t * 8192}"
    return [([so, f"s_add_u32 m0, s{sKVL}, {b}"], f"buffer_load_dwordx4 v{vKV}, {sr(s,4)}, s{sOff} offen nt lds"),
            ([f"s_add_u32 m0, s{sKVL}, {b + 32}"], f"buffer_load_dwordx4 v{vKV}, {sr(s,4)}, s{sOff} offen offset:1024 nt lds")]
def unit_pre(base, add):
    return [f"s_add_u32 s{sMv}, s{base}, {add}", f"s_xor_b32 s{sOff}, s{sMv}, s{sRot}", f"s_bfe_u32 s{sMv}, s{sMv}, 0x3000d", f"s_mul_i32 s{sMv}, s{sMv}, {TILE}",
            f"s_add_u32 s{sMk}, s{base}, {add + 8192}", f"s_xor_b32 s{sOff2}, s{sMk}, s{sRot}", f"s_bfe_u32 s{sMk}, s{sMk}, 0x3000d", f"s_mul_i32 s{sMk}, s{sMk}, {TILE}"]
def unit_dma(so_v=None, so_k=None):
    so_v = sOff if so_v is None else so_v; so_k = sOff2 if so_k is None else so_k
    return [([f"s_add_u32 m0, s{sMv}, s{sKVv}"], f"buffer_load_dwordx4 v{vKV}, {sr(sV,4)}, s{so_v} offen nt lds"),
            (["s_add_u32 m0, m0, 32"], f"buffer_load_dwordx4 v{vKV}, {sr(sV,4)}, s{so_v} offen offset:1024 nt lds"),
            ([f"s_add_u32 m0, s{sMk}, s{sKVL}"], f"buffer_load_dwordx4 v{vKV}, {sr(sK,4)}, s{so_k} offen nt lds"),
            (["s_add_u32 m0, m0, 32"], f"buffer_load_dwordx4 v{vKV}, {sr(sK,4)}, s{so_k} offen offset:1024 nt lds")]
def place_guarded(a, S, steps, gaps):
    for (pre, d), g in zip(steps, gaps):
        for k, x in enumerate(pre): S.h(g - len(pre) + k, x)
        def site(d=d):
            l = newlabel("sk"); a.e(f"s_cbranch_vccnz {l}"); a._emit(d); a.e(f"{l}:")
        S.v(g, site)
def wo_tile(m):
    b = ldsbase(m); h, t = divmod(m % 16, 8); r = t >> 1; rel = (t & 1) * 81920
    st = [([f"s_add_u32 s{sOff}, s{sH[r]}, {rel}", f"s_add_u32 m0, s{sKVL}, {b}"], f"buffer_load_dwordx4 v{vWo}, {sr(sWo,4)}, s{sOff} offen lds"),
          ([f"s_add_u32 s{sOff}, s{sH[r]}, {rel + 1280}", f"s_add_u32 m0, s{sKVL}, {b + 1056}"], f"buffer_load_dwordx4 v{vWo}, {sr(sWo,4)}, s{sOff} offen lds")]
    return st, ([f"s_add_u32 s{sH[r]}, s{sH[r]}, s{(sD0, sD1)[h]}"] if t & 1 else [])
def emit_tile(a, steps):
    for pre, d in steps:
        for x in pre: a.e(x)
        a._emit(d)
def place_tile(a, S, steps, gaps):
    for (pre, d), g in zip(steps, gaps):
        for k, x in enumerate(pre): S.h(g - len(pre) + k, x)
        S.v(g, lambda d=d: a._emit(d))
def rd_w(dst, m, i):
    h, o = slot(m); p, u = divmod(i, 2)
    return [f"ds_read_b64_tr_b16 {R(off(dst, 2*e), 2)}, v{(vWAl, vWAh)[h]} offset:{o + e*512 + p*64 + u*8}" for e in range(2)]
def vmw(a, n): a.raw_wait(f"s_waitcnt vmcnt({n})")

def rowred(a, op, regs, tmps):
    for w in (32, 16):
        for r, t in zip(regs, tmps): a.e(f"v_mov_b32 v{t}, v{r}")
        for r, t in zip(regs, tmps): a.e(f"v_permlane{w}_swap_b32 v{r}, v{t}")
        for r, t in zip(regs, tmps): a.e(f"{op} v{r}, v{r}, v{t}")

RDPOS = [0,1,2,3,4,5,7,8,9,10,12,13,14,15,17,18]
RDPOS_X = [2,3,5,6,8,9,11,12,14,15,16,17,18,19,20,21]

def code_touch(a, lo, hi, vaddr, vdst, back=False):
    if not OPT["ctouch"]: return
    l = newlabel("pc")
    a.e("s_getpc_b64 s[14:15]")
    a.e(f"{l}:")
    if back: a.e(f"s_sub_u32 s14, s14, {l}-{lo}"); a.e("s_subb_u32 s15, s15, 0")
    else: a.e(f"s_add_u32 s14, s14, {lo}-{l}"); a.e("s_addc_u32 s15, s15, 0")
    a.e(f"s_lshr_b32 s{sT2}, s2, 3"); a.e(f"s_lshl_b32 s{sT2}, s{sT2}, 2"); a.e(f"s_add_u32 s{sT2}, s{sT2}, s{sWv}"); a.e(f"s_lshl_b32 s{sT2}, s{sT2}, 7")
    a.e(f"v_and_b32 v{vaddr}, 3, v0"); a.e(f"v_lshlrev_b32 v{vaddr}, 14, v{vaddr}"); a.e(f"v_add_u32 v{vaddr}, s{sT2}, v{vaddr}")
    a.e(f"v_min_u32 v{vaddr}, {hi}-{lo}-4, v{vaddr}")
    a._emit(f"global_load_dword v{vdst}, v{vaddr}, s[14:15]")

def inbox_addr(va, vt):
    sc = [f"s_mul_i32 s{sT2}, s{sG}, {XG}", f"s_mul_i32 s{sT3}, s{sU}, {XD}", f"s_add_u32 s{sT2}, s{sT2}, s{sT3}",
          f"s_mul_i32 s{sT3}, s{sWv}, 1536", f"s_add_u32 s{sT2}, s{sT2}, s{sT3}", f"s_add_u32 s{sT2}, s{sT2}, {5*XP}"]
    ve = [f"v_lshrrev_b32 v{va}, 3, v0", f"v_min_u32 v{va}, 6, v{va}", f"v_mul_u32_u24 v{va}, 6144, v{va}", f"v_and_b32 v{vt}, 7, v0",
          f"v_min_u32 v{vt}, 5, v{vt}", f"v_lshl_add_u32 v{va}, v{vt}, 7, v{va}", f"v_add_u32 v{va}, s{sT2}, v{va}"]
    return sc, ve

def late_consts(a):
    a.e("v_and_b32 v9, 56, v0"); a.e(f"s_lshl_b32 s{sTmp}, s{sWv}, 1"); a.e(f"v_add_u32 v9, s{sTmp}, v9")
    a.e("v_mul_u32_u24 v9, 1280, v9"); a.e("v_and_b32 v8, 7, v0")
    a.e(f"s_xor_b32 s{sTmp}, s{sU}, 7"); a.e(f"s_and_b32 s{sTmp}, s{sTmp}, 3"); a.e(f"s_lshl_b32 s{sTmp}, s{sTmp}, 1"); a.e(f"v_xor_b32 v8, s{sTmp}, v8")
    a.e(f"v_lshl_add_u32 v{vWo}, v8, 4, v9")

def x_block(j, rel, base_s, op="s_add_u32", lds=0):
    so = f"{op} s{sOff2}, s{base_s}, {rel + j*20480}" if base_s is not None else f"s_mov_b32 s{sOff2}, {rel + j*20480}"
    return [([so, f"s_add_u32 m0, s{sXL}, {j*2048 + lds}"], f"buffer_load_dwordx4 v{vX0}, {sr(sX,4)}, s{sOff2} offen{' nt' if OPT['xnt'] else ''} lds"),
            ([f"s_add_u32 m0, s{sXL}, {j*2048 + 1024 + lds}"], f"buffer_load_dwordx4 v{vX1}, {sr(sX,4)}, s{sOff2} offen{' nt' if OPT['xnt'] else ''} lds")]
def rd_xb(dst, j, s): return f"ds_read_b128 {R(dst,4)}, v{(vXA0, vXA1)[s]} offset:{j*2048}"

def end_sync(a, S, vm, keep=2):
    def w():
        n = min(len(a.lg), keep)
        a.raw_wait(f"s_waitcnt vmcnt({vm}) lgkmcnt({n})")
        a.lg = a.lg[len(a.lg) - n:] if n else []
    S.h(22, w); S.h(23, "s_barrier")

sSc = 14
SCALE = f"s_mov_b32 s{sSc}, {f32(math.log2(math.e) / math.sqrt(128.0))}"
def conv_ops(acc, pos, db, tmp):
    o_ = []; k = 0
    for p in range(4):
        for j in range(3):
            t = tmp[k % len(tmp)]; k += 1
            src = []
            for u in range(2):
                o = acc(pos, 2*p + u, j)
                for r in range(4):
                    if isinstance(o, tuple):
                        o_.append(f"v_accvgpr_read_b32 v{t+4*u+r}, a{o[1]+r}"); src.append(t + 4*u + r)
                    else: src.append(o + r)
            o_ += [f"v_mul_f32 v{x}, s{sSc}, v{x}" for x in src]
            d = Qf(j, p) if db is None else src[0]
            o_ += [f"v_cvt_pk_bf16_f32 v{d+r}, v{src[2*r]}, v{src[2*r+1]}" for r in range(4)]
            if db is not None and db != "keep":
                o_ += [f"v_accvgpr_write_b32 a{db + 12*p + 4*j + r}, v{d+r}" for r in range(4)]
    return o_
def packed(ops):
    if not OPT["pk"]: return list(ops)
    out = []; k = 0
    pat = re.compile(r"v_mul_f32 v(\d+), (?:s(\d+), v\d+|v\d+, v(\d+))$")
    while k < len(ops):
        m0, m1 = pat.match(ops[k]), pat.match(ops[k+1]) if k + 1 < len(ops) else None
        if m0 and m1 and int(m0[1]) % 2 == 0 and int(m1[1]) == int(m0[1]) + 1 and m0.groups()[1:] == m1.groups()[1:]:
            d = int(m0[1]); t, f = ("s", int(m0[2])) if m0[2] else ("v", int(m0[3]))
            out.append(f"v_pk_mul_f32 v[{d}:{d+1}], v[{d}:{d+1}], {t}[{f & ~1}:{f | 1}] op_sel:[0,{f & 1}] op_sel_hi:[1,{f & 1}]"); k += 2
        else: out.append(ops[k]); k += 1
    return out
def free_slots(S):
    cap = []
    for k in range(len(S.mfs)):
        c = 2 - max(0, len(S.hold[k]) - 1)
        for f in S.vec[k]:
            t = f if isinstance(f, str) else f[0] if isinstance(f, tuple) else "vmem"
            c -= 2 if t.startswith(("vmem", "v_exp", "v_rcp")) else 1
        if "s_barrier" in S.hold[k]: c = 0
        cap.append(max(c, 0))
    for k in range(1, len(cap)):
        if cap[k] == 2 and cap[k-1] == 2: cap[k] = 1
    return cap
def fill_ops(S, ops, start=0):
    cap = free_slots(S); n = 0
    for k in range(start, len(cap)):
        for _ in range(cap[k]):
            if n < len(ops): S.v(k, ops[n]); n += 1
    return ops[n:]

def gcv(m, h):
    i, j = divmod(m, 3); p, u = divmod(i, 2); o = Or(i, j)
    return f"v_cvt_pk_bf16_f32 v{S_ + 12*p + 4*j + 2*u + h}, v{o+2*h}, v{o+2*h+1}"
CVS = [gcv(m, h) for m in range(24) for h in range(2)]
def gst(q, rel, base_s):
    p, j = divmod(q, 3)
    return ([f"s_add_u32 s{sOff2}, s{base_s}, {rel + (p*12 + j)*CH}"], f"buffer_store_dwordx4 {vr(S_ + 12*p + 4*j,4)}, v{vPt}, {sr(sP,4)}, s{sOff2} offen{['', ' sc1', ' nt', ' sc0'][OPT['stpol']]}")
def cv_plans():
    caps = [0 if g in (6, 11) else (1 if g in RDPOS else 2) for g in range(24)]
    last = []; ci = 0
    for g, cp in enumerate(caps):
        for _ in range(cp):
            if ci < 48 and ci // 2 + 4 <= g: last.append((g, ci)); ci += 1
    n = ci; first = []
    for g, cp in enumerate(caps):
        for _ in range(cp):
            if ci < 48: first.append((g, ci)); ci += 1
    assert ci == 48 and all(c // 2 > g for g, c in first)
    return last, first, n
PLAN_LAST, PLAN_FIRST, NLAST = cv_plans()

def Q2acc(pos, i, j): return (56 if pos == 0 else O_) + 12 * i + 4 * j
def X2reg(buf, j, s): return ("a", 24 * buf + 8 * j + 4 * s)
def q2mf(n, first):
    s, pos = divmod(n % 8, 2)
    return [mf(Q2acc(pos, i, j), Greg(n & 1, i), X2reg(s >> 1, j, s & 1), None if first and n < 2 else Q2acc(pos, i, j)) for i in range(8) for j in zj(i)]

def main_kernel():
    a = Asm()
    T = OPT["typ"]
    if OPT["st0"]: a._emit("s_memrealtime s[80:81]")
    a.e("s_cmp_ge_u32 s2, 256")
    a.e("s_cbranch_scc1 L_end")
    a.e("s_load_dwordx16 s[4:19], s[0:1], 0")
    a.e("s_load_dwordx4 s[20:23], s[0:1], 64")
    a.e("s_load_dwordx2 s[28:29], s[0:1], 96")
    a.e(f"s_bfe_u32 s{sBr}, s2, 0x10002")
    if not OPT["map84"]:
        a.e(f"s_and_b32 s{sB}, s2, 3"); a.e(f"s_lshl_b32 s{sB}, s{sB}, 2")
        a.e(f"s_bfe_u32 s{sTmp}, s2, 0x20003"); a.e(f"s_add_u32 s{sB}, s{sB}, s{sTmp}")
        a.e(f"s_lshr_b32 s{sU}, s2, 5")
    elif OPT["map84"] == 2:
        a.e(f"s_bfe_u32 s{sB}, s2, 0x40003")
        a.e(f"s_and_b32 s{sU}, s2, 3"); a.e(f"s_lshl_b32 s{sU}, s{sU}, 1")
        a.e(f"s_lshr_b32 s{sTmp}, s2, 7"); a.e(f"s_add_u32 s{sU}, s{sU}, s{sTmp}")
    else:
        a.e(f"s_and_b32 s{sB}, s2, 1"); a.e(f"s_lshl_b32 s{sB}, s{sB}, 3")
        a.e(f"s_bfe_u32 s{sTmp}, s2, 0x30003"); a.e(f"s_add_u32 s{sB}, s{sB}, s{sTmp}")
        a.e(f"s_bfe_u32 s{sU}, s2, 0x10001"); a.e(f"s_lshl_b32 s{sU}, s{sU}, 2")
        a.e(f"s_lshr_b32 s{sTmp}, s2, 6"); a.e(f"s_add_u32 s{sU}, s{sU}, s{sTmp}")
    a.e(f"s_lshl_b32 s{sG}, s{sBr}, 4"); a.e(f"s_add_u32 s{sG}, s{sG}, s{sB}")
    if T == 4: a.e(f"s_bfe_u32 s{sTyp}, s2, 0x10003")
    elif T == 3: a.e(f"s_andn2_b32 s{sTyp}, 1, s2")
    elif T == 2: a.e(f"s_and_b32 s{sTyp}, s2, 1")
    else: a.e(f"s_mov_b32 s{sTyp}, {T}")
    a.e("v_lshrrev_b32 v7, 6, v0")
    a.e("v_and_b32 v0, 63, v0")
    a.e(f"v_readfirstlane_b32 s{sWv}, v7")
    a.e("v_and_b32 v8, 15, v0")
    a.e("v_lshrrev_b32 v9, 4, v0")
    a.e("v_and_b32 v10, 1, v9"); a.e("v_lshlrev_b32 v10, 4, v10")
    a.e("v_lshrrev_b32 v11, 1, v9"); a.e("v_lshl_add_u32 v10, v11, 2, v10")
    a.e("v_lshrrev_b32 v11, 1, v7"); a.e("v_lshl_add_u32 v10, v11, 3, v10")
    a.e("v_and_b32 v11, 1, v7"); a.e("v_lshl_add_u32 v10, v11, 1, v10")
    a.e("v_lshlrev_b32 v10, 13, v10"); a.e(f"v_lshl_add_u32 v{vW}, v8, 4, v10")
    a.e("v_mul_u32_u24 v10, 48, v7"); a.e("v_lshrrev_b32 v11, 3, v0"); a.e("v_add_u32 v10, v10, v11")
    a.e("v_mul_u32_u24 v10, 1280, v10")
    a.e("v_and_b32 v11, 7, v0"); a.e("v_xor_b32 v11, v11, v9")
    a.e(f"v_lshl_add_u32 v{vX0}, v11, 4, v10")
    a.e("v_xor_b32 v11, 4, v11"); a.e("v_add_u32 v10, 10240, v10")
    a.e(f"v_lshl_add_u32 v{vX1}, v11, 4, v10")
    a.e(f"s_mul_i32 s{sKVL}, s{sWv}, 2112")
    a.e(f"s_mul_i32 s{sXL}, s{sWv}, 6144"); a.e(f"s_add_u32 s{sXL}, s{sXL}, {XB}")
    a.e(f"s_mov_b32 s{sCur}, 0"); a.e(f"s_mov_b32 s{sXo}, 0"); a.e(f"s_mov_b32 s{sWq}, 0")
    a.raw_wait("s_waitcnt lgkmcnt(0)")
    def q6(k):
        if OPT["qprof"] == 6: a._emit(f"s_memrealtime s[{80+2*k}:{81+2*k}]")
    q6(4)
    a.e(f"s_cmp_eq_u32 s{sBr}, 0")
    a.e("s_cselect_b64 s[4:5], s[4:5], s[14:15]")
    a.e("s_cselect_b64 s[6:7], s[6:7], s[16:17]")
    a.e("s_cselect_b64 s[8:9], s[8:9], s[18:19]")
    a.e("s_cselect_b64 s[10:11], s[10:11], s[20:21]")
    a.e("s_cselect_b64 s[12:13], s[12:13], s[22:23]")
    a.e("s_load_dwordx4 s[16:19], s[0:1], 80")
    a.e(f"s_mul_i32 s{sTmp}, s{sB}, 245760")
    srd(a, sX, 4, f"s{sTmp}", 245760)
    a.e(f"s_lshl_b32 s{sTmp}, s{sU}, 10")
    srd(a, sW, 10, f"s{sTmp}", 639 * 8192 + 1024)
    if OPT["krot"]: a.e(f"s_xor_b32 s{sJ}, s{sB}, s{sU}"); a.e(f"s_and_b32 s{sJ}, s{sJ}, 3")
    else: a.e(f"s_mov_b32 s{sJ}, 0")
    if not OPT["k4"]: a.e(f"s_mul_i32 s{sJ}, s{sJ}, s{sTyp}")
    if OPT["hrot"] == 2: a.e(f"s_and_b32 s{sJh}, s{sU}, 1"); a.e(f"s_lshl_b32 s{sJh}, s{sJh}, 1")
    elif OPT["hrot"] == 3: a.e(f"s_and_b32 s{sJh}, s{sU}, 2")
    elif OPT["hrot"] == 4: a.e(f"s_and_b32 s{sJh}, s{sU}, 3")
    elif OPT["hrot"] == 5: a.e(f"s_lshr_b32 s{sJh}, s{sU}, 1")
    else: a.e(f"s_mov_b32 s{sJh}, 0")
    a.e(f"s_lshl_b32 s{sWq}, s{sJ}, 18"); a.e(f"s_lshl_b32 s{sTmp}, s{sJh}, 8"); a.e(f"s_or_b32 s{sWq}, s{sWq}, s{sTmp}"); a.e(f"s_add_u32 s{sWq1}, s{sWq}, {1 << 20}")
    a.e(f"s_lshr_b32 s{sXo}, s{sJ}, 1"); a.e(f"s_lshl_b32 s{sXo}, s{sXo}, 7")
    if not OPT['st0']: stamp(a, 0)
    if OPT['qprof'] < 5: stamp(a, 1, False)
    def common_consts():
        if OPT["rot"] == 2: a.e(f"s_bfe_u32 s{sRot}, s2, 0x40003"); a.e(f"s_lshl_b32 s{sRot}, s{sRot}, 13")
        elif OPT["rot"] == 3: a.e(f"s_bfe_u32 s{sRot}, s2, 0x40001"); a.e(f"s_lshl_b32 s{sRot}, s{sRot}, 13")
        elif OPT["rot"] == 4:
            a.e(f"s_mul_i32 s{sRot}, s2, 0x9e3779b1"); a.e(f"s_lshr_b32 s{sRot}, s{sRot}, 28"); a.e(f"s_lshl_b32 s{sRot}, s{sRot}, 13")
        elif OPT["rot"] == 5: a.e(f"s_bfe_u32 s{sRot}, s2, 0x20003"); a.e(f"s_lshl_b32 s{sRot}, s{sRot}, 15")
        elif OPT["rot"]:
            a.e(f"s_lshr_b32 s{sRot}, s2, 4"); a.e(f"s_xor_b32 s{sRot}, s{sRot}, s2"); a.e(f"s_and_b32 s{sRot}, s{sRot}, 15"); a.e(f"s_lshl_b32 s{sRot}, s{sRot}, 13")
        else: a.e(f"s_mov_b32 s{sRot}, 0")
        a.e(f"s_lshl_b32 s{sTmp}, s{sJh}, 17"); a.e(f"s_or_b32 s{sRot}, s{sRot}, s{sTmp}")
        a.e(f"s_mov_b32 s{sCX}, s{sRot}"); a.e(f"s_add_u32 s{sKVv}, s{sKVL}, {VB}")
        a.e("v_bfe_u32 v10, v0, 2, 3")
        a.e("v_lshrrev_b32 v11, 1, v10"); a.e("v_lshlrev_b32 v11, 6, v11"); a.e(f"v_lshl_add_u32 v{vWAl}, v10, 10, v11")
        a.e("v_and_b32 v11, 1, v10"); a.e(f"v_lshl_add_u32 v{vWAl}, v11, 3, v{vWAl}")
        a.e("v_lshrrev_b32 v11, 5, v0"); a.e(f"v_lshl_add_u32 v{vWAl}, v11, 8, v{vWAl}")
        a.e("v_mul_u32_u24 v10, 1056, v10"); a.e("v_lshl_add_u32 v10, v11, 8, v10")
        a.e("v_and_b32 v11, 3, v0"); a.e(f"v_lshl_add_u32 v{vWAl}, v11, 4, v{vWAl}")
        a.e(f"v_lshl_add_u32 v10, v11, 3, v10"); a.e(f"v_add_u32 v{vVA}, {VB}, v10")
        a.e(f"v_add_u32 v{vWAh}, {VB}, v{vWAl}")
        a.e("v_and_b32 v10, 7, v8"); a.e("v_mul_u32_u24 v10, 1056, v10")
        a.e("v_lshrrev_b32 v11, 3, v8"); a.e(f"v_lshl_add_u32 v10, v11, 8, v10")
        a.e(f"v_lshl_add_u32 v{vKA}, v9, 4, v10")
        a.e("v_lshlrev_b32 v10, 4, v0"); a.e(f"v_lshl_add_u32 v{vKV}, v7, 11, v10")
        a.e(f"v_lshlrev_b32 v10, 7, v8"); a.e(f"v_add_u32 v10, s{sXL}, v10")
        a.e("v_lshrrev_b32 v11, 1, v8"); a.e("v_xor_b32 v11, v11, v9")
        a.e(f"s_and_b32 s{sTmp}, s{sJ}, 1"); a.e(f"s_lshl_b32 s{sTmp}, s{sTmp}, 2"); a.e(f"v_xor_b32 v11, s{sTmp}, v11")
        a.e(f"v_lshl_add_u32 v{vXA0}, v11, 4, v10")
        a.e("v_xor_b32 v11, 4, v11"); a.e(f"v_lshl_add_u32 v{vXA1}, v11, 4, v10")
        a.e(f"s_lshl_b32 s{sTmp}, s{sB}, 3"); a.e(f"s_add_u32 s{sTmp}, s{sTmp}, s{sU}"); a.e(f"s_lshl_b32 s{sTmp}, s{sTmp}, 19")
        srd(a, sK, 6, f"s{sTmp}", 4 * 131072)
        srd(a, sV, 8, f"s{sTmp}", 4 * 131072)
        a.e(f"s_mul_i32 s{sTmp}, s{sU}, {512*1280}")
        srd(a, sWo, 12, f"s{sTmp}", 512 * 1280)
        for r in range(4): a.e(f"s_xor_b32 s{sH[r]}, s{sJh}, {r}"); a.e(f"s_mul_i32 s{sH[r]}, s{sH[r]}, 163840")
        a.e(f"s_mov_b32 s{sKn}, 0"); a.e(f"s_mov_b32 s{sMin}, {3*8192}")
        a.e(f"s_cmp_lt_u32 s{sU}, 4")
        a.e(f"s_cselect_b32 s{sTmp}, 128, 0"); a.e(f"s_mov_b32 s{sD0}, 128"); a.e(f"s_cselect_b32 s{sD0}, -128, s{sD0}")
        a.e(f"s_sub_u32 s{sD1}, 256, s{sD0}")
        for r in range(4): a.e(f"s_add_u32 s{sH[r]}, s{sH[r]}, s{sTmp}")
        a.e(f"s_lshl_b32 s{sTmp}, s{sG}, 12"); a.e(f"s_add_u32 s{sTmp}, s{sTmp}, {FLG}")
        srd(a, sF, 28, f"s{sTmp}", 4096)
    def touch0(three):
        if OPT["t0x"]:
            a.e("v_min_u32 v10, 59, v0"); a.e("v_lshlrev_b32 v10, 7, v10")
            a.e(f"s_lshl_b32 s{sTmp}, s{sU}, 2"); a.e(f"s_add_u32 s{sTmp}, s{sTmp}, s{sWv}"); a.e(f"s_mul_i32 s{sTmp}, s{sTmp}, 7680")
            a._emit(f"buffer_load_dword v11, v10, {sr(sX,4)}, s{sTmp} offen")
        if OPT["t0w"] and three:
            a.e("v_lshrrev_b32 v14, 2, v0"); a.e("v_lshlrev_b32 v14, 13, v14"); a.e("v_and_b32 v15, 3, v0"); a.e("v_lshl_add_u32 v14, v15, 7, v14")
            a.e(f"s_and_b32 s{sTmp}, s{sB}, 3"); a.e(f"s_lshl_b32 s{sTmp}, s{sTmp}, 2"); a.e(f"s_add_u32 s{sTmp}, s{sTmp}, s{sWv}"); a.e(f"s_lshl_b32 s{sTmp}, s{sTmp}, 17")
            for k in range(3):
                a.e(f"s_add_u32 s{sT2}, s{sTmp}, {k*256*8192}")
                a._emit(f"buffer_load_dword v{16+k}, v14, {sr(sW,4)}, s{sT2} offen")
    def part_srd(slot_expr, size):
        a.e(f"s_mul_i32 s{sTmp}, s{sG}, {PART}"); slot_expr(); a.e(f"s_lshl_b32 s{sT2}, s{sT2}, 10"); a.e(f"s_add_u32 s{sTmp}, s{sTmp}, s{sT2}")
        srd(a, sP, 28, f"s{sTmp}", size)
    NF = OPT["first"]
    LA = OPT['la']
    def wpos(n): return 8 + n % 8
    def rd_x(buf): return [rd_xb(Xreg(buf, j, s), j, s) for s in range(2) for j in range(3)]
    NF = 2
    def setup(lab):
        if not OPT["pro2"]: common_consts()
        code_touch(a, lab, "L_altwo" if not OPT["ct2"] else (("L_p0end" if OPT["pro2"] else "L_p1") if lab == "L_q" else "L_enter"), 10, 11)
        a.e(f"s_mov_b32 s{sR}, 0")
        if not OPT["ramp"] or (lab == "L_q" and not OPT["ls4"]): late_setup()
    def late_setup():
        a.e(f"s_lshl_b32 s{sTmp}, s{sU}, 9"); a.e(f"s_lshl_b32 s{sT2}, s{sWv}, 7"); a.e(f"s_add_u32 s{sTmp}, s{sTmp}, s{sT2}")
        a.e("v_and_b32 v8, 7, v0"); a.e(f"v_lshlrev_b32 v8, 2, v8"); a.e("v_mov_b32 v7, 0")
        a._emit(f"buffer_store_dword v7, v8, {sr(sF,4)}, s{sTmp} offen sc1")
        emit_tile(a, kv_tile(0, 0))
    def bootstrap():
        l = newlabel("boot")
        a.e(f"s_cmp_lg_u32 s{sWv}, 0"); a.e(f"s_cbranch_scc1 {l}")
        a.e(f"s_lshl_b32 s{sTmp}, s{sG}, 2"); a.e(f"s_add_u32 s{sTmp}, s{sTmp}, 128")
        a.e(f"v_mov_b32 v157, s{sTmp}")
        a.e(f"s_getreg_b32 s{sT2}, hwreg(HW_REG_XCC_ID, 0, 4)")
        a.e(f"s_mul_i32 s{sT3}, s{sT2}, s{sT2}"); a.e(f"s_lshl_b32 s{sT3}, s{sT3}, 8"); a.e(f"s_add_u32 s{sT3}, s{sT3}, s{sT2}")
        a.e(f"s_lshl_b32 s{sT3}, s{sT3}, 8"); a.e(f"s_add_u32 s{sPK}, s{sT3}, 1"); a.e(f"v_mov_b32 v158, s{sPK}")
        a.e("s_mov_b64 exec, 1")
        a._emit("global_atomic_add v157, v158, s[18:19]")
        a.e("s_mov_b64 exec, -1")
        a.e(f"{l}:")
    if OPT["stag"]:
        a.e(f"s_and_b32 s{sT2}, s{sB}, 3") if OPT["stag"] < 100 else a.e(f"s_and_b32 s{sT2}, s{sU}, 3")
        a.e("L_stag:"); a.e(f"s_cmp_eq_u32 s{sT2}, 0"); a.e("s_cbranch_scc1 L_stag2"); a.e(f"s_sleep {OPT['stag'] % 100}"); a.e(f"s_sub_u32 s{sT2}, s{sT2}, 1"); a.e("s_branch L_stag"); a.e("L_stag2:")
    if OPT["pro2"]:
        a.e(f"s_cmp_lg_u32 s{sTyp}, 0")
        a.e(f"s_cselect_b32 s{sT2}, {XB - VB}, 0"); a.e(f"s_cselect_b32 s{sT3}, 0, 512")
        a.e(f"s_sub_u32 s{sT2}, s{sXL}, s{sT2}"); a.e(f"s_xor_b32 s{sT3}, s{sWq}, s{sT3}")
        def sub(st, x, y): return [([p_.replace(x, y) for p_ in pre], d) for pre, d in st]
        emit_tile(a, sub(w_tile(wpos(0), 0, 2), f"s{sWq},", f"s{sT3},"))
        for j in range(3): emit_tile(a, sub(x_block(j, 0, sXo), f"s{sXL},", f"s{sT2},"))
        emit_tile(a, sub(w_tile(wpos(1), 1, 2), f"s{sWq},", f"s{sT3},"))
        q6(5)
        common_consts()
        q6(6)
        a.e(f"s_cmp_eq_u32 s{sTyp}, 0")
        a.e("s_cbranch_scc1 L_p0")
        a.e("L_split:")
        a.e("L_p0:")
    else:
        a.e(f"s_cmp_lg_u32 s{sTyp}, 0")
        a.e("s_cbranch_scc1 L_p1")
        for j in range(3): emit_tile(a, x_block(j, 0, sXo))
        for n in range(NF): emit_tile(a, w_tile(wpos(n), n))
    setup("L_q")
    if OPT["help"]:
        if T == 3:
            a.e(f"s_sub_u32 s{sP}, s{sX}, {4*245760}"); a.e(f"s_subb_u32 s{sP+1}, s{sX+1}, 0")
        else:
            a.e(f"s_add_u32 s{sP}, s{sX}, {4*245760}"); a.e(f"s_addc_u32 s{sP+1}, s{sX+1}, 0")
        a.e(f"s_mov_b32 s{sP+2}, 245760"); a.e(f"s_mov_b32 s{sP+3}, 0x20000")
        a.e("v_min_u32 v8, 59, v0"); a.e("v_lshlrev_b32 v8, 7, v8")
        a.e(f"s_lshl_b32 s{sTmp}, s{sU}, 2"); a.e(f"s_add_u32 s{sTmp}, s{sTmp}, s{sWv}"); a.e(f"s_mul_i32 s{sTmp}, s{sTmp}, 7680")
        if OPT["help"] & 1: a._emit(f"buffer_load_dword v9, v8, {sr(sP,4)}, s{sTmp} offen")
        if OPT["help"] & 2:
            a.e("v_lshrrev_b32 v8, 2, v0"); a.e("v_lshlrev_b32 v8, 13, v8"); a.e("v_and_b32 v10, 3, v0"); a.e("v_lshl_add_u32 v8, v10, 7, v8")
            a.e(f"s_lshr_b32 s{sTmp}, s{sB}, 3"); a.e(f"s_lshl_b32 s{sTmp}, s{sTmp}, 2"); a.e(f"s_and_b32 s{sT2}, s{sB}, 3"); a.e(f"s_add_u32 s{sTmp}, s{sTmp}, s{sT2}")
            a.e(f"s_lshl_b32 s{sTmp}, s{sTmp}, 2"); a.e(f"s_add_u32 s{sTmp}, s{sTmp}, s{sWv}"); a.e(f"s_mul_i32 s{sTmp}, s{sTmp}, {20*8192}")
            a.e(f"s_and_b32 s{sT2}, s{sWq}, 512"); a.e(f"s_add_u32 s{sTmp}, s{sTmp}, s{sT2}")
            a._emit(f"buffer_load_dword v9, v8, {sr(sW,4)}, s{sTmp} offen")
            if OPT["hx"]: a.e(f"v_min_u32 v8, {3*8192 + 384}, v8")
            a.e(f"s_add_u32 s{sTmp}, s{sTmp}, {(16 if OPT['hx'] else 4)*8192}")
            a._emit(f"buffer_load_dword v9, v8, {sr(sW,4)}, s{sTmp} offen")
    LA4 = OPT['la4']
    a.e(f"s_mov_b32 s{sPre}, 15")
    for r in range(256):
        if r % 40 == 0 and NF + r // 40 < LA4: emit_tile(a, w_tile(wpos(NF + r // 40), NF + r // 40))
        a.e(f"v_accvgpr_write_b32 a{r}, 0")
    for r in list(range(124, 156)) + list(range(160, 256)): a.e(f"v_mov_b32 v{r}, 0")
    if OPT["woq"]:
        a.e(f"s_lshr_b32 s{sTmp}, s{sB}, 3"); a.e(f"s_lshl_b32 s{sTmp}, s{sTmp}, 2"); a.e(f"s_and_b32 s{sT2}, s{sB}, 3"); a.e(f"s_add_u32 s{sTmp}, s{sTmp}, s{sT2}")
        a.e(f"s_lshl_b32 s{sTmp}, s{sTmp}, 2"); a.e(f"s_add_u32 s{sTmp}, s{sTmp}, s{sWv}"); a.e(f"s_mul_i32 s{sTmp}, s{sTmp}, 5120")
        a.e("v_min_u32 v7, 39, v0"); a.e(f"v_lshl_add_u32 v7, v7, 7, s{sTmp}")
    a.raw_wait(f"s_waitcnt vmcnt({2 * (LA4 - 2 - OPT['qb2'])}) lgkmcnt(0)")
    a.e("s_barrier")
    for r in rd_x(0): a.e(r)
    for i in range(8):
        for r in rd_w(Wreg(0, i), wpos(0), i): a.e(r)
    a.raw_wait("s_waitcnt lgkmcnt(0)"); a.lg = []
    if OPT["qb2"]: a.e("s_barrier")
    if OPT["qprof"] == 1: stamp(a, 5); stamp(a, 6, False)
    def lperm(n, last):
        return 8 + 4 * ((n - 8) & 1) + ((n - 8) >> 1) if last and OPT["cvo"] and 8 <= n < 16 else n
    def qmf(n, last=False):
        s, pos = divmod(lperm(n, last) % 16, 4)
        return [mf(Qacc(pos, i, j), Wreg(n & 1, i), Xreg((s >> 1) & 1, j, s & 1), Qacc(pos, i, j)) for i in range(8) for j in zj(i)]
    cvq = conv_ops(Qacc, 0, QBANK[3], [76, 84, 92])
    def early(S, half, h0, gaps):
        pre = [x.replace(f"s{sOff},", f"s{sOff2},") for x in unit_pre(sKn, 0)[4*half:4*half+4]]
        if half == 0: pre = [f"s_cmp_ge_u32 s{sKn}, s{sMin}", "s_cselect_b64 vcc, -1, 0", f"s_cselect_b32 s{sC1}, 0, 8192"] + pre
        else: pre = pre + [f"s_add_u32 s{sKn}, s{sKn}, s{sC1}"]
        for x, h_ in zip(pre, h0): S.h(h_, x)
        place_guarded(a, S, unit_dma(sOff2, sOff2)[2*half:2*half+2], gaps)
    def q_group(last):
        for n in range(16):
            a.c(f"Q sub-step {n}{' (last group)' if last else ''}")
            S = Sched(a, qmf(n, last))
            fin = last and n == 15
            q = n % 8
            xrd = q in (6, 7) and not (last and n >= 8)
            if not fin:
                rds = []
                for i in range(8): rds += rd_w(Wreg((n + 1) & 1, i), wpos(n + 1), i)
                for r, p in zip(rds, RDPOS): S.v(p, r)
                m = n + LA4
                if not last or m < 16: place_tile(a, S, w_tile(wpos(m), lperm(m, last)), (6, 11))
                KVN = {8: 7, 9: 8, 10: 9, 11: 10, 12: 11, 13: 12} if not OPT["kvconv"] else {4: 7, 11: 8} if OPT["kvconv"] == 1 else {4: 7}
                if last and n in KVN: place_tile(a, S, kv_tile(KVN[n], KVN[n] >> 1), (16, 19))
                if OPT["qb2"] and not (n & 1):
                    def w(keep=5 if xrd else 2):
                        k = min(len(a.lg), keep); a.raw_wait(f"s_waitcnt lgkmcnt({k})"); a.lg = a.lg[len(a.lg) - k:] if k else []
                    S.h(22, w)
                elif not (last and n == 14):
                    need = n + 2 + OPT["qb2"]
                    if last: need = min(need, 15)
                    hi = min(m, 15) if last else m
                    ykv = len([k for k in KVN if need - LA4 <= k <= n]) if last else 0
                    end_sync(a, S, 2 * (hi - need) + 2 * ykv, (3 if xrd else 0) if OPT["qb2"] else (5 if xrd else 2))
            if xrd:
                rx = rd_x(((n >> 3) + 1) & 1)[3*(q-6):3*(q-6)+3]
                if q == 6: S.h(16, lambda: vmw(a, 8))
                for r, p in zip(rx, (19, 20, 21)): S.v(p, (r, "xr"))
            if q in (0, 1, 2) and not (last and n >= 8):
                if q == 0: S.h(12, lambda: a.wait(lg="xr"))
                place_tile(a, S, x_block(q, 128, sXo, "s_xor_b32") if n < 8 else x_block(q, 256, sXo), (16, 19))
            if n in (11, 12) and not last: early(S, n - 11, (0, 1, 2, 3, 7, 8, 12), (16, 19))
            if n == 4 and not last and OPT["woq"]:
                S.h(13, f"s_lshr_b32 s{sOff2}, s{sXo}, 8"); S.h(14, f"s_mul_i32 s{sOff2}, s{sOff2}, 163840")
                S.v(16, lambda: a._emit(f"buffer_load_dword v9, v7, {sr(sWo,4)}, s{sOff2} offen"))
            if n == 15 and not last:
                S.h(12, f"s_mov_b32 s{sWq}, s{sWq1}")
                S.h(13, f"s_add_u32 s{sWq1}, s{sWq1}, {1 << 20}")
                S.h(14, f"s_add_u32 s{sXo}, s{sXo}, 256")
                S.h(15, f"s_cmp_lt_u32 s{sXo}, 1024")
            if last and n == 3: S.h(1, SCALE)
            if last and n >= 10 and OPT["cvo"]: cvq[:] = fill_ops(S, cvq, 4 if n == 10 else 0)
            S.emit(None if fin else qmf(n + 1, last)[0])
    a.e(".p2align 6")
    a.e("L_q:")
    if OPT["qprof"] == 3:
        a.e(f"s_lshr_b32 s{sT3}, s{sXo}, 8"); stamp_dyn(a, 4, sT3, 4)
    mark = len(a.ins); nops0 = a.nops
    q_group(False)
    lg_end = list(a.lg)
    del a.ins[mark:]; a.nops = nops0
    q_group(False)
    assert a.lg == lg_end
    a.e("s_cbranch_scc1 L_q")
    if OPT["ct2"]: code_touch(a, "L_enter", "L_q2b" if T else "L_altwo", 10, 11, back=bool(OPT["pro2"]))
    if OPT["ls4"]: late_setup()
    if OPT["qprof"] == 3: stamp(a, 8)
    q_group(True)
    if OPT["qprof"] == 1: stamp(a, 7); stamp(a, 8, False)
    stamp(a, 3)
    a.c("Q conversion")
    tmp = [60 + 8 * k for k in range(8)]
    rest = packed(cvq + conv_ops(Qacc, 1, QBANK[2], tmp) + conv_ops(Qacc, 2, QBANK[1], tmp) + conv_ops(Qacc, 3, None, tmp))
    steps = [s_ for m in range(10 - OPT["kvconv"], 13) for s_ in kv_tile(m, m >> 1)] if OPT["kvconv"] else []
    at = {int((k + 0.3) * len(rest) / len(steps)): s_ for k, s_ in enumerate(steps)}
    for k, x in enumerate(rest):
        if k in at:
            for y in at[k][0]: a.e(y)
        a.e(x)
        if k in at: a._emit(at[k][1])
    late_consts(a)
    bootstrap()
    a.e("s_branch L_enter")
    a.e("L_p1:")
    a.lg = []
    if not OPT["pro2"]:
        for j in range(3): emit_tile(a, x_block(j, 0, sXo, lds=VB-XB))
        for n in range(NF): emit_tile(a, w_tile(wpos(n), n, 2))
    a.e(f"s_xor_b32 s{sXo1}, s{sXo}, 128")
    L0 = 5 if OPT["ramp"] else LA
    assert not OPT["ramp"] or (OPT["latekv"] and LA == 7 and OPT["ct2"])
    a.e(f"s_mov_b32 s{sPre}, 1")
    if OPT["ramp"]:
        setup("L_q2")
        late_consts(a)
        a.e(f"v_subrev_u32 v12, {XB-VB}, v{vXA0}"); a.e(f"v_subrev_u32 v13, {XB-VB}, v{vXA1}")
        for j in range(3): emit_tile(a, x_block(j, 0, sXo1)); emit_tile(a, w_tile(wpos(2 + j), 2 + j, 2))
        q6(7)
        a.raw_wait("s_waitcnt vmcnt(10) lgkmcnt(0)")
    else:
        for j in range(3): emit_tile(a, x_block(j, 0, sXo1))
        setup("L_q2")
        late_consts(a)
        for n in range(NF, L0): emit_tile(a, w_tile(wpos(n), n, 2))
        q6(7)
        a.e(f"v_subrev_u32 v12, {XB-VB}, v{vXA0}"); a.e(f"v_subrev_u32 v13, {XB-VB}, v{vXA1}")
        a.raw_wait(f"s_waitcnt vmcnt({2 * (L0 - 2)}) lgkmcnt(0)")
    q6(8)
    for j in range(3):
        for s in range(2): a.e(f"ds_read_b128 {R(X2reg(0, j, s),4)}, v{12+s} offset:{j*2048}")
    a.e("L_q2go:")
    a.e("s_barrier")
    for i in range(8):
        for r in rd_w(Greg(0, i), wpos(0), i): a.e(r)
    a.raw_wait("s_waitcnt lgkmcnt(0)"); a.lg = []
    def q2_group(kind):
        first, last = kind == 0, kind == 2
        for n in range(8):
            a.c(f"Q2 sub-step {n} ({('first', 'loop', 'last')[kind]})")
            S = Sched(a, q2mf(n, first))
            cl, q = divmod(n, 4)
            fin = last and n == 7
            xrd = q < 3 and not (last and cl == 1)
            def xd(k): return k % 4 < 3 and not (last and k >= 0) and not (first and k < 0)
            def wd(k): return not (last and k + LA >= 8)
            def kd(k): return last and 0 <= k <= 5
            if not fin:
                rds = []
                for i in range(8): rds += rd_w(Greg((n + 1) & 1, i), wpos(n + 1), i)
                for r, p in zip(rds, RDPOS_X): S.v(p, r)
            rampd = first and OPT["ramp"]
            if rampd:
                m0_ = n + 5 + (n > 3)
                place_tile(a, S, w_tile(wpos(m0_), m0_, 2), (4, 7))
                if q == 3: place_tile(a, S, w_tile(wpos(m0_ + 1), m0_ + 1, 2), (10, 13))
            elif wd(n): place_tile(a, S, w_tile(wpos(n + LA), n + LA, 2), (4, 7))
            if kd(n): place_tile(a, S, kv_tile(7 + n, (7 + n) >> 1), (10, 13))
            if xrd:
                for s in range(2): S.v(s, (rd_xb(X2reg(1 - cl, q, s), q, s), "xr"))
            if xd(n):
                S.h(7, lambda: a.wait(lg="xr"))
                place_tile(a, S, x_block(q, 256, (sXo, sXo1)[cl]), (10, 13))
            if q == 3 and not last and not (first and OPT['latekv']): early(S, cl, (0, 0, 1, 1, 4, 7, 8) if cl == 0 else (0, 0, 1, 1, 4), (10, 13))
            if n == 7 and not last:
                S.h(16, f"s_mov_b32 s{sWq}, s{sWq1}")
                S.h(17, f"s_add_u32 s{sWq1}, s{sWq1}, {1 << 20}")
                S.h(18, f"s_add_u32 s{sXo1}, s{sXo1}, 256")
                S.h(19, f"s_add_u32 s{sXo}, s{sXo}, 256")
                S.h(20, f"s_cmp_lt_u32 s{sXo}, 1024")
            if not (last and n >= 6):
                k0 = n + 2 - LA
                vm = sum(2 * wd(k) for k in range(k0 + 1, n + 1)) + sum(2 * kd(k) for k in range(k0, n + 1))
                if (n + 1) % 4 < 3 and not (last and n + 1 >= 4) and xd(n - 3):
                    vm = min(vm, sum(2 * wd(k) + 2 * xd(k) + 2 * kd(k) for k in range(n - 2, n + 1)))
                if rampd and n == 0: vm = min(vm, 8)
                if n == 7 and OPT['cvo']: vm = min(vm, 8)
                end_sync(a, S, vm, 5)
            S.emit(None if fin else q2mf(n + 1, first and n < 7)[0])
    if OPT["qprof"] == 6: stamp_dyn(a, 3, sR, 1)
    a.e("L_q2:")
    def q5():
        if OPT["qprof"] == 5:
            a.e(f"s_lshr_b32 s{sT3}, s{sXo}, 8"); a.e(f"s_lshl_b32 s{sT2}, s{sR}, 4"); a.e(f"s_add_u32 s{sT3}, s{sT3}, s{sT2}"); stamp_dyn(a, 4, sT3, 5)
    q5()
    q2_group(0)
    if OPT["ramp"]:
        a.e(f"s_cmp_lg_u32 s{sR}, 0"); a.e("s_cbranch_scc1 L_q2l")
        late_setup()
    lg_in = list(a.lg)
    a.e(".p2align 6")
    a.e("L_q2l:")
    q5()
    q2_group(1)
    assert a.lg == lg_in
    a.e("s_cbranch_scc1 L_q2l")
    q5()
    if OPT["ct2"]:
        code_touch(a, "L_enter", "L_q2b" if T else "L_altwo", 10, 11)
    cv2 = conv_ops(Q2acc, 0, "keep", [0])
    if not OPT["cvo"]:
        q2_group(2); a.e(SCALE)
    else:
        order = [0, 2, 4, 6, 1, 3, 5, 7]
        def mfs(n):
            s, pos = divmod(order[n], 2)
            return [mf(Q2acc(pos, i, j), Greg(n & 1, i), X2reg(s >> 1, j, s & 1), Q2acc(pos, i, j)) for i in range(8) for j in zj(i)]
        kvat = {0: [7], 1: [8], 5: [9, 10], 6: [11, 12]}
        for n in range(8):
            a.c(f"Q2 sub-step {n} (last)")
            S = Sched(a, mfs(n))
            if n < 7:
                rds = []
                for i in range(8): rds += rd_w(Greg((n + 1) & 1, i), wpos(order[n + 1]), i)
                for r, p in zip(rds, RDPOS_X): S.v(p, r)
            if n == 0:
                place_tile(a, S, w_tile(wpos(7), 7, 2), (4, 7)); S.h(14, SCALE)
                for s in range(2): S.v(s, rd_xb(X2reg(1, 0, s), 0, s))
            if n == 1:
                for k, p in enumerate((0, 1, 4, 7)): S.v(p, rd_xb(X2reg(1, 1 + (k >> 1), k & 1), 1 + (k >> 1), k & 1))
            for m, gp in zip(kvat.get(n, []), ((10, 13),) if n < 2 else ((4, 7), (10, 13))):
                un, half = divmod(m - 7, 2)
                pre = [x.replace(f"s{sOff},", f"s{sOff2},") for x in unit_pre(sKn, un * 8192)[4*half:4*half+4]]
                if gp[0] == 4: pre = [x.replace(f"s{sOff2},", f"s{sOff},") for x in pre]
                for x, h_ in zip(pre, (0, 0, 1, 2) if gp[0] == 4 else (0, 1, 4, 8) if n < 2 else (4, 5, 7, 8)): S.h(h_, x)
                so = sOff if gp[0] == 4 else sOff2
                place_tile(a, S, unit_dma(so, so)[2*half:2*half+2], gp)
            if n < 6: end_sync(a, S, {0: 6, 1: 6, 5: 8}.get(n, 20), 5)
            if n >= 4: cv2 = fill_ops(S, cv2, 4 if n == 4 else 0)
            S.emit(mfs(n + 1)[0] if n < 7 else None)
    if OPT["qprof"] == 5: stamp_dyn(a, 3, sR, 1)
    if OPT["stamp"] and not OPT["qprof"]:
        a.e(f"s_lshr_b32 s{sT2}, s{sR}, 1"); stamp_dyn(a, 3, sT2, 2)
    a.c("Q2 conversion")
    for x in packed(cv2): a.e(x)
    def bank_write(db, src):
        return [f"v_accvgpr_write_b32 a{db + 12*p + 4*j + x}, v{src(p, j)+x}" for p in range(4) for j in range(3) for x in range(4)]
    a.e(f"s_cmp_lg_u32 s{sR}, 0"); a.e("s_cbranch_scc1 L_cv2b")
    if OPT["touch"]:
        a.e("v_min_u32 v8, 39, v0"); a.e("v_lshrrev_b32 v9, 2, v8"); a.e("v_lshlrev_b32 v9, 13, v9")
        a.e("v_and_b32 v8, 3, v8"); a.e("v_lshl_add_u32 v9, v8, 7, v9")
        a.e(f"s_lshl_b32 s{sTmp}, s{sB}, 2"); a.e(f"s_add_u32 s{sTmp}, s{sTmp}, s{sWv}"); a.e(f"s_mul_i32 s{sTmp}, s{sTmp}, {10*8192}")
        a.e(f"s_add_u32 s{sTmp}, s{sTmp}, 512")
        a._emit(f"buffer_load_dword v{vD}, v9, {sr(sW,4)}, s{sTmp} offen")
    km = {1: 3, 0: 0, 2: 2}[OPT["k2"]]
    a.e(f"s_and_b32 s{sWq}, s{sWq}, {0x3ff | km << 18}"); a.e(f"s_xor_b32 s{sWq}, s{sWq}, 512"); a.e(f"s_add_u32 s{sWq1}, s{sWq}, {1 << 20}")
    a.e(f"s_and_b32 s{sXo}, s{sXo}, {128 if km & 2 else 0}"); a.e(f"s_xor_b32 s{sXo1}, s{sXo}, 128")
    if not km & 1:
        a.e(f"s_and_b32 s{sTmp}, s{sJ}, 1"); a.e(f"s_lshl_b32 s{sTmp}, s{sTmp}, 6")
        a.e(f"v_xor_b32 v{vXA0}, s{sTmp}, v{vXA0}"); a.e(f"v_xor_b32 v{vXA1}, s{sTmp}, v{vXA1}")
    for x in bank_write(QBANK[1], lambda p, j: Q2acc(0, 2*p, j)): a.e(x)
    a.e("s_branch L_cv2c")
    a.e("L_cv2b:")
    if OPT["emu3"]:
        a.e(f"s_cmp_eq_u32 s{sPre}, 1"); a.e("s_cbranch_scc0 L_cv2d")
        a.e(f"s_mov_b32 s{sPre}, 14")
        a.e(f"s_and_b32 s{sWq}, s{sWq}, 0xfffff"); a.e(f"s_add_u32 s{sWq1}, s{sWq}, {1 << 20}")
        a.e(f"s_and_b32 s{sXo}, s{sXo}, 128"); a.e(f"s_xor_b32 s{sXo1}, s{sXo}, 128")
        a.raw_wait("s_waitcnt vmcnt(0)"); a.e("s_barrier")
        for n in range(LA): emit_tile(a, w_tile(wpos(n), n, 2))
        a.raw_wait("s_waitcnt vmcnt(0)")
        a.e("s_branch L_q2go")
        a.e("L_cv2d:")
    a.e("s_nop 7")
    for x in bank_write(QBANK[3], lambda p, j: Q2acc(0, 2*p, j)): a.e(x)
    bootstrap()
    a.e("L_cv2c:")
    for x in packed(conv_ops(Q2acc, 1, None, [0])): a.e(x)
    a.e("L_enter:")
    a.e(f"v_mov_b32 v{vT}, 0x3f803f80")
    if OPT["sparse1"]:
        a.e(f"v_and_b32 v{vT+1}, 3, v0"); a.e(f"v_cmp_eq_u32 vcc, 0, v{vT+1}"); a.e(f"v_cndmask_b32 v{vT}, 0, v{vT}, vcc")
    for r in range(4): a.e(f"v_accvgpr_write_b32 a{ONES[1]+r}, v{vT}")
    def rd_k(dst, t, u): return [f"ds_read_b128 {vr(dst + 4*ks,4)}, v{vKA} offset:{(t % 8)*TILE + u*512 + ks*64}" for ks in range(4)]
    def rd_v(t, half, fr=VF):
        return [f"ds_read_b64_tr_b16 {vr(fr + 4*i + 2*e, 2)}, v{vVA} offset:{(t % 8)*TILE + e*512 + (4*half+i)*32}" for i in range(4) for e in range(2)]
    assert not OPT["lateq"] and (OPT["lmax"] == 3 or (OPT["lmax"] == 4 and OPT["thr"] <= 4 and 0 <= OPT["w2"] <= 4))
    a.e(f"s_add_u32 s{sKc}, s{sKn}, {4*8192}"); a.e(f"s_mov_b32 s{sLag}, 0")
    assert OPT["cvo"] or not T
    THR = OPT['thr'] + 1 if OPT['dyn'] else 99
    a.e(f"s_cmp_eq_u32 s{sTyp}, 0"); a.e(f"s_cselect_b32 s{sThr}, {0 if OPT['sh1'] else THR}, {THR}")
    a.e(f"s_mov_b32 s{sThN}, {THR}")
    if OPT["sh3"]:
        a.e(f"s_cmp_eq_u32 s{sR}, 2"); a.e(f"s_cselect_b32 s{sThr}, 0, s{sThr}")
        if OPT["sh3"] == 1: a.e(f"s_cselect_b32 s{sThN}, 0, s{sThN}")
    vmw(a, 12)
    a.e("s_barrier")
    a.lg = []
    for r in rd_k(KF, 0, 0) + rd_k(VF, 0, 1): a.e(r)
    for x in unit_pre(sKn, 3 * 8192): a.e(x)
    a.wait(lg="all")
    def ex(u, k): j, r = divmod(k, 4); s = Sr(u, j) + r; return f"v_exp_f32 v{s}, v{s}"
    def cv(u, buf, c): j, h = divmod(c, 2); s = Sr(u, j) + 2*h; return f"v_cvt_pk_bf16_f32 v{Pr(buf,j) + 2*u + h}, v{s}, v{s+1}"
    def qk(u): return [mf(Sr(u, j), KF + 4*ks, Qf(j, ks), Nm(j) if ks == zk(j)[0] else Sr(u, j)) for j in range(3) for ks in zk(j)]
    def pv(t, half, fr=VF): return [mf(Or(4*half + i, j), fr + 4*i, Pr(t & 1, j), None if t == 0 else Or(4*half + i, j)) for i in range(4) for j in zj(i)]
    def sm(t): return [mf(La(j), ONES, Pr(t & 1, j), None if t == 0 else La(j)) for j in zj(1)]
    VMW = min(8, OPT["vmw"])
    decide = [f"s_getreg_b32 s{sC1}, hwreg(HW_REG_IB_STS, 0, 4)", f"s_cmp_ge_u32 s{sC1}, s{sThr}", f"s_cselect_b32 s{sC1}, s{sLag}, 15",
              f"s_cmp_lt_u32 s{sC1}, {OPT['lmax']}"]
    if OPT["w2"] >= 0: decide = decide[:2]
    advance = [f"s_mov_b32 s{sOff}, s{sOff2}", f"s_mov_b32 s{sMv}, s{sMk}", f"s_add_u32 s{sKc}, s{sKc}, 8192"]
    recompute = [f"s_xor_b32 s{sOff2}, s{sKc}, s{sRot}", f"s_bfe_u32 s{sMk}, s{sKc}, 0x3000d", f"s_mul_i32 s{sMk}, s{sMk}, {TILE}"]
    skips = []
    def forked(build, nxt):
        l0, l1 = newlabel("df"), newlabel("dfb")
        a.e(f"s_cbranch_scc1 {l0}")
        a.e(f"{l0}i:")
        lg = list(a.lg)
        build(True).emit(nxt)
        a.e(f"{l1}:")
        skips.append((l0, l1, build, nxt, lg, list(a.lg)))
    catch = []
    def wo_at(S, m, gaps):
        st, post = wo_tile(m)
        place_tile(a, S, st, gaps)
        for x in post: S.h(gaps[1], x)
    def tail_vec(S, u, buf, rds):
        pos = [0, 1, 4, 5, 8, 9, 10, 11]
        for r, p in zip(rds, pos): S.v(p, r)
        for k, p in zip(range(8, 12), (2, 3, 6, 7)): S.v(p, ex(u, k))
        for c, p in zip(range(6), (0, 1, 4, 5, 8, 9)): S.v(p, cv(u, buf, c))
    a.e("L_head:")
    a.c("tile 0: scores of the first 16 keys give the stand-in row max")
    def qk0(extra):
        S = Sched(a, [mf(Sr(0, j), KF + 4*ks, Qf(j, ks), None if ks == 0 else Sr(0, j)) for j in range(3) for ks in range(4)])
        S.h(2, lambda: vmw(a, VMW))
        for k, x in enumerate(decide): S.h(3 + k, x)
        for k, x in enumerate(extra[:24]): S.v(k // 2, x)
        S.emit(None)
        for x in extra[24:]: a.e(x)
        if not extra: a.e("s_nop 7")
    qk0([])
    a.e(".p2align 6")
    a.e("L_head2:")
    for j in range(3): a.e(f"v_max3_f32 v{Nm(j)}, v{Sr(0,j)}, v{Sr(0,j)+1}, v{Sr(0,j)+2}")
    for j in range(3): a.e(f"v_max_f32 v{Nm(j)}, v{Nm(j)}, v{Sr(0,j)+3}")
    rowred(a, "v_max_f32", [Nm(j) for j in range(3)], [Nm(j) + 1 for j in range(3)])
    for j in range(3):
        if OPT["pk"]:
            for r in (2, 0): a.e(f"v_pk_mul_f32 v[{Nm(j)+r}:{Nm(j)+r+1}], v[{Nm(j)}:{Nm(j)+1}], -1.0 op_sel_hi:[0,0]")
        else:
            for r in (3, 2, 1, 0): a.e(f"v_sub_f32 v{Nm(j)+r}, 0, v{Nm(j)}")
    def qkb(issue):
        S = Sched(a, [mf(Sr(1, j), VF + 4*ks, Qf(j, ks), Nm(j) if ks == 0 else Sr(1, j)) for j in range(3) for ks in range(4)])
        S.h(0, "s_barrier")
        for r, p in zip(rd_k(KF, 1, 0), (0, 3, 6, 9)): S.v(p, r)
        if issue:
            place_tile(a, S, unit_dma(), (2, 5, 8, 11))
            for x, p in zip(advance, (6, 8, 9)): S.h(p, x)
        else: S.h(1, f"s_add_u32 s{sLag}, s{sLag}, 1")
        subs = [f"v_add_f32 v{Sr(0,j)+r}, v{Sr(0,j)+r}, v{Nm(j)}" for j in range(3) for r in range(4)]
        for x, p in zip(subs, (0, 1, 1, 3, 4, 4, 6, 7, 7, 9, 10, 10)): S.v(p, x)
        return S
    forked(qkb, None)
    for k in range(12): a.e(ex(0, k))
    for k in range(8): a.e(ex(1, k))
    for c in range(6): a.e(cv(0, 0, c))
    a.wait(lg="all")
    def stage(t, mode):
        a.c(f"stage {t} {mode}")
        kv = mode == "kv"
        S = Sched(a, qk(0)); tail_vec(S, 1, t & 1, rd_v(t, 0))
        if kv:
            for k, x in enumerate(recompute): S.h(1 + k, x)
        def cusite(S, hs):
            if kv and OPT["dyn"] and OPT["thr2"] >= 0 and t >= OPT["cufrom"] and (t - OPT["cufrom"]) % OPT["custep"] == 0:
                l0, l1 = newlabel("cu"), newlabel("cub")
                cm = [f"s_add_u32 s{sC1}, s{sC1}, {THR - OPT['thr2']}", f"s_cmp_le_u32 s{sC1}, s{sThr}"] if OPT["gate"] else ["s_nop 0", f"s_cmp_le_u32 s{sC1}, {OPT['thr2']}"]
                for k, x in enumerate([f"s_getreg_b32 s{sC1}, hwreg(HW_REG_IB_STS, 0, 4)"] + cm +
                                      [f"s_cselect_b32 s{sC1}, s{sLag}, 0", f"s_cmp_gt_u32 s{sC1}, 0"]): S.h(hs[k], x)
                def site(l0=l0, l1=l1): a.e(f"s_cbranch_scc1 {l0}"); a.e(f"{l1}:")
                S.h(hs[5], site)
                catch.append((l0, l1, t))
        if OPT["cupos"] == 0: cusite(S, (5, 6, 7, 8, 9, 10))
        S.emit(pv(t, 0)[0])
        S = Sched(a, pv(t, 0))
        for r, p in zip(rd_k(KF, t+1, 1), (0, 1, 2, 3)): S.v(p, r)
        for k, p in zip(range(8), range(4, 12)): S.v(p, ex(0, k))
        S.h(10, lambda: a.wait(lg="all"))
        if OPT["cupos"] == 1: cusite(S, (0, 1, 3, 4, 6, 7))
        if mode == "wq" and t == 13: place_tile(a, S, x_block(1, 0, sXo) + x_block(2, 0, sXo), (2, 4, 7, 9))
        S.emit(qk(1)[0])
        S = Sched(a, qk(1)); tail_vec(S, 0, (t+1) & 1, rd_v(t, 1))
        if kv:
            if t == OPT["sh1t"]: S.h(2, f"s_mov_b32 s{sThr}, s{sThN}")
            if t == 9 and OPT["sh2"] and T:
                S.h(2, f"s_cmp_eq_u32 s{sR}, s{sPre}"); S.h(3, f"s_cselect_b32 s{sThr}, 0, s{sThr}")
            S.h(10 - len(decide), lambda: vmw(a, VMW))
            for k, x in enumerate(decide): S.h(11 - len(decide) + k, x)
        else:
            S.h(11, lambda: vmw(a, {"wo": 8, "wq": 8 if t < 14 else 4}[mode]))
        S.emit(None)
        def dslot(issue):
            S = Sched(a, sm(t) + pv(t, 1))
            S.h(0, "s_barrier")
            if t + 2 < 16:
                for r, p in zip(rd_k(KF, t+2, 0), (0, 1, 2, 3)): S.v(p, (r, "kr"))
            else:
                for r, p in zip(rd_v(15, 0, KF), (0, 1, 2, 3, 4, 6, 7, 9)): S.v(p, (r, "kr"))
                S.v(10, cv(1, 1, 0)); S.v(12, cv(1, 1, 1))
                if mode == "wq":
                    for k, p in enumerate((0, 1, 2, 5, 8, 10)): S.v(p, (rd_xb(X2reg(0, k >> 1, k & 1), k >> 1, k & 1), "kr"))
            for k, p in zip(range(8), (3, 4, 6, 7, 9, 10, 12, 13)): S.v(p, ex(1, k))
            def vwait(keep):
                def f():
                    idx = [n for n, (tg, d) in enumerate(a.lg) if tg != "kr"]
                    if len(idx) > keep: a._wait(lg_idx=idx[len(idx) - 1 - keep])
                return f
            S.h(1, vwait(4)); S.h(6, vwait(0))
            if kv and issue:
                place_tile(a, S, unit_dma(), (5, 8, 11, 14))
                for x, p in zip(advance, (9, 11, 3)): S.h(p, x)
            elif kv: S.h(3, f"s_add_u32 s{sLag}, s{sLag}, 1")
            elif mode == "wo":
                wo_at(S, 2*(t-12), (5, 8)); wo_at(S, 2*(t-12) + 1, (11, 14))
            else:
                if t == 12: place_tile(a, S, x_block(0, 0, sXo), (5, 8))
                else: place_tile(a, S, w_tile(2*t - 17, 2*t - 25, 2), (5, 8))
                place_tile(a, S, w_tile(2*t - 16, 2*t - 24, 2), (11, 14))
            S.h(12 if t < 14 else 14, lambda: a.wait(lg="all"))
            return S
        nxt = qk(0)[0] if t < 14 else None
        if kv: forked(dslot, nxt)
        else: dslot(True).emit(nxt)
        assert not a.lg
    NPRE = 20
    def epi_ops(toq):
        o_ = [f"v_mul_f32 v{Or(u,j)+r}, v{Or(u,j)+r}, v{vT+j}" for u in range(2) for j in range(3) for r in range(4)]
        for p in range(4):
            for j in range(3):
                d = Qf(j, p) if toq else Or(2*p, j)
                if p: o_ += [f"v_mul_f32 v{Or(2*p+u,j)+r}, v{Or(2*p+u,j)+r}, v{vT+j}" for u in range(2) for r in range(4)]
                o_ += [f"v_cvt_pk_bf16_f32 v{d+2*u+h}, v{Or(2*p+u,j)+2*h}, v{Or(2*p+u,j)+2*h+1}" for u in range(2) for h in range(2)]
        return o_
    def stage15(mode):
        a.c(f"stage 15 {mode}")
        p0 = pv(15, 0, KF)
        S = Sched(a, [m_ for j in range(3) for m_ in [sm(15)[zj(1).index(j)]] + [p0[3*i + zj(i).index(j)] for i in range(4)]] + pv(15, 1))
        for r, p in zip(rd_v(15, 1), (0, 1, 6, 7, 8, 9, 10, 11)): S.v(p, r)
        for c, p in zip((2, 3, 4, 5), (0, 1, 6, 7)): S.v(p, cv(1, 1, c))
        for k, p in zip(range(8, 12), (2, 3, 4, 5)): S.v(p, ex(1, k))
        for j, p in enumerate((8, 9, 14)): S.v(p, f"v_accvgpr_read_b32 v{vT+j}, a{La(j)[1]}")
        S.v(10, f"v_add_f32 v{vT+3}, v{vT}, v{vT+1}"); S.v(14, f"v_add_f32 v{vT+3}, v{vT+3}, v{vT+2}")
        S.v(11, f"v_mov_b32 v{vT+4}, {f32(2.0**60 if not OPT['forceslow'] else 150.0)}")
        S.v(15, f"v_cmp_nle_f32 vcc, v{vT+3}, v{vT+4}")
        for j, p in enumerate((12, 13, 16)): S.v(p, f"v_rcp_f32 v{vT+j}, v{vT+j}")
        if mode != "wo":
            for k, x in enumerate(epi_ops(0)[:NPRE]): S.v(17 + k // 2, x)
        if mode == "kv":
            for k, x in enumerate(recompute): S.h(1 + k, x)
        if mode == "wo":
            for k in range(3): wo_at(S, 6 + k, (11 + 6*k, 14 + 6*k))
        if mode == "wq":
            place_tile(a, S, [s_ for j in range(3) for s_ in x_block(j, 0, sXo1)], (12, 14, 17, 19, 22, 24))
        S.emit(None)
        assert not a.lg
        if not OPT["nocheck"]: a.e("s_cbranch_vccnz L_slow")
    for t in range(15):
        if t == 12:
            a.e(f"s_cmp_eq_u32 s{sR}, 3"); a.e("s_cbranch_scc1 L_altwo")
            if T: a.e(f"s_cmp_eq_u32 s{sR}, s{sPre}"); a.e("s_cbranch_scc1 L_altwq")
        stage(t, "kv")
    stage15("kv")
    a.e("L_epi:")
    for r in rd_k(KF, 0, 0) + rd_k(VF, 0, 1): a.e(r)
    lg_epi = list(a.lg)
    for x in packed(epi_ops(0)[NPRE:]): a.e(x)
    if OPT["stamp"] and not OPT['qprof']: stamp_dyn(a, 5, sR, 4)
    a.e(f"s_add_u32 s{sCur}, s{sCur}, 131072")
    a.e(f"s_add_u32 s{sR}, s{sR}, 1")
    a.e(f"s_cmp_eq_u32 s{sR}, 3"); a.e("s_cbranch_scc1 L_sw2")
    a.e(f"s_cmp_eq_u32 s{sR}, 2"); a.e("s_cbranch_scc1 L_sw1")
    for r in range(3):
        a.e(f"L_sw{r}:")
        if r == 1 and T: a.e(f"s_cmp_eq_u32 s{sPre}, 1"); a.e("s_cbranch_scc1 L_q2b")
        if r < 2: code_touch(a, "L_rare", "L_altwo" if r == 0 or not T else "L_q2b", 10, 11)
        if r == 2:
            code_touch(a, "L_rare", "L_hot_end", 158, 159)
            l = newlabel("bp")
            a.e(f"s_cmp_lg_u32 s{sWv}, 0"); a.e(f"s_cbranch_scc1 {l}")
            a._emit("global_load_dword v156, v157, s[18:19] sc1")
            a.e(f"{l}:")
        for j in range(3):
            for p in range(4):
                for x in range(4): a.e(f"v_accvgpr_read_b32 v{Qf(j,p)+x}, a{QBANK[r+1] + 12*p + 4*j + x}")
        a.raw_wait("s_waitcnt lgkmcnt(0)"); a.lg = []
        qk0(bank_write(OBANK[r], lambda p, j: Or(2*p, j)))
        a.e("s_branch L_head2")
    def settle():
        if OPT["lmax"] < 4: return
        l = newlabel("st")
        a.e(f"s_cmp_lt_u32 s{sLag}, 4"); a.e(f"s_cbranch_scc1 {l}")
        for x in recompute: a.e(x)
        emit_tile(a, unit_dma())
        a.e(advance[2])
        a.e(f"{l}:")
    a.e("L_rare:")
    for l0, l1, t in catch:
        a.e(f"{l0}:")
        emit_tile(a, unit_dma())
        for x in advance + recompute: a.e(x)
        a.e(f"s_sub_u32 s{sLag}, s{sLag}, 1")
        a.e(f"s_branch {l1}")
    for l0, l1, build, nxt, lg0, lg1 in skips:
        if OPT["w2"] >= 0:
            a.e(f"{l0}w:"); vmw(a, OPT["w2"]); a.e(f"s_branch {l0}i")
        a.e(f"{l0}:")
        if OPT["w2"] >= 0: a.e(f"s_cmp_ge_u32 s{sLag}, {OPT['lmax']}"); a.e(f"s_cbranch_scc1 {l0}w")
        a.lg = list(lg0)
        build(False).emit(nxt)
        assert a.lg == lg1
        a.e(f"s_branch {l1}")
    if T:
        a.e("L_q2b:")
        for x in bank_write(OBANK[1], lambda p, j: Or(2*p, j)): a.e(x)
        a.e(f"s_sub_u32 s{sKn}, s{sKc}, 8192"); a.e(f"s_add_u32 s{sMin}, s{sCur}, {3*8192}")
        a.raw_wait("s_waitcnt vmcnt(0) lgkmcnt(0)")
        if L0 > 5: a.e("s_barrier")
        for n in range(5, L0): emit_tile(a, w_tile(wpos(n), n, 2))
        a.e("s_branch L_q2go")
        a.e(".p2align 6")
        a.e("L_altwq:")
        settle()
        a.lg = []
        for t in range(12, 15): stage(t, "wq")
        stage15("wq")
        a.e("s_branch L_epi")
    a.e(".p2align 6")
    a.e("L_altwo:")
    settle()
    a.lg = []
    for t in range(12, 15): stage(t, "wo")
    stage15("wo")
    sPr, sOut, sOo, sDst = sX, sW, sLast, 40
    LD = {0: 184, 1: 130}
    ACC, STG = 60, 160
    vSA, vSB, vLA, vLB, vOA, vFl, vFi, vPoll, vVal, TM, PK = 152, 153, 154, 158, 159, 1, 2, 6, 10, 120, 124
    def Ga(h, i, j): return (72, 208)[h] + 12 * i + 4 * j
    def spin_loop(l0, l1, cmp, reload):
        a.e(f"{l0}:")
        a.e(f"s_mov_b32 s{sT3}, 0")
        l2 = newlabel("spin")
        a.e(f"{l2}:")
        a.e(f"s_add_u32 s{sT3}, s{sT3}, 1")
        a.e(f"s_cmp_ge_u32 s{sT3}, {SPIN_MAX}")
        a.e(f"s_cbranch_scc1 {l1}")
        a.e(f"s_sleep {OPT['sleep']}")
        a._emit(reload)
        a.raw_wait("s_waitcnt vmcnt(0)")
        for x in cmp: a._emit(x)
        a._emit("s_nop 4")
        a.e(f"s_cbranch_vccnz {l2}")
        a.e(f"s_branch {l1}")
    spins = []
    def rd_g(dst, m, f):
        h, o = slot(m); i, c = divmod(f, 2)
        return [f"ds_read_b64_tr_b16 {R(off(dst, 2*e), 2)}, v{(vWAl, vWAh)[h]} offset:{o + c*512 + e*256 + i*32}" for e in range(2)]
    def gmf(n):
        h, t = divmod(n % 16, 8)
        o = []
        for i in range(4):
            for jn, j in enumerate(zj(i)):
                cs = (1, 0) if OPT["zz"] and (3 * i + jn) & 1 else (0, 1)
                for c in cs:
                    r, p = divmod(2 * t + c, 4)
                    o.append(mf(Ga(h, i, j), Greg(n & 1, 2*i + c), Qf(j, p) if r == 3 else ("a", OBANK[r] + 12 * p + 4 * j), None if t == 0 and c == cs[0] else Ga(h, i, j)))
        return o
    a.e("L_g:")
    a.lg = []
    if OPT["stamp"] and not OPT['qprof']: stamp(a, 8)
    if OPT["qprof"] == 4: stamp(a, 4)
    a.e(f"v_lshrrev_b32 v{TM}, 5, v0"); a.e(f"v_lshlrev_b32 v{TM}, 7, v{TM}")
    a.e(f"v_sub_u32 v{vWAh}, v{vVA}, v{TM}"); a.e(f"v_subrev_u32 v{vWAl}, {VB}, v{vWAh}")
    a.e(f"v_mov_b32 v{TM+1}, {XB}")
    vmw(a, 12)
    l, l0, l1 = newlabel("bc"), newlabel("bs"), newlabel("bok")
    a.e(f"s_cmp_lg_u32 s{sWv}, 0"); a.e(f"s_cbranch_scc1 {l}")
    bcmp = [f"v_and_b32 v{TM}, 0xff, v156", f"v_cmp_gt_u32 vcc, 8, v{TM}"]
    for x in bcmp: a._emit(x)
    a.e(f"s_lshl_b32 s{sTmp}, s{sPK}, 3")
    a._emit("s_nop 3")
    if not OPT["nosync"]: a.e(f"s_cbranch_vccnz {l0}")
    a.e(f"{l1}:")
    spins.append((l0, l1, bcmp, "global_load_dword v156, v157, s[18:19] sc1"))
    a.e(f"v_xor_b32 v156, s{sTmp}, v156")
    a._emit(f"ds_write_b32 v{TM+1}, v156")
    a.e(f"{l}:")
    a.e("s_barrier")
    for f in range(8):
        for r in rd_g(Greg(0, f), 0, f): a.e(r)
    epi = epi_ops(1)
    NC = 24 if OPT["pk"] else 16
    for x in packed(epi[:NC]): a.e(x)
    epi = epi[NC:]
    def srd_atoms(d, lo, o): return [[f"s_add_u32 s{d}, s{lo}, {o}", f"s_addc_u32 s{d+1}, s{lo+1}, 0"], [f"s_and_b32 s{d+1}, s{d+1}, 0xffff"], [f"s_mov_b32 s{d+3}, 0x20000"]]
    T1_, T2_ = f"s{sTmp}", f"s{sT2}"
    setup_ = [[f"s_mul_i32 {T1_}, s{sG}, {XG}"]] + srd_atoms(sP, 28, T1_) + [[f"s_mov_b32 s{sP+2}, {XG}"], [f"s_mul_i32 {T2_}, s{sU}, {XD}"], [f"s_add_u32 {T1_}, {T1_}, {T2_}"]]
    setup_ += srd_atoms(sPr, 28, T1_) + [[f"s_mov_b32 s{sPr+2}, 0"]]
    if OPT["ibg"]:
        setup_ += [[x] for x in (f"s_mul_i32 {T2_}, s{sWv}, 1536", f"s_add_u32 {T2_}, {T2_}, {T1_}", f"s_add_u32 {T2_}, {T2_}, {5*XP}",
            "v_min_u32 v3, 47, v0", "v_mul_u32_u24 v132, 43, v3", "v_lshrrev_b32 v132, 9, v132", "v_lshlrev_b32 v3, 7, v3",
            "v_mul_u32_u24 v132, 4608, v132", f"v_add3_u32 v3, v3, v132, {T2_}", f"s_add_u32 {T2_}, {T2_}, {XD - 6144 + 1408}",
            "v_add_u32 v157, 24576, v3", f"v_min_u32 v157, {T2_}, v157")]
    for i in range(7):
        setup_ += [[f"s_xor_b32 s{sDst+i}, s{sU}, {i ^ 7}"], [f"s_mul_i32 s{sDst+i}, s{sDst+i}, {XD}"], [f"s_add_u32 s{sDst+i}, s{sDst+i}, {i*6144}"]]
    setup_ += [[f"s_mul_i32 {T1_}, s{sB}, 491520"], [f"s_mul_i32 {T2_}, s{sBr}, 1280"], [f"s_add_u32 {T1_}, {T1_}, {T2_}"], [f"s_lshl_b32 {T2_}, s{sU}, 5"], [f"s_add_u32 {T1_}, {T1_}, {T2_}"]]
    setup_ += srd_atoms(sOut, 16, T1_) + [[f"s_mov_b32 s{sOut+2}, 0"]]
    setup_ += [[x] for x in (f"s_mul_i32 {T1_}, s{sWv}, 1536", f"v_lshl_add_u32 v{vSA}, v0, 4, {T1_}", f"s_add_u32 {T1_}, {T1_}, 1024", f"v_lshl_add_u32 v{vSB}, v0, 3, {T1_}",
        *((f"v_and_b32 v{TM}, 15, v0", f"v_mul_u32_u24 v{TM}, 2560, v{TM}", f"v_lshrrev_b32 v{TM+3}, 4, v0", f"v_lshl_add_u32 v{TM}, v{TM+3}, 3, v{TM}") if not OPT["bp"] else
          (f"v_lshrrev_b32 v{TM}, 2, v0", f"v_and_b32 v{TM+3}, 3, v0", f"v_lshl_add_u32 v11, v{TM+3}, 4, v{TM}", "v_lshlrev_b32 v11, 2, v11",
           f"v_mul_u32_u24 v{TM}, 2560, v{TM}", f"v_lshl_add_u32 v{TM}, v{TM+3}, 3, v{TM}")),
        f"s_mul_i32 {T1_}, s{sWv}, {48*2560}", f"v_add_u32 v{vOA}, {T1_}, v{TM}",
        f"s_lshl_b32 {T1_}, s{sWv}, 7", f"s_lshl_b32 {T2_}, s{sU}, 2", f"s_add_u32 {T2_}, {T2_}, {T1_}", f"v_lshl_add_u32 v{vFl}, v0, 9, {T2_}",
        f"s_lshl_b32 {T2_}, s{sU}, 9", f"s_add_u32 {T2_}, {T2_}, {T1_}", f"v_and_b32 v{TM}, 7, v0", f"v_lshl_add_u32 v{vFi}, v{TM}, 2, {T2_}",
        f"v_mov_b32 v{vVal}, 0", f"v_mov_b32 v{vPoll}, 0", f"s_mov_b32 s{sGc}, 0" if not OPT["emu3"] else f"s_lshl_b32 s{sGc}, s{sTyp}, 1", f"s_mov_b32 s{sOo}, -512" if not OPT["emu3"] else f"s_mov_b32 s{sOo}, 0", f"s_mov_b32 s{sS8}, 0xffff0000")]
    if OPT["mred"]:
        sel_ = [x for x in ("v_and_b32 v134, 1, v0", "v_lshlrev_b32 v134, 4, v134", "v_mov_b32 v135, 0x3f80", "v_lshlrev_b32 v134, v134, v135",
            "v_bfe_u32 v135, v0, 1, 3", "v_lshrrev_b32 v136, 4, v0", "v_lshlrev_b32 v136, 1, v136", "v_xor_b32 v135, v135, v136",
            "v_cmp_eq_u32 vcc, 0, v135", "v_mov_b32 v142, 0", "v_cndmask_b32 v136, 0, v134, vcc", "v_cmp_eq_u32 vcc, 1, v135", "v_mov_b32 v143, 0",
            "v_cndmask_b32 v137, 0, v134, vcc", "v_accvgpr_write_b32 a0, v136", "v_accvgpr_write_b32 a2, v136", "v_accvgpr_write_b32 a1, v137",
            "v_accvgpr_write_b32 a3, v137", "v_mov_b32 v148, 0", "v_mov_b32 v149, 0")]
    m = 9
    Ss = []
    for n in range(8):
        S = Sched(a, gmf(n)); Ss.append(S)
        rds = []
        for f in range(8): rds += rd_g(Greg((n + 1) & 1, f), n + 1, f)
        for r, p in zip(rds, RDPOS): S.v(p, r)
        for gp in ([(6, 11), (16, 19)] if n < 4 else [(6, 11)]): wo_at(S, m, gp); m += 1
        if n % 4 == 1: end_sync(a, S, {1: 12, 5: 16}[n], 0)
        else: S.h(22, lambda: a.wait(lg="all"))
        if n == 2: S.v(20, f"ds_read_b32 v{TM+2}, v{TM+1}")
        if OPT["ibg"] and n == OPT["ibn"]: S.v(16, lambda: a._emit(f"global_load_dword v132, v3, s[28:29]"))
        if OPT["ibg"] and n == min(7, OPT["ibn"] + 3): S.v(16, lambda: a._emit(f"global_load_dword v133, v157, s[28:29]"))
        if n == 7:
            S.v(19, f"v_readfirstlane_b32 s{sTmp}, v{TM+2}"); S.h(21, f"s_cmp_lg_u32 s{sTmp}, 0")
    assert m == 21
    n, k = 0, 0
    for atom in setup_:
        while True:
            S = Ss[n]
            ok = (not S.hold[k]) if atom[0].startswith("s_") else free_slots(S)[k] > 0
            if atom[0].startswith("s_") and len(atom) > 1 and free_slots(S)[k] == 0: ok = False
            if ok: break
            k += 1
            if k == 24: n += 1; k = 0
        for x in atom: (S.h if x.startswith("s_") else S.v)(k, x)
        if not atom[0].startswith("s_") or True:
            k += 1
            if k == 24: n += 1; k = 0
    assert (n, k) < (7, 18), (n, k)
    for n in range(7):
        epi = fill_ops(Ss[n], epi)
        if n == 5: assert len(epi) <= 72 - 8, len(epi)
    assert not epi, len(epi)
    if OPT["mred"]: assert not fill_ops(Ss[7], sel_)
    for n in range(8):
        a.c(f"G first half, sub-step {n}")
        Ss[n].emit(gmf(n + 1)[0])
    a.e("s_branch L_gx" if OPT["xmode"] == 1 else "s_cbranch_scc1 L_gx")
    NP = {0: 4, 1: 3}
    def cvs(h): return [f"v_cvt_pk_bf16_f32 v{STG + 6*i + 2*j + x}, v{Ga(h,i,j)+2*x}, v{Ga(h,i,j)+2*x+1}" for i in range(NP[h]) for j in range(3) for x in range(2)]
    def rops(h, k):
        o = []
        for r in range(6):
            s = LD[h] + 6*k + r; t = TM + 2 * (r & 1)
            src = Ga(1, 3, r >> 1) + 2 * (r & 1) if (h, k) == (0, 0) else ACC + 2*r
            o += [f"v_lshlrev_b32 v{t}, 16, v{s}", f"v_and_b32 v{t+1}, s{sS8}, v{s}",
                  f"v_add_f32 v{ACC+2*r}, v{src}, v{t}", f"v_add_f32 v{ACC+2*r+1}, v{src+1}, v{t+1}"]
        return o
    def ldreg(h, k):
        if not OPT["mred"]: return LD[h] + 6*k, LD[h] + 6*k + 4
        if (h, k) == (1, 2): return 144, 150
        b_ = LD[h] + 12 * (k >> 1)
        return (b_ + 6, b_) if k & 1 else (b_ + 2, b_ + 10)
    def rmf(h, pr):
        q_ = (142, 146, 148) if (h, pr) == (1, 1) else [LD[h] + 12*pr + 4*j for j in range(3)]
        return [mf(ACC + 4*j, ("a", 0), q_[j], Ga(1, 3, j) if (h, pr) == (0, 0) else ACC + 4*j) for j in range(3)]
    rcv = [f"v_cvt_pk_bf16_f32 v{PK+r}, v{ACC+2*r}, v{ACC+2*r+1}" for r in range(6)]
    bps = [f"ds_bpermute_b32 v{PK+r}, v11, v{PK+r}" for r in range(6)] if OPT["bp"] else []
    def rst(j): return ([f"s_add_u32 s{sOff2}, s{sOo}, {j*40960}"], f"buffer_store_dwordx2 {vr(PK+2*j,2)}, v{vOA}, {sr(sOut,4)}, s{sOff2} offen{['', ' sc1', ' nt', ' sc0 sc1'][OPT['opol']]}")
    chk_cmp = [f"v_cmp_gt_u32 vcc, v{vVal}, v{vPoll}"]
    poll = f"buffer_load_dword v{vPoll}, v{vFi}, {sr(sF,4)}, 0 offen sc1"

    def g_phase(fast):
        pol = ("", " nt", " sc0")[OPT["xs"]] if fast else " sc1"
        la, lb = (vSA, vSB) if fast else (vLA, vLB)
        def xst(h, i):
            o4, o2 = (2, 0) if OPT["mred"] and i & 1 else (0, 4)
            return [([], f"buffer_store_dwordx4 {vr(STG+6*i+o4,4)}, v{vSA}, {sr(sP,4)}, s{sDst+4*h+i} offen{pol}"),
                    ([], f"buffer_store_dwordx2 {vr(STG+6*i+o2,2)}, v{vSB}, {sr(sP,4)}, s{sDst+4*h+i} offen{pol}")]
        def xld(h, k): return [([f"s_mov_b32 s{sOff2}, {(4*h+k)*6144}"], f"buffer_load_dwordx4 {vr(ldreg(h,k)[0],4)}, v{la}, {sr(sPr,4)}, s{sOff2} offen sc1"),
                               ([], f"buffer_load_dwordx2 {vr(ldreg(h,k)[1],2)}, v{lb}, {sr(sPr,4)}, s{sOff2} offen sc1")]
        flag = f"buffer_store_dword v{vVal}, v{vFl}, {sr(sF,4)}, 0 offen{pol}"
        def check():
            l0, l1 = newlabel("sp"), newlabel("ok")
            if not OPT["nosync"]: a.e(f"s_cbranch_vccnz {l0}")
            a.e(f"{l1}:")
            spins.append((l0, l1, chk_cmp, poll))
        if fast: a.e(f"v_add_u32 v{vSA}, {5*XP}, v{vSA}"); a.e(f"v_add_u32 v{vSB}, {5*XP}, v{vSB}")
        else: a.e(f"v_subrev_u32 v{vLA}, {XP}, v{vSA}"); a.e(f"v_subrev_u32 v{vLB}, {XP}, v{vSB}")
        a.e(f"s_branch L_gmid{int(fast)}")
        late = []
        def body():
            del late[:]
            Ss = [Sched(a, gmf(n) + (rmf(n // 8, 0) + rmf(n // 8, 1) if OPT['mred'] and n % 8 == 6 else [])) for n in range(16)]
            cap = [[2] * 24 for _ in range(16)]
            ops = []
            def vmem(n, g_, steps, kind):
                if isinstance(kind, tuple) and kind[0] == "T": place_tile(a, Ss[n], steps, g_)
                else:
                    for (pre, d), x in zip(steps, g_):
                        for y in pre: Ss[n].h(x, y)
                        Ss[n].v(x, lambda d=d: a._emit(d))
                for x in g_: cap[n][x] = 0; ops.append((n, x, kind))
            tpos = {0: [(6, 11)], 1: [(6, 11)], 4: [(6, 11), (16, 19)], 5: [(11, 16), (19, 22)], 6: [(6, 11)], 7: [(11, 16)]}
            m = 13
            for n in range(16):
                h, t = divmod(n, 8); S = Ss[n]
                rds = []
                for f in range(8): rds += rd_g(Greg((n + 1) & 1, f), n + 1, f)
                for r, p in zip(rds, RDPOS): S.v(p, r); cap[n][p] -= 1
                cap[n][23] = 0 if n % 4 == 1 else 1; cap[n][20] = min(cap[n][20], 1); cap[n][21] = min(cap[n][21], 1)
                for gp in tpos.get(t, []):
                    st, post = wo_tile(m)
                    if m == 16:
                        S.h(gp[0] - 4, f"s_cmp_eq_u32 s{sGc}, 4"); S.h(gp[0] - 3, f"s_cselect_b32 s{sWo+2}, 0, s{sWo+2}")
                    vmem(n, gp, st, ("T", m))
                    for x in post: S.h(gp[1], x)
                    m += 1
                if t == 2:
                    xs = [s_ for i in range(NP[1-h]) for s_ in xst(1 - h, i)] + [s_ for k in range(NP[h]) for s_ in xld(h, k)]
                    if OPT["xord"]:
                        st_ = xs[:2*NP[1-h]]; ld_ = xs[2*NP[1-h]:]
                        pat = {6: "SLSLLSL" * 2, 8: "SSLSLSL" + "SSLSLSL"}[len(st_)] if OPT["xord"] == 1 else {6: "SSLLSLL" * 2, 8: "SSSLSLL" * 2}[len(st_)]
                        xs = [(st_ if c_ == "S" else ld_).pop(0) for c_ in pat]
                    pos = [(n + d, g_) for d in (0, 1) for g_ in (6, 11, 16, 19, 20, 21, 22)]
                    for s_, (n2, g_) in zip(xs, pos): vmem(n2, (g_,), [s_], ("X", h))
                if t == 5: vmem(n, (6,), [([], flag)], "F"); S.v(4, f"v_add_u32 v{vVal}, 1, v{vVal}"); cap[n][4] -= 1
                if t == 7: vmem(n, (6,), [([], poll)], ("P", h))
            assert m == 29
            if OPT["opos"] == 0: vmem(4, (20, 21, 22), [rst(j) for j in range(3)], "O")
            else:
                for j, (n2, g_) in enumerate(((6, 16), (8, 16), (14, 16)) if OPT["opos"] == 1 else ((6, 16), (7, 21), (8, 19))): vmem(n2, (g_,), [rst(j)], "O")
            for x, (n2, g_) in zip(bps, ((2, 23), (3, 23), (4, 22), (4, 23), (6, 22), (6, 23))): Ss[n2].v(g_, x); cap[n2][g_] = max(0, cap[n2][g_] - 1)
            ops.sort(key=lambda x: (x[0], x[1]))
            ops2 = ops + [(n + 16, g_, k) for n, g_, k in ops]
            def younger(pt, n, g_): return len([o for o in ops2 if pt < (o[0], o[1]) < (n, g_)])
            for h in range(2):
                pt = max((o[0], o[1]) for o in ops if o[2] == ("X", h))
                Ss[8*h + 5].h(2, lambda c=younger(pt, 8*h + 5, 2): vmw(a, c))
                pt = [(o[0], o[1]) for o in ops if o[2] == ("P", h)][0]
                nc = 8*h + 9
                Ss[nc % 16].h(16, lambda c=younger(pt, nc, 16): vmw(a, c))
                Ss[nc % 16].v(16, lambda: a._emit(chk_cmp[0])); cap[nc % 16][16] -= 1
                Ss[nc % 16].h(20, check)
            def fill(lst, n, g_, rec=None):
                for op in lst:
                    while cap[n % 16][g_] <= 0:
                        g_ += 1
                        if g_ == 24: n += 1; g_ = 0
                    if not OPT["norv"]: Ss[n % 16].v(g_, lambda op=op: a._emit(op))
                    cap[n % 16][g_] -= 1
                    if rec is not None and n >= 16: rec.append(op)
                return n, g_
            e = fill(cvs(1), 0, 1); assert e < (2, 5), e
            e = fill(cvs(0), 8, 1); assert e < (10, 5), e
            if OPT["mred"]: fill(rcv, 15, 7)
            else:
                e = fill(rops(0, 0), 5, 2); assert e < (8, 10), e
                e = fill([x for k in range(1, 4) for x in rops(0, k)], *e); assert e < (13, 2), e
                e = fill([x for k in range(3) for x in rops(1, k)] + rcv, 13, 2, late); assert e < (18, 22), e
            S = Ss[7]
            if not fast: S.v(19, f"v_add_u32 v{vSA}, {XP}, v{vSA}"); S.v(20, f"v_add_u32 v{vSB}, {XP}, v{vSB}")
            S = Ss[15]
            S.h(0, f"s_cmp_ge_u32 s{sGc}, 1")
            S.h(1, f"s_cselect_b32 s{sOut+2}, {191*2560 + 1024 + 32}, 0")
            S.h(2, f"s_add_u32 s{sOo}, s{sOo}, 256")
            S.h(3, f"s_mov_b32 s{sPr+2}, {5*XP + XD}")
            if not fast:
                S.v(19, f"v_add_u32 v{vLA}, {XP}, v{vLA}"); S.v(20, f"v_add_u32 v{vLB}, {XP}, v{vLB}")
            S.h(18, f"s_add_u32 s{sGc}, s{sGc}, 1")
            S.h(19, f"s_cmp_lt_u32 s{sGc}, 5")
            for n in range(16):
                a.c(f"G sub-step {n}")
                if n == 8:
                    assert not a.lg
                    a.e(f"L_gmid{int(fast)}:")
                if n % 4 == 1:
                    tid = n + 5 + 16
                    pt = max((o[0], o[1]) for o in ops2 if o[2] == ("T", tid if tid < 29 else tid - 16) and (o[0] < 16) == (tid < 29))
                    cnt = len([o for o in ops2 if pt < (o[0], o[1]) < (n + 16, 22) and (o[0] >= 16 + 8 * (n // 8) or (isinstance(o[2], tuple) and o[2][0] == "T"))])
                    end_sync(a, Ss[n], min(cnt, 63), 0)
                else:
                    def w():
                        k = min(len(a.lg), OPT['gkeep']); a.raw_wait(f"s_waitcnt lgkmcnt({k})"); a.lg = a.lg[len(a.lg) - k:] if k else []
                    Ss[n].h(22, w)
                Ss[n].emit(gmf(n + 1)[0])
        lab = "L_gl_fast" if fast else "L_gl_far"
        if OPT["qprof"] == 2 and fast: stamp(a, 5); stamp(a, 6, False)
        a.e(".p2align 6")
        a.e(f"{lab}:")
        if OPT["qprof"] == 4: stamp_dyn(a, 4, sGc, 5)
        a.lg = []
        mark = len(a.ins); nops0 = a.nops; ns = len(spins)
        body(); lg_end = list(a.lg)
        del a.ins[mark:]; a.nops = nops0; del spins[ns:]
        body(); assert a.lg == lg_end
        a.e(f"s_cbranch_scc1 {lab}")
        if OPT["qprof"] == 2 and fast: stamp(a, 7); stamp(a, 8, False)
        if OPT["qprof"] == 4: stamp(a, 3)
        a.c("tail")
        for x in cvs(1): a.e(x)
        stamp(a, 2)
        vmw(a, 2)
        a._emit(chk_cmp[0]); a._emit("s_nop 4"); check()
        for i in range(3): emit_tile(a, xst(1, i))
        def ntv(st): return [(p_, d_ + " nt") if OPT["tl"] & 1 else (p_, d_) for p_, d_ in st]
        for k in range(4): emit_tile(a, ntv(xld(0, k)))
        for op in late + bps: a._emit(op)
        vmw(a, 8)
        a.e(f"v_add_u32 v{vVal}, 1, v{vVal}")
        a._emit(flag)
        early_out = not OPT["tord"]
        if early_out:
            a.raw_wait("s_waitcnt lgkmcnt(0)"); emit_tile(a, [rst(j) for j in range(3)])
        for k in range(4):
            vmw(a, 2 * (3 - k) + (4 if early_out else 1))
            for op in (rops(0, k) if not OPT["mred"] else rmf(0, k >> 1) if k & 1 else []): a._emit(op)
            if k == (3 if OPT["mred"] else 2): a._emit(poll)
        if fast and OPT["cln"] & 1: a._emit(f"global_store_dword v3, v{vVal}, s[28:29] sc1")
        vmw(a, 1 if fast and OPT["cln"] & 1 else 0)
        a._emit(chk_cmp[0]); a._emit("s_nop 4"); check()
        for k in range(3): emit_tile(a, ntv(xld(1, k)))
        if not early_out:
            a.raw_wait("s_waitcnt lgkmcnt(0)"); emit_tile(a, [rst(j) for j in range(3)])
        a.e(f"s_mov_b32 s{sOo}, 1024")
        for k in range(3):
            vmw(a, 2 * (2 - k) + (0 if early_out else 3))
            for op in (rops(1, k) if not OPT["mred"] else rmf(1, k - 1) if k else []): a._emit(op)
        if fast and OPT["cln"] & 4: a._emit(f"global_store_dword v3, v{vVal}, s[28:29] sc1")
        if fast and OPT["cln"] & 2: a._emit(f"global_store_dword v157, v{vVal}, s[28:29] sc1")
        for op in rcv + bps: a._emit(op)
        a.raw_wait("s_waitcnt lgkmcnt(0)")
        emit_tile(a, [rst(j) for j in range(3)])
    g_phase(True)
    a.e("L_fin:")
    stamp(a, 9, False); stamp(a, 10)
    if OPT["leak"] >= 0:
        k = OPT["leak"]
        if k == 0: a.e("s_mov_b32 s79, 0")
        elif k == 9: a.e("s_sub_u32 s79, s98, s82"); a.e("s_lshr_b32 s79, s79, 4")
        else: a.e(f"s_sub_u32 s79, s{80+2*k}, s80")
        a.e("s_add_u32 s79, s79, 15000")
        if OPT["leakwg"] == 1: a.e("s_cmp_lt_u32 s2, 8"); a.e("s_cselect_b32 s79, s79, 0")
        if OPT["leakwg"] == 2: a.e("s_cmp_ge_u32 s2, 248"); a.e("s_cselect_b32 s79, s79, 0")
        if OPT["leakwg"] in (4, 5): a.e("s_and_b32 s76, s2, 1"); a.e("s_cselect_b32 s79, s79, 0" if OPT["leakwg"] == 5 else "s_cselect_b32 s79, 0, s79")
        if OPT["leakwg"] == 3: a.e("s_cmp_eq_u32 s2, 0"); a.e("s_cselect_b32 s79, s79, 0")
        a.e("L_leak:")
        a._emit("s_memrealtime s[76:77]"); a.raw_wait("s_waitcnt lgkmcnt(0)")
        a.e("s_sub_u32 s76, s76, s80"); a.e("s_cmp_lt_u32 s76, s79"); a.e("s_cbranch_scc1 L_leak")
    stamp_store(a, "L_end", 0)
    dbg_store(a)
    a.e("L_end:")
    a.e("s_endpgm")
    nsp = len(spins)
    for s_ in list(spins): spin_loop(*s_)
    a.e("L_hot_end:")
    a.e(".p2align 6")
    a.e("L_gx:")
    g_phase(False)
    a.e("s_branch L_fin")
    for s_ in list(spins[nsp:]): spin_loop(*s_)
    a.reset_counters()
    a.e("L_slow:")
    a.raw_wait("s_waitcnt vmcnt(0) lgkmcnt(0)")
    vKo, vVo, t0, t1 = 10, 11, P_ + 12, P_ + 13
    a.e("s_nop 7")
    a.e(f"v_and_b32 v{t0}, 7, v0"); a.e(f"v_lshlrev_b32 v{t0}, 10, v{t0}")
    a.e(f"v_bfe_u32 v{t1}, v0, 3, 1"); a.e(f"v_lshl_add_u32 v{t0}, v{t1}, 8, v{t0}")
    a.e(f"v_lshrrev_b32 v{t1}, 4, v0"); a.e(f"v_lshl_add_u32 v{vKo}, v{t1}, 4, v{t0}")
    a.e(f"v_bfe_u32 v{t0}, v0, 4, 1"); a.e(f"v_lshlrev_b32 v{t0}, 12, v{t0}")
    a.e(f"v_lshrrev_b32 v{t1}, 5, v0"); a.e(f"v_lshl_add_u32 v{t0}, v{t1}, 8, v{t0}")
    a.e(f"v_and_b32 v{t1}, 15, v0"); a.e(f"v_lshl_add_u32 v{vVo}, v{t1}, 1, v{t0}")
    for j in range(3): a.e(f"v_mov_b32 v{vT+j}, 0xff800000")
    def slow_qk(cinit):
        for u, kf in ((0, KF), (1, VF)):
            for ks in range(4): a.e(f"buffer_load_dwordx4 {vr(kf + 4*ks,4)}, v{vKo}, {sr(sK,4)}, s{sT2} offen offset:{u*512 + ks*64}")
        for u, kf in ((0, KF), (1, VF)):
            for j in range(3):
                for ks in range(4):
                    a.e(mf(Sr(u, j), kf + 4*ks, Qf(j, ks), (Nm(j) if cinit else None) if ks == 0 else Sr(u, j)))
    a.e(f"s_and_b32 s{sT2}, s{sRot}, 0x60000"); a.e(f"s_xor_b32 s{sT2}, s{sT2}, s{sCur}")
    a.e(f"s_add_u32 s{sT3}, s{sT2}, 131072")
    a.e("L_slow_p1:")
    slow_qk(False)
    for j in range(3):
        for u in range(2):
            s = Sr(u, j)
            a.e(f"v_max3_f32 v{vT+j}, v{vT+j}, v{s}, v{s+1}")
            a.e(f"v_max3_f32 v{vT+j}, v{vT+j}, v{s+2}, v{s+3}")
    a.e(f"s_add_u32 s{sT2}, s{sT2}, 8192")
    a.e(f"s_cmp_lt_u32 s{sT2}, s{sT3}")
    a.e("s_cbranch_scc1 L_slow_p1")
    rowred(a, "v_max_f32", [vT, vT+1, vT+2], [Nm(j) for j in range(3)])
    for j in range(3):
        for r in range(4): a.e(f"v_sub_f32 v{Nm(j)+r}, 0, v{vT+j}")
    for r in range(96): a.e(f"v_mov_b32 v{O_+r}, 0")
    for r in range(12): a.e(f"v_accvgpr_write_b32 a{192+r}, 0")
    a.e(f"s_sub_u32 s{sT2}, s{sT3}, 131072")
    a.e("L_slow_p2:")
    slow_qk(True)
    for u in range(2):
        for k in range(12): a.e(ex(u, k))
    for u in range(2):
        for c in range(6): a.e(cv(u, 0, c))
    for half, fr in ((0, KF), (1, VF)):
        for hi in range(2):
            for i in range(4):
                for e in range(2):
                    for rp in range(2):
                        r = 2*rp + hi
                        a.e(f"buffer_load_ushort v{(S_ if hi else fr) + 4*i + 2*e + rp}, v{vVo}, {sr(sV,4)}, s{sT2} offen offset:{r*1024 + e*512 + (4*half+i)*32}")
        a.wait(vm="all")
        for x in range(16): a.e(f"v_lshl_or_b32 v{fr+x}, v{S_+x}, 16, v{fr+x}")
    for m in sm(2): a.e(m)
    for half, fr in ((0, KF), (1, VF)):
        for m in pv(2, half, fr): a.e(m)
    a.e(f"s_add_u32 s{sT2}, s{sT2}, 8192")
    a.e(f"s_cmp_lt_u32 s{sT2}, s{sT3}")
    a.e("s_nop 7")
    a.e("s_cbranch_scc1 L_slow_p2")
    for j in range(3): a.e(f"v_accvgpr_read_b32 v{vT+j}, a{La(j)[1]}")
    for j in range(3): a.e(f"v_rcp_f32 v{vT+j}, v{vT+j}")
    a.e(f"s_cmp_eq_u32 s{sR}, 3"); a.e("s_cbranch_scc1 L_g")
    for x in epi_ops(0)[:NPRE]: a.e(x)
    a.e("s_branch L_epi")
    return a

HDR = f"""; Fused attention blocks A and B in one launch (generated by my own scheduling script, all instruction placement by hand-written rules).
; One workgroup per CU (4 waves x 512 registers, 48 query rows per wave) owns 4 heads of one (branch, batch):
;   Q projection -> softmax attention -> output-projection partial (K = 512); the 8 workgroups of a batch then
;   reduce-scatter their partials through d_ws (L2-local when all 8 report the same XCC id, write-through otherwise).
; kernarg: 0 A_x, 8 A_k, 16 A_v, 24 A_wq, 32 A_wo, 40 B_x, 48 B_k, 56 B_v, 64 B_wq, 72 B_wo, 80 out, 88 debug, 96 ws
; @launch grid=(256,1,1) block=(256,1,1) lds={LDS}
.amdgcn_target "amdgcn-amd-amdhsa--gfx950"
.text
"""
def kern(name, a):
    return f".globl {name}\n.p2align 8\n.type {name},@function\n{name}:\n" + a.text()
def desc(name, nv, acc, ns):
    return f""".p2align 6
.amdhsa_kernel {name}
  .amdhsa_next_free_vgpr {nv}
  .amdhsa_next_free_sgpr {ns}
  .amdhsa_accum_offset {acc}
  .amdhsa_group_segment_fixed_size 0
  .amdhsa_kernarg_size 104
  .amdhsa_user_sgpr_count 2
  .amdhsa_user_sgpr_kernarg_segment_ptr 1
  .amdhsa_system_sgpr_workgroup_id_x 1
  .amdhsa_float_denorm_mode_32 3
.end_amdhsa_kernel
"""
if __name__ == "__main__":
    a = main_kernel()
    if OPT["pro2"]:
        ix = lambda t: [k for k, i in enumerate(a.ins) if i.text == t][0]
        i0, i1, i2 = ix("L_p0:"), ix("L_p1:"), ix("L_hot_end:") + 1
        a.ins = a.ins[:i0] + a.ins[i1:i2] + [Ins(".p2align 6")] + a.ins[i0:i1] + [Ins("L_p0end:")] + a.ins[i2:]
    if OPT["nodma"] & 1: a.ins = [i for i in a.ins if not (i.kind == "dma" and " v1, " in i.text)]
    if OPT["nodma"] & 2: a.ins = [i for i in a.ins if not (i.kind == "dma" and " v1, " not in i.text)]
    if OPT["nodma"] & 4: a.ins = [i for i in a.ins if not (i.kind == "store" and ("v152," in i.text or "v153," in i.text))]
    if OPT["nodma"] & 8: a.ins = [i for i in a.ins if not (i.kind == "store" and "v159," in i.text)]
    if OPT["nox2"]: a.ins = [i for i in a.ins if not (i.kind == "vmem" and ("v121," in i.text))]
    if OPT["noload"]: a.ins = [i for i in a.ins if not (i.kind == "vmem" and ("v152," in i.text or "v153," in i.text))]
    if OPT["x1"]:
        out = []; on = False; cnt = 0
        for i in a.ins:
            if i.text in ("L_epi:", "L_q2b:") or (OPT["x1"] & 2 and i.text in ("; Q conversion", "; Q2 conversion")): on = True
            if i.op in ("s_barrier",) or i.kind == "mfma" or i.text == "L_enter:": on = False
            out.append(i)
            if on and i.kind == "valu":
                cnt += 1
                if cnt % 2 == 0: out.append(Ins(f"v_mfma_f32_16x16x32_bf16 a[{240+4*(cnt//2%4)}:{243+4*(cnt//2%4)}], a[144:147], a[{96+4*(cnt//2%8)}:{99+4*(cnt//2%8)}], 0"))
        a.ins = out
    if OPT["x2"]:
        out = []; on = False
        for i in a.ins:
            if i.text == "L_q2:": on = True
            if i.text == "L_q2l:": on = False
            if on and i.kind == "mfma": out.append(Ins(f"s_nop {OPT['x2']}"))
            out.append(i)
        a.ins = out
    if OPT["abl"]:
        cnt = [0]
        def drop2(i):
            if OPT["abl"] & 1 and i.op == "ds_read_b64_tr_b16" and (", v4 " in i.text or ", v5 " in i.text):
                cnt[0] += 1; return (cnt[0] // 2) % 2 == 1
            if OPT["abl"] & 2 and i.kind == "lds" and (", v2 " in i.text or ", v3 " in i.text):
                cnt[0] += 1; return (cnt[0] // 2) % 2 == 1
            if OPT["abl"] & 4 and i.kind == "mfma" and "a[204:207], v[" in i.text and i.text.split()[1].startswith(("a[192", "a[196", "a[200")): return True
            if OPT["abl"] & 8 and i.op in ("v_lshlrev_b32", "v_and_b32", "v_add_f32") and ("v120" in i.text or "v121" in i.text or "v122" in i.text or "v123" in i.text) and "v0" not in i.text.replace("v0,", "v0 ").split(): return True
            return False
        a.ins = [i for i in a.ins if not drop2(i)]
    if OPT["gpol"] or OPT["kpol"]:
        out = []
        for i in a.ins:
            if i.kind == "dma" and " nt " not in i.text and OPT["gpol"]: i = Ins(i.text.replace(" lds", [" ", " sc1", " sc0", " nt", " sc0 sc1"][OPT["gpol"]] + " lds"))
            elif i.kind == "dma" and " nt " in i.text and OPT["kpol"]: i = Ins(i.text.replace(" nt lds", [" ", " sc1 nt", " sc0 nt", " sc0 sc1 nt"][OPT["kpol"]] + " lds"))
            out.append(i)
        a.ins = out
    if OPT["xb"]:
        out = []; on = False; c = 0
        for i in a.ins:
            if i.text.startswith("; Q") and "sub-step" in i.text: on = True
            if "conversion" in i.text: on = False
            if on and i.op == "s_barrier":
                c += 1
                if c % OPT["xb"]: continue
            out.append(i)
        a.ins = out
    if OPT["xa"]:
        i0 = [k for k, i in enumerate(a.ins) if i.text == "; stage 0 kv"][0]; i1 = [k for k, i in enumerate(a.ins) if i.text == "; stage 15 kv"][0]
        def drop(i):
            if OPT["xa"] & 1 and i.op == "s_cbranch_vccnz": return True
            if OPT["xa"] & 2 and i.op in ("s_mul_i32", "s_bfe_u32", "s_xor_b32", "s_getreg_b32", "s_cselect_b32", "s_cselect_b64", "s_sub_u32", "s_cmp_gt_u32", "s_cmp_gt_i32", "s_cmp_le_u32"): return True
            if OPT["xa"] & 4 and i.op == "s_barrier": return True
            if OPT["xa"] & 8 and i.op == "s_waitcnt" and "lgkm" in i.text: return True
            if OPT["xa"] & 16 and i.op == "s_mul_i32": return True
            return False
        a.ins = a.ins[:i0] + [i for i in a.ins[i0:i1] if not drop(i)] + a.ins[i1:]
    if OPT["strip"] == 2:
        i0 = [k for k, i in enumerate(a.ins) if i.text == "L_head:"][0]; i1 = [k for k, i in enumerate(a.ins) if i.text == "L_epi:"][0]
        a.ins = a.ins[:i0] + [Ins("s_nop 4") if i.kind == "mfma" else i for i in a.ins[i0:i1] if i.kind not in ("lds", "trans", "valu")] + a.ins[i1:]
    if OPT["strip"] == 1:
        i0 = [k for k, i in enumerate(a.ins) if i.text == "L_head:"][0]; i1 = [k for k, i in enumerate(a.ins) if i.text == "L_epi:"][0]
        a.ins = a.ins[:i0] + [i for i in a.ins[i0:i1] if i.kind not in ("mfma", "lds", "trans", "valu")] + a.ins[i1:]
    ns = 102 if OPT["stamp"] else NSGPR
    open(sys.argv[1], "w").write(HDR + kern(NAME + "_kernel", a) + '.section .rodata,"a"\n' + desc(NAME + "_kernel", 512, 256, ns))
    print("instrs", len(a.ins), "nops", a.nops)
```

```python
import sys, math, struct, re
from asmlib import *

NAME = "concat_heads__mha_block_cached__gqa_block_cached__near_ridge"
def f32(x): return "0x%08x" % struct.unpack("<I", struct.pack("<f", x))[0]
OPT = dict(stamp=0, nodma=0, nocheck=0, touch=0, forceslow=0, map84=0, first=6, rot=3, strip=0, cyc=0, typ=2, track=1, nosync=0, sleep=1, opos=1, lag=4, noack=0, noload=0, stpol=1, nolw=0, krot=1, hrot=4, emu3=0, ramp=1, q2c=1, cupos=1, la4=7, ls4=0, k2=0, k4=1, w2=4, qb2=0, hx=0, sh3=0, gpol=0, kpol=0, pk=1, cln=0, xb=0, mred=1, xord=1, vmw=8, pro2=1, bp=1, tord=1, abl=0, zz=1, x1=0, x2=0, opol=2, tl=0, xs=0, kvconv=1, sh1=1, sh2=1, sh1t=2, lateq=0, gate=1, ibg=1, ibn=4, xa=0, stag=0, fskip=0, cufrom=4, custep=2, cvo=1, woq=1, ibnt=0, ibt=14, ct2=1, inbox0=0, sparse1=1, noinbox=1, cthead=3, help=3, latekv=1, wot=0, lmax=4, thr=4, thr2=2, dyn=1, xmode=0, gkeep=0, leak=-1, leakwg=0, st0=0, norv=0, now0=0, gcap=0, qprof=0, la=7, ldpol=1, lmode=0, ldfix=0, nox2=0, wnt=0, xnt=0, t0x=0, t0w=0, ctouch=3, dbgout=0)
for a_ in sys.argv[2:]:
    k_, v_ = a_.split("="); assert k_ in OPT, k_; OPT[k_] = int(v_)

def R(x, n):
    t, i = x if isinstance(x, tuple) else ("v", x)
    return f"{t}{i}" if n == 1 else f"{t}[{i}:{i+n-1}]"
def off(x, d): return (x[0], x[1] + d) if isinstance(x, tuple) else x + d
def mf(d, a, b, c):
    return f"v_mfma_f32_16x16x32_bf16 {R(d,4)}, {R(a,4)}, {R(b,4)}, {'0' if c is None else R(c,4)}"

def zj(i): return (2, 1, 0) if (i & 1) and OPT["zz"] else (0, 1, 2)
def zk(j): return (3, 2, 1, 0) if (j & 1) and OPT["zz"] else (0, 1, 2, 3)
TILE = 8448
VB = 8 * TILE
XB = 16 * TILE
LDS = XB + 24576
NSLOT = 8
CH = NSLOT * 1024
PART = 240 * CH
STAMP_AT = 128 << 20
FLG = 120 << 20
XD = 7 * 6144
XP = 8 * XD
XG = 6 * XP
SPIN_MAX = 2000000
def slot(m):
    m %= 16
    return (m & 1), (m >> 1) * TILE

vKV, vKA, vVA, vWAl, vWAh, vW = 1, 2, 3, 4, 5, 6
vT = 7
QF, NM, S_, P_, KF, VF, O_ = 12, 60, 72, 96, 120, 136, 160
vX0, vX1, vXA0, vXA1 = 156, 157, 158, 159
vTo, vD, vPt, vWo = 152, 153, 154, 155
def Qf(j, ks): return QF + 16 * j + 4 * ks
def Nm(j): return NM + 4 * j
def Sr(u, j): return S_ + 12 * u + 4 * j
def Pr(buf, j): return P_ + 12 * buf + 4 * j
def Or(i, j): return O_ + 12 * i + 4 * j
def Wreg(buf, i): return 12 + 32 * buf + 4 * i
def Xreg(buf, j, s): return 76 + 24 * buf + 8 * j + 4 * s
def Qacc(pos, i, j):
    k = 12 * i + 4 * j
    if pos == 0: return ("a", k)
    if pos == 1: return ("a", 96 + k)
    if pos == 2: return ("a", 192 + k) if k < 64 else 124 + (k - 64)
    return O_ + k
QBANK = {3: 0, 2: 48, 1: 96}
OBANK = {0: 144, 1: 96, 2: 48, 3: 0}
def La(j): return ("a", 192 + 4 * j)
ONES = ("a", 204)
def Greg(buf, i): return ("a", 192 + 32 * buf + 4 * i)
sX, sW, sK, sV, sWo, sP = 32, 36, 40, 44, 48, 52
sWv, sKVL, sWL, sXL, sOff, sOff2, sTmp, sR, sCur, sT2, sT3 = 60, 61, 62, 63, 64, 65, 66, 67, 68, 69, 70
sB, sU, sBr, sG, sXo, sPo = 71, 72, 73, 74, 75, 76
sCX, sNX, sLast, sS8, sWoB, sTask, sTyp = 56, 57, 58, 59, 77, 30, 31
sWq, sGc = 26, 27
sWq1, sJ, sRot, sPM, sPK = 20, 21, 22, 23, 24
sF, sD0, sD1 = 8, 12, 13
sJh, sXo1, sPre = 25, 77, 30
sKc, sLag = 57, 76
sThN = 62
sWL = sKVL
sThr = 56
sBL, sMin, sKn, sMv, sMk, sKVv, sC1 = 57, 76, 23, 58, 59, 3, 25
sH = [4, 5, 6, 7]
NSGPR = 80

def stamp(a, k, real=True):
    if not OPT["stamp"]: return
    lg = list(a.lg)
    a.raw_wait("s_waitcnt lgkmcnt(0)")
    if OPT["cyc"] and 2 <= k <= 8: real = False
    a._emit(f"{'s_memrealtime' if real else 's_memtime'} s[{80+2*k}:{81+2*k}]")
    a.raw_wait("s_waitcnt lgkmcnt(0)")
def stamp_dyn(a, base, sidx, n):
    if not OPT["stamp"]: return
    a.raw_wait("s_waitcnt lgkmcnt(0)")
    a._emit("s_memtime s[78:79]" if OPT["cyc"] else "s_memrealtime s[78:79]")
    a.raw_wait("s_waitcnt lgkmcnt(0)")
    for q in range(n):
        a.e(f"s_cmp_eq_u32 s{sidx}, {q}")
        a.e(f"s_cselect_b32 s{80+2*(base+q)}, s78, s{80+2*(base+q)}")
def stamp_store(a, label, base):
    if not OPT["stamp"]: return
    a.e(f"s_cmp_lg_u32 s{sWv}, 0")
    a.e(f"s_cbranch_scc1 {label}")
    for k in range(11): a.e(f"v_mov_b32 v{16+k}, s{80+2*k}")
    a.e("s_lshl_b32 s78, s2, 6"); a.e(f"s_add_u32 s78, s78, {STAMP_AT + base*64}")
    a.e("v_mov_b32 v28, s78")
    a.e("s_mov_b64 exec, 1")
    a.e("global_store_dwordx4 v28, v[16:19], s[28:29]")
    a.e("global_store_dwordx4 v28, v[20:23], s[28:29] offset:16")
    a.e("global_store_dwordx4 v28, v[24:27], s[28:29] offset:32")

def dbg_store(a):
    if not OPT["dbgout"]: return
    l = "L_dbgskip"
    a.e("s_and_b32 s78, s2, 0xdf"); a.e("s_cmp_lg_u32 s78, 5"); a.e(f"s_cbranch_scc1 {l}")
    a.e("s_load_dwordx2 s[24:25], s[0:1], 88")
    for n, k in enumerate((3,4,5,6,7,8,2,10)):
        a.e(f"s_sub_u32 s79, s{80+2*k}, s80"); a.e(f"v_mov_b32 v{32+n}, s79")
    a.e("s_and_b32 s78, s2, 32"); a.e("v_mov_b32 v29, s78")
    a.raw_wait("s_waitcnt lgkmcnt(0)")
    a.e("global_store_dwordx4 v29, v[32:35], s[24:25]")
    a.e("global_store_dwordx4 v29, v[36:39], s[24:25] offset:16")
    a.e(f"{l}:")

def srd(a, d, lo, o, size):
    a.e(f"s_add_u32 s{d}, s{lo}, {o}")
    a.e(f"s_addc_u32 s{d+1}, s{lo+1}, 0")
    a.e(f"s_and_b32 s{d+1}, s{d+1}, 0xffff")
    a.e(f"s_mov_b32 s{d+2}, {size}")
    a.e(f"s_mov_b32 s{d+3}, 0x20000")
_lbl = [0]
def newlabel(p):
    _lbl[0] += 1
    return f"L_{p}_{_lbl[0]}"
class U(str): pass

def ldsbase(m):
    h, o = slot(m); return h * VB + o
def w_tile(m, n, nh=4):
    b = ldsbase(m); base = sWq if n < 4 * nh else sWq1
    rel = ((n % (4 * nh)) // nh) * 262144 + (nh - 1 - n % nh) * 256
    if nh == 2 and OPT["q2c"]: rel = (2 * ((n % 8) >> 2) + (n & 1)) * 262144 + (1 - ((n >> 1) & 1)) * 256
    pol = ' nt' if OPT['wnt'] else ''
    return [([f"s_xor_b32 s{sOff}, s{base}, {rel}", f"s_add_u32 m0, s{sWL}, {b}"], f"buffer_load_dwordx4 v{vW}, {sr(sW,4)}, s{sOff} offen{pol} lds"),
            ([f"s_xor_b32 s{sOff}, s{base}, {rel + 8192}", f"s_add_u32 m0, s{sWL}, {b + 1032}"], f"buffer_load_dwordx4 v{vW}, {sr(sW,4)}, s{sOff} offen{pol} lds")]
def kv_tile(m, t):
    b = ldsbase(m); s = sV if m & 1 else sK
    assert t < 16
    so = f"s_xor_b32 s{sOff}, s{sCX}, {t * 8192}"
    return [([so, f"s_add_u32 m0, s{sKVL}, {b}"], f"buffer_load_dwordx4 v{vKV}, {sr(s,4)}, s{sOff} offen nt lds"),
            ([f"s_add_u32 m0, s{sKVL}, {b + 32}"], f"buffer_load_dwordx4 v{vKV}, {sr(s,4)}, s{sOff} offen offset:1024 nt lds")]
def unit_pre(base, add):
    return [f"s_add_u32 s{sMv}, s{base}, {add}", f"s_xor_b32 s{sOff}, s{sMv}, s{sRot}", f"s_bfe_u32 s{sMv}, s{sMv}, 0x3000d", f"s_mul_i32 s{sMv}, s{sMv}, {TILE}",
            f"s_add_u32 s{sMk}, s{base}, {add + 8192}", f"s_xor_b32 s{sOff2}, s{sMk}, s{sRot}", f"s_bfe_u32 s{sMk}, s{sMk}, 0x3000d", f"s_mul_i32 s{sMk}, s{sMk}, {TILE}"]
def unit_dma(so_v=None, so_k=None):
    so_v = sOff if so_v is None else so_v; so_k = sOff2 if so_k is None else so_k
    return [([f"s_add_u32 m0, s{sMv}, s{sKVv}"], f"buffer_load_dwordx4 v{vKV}, {sr(sV,4)}, s{so_v} offen nt lds"),
            (["s_add_u32 m0, m0, 32"], f"buffer_load_dwordx4 v{vKV}, {sr(sV,4)}, s{so_v} offen offset:1024 nt lds"),
            ([f"s_add_u32 m0, s{sMk}, s{sKVL}"], f"buffer_load_dwordx4 v{vKV}, {sr(sK,4)}, s{so_k} offen nt lds"),
            (["s_add_u32 m0, m0, 32"], f"buffer_load_dwordx4 v{vKV}, {sr(sK,4)}, s{so_k} offen offset:1024 nt lds")]
def place_guarded(a, S, steps, gaps):
    for (pre, d), g in zip(steps, gaps):
        for k, x in enumerate(pre): S.h(g - len(pre) + k, x)
        def site(d=d):
            l = newlabel("sk"); a.e(f"s_cbranch_vccnz {l}"); a._emit(d); a.e(f"{l}:")
        S.v(g, site)
def wo_tile(m):
    b = ldsbase(m); h, t = divmod(m % 16, 8); r = t >> 1; rel = (t & 1) * 81920
    st = [([f"s_add_u32 s{sOff}, s{sH[r]}, {rel}", f"s_add_u32 m0, s{sKVL}, {b}"], f"buffer_load_dwordx4 v{vWo}, {sr(sWo,4)}, s{sOff} offen lds"),
          ([f"s_add_u32 s{sOff}, s{sH[r]}, {rel + 1280}", f"s_add_u32 m0, s{sKVL}, {b + 1056}"], f"buffer_load_dwordx4 v{vWo}, {sr(sWo,4)}, s{sOff} offen lds")]
    return st, ([f"s_add_u32 s{sH[r]}, s{sH[r]}, s{(sD0, sD1)[h]}"] if t & 1 else [])
def emit_tile(a, steps):
    for pre, d in steps:
        for x in pre: a.e(x)
        a._emit(d)
def place_tile(a, S, steps, gaps):
    for (pre, d), g in zip(steps, gaps):
        for k, x in enumerate(pre): S.h(g - len(pre) + k, x)
        S.v(g, lambda d=d: a._emit(d))
def rd_w(dst, m, i):
    h, o = slot(m); p, u = divmod(i, 2)
    return [f"ds_read_b64_tr_b16 {R(off(dst, 2*e), 2)}, v{(vWAl, vWAh)[h]} offset:{o + e*512 + p*64 + u*8}" for e in range(2)]
def vmw(a, n): a.raw_wait(f"s_waitcnt vmcnt({n})")

def rowred(a, op, regs, tmps):
    for w in (32, 16):
        for r, t in zip(regs, tmps): a.e(f"v_mov_b32 v{t}, v{r}")
        for r, t in zip(regs, tmps): a.e(f"v_permlane{w}_swap_b32 v{r}, v{t}")
        for r, t in zip(regs, tmps): a.e(f"{op} v{r}, v{r}, v{t}")

RDPOS = [0,1,2,3,4,5,7,8,9,10,12,13,14,15,17,18]
RDPOS_X = [2,3,5,6,8,9,11,12,14,15,16,17,18,19,20,21]

def code_touch(a, lo, hi, vaddr, vdst, back=False):
    if not OPT["ctouch"]: return
    l = newlabel("pc")
    a.e("s_getpc_b64 s[14:15]")
    a.e(f"{l}:")
    if back: a.e(f"s_sub_u32 s14, s14, {l}-{lo}"); a.e("s_subb_u32 s15, s15, 0")
    else: a.e(f"s_add_u32 s14, s14, {lo}-{l}"); a.e("s_addc_u32 s15, s15, 0")
    a.e(f"s_lshr_b32 s{sT2}, s2, 3"); a.e(f"s_lshl_b32 s{sT2}, s{sT2}, 2"); a.e(f"s_add_u32 s{sT2}, s{sT2}, s{sWv}"); a.e(f"s_lshl_b32 s{sT2}, s{sT2}, 7")
    a.e(f"v_and_b32 v{vaddr}, 3, v0"); a.e(f"v_lshlrev_b32 v{vaddr}, 14, v{vaddr}"); a.e(f"v_add_u32 v{vaddr}, s{sT2}, v{vaddr}")
    a.e(f"v_min_u32 v{vaddr}, {hi}-{lo}-4, v{vaddr}")
    a._emit(f"global_load_dword v{vdst}, v{vaddr}, s[14:15]")

def inbox_addr(va, vt):
    sc = [f"s_mul_i32 s{sT2}, s{sG}, {XG}", f"s_mul_i32 s{sT3}, s{sU}, {XD}", f"s_add_u32 s{sT2}, s{sT2}, s{sT3}",
          f"s_mul_i32 s{sT3}, s{sWv}, 1536", f"s_add_u32 s{sT2}, s{sT2}, s{sT3}", f"s_add_u32 s{sT2}, s{sT2}, {5*XP}"]
    ve = [f"v_lshrrev_b32 v{va}, 3, v0", f"v_min_u32 v{va}, 6, v{va}", f"v_mul_u32_u24 v{va}, 6144, v{va}", f"v_and_b32 v{vt}, 7, v0",
          f"v_min_u32 v{vt}, 5, v{vt}", f"v_lshl_add_u32 v{va}, v{vt}, 7, v{va}", f"v_add_u32 v{va}, s{sT2}, v{va}"]
    return sc, ve

def late_consts(a):
    a.e("v_and_b32 v9, 56, v0"); a.e(f"s_lshl_b32 s{sTmp}, s{sWv}, 1"); a.e(f"v_add_u32 v9, s{sTmp}, v9")
    a.e("v_mul_u32_u24 v9, 1280, v9"); a.e("v_and_b32 v8, 7, v0")
    a.e(f"s_xor_b32 s{sTmp}, s{sU}, 7"); a.e(f"s_and_b32 s{sTmp}, s{sTmp}, 3"); a.e(f"s_lshl_b32 s{sTmp}, s{sTmp}, 1"); a.e(f"v_xor_b32 v8, s{sTmp}, v8")
    a.e(f"v_lshl_add_u32 v{vWo}, v8, 4, v9")

def x_block(j, rel, base_s, op="s_add_u32", lds=0):
    so = f"{op} s{sOff2}, s{base_s}, {rel + j*20480}" if base_s is not None else f"s_mov_b32 s{sOff2}, {rel + j*20480}"
    return [([so, f"s_add_u32 m0, s{sXL}, {j*2048 + lds}"], f"buffer_load_dwordx4 v{vX0}, {sr(sX,4)}, s{sOff2} offen{' nt' if OPT['xnt'] else ''} lds"),
            ([f"s_add_u32 m0, s{sXL}, {j*2048 + 1024 + lds}"], f"buffer_load_dwordx4 v{vX1}, {sr(sX,4)}, s{sOff2} offen{' nt' if OPT['xnt'] else ''} lds")]
def rd_xb(dst, j, s): return f"ds_read_b128 {R(dst,4)}, v{(vXA0, vXA1)[s]} offset:{j*2048}"

def end_sync(a, S, vm, keep=2):
    def w():
        n = min(len(a.lg), keep)
        a.raw_wait(f"s_waitcnt vmcnt({vm}) lgkmcnt({n})")
        a.lg = a.lg[len(a.lg) - n:] if n else []
    S.h(22, w); S.h(23, "s_barrier")

sSc = 14
SCALE = f"s_mov_b32 s{sSc}, {f32(math.log2(math.e) / math.sqrt(128.0))}"
def conv_ops(acc, pos, db, tmp):
    o_ = []; k = 0
    for p in range(4):
        for j in range(3):
            t = tmp[k % len(tmp)]; k += 1
            src = []
            for u in range(2):
                o = acc(pos, 2*p + u, j)
                for r in range(4):
                    if isinstance(o, tuple):
                        o_.append(f"v_accvgpr_read_b32 v{t+4*u+r}, a{o[1]+r}"); src.append(t + 4*u + r)
                    else: src.append(o + r)
            o_ += [f"v_mul_f32 v{x}, s{sSc}, v{x}" for x in src]
            d = Qf(j, p) if db is None else src[0]
            o_ += [f"v_cvt_pk_bf16_f32 v{d+r}, v{src[2*r]}, v{src[2*r+1]}" for r in range(4)]
            if db is not None and db != "keep":
                o_ += [f"v_accvgpr_write_b32 a{db + 12*p + 4*j + r}, v{d+r}" for r in range(4)]
    return o_
def packed(ops):
    if not OPT["pk"]: return list(ops)
    out = []; k = 0
    pat = re.compile(r"v_mul_f32 v(\d+), (?:s(\d+), v\d+|v\d+, v(\d+))$")
    while k < len(ops):
        m0, m1 = pat.match(ops[k]), pat.match(ops[k+1]) if k + 1 < len(ops) else None
        if m0 and m1 and int(m0[1]) % 2 == 0 and int(m1[1]) == int(m0[1]) + 1 and m0.groups()[1:] == m1.groups()[1:]:
            d = int(m0[1]); t, f = ("s", int(m0[2])) if m0[2] else ("v", int(m0[3]))
            out.append(f"v_pk_mul_f32 v[{d}:{d+1}], v[{d}:{d+1}], {t}[{f & ~1}:{f | 1}] op_sel:[0,{f & 1}] op_sel_hi:[1,{f & 1}]"); k += 2
        else: out.append(ops[k]); k += 1
    return out
def free_slots(S):
    cap = []
    for k in range(len(S.mfs)):
        c = 2 - max(0, len(S.hold[k]) - 1)
        for f in S.vec[k]:
            t = f if isinstance(f, str) else f[0] if isinstance(f, tuple) else "vmem"
            c -= 2 if t.startswith(("vmem", "v_exp", "v_rcp")) else 1
        if "s_barrier" in S.hold[k]: c = 0
        cap.append(max(c, 0))
    for k in range(1, len(cap)):
        if cap[k] == 2 and cap[k-1] == 2: cap[k] = 1
    return cap
def fill_ops(S, ops, start=0):
    cap = free_slots(S); n = 0
    for k in range(start, len(cap)):
        for _ in range(cap[k]):
            if n < len(ops): S.v(k, ops[n]); n += 1
    return ops[n:]

def gcv(m, h):
    i, j = divmod(m, 3); p, u = divmod(i, 2); o = Or(i, j)
    return f"v_cvt_pk_bf16_f32 v{S_ + 12*p + 4*j + 2*u + h}, v{o+2*h}, v{o+2*h+1}"
CVS = [gcv(m, h) for m in range(24) for h in range(2)]
def gst(q, rel, base_s):
    p, j = divmod(q, 3)
    return ([f"s_add_u32 s{sOff2}, s{base_s}, {rel + (p*12 + j)*CH}"], f"buffer_store_dwordx4 {vr(S_ + 12*p + 4*j,4)}, v{vPt}, {sr(sP,4)}, s{sOff2} offen{['', ' sc1', ' nt', ' sc0'][OPT['stpol']]}")
def cv_plans():
    caps = [0 if g in (6, 11) else (1 if g in RDPOS else 2) for g in range(24)]
    last = []; ci = 0
    for g, cp in enumerate(caps):
        for _ in range(cp):
            if ci < 48 and ci // 2 + 4 <= g: last.append((g, ci)); ci += 1
    n = ci; first = []
    for g, cp in enumerate(caps):
        for _ in range(cp):
            if ci < 48: first.append((g, ci)); ci += 1
    assert ci == 48 and all(c // 2 > g for g, c in first)
    return last, first, n
PLAN_LAST, PLAN_FIRST, NLAST = cv_plans()

def Q2acc(pos, i, j): return (56 if pos == 0 else O_) + 12 * i + 4 * j
def X2reg(buf, j, s): return ("a", 24 * buf + 8 * j + 4 * s)
def q2mf(n, first):
    s, pos = divmod(n % 8, 2)
    return [mf(Q2acc(pos, i, j), Greg(n & 1, i), X2reg(s >> 1, j, s & 1), None if first and n < 2 else Q2acc(pos, i, j)) for i in range(8) for j in zj(i)]

def main_kernel():
    a = Asm()
    T = OPT["typ"]
    if OPT["st0"]: a._emit("s_memrealtime s[80:81]")
    a.e("s_cmp_ge_u32 s2, 256")
    a.e("s_cbranch_scc1 L_end")
    a.e("s_load_dwordx16 s[4:19], s[0:1], 0")
    a.e("s_load_dwordx4 s[20:23], s[0:1], 64")
    a.e("s_load_dwordx2 s[28:29], s[0:1], 96")
    a.e(f"s_bfe_u32 s{sBr}, s2, 0x10002")
    if not OPT["map84"]:
        a.e(f"s_and_b32 s{sB}, s2, 3"); a.e(f"s_lshl_b32 s{sB}, s{sB}, 2")
        a.e(f"s_bfe_u32 s{sTmp}, s2, 0x20003"); a.e(f"s_add_u32 s{sB}, s{sB}, s{sTmp}")
        a.e(f"s_lshr_b32 s{sU}, s2, 5")
    elif OPT["map84"] == 2:
        a.e(f"s_bfe_u32 s{sB}, s2, 0x40003")
        a.e(f"s_and_b32 s{sU}, s2, 3"); a.e(f"s_lshl_b32 s{sU}, s{sU}, 1")
        a.e(f"s_lshr_b32 s{sTmp}, s2, 7"); a.e(f"s_add_u32 s{sU}, s{sU}, s{sTmp}")
    else:
        a.e(f"s_and_b32 s{sB}, s2, 1"); a.e(f"s_lshl_b32 s{sB}, s{sB}, 3")
        a.e(f"s_bfe_u32 s{sTmp}, s2, 0x30003"); a.e(f"s_add_u32 s{sB}, s{sB}, s{sTmp}")
        a.e(f"s_bfe_u32 s{sU}, s2, 0x10001"); a.e(f"s_lshl_b32 s{sU}, s{sU}, 2")
        a.e(f"s_lshr_b32 s{sTmp}, s2, 6"); a.e(f"s_add_u32 s{sU}, s{sU}, s{sTmp}")
    a.e(f"s_lshl_b32 s{sG}, s{sBr}, 4"); a.e(f"s_add_u32 s{sG}, s{sG}, s{sB}")
    if T == 4: a.e(f"s_bfe_u32 s{sTyp}, s2, 0x10003")
    elif T == 3: a.e(f"s_andn2_b32 s{sTyp}, 1, s2")
    elif T == 2: a.e(f"s_and_b32 s{sTyp}, s2, 1")
    else: a.e(f"s_mov_b32 s{sTyp}, {T}")
    a.e("v_lshrrev_b32 v7, 6, v0")
    a.e("v_and_b32 v0, 63, v0")
    a.e(f"v_readfirstlane_b32 s{sWv}, v7")
    a.e("v_and_b32 v8, 15, v0")
    a.e("v_lshrrev_b32 v9, 4, v0")
    a.e("v_and_b32 v10, 1, v9"); a.e("v_lshlrev_b32 v10, 4, v10")
    a.e("v_lshrrev_b32 v11, 1, v9"); a.e("v_lshl_add_u32 v10, v11, 2, v10")
    a.e("v_lshrrev_b32 v11, 1, v7"); a.e("v_lshl_add_u32 v10, v11, 3, v10")
    a.e("v_and_b32 v11, 1, v7"); a.e("v_lshl_add_u32 v10, v11, 1, v10")
    a.e("v_lshlrev_b32 v10, 13, v10"); a.e(f"v_lshl_add_u32 v{vW}, v8, 4, v10")
    a.e("v_mul_u32_u24 v10, 48, v7"); a.e("v_lshrrev_b32 v11, 3, v0"); a.e("v_add_u32 v10, v10, v11")
    a.e("v_mul_u32_u24 v10, 1280, v10")
    a.e("v_and_b32 v11, 7, v0"); a.e("v_xor_b32 v11, v11, v9")
    a.e(f"v_lshl_add_u32 v{vX0}, v11, 4, v10")
    a.e("v_xor_b32 v11, 4, v11"); a.e("v_add_u32 v10, 10240, v10")
    a.e(f"v_lshl_add_u32 v{vX1}, v11, 4, v10")
    a.e(f"s_mul_i32 s{sKVL}, s{sWv}, 2112")
    a.e(f"s_mul_i32 s{sXL}, s{sWv}, 6144"); a.e(f"s_add_u32 s{sXL}, s{sXL}, {XB}")
    a.e(f"s_mov_b32 s{sCur}, 0"); a.e(f"s_mov_b32 s{sXo}, 0"); a.e(f"s_mov_b32 s{sWq}, 0")
    a.raw_wait("s_waitcnt lgkmcnt(0)")
    def q6(k):
        if OPT["qprof"] == 6: a._emit(f"s_memrealtime s[{80+2*k}:{81+2*k}]")
    q6(4)
    a.e(f"s_cmp_eq_u32 s{sBr}, 0")
    a.e("s_cselect_b64 s[4:5], s[4:5], s[14:15]")
    a.e("s_cselect_b64 s[6:7], s[6:7], s[16:17]")
    a.e("s_cselect_b64 s[8:9], s[8:9], s[18:19]")
    a.e("s_cselect_b64 s[10:11], s[10:11], s[20:21]")
    a.e("s_cselect_b64 s[12:13], s[12:13], s[22:23]")
    a.e("s_load_dwordx4 s[16:19], s[0:1], 80")
    a.e(f"s_mul_i32 s{sTmp}, s{sB}, 245760")
    srd(a, sX, 4, f"s{sTmp}", 245760)
    a.e(f"s_lshl_b32 s{sTmp}, s{sU}, 10")
    srd(a, sW, 10, f"s{sTmp}", 639 * 8192 + 1024)
    if OPT["krot"]: a.e(f"s_xor_b32 s{sJ}, s{sB}, s{sU}"); a.e(f"s_and_b32 s{sJ}, s{sJ}, 3")
    else: a.e(f"s_mov_b32 s{sJ}, 0")
    if not OPT["k4"]: a.e(f"s_mul_i32 s{sJ}, s{sJ}, s{sTyp}")
    if OPT["hrot"] == 2: a.e(f"s_and_b32 s{sJh}, s{sU}, 1"); a.e(f"s_lshl_b32 s{sJh}, s{sJh}, 1")
    elif OPT["hrot"] == 3: a.e(f"s_and_b32 s{sJh}, s{sU}, 2")
    elif OPT["hrot"] == 4: a.e(f"s_and_b32 s{sJh}, s{sU}, 3")
    elif OPT["hrot"] == 5: a.e(f"s_lshr_b32 s{sJh}, s{sU}, 1")
    else: a.e(f"s_mov_b32 s{sJh}, 0")
    a.e(f"s_lshl_b32 s{sWq}, s{sJ}, 18"); a.e(f"s_lshl_b32 s{sTmp}, s{sJh}, 8"); a.e(f"s_or_b32 s{sWq}, s{sWq}, s{sTmp}"); a.e(f"s_add_u32 s{sWq1}, s{sWq}, {1 << 20}")
    a.e(f"s_lshr_b32 s{sXo}, s{sJ}, 1"); a.e(f"s_lshl_b32 s{sXo}, s{sXo}, 7")
    if not OPT['st0']: stamp(a, 0)
    if OPT['qprof'] < 5: stamp(a, 1, False)
    def common_consts():
        if OPT["rot"] == 2: a.e(f"s_bfe_u32 s{sRot}, s2, 0x40003"); a.e(f"s_lshl_b32 s{sRot}, s{sRot}, 13")
        elif OPT["rot"] == 3: a.e(f"s_bfe_u32 s{sRot}, s2, 0x40001"); a.e(f"s_lshl_b32 s{sRot}, s{sRot}, 13")
        elif OPT["rot"] == 4:
            a.e(f"s_mul_i32 s{sRot}, s2, 0x9e3779b1"); a.e(f"s_lshr_b32 s{sRot}, s{sRot}, 28"); a.e(f"s_lshl_b32 s{sRot}, s{sRot}, 13")
        elif OPT["rot"] == 5: a.e(f"s_bfe_u32 s{sRot}, s2, 0x20003"); a.e(f"s_lshl_b32 s{sRot}, s{sRot}, 15")
        elif OPT["rot"]:
            a.e(f"s_lshr_b32 s{sRot}, s2, 4"); a.e(f"s_xor_b32 s{sRot}, s{sRot}, s2"); a.e(f"s_and_b32 s{sRot}, s{sRot}, 15"); a.e(f"s_lshl_b32 s{sRot}, s{sRot}, 13")
        else: a.e(f"s_mov_b32 s{sRot}, 0")
        a.e(f"s_lshl_b32 s{sTmp}, s{sJh}, 17"); a.e(f"s_or_b32 s{sRot}, s{sRot}, s{sTmp}")
        a.e(f"s_mov_b32 s{sCX}, s{sRot}"); a.e(f"s_add_u32 s{sKVv}, s{sKVL}, {VB}")
        a.e("v_bfe_u32 v10, v0, 2, 3")
        a.e("v_lshrrev_b32 v11, 1, v10"); a.e("v_lshlrev_b32 v11, 6, v11"); a.e(f"v_lshl_add_u32 v{vWAl}, v10, 10, v11")
        a.e("v_and_b32 v11, 1, v10"); a.e(f"v_lshl_add_u32 v{vWAl}, v11, 3, v{vWAl}")
        a.e("v_lshrrev_b32 v11, 5, v0"); a.e(f"v_lshl_add_u32 v{vWAl}, v11, 8, v{vWAl}")
        a.e("v_mul_u32_u24 v10, 1056, v10"); a.e("v_lshl_add_u32 v10, v11, 8, v10")
        a.e("v_and_b32 v11, 3, v0"); a.e(f"v_lshl_add_u32 v{vWAl}, v11, 4, v{vWAl}")
        a.e(f"v_lshl_add_u32 v10, v11, 3, v10"); a.e(f"v_add_u32 v{vVA}, {VB}, v10")
        a.e(f"v_add_u32 v{vWAh}, {VB}, v{vWAl}")
        a.e("v_and_b32 v10, 7, v8"); a.e("v_mul_u32_u24 v10, 1056, v10")
        a.e("v_lshrrev_b32 v11, 3, v8"); a.e(f"v_lshl_add_u32 v10, v11, 8, v10")
        a.e(f"v_lshl_add_u32 v{vKA}, v9, 4, v10")
        a.e("v_lshlrev_b32 v10, 4, v0"); a.e(f"v_lshl_add_u32 v{vKV}, v7, 11, v10")
        a.e(f"v_lshlrev_b32 v10, 7, v8"); a.e(f"v_add_u32 v10, s{sXL}, v10")
        a.e("v_lshrrev_b32 v11, 1, v8"); a.e("v_xor_b32 v11, v11, v9")
        a.e(f"s_and_b32 s{sTmp}, s{sJ}, 1"); a.e(f"s_lshl_b32 s{sTmp}, s{sTmp}, 2"); a.e(f"v_xor_b32 v11, s{sTmp}, v11")
        a.e(f"v_lshl_add_u32 v{vXA0}, v11, 4, v10")
        a.e("v_xor_b32 v11, 4, v11"); a.e(f"v_lshl_add_u32 v{vXA1}, v11, 4, v10")
        a.e(f"s_lshl_b32 s{sTmp}, s{sB}, 3"); a.e(f"s_add_u32 s{sTmp}, s{sTmp}, s{sU}"); a.e(f"s_lshl_b32 s{sTmp}, s{sTmp}, 19")
        srd(a, sK, 6, f"s{sTmp}", 4 * 131072)
        srd(a, sV, 8, f"s{sTmp}", 4 * 131072)
        a.e(f"s_mul_i32 s{sTmp}, s{sU}, {512*1280}")
        srd(a, sWo, 12, f"s{sTmp}", 512 * 1280)
        for r in range(4): a.e(f"s_xor_b32 s{sH[r]}, s{sJh}, {r}"); a.e(f"s_mul_i32 s{sH[r]}, s{sH[r]}, 163840")
        a.e(f"s_mov_b32 s{sKn}, 0"); a.e(f"s_mov_b32 s{sMin}, {3*8192}")
        a.e(f"s_cmp_lt_u32 s{sU}, 4")
        a.e(f"s_cselect_b32 s{sTmp}, 128, 0"); a.e(f"s_mov_b32 s{sD0}, 128"); a.e(f"s_cselect_b32 s{sD0}, -128, s{sD0}")
        a.e(f"s_sub_u32 s{sD1}, 256, s{sD0}")
        for r in range(4): a.e(f"s_add_u32 s{sH[r]}, s{sH[r]}, s{sTmp}")
        a.e(f"s_lshl_b32 s{sTmp}, s{sG}, 12"); a.e(f"s_add_u32 s{sTmp}, s{sTmp}, {FLG}")
        srd(a, sF, 28, f"s{sTmp}", 4096)
    def touch0(three):
        if OPT["t0x"]:
            a.e("v_min_u32 v10, 59, v0"); a.e("v_lshlrev_b32 v10, 7, v10")
            a.e(f"s_lshl_b32 s{sTmp}, s{sU}, 2"); a.e(f"s_add_u32 s{sTmp}, s{sTmp}, s{sWv}"); a.e(f"s_mul_i32 s{sTmp}, s{sTmp}, 7680")
            a._emit(f"buffer_load_dword v11, v10, {sr(sX,4)}, s{sTmp} offen")
        if OPT["t0w"] and three:
            a.e("v_lshrrev_b32 v14, 2, v0"); a.e("v_lshlrev_b32 v14, 13, v14"); a.e("v_and_b32 v15, 3, v0"); a.e("v_lshl_add_u32 v14, v15, 7, v14")
            a.e(f"s_and_b32 s{sTmp}, s{sB}, 3"); a.e(f"s_lshl_b32 s{sTmp}, s{sTmp}, 2"); a.e(f"s_add_u32 s{sTmp}, s{sTmp}, s{sWv}"); a.e(f"s_lshl_b32 s{sTmp}, s{sTmp}, 17")
            for k in range(3):
                a.e(f"s_add_u32 s{sT2}, s{sTmp}, {k*256*8192}")
                a._emit(f"buffer_load_dword v{16+k}, v14, {sr(sW,4)}, s{sT2} offen")
    def part_srd(slot_expr, size):
        a.e(f"s_mul_i32 s{sTmp}, s{sG}, {PART}"); slot_expr(); a.e(f"s_lshl_b32 s{sT2}, s{sT2}, 10"); a.e(f"s_add_u32 s{sTmp}, s{sTmp}, s{sT2}")
        srd(a, sP, 28, f"s{sTmp}", size)
    NF = OPT["first"]
    LA = OPT['la']
    def wpos(n): return 8 + n % 8
    def rd_x(buf): return [rd_xb(Xreg(buf, j, s), j, s) for s in range(2) for j in range(3)]
    NF = 2
    def setup(lab):
        if not OPT["pro2"]: common_consts()
        code_touch(a, lab, "L_altwo" if not OPT["ct2"] else (("L_p0end" if OPT["pro2"] else "L_p1") if lab == "L_q" else "L_enter"), 10, 11)
        a.e(f"s_mov_b32 s{sR}, 0")
        if not OPT["ramp"] or (lab == "L_q" and not OPT["ls4"]): late_setup()
    def late_setup():
        a.e(f"s_lshl_b32 s{sTmp}, s{sU}, 9"); a.e(f"s_lshl_b32 s{sT2}, s{sWv}, 7"); a.e(f"s_add_u32 s{sTmp}, s{sTmp}, s{sT2}")
        a.e("v_and_b32 v8, 7, v0"); a.e(f"v_lshlrev_b32 v8, 2, v8"); a.e("v_mov_b32 v7, 0")
        a._emit(f"buffer_store_dword v7, v8, {sr(sF,4)}, s{sTmp} offen sc1")
        emit_tile(a, kv_tile(0, 0))
    def bootstrap():
        l = newlabel("boot")
        a.e(f"s_cmp_lg_u32 s{sWv}, 0"); a.e(f"s_cbranch_scc1 {l}")
        a.e(f"s_lshl_b32 s{sTmp}, s{sG}, 2"); a.e(f"s_add_u32 s{sTmp}, s{sTmp}, 128")
        a.e(f"v_mov_b32 v157, s{sTmp}")
        a.e(f"s_getreg_b32 s{sT2}, hwreg(HW_REG_XCC_ID, 0, 4)")
        a.e(f"s_mul_i32 s{sT3}, s{sT2}, s{sT2}"); a.e(f"s_lshl_b32 s{sT3}, s{sT3}, 8"); a.e(f"s_add_u32 s{sT3}, s{sT3}, s{sT2}")
        a.e(f"s_lshl_b32 s{sT3}, s{sT3}, 8"); a.e(f"s_add_u32 s{sPK}, s{sT3}, 1"); a.e(f"v_mov_b32 v158, s{sPK}")
        a.e("s_mov_b64 exec, 1")
        a._emit("global_atomic_add v157, v158, s[18:19]")
        a.e("s_mov_b64 exec, -1")
        a.e(f"{l}:")
    if OPT["stag"]:
        a.e(f"s_and_b32 s{sT2}, s{sB}, 3") if OPT["stag"] < 100 else a.e(f"s_and_b32 s{sT2}, s{sU}, 3")
        a.e("L_stag:"); a.e(f"s_cmp_eq_u32 s{sT2}, 0"); a.e("s_cbranch_scc1 L_stag2"); a.e(f"s_sleep {OPT['stag'] % 100}"); a.e(f"s_sub_u32 s{sT2}, s{sT2}, 1"); a.e("s_branch L_stag"); a.e("L_stag2:")
    if OPT["pro2"]:
        a.e(f"s_cmp_lg_u32 s{sTyp}, 0")
        a.e(f"s_cselect_b32 s{sT2}, {XB - VB}, 0"); a.e(f"s_cselect_b32 s{sT3}, 0, 512")
        a.e(f"s_sub_u32 s{sT2}, s{sXL}, s{sT2}"); a.e(f"s_xor_b32 s{sT3}, s{sWq}, s{sT3}")
        def sub(st, x, y): return [([p_.replace(x, y) for p_ in pre], d) for pre, d in st]
        emit_tile(a, sub(w_tile(wpos(0), 0, 2), f"s{sWq},", f"s{sT3},"))
        for j in range(3): emit_tile(a, sub(x_block(j, 0, sXo), f"s{sXL},", f"s{sT2},"))
        if OPT["q2c"]:
            a.e(f"s_cmp_lg_u32 s{sTyp}, 0"); a.e(f"s_cselect_b32 s{sT3}, 0, {262144 + 768}"); a.e(f"s_xor_b32 s{sT3}, s{sWq}, s{sT3}")
        emit_tile(a, sub(w_tile(wpos(1), 1, 2), f"s{sWq},", f"s{sT3},"))
        q6(5)
        common_consts()
        q6(6)
        a.e(f"s_cmp_eq_u32 s{sTyp}, 0")
        a.e("s_cbranch_scc1 L_p0")
        a.e("L_split:")
        a.e("L_p0:")
    else:
        a.e(f"s_cmp_lg_u32 s{sTyp}, 0")
        a.e("s_cbranch_scc1 L_p1")
        for j in range(3): emit_tile(a, x_block(j, 0, sXo))
        for n in range(NF): emit_tile(a, w_tile(wpos(n), n))
    setup("L_q")
    if OPT["help"]:
        if T == 3:
            a.e(f"s_sub_u32 s{sP}, s{sX}, {4*245760}"); a.e(f"s_subb_u32 s{sP+1}, s{sX+1}, 0")
        else:
            a.e(f"s_add_u32 s{sP}, s{sX}, {4*245760}"); a.e(f"s_addc_u32 s{sP+1}, s{sX+1}, 0")
        a.e(f"s_mov_b32 s{sP+2}, 245760"); a.e(f"s_mov_b32 s{sP+3}, 0x20000")
        a.e("v_min_u32 v8, 59, v0"); a.e("v_lshlrev_b32 v8, 7, v8")
        a.e(f"s_lshl_b32 s{sTmp}, s{sU}, 2"); a.e(f"s_add_u32 s{sTmp}, s{sTmp}, s{sWv}"); a.e(f"s_mul_i32 s{sTmp}, s{sTmp}, 7680")
        if OPT["help"] & 1: a._emit(f"buffer_load_dword v9, v8, {sr(sP,4)}, s{sTmp} offen")
        if OPT["help"] & 2:
            a.e("v_lshrrev_b32 v8, 2, v0"); a.e("v_lshlrev_b32 v8, 13, v8"); a.e("v_and_b32 v10, 3, v0"); a.e("v_lshl_add_u32 v8, v10, 7, v8")
            a.e(f"s_lshr_b32 s{sTmp}, s{sB}, 3"); a.e(f"s_lshl_b32 s{sTmp}, s{sTmp}, 2"); a.e(f"s_and_b32 s{sT2}, s{sB}, 3"); a.e(f"s_add_u32 s{sTmp}, s{sTmp}, s{sT2}")
            a.e(f"s_lshl_b32 s{sTmp}, s{sTmp}, 2"); a.e(f"s_add_u32 s{sTmp}, s{sTmp}, s{sWv}"); a.e(f"s_mul_i32 s{sTmp}, s{sTmp}, {20*8192}")
            a.e(f"s_and_b32 s{sT2}, s{sWq}, 512"); a.e(f"s_add_u32 s{sTmp}, s{sTmp}, s{sT2}")
            a._emit(f"buffer_load_dword v9, v8, {sr(sW,4)}, s{sTmp} offen")
            if OPT["hx"]: a.e(f"v_min_u32 v8, {3*8192 + 384}, v8")
            a.e(f"s_add_u32 s{sTmp}, s{sTmp}, {(16 if OPT['hx'] else 4)*8192}")
            a._emit(f"buffer_load_dword v9, v8, {sr(sW,4)}, s{sTmp} offen")
    LA4 = OPT['la4']
    a.e(f"s_mov_b32 s{sPre}, 15")
    for r in range(256):
        if r % 40 == 0 and NF + r // 40 < LA4: emit_tile(a, w_tile(wpos(NF + r // 40), NF + r // 40))
        a.e(f"v_accvgpr_write_b32 a{r}, 0")
    for r in list(range(124, 156)) + list(range(160, 256)): a.e(f"v_mov_b32 v{r}, 0")
    if OPT["woq"]:
        a.e(f"s_lshr_b32 s{sTmp}, s{sB}, 3"); a.e(f"s_lshl_b32 s{sTmp}, s{sTmp}, 2"); a.e(f"s_and_b32 s{sT2}, s{sB}, 3"); a.e(f"s_add_u32 s{sTmp}, s{sTmp}, s{sT2}")
        a.e(f"s_lshl_b32 s{sTmp}, s{sTmp}, 2"); a.e(f"s_add_u32 s{sTmp}, s{sTmp}, s{sWv}"); a.e(f"s_mul_i32 s{sTmp}, s{sTmp}, 5120")
        a.e("v_min_u32 v7, 39, v0"); a.e(f"v_lshl_add_u32 v7, v7, 7, s{sTmp}")
    a.raw_wait(f"s_waitcnt vmcnt({2 * (LA4 - 2 - OPT['qb2'])}) lgkmcnt(0)")
    a.e("s_barrier")
    for r in rd_x(0): a.e(r)
    for i in range(8):
        for r in rd_w(Wreg(0, i), wpos(0), i): a.e(r)
    a.raw_wait("s_waitcnt lgkmcnt(0)"); a.lg = []
    if OPT["qb2"]: a.e("s_barrier")
    if OPT["qprof"] == 1: stamp(a, 5); stamp(a, 6, False)
    def lperm(n, last):
        return 8 + 4 * ((n - 8) & 1) + ((n - 8) >> 1) if last and OPT["cvo"] and 8 <= n < 16 else n
    def qmf(n, last=False):
        s, pos = divmod(lperm(n, last) % 16, 4)
        return [mf(Qacc(pos, i, j), Wreg(n & 1, i), Xreg((s >> 1) & 1, j, s & 1), Qacc(pos, i, j)) for i in range(8) for j in zj(i)]
    cvq = conv_ops(Qacc, 0, QBANK[3], [76, 84, 92])
    def early(S, half, h0, gaps):
        pre = [x.replace(f"s{sOff},", f"s{sOff2},") for x in unit_pre(sKn, 0)[4*half:4*half+4]]
        if half == 0: pre = [f"s_cmp_ge_u32 s{sKn}, s{sMin}", "s_cselect_b64 vcc, -1, 0", f"s_cselect_b32 s{sC1}, 0, 8192"] + pre
        else: pre = pre + [f"s_add_u32 s{sKn}, s{sKn}, s{sC1}"]
        for x, h_ in zip(pre, h0): S.h(h_, x)
        place_guarded(a, S, unit_dma(sOff2, sOff2)[2*half:2*half+2], gaps)
    def q_group(last):
        for n in range(16):
            a.c(f"Q sub-step {n}{' (last group)' if last else ''}")
            S = Sched(a, qmf(n, last))
            fin = last and n == 15
            q = n % 8
            xrd = q in (6, 7) and not (last and n >= 8)
            if not fin:
                rds = []
                for i in range(8): rds += rd_w(Wreg((n + 1) & 1, i), wpos(n + 1), i)
                for r, p in zip(rds, RDPOS): S.v(p, r)
                m = n + LA4
                if not last or m < 16: place_tile(a, S, w_tile(wpos(m), lperm(m, last)), (6, 11))
                KVN = {8: 7, 9: 8, 10: 9, 11: 10, 12: 11, 13: 12} if not OPT["kvconv"] else {4: 7, 11: 8} if OPT["kvconv"] == 1 else {4: 7}
                if last and n in KVN: place_tile(a, S, kv_tile(KVN[n], KVN[n] >> 1), (16, 19))
                if OPT["qb2"] and not (n & 1):
                    def w(keep=5 if xrd else 2):
                        k = min(len(a.lg), keep); a.raw_wait(f"s_waitcnt lgkmcnt({k})"); a.lg = a.lg[len(a.lg) - k:] if k else []
                    S.h(22, w)
                elif not (last and n == 14):
                    need = n + 2 + OPT["qb2"]
                    if last: need = min(need, 15)
                    hi = min(m, 15) if last else m
                    ykv = len([k for k in KVN if need - LA4 <= k <= n]) if last else 0
                    end_sync(a, S, 2 * (hi - need) + 2 * ykv, (3 if xrd else 0) if OPT["qb2"] else (5 if xrd else 2))
            if xrd:
                rx = rd_x(((n >> 3) + 1) & 1)[3*(q-6):3*(q-6)+3]
                if q == 6: S.h(16, lambda: vmw(a, 8))
                for r, p in zip(rx, (19, 20, 21)): S.v(p, (r, "xr"))
            if q in (0, 1, 2) and not (last and n >= 8):
                if q == 0: S.h(12, lambda: a.wait(lg="xr"))
                place_tile(a, S, x_block(q, 128, sXo, "s_xor_b32") if n < 8 else x_block(q, 256, sXo), (16, 19))
            if n in (11, 12) and not last: early(S, n - 11, (0, 1, 2, 3, 7, 8, 12), (16, 19))
            if n == 4 and not last and OPT["woq"]:
                S.h(13, f"s_lshr_b32 s{sOff2}, s{sXo}, 8"); S.h(14, f"s_mul_i32 s{sOff2}, s{sOff2}, 163840")
                S.v(16, lambda: a._emit(f"buffer_load_dword v9, v7, {sr(sWo,4)}, s{sOff2} offen"))
            if n == 15 and not last:
                S.h(12, f"s_mov_b32 s{sWq}, s{sWq1}")
                S.h(13, f"s_add_u32 s{sWq1}, s{sWq1}, {1 << 20}")
                S.h(14, f"s_add_u32 s{sXo}, s{sXo}, 256")
                S.h(15, f"s_cmp_lt_u32 s{sXo}, 1024")
            if last and n == 3: S.h(1, SCALE)
            if last and n >= 10 and OPT["cvo"]: cvq[:] = fill_ops(S, cvq, 4 if n == 10 else 0)
            S.emit(None if fin else qmf(n + 1, last)[0])
    a.e(".p2align 6")
    a.e("L_q:")
    if OPT["qprof"] == 3:
        a.e(f"s_lshr_b32 s{sT3}, s{sXo}, 8"); stamp_dyn(a, 4, sT3, 4)
    mark = len(a.ins); nops0 = a.nops
    q_group(False)
    lg_end = list(a.lg)
    del a.ins[mark:]; a.nops = nops0
    q_group(False)
    assert a.lg == lg_end
    a.e("s_cbranch_scc1 L_q")
    if OPT["ct2"]: code_touch(a, "L_enter", "L_q2b" if T else "L_altwo", 10, 11, back=bool(OPT["pro2"]))
    if OPT["ls4"]: late_setup()
    if OPT["qprof"] == 3: stamp(a, 8)
    q_group(True)
    if OPT["qprof"] == 1: stamp(a, 7); stamp(a, 8, False)
    stamp(a, 3)
    a.c("Q conversion")
    tmp = [60 + 8 * k for k in range(8)]
    rest = packed(cvq + conv_ops(Qacc, 1, QBANK[2], tmp) + conv_ops(Qacc, 2, QBANK[1], tmp) + conv_ops(Qacc, 3, None, tmp))
    steps = [s_ for m in range(10 - OPT["kvconv"], 13) for s_ in kv_tile(m, m >> 1)] if OPT["kvconv"] else []
    at = {int((k + 0.3) * len(rest) / len(steps)): s_ for k, s_ in enumerate(steps)}
    for k, x in enumerate(rest):
        if k in at:
            for y in at[k][0]: a.e(y)
        a.e(x)
        if k in at: a._emit(at[k][1])
    late_consts(a)
    bootstrap()
    a.e("s_branch L_enter")
    a.e("L_p1:")
    a.lg = []
    if not OPT["pro2"]:
        for j in range(3): emit_tile(a, x_block(j, 0, sXo, lds=VB-XB))
        for n in range(NF): emit_tile(a, w_tile(wpos(n), n, 2))
    a.e(f"s_xor_b32 s{sXo1}, s{sXo}, 128")
    L0 = 5 if OPT["ramp"] else LA
    assert not OPT["ramp"] or (OPT["latekv"] and LA == 7 and OPT["ct2"])
    a.e(f"s_mov_b32 s{sPre}, 1")
    if OPT["ramp"]:
        setup("L_q2")
        late_consts(a)
        a.e(f"v_subrev_u32 v12, {XB-VB}, v{vXA0}"); a.e(f"v_subrev_u32 v13, {XB-VB}, v{vXA1}")
        for j in range(3): emit_tile(a, x_block(j, 0, sXo1)); emit_tile(a, w_tile(wpos(2 + j), 2 + j, 2))
        q6(7)
        a.raw_wait("s_waitcnt vmcnt(10) lgkmcnt(0)")
    else:
        for j in range(3): emit_tile(a, x_block(j, 0, sXo1))
        setup("L_q2")
        late_consts(a)
        for n in range(NF, L0): emit_tile(a, w_tile(wpos(n), n, 2))
        q6(7)
        a.e(f"v_subrev_u32 v12, {XB-VB}, v{vXA0}"); a.e(f"v_subrev_u32 v13, {XB-VB}, v{vXA1}")
        a.raw_wait(f"s_waitcnt vmcnt({2 * (L0 - 2)}) lgkmcnt(0)")
    q6(8)
    for j in range(3):
        for s in range(2): a.e(f"ds_read_b128 {R(X2reg(0, j, s),4)}, v{12+s} offset:{j*2048}")
    a.e("L_q2go:")
    a.e("s_barrier")
    def c_reads(n):
        return [r for f in range(8) for r in rd_w(Greg(n & 1, f), wpos(2 * (n >> 1) + (f & 1)), 4 * (n & 1) + (f >> 1))]
    if OPT["q2c"]:
        for r in c_reads(0): a.e(r)
    else:
        for i in range(8):
            for r in rd_w(Greg(0, i), wpos(0), i): a.e(r)
    a.raw_wait("s_waitcnt lgkmcnt(0)"); a.lg = []
    def c_mf(n, first):
        cl, pos, hf = (n % 8) >> 2, (n >> 1) & 1, n & 1
        o = []
        for i in range(4):
            for jn, j in enumerate(zj(i)):
                cs = (1, 0) if (3 * i + jn) & 1 else (0, 1)
                for c in cs:
                    d = Q2acc(pos, 4*hf + i, j)
                    o.append(mf(d, Greg(n & 1, 2*i + c), X2reg(cl, j, c), None if first and n < 4 and c == cs[0] else d))
        return o
    B2 = OPT["q2c"] == 1
    def c_tiles(N):
        t = [N + 5] if B2 or N < 3 else [8, 9] if N == 3 else [N + 6]
        return [x for x in t if x < 40]
    KVC = {33: 7, 35: 8, 36: 9, 37: 10, 38: 11, 39: 12} if B2 else {33: 7, 34: 8, 35: 9, 36: 10, 37: 11, 38: 12}
    seq = [("W", 0), ("W", 1), ("X", 3), ("W", 2), ("X", 4), ("W", 3), ("X", 5), ("W", 4)]; cut = {}
    for N in range(40):
        tl = c_tiles(N)
        seq += [("W", x) for x in tl]
        if N % 4 < 3 and N < 32: seq.append(("X", 6 + 3 * (N // 4) + N % 4))
        if N in KVC: seq.append(("K", KVC[N]))
        need = []
        if N % 2 == 0 and N + 3 < 40: need.append(("W", N + 3))
        if (N + 1) % 4 < 3 and N + 1 < 36: need.append(("X", 3 + 3 * ((N + 1) // 4) + (N + 1) % 4))
        cut[N] = min([2 * (len(seq) - 1 - seq.index(x)) for x in need] + [62])
    cv2c = conv_ops(Q2acc, 0, "keep", [0])
    def q2c_group(kind):
        first, last = kind == 0, kind == 2
        for n in range(8):
            a.c(f"Q2 sub-step {n} ({('first', 'loop', 'last')[kind]})")
            N = n + (0, 8, 32)[kind]
            S = Sched(a, c_mf(n, first))
            cl, q = divmod(n, 4)
            fin = last and n == 7
            if not fin:
                for r, p in zip(c_reads(n + 1), RDPOS_X): S.v(p, r)
            for x, gp in zip(c_tiles(N), ((4, 7), (10, 13))): place_tile(a, S, w_tile(wpos(x), x - (N - n), 2), gp)
            if q < 3 and not (last and cl == 1):
                for s in range(2): S.v(s, (rd_xb(X2reg(1 - cl, q, s), q, s), "xr"))
            if q < 3 and not last:
                S.h(7, lambda: a.wait(lg="xr"))
                place_tile(a, S, x_block(q, 256, (sXo, sXo1)[cl]), (10, 13))
            if q == 3 and kind == 1: early(S, cl, (0, 0, 1, 1, 4, 7, 8) if cl == 0 else (0, 0, 1, 1, 4), (10, 13))
            if N in KVC:
                un, half = divmod(KVC[N] - 7, 2)
                pre = [x.replace(f"s{sOff},", f"s{sOff2},") for x in unit_pre(sKn, un * 8192)[4*half:4*half+4]]
                for x, h_ in zip(pre, (0, 1, 4, 8)): S.h(h_, x)
                place_tile(a, S, unit_dma(sOff2, sOff2)[2*half:2*half+2], (10, 13))
            if last and n == 0: S.h(14, SCALE)
            if n == 7 and not last:
                for k, x in enumerate([f"s_mov_b32 s{sWq}, s{sWq1}", f"s_add_u32 s{sWq1}, s{sWq1}, {1 << 20}", f"s_add_u32 s{sXo1}, s{sXo1}, 256",
                                       f"s_add_u32 s{sXo}, s{sXo}, 256", f"s_cmp_lt_u32 s{sXo}, 1024"]): S.h(16 + k, x)
            if not fin:
                vm = min(cut[N + 8 * k] for k in range(3)) if kind == 1 else cut[N]
                end_sync(a, S, vm, 5)
                if B2 and n & 1: S.hold[23].remove("s_barrier")
            if last and n >= 5:
                lim = 72 if n == 5 else 0
                done = fill_ops(S, cv2c[:len(cv2c) - lim], 4 if n in (5, 6) else 0)
                cv2c[:] = done + cv2c[len(cv2c) - lim:]
            S.emit(None if fin else c_mf(n + 1, first and n < 7)[0])
    def q2_group(kind):
        if OPT["q2c"]: return q2c_group(kind)
        first, last = kind == 0, kind == 2
        for n in range(8):
            a.c(f"Q2 sub-step {n} ({('first', 'loop', 'last')[kind]})")
            S = Sched(a, q2mf(n, first))
            cl, q = divmod(n, 4)
            fin = last and n == 7
            xrd = q < 3 and not (last and cl == 1)
            def xd(k): return k % 4 < 3 and not (last and k >= 0) and not (first and k < 0)
            def wd(k): return not (last and k + LA >= 8)
            def kd(k): return last and 0 <= k <= 5
            if not fin:
                rds = []
                for i in range(8): rds += rd_w(Greg((n + 1) & 1, i), wpos(n + 1), i)
                for r, p in zip(rds, RDPOS_X): S.v(p, r)
            rampd = first and OPT["ramp"]
            if rampd:
                m0_ = n + 5 + (n > 3)
                place_tile(a, S, w_tile(wpos(m0_), m0_, 2), (4, 7))
                if q == 3: place_tile(a, S, w_tile(wpos(m0_ + 1), m0_ + 1, 2), (10, 13))
            elif wd(n): place_tile(a, S, w_tile(wpos(n + LA), n + LA, 2), (4, 7))
            if kd(n): place_tile(a, S, kv_tile(7 + n, (7 + n) >> 1), (10, 13))
            if xrd:
                for s in range(2): S.v(s, (rd_xb(X2reg(1 - cl, q, s), q, s), "xr"))
            if xd(n):
                S.h(7, lambda: a.wait(lg="xr"))
                place_tile(a, S, x_block(q, 256, (sXo, sXo1)[cl]), (10, 13))
            if q == 3 and not last and not (first and OPT['latekv']): early(S, cl, (0, 0, 1, 1, 4, 7, 8) if cl == 0 else (0, 0, 1, 1, 4), (10, 13))
            if n == 7 and not last:
                S.h(16, f"s_mov_b32 s{sWq}, s{sWq1}")
                S.h(17, f"s_add_u32 s{sWq1}, s{sWq1}, {1 << 20}")
                S.h(18, f"s_add_u32 s{sXo1}, s{sXo1}, 256")
                S.h(19, f"s_add_u32 s{sXo}, s{sXo}, 256")
                S.h(20, f"s_cmp_lt_u32 s{sXo}, 1024")
            if not (last and n >= 6):
                k0 = n + 2 - LA
                vm = sum(2 * wd(k) for k in range(k0 + 1, n + 1)) + sum(2 * kd(k) for k in range(k0, n + 1))
                if (n + 1) % 4 < 3 and not (last and n + 1 >= 4) and xd(n - 3):
                    vm = min(vm, sum(2 * wd(k) + 2 * xd(k) + 2 * kd(k) for k in range(n - 2, n + 1)))
                if rampd and n == 0: vm = min(vm, 8)
                if n == 7 and OPT['cvo']: vm = min(vm, 8)
                end_sync(a, S, vm, 5)
            S.emit(None if fin else q2mf(n + 1, first and n < 7)[0])
    if OPT["qprof"] == 6: stamp_dyn(a, 3, sR, 1)
    a.e("L_q2:")
    def q5():
        if OPT["qprof"] == 5:
            a.e(f"s_lshr_b32 s{sT3}, s{sXo}, 8"); a.e(f"s_lshl_b32 s{sT2}, s{sR}, 4"); a.e(f"s_add_u32 s{sT3}, s{sT3}, s{sT2}"); stamp_dyn(a, 4, sT3, 5)
    q5()
    q2_group(0)
    if OPT["ramp"]:
        a.e(f"s_cmp_lg_u32 s{sR}, 0"); a.e("s_cbranch_scc1 L_q2l")
        late_setup()
    lg_in = list(a.lg)
    a.e(".p2align 6")
    a.e("L_q2l:")
    q5()
    q2_group(1)
    assert a.lg == lg_in
    a.e("s_cbranch_scc1 L_q2l")
    q5()
    if OPT["ct2"]:
        code_touch(a, "L_enter", "L_q2b" if T else "L_altwo", 10, 11)
    cv2 = conv_ops(Q2acc, 0, "keep", [0])
    if OPT["q2c"]:
        assert OPT["ramp"] and OPT["latekv"]
        q2_group(2); cv2 = cv2c
    elif not OPT["cvo"]:
        q2_group(2); a.e(SCALE)
    else:
        order = [0, 2, 4, 6, 1, 3, 5, 7]
        def mfs(n):
            s, pos = divmod(order[n], 2)
            return [mf(Q2acc(pos, i, j), Greg(n & 1, i), X2reg(s >> 1, j, s & 1), Q2acc(pos, i, j)) for i in range(8) for j in zj(i)]
        kvat = {0: [7], 1: [8], 5: [9, 10], 6: [11, 12]}
        for n in range(8):
            a.c(f"Q2 sub-step {n} (last)")
            S = Sched(a, mfs(n))
            if n < 7:
                rds = []
                for i in range(8): rds += rd_w(Greg((n + 1) & 1, i), wpos(order[n + 1]), i)
                for r, p in zip(rds, RDPOS_X): S.v(p, r)
            if n == 0:
                place_tile(a, S, w_tile(wpos(7), 7, 2), (4, 7)); S.h(14, SCALE)
                for s in range(2): S.v(s, rd_xb(X2reg(1, 0, s), 0, s))
            if n == 1:
                for k, p in enumerate((0, 1, 4, 7)): S.v(p, rd_xb(X2reg(1, 1 + (k >> 1), k & 1), 1 + (k >> 1), k & 1))
            for m, gp in zip(kvat.get(n, []), ((10, 13),) if n < 2 else ((4, 7), (10, 13))):
                un, half = divmod(m - 7, 2)
                pre = [x.replace(f"s{sOff},", f"s{sOff2},") for x in unit_pre(sKn, un * 8192)[4*half:4*half+4]]
                if gp[0] == 4: pre = [x.replace(f"s{sOff2},", f"s{sOff},") for x in pre]
                for x, h_ in zip(pre, (0, 0, 1, 2) if gp[0] == 4 else (0, 1, 4, 8) if n < 2 else (4, 5, 7, 8)): S.h(h_, x)
                so = sOff if gp[0] == 4 else sOff2
                place_tile(a, S, unit_dma(so, so)[2*half:2*half+2], gp)
            if n < 6: end_sync(a, S, {0: 6, 1: 6, 5: 8}.get(n, 20), 5)
            if n >= 4: cv2 = fill_ops(S, cv2, 4 if n == 4 else 0)
            S.emit(mfs(n + 1)[0] if n < 7 else None)
    if OPT["qprof"] == 5: stamp_dyn(a, 3, sR, 1)
    if OPT["stamp"] and not OPT["qprof"]:
        a.e(f"s_lshr_b32 s{sT2}, s{sR}, 1"); stamp_dyn(a, 3, sT2, 2)
    a.c("Q2 conversion")
    for x in packed(cv2): a.e(x)
    def bank_write(db, src):
        return [f"v_accvgpr_write_b32 a{db + 12*p + 4*j + x}, v{src(p, j)+x}" for p in range(4) for j in range(3) for x in range(4)]
    a.e(f"s_cmp_lg_u32 s{sR}, 0"); a.e("s_cbranch_scc1 L_cv2b")
    if OPT["touch"]:
        a.e("v_min_u32 v8, 39, v0"); a.e("v_lshrrev_b32 v9, 2, v8"); a.e("v_lshlrev_b32 v9, 13, v9")
        a.e("v_and_b32 v8, 3, v8"); a.e("v_lshl_add_u32 v9, v8, 7, v9")
        a.e(f"s_lshl_b32 s{sTmp}, s{sB}, 2"); a.e(f"s_add_u32 s{sTmp}, s{sTmp}, s{sWv}"); a.e(f"s_mul_i32 s{sTmp}, s{sTmp}, {10*8192}")
        a.e(f"s_add_u32 s{sTmp}, s{sTmp}, 512")
        a._emit(f"buffer_load_dword v{vD}, v9, {sr(sW,4)}, s{sTmp} offen")
    km = {1: 3, 0: 0, 2: 2}[OPT["k2"]]
    a.e(f"s_and_b32 s{sWq}, s{sWq}, {0x3ff | km << 18}"); a.e(f"s_xor_b32 s{sWq}, s{sWq}, 512"); a.e(f"s_add_u32 s{sWq1}, s{sWq}, {1 << 20}")
    a.e(f"s_and_b32 s{sXo}, s{sXo}, {128 if km & 2 else 0}"); a.e(f"s_xor_b32 s{sXo1}, s{sXo}, 128")
    if not km & 1:
        a.e(f"s_and_b32 s{sTmp}, s{sJ}, 1"); a.e(f"s_lshl_b32 s{sTmp}, s{sTmp}, 6")
        a.e(f"v_xor_b32 v{vXA0}, s{sTmp}, v{vXA0}"); a.e(f"v_xor_b32 v{vXA1}, s{sTmp}, v{vXA1}")
    for x in bank_write(QBANK[1], lambda p, j: Q2acc(0, 2*p, j)): a.e(x)
    a.e("s_branch L_cv2c")
    a.e("L_cv2b:")
    if OPT["emu3"]:
        a.e(f"s_cmp_eq_u32 s{sPre}, 1"); a.e("s_cbranch_scc0 L_cv2d")
        a.e(f"s_mov_b32 s{sPre}, 14")
        a.e(f"s_and_b32 s{sWq}, s{sWq}, 0xfffff"); a.e(f"s_add_u32 s{sWq1}, s{sWq}, {1 << 20}")
        a.e(f"s_and_b32 s{sXo}, s{sXo}, 128"); a.e(f"s_xor_b32 s{sXo1}, s{sXo}, 128")
        a.raw_wait("s_waitcnt vmcnt(0)"); a.e("s_barrier")
        for n in range(LA): emit_tile(a, w_tile(wpos(n), n, 2))
        a.raw_wait("s_waitcnt vmcnt(0)")
        a.e("s_branch L_q2go")
        a.e("L_cv2d:")
    a.e("s_nop 7")
    for x in bank_write(QBANK[3], lambda p, j: Q2acc(0, 2*p, j)): a.e(x)
    bootstrap()
    a.e("L_cv2c:")
    for x in packed(conv_ops(Q2acc, 1, None, [0])): a.e(x)
    a.e("L_enter:")
    a.e(f"v_mov_b32 v{vT}, 0x3f803f80")
    if OPT["sparse1"]:
        a.e(f"v_and_b32 v{vT+1}, 3, v0"); a.e(f"v_cmp_eq_u32 vcc, 0, v{vT+1}"); a.e(f"v_cndmask_b32 v{vT}, 0, v{vT}, vcc")
    for r in range(4): a.e(f"v_accvgpr_write_b32 a{ONES[1]+r}, v{vT}")
    def rd_k(dst, t, u): return [f"ds_read_b128 {vr(dst + 4*ks,4)}, v{vKA} offset:{(t % 8)*TILE + u*512 + ks*64}" for ks in range(4)]
    def rd_v(t, half, fr=VF):
        return [f"ds_read_b64_tr_b16 {vr(fr + 4*i + 2*e, 2)}, v{vVA} offset:{(t % 8)*TILE + e*512 + (4*half+i)*32}" for i in range(4) for e in range(2)]
    assert not OPT["lateq"] and (OPT["lmax"] == 3 or (OPT["lmax"] == 4 and OPT["thr"] <= 4 and 0 <= OPT["w2"] <= 4))
    a.e(f"s_add_u32 s{sKc}, s{sKn}, {4*8192}"); a.e(f"s_mov_b32 s{sLag}, 0")
    assert OPT["cvo"] or not T
    THR = OPT['thr'] + 1 if OPT['dyn'] else 99
    a.e(f"s_cmp_eq_u32 s{sTyp}, 0"); a.e(f"s_cselect_b32 s{sThr}, {0 if OPT['sh1'] else THR}, {THR}")
    a.e(f"s_mov_b32 s{sThN}, {THR}")
    if OPT["sh3"]:
        a.e(f"s_cmp_eq_u32 s{sR}, 2"); a.e(f"s_cselect_b32 s{sThr}, 0, s{sThr}")
        if OPT["sh3"] == 1: a.e(f"s_cselect_b32 s{sThN}, 0, s{sThN}")
    vmw(a, 12)
    a.e("s_barrier")
    a.lg = []
    for r in rd_k(KF, 0, 0) + rd_k(VF, 0, 1): a.e(r)
    for x in unit_pre(sKn, 3 * 8192): a.e(x)
    a.wait(lg="all")
    def ex(u, k): j, r = divmod(k, 4); s = Sr(u, j) + r; return f"v_exp_f32 v{s}, v{s}"
    def cv(u, buf, c): j, h = divmod(c, 2); s = Sr(u, j) + 2*h; return f"v_cvt_pk_bf16_f32 v{Pr(buf,j) + 2*u + h}, v{s}, v{s+1}"
    def qk(u): return [mf(Sr(u, j), KF + 4*ks, Qf(j, ks), Nm(j) if ks == zk(j)[0] else Sr(u, j)) for j in range(3) for ks in zk(j)]
    def pv(t, half, fr=VF): return [mf(Or(4*half + i, j), fr + 4*i, Pr(t & 1, j), None if t == 0 else Or(4*half + i, j)) for i in range(4) for j in zj(i)]
    def sm(t): return [mf(La(j), ONES, Pr(t & 1, j), None if t == 0 else La(j)) for j in zj(1)]
    VMW = min(8, OPT["vmw"])
    decide = [f"s_getreg_b32 s{sC1}, hwreg(HW_REG_IB_STS, 0, 4)", f"s_cmp_ge_u32 s{sC1}, s{sThr}", f"s_cselect_b32 s{sC1}, s{sLag}, 15",
              f"s_cmp_lt_u32 s{sC1}, {OPT['lmax']}"]
    if OPT["w2"] >= 0: decide = decide[:2]
    advance = [f"s_mov_b32 s{sOff}, s{sOff2}", f"s_mov_b32 s{sMv}, s{sMk}", f"s_add_u32 s{sKc}, s{sKc}, 8192"]
    recompute = [f"s_xor_b32 s{sOff2}, s{sKc}, s{sRot}", f"s_bfe_u32 s{sMk}, s{sKc}, 0x3000d", f"s_mul_i32 s{sMk}, s{sMk}, {TILE}"]
    skips = []
    def forked(build, nxt):
        l0, l1 = newlabel("df"), newlabel("dfb")
        a.e(f"s_cbranch_scc1 {l0}")
        a.e(f"{l0}i:")
        lg = list(a.lg)
        build(True).emit(nxt)
        a.e(f"{l1}:")
        skips.append((l0, l1, build, nxt, lg, list(a.lg)))
    catch = []
    def wo_at(S, m, gaps):
        st, post = wo_tile(m)
        place_tile(a, S, st, gaps)
        for x in post: S.h(gaps[1], x)
    def tail_vec(S, u, buf, rds):
        pos = [0, 1, 4, 5, 8, 9, 10, 11]
        for r, p in zip(rds, pos): S.v(p, r)
        for k, p in zip(range(8, 12), (2, 3, 6, 7)): S.v(p, ex(u, k))
        for c, p in zip(range(6), (0, 1, 4, 5, 8, 9)): S.v(p, cv(u, buf, c))
    a.e("L_head:")
    a.c("tile 0: scores of the first 16 keys give the stand-in row max")
    def qk0(extra):
        S = Sched(a, [mf(Sr(0, j), KF + 4*ks, Qf(j, ks), None if ks == 0 else Sr(0, j)) for j in range(3) for ks in range(4)])
        S.h(2, lambda: vmw(a, VMW))
        for k, x in enumerate(decide): S.h(3 + k, x)
        for k, x in enumerate(extra[:24]): S.v(k // 2, x)
        S.emit(None)
        for x in extra[24:]: a.e(x)
        if not extra: a.e("s_nop 7")
    qk0([])
    a.e(".p2align 6")
    a.e("L_head2:")
    for j in range(3): a.e(f"v_max3_f32 v{Nm(j)}, v{Sr(0,j)}, v{Sr(0,j)+1}, v{Sr(0,j)+2}")
    for j in range(3): a.e(f"v_max_f32 v{Nm(j)}, v{Nm(j)}, v{Sr(0,j)+3}")
    rowred(a, "v_max_f32", [Nm(j) for j in range(3)], [Nm(j) + 1 for j in range(3)])
    for j in range(3):
        if OPT["pk"]:
            for r in (2, 0): a.e(f"v_pk_mul_f32 v[{Nm(j)+r}:{Nm(j)+r+1}], v[{Nm(j)}:{Nm(j)+1}], -1.0 op_sel_hi:[0,0]")
        else:
            for r in (3, 2, 1, 0): a.e(f"v_sub_f32 v{Nm(j)+r}, 0, v{Nm(j)}")
    def qkb(issue):
        S = Sched(a, [mf(Sr(1, j), VF + 4*ks, Qf(j, ks), Nm(j) if ks == 0 else Sr(1, j)) for j in range(3) for ks in range(4)])
        S.h(0, "s_barrier")
        for r, p in zip(rd_k(KF, 1, 0), (0, 3, 6, 9)): S.v(p, r)
        if issue:
            place_tile(a, S, unit_dma(), (2, 5, 8, 11))
            for x, p in zip(advance, (6, 8, 9)): S.h(p, x)
        else: S.h(1, f"s_add_u32 s{sLag}, s{sLag}, 1")
        subs = [f"v_add_f32 v{Sr(0,j)+r}, v{Sr(0,j)+r}, v{Nm(j)}" for j in range(3) for r in range(4)]
        for x, p in zip(subs, (0, 1, 1, 3, 4, 4, 6, 7, 7, 9, 10, 10)): S.v(p, x)
        return S
    forked(qkb, None)
    for k in range(12): a.e(ex(0, k))
    for k in range(8): a.e(ex(1, k))
    for c in range(6): a.e(cv(0, 0, c))
    a.wait(lg="all")
    def stage(t, mode):
        a.c(f"stage {t} {mode}")
        kv = mode == "kv"
        S = Sched(a, qk(0)); tail_vec(S, 1, t & 1, rd_v(t, 0))
        if kv:
            for k, x in enumerate(recompute): S.h(1 + k, x)
        def cusite(S, hs):
            if kv and OPT["dyn"] and OPT["thr2"] >= 0 and t >= OPT["cufrom"] and (t - OPT["cufrom"]) % OPT["custep"] == 0:
                l0, l1 = newlabel("cu"), newlabel("cub")
                cm = [f"s_add_u32 s{sC1}, s{sC1}, {THR - OPT['thr2']}", f"s_cmp_le_u32 s{sC1}, s{sThr}"] if OPT["gate"] else ["s_nop 0", f"s_cmp_le_u32 s{sC1}, {OPT['thr2']}"]
                for k, x in enumerate([f"s_getreg_b32 s{sC1}, hwreg(HW_REG_IB_STS, 0, 4)"] + cm +
                                      [f"s_cselect_b32 s{sC1}, s{sLag}, 0", f"s_cmp_gt_u32 s{sC1}, 0"]): S.h(hs[k], x)
                def site(l0=l0, l1=l1): a.e(f"s_cbranch_scc1 {l0}"); a.e(f"{l1}:")
                S.h(hs[5], site)
                catch.append((l0, l1, t))
        if OPT["cupos"] == 0: cusite(S, (5, 6, 7, 8, 9, 10))
        S.emit(pv(t, 0)[0])
        S = Sched(a, pv(t, 0))
        for r, p in zip(rd_k(KF, t+1, 1), (0, 1, 2, 3)): S.v(p, r)
        for k, p in zip(range(8), range(4, 12)): S.v(p, ex(0, k))
        S.h(10, lambda: a.wait(lg="all"))
        if OPT["cupos"] == 1: cusite(S, (0, 1, 3, 4, 6, 7))
        if mode == "wq" and t == 13: place_tile(a, S, x_block(1, 0, sXo) + x_block(2, 0, sXo), (2, 4, 7, 9))
        S.emit(qk(1)[0])
        S = Sched(a, qk(1)); tail_vec(S, 0, (t+1) & 1, rd_v(t, 1))
        if kv:
            if t == OPT["sh1t"]: S.h(2, f"s_mov_b32 s{sThr}, s{sThN}")
            if t == 9 and OPT["sh2"] and T:
                S.h(2, f"s_cmp_eq_u32 s{sR}, s{sPre}"); S.h(3, f"s_cselect_b32 s{sThr}, 0, s{sThr}")
            S.h(10 - len(decide), lambda: vmw(a, VMW))
            for k, x in enumerate(decide): S.h(11 - len(decide) + k, x)
        else:
            S.h(11, lambda: vmw(a, {"wo": 8, "wq": 8 if t < 14 else 4}[mode]))
        S.emit(None)
        def dslot(issue):
            S = Sched(a, sm(t) + pv(t, 1))
            S.h(0, "s_barrier")
            if t + 2 < 16:
                for r, p in zip(rd_k(KF, t+2, 0), (0, 1, 2, 3)): S.v(p, (r, "kr"))
            else:
                for r, p in zip(rd_v(15, 0, KF), (0, 1, 2, 3, 4, 6, 7, 9)): S.v(p, (r, "kr"))
                S.v(10, cv(1, 1, 0)); S.v(12, cv(1, 1, 1))
                if mode == "wq":
                    for k, p in enumerate((0, 1, 2, 5, 8, 10)): S.v(p, (rd_xb(X2reg(0, k >> 1, k & 1), k >> 1, k & 1), "kr"))
            for k, p in zip(range(8), (3, 4, 6, 7, 9, 10, 12, 13)): S.v(p, ex(1, k))
            def vwait(keep):
                def f():
                    idx = [n for n, (tg, d) in enumerate(a.lg) if tg != "kr"]
                    if len(idx) > keep: a._wait(lg_idx=idx[len(idx) - 1 - keep])
                return f
            S.h(1, vwait(4)); S.h(6, vwait(0))
            if kv and issue:
                place_tile(a, S, unit_dma(), (5, 8, 11, 14))
                for x, p in zip(advance, (9, 11, 3)): S.h(p, x)
            elif kv: S.h(3, f"s_add_u32 s{sLag}, s{sLag}, 1")
            elif mode == "wo":
                wo_at(S, 2*(t-12), (5, 8)); wo_at(S, 2*(t-12) + 1, (11, 14))
            else:
                if t == 12: place_tile(a, S, x_block(0, 0, sXo), (5, 8))
                else: place_tile(a, S, w_tile(2*t - 17, 2*t - 25, 2), (5, 8))
                place_tile(a, S, w_tile(2*t - 16, 2*t - 24, 2), (11, 14))
            S.h(12 if t < 14 else 14, lambda: a.wait(lg="all"))
            return S
        nxt = qk(0)[0] if t < 14 else None
        if kv: forked(dslot, nxt)
        else: dslot(True).emit(nxt)
        assert not a.lg
    NPRE = 20
    def epi_ops(toq):
        o_ = [f"v_mul_f32 v{Or(u,j)+r}, v{Or(u,j)+r}, v{vT+j}" for u in range(2) for j in range(3) for r in range(4)]
        for p in range(4):
            for j in range(3):
                d = Qf(j, p) if toq else Or(2*p, j)
                if p: o_ += [f"v_mul_f32 v{Or(2*p+u,j)+r}, v{Or(2*p+u,j)+r}, v{vT+j}" for u in range(2) for r in range(4)]
                o_ += [f"v_cvt_pk_bf16_f32 v{d+2*u+h}, v{Or(2*p+u,j)+2*h}, v{Or(2*p+u,j)+2*h+1}" for u in range(2) for h in range(2)]
        return o_
    def stage15(mode):
        a.c(f"stage 15 {mode}")
        p0 = pv(15, 0, KF)
        S = Sched(a, [m_ for j in range(3) for m_ in [sm(15)[zj(1).index(j)]] + [p0[3*i + zj(i).index(j)] for i in range(4)]] + pv(15, 1))
        for r, p in zip(rd_v(15, 1), (0, 1, 6, 7, 8, 9, 10, 11)): S.v(p, r)
        for c, p in zip((2, 3, 4, 5), (0, 1, 6, 7)): S.v(p, cv(1, 1, c))
        for k, p in zip(range(8, 12), (2, 3, 4, 5)): S.v(p, ex(1, k))
        for j, p in enumerate((8, 9, 14)): S.v(p, f"v_accvgpr_read_b32 v{vT+j}, a{La(j)[1]}")
        S.v(10, f"v_add_f32 v{vT+3}, v{vT}, v{vT+1}"); S.v(14, f"v_add_f32 v{vT+3}, v{vT+3}, v{vT+2}")
        S.v(11, f"v_mov_b32 v{vT+4}, {f32(2.0**60 if not OPT['forceslow'] else 150.0)}")
        S.v(15, f"v_cmp_nle_f32 vcc, v{vT+3}, v{vT+4}")
        for j, p in enumerate((12, 13, 16)): S.v(p, f"v_rcp_f32 v{vT+j}, v{vT+j}")
        if mode != "wo":
            for k, x in enumerate(epi_ops(0)[:NPRE]): S.v(17 + k // 2, x)
        if mode == "kv":
            for k, x in enumerate(recompute): S.h(1 + k, x)
        if mode == "wo":
            for k in range(3): wo_at(S, 6 + k, (11 + 6*k, 14 + 6*k))
        if mode == "wq":
            place_tile(a, S, [s_ for j in range(3) for s_ in x_block(j, 0, sXo1)], (12, 14, 17, 19, 22, 24))
        S.emit(None)
        assert not a.lg
        if not OPT["nocheck"]: a.e("s_cbranch_vccnz L_slow")
    for t in range(15):
        if t == 12:
            a.e(f"s_cmp_eq_u32 s{sR}, 3"); a.e("s_cbranch_scc1 L_altwo")
            if T: a.e(f"s_cmp_eq_u32 s{sR}, s{sPre}"); a.e("s_cbranch_scc1 L_altwq")
        stage(t, "kv")
    stage15("kv")
    a.e("L_epi:")
    for r in rd_k(KF, 0, 0) + rd_k(VF, 0, 1): a.e(r)
    lg_epi = list(a.lg)
    for x in packed(epi_ops(0)[NPRE:]): a.e(x)
    if OPT["stamp"] and not OPT['qprof']: stamp_dyn(a, 5, sR, 4)
    a.e(f"s_add_u32 s{sCur}, s{sCur}, 131072")
    a.e(f"s_add_u32 s{sR}, s{sR}, 1")
    a.e(f"s_cmp_eq_u32 s{sR}, 3"); a.e("s_cbranch_scc1 L_sw2")
    a.e(f"s_cmp_eq_u32 s{sR}, 2"); a.e("s_cbranch_scc1 L_sw1")
    for r in range(3):
        a.e(f"L_sw{r}:")
        if r == 1 and T: a.e(f"s_cmp_eq_u32 s{sPre}, 1"); a.e("s_cbranch_scc1 L_q2b")
        if r < 2: code_touch(a, "L_rare", "L_altwo" if r == 0 or not T else "L_q2b", 10, 11)
        if r == 2:
            code_touch(a, "L_rare", "L_hot_end", 158, 159)
            l = newlabel("bp")
            a.e(f"s_cmp_lg_u32 s{sWv}, 0"); a.e(f"s_cbranch_scc1 {l}")
            a._emit("global_load_dword v156, v157, s[18:19] sc1")
            a.e(f"{l}:")
        for j in range(3):
            for p in range(4):
                for x in range(4): a.e(f"v_accvgpr_read_b32 v{Qf(j,p)+x}, a{QBANK[r+1] + 12*p + 4*j + x}")
        a.raw_wait("s_waitcnt lgkmcnt(0)"); a.lg = []
        qk0(bank_write(OBANK[r], lambda p, j: Or(2*p, j)))
        a.e("s_branch L_head2")
    def settle():
        if OPT["lmax"] < 4: return
        l = newlabel("st")
        a.e(f"s_cmp_lt_u32 s{sLag}, 4"); a.e(f"s_cbranch_scc1 {l}")
        for x in recompute: a.e(x)
        emit_tile(a, unit_dma())
        a.e(advance[2])
        a.e(f"{l}:")
    a.e("L_rare:")
    for l0, l1, t in catch:
        a.e(f"{l0}:")
        emit_tile(a, unit_dma())
        for x in advance + recompute: a.e(x)
        a.e(f"s_sub_u32 s{sLag}, s{sLag}, 1")
        a.e(f"s_branch {l1}")
    for l0, l1, build, nxt, lg0, lg1 in skips:
        if OPT["w2"] >= 0:
            a.e(f"{l0}w:"); vmw(a, OPT["w2"]); a.e(f"s_branch {l0}i")
        a.e(f"{l0}:")
        if OPT["w2"] >= 0: a.e(f"s_cmp_ge_u32 s{sLag}, {OPT['lmax']}"); a.e(f"s_cbranch_scc1 {l0}w")
        a.lg = list(lg0)
        build(False).emit(nxt)
        assert a.lg == lg1
        a.e(f"s_branch {l1}")
    if T:
        a.e("L_q2b:")
        for x in bank_write(OBANK[1], lambda p, j: Or(2*p, j)): a.e(x)
        a.e(f"s_sub_u32 s{sKn}, s{sKc}, 8192"); a.e(f"s_add_u32 s{sMin}, s{sCur}, {3*8192}")
        a.raw_wait("s_waitcnt vmcnt(0) lgkmcnt(0)")
        if L0 > 5: a.e("s_barrier")
        for n in range(5, L0): emit_tile(a, w_tile(wpos(n), n, 2))
        a.e("s_branch L_q2go")
        a.e(".p2align 6")
        a.e("L_altwq:")
        settle()
        a.lg = []
        for t in range(12, 15): stage(t, "wq")
        stage15("wq")
        a.e("s_branch L_epi")
    a.e(".p2align 6")
    a.e("L_altwo:")
    settle()
    a.lg = []
    for t in range(12, 15): stage(t, "wo")
    stage15("wo")
    sPr, sOut, sOo, sDst = sX, sW, sLast, 40
    LD = {0: 184, 1: 130}
    ACC, STG = 60, 160
    vSA, vSB, vLA, vLB, vOA, vFl, vFi, vPoll, vVal, TM, PK = 152, 153, 154, 158, 159, 1, 2, 6, 10, 120, 124
    def Ga(h, i, j): return (72, 208)[h] + 12 * i + 4 * j
    def spin_loop(l0, l1, cmp, reload):
        a.e(f"{l0}:")
        a.e(f"s_mov_b32 s{sT3}, 0")
        l2 = newlabel("spin")
        a.e(f"{l2}:")
        a.e(f"s_add_u32 s{sT3}, s{sT3}, 1")
        a.e(f"s_cmp_ge_u32 s{sT3}, {SPIN_MAX}")
        a.e(f"s_cbranch_scc1 {l1}")
        a.e(f"s_sleep {OPT['sleep']}")
        a._emit(reload)
        a.raw_wait("s_waitcnt vmcnt(0)")
        for x in cmp: a._emit(x)
        a._emit("s_nop 4")
        a.e(f"s_cbranch_vccnz {l2}")
        a.e(f"s_branch {l1}")
    spins = []
    def rd_g(dst, m, f):
        h, o = slot(m); i, c = divmod(f, 2)
        return [f"ds_read_b64_tr_b16 {R(off(dst, 2*e), 2)}, v{(vWAl, vWAh)[h]} offset:{o + c*512 + e*256 + i*32}" for e in range(2)]
    def gmf(n):
        h, t = divmod(n % 16, 8)
        o = []
        for i in range(4):
            for jn, j in enumerate(zj(i)):
                cs = (1, 0) if OPT["zz"] and (3 * i + jn) & 1 else (0, 1)
                for c in cs:
                    r, p = divmod(2 * t + c, 4)
                    o.append(mf(Ga(h, i, j), Greg(n & 1, 2*i + c), Qf(j, p) if r == 3 else ("a", OBANK[r] + 12 * p + 4 * j), None if t == 0 and c == cs[0] else Ga(h, i, j)))
        return o
    a.e("L_g:")
    a.lg = []
    if OPT["stamp"] and not OPT['qprof']: stamp(a, 8)
    if OPT["qprof"] == 4: stamp(a, 4)
    a.e(f"v_lshrrev_b32 v{TM}, 5, v0"); a.e(f"v_lshlrev_b32 v{TM}, 7, v{TM}")
    a.e(f"v_sub_u32 v{vWAh}, v{vVA}, v{TM}"); a.e(f"v_subrev_u32 v{vWAl}, {VB}, v{vWAh}")
    a.e(f"v_mov_b32 v{TM+1}, {XB}")
    vmw(a, 12)
    l, l0, l1 = newlabel("bc"), newlabel("bs"), newlabel("bok")
    a.e(f"s_cmp_lg_u32 s{sWv}, 0"); a.e(f"s_cbranch_scc1 {l}")
    bcmp = [f"v_and_b32 v{TM}, 0xff, v156", f"v_cmp_gt_u32 vcc, 8, v{TM}"]
    for x in bcmp: a._emit(x)
    a.e(f"s_lshl_b32 s{sTmp}, s{sPK}, 3")
    a._emit("s_nop 3")
    if not OPT["nosync"]: a.e(f"s_cbranch_vccnz {l0}")
    a.e(f"{l1}:")
    spins.append((l0, l1, bcmp, "global_load_dword v156, v157, s[18:19] sc1"))
    a.e(f"v_xor_b32 v156, s{sTmp}, v156")
    a._emit(f"ds_write_b32 v{TM+1}, v156")
    a.e(f"{l}:")
    a.e("s_barrier")
    for f in range(8):
        for r in rd_g(Greg(0, f), 0, f): a.e(r)
    epi = epi_ops(1)
    NC = 24 if OPT["pk"] else 16
    for x in packed(epi[:NC]): a.e(x)
    epi = epi[NC:]
    def srd_atoms(d, lo, o): return [[f"s_add_u32 s{d}, s{lo}, {o}", f"s_addc_u32 s{d+1}, s{lo+1}, 0"], [f"s_and_b32 s{d+1}, s{d+1}, 0xffff"], [f"s_mov_b32 s{d+3}, 0x20000"]]
    T1_, T2_ = f"s{sTmp}", f"s{sT2}"
    setup_ = [[f"s_mul_i32 {T1_}, s{sG}, {XG}"]] + srd_atoms(sP, 28, T1_) + [[f"s_mov_b32 s{sP+2}, {XG}"], [f"s_mul_i32 {T2_}, s{sU}, {XD}"], [f"s_add_u32 {T1_}, {T1_}, {T2_}"]]
    setup_ += srd_atoms(sPr, 28, T1_) + [[f"s_mov_b32 s{sPr+2}, 0"]]
    if OPT["ibg"]:
        setup_ += [[x] for x in (f"s_mul_i32 {T2_}, s{sWv}, 1536", f"s_add_u32 {T2_}, {T2_}, {T1_}", f"s_add_u32 {T2_}, {T2_}, {5*XP}",
            "v_min_u32 v3, 47, v0", "v_mul_u32_u24 v132, 43, v3", "v_lshrrev_b32 v132, 9, v132", "v_lshlrev_b32 v3, 7, v3",
            "v_mul_u32_u24 v132, 4608, v132", f"v_add3_u32 v3, v3, v132, {T2_}", f"s_add_u32 {T2_}, {T2_}, {XD - 6144 + 1408}",
            "v_add_u32 v157, 24576, v3", f"v_min_u32 v157, {T2_}, v157")]
    for i in range(7):
        setup_ += [[f"s_xor_b32 s{sDst+i}, s{sU}, {i ^ 7}"], [f"s_mul_i32 s{sDst+i}, s{sDst+i}, {XD}"], [f"s_add_u32 s{sDst+i}, s{sDst+i}, {i*6144}"]]
    setup_ += [[f"s_mul_i32 {T1_}, s{sB}, 491520"], [f"s_mul_i32 {T2_}, s{sBr}, 1280"], [f"s_add_u32 {T1_}, {T1_}, {T2_}"], [f"s_lshl_b32 {T2_}, s{sU}, 5"], [f"s_add_u32 {T1_}, {T1_}, {T2_}"]]
    setup_ += srd_atoms(sOut, 16, T1_) + [[f"s_mov_b32 s{sOut+2}, 0"]]
    setup_ += [[x] for x in (f"s_mul_i32 {T1_}, s{sWv}, 1536", f"v_lshl_add_u32 v{vSA}, v0, 4, {T1_}", f"s_add_u32 {T1_}, {T1_}, 1024", f"v_lshl_add_u32 v{vSB}, v0, 3, {T1_}",
        *((f"v_and_b32 v{TM}, 15, v0", f"v_mul_u32_u24 v{TM}, 2560, v{TM}", f"v_lshrrev_b32 v{TM+3}, 4, v0", f"v_lshl_add_u32 v{TM}, v{TM+3}, 3, v{TM}") if not OPT["bp"] else
          (f"v_lshrrev_b32 v{TM}, 2, v0", f"v_and_b32 v{TM+3}, 3, v0", f"v_lshl_add_u32 v11, v{TM+3}, 4, v{TM}", "v_lshlrev_b32 v11, 2, v11",
           f"v_mul_u32_u24 v{TM}, 2560, v{TM}", f"v_lshl_add_u32 v{TM}, v{TM+3}, 3, v{TM}")),
        f"s_mul_i32 {T1_}, s{sWv}, {48*2560}", f"v_add_u32 v{vOA}, {T1_}, v{TM}",
        f"s_lshl_b32 {T1_}, s{sWv}, 7", f"s_lshl_b32 {T2_}, s{sU}, 2", f"s_add_u32 {T2_}, {T2_}, {T1_}", f"v_lshl_add_u32 v{vFl}, v0, 9, {T2_}",
        f"s_lshl_b32 {T2_}, s{sU}, 9", f"s_add_u32 {T2_}, {T2_}, {T1_}", f"v_and_b32 v{TM}, 7, v0", f"v_lshl_add_u32 v{vFi}, v{TM}, 2, {T2_}",
        f"v_mov_b32 v{vVal}, 0", f"v_mov_b32 v{vPoll}, 0", f"s_mov_b32 s{sGc}, 0" if not OPT["emu3"] else f"s_lshl_b32 s{sGc}, s{sTyp}, 1", f"s_mov_b32 s{sOo}, -512" if not OPT["emu3"] else f"s_mov_b32 s{sOo}, 0", f"s_mov_b32 s{sS8}, 0xffff0000")]
    if OPT["mred"]:
        sel_ = [x for x in ("v_and_b32 v134, 1, v0", "v_lshlrev_b32 v134, 4, v134", "v_mov_b32 v135, 0x3f80", "v_lshlrev_b32 v134, v134, v135",
            "v_bfe_u32 v135, v0, 1, 3", "v_lshrrev_b32 v136, 4, v0", "v_lshlrev_b32 v136, 1, v136", "v_xor_b32 v135, v135, v136",
            "v_cmp_eq_u32 vcc, 0, v135", "v_mov_b32 v142, 0", "v_cndmask_b32 v136, 0, v134, vcc", "v_cmp_eq_u32 vcc, 1, v135", "v_mov_b32 v143, 0",
            "v_cndmask_b32 v137, 0, v134, vcc", "v_accvgpr_write_b32 a0, v136", "v_accvgpr_write_b32 a2, v136", "v_accvgpr_write_b32 a1, v137",
            "v_accvgpr_write_b32 a3, v137", "v_mov_b32 v148, 0", "v_mov_b32 v149, 0")]
    m = 9
    Ss = []
    for n in range(8):
        S = Sched(a, gmf(n)); Ss.append(S)
        rds = []
        for f in range(8): rds += rd_g(Greg((n + 1) & 1, f), n + 1, f)
        for r, p in zip(rds, RDPOS): S.v(p, r)
        for gp in ([(6, 11), (16, 19)] if n < 4 else [(6, 11)]): wo_at(S, m, gp); m += 1
        if n % 4 == 1: end_sync(a, S, {1: 12, 5: 16}[n], 0)
        else: S.h(22, lambda: a.wait(lg="all"))
        if n == 2: S.v(20, f"ds_read_b32 v{TM+2}, v{TM+1}")
        if OPT["ibg"] and n == OPT["ibn"]: S.v(16, lambda: a._emit(f"global_load_dword v132, v3, s[28:29]"))
        if OPT["ibg"] and n == min(7, OPT["ibn"] + 3): S.v(16, lambda: a._emit(f"global_load_dword v133, v157, s[28:29]"))
        if n == 7:
            S.v(19, f"v_readfirstlane_b32 s{sTmp}, v{TM+2}"); S.h(21, f"s_cmp_lg_u32 s{sTmp}, 0")
    assert m == 21
    n, k = 0, 0
    for atom in setup_:
        while True:
            S = Ss[n]
            ok = (not S.hold[k]) if atom[0].startswith("s_") else free_slots(S)[k] > 0
            if atom[0].startswith("s_") and len(atom) > 1 and free_slots(S)[k] == 0: ok = False
            if ok: break
            k += 1
            if k == 24: n += 1; k = 0
        for x in atom: (S.h if x.startswith("s_") else S.v)(k, x)
        if not atom[0].startswith("s_") or True:
            k += 1
            if k == 24: n += 1; k = 0
    assert (n, k) < (7, 18), (n, k)
    for n in range(7):
        epi = fill_ops(Ss[n], epi)
        if n == 5: assert len(epi) <= 72 - 8, len(epi)
    assert not epi, len(epi)
    if OPT["mred"]: assert not fill_ops(Ss[7], sel_)
    for n in range(8):
        a.c(f"G first half, sub-step {n}")
        Ss[n].emit(gmf(n + 1)[0])
    a.e("s_branch L_gx" if OPT["xmode"] == 1 else "s_cbranch_scc1 L_gx")
    NP = {0: 4, 1: 3}
    def cvs(h): return [f"v_cvt_pk_bf16_f32 v{STG + 6*i + 2*j + x}, v{Ga(h,i,j)+2*x}, v{Ga(h,i,j)+2*x+1}" for i in range(NP[h]) for j in range(3) for x in range(2)]
    def rops(h, k):
        o = []
        for r in range(6):
            s = LD[h] + 6*k + r; t = TM + 2 * (r & 1)
            src = Ga(1, 3, r >> 1) + 2 * (r & 1) if (h, k) == (0, 0) else ACC + 2*r
            o += [f"v_lshlrev_b32 v{t}, 16, v{s}", f"v_and_b32 v{t+1}, s{sS8}, v{s}",
                  f"v_add_f32 v{ACC+2*r}, v{src}, v{t}", f"v_add_f32 v{ACC+2*r+1}, v{src+1}, v{t+1}"]
        return o
    def ldreg(h, k):
        if not OPT["mred"]: return LD[h] + 6*k, LD[h] + 6*k + 4
        if (h, k) == (1, 2): return 144, 150
        b_ = LD[h] + 12 * (k >> 1)
        return (b_ + 6, b_) if k & 1 else (b_ + 2, b_ + 10)
    def rmf(h, pr):
        q_ = (142, 146, 148) if (h, pr) == (1, 1) else [LD[h] + 12*pr + 4*j for j in range(3)]
        return [mf(ACC + 4*j, ("a", 0), q_[j], Ga(1, 3, j) if (h, pr) == (0, 0) else ACC + 4*j) for j in range(3)]
    rcv = [f"v_cvt_pk_bf16_f32 v{PK+r}, v{ACC+2*r}, v{ACC+2*r+1}" for r in range(6)]
    bps = [f"ds_bpermute_b32 v{PK+r}, v11, v{PK+r}" for r in range(6)] if OPT["bp"] else []
    def rst(j): return ([f"s_add_u32 s{sOff2}, s{sOo}, {j*40960}"], f"buffer_store_dwordx2 {vr(PK+2*j,2)}, v{vOA}, {sr(sOut,4)}, s{sOff2} offen{['', ' sc1', ' nt', ' sc0 sc1'][OPT['opol']]}")
    chk_cmp = [f"v_cmp_gt_u32 vcc, v{vVal}, v{vPoll}"]
    poll = f"buffer_load_dword v{vPoll}, v{vFi}, {sr(sF,4)}, 0 offen sc1"

    def g_phase(fast):
        pol = ("", " nt", " sc0")[OPT["xs"]] if fast else " sc1"
        la, lb = (vSA, vSB) if fast else (vLA, vLB)
        def xst(h, i):
            o4, o2 = (2, 0) if OPT["mred"] and i & 1 else (0, 4)
            return [([], f"buffer_store_dwordx4 {vr(STG+6*i+o4,4)}, v{vSA}, {sr(sP,4)}, s{sDst+4*h+i} offen{pol}"),
                    ([], f"buffer_store_dwordx2 {vr(STG+6*i+o2,2)}, v{vSB}, {sr(sP,4)}, s{sDst+4*h+i} offen{pol}")]
        def xld(h, k): return [([f"s_mov_b32 s{sOff2}, {(4*h+k)*6144}"], f"buffer_load_dwordx4 {vr(ldreg(h,k)[0],4)}, v{la}, {sr(sPr,4)}, s{sOff2} offen sc1"),
                               ([], f"buffer_load_dwordx2 {vr(ldreg(h,k)[1],2)}, v{lb}, {sr(sPr,4)}, s{sOff2} offen sc1")]
        flag = f"buffer_store_dword v{vVal}, v{vFl}, {sr(sF,4)}, 0 offen{pol}"
        def check():
            l0, l1 = newlabel("sp"), newlabel("ok")
            if not OPT["nosync"]: a.e(f"s_cbranch_vccnz {l0}")
            a.e(f"{l1}:")
            spins.append((l0, l1, chk_cmp, poll))
        if fast: a.e(f"v_add_u32 v{vSA}, {5*XP}, v{vSA}"); a.e(f"v_add_u32 v{vSB}, {5*XP}, v{vSB}")
        else: a.e(f"v_subrev_u32 v{vLA}, {XP}, v{vSA}"); a.e(f"v_subrev_u32 v{vLB}, {XP}, v{vSB}")
        a.e(f"s_branch L_gmid{int(fast)}")
        late = []
        def body():
            del late[:]
            Ss = [Sched(a, gmf(n) + (rmf(n // 8, 0) + rmf(n // 8, 1) if OPT['mred'] and n % 8 == 6 else [])) for n in range(16)]
            cap = [[2] * 24 for _ in range(16)]
            ops = []
            def vmem(n, g_, steps, kind):
                if isinstance(kind, tuple) and kind[0] == "T": place_tile(a, Ss[n], steps, g_)
                else:
                    for (pre, d), x in zip(steps, g_):
                        for y in pre: Ss[n].h(x, y)
                        Ss[n].v(x, lambda d=d: a._emit(d))
                for x in g_: cap[n][x] = 0; ops.append((n, x, kind))
            tpos = {0: [(6, 11)], 1: [(6, 11)], 4: [(6, 11), (16, 19)], 5: [(11, 16), (19, 22)], 6: [(6, 11)], 7: [(11, 16)]}
            m = 13
            for n in range(16):
                h, t = divmod(n, 8); S = Ss[n]
                rds = []
                for f in range(8): rds += rd_g(Greg((n + 1) & 1, f), n + 1, f)
                for r, p in zip(rds, RDPOS): S.v(p, r); cap[n][p] -= 1
                cap[n][23] = 0 if n % 4 == 1 else 1; cap[n][20] = min(cap[n][20], 1); cap[n][21] = min(cap[n][21], 1)
                for gp in tpos.get(t, []):
                    st, post = wo_tile(m)
                    if m == 16:
                        S.h(gp[0] - 4, f"s_cmp_eq_u32 s{sGc}, 4"); S.h(gp[0] - 3, f"s_cselect_b32 s{sWo+2}, 0, s{sWo+2}")
                    vmem(n, gp, st, ("T", m))
                    for x in post: S.h(gp[1], x)
                    m += 1
                if t == 2:
                    xs = [s_ for i in range(NP[1-h]) for s_ in xst(1 - h, i)] + [s_ for k in range(NP[h]) for s_ in xld(h, k)]
                    if OPT["xord"]:
                        st_ = xs[:2*NP[1-h]]; ld_ = xs[2*NP[1-h]:]
                        pat = {6: "SLSLLSL" * 2, 8: "SSLSLSL" + "SSLSLSL"}[len(st_)] if OPT["xord"] == 1 else {6: "SSLLSLL" * 2, 8: "SSSLSLL" * 2}[len(st_)]
                        xs = [(st_ if c_ == "S" else ld_).pop(0) for c_ in pat]
                    pos = [(n + d, g_) for d in (0, 1) for g_ in (6, 11, 16, 19, 20, 21, 22)]
                    for s_, (n2, g_) in zip(xs, pos): vmem(n2, (g_,), [s_], ("X", h))
                if t == 5: vmem(n, (6,), [([], flag)], "F"); S.v(4, f"v_add_u32 v{vVal}, 1, v{vVal}"); cap[n][4] -= 1
                if t == 7: vmem(n, (6,), [([], poll)], ("P", h))
            assert m == 29
            if OPT["opos"] == 0: vmem(4, (20, 21, 22), [rst(j) for j in range(3)], "O")
            else:
                for j, (n2, g_) in enumerate(((6, 16), (8, 16), (14, 16)) if OPT["opos"] == 1 else ((6, 16), (7, 21), (8, 19))): vmem(n2, (g_,), [rst(j)], "O")
            for x, (n2, g_) in zip(bps, ((2, 23), (3, 23), (4, 22), (4, 23), (6, 22), (6, 23))): Ss[n2].v(g_, x); cap[n2][g_] = max(0, cap[n2][g_] - 1)
            ops.sort(key=lambda x: (x[0], x[1]))
            ops2 = ops + [(n + 16, g_, k) for n, g_, k in ops]
            def younger(pt, n, g_): return len([o for o in ops2 if pt < (o[0], o[1]) < (n, g_)])
            for h in range(2):
                pt = max((o[0], o[1]) for o in ops if o[2] == ("X", h))
                Ss[8*h + 5].h(2, lambda c=younger(pt, 8*h + 5, 2): vmw(a, c))
                pt = [(o[0], o[1]) for o in ops if o[2] == ("P", h)][0]
                nc = 8*h + 9
                Ss[nc % 16].h(16, lambda c=younger(pt, nc, 16): vmw(a, c))
                Ss[nc % 16].v(16, lambda: a._emit(chk_cmp[0])); cap[nc % 16][16] -= 1
                Ss[nc % 16].h(20, check)
            def fill(lst, n, g_, rec=None):
                for op in lst:
                    while cap[n % 16][g_] <= 0:
                        g_ += 1
                        if g_ == 24: n += 1; g_ = 0
                    if not OPT["norv"]: Ss[n % 16].v(g_, lambda op=op: a._emit(op))
                    cap[n % 16][g_] -= 1
                    if rec is not None and n >= 16: rec.append(op)
                return n, g_
            e = fill(cvs(1), 0, 1); assert e < (2, 5), e
            e = fill(cvs(0), 8, 1); assert e < (10, 5), e
            if OPT["mred"]: fill(rcv, 15, 7)
            else:
                e = fill(rops(0, 0), 5, 2); assert e < (8, 10), e
                e = fill([x for k in range(1, 4) for x in rops(0, k)], *e); assert e < (13, 2), e
                e = fill([x for k in range(3) for x in rops(1, k)] + rcv, 13, 2, late); assert e < (18, 22), e
            S = Ss[7]
            if not fast: S.v(19, f"v_add_u32 v{vSA}, {XP}, v{vSA}"); S.v(20, f"v_add_u32 v{vSB}, {XP}, v{vSB}")
            S = Ss[15]
            S.h(0, f"s_cmp_ge_u32 s{sGc}, 1")
            S.h(1, f"s_cselect_b32 s{sOut+2}, {191*2560 + 1024 + 32}, 0")
            S.h(2, f"s_add_u32 s{sOo}, s{sOo}, 256")
            S.h(3, f"s_mov_b32 s{sPr+2}, {5*XP + XD}")
            if not fast:
                S.v(19, f"v_add_u32 v{vLA}, {XP}, v{vLA}"); S.v(20, f"v_add_u32 v{vLB}, {XP}, v{vLB}")
            S.h(18, f"s_add_u32 s{sGc}, s{sGc}, 1")
            S.h(19, f"s_cmp_lt_u32 s{sGc}, 5")
            for n in range(16):
                a.c(f"G sub-step {n}")
                if n == 8:
                    assert not a.lg
                    a.e(f"L_gmid{int(fast)}:")
                if n % 4 == 1:
                    tid = n + 5 + 16
                    pt = max((o[0], o[1]) for o in ops2 if o[2] == ("T", tid if tid < 29 else tid - 16) and (o[0] < 16) == (tid < 29))
                    cnt = len([o for o in ops2 if pt < (o[0], o[1]) < (n + 16, 22) and (o[0] >= 16 + 8 * (n // 8) or (isinstance(o[2], tuple) and o[2][0] == "T"))])
                    end_sync(a, Ss[n], min(cnt, 63), 0)
                else:
                    def w():
                        k = min(len(a.lg), OPT['gkeep']); a.raw_wait(f"s_waitcnt lgkmcnt({k})"); a.lg = a.lg[len(a.lg) - k:] if k else []
                    Ss[n].h(22, w)
                Ss[n].emit(gmf(n + 1)[0])
        lab = "L_gl_fast" if fast else "L_gl_far"
        if OPT["qprof"] == 2 and fast: stamp(a, 5); stamp(a, 6, False)
        a.e(".p2align 6")
        a.e(f"{lab}:")
        if OPT["qprof"] == 4: stamp_dyn(a, 4, sGc, 5)
        a.lg = []
        mark = len(a.ins); nops0 = a.nops; ns = len(spins)
        body(); lg_end = list(a.lg)
        del a.ins[mark:]; a.nops = nops0; del spins[ns:]
        body(); assert a.lg == lg_end
        a.e(f"s_cbranch_scc1 {lab}")
        if OPT["qprof"] == 2 and fast: stamp(a, 7); stamp(a, 8, False)
        if OPT["qprof"] == 4: stamp(a, 3)
        a.c("tail")
        for x in cvs(1): a.e(x)
        stamp(a, 2)
        vmw(a, 2)
        a._emit(chk_cmp[0]); a._emit("s_nop 4"); check()
        for i in range(3): emit_tile(a, xst(1, i))
        def ntv(st): return [(p_, d_ + " nt") if OPT["tl"] & 1 else (p_, d_) for p_, d_ in st]
        for k in range(4): emit_tile(a, ntv(xld(0, k)))
        for op in late + bps: a._emit(op)
        vmw(a, 8)
        a.e(f"v_add_u32 v{vVal}, 1, v{vVal}")
        a._emit(flag)
        early_out = not OPT["tord"]
        if early_out:
            a.raw_wait("s_waitcnt lgkmcnt(0)"); emit_tile(a, [rst(j) for j in range(3)])
        for k in range(4):
            vmw(a, 2 * (3 - k) + (4 if early_out else 1))
            for op in (rops(0, k) if not OPT["mred"] else rmf(0, k >> 1) if k & 1 else []): a._emit(op)
            if k == (3 if OPT["mred"] else 2): a._emit(poll)
        if fast and OPT["cln"] & 1: a._emit(f"global_store_dword v3, v{vVal}, s[28:29] sc1")
        vmw(a, 1 if fast and OPT["cln"] & 1 else 0)
        a._emit(chk_cmp[0]); a._emit("s_nop 4"); check()
        for k in range(3): emit_tile(a, ntv(xld(1, k)))
        if not early_out:
            a.raw_wait("s_waitcnt lgkmcnt(0)"); emit_tile(a, [rst(j) for j in range(3)])
        a.e(f"s_mov_b32 s{sOo}, 1024")
        for k in range(3):
            vmw(a, 2 * (2 - k) + (0 if early_out else 3))
            for op in (rops(1, k) if not OPT["mred"] else rmf(1, k - 1) if k else []): a._emit(op)
        if fast and OPT["cln"] & 4: a._emit(f"global_store_dword v3, v{vVal}, s[28:29] sc1")
        if fast and OPT["cln"] & 2: a._emit(f"global_store_dword v157, v{vVal}, s[28:29] sc1")
        for op in rcv + bps: a._emit(op)
        a.raw_wait("s_waitcnt lgkmcnt(0)")
        emit_tile(a, [rst(j) for j in range(3)])
    g_phase(True)
    a.e("L_fin:")
    stamp(a, 9, False); stamp(a, 10)
    if OPT["leak"] >= 0:
        k = OPT["leak"]
        if k == 0: a.e("s_mov_b32 s79, 0")
        elif k == 9: a.e("s_sub_u32 s79, s98, s82"); a.e("s_lshr_b32 s79, s79, 4")
        else: a.e(f"s_sub_u32 s79, s{80+2*k}, s80")
        a.e("s_add_u32 s79, s79, 15000")
        if OPT["leakwg"] == 1: a.e("s_cmp_lt_u32 s2, 8"); a.e("s_cselect_b32 s79, s79, 0")
        if OPT["leakwg"] == 2: a.e("s_cmp_ge_u32 s2, 248"); a.e("s_cselect_b32 s79, s79, 0")
        if OPT["leakwg"] in (4, 5): a.e("s_and_b32 s76, s2, 1"); a.e("s_cselect_b32 s79, s79, 0" if OPT["leakwg"] == 5 else "s_cselect_b32 s79, 0, s79")
        if OPT["leakwg"] == 3: a.e("s_cmp_eq_u32 s2, 0"); a.e("s_cselect_b32 s79, s79, 0")
        a.e("L_leak:")
        a._emit("s_memrealtime s[76:77]"); a.raw_wait("s_waitcnt lgkmcnt(0)")
        a.e("s_sub_u32 s76, s76, s80"); a.e("s_cmp_lt_u32 s76, s79"); a.e("s_cbranch_scc1 L_leak")
    stamp_store(a, "L_end", 0)
    dbg_store(a)
    a.e("L_end:")
    a.e("s_endpgm")
    nsp = len(spins)
    for s_ in list(spins): spin_loop(*s_)
    a.e("L_hot_end:")
    a.e(".p2align 6")
    a.e("L_gx:")
    g_phase(False)
    a.e("s_branch L_fin")
    for s_ in list(spins[nsp:]): spin_loop(*s_)
    a.reset_counters()
    a.e("L_slow:")
    a.raw_wait("s_waitcnt vmcnt(0) lgkmcnt(0)")
    vKo, vVo, t0, t1 = 10, 11, P_ + 12, P_ + 13
    a.e("s_nop 7")
    a.e(f"v_and_b32 v{t0}, 7, v0"); a.e(f"v_lshlrev_b32 v{t0}, 10, v{t0}")
    a.e(f"v_bfe_u32 v{t1}, v0, 3, 1"); a.e(f"v_lshl_add_u32 v{t0}, v{t1}, 8, v{t0}")
    a.e(f"v_lshrrev_b32 v{t1}, 4, v0"); a.e(f"v_lshl_add_u32 v{vKo}, v{t1}, 4, v{t0}")
    a.e(f"v_bfe_u32 v{t0}, v0, 4, 1"); a.e(f"v_lshlrev_b32 v{t0}, 12, v{t0}")
    a.e(f"v_lshrrev_b32 v{t1}, 5, v0"); a.e(f"v_lshl_add_u32 v{t0}, v{t1}, 8, v{t0}")
    a.e(f"v_and_b32 v{t1}, 15, v0"); a.e(f"v_lshl_add_u32 v{vVo}, v{t1}, 1, v{t0}")
    for j in range(3): a.e(f"v_mov_b32 v{vT+j}, 0xff800000")
    def slow_qk(cinit):
        for u, kf in ((0, KF), (1, VF)):
            for ks in range(4): a.e(f"buffer_load_dwordx4 {vr(kf + 4*ks,4)}, v{vKo}, {sr(sK,4)}, s{sT2} offen offset:{u*512 + ks*64}")
        for u, kf in ((0, KF), (1, VF)):
            for j in range(3):
                for ks in range(4):
                    a.e(mf(Sr(u, j), kf + 4*ks, Qf(j, ks), (Nm(j) if cinit else None) if ks == 0 else Sr(u, j)))
    a.e(f"s_and_b32 s{sT2}, s{sRot}, 0x60000"); a.e(f"s_xor_b32 s{sT2}, s{sT2}, s{sCur}")
    a.e(f"s_add_u32 s{sT3}, s{sT2}, 131072")
    a.e("L_slow_p1:")
    slow_qk(False)
    for j in range(3):
        for u in range(2):
            s = Sr(u, j)
            a.e(f"v_max3_f32 v{vT+j}, v{vT+j}, v{s}, v{s+1}")
            a.e(f"v_max3_f32 v{vT+j}, v{vT+j}, v{s+2}, v{s+3}")
    a.e(f"s_add_u32 s{sT2}, s{sT2}, 8192")
    a.e(f"s_cmp_lt_u32 s{sT2}, s{sT3}")
    a.e("s_cbranch_scc1 L_slow_p1")
    rowred(a, "v_max_f32", [vT, vT+1, vT+2], [Nm(j) for j in range(3)])
    for j in range(3):
        for r in range(4): a.e(f"v_sub_f32 v{Nm(j)+r}, 0, v{vT+j}")
    for r in range(96): a.e(f"v_mov_b32 v{O_+r}, 0")
    for r in range(12): a.e(f"v_accvgpr_write_b32 a{192+r}, 0")
    a.e(f"s_sub_u32 s{sT2}, s{sT3}, 131072")
    a.e("L_slow_p2:")
    slow_qk(True)
    for u in range(2):
        for k in range(12): a.e(ex(u, k))
    for u in range(2):
        for c in range(6): a.e(cv(u, 0, c))
    for half, fr in ((0, KF), (1, VF)):
        for hi in range(2):
            for i in range(4):
                for e in range(2):
                    for rp in range(2):
                        r = 2*rp + hi
                        a.e(f"buffer_load_ushort v{(S_ if hi else fr) + 4*i + 2*e + rp}, v{vVo}, {sr(sV,4)}, s{sT2} offen offset:{r*1024 + e*512 + (4*half+i)*32}")
        a.wait(vm="all")
        for x in range(16): a.e(f"v_lshl_or_b32 v{fr+x}, v{S_+x}, 16, v{fr+x}")
    for m in sm(2): a.e(m)
    for half, fr in ((0, KF), (1, VF)):
        for m in pv(2, half, fr): a.e(m)
    a.e(f"s_add_u32 s{sT2}, s{sT2}, 8192")
    a.e(f"s_cmp_lt_u32 s{sT2}, s{sT3}")
    a.e("s_nop 7")
    a.e("s_cbranch_scc1 L_slow_p2")
    for j in range(3): a.e(f"v_accvgpr_read_b32 v{vT+j}, a{La(j)[1]}")
    for j in range(3): a.e(f"v_rcp_f32 v{vT+j}, v{vT+j}")
    a.e(f"s_cmp_eq_u32 s{sR}, 3"); a.e("s_cbranch_scc1 L_g")
    for x in epi_ops(0)[:NPRE]: a.e(x)
    a.e("s_branch L_epi")
    return a

HDR = f"""; Fused attention blocks A and B in one launch (generated by my own scheduling script, all instruction placement by hand-written rules).
; One workgroup per CU (4 waves x 512 registers, 48 query rows per wave) owns 4 heads of one (branch, batch):
;   Q projection -> softmax attention -> output-projection partial (K = 512); the 8 workgroups of a batch then
;   reduce-scatter their partials through d_ws (L2-local when all 8 report the same XCC id, write-through otherwise).
; kernarg: 0 A_x, 8 A_k, 16 A_v, 24 A_wq, 32 A_wo, 40 B_x, 48 B_k, 56 B_v, 64 B_wq, 72 B_wo, 80 out, 88 debug, 96 ws
; @launch grid=(256,1,1) block=(256,1,1) lds={LDS}
.amdgcn_target "amdgcn-amd-amdhsa--gfx950"
.text
"""
def kern(name, a):
    return f".globl {name}\n.p2align 8\n.type {name},@function\n{name}:\n" + a.text()
def desc(name, nv, acc, ns):
    return f""".p2align 6
.amdhsa_kernel {name}
  .amdhsa_next_free_vgpr {nv}
  .amdhsa_next_free_sgpr {ns}
  .amdhsa_accum_offset {acc}
  .amdhsa_group_segment_fixed_size 0
  .amdhsa_kernarg_size 104
  .amdhsa_user_sgpr_count 2
  .amdhsa_user_sgpr_kernarg_segment_ptr 1
  .amdhsa_system_sgpr_workgroup_id_x 1
  .amdhsa_float_denorm_mode_32 3
.end_amdhsa_kernel
"""
if __name__ == "__main__":
    a = main_kernel()
    if OPT["pro2"]:
        ix = lambda t: [k for k, i in enumerate(a.ins) if i.text == t][0]
        i0, i1, i2 = ix("L_p0:"), ix("L_p1:"), ix("L_hot_end:") + 1
        a.ins = a.ins[:i0] + a.ins[i1:i2] + [Ins(".p2align 6")] + a.ins[i0:i1] + [Ins("L_p0end:")] + a.ins[i2:]
    if OPT["nodma"] & 1: a.ins = [i for i in a.ins if not (i.kind == "dma" and " v1, " in i.text)]
    if OPT["nodma"] & 2: a.ins = [i for i in a.ins if not (i.kind == "dma" and " v1, " not in i.text)]
    if OPT["nodma"] & 4: a.ins = [i for i in a.ins if not (i.kind == "store" and ("v152," in i.text or "v153," in i.text))]
    if OPT["nodma"] & 8: a.ins = [i for i in a.ins if not (i.kind == "store" and "v159," in i.text)]
    if OPT["nox2"]: a.ins = [i for i in a.ins if not (i.kind == "vmem" and ("v121," in i.text))]
    if OPT["noload"]: a.ins = [i for i in a.ins if not (i.kind == "vmem" and ("v152," in i.text or "v153," in i.text))]
    if OPT["x1"]:
        out = []; on = False; cnt = 0
        for i in a.ins:
            if i.text in ("L_epi:", "L_q2b:") or (OPT["x1"] & 2 and i.text in ("; Q conversion", "; Q2 conversion")): on = True
            if i.op in ("s_barrier",) or i.kind == "mfma" or i.text == "L_enter:": on = False
            out.append(i)
            if on and i.kind == "valu":
                cnt += 1
                if cnt % 2 == 0: out.append(Ins(f"v_mfma_f32_16x16x32_bf16 a[{240+4*(cnt//2%4)}:{243+4*(cnt//2%4)}], a[144:147], a[{96+4*(cnt//2%8)}:{99+4*(cnt//2%8)}], 0"))
        a.ins = out
    if OPT["x2"]:
        out = []; on = False
        for i in a.ins:
            if i.text == "L_q2:": on = True
            if i.text == "L_q2l:": on = False
            if on and i.kind == "mfma": out.append(Ins(f"s_nop {OPT['x2']}"))
            out.append(i)
        a.ins = out
    if OPT["abl"]:
        cnt = [0]
        def drop2(i):
            if OPT["abl"] & 1 and i.op == "ds_read_b64_tr_b16" and (", v4 " in i.text or ", v5 " in i.text):
                cnt[0] += 1; return (cnt[0] // 2) % 2 == 1
            if OPT["abl"] & 2 and i.kind == "lds" and (", v2 " in i.text or ", v3 " in i.text):
                cnt[0] += 1; return (cnt[0] // 2) % 2 == 1
            if OPT["abl"] & 4 and i.kind == "mfma" and "a[204:207], v[" in i.text and i.text.split()[1].startswith(("a[192", "a[196", "a[200")): return True
            if OPT["abl"] & 8 and i.op in ("v_lshlrev_b32", "v_and_b32", "v_add_f32") and ("v120" in i.text or "v121" in i.text or "v122" in i.text or "v123" in i.text) and "v0" not in i.text.replace("v0,", "v0 ").split(): return True
            return False
        a.ins = [i for i in a.ins if not drop2(i)]
    if OPT["gpol"] or OPT["kpol"]:
        out = []
        for i in a.ins:
            if i.kind == "dma" and " nt " not in i.text and OPT["gpol"]: i = Ins(i.text.replace(" lds", [" ", " sc1", " sc0", " nt", " sc0 sc1"][OPT["gpol"]] + " lds"))
            elif i.kind == "dma" and " nt " in i.text and OPT["kpol"]: i = Ins(i.text.replace(" nt lds", [" ", " sc1 nt", " sc0 nt", " sc0 sc1 nt"][OPT["kpol"]] + " lds"))
            out.append(i)
        a.ins = out
    if OPT["xb"]:
        out = []; on = False; c = 0
        for i in a.ins:
            if i.text.startswith("; Q") and "sub-step" in i.text: on = True
            if "conversion" in i.text: on = False
            if on and i.op == "s_barrier":
                c += 1
                if c % OPT["xb"]: continue
            out.append(i)
        a.ins = out
    if OPT["xa"]:
        i0 = [k for k, i in enumerate(a.ins) if i.text == "; stage 0 kv"][0]; i1 = [k for k, i in enumerate(a.ins) if i.text == "; stage 15 kv"][0]
        def drop(i):
            if OPT["xa"] & 1 and i.op == "s_cbranch_vccnz": return True
            if OPT["xa"] & 2 and i.op in ("s_mul_i32", "s_bfe_u32", "s_xor_b32", "s_getreg_b32", "s_cselect_b32", "s_cselect_b64", "s_sub_u32", "s_cmp_gt_u32", "s_cmp_gt_i32", "s_cmp_le_u32"): return True
            if OPT["xa"] & 4 and i.op == "s_barrier": return True
            if OPT["xa"] & 8 and i.op == "s_waitcnt" and "lgkm" in i.text: return True
            if OPT["xa"] & 16 and i.op == "s_mul_i32": return True
            return False
        a.ins = a.ins[:i0] + [i for i in a.ins[i0:i1] if not drop(i)] + a.ins[i1:]
    if OPT["strip"] == 2:
        i0 = [k for k, i in enumerate(a.ins) if i.text == "L_head:"][0]; i1 = [k for k, i in enumerate(a.ins) if i.text == "L_epi:"][0]
        a.ins = a.ins[:i0] + [Ins("s_nop 4") if i.kind == "mfma" else i for i in a.ins[i0:i1] if i.kind not in ("lds", "trans", "valu")] + a.ins[i1:]
    if OPT["strip"] == 1:
        i0 = [k for k, i in enumerate(a.ins) if i.text == "L_head:"][0]; i1 = [k for k, i in enumerate(a.ins) if i.text == "L_epi:"][0]
        a.ins = a.ins[:i0] + [i for i in a.ins[i0:i1] if i.kind not in ("mfma", "lds", "trans", "valu")] + a.ins[i1:]
    ns = 102 if OPT["stamp"] else NSGPR
    open(sys.argv[1], "w").write(HDR + kern(NAME + "_kernel", a) + '.section .rodata,"a"\n' + desc(NAME + "_kernel", 512, 256, ns))
    print("instrs", len(a.ins), "nops", a.nops)
```

```python
import sys, math, struct, re
from asmlib import *

NAME = "concat_heads__mha_block_cached__gqa_block_cached__near_ridge"
def f32(x): return "0x%08x" % struct.unpack("<I", struct.pack("<f", x))[0]
OPT = dict(stamp=0, nodma=0, nocheck=0, touch=0, forceslow=0, map84=0, first=6, rot=3, strip=0, cyc=0, typ=2, track=1, nosync=0, sleep=1, opos=1, lag=4, noack=0, noload=0, stpol=1, nolw=0, krot=1, hrot=4, emu3=0, ramp=1, q2c=1, q4c=1, cupos=1, la4=7, ls4=0, k2=0, k4=1, w2=4, qb2=1, hx=0, sh3=0, gpol=0, kpol=0, pk=1, cln=0, xb=0, mred=1, xord=1, vmw=8, pro2=1, bp=1, tord=1, abl=0, zz=1, x1=0, x2=0, opol=2, tl=0, xs=0, kvconv=1, sh1=1, sh2=1, sh1t=3, lateq=0, gate=1, ibg=1, ibn=4, xa=0, stag=0, fskip=0, cufrom=4, custep=2, cvo=1, woq=1, ibnt=0, ibt=14, ct2=1, inbox0=0, sparse1=1, noinbox=1, cthead=3, help=3, latekv=1, wot=0, lmax=4, thr=4, thr2=2, dyn=1, xmode=0, gkeep=0, leak=-1, leakwg=0, st0=0, norv=0, now0=0, gcap=0, qprof=0, la=7, ldpol=1, lmode=0, ldfix=0, nox2=0, wnt=0, xnt=0, t0x=0, t0w=0, ctouch=3, dbgout=0)
for a_ in sys.argv[2:]:
    k_, v_ = a_.split("="); assert k_ in OPT, k_; OPT[k_] = int(v_)

def R(x, n):
    t, i = x if isinstance(x, tuple) else ("v", x)
    return f"{t}{i}" if n == 1 else f"{t}[{i}:{i+n-1}]"
def off(x, d): return (x[0], x[1] + d) if isinstance(x, tuple) else x + d
def mf(d, a, b, c):
    return f"v_mfma_f32_16x16x32_bf16 {R(d,4)}, {R(a,4)}, {R(b,4)}, {'0' if c is None else R(c,4)}"

def zj(i): return (2, 1, 0) if (i & 1) and OPT["zz"] else (0, 1, 2)
def zk(j): return (3, 2, 1, 0) if (j & 1) and OPT["zz"] else (0, 1, 2, 3)
TILE = 8448
VB = 8 * TILE
XB = 16 * TILE
LDS = XB + 24576
NSLOT = 8
CH = NSLOT * 1024
PART = 240 * CH
STAMP_AT = 128 << 20
FLG = 120 << 20
XD = 7 * 6144
XP = 8 * XD
XG = 6 * XP
SPIN_MAX = 2000000
def slot(m):
    m %= 16
    return (m & 1), (m >> 1) * TILE

vKV, vKA, vVA, vWAl, vWAh, vW = 1, 2, 3, 4, 5, 6
vT = 7
QF, NM, S_, P_, KF, VF, O_ = 12, 60, 72, 96, 120, 136, 160
vX0, vX1, vXA0, vXA1 = 156, 157, 158, 159
vTo, vD, vPt, vWo = 152, 153, 154, 155
def Qf(j, ks): return QF + 16 * j + 4 * ks
def Nm(j): return NM + 4 * j
def Sr(u, j): return S_ + 12 * u + 4 * j
def Pr(buf, j): return P_ + 12 * buf + 4 * j
def Or(i, j): return O_ + 12 * i + 4 * j
def Wreg(buf, i): return 12 + 32 * buf + 4 * i
def Xreg(buf, j, s): return 76 + 24 * buf + 8 * j + 4 * s
def Qacc(pos, i, j):
    k = 12 * i + 4 * j
    if pos == 0: return ("a", k)
    if pos == 1: return ("a", 96 + k)
    if pos == 2: return ("a", 192 + k) if k < 64 else 124 + (k - 64)
    return O_ + k
QBANK = {3: 0, 2: 48, 1: 96}
OBANK = {0: 144, 1: 96, 2: 48, 3: 0}
def La(j): return ("a", 192 + 4 * j)
ONES = ("a", 204)
def Greg(buf, i): return ("a", 192 + 32 * buf + 4 * i)
sX, sW, sK, sV, sWo, sP = 32, 36, 40, 44, 48, 52
sWv, sKVL, sWL, sXL, sOff, sOff2, sTmp, sR, sCur, sT2, sT3 = 60, 61, 62, 63, 64, 65, 66, 67, 68, 69, 70
sB, sU, sBr, sG, sXo, sPo = 71, 72, 73, 74, 75, 76
sCX, sNX, sLast, sS8, sWoB, sTask, sTyp = 56, 57, 58, 59, 77, 30, 31
sWq, sGc = 26, 27
sWq1, sJ, sRot, sPM, sPK = 20, 21, 22, 23, 24
sF, sD0, sD1 = 8, 12, 13
sJh, sXo1, sPre = 25, 77, 30
sKc, sLag = 57, 76
sThN = 62
sWL = sKVL
sThr = 56
sBL, sMin, sKn, sMv, sMk, sKVv, sC1 = 57, 76, 23, 58, 59, 3, 25
sH = [4, 5, 6, 7]
NSGPR = 80

def stamp(a, k, real=True):
    if not OPT["stamp"]: return
    lg = list(a.lg)
    a.raw_wait("s_waitcnt lgkmcnt(0)")
    if OPT["cyc"] and 2 <= k <= 8: real = False
    a._emit(f"{'s_memrealtime' if real else 's_memtime'} s[{80+2*k}:{81+2*k}]")
    a.raw_wait("s_waitcnt lgkmcnt(0)")
def stamp_dyn(a, base, sidx, n):
    if not OPT["stamp"]: return
    a.raw_wait("s_waitcnt lgkmcnt(0)")
    a._emit("s_memtime s[78:79]" if OPT["cyc"] else "s_memrealtime s[78:79]")
    a.raw_wait("s_waitcnt lgkmcnt(0)")
    for q in range(n):
        a.e(f"s_cmp_eq_u32 s{sidx}, {q}")
        a.e(f"s_cselect_b32 s{80+2*(base+q)}, s78, s{80+2*(base+q)}")
def stamp_store(a, label, base):
    if not OPT["stamp"]: return
    a.e(f"s_cmp_lg_u32 s{sWv}, 0")
    a.e(f"s_cbranch_scc1 {label}")
    for k in range(11): a.e(f"v_mov_b32 v{16+k}, s{80+2*k}")
    a.e("s_lshl_b32 s78, s2, 6"); a.e(f"s_add_u32 s78, s78, {STAMP_AT + base*64}")
    a.e("v_mov_b32 v28, s78")
    a.e("s_mov_b64 exec, 1")
    a.e("global_store_dwordx4 v28, v[16:19], s[28:29]")
    a.e("global_store_dwordx4 v28, v[20:23], s[28:29] offset:16")
    a.e("global_store_dwordx4 v28, v[24:27], s[28:29] offset:32")

def dbg_store(a):
    if not OPT["dbgout"]: return
    l = "L_dbgskip"
    a.e("s_and_b32 s78, s2, 0xdf"); a.e("s_cmp_lg_u32 s78, 5"); a.e(f"s_cbranch_scc1 {l}")
    a.e("s_load_dwordx2 s[24:25], s[0:1], 88")
    for n, k in enumerate((3,4,5,6,7,8,2,10)):
        a.e(f"s_sub_u32 s79, s{80+2*k}, s80"); a.e(f"v_mov_b32 v{32+n}, s79")
    a.e("s_and_b32 s78, s2, 32"); a.e("v_mov_b32 v29, s78")
    a.raw_wait("s_waitcnt lgkmcnt(0)")
    a.e("global_store_dwordx4 v29, v[32:35], s[24:25]")
    a.e("global_store_dwordx4 v29, v[36:39], s[24:25] offset:16")
    a.e(f"{l}:")

def srd(a, d, lo, o, size):
    a.e(f"s_add_u32 s{d}, s{lo}, {o}")
    a.e(f"s_addc_u32 s{d+1}, s{lo+1}, 0")
    a.e(f"s_and_b32 s{d+1}, s{d+1}, 0xffff")
    a.e(f"s_mov_b32 s{d+2}, {size}")
    a.e(f"s_mov_b32 s{d+3}, 0x20000")
_lbl = [0]
def newlabel(p):
    _lbl[0] += 1
    return f"L_{p}_{_lbl[0]}"
class U(str): pass

def ldsbase(m):
    h, o = slot(m); return h * VB + o
def w_tile(m, n, nh=4):
    b = ldsbase(m); base = sWq if n < 4 * nh else sWq1
    rel = ((n % (4 * nh)) // nh) * 262144 + (nh - 1 - n % nh) * 256
    if nh == 4 and OPT["q4c"]: rel = (2 * ((n % 16) >> 3) + (n & 1)) * 262144 + (3 - ((n >> 1) & 3)) * 256
    if nh == 2 and OPT["q2c"]: rel = (2 * ((n % 8) >> 2) + (n & 1)) * 262144 + (1 - ((n >> 1) & 1)) * 256
    pol = ' nt' if OPT['wnt'] else ''
    return [([f"s_xor_b32 s{sOff}, s{base}, {rel}", f"s_add_u32 m0, s{sWL}, {b}"], f"buffer_load_dwordx4 v{vW}, {sr(sW,4)}, s{sOff} offen{pol} lds"),
            ([f"s_xor_b32 s{sOff}, s{base}, {rel + 8192}", f"s_add_u32 m0, s{sWL}, {b + 1032}"], f"buffer_load_dwordx4 v{vW}, {sr(sW,4)}, s{sOff} offen{pol} lds")]
def kv_tile(m, t):
    b = ldsbase(m); s = sV if m & 1 else sK
    assert t < 16
    so = f"s_xor_b32 s{sOff}, s{sCX}, {t * 8192}"
    return [([so, f"s_add_u32 m0, s{sKVL}, {b}"], f"buffer_load_dwordx4 v{vKV}, {sr(s,4)}, s{sOff} offen nt lds"),
            ([f"s_add_u32 m0, s{sKVL}, {b + 32}"], f"buffer_load_dwordx4 v{vKV}, {sr(s,4)}, s{sOff} offen offset:1024 nt lds")]
def unit_pre(base, add):
    return [f"s_add_u32 s{sMv}, s{base}, {add}", f"s_xor_b32 s{sOff}, s{sMv}, s{sRot}", f"s_bfe_u32 s{sMv}, s{sMv}, 0x3000d", f"s_mul_i32 s{sMv}, s{sMv}, {TILE}",
            f"s_add_u32 s{sMk}, s{base}, {add + 8192}", f"s_xor_b32 s{sOff2}, s{sMk}, s{sRot}", f"s_bfe_u32 s{sMk}, s{sMk}, 0x3000d", f"s_mul_i32 s{sMk}, s{sMk}, {TILE}"]
def unit_dma(so_v=None, so_k=None):
    so_v = sOff if so_v is None else so_v; so_k = sOff2 if so_k is None else so_k
    return [([f"s_add_u32 m0, s{sMv}, s{sKVv}"], f"buffer_load_dwordx4 v{vKV}, {sr(sV,4)}, s{so_v} offen nt lds"),
            (["s_add_u32 m0, m0, 32"], f"buffer_load_dwordx4 v{vKV}, {sr(sV,4)}, s{so_v} offen offset:1024 nt lds"),
            ([f"s_add_u32 m0, s{sMk}, s{sKVL}"], f"buffer_load_dwordx4 v{vKV}, {sr(sK,4)}, s{so_k} offen nt lds"),
            (["s_add_u32 m0, m0, 32"], f"buffer_load_dwordx4 v{vKV}, {sr(sK,4)}, s{so_k} offen offset:1024 nt lds")]
def place_guarded(a, S, steps, gaps):
    for (pre, d), g in zip(steps, gaps):
        for k, x in enumerate(pre): S.h(g - len(pre) + k, x)
        def site(d=d):
            l = newlabel("sk"); a.e(f"s_cbranch_vccnz {l}"); a._emit(d); a.e(f"{l}:")
        S.v(g, site)
def wo_tile(m):
    b = ldsbase(m); h, t = divmod(m % 16, 8); r = t >> 1; rel = (t & 1) * 81920
    st = [([f"s_add_u32 s{sOff}, s{sH[r]}, {rel}", f"s_add_u32 m0, s{sKVL}, {b}"], f"buffer_load_dwordx4 v{vWo}, {sr(sWo,4)}, s{sOff} offen lds"),
          ([f"s_add_u32 s{sOff}, s{sH[r]}, {rel + 1280}", f"s_add_u32 m0, s{sKVL}, {b + 1056}"], f"buffer_load_dwordx4 v{vWo}, {sr(sWo,4)}, s{sOff} offen lds")]
    return st, ([f"s_add_u32 s{sH[r]}, s{sH[r]}, s{(sD0, sD1)[h]}"] if t & 1 else [])
def emit_tile(a, steps):
    for pre, d in steps:
        for x in pre: a.e(x)
        a._emit(d)
def place_tile(a, S, steps, gaps):
    for (pre, d), g in zip(steps, gaps):
        for k, x in enumerate(pre): S.h(g - len(pre) + k, x)
        S.v(g, lambda d=d: a._emit(d))
def rd_w(dst, m, i):
    h, o = slot(m); p, u = divmod(i, 2)
    return [f"ds_read_b64_tr_b16 {R(off(dst, 2*e), 2)}, v{(vWAl, vWAh)[h]} offset:{o + e*512 + p*64 + u*8}" for e in range(2)]
def vmw(a, n): a.raw_wait(f"s_waitcnt vmcnt({n})")

def rowred(a, op, regs, tmps):
    for w in (32, 16):
        for r, t in zip(regs, tmps): a.e(f"v_mov_b32 v{t}, v{r}")
        for r, t in zip(regs, tmps): a.e(f"v_permlane{w}_swap_b32 v{r}, v{t}")
        for r, t in zip(regs, tmps): a.e(f"{op} v{r}, v{r}, v{t}")

RDPOS = [0,1,2,3,4,5,7,8,9,10,12,13,14,15,17,18]
RDPOS_X = [2,3,5,6,8,9,11,12,14,15,16,17,18,19,20,21]

def code_touch(a, lo, hi, vaddr, vdst, back=False):
    if not OPT["ctouch"]: return
    l = newlabel("pc")
    a.e("s_getpc_b64 s[14:15]")
    a.e(f"{l}:")
    if back: a.e(f"s_sub_u32 s14, s14, {l}-{lo}"); a.e("s_subb_u32 s15, s15, 0")
    else: a.e(f"s_add_u32 s14, s14, {lo}-{l}"); a.e("s_addc_u32 s15, s15, 0")
    a.e(f"s_lshr_b32 s{sT2}, s2, 3"); a.e(f"s_lshl_b32 s{sT2}, s{sT2}, 2"); a.e(f"s_add_u32 s{sT2}, s{sT2}, s{sWv}"); a.e(f"s_lshl_b32 s{sT2}, s{sT2}, 7")
    a.e(f"v_and_b32 v{vaddr}, 3, v0"); a.e(f"v_lshlrev_b32 v{vaddr}, 14, v{vaddr}"); a.e(f"v_add_u32 v{vaddr}, s{sT2}, v{vaddr}")
    a.e(f"v_min_u32 v{vaddr}, {hi}-{lo}-4, v{vaddr}")
    a._emit(f"global_load_dword v{vdst}, v{vaddr}, s[14:15]")

def inbox_addr(va, vt):
    sc = [f"s_mul_i32 s{sT2}, s{sG}, {XG}", f"s_mul_i32 s{sT3}, s{sU}, {XD}", f"s_add_u32 s{sT2}, s{sT2}, s{sT3}",
          f"s_mul_i32 s{sT3}, s{sWv}, 1536", f"s_add_u32 s{sT2}, s{sT2}, s{sT3}", f"s_add_u32 s{sT2}, s{sT2}, {5*XP}"]
    ve = [f"v_lshrrev_b32 v{va}, 3, v0", f"v_min_u32 v{va}, 6, v{va}", f"v_mul_u32_u24 v{va}, 6144, v{va}", f"v_and_b32 v{vt}, 7, v0",
          f"v_min_u32 v{vt}, 5, v{vt}", f"v_lshl_add_u32 v{va}, v{vt}, 7, v{va}", f"v_add_u32 v{va}, s{sT2}, v{va}"]
    return sc, ve

def late_consts(a):
    a.e("v_and_b32 v9, 56, v0"); a.e(f"s_lshl_b32 s{sTmp}, s{sWv}, 1"); a.e(f"v_add_u32 v9, s{sTmp}, v9")
    a.e("v_mul_u32_u24 v9, 1280, v9"); a.e("v_and_b32 v8, 7, v0")
    a.e(f"s_xor_b32 s{sTmp}, s{sU}, 7"); a.e(f"s_and_b32 s{sTmp}, s{sTmp}, 3"); a.e(f"s_lshl_b32 s{sTmp}, s{sTmp}, 1"); a.e(f"v_xor_b32 v8, s{sTmp}, v8")
    a.e(f"v_lshl_add_u32 v{vWo}, v8, 4, v9")

def x_block(j, rel, base_s, op="s_add_u32", lds=0):
    so = f"{op} s{sOff2}, s{base_s}, {rel + j*20480}" if base_s is not None else f"s_mov_b32 s{sOff2}, {rel + j*20480}"
    return [([so, f"s_add_u32 m0, s{sXL}, {j*2048 + lds}"], f"buffer_load_dwordx4 v{vX0}, {sr(sX,4)}, s{sOff2} offen{' nt' if OPT['xnt'] else ''} lds"),
            ([f"s_add_u32 m0, s{sXL}, {j*2048 + 1024 + lds}"], f"buffer_load_dwordx4 v{vX1}, {sr(sX,4)}, s{sOff2} offen{' nt' if OPT['xnt'] else ''} lds")]
def rd_xb(dst, j, s): return f"ds_read_b128 {R(dst,4)}, v{(vXA0, vXA1)[s]} offset:{j*2048}"

def end_sync(a, S, vm, keep=2):
    def w():
        n = min(len(a.lg), keep)
        a.raw_wait(f"s_waitcnt vmcnt({vm}) lgkmcnt({n})")
        a.lg = a.lg[len(a.lg) - n:] if n else []
    S.h(22, w); S.h(23, "s_barrier")

sSc = 14
SCALE = f"s_mov_b32 s{sSc}, {f32(math.log2(math.e) / math.sqrt(128.0))}"
def conv_ops(acc, pos, db, tmp):
    o_ = []; k = 0
    for p in range(4):
        for j in range(3):
            t = tmp[k % len(tmp)]; k += 1
            src = []
            for u in range(2):
                o = acc(pos, 2*p + u, j)
                for r in range(4):
                    if isinstance(o, tuple):
                        o_.append(f"v_accvgpr_read_b32 v{t+4*u+r}, a{o[1]+r}"); src.append(t + 4*u + r)
                    else: src.append(o + r)
            o_ += [f"v_mul_f32 v{x}, s{sSc}, v{x}" for x in src]
            d = Qf(j, p) if db is None else src[0]
            o_ += [f"v_cvt_pk_bf16_f32 v{d+r}, v{src[2*r]}, v{src[2*r+1]}" for r in range(4)]
            if db is not None and db != "keep":
                o_ += [f"v_accvgpr_write_b32 a{db + 12*p + 4*j + r}, v{d+r}" for r in range(4)]
    return o_
def packed(ops):
    if not OPT["pk"]: return list(ops)
    out = []; k = 0
    pat = re.compile(r"v_mul_f32 v(\d+), (?:s(\d+), v\d+|v\d+, v(\d+))$")
    while k < len(ops):
        m0, m1 = pat.match(ops[k]), pat.match(ops[k+1]) if k + 1 < len(ops) else None
        if m0 and m1 and int(m0[1]) % 2 == 0 and int(m1[1]) == int(m0[1]) + 1 and m0.groups()[1:] == m1.groups()[1:]:
            d = int(m0[1]); t, f = ("s", int(m0[2])) if m0[2] else ("v", int(m0[3]))
            out.append(f"v_pk_mul_f32 v[{d}:{d+1}], v[{d}:{d+1}], {t}[{f & ~1}:{f | 1}] op_sel:[0,{f & 1}] op_sel_hi:[1,{f & 1}]"); k += 2
        else: out.append(ops[k]); k += 1
    return out
def free_slots(S):
    cap = []
    for k in range(len(S.mfs)):
        c = 2 - max(0, len(S.hold[k]) - 1)
        for f in S.vec[k]:
            t = f if isinstance(f, str) else f[0] if isinstance(f, tuple) else "vmem"
            c -= 2 if t.startswith(("vmem", "v_exp", "v_rcp")) else 1
        if "s_barrier" in S.hold[k]: c = 0
        cap.append(max(c, 0))
    for k in range(1, len(cap)):
        if cap[k] == 2 and cap[k-1] == 2: cap[k] = 1
    return cap
def fill_ops(S, ops, start=0):
    cap = free_slots(S); n = 0
    for k in range(start, len(cap)):
        for _ in range(cap[k]):
            if n < len(ops): S.v(k, ops[n]); n += 1
    return ops[n:]

def gcv(m, h):
    i, j = divmod(m, 3); p, u = divmod(i, 2); o = Or(i, j)
    return f"v_cvt_pk_bf16_f32 v{S_ + 12*p + 4*j + 2*u + h}, v{o+2*h}, v{o+2*h+1}"
CVS = [gcv(m, h) for m in range(24) for h in range(2)]
def gst(q, rel, base_s):
    p, j = divmod(q, 3)
    return ([f"s_add_u32 s{sOff2}, s{base_s}, {rel + (p*12 + j)*CH}"], f"buffer_store_dwordx4 {vr(S_ + 12*p + 4*j,4)}, v{vPt}, {sr(sP,4)}, s{sOff2} offen{['', ' sc1', ' nt', ' sc0'][OPT['stpol']]}")
def cv_plans():
    caps = [0 if g in (6, 11) else (1 if g in RDPOS else 2) for g in range(24)]
    last = []; ci = 0
    for g, cp in enumerate(caps):
        for _ in range(cp):
            if ci < 48 and ci // 2 + 4 <= g: last.append((g, ci)); ci += 1
    n = ci; first = []
    for g, cp in enumerate(caps):
        for _ in range(cp):
            if ci < 48: first.append((g, ci)); ci += 1
    assert ci == 48 and all(c // 2 > g for g, c in first)
    return last, first, n
PLAN_LAST, PLAN_FIRST, NLAST = cv_plans()

def Q2acc(pos, i, j): return (56 if pos == 0 else O_) + 12 * i + 4 * j
def X2reg(buf, j, s): return ("a", 24 * buf + 8 * j + 4 * s)
def q2mf(n, first):
    s, pos = divmod(n % 8, 2)
    return [mf(Q2acc(pos, i, j), Greg(n & 1, i), X2reg(s >> 1, j, s & 1), None if first and n < 2 else Q2acc(pos, i, j)) for i in range(8) for j in zj(i)]

def main_kernel():
    a = Asm()
    T = OPT["typ"]
    if OPT["st0"]: a._emit("s_memrealtime s[80:81]")
    a.e("s_cmp_ge_u32 s2, 256")
    a.e("s_cbranch_scc1 L_end")
    a.e("s_load_dwordx16 s[4:19], s[0:1], 0")
    a.e("s_load_dwordx4 s[20:23], s[0:1], 64")
    a.e("s_load_dwordx2 s[28:29], s[0:1], 96")
    a.e(f"s_bfe_u32 s{sBr}, s2, 0x10002")
    if not OPT["map84"]:
        a.e(f"s_and_b32 s{sB}, s2, 3"); a.e(f"s_lshl_b32 s{sB}, s{sB}, 2")
        a.e(f"s_bfe_u32 s{sTmp}, s2, 0x20003"); a.e(f"s_add_u32 s{sB}, s{sB}, s{sTmp}")
        a.e(f"s_lshr_b32 s{sU}, s2, 5")
    elif OPT["map84"] == 2:
        a.e(f"s_bfe_u32 s{sB}, s2, 0x40003")
        a.e(f"s_and_b32 s{sU}, s2, 3"); a.e(f"s_lshl_b32 s{sU}, s{sU}, 1")
        a.e(f"s_lshr_b32 s{sTmp}, s2, 7"); a.e(f"s_add_u32 s{sU}, s{sU}, s{sTmp}")
    else:
        a.e(f"s_and_b32 s{sB}, s2, 1"); a.e(f"s_lshl_b32 s{sB}, s{sB}, 3")
        a.e(f"s_bfe_u32 s{sTmp}, s2, 0x30003"); a.e(f"s_add_u32 s{sB}, s{sB}, s{sTmp}")
        a.e(f"s_bfe_u32 s{sU}, s2, 0x10001"); a.e(f"s_lshl_b32 s{sU}, s{sU}, 2")
        a.e(f"s_lshr_b32 s{sTmp}, s2, 6"); a.e(f"s_add_u32 s{sU}, s{sU}, s{sTmp}")
    a.e(f"s_lshl_b32 s{sG}, s{sBr}, 4"); a.e(f"s_add_u32 s{sG}, s{sG}, s{sB}")
    if T == 4: a.e(f"s_bfe_u32 s{sTyp}, s2, 0x10003")
    elif T == 3: a.e(f"s_andn2_b32 s{sTyp}, 1, s2")
    elif T == 2: a.e(f"s_and_b32 s{sTyp}, s2, 1")
    else: a.e(f"s_mov_b32 s{sTyp}, {T}")
    a.e("v_lshrrev_b32 v7, 6, v0")
    a.e("v_and_b32 v0, 63, v0")
    a.e(f"v_readfirstlane_b32 s{sWv}, v7")
    a.e("v_and_b32 v8, 15, v0")
    a.e("v_lshrrev_b32 v9, 4, v0")
    a.e("v_and_b32 v10, 1, v9"); a.e("v_lshlrev_b32 v10, 4, v10")
    a.e("v_lshrrev_b32 v11, 1, v9"); a.e("v_lshl_add_u32 v10, v11, 2, v10")
    a.e("v_lshrrev_b32 v11, 1, v7"); a.e("v_lshl_add_u32 v10, v11, 3, v10")
    a.e("v_and_b32 v11, 1, v7"); a.e("v_lshl_add_u32 v10, v11, 1, v10")
    a.e("v_lshlrev_b32 v10, 13, v10"); a.e(f"v_lshl_add_u32 v{vW}, v8, 4, v10")
    a.e("v_mul_u32_u24 v10, 48, v7"); a.e("v_lshrrev_b32 v11, 3, v0"); a.e("v_add_u32 v10, v10, v11")
    a.e("v_mul_u32_u24 v10, 1280, v10")
    a.e("v_and_b32 v11, 7, v0"); a.e("v_xor_b32 v11, v11, v9")
    a.e(f"v_lshl_add_u32 v{vX0}, v11, 4, v10")
    a.e("v_xor_b32 v11, 4, v11"); a.e("v_add_u32 v10, 10240, v10")
    a.e(f"v_lshl_add_u32 v{vX1}, v11, 4, v10")
    a.e(f"s_mul_i32 s{sKVL}, s{sWv}, 2112")
    a.e(f"s_mul_i32 s{sXL}, s{sWv}, 6144"); a.e(f"s_add_u32 s{sXL}, s{sXL}, {XB}")
    a.e(f"s_mov_b32 s{sCur}, 0"); a.e(f"s_mov_b32 s{sXo}, 0"); a.e(f"s_mov_b32 s{sWq}, 0")
    a.raw_wait("s_waitcnt lgkmcnt(0)")
    def q6(k):
        if OPT["qprof"] == 6: a._emit(f"s_memrealtime s[{80+2*k}:{81+2*k}]")
    q6(4)
    a.e(f"s_cmp_eq_u32 s{sBr}, 0")
    a.e("s_cselect_b64 s[4:5], s[4:5], s[14:15]")
    a.e("s_cselect_b64 s[6:7], s[6:7], s[16:17]")
    a.e("s_cselect_b64 s[8:9], s[8:9], s[18:19]")
    a.e("s_cselect_b64 s[10:11], s[10:11], s[20:21]")
    a.e("s_cselect_b64 s[12:13], s[12:13], s[22:23]")
    a.e("s_load_dwordx4 s[16:19], s[0:1], 80")
    a.e(f"s_mul_i32 s{sTmp}, s{sB}, 245760")
    srd(a, sX, 4, f"s{sTmp}", 245760)
    a.e(f"s_lshl_b32 s{sTmp}, s{sU}, 10")
    srd(a, sW, 10, f"s{sTmp}", 639 * 8192 + 1024)
    if OPT["krot"]: a.e(f"s_xor_b32 s{sJ}, s{sB}, s{sU}"); a.e(f"s_and_b32 s{sJ}, s{sJ}, 3")
    else: a.e(f"s_mov_b32 s{sJ}, 0")
    if not OPT["k4"]: a.e(f"s_mul_i32 s{sJ}, s{sJ}, s{sTyp}")
    if OPT["hrot"] == 2: a.e(f"s_and_b32 s{sJh}, s{sU}, 1"); a.e(f"s_lshl_b32 s{sJh}, s{sJh}, 1")
    elif OPT["hrot"] == 3: a.e(f"s_and_b32 s{sJh}, s{sU}, 2")
    elif OPT["hrot"] == 4: a.e(f"s_and_b32 s{sJh}, s{sU}, 3")
    elif OPT["hrot"] == 5: a.e(f"s_lshr_b32 s{sJh}, s{sU}, 1")
    else: a.e(f"s_mov_b32 s{sJh}, 0")
    a.e(f"s_lshl_b32 s{sWq}, s{sJ}, 18"); a.e(f"s_lshl_b32 s{sTmp}, s{sJh}, 8"); a.e(f"s_or_b32 s{sWq}, s{sWq}, s{sTmp}"); a.e(f"s_add_u32 s{sWq1}, s{sWq}, {1 << 20}")
    a.e(f"s_lshr_b32 s{sXo}, s{sJ}, 1"); a.e(f"s_lshl_b32 s{sXo}, s{sXo}, 7")
    if not OPT['st0']: stamp(a, 0)
    if OPT['qprof'] < 5: stamp(a, 1, False)
    def common_consts():
        if OPT["rot"] == 2: a.e(f"s_bfe_u32 s{sRot}, s2, 0x40003"); a.e(f"s_lshl_b32 s{sRot}, s{sRot}, 13")
        elif OPT["rot"] == 3: a.e(f"s_bfe_u32 s{sRot}, s2, 0x40001"); a.e(f"s_lshl_b32 s{sRot}, s{sRot}, 13")
        elif OPT["rot"] == 4:
            a.e(f"s_mul_i32 s{sRot}, s2, 0x9e3779b1"); a.e(f"s_lshr_b32 s{sRot}, s{sRot}, 28"); a.e(f"s_lshl_b32 s{sRot}, s{sRot}, 13")
        elif OPT["rot"] == 5: a.e(f"s_bfe_u32 s{sRot}, s2, 0x20003"); a.e(f"s_lshl_b32 s{sRot}, s{sRot}, 15")
        elif OPT["rot"]:
            a.e(f"s_lshr_b32 s{sRot}, s2, 4"); a.e(f"s_xor_b32 s{sRot}, s{sRot}, s2"); a.e(f"s_and_b32 s{sRot}, s{sRot}, 15"); a.e(f"s_lshl_b32 s{sRot}, s{sRot}, 13")
        else: a.e(f"s_mov_b32 s{sRot}, 0")
        a.e(f"s_lshl_b32 s{sTmp}, s{sJh}, 17"); a.e(f"s_or_b32 s{sRot}, s{sRot}, s{sTmp}")
        a.e(f"s_mov_b32 s{sCX}, s{sRot}"); a.e(f"s_add_u32 s{sKVv}, s{sKVL}, {VB}")
        a.e("v_bfe_u32 v10, v0, 2, 3")
        a.e("v_lshrrev_b32 v11, 1, v10"); a.e("v_lshlrev_b32 v11, 6, v11"); a.e(f"v_lshl_add_u32 v{vWAl}, v10, 10, v11")
        a.e("v_and_b32 v11, 1, v10"); a.e(f"v_lshl_add_u32 v{vWAl}, v11, 3, v{vWAl}")
        a.e("v_lshrrev_b32 v11, 5, v0"); a.e(f"v_lshl_add_u32 v{vWAl}, v11, 8, v{vWAl}")
        a.e("v_mul_u32_u24 v10, 1056, v10"); a.e("v_lshl_add_u32 v10, v11, 8, v10")
        a.e("v_and_b32 v11, 3, v0"); a.e(f"v_lshl_add_u32 v{vWAl}, v11, 4, v{vWAl}")
        a.e(f"v_lshl_add_u32 v10, v11, 3, v10"); a.e(f"v_add_u32 v{vVA}, {VB}, v10")
        a.e(f"v_add_u32 v{vWAh}, {VB}, v{vWAl}")
        a.e("v_and_b32 v10, 7, v8"); a.e("v_mul_u32_u24 v10, 1056, v10")
        a.e("v_lshrrev_b32 v11, 3, v8"); a.e(f"v_lshl_add_u32 v10, v11, 8, v10")
        a.e(f"v_lshl_add_u32 v{vKA}, v9, 4, v10")
        a.e("v_lshlrev_b32 v10, 4, v0"); a.e(f"v_lshl_add_u32 v{vKV}, v7, 11, v10")
        a.e(f"v_lshlrev_b32 v10, 7, v8"); a.e(f"v_add_u32 v10, s{sXL}, v10")
        a.e("v_lshrrev_b32 v11, 1, v8"); a.e("v_xor_b32 v11, v11, v9")
        a.e(f"s_and_b32 s{sTmp}, s{sJ}, 1"); a.e(f"s_lshl_b32 s{sTmp}, s{sTmp}, 2"); a.e(f"v_xor_b32 v11, s{sTmp}, v11")
        a.e(f"v_lshl_add_u32 v{vXA0}, v11, 4, v10")
        a.e("v_xor_b32 v11, 4, v11"); a.e(f"v_lshl_add_u32 v{vXA1}, v11, 4, v10")
        a.e(f"s_lshl_b32 s{sTmp}, s{sB}, 3"); a.e(f"s_add_u32 s{sTmp}, s{sTmp}, s{sU}"); a.e(f"s_lshl_b32 s{sTmp}, s{sTmp}, 19")
        srd(a, sK, 6, f"s{sTmp}", 4 * 131072)
        srd(a, sV, 8, f"s{sTmp}", 4 * 131072)
        a.e(f"s_mul_i32 s{sTmp}, s{sU}, {512*1280}")
        srd(a, sWo, 12, f"s{sTmp}", 512 * 1280)
        for r in range(4): a.e(f"s_xor_b32 s{sH[r]}, s{sJh}, {r}"); a.e(f"s_mul_i32 s{sH[r]}, s{sH[r]}, 163840")
        a.e(f"s_mov_b32 s{sKn}, 0"); a.e(f"s_mov_b32 s{sMin}, {3*8192}")
        a.e(f"s_cmp_lt_u32 s{sU}, 4")
        a.e(f"s_cselect_b32 s{sTmp}, 128, 0"); a.e(f"s_mov_b32 s{sD0}, 128"); a.e(f"s_cselect_b32 s{sD0}, -128, s{sD0}")
        a.e(f"s_sub_u32 s{sD1}, 256, s{sD0}")
        for r in range(4): a.e(f"s_add_u32 s{sH[r]}, s{sH[r]}, s{sTmp}")
        a.e(f"s_lshl_b32 s{sTmp}, s{sG}, 12"); a.e(f"s_add_u32 s{sTmp}, s{sTmp}, {FLG}")
        srd(a, sF, 28, f"s{sTmp}", 4096)
    def touch0(three):
        if OPT["t0x"]:
            a.e("v_min_u32 v10, 59, v0"); a.e("v_lshlrev_b32 v10, 7, v10")
            a.e(f"s_lshl_b32 s{sTmp}, s{sU}, 2"); a.e(f"s_add_u32 s{sTmp}, s{sTmp}, s{sWv}"); a.e(f"s_mul_i32 s{sTmp}, s{sTmp}, 7680")
            a._emit(f"buffer_load_dword v11, v10, {sr(sX,4)}, s{sTmp} offen")
        if OPT["t0w"] and three:
            a.e("v_lshrrev_b32 v14, 2, v0"); a.e("v_lshlrev_b32 v14, 13, v14"); a.e("v_and_b32 v15, 3, v0"); a.e("v_lshl_add_u32 v14, v15, 7, v14")
            a.e(f"s_and_b32 s{sTmp}, s{sB}, 3"); a.e(f"s_lshl_b32 s{sTmp}, s{sTmp}, 2"); a.e(f"s_add_u32 s{sTmp}, s{sTmp}, s{sWv}"); a.e(f"s_lshl_b32 s{sTmp}, s{sTmp}, 17")
            for k in range(3):
                a.e(f"s_add_u32 s{sT2}, s{sTmp}, {k*256*8192}")
                a._emit(f"buffer_load_dword v{16+k}, v14, {sr(sW,4)}, s{sT2} offen")
    def part_srd(slot_expr, size):
        a.e(f"s_mul_i32 s{sTmp}, s{sG}, {PART}"); slot_expr(); a.e(f"s_lshl_b32 s{sT2}, s{sT2}, 10"); a.e(f"s_add_u32 s{sTmp}, s{sTmp}, s{sT2}")
        srd(a, sP, 28, f"s{sTmp}", size)
    NF = OPT["first"]
    LA = OPT['la']
    def wpos(n): return 8 + n % 8
    def rd_x(buf): return [rd_xb(Xreg(buf, j, s), j, s) for s in range(2) for j in range(3)]
    NF = 2
    def setup(lab):
        if not OPT["pro2"]: common_consts()
        code_touch(a, lab, "L_altwo" if not OPT["ct2"] else (("L_p0end" if OPT["pro2"] else "L_p1") if lab == "L_q" else "L_enter"), 10, 11)
        a.e(f"s_mov_b32 s{sR}, 0")
        if not OPT["ramp"] or (lab == "L_q" and not OPT["ls4"]): late_setup()
    def late_setup():
        a.e(f"s_lshl_b32 s{sTmp}, s{sU}, 9"); a.e(f"s_lshl_b32 s{sT2}, s{sWv}, 7"); a.e(f"s_add_u32 s{sTmp}, s{sTmp}, s{sT2}")
        a.e("v_and_b32 v8, 7, v0"); a.e(f"v_lshlrev_b32 v8, 2, v8"); a.e("v_mov_b32 v7, 0")
        a._emit(f"buffer_store_dword v7, v8, {sr(sF,4)}, s{sTmp} offen sc1")
        emit_tile(a, kv_tile(0, 0))
    def bootstrap():
        l = newlabel("boot")
        a.e(f"s_cmp_lg_u32 s{sWv}, 0"); a.e(f"s_cbranch_scc1 {l}")
        a.e(f"s_lshl_b32 s{sTmp}, s{sG}, 2"); a.e(f"s_add_u32 s{sTmp}, s{sTmp}, 128")
        a.e(f"v_mov_b32 v157, s{sTmp}")
        a.e(f"s_getreg_b32 s{sT2}, hwreg(HW_REG_XCC_ID, 0, 4)")
        a.e(f"s_mul_i32 s{sT3}, s{sT2}, s{sT2}"); a.e(f"s_lshl_b32 s{sT3}, s{sT3}, 8"); a.e(f"s_add_u32 s{sT3}, s{sT3}, s{sT2}")
        a.e(f"s_lshl_b32 s{sT3}, s{sT3}, 8"); a.e(f"s_add_u32 s{sPK}, s{sT3}, 1"); a.e(f"v_mov_b32 v158, s{sPK}")
        a.e("s_mov_b64 exec, 1")
        a._emit("global_atomic_add v157, v158, s[18:19]")
        a.e("s_mov_b64 exec, -1")
        a.e(f"{l}:")
    if OPT["stag"]:
        a.e(f"s_and_b32 s{sT2}, s{sB}, 3") if OPT["stag"] < 100 else a.e(f"s_and_b32 s{sT2}, s{sU}, 3")
        a.e("L_stag:"); a.e(f"s_cmp_eq_u32 s{sT2}, 0"); a.e("s_cbranch_scc1 L_stag2"); a.e(f"s_sleep {OPT['stag'] % 100}"); a.e(f"s_sub_u32 s{sT2}, s{sT2}, 1"); a.e("s_branch L_stag"); a.e("L_stag2:")
    if OPT["pro2"]:
        a.e(f"s_cmp_lg_u32 s{sTyp}, 0")
        a.e(f"s_cselect_b32 s{sT2}, {XB - VB}, 0"); a.e(f"s_cselect_b32 s{sT3}, 0, 512")
        a.e(f"s_sub_u32 s{sT2}, s{sXL}, s{sT2}"); a.e(f"s_xor_b32 s{sT3}, s{sWq}, s{sT3}")
        def sub(st, x, y): return [([p_.replace(x, y) for p_ in pre], d) for pre, d in st]
        emit_tile(a, sub(w_tile(wpos(0), 0, 2), f"s{sWq},", f"s{sT3},"))
        for j in range(3): emit_tile(a, sub(x_block(j, 0, sXo), f"s{sXL},", f"s{sT2},"))
        assert OPT["q2c"] or not OPT["q4c"]
        if OPT["q2c"] and not OPT["q4c"]:
            a.e(f"s_cmp_lg_u32 s{sTyp}, 0"); a.e(f"s_cselect_b32 s{sT3}, 0, {262144 + 768}"); a.e(f"s_xor_b32 s{sT3}, s{sWq}, s{sT3}")
        emit_tile(a, sub(w_tile(wpos(1), 1, 2), f"s{sWq},", f"s{sT3},"))
        q6(5)
        common_consts()
        q6(6)
        a.e(f"s_cmp_eq_u32 s{sTyp}, 0")
        a.e("s_cbranch_scc1 L_p0")
        a.e("L_split:")
        a.e("L_p0:")
    else:
        a.e(f"s_cmp_lg_u32 s{sTyp}, 0")
        a.e("s_cbranch_scc1 L_p1")
        for j in range(3): emit_tile(a, x_block(j, 0, sXo))
        for n in range(NF): emit_tile(a, w_tile(wpos(n), n))
    setup("L_q")
    if OPT["help"]:
        if T == 3:
            a.e(f"s_sub_u32 s{sP}, s{sX}, {4*245760}"); a.e(f"s_subb_u32 s{sP+1}, s{sX+1}, 0")
        else:
            a.e(f"s_add_u32 s{sP}, s{sX}, {4*245760}"); a.e(f"s_addc_u32 s{sP+1}, s{sX+1}, 0")
        a.e(f"s_mov_b32 s{sP+2}, 245760"); a.e(f"s_mov_b32 s{sP+3}, 0x20000")
        a.e("v_min_u32 v8, 59, v0"); a.e("v_lshlrev_b32 v8, 7, v8")
        a.e(f"s_lshl_b32 s{sTmp}, s{sU}, 2"); a.e(f"s_add_u32 s{sTmp}, s{sTmp}, s{sWv}"); a.e(f"s_mul_i32 s{sTmp}, s{sTmp}, 7680")
        if OPT["help"] & 1: a._emit(f"buffer_load_dword v9, v8, {sr(sP,4)}, s{sTmp} offen")
        if OPT["help"] & 2:
            a.e("v_lshrrev_b32 v8, 2, v0"); a.e("v_lshlrev_b32 v8, 13, v8"); a.e("v_and_b32 v10, 3, v0"); a.e("v_lshl_add_u32 v8, v10, 7, v8")
            a.e(f"s_lshr_b32 s{sTmp}, s{sB}, 3"); a.e(f"s_lshl_b32 s{sTmp}, s{sTmp}, 2"); a.e(f"s_and_b32 s{sT2}, s{sB}, 3"); a.e(f"s_add_u32 s{sTmp}, s{sTmp}, s{sT2}")
            a.e(f"s_lshl_b32 s{sTmp}, s{sTmp}, 2"); a.e(f"s_add_u32 s{sTmp}, s{sTmp}, s{sWv}"); a.e(f"s_mul_i32 s{sTmp}, s{sTmp}, {20*8192}")
            a.e(f"s_and_b32 s{sT2}, s{sWq}, 512"); a.e(f"s_add_u32 s{sTmp}, s{sTmp}, s{sT2}")
            a._emit(f"buffer_load_dword v9, v8, {sr(sW,4)}, s{sTmp} offen")
            if OPT["hx"]: a.e(f"v_min_u32 v8, {3*8192 + 384}, v8")
            a.e(f"s_add_u32 s{sTmp}, s{sTmp}, {(16 if OPT['hx'] else 4)*8192}")
            a._emit(f"buffer_load_dword v9, v8, {sr(sW,4)}, s{sTmp} offen")
    LA4 = OPT['la4']
    a.e(f"s_mov_b32 s{sPre}, 15")
    for r in range(256):
        if r % 40 == 0 and NF + r // 40 < LA4: emit_tile(a, w_tile(wpos(NF + r // 40), NF + r // 40))
        a.e(f"v_accvgpr_write_b32 a{r}, 0")
    for r in list(range(124, 156)) + list(range(160, 256)): a.e(f"v_mov_b32 v{r}, 0")
    if OPT["woq"]:
        a.e(f"s_lshr_b32 s{sTmp}, s{sB}, 3"); a.e(f"s_lshl_b32 s{sTmp}, s{sTmp}, 2"); a.e(f"s_and_b32 s{sT2}, s{sB}, 3"); a.e(f"s_add_u32 s{sTmp}, s{sTmp}, s{sT2}")
        a.e(f"s_lshl_b32 s{sTmp}, s{sTmp}, 2"); a.e(f"s_add_u32 s{sTmp}, s{sTmp}, s{sWv}"); a.e(f"s_mul_i32 s{sTmp}, s{sTmp}, 5120")
        a.e("v_min_u32 v7, 39, v0"); a.e(f"v_lshl_add_u32 v7, v7, 7, s{sTmp}")
    C4 = OPT["q4c"]
    def w_reads(n):
        if C4: return [r for f in range(8) for r in rd_w(Wreg(n & 1, f), wpos(2 * (n >> 1) + (f & 1)), 4 * (n & 1) + (f >> 1))]
        return [r for i in range(8) for r in rd_w(Wreg(n & 1, i), wpos(n), i)]
    QB = OPT["qb2"] and not C4
    a.raw_wait(f"s_waitcnt vmcnt({2 * (LA4 - 2 - QB)}) lgkmcnt(0)")
    a.e("s_barrier")
    for r in rd_x(0) + w_reads(0): a.e(r)
    a.raw_wait("s_waitcnt lgkmcnt(0)"); a.lg = []
    if QB: a.e("s_barrier")
    if OPT["qprof"] == 1: stamp(a, 5); stamp(a, 6, False)
    def lperm(n, last):
        return 8 + 4 * ((n - 8) & 1) + ((n - 8) >> 1) if last and OPT["cvo"] and not C4 and 8 <= n < 16 else n
    def qmf(n, last=False):
        if C4:
            cl, pos, hf = (n % 16) >> 3, (n >> 1) & 3, n & 1
            o = []
            for i in range(4):
                for jn, j in enumerate(zj(i)):
                    for c in ((1, 0) if (3 * i + jn) & 1 else (0, 1)):
                        d = Qacc(pos, 4*hf + i, j); o.append(mf(d, Wreg(n & 1, 2*i + c), Xreg(cl, j, c), d))
            return o
        s, pos = divmod(lperm(n, last) % 16, 4)
        return [mf(Qacc(pos, i, j), Wreg(n & 1, i), Xreg((s >> 1) & 1, j, s & 1), Qacc(pos, i, j)) for i in range(8) for j in zj(i)]
    cvq = conv_ops(Qacc, 0, QBANK[3], [76, 84, 92])
    def early(S, half, h0, gaps):
        pre = [x.replace(f"s{sOff},", f"s{sOff2},") for x in unit_pre(sKn, 0)[4*half:4*half+4]]
        if half == 0: pre = [f"s_cmp_ge_u32 s{sKn}, s{sMin}", "s_cselect_b64 vcc, -1, 0", f"s_cselect_b32 s{sC1}, 0, 8192"] + pre
        else: pre = pre + [f"s_add_u32 s{sKn}, s{sKn}, s{sC1}"]
        for x, h_ in zip(pre, h0): S.h(h_, x)
        place_guarded(a, S, unit_dma(sOff2, sOff2)[2*half:2*half+2], gaps)
    def q_group(last):
        for n in range(16):
            a.c(f"Q sub-step {n}{' (last group)' if last else ''}")
            S = Sched(a, qmf(n, last))
            fin = last and n == 15
            q = n % 8
            xrd = q in (6, 7) and not (last and n >= 8)
            if not fin:
                for r, p in zip(w_reads(n + 1), RDPOS): S.v(p, r)
                m = n + LA4
                if not last or m < 16: place_tile(a, S, w_tile(wpos(m), lperm(m, last)), (6, 11))
                KVN = {8: 7, 9: 8, 10: 9, 11: 10, 12: 11, 13: 12} if not OPT["kvconv"] else {4: 7, 11: 8} if OPT["kvconv"] == 1 else {4: 7}
                if last and n in KVN: place_tile(a, S, kv_tile(KVN[n], KVN[n] >> 1), (16, 19))
                if (QB and not (n & 1)) or (C4 and (n & 1)):
                    def w(keep=(3 if C4 else 5) if xrd else 2):
                        k = min(len(a.lg), keep); a.raw_wait(f"s_waitcnt lgkmcnt({k})"); a.lg = a.lg[len(a.lg) - k:] if k else []
                    S.h(22, w)
                elif not (last and n == 14):
                    need = n + 2 + bool(QB or C4)
                    if last: need = min(need, 15)
                    hi = min(m, 15) if last else m
                    ykv = len([k for k in KVN if need - LA4 <= k <= n]) if last else 0
                    end_sync(a, S, 2 * (hi - need) + 2 * ykv, (3 if xrd else 0) if QB or C4 else (5 if xrd else 2))
            if xrd and C4:
                buf = ((n >> 3) + 1) & 1
                if q == 6: S.h(15, lambda: vmw(a, 8))
                for (j, s), p in zip(((0,0),(0,1),(1,0),(1,1)) if q == 6 else ((2,0),(2,1)), (16, 19, 20, 21)): S.v(p, (rd_xb(Xreg(buf, j, s), j, s), "xr"))
            elif xrd:
                rx = rd_x(((n >> 3) + 1) & 1)[3*(q-6):3*(q-6)+3]
                if q == 6: S.h(16, lambda: vmw(a, 8))
                for r, p in zip(rx, (19, 20, 21)): S.v(p, (r, "xr"))
            if q in (0, 1, 2) and not (last and n >= 8):
                if q == 0: S.h(12, lambda: a.wait(lg="xr"))
                place_tile(a, S, x_block(q, 128, sXo, "s_xor_b32") if n < 8 else x_block(q, 256, sXo), (16, 19))
            if n in (11, 12) and not last: early(S, n - 11, (0, 1, 2, 3, 7, 8, 12), (16, 19))
            if n == 4 and not last and OPT["woq"]:
                S.h(13, f"s_lshr_b32 s{sOff2}, s{sXo}, 8"); S.h(14, f"s_mul_i32 s{sOff2}, s{sOff2}, 163840")
                S.v(16, lambda: a._emit(f"buffer_load_dword v9, v7, {sr(sWo,4)}, s{sOff2} offen"))
            if n == 15 and not last:
                S.h(12, f"s_mov_b32 s{sWq}, s{sWq1}")
                S.h(13, f"s_add_u32 s{sWq1}, s{sWq1}, {1 << 20}")
                S.h(14, f"s_add_u32 s{sXo}, s{sXo}, 256")
                S.h(15, f"s_cmp_lt_u32 s{sXo}, 1024")
            if last and n == 3: S.h(1, SCALE)
            if last and n >= 10 and OPT["cvo"]: cvq[:] = fill_ops(S, cvq, 4 if n == 10 else 0)
            S.emit(None if fin else qmf(n + 1, last)[0])
    a.e(".p2align 6")
    a.e("L_q:")
    if OPT["qprof"] == 3:
        a.e(f"s_lshr_b32 s{sT3}, s{sXo}, 8"); stamp_dyn(a, 4, sT3, 4)
    mark = len(a.ins); nops0 = a.nops
    q_group(False)
    lg_end = list(a.lg)
    del a.ins[mark:]; a.nops = nops0
    q_group(False)
    assert a.lg == lg_end
    a.e("s_cbranch_scc1 L_q")
    if OPT["ct2"]: code_touch(a, "L_enter", "L_q2b" if T else "L_altwo", 10, 11, back=bool(OPT["pro2"]))
    if OPT["ls4"]: late_setup()
    if OPT["qprof"] == 3: stamp(a, 8)
    q_group(True)
    if OPT["qprof"] == 1: stamp(a, 7); stamp(a, 8, False)
    stamp(a, 3)
    a.c("Q conversion")
    tmp = [60 + 8 * k for k in range(8)]
    rest = packed(cvq + conv_ops(Qacc, 1, QBANK[2], tmp) + conv_ops(Qacc, 2, QBANK[1], tmp) + conv_ops(Qacc, 3, None, tmp))
    steps = [s_ for m in range(10 - OPT["kvconv"], 13) for s_ in kv_tile(m, m >> 1)] if OPT["kvconv"] else []
    at = {int((k + 0.3) * len(rest) / len(steps)): s_ for k, s_ in enumerate(steps)}
    for k, x in enumerate(rest):
        if k in at:
            for y in at[k][0]: a.e(y)
        a.e(x)
        if k in at: a._emit(at[k][1])
    late_consts(a)
    bootstrap()
    a.e("s_branch L_enter")
    a.e("L_p1:")
    a.lg = []
    if not OPT["pro2"]:
        for j in range(3): emit_tile(a, x_block(j, 0, sXo, lds=VB-XB))
        for n in range(NF): emit_tile(a, w_tile(wpos(n), n, 2))
    a.e(f"s_xor_b32 s{sXo1}, s{sXo}, 128")
    L0 = 5 if OPT["ramp"] else LA
    assert not OPT["ramp"] or (OPT["latekv"] and LA == 7 and OPT["ct2"])
    a.e(f"s_mov_b32 s{sPre}, 1")
    if OPT["ramp"]:
        setup("L_q2")
        late_consts(a)
        a.e(f"v_subrev_u32 v12, {XB-VB}, v{vXA0}"); a.e(f"v_subrev_u32 v13, {XB-VB}, v{vXA1}")
        for j in range(3): emit_tile(a, x_block(j, 0, sXo1)); emit_tile(a, w_tile(wpos(2 + j), 2 + j, 2))
        q6(7)
        a.raw_wait("s_waitcnt vmcnt(10) lgkmcnt(0)")
    else:
        for j in range(3): emit_tile(a, x_block(j, 0, sXo1))
        setup("L_q2")
        late_consts(a)
        for n in range(NF, L0): emit_tile(a, w_tile(wpos(n), n, 2))
        q6(7)
        a.e(f"v_subrev_u32 v12, {XB-VB}, v{vXA0}"); a.e(f"v_subrev_u32 v13, {XB-VB}, v{vXA1}")
        a.raw_wait(f"s_waitcnt vmcnt({2 * (L0 - 2)}) lgkmcnt(0)")
    q6(8)
    for j in range(3):
        for s in range(2): a.e(f"ds_read_b128 {R(X2reg(0, j, s),4)}, v{12+s} offset:{j*2048}")
    a.e("L_q2go:")
    a.e("s_barrier")
    def c_reads(n):
        return [r for f in range(8) for r in rd_w(Greg(n & 1, f), wpos(2 * (n >> 1) + (f & 1)), 4 * (n & 1) + (f >> 1))]
    if OPT["q2c"]:
        for r in c_reads(0): a.e(r)
    else:
        for i in range(8):
            for r in rd_w(Greg(0, i), wpos(0), i): a.e(r)
    a.raw_wait("s_waitcnt lgkmcnt(0)"); a.lg = []
    def c_mf(n, first):
        cl, pos, hf = (n % 8) >> 2, (n >> 1) & 1, n & 1
        o = []
        for i in range(4):
            for jn, j in enumerate(zj(i)):
                cs = (1, 0) if (3 * i + jn) & 1 else (0, 1)
                for c in cs:
                    d = Q2acc(pos, 4*hf + i, j)
                    o.append(mf(d, Greg(n & 1, 2*i + c), X2reg(cl, j, c), None if first and n < 4 and c == cs[0] else d))
        return o
    B2 = OPT["q2c"] == 1
    def c_tiles(N):
        t = [N + 5] if B2 or N < 3 else [8, 9] if N == 3 else [N + 6]
        return [x for x in t if x < 40]
    KVC = {33: 7, 35: 8, 36: 9, 37: 10, 38: 11, 39: 12} if B2 else {33: 7, 34: 8, 35: 9, 36: 10, 37: 11, 38: 12}
    seq = [("W", 0), ("W", 1), ("X", 3), ("W", 2), ("X", 4), ("W", 3), ("X", 5), ("W", 4)]; cut = {}
    for N in range(40):
        tl = c_tiles(N)
        seq += [("W", x) for x in tl]
        if N % 4 < 3 and N < 32: seq.append(("X", 6 + 3 * (N // 4) + N % 4))
        if N in KVC: seq.append(("K", KVC[N]))
        need = []
        if N % 2 == 0 and N + 3 < 40: need.append(("W", N + 3))
        if (N + 1) % 4 < 3 and N + 1 < 36: need.append(("X", 3 + 3 * ((N + 1) // 4) + (N + 1) % 4))
        cut[N] = min([2 * (len(seq) - 1 - seq.index(x)) for x in need] + [62])
    cv2c = conv_ops(Q2acc, 0, "keep", [0])
    def q2c_group(kind):
        first, last = kind == 0, kind == 2
        for n in range(8):
            a.c(f"Q2 sub-step {n} ({('first', 'loop', 'last')[kind]})")
            N = n + (0, 8, 32)[kind]
            S = Sched(a, c_mf(n, first))
            cl, q = divmod(n, 4)
            fin = last and n == 7
            if not fin:
                for r, p in zip(c_reads(n + 1), RDPOS_X): S.v(p, r)
            for x, gp in zip(c_tiles(N), ((4, 7), (10, 13))): place_tile(a, S, w_tile(wpos(x), x - (N - n), 2), gp)
            if q < 3 and not (last and cl == 1):
                for s in range(2): S.v(s, (rd_xb(X2reg(1 - cl, q, s), q, s), "xr"))
            if q < 3 and not last:
                S.h(7, lambda: a.wait(lg="xr"))
                place_tile(a, S, x_block(q, 256, (sXo, sXo1)[cl]), (10, 13))
            if q == 3 and kind == 1: early(S, cl, (0, 0, 1, 1, 4, 7, 8) if cl == 0 else (0, 0, 1, 1, 4), (10, 13))
            if N in KVC:
                un, half = divmod(KVC[N] - 7, 2)
                pre = [x.replace(f"s{sOff},", f"s{sOff2},") for x in unit_pre(sKn, un * 8192)[4*half:4*half+4]]
                for x, h_ in zip(pre, (0, 1, 4, 8)): S.h(h_, x)
                place_tile(a, S, unit_dma(sOff2, sOff2)[2*half:2*half+2], (10, 13))
            if last and n == 0: S.h(14, SCALE)
            if n == 7 and not last:
                for k, x in enumerate([f"s_mov_b32 s{sWq}, s{sWq1}", f"s_add_u32 s{sWq1}, s{sWq1}, {1 << 20}", f"s_add_u32 s{sXo1}, s{sXo1}, 256",
                                       f"s_add_u32 s{sXo}, s{sXo}, 256", f"s_cmp_lt_u32 s{sXo}, 1024"]): S.h(16 + k, x)
            if not fin:
                vm = min(cut[N + 8 * k] for k in range(3)) if kind == 1 else cut[N]
                end_sync(a, S, vm, 5)
                if B2 and n & 1: S.hold[23].remove("s_barrier")
            if last and n >= 5:
                lim = 72 if n == 5 else 0
                done = fill_ops(S, cv2c[:len(cv2c) - lim], 4 if n in (5, 6) else 0)
                cv2c[:] = done + cv2c[len(cv2c) - lim:]
            S.emit(None if fin else c_mf(n + 1, first and n < 7)[0])
    def q2_group(kind):
        if OPT["q2c"]: return q2c_group(kind)
        first, last = kind == 0, kind == 2
        for n in range(8):
            a.c(f"Q2 sub-step {n} ({('first', 'loop', 'last')[kind]})")
            S = Sched(a, q2mf(n, first))
            cl, q = divmod(n, 4)
            fin = last and n == 7
            xrd = q < 3 and not (last and cl == 1)
            def xd(k): return k % 4 < 3 and not (last and k >= 0) and not (first and k < 0)
            def wd(k): return not (last and k + LA >= 8)
            def kd(k): return last and 0 <= k <= 5
            if not fin:
                rds = []
                for i in range(8): rds += rd_w(Greg((n + 1) & 1, i), wpos(n + 1), i)
                for r, p in zip(rds, RDPOS_X): S.v(p, r)
            rampd = first and OPT["ramp"]
            if rampd:
                m0_ = n + 5 + (n > 3)
                place_tile(a, S, w_tile(wpos(m0_), m0_, 2), (4, 7))
                if q == 3: place_tile(a, S, w_tile(wpos(m0_ + 1), m0_ + 1, 2), (10, 13))
            elif wd(n): place_tile(a, S, w_tile(wpos(n + LA), n + LA, 2), (4, 7))
            if kd(n): place_tile(a, S, kv_tile(7 + n, (7 + n) >> 1), (10, 13))
            if xrd:
                for s in range(2): S.v(s, (rd_xb(X2reg(1 - cl, q, s), q, s), "xr"))
            if xd(n):
                S.h(7, lambda: a.wait(lg="xr"))
                place_tile(a, S, x_block(q, 256, (sXo, sXo1)[cl]), (10, 13))
            if q == 3 and not last and not (first and OPT['latekv']): early(S, cl, (0, 0, 1, 1, 4, 7, 8) if cl == 0 else (0, 0, 1, 1, 4), (10, 13))
            if n == 7 and not last:
                S.h(16, f"s_mov_b32 s{sWq}, s{sWq1}")
                S.h(17, f"s_add_u32 s{sWq1}, s{sWq1}, {1 << 20}")
                S.h(18, f"s_add_u32 s{sXo1}, s{sXo1}, 256")
                S.h(19, f"s_add_u32 s{sXo}, s{sXo}, 256")
                S.h(20, f"s_cmp_lt_u32 s{sXo}, 1024")
            if not (last and n >= 6):
                k0 = n + 2 - LA
                vm = sum(2 * wd(k) for k in range(k0 + 1, n + 1)) + sum(2 * kd(k) for k in range(k0, n + 1))
                if (n + 1) % 4 < 3 and not (last and n + 1 >= 4) and xd(n - 3):
                    vm = min(vm, sum(2 * wd(k) + 2 * xd(k) + 2 * kd(k) for k in range(n - 2, n + 1)))
                if rampd and n == 0: vm = min(vm, 8)
                if n == 7 and OPT['cvo']: vm = min(vm, 8)
                end_sync(a, S, vm, 5)
            S.emit(None if fin else q2mf(n + 1, first and n < 7)[0])
    if OPT["qprof"] == 6: stamp_dyn(a, 3, sR, 1)
    a.e("L_q2:")
    def q5():
        if OPT["qprof"] == 5:
            a.e(f"s_lshr_b32 s{sT3}, s{sXo}, 8"); a.e(f"s_lshl_b32 s{sT2}, s{sR}, 4"); a.e(f"s_add_u32 s{sT3}, s{sT3}, s{sT2}"); stamp_dyn(a, 4, sT3, 5)
    q5()
    q2_group(0)
    if OPT["ramp"]:
        a.e(f"s_cmp_lg_u32 s{sR}, 0"); a.e("s_cbranch_scc1 L_q2l")
        late_setup()
    lg_in = list(a.lg)
    a.e(".p2align 6")
    a.e("L_q2l:")
    q5()
    q2_group(1)
    assert a.lg == lg_in
    a.e("s_cbranch_scc1 L_q2l")
    q5()
    if OPT["ct2"]:
        code_touch(a, "L_enter", "L_q2b" if T else "L_altwo", 10, 11)
    cv2 = conv_ops(Q2acc, 0, "keep", [0])
    if OPT["q2c"]:
        assert OPT["ramp"] and OPT["latekv"]
        q2_group(2); cv2 = cv2c
    elif not OPT["cvo"]:
        q2_group(2); a.e(SCALE)
    else:
        order = [0, 2, 4, 6, 1, 3, 5, 7]
        def mfs(n):
            s, pos = divmod(order[n], 2)
            return [mf(Q2acc(pos, i, j), Greg(n & 1, i), X2reg(s >> 1, j, s & 1), Q2acc(pos, i, j)) for i in range(8) for j in zj(i)]
        kvat = {0: [7], 1: [8], 5: [9, 10], 6: [11, 12]}
        for n in range(8):
            a.c(f"Q2 sub-step {n} (last)")
            S = Sched(a, mfs(n))
            if n < 7:
                rds = []
                for i in range(8): rds += rd_w(Greg((n + 1) & 1, i), wpos(order[n + 1]), i)
                for r, p in zip(rds, RDPOS_X): S.v(p, r)
            if n == 0:
                place_tile(a, S, w_tile(wpos(7), 7, 2), (4, 7)); S.h(14, SCALE)
                for s in range(2): S.v(s, rd_xb(X2reg(1, 0, s), 0, s))
            if n == 1:
                for k, p in enumerate((0, 1, 4, 7)): S.v(p, rd_xb(X2reg(1, 1 + (k >> 1), k & 1), 1 + (k >> 1), k & 1))
            for m, gp in zip(kvat.get(n, []), ((10, 13),) if n < 2 else ((4, 7), (10, 13))):
                un, half = divmod(m - 7, 2)
                pre = [x.replace(f"s{sOff},", f"s{sOff2},") for x in unit_pre(sKn, un * 8192)[4*half:4*half+4]]
                if gp[0] == 4: pre = [x.replace(f"s{sOff2},", f"s{sOff},") for x in pre]
                for x, h_ in zip(pre, (0, 0, 1, 2) if gp[0] == 4 else (0, 1, 4, 8) if n < 2 else (4, 5, 7, 8)): S.h(h_, x)
                so = sOff if gp[0] == 4 else sOff2
                place_tile(a, S, unit_dma(so, so)[2*half:2*half+2], gp)
            if n < 6: end_sync(a, S, {0: 6, 1: 6, 5: 8}.get(n, 20), 5)
            if n >= 4: cv2 = fill_ops(S, cv2, 4 if n == 4 else 0)
            S.emit(mfs(n + 1)[0] if n < 7 else None)
    if OPT["qprof"] == 5: stamp_dyn(a, 3, sR, 1)
    if OPT["stamp"] and not OPT["qprof"]:
        a.e(f"s_lshr_b32 s{sT2}, s{sR}, 1"); stamp_dyn(a, 3, sT2, 2)
    a.c("Q2 conversion")
    for x in packed(cv2): a.e(x)
    def bank_write(db, src):
        return [f"v_accvgpr_write_b32 a{db + 12*p + 4*j + x}, v{src(p, j)+x}" for p in range(4) for j in range(3) for x in range(4)]
    a.e(f"s_cmp_lg_u32 s{sR}, 0"); a.e("s_cbranch_scc1 L_cv2b")
    if OPT["touch"]:
        a.e("v_min_u32 v8, 39, v0"); a.e("v_lshrrev_b32 v9, 2, v8"); a.e("v_lshlrev_b32 v9, 13, v9")
        a.e("v_and_b32 v8, 3, v8"); a.e("v_lshl_add_u32 v9, v8, 7, v9")
        a.e(f"s_lshl_b32 s{sTmp}, s{sB}, 2"); a.e(f"s_add_u32 s{sTmp}, s{sTmp}, s{sWv}"); a.e(f"s_mul_i32 s{sTmp}, s{sTmp}, {10*8192}")
        a.e(f"s_add_u32 s{sTmp}, s{sTmp}, 512")
        a._emit(f"buffer_load_dword v{vD}, v9, {sr(sW,4)}, s{sTmp} offen")
    km = {1: 3, 0: 0, 2: 2}[OPT["k2"]]
    a.e(f"s_and_b32 s{sWq}, s{sWq}, {0x3ff | km << 18}"); a.e(f"s_xor_b32 s{sWq}, s{sWq}, 512"); a.e(f"s_add_u32 s{sWq1}, s{sWq}, {1 << 20}")
    a.e(f"s_and_b32 s{sXo}, s{sXo}, {128 if km & 2 else 0}"); a.e(f"s_xor_b32 s{sXo1}, s{sXo}, 128")
    if not km & 1:
        a.e(f"s_and_b32 s{sTmp}, s{sJ}, 1"); a.e(f"s_lshl_b32 s{sTmp}, s{sTmp}, 6")
        a.e(f"v_xor_b32 v{vXA0}, s{sTmp}, v{vXA0}"); a.e(f"v_xor_b32 v{vXA1}, s{sTmp}, v{vXA1}")
    for x in bank_write(QBANK[1], lambda p, j: Q2acc(0, 2*p, j)): a.e(x)
    a.e("s_branch L_cv2c")
    a.e("L_cv2b:")
    if OPT["emu3"]:
        a.e(f"s_cmp_eq_u32 s{sPre}, 1"); a.e("s_cbranch_scc0 L_cv2d")
        a.e(f"s_mov_b32 s{sPre}, 14")
        a.e(f"s_and_b32 s{sWq}, s{sWq}, 0xfffff"); a.e(f"s_add_u32 s{sWq1}, s{sWq}, {1 << 20}")
        a.e(f"s_and_b32 s{sXo}, s{sXo}, 128"); a.e(f"s_xor_b32 s{sXo1}, s{sXo}, 128")
        a.raw_wait("s_waitcnt vmcnt(0)"); a.e("s_barrier")
        for n in range(LA): emit_tile(a, w_tile(wpos(n), n, 2))
        a.raw_wait("s_waitcnt vmcnt(0)")
        a.e("s_branch L_q2go")
        a.e("L_cv2d:")
    a.e("s_nop 7")
    for x in bank_write(QBANK[3], lambda p, j: Q2acc(0, 2*p, j)): a.e(x)
    bootstrap()
    a.e("L_cv2c:")
    for x in packed(conv_ops(Q2acc, 1, None, [0])): a.e(x)
    a.e("L_enter:")
    a.e(f"v_mov_b32 v{vT}, 0x3f803f80")
    if OPT["sparse1"]:
        a.e(f"v_and_b32 v{vT+1}, 3, v0"); a.e(f"v_cmp_eq_u32 vcc, 0, v{vT+1}"); a.e(f"v_cndmask_b32 v{vT}, 0, v{vT}, vcc")
    for r in range(4): a.e(f"v_accvgpr_write_b32 a{ONES[1]+r}, v{vT}")
    def rd_k(dst, t, u): return [f"ds_read_b128 {vr(dst + 4*ks,4)}, v{vKA} offset:{(t % 8)*TILE + u*512 + ks*64}" for ks in range(4)]
    def rd_v(t, half, fr=VF):
        return [f"ds_read_b64_tr_b16 {vr(fr + 4*i + 2*e, 2)}, v{vVA} offset:{(t % 8)*TILE + e*512 + (4*half+i)*32}" for i in range(4) for e in range(2)]
    assert not OPT["lateq"] and (OPT["lmax"] == 3 or (OPT["lmax"] == 4 and OPT["thr"] <= 4 and 0 <= OPT["w2"] <= 4))
    a.e(f"s_add_u32 s{sKc}, s{sKn}, {4*8192}"); a.e(f"s_mov_b32 s{sLag}, 0")
    assert OPT["cvo"] or not T
    THR = OPT['thr'] + 1 if OPT['dyn'] else 99
    a.e(f"s_cmp_eq_u32 s{sTyp}, 0"); a.e(f"s_cselect_b32 s{sThr}, {0 if OPT['sh1'] else THR}, {THR}")
    a.e(f"s_mov_b32 s{sThN}, {THR}")
    if OPT["sh3"]:
        a.e(f"s_cmp_eq_u32 s{sR}, 2"); a.e(f"s_cselect_b32 s{sThr}, 0, s{sThr}")
        if OPT["sh3"] == 1: a.e(f"s_cselect_b32 s{sThN}, 0, s{sThN}")
    vmw(a, 12)
    a.e("s_barrier")
    a.lg = []
    for r in rd_k(KF, 0, 0) + rd_k(VF, 0, 1): a.e(r)
    for x in unit_pre(sKn, 3 * 8192): a.e(x)
    a.wait(lg="all")
    def ex(u, k): j, r = divmod(k, 4); s = Sr(u, j) + r; return f"v_exp_f32 v{s}, v{s}"
    def cv(u, buf, c): j, h = divmod(c, 2); s = Sr(u, j) + 2*h; return f"v_cvt_pk_bf16_f32 v{Pr(buf,j) + 2*u + h}, v{s}, v{s+1}"
    def qk(u): return [mf(Sr(u, j), KF + 4*ks, Qf(j, ks), Nm(j) if ks == zk(j)[0] else Sr(u, j)) for j in range(3) for ks in zk(j)]
    def pv(t, half, fr=VF): return [mf(Or(4*half + i, j), fr + 4*i, Pr(t & 1, j), None if t == 0 else Or(4*half + i, j)) for i in range(4) for j in zj(i)]
    def sm(t): return [mf(La(j), ONES, Pr(t & 1, j), None if t == 0 else La(j)) for j in zj(1)]
    VMW = min(8, OPT["vmw"])
    decide = [f"s_getreg_b32 s{sC1}, hwreg(HW_REG_IB_STS, 0, 4)", f"s_cmp_ge_u32 s{sC1}, s{sThr}", f"s_cselect_b32 s{sC1}, s{sLag}, 15",
              f"s_cmp_lt_u32 s{sC1}, {OPT['lmax']}"]
    if OPT["w2"] >= 0: decide = decide[:2]
    advance = [f"s_mov_b32 s{sOff}, s{sOff2}", f"s_mov_b32 s{sMv}, s{sMk}", f"s_add_u32 s{sKc}, s{sKc}, 8192"]
    recompute = [f"s_xor_b32 s{sOff2}, s{sKc}, s{sRot}", f"s_bfe_u32 s{sMk}, s{sKc}, 0x3000d", f"s_mul_i32 s{sMk}, s{sMk}, {TILE}"]
    skips = []
    def forked(build, nxt):
        l0, l1 = newlabel("df"), newlabel("dfb")
        a.e(f"s_cbranch_scc1 {l0}")
        a.e(f"{l0}i:")
        lg = list(a.lg)
        build(True).emit(nxt)
        a.e(f"{l1}:")
        skips.append((l0, l1, build, nxt, lg, list(a.lg)))
    catch = []
    def wo_at(S, m, gaps):
        st, post = wo_tile(m)
        place_tile(a, S, st, gaps)
        for x in post: S.h(gaps[1], x)
    def tail_vec(S, u, buf, rds):
        pos = [0, 1, 4, 5, 8, 9, 10, 11]
        for r, p in zip(rds, pos): S.v(p, r)
        for k, p in zip(range(8, 12), (2, 3, 6, 7)): S.v(p, ex(u, k))
        for c, p in zip(range(6), (0, 1, 4, 5, 8, 9)): S.v(p, cv(u, buf, c))
    a.e("L_head:")
    a.c("tile 0: scores of the first 16 keys give the stand-in row max")
    def qk0(extra):
        S = Sched(a, [mf(Sr(0, j), KF + 4*ks, Qf(j, ks), None if ks == 0 else Sr(0, j)) for j in range(3) for ks in range(4)])
        S.h(2, lambda: vmw(a, VMW))
        for k, x in enumerate(decide): S.h(3 + k, x)
        for k, x in enumerate(extra[:24]): S.v(k // 2, x)
        S.emit(None)
        for x in extra[24:]: a.e(x)
        if not extra: a.e("s_nop 7")
    qk0([])
    a.e(".p2align 6")
    a.e("L_head2:")
    for j in range(3): a.e(f"v_max3_f32 v{Nm(j)}, v{Sr(0,j)}, v{Sr(0,j)+1}, v{Sr(0,j)+2}")
    for j in range(3): a.e(f"v_max_f32 v{Nm(j)}, v{Nm(j)}, v{Sr(0,j)+3}")
    rowred(a, "v_max_f32", [Nm(j) for j in range(3)], [Nm(j) + 1 for j in range(3)])
    for j in range(3):
        if OPT["pk"]:
            for r in (2, 0): a.e(f"v_pk_mul_f32 v[{Nm(j)+r}:{Nm(j)+r+1}], v[{Nm(j)}:{Nm(j)+1}], -1.0 op_sel_hi:[0,0]")
        else:
            for r in (3, 2, 1, 0): a.e(f"v_sub_f32 v{Nm(j)+r}, 0, v{Nm(j)}")
    def qkb(issue):
        S = Sched(a, [mf(Sr(1, j), VF + 4*ks, Qf(j, ks), Nm(j) if ks == 0 else Sr(1, j)) for j in range(3) for ks in range(4)])
        S.h(0, "s_barrier")
        for r, p in zip(rd_k(KF, 1, 0), (0, 3, 6, 9)): S.v(p, r)
        if issue:
            place_tile(a, S, unit_dma(), (2, 5, 8, 11))
            for x, p in zip(advance, (6, 8, 9)): S.h(p, x)
        else: S.h(1, f"s_add_u32 s{sLag}, s{sLag}, 1")
        subs = [f"v_add_f32 v{Sr(0,j)+r}, v{Sr(0,j)+r}, v{Nm(j)}" for j in range(3) for r in range(4)]
        for x, p in zip(subs, (0, 1, 1, 3, 4, 4, 6, 7, 7, 9, 10, 10)): S.v(p, x)
        return S
    forked(qkb, None)
    for k in range(12): a.e(ex(0, k))
    for k in range(8): a.e(ex(1, k))
    for c in range(6): a.e(cv(0, 0, c))
    a.wait(lg="all")
    def stage(t, mode):
        a.c(f"stage {t} {mode}")
        kv = mode == "kv"
        S = Sched(a, qk(0)); tail_vec(S, 1, t & 1, rd_v(t, 0))
        if kv:
            for k, x in enumerate(recompute): S.h(1 + k, x)
        def cusite(S, hs):
            if kv and OPT["dyn"] and OPT["thr2"] >= 0 and t >= OPT["cufrom"] and (t - OPT["cufrom"]) % OPT["custep"] == 0:
                l0, l1 = newlabel("cu"), newlabel("cub")
                cm = [f"s_add_u32 s{sC1}, s{sC1}, {THR - OPT['thr2']}", f"s_cmp_le_u32 s{sC1}, s{sThr}"] if OPT["gate"] else ["s_nop 0", f"s_cmp_le_u32 s{sC1}, {OPT['thr2']}"]
                for k, x in enumerate([f"s_getreg_b32 s{sC1}, hwreg(HW_REG_IB_STS, 0, 4)"] + cm +
                                      [f"s_cselect_b32 s{sC1}, s{sLag}, 0", f"s_cmp_gt_u32 s{sC1}, 0"]): S.h(hs[k], x)
                def site(l0=l0, l1=l1): a.e(f"s_cbranch_scc1 {l0}"); a.e(f"{l1}:")
                S.h(hs[5], site)
                catch.append((l0, l1, t))
        if OPT["cupos"] == 0: cusite(S, (5, 6, 7, 8, 9, 10))
        S.emit(pv(t, 0)[0])
        S = Sched(a, pv(t, 0))
        for r, p in zip(rd_k(KF, t+1, 1), (0, 1, 2, 3)): S.v(p, r)
        for k, p in zip(range(8), range(4, 12)): S.v(p, ex(0, k))
        S.h(10, lambda: a.wait(lg="all"))
        if OPT["cupos"] == 1: cusite(S, (0, 1, 3, 4, 6, 7))
        if mode == "wq" and t == 13: place_tile(a, S, x_block(1, 0, sXo) + x_block(2, 0, sXo), (2, 4, 7, 9))
        S.emit(qk(1)[0])
        S = Sched(a, qk(1)); tail_vec(S, 0, (t+1) & 1, rd_v(t, 1))
        if kv:
            if t == OPT["sh1t"]: S.h(2, f"s_mov_b32 s{sThr}, s{sThN}")
            if t == 9 and OPT["sh2"] and T:
                S.h(2, f"s_cmp_eq_u32 s{sR}, s{sPre}"); S.h(3, f"s_cselect_b32 s{sThr}, 0, s{sThr}")
            S.h(10 - len(decide), lambda: vmw(a, VMW))
            for k, x in enumerate(decide): S.h(11 - len(decide) + k, x)
        else:
            S.h(11, lambda: vmw(a, {"wo": 8, "wq": 8 if t < 14 else 4}[mode]))
        S.emit(None)
        def dslot(issue):
            S = Sched(a, sm(t) + pv(t, 1))
            S.h(0, "s_barrier")
            if t + 2 < 16:
                for r, p in zip(rd_k(KF, t+2, 0), (0, 1, 2, 3)): S.v(p, (r, "kr"))
            else:
                for r, p in zip(rd_v(15, 0, KF), (0, 1, 2, 3, 4, 6, 7, 9)): S.v(p, (r, "kr"))
                S.v(10, cv(1, 1, 0)); S.v(12, cv(1, 1, 1))
                if mode == "wq":
                    for k, p in enumerate((0, 1, 2, 5, 8, 10)): S.v(p, (rd_xb(X2reg(0, k >> 1, k & 1), k >> 1, k & 1), "kr"))
            for k, p in zip(range(8), (3, 4, 6, 7, 9, 10, 12, 13)): S.v(p, ex(1, k))
            def vwait(keep):
                def f():
                    idx = [n for n, (tg, d) in enumerate(a.lg) if tg != "kr"]
                    if len(idx) > keep: a._wait(lg_idx=idx[len(idx) - 1 - keep])
                return f
            S.h(1, vwait(4)); S.h(6, vwait(0))
            if kv and issue:
                place_tile(a, S, unit_dma(), (5, 8, 11, 14))
                for x, p in zip(advance, (9, 11, 3)): S.h(p, x)
            elif kv: S.h(3, f"s_add_u32 s{sLag}, s{sLag}, 1")
            elif mode == "wo":
                wo_at(S, 2*(t-12), (5, 8)); wo_at(S, 2*(t-12) + 1, (11, 14))
            else:
                if t == 12: place_tile(a, S, x_block(0, 0, sXo), (5, 8))
                else: place_tile(a, S, w_tile(2*t - 17, 2*t - 25, 2), (5, 8))
                place_tile(a, S, w_tile(2*t - 16, 2*t - 24, 2), (11, 14))
            S.h(12 if t < 14 else 14, lambda: a.wait(lg="all"))
            return S
        nxt = qk(0)[0] if t < 14 else None
        if kv: forked(dslot, nxt)
        else: dslot(True).emit(nxt)
        assert not a.lg
    NPRE = 20
    def epi_ops(toq):
        o_ = [f"v_mul_f32 v{Or(u,j)+r}, v{Or(u,j)+r}, v{vT+j}" for u in range(2) for j in range(3) for r in range(4)]
        for p in range(4):
            for j in range(3):
                d = Qf(j, p) if toq else Or(2*p, j)
                if p: o_ += [f"v_mul_f32 v{Or(2*p+u,j)+r}, v{Or(2*p+u,j)+r}, v{vT+j}" for u in range(2) for r in range(4)]
                o_ += [f"v_cvt_pk_bf16_f32 v{d+2*u+h}, v{Or(2*p+u,j)+2*h}, v{Or(2*p+u,j)+2*h+1}" for u in range(2) for h in range(2)]
        return o_
    def stage15(mode):
        a.c(f"stage 15 {mode}")
        p0 = pv(15, 0, KF)
        S = Sched(a, [m_ for j in range(3) for m_ in [sm(15)[zj(1).index(j)]] + [p0[3*i + zj(i).index(j)] for i in range(4)]] + pv(15, 1))
        for r, p in zip(rd_v(15, 1), (0, 1, 6, 7, 8, 9, 10, 11)): S.v(p, r)
        for c, p in zip((2, 3, 4, 5), (0, 1, 6, 7)): S.v(p, cv(1, 1, c))
        for k, p in zip(range(8, 12), (2, 3, 4, 5)): S.v(p, ex(1, k))
        for j, p in enumerate((8, 9, 14)): S.v(p, f"v_accvgpr_read_b32 v{vT+j}, a{La(j)[1]}")
        S.v(10, f"v_add_f32 v{vT+3}, v{vT}, v{vT+1}"); S.v(14, f"v_add_f32 v{vT+3}, v{vT+3}, v{vT+2}")
        S.v(11, f"v_mov_b32 v{vT+4}, {f32(2.0**60 if not OPT['forceslow'] else 150.0)}")
        S.v(15, f"v_cmp_nle_f32 vcc, v{vT+3}, v{vT+4}")
        for j, p in enumerate((12, 13, 16)): S.v(p, f"v_rcp_f32 v{vT+j}, v{vT+j}")
        if mode != "wo":
            for k, x in enumerate(epi_ops(0)[:NPRE]): S.v(17 + k // 2, x)
        if mode == "kv":
            for k, x in enumerate(recompute): S.h(1 + k, x)
        if mode == "wo":
            for k in range(3): wo_at(S, 6 + k, (11 + 6*k, 14 + 6*k))
        if mode == "wq":
            place_tile(a, S, [s_ for j in range(3) for s_ in x_block(j, 0, sXo1)], (12, 14, 17, 19, 22, 24))
        S.emit(None)
        assert not a.lg
        if not OPT["nocheck"]: a.e("s_cbranch_vccnz L_slow")
    for t in range(15):
        if t == 12:
            a.e(f"s_cmp_eq_u32 s{sR}, 3"); a.e("s_cbranch_scc1 L_altwo")
            if T: a.e(f"s_cmp_eq_u32 s{sR}, s{sPre}"); a.e("s_cbranch_scc1 L_altwq")
        stage(t, "kv")
    stage15("kv")
    a.e("L_epi:")
    for r in rd_k(KF, 0, 0) + rd_k(VF, 0, 1): a.e(r)
    lg_epi = list(a.lg)
    for x in packed(epi_ops(0)[NPRE:]): a.e(x)
    if OPT["stamp"] and not OPT['qprof']: stamp_dyn(a, 5, sR, 4)
    a.e(f"s_add_u32 s{sCur}, s{sCur}, 131072")
    a.e(f"s_add_u32 s{sR}, s{sR}, 1")
    a.e(f"s_cmp_eq_u32 s{sR}, 3"); a.e("s_cbranch_scc1 L_sw2")
    a.e(f"s_cmp_eq_u32 s{sR}, 2"); a.e("s_cbranch_scc1 L_sw1")
    for r in range(3):
        a.e(f"L_sw{r}:")
        if r == 1 and T: a.e(f"s_cmp_eq_u32 s{sPre}, 1"); a.e("s_cbranch_scc1 L_q2b")
        if r < 2: code_touch(a, "L_rare", "L_altwo" if r == 0 or not T else "L_q2b", 10, 11)
        if r == 2:
            code_touch(a, "L_rare", "L_hot_end", 158, 159)
            l = newlabel("bp")
            a.e(f"s_cmp_lg_u32 s{sWv}, 0"); a.e(f"s_cbranch_scc1 {l}")
            a._emit("global_load_dword v156, v157, s[18:19] sc1")
            a.e(f"{l}:")
        for j in range(3):
            for p in range(4):
                for x in range(4): a.e(f"v_accvgpr_read_b32 v{Qf(j,p)+x}, a{QBANK[r+1] + 12*p + 4*j + x}")
        a.raw_wait("s_waitcnt lgkmcnt(0)"); a.lg = []
        qk0(bank_write(OBANK[r], lambda p, j: Or(2*p, j)))
        a.e("s_branch L_head2")
    def settle():
        if OPT["lmax"] < 4: return
        l = newlabel("st")
        a.e(f"s_cmp_lt_u32 s{sLag}, 4"); a.e(f"s_cbranch_scc1 {l}")
        for x in recompute: a.e(x)
        emit_tile(a, unit_dma())
        a.e(advance[2])
        a.e(f"{l}:")
    a.e("L_rare:")
    for l0, l1, t in catch:
        a.e(f"{l0}:")
        emit_tile(a, unit_dma())
        for x in advance + recompute: a.e(x)
        a.e(f"s_sub_u32 s{sLag}, s{sLag}, 1")
        a.e(f"s_branch {l1}")
    for l0, l1, build, nxt, lg0, lg1 in skips:
        if OPT["w2"] >= 0:
            a.e(f"{l0}w:"); vmw(a, OPT["w2"]); a.e(f"s_branch {l0}i")
        a.e(f"{l0}:")
        if OPT["w2"] >= 0: a.e(f"s_cmp_ge_u32 s{sLag}, {OPT['lmax']}"); a.e(f"s_cbranch_scc1 {l0}w")
        a.lg = list(lg0)
        build(False).emit(nxt)
        assert a.lg == lg1
        a.e(f"s_branch {l1}")
    if T:
        a.e("L_q2b:")
        for x in bank_write(OBANK[1], lambda p, j: Or(2*p, j)): a.e(x)
        a.e(f"s_sub_u32 s{sKn}, s{sKc}, 8192"); a.e(f"s_add_u32 s{sMin}, s{sCur}, {3*8192}")
        a.raw_wait("s_waitcnt vmcnt(0) lgkmcnt(0)")
        if L0 > 5: a.e("s_barrier")
        for n in range(5, L0): emit_tile(a, w_tile(wpos(n), n, 2))
        a.e("s_branch L_q2go")
        a.e(".p2align 6")
        a.e("L_altwq:")
        settle()
        a.lg = []
        for t in range(12, 15): stage(t, "wq")
        stage15("wq")
        a.e("s_branch L_epi")
    a.e(".p2align 6")
    a.e("L_altwo:")
    settle()
    a.lg = []
    for t in range(12, 15): stage(t, "wo")
    stage15("wo")
    sPr, sOut, sOo, sDst = sX, sW, sLast, 40
    LD = {0: 184, 1: 130}
    ACC, STG = 60, 160
    vSA, vSB, vLA, vLB, vOA, vFl, vFi, vPoll, vVal, TM, PK = 152, 153, 154, 158, 159, 1, 2, 6, 10, 120, 124
    def Ga(h, i, j): return (72, 208)[h] + 12 * i + 4 * j
    def spin_loop(l0, l1, cmp, reload):
        a.e(f"{l0}:")
        a.e(f"s_mov_b32 s{sT3}, 0")
        l2 = newlabel("spin")
        a.e(f"{l2}:")
        a.e(f"s_add_u32 s{sT3}, s{sT3}, 1")
        a.e(f"s_cmp_ge_u32 s{sT3}, {SPIN_MAX}")
        a.e(f"s_cbranch_scc1 {l1}")
        a.e(f"s_sleep {OPT['sleep']}")
        a._emit(reload)
        a.raw_wait("s_waitcnt vmcnt(0)")
        for x in cmp: a._emit(x)
        a._emit("s_nop 4")
        a.e(f"s_cbranch_vccnz {l2}")
        a.e(f"s_branch {l1}")
    spins = []
    def rd_g(dst, m, f):
        h, o = slot(m); i, c = divmod(f, 2)
        return [f"ds_read_b64_tr_b16 {R(off(dst, 2*e), 2)}, v{(vWAl, vWAh)[h]} offset:{o + c*512 + e*256 + i*32}" for e in range(2)]
    def gmf(n):
        h, t = divmod(n % 16, 8)
        o = []
        for i in range(4):
            for jn, j in enumerate(zj(i)):
                cs = (1, 0) if OPT["zz"] and (3 * i + jn) & 1 else (0, 1)
                for c in cs:
                    r, p = divmod(2 * t + c, 4)
                    o.append(mf(Ga(h, i, j), Greg(n & 1, 2*i + c), Qf(j, p) if r == 3 else ("a", OBANK[r] + 12 * p + 4 * j), None if t == 0 and c == cs[0] else Ga(h, i, j)))
        return o
    a.e("L_g:")
    a.lg = []
    if OPT["stamp"] and not OPT['qprof']: stamp(a, 8)
    if OPT["qprof"] == 4: stamp(a, 4)
    a.e(f"v_lshrrev_b32 v{TM}, 5, v0"); a.e(f"v_lshlrev_b32 v{TM}, 7, v{TM}")
    a.e(f"v_sub_u32 v{vWAh}, v{vVA}, v{TM}"); a.e(f"v_subrev_u32 v{vWAl}, {VB}, v{vWAh}")
    a.e(f"v_mov_b32 v{TM+1}, {XB}")
    vmw(a, 12)
    l, l0, l1 = newlabel("bc"), newlabel("bs"), newlabel("bok")
    a.e(f"s_cmp_lg_u32 s{sWv}, 0"); a.e(f"s_cbranch_scc1 {l}")
    bcmp = [f"v_and_b32 v{TM}, 0xff, v156", f"v_cmp_gt_u32 vcc, 8, v{TM}"]
    for x in bcmp: a._emit(x)
    a.e(f"s_lshl_b32 s{sTmp}, s{sPK}, 3")
    a._emit("s_nop 3")
    if not OPT["nosync"]: a.e(f"s_cbranch_vccnz {l0}")
    a.e(f"{l1}:")
    spins.append((l0, l1, bcmp, "global_load_dword v156, v157, s[18:19] sc1"))
    a.e(f"v_xor_b32 v156, s{sTmp}, v156")
    a._emit(f"ds_write_b32 v{TM+1}, v156")
    a.e(f"{l}:")
    a.e("s_barrier")
    for f in range(8):
        for r in rd_g(Greg(0, f), 0, f): a.e(r)
    epi = epi_ops(1)
    NC = 24 if OPT["pk"] else 16
    for x in packed(epi[:NC]): a.e(x)
    epi = epi[NC:]
    def srd_atoms(d, lo, o): return [[f"s_add_u32 s{d}, s{lo}, {o}", f"s_addc_u32 s{d+1}, s{lo+1}, 0"], [f"s_and_b32 s{d+1}, s{d+1}, 0xffff"], [f"s_mov_b32 s{d+3}, 0x20000"]]
    T1_, T2_ = f"s{sTmp}", f"s{sT2}"
    setup_ = [[f"s_mul_i32 {T1_}, s{sG}, {XG}"]] + srd_atoms(sP, 28, T1_) + [[f"s_mov_b32 s{sP+2}, {XG}"], [f"s_mul_i32 {T2_}, s{sU}, {XD}"], [f"s_add_u32 {T1_}, {T1_}, {T2_}"]]
    setup_ += srd_atoms(sPr, 28, T1_) + [[f"s_mov_b32 s{sPr+2}, 0"]]
    if OPT["ibg"]:
        setup_ += [[x] for x in (f"s_mul_i32 {T2_}, s{sWv}, 1536", f"s_add_u32 {T2_}, {T2_}, {T1_}", f"s_add_u32 {T2_}, {T2_}, {5*XP}",
            "v_min_u32 v3, 47, v0", "v_mul_u32_u24 v132, 43, v3", "v_lshrrev_b32 v132, 9, v132", "v_lshlrev_b32 v3, 7, v3",
            "v_mul_u32_u24 v132, 4608, v132", f"v_add3_u32 v3, v3, v132, {T2_}", f"s_add_u32 {T2_}, {T2_}, {XD - 6144 + 1408}",
            "v_add_u32 v157, 24576, v3", f"v_min_u32 v157, {T2_}, v157")]
    for i in range(7):
        setup_ += [[f"s_xor_b32 s{sDst+i}, s{sU}, {i ^ 7}"], [f"s_mul_i32 s{sDst+i}, s{sDst+i}, {XD}"], [f"s_add_u32 s{sDst+i}, s{sDst+i}, {i*6144}"]]
    setup_ += [[f"s_mul_i32 {T1_}, s{sB}, 491520"], [f"s_mul_i32 {T2_}, s{sBr}, 1280"], [f"s_add_u32 {T1_}, {T1_}, {T2_}"], [f"s_lshl_b32 {T2_}, s{sU}, 5"], [f"s_add_u32 {T1_}, {T1_}, {T2_}"]]
    setup_ += srd_atoms(sOut, 16, T1_) + [[f"s_mov_b32 s{sOut+2}, 0"]]
    setup_ += [[x] for x in (f"s_mul_i32 {T1_}, s{sWv}, 1536", f"v_lshl_add_u32 v{vSA}, v0, 4, {T1_}", f"s_add_u32 {T1_}, {T1_}, 1024", f"v_lshl_add_u32 v{vSB}, v0, 3, {T1_}",
        *((f"v_and_b32 v{TM}, 15, v0", f"v_mul_u32_u24 v{TM}, 2560, v{TM}", f"v_lshrrev_b32 v{TM+3}, 4, v0", f"v_lshl_add_u32 v{TM}, v{TM+3}, 3, v{TM}") if not OPT["bp"] else
          (f"v_lshrrev_b32 v{TM}, 2, v0", f"v_and_b32 v{TM+3}, 3, v0", f"v_lshl_add_u32 v11, v{TM+3}, 4, v{TM}", "v_lshlrev_b32 v11, 2, v11",
           f"v_mul_u32_u24 v{TM}, 2560, v{TM}", f"v_lshl_add_u32 v{TM}, v{TM+3}, 3, v{TM}")),
        f"s_mul_i32 {T1_}, s{sWv}, {48*2560}", f"v_add_u32 v{vOA}, {T1_}, v{TM}",
        f"s_lshl_b32 {T1_}, s{sWv}, 7", f"s_lshl_b32 {T2_}, s{sU}, 2", f"s_add_u32 {T2_}, {T2_}, {T1_}", f"v_lshl_add_u32 v{vFl}, v0, 9, {T2_}",
        f"s_lshl_b32 {T2_}, s{sU}, 9", f"s_add_u32 {T2_}, {T2_}, {T1_}", f"v_and_b32 v{TM}, 7, v0", f"v_lshl_add_u32 v{vFi}, v{TM}, 2, {T2_}",
        f"v_mov_b32 v{vVal}, 0", f"v_mov_b32 v{vPoll}, 0", f"s_mov_b32 s{sGc}, 0" if not OPT["emu3"] else f"s_lshl_b32 s{sGc}, s{sTyp}, 1", f"s_mov_b32 s{sOo}, -512" if not OPT["emu3"] else f"s_mov_b32 s{sOo}, 0", f"s_mov_b32 s{sS8}, 0xffff0000")]
    if OPT["mred"]:
        sel_ = [x for x in ("v_and_b32 v134, 1, v0", "v_lshlrev_b32 v134, 4, v134", "v_mov_b32 v135, 0x3f80", "v_lshlrev_b32 v134, v134, v135",
            "v_bfe_u32 v135, v0, 1, 3", "v_lshrrev_b32 v136, 4, v0", "v_lshlrev_b32 v136, 1, v136", "v_xor_b32 v135, v135, v136",
            "v_cmp_eq_u32 vcc, 0, v135", "v_mov_b32 v142, 0", "v_cndmask_b32 v136, 0, v134, vcc", "v_cmp_eq_u32 vcc, 1, v135", "v_mov_b32 v143, 0",
            "v_cndmask_b32 v137, 0, v134, vcc", "v_accvgpr_write_b32 a0, v136", "v_accvgpr_write_b32 a2, v136", "v_accvgpr_write_b32 a1, v137",
            "v_accvgpr_write_b32 a3, v137", "v_mov_b32 v148, 0", "v_mov_b32 v149, 0")]
    m = 9
    Ss = []
    for n in range(8):
        S = Sched(a, gmf(n)); Ss.append(S)
        rds = []
        for f in range(8): rds += rd_g(Greg((n + 1) & 1, f), n + 1, f)
        for r, p in zip(rds, RDPOS): S.v(p, r)
        for gp in ([(6, 11), (16, 19)] if n < 4 else [(6, 11)]): wo_at(S, m, gp); m += 1
        if n % 4 == 1: end_sync(a, S, {1: 12, 5: 16}[n], 0)
        else: S.h(22, lambda: a.wait(lg="all"))
        if n == 2: S.v(20, f"ds_read_b32 v{TM+2}, v{TM+1}")
        if OPT["ibg"] and n == OPT["ibn"]: S.v(16, lambda: a._emit(f"global_load_dword v132, v3, s[28:29]"))
        if OPT["ibg"] and n == min(7, OPT["ibn"] + 3): S.v(16, lambda: a._emit(f"global_load_dword v133, v157, s[28:29]"))
        if n == 7:
            S.v(19, f"v_readfirstlane_b32 s{sTmp}, v{TM+2}"); S.h(21, f"s_cmp_lg_u32 s{sTmp}, 0")
    assert m == 21
    n, k = 0, 0
    for atom in setup_:
        while True:
            S = Ss[n]
            ok = (not S.hold[k]) if atom[0].startswith("s_") else free_slots(S)[k] > 0
            if atom[0].startswith("s_") and len(atom) > 1 and free_slots(S)[k] == 0: ok = False
            if ok: break
            k += 1
            if k == 24: n += 1; k = 0
        for x in atom: (S.h if x.startswith("s_") else S.v)(k, x)
        if not atom[0].startswith("s_") or True:
            k += 1
            if k == 24: n += 1; k = 0
    assert (n, k) < (7, 18), (n, k)
    for n in range(7):
        epi = fill_ops(Ss[n], epi)
        if n == 5: assert len(epi) <= 72 - 8, len(epi)
    assert not epi, len(epi)
    if OPT["mred"]: assert not fill_ops(Ss[7], sel_)
    for n in range(8):
        a.c(f"G first half, sub-step {n}")
        Ss[n].emit(gmf(n + 1)[0])
    a.e("s_branch L_gx" if OPT["xmode"] == 1 else "s_cbranch_scc1 L_gx")
    NP = {0: 4, 1: 3}
    def cvs(h): return [f"v_cvt_pk_bf16_f32 v{STG + 6*i + 2*j + x}, v{Ga(h,i,j)+2*x}, v{Ga(h,i,j)+2*x+1}" for i in range(NP[h]) for j in range(3) for x in range(2)]
    def rops(h, k):
        o = []
        for r in range(6):
            s = LD[h] + 6*k + r; t = TM + 2 * (r & 1)
            src = Ga(1, 3, r >> 1) + 2 * (r & 1) if (h, k) == (0, 0) else ACC + 2*r
            o += [f"v_lshlrev_b32 v{t}, 16, v{s}", f"v_and_b32 v{t+1}, s{sS8}, v{s}",
                  f"v_add_f32 v{ACC+2*r}, v{src}, v{t}", f"v_add_f32 v{ACC+2*r+1}, v{src+1}, v{t+1}"]
        return o
    def ldreg(h, k):
        if not OPT["mred"]: return LD[h] + 6*k, LD[h] + 6*k + 4
        if (h, k) == (1, 2): return 144, 150
        b_ = LD[h] + 12 * (k >> 1)
        return (b_ + 6, b_) if k & 1 else (b_ + 2, b_ + 10)
    def rmf(h, pr):
        q_ = (142, 146, 148) if (h, pr) == (1, 1) else [LD[h] + 12*pr + 4*j for j in range(3)]
        return [mf(ACC + 4*j, ("a", 0), q_[j], Ga(1, 3, j) if (h, pr) == (0, 0) else ACC + 4*j) for j in range(3)]
    rcv = [f"v_cvt_pk_bf16_f32 v{PK+r}, v{ACC+2*r}, v{ACC+2*r+1}" for r in range(6)]
    bps = [f"ds_bpermute_b32 v{PK+r}, v11, v{PK+r}" for r in range(6)] if OPT["bp"] else []
    def rst(j): return ([f"s_add_u32 s{sOff2}, s{sOo}, {j*40960}"], f"buffer_store_dwordx2 {vr(PK+2*j,2)}, v{vOA}, {sr(sOut,4)}, s{sOff2} offen{['', ' sc1', ' nt', ' sc0 sc1'][OPT['opol']]}")
    chk_cmp = [f"v_cmp_gt_u32 vcc, v{vVal}, v{vPoll}"]
    poll = f"buffer_load_dword v{vPoll}, v{vFi}, {sr(sF,4)}, 0 offen sc1"

    def g_phase(fast):
        pol = ("", " nt", " sc0")[OPT["xs"]] if fast else " sc1"
        la, lb = (vSA, vSB) if fast else (vLA, vLB)
        def xst(h, i):
            o4, o2 = (2, 0) if OPT["mred"] and i & 1 else (0, 4)
            return [([], f"buffer_store_dwordx4 {vr(STG+6*i+o4,4)}, v{vSA}, {sr(sP,4)}, s{sDst+4*h+i} offen{pol}"),
                    ([], f"buffer_store_dwordx2 {vr(STG+6*i+o2,2)}, v{vSB}, {sr(sP,4)}, s{sDst+4*h+i} offen{pol}")]
        def xld(h, k): return [([f"s_mov_b32 s{sOff2}, {(4*h+k)*6144}"], f"buffer_load_dwordx4 {vr(ldreg(h,k)[0],4)}, v{la}, {sr(sPr,4)}, s{sOff2} offen sc1"),
                               ([], f"buffer_load_dwordx2 {vr(ldreg(h,k)[1],2)}, v{lb}, {sr(sPr,4)}, s{sOff2} offen sc1")]
        flag = f"buffer_store_dword v{vVal}, v{vFl}, {sr(sF,4)}, 0 offen{pol}"
        def check():
            l0, l1 = newlabel("sp"), newlabel("ok")
            if not OPT["nosync"]: a.e(f"s_cbranch_vccnz {l0}")
            a.e(f"{l1}:")
            spins.append((l0, l1, chk_cmp, poll))
        if fast: a.e(f"v_add_u32 v{vSA}, {5*XP}, v{vSA}"); a.e(f"v_add_u32 v{vSB}, {5*XP}, v{vSB}")
        else: a.e(f"v_subrev_u32 v{vLA}, {XP}, v{vSA}"); a.e(f"v_subrev_u32 v{vLB}, {XP}, v{vSB}")
        a.e(f"s_branch L_gmid{int(fast)}")
        late = []
        def body():
            del late[:]
            Ss = [Sched(a, gmf(n) + (rmf(n // 8, 0) + rmf(n // 8, 1) if OPT['mred'] and n % 8 == 6 else [])) for n in range(16)]
            cap = [[2] * 24 for _ in range(16)]
            ops = []
            def vmem(n, g_, steps, kind):
                if isinstance(kind, tuple) and kind[0] == "T": place_tile(a, Ss[n], steps, g_)
                else:
                    for (pre, d), x in zip(steps, g_):
                        for y in pre: Ss[n].h(x, y)
                        Ss[n].v(x, lambda d=d: a._emit(d))
                for x in g_: cap[n][x] = 0; ops.append((n, x, kind))
            tpos = {0: [(6, 11)], 1: [(6, 11)], 4: [(6, 11), (16, 19)], 5: [(11, 16), (19, 22)], 6: [(6, 11)], 7: [(11, 16)]}
            m = 13
            for n in range(16):
                h, t = divmod(n, 8); S = Ss[n]
                rds = []
                for f in range(8): rds += rd_g(Greg((n + 1) & 1, f), n + 1, f)
                for r, p in zip(rds, RDPOS): S.v(p, r); cap[n][p] -= 1
                cap[n][23] = 0 if n % 4 == 1 else 1; cap[n][20] = min(cap[n][20], 1); cap[n][21] = min(cap[n][21], 1)
                for gp in tpos.get(t, []):
                    st, post = wo_tile(m)
                    if m == 16:
                        S.h(gp[0] - 4, f"s_cmp_eq_u32 s{sGc}, 4"); S.h(gp[0] - 3, f"s_cselect_b32 s{sWo+2}, 0, s{sWo+2}")
                    vmem(n, gp, st, ("T", m))
                    for x in post: S.h(gp[1], x)
                    m += 1
                if t == 2:
                    xs = [s_ for i in range(NP[1-h]) for s_ in xst(1 - h, i)] + [s_ for k in range(NP[h]) for s_ in xld(h, k)]
                    if OPT["xord"]:
                        st_ = xs[:2*NP[1-h]]; ld_ = xs[2*NP[1-h]:]
                        pat = {6: "SLSLLSL" * 2, 8: "SSLSLSL" + "SSLSLSL"}[len(st_)] if OPT["xord"] == 1 else {6: "SSLLSLL" * 2, 8: "SSSLSLL" * 2}[len(st_)]
                        xs = [(st_ if c_ == "S" else ld_).pop(0) for c_ in pat]
                    pos = [(n + d, g_) for d in (0, 1) for g_ in (6, 11, 16, 19, 20, 21, 22)]
                    for s_, (n2, g_) in zip(xs, pos): vmem(n2, (g_,), [s_], ("X", h))
                if t == 5: vmem(n, (6,), [([], flag)], "F"); S.v(4, f"v_add_u32 v{vVal}, 1, v{vVal}"); cap[n][4] -= 1
                if t == 7: vmem(n, (6,), [([], poll)], ("P", h))
            assert m == 29
            if OPT["opos"] == 0: vmem(4, (20, 21, 22), [rst(j) for j in range(3)], "O")
            else:
                for j, (n2, g_) in enumerate(((6, 16), (8, 16), (14, 16)) if OPT["opos"] == 1 else ((6, 16), (7, 21), (8, 19))): vmem(n2, (g_,), [rst(j)], "O")
            for x, (n2, g_) in zip(bps, ((2, 23), (3, 23), (4, 22), (4, 23), (6, 22), (6, 23))): Ss[n2].v(g_, x); cap[n2][g_] = max(0, cap[n2][g_] - 1)
            ops.sort(key=lambda x: (x[0], x[1]))
            ops2 = ops + [(n + 16, g_, k) for n, g_, k in ops]
            def younger(pt, n, g_): return len([o for o in ops2 if pt < (o[0], o[1]) < (n, g_)])
            for h in range(2):
                pt = max((o[0], o[1]) for o in ops if o[2] == ("X", h))
                Ss[8*h + 5].h(2, lambda c=younger(pt, 8*h + 5, 2): vmw(a, c))
                pt = [(o[0], o[1]) for o in ops if o[2] == ("P", h)][0]
                nc = 8*h + 9
                Ss[nc % 16].h(16, lambda c=younger(pt, nc, 16): vmw(a, c))
                Ss[nc % 16].v(16, lambda: a._emit(chk_cmp[0])); cap[nc % 16][16] -= 1
                Ss[nc % 16].h(20, check)
            def fill(lst, n, g_, rec=None):
                for op in lst:
                    while cap[n % 16][g_] <= 0:
                        g_ += 1
                        if g_ == 24: n += 1; g_ = 0
                    if not OPT["norv"]: Ss[n % 16].v(g_, lambda op=op: a._emit(op))
                    cap[n % 16][g_] -= 1
                    if rec is not None and n >= 16: rec.append(op)
                return n, g_
            e = fill(cvs(1), 0, 1); assert e < (2, 5), e
            e = fill(cvs(0), 8, 1); assert e < (10, 5), e
            if OPT["mred"]: fill(rcv, 15, 7)
            else:
                e = fill(rops(0, 0), 5, 2); assert e < (8, 10), e
                e = fill([x for k in range(1, 4) for x in rops(0, k)], *e); assert e < (13, 2), e
                e = fill([x for k in range(3) for x in rops(1, k)] + rcv, 13, 2, late); assert e < (18, 22), e
            S = Ss[7]
            if not fast: S.v(19, f"v_add_u32 v{vSA}, {XP}, v{vSA}"); S.v(20, f"v_add_u32 v{vSB}, {XP}, v{vSB}")
            S = Ss[15]
            S.h(0, f"s_cmp_ge_u32 s{sGc}, 1")
            S.h(1, f"s_cselect_b32 s{sOut+2}, {191*2560 + 1024 + 32}, 0")
            S.h(2, f"s_add_u32 s{sOo}, s{sOo}, 256")
            S.h(3, f"s_mov_b32 s{sPr+2}, {5*XP + XD}")
            if not fast:
                S.v(19, f"v_add_u32 v{vLA}, {XP}, v{vLA}"); S.v(20, f"v_add_u32 v{vLB}, {XP}, v{vLB}")
            S.h(18, f"s_add_u32 s{sGc}, s{sGc}, 1")
            S.h(19, f"s_cmp_lt_u32 s{sGc}, 5")
            for n in range(16):
                a.c(f"G sub-step {n}")
                if n == 8:
                    assert not a.lg
                    a.e(f"L_gmid{int(fast)}:")
                if n % 4 == 1:
                    tid = n + 5 + 16
                    pt = max((o[0], o[1]) for o in ops2 if o[2] == ("T", tid if tid < 29 else tid - 16) and (o[0] < 16) == (tid < 29))
                    cnt = len([o for o in ops2 if pt < (o[0], o[1]) < (n + 16, 22) and (o[0] >= 16 + 8 * (n // 8) or (isinstance(o[2], tuple) and o[2][0] == "T"))])
                    end_sync(a, Ss[n], min(cnt, 63), 0)
                else:
                    def w():
                        k = min(len(a.lg), OPT['gkeep']); a.raw_wait(f"s_waitcnt lgkmcnt({k})"); a.lg = a.lg[len(a.lg) - k:] if k else []
                    Ss[n].h(22, w)
                Ss[n].emit(gmf(n + 1)[0])
        lab = "L_gl_fast" if fast else "L_gl_far"
        if OPT["qprof"] == 2 and fast: stamp(a, 5); stamp(a, 6, False)
        a.e(".p2align 6")
        a.e(f"{lab}:")
        if OPT["qprof"] == 4: stamp_dyn(a, 4, sGc, 5)
        a.lg = []
        mark = len(a.ins); nops0 = a.nops; ns = len(spins)
        body(); lg_end = list(a.lg)
        del a.ins[mark:]; a.nops = nops0; del spins[ns:]
        body(); assert a.lg == lg_end
        a.e(f"s_cbranch_scc1 {lab}")
        if OPT["qprof"] == 2 and fast: stamp(a, 7); stamp(a, 8, False)
        if OPT["qprof"] == 4: stamp(a, 3)
        a.c("tail")
        for x in cvs(1): a.e(x)
        stamp(a, 2)
        vmw(a, 2)
        a._emit(chk_cmp[0]); a._emit("s_nop 4"); check()
        for i in range(3): emit_tile(a, xst(1, i))
        def ntv(st): return [(p_, d_ + " nt") if OPT["tl"] & 1 else (p_, d_) for p_, d_ in st]
        for k in range(4): emit_tile(a, ntv(xld(0, k)))
        for op in late + bps: a._emit(op)
        vmw(a, 8)
        a.e(f"v_add_u32 v{vVal}, 1, v{vVal}")
        a._emit(flag)
        early_out = not OPT["tord"]
        if early_out:
            a.raw_wait("s_waitcnt lgkmcnt(0)"); emit_tile(a, [rst(j) for j in range(3)])
        for k in range(4):
            vmw(a, 2 * (3 - k) + (4 if early_out else 1))
            for op in (rops(0, k) if not OPT["mred"] else rmf(0, k >> 1) if k & 1 else []): a._emit(op)
            if k == (3 if OPT["mred"] else 2): a._emit(poll)
        if fast and OPT["cln"] & 1: a._emit(f"global_store_dword v3, v{vVal}, s[28:29] sc1")
        vmw(a, 1 if fast and OPT["cln"] & 1 else 0)
        a._emit(chk_cmp[0]); a._emit("s_nop 4"); check()
        for k in range(3): emit_tile(a, ntv(xld(1, k)))
        if not early_out:
            a.raw_wait("s_waitcnt lgkmcnt(0)"); emit_tile(a, [rst(j) for j in range(3)])
        a.e(f"s_mov_b32 s{sOo}, 1024")
        for k in range(3):
            vmw(a, 2 * (2 - k) + (0 if early_out else 3))
            for op in (rops(1, k) if not OPT["mred"] else rmf(1, k - 1) if k else []): a._emit(op)
        if fast and OPT["cln"] & 4: a._emit(f"global_store_dword v3, v{vVal}, s[28:29] sc1")
        if fast and OPT["cln"] & 2: a._emit(f"global_store_dword v157, v{vVal}, s[28:29] sc1")
        for op in rcv + bps: a._emit(op)
        a.raw_wait("s_waitcnt lgkmcnt(0)")
        emit_tile(a, [rst(j) for j in range(3)])
    g_phase(True)
    a.e("L_fin:")
    stamp(a, 9, False); stamp(a, 10)
    if OPT["leak"] >= 0:
        k = OPT["leak"]
        if k == 0: a.e("s_mov_b32 s79, 0")
        elif k == 9: a.e("s_sub_u32 s79, s98, s82"); a.e("s_lshr_b32 s79, s79, 4")
        else: a.e(f"s_sub_u32 s79, s{80+2*k}, s80")
        a.e("s_add_u32 s79, s79, 15000")
        if OPT["leakwg"] == 1: a.e("s_cmp_lt_u32 s2, 8"); a.e("s_cselect_b32 s79, s79, 0")
        if OPT["leakwg"] == 2: a.e("s_cmp_ge_u32 s2, 248"); a.e("s_cselect_b32 s79, s79, 0")
        if OPT["leakwg"] in (4, 5): a.e("s_and_b32 s76, s2, 1"); a.e("s_cselect_b32 s79, s79, 0" if OPT["leakwg"] == 5 else "s_cselect_b32 s79, 0, s79")
        if OPT["leakwg"] == 3: a.e("s_cmp_eq_u32 s2, 0"); a.e("s_cselect_b32 s79, s79, 0")
        a.e("L_leak:")
        a._emit("s_memrealtime s[76:77]"); a.raw_wait("s_waitcnt lgkmcnt(0)")
        a.e("s_sub_u32 s76, s76, s80"); a.e("s_cmp_lt_u32 s76, s79"); a.e("s_cbranch_scc1 L_leak")
    stamp_store(a, "L_end", 0)
    dbg_store(a)
    a.e("L_end:")
    a.e("s_endpgm")
    nsp = len(spins)
    for s_ in list(spins): spin_loop(*s_)
    a.e("L_hot_end:")
    a.e(".p2align 6")
    a.e("L_gx:")
    g_phase(False)
    a.e("s_branch L_fin")
    for s_ in list(spins[nsp:]): spin_loop(*s_)
    a.reset_counters()
    a.e("L_slow:")
    a.raw_wait("s_waitcnt vmcnt(0) lgkmcnt(0)")
    vKo, vVo, t0, t1 = 10, 11, P_ + 12, P_ + 13
    a.e("s_nop 7")
    a.e(f"v_and_b32 v{t0}, 7, v0"); a.e(f"v_lshlrev_b32 v{t0}, 10, v{t0}")
    a.e(f"v_bfe_u32 v{t1}, v0, 3, 1"); a.e(f"v_lshl_add_u32 v{t0}, v{t1}, 8, v{t0}")
    a.e(f"v_lshrrev_b32 v{t1}, 4, v0"); a.e(f"v_lshl_add_u32 v{vKo}, v{t1}, 4, v{t0}")
    a.e(f"v_bfe_u32 v{t0}, v0, 4, 1"); a.e(f"v_lshlrev_b32 v{t0}, 12, v{t0}")
    a.e(f"v_lshrrev_b32 v{t1}, 5, v0"); a.e(f"v_lshl_add_u32 v{t0}, v{t1}, 8, v{t0}")
    a.e(f"v_and_b32 v{t1}, 15, v0"); a.e(f"v_lshl_add_u32 v{vVo}, v{t1}, 1, v{t0}")
    for j in range(3): a.e(f"v_mov_b32 v{vT+j}, 0xff800000")
    def slow_qk(cinit):
        for u, kf in ((0, KF), (1, VF)):
            for ks in range(4): a.e(f"buffer_load_dwordx4 {vr(kf + 4*ks,4)}, v{vKo}, {sr(sK,4)}, s{sT2} offen offset:{u*512 + ks*64}")
        for u, kf in ((0, KF), (1, VF)):
            for j in range(3):
                for ks in range(4):
                    a.e(mf(Sr(u, j), kf + 4*ks, Qf(j, ks), (Nm(j) if cinit else None) if ks == 0 else Sr(u, j)))
    a.e(f"s_and_b32 s{sT2}, s{sRot}, 0x60000"); a.e(f"s_xor_b32 s{sT2}, s{sT2}, s{sCur}")
    a.e(f"s_add_u32 s{sT3}, s{sT2}, 131072")
    a.e("L_slow_p1:")
    slow_qk(False)
    for j in range(3):
        for u in range(2):
            s = Sr(u, j)
            a.e(f"v_max3_f32 v{vT+j}, v{vT+j}, v{s}, v{s+1}")
            a.e(f"v_max3_f32 v{vT+j}, v{vT+j}, v{s+2}, v{s+3}")
    a.e(f"s_add_u32 s{sT2}, s{sT2}, 8192")
    a.e(f"s_cmp_lt_u32 s{sT2}, s{sT3}")
    a.e("s_cbranch_scc1 L_slow_p1")
    rowred(a, "v_max_f32", [vT, vT+1, vT+2], [Nm(j) for j in range(3)])
    for j in range(3):
        for r in range(4): a.e(f"v_sub_f32 v{Nm(j)+r}, 0, v{vT+j}")
    for r in range(96): a.e(f"v_mov_b32 v{O_+r}, 0")
    for r in range(12): a.e(f"v_accvgpr_write_b32 a{192+r}, 0")
    a.e(f"s_sub_u32 s{sT2}, s{sT3}, 131072")
    a.e("L_slow_p2:")
    slow_qk(True)
    for u in range(2):
        for k in range(12): a.e(ex(u, k))
    for u in range(2):
        for c in range(6): a.e(cv(u, 0, c))
    for half, fr in ((0, KF), (1, VF)):
        for hi in range(2):
            for i in range(4):
                for e in range(2):
                    for rp in range(2):
                        r = 2*rp + hi
                        a.e(f"buffer_load_ushort v{(S_ if hi else fr) + 4*i + 2*e + rp}, v{vVo}, {sr(sV,4)}, s{sT2} offen offset:{r*1024 + e*512 + (4*half+i)*32}")
        a.wait(vm="all")
        for x in range(16): a.e(f"v_lshl_or_b32 v{fr+x}, v{S_+x}, 16, v{fr+x}")
    for m in sm(2): a.e(m)
    for half, fr in ((0, KF), (1, VF)):
        for m in pv(2, half, fr): a.e(m)
    a.e(f"s_add_u32 s{sT2}, s{sT2}, 8192")
    a.e(f"s_cmp_lt_u32 s{sT2}, s{sT3}")
    a.e("s_nop 7")
    a.e("s_cbranch_scc1 L_slow_p2")
    for j in range(3): a.e(f"v_accvgpr_read_b32 v{vT+j}, a{La(j)[1]}")
    for j in range(3): a.e(f"v_rcp_f32 v{vT+j}, v{vT+j}")
    a.e(f"s_cmp_eq_u32 s{sR}, 3"); a.e("s_cbranch_scc1 L_g")
    for x in epi_ops(0)[:NPRE]: a.e(x)
    a.e("s_branch L_epi")
    return a

HDR = f"""; Fused attention blocks A and B in one launch (generated by my own scheduling script, all instruction placement by hand-written rules).
; One workgroup per CU (4 waves x 512 registers, 48 query rows per wave) owns 4 heads of one (branch, batch):
;   Q projection -> softmax attention -> output-projection partial (K = 512); the 8 workgroups of a batch then
;   reduce-scatter their partials through d_ws (L2-local when all 8 report the same XCC id, write-through otherwise).
; kernarg: 0 A_x, 8 A_k, 16 A_v, 24 A_wq, 32 A_wo, 40 B_x, 48 B_k, 56 B_v, 64 B_wq, 72 B_wo, 80 out, 88 debug, 96 ws
; @launch grid=(256,1,1) block=(256,1,1) lds={LDS}
.amdgcn_target "amdgcn-amd-amdhsa--gfx950"
.text
"""
def kern(name, a):
    return f".globl {name}\n.p2align 8\n.type {name},@function\n{name}:\n" + a.text()
def desc(name, nv, acc, ns):
    return f""".p2align 6
.amdhsa_kernel {name}
  .amdhsa_next_free_vgpr {nv}
  .amdhsa_next_free_sgpr {ns}
  .amdhsa_accum_offset {acc}
  .amdhsa_group_segment_fixed_size 0
  .amdhsa_kernarg_size 104
  .amdhsa_user_sgpr_count 2
  .amdhsa_user_sgpr_kernarg_segment_ptr 1
  .amdhsa_system_sgpr_workgroup_id_x 1
  .amdhsa_float_denorm_mode_32 3
.end_amdhsa_kernel
"""
if __name__ == "__main__":
    a = main_kernel()
    if OPT["pro2"]:
        ix = lambda t: [k for k, i in enumerate(a.ins) if i.text == t][0]
        i0, i1, i2 = ix("L_p0:"), ix("L_p1:"), ix("L_hot_end:") + 1
        a.ins = a.ins[:i0] + a.ins[i1:i2] + [Ins(".p2align 6")] + a.ins[i0:i1] + [Ins("L_p0end:")] + a.ins[i2:]
    if OPT["nodma"] & 1: a.ins = [i for i in a.ins if not (i.kind == "dma" and " v1, " in i.text)]
    if OPT["nodma"] & 2: a.ins = [i for i in a.ins if not (i.kind == "dma" and " v1, " not in i.text)]
    if OPT["nodma"] & 4: a.ins = [i for i in a.ins if not (i.kind == "store" and ("v152," in i.text or "v153," in i.text))]
    if OPT["nodma"] & 8: a.ins = [i for i in a.ins if not (i.kind == "store" and "v159," in i.text)]
    if OPT["nox2"]: a.ins = [i for i in a.ins if not (i.kind == "vmem" and ("v121," in i.text))]
    if OPT["noload"]: a.ins = [i for i in a.ins if not (i.kind == "vmem" and ("v152," in i.text or "v153," in i.text))]
    if OPT["x1"]:
        out = []; on = False; cnt = 0
        for i in a.ins:
            if i.text in ("L_epi:", "L_q2b:") or (OPT["x1"] & 2 and i.text in ("; Q conversion", "; Q2 conversion")): on = True
            if i.op in ("s_barrier",) or i.kind == "mfma" or i.text == "L_enter:": on = False
            out.append(i)
            if on and i.kind == "valu":
                cnt += 1
                if cnt % 2 == 0: out.append(Ins(f"v_mfma_f32_16x16x32_bf16 a[{240+4*(cnt//2%4)}:{243+4*(cnt//2%4)}], a[144:147], a[{96+4*(cnt//2%8)}:{99+4*(cnt//2%8)}], 0"))
        a.ins = out
    if OPT["x2"]:
        out = []; on = False
        for i in a.ins:
            if i.text == "L_q2:": on = True
            if i.text == "L_q2l:": on = False
            if on and i.kind == "mfma": out.append(Ins(f"s_nop {OPT['x2']}"))
            out.append(i)
        a.ins = out
    if OPT["abl"]:
        cnt = [0]
        def drop2(i):
            if OPT["abl"] & 1 and i.op == "ds_read_b64_tr_b16" and (", v4 " in i.text or ", v5 " in i.text):
                cnt[0] += 1; return (cnt[0] // 2) % 2 == 1
            if OPT["abl"] & 2 and i.kind == "lds" and (", v2 " in i.text or ", v3 " in i.text):
                cnt[0] += 1; return (cnt[0] // 2) % 2 == 1
            if OPT["abl"] & 4 and i.kind == "mfma" and "a[204:207], v[" in i.text and i.text.split()[1].startswith(("a[192", "a[196", "a[200")): return True
            if OPT["abl"] & 8 and i.op in ("v_lshlrev_b32", "v_and_b32", "v_add_f32") and ("v120" in i.text or "v121" in i.text or "v122" in i.text or "v123" in i.text) and "v0" not in i.text.replace("v0,", "v0 ").split(): return True
            return False
        a.ins = [i for i in a.ins if not drop2(i)]
    if OPT["gpol"] or OPT["kpol"]:
        out = []
        for i in a.ins:
            if i.kind == "dma" and " nt " not in i.text and OPT["gpol"]: i = Ins(i.text.replace(" lds", [" ", " sc1", " sc0", " nt", " sc0 sc1"][OPT["gpol"]] + " lds"))
            elif i.kind == "dma" and " nt " in i.text and OPT["kpol"]: i = Ins(i.text.replace(" nt lds", [" ", " sc1 nt", " sc0 nt", " sc0 sc1 nt"][OPT["kpol"]] + " lds"))
            out.append(i)
        a.ins = out
    if OPT["xb"]:
        out = []; on = False; c = 0
        for i in a.ins:
            if i.text.startswith("; Q") and "sub-step" in i.text: on = True
            if "conversion" in i.text: on = False
            if on and i.op == "s_barrier":
                c += 1
                if c % OPT["xb"]: continue
            out.append(i)
        a.ins = out
    if OPT["xa"]:
        i0 = [k for k, i in enumerate(a.ins) if i.text == "; stage 0 kv"][0]; i1 = [k for k, i in enumerate(a.ins) if i.text == "; stage 15 kv"][0]
        def drop(i):
            if OPT["xa"] & 1 and i.op == "s_cbranch_vccnz": return True
            if OPT["xa"] & 2 and i.op in ("s_mul_i32", "s_bfe_u32", "s_xor_b32", "s_getreg_b32", "s_cselect_b32", "s_cselect_b64", "s_sub_u32", "s_cmp_gt_u32", "s_cmp_gt_i32", "s_cmp_le_u32"): return True
            if OPT["xa"] & 4 and i.op == "s_barrier": return True
            if OPT["xa"] & 8 and i.op == "s_waitcnt" and "lgkm" in i.text: return True
            if OPT["xa"] & 16 and i.op == "s_mul_i32": return True
            return False
        a.ins = a.ins[:i0] + [i for i in a.ins[i0:i1] if not drop(i)] + a.ins[i1:]
    if OPT["strip"] == 2:
        i0 = [k for k, i in enumerate(a.ins) if i.text == "L_head:"][0]; i1 = [k for k, i in enumerate(a.ins) if i.text == "L_epi:"][0]
        a.ins = a.ins[:i0] + [Ins("s_nop 4") if i.kind == "mfma" else i for i in a.ins[i0:i1] if i.kind not in ("lds", "trans", "valu")] + a.ins[i1:]
    if OPT["strip"] == 1:
        i0 = [k for k, i in enumerate(a.ins) if i.text == "L_head:"][0]; i1 = [k for k, i in enumerate(a.ins) if i.text == "L_epi:"][0]
        a.ins = a.ins[:i0] + [i for i in a.ins[i0:i1] if i.kind not in ("mfma", "lds", "trans", "valu")] + a.ins[i1:]
    ns = 102 if OPT["stamp"] else NSGPR
    open(sys.argv[1], "w").write(HDR + kern(NAME + "_kernel", a) + '.section .rodata,"a"\n' + desc(NAME + "_kernel", 512, 256, ns))
    print("instrs", len(a.ins), "nops", a.nops)
```
